```python
import torch

def _softmax(x, axis=-1):
    return torch.softmax(x, dim=axis)
def _gelu(x):
    return torch.nn.functional.gelu(x, approximate="tanh")
def _silu(x):
    return torch.nn.functional.silu(x)
def _sigmoid(x):
    return torch.sigmoid(x)
def _layernorm(x, axis=-1, eps=1e-5):
    m = x.mean(dim=axis, keepdim=True)
    v = x.var(dim=axis, keepdim=True, unbiased=False)
    return (x - m) / torch.sqrt(v + eps)
def _scatter_add(tgt, idx, src, axis=0):
    return tgt.clone().index_add_(axis, idx, src)
def _segment_sum(src, seg, n):
    out = torch.zeros((n,) + src.shape[1:], dtype=src.dtype)
    return out.index_add_(0, seg, src)
def _pad(x, pw):
    flat = tuple(v for pair in reversed(pw) for v in pair)
    return torch.nn.functional.pad(x, flat)

kernel_name = 'gated_mix__linear_attn_block__dense_activation_mish__prompt'

def setup_inputs():

    _w = (lambda a: (lambda t: t.to(torch.bfloat16) if t.is_floating_point() else t)(torch.as_tensor(a)))
    def _A_setup():
        B, S, D = 1, 2048, 640
        return {
            "x": _w((lambda *s: torch.randn(*s, dtype=torch.bfloat16) * 0.05)(B, S, D)),
            "wqkv": _w((lambda *s: torch.randn(*s, dtype=torch.bfloat16) * 0.8)(D, 3 * D)),
            "wo": _w((lambda *s: torch.randn(*s, dtype=torch.bfloat16) * 0.1)(D, D)),
        }
    _A_in = _A_setup()

    def _B_setup():
        B, S, D, F = 1, 2048, 640, 1536
        return {
            "x": _w((lambda *s: torch.randn(*s, dtype=torch.bfloat16) * 0.05)(B, S, D)),
            "w1": _w((lambda *s: torch.randn(*s, dtype=torch.bfloat16) * 12.8)(D, F) * (D ** -0.5)),
            "b1": _w((lambda *s: torch.randn(*s, dtype=torch.bfloat16) * 0.2)(F)),
            "w2": _w((lambda *s: torch.randn(*s, dtype=torch.bfloat16) * 0.1)(F, D) * (F ** -0.5)),
        }
    _B_in = _B_setup()

    return {
        "A_x": _A_in["x"],
        "A_wqkv": _A_in["wqkv"],
        "A_wo": _A_in["wo"],
        "B_x": _B_in["x"],
        "B_w1": _B_in["w1"],
        "B_b1": _B_in["b1"],
        "B_w2": _B_in["w2"],
        "gate_w": _w((lambda *s: torch.randn(*s, dtype=torch.bfloat16) * 0.05)(640) * 16.0),
    }

def reference(A_x, A_wqkv, A_wo, B_x, B_w1, B_b1, B_w2, gate_w):
    def _A_ref(x, wqkv, wo):
        B, S, D = x.shape
        H = 32; Dh = D // H
        qkv = (lambda x, *d: x.permute(*d))((x @ wqkv).reshape(B, S, 3, H, Dh), 2, 0, 3, 1, 4)
        q, k, v = qkv[0], qkv[1], qkv[2]
        phi = lambda t: torch.where(t > 0, t + 1, torch.exp(t)) + 1e-6
        pq, pk = phi(q), phi(k)
        kv = torch.einsum("bhsd,bhse->bhde", pk, v)
        z = torch.einsum("bhsd->bhd", pk)
        num = torch.einsum("bhqd,bhde->bhqe", pq, kv)
        den = torch.einsum("bhqd,bhd->bhq", pq, z)[..., None] + 1e-6
        o = num / den
        return (lambda x, *d: x.permute(*d))(o, 0, 2, 1, 3).reshape(B, S, D) @ wo

    def _B_ref(x, w1, b1, w2):
        h = torch.einsum("bsd,df->bsf", x, w1) + b1
        sp = torch.log1p(torch.exp(-torch.abs(h))) + torch.where(h > 0, h, torch.zeros_like(h))
        act = h * torch.tanh(sp)
        return torch.einsum("bsf,fd->bsd", act, w2)

    x = A_x
    g = _sigmoid((x * gate_w).sum(-1, keepdims=True))
    a = _A_ref(x, A_wqkv, A_wo)
    b = _B_ref(x, B_w1, B_b1, B_w2)
    return g * a + (1 - g) * b
```

```python
import re

class Asm:
    def __init__(self):
        self.lines = []
        self.uid = 0
    def __call__(self, s):
        for l in s.split("\n"):
            l = l.strip()
            if l:
                m = re.match(r"s_cselect_b32 (s\d+), (-?\d+), (-?\d+)$", l)
                if m and not (-16 <= int(m.group(2)) <= 64) and not (-16 <= int(m.group(3)) <= 64):
                    self.lines.append(f"s_mov_b32 {m.group(1)}, {m.group(3)}")
                    l = f"s_cselect_b32 {m.group(1)}, {m.group(2)}, {m.group(1)}"
                self.lines.append(l)
    def label(self, name):
        self.lines.append(name + ":")
    def newlabel(self, base):
        self.uid += 1
        return f"{base}_{self.uid}"
    def text(self):
        return "\n".join(("" if l.endswith(":") or l.startswith(".") or l.startswith(";") else "  ") + l for l in self.lines) + "\n"

def vr(a, n=1):
    return f"v{a}" if n == 1 else f"v[{a}:{a+n-1}]"
def sr(a, n=1):
    return f"s{a}" if n == 1 else f"s[{a}:{a+n-1}]"

def interleave(main, fill, start=0, end=None, per=None):
    n = len(main)
    if end is None:
        end = n
    out = []
    slots = end - start
    k = 0
    for i, m in enumerate(main):
        out.append(m)
        if start <= i < end:
            tgt = ((i - start + 1) * len(fill) + slots - 1) // slots if per is None else min(len(fill), (i - start + 1) * per)
            while k < tgt:
                out.append(fill[k]); k += 1
    while k < len(fill):
        out.append(fill[k]); k += 1
    return out

_VREG = re.compile(r"\bv\[(\d+):(\d+)\]|\bv(\d+)\b")
_SREG = re.compile(r"\bs\[(\d+):(\d+)\]|\bs(\d+)\b|\b(vcc)\b|\b(m0)\b|\b(exec)\b")
TRANS = ("v_exp_f32", "v_rcp_f32", "v_log_f32", "v_rsq_f32", "v_sqrt_f32")

def _vset(s):
    r = set()
    for m in _VREG.finditer(s):
        if m.group(1): r.update(range(int(m.group(1)), int(m.group(2)) + 1))
        else: r.add(int(m.group(3)))
    return r
def _sset(s):
    r = set()
    for m in _SREG.finditer(s):
        if m.group(1): r.update(range(int(m.group(1)), int(m.group(2)) + 1))
        elif m.group(3): r.add(int(m.group(3)))
        else: r.add(m.group(4) or m.group(5) or m.group(6))
    return r

def _split_ops(rest):
    ops, depth, cur = [], 0, ""
    for ch in rest:
        if ch == "[": depth += 1
        if ch == "]": depth -= 1
        if ch == "," and depth == 0:
            ops.append(cur.strip()); cur = ""
        else: cur += ch
    if cur.strip(): ops.append(cur.strip())
    return ops

def parse(l):
    l = l.split(";")[0].strip()
    if not l or l.endswith(":") or l.startswith("."): return None
    p = l.split(None, 1)
    op = p[0]; ops = _split_ops(p[1]) if len(p) > 1 else []
    d = dict(op=op, vw=set(), vrd=set(), sw=set(), srd=set(), text=l, states=1, C=set(), AB=set())
    if op == "s_nop": d["states"] = int(ops[0], 0) + 1; return d
    if op.startswith("v_mfma"):
        d["vw"] = _vset(ops[0]); d["AB"] = _vset(ops[1]) | _vset(ops[2]); d["C"] = _vset(ops[3]); d["vrd"] = d["AB"] | d["C"]
    elif op.startswith("v_cmp"):
        d["sw"] = _sset(ops[0]); d["vrd"] = _vset(",".join(ops[1:])); d["srd"] = _sset(",".join(ops[1:]))
    elif op in ("v_readfirstlane_b32", "v_readlane_b32"):
        d["sw"] = _sset(ops[0]); d["vrd"] = _vset(ops[1])
    elif op.startswith("v_"):
        d["vw"] = _vset(ops[0]); d["vrd"] = _vset(",".join(ops[1:])); d["srd"] = _sset(",".join(ops[1:]))
        if op.startswith("v_permlane"): d["vw"] |= _vset(ops[1]); d["vrd"] |= _vset(ops[0])
        if op.startswith("v_fmac") or op.startswith("v_dot2c"): d["vrd"] |= _vset(ops[0])
    elif op.startswith("buffer_load") or op.startswith("global_load"):
        if l.rstrip().endswith(" lds") or "_lds_" in op:
            d["vrd"] = _vset(ops[0]); d["srd"] = _sset(",".join(ops[1:])) | {"m0"}; d["dma"] = True
        else:
            d["vw"] = _vset(ops[0]); d["vrd"] = _vset(ops[1]); d["srd"] = _sset(",".join(ops[2:]))
        d["vmem"] = True
    elif op.startswith("buffer_store") or op.startswith("buffer_atomic"):
        d["vrd"] = _vset(ops[0]) | _vset(ops[1]); d["srd"] = _sset(",".join(ops[2:])); d["vmem"] = True
        d["stdata"] = _vset(ops[0]) if ("x4" in op or "x3" in op) else set()
    elif op.startswith("global_store") or op.startswith("global_atomic"):
        d["vrd"] = _vset(",".join(ops)); d["srd"] = _sset(",".join(ops)); d["vmem"] = True
        d["stdata"] = _vset(ops[1]) if ("x4" in op or "x3" in op) else set()
    elif op.startswith("ds_read"):
        d["vw"] = _vset(ops[0]); d["vrd"] = _vset(ops[1]); d["ds"] = True
    elif op.startswith("ds_write"):
        d["vrd"] = _vset(",".join(ops)); d["ds"] = True
    elif op.startswith("s_"):
        if op.startswith("s_cmp") or op.startswith("s_cbranch") or op in ("s_waitcnt", "s_barrier", "s_branch", "s_sleep", "s_endpgm", "s_setprio"):
            d["srd"] = _sset(",".join(ops))
        else:
            d["sw"] = _sset(ops[0]) if ops else set(); d["srd"] = _sset(",".join(ops[1:]))
            if "saveexec" in op: d["sw"] |= {"exec"}
    return d

def lint(lines):
    ins = [(n, parse(l)) for n, l in enumerate(lines)]
    ins = [(n, d) for n, d in ins if d]
    errs = []
    for idx, (n, d) in enumerate(ins):
        op = d["op"]
        isvalu = op.startswith("v_") and not op.startswith("v_mfma")
        dist = 0
        for j in range(idx - 1, max(-1, idx - 24), -1):
            pn, p = ins[j]
            pop = p["op"]
            if pop in ("s_branch", "s_endpgm"): break
            pvalu = pop.startswith("v_") and not pop.startswith("v_mfma")
            def need(k, why):
                if dist < k: errs.append(f"line {n}: '{d['text']}' needs {k} states after line {pn} '{p['text']}' ({why}), has {dist}")
            if pop.startswith("v_mfma"):
                big = "32x32" in pop
                if op.startswith("v_mfma"):
                    if p["vw"] & d["AB"]: need(12 if big else 8, "mfma D->AB")
                    if (p["vw"] & d["C"]) and p["vw"] != d["C"]: need(10 if big else 6, "mfma D->C partial")
                    if (p["vw"] & d["vw"]) and not (p["vw"] & d["C"]): need(12 if big else 8, "mfma WAW")
                else:
                    if p["vw"] & (d["vrd"] | d["vw"]): need(12 if big else 8, "mfma D->other")
                    if isvalu and (p["C"] & d["vw"]): need(7 if big else 3, "mfma C WAR")
            if pvalu:
                if op.startswith("v_mfma") and (p["vw"] & d["vrd"]): need(2, "valu->mfma")
                if pop.split("_e")[0] in TRANS and isvalu and op.split("_e")[0] not in TRANS and (p["vw"] & d["vrd"]): need(1, "trans")
                if op in ("v_readfirstlane_b32", "v_readlane_b32") and (p["vw"] & d["vrd"]): need(1, "valu->readlane")
                if op.startswith("v_permlane") and (p["vw"] & d["vrd"]): need(2, "valu->permlane")
                if p["sw"]:
                    if isvalu and (p["sw"] & d["srd"]): need(2, "valu sgpr->valu")
                    if d.get("vmem") and (p["sw"] & d["srd"]): need(5, "valu sgpr->vmem")
                    if op.startswith("s_") and (p["sw"] & d["srd"]): need(1, "valu sgpr->salu (pad)")
            if p.get("stdata") and (p["stdata"] & d["vw"]): need(2 if isvalu else 1, "store data WAR")
            if pop.startswith("s_") and "m0" in p["sw"] and d.get("dma"): need(1, "m0->dma")
            dist += p["states"]
            if dist >= 12: break
    return errs
```

```python
import sys, os
sys.path.insert(0, os.path.dirname(os.path.abspath(__file__)))
from asmlib import *

NAME = "gated_mix__linear_attn_block__dense_activation_mish__prompt"

CNT_ACT = 0
CNT_KV = 16 * 128
CNT_M = 48 * 128
WS_G = 0x2000
WS_KVP = 0x100000
WS_MW = 0x200000
WS_W2R = 0x300000
WS_PQ = 0x500000
WS_ACT = 0x800000
WS_SIZE = 0x1000000
WS_STAMP = 0x8000000
BIG = 0x20000000
LOOK = os.environ.get("LOOK", "xw")
ROTMODE = os.environ.get("ROT", "full")

XR = 0
WR = 49152
WSLOT = 14336
NS = 6
GATE = WR + NS * WSLOT
SCR = GATE + 2048
E3S = 7 * 20480
LDS_TOTAL = 163840

sWG = 2
pX, pWQKV, pWO, pW1, pB1, pW2, pGATE, pOUT, pDBG, pWS = 4, 6, 8, 12, 14, 16, 18, 20, 22, 24
sWAVE, sRB, sHALF, sCBL, sTB, sTS, sROT, sPIDX, sTYPE, sT = 26, 27, 28, 29, 30, 31, 32, 33, 34, 35
SRD_WS, SRD_X, SRD_A, SRD_B, SRD_M, SRD_D = 36, 40, 44, 48, 52, 56
T0 = 60
sST = 76
cL2E, cC, cE = 96, 98, 100


sR64, sC, sH, sC2 = 27, 28, 29, 30
sB0, sA0 = 40, 46
sPQb, sMb, sCm, sRBk = 31, 32, 33, 35
BS, AB = 80, 200
PQR, MR, ZR, ZE = 80, 120, 172, 176
vG, vP, vL16, vL16b = 248, 252, 254, 255
ROT2 = os.environ.get("ROT2", "none")


class Gen:
    def __init__(self, fused=True, stamps=False):
        self.a = Asm()
        self.fused = fused
        self.stamps = stamps
        self.nst = 0

    def stamp(self, k):
        if self.stamps:
            self.a(f"s_memtime s[{sST+2*k}:{sST+2*k+1}]")

    def srd(self, d, ptr, size, add=None):
        a = self.a
        if add is None:
            a(f"s_mov_b32 s{d}, s{ptr}\ns_mov_b32 s{d+1}, s{ptr+1}")
        else:
            a(f"s_add_u32 s{d}, s{ptr}, {add}\ns_addc_u32 s{d+1}, s{ptr+1}, 0")
        a(f"s_mov_b32 s{d+2}, {size}\ns_mov_b32 s{d+3}, 0x20000")

    def dump_stamps(self, kidx):
        if not self.stamps:
            return
        a = self.a
        a("s_waitcnt vmcnt(0) lgkmcnt(0)")
        a(f"s_memrealtime s[{T0}:{T0+1}]\ns_memtime s[{T0+2}:{T0+3}]")
        a(f"s_getreg_b32 s{T0+4}, hwreg(HW_REG_XCC_ID)")
        self.srd(SRD_M, pWS, 0x10000000)
        a("s_waitcnt lgkmcnt(0)")
        for k in range(10):
            a(f"v_mov_b32 v{k}, s{sST+2*k}")
        a(f"v_mov_b32 v10, s{T0}\nv_mov_b32 v11, s{T0+2}\nv_mov_b32 v12, s{T0+4}\nv_mov_b32 v13, s{sTYPE}\nv_mov_b32 v14, 0\nv_mov_b32 v15, 0")
        a(f"s_lshl_b32 s{T0+5}, s{sWG}, 3\ns_add_u32 s{T0+5}, s{T0+5}, s{sWAVE}\ns_lshl_b32 s{T0+5}, s{T0+5}, 6\ns_add_u32 s{T0+5}, s{T0+5}, {WS_STAMP + kidx*0x40000}")
        a("v_mov_b32 v16, 0\ns_mov_b64 exec, 1")
        for k in range(4):
            a(f"buffer_store_dwordx4 v[{4*k}:{4*k+3}], v16, s[{SRD_M}:{SRD_M+3}], s{T0+5} offen offset:{16*k}")
        a("s_waitcnt vmcnt(0)")

    def common_prologue(self, endlabel):
        a = self.a
        a(f"s_cmp_ge_u32 s{sWG}, 256\ns_cbranch_scc1 {endlabel}")
        a("s_load_dwordx16 s[4:19], s[0:1], 0\ns_load_dwordx4 s[20:23], s[0:1], 64\ns_load_dwordx2 s[24:25], s[0:1], 80")
        if self.stamps:
            for k in range(10):
                a(f"s_mov_b32 s{sST+2*k}, 0")
        a("v_lshrrev_b32 v1, 6, v0\nv_and_b32 v0, 63, v0")
        a(f"v_readfirstlane_b32 s{sWAVE}, v1")
        t = T0
        a(f"s_and_b32 s{t}, s{sWG}, 7\ns_lshr_b32 s{t+1}, s{sWG}, 3")
        a(f"s_lshr_b32 s{t+2}, s{t}, 1\ns_and_b32 s{t+3}, s{t+1}, 3")
        a(f"s_lshl_b32 s{sRB}, s{t+2}, 2\ns_or_b32 s{sRB}, s{sRB}, s{t+3}")
        a(f"s_and_b32 s{sHALF}, s{t}, 1\ns_lshr_b32 s{sCBL}, s{t+1}, 2")
        if ROTMODE == "full":
            a(f"s_mul_i32 s{t+4}, s{t+3}, 5\ns_add_u32 s{t+4}, s{t+4}, 1\ns_lshr_b32 s{t+4}, s{t+4}, 1")
            a(f"s_add_u32 s{t+4}, s{t+4}, s{sCBL}\ns_add_u32 s{t+4}, s{t+4}, s{t+2}")
            a(f"s_mul_i32 s{t+5}, s{sHALF}, 5\ns_add_u32 s{sROT}, s{t+4}, s{t+5}")
        elif ROTMODE == "none":
            a(f"s_mov_b32 s{sROT}, 0")
        elif ROTMODE == "xcd":
            a(f"s_mul_i32 s{t+4}, s{t+2}, 5\ns_add_u32 s{t+4}, s{t+4}, 1\ns_lshr_b32 s{t+4}, s{t+4}, 1")
            a(f"s_add_u32 s{sROT}, s{t+4}, s{sHALF}")
        elif ROTMODE == "two":
            a(f"s_add_u32 s{t+4}, s{t+3}, s{sCBL}\ns_and_b32 s{t+4}, s{t+4}, 1\ns_mul_i32 s{t+4}, s{t+4}, 5")
            a(f"s_add_u32 s{t+4}, s{t+4}, s{t+2}\ns_add_u32 s{sROT}, s{t+4}, s{sHALF}")
        for _ in range(2):
            a(f"s_sub_u32 s{t+4}, s{sROT}, 10\ns_cmp_ge_u32 s{sROT}, 10\ns_cselect_b32 s{sROT}, s{t+4}, s{sROT}")
        a(f"s_cmp_eq_u32 s{sCBL}, 4\ns_cselect_b32 s{sTYPE}, 1, 2\ns_cmp_lt_u32 s{sCBL}, 4\ns_cselect_b32 s{sTYPE}, 0, s{sTYPE}")
        a(f"s_mov_b32 s{sTB}, 0\ns_mov_b32 s{sTS}, 8")
        for c, (tb, ts) in ((5, (10, 9)), (6, (22, 34)), (7, (36, 35))):
            a(f"s_cmp_eq_u32 s{sCBL}, {c}\ns_cselect_b32 s{sTB}, {tb}, s{sTB}\ns_cselect_b32 s{sTS}, {ts}, s{sTS}")
        a(f"s_mul_i32 s{t}, s{sHALF}, 48\ns_add_u32 s{sTB}, s{sTB}, s{t}\ns_add_u32 s{sTS}, s{sTS}, s{t}")
        a(f"s_lshl_b32 s{t}, s{sHALF}, 2\ns_add_u32 s{t}, s{t}, s{sCBL}")
        a(f"s_cmp_eq_u32 s{sTYPE}, 0\ns_cselect_b32 s{sTB}, s{t}, s{sTB}")
        a(f"s_lshl_b32 s{sPIDX}, s{sRB}, 3\ns_add_u32 s{sPIDX}, s{sPIDX}, s{t}\ns_sub_u32 s{sPIDX}, s{sPIDX}, 4")
        a(f"s_mov_b32 s{cL2E}, 0x3fb8aa3b\ns_mov_b32 s{cL2E+1}, 0x3fb8aa3b")

    def loader1(self):
        a = self.a
        t = T0
        sLW = sT
        vXE, vXO, vW = 2, 3, 4
        vG = 8
        a(f"s_setprio 2\ns_sub_u32 s{sLW}, s{sWAVE}, 4")
        a("v_lshrrev_b32 v10, 3, v0\nv_mul_u32_u24 v10, 1280, v10\nv_and_b32 v11, 7, v0\nv_lshrrev_b32 v12, 4, v0\nv_xor_b32 v11, v11, v12")
        a(f"s_and_b32 s{t}, s{sLW}, 1\ns_lshl_b32 s{t}, s{t}, 6")
        a(f"v_lshl_add_u32 v10, v11, 4, v10\nv_xor_b32 v{vXE}, s{t}, v10\nv_xor_b32 v{vXO}, 64, v{vXE}")
        isKV = f"s_cmp_eq_u32 s{sTYPE}, 0"
        a(f"s_mul_i32 s{t+12}, s{sTB}, 160")
        a(f"s_lshl_b32 s{t+13}, s{sTB}, 5")
        a(isKV)
        a(f"s_cselect_b32 s{t}, 10, 8\ns_cselect_b32 s{t+6}, 10, 12\ns_cselect_b32 s{t+7}, 10, 14")
        a(f"s_cselect_b32 s{t+11}, 3840, 3072\ns_mov_b32 s{t+1}, s{t}")
        a(f"s_add_u32 s{t+14}, s{t+12}, 2560")
        a(isKV + f"\ns_cselect_b32 s{t+8}, s{t+14}, s{t+13}")
        a(f"s_lshl_b32 s{t+9}, s{sTS}, 5\ns_sub_u32 s{t+9}, s{t+9}, 192")
        a(f"s_lshl_b32 s{t+14}, s{sTB}, 7\ns_sub_u32 s{t+14}, s{t+14}, 160\ns_sub_u32 s{t+15}, s{t+13}, 32")
        a(isKV + f"\ns_cselect_b32 s{t+10}, s{t+14}, s{t+15}")
        a(f"s_add_u32 s{t+14}, s{t+12}, 1280\ns_add_u32 s{t+15}, s{t+13}, 256")
        a(isKV + f"\ns_cselect_b32 s{t+2}, s{t+14}, s{t+15}")
        a(f"s_add_u32 s{t+14}, s{sHALF}, 8\ns_lshl_b32 s{t+14}, s{t+14}, 7")
        a(f"s_cmp_eq_u32 s{sTYPE}, 1\ns_cselect_b32 s{t+2}, s{t+14}, s{t+2}")
        a(f"s_mov_b32 s{t+3}, {BIG}\ns_mov_b32 s{t+4}, {BIG}")
        a(f"s_cmp_eq_u32 s{sTYPE}, 2\ns_cselect_b32 s{t+5}, 3072, 3840")
        sStrA, sStrB, sA32, sA64, sOffA, sOffB, sXo, sWB, sXB = 0, 1, 3, 10, 11, sPIDX, sTS, sCBL, sHALF
        g = t + 12
        for j in range(4):
            cond = f"s_cmp_lt_u32 s{sLW}, {2 if j == 0 else 1}"
            a(f"s_lshl_b32 s{g}, s{sLW}, 8\ns_add_u32 s{g}, s{g}, {64*j}\ns_sub_u32 s{g+1}, s{g}, 320")
            a(cond + f"\ns_cselect_b32 s{g}, s{g}, s{g+1}\ns_cselect_b32 s{g+1}, 6554, 3641\ns_cselect_b32 s{g+2}, -10, -18\ns_cselect_b32 s{g+3}, s{t+5}, s{t+11}")
            a(f"v_add_u32 v10, s{g}, v0\nv_mul_u32_u24 v11, s{g+1}, v10\nv_lshrrev_b32 v11, 16, v11")
            a(f"v_mad_i32_i24 v10, v11, s{g+2}, v10")
            a("v_and_b32 v12, 12, v11\nv_and_b32 v13, 3, v11\nv_lshl_or_b32 v12, v12, 1, v13\nv_bfe_u32 v13, v11, 4, 1\nv_lshl_or_b32 v12, v13, 2, v12")
            a(f"v_mul_u32_u24 v12, s{g+3}, v12\nv_lshl_add_u32 v12, v10, 4, v12")
            a(cond + f"\ns_cselect_b32 s{g}, s{t}, s{t+6}\ns_cselect_b32 s{g+1}, s{t+1}, s{t+7}")
            a(f"v_cmp_gt_u32 vcc, s{g+1}, v10")
            a(cond + f"\ns_cselect_b32 s{g+2}, s{t+3}, s{t+9}\ns_cselect_b32 s{g+3}, s{t+4}, s{t+10}")
            a(f"v_mov_b32 v13, s{g+3}\nv_mov_b32 v14, s{g+2}\nv_cndmask_b32 v13, v13, v14, vcc")
            a(f"v_cmp_gt_u32 vcc, s{g}, v10")
            a(cond + f"\ns_cselect_b32 s{g+2}, s{t+2}, s{t+8}\nv_mov_b32 v14, s{g+2}\ns_nop 0\nv_cndmask_b32 v13, v13, v14, vcc")
            a(f"v_add_u32 v{vW+j}, v12, v13")
        a(f"s_lshl_b32 s{g}, s{sROT}, 3")
        for j in range(2):
            a(f"v_add_u32 v10, {64*j}, v0\nv_add_u32 v11, s{g}, v10\nv_subrev_u32 v12, 80, v11\nv_min_u32 v11, v11, v12\nv_lshlrev_b32 v11, 4, v11")
            a(f"v_cmp_gt_u32 vcc, 80, v10\nv_mov_b32 v12, {BIG}\ns_nop 0\nv_cndmask_b32 v{vG+j}, v12, v11, vcc")
        a("s_waitcnt lgkmcnt(0)")
        self.stamp(0)
        a(f"s_mul_i32 s{g}, s{sRB}, 163840")
        self.srd(SRD_X, pX, 163840, add=f"s{g}")
        for d, lim in ((SRD_A, 2), (SRD_B, 1)):
            a(f"s_cmp_lt_u32 s{sLW}, {lim}\ns_cselect_b32 s{g}, 2, 1\ns_cselect_b32 s{g+1}, s{t+5}, s{t+11}")
            a(f"s_lshl_b32 s{sStrA if d == SRD_A else sStrB}, s{g+1}, 5")
            a(f"s_cmp_lt_u32 s{sTYPE}, s{g}")
            a(f"s_cselect_b32 s{d}, s{pWQKV}, s{pW1}\ns_cselect_b32 s{d+1}, s{pWQKV+1}, s{pW1+1}\ns_cselect_b32 s{d+2}, {640*1920*2}, {640*1536*2}\ns_mov_b32 s{d+3}, 0x20000")
        a(f"s_lshl_b32 s{sA32}, s{sROT}, 1\ns_mov_b32 s{sA64}, s{sROT}")
        a(f"s_lshl_b32 s{sWB}, s{sLW}, 12\ns_mul_i32 s{sXB}, s{sLW}, 3072\ns_mul_i32 s{t}, s{sLW}, 30720")
        sXP = t
        lab3, labj = a.newlabel("L_ld3"), a.newlabel("L_ldj")
        a(f"s_cmp_eq_u32 s{sLW}, 3\ns_cbranch_scc1 {lab3}")
        for variant in (0, 3):
            if variant == 3:
                a.label(lab3)
                self.srd(SRD_M, pGATE, 1280)
            nW = 4 if variant == 0 else 2
            nX = 3 if variant == 0 else 7
            seq = []
            def issue_W(i):
                a(f"s_mul_i32 s{sOffA}, s{sA32}, s{sStrA}\ns_mul_i32 s{sOffB}, s{sA32}, s{sStrB}")
                for j in range(nW):
                    a(f"s_add_u32 m0, s{sWB}, {WR + (i % NS)*WSLOT + 1024*j}\ns_nop 0")
                    a(f"buffer_load_dwordx4 v{vW+j}, s[{SRD_A if j == 0 else SRD_B}:{(SRD_A if j == 0 else SRD_B)+3}], s{sOffA if j == 0 else sOffB} offen lds")
                    seq.append(("W", i))
                a(f"s_add_u32 s{sA32}, s{sA32}, 1\ns_cmp_eq_u32 s{sA32}, 20\ns_cselect_b32 s{sA32}, 0, s{sA32}")
            def issue_X(jx):
                a(f"s_lshl_b32 s{sXo}, s{sA64}, 7\ns_add_u32 s{sXo}, s{sXo}, s{sXP}")
                for j in range(nX):
                    a(f"s_add_u32 m0, s{sXB}, {XR + (jx % 3)*16384 + 1024*j}\ns_nop 0")
                    a(f"buffer_load_dwordx4 v{vXE + (j & 1)}, s[{SRD_X}:{SRD_X+3}], s{sXo} offen lds")
                    if j + 1 < nX: a(f"s_add_u32 s{sXo}, s{sXo}, 10240")
                    seq.append(("X", jx))
                a(f"s_add_u32 s{sA64}, s{sA64}, 1\ns_cmp_eq_u32 s{sA64}, 10\ns_cselect_b32 s{sA64}, 0, s{sA64}")
            def wait_for(items):
                last = max(n for n, it in enumerate(seq) if it in items)
                a(f"s_waitcnt vmcnt({len(seq) - 1 - last})")
            issue_X(0); issue_W(0)
            if variant == 3:
                for j in range(2):
                    a(f"s_mov_b32 m0, {GATE + 1024*j}\ns_nop 0\nbuffer_load_dwordx4 v{vG+j}, s[{SRD_M}:{SRD_M+3}], 0 offen lds")
                    seq.append(("W", 0))
            issue_W(1)
            wait_for([("W", 0), ("X", 0)]); self.stamp(1); a("s_barrier")
            issue_X(1)
            wait_for([("W", 1)]); a("s_barrier")
            issue_W(2); issue_W(3); issue_X(2)
            if LOOK == "xw": issue_W(4)
            for j in range(1, 10):
                if j == 9 and self.fused and variant == 0:
                    self.poll_s1()
                wait_for([("W", 2*j), ("W", 2*j + 1), ("X", j)]); a("s_barrier")
                if LOOK == "x" and j + 1 < 10: issue_W(2*j + 2)
                if j + 1 < 10: issue_W(2*j + 3)
                if j + 2 < 10: issue_X(j + 2)
                if LOOK == "xw" and j + 2 < 10: issue_W(2*j + 4)
            if variant == 0:
                a(f"s_branch {labj}")
        a.label(labj)
        self.stamp(2)

    def poll_s1(self):
        a = self.a
        skip, loop = a.newlabel("L_s1skip"), a.newlabel("L_s1")
        a(f"s_cmp_lg_u32 s{sWAVE}, 4\ns_cbranch_scc1 {skip}")
        self.srd(SRD_D, pDBG, 256)
        a(f"v_mov_b32 v10, 0\ns_mov_b32 s{T0+2}, 0")
        a.label(loop)
        a(f"buffer_load_dword v11, v10, s[{SRD_D}:{SRD_D+3}], 0 offen sc1\ns_waitcnt vmcnt(0)")
        a(f"v_readfirstlane_b32 s{T0+1}, v11\ns_add_u32 s{T0+2}, s{T0+2}, 1")
        a(f"s_cmp_ge_u32 s{T0+1}, 128\ns_cbranch_scc1 {skip}")
        a(f"s_sleep 4\ns_cmp_lt_u32 s{T0+2}, 0x100000\ns_cbranch_scc1 {loop}")
        a.label(skip)

    def mish_quad(self, h, dst, tmp):
        return [
            f"v_pk_fma_f32 v[{tmp}:{tmp+1}], v[{h}:{h+1}], s[{cL2E}:{cL2E+1}], -0.5 op_sel_hi:[1,1,0]",
            f"v_pk_fma_f32 v[{tmp+2}:{tmp+3}], v[{h+2}:{h+3}], s[{cL2E}:{cL2E+1}], -0.5 op_sel_hi:[1,1,0]",
            f"v_exp_f32 v{tmp}, v{tmp}", f"v_exp_f32 v{tmp+1}, v{tmp+1}", f"v_exp_f32 v{tmp+2}, v{tmp+2}", f"v_exp_f32 v{tmp+3}, v{tmp+3}",
            f"v_pk_add_f32 v[{tmp}:{tmp+1}], v[{tmp}:{tmp+1}], s[{cC}:{cC+1}]",
            f"v_pk_add_f32 v[{tmp+2}:{tmp+3}], v[{tmp+2}:{tmp+3}], s[{cC}:{cC+1}]",
            f"v_pk_fma_f32 v[{tmp}:{tmp+1}], v[{tmp}:{tmp+1}], v[{tmp}:{tmp+1}], 0.5 op_sel_hi:[1,1,0]",
            f"v_pk_fma_f32 v[{tmp+2}:{tmp+3}], v[{tmp+2}:{tmp+3}], v[{tmp+2}:{tmp+3}], 0.5 op_sel_hi:[1,1,0]",
            f"v_rcp_f32 v{tmp}, v{tmp}", f"v_rcp_f32 v{tmp+1}, v{tmp+1}", f"v_rcp_f32 v{tmp+2}, v{tmp+2}", f"v_rcp_f32 v{tmp+3}, v{tmp+3}",
            f"v_pk_fma_f32 v[{tmp}:{tmp+1}], v[{h}:{h+1}], v[{tmp}:{tmp+1}], v[{h}:{h+1}] neg_lo:[1,0,0] neg_hi:[1,0,0]",
            f"v_pk_fma_f32 v[{tmp+2}:{tmp+3}], v[{h+2}:{h+3}], v[{tmp+2}:{tmp+3}], v[{h+2}:{h+3}] neg_lo:[1,0,0] neg_hi:[1,0,0]",
            f"v_cvt_pk_bf16_f32 v{dst}, v{tmp}, v{tmp+1}",
            f"v_cvt_pk_bf16_f32 v{dst+1}, v{tmp+2}, v{tmp+3}",
        ]

    def phi_quad(self, h, dst, tmp):
        return [
            f"v_pk_mul_f32 v[{tmp}:{tmp+1}], v[{h}:{h+1}], s[{cL2E}:{cL2E+1}]",
            f"v_pk_mul_f32 v[{tmp+2}:{tmp+3}], v[{h+2}:{h+3}], s[{cL2E}:{cL2E+1}]",
            f"v_exp_f32 v{tmp}, v{tmp} clamp", f"v_exp_f32 v{tmp+1}, v{tmp+1} clamp", f"v_exp_f32 v{tmp+2}, v{tmp+2} clamp", f"v_exp_f32 v{tmp+3}, v{tmp+3} clamp",
            f"v_pk_add_f32 v[{h}:{h+1}], v[{h}:{h+1}], s[{cC}:{cC+1}]",
            f"v_pk_add_f32 v[{h+2}:{h+3}], v[{h+2}:{h+3}], s[{cC}:{cC+1}]",
            f"v_pk_add_f32 v[{tmp}:{tmp+1}], v[{tmp}:{tmp+1}], s[{cE}:{cE+1}]",
            f"v_pk_add_f32 v[{tmp+2}:{tmp+3}], v[{tmp+2}:{tmp+3}], s[{cE}:{cE+1}]",
            f"v_max_f32 v{tmp}, v{tmp}, v{h}", f"v_max_f32 v{tmp+1}, v{tmp+1}, v{h+1}", f"v_max_f32 v{tmp+2}, v{tmp+2}, v{h+2}", f"v_max_f32 v{tmp+3}, v{tmp+3}, v{h+3}",
            f"v_cvt_pk_bf16_f32 v{dst}, v{tmp}, v{tmp+1}",
            f"v_cvt_pk_bf16_f32 v{dst+1}, v{tmp+2}, v{tmp+3}",
        ]

    def set_mish_consts(self):
        self.a(f"s_mov_b32 s{cC}, 0x3f3504f3\ns_mov_b32 s{cC+1}, 0x3f3504f3")
    def set_phi_consts(self):
        self.a(f"s_mov_b32 s{cC}, 0x3f800008\ns_mov_b32 s{cC+1}, 0x3f800008\ns_mov_b32 s{cE}, 0x358637bd\ns_mov_b32 s{cE+1}, 0x358637bd")

    def pq_addr(self, sTile, sRb64, d):
        a = self.a
        a(f"s_mul_i32 s{d+1}, s{sTile}, 205\ns_lshr_b32 s{d+1}, s{d+1}, 10")
        a(f"s_mul_i32 s{d+2}, s{d+1}, 5\ns_sub_u32 s{d+2}, s{sTile}, s{d+2}")
        a(f"s_mul_i32 s{d}, s{sRb64}, 81920\ns_mul_i32 s{d+1}, s{d+1}, 10240\ns_add_u32 s{d}, s{d}, s{d+1}\ns_add_u32 s{d}, s{d}, {WS_PQ}")
        a(f"s_lshr_b32 s{d+1}, s{d+2}, 1\ns_lshl_b32 s{d+1}, s{d+1}, 10\ns_and_b32 s{d+3}, s{d+2}, 1\ns_lshl_b32 s{d+3}, s{d+3}, 3\ns_add_u32 s{d+1}, s{d+1}, s{d+3}")
        a(f"s_cmp_eq_u32 s{d+2}, 4\ns_cselect_b32 s{d+1}, 8192, s{d+1}\ns_cselect_b32 s{d+3}, 8, 2048\ns_cselect_b32 s{d+2}, 1024, 4096")
        a(f"s_add_u32 s{d}, s{d}, s{d+1}\ns_mov_b32 s{d+1}, s{d+3}")

    def main_loop(self, reads, mfmas, extra, nread_end):
        a = self.a
        a("s_barrier")
        self.stamp(1)
        for l in reads(0): a(l)
        for l in extra.get(0, ([], [], []))[1]: a(l)
        a("s_waitcnt lgkmcnt(0)")
        for i in range(1, 21):
            if i == 1 or i % 2 == 0: a("s_barrier")
            pre, fill, preb = extra.get(i, ([], [], []))
            for l in pre: a(l)
            if i < 20:
                body = interleave(mfmas(i - 1), reads(i) + fill, 0, nread_end)
                for l in body: a(l)
                for l in preb: a(l)
                a("s_waitcnt lgkmcnt(0)")
            else:
                for l in mfmas(19): a(l)
        self.stamp(2)

    def compute_PA(self, nh):
        a = self.a
        t = T0
        ACC, XB, WB, BI = 0, 112, 144, 200
        vX0, vX1, vS1a, vS1b, vS0a, vS0b, vGt, vL16, vT = 228, 229, 230, 231, 232, 233, 234, 235, 236
        vLane = 255
        sSH = sT
        a(f"v_mov_b32 v{vLane}, v0\ns_lshr_b32 s{sSH}, s{sWAVE}, 1")
        a(f"v_and_b32 v1, 15, v0\nv_lshrrev_b32 v2, 4, v0\nv_lshrrev_b32 v3, 1, v1\nv_xor_b32 v3, v3, v2\nv_lshlrev_b32 v3, 4, v3\nv_lshl_add_u32 v3, v1, 7, v3")
        a(f"s_lshl_b32 s{t}, s{sSH}, 13\nv_add_u32 v{vX0}, s{t}, v3\nv_xor_b32 v{vX1}, 64, v{vX0}")
        a(f"v_lshrrev_b32 v3, 2, v0\nv_and_b32 v4, 3, v0\nv_lshlrev_b32 v4, 3, v4")
        a(f"v_mul_u32_u24 v5, 288, v3\nv_add_u32 v5, v5, v4\nv_add_u32 v{vS1a}, {WR+5120}, v5\nv_add_u32 v{vS1b}, {WR+5120+3*WSLOT}, v5")
        a(f"v_mul_u32_u24 v5, 160, v3\nv_add_u32 v5, v5, v4\nv_add_u32 v{vS0a}, {WR}, v5\nv_add_u32 v{vS0b}, {WR+3*WSLOT}, v5")
        a(f"v_lshlrev_b32 v5, 4, v2\nv_add_u32 v{vGt}, {GATE}, v5\nv_lshlrev_b32 v{vL16}, 4, v0")
        vRd, vRr = vT, vT + 1
        a(f"v_lshrrev_b32 v5, 3, v0\nv_mul_u32_u24 v5, 1280, v5\nv_and_b32 v6, 7, v0\nv_lshl_add_u32 v{vRd}, v6, 4, v5")
        a(f"s_lshl_b32 s{t}, s{sWAVE}, 12\ns_add_u32 s{t}, s{t}, {SCR}\nv_lshl_add_u32 v5, v3, 7, v4\nv_add_u32 v{vRr}, s{t}, v5")
        vBo = vT + 2
        a(f"v_lshlrev_b32 v{vBo}, 3, v2")
        sTl = t + 8
        if nh == 0:
            for u in range(6): a(f"s_add_u32 s{sTl+u}, s{sTB}, {u}")
            a(f"s_mov_b32 s{sTl+6}, s{sTS}")
        else:
            for u in range(6): a(f"s_add_u32 s{sTl+u}, s{sTB}, {6+u}")
        sRsrc, sRdst = 0, 10
        dsts = [10, 11, 1, 3]
        a("s_waitcnt lgkmcnt(0)")
        self.stamp(0)
        self.srd(SRD_WS, pWS, WS_SIZE)
        self.srd(SRD_M, pB1, 3072)
        self.srd(SRD_A, pW2, 1536*640*2)
        for u in range(7):
            if nh == 1 and u == 6:
                continue
            a(f"s_lshl_b32 s{t}, s{sTl+u}, 5")
            if nh == 1 and u >= 2:
                a(f"s_cmp_eq_u32 s{sTYPE}, 1\ns_cselect_b32 s{t}, {BIG}, s{t}")
            a(f"buffer_load_dwordx2 v[{BI+4*u+2}:{BI+4*u+3}], v{vBo}, s[{SRD_M}:{SRD_M+3}], s{t} offen")
        nb = 7 if nh == 0 else 6
        a(f"s_lshl_b32 s{t}, s{sPIDX}, 2\ns_add_u32 s{t}, s{t}, s{sWAVE}")
        a(f"s_mul_i32 s{t+1}, s{t}, 6554\ns_lshr_b32 s{t+1}, s{t+1}, 16\ns_mul_i32 s{t+2}, s{t+1}, 10\ns_sub_u32 s{t+2}, s{t}, s{t+2}")
        a(f"s_mul_i32 s{sRsrc}, s{t+1}, 40960\ns_lshl_b32 s{t+3}, s{t+2}, 7\ns_add_u32 s{sRsrc}, s{sRsrc}, s{t+3}")
        a(f"s_lshl_b32 s{t+3}, s{sWAVE}, 12")
        for j in range(4):
            a(f"s_add_u32 m0, s{t+3}, {SCR + 1024*j}\ns_nop 0\nbuffer_load_dwordx4 v{vRd}, s[{SRD_A}:{SRD_A+3}], s{sRsrc} offen lds")
            if j < 3: a(f"s_add_u32 s{sRsrc}, s{sRsrc}, 10240")
        for u in range(4):
            a(f"s_lshl_b32 s{t+3}, s{t+2}, 2\ns_add_u32 s{t+3}, s{t+3}, {u}\ns_mul_i32 s{t+4}, s{t+3}, 205\ns_lshr_b32 s{t+4}, s{t+4}, 10")
            a(f"s_mul_i32 s{t+5}, s{t+4}, 235\ns_add_u32 s{t+5}, s{t+5}, s{t+3}\ns_mul_i32 s{t+4}, s{t+1}, 5\ns_add_u32 s{t+5}, s{t+5}, s{t+4}")
            a(f"s_lshl_b32 s{t+5}, s{t+5}, 10\ns_add_u32 s{t+5}, s{t+5}, {WS_W2R}")
            a(f"s_cmp_lt_u32 s{t}, 480\ns_cselect_b32 s{dsts[u]}, s{t+5}, {BIG}")
        sRb64 = t + 7
        a(f"s_lshl_b32 s{sRb64}, s{sRB}, 1\ns_add_u32 s{sRb64}, s{sRb64}, s{sSH}")
        a(f"s_mul_i32 s{t}, s{sRb64}, {48*4096}\ns_add_u32 s{t}, s{t}, {WS_ACT}")
        for u in ((0, 2, 4, 6) if nh == 0 else (0, 2, 4)):
            a(f"s_lshr_b32 s{t+1}, s{sTl+u}, 1\ns_lshl_b32 s{t+1}, s{t+1}, 12\ns_and_b32 s{sTl+u}, s{sTl+u}, 1\ns_lshl_b32 s{sTl+u}, s{sTl+u}, 3")
            a(f"s_add_u32 s{sTl+u}, s{sTl+u}, s{t+1}\ns_add_u32 s{sTl+u}, s{sTl+u}, s{t}")
        sPQ = SRD_X
        def reads(i):
            b = i & 1; slot = i % NS
            win = slot >= 3; so = (slot % 3) * WSLOT
            r = []
            xs = XR + ((i >> 1) % 3) * 16384
            xr = [f"ds_read_b128 v[{XB+16*b+4*s}:{XB+16*b+4*s+3}], v{vX1 if i & 1 else vX0} offset:{xs + 2048*s}" for s in range(4)]
            wr = []
            for u in range(7):
                d = WB + 28*b + 4*u
                if nh == 1 and u == 6:
                    wr.append(f"ds_read_b128 v[{d}:{d+3}], v{vGt} offset:{64*i}")
                    continue
                if nh == 0: base, unit, rowb = (vS1b if win else vS1a), u, 288
                elif u < 2: base, unit, rowb = (vS1b if win else vS1a), 7 + u, 288
                else: base, unit, rowb = (vS0b if win else vS0a), u - 2, 160
                wr.append(f"ds_read_b64_tr_b16 v[{d}:{d+1}], v{base} offset:{so + 32*unit}")
                wr.append(f"ds_read_b64_tr_b16 v[{d+2}:{d+3}], v{base} offset:{so + 32*unit + 16*rowb}")
            return xr + wr
        def mfmas(i):
            b = i & 1
            r = []
            for u in range(7):
                for s in range(4):
                    d = ACC + 16*u + 4*s
                    c = f"v[{d}:{d+3}]" if i > 0 else ("0" if (nh == 1 and u == 6) else f"v[{BI+4*u}:{BI+4*u+3}]")
                    r.append(f"v_mfma_f32_16x16x32_bf16 v[{d}:{d+3}], v[{WB+28*b+4*u}:{WB+28*b+4*u+3}], v[{XB+16*b+4*s}:{XB+16*b+4*s+3}], {c}")
            return r
        unpack = ["s_waitcnt vmcnt(4)"]
        for u in range(nb):
            p = BI + 4*u
            unpack += [f"v_lshlrev_b32 v{p}, 16, v{p+2}", f"v_and_b32 v{p+1}, 0xffff0000, v{p+2}", f"v_lshlrev_b32 v{p+2}, 16, v{p+3}", f"v_and_b32 v{p+3}, 0xffff0000, v{p+3}"]
        RP = BI
        rp_reads = []
        for u in range(4):
            rp_reads += [f"ds_read_b64_tr_b16 v[{RP+4*u}:{RP+4*u+1}], v{vRr} offset:{32*u}", f"ds_read_b64_tr_b16 v[{RP+4*u+2}:{RP+4*u+3}], v{vRr} offset:{32*u + 2048}"]
        rp_st = [f"buffer_store_dwordx4 v[{RP+4*u}:{RP+4*u+3}], v{vL16}, s[{SRD_WS}:{SRD_WS+3}], s{dsts[u]} offen sc1" for u in range(4)]
        extra = {0: ([], unpack, []), 3: (["s_waitcnt vmcnt(0)"], rp_reads, []), 4: ([], rp_st, [])}
        if nh == 0:
            z = [f"s_or_b32 s{t}, s{sPIDX}, s{sWAVE}", f"s_cmp_eq_u32 s{t}, 0", f"s_cselect_b32 s{t}, 0, {BIG}",
                 f"v_lshlrev_b32 v{vT+3}, 7, v{vLane}", f"v_mov_b32 v{vT+4}, 0",
                 f"buffer_store_dword v{vT+4}, v{vT+3}, s[{SRD_WS}:{SRD_WS+3}], s{t} offen sc1"]
            extra[5] = ([], z, [])
        extra[9] = ([], [], ["s_waitcnt vmcnt(0)"])
        if self.fused and nh == 0:
            sk = a.newlabel("L_s1a")
            arr = [f"s_cmp_lg_u32 s{sWAVE}, 0", f"s_cbranch_scc1 {sk}",
                   f"s_mov_b32 s{SRD_D}, s{pDBG}", f"s_mov_b32 s{SRD_D+1}, s{pDBG+1}", f"s_mov_b32 s{SRD_D+2}, 4", f"s_mov_b32 s{SRD_D+3}, 0x20000",
                   f"v_lshlrev_b32 v{vT+3}, 2, v{vLane}", f"v_mov_b32 v{vT+4}, 1",
                   f"buffer_atomic_add v{vT+4}, v{vT+3}, s[{SRD_D}:{SRD_D+3}], 0 offen sc1", sk + ":"]
            extra[10] = (arr, [], [])
        if nh == 1:
            for u in range(4):
                a(f"s_lshl_b32 s{t}, s{sHALF}, 2\ns_add_u32 s{t}, s{t}, {32+u}")
                self.pq_addr(t, sRb64, sPQ + 3*u)
        self.main_loop(reads, mfmas, extra, 20)
        self.set_mish_consts()
        TM = XB
        def mish_pair(u):
            for s in range(4):
                e, o = ACC + 16*u + 4*s, ACC + 16*(u+1) + 4*s
                for l in self.mish_quad(e, e, TM + 8*(s & 1)): a(l)
                for l in self.mish_quad(o, e + 2, TM + 4 + 8*(s & 1)): a(l)
                a(f"buffer_store_dwordx4 v[{e}:{e+3}], v{vL16}, s[{SRD_WS}:{SRD_WS+3}], s{sTl+u} offen offset:{1024*s} sc1")
        a("s_nop 1")
        if nh == 0:
            for u in (0, 2, 4): mish_pair(u)
            for s in range(4):
                e = ACC + 96 + 4*s
                for l in self.mish_quad(e, e, TM + 4*s): a(l)
                a(f"buffer_store_dwordx2 v[{e}:{e+1}], v{vL16}, s[{SRD_WS}:{SRD_WS+3}], s{sTl+6} offen offset:{1024*s} sc1")
        else:
            mish_pair(0)
            labA, labE = a.newlabel("L_epA"), a.newlabel("L_epE")
            a(f"s_cmp_eq_u32 s{sTYPE}, 1\ns_cbranch_scc1 {labA}")
            mish_pair(2); mish_pair(4)
            a(f"s_branch {labE}")
            a.label(labA)
            self.set_phi_consts()
            for u in range(2, 6):
                p = sPQ + 3*(u - 2)
                for s in range(4):
                    e = ACC + 16*u + 4*s
                    for l in self.phi_quad(e, e, TM + 4*s): a(l)
                    if s == 0: so = p
                    else:
                        so = t
                        a({1: f"s_add_u32 s{t}, s{p}, s{p+1}", 2: f"s_add_u32 s{t}, s{p}, s{p+2}", 3: f"s_add_u32 s{t}, s{t}, s{p+1}"}[s])
                    a(f"buffer_store_dwordx2 v[{e}:{e+1}], v{vL16}, s[{SRD_WS}:{SRD_WS+3}], s{so} offen sc1")
            G = ACC + 96
            a(f"v_cmp_le_u32 vcc, 16, v{vLane}\nv_cmp_le_u32 s[{t+2}:{t+3}], 32, v{vLane}\nv_cmp_le_u32 s[{t+4}:{t+5}], 48, v{vLane}\ns_nop 0")
            a(f"v_cndmask_b32 v{G}, v{G}, v{G+4}, vcc\nv_cndmask_b32 v{G}, v{G}, v{G+8}, s[{t+2}:{t+3}]\nv_cndmask_b32 v{G}, v{G}, v{G+12}, s[{t+4}:{t+5}]")
            a(f"v_mul_f32 v{G}, s{cL2E}, v{G}\nv_exp_f32 v{G}, -v{G}\ns_nop 0\nv_add_f32 v{G}, 1.0, v{G}\nv_rcp_f32 v{G}, v{G}")
            a(f"s_lshl_b32 s{t}, s{sRb64}, 8\ns_add_u32 s{t}, s{t}, {WS_G}\nv_lshlrev_b32 v{G+1}, 2, v{vLane}")
            a(f"buffer_store_dword v{G}, v{G+1}, s[{SRD_WS}:{SRD_WS+3}], s{t} offen sc1")
            a.label(labE)
        a(f"v_mov_b32 v0, v{vLane}")
        self.stamp(3)

    def compute_KV(self):
        a = self.a
        t = T0
        ACC, XB, WB = 0, 112, 128
        vX0, vX1, vS1a, vS1b, vS0a, vS0b, vL16 = 240, 241, 242, 243, 244, 245, 246
        vLane = 255
        a(f"v_mov_b32 v{vLane}, v0")
        a(f"v_and_b32 v1, 15, v0\nv_lshrrev_b32 v2, 4, v0\nv_lshrrev_b32 v3, 1, v1\nv_xor_b32 v3, v3, v2\nv_lshlrev_b32 v3, 4, v3\nv_lshl_add_u32 v3, v1, 7, v3")
        a(f"s_lshl_b32 s{t}, s{sWAVE}, 12\nv_add_u32 v{vX0}, s{t}, v3\nv_xor_b32 v{vX1}, 64, v{vX0}")
        a(f"v_lshrrev_b32 v3, 2, v0\nv_and_b32 v4, 3, v0\nv_lshlrev_b32 v4, 3, v4")
        a(f"v_mul_u32_u24 v5, 288, v3\nv_add_u32 v5, v5, v4\nv_add_u32 v{vS1a}, {WR+5120}, v5\nv_add_u32 v{vS1b}, {WR+5120+3*WSLOT}, v5")
        a(f"v_mul_u32_u24 v5, 160, v3\nv_add_u32 v5, v5, v4\nv_add_u32 v{vS0a}, {WR}, v5\nv_add_u32 v{vS0b}, {WR+3*WSLOT}, v5")
        a(f"v_lshlrev_b32 v{vL16}, 4, v0")
        sRb64 = t + 7
        a(f"s_lshl_b32 s{sRb64}, s{sRB}, 1\ns_lshr_b32 s{t}, s{sWAVE}, 1\ns_add_u32 s{sRb64}, s{sRb64}, s{t}")
        sPQ = SRD_X
        for u in range(4):
            a(f"s_lshl_b32 s{t}, s{sTB}, 2\ns_add_u32 s{t}, s{t}, {u}")
            self.pq_addr(t, sRb64, sPQ + 3*u)
            a(f"s_and_b32 s{t}, s{sWAVE}, 1\ns_mul_i32 s{t}, s{t}, s{sPQ+3*u+2}\ns_add_u32 s{sPQ+3*u}, s{sPQ+3*u}, s{t}")
        sHd = t + 8
        a(f"s_lshl_b32 s{sHd}, s{sTB}, 2\ns_add_u32 s{sHd}, s{sHd}, s{sWAVE}")
        a(f"s_lshl_b32 s{t+9}, s{sHd}, 4\ns_add_u32 s{t+9}, s{t+9}, s{sRB}\ns_lshl_b32 s{t+9}, s{t+9}, 11\ns_add_u32 s{t+9}, s{t+9}, {WS_KVP}")
        a("s_waitcnt lgkmcnt(0)")
        self.stamp(0)
        self.srd(SRD_WS, pWS, WS_SIZE)
        self.set_phi_consts()
        def reads(i):
            b = i & 1; slot = i % NS
            win = slot >= 3; so = (slot % 3) * WSLOT
            xs = XR + ((i >> 1) % 3) * 16384
            xr = [f"ds_read_b128 v[{XB+8*b+4*s}:{XB+8*b+4*s+3}], v{vX1 if i & 1 else vX0} offset:{xs + 2048*s}" for s in range(2)]
            wr = []
            for u in range(14):
                d = WB + 56*b + 4*u
                if u < 5: base, unit, rowb = (vS0b if win else vS0a), u, 160
                else: base, unit, rowb = (vS1b if win else vS1a), u - 5, 288
                wr.append(f"ds_read_b64_tr_b16 v[{d}:{d+1}], v{base} offset:{so + 32*unit}")
                wr.append(f"ds_read_b64_tr_b16 v[{d+2}:{d+3}], v{base} offset:{so + 32*unit + 16*rowb}")
            return xr + wr
        def mfmas(i):
            b = i & 1
            r = []
            order = list(range(14)) if i < 19 else [5, 6, 7, 8, 9, 0, 1, 2, 3, 4, 10, 11, 12, 13]
            for u in order:
                for s in range(2):
                    d = ACC + 8*u + 4*s
                    c = f"v[{d}:{d+3}]" if i > 0 else "0"
                    w, x = f"v[{WB+56*b+4*u}:{WB+56*b+4*u+3}]", f"v[{XB+8*b+4*s}:{XB+8*b+4*s+3}]"
                    r.append(f"v_mfma_f32_16x16x32_bf16 v[{d}:{d+3}], {x if u < 10 else w}, {w if u < 10 else x}, {c}")
            return r
        self.main_loop(reads, mfmas, {}, 24)
        TM = XB
        vEx = vX0
        a(f"s_mul_i32 s{t}, s{sWAVE}, 10240\nv_add_u32 v{vEx}, s{t}, v{vL16}")
        for u in range(5, 10):
            e = ACC + 8*u
            a(f"v_cvt_pk_bf16_f32 v{e}, v{e}, v{e+1}\nv_cvt_pk_bf16_f32 v{e+1}, v{e+2}, v{e+3}\nv_cvt_pk_bf16_f32 v{e+2}, v{e+4}, v{e+5}\nv_cvt_pk_bf16_f32 v{e+3}, v{e+6}, v{e+7}")
            a(f"ds_write_b128 v{vEx}, v[{e}:{e+3}] offset:{XR + 1024*u}")
        for u in range(5):
            e = ACC + 8*u
            for l in self.phi_quad(e, e, TM): a(l)
            for l in self.phi_quad(e + 4, e + 2, TM + 4): a(l)
            a(f"ds_write_b128 v{vEx}, v[{e}:{e+3}] offset:{XR + 1024*u}")
        a(f"s_lshl_b32 s{t}, s{sWAVE}, 10\nv_add_u32 v{vEx}, s{t}, v{vL16}")
        ONE = WB + 64
        for k in range(4): a(f"v_mov_b32 v{ONE+k}, 0x3f803f80")
        a("s_waitcnt lgkmcnt(0)\ns_barrier")
        self.stamp(4)
        FR = WB
        for g in range(4):
            for j, off in enumerate((0, 1024, 5120, 6144)):
                a(f"ds_read_b128 v[{FR+16*g+4*j}:{FR+16*g+4*j+3}], v{vEx} offset:{XR + 10240*g + off}")
        AD = WB + 72
        eqv, lo, hi, dv, R = AD, AD + 3, AD + 6, AD + 9, AD + 12
        ad = [f"v_lshrrev_b32 v{eqv}, 4, v{vLane}", f"v_and_b32 v{dv}, 15, v{vLane}",
              f"v_cmp_gt_u32 vcc, 16, v{vLane}", f"v_mov_b32 v{R}, {BIG}", f"v_mov_b32 v{R+1}, 1280", f"v_mov_b32 v{R+2}, 1600",
              f"v_cndmask_b32 v{lo+2}, v{R}, v{R+1}, vcc", f"v_cndmask_b32 v{hi+2}, v{R}, v{R+2}, vcc",
              f"v_subrev_u32 v{eqv}, s{sWAVE}, v{eqv}", f"v_add_u32 v{eqv+1}, 4, v{eqv}",
              f"s_lshl_b32 s{t}, s{sWAVE}, 2", f"v_subrev_u32 v{dv}, s{t}, v{dv}", f"v_add_u32 v{dv+1}, 16, v{dv}"]
        for k in range(2):
            ad += [f"v_and_b32 v{R+1}, 1, v{eqv+k}", f"v_lshrrev_b32 v{R+2}, 1, v{eqv+k}", f"v_cmp_gt_u32 vcc, 5, v{eqv+k}",
                   f"v_mul_u32_u24 v{lo+k}, 768, v{R+1}", f"v_mul_u32_u24 v{hi+k}, 192, v{R+1}",
                   f"v_lshl_add_u32 v{lo+k}, v{R+2}, 8, v{lo+k}", f"v_lshl_add_u32 v{hi+k}, v{R+2}, 6, v{hi+k}", f"v_add_u32 v{hi+k}, 1280, v{hi+k}",
                   f"v_cndmask_b32 v{lo+k}, v{R}, v{lo+k}, vcc", f"v_cndmask_b32 v{hi+k}, v{R}, v{hi+k}, vcc"]
        BG = AD + 2
        ad += [f"v_mov_b32 v{BG}, {BIG}"]
        for b in range(2):
            ad += [f"v_cmp_gt_u32 s[{t+2}:{t+3}], 20, v{dv+b}", f"v_cmp_gt_u32 vcc, 16, v{dv+b}", f"v_lshlrev_b32 v{dv+b}, 4, v{dv+b}", "s_nop 0",
                   f"v_cndmask_b32 v{dv+b}, v{BG}, v{dv+b}, s[{t+2}:{t+3}]"]
            for k in range(3):
                ad += [f"v_cndmask_b32 v{R+3*b+k}, v{hi+k}, v{lo+k}, vcc"]
            for k in range(3):
                ad += [f"v_add_u32 v{R+3*b+k}, v{R+3*b+k}, v{dv+b}"]
        for l in ad[:20]: a(l)
        D = ACC
        mm = []
        for g in range(4):
            for b in range(2):
                for k in range(3):
                    d = D + 12*b + 4*k
                    A = f"v[{FR+16*g+8+4*k}:{FR+16*g+8+4*k+3}]" if k < 2 else f"v[{ONE}:{ONE+3}]"
                    mm.append(f"v_mfma_f32_16x16x32_bf16 v[{d}:{d+3}], {A}, v[{FR+16*g+4*b}:{FR+16*g+4*b+3}], {'0' if g == 0 else f'v[{d}:{d+3}]'}")
        a("s_waitcnt lgkmcnt(0)")
        for l in interleave(mm, ad[20:], 0, 20): a(l)
        def qmath(u):
            e = ACC + 8*u
            return self.phi_quad(e, e, TM) + self.phi_quad(e + 4, e + 4, TM + 4)
        for l in qmath(10): a(l)
        for b in range(2):
            for k in range(3):
                d = D + 12*b + 4*k
                a(f"buffer_store_dwordx4 v[{d}:{d+3}], v{R+3*b+k}, s[{SRD_WS}:{SRD_WS+3}], s{t+9} offen sc1")
        for u in (11, 12, 13):
            for l in qmath(u): a(l)
        if self.fused:
            a("s_waitcnt vmcnt(0)")
            a(f"s_lshl_b32 s{t}, s{sHd}, 7\ns_add_u32 s{t}, s{t}, {CNT_KV}\nv_mov_b32 v{TM}, 1\nv_mov_b32 v{TM+1}, 0\ns_mov_b64 exec, 1")
            a(f"buffer_atomic_add v{TM}, v{TM+1}, s[{SRD_WS}:{SRD_WS+3}], s{t} offen sc1\ns_mov_b64 exec, -1")
        for u in range(4):
            e = ACC + 8*(10 + u); p = sPQ + 3*u
            a(f"buffer_store_dwordx2 v[{e}:{e+1}], v{vL16}, s[{SRD_WS}:{SRD_WS+3}], s{p} offen sc1")
            a(f"s_add_u32 s{t}, s{p}, s{p+1}\nbuffer_store_dwordx2 v[{e+4}:{e+5}], v{vL16}, s[{SRD_WS}:{SRD_WS+3}], s{t} offen sc1")
        a(f"v_mov_b32 v0, v{vLane}")
        self.stamp(3)

    def phase1(self, done_c, done_l):
        a = self.a
        lL, lKV, l1 = a.newlabel("L_loader"), a.newlabel("L_kv"), a.newlabel("L_nh1")
        a(f"s_cmp_ge_u32 s{sWAVE}, 4\ns_cbranch_scc1 {lL}")
        a(f"s_cmp_eq_u32 s{sTYPE}, 0\ns_cbranch_scc1 {lKV}")
        a(f"s_and_b32 s{T0}, s{sWAVE}, 1\ns_cmp_eq_u32 s{T0}, 1\ns_cbranch_scc1 {l1}")
        self.compute_PA(0); a(f"s_branch {done_c}")
        a.label(l1); self.compute_PA(1); a(f"s_branch {done_c}")
        a.label(lKV); self.compute_KV(); a(f"s_branch {done_c}")
        a.label(lL); self.loader1(); a(f"s_branch {done_l}")

    def setup2(self):
        a = self.a
        t = T0
        a(f"s_and_b32 s{t}, s{sWG}, 7\ns_lshr_b32 s{t+1}, s{sWG}, 3")
        a(f"s_lshr_b32 s{t+2}, s{t}, 1\ns_lshl_b32 s{t+2}, s{t+2}, 3\ns_and_b32 s{t+3}, s{t+1}, 7\ns_or_b32 s{sR64}, s{t+2}, s{t+3}")
        a(f"s_and_b32 s{t+2}, s{t}, 1\ns_lshl_b32 s{t+2}, s{t+2}, 2\ns_lshr_b32 s{t+3}, s{t+1}, 3\ns_or_b32 s{sC}, s{t+2}, s{t+3}")
        a(f"s_lshl_b32 s{t+2}, s{t}, 2\ns_and_b32 s{t+3}, s{t+1}, 3\ns_or_b32 s{sH}, s{t+2}, s{t+3}\ns_lshr_b32 s{sC2}, s{t+1}, 2")
        self.srd(SRD_WS, pWS, WS_SIZE)
        a(f"v_lshlrev_b32 v{vL16}, 4, v0\nv_add_u32 v{vL16b}, 4096, v{vL16}")
        if ROT2 == "none":
            a(f"s_mov_b32 s{t}, 0")
        else:
            a(f"s_lshr_b32 s{t}, s{sWG}, 3\ns_and_b32 s{t}, s{t}, 1\ns_mul_i32 s{t}, s{t}, 3")
        a(f"s_mul_i32 s{t+1}, s{sWAVE}, 6")
        a(f"s_mul_i32 s{t+2}, s{sC}, {48*5120}\ns_add_u32 s{t+2}, s{t+2}, {WS_W2R}")
        a(f"s_mul_i32 s{t+3}, s{sR64}, {48*4096}\ns_add_u32 s{t+3}, s{t+3}, {WS_ACT}")
        for i in range(6):
            a(f"s_add_u32 s{t+4}, s{t+1}, s{t}\ns_mul_i32 s{sB0+i}, s{t+4}, 5120\ns_add_u32 s{sB0+i}, s{sB0+i}, s{t+2}")
            a(f"s_lshl_b32 s{sA0+i}, s{t+4}, 12\ns_add_u32 s{sA0+i}, s{sA0+i}, s{t+3}")
            if i < 5: a(f"s_add_u32 s{t}, s{t}, 1\ns_cmp_eq_u32 s{t}, 6\ns_cselect_b32 s{t}, 0, s{t}")

    def preload_b(self):
        a = self.a
        for i in range(6):
            for jn in range(5):
                d = BS + 20*i + 4*jn
                a(f"buffer_load_dwordx4 v[{d}:{d+3}], v{vL16 if jn < 4 else vL16b}, s[{SRD_WS}:{SRD_WS+3}], s{sB0+i} offen offset:{1024*jn if jn < 4 else 0} sc1")

    def wo_frags(self):
        a = self.a
        t = T0
        sk = a.newlabel("L_wo")
        a(f"s_cmp_lg_u32 s{sWAVE}, 7\ns_cbranch_scc1 {sk}")
        self.srd(SRD_M, pWO, 640*640*2)
        a(f"s_mul_i32 s{t}, s{sH}, 25600\ns_mul_i32 s{t+1}, s{sC2}, 160\ns_add_u32 s{t}, s{t}, s{t+1}\nv_mov_b32 v5, {BIG}")
        for j in range(5):
            a(f"v_add_u32 v1, {64*j}, v0\nv_mul_u32_u24 v2, 6554, v1\nv_lshrrev_b32 v2, 16, v2\nv_cmp_gt_u32 vcc, 20, v2\nv_mad_i32_i24 v1, v2, -10, v1")
            a(f"v_mul_u32_u24 v2, 1280, v2\nv_lshl_add_u32 v1, v1, 4, v2\nv_cndmask_b32 v1, v5, v1, vcc\ns_mov_b32 m0, {SCR + 1024*j}\ns_nop 0")
            a(f"buffer_load_dwordx4 v1, s[{SRD_M}:{SRD_M+3}], s{t} offen lds")
        a(f"v_lshrrev_b32 v1, 4, v0\nv_bfe_u32 v2, v0, 2, 2\nv_lshl_add_u32 v1, v1, 3, v2\nv_mul_u32_u24 v1, 160, v1\nv_and_b32 v2, 3, v0\nv_lshl_add_u32 v1, v2, 3, v1\nv_add_u32 v1, {SCR}, v1")
        a("s_waitcnt vmcnt(0)")
        for jn in range(5):
            a(f"ds_read_b64_tr_b16 v[{60+4*jn}:{61+4*jn}], v1 offset:{32*jn}\nds_read_b64_tr_b16 v[{62+4*jn}:{63+4*jn}], v1 offset:{32*jn + 640}")
        a("s_waitcnt lgkmcnt(0)")
        a.label(sk)

    def poll(self, soffs, targets, vtmp):
        a = self.a
        t = T0
        loop, done = a.newlabel("L_poll"), a.newlabel("L_polld")
        a(f"v_mov_b32 v{vtmp}, 0\ns_mov_b32 s{t+2}, 0")
        a.label(loop)
        for k, so in enumerate(soffs):
            a(f"buffer_load_dword v{vtmp+1+k}, v{vtmp}, s[{SRD_WS}:{SRD_WS+3}], s{so} offen sc1")
        a("s_waitcnt vmcnt(0)")
        for k in range(len(soffs)):
            a(f"v_readfirstlane_b32 s{t+3+k}, v{vtmp+1+k}")
        a(f"s_add_u32 s{t+2}, s{t+2}, 1")
        if len(soffs) == 2 and targets[0] == targets[1]:
            a(f"s_min_u32 s{t+3}, s{t+3}, s{t+4}")
        a(f"s_cmp_ge_u32 s{t+3}, {targets[0]}\ns_cbranch_scc1 {done}")
        a(f"s_sleep 1\ns_cmp_lt_u32 s{t+2}, 0x100000\ns_cbranch_scc1 {loop}")
        a.label(done)

    def mstage(self):
        a = self.a
        t = T0
        sk = a.newlabel("L_ms")
        a(f"s_cmp_lg_u32 s{sWAVE}, 7\ns_cbranch_scc1 {sk}")
        a(f"v_add_u32 v56, {E3S}, v{vL16}")
        for half in range(2):
            for w in range(8):
                a(f"ds_read_b128 v[{4*w}:{4*w+3}], v56 offset:{2048*w + 1024*half}")
            for w in range(1, 8):
                a(f"s_waitcnt lgkmcnt({7-w})")
                dst = 0 if w < 7 else 32 + 4*half
                a(f"v_pk_add_f32 v[{dst}:{dst+1}], v[0:1], v[{4*w}:{4*w+1}]\nv_pk_add_f32 v[{dst+2}:{dst+3}], v[2:3], v[{4*w+2}:{4*w+3}]")
        a("ds_write_b128 v56, v[32:35]\nds_write_b128 v56, v[36:39] offset:1024")
        for k in range(40, 56): a(f"v_mov_b32 v{k}, 0")
        a(f"v_lshrrev_b32 v57, 4, v255\nv_and_b32 v58, 15, v255\nv_lshl_add_u32 v59, v57, 2, v58\nv_lshlrev_b32 v59, 4, v59\nv_add_u32 v59, {E3S+1536}, v59")
        a(f"v_cmp_eq_u32 vcc, 4, v255\nv_lshlrev_b32 v1, 6, v255\nv_add_u32 v1, {E3S+1280}, v1\nv_add_u32 v2, 320, v1\nv_cndmask_b32 v1, v1, v2, vcc")
        a("s_waitcnt lgkmcnt(0)")
        a("s_mov_b32 exec_hi, 0xffff\nds_read_b128 v[40:43], v56\nds_read_b128 v[44:47], v56 offset:768")
        a("s_mov_b32 exec_lo, 0x000f000f\ns_mov_b32 exec_hi, 0x0000000f\nds_read_b128 v[48:51], v59\nds_read_b128 v[52:55], v59 offset:192")
        a("s_mov_b64 exec, 31\nds_read2_b32 v[2:3], v1 offset0:0 offset1:4\nds_read2_b32 v[4:5], v1 offset0:8 offset1:12\ns_mov_b64 exec, -1")
        a(f"s_and_b32 s{t}, s{sH}, 3\ns_mul_i32 s{t+1}, s{t}, 5")
        a(f"s_lshl_b32 s{t+2}, s{sC2}, 3\ns_lshr_b32 s{t+3}, s{sH}, 2\ns_add_u32 s{t+2}, s{t+2}, s{t+3}\ns_lshl_b32 s{t+2}, s{t+2}, 14\ns_add_u32 s{t+2}, s{t+2}, {WS_MW}")
        a("s_waitcnt lgkmcnt(0)")
        for k in range(8): a(f"v_cvt_pk_bf16_f32 v{40+k}, v{40+2*k}, v{41+2*k}")
        a("v_cvt_pk_bf16_f32 v48, v2, v3\nv_cvt_pk_bf16_f32 v49, v4, v5")
        a(f"v_add_u32 v50, s{t+1}, v255\nv_and_b32 v50, 3, v50\nv_lshlrev_b32 v50, 6, v50\nv_lshrrev_b32 v51, 2, v255\nv_lshl_add_u32 v50, v51, 3, v50\ns_lshl_b32 s{t+3}, s{t}, 4\ns_add_u32 s{t+3}, s{t+3}, 13312\nv_add_u32 v50, s{t+3}, v50")
        for dt in range(2):
            for jn in range(5):
                d = 20*dt + 4*jn
                a(f"v_mfma_f32_16x16x32_bf16 v[{d}:{d+3}], v[{40+4*dt}:{43+4*dt}], v[{60+4*jn}:{63+4*jn}], 0")
        a(f"s_mov_b64 exec, 31\nbuffer_store_dwordx2 v[48:49], v50, s[{SRD_WS}:{SRD_WS+3}], s{t+2} offen sc1\ns_mov_b64 exec, -1")
        for dt in range(2):
            b, m = 52 + dt, t + 4 + 2*dt
            a(f"v_add_u32 v54, {4*dt}, v57\nv_add_u32 v55, s{t+1}, v54\nv_cmp_gt_u32 vcc, 5, v54")
            a(f"v_and_b32 v54, 3, v55\nv_lshl_add_u32 v54, v54, 4, v58\nv_lshlrev_b32 v54, 4, v54")
            a(f"v_cmp_gt_u32 s[{m}:{m+1}], 16, v55\nv_bfe_u32 v56, v55, 3, 1\nv_lshlrev_b32 v56, 10, v56\nv_bfe_u32 v55, v55, 2, 1\nv_lshl_add_u32 v56, v55, 3, v56")
            a(f"v_mov_b32 v55, 10240\nv_cndmask_b32 v56, v55, v56, s[{m}:{m+1}]\nv_add_u32 v54, v54, v56\nv_mov_b32 v55, {BIG}\nv_cndmask_b32 v{b}, v55, v54, vcc")
        for dt in range(2):
            m = t + 4 + 2*dt
            for jn in range(5):
                d = 20*dt + 4*jn
                a(f"v_cvt_pk_bf16_f32 v{d}, v{d}, v{d+1}\nv_cvt_pk_bf16_f32 v{d+1}, v{d+2}, v{d+3}")
                a(f"v_mov_b32 v54, {(jn >> 1)*1024 + (jn & 1)*8}\nv_mov_b32 v55, {2048*jn}\nv_cndmask_b32 v54, v54, v55, s[{m}:{m+1}]\nv_add_u32 v54, v54, v{52+dt}")
                a(f"buffer_store_dwordx2 v[{d}:{d+1}], v54, s[{SRD_WS}:{SRD_WS+3}], s{t+2} offen sc1")
        a(f"s_lshl_b32 s{t}, s{sC2}, 7\ns_add_u32 s{t}, s{t}, {CNT_M}\nv_mov_b32 v54, 1\nv_mov_b32 v55, 0")
        a("s_waitcnt vmcnt(0)\ns_mov_b64 exec, 1")
        a(f"buffer_atomic_add v54, v55, s[{SRD_WS}:{SRD_WS+3}], s{t} offen sc1\ns_mov_b64 exec, -1")
        a.label(sk)

    def gemm2(self):
        a = self.a
        t = T0
        W = f"s[{SRD_WS}:{SRD_WS+3}]"
        seq = ["B"]
        def ld(dst, n, v, so, off, tag):
            a(f"buffer_load_dword{'x4' if n == 4 else ''} {vr(dst, n)}, v{v}, {W}, s{so} offen offset:{off} sc1"); seq.append(tag)
        def wait(tag):
            last = max(n for n, x in enumerate(seq) if x == tag)
            a(f"s_waitcnt vmcnt({len(seq) - 1 - last})")
        def act(i):
            for st in range(4): ld(AB + 16*(i % 3) + 4*st, 4, vL16, sA0 + i, 1024*st, f"act{i}")
        a(f"v_lshrrev_b32 v255, 4, v{vL16}")
        a(f"s_lshl_b32 s{t}, s{sH}, 4\ns_lshl_b32 s{t+1}, s{sWAVE}, 1\ns_add_u32 s{t}, s{t}, s{t+1}\ns_lshl_b32 s{t}, s{t}, 11\ns_add_u32 s{t}, s{t}, {WS_KVP}")
        for k in range(4): ld(4*k, 4, vL16, t, 1024*k, "P")
        act(0); act(1); act(2)
        a(f"v_and_b32 v{vP}, 15, v255\nv_lshlrev_b32 v{vP}, 2, v{vP}\ns_lshl_b32 s{t}, s{sR64}, 8\ns_add_u32 s{t}, s{t}, {WS_G}")
        for st in range(4): ld(vG + st, 1, vP, t, 64*st, "g")
        a(f"s_lshl_b32 s{t}, s{sWAVE}, 11\ns_add_u32 s{t}, s{t}, {E3S}\nv_add_u32 v16, s{t}, v{vL16}")
        a(f"s_mul_i32 s{sPQb}, s{sR64}, 81920\ns_mul_i32 s{t}, s{sWAVE}, 10240\ns_add_u32 s{sPQb}, s{sPQb}, s{t}\ns_add_u32 s{sPQb}, s{sPQb}, {WS_PQ}")
        a(f"s_lshl_b32 s{sMb}, s{sC}, 3\ns_add_u32 s{sMb}, s{sMb}, s{sWAVE}\ns_lshl_b32 s{sMb}, s{sMb}, 14\ns_add_u32 s{sMb}, s{sMb}, {WS_MW}")
        a(f"s_lshl_b32 s{sCm}, s{sC}, 7\ns_add_u32 s{sCm}, s{sCm}, {CNT_M}")
        wait("P")
        for k in range(4): a(f"v_pk_add_f32 v[{2*k}:{2*k+1}], v[{2*k}:{2*k+1}], v[{8+2*k}:{9+2*k}]")
        a("ds_write_b128 v16, v[0:3]\nds_write_b128 v16, v[4:7] offset:1024\ns_waitcnt lgkmcnt(0)\ns_barrier")
        self.stamp(6)
        self.mstage()
        def pq(frs):
            for f in frs:
                so, off = (sPQb, 1024*f) if f < 4 else ((t, 1024*(f - 4)) if f < 8 else (t + 1, 1024*(f - 8)))
                ld(PQR + 4*f, 4, vL16, so, off, "pqA" if f in (0, 1, 2, 3, 8) else "pqB")
        for i in range(6):
            wait(f"act{i}")
            for jn in range(5):
                for st in range(4):
                    d = 20*st + 4*jn
                    a(f"v_mfma_f32_16x16x32_bf16 v[{d}:{d+3}], v[{BS+20*i+4*jn}:{BS+20*i+4*jn+3}], v[{AB+16*(i%3)+4*st}:{AB+16*(i%3)+4*st+3}], {'0' if i == 0 else f'v[{d}:{d+3}]'}")
            if i < 3: act(i + 3)
            if i == 2:
                a(f"s_add_u32 s{t}, s{sPQb}, 4096\ns_add_u32 s{t+1}, s{sPQb}, 8192")
                pq((0, 1, 2, 3, 8))
            if i == 4:
                a(f"v_mov_b32 v{vP}, 0")
                ld(vP + 1, 1, vP, sCm, 0, "poll")
        self.stamp(7)
        OM = AB
        for st in range(4): a(f"v_sub_f32 v{OM+st}, 1.0, v{vG+st}")
        for st in range(4):
            sel = "op_sel_hi:[1,0]" if st % 2 == 0 else "op_sel:[0,1]"
            for k in range(10):
                d = 20*st + 2*k
                a(f"v_pk_mul_f32 v[{d}:{d+1}], v[{d}:{d+1}], v[{OM + (st & 2)}:{OM + (st & 2) + 1}] {sel}")
        ok = a.newlabel("L_mok")
        a(f"s_waitcnt vmcnt(0)\nv_readfirstlane_b32 s{t+3}, v{vP+1}\ns_nop 0\ns_cmp_ge_u32 s{t+3}, 32\ns_cbranch_scc1 {ok}")
        self.poll([sCm], [32], AB + 8)
        a.label(ok)
        seq.clear()
        a(f"v_lshrrev_b32 v{vP}, 4, v255\nv_and_b32 v{vP+1}, 3, v255\nv_lshl_add_u32 v{vP}, v{vP}, 2, v{vP+1}\nv_lshlrev_b32 v{vP}, 4, v{vP}")
        a(f"s_add_u32 s{t+2}, s{sMb}, 13312")
        ld(ZR, 4, vP, t + 2, 0, "Z")
        for f in range(13):
            if f % 4 == 0 and f: a(f"s_add_u32 s{sMb}, s{sMb}, 4096")
            ld(MR + 4*f, 4, vL16, sMb, 1024*(f % 4), "M")
        a(f"s_add_u32 s{t}, s{sPQb}, 4096\ns_add_u32 s{t+1}, s{sPQb}, 8192")
        pq((4, 5, 6, 7, 9))
        vRW = vP
        a(f"v_and_b32 v{AB}, 15, v255\nv_mul_u32_u24 v{AB}, 160, v{AB}\nv_bfe_u32 v{AB+1}, v255, 5, 1\nv_lshl_add_u32 v{AB}, v{AB+1}, 4, v{AB}")
        a(f"v_bfe_u32 v{AB+1}, v255, 4, 1\nv_mul_u32_u24 v{AB+1}, 10240, v{AB+1}\ns_mul_i32 s{t}, s{sWAVE}, 20480\nv_add3_u32 v{vRW}, v{AB}, v{AB+1}, s{t}")
        for k in range(10): a(f"v_mov_b32 v{ZE+k}, 0")
        wait("Z")
        for tt in range(5):
            m1 = m2 = 0
            for l in range(64):
                hh, q = l & 3, l >> 4
                if (5*hh - q + 3) >> 2 == tt: m1 |= 1 << l
                if q == hh and hh + 1 == tt: m2 |= 1 << l
            for m, src in ((m1, ZR), (m2, ZR + 2)):
                if m:
                    a(f"s_mov_b32 exec_lo, {m & 0xffffffff:#x}\ns_mov_b32 exec_hi, {m >> 32:#x}\nv_mov_b32 v{ZE+2*tt}, v{src}\nv_mov_b32 v{ZE+2*tt+1}, v{src+1}")
        a("s_mov_b64 exec, -1")
        a(f"s_mov_b32 s{cE}, 0x358637bd\ns_mov_b32 s{cE+1}, 0x358637bd")
        mq = [t + 4, t + 6, t + 8]
        a(f"s_mov_b32 s{mq[0]}, 0xffff\ns_mov_b32 s{mq[0]+1}, 0\ns_mov_b32 s{mq[1]}, -1\ns_mov_b32 s{mq[1]+1}, 0\ns_mov_b32 s{mq[2]}, -1\ns_mov_b32 s{mq[2]+1}, 0xffff")
        DN, SC, TM = AB, AB + 16, AB + 24
        def fr(st, tt):
            return PQR + 4*(2*st + (tt >> 1)) + 2*(tt & 1) if tt < 4 else PQR + 4*(8 + (st >> 1)) + 2*(st & 1)
        def den(sts):
            for st in sts:
                a(f"v_mfma_f32_16x16x32_bf16 v[{DN+4*st}:{DN+4*st+3}], v[{ZE}:{ZE+3}], v[{fr(st,0)}:{fr(st,0)+3}], 0")
            for st in sts:
                a(f"v_mfma_f32_16x16x32_bf16 v[{DN+4*st}:{DN+4*st+3}], v[{ZE+4}:{ZE+7}], v[{fr(st,2)}:{fr(st,2)+3}], v[{DN+4*st}:{DN+4*st+3}]")
            a("s_nop 4")
            for st in sts:
                a(f"v_mfma_f32_16x16x16_bf16 v[{DN+4*st}:{DN+4*st+3}], v[{ZE+8}:{ZE+9}], v[{fr(st,4)}:{fr(st,4)+1}], v[{DN+4*st}:{DN+4*st+3}]")
            a("s_nop 7")
        def scale(st):
            d = DN + 4*st
            sel = "op_sel_hi:[1,0]" if st % 2 == 0 else "op_sel:[0,1]"
            gp = f"v[{vG + (st & 2)}:{vG + (st & 2) + 1}]"
            a(f"v_pk_add_f32 v[{d}:{d+1}], v[{d}:{d+1}], s[{cE}:{cE+1}]\nv_pk_add_f32 v[{d+2}:{d+3}], v[{d+2}:{d+3}], s[{cE}:{cE+1}]")
            for k in range(4): a(f"v_rcp_f32 v{d+k}, v{d+k}")
            a(f"v_pk_mul_f32 v[{d}:{d+1}], v[{d}:{d+1}], {gp} {sel}\nv_pk_mul_f32 v[{d+2}:{d+3}], v[{d+2}:{d+3}], {gp} {sel}")
            a(f"v_mov_b32 v{SC}, v{d}\nv_mov_b32 v{SC+4}, v{d+3}")
            for k in range(3): a(f"v_cndmask_b32 v{SC+1+k}, v{d+k+1}, v{d+k}, s[{mq[k]}:{mq[k]+1}]")
            for tt in range(5):
                r = fr(st, tt); T = TM + 4*(tt & 1)
                sel2 = "op_sel_hi:[1,0]" if tt % 2 == 0 else "op_sel:[0,1]"
                sp = f"v[{SC + (tt & 6)}:{SC + (tt & 6) + 1}]"
                a(f"v_lshlrev_b32 v{T}, 16, v{r}\nv_and_b32 v{T+1}, 0xffff0000, v{r}\nv_lshlrev_b32 v{T+2}, 16, v{r+1}\nv_and_b32 v{T+3}, 0xffff0000, v{r+1}")
                a(f"v_pk_mul_f32 v[{T}:{T+1}], v[{T}:{T+1}], {sp} {sel2}\nv_pk_mul_f32 v[{T+2}:{T+3}], v[{T+2}:{T+3}], {sp} {sel2}")
                a(f"v_cvt_pk_bf16_f32 v{r}, v{T}, v{T+1}\nv_cvt_pk_bf16_f32 v{r+1}, v{T+2}, v{T+3}")
        def attn(st):
            for p in range(3):
                for jn in range(5):
                    d = 20*st + 4*jn
                    if p < 2:
                        m = MR + 4*(2*jn + p)
                        a(f"v_mfma_f32_16x16x32_bf16 v[{d}:{d+3}], v[{m}:{m+3}], v[{fr(st,2*p)}:{fr(st,2*p)+3}], v[{d}:{d+3}]")
                    else:
                        m = MR + 40 + 4*(jn >> 1) + 2*(jn & 1)
                        a(f"v_mfma_f32_16x16x16_bf16 v[{d}:{d+3}], v[{m}:{m+1}], v[{fr(st,4)}:{fr(st,4)+1}], v[{d}:{d+3}]")
                if p == 1: a("s_nop 1")
        def wr(st):
            for jn in range(5):
                d = 20*st + 4*jn
                a(f"ds_write_b128 v{vRW}, v[{d}:{d+3}] offset:{2560*st + 32*jn}")
        a("s_nop 1")
        den((0, 1)); scale(0); scale(1)
        wait("M")
        attn(0); attn(1)
        wait("pqB")
        den((2, 3)); wr(0); scale(2); wr(1); scale(3)
        a("s_nop 1")
        attn(2); attn(3); wr(2)
        a(f"s_mul_i32 s{t}, s{sWAVE}, 80\nv_add_u32 v{AB}, s{t}, v255\nv_add_u32 v{AB+1}, 64, v{AB}")
        for k in range(2):
            a(f"v_mul_u32_u24 v{AB+2}, 6554, v{AB+k}\nv_lshrrev_b32 v{AB+2}, 16, v{AB+2}\nv_mad_i32_i24 v{AB+3}, v{AB+2}, -10, v{AB+k}")
            a(f"v_mul_u32_u24 v{AB+2}, 1280, v{AB+2}\nv_lshl_add_u32 v{AB+4+k}, v{AB+3}, 4, v{AB+2}\nv_lshlrev_b32 v{AB+k}, 4, v{AB+k}")
        wr(3)
        self.srd(SRD_M, pOUT, 2048*640*2)
        a(f"s_mul_i32 s{t}, s{sR64}, 81920\ns_mul_i32 s{t+1}, s{sC}, 160\ns_add_u32 s{t}, s{t}, s{t+1}")
        a(f"v_add_u32 v{AB+6}, 61440, v{AB}\nv_add_u32 v{AB+7}, 61440, v{AB+1}\nv_add_u32 v{AB+8}, 122880, v{AB}\nv_add_u32 v{AB+9}, 122880, v{AB+1}")
        a("s_waitcnt lgkmcnt(0)\ns_barrier")
        self.stamp(8)
        for k in range(2):
            if k == 1: a("s_mov_b64 exec, 0xffff")
            R = 64*k
            for w in range(8):
                for par in range(2):
                    base = [AB + k, AB + 6 + k, AB + 8 + k][w // 3]
                    a(f"ds_read_b128 v[{R+8*w+4*par}:{R+8*w+4*par+3}], v{base} offset:{20480*(w % 3) + 10240*par}")
        a("s_mov_b64 exec, -1")
        for k in range(2):
            R = 64*k
            a(f"s_waitcnt lgkmcnt({15 if k == 0 else 0})")
            if k == 0: a("s_nop 0")
            for step, pairs in enumerate((((0, 4), (1, 5), (2, 6), (3, 7)), ((0, 2), (1, 3)), ((0, 1),))):
                for x, y in pairs:
                    for j in range(4):
                        a(f"v_pk_add_f32 v[{R+8*x+2*j}:{R+8*x+2*j+1}], v[{R+8*x+2*j}:{R+8*x+2*j+1}], v[{R+8*y+2*j}:{R+8*y+2*j+1}]")
            for j in range(4): a(f"v_cvt_pk_bf16_f32 v{R+j}, v{R+2*j}, v{R+2*j+1}")
            if k == 1: a("s_mov_b64 exec, 0xffff")
            a(f"buffer_store_dwordx4 v[{R}:{R+3}], v{AB+4+k}, s[{SRD_M}:{SRD_M+3}], s{t} offen")
        a("s_mov_b64 exec, -1")
        self.stamp(9)


def kernel_header(a, name):
    a(f".globl {name}\n.p2align 8\n.type {name},@function")
    a.label(name)

def descriptor(name):
    return f""".p2align 6
.amdhsa_kernel {name}
  .amdhsa_next_free_vgpr 256
  .amdhsa_next_free_sgpr 102
  .amdhsa_accum_offset 256
  .amdhsa_group_segment_fixed_size 0
  .amdhsa_kernarg_size 88
  .amdhsa_user_sgpr_count 2
  .amdhsa_user_sgpr_kernarg_segment_ptr 1
  .amdhsa_system_sgpr_workgroup_id_x 1
.end_amdhsa_kernel
"""

def build_k1_only(stamps):
    g = Gen(fused=False, stamps=stamps)
    a = g.a
    K = NAME + "_kernel"
    a(f"; @launch grid=(256,1,1) block=(512,1,1) lds={LDS_TOTAL}")
    a('.amdgcn_target "amdgcn-amd-amdhsa--gfx950"\n.text')
    kernel_header(a, K)
    g.common_prologue("L_end")
    g.phase1("L_c", "L_l")
    a.label("L_l")
    a("s_barrier")
    a(f"s_cmp_lg_u32 s{sTYPE}, 0\ns_cbranch_scc1 L_c\ns_barrier")
    a.label("L_c")
    g.dump_stamps(0)
    a.label("L_end")
    a("s_endpgm")
    errs = lint(a.lines)
    for e in errs: print("HAZARD:", e, file=sys.stderr)
    return a.text() + '.section .rodata,"a"\n' + descriptor(K)

def build_full(fused, stamps):
    g = Gen(fused=fused, stamps=stamps)
    a = g.a
    K = NAME + "_kernel"
    hdr = open(os.path.join(os.path.dirname(os.path.abspath(__file__)), "header.txt")).read()
    for l in hdr.strip().split("\n"): a.lines.append(l)
    t = T0
    if fused:
        a(f"; @launch grid=(256,1,1) block=(512,1,1) lds={LDS_TOTAL}")
        a('.amdgcn_target "amdgcn-amd-amdhsa--gfx950"\n.text')
        kernel_header(a, K)
        g.common_prologue("L_end")
        g.phase1("L_c", "L_l")
        a.label("L_l")
        a("s_setprio 0")
        g.setup2()
        g.wo_frags()
        g.preload_b()
        a("s_barrier")
        a(f"s_cmp_lg_u32 s{sTYPE}, 0\ns_cbranch_scc1 L_l2\ns_barrier")
        a.label("L_l2")
        a("s_barrier")
        a(f"s_cmp_lg_u32 s{sWAVE}, 4\ns_cbranch_scc1 L_e2")
        a(f"s_lshr_b32 s{t}, s{sR64}, 1\ns_lshl_b32 s{t}, s{t}, 7\ns_lshl_b32 s{t+1}, s{sH}, 7\ns_add_u32 s{t+1}, s{t+1}, {CNT_KV}")
        g.poll([t, t + 1], [16, 16], 0)
        a("s_branch L_e2")
        a.label("L_c")
        a(f"s_lshl_b32 s{sRBk}, s{sRB}, 7")
        g.setup2()
        a("s_waitcnt vmcnt(0)\ns_barrier")
        g.stamp(4 if False else 5)
        a(f"s_cmp_lg_u32 s{sWAVE}, 0\ns_cbranch_scc1 L_c2")
        a(f"v_mov_b32 v1, 1\nv_mov_b32 v2, 0\ns_mov_b64 exec, 1\nbuffer_atomic_add v1, v2, s[{SRD_WS}:{SRD_WS+3}], s{sRBk} offen sc1\ns_mov_b64 exec, -1")
        a.label("L_c2")
        g.preload_b()
        a.label("L_e2")
        a("s_barrier")
        g.gemm2()
        g.dump_stamps(0)
        a.label("L_end")
        a("s_endpgm")
        desc = descriptor(K)
    else:
        K1, K2 = "gm_phase1_kernel", "gm_phase2_kernel"
        a(f"; @launch kernel={K1} grid=(256,1,1) block=(512,1,1) lds={LDS_TOTAL}")
        a(f"; @launch kernel={K2} grid=(256,1,1) block=(512,1,1) lds={LDS_TOTAL}")
        a('.amdgcn_target "amdgcn-amd-amdhsa--gfx950"\n.text')
        kernel_header(a, K1)
        g.common_prologue("L_end1")
        g.phase1("L_c", "L_l")
        a.label("L_l")
        a("s_barrier")
        a(f"s_cmp_lg_u32 s{sTYPE}, 0\ns_cbranch_scc1 L_c\ns_barrier")
        a.label("L_c")
        g.dump_stamps(0)
        a.label("L_end1")
        a("s_endpgm")
        kernel_header(a, K2)
        a(f"s_cmp_ge_u32 s{sWG}, 256\ns_cbranch_scc1 L_end2")
        a("s_load_dwordx16 s[4:19], s[0:1], 0\ns_load_dwordx4 s[20:23], s[0:1], 64\ns_load_dwordx2 s[24:25], s[0:1], 80")
        if stamps:
            for k in range(10): a(f"s_mov_b32 s{sST+2*k}, 0")
        a(f"v_lshrrev_b32 v1, 6, v0\nv_and_b32 v0, 63, v0\nv_readfirstlane_b32 s{sWAVE}, v1\ns_mov_b32 s{sTYPE}, 0\ns_waitcnt lgkmcnt(0)")
        g.stamp(0)
        g.setup2()
        g.wo_frags()
        g.preload_b()
        g.gemm2()
        g.dump_stamps(1)
        a.label("L_end2")
        a("s_endpgm")
        desc = descriptor(K1) + descriptor(K2)
    errs = lint(a.lines)
    for e in errs: print("HAZARD:", e, file=sys.stderr)
    return a.text() + '.section .rodata,"a"\n' + desc

if __name__ == "__main__":
    mode = sys.argv[1]
    out = sys.argv[2]
    stamps = len(sys.argv) > 3 and sys.argv[3] == "stamps"
    if mode == "k1":
        open(out, "w").write(build_k1_only(stamps))
    else:
        open(out, "w").write(build_full(mode == "1k", stamps))
```

```python
import sys, os
sys.path.insert(0, os.path.dirname(os.path.abspath(__file__)))
from asmlib import *

NAME = "gated_mix__linear_attn_block__dense_activation_mish__prompt"

CNT_ACT = 0
CNT_KV = 16 * 128
CNT_M = 48 * 128
WS_G = 0x2000
WS_KVP = 0x100000
WS_MW = 0x200000
WS_W2R = 0x300000
WS_PQ = 0x500000
WS_ACT = 0x800000
WS_SIZE = 0x1000000
WS_STAMP = 0x8000000
BIG = 0x20000000
DBGW = int(os.environ.get("DBGW", "0"))
LOOK = os.environ.get("LOOK", "xw")
ROTMODE = os.environ.get("ROT", "full")

XR = 0
WR = 49152
WSLOT = 14336
NS = 6
GATE = WR + NS * WSLOT
SCR = GATE + 2048
E3S = 7 * 20480
LDS_TOTAL = 163840

sWG = 2
pX, pWQKV, pWO, pW1, pB1, pW2, pGATE, pOUT, pDBG, pWS = 4, 6, 8, 12, 14, 16, 18, 20, 22, 24
sWAVE, sRB, sHALF, sCBL, sTB, sTS, sROT, sPIDX, sTYPE, sT = 26, 27, 28, 29, 30, 31, 32, 33, 34, 35
SRD_WS, SRD_X, SRD_A, SRD_B, SRD_M, SRD_D = 36, 40, 44, 48, 52, 56
T0 = 60
sST = 76
cL2E, cC, cE = 96, 98, 100


sR64, sC, sH, sC2 = 27, 28, 29, 30
sB0, sA0 = 40, 46
sPQb, sMb, sCm, sRBk = 31, 32, 33, 35
BS, AB = 80, 200
PQR, MR, ZR, ZE = 80, 120, 172, 176
vG, vP, vL16, vL16b = 248, 252, 254, 255
ROT2 = os.environ.get("ROT2", "none")


class Gen:
    def __init__(self, fused=True, stamps=False):
        self.a = Asm()
        self.fused = fused
        self.stamps = stamps
        self.nst = 0

    def stamp(self, k):
        if self.stamps and not (self.stamps == "dbg" and k == 9):
            self.a(f"s_memtime s[{sST+2*k}:{sST+2*k+1}]")

    def srd(self, d, ptr, size, add=None):
        a = self.a
        if add is None:
            a(f"s_mov_b32 s{d}, s{ptr}\ns_mov_b32 s{d+1}, s{ptr+1}")
        else:
            a(f"s_add_u32 s{d}, s{ptr}, {add}\ns_addc_u32 s{d+1}, s{ptr+1}, 0")
        a(f"s_mov_b32 s{d+2}, {size}\ns_mov_b32 s{d+3}, 0x20000")

    def dump_stamps(self, kidx):
        if not self.stamps:
            return
        a = self.a
        if self.stamps == "dbg":
            a("s_waitcnt vmcnt(0) lgkmcnt(0)")
            a(f"s_memrealtime s[{T0}:{T0+1}]\ns_memtime s[{T0+2}:{T0+3}]")
            self.srd(SRD_M, pDBG, 256)
            a("s_waitcnt lgkmcnt(0)")
            a(f"s_not_b32 s{T0+4}, s94\nv_mov_b32 v0, s{T0}\nv_mov_b32 v1, s{T0+4}\nv_mov_b32 v2, 0\ns_mov_b64 exec, 1")
            a(f"buffer_atomic_umax v0, v2, s[{SRD_M}:{SRD_M+3}], 0 offen offset:4 sc1\nbuffer_atomic_umax v1, v2, s[{SRD_M}:{SRD_M+3}], 0 offen offset:8 sc1")
            sk = a.newlabel("L_dbg")
            a(f"s_lshl_b32 s{T0+5}, s{sWG}, 3\ns_add_u32 s{T0+5}, s{T0+5}, s{sWAVE}\ns_cmp_lg_u32 s{T0+5}, {DBGW}\ns_cbranch_scc1 {sk}")
            for k in range(1, 10):
                a(f"s_sub_u32 s{T0+5}, s{sST+2*k}, s{sST}\nv_mov_b32 v{3+k}, s{T0+5}")
            a(f"s_sub_u32 s{T0+5}, s{T0+2}, s{sST}\nv_mov_b32 v13, s{T0+5}\ns_sub_u32 s{T0+5}, s{T0}, s94\nv_mov_b32 v14, s{T0+5}\nv_mov_b32 v15, s94")
            for k in range(3):
                a(f"buffer_store_dwordx4 v[{4+4*k}:{7+4*k}], v2, s[{SRD_M}:{SRD_M+3}], 0 offen offset:{16+16*k}")
            a.label(sk)
            a("s_waitcnt vmcnt(0)")
            return
        a("s_waitcnt vmcnt(0) lgkmcnt(0)")
        a(f"s_memrealtime s[{T0}:{T0+1}]\ns_memtime s[{T0+2}:{T0+3}]")
        a(f"s_getreg_b32 s{T0+4}, hwreg(HW_REG_XCC_ID)")
        self.srd(SRD_M, pWS, 0x10000000)
        a("s_waitcnt lgkmcnt(0)")
        for k in range(10):
            a(f"v_mov_b32 v{k}, s{sST+2*k}")
        a(f"v_mov_b32 v10, s{T0}\nv_mov_b32 v11, s{T0+2}\nv_mov_b32 v12, s{T0+4}\nv_mov_b32 v13, s{sTYPE}\nv_mov_b32 v14, 0\nv_mov_b32 v15, 0")
        a(f"s_lshl_b32 s{T0+5}, s{sWG}, 3\ns_add_u32 s{T0+5}, s{T0+5}, s{sWAVE}\ns_lshl_b32 s{T0+5}, s{T0+5}, 6\ns_add_u32 s{T0+5}, s{T0+5}, {WS_STAMP + kidx*0x40000}")
        a("v_mov_b32 v16, 0\ns_mov_b64 exec, 1")
        for k in range(4):
            a(f"buffer_store_dwordx4 v[{4*k}:{4*k+3}], v16, s[{SRD_M}:{SRD_M+3}], s{T0+5} offen offset:{16*k}")
        a("s_waitcnt vmcnt(0)")

    def common_prologue(self, endlabel):
        a = self.a
        a(f"s_cmp_ge_u32 s{sWG}, 256\ns_cbranch_scc1 {endlabel}")
        a("s_load_dwordx16 s[4:19], s[0:1], 0\ns_load_dwordx4 s[20:23], s[0:1], 64\ns_load_dwordx2 s[24:25], s[0:1], 80")
        if self.stamps:
            for k in range(10):
                a(f"s_mov_b32 s{sST+2*k}, 0")
            if self.stamps == "dbg": a("s_memrealtime s[94:95]")
        a("v_lshrrev_b32 v1, 6, v0\nv_and_b32 v0, 63, v0")
        a(f"v_readfirstlane_b32 s{sWAVE}, v1")
        t = T0
        a(f"s_and_b32 s{t}, s{sWG}, 7\ns_lshr_b32 s{t+1}, s{sWG}, 3")
        a(f"s_lshr_b32 s{t+2}, s{t}, 1\ns_and_b32 s{t+3}, s{t+1}, 3")
        a(f"s_lshl_b32 s{sRB}, s{t+2}, 2\ns_or_b32 s{sRB}, s{sRB}, s{t+3}")
        a(f"s_and_b32 s{sHALF}, s{t}, 1\ns_lshr_b32 s{sCBL}, s{t+1}, 2")
        if ROTMODE == "full":
            a(f"s_mul_i32 s{t+4}, s{t+3}, 5\ns_add_u32 s{t+4}, s{t+4}, 1\ns_lshr_b32 s{t+4}, s{t+4}, 1")
            a(f"s_add_u32 s{t+4}, s{t+4}, s{sCBL}\ns_add_u32 s{t+4}, s{t+4}, s{t+2}")
            a(f"s_mul_i32 s{t+5}, s{sHALF}, 5\ns_add_u32 s{sROT}, s{t+4}, s{t+5}")
        elif ROTMODE == "none":
            a(f"s_mov_b32 s{sROT}, 0")
        elif ROTMODE == "xcd":
            a(f"s_mul_i32 s{t+4}, s{t+2}, 5\ns_add_u32 s{t+4}, s{t+4}, 1\ns_lshr_b32 s{t+4}, s{t+4}, 1")
            a(f"s_add_u32 s{sROT}, s{t+4}, s{sHALF}")
        elif ROTMODE == "two":
            a(f"s_add_u32 s{t+4}, s{t+3}, s{sCBL}\ns_and_b32 s{t+4}, s{t+4}, 1\ns_mul_i32 s{t+4}, s{t+4}, 5")
            a(f"s_add_u32 s{t+4}, s{t+4}, s{t+2}\ns_add_u32 s{sROT}, s{t+4}, s{sHALF}")
        for _ in range(2):
            a(f"s_sub_u32 s{t+4}, s{sROT}, 10\ns_cmp_ge_u32 s{sROT}, 10\ns_cselect_b32 s{sROT}, s{t+4}, s{sROT}")
        a(f"s_cmp_eq_u32 s{sCBL}, 4\ns_cselect_b32 s{sTYPE}, 1, 2\ns_cmp_lt_u32 s{sCBL}, 4\ns_cselect_b32 s{sTYPE}, 0, s{sTYPE}")
        a(f"s_mov_b32 s{sTB}, 0\ns_mov_b32 s{sTS}, 8")
        for c, (tb, ts) in ((5, (10, 9)), (6, (22, 34)), (7, (36, 35))):
            a(f"s_cmp_eq_u32 s{sCBL}, {c}\ns_cselect_b32 s{sTB}, {tb}, s{sTB}\ns_cselect_b32 s{sTS}, {ts}, s{sTS}")
        a(f"s_mul_i32 s{t}, s{sHALF}, 48\ns_add_u32 s{sTB}, s{sTB}, s{t}\ns_add_u32 s{sTS}, s{sTS}, s{t}")
        a(f"s_lshl_b32 s{t}, s{sHALF}, 2\ns_add_u32 s{t}, s{t}, s{sCBL}")
        a(f"s_cmp_eq_u32 s{sTYPE}, 0\ns_cselect_b32 s{sTB}, s{t}, s{sTB}")
        a(f"s_lshl_b32 s{sPIDX}, s{sRB}, 3\ns_add_u32 s{sPIDX}, s{sPIDX}, s{t}\ns_sub_u32 s{sPIDX}, s{sPIDX}, 4")
        a(f"s_mov_b32 s{cL2E}, 0x3fb8aa3b\ns_mov_b32 s{cL2E+1}, 0x3fb8aa3b")

    def loader1(self):
        a = self.a
        t = T0
        sLW = sT
        vXE, vXO, vW = 2, 3, 4
        vG = 8
        a(f"s_setprio 2\ns_sub_u32 s{sLW}, s{sWAVE}, 4")
        a("v_lshrrev_b32 v10, 3, v0\nv_mul_u32_u24 v10, 1280, v10\nv_and_b32 v11, 7, v0\nv_lshrrev_b32 v12, 4, v0\nv_xor_b32 v11, v11, v12")
        a(f"s_and_b32 s{t}, s{sLW}, 1\ns_lshl_b32 s{t}, s{t}, 6")
        a(f"v_lshl_add_u32 v10, v11, 4, v10\nv_xor_b32 v{vXE}, s{t}, v10\nv_xor_b32 v{vXO}, 64, v{vXE}")
        isKV = f"s_cmp_eq_u32 s{sTYPE}, 0"
        a(f"s_mul_i32 s{t+12}, s{sTB}, 160")
        a(f"s_lshl_b32 s{t+13}, s{sTB}, 5")
        a(isKV)
        a(f"s_cselect_b32 s{t}, 10, 8\ns_cselect_b32 s{t+6}, 10, 12\ns_cselect_b32 s{t+7}, 10, 14")
        a(f"s_cselect_b32 s{t+11}, 3840, 3072\ns_mov_b32 s{t+1}, s{t}")
        a(f"s_add_u32 s{t+14}, s{t+12}, 2560")
        a(isKV + f"\ns_cselect_b32 s{t+8}, s{t+14}, s{t+13}")
        a(f"s_lshl_b32 s{t+9}, s{sTS}, 5\ns_sub_u32 s{t+9}, s{t+9}, 192")
        a(f"s_lshl_b32 s{t+14}, s{sTB}, 7\ns_sub_u32 s{t+14}, s{t+14}, 160\ns_sub_u32 s{t+15}, s{t+13}, 32")
        a(isKV + f"\ns_cselect_b32 s{t+10}, s{t+14}, s{t+15}")
        a(f"s_add_u32 s{t+14}, s{t+12}, 1280\ns_add_u32 s{t+15}, s{t+13}, 256")
        a(isKV + f"\ns_cselect_b32 s{t+2}, s{t+14}, s{t+15}")
        a(f"s_add_u32 s{t+14}, s{sHALF}, 8\ns_lshl_b32 s{t+14}, s{t+14}, 7")
        a(f"s_cmp_eq_u32 s{sTYPE}, 1\ns_cselect_b32 s{t+2}, s{t+14}, s{t+2}")
        a(f"s_mov_b32 s{t+3}, {BIG}\ns_mov_b32 s{t+4}, {BIG}")
        a(f"s_cmp_eq_u32 s{sTYPE}, 2\ns_cselect_b32 s{t+5}, 3072, 3840")
        sStrA, sStrB, sA32, sA64, sOffA, sOffB, sXo, sWB, sXB = 0, 1, 3, 10, 11, sPIDX, sTS, sCBL, sHALF
        g = t + 12
        for j in range(4):
            cond = f"s_cmp_lt_u32 s{sLW}, {2 if j == 0 else 1}"
            a(f"s_lshl_b32 s{g}, s{sLW}, 8\ns_add_u32 s{g}, s{g}, {64*j}\ns_sub_u32 s{g+1}, s{g}, 320")
            a(cond + f"\ns_cselect_b32 s{g}, s{g}, s{g+1}\ns_cselect_b32 s{g+1}, 6554, 3641\ns_cselect_b32 s{g+2}, -10, -18\ns_cselect_b32 s{g+3}, s{t+5}, s{t+11}")
            a(f"v_add_u32 v10, s{g}, v0\nv_mul_u32_u24 v11, s{g+1}, v10\nv_lshrrev_b32 v11, 16, v11")
            a(f"v_mad_i32_i24 v10, v11, s{g+2}, v10")
            a("v_and_b32 v12, 12, v11\nv_and_b32 v13, 3, v11\nv_lshl_or_b32 v12, v12, 1, v13\nv_bfe_u32 v13, v11, 4, 1\nv_lshl_or_b32 v12, v13, 2, v12")
            a(f"v_mul_u32_u24 v12, s{g+3}, v12\nv_lshl_add_u32 v12, v10, 4, v12")
            a(cond + f"\ns_cselect_b32 s{g}, s{t}, s{t+6}\ns_cselect_b32 s{g+1}, s{t+1}, s{t+7}")
            a(f"v_cmp_gt_u32 vcc, s{g+1}, v10")
            a(cond + f"\ns_cselect_b32 s{g+2}, s{t+3}, s{t+9}\ns_cselect_b32 s{g+3}, s{t+4}, s{t+10}")
            a(f"v_mov_b32 v13, s{g+3}\nv_mov_b32 v14, s{g+2}\nv_cndmask_b32 v13, v13, v14, vcc")
            a(f"v_cmp_gt_u32 vcc, s{g}, v10")
            a(cond + f"\ns_cselect_b32 s{g+2}, s{t+2}, s{t+8}\nv_mov_b32 v14, s{g+2}\ns_nop 0\nv_cndmask_b32 v13, v13, v14, vcc")
            a(f"v_add_u32 v{vW+j}, v12, v13")
        a(f"s_lshl_b32 s{g}, s{sROT}, 3")
        for j in range(2):
            a(f"v_add_u32 v10, {64*j}, v0\nv_add_u32 v11, s{g}, v10\nv_subrev_u32 v12, 80, v11\nv_min_u32 v11, v11, v12\nv_lshlrev_b32 v11, 4, v11")
            a(f"v_cmp_gt_u32 vcc, 80, v10\nv_mov_b32 v12, {BIG}\ns_nop 0\nv_cndmask_b32 v{vG+j}, v12, v11, vcc")
        a("s_waitcnt lgkmcnt(0)")
        self.stamp(0)
        a(f"s_mul_i32 s{g}, s{sRB}, 163840")
        self.srd(SRD_X, pX, 163840, add=f"s{g}")
        for d, lim in ((SRD_A, 2), (SRD_B, 1)):
            a(f"s_cmp_lt_u32 s{sLW}, {lim}\ns_cselect_b32 s{g}, 2, 1\ns_cselect_b32 s{g+1}, s{t+5}, s{t+11}")
            a(f"s_lshl_b32 s{sStrA if d == SRD_A else sStrB}, s{g+1}, 5")
            a(f"s_cmp_lt_u32 s{sTYPE}, s{g}")
            a(f"s_cselect_b32 s{d}, s{pWQKV}, s{pW1}\ns_cselect_b32 s{d+1}, s{pWQKV+1}, s{pW1+1}\ns_cselect_b32 s{d+2}, {640*1920*2}, {640*1536*2}\ns_mov_b32 s{d+3}, 0x20000")
        a(f"s_lshl_b32 s{sA32}, s{sROT}, 1\ns_mov_b32 s{sA64}, s{sROT}")
        a(f"s_lshl_b32 s{sWB}, s{sLW}, 12\ns_mul_i32 s{sXB}, s{sLW}, 3072\ns_mul_i32 s{t}, s{sLW}, 30720")
        sXP = t
        lab3, labj = a.newlabel("L_ld3"), a.newlabel("L_ldj")
        a(f"s_cmp_eq_u32 s{sLW}, 3\ns_cbranch_scc1 {lab3}")
        for variant in (0, 3):
            if variant == 3:
                a.label(lab3)
                self.srd(SRD_M, pGATE, 1280)
            nW = 4 if variant == 0 else 2
            nX = 3 if variant == 0 else 7
            seq = []
            def issue_W(i):
                a(f"s_mul_i32 s{sOffA}, s{sA32}, s{sStrA}\ns_mul_i32 s{sOffB}, s{sA32}, s{sStrB}")
                for j in range(nW):
                    a(f"s_add_u32 m0, s{sWB}, {WR + (i % NS)*WSLOT + 1024*j}\ns_nop 0")
                    a(f"buffer_load_dwordx4 v{vW+j}, s[{SRD_A if j == 0 else SRD_B}:{(SRD_A if j == 0 else SRD_B)+3}], s{sOffA if j == 0 else sOffB} offen lds")
                    seq.append(("W", i))
                a(f"s_add_u32 s{sA32}, s{sA32}, 1\ns_cmp_eq_u32 s{sA32}, 20\ns_cselect_b32 s{sA32}, 0, s{sA32}")
            def issue_X(jx):
                a(f"s_lshl_b32 s{sXo}, s{sA64}, 7\ns_add_u32 s{sXo}, s{sXo}, s{sXP}")
                for j in range(nX):
                    a(f"s_add_u32 m0, s{sXB}, {XR + (jx % 3)*16384 + 1024*j}\ns_nop 0")
                    a(f"buffer_load_dwordx4 v{vXE + (j & 1)}, s[{SRD_X}:{SRD_X+3}], s{sXo} offen lds")
                    if j + 1 < nX: a(f"s_add_u32 s{sXo}, s{sXo}, 10240")
                    seq.append(("X", jx))
                a(f"s_add_u32 s{sA64}, s{sA64}, 1\ns_cmp_eq_u32 s{sA64}, 10\ns_cselect_b32 s{sA64}, 0, s{sA64}")
            def wait_for(items):
                last = max(n for n, it in enumerate(seq) if it in items)
                a(f"s_waitcnt vmcnt({len(seq) - 1 - last})")
            issue_X(0); issue_W(0)
            if variant == 3:
                for j in range(2):
                    a(f"s_mov_b32 m0, {GATE + 1024*j}\ns_nop 0\nbuffer_load_dwordx4 v{vG+j}, s[{SRD_M}:{SRD_M+3}], 0 offen lds")
                    seq.append(("W", 0))
            issue_W(1)
            wait_for([("W", 0), ("X", 0)]); self.stamp(1); a("s_barrier")
            issue_X(1)
            wait_for([("W", 1)]); a("s_barrier")
            issue_W(2); issue_W(3); issue_X(2)
            if LOOK == "xw": issue_W(4)
            for j in range(1, 10):
                if j == 9 and self.fused and variant == 0:
                    self.poll_s1()
                wait_for([("W", 2*j), ("W", 2*j + 1), ("X", j)]); a("s_barrier")
                if LOOK == "x" and j + 1 < 10: issue_W(2*j + 2)
                if j + 1 < 10: issue_W(2*j + 3)
                if j + 2 < 10: issue_X(j + 2)
                if LOOK == "xw" and j + 2 < 10: issue_W(2*j + 4)
            if variant == 0:
                a(f"s_branch {labj}")
        a.label(labj)
        self.stamp(2)

    def poll_s1(self):
        a = self.a
        skip, loop = a.newlabel("L_s1skip"), a.newlabel("L_s1")
        a(f"s_cmp_lg_u32 s{sWAVE}, 4\ns_cbranch_scc1 {skip}")
        self.srd(SRD_D, pDBG, 256)
        a(f"v_mov_b32 v10, 0\ns_mov_b32 s{T0+2}, 0")
        a.label(loop)
        a(f"buffer_load_dword v11, v10, s[{SRD_D}:{SRD_D+3}], 0 offen sc1\ns_waitcnt vmcnt(0)")
        a(f"v_readfirstlane_b32 s{T0+1}, v11\ns_add_u32 s{T0+2}, s{T0+2}, 1")
        a(f"s_cmp_ge_u32 s{T0+1}, 128\ns_cbranch_scc1 {skip}")
        a(f"s_sleep 4\ns_cmp_lt_u32 s{T0+2}, 0x100000\ns_cbranch_scc1 {loop}")
        a.label(skip)

    def mish_quad(self, h, dst, tmp):
        return [
            f"v_pk_fma_f32 v[{tmp}:{tmp+1}], v[{h}:{h+1}], s[{cL2E}:{cL2E+1}], -0.5 op_sel_hi:[1,1,0]",
            f"v_pk_fma_f32 v[{tmp+2}:{tmp+3}], v[{h+2}:{h+3}], s[{cL2E}:{cL2E+1}], -0.5 op_sel_hi:[1,1,0]",
            f"v_exp_f32 v{tmp}, v{tmp}", f"v_exp_f32 v{tmp+1}, v{tmp+1}", f"v_exp_f32 v{tmp+2}, v{tmp+2}", f"v_exp_f32 v{tmp+3}, v{tmp+3}",
            f"v_pk_add_f32 v[{tmp}:{tmp+1}], v[{tmp}:{tmp+1}], s[{cC}:{cC+1}]",
            f"v_pk_add_f32 v[{tmp+2}:{tmp+3}], v[{tmp+2}:{tmp+3}], s[{cC}:{cC+1}]",
            f"v_pk_fma_f32 v[{tmp}:{tmp+1}], v[{tmp}:{tmp+1}], v[{tmp}:{tmp+1}], 0.5 op_sel_hi:[1,1,0]",
            f"v_pk_fma_f32 v[{tmp+2}:{tmp+3}], v[{tmp+2}:{tmp+3}], v[{tmp+2}:{tmp+3}], 0.5 op_sel_hi:[1,1,0]",
            f"v_rcp_f32 v{tmp}, v{tmp}", f"v_rcp_f32 v{tmp+1}, v{tmp+1}", f"v_rcp_f32 v{tmp+2}, v{tmp+2}", f"v_rcp_f32 v{tmp+3}, v{tmp+3}",
            f"v_pk_fma_f32 v[{tmp}:{tmp+1}], v[{h}:{h+1}], v[{tmp}:{tmp+1}], v[{h}:{h+1}] neg_lo:[1,0,0] neg_hi:[1,0,0]",
            f"v_pk_fma_f32 v[{tmp+2}:{tmp+3}], v[{h+2}:{h+3}], v[{tmp+2}:{tmp+3}], v[{h+2}:{h+3}] neg_lo:[1,0,0] neg_hi:[1,0,0]",
            f"v_cvt_pk_bf16_f32 v{dst}, v{tmp}, v{tmp+1}",
            f"v_cvt_pk_bf16_f32 v{dst+1}, v{tmp+2}, v{tmp+3}",
        ]

    def phi_quad(self, h, dst, tmp):
        return [
            f"v_pk_mul_f32 v[{tmp}:{tmp+1}], v[{h}:{h+1}], s[{cL2E}:{cL2E+1}]",
            f"v_pk_mul_f32 v[{tmp+2}:{tmp+3}], v[{h+2}:{h+3}], s[{cL2E}:{cL2E+1}]",
            f"v_exp_f32 v{tmp}, v{tmp} clamp", f"v_exp_f32 v{tmp+1}, v{tmp+1} clamp", f"v_exp_f32 v{tmp+2}, v{tmp+2} clamp", f"v_exp_f32 v{tmp+3}, v{tmp+3} clamp",
            f"v_pk_add_f32 v[{h}:{h+1}], v[{h}:{h+1}], s[{cC}:{cC+1}]",
            f"v_pk_add_f32 v[{h+2}:{h+3}], v[{h+2}:{h+3}], s[{cC}:{cC+1}]",
            f"v_pk_add_f32 v[{tmp}:{tmp+1}], v[{tmp}:{tmp+1}], s[{cE}:{cE+1}]",
            f"v_pk_add_f32 v[{tmp+2}:{tmp+3}], v[{tmp+2}:{tmp+3}], s[{cE}:{cE+1}]",
            f"v_max_f32 v{tmp}, v{tmp}, v{h}", f"v_max_f32 v{tmp+1}, v{tmp+1}, v{h+1}", f"v_max_f32 v{tmp+2}, v{tmp+2}, v{h+2}", f"v_max_f32 v{tmp+3}, v{tmp+3}, v{h+3}",
            f"v_cvt_pk_bf16_f32 v{dst}, v{tmp}, v{tmp+1}",
            f"v_cvt_pk_bf16_f32 v{dst+1}, v{tmp+2}, v{tmp+3}",
        ]

    def set_mish_consts(self):
        self.a(f"s_mov_b32 s{cC}, 0x3f3504f3\ns_mov_b32 s{cC+1}, 0x3f3504f3")
    def set_phi_consts(self):
        self.a(f"s_mov_b32 s{cC}, 0x3f800008\ns_mov_b32 s{cC+1}, 0x3f800008\ns_mov_b32 s{cE}, 0x358637bd\ns_mov_b32 s{cE+1}, 0x358637bd")

    def pq_addr(self, sTile, sRb64, d):
        a = self.a
        a(f"s_mul_i32 s{d+1}, s{sTile}, 205\ns_lshr_b32 s{d+1}, s{d+1}, 10")
        a(f"s_mul_i32 s{d+2}, s{d+1}, 5\ns_sub_u32 s{d+2}, s{sTile}, s{d+2}")
        a(f"s_mul_i32 s{d}, s{sRb64}, 81920\ns_mul_i32 s{d+1}, s{d+1}, 10240\ns_add_u32 s{d}, s{d}, s{d+1}\ns_add_u32 s{d}, s{d}, {WS_PQ}")
        a(f"s_lshr_b32 s{d+1}, s{d+2}, 1\ns_lshl_b32 s{d+1}, s{d+1}, 10\ns_and_b32 s{d+3}, s{d+2}, 1\ns_lshl_b32 s{d+3}, s{d+3}, 3\ns_add_u32 s{d+1}, s{d+1}, s{d+3}")
        a(f"s_cmp_eq_u32 s{d+2}, 4\ns_cselect_b32 s{d+1}, 8192, s{d+1}\ns_cselect_b32 s{d+3}, 8, 2048\ns_cselect_b32 s{d+2}, 1024, 4096")
        a(f"s_add_u32 s{d}, s{d}, s{d+1}\ns_mov_b32 s{d+1}, s{d+3}")

    def main_loop(self, reads, mfmas, extra, nread_end):
        a = self.a
        a("s_barrier")
        self.stamp(1)
        for l in reads(0): a(l)
        for l in extra.get(0, ([], [], []))[1]: a(l)
        a("s_waitcnt lgkmcnt(0)")
        for i in range(1, 21):
            if i == 1 or i % 2 == 0: a("s_barrier")
            pre, fill, preb = extra.get(i, ([], [], []))
            for l in pre: a(l)
            if i < 20:
                body = interleave(mfmas(i - 1), reads(i) + fill, 0, nread_end)
                for l in body: a(l)
                for l in preb: a(l)
                a("s_waitcnt lgkmcnt(0)")
            else:
                for l in mfmas(19): a(l)
        self.stamp(2)

    def compute_PA(self, nh):
        a = self.a
        t = T0
        ACC, XB, WB, BI = 0, 112, 144, 200
        vX0, vX1, vS1a, vS1b, vS0a, vS0b, vGt, vL16, vT = 228, 229, 230, 231, 232, 233, 234, 235, 236
        vLane = 255
        sSH = sT
        a(f"v_mov_b32 v{vLane}, v0\ns_lshr_b32 s{sSH}, s{sWAVE}, 1")
        a(f"v_and_b32 v1, 15, v0\nv_lshrrev_b32 v2, 4, v0\nv_lshrrev_b32 v3, 1, v1\nv_xor_b32 v3, v3, v2\nv_lshlrev_b32 v3, 4, v3\nv_lshl_add_u32 v3, v1, 7, v3")
        a(f"s_lshl_b32 s{t}, s{sSH}, 13\nv_add_u32 v{vX0}, s{t}, v3\nv_xor_b32 v{vX1}, 64, v{vX0}")
        a(f"v_lshrrev_b32 v3, 2, v0\nv_and_b32 v4, 3, v0\nv_lshlrev_b32 v4, 3, v4")
        a(f"v_mul_u32_u24 v5, 288, v3\nv_add_u32 v5, v5, v4\nv_add_u32 v{vS1a}, {WR+5120}, v5\nv_add_u32 v{vS1b}, {WR+5120+3*WSLOT}, v5")
        a(f"v_mul_u32_u24 v5, 160, v3\nv_add_u32 v5, v5, v4\nv_add_u32 v{vS0a}, {WR}, v5\nv_add_u32 v{vS0b}, {WR+3*WSLOT}, v5")
        a(f"v_lshlrev_b32 v5, 4, v2\nv_add_u32 v{vGt}, {GATE}, v5\nv_lshlrev_b32 v{vL16}, 4, v0")
        vRd, vRr = vT, vT + 1
        a(f"v_lshrrev_b32 v5, 3, v0\nv_mul_u32_u24 v5, 1280, v5\nv_and_b32 v6, 7, v0\nv_lshl_add_u32 v{vRd}, v6, 4, v5")
        a(f"s_lshl_b32 s{t}, s{sWAVE}, 12\ns_add_u32 s{t}, s{t}, {SCR}\nv_lshl_add_u32 v5, v3, 7, v4\nv_add_u32 v{vRr}, s{t}, v5")
        vBo = vT + 2
        a(f"v_lshlrev_b32 v{vBo}, 3, v2")
        sTl = t + 8
        if nh == 0:
            for u in range(6): a(f"s_add_u32 s{sTl+u}, s{sTB}, {u}")
            a(f"s_mov_b32 s{sTl+6}, s{sTS}")
        else:
            for u in range(6): a(f"s_add_u32 s{sTl+u}, s{sTB}, {6+u}")
        sRsrc, sRdst = 0, 10
        dsts = [10, 11, 1, 3]
        a("s_waitcnt lgkmcnt(0)")
        self.stamp(0)
        self.srd(SRD_WS, pWS, WS_SIZE)
        self.srd(SRD_M, pB1, 3072)
        self.srd(SRD_A, pW2, 1536*640*2)
        for u in range(7):
            if nh == 1 and u == 6:
                continue
            a(f"s_lshl_b32 s{t}, s{sTl+u}, 5")
            if nh == 1 and u >= 2:
                a(f"s_cmp_eq_u32 s{sTYPE}, 1\ns_cselect_b32 s{t}, {BIG}, s{t}")
            a(f"buffer_load_dwordx2 v[{BI+4*u+2}:{BI+4*u+3}], v{vBo}, s[{SRD_M}:{SRD_M+3}], s{t} offen")
        nb = 7 if nh == 0 else 6
        a(f"s_lshl_b32 s{t}, s{sPIDX}, 2\ns_add_u32 s{t}, s{t}, s{sWAVE}")
        a(f"s_mul_i32 s{t+1}, s{t}, 6554\ns_lshr_b32 s{t+1}, s{t+1}, 16\ns_mul_i32 s{t+2}, s{t+1}, 10\ns_sub_u32 s{t+2}, s{t}, s{t+2}")
        a(f"s_mul_i32 s{sRsrc}, s{t+1}, 40960\ns_lshl_b32 s{t+3}, s{t+2}, 7\ns_add_u32 s{sRsrc}, s{sRsrc}, s{t+3}")
        a(f"s_lshl_b32 s{t+3}, s{sWAVE}, 12")
        for j in range(4):
            a(f"s_add_u32 m0, s{t+3}, {SCR + 1024*j}\ns_nop 0\nbuffer_load_dwordx4 v{vRd}, s[{SRD_A}:{SRD_A+3}], s{sRsrc} offen lds")
            if j < 3: a(f"s_add_u32 s{sRsrc}, s{sRsrc}, 10240")
        for u in range(4):
            a(f"s_lshl_b32 s{t+3}, s{t+2}, 2\ns_add_u32 s{t+3}, s{t+3}, {u}\ns_mul_i32 s{t+4}, s{t+3}, 205\ns_lshr_b32 s{t+4}, s{t+4}, 10")
            a(f"s_mul_i32 s{t+5}, s{t+4}, 235\ns_add_u32 s{t+5}, s{t+5}, s{t+3}\ns_mul_i32 s{t+4}, s{t+1}, 5\ns_add_u32 s{t+5}, s{t+5}, s{t+4}")
            a(f"s_lshl_b32 s{t+5}, s{t+5}, 10\ns_add_u32 s{t+5}, s{t+5}, {WS_W2R}")
            a(f"s_cmp_lt_u32 s{t}, 480\ns_cselect_b32 s{dsts[u]}, s{t+5}, {BIG}")
        sRb64 = t + 7
        a(f"s_lshl_b32 s{sRb64}, s{sRB}, 1\ns_add_u32 s{sRb64}, s{sRb64}, s{sSH}")
        a(f"s_mul_i32 s{t}, s{sRb64}, {48*4096}\ns_add_u32 s{t}, s{t}, {WS_ACT}")
        for u in ((0, 2, 4, 6) if nh == 0 else (0, 2, 4)):
            a(f"s_lshr_b32 s{t+1}, s{sTl+u}, 1\ns_lshl_b32 s{t+1}, s{t+1}, 12\ns_and_b32 s{sTl+u}, s{sTl+u}, 1\ns_lshl_b32 s{sTl+u}, s{sTl+u}, 3")
            a(f"s_add_u32 s{sTl+u}, s{sTl+u}, s{t+1}\ns_add_u32 s{sTl+u}, s{sTl+u}, s{t}")
        sPQ = SRD_X
        def reads(i):
            b = i & 1; slot = i % NS
            win = slot >= 3; so = (slot % 3) * WSLOT
            r = []
            xs = XR + ((i >> 1) % 3) * 16384
            xr = [f"ds_read_b128 v[{XB+16*b+4*s}:{XB+16*b+4*s+3}], v{vX1 if i & 1 else vX0} offset:{xs + 2048*s}" for s in range(4)]
            wr = []
            for u in range(7):
                d = WB + 28*b + 4*u
                if nh == 1 and u == 6:
                    wr.append(f"ds_read_b128 v[{d}:{d+3}], v{vGt} offset:{64*i}")
                    continue
                if nh == 0: base, unit, rowb = (vS1b if win else vS1a), u, 288
                elif u < 2: base, unit, rowb = (vS1b if win else vS1a), 7 + u, 288
                else: base, unit, rowb = (vS0b if win else vS0a), u - 2, 160
                wr.append(f"ds_read_b64_tr_b16 v[{d}:{d+1}], v{base} offset:{so + 32*unit}")
                wr.append(f"ds_read_b64_tr_b16 v[{d+2}:{d+3}], v{base} offset:{so + 32*unit + 16*rowb}")
            return xr + wr
        def mfmas(i):
            b = i & 1
            r = []
            for u in range(7):
                for s in range(4):
                    d = ACC + 16*u + 4*s
                    c = f"v[{d}:{d+3}]" if i > 0 else ("0" if (nh == 1 and u == 6) else f"v[{BI+4*u}:{BI+4*u+3}]")
                    r.append(f"v_mfma_f32_16x16x32_bf16 v[{d}:{d+3}], v[{WB+28*b+4*u}:{WB+28*b+4*u+3}], v[{XB+16*b+4*s}:{XB+16*b+4*s+3}], {c}")
            return r
        unpack = ["s_waitcnt vmcnt(4)"]
        for u in range(nb):
            p = BI + 4*u
            unpack += [f"v_lshlrev_b32 v{p}, 16, v{p+2}", f"v_and_b32 v{p+1}, 0xffff0000, v{p+2}", f"v_lshlrev_b32 v{p+2}, 16, v{p+3}", f"v_and_b32 v{p+3}, 0xffff0000, v{p+3}"]
        RP = BI
        rp_reads = []
        for u in range(4):
            rp_reads += [f"ds_read_b64_tr_b16 v[{RP+4*u}:{RP+4*u+1}], v{vRr} offset:{32*u}", f"ds_read_b64_tr_b16 v[{RP+4*u+2}:{RP+4*u+3}], v{vRr} offset:{32*u + 2048}"]
        rp_st = [f"buffer_store_dwordx4 v[{RP+4*u}:{RP+4*u+3}], v{vL16}, s[{SRD_WS}:{SRD_WS+3}], s{dsts[u]} offen sc1" for u in range(4)]
        extra = {0: ([], unpack, []), 3: (["s_waitcnt vmcnt(0)"], rp_reads, []), 4: ([], rp_st, [])}
        if nh == 0:
            z = [f"s_or_b32 s{t}, s{sPIDX}, s{sWAVE}", f"s_cmp_eq_u32 s{t}, 0", f"s_cselect_b32 s{t}, 0, {BIG}",
                 f"v_lshlrev_b32 v{vT+3}, 7, v{vLane}", f"v_mov_b32 v{vT+4}, 0",
                 f"buffer_store_dword v{vT+4}, v{vT+3}, s[{SRD_WS}:{SRD_WS+3}], s{t} offen sc1"]
            extra[5] = ([], z, [])
        extra[9] = ([], [], ["s_waitcnt vmcnt(0)"])
        if self.fused and nh == 0:
            sk = a.newlabel("L_s1a")
            arr = [f"s_cmp_lg_u32 s{sWAVE}, 0", f"s_cbranch_scc1 {sk}",
                   f"s_mov_b32 s{SRD_D}, s{pDBG}", f"s_mov_b32 s{SRD_D+1}, s{pDBG+1}", f"s_mov_b32 s{SRD_D+2}, 4", f"s_mov_b32 s{SRD_D+3}, 0x20000",
                   f"v_lshlrev_b32 v{vT+3}, 2, v{vLane}", f"v_mov_b32 v{vT+4}, 1",
                   f"buffer_atomic_add v{vT+4}, v{vT+3}, s[{SRD_D}:{SRD_D+3}], 0 offen sc1", sk + ":"]
            extra[10] = (arr, [], [])
        if nh == 1:
            for u in range(4):
                a(f"s_lshl_b32 s{t}, s{sHALF}, 2\ns_add_u32 s{t}, s{t}, {32+u}")
                self.pq_addr(t, sRb64, sPQ + 3*u)
        self.main_loop(reads, mfmas, extra, 20)
        self.set_mish_consts()
        TM = XB
        def mish_pair(u):
            for s in range(4):
                e, o = ACC + 16*u + 4*s, ACC + 16*(u+1) + 4*s
                for l in self.mish_quad(e, e, TM + 8*(s & 1)): a(l)
                for l in self.mish_quad(o, e + 2, TM + 4 + 8*(s & 1)): a(l)
                a(f"buffer_store_dwordx4 v[{e}:{e+3}], v{vL16}, s[{SRD_WS}:{SRD_WS+3}], s{sTl+u} offen offset:{1024*s} sc1")
        a("s_nop 1")
        if nh == 0:
            for u in (0, 2, 4): mish_pair(u)
            for s in range(4):
                e = ACC + 96 + 4*s
                for l in self.mish_quad(e, e, TM + 4*s): a(l)
                a(f"buffer_store_dwordx2 v[{e}:{e+1}], v{vL16}, s[{SRD_WS}:{SRD_WS+3}], s{sTl+6} offen offset:{1024*s} sc1")
        else:
            mish_pair(0)
            labA, labE = a.newlabel("L_epA"), a.newlabel("L_epE")
            a(f"s_cmp_eq_u32 s{sTYPE}, 1\ns_cbranch_scc1 {labA}")
            mish_pair(2); mish_pair(4)
            a(f"s_branch {labE}")
            a.label(labA)
            self.set_phi_consts()
            for u in range(2, 6):
                p = sPQ + 3*(u - 2)
                for s in range(4):
                    e = ACC + 16*u + 4*s
                    for l in self.phi_quad(e, e, TM + 4*s): a(l)
                    if s == 0: so = p
                    else:
                        so = t
                        a({1: f"s_add_u32 s{t}, s{p}, s{p+1}", 2: f"s_add_u32 s{t}, s{p}, s{p+2}", 3: f"s_add_u32 s{t}, s{t}, s{p+1}"}[s])
                    a(f"buffer_store_dwordx2 v[{e}:{e+1}], v{vL16}, s[{SRD_WS}:{SRD_WS+3}], s{so} offen sc1")
            G = ACC + 96
            a(f"v_cmp_le_u32 vcc, 16, v{vLane}\nv_cmp_le_u32 s[{t+2}:{t+3}], 32, v{vLane}\nv_cmp_le_u32 s[{t+4}:{t+5}], 48, v{vLane}\ns_nop 0")
            a(f"v_cndmask_b32 v{G}, v{G}, v{G+4}, vcc\nv_cndmask_b32 v{G}, v{G}, v{G+8}, s[{t+2}:{t+3}]\nv_cndmask_b32 v{G}, v{G}, v{G+12}, s[{t+4}:{t+5}]")
            a(f"v_mul_f32 v{G}, s{cL2E}, v{G}\nv_exp_f32 v{G}, -v{G}\ns_nop 0\nv_add_f32 v{G}, 1.0, v{G}\nv_rcp_f32 v{G}, v{G}")
            a(f"s_lshl_b32 s{t}, s{sRb64}, 8\ns_add_u32 s{t}, s{t}, {WS_G}\nv_lshlrev_b32 v{G+1}, 2, v{vLane}")
            a(f"buffer_store_dword v{G}, v{G+1}, s[{SRD_WS}:{SRD_WS+3}], s{t} offen sc1")
            a.label(labE)
        a(f"v_mov_b32 v0, v{vLane}")
        self.stamp(3)

    def compute_KV(self):
        a = self.a
        t = T0
        ACC, XB, WB = 0, 112, 128
        vX0, vX1, vS1a, vS1b, vS0a, vS0b, vL16 = 240, 241, 242, 243, 244, 245, 246
        vLane = 255
        a(f"v_mov_b32 v{vLane}, v0")
        a(f"v_and_b32 v1, 15, v0\nv_lshrrev_b32 v2, 4, v0\nv_lshrrev_b32 v3, 1, v1\nv_xor_b32 v3, v3, v2\nv_lshlrev_b32 v3, 4, v3\nv_lshl_add_u32 v3, v1, 7, v3")
        a(f"s_lshl_b32 s{t}, s{sWAVE}, 12\nv_add_u32 v{vX0}, s{t}, v3\nv_xor_b32 v{vX1}, 64, v{vX0}")
        a(f"v_lshrrev_b32 v3, 2, v0\nv_and_b32 v4, 3, v0\nv_lshlrev_b32 v4, 3, v4")
        a(f"v_mul_u32_u24 v5, 288, v3\nv_add_u32 v5, v5, v4\nv_add_u32 v{vS1a}, {WR+5120}, v5\nv_add_u32 v{vS1b}, {WR+5120+3*WSLOT}, v5")
        a(f"v_mul_u32_u24 v5, 160, v3\nv_add_u32 v5, v5, v4\nv_add_u32 v{vS0a}, {WR}, v5\nv_add_u32 v{vS0b}, {WR+3*WSLOT}, v5")
        a(f"v_lshlrev_b32 v{vL16}, 4, v0")
        sRb64 = t + 7
        a(f"s_lshl_b32 s{sRb64}, s{sRB}, 1\ns_lshr_b32 s{t}, s{sWAVE}, 1\ns_add_u32 s{sRb64}, s{sRb64}, s{t}")
        sPQ = SRD_X
        for u in range(4):
            a(f"s_lshl_b32 s{t}, s{sTB}, 2\ns_add_u32 s{t}, s{t}, {u}")
            self.pq_addr(t, sRb64, sPQ + 3*u)
            a(f"s_and_b32 s{t}, s{sWAVE}, 1\ns_mul_i32 s{t}, s{t}, s{sPQ+3*u+2}\ns_add_u32 s{sPQ+3*u}, s{sPQ+3*u}, s{t}")
        sHd = t + 8
        a(f"s_lshl_b32 s{sHd}, s{sTB}, 2\ns_add_u32 s{sHd}, s{sHd}, s{sWAVE}")
        a(f"s_lshl_b32 s{t+9}, s{sHd}, 4\ns_add_u32 s{t+9}, s{t+9}, s{sRB}\ns_lshl_b32 s{t+9}, s{t+9}, 11\ns_add_u32 s{t+9}, s{t+9}, {WS_KVP}")
        a("s_waitcnt lgkmcnt(0)")
        self.stamp(0)
        self.srd(SRD_WS, pWS, WS_SIZE)
        self.set_phi_consts()
        def reads(i):
            b = i & 1; slot = i % NS
            win = slot >= 3; so = (slot % 3) * WSLOT
            xs = XR + ((i >> 1) % 3) * 16384
            xr = [f"ds_read_b128 v[{XB+8*b+4*s}:{XB+8*b+4*s+3}], v{vX1 if i & 1 else vX0} offset:{xs + 2048*s}" for s in range(2)]
            wr = []
            for u in range(14):
                d = WB + 56*b + 4*u
                if u < 5: base, unit, rowb = (vS0b if win else vS0a), u, 160
                else: base, unit, rowb = (vS1b if win else vS1a), u - 5, 288
                wr.append(f"ds_read_b64_tr_b16 v[{d}:{d+1}], v{base} offset:{so + 32*unit}")
                wr.append(f"ds_read_b64_tr_b16 v[{d+2}:{d+3}], v{base} offset:{so + 32*unit + 16*rowb}")
            return xr + wr
        def mfmas(i):
            b = i & 1
            r = []
            order = list(range(14)) if i < 19 else [5, 6, 7, 8, 9, 0, 1, 2, 3, 4, 10, 11, 12, 13]
            for u in order:
                for s in range(2):
                    d = ACC + 8*u + 4*s
                    c = f"v[{d}:{d+3}]" if i > 0 else "0"
                    w, x = f"v[{WB+56*b+4*u}:{WB+56*b+4*u+3}]", f"v[{XB+8*b+4*s}:{XB+8*b+4*s+3}]"
                    r.append(f"v_mfma_f32_16x16x32_bf16 v[{d}:{d+3}], {x if u < 10 else w}, {w if u < 10 else x}, {c}")
            return r
        self.main_loop(reads, mfmas, {}, 24)
        TM = XB
        vEx = vX0
        a(f"s_mul_i32 s{t}, s{sWAVE}, 10240\nv_add_u32 v{vEx}, s{t}, v{vL16}")
        for u in range(5, 10):
            e = ACC + 8*u
            a(f"v_cvt_pk_bf16_f32 v{e}, v{e}, v{e+1}\nv_cvt_pk_bf16_f32 v{e+1}, v{e+2}, v{e+3}\nv_cvt_pk_bf16_f32 v{e+2}, v{e+4}, v{e+5}\nv_cvt_pk_bf16_f32 v{e+3}, v{e+6}, v{e+7}")
            a(f"ds_write_b128 v{vEx}, v[{e}:{e+3}] offset:{XR + 1024*u}")
        for u in range(5):
            e = ACC + 8*u
            for l in self.phi_quad(e, e, TM): a(l)
            for l in self.phi_quad(e + 4, e + 2, TM + 4): a(l)
            a(f"ds_write_b128 v{vEx}, v[{e}:{e+3}] offset:{XR + 1024*u}")
        a(f"s_lshl_b32 s{t}, s{sWAVE}, 10\nv_add_u32 v{vEx}, s{t}, v{vL16}")
        ONE = WB + 64
        for k in range(4): a(f"v_mov_b32 v{ONE+k}, 0x3f803f80")
        a("s_waitcnt lgkmcnt(0)\ns_barrier")
        self.stamp(4)
        FR = WB
        for g in range(4):
            for j, off in enumerate((0, 1024, 5120, 6144)):
                a(f"ds_read_b128 v[{FR+16*g+4*j}:{FR+16*g+4*j+3}], v{vEx} offset:{XR + 10240*g + off}")
        AD = WB + 72
        eqv, lo, hi, dv, R = AD, AD + 3, AD + 6, AD + 9, AD + 12
        ad = [f"v_lshrrev_b32 v{eqv}, 4, v{vLane}", f"v_and_b32 v{dv}, 15, v{vLane}",
              f"v_cmp_gt_u32 vcc, 16, v{vLane}", f"v_mov_b32 v{R}, {BIG}", f"v_mov_b32 v{R+1}, 1280", f"v_mov_b32 v{R+2}, 1600",
              f"v_cndmask_b32 v{lo+2}, v{R}, v{R+1}, vcc", f"v_cndmask_b32 v{hi+2}, v{R}, v{R+2}, vcc",
              f"v_subrev_u32 v{eqv}, s{sWAVE}, v{eqv}", f"v_add_u32 v{eqv+1}, 4, v{eqv}",
              f"s_lshl_b32 s{t}, s{sWAVE}, 2", f"v_subrev_u32 v{dv}, s{t}, v{dv}", f"v_add_u32 v{dv+1}, 16, v{dv}"]
        for k in range(2):
            ad += [f"v_and_b32 v{R+1}, 1, v{eqv+k}", f"v_lshrrev_b32 v{R+2}, 1, v{eqv+k}", f"v_cmp_gt_u32 vcc, 5, v{eqv+k}",
                   f"v_mul_u32_u24 v{lo+k}, 768, v{R+1}", f"v_mul_u32_u24 v{hi+k}, 192, v{R+1}",
                   f"v_lshl_add_u32 v{lo+k}, v{R+2}, 8, v{lo+k}", f"v_lshl_add_u32 v{hi+k}, v{R+2}, 6, v{hi+k}", f"v_add_u32 v{hi+k}, 1280, v{hi+k}",
                   f"v_cndmask_b32 v{lo+k}, v{R}, v{lo+k}, vcc", f"v_cndmask_b32 v{hi+k}, v{R}, v{hi+k}, vcc"]
        BG = AD + 2
        ad += [f"v_mov_b32 v{BG}, {BIG}"]
        for b in range(2):
            ad += [f"v_cmp_gt_u32 s[{t+2}:{t+3}], 20, v{dv+b}", f"v_cmp_gt_u32 vcc, 16, v{dv+b}", f"v_lshlrev_b32 v{dv+b}, 4, v{dv+b}", "s_nop 0",
                   f"v_cndmask_b32 v{dv+b}, v{BG}, v{dv+b}, s[{t+2}:{t+3}]"]
            for k in range(3):
                ad += [f"v_cndmask_b32 v{R+3*b+k}, v{hi+k}, v{lo+k}, vcc"]
            for k in range(3):
                ad += [f"v_add_u32 v{R+3*b+k}, v{R+3*b+k}, v{dv+b}"]
        for l in ad[:20]: a(l)
        D = ACC
        mm = []
        for g in range(4):
            for b in range(2):
                for k in range(3):
                    d = D + 12*b + 4*k
                    A = f"v[{FR+16*g+8+4*k}:{FR+16*g+8+4*k+3}]" if k < 2 else f"v[{ONE}:{ONE+3}]"
                    mm.append(f"v_mfma_f32_16x16x32_bf16 v[{d}:{d+3}], {A}, v[{FR+16*g+4*b}:{FR+16*g+4*b+3}], {'0' if g == 0 else f'v[{d}:{d+3}]'}")
        a("s_waitcnt lgkmcnt(0)")
        for l in interleave(mm, ad[20:], 0, 20): a(l)
        def qmath(u):
            e = ACC + 8*u
            return self.phi_quad(e, e, TM) + self.phi_quad(e + 4, e + 4, TM + 4)
        for l in qmath(10): a(l)
        for b in range(2):
            for k in range(3):
                d = D + 12*b + 4*k
                a(f"buffer_store_dwordx4 v[{d}:{d+3}], v{R+3*b+k}, s[{SRD_WS}:{SRD_WS+3}], s{t+9} offen sc1")
        for u in (11, 12, 13):
            for l in qmath(u): a(l)
        if self.fused:
            a("s_waitcnt vmcnt(0)")
            a(f"s_lshl_b32 s{t}, s{sHd}, 7\ns_add_u32 s{t}, s{t}, {CNT_KV}\nv_mov_b32 v{TM}, 1\nv_mov_b32 v{TM+1}, 0\ns_mov_b64 exec, 1")
            a(f"buffer_atomic_add v{TM}, v{TM+1}, s[{SRD_WS}:{SRD_WS+3}], s{t} offen sc1\ns_mov_b64 exec, -1")
        for u in range(4):
            e = ACC + 8*(10 + u); p = sPQ + 3*u
            a(f"buffer_store_dwordx2 v[{e}:{e+1}], v{vL16}, s[{SRD_WS}:{SRD_WS+3}], s{p} offen sc1")
            a(f"s_add_u32 s{t}, s{p}, s{p+1}\nbuffer_store_dwordx2 v[{e+4}:{e+5}], v{vL16}, s[{SRD_WS}:{SRD_WS+3}], s{t} offen sc1")
        a(f"v_mov_b32 v0, v{vLane}")
        self.stamp(3)

    def phase1(self, done_c, done_l):
        a = self.a
        lL, lKV, l1 = a.newlabel("L_loader"), a.newlabel("L_kv"), a.newlabel("L_nh1")
        a(f"s_cmp_ge_u32 s{sWAVE}, 4\ns_cbranch_scc1 {lL}")
        a(f"s_cmp_eq_u32 s{sTYPE}, 0\ns_cbranch_scc1 {lKV}")
        a(f"s_and_b32 s{T0}, s{sWAVE}, 1\ns_cmp_eq_u32 s{T0}, 1\ns_cbranch_scc1 {l1}")
        self.compute_PA(0); a(f"s_branch {done_c}")
        a.label(l1); self.compute_PA(1); a(f"s_branch {done_c}")
        a.label(lKV); self.compute_KV(); a(f"s_branch {done_c}")
        a.label(lL); self.loader1(); a(f"s_branch {done_l}")

    def setup2(self):
        a = self.a
        t = T0
        a(f"s_and_b32 s{t}, s{sWG}, 7\ns_lshr_b32 s{t+1}, s{sWG}, 3")
        a(f"s_lshr_b32 s{t+2}, s{t}, 1\ns_lshl_b32 s{t+2}, s{t+2}, 3\ns_and_b32 s{t+3}, s{t+1}, 7\ns_or_b32 s{sR64}, s{t+2}, s{t+3}")
        a(f"s_and_b32 s{t+2}, s{t}, 1\ns_lshl_b32 s{t+2}, s{t+2}, 2\ns_lshr_b32 s{t+3}, s{t+1}, 3\ns_or_b32 s{sC}, s{t+2}, s{t+3}")
        a(f"s_lshl_b32 s{t+2}, s{t}, 2\ns_and_b32 s{t+3}, s{t+1}, 3\ns_or_b32 s{sH}, s{t+2}, s{t+3}\ns_lshr_b32 s{sC2}, s{t+1}, 2")
        self.srd(SRD_WS, pWS, WS_SIZE)
        a(f"v_lshlrev_b32 v{vL16}, 4, v0\nv_add_u32 v{vL16b}, 4096, v{vL16}")
        if ROT2 == "none":
            a(f"s_mov_b32 s{t}, 0")
        else:
            a(f"s_lshr_b32 s{t}, s{sWG}, 3\ns_and_b32 s{t}, s{t}, 1\ns_mul_i32 s{t}, s{t}, 3")
        a(f"s_mul_i32 s{t+1}, s{sWAVE}, 6")
        a(f"s_mul_i32 s{t+2}, s{sC}, {48*5120}\ns_add_u32 s{t+2}, s{t+2}, {WS_W2R}")
        a(f"s_mul_i32 s{t+3}, s{sR64}, {48*4096}\ns_add_u32 s{t+3}, s{t+3}, {WS_ACT}")
        for i in range(6):
            a(f"s_add_u32 s{t+4}, s{t+1}, s{t}\ns_mul_i32 s{sB0+i}, s{t+4}, 5120\ns_add_u32 s{sB0+i}, s{sB0+i}, s{t+2}")
            a(f"s_lshl_b32 s{sA0+i}, s{t+4}, 12\ns_add_u32 s{sA0+i}, s{sA0+i}, s{t+3}")
            if i < 5: a(f"s_add_u32 s{t}, s{t}, 1\ns_cmp_eq_u32 s{t}, 6\ns_cselect_b32 s{t}, 0, s{t}")

    def preload_b(self):
        a = self.a
        for i in range(6):
            for jn in range(5):
                d = BS + 20*i + 4*jn
                a(f"buffer_load_dwordx4 v[{d}:{d+3}], v{vL16 if jn < 4 else vL16b}, s[{SRD_WS}:{SRD_WS+3}], s{sB0+i} offen offset:{1024*jn if jn < 4 else 0} sc1")

    def wo_frags(self):
        a = self.a
        t = T0
        sk = a.newlabel("L_wo")
        a(f"s_cmp_lg_u32 s{sWAVE}, 7\ns_cbranch_scc1 {sk}")
        self.srd(SRD_M, pWO, 640*640*2)
        a(f"s_mul_i32 s{t}, s{sH}, 25600\ns_mul_i32 s{t+1}, s{sC2}, 160\ns_add_u32 s{t}, s{t}, s{t+1}\nv_mov_b32 v5, {BIG}")
        for j in range(5):
            a(f"v_add_u32 v1, {64*j}, v0\nv_mul_u32_u24 v2, 6554, v1\nv_lshrrev_b32 v2, 16, v2\nv_cmp_gt_u32 vcc, 20, v2\nv_mad_i32_i24 v1, v2, -10, v1")
            a(f"v_mul_u32_u24 v2, 1280, v2\nv_lshl_add_u32 v1, v1, 4, v2\nv_cndmask_b32 v1, v5, v1, vcc\ns_mov_b32 m0, {SCR + 1024*j}\ns_nop 0")
            a(f"buffer_load_dwordx4 v1, s[{SRD_M}:{SRD_M+3}], s{t} offen lds")
        a(f"v_lshrrev_b32 v1, 4, v0\nv_bfe_u32 v2, v0, 2, 2\nv_lshl_add_u32 v1, v1, 3, v2\nv_mul_u32_u24 v1, 160, v1\nv_and_b32 v2, 3, v0\nv_lshl_add_u32 v1, v2, 3, v1\nv_add_u32 v1, {SCR}, v1")
        a("s_waitcnt vmcnt(0)")
        for jn in range(5):
            a(f"ds_read_b64_tr_b16 v[{60+4*jn}:{61+4*jn}], v1 offset:{32*jn}\nds_read_b64_tr_b16 v[{62+4*jn}:{63+4*jn}], v1 offset:{32*jn + 640}")
        a("s_waitcnt lgkmcnt(0)")
        a.label(sk)

    def poll(self, soffs, targets, vtmp):
        a = self.a
        t = T0
        loop, done = a.newlabel("L_poll"), a.newlabel("L_polld")
        a(f"v_mov_b32 v{vtmp}, 0\ns_mov_b32 s{t+2}, 0")
        a.label(loop)
        for k, so in enumerate(soffs):
            a(f"buffer_load_dword v{vtmp+1+k}, v{vtmp}, s[{SRD_WS}:{SRD_WS+3}], s{so} offen sc1")
        a("s_waitcnt vmcnt(0)")
        for k in range(len(soffs)):
            a(f"v_readfirstlane_b32 s{t+3+k}, v{vtmp+1+k}")
        a(f"s_add_u32 s{t+2}, s{t+2}, 1")
        if len(soffs) == 2 and targets[0] == targets[1]:
            a(f"s_min_u32 s{t+3}, s{t+3}, s{t+4}")
        a(f"s_cmp_ge_u32 s{t+3}, {targets[0]}\ns_cbranch_scc1 {done}")
        a(f"s_sleep 1\ns_cmp_lt_u32 s{t+2}, 0x100000\ns_cbranch_scc1 {loop}")
        a.label(done)

    def mstage(self):
        a = self.a
        t = T0
        sk = a.newlabel("L_ms")
        a(f"s_cmp_lg_u32 s{sWAVE}, 7\ns_cbranch_scc1 {sk}")
        a(f"v_add_u32 v56, {E3S}, v{vL16}")
        for half in range(2):
            for w in range(8):
                a(f"ds_read_b128 v[{4*w}:{4*w+3}], v56 offset:{2048*w + 1024*half}")
            for w in range(1, 8):
                a(f"s_waitcnt lgkmcnt({7-w})")
                dst = 0 if w < 7 else 32 + 4*half
                a(f"v_pk_add_f32 v[{dst}:{dst+1}], v[0:1], v[{4*w}:{4*w+1}]\nv_pk_add_f32 v[{dst+2}:{dst+3}], v[2:3], v[{4*w+2}:{4*w+3}]")
        a("ds_write_b128 v56, v[32:35]\nds_write_b128 v56, v[36:39] offset:1024")
        for k in range(40, 56): a(f"v_mov_b32 v{k}, 0")
        a(f"v_lshrrev_b32 v57, 4, v255\nv_and_b32 v58, 15, v255\nv_lshl_add_u32 v59, v57, 2, v58\nv_lshlrev_b32 v59, 4, v59\nv_add_u32 v59, {E3S+1536}, v59")
        a(f"v_cmp_eq_u32 vcc, 4, v255\nv_lshlrev_b32 v1, 6, v255\nv_add_u32 v1, {E3S+1280}, v1\nv_add_u32 v2, 320, v1\nv_cndmask_b32 v1, v1, v2, vcc")
        a("s_waitcnt lgkmcnt(0)")
        a("s_mov_b32 exec_hi, 0xffff\nds_read_b128 v[40:43], v56\nds_read_b128 v[44:47], v56 offset:768")
        a("s_mov_b32 exec_lo, 0x000f000f\ns_mov_b32 exec_hi, 0x0000000f\nds_read_b128 v[48:51], v59\nds_read_b128 v[52:55], v59 offset:192")
        a("s_mov_b64 exec, 31\nds_read2_b32 v[2:3], v1 offset0:0 offset1:4\nds_read2_b32 v[4:5], v1 offset0:8 offset1:12\ns_mov_b64 exec, -1")
        a(f"s_and_b32 s{t}, s{sH}, 3\ns_mul_i32 s{t+1}, s{t}, 5")
        a(f"s_lshl_b32 s{t+2}, s{sC2}, 3\ns_lshr_b32 s{t+3}, s{sH}, 2\ns_add_u32 s{t+2}, s{t+2}, s{t+3}\ns_lshl_b32 s{t+2}, s{t+2}, 14\ns_add_u32 s{t+2}, s{t+2}, {WS_MW}")
        a("s_waitcnt lgkmcnt(0)")
        for k in range(8): a(f"v_cvt_pk_bf16_f32 v{40+k}, v{40+2*k}, v{41+2*k}")
        a("v_cvt_pk_bf16_f32 v48, v2, v3\nv_cvt_pk_bf16_f32 v49, v4, v5")
        a(f"v_add_u32 v50, s{t+1}, v255\nv_and_b32 v50, 3, v50\nv_lshlrev_b32 v50, 6, v50\nv_lshrrev_b32 v51, 2, v255\nv_lshl_add_u32 v50, v51, 3, v50\ns_lshl_b32 s{t+3}, s{t}, 4\ns_add_u32 s{t+3}, s{t+3}, 13312\nv_add_u32 v50, s{t+3}, v50")
        for dt in range(2):
            for jn in range(5):
                d = 20*dt + 4*jn
                a(f"v_mfma_f32_16x16x32_bf16 v[{d}:{d+3}], v[{40+4*dt}:{43+4*dt}], v[{60+4*jn}:{63+4*jn}], 0")
        a(f"s_mov_b64 exec, 31\nbuffer_store_dwordx2 v[48:49], v50, s[{SRD_WS}:{SRD_WS+3}], s{t+2} offen sc1\ns_mov_b64 exec, -1")
        for dt in range(2):
            b, m = 52 + dt, t + 4 + 2*dt
            a(f"v_add_u32 v54, {4*dt}, v57\nv_add_u32 v55, s{t+1}, v54\nv_cmp_gt_u32 vcc, 5, v54")
            a(f"v_and_b32 v54, 3, v55\nv_lshl_add_u32 v54, v54, 4, v58\nv_lshlrev_b32 v54, 4, v54")
            a(f"v_cmp_gt_u32 s[{m}:{m+1}], 16, v55\nv_bfe_u32 v56, v55, 3, 1\nv_lshlrev_b32 v56, 10, v56\nv_bfe_u32 v55, v55, 2, 1\nv_lshl_add_u32 v56, v55, 3, v56")
            a(f"v_mov_b32 v55, 10240\nv_cndmask_b32 v56, v55, v56, s[{m}:{m+1}]\nv_add_u32 v54, v54, v56\nv_mov_b32 v55, {BIG}\nv_cndmask_b32 v{b}, v55, v54, vcc")
        for dt in range(2):
            m = t + 4 + 2*dt
            for jn in range(5):
                d = 20*dt + 4*jn
                a(f"v_cvt_pk_bf16_f32 v{d}, v{d}, v{d+1}\nv_cvt_pk_bf16_f32 v{d+1}, v{d+2}, v{d+3}")
                a(f"v_mov_b32 v54, {(jn >> 1)*1024 + (jn & 1)*8}\nv_mov_b32 v55, {2048*jn}\nv_cndmask_b32 v54, v54, v55, s[{m}:{m+1}]\nv_add_u32 v54, v54, v{52+dt}")
                a(f"buffer_store_dwordx2 v[{d}:{d+1}], v54, s[{SRD_WS}:{SRD_WS+3}], s{t+2} offen sc1")
        a(f"s_lshl_b32 s{t}, s{sC2}, 7\ns_add_u32 s{t}, s{t}, {CNT_M}\nv_mov_b32 v54, 1\nv_mov_b32 v55, 0")
        a("s_waitcnt vmcnt(0)\ns_mov_b64 exec, 1")
        a(f"buffer_atomic_add v54, v55, s[{SRD_WS}:{SRD_WS+3}], s{t} offen sc1\ns_mov_b64 exec, -1")
        a.label(sk)

    def gemm2(self):
        a = self.a
        t = T0
        W = f"s[{SRD_WS}:{SRD_WS+3}]"
        seq = ["B"]
        def ld(dst, n, v, so, off, tag):
            a(f"buffer_load_dword{'x4' if n == 4 else ''} {vr(dst, n)}, v{v}, {W}, s{so} offen offset:{off} sc1"); seq.append(tag)
        def wait(tag):
            last = max(n for n, x in enumerate(seq) if x == tag)
            a(f"s_waitcnt vmcnt({len(seq) - 1 - last})")
        def act(i):
            for st in range(4): ld(AB + 16*(i % 3) + 4*st, 4, vL16, sA0 + i, 1024*st, f"act{i}")
        a(f"v_lshrrev_b32 v255, 4, v{vL16}")
        a(f"s_lshl_b32 s{t}, s{sH}, 4\ns_lshl_b32 s{t+1}, s{sWAVE}, 1\ns_add_u32 s{t}, s{t}, s{t+1}\ns_lshl_b32 s{t}, s{t}, 11\ns_add_u32 s{t}, s{t}, {WS_KVP}")
        for k in range(4): ld(4*k, 4, vL16, t, 1024*k, "P")
        act(0); act(1); act(2)
        a(f"v_and_b32 v{vP}, 15, v255\nv_lshlrev_b32 v{vP}, 2, v{vP}\ns_lshl_b32 s{t}, s{sR64}, 8\ns_add_u32 s{t}, s{t}, {WS_G}")
        for st in range(4): ld(vG + st, 1, vP, t, 64*st, "g")
        a(f"s_lshl_b32 s{t}, s{sWAVE}, 11\ns_add_u32 s{t}, s{t}, {E3S}\nv_add_u32 v16, s{t}, v{vL16}")
        a(f"s_mul_i32 s{sPQb}, s{sR64}, 81920\ns_mul_i32 s{t}, s{sWAVE}, 10240\ns_add_u32 s{sPQb}, s{sPQb}, s{t}\ns_add_u32 s{sPQb}, s{sPQb}, {WS_PQ}")
        a(f"s_lshl_b32 s{sMb}, s{sC}, 3\ns_add_u32 s{sMb}, s{sMb}, s{sWAVE}\ns_lshl_b32 s{sMb}, s{sMb}, 14\ns_add_u32 s{sMb}, s{sMb}, {WS_MW}")
        a(f"s_lshl_b32 s{sCm}, s{sC}, 7\ns_add_u32 s{sCm}, s{sCm}, {CNT_M}")
        wait("P")
        for k in range(4): a(f"v_pk_add_f32 v[{2*k}:{2*k+1}], v[{2*k}:{2*k+1}], v[{8+2*k}:{9+2*k}]")
        a("ds_write_b128 v16, v[0:3]\nds_write_b128 v16, v[4:7] offset:1024\ns_waitcnt lgkmcnt(0)\ns_barrier")
        self.stamp(6)
        self.mstage()
        def pq(frs):
            for f in frs:
                so, off = (sPQb, 1024*f) if f < 4 else ((t, 1024*(f - 4)) if f < 8 else (t + 1, 1024*(f - 8)))
                ld(PQR + 4*f, 4, vL16, so, off, "pqA" if f in (0, 1, 2, 3, 8) else "pqB")
        for i in range(6):
            wait(f"act{i}")
            for jn in range(5):
                for st in range(4):
                    d = 20*st + 4*jn
                    a(f"v_mfma_f32_16x16x32_bf16 v[{d}:{d+3}], v[{BS+20*i+4*jn}:{BS+20*i+4*jn+3}], v[{AB+16*(i%3)+4*st}:{AB+16*(i%3)+4*st+3}], {'0' if i == 0 else f'v[{d}:{d+3}]'}")
            if i < 3: act(i + 3)
            if i == 2:
                a(f"s_add_u32 s{t}, s{sPQb}, 4096\ns_add_u32 s{t+1}, s{sPQb}, 8192")
                pq((0, 1, 2, 3, 8))
            if i == 4:
                a(f"v_mov_b32 v{vP}, 0")
                ld(vP + 1, 1, vP, sCm, 0, "poll")
        self.stamp(7)
        OM = AB
        for st in range(4): a(f"v_sub_f32 v{OM+st}, 1.0, v{vG+st}")
        for st in range(4):
            sel = "op_sel_hi:[1,0]" if st % 2 == 0 else "op_sel:[0,1]"
            for k in range(10):
                d = 20*st + 2*k
                a(f"v_pk_mul_f32 v[{d}:{d+1}], v[{d}:{d+1}], v[{OM + (st & 2)}:{OM + (st & 2) + 1}] {sel}")
        ok = a.newlabel("L_mok")
        a(f"s_waitcnt vmcnt(0)\nv_readfirstlane_b32 s{t+3}, v{vP+1}\ns_nop 0\ns_cmp_ge_u32 s{t+3}, 32\ns_cbranch_scc1 {ok}")
        self.poll([sCm], [32], AB + 8)
        a.label(ok)
        seq.clear()
        a(f"v_lshrrev_b32 v{vP}, 4, v255\nv_and_b32 v{vP+1}, 3, v255\nv_lshl_add_u32 v{vP}, v{vP}, 2, v{vP+1}\nv_lshlrev_b32 v{vP}, 4, v{vP}")
        a(f"s_add_u32 s{t+2}, s{sMb}, 13312")
        ld(ZR, 4, vP, t + 2, 0, "Z")
        for f in range(13):
            if f % 4 == 0 and f: a(f"s_add_u32 s{sMb}, s{sMb}, 4096")
            ld(MR + 4*f, 4, vL16, sMb, 1024*(f % 4), "M")
        a(f"s_add_u32 s{t}, s{sPQb}, 4096\ns_add_u32 s{t+1}, s{sPQb}, 8192")
        pq((4, 5, 6, 7, 9))
        vRW = vP
        a(f"v_and_b32 v{AB}, 15, v255\nv_mul_u32_u24 v{AB}, 160, v{AB}\nv_bfe_u32 v{AB+1}, v255, 5, 1\nv_lshl_add_u32 v{AB}, v{AB+1}, 4, v{AB}")
        a(f"v_bfe_u32 v{AB+1}, v255, 4, 1\nv_mul_u32_u24 v{AB+1}, 10240, v{AB+1}\ns_mul_i32 s{t}, s{sWAVE}, 20480\nv_add3_u32 v{vRW}, v{AB}, v{AB+1}, s{t}")
        for k in range(10): a(f"v_mov_b32 v{ZE+k}, 0")
        wait("Z")
        for tt in range(5):
            m1 = m2 = 0
            for l in range(64):
                hh, q = l & 3, l >> 4
                if (5*hh - q + 3) >> 2 == tt: m1 |= 1 << l
                if q == hh and hh + 1 == tt: m2 |= 1 << l
            for m, src in ((m1, ZR), (m2, ZR + 2)):
                if m:
                    a(f"s_mov_b32 exec_lo, {m & 0xffffffff:#x}\ns_mov_b32 exec_hi, {m >> 32:#x}\nv_mov_b32 v{ZE+2*tt}, v{src}\nv_mov_b32 v{ZE+2*tt+1}, v{src+1}")
        a("s_mov_b64 exec, -1")
        a(f"s_mov_b32 s{cE}, 0x358637bd\ns_mov_b32 s{cE+1}, 0x358637bd")
        mq = [t + 4, t + 6, t + 8]
        a(f"s_mov_b32 s{mq[0]}, 0xffff\ns_mov_b32 s{mq[0]+1}, 0\ns_mov_b32 s{mq[1]}, -1\ns_mov_b32 s{mq[1]+1}, 0\ns_mov_b32 s{mq[2]}, -1\ns_mov_b32 s{mq[2]+1}, 0xffff")
        DN, SC, TM = AB, AB + 16, AB + 24
        def fr(st, tt):
            return PQR + 4*(2*st + (tt >> 1)) + 2*(tt & 1) if tt < 4 else PQR + 4*(8 + (st >> 1)) + 2*(st & 1)
        def den(sts):
            for st in sts:
                a(f"v_mfma_f32_16x16x32_bf16 v[{DN+4*st}:{DN+4*st+3}], v[{ZE}:{ZE+3}], v[{fr(st,0)}:{fr(st,0)+3}], 0")
            for st in sts:
                a(f"v_mfma_f32_16x16x32_bf16 v[{DN+4*st}:{DN+4*st+3}], v[{ZE+4}:{ZE+7}], v[{fr(st,2)}:{fr(st,2)+3}], v[{DN+4*st}:{DN+4*st+3}]")
            a("s_nop 4")
            for st in sts:
                a(f"v_mfma_f32_16x16x16_bf16 v[{DN+4*st}:{DN+4*st+3}], v[{ZE+8}:{ZE+9}], v[{fr(st,4)}:{fr(st,4)+1}], v[{DN+4*st}:{DN+4*st+3}]")
            a("s_nop 7")
        def scale(st):
            d = DN + 4*st
            sel = "op_sel_hi:[1,0]" if st % 2 == 0 else "op_sel:[0,1]"
            gp = f"v[{vG + (st & 2)}:{vG + (st & 2) + 1}]"
            a(f"v_pk_add_f32 v[{d}:{d+1}], v[{d}:{d+1}], s[{cE}:{cE+1}]\nv_pk_add_f32 v[{d+2}:{d+3}], v[{d+2}:{d+3}], s[{cE}:{cE+1}]")
            for k in range(4): a(f"v_rcp_f32 v{d+k}, v{d+k}")
            a(f"v_pk_mul_f32 v[{d}:{d+1}], v[{d}:{d+1}], {gp} {sel}\nv_pk_mul_f32 v[{d+2}:{d+3}], v[{d+2}:{d+3}], {gp} {sel}")
            a(f"v_mov_b32 v{SC}, v{d}\nv_mov_b32 v{SC+4}, v{d+3}")
            for k in range(3): a(f"v_cndmask_b32 v{SC+1+k}, v{d+k+1}, v{d+k}, s[{mq[k]}:{mq[k]+1}]")
            for tt in range(5):
                r = fr(st, tt); T = TM + 4*(tt & 1)
                sel2 = "op_sel_hi:[1,0]" if tt % 2 == 0 else "op_sel:[0,1]"
                sp = f"v[{SC + (tt & 6)}:{SC + (tt & 6) + 1}]"
                a(f"v_lshlrev_b32 v{T}, 16, v{r}\nv_and_b32 v{T+1}, 0xffff0000, v{r}\nv_lshlrev_b32 v{T+2}, 16, v{r+1}\nv_and_b32 v{T+3}, 0xffff0000, v{r+1}")
                a(f"v_pk_mul_f32 v[{T}:{T+1}], v[{T}:{T+1}], {sp} {sel2}\nv_pk_mul_f32 v[{T+2}:{T+3}], v[{T+2}:{T+3}], {sp} {sel2}")
                a(f"v_cvt_pk_bf16_f32 v{r}, v{T}, v{T+1}\nv_cvt_pk_bf16_f32 v{r+1}, v{T+2}, v{T+3}")
        def attn(st):
            for p in range(3):
                for jn in range(5):
                    d = 20*st + 4*jn
                    if p < 2:
                        m = MR + 4*(2*jn + p)
                        a(f"v_mfma_f32_16x16x32_bf16 v[{d}:{d+3}], v[{m}:{m+3}], v[{fr(st,2*p)}:{fr(st,2*p)+3}], v[{d}:{d+3}]")
                    else:
                        m = MR + 40 + 4*(jn >> 1) + 2*(jn & 1)
                        a(f"v_mfma_f32_16x16x16_bf16 v[{d}:{d+3}], v[{m}:{m+1}], v[{fr(st,4)}:{fr(st,4)+1}], v[{d}:{d+3}]")
                if p == 1: a("s_nop 1")
        def wr(st):
            for jn in range(5):
                d = 20*st + 4*jn
                a(f"ds_write_b128 v{vRW}, v[{d}:{d+3}] offset:{2560*st + 32*jn}")
        a("s_nop 1")
        den((0, 1)); scale(0); scale(1)
        wait("M")
        attn(0); attn(1)
        wait("pqB")
        den((2, 3)); wr(0); scale(2); wr(1); scale(3)
        a("s_nop 1")
        attn(2); attn(3); wr(2)
        a(f"s_mul_i32 s{t}, s{sWAVE}, 80\nv_add_u32 v{AB}, s{t}, v255\nv_add_u32 v{AB+1}, 64, v{AB}")
        for k in range(2):
            a(f"v_mul_u32_u24 v{AB+2}, 6554, v{AB+k}\nv_lshrrev_b32 v{AB+2}, 16, v{AB+2}\nv_mad_i32_i24 v{AB+3}, v{AB+2}, -10, v{AB+k}")
            a(f"v_mul_u32_u24 v{AB+2}, 1280, v{AB+2}\nv_lshl_add_u32 v{AB+4+k}, v{AB+3}, 4, v{AB+2}\nv_lshlrev_b32 v{AB+k}, 4, v{AB+k}")
        wr(3)
        self.srd(SRD_M, pOUT, 2048*640*2)
        a(f"s_mul_i32 s{t}, s{sR64}, 81920\ns_mul_i32 s{t+1}, s{sC}, 160\ns_add_u32 s{t}, s{t}, s{t+1}")
        a(f"v_add_u32 v{AB+6}, 61440, v{AB}\nv_add_u32 v{AB+7}, 61440, v{AB+1}\nv_add_u32 v{AB+8}, 122880, v{AB}\nv_add_u32 v{AB+9}, 122880, v{AB+1}")
        a("s_waitcnt lgkmcnt(0)\ns_barrier")
        self.stamp(8)
        for k in range(2):
            if k == 1: a("s_mov_b64 exec, 0xffff")
            R = 64*k
            for w in range(8):
                for par in range(2):
                    base = [AB + k, AB + 6 + k, AB + 8 + k][w // 3]
                    a(f"ds_read_b128 v[{R+8*w+4*par}:{R+8*w+4*par+3}], v{base} offset:{20480*(w % 3) + 10240*par}")
        a("s_mov_b64 exec, -1")
        for k in range(2):
            R = 64*k
            a(f"s_waitcnt lgkmcnt({15 if k == 0 else 0})")
            if k == 0: a("s_nop 0")
            for step, pairs in enumerate((((0, 4), (1, 5), (2, 6), (3, 7)), ((0, 2), (1, 3)), ((0, 1),))):
                for x, y in pairs:
                    for j in range(4):
                        a(f"v_pk_add_f32 v[{R+8*x+2*j}:{R+8*x+2*j+1}], v[{R+8*x+2*j}:{R+8*x+2*j+1}], v[{R+8*y+2*j}:{R+8*y+2*j+1}]")
            for j in range(4): a(f"v_cvt_pk_bf16_f32 v{R+j}, v{R+2*j}, v{R+2*j+1}")
            if k == 1: a("s_mov_b64 exec, 0xffff")
            a(f"buffer_store_dwordx4 v[{R}:{R+3}], v{AB+4+k}, s[{SRD_M}:{SRD_M+3}], s{t} offen")
        a("s_mov_b64 exec, -1")
        self.stamp(9)


def kernel_header(a, name):
    a(f".globl {name}\n.p2align 8\n.type {name},@function")
    a.label(name)

def descriptor(name):
    return f""".p2align 6
.amdhsa_kernel {name}
  .amdhsa_next_free_vgpr 256
  .amdhsa_next_free_sgpr 102
  .amdhsa_accum_offset 256
  .amdhsa_group_segment_fixed_size 0
  .amdhsa_kernarg_size 88
  .amdhsa_user_sgpr_count 2
  .amdhsa_user_sgpr_kernarg_segment_ptr 1
  .amdhsa_system_sgpr_workgroup_id_x 1
.end_amdhsa_kernel
"""

def build_k1_only(stamps):
    g = Gen(fused=False, stamps=stamps)
    a = g.a
    K = NAME + "_kernel"
    a(f"; @launch grid=(256,1,1) block=(512,1,1) lds={LDS_TOTAL}")
    a('.amdgcn_target "amdgcn-amd-amdhsa--gfx950"\n.text')
    kernel_header(a, K)
    g.common_prologue("L_end")
    g.phase1("L_c", "L_l")
    a.label("L_l")
    a("s_barrier")
    a(f"s_cmp_lg_u32 s{sTYPE}, 0\ns_cbranch_scc1 L_c\ns_barrier")
    a.label("L_c")
    g.dump_stamps(0)
    a.label("L_end")
    a("s_endpgm")
    errs = lint(a.lines)
    for e in errs: print("HAZARD:", e, file=sys.stderr)
    return a.text() + '.section .rodata,"a"\n' + descriptor(K)

def build_full(fused, stamps):
    g = Gen(fused=fused, stamps=stamps)
    a = g.a
    K = NAME + "_kernel"
    hdr = open(os.path.join(os.path.dirname(os.path.abspath(__file__)), "header.txt")).read()
    for l in hdr.strip().split("\n"): a.lines.append(l)
    t = T0
    if fused:
        a(f"; @launch grid=(256,1,1) block=(512,1,1) lds={LDS_TOTAL}")
        a('.amdgcn_target "amdgcn-amd-amdhsa--gfx950"\n.text')
        kernel_header(a, K)
        g.common_prologue("L_end")
        g.phase1("L_c", "L_l")
        a.label("L_l")
        a("s_setprio 0")
        g.setup2()
        g.wo_frags()
        g.preload_b()
        a("s_barrier")
        a(f"s_cmp_lg_u32 s{sTYPE}, 0\ns_cbranch_scc1 L_l2\ns_barrier")
        a.label("L_l2")
        a("s_barrier")
        a(f"s_cmp_lg_u32 s{sWAVE}, 4\ns_cbranch_scc1 L_e2")
        a(f"s_lshr_b32 s{t}, s{sR64}, 1\ns_lshl_b32 s{t}, s{t}, 7\ns_lshl_b32 s{t+1}, s{sH}, 7\ns_add_u32 s{t+1}, s{t+1}, {CNT_KV}")
        g.poll([t, t + 1], [16, 16], 0)
        a("s_branch L_e2")
        a.label("L_c")
        a(f"s_lshl_b32 s{sRBk}, s{sRB}, 7")
        g.setup2()
        a("s_waitcnt vmcnt(0)\ns_barrier")
        g.stamp(4 if False else 5)
        a(f"s_cmp_lg_u32 s{sWAVE}, 0\ns_cbranch_scc1 L_c2")
        a(f"v_mov_b32 v1, 1\nv_mov_b32 v2, 0\ns_mov_b64 exec, 1\nbuffer_atomic_add v1, v2, s[{SRD_WS}:{SRD_WS+3}], s{sRBk} offen sc1\ns_mov_b64 exec, -1")
        a.label("L_c2")
        g.preload_b()
        a.label("L_e2")
        a("s_barrier")
        g.gemm2()
        g.dump_stamps(0)
        a.label("L_end")
        a("s_endpgm")
        desc = descriptor(K)
    else:
        K1, K2 = "gm_phase1_kernel", "gm_phase2_kernel"
        a(f"; @launch kernel={K1} grid=(256,1,1) block=(512,1,1) lds={LDS_TOTAL}")
        a(f"; @launch kernel={K2} grid=(256,1,1) block=(512,1,1) lds={LDS_TOTAL}")
        a('.amdgcn_target "amdgcn-amd-amdhsa--gfx950"\n.text')
        kernel_header(a, K1)
        g.common_prologue("L_end1")
        g.phase1("L_c", "L_l")
        a.label("L_l")
        a("s_barrier")
        a(f"s_cmp_lg_u32 s{sTYPE}, 0\ns_cbranch_scc1 L_c\ns_barrier")
        a.label("L_c")
        g.dump_stamps(0)
        a.label("L_end1")
        a("s_endpgm")
        kernel_header(a, K2)
        a(f"s_cmp_ge_u32 s{sWG}, 256\ns_cbranch_scc1 L_end2")
        a("s_load_dwordx16 s[4:19], s[0:1], 0\ns_load_dwordx4 s[20:23], s[0:1], 64\ns_load_dwordx2 s[24:25], s[0:1], 80")
        if stamps:
            for k in range(10): a(f"s_mov_b32 s{sST+2*k}, 0")
        a(f"v_lshrrev_b32 v1, 6, v0\nv_and_b32 v0, 63, v0\nv_readfirstlane_b32 s{sWAVE}, v1\ns_mov_b32 s{sTYPE}, 0\ns_waitcnt lgkmcnt(0)")
        g.stamp(0)
        g.setup2()
        g.wo_frags()
        g.preload_b()
        g.gemm2()
        g.dump_stamps(1)
        a.label("L_end2")
        a("s_endpgm")
        desc = descriptor(K1) + descriptor(K2)
    errs = lint(a.lines)
    for e in errs: print("HAZARD:", e, file=sys.stderr)
    return a.text() + '.section .rodata,"a"\n' + desc

if __name__ == "__main__":
    mode = sys.argv[1]
    out = sys.argv[2]
    stamps = sys.argv[3] if len(sys.argv) > 3 else False
    if mode == "k1":
        open(out, "w").write(build_k1_only(stamps))
    else:
        open(out, "w").write(build_full(mode == "1k", stamps))
```

```python
import sys, os
sys.path.insert(0, os.path.dirname(os.path.abspath(__file__)))
from asmlib import *

NAME = "gated_mix__linear_attn_block__dense_activation_mish__prompt"
ENV = os.environ.get

CNT_ACT, CNT_PQ, CNT_KV, CNT_M = 0, 256*128, 288*128, 320*128
WS_G = 0x10000
WS_KVP = 0x100000
WS_MW = 0x200000
WS_W2R = 0x300000
WS_PQ = 0x500000
WS_ACT = 0x800000
WS_SIZE = 0x1000000
WS_STAMP = 0x8000000
BIG = 0x20000000
DBGW = int(ENV("DBGW", "0"))
ROTMODE = ENV("ROT", "two")
ROT2 = ENV("ROT2", "none")
NPRE = int(ENV("NPRE", "10"))
SPIN = 0x40000
MSDBG = int(ENV("MSDBG", "0"))
MSPRIO = int(ENV("MSPRIO", "1"))
MSPRIO2 = int(ENV("MSPRIO2", "1"))

XR = 0
STG = 40960
WR = 49152
WSLOT = 14336
NS = 6
GATE = WR + NS * WSLOT
SCR = GATE + 2048
MS = WR
LDS_TOTAL = 163840

sWG = 2
pX, pWQKV, pWO, pW1, pB1, pW2, pGATE, pOUT, pDBG, pWS = 4, 6, 8, 12, 14, 16, 18, 20, 22, 24
sWAVE, sRB, sHALF, sCBL, sGRP, sF1, sROT, sPIDX, sTYPE, sT = 26, 27, 28, 29, 30, 31, 32, 33, 34, 35
SRD_WS, SRD_X, SRD_W, SRD_M, SRD_D = 36, 40, 44, 52, 56
T0 = 60
sST = 76
cL2E, cC, cE = 96, 98, 100
sR64, sC, sH, sC2 = 27, 28, 29, 30
sB0, sA0 = 40, 46
sPQb, sMb, sCm = 0, 1, 3
sFa, sFq = 10, 11
BS, AB = 80, 200
PQR, MR, ZR, ZE = 80, 120, 172, 176
vG, vP, vL16, vL16b = 248, 252, 254, 255
WSR = f"s[{SRD_WS}:{SRD_WS+3}]"


class Gen:
    def __init__(self, stamps=False):
        self.a = Asm()
        self.stamps = stamps

    def stamp(self, k):
        if self.stamps and not (self.stamps == "dbg" and k == 9):
            if k < 2 and self.stamps != "dbg":
                self.a(f"s_memtime s[58:59]\ns_waitcnt lgkmcnt(0)\ns_mov_b32 s{sST+2*k}, s58")
            else:
                self.a(f"s_memtime s[{sST+2*k}:{sST+2*k+1}]")

    def srd(self, d, ptr, size, add=None):
        a = self.a
        if add is None:
            a(f"s_mov_b32 s{d}, s{ptr}\ns_mov_b32 s{d+1}, s{ptr+1}")
        else:
            a(f"s_add_u32 s{d}, s{ptr}, {add}\ns_addc_u32 s{d+1}, s{ptr+1}, 0")
        a(f"s_mov_b32 s{d+2}, {size}\ns_mov_b32 s{d+3}, 0x20000")

    def signal(self, soff, v):
        self.a(f"v_mov_b32 v{v}, 1\nv_mov_b32 v{v+1}, 0\ns_mov_b64 exec, 1\nbuffer_atomic_add v{v}, v{v+1}, {WSR}, s{soff} offen sc1\ns_mov_b64 exec, -1")

    def poll(self, soff, target, v, srd=SRD_WS):
        a = self.a
        t = T0 + 14
        loop, done = a.newlabel("L_poll"), a.newlabel("L_polld")
        a(f"v_mov_b32 v{v}, 0\ns_mov_b32 s{t}, 0")
        a.label(loop)
        a(f"buffer_load_dword v{v+1}, v{v}, s[{srd}:{srd+3}], {soff} offen sc1\ns_waitcnt vmcnt(0)")
        a(f"v_readfirstlane_b32 s{t+1}, v{v+1}\ns_add_u32 s{t}, s{t}, 1")
        a(f"s_cmp_ge_u32 s{t+1}, {target}\ns_cbranch_scc1 {done}")
        a(f"s_sleep 1\ns_cmp_lt_u32 s{t}, {SPIN}\ns_cbranch_scc1 {loop}")
        a.label(done)

    def dump_stamps(self):
        if not self.stamps:
            return
        a = self.a
        a("s_waitcnt vmcnt(0) lgkmcnt(0)")
        a(f"s_memrealtime s[{T0}:{T0+1}]\ns_memtime s[{T0+2}:{T0+3}]")
        if self.stamps == "dbg":
            self.srd(SRD_M, pDBG, 256)
            a("s_waitcnt lgkmcnt(0)\nv_mov_b32 v2, 0\ns_mov_b64 exec, 1")
            sk = a.newlabel("L_dbg")
            a(f"s_lshl_b32 s{T0+5}, s{sWG}, 3\ns_add_u32 s{T0+5}, s{T0+5}, s{sWAVE}\ns_cmp_lg_u32 s{T0+5}, {DBGW}\ns_cbranch_scc1 {sk}")
            for k in range(1, 10):
                a(f"s_sub_u32 s{T0+5}, s{sST+2*k}, s{sST}\nv_mov_b32 v{3+k}, s{T0+5}")
            a(f"s_sub_u32 s{T0+5}, s{T0+2}, s{sST}\nv_mov_b32 v13, s{T0+5}\ns_sub_u32 s{T0+5}, s{T0}, s94\nv_mov_b32 v14, s{T0+5}\nv_mov_b32 v15, s94")
            for k in range(3):
                a(f"buffer_store_dwordx4 v[{4+4*k}:{7+4*k}], v2, s[{SRD_M}:{SRD_M+3}], 0 offen offset:{16+16*k}")
            a.label(sk)
            a("s_waitcnt vmcnt(0)")
            return
        a(f"s_getreg_b32 s{T0+4}, hwreg(HW_REG_XCC_ID)")
        self.srd(SRD_M, pWS, 0x10000000)
        a("s_waitcnt lgkmcnt(0)")
        for k in range(10):
            a(f"v_mov_b32 v{k}, s{sST+2*k}")
        a(f"v_mov_b32 v10, s{T0}\nv_mov_b32 v11, s{T0+2}\nv_mov_b32 v12, s{T0+4}\nv_mov_b32 v13, s{sTYPE}\nv_mov_b32 v14, s77\nv_mov_b32 v15, s79")
        a(f"s_lshl_b32 s{T0+5}, s{sWG}, 3\ns_add_u32 s{T0+5}, s{T0+5}, s{sWAVE}\ns_lshl_b32 s{T0+5}, s{T0+5}, 6\ns_add_u32 s{T0+5}, s{T0+5}, {WS_STAMP}")
        a("v_mov_b32 v16, 0\ns_mov_b64 exec, 1")
        for k in range(4):
            a(f"buffer_store_dwordx4 v[{4*k}:{4*k+3}], v16, s[{SRD_M}:{SRD_M+3}], s{T0+5} offen offset:{16*k}")
        a("s_waitcnt vmcnt(0)")

    def common_prologue(self, endlabel):
        a = self.a
        t = T0
        a(f"s_cmp_ge_u32 s{sWG}, 256\ns_cbranch_scc1 {endlabel}")
        a("s_load_dwordx16 s[4:19], s[0:1], 0\ns_load_dwordx4 s[20:23], s[0:1], 64\ns_load_dwordx2 s[24:25], s[0:1], 80")
        if self.stamps:
            for k in range(10): a(f"s_mov_b32 s{sST+2*k}, 0")
            if self.stamps == "dbg": a("s_memrealtime s[94:95]")
            else: a("s_memrealtime s[56:57]\ns_memtime s[58:59]\ns_waitcnt lgkmcnt(0)\ns_mov_b32 s77, s56\ns_mov_b32 s79, s58")
        a("v_lshrrev_b32 v1, 6, v0\nv_and_b32 v0, 63, v0")
        a(f"v_readfirstlane_b32 s{sWAVE}, v1")
        a(f"s_bfe_u32 s{t+2}, s{sWG}, 0x20001\ns_bfe_u32 s{t+3}, s{sWG}, 0x20003")
        a(f"s_lshl2_add_u32 s{sRB}, s{t+2}, s{t+3}\ns_and_b32 s{sHALF}, s{sWG}, 1\ns_lshr_b32 s{sCBL}, s{sWG}, 5")
        a(f"s_and_b32 s{t}, s{sCBL}, 3\ns_lshl2_add_u32 s{sGRP}, s{sHALF}, s{t}\ns_lshr_b32 s{sTYPE}, s{sCBL}, 2")
        if ROTMODE == "full":
            a(f"s_mul_i32 s{t+4}, s{t+3}, 5\ns_add_u32 s{t+4}, s{t+4}, 1\ns_lshr_b32 s{t+4}, s{t+4}, 1")
            a(f"s_add_u32 s{t+4}, s{t+4}, s{sCBL}\ns_add_u32 s{t+4}, s{t+4}, s{t+2}")
            a(f"s_mul_i32 s{t+5}, s{sHALF}, 5\ns_add_u32 s{sROT}, s{t+4}, s{t+5}")
            for _ in range(2):
                a(f"s_sub_u32 s{t+4}, s{sROT}, 10\ns_cmp_ge_u32 s{sROT}, 10\ns_cselect_b32 s{sROT}, s{t+4}, s{sROT}")
        elif ROTMODE == "none":
            a(f"s_mov_b32 s{sROT}, 0")
        elif ROTMODE == "xcd":
            a(f"s_mul_i32 s{t+4}, s{t+2}, 5\ns_add_u32 s{t+4}, s{t+4}, 1\ns_lshr_b32 s{t+4}, s{t+4}, 1\ns_add_u32 s{sROT}, s{t+4}, s{sHALF}")
        elif ROTMODE == "two":
            a(f"s_add_u32 s{t+4}, s{t+3}, s{sCBL}\ns_and_b32 s{t+4}, s{t+4}, 1\ns_mul_i32 s{t+4}, s{t+4}, 5")
            a(f"s_add_u32 s{t+4}, s{t+4}, s{t+2}\ns_add_u32 s{sROT}, s{t+4}, s{sHALF}")

    def loader1(self):
        a = self.a
        t = T0
        sLW = sT
        vXE, vXO, vW, vGt = 2, 3, 4, 8
        sStr, sCol, sA32, sA64, sOff, sXo, sWB, sWB2, sXB, sXP, sSel = 48, 49, 50, 51, t+4, t+5, t+6, t+7, t+8, t+9, t+10
        a(f"s_setprio 2\ns_sub_u32 s{sLW}, s{sWAVE}, 4")
        a("v_lshrrev_b32 v10, 3, v0\nv_and_b32 v11, 7, v0\nv_lshrrev_b32 v12, 4, v0\nv_mul_u32_u24 v13, 1280, v10\nv_xor_b32 v14, v11, v12")
        a(f"s_and_b32 s{t}, s{sLW}, 1\ns_lshl_b32 s{t}, s{t}, 6")
        a(f"v_lshl_add_u32 v13, v14, 4, v13\nv_xor_b32 v{vXE}, s{t}, v13\nv_xor_b32 v{vXO}, 64, v{vXE}")
        a(f"s_lshl_b32 s{sA32}, s{sROT}, 1\ns_mov_b32 s{sA64}, s{sROT}\ns_mul_i32 s{sXB}, s{sLW}, 3072\ns_mul_i32 s{sXP}, s{sLW}, 30720")
        for k in range(6, 10): a(f"v_mov_b32 v{k}, {BIG}")
        lKV, lQH, lLN, lJ = a.newlabel("L_wkv"), a.newlabel("L_wqh"), a.newlabel("L_wln"), a.newlabel("L_wj")
        a(f"s_cmp_eq_u32 s{sTYPE}, 0\ns_cbranch_scc1 {lKV}")
        a(f"s_cmp_eq_u32 s{sLW}, 3\ns_cbranch_scc1 {lQH}")
        a(f"s_mov_b32 s{sSel}, 1\ns_mov_b32 s{sStr}, 3072\ns_mul_i32 s{sCol}, s{sGRP}, 3\ns_add_u32 s{sCol}, s{sCol}, s{sLW}\ns_lshl_b32 s{sCol}, s{sCol}, 7\ns_lshl_b32 s{sWB}, s{sLW}, 12")
        a.label(lLN)
        a(f"v_and_b32 v13, 4, v10\nv_add_u32 v13, v13, v10\nv_mul_u32_u24 v13, s{sStr}, v13\nv_lshlrev_b32 v12, 1, v12\nv_xor_b32 v12, v11, v12\nv_lshl_add_u32 v{vW}, v12, 4, v13")
        a(f"s_lshl_b32 s{t}, s{sStr}, 4\ns_lshl_b32 s{t+1}, s{sStr}, 2\nv_add_u32 v{vW+1}, s{t}, v{vW}\nv_add_u32 v{vW+2}, s{t+1}, v{vW}\nv_add_u32 v{vW+3}, s{t}, v{vW+2}")
        a(f"s_branch {lJ}")
        a.label(lQH)
        a(f"s_mov_b32 s{sSel}, 0\ns_mov_b32 s{sStr}, 3840\ns_lshl_b32 s{sCol}, s{sHALF}, 1\ns_add_u32 s{sCol}, s{sCol}, s{sCBL}\ns_add_u32 s{sCol}, s{sCol}, 12\ns_lshl_b32 s{sCol}, s{sCol}, 6")
        a(f"s_cmp_lt_u32 s{sCBL}, 6\ns_cselect_b32 s{sCol}, s{sCol}, {BIG}\ns_mov_b32 s{sWB}, 12288\ns_mov_b32 s{sWB2}, 13312")
        a(f"v_lshrrev_b32 v10, 2, v0\nv_and_b32 v13, 12, v10\nv_add_u32 v13, v13, v10\nv_mul_u32_u24 v13, 3840, v13\nv_and_b32 v11, 3, v0\nv_and_b32 v12, 1, v12\nv_lshlrev_b32 v12, 1, v12\nv_xor_b32 v12, v11, v12")
        a(f"v_lshl_add_u32 v{vW}, v12, 4, v13\nv_add_u32 v{vW+1}, 15360, v{vW}")
        a(f"s_lshl_b32 s{t}, s{sROT}, 3\nv_mov_b32 v14, {BIG}")
        for j in range(2):
            a(f"v_add_u32 v10, {64*j}, v0\nv_add_u32 v11, s{t}, v10\nv_cmp_gt_u32 vcc, 80, v10\nv_subrev_u32 v12, 80, v11\nv_min_u32 v11, v11, v12\nv_lshlrev_b32 v11, 4, v11\nv_cndmask_b32 v{vGt+j}, v14, v11, vcc")
        a(f"s_branch {lJ}")
        a.label(lKV)
        a(f"s_mov_b32 s{sSel}, 0\ns_mov_b32 s{sStr}, 3840\ns_mul_i32 s{sWB}, s{sLW}, 5120\ns_lshl_b32 s{sCol}, s{sGRP}, 7")
        a(f"s_cmp_eq_u32 s{sLW}, 2\ns_cbranch_scc1 {lLN}")
        a(f"s_mul_i32 s{sCol}, s{sGRP}, 160\ns_cmp_eq_u32 s{sLW}, 1\ns_cselect_b32 s{t}, 2560, 1280\ns_add_u32 s{sCol}, s{sCol}, s{t}")
        a(f"s_cmp_eq_u32 s{sLW}, 3\ns_cselect_b32 s{t}, 256, 0\ns_cselect_b32 s{sWB}, 4096, s{sWB}\ns_mov_b32 s{sWB2}, 9216")
        a(f"v_add_u32 v14, s{t}, v0")
        for j in range(4):
            a(f"v_add_u32 v10, {64*j}, v14\nv_mul_u32_u24 v11, 6554, v10\nv_lshrrev_b32 v11, 16, v11\nv_mad_i32_i24 v10, v11, -10, v10")
            a("v_and_b32 v12, 12, v11\nv_and_b32 v13, 3, v11\nv_lshl_or_b32 v12, v12, 1, v13\nv_bfe_u32 v13, v11, 4, 1\nv_lshl_or_b32 v12, v13, 2, v12")
            a(f"v_mul_u32_u24 v12, 3840, v12\nv_lshl_add_u32 v{vW+j}, v10, 4, v12")
            if j == 0:
                a(f"v_add_u32 v{vW+1}, 1280, v{vW}\ns_cmp_eq_u32 s{sLW}, 3\ns_cbranch_scc1 {lJ}")
        a.label(lJ)
        a(f"s_lshl_b32 s{sStr}, s{sStr}, 5\ns_mul_i32 s{t}, s{sRB}, 163840")
        a("s_waitcnt lgkmcnt(0)")
        self.stamp(0)
        self.srd(SRD_X, pX, 163840, add=f"s{t}")
        a(f"s_cmp_eq_u32 s{sSel}, 0\ns_cselect_b32 s{SRD_W}, s{pWQKV}, s{pW1}\ns_cselect_b32 s{SRD_W+1}, s{pWQKV+1}, s{pW1+1}\ns_cselect_b32 s{SRD_W+2}, {640*1920*2}, {640*1536*2}\ns_mov_b32 s{SRD_W+3}, 0x20000")
        lab3, labj = a.newlabel("L_ld3"), a.newlabel("L_ldj")
        a(f"s_cmp_eq_u32 s{sLW}, 3\ns_cbranch_scc1 {lab3}")
        for variant in (0, 3):
            if variant == 3:
                a.label(lab3)
            nW = 4 if variant == 0 else 2
            nX = 3 if variant == 0 else 7
            seq = []
            def issue_W(i):
                a(f"s_mul_i32 s{sOff}, s{sA32}, s{sStr}")
                for j in range(nW):
                    base, off = (sWB, 1024*j) if variant == 0 else ((sWB, sWB2)[j], 0)
                    a(f"s_add_u32 m0, s{base}, {WR + (i % NS)*WSLOT + off}")
                    a(f"s_add_u32 s{sOff}, s{sOff}, s{sCol}" if j == 0 else "s_nop 0")
                    a(f"buffer_load_dwordx4 v{vW+j}, s[{SRD_W}:{SRD_W+3}], s{sOff} offen lds")
                    seq.append(("W", i))
                a(f"s_add_u32 s{sA32}, s{sA32}, 1\ns_cmp_eq_u32 s{sA32}, 20\ns_cselect_b32 s{sA32}, 0, s{sA32}")
            def issue_X(jx):
                a(f"s_lshl_b32 s{sXo}, s{sA64}, 7")
                for j in range(nX):
                    a(f"s_add_u32 m0, s{sXB}, {XR + (jx % 3)*16384 + 1024*j}")
                    a(f"s_add_u32 s{sXo}, s{sXo}, " + (f"s{sXP}" if j == 0 else "10240"))
                    a(f"buffer_load_dwordx4 v{vXE + (j & 1)}, s[{SRD_X}:{SRD_X+3}], s{sXo} offen lds")
                    seq.append(("X", jx))
                a(f"s_add_u32 s{sA64}, s{sA64}, 1\ns_cmp_eq_u32 s{sA64}, 10\ns_cselect_b32 s{sA64}, 0, s{sA64}")
            def wait_for(items):
                last = max(n for n, it in enumerate(seq) if it in items)
                a(f"s_waitcnt vmcnt({len(seq) - 1 - last})")
            issue_X(0); issue_W(0)
            if variant == 3:
                self.srd(SRD_M, pGATE, 1280)
                for j in range(2):
                    a(f"s_mov_b32 m0, {GATE + 1024*j}\ns_nop 0\nbuffer_load_dwordx4 v{vGt+j}, s[{SRD_M}:{SRD_M+3}], 0 offen lds")
                    seq.append(("W", 0))
            issue_W(1)
            wait_for([("W", 0), ("X", 0)]); self.stamp(1); a("s_barrier")
            issue_X(1)
            wait_for([("W", 1)]); a("s_barrier")
            issue_W(2); issue_W(3); issue_X(2); issue_W(4)
            for j in range(1, 10):
                if j == 9 and variant == 0:
                    sk = a.newlabel("L_s1skip")
                    a(f"s_cmp_lg_u32 s{sWAVE}, 4\ns_cbranch_scc1 {sk}")
                    self.srd(SRD_D, pDBG, 256)
                    self.poll("0", 128, 10, SRD_D)
                    a.label(sk)
                wait_for([("W", 2*j), ("W", 2*j + 1), ("X", j)]); a("s_barrier")
                if j + 1 < 10: issue_W(2*j + 3)
                if j + 2 < 10: issue_X(j + 2); issue_W(2*j + 4)
            if variant == 0:
                a(f"s_branch {labj}")
        a.label(labj)
        self.stamp(2)

    def mish_quad(self, h, dst, tmp):
        P = lambda r: f"v[{r}:{r+1}]"
        return [
            f"v_pk_fma_f32 {P(tmp)}, {P(h)}, s[{cL2E}:{cL2E+1}], -0.5 op_sel_hi:[1,1,0]",
            f"v_pk_fma_f32 {P(tmp+2)}, {P(h+2)}, s[{cL2E}:{cL2E+1}], -0.5 op_sel_hi:[1,1,0]",
            f"v_exp_f32 v{tmp}, v{tmp}", f"v_exp_f32 v{tmp+1}, v{tmp+1}", f"v_exp_f32 v{tmp+2}, v{tmp+2}", f"v_exp_f32 v{tmp+3}, v{tmp+3}",
            f"v_pk_add_f32 {P(tmp)}, {P(tmp)}, s[{cC}:{cC+1}]", f"v_pk_add_f32 {P(tmp+2)}, {P(tmp+2)}, s[{cC}:{cC+1}]",
            f"v_pk_fma_f32 {P(tmp)}, {P(tmp)}, {P(tmp)}, 0.5 op_sel_hi:[1,1,0]",
            f"v_pk_fma_f32 {P(tmp+2)}, {P(tmp+2)}, {P(tmp+2)}, 0.5 op_sel_hi:[1,1,0]",
            f"v_rcp_f32 v{tmp}, v{tmp}", f"v_rcp_f32 v{tmp+1}, v{tmp+1}", f"v_rcp_f32 v{tmp+2}, v{tmp+2}", f"v_rcp_f32 v{tmp+3}, v{tmp+3}",
            f"v_pk_fma_f32 {P(tmp)}, {P(h)}, {P(tmp)}, {P(h)} neg_lo:[1,0,0] neg_hi:[1,0,0]",
            f"v_pk_fma_f32 {P(tmp+2)}, {P(h+2)}, {P(tmp+2)}, {P(h+2)} neg_lo:[1,0,0] neg_hi:[1,0,0]",
            f"v_cvt_pk_bf16_f32 v{dst}, v{tmp}, v{tmp+1}", f"v_cvt_pk_bf16_f32 v{dst+1}, v{tmp+2}, v{tmp+3}",
        ]

    def phi_quad(self, h, dst, tmp):
        P = lambda r: f"v[{r}:{r+1}]"
        return [
            f"v_pk_mul_f32 {P(tmp)}, {P(h)}, s[{cL2E}:{cL2E+1}]", f"v_pk_mul_f32 {P(tmp+2)}, {P(h+2)}, s[{cL2E}:{cL2E+1}]",
            f"v_exp_f32 v{tmp}, v{tmp} clamp", f"v_exp_f32 v{tmp+1}, v{tmp+1} clamp", f"v_exp_f32 v{tmp+2}, v{tmp+2} clamp", f"v_exp_f32 v{tmp+3}, v{tmp+3} clamp",
            f"v_pk_add_f32 {P(h)}, {P(h)}, s[{cC}:{cC+1}]", f"v_pk_add_f32 {P(h+2)}, {P(h+2)}, s[{cC}:{cC+1}]",
            f"v_pk_add_f32 {P(tmp)}, {P(tmp)}, s[{cE}:{cE+1}]", f"v_pk_add_f32 {P(tmp+2)}, {P(tmp+2)}, s[{cE}:{cE+1}]",
            f"v_max_f32 v{tmp}, v{tmp}, v{h}", f"v_max_f32 v{tmp+1}, v{tmp+1}, v{h+1}", f"v_max_f32 v{tmp+2}, v{tmp+2}, v{h+2}", f"v_max_f32 v{tmp+3}, v{tmp+3}, v{h+3}",
            f"v_cvt_pk_bf16_f32 v{dst}, v{tmp}, v{tmp+1}", f"v_cvt_pk_bf16_f32 v{dst+1}, v{tmp+2}, v{tmp+3}",
        ]

    def consts(self, kind):
        if kind == "mish":
            self.a(f"s_mov_b32 s{cC}, 0x3f3504f3\ns_mov_b32 s{cC+1}, 0x3f3504f3")
        else:
            self.a(f"s_mov_b32 s{cC}, 0x3f800008\ns_mov_b32 s{cC+1}, 0x3f800008\ns_mov_b32 s{cE}, 0x358637bd\ns_mov_b32 s{cE+1}, 0x358637bd")

    def main_loop(self, reads, mfmas, extra, nread_end, bases):
        a = self.a
        a("s_barrier")
        self.stamp(1)
        for l in reads(0): a(l)
        for l in extra.get(0, ([], [], []))[1]: a(l)
        a("s_waitcnt lgkmcnt(0)")
        for i in range(1, 21):
            if i == 1 or i % 2 == 0: a("s_barrier")
            pre, fill, preb = extra.get(i, ([], [], []))
            for l in pre: a(l)
            if i < 20:
                tail = []
                if (i + 1) % 3 == 0 and i + 1 < 20:
                    op = "v_add_u32" if ((i + 1) % NS) == 3 else "v_subrev_u32"
                    tail = [f"{op} v{b}, {3*WSLOT}, v{b}" for b in bases]
                body = interleave(mfmas(i - 1), reads(i) + fill + tail, 0, nread_end)
                for l in body: a(l)
                for l in preb: a(l)
                a("s_waitcnt lgkmcnt(0)")
            else:
                for l in mfmas(19): a(l)
        self.stamp(2)

    def finish1(self, flags):
        a = self.a
        self.setup2()
        self.preload_b(0, NPRE)
        a(f"s_waitcnt vmcnt({NPRE})")
        self.stamp(4 if False else 5)
        for f in flags: self.signal(f, 1)
        self.preload_b(NPRE, 30)

    def compute_P(self):
        a = self.a
        t = T0
        ACC, XB, WB, BI = 0, 112, 144, 200
        vX0, vX1, vH0, vH1, vQ, vGt, vL, vRd, vRr, vBo, vT = 228, 229, 230, 231, 232, 233, 234, 235, 236, 237, 238
        vLane = 253
        sSH, sNH = sT, 48
        sAct, sPq, sF2, sGs = 49, 72, 73, 74
        a(f"v_mov_b32 v{vLane}, v0\ns_lshr_b32 s{sSH}, s{sWAVE}, 1\ns_and_b32 s{sNH}, s{sWAVE}, 1")
        a(f"v_and_b32 v1, 15, v0\nv_lshrrev_b32 v2, 4, v0\nv_lshrrev_b32 v3, 1, v1\nv_xor_b32 v3, v3, v2\nv_lshlrev_b32 v3, 4, v3\nv_lshl_add_u32 v3, v1, 7, v3")
        a(f"s_lshl_b32 s{t}, s{sSH}, 13\nv_add_u32 v{vX0}, s{t}, v3\nv_xor_b32 v{vX1}, 64, v{vX0}")
        a(f"v_lshrrev_b32 v3, 2, v0\nv_and_b32 v4, 3, v0\nv_lshlrev_b32 v4, 3, v4")
        a(f"v_lshl_add_u32 v5, v3, 7, v4\nv_bfe_u32 v6, v0, 3, 2\ns_lshl_b32 s{t}, s{sNH}, 1\nv_xor_b32 v6, s{t}, v6\nv_lshl_add_u32 v6, v6, 5, v5")
        a(f"v_add_u32 v{vH0}, {WR}, v6\nv_xor_b32 v{vH1}, 32, v{vH0}")
        a(f"v_lshl_add_u32 v6, v3, 6, v4\nv_and_b32 v7, 1, v2\nv_xor_b32 v7, s{sNH}, v7\nv_lshl_add_u32 v6, v7, 5, v6\nv_add_u32 v{vQ}, {WR+12288}, v6")
        a(f"v_lshlrev_b32 v6, 4, v2\nv_add_u32 v{vGt}, {GATE}, v6\nv_lshlrev_b32 v{vL}, 4, v0\nv_lshlrev_b32 v{vBo}, 3, v2")
        a(f"v_lshrrev_b32 v6, 3, v0\nv_mul_u32_u24 v6, 1280, v6\nv_and_b32 v7, 7, v0\nv_lshl_add_u32 v{vRd}, v7, 4, v6")
        a(f"s_lshl_b32 s{t}, s{sWAVE}, 12\ns_add_u32 s{t}, s{t}, {SCR}\nv_add_u32 v{vRr}, s{t}, v5")
        a(f"s_lshl3_add_u32 s{sPIDX}, s{sRB}, s{sGRP}")
        a(f"s_mov_b32 s{cL2E}, 0x3fb8aa3b\ns_mov_b32 s{cL2E+1}, 0x3fb8aa3b")
        a(f"s_lshl2_add_u32 s{t}, s{sPIDX}, s{sWAVE}")
        a(f"s_mul_i32 s{t+1}, s{t}, 6554\ns_lshr_b32 s{t+1}, s{t+1}, 16\ns_mul_i32 s{t+2}, s{t+1}, 10\ns_sub_u32 s{t+2}, s{t}, s{t+2}")
        a(f"s_mul_i32 s{t+6}, s{t+1}, 40960\ns_lshl_b32 s{t+3}, s{t+2}, 7\ns_add_u32 s{t+6}, s{t+6}, s{t+3}")
        a(f"s_mul_i32 s{t+7}, s{sGRP}, 384\ns_lshl_b32 s{t+3}, s{sNH}, 6\ns_add_u32 s{t+7}, s{t+7}, s{t+3}")
        a("s_waitcnt lgkmcnt(0)")
        self.stamp(0)
        self.srd(SRD_M, pB1, 3072)
        self.srd(SRD_W, pW2, 1536*640*2)
        for u in range(6):
            a(f"buffer_load_dwordx2 v[{BI+4*u+2}:{BI+4*u+3}], v{vBo}, s[{SRD_M}:{SRD_M+3}], s{t+7} offen offset:{128*(u >> 1) + 32*(u & 1)}")
        a(f"s_lshl_b32 s{t+3}, s{sWAVE}, 12")
        for j in range(4):
            a(f"s_add_u32 m0, s{t+3}, {SCR + 1024*j}\ns_nop 0\nbuffer_load_dwordx4 v{vRd}, s[{SRD_W}:{SRD_W+3}], s{t+6} offen lds")
            if j < 3: a(f"s_add_u32 s{t+6}, s{t+6}, 10240")
        self.srd(SRD_WS, pWS, WS_SIZE)
        dsts = [10, 11, 1, 3]
        for u in range(4):
            a(f"s_lshl2_add_u32 s{t+3}, s{t+2}, {u}\ns_mul_i32 s{t+4}, s{t+3}, 205\ns_lshr_b32 s{t+4}, s{t+4}, 10")
            a(f"s_mul_i32 s{t+5}, s{t+4}, 235\ns_add_u32 s{t+5}, s{t+5}, s{t+3}\ns_mul_i32 s{t+4}, s{t+1}, 5\ns_add_u32 s{t+5}, s{t+5}, s{t+4}")
            a(f"s_lshl_b32 s{t+5}, s{t+5}, 10\ns_add_u32 s{t+5}, s{t+5}, {WS_W2R}")
            a(f"s_cmp_lt_u32 s{t}, 480\ns_cselect_b32 s{dsts[u]}, s{t+5}, {BIG}")
        sRb64 = t + 11
        a(f"s_lshl1_add_u32 s{sRb64}, s{sRB}, s{sSH}")
        a(f"s_mul_i32 s{t}, s{sRb64}, 48\ns_mul_i32 s{t+1}, s{sGRP}, 6\ns_add_u32 s{t}, s{t}, s{t+1}\ns_add_u32 s{t}, s{t}, s{sNH}\ns_lshl_b32 s{t}, s{t}, 12")
        a(f"s_add_u32 s{sAct}, s{t}, {WS_ACT}\ns_add_u32 s{sAct+1}, s{t}, {WS_ACT + 8192}\ns_add_u32 s{sAct+2}, s{t}, {WS_ACT + 16384}")
        a(f"s_mul_i32 s{t}, s{sRb64}, 40\ns_lshl2_add_u32 s{t}, s{sHALF}, s{t}\ns_lshl1_add_u32 s{t}, s{sCBL}, s{t}\ns_add_u32 s{t}, s{t}, s{sNH}\ns_add_u32 s{t}, s{t}, 24\ns_lshl_b32 s{t}, s{t}, 11\ns_add_u32 s{sPq}, s{t}, {WS_PQ}")
        a(f"s_lshl3_add_u32 s{sF1}, s{sRb64}, s{sGRP}\ns_lshl_b32 s{sF1}, s{sF1}, 7")
        a(f"s_lshl1_add_u32 s{t}, s{sGRP}, s{sNH}\ns_cmp_eq_u32 s{t}, 5\ns_cselect_b32 s{sGs}, 1, 0")
        a(f"s_lshl_b32 s{sF2}, s{sRb64}, 7\ns_add_u32 s{sF2}, s{sF2}, {CNT_PQ}\ns_cmp_lt_u32 s{sCBL}, 6\ns_cselect_b32 s{t}, 1, s{sGs}\ns_cmp_eq_u32 s{t}, 1\ns_cselect_b32 s{sF2}, s{sF2}, {BIG}")
        a(f"s_cmp_ge_u32 s{sCBL}, 6\ns_cselect_b64 vcc, -1, 0")
        def reads(i):
            b = i & 1; so = (i % 3) * WSLOT
            xs = XR + ((i >> 1) % 3) * 16384
            r = [f"ds_read_b128 v[{XB+16*b+4*s}:{XB+16*b+4*s+3}], v{vX1 if i & 1 else vX0} offset:{xs + 2048*s}" for s in range(4)]
            for u in range(6):
                d = WB + 28*b + 4*u
                r.append(f"ds_read_b64_tr_b16 v[{d}:{d+1}], v{vH0 + (u & 1)} offset:{so + 4096*(u >> 1)}")
                r.append(f"ds_read_b64_tr_b16 v[{d+2}:{d+3}], v{vH0 + (u & 1)} offset:{so + 4096*(u >> 1) + 2048}")
            d = WB + 28*b + 24
            l1, l2 = a.newlabel("L_g"), a.newlabel("L_gj")
            r.append(f"s_cbranch_vccnz {l1}\nds_read_b64_tr_b16 v[{d}:{d+1}], v{vQ} offset:{so}\nds_read_b64_tr_b16 v[{d+2}:{d+3}], v{vQ} offset:{so + 1024}\ns_branch {l2}\n"
                     f"{l1}:\nds_read_b128 v[{d}:{d+3}], v{vGt} offset:{64*i}\n{l2}:")
            return r
        def mfmas(i):
            b = i & 1
            r = []
            for u in range(7):
                for s in range(4):
                    d = ACC + 16*u + 4*s
                    c = f"v[{d}:{d+3}]" if i > 0 else ("0" if u == 6 else f"v[{BI+4*u}:{BI+4*u+3}]")
                    r.append(f"v_mfma_f32_16x16x32_bf16 v[{d}:{d+3}], v[{WB+28*b+4*u}:{WB+28*b+4*u+3}], v[{XB+16*b+4*s}:{XB+16*b+4*s+3}], {c}")
            return r
        unpack = ["s_waitcnt vmcnt(4)"]
        for u in range(6):
            p = BI + 4*u
            unpack += [f"v_lshlrev_b32 v{p}, 16, v{p+2}", f"v_and_b32 v{p+1}, 0xffff0000, v{p+2}", f"v_lshlrev_b32 v{p+2}, 16, v{p+3}", f"v_and_b32 v{p+3}, 0xffff0000, v{p+3}"]
        RP = BI
        rp_reads = []
        for u in range(4):
            rp_reads += [f"ds_read_b64_tr_b16 v[{RP+4*u}:{RP+4*u+1}], v{vRr} offset:{32*u}", f"ds_read_b64_tr_b16 v[{RP+4*u+2}:{RP+4*u+3}], v{vRr} offset:{32*u + 2048}"]
        rp_st = [f"buffer_store_dwordx4 v[{RP+4*u}:{RP+4*u+3}], v{vL}, {WSR}, s{dsts[u]} offen sc1" for u in range(4)]
        z = [f"s_mul_i32 s{t}, s{sPIDX}, 384", f"s_cmp_eq_u32 s{sWAVE}, 0", f"s_cselect_b32 s{t}, s{t}, {BIG}"] + \
            [f"v_mov_b32 v{RP+16+k}, 0" for k in range(4)] + \
            [f"s_mov_b64 exec, 0xffffff\nbuffer_store_dwordx4 v[{RP+16}:{RP+19}], v{vL}, {WSR}, s{t} offen sc1\ns_mov_b64 exec, -1"]
        sk = a.newlabel("L_s1a")
        arr = [f"s_cmp_lg_u32 s{sWAVE}, 0", f"s_cbranch_scc1 {sk}",
               f"s_mov_b32 s{SRD_D}, s{pDBG}", f"s_mov_b32 s{SRD_D+1}, s{pDBG+1}", f"s_mov_b32 s{SRD_D+2}, 4", f"s_mov_b32 s{SRD_D+3}, 0x20000",
               f"v_mov_b32 v{vT}, 1", f"buffer_atomic_add v{vT}, v{vL}, s[{SRD_D}:{SRD_D+3}], 0 offen sc1", sk + ":"]
        extra = {0: ([], unpack, []), 3: (["s_waitcnt vmcnt(0)"], rp_reads, []), 4: ([], rp_st, []), 5: ([], z, []),
                 9: ([], [], ["s_waitcnt vmcnt(0)"]), 10: (arr, [], [])}
        self.main_loop(reads, mfmas, extra, 20, [vH0, vH1, vQ])
        self.consts("mish")
        TM = XB
        for L in range(3):
            for s in range(4):
                e, o = ACC + 32*L + 4*s, ACC + 32*L + 16 + 4*s
                for l in self.mish_quad(e, e, TM + 8*(s & 1)): a(l)
                for l in self.mish_quad(o, e + 2, TM + 4 + 8*(s & 1)): a(l)
                a(f"buffer_store_dwordx4 v[{e}:{e+3}], v{vL}, {WSR}, s{sAct+L} offen offset:{1024*s} sc1")
        labG, labE = a.newlabel("L_epG"), a.newlabel("L_epE")
        a(f"s_cbranch_vccnz {labG}")
        self.consts("phi")
        for sp in range(2):
            e = ACC + 96 + 8*sp
            for l in self.phi_quad(e, e, TM): a(l)
            for l in self.phi_quad(e + 4, e + 2, TM + 4): a(l)
            a(f"buffer_store_dwordx4 v[{e}:{e+3}], v{vL}, {WSR}, s{sPq} offen offset:{1024*sp} sc1")
        a(f"s_branch {labE}")
        a.label(labG)
        a(f"s_cmp_eq_u32 s{sGs}, 0\ns_cbranch_scc1 {labE}")
        G = ACC + 96
        a(f"v_cmp_le_u32 vcc, 16, v{vLane}\nv_cmp_le_u32 s[{t+2}:{t+3}], 32, v{vLane}\nv_cmp_le_u32 s[{t+4}:{t+5}], 48, v{vLane}\ns_nop 0")
        a(f"v_cndmask_b32 v{G}, v{G}, v{G+4}, vcc\nv_cndmask_b32 v{G}, v{G}, v{G+8}, s[{t+2}:{t+3}]\nv_cndmask_b32 v{G}, v{G}, v{G+12}, s[{t+4}:{t+5}]")
        a(f"v_mul_f32 v{G}, s{cL2E}, v{G}\nv_exp_f32 v{G}, -v{G}\ns_nop 0\nv_add_f32 v{G}, 1.0, v{G}\nv_rcp_f32 v{G}, v{G}")
        a(f"s_lshl_b32 s{t}, s{sRb64}, 8\ns_add_u32 s{t}, s{t}, {WS_G}\nv_lshlrev_b32 v{G+1}, 2, v{vLane}")
        a(f"buffer_store_dword v{G}, v{G+1}, {WSR}, s{t} offen sc1")
        a.label(labE)
        a(f"v_mov_b32 v0, v{vLane}")
        self.stamp(3)
        self.finish1([sF1, sF2])

    def compute_KV(self):
        a = self.a
        t = T0
        ACC, XB, WB = 0, 112, 128
        vX0, vX1, vK, vQ0, vL = 240, 241, 242, 243, 247
        vLane = 253
        sPq, sF2, sRec = 72, 73, 74
        a(f"v_mov_b32 v{vLane}, v0")
        a(f"v_and_b32 v1, 15, v0\nv_lshrrev_b32 v2, 4, v0\nv_lshrrev_b32 v3, 1, v1\nv_xor_b32 v3, v3, v2\nv_lshlrev_b32 v3, 4, v3\nv_lshl_add_u32 v3, v1, 7, v3")
        a(f"s_lshl_b32 s{t}, s{sWAVE}, 12\nv_add_u32 v{vX0}, s{t}, v3\nv_xor_b32 v{vX1}, 64, v{vX0}")
        a(f"v_lshrrev_b32 v3, 2, v0\nv_and_b32 v4, 3, v0\nv_lshlrev_b32 v4, 3, v4")
        a(f"v_mul_u32_u24 v5, 160, v3\nv_add_u32 v5, v5, v4\nv_add_u32 v{vK}, {WR}, v5")
        a(f"v_lshl_add_u32 v5, v3, 7, v4\nv_bfe_u32 v6, v0, 3, 2\nv_lshl_add_u32 v5, v6, 5, v5\nv_add_u32 v{vQ0}, {WR+10240}, v5")
        for u in range(1, 4): a(f"v_xor_b32 v{vQ0+u}, {32*u}, v{vQ0}")
        a(f"v_lshlrev_b32 v{vL}, 4, v0")
        a(f"s_lshr_b32 s{t}, s{sWAVE}, 1\ns_lshl1_add_u32 s{t+1}, s{sRB}, s{t}")
        a(f"s_lshl_b32 s{sF2}, s{t+1}, 7\ns_add_u32 s{sF2}, s{sF2}, {CNT_PQ}")
        a(f"s_mul_i32 s{t+1}, s{t+1}, 40\ns_lshl2_add_u32 s{t+1}, s{sGRP}, s{t+1}\ns_and_b32 s{t}, s{sWAVE}, 1\ns_lshl1_add_u32 s{t+1}, s{t+1}, s{t}\ns_lshl_b32 s{t+1}, s{t+1}, 10\ns_add_u32 s{sPq}, s{t+1}, {WS_PQ}")
        a(f"s_lshl2_add_u32 s{t}, s{sGRP}, s{sWAVE}\ns_lshl_b32 s{sF1}, s{t}, 7\ns_add_u32 s{sF1}, s{sF1}, {CNT_KV}")
        a(f"s_lshl4_add_u32 s{t}, s{t}, s{sRB}\ns_lshl_b32 s{t}, s{t}, 11\ns_add_u32 s{sRec}, s{t}, {WS_KVP}")
        a(f"s_mov_b32 s{cL2E}, 0x3fb8aa3b\ns_mov_b32 s{cL2E+1}, 0x3fb8aa3b")
        self.consts("phi")
        a("s_waitcnt lgkmcnt(0)")
        self.stamp(0)
        self.srd(SRD_WS, pWS, WS_SIZE)
        def reads(i):
            b = i & 1; so = (i % 3) * WSLOT
            xs = XR + ((i >> 1) % 3) * 16384
            r = [f"ds_read_b128 v[{XB+8*b+4*s}:{XB+8*b+4*s+3}], v{vX1 if i & 1 else vX0} offset:{xs + 2048*s}" for s in range(2)]
            for u in range(14):
                d = WB + 56*b + 4*u
                if u < 10: base, off, d2 = vK, 5120*(u // 5) + 32*(u % 5), 2560
                else: base, off, d2 = vQ0 + u - 10, 0, 2048
                r.append(f"ds_read_b64_tr_b16 v[{d}:{d+1}], v{base} offset:{so + off}")
                r.append(f"ds_read_b64_tr_b16 v[{d+2}:{d+3}], v{base} offset:{so + off + d2}")
            return r
        def mfmas(i):
            b = i & 1
            r = []
            order = list(range(14)) if i < 19 else [5, 6, 7, 8, 9, 0, 1, 2, 3, 4, 10, 11, 12, 13]
            for u in order:
                for s in range(2):
                    d = ACC + 8*u + 4*s
                    c = f"v[{d}:{d+3}]" if i > 0 else "0"
                    w, x = f"v[{WB+56*b+4*u}:{WB+56*b+4*u+3}]", f"v[{XB+8*b+4*s}:{XB+8*b+4*s+3}]"
                    r.append(f"v_mfma_f32_16x16x32_bf16 v[{d}:{d+3}], {x if u < 10 else w}, {w if u < 10 else x}, {c}")
            return r
        self.main_loop(reads, mfmas, {}, 24, [vK, vQ0, vQ0+1, vQ0+2, vQ0+3])
        TM = XB
        vEx = vX0
        a(f"s_mul_i32 s{t}, s{sWAVE}, 10240\nv_add_u32 v{vEx}, s{t}, v{vL}")
        for u in range(5, 10):
            e = ACC + 8*u
            a(f"v_cvt_pk_bf16_f32 v{e}, v{e}, v{e+1}\nv_cvt_pk_bf16_f32 v{e+1}, v{e+2}, v{e+3}\nv_cvt_pk_bf16_f32 v{e+2}, v{e+4}, v{e+5}\nv_cvt_pk_bf16_f32 v{e+3}, v{e+6}, v{e+7}")
            a(f"ds_write_b128 v{vEx}, v[{e}:{e+3}] offset:{XR + 1024*u}")
        for u in range(5):
            e = ACC + 8*u
            for l in self.phi_quad(e, e, TM): a(l)
            for l in self.phi_quad(e + 4, e + 2, TM + 4): a(l)
            a(f"ds_write_b128 v{vEx}, v[{e}:{e+3}] offset:{XR + 1024*u}")
        a(f"s_lshl_b32 s{t}, s{sWAVE}, 10\nv_add_u32 v{vEx}, s{t}, v{vL}")
        ONE = WB + 64
        for k in range(4): a(f"v_mov_b32 v{ONE+k}, 0x3f803f80")
        a("s_waitcnt lgkmcnt(0)\ns_barrier")
        self.stamp(4)
        FR = WB
        for g in range(4):
            for j, off in enumerate((0, 1024, 5120, 6144)):
                a(f"ds_read_b128 v[{FR+16*g+4*j}:{FR+16*g+4*j+3}], v{vEx} offset:{XR + 10240*g + off}")
        AD = WB + 72
        eqv, BG, lo, hi, dv, R = AD, AD + 2, AD + 3, AD + 6, AD + 9, AD + 12
        ad = [f"v_lshrrev_b32 v{eqv}, 4, v{vLane}", f"v_and_b32 v{dv}, 15, v{vLane}",
              f"v_cmp_gt_u32 vcc, 16, v{vLane}", f"v_mov_b32 v{BG}, 0x10000", f"v_mov_b32 v{R+1}, 1280", f"v_mov_b32 v{R+2}, 1600",
              f"v_cndmask_b32 v{lo+2}, v{BG}, v{R+1}, vcc", f"v_cndmask_b32 v{hi+2}, v{BG}, v{R+2}, vcc",
              f"v_subrev_u32 v{eqv}, s{sWAVE}, v{eqv}", f"v_add_u32 v{eqv+1}, 4, v{eqv}",
              f"s_lshl_b32 s{t}, s{sWAVE}, 2", f"v_subrev_u32 v{dv}, s{t}, v{dv}", f"v_add_u32 v{dv+1}, 16, v{dv}",
              f"s_lshl_b32 s{t+4}, s{sWAVE}, 11", f"s_add_u32 s{t+4}, s{t+4}, {STG}"]
        for k in range(2):
            ad += [f"v_and_b32 v{R+1}, 1, v{eqv+k}", f"v_lshrrev_b32 v{R+2}, 1, v{eqv+k}", f"v_cmp_gt_u32 vcc, 5, v{eqv+k}",
                   f"v_mul_u32_u24 v{lo+k}, 768, v{R+1}", f"v_mul_u32_u24 v{hi+k}, 192, v{R+1}",
                   f"v_lshl_add_u32 v{lo+k}, v{R+2}, 8, v{lo+k}", f"v_lshl_add_u32 v{hi+k}, v{R+2}, 6, v{hi+k}", f"v_add_u32 v{hi+k}, 1280, v{hi+k}",
                   f"v_cndmask_b32 v{lo+k}, v{BG}, v{lo+k}, vcc", f"v_cndmask_b32 v{hi+k}, v{BG}, v{hi+k}, vcc"]
        for b in range(2):
            ad += [f"v_cmp_gt_u32 s[{t+2}:{t+3}], 20, v{dv+b}", f"v_cmp_gt_u32 vcc, 16, v{dv+b}", f"v_lshlrev_b32 v{dv+b}, 4, v{dv+b}", "s_nop 0",
                   f"v_cndmask_b32 v{dv+b}, v{BG}, v{dv+b}, s[{t+2}:{t+3}]"]
            ad += [f"v_cndmask_b32 v{R+3*b+k}, v{hi+k}, v{lo+k}, vcc" for k in range(3)]
            ad += [f"v_add_u32 v{R+3*b+k}, v{R+3*b+k}, v{dv+b}" for k in range(3)]
            ad += [f"v_min_u32 v{R+3*b+k}, 1920, v{R+3*b+k}" for k in range(3)]
            ad += [f"v_add_u32 v{R+3*b+k}, s{t+4}, v{R+3*b+k}" for k in range(3)]
        ad += [f"v_add_u32 v{vEx}, s{t+4}, v{vL}"]
        for l in ad[:22]: a(l)
        D = ACC
        mm = []
        for g in range(4):
            for b in range(2):
                for k in range(3):
                    d = D + 12*b + 4*k
                    A = f"v[{FR+16*g+8+4*k}:{FR+16*g+8+4*k+3}]" if k < 2 else f"v[{ONE}:{ONE+3}]"
                    mm.append(f"v_mfma_f32_16x16x32_bf16 v[{d}:{d+3}], {A}, v[{FR+16*g+4*b}:{FR+16*g+4*b+3}], {'0' if g == 0 else f'v[{d}:{d+3}]'}")
        a("s_waitcnt lgkmcnt(0)")
        for l in interleave(mm, ad[22:], 0, 23): a(l)
        def qmath(u):
            e = ACC + 8*u
            return self.phi_quad(e, e, TM) + self.phi_quad(e + 4, e + 2, TM + 4)
        q10 = qmath(10)
        for l in q10[:8]: a(l)
        for b in range(2):
            for k in range(3):
                d = D + 12*b + 4*k
                a(f"ds_write_b128 v{R+3*b+k}, v[{d}:{d+3}]")
        for l in q10[8:20]: a(l)
        a(f"s_waitcnt lgkmcnt(0)\nds_read_b128 v[0:3], v{vEx}\nds_read_b128 v[4:7], v{vEx} offset:1024")
        for l in q10[20:]: a(l)
        a(f"s_waitcnt lgkmcnt(0)\nbuffer_store_dwordx4 v[0:3], v{vL}, {WSR}, s{sRec} offen sc1\nbuffer_store_dwordx4 v[4:7], v{vL}, {WSR}, s{sRec} offen offset:1024 sc1")
        a(f"s_add_u32 s{t}, s{sPq}, 4096")
        def qst(u):
            e = ACC + 8*(10 + u)
            a(f"buffer_store_dwordx4 v[{e}:{e+3}], v{vL}, {WSR}, s{sPq if u < 2 else t} offen offset:{2048*(u & 1)} sc1")
        qst(0)
        for u in (1, 2, 3):
            for l in qmath(10 + u): a(l)
            qst(u)
        a("s_waitcnt vmcnt(4)")
        self.signal(sF1, 8)
        a(f"v_mov_b32 v0, v{vLane}")
        self.stamp(3)
        self.finish1([sF2])

    def setup2(self):
        a = self.a
        t = T0
        a(f"s_bfe_u32 s{t+2}, s{sWG}, 0x20001\ns_bfe_u32 s{t+3}, s{sWG}, 0x30003\ns_lshl3_add_u32 s{sR64}, s{t+2}, s{t+3}")
        a(f"s_and_b32 s{t+2}, s{sWG}, 1\ns_lshr_b32 s{t+3}, s{sWG}, 6\ns_lshl2_add_u32 s{sC}, s{t+2}, s{t+3}")
        a(f"s_and_b32 s{t+2}, s{sWG}, 7\ns_bfe_u32 s{t+3}, s{sWG}, 0x20003\ns_lshl2_add_u32 s{sH}, s{t+2}, s{t+3}\ns_lshr_b32 s{sC2}, s{sWG}, 5")
        a(f"v_lshlrev_b32 v{vL16}, 4, v0\nv_add_u32 v{vL16b}, 4096, v{vL16}")
        if ROT2 == "none":
            a(f"s_mov_b32 s{t}, 0")
        else:
            a(f"s_bfe_u32 s{t}, s{sWG}, 0x10003\ns_mul_i32 s{t}, s{t}, 3")
        a(f"s_mul_i32 s{t+1}, s{sWAVE}, 6")
        a(f"s_mul_i32 s{t+2}, s{sC}, {48*5120}\ns_add_u32 s{t+2}, s{t+2}, {WS_W2R}")
        a(f"s_mul_i32 s{t+3}, s{sR64}, {48*4096}\ns_add_u32 s{t+3}, s{t+3}, {WS_ACT}")
        for i in range(6):
            a(f"s_add_u32 s{t+4}, s{t+1}, s{t}\ns_mul_i32 s{sB0+i}, s{t+4}, 5120\ns_add_u32 s{sB0+i}, s{sB0+i}, s{t+2}")
            a(f"s_lshl_b32 s{sA0+i}, s{t+4}, 12\ns_add_u32 s{sA0+i}, s{sA0+i}, s{t+3}")
            if i < 5: a(f"s_add_u32 s{t}, s{t}, 1\ns_cmp_eq_u32 s{t}, 6\ns_cselect_b32 s{t}, 0, s{t}")
        a(f"s_lshl3_add_u32 s{sFa}, s{sR64}, s{sWAVE}\ns_lshl_b32 s{sFa}, s{sFa}, 7\ns_lshl_b32 s{sFq}, s{sR64}, 7\ns_add_u32 s{sFq}, s{sFq}, {CNT_PQ}")
        a(f"s_mul_i32 s{sPQb}, s{sR64}, 40\ns_mul_i32 s{t}, s{sWAVE}, 5\ns_add_u32 s{sPQb}, s{sPQb}, s{t}\ns_lshl_b32 s{sPQb}, s{sPQb}, 11\ns_add_u32 s{sPQb}, s{sPQb}, {WS_PQ}")
        a(f"s_lshl3_add_u32 s{sMb}, s{sC}, s{sWAVE}\ns_lshl_b32 s{sMb}, s{sMb}, 14\ns_add_u32 s{sMb}, s{sMb}, {WS_MW}")
        a(f"s_lshl_b32 s{sCm}, s{sC}, 7\ns_add_u32 s{sCm}, s{sCm}, {CNT_M}")

    def preload_b(self, n0, n1):
        for n in range(n0, n1):
            i, jn = divmod(n, 5)
            d = BS + 20*i + 4*jn
            self.a(f"buffer_load_dwordx4 v[{d}:{d+3}], v{vL16 if jn < 4 else vL16b}, {WSR}, s{sB0+i} offen offset:{1024*jn if jn < 4 else 0} sc1")

    def wo_dma(self):
        a = self.a
        t = T0
        self.srd(SRD_M, pWO, 640*640*2)
        a(f"s_mul_i32 s{t}, s{sH}, 25600\ns_mul_i32 s{t+1}, s{sC2}, 160\ns_add_u32 s{t}, s{t}, s{t+1}\nv_mov_b32 v5, {BIG}")
        for j in range(5):
            a(f"v_add_u32 v1, {64*j}, v0\nv_mul_u32_u24 v2, 6554, v1\nv_lshrrev_b32 v2, 16, v2\nv_cmp_gt_u32 vcc, 20, v2\nv_mad_i32_i24 v1, v2, -10, v1")
            a(f"v_mul_u32_u24 v2, 1280, v2\nv_lshl_add_u32 v1, v1, 4, v2\nv_cndmask_b32 v1, v5, v1, vcc\ns_mov_b32 m0, {SCR + 1024*j}\ns_nop 0")
            a(f"buffer_load_dwordx4 v1, s[{SRD_M}:{SRD_M+3}], s{t} offen lds")

    def mstage(self):
        a = self.a
        t = T0
        if MSPRIO: a("s_setprio 3")
        a(f"s_lshl_b32 s{t}, s{sH}, 7\ns_add_u32 s{t}, s{t}, {CNT_KV}")
        a(f"v_lshrrev_b32 v57, 4, v0\nv_bfe_u32 v2, v0, 2, 2\nv_lshl_add_u32 v1, v57, 3, v2\nv_mul_u32_u24 v1, 160, v1\nv_and_b32 v2, 3, v0\nv_lshl_add_u32 v1, v2, 3, v1\nv_add_u32 v1, {SCR}, v1")
        self.poll(f"s{t}", 16, 2)
        self.stamp(4)
        a(f"s_lshl_b32 s{t}, s{sH}, 15\ns_add_u32 s{t}, s{t}, {WS_KVP}")
        for k in range(32):
            if k % 4 == 0:
                a(f"s_mov_b32 m0, {MS + 1024*k}")
                a(f"s_add_u32 s{t}, s{t}, 4096" if k else "s_nop 0")
            a(f"buffer_load_dwordx4 v{vL16}, {WSR}, s{t} offen offset:{1024*(k % 4)} sc1 lds")
        for jn in range(5):
            a(f"ds_read_b64_tr_b16 v[{60+4*jn}:{61+4*jn}], v1 offset:{32*jn}\nds_read_b64_tr_b16 v[{62+4*jn}:{63+4*jn}], v1 offset:{32*jn + 640}")
        a(f"v_add_u32 v56, {MS}, v{vL16}\nv_mov_b32 v58, v0")
        for k in range(40, 56): a(f"v_mov_b32 v{k}, 0")
        LN = 58
        a(f"v_and_b32 v59, 15, v{LN}\nv_lshl_add_u32 v39, v57, 2, v59\nv_lshlrev_b32 v39, 4, v39\nv_add_u32 v39, {MS+1536}, v39")
        a(f"s_and_b32 s{t+1}, s{sH}, 3\nv_bfe_u32 v32, v{LN}, 1, 2\nv_subrev_u32 v32, s{t+1}, v32\nv_and_b32 v32, 3, v32\nv_lshlrev_b32 v32, 6, v32\nv_add_u32 v32, {MS+1280}, v32")
        a(f"v_and_b32 v33, 1, v{LN}\nv_cmp_eq_u32 vcc, 1, v33\nv_mov_b32 v33, {MS+1856}\ns_mul_i32 s{t+2}, s{t+1}, 5\nv_cndmask_b32 v38, v32, v33, vcc")
        a(f"s_lshr_b32 s{t+3}, s{sH}, 2\ns_lshl3_add_u32 s{t+3}, s{sC2}, s{t+3}\ns_lshl_b32 s{t+3}, s{t+3}, 14\ns_add_u32 s{t+3}, s{t+3}, {WS_MW}")
        a("s_waitcnt vmcnt(0) lgkmcnt(0)")
        if MSDBG: self.stamp(1)
        for half in range(2):
            acc = 32 if half == 0 else 200
            for r in range(8):
                a(f"ds_read_b128 v[{4*r}:{4*r+3}], v56 offset:{2048*r + 1024*half}")
            for r in range(16):
                b = 4*(r % 8)
                if r: a(f"s_waitcnt lgkmcnt({6 if r == 1 else min(7, 15 - r)})")
                if r == 1:
                    a(f"v_pk_add_f32 v[{acc}:{acc+1}], v[0:1], v[4:5]\nv_pk_add_f32 v[{acc+2}:{acc+3}], v[2:3], v[6:7]")
                    a(f"ds_read_b128 v[0:3], v56 offset:{2048*8 + 1024*half}")
                if r >= 2:
                    a(f"v_pk_add_f32 v[{acc}:{acc+1}], v[{acc}:{acc+1}], v[{b}:{b+1}]\nv_pk_add_f32 v[{acc+2}:{acc+3}], v[{acc+2}:{acc+3}], v[{b+2}:{b+3}]")
                if 1 <= r < 8:
                    a(f"ds_read_b128 v[{b}:{b+3}], v56 offset:{2048*(r + 8) + 1024*half}")
        if MSDBG: self.stamp(2)
        a("ds_write_b128 v56, v[32:35]\nds_write_b128 v56, v[200:203] offset:1024\ns_waitcnt lgkmcnt(0)")
        a("s_mov_b32 exec_hi, 0xffff\nds_read_b128 v[40:43], v56\nds_read_b128 v[44:47], v56 offset:768")
        a("s_mov_b32 exec_lo, 0x000f000f\ns_mov_b32 exec_hi, 0x0000000f\nds_read_b128 v[48:51], v39\nds_read_b128 v[52:55], v39 offset:192")
        a("s_mov_b64 exec, -1\nds_read2_b32 v[32:33], v38 offset0:0 offset1:4\nds_read2_b32 v[34:35], v38 offset0:8 offset1:12")
        a(f"v_mov_b32 v204, {BIG}")
        for dt in range(2):
            a(f"v_add_u32 v205, {4*dt}, v57\nv_cmp_gt_u32 vcc, 5, v205\nv_add_u32 v205, s{t+2}, v205\nv_lshl_add_u32 v205, v205, 4, v59\nv_lshlrev_b32 v206, 3, v205")
            a(f"v_lshlrev_b32 v205, 4, v205\nv_add_u32 v206, 10240, v206\nv_cndmask_b32 v{208+2*dt}, v204, v205, vcc\nv_cndmask_b32 v{209+2*dt}, v204, v206, vcc")
        a(f"v_lshlrev_b32 v207, 3, v{LN}\ns_lshl_b32 s{t+4}, s{t+1}, 7\ns_add_u32 s{t+4}, s{t+4}, s{t+3}\ns_add_u32 s{t+4}, s{t+4}, 12800\ns_add_u32 s{t+5}, s{t+3}, 5120")
        a("s_waitcnt lgkmcnt(0)")
        for k in range(8): a(f"v_cvt_pk_bf16_f32 v{40+k}, v{40+2*k}, v{41+2*k}")
        a("v_cvt_pk_bf16_f32 v48, v32, v33\nv_cvt_pk_bf16_f32 v49, v34, v35")
        for dt in range(2):
            for jn in range(5):
                d = 20*dt + 4*jn
                a(f"v_mfma_f32_16x16x32_bf16 v[{d}:{d+3}], v[{40+4*dt}:{43+4*dt}], v[{60+4*jn}:{63+4*jn}], 0")
        a(f"s_mov_b64 exec, 0xffff\nbuffer_store_dwordx2 v[48:49], v207, {WSR}, s{t+4} offen sc1\ns_mov_b64 exec, -1")
        for dt in range(2):
            for jp in range(2):
                d = 20*dt + 8*jp
                a(f"v_cvt_pk_bf16_f32 v{d}, v{d}, v{d+1}\nv_cvt_pk_bf16_f32 v{d+1}, v{d+2}, v{d+3}\nv_cvt_pk_bf16_f32 v{d+2}, v{d+4}, v{d+5}\nv_cvt_pk_bf16_f32 v{d+3}, v{d+6}, v{d+7}")
                a(f"buffer_store_dwordx4 v[{d}:{d+3}], v{208+2*dt}, {WSR}, s{t+3 if jp == 0 else t+5} offen sc1")
            d = 20*dt + 16
            if dt == 1: a("s_nop 0")
            a(f"v_cvt_pk_bf16_f32 v{d}, v{d}, v{d+1}\nv_cvt_pk_bf16_f32 v{d+1}, v{d+2}, v{d+3}")
            a(f"buffer_store_dwordx2 v[{d}:{d+1}], v{209+2*dt}, {WSR}, s{t+3} offen sc1")
        if MSDBG: self.stamp(3)
        a(f"s_lshl_b32 s{t}, s{sC2}, 7\ns_add_u32 s{t}, s{t}, {CNT_M}\ns_waitcnt vmcnt(0)")
        self.signal(t, 54)
        if MSPRIO: a(f"s_setprio {MSPRIO2}")
        self.stamp(5)

    def gemm2(self):
        a = self.a
        t = T0
        seq = []
        def ld(dst, n, v, so, off, tag):
            a(f"buffer_load_dword{ {1: '', 2: 'x2', 4: 'x4'}[n] } {vr(dst, n)}, v{v}, {WSR}, s{so} offen offset:{off} sc1"); seq.append(tag)
        def wait(tag):
            last = max(n for n, x in enumerate(seq) if x == tag)
            a(f"s_waitcnt vmcnt({len(seq) - 1 - last})")
        def act(i):
            for st in range(4): ld(AB + 16*(i % 3) + 4*st, 4, vL16, sA0 + i, 1024*st, f"act{i}")
        def check(v, soff, target, vt):
            ok = a.newlabel("L_ok")
            a(f"v_readfirstlane_b32 s{t+3}, v{v}\ns_nop 0\ns_cmp_ge_u32 s{t+3}, {target}\ns_cbranch_scc1 {ok}")
            self.poll(f"s{soff}", target, vt)
            a.label(ok)
        LN = 255
        a(f"v_lshrrev_b32 v{LN}, 4, v{vL16}")
        self.poll(f"s{sFa}", 2, vP)
        self.stamp(6)
        act(0)
        ld(vP + 1, 1, vP, sFq, 0, "fq")
        act(1); act(2)
        def pq(sp):
            for tt in range(5):
                ld(PQR + 20*sp + 4*tt, 4, vL16, (sPQb, t, t + 1)[tt >> 1], 2048*(tt & 1) + 1024*sp, f"pq{sp}")
        for i in range(6):
            wait(f"act{i}")
            for jn in range(5):
                for st in range(4):
                    d = 20*st + 4*jn
                    a(f"v_mfma_f32_16x16x32_bf16 v[{d}:{d+3}], v[{BS+20*i+4*jn}:{BS+20*i+4*jn+3}], v[{AB+16*(i%3)+4*st}:{AB+16*(i%3)+4*st+3}], {'0' if i == 0 else f'v[{d}:{d+3}]'}")
            if i < 3: act(i + 3)
            if i == 2:
                check(vP + 1, sFq, 25, vP)
                a(f"s_add_u32 s{t}, s{sPQb}, 4096\ns_add_u32 s{t+1}, s{sPQb}, 8192")
                a(f"v_and_b32 v{vP+1}, 15, v{LN}\nv_lshlrev_b32 v{vP+1}, 2, v{vP+1}\ns_lshl_b32 s{t+2}, s{sR64}, 8\ns_add_u32 s{t+2}, s{t+2}, {WS_G}")
                for st in range(4): ld(vG + st, 1, vP + 1, t + 2, 64*st, "g")
                pq(0)
            if i == 4:
                ld(vP + 1, 1, vP, sCm, 0, "poll")
        self.stamp(7)
        OM = AB
        for st in range(4): a(f"v_sub_f32 v{OM+st}, 1.0, v{vG+st}") if st else (wait("g"), a(f"v_sub_f32 v{OM}, 1.0, v{vG}"))
        for st in range(4):
            sel = "op_sel_hi:[1,0]" if st % 2 == 0 else "op_sel:[0,1]"
            for k in range(10):
                d = 20*st + 2*k
                a(f"v_pk_mul_f32 v[{d}:{d+1}], v[{d}:{d+1}], v[{OM + (st & 2)}:{OM + (st & 2) + 1}] {sel}")
        a("s_waitcnt vmcnt(0)")
        check(vP + 1, sCm, 32, vP)
        self.stamp(8)
        seq.clear()
        a(f"v_and_b32 v{vP}, 3, v{LN}\nv_lshrrev_b32 v{vP+1}, 4, v{LN}\nv_lshlrev_b32 v{vP+1}, 4, v{vP+1}\nv_lshl_add_u32 v{vP}, v{vP}, 7, v{vP+1}")
        a(f"s_add_u32 s{t+2}, s{sMb}, 12800\nv_lshlrev_b32 v{vP+1}, 3, v{LN}")
        ld(ZR, 4, vP, t + 2, 0, "Z")
        for f in range(10):
            if f in (4, 8): a(f"s_add_u32 s{sMb}, s{sMb}, 4096")
            ld(MR + 4*f, 4, vL16, sMb, 1024*(f % 4), "M")
        a(f"s_add_u32 s{sMb}, s{sMb}, 2048")
        for tt in range(5): ld(MR + 40 + 2*tt, 2, vP + 1, sMb, 512*tt, "M")
        pq(1)
        vRW = vP + 1
        a(f"v_and_b32 v{AB}, 15, v{LN}\nv_mul_u32_u24 v{AB}, 160, v{AB}\nv_bfe_u32 v{AB+1}, v{LN}, 5, 1\nv_lshl_add_u32 v{AB}, v{AB+1}, 4, v{AB}")
        a(f"v_bfe_u32 v{AB+1}, v{LN}, 4, 1\nv_mul_u32_u24 v{AB+1}, 10240, v{AB+1}\ns_mul_i32 s{t}, s{sWAVE}, 20480\nv_add3_u32 v{vRW}, v{AB}, v{AB+1}, s{t}")
        def swaps(R):
            for p in range(2):
                a(f"v_swap_b32 v{R+8*p+2}, v{R+8*p+4}\nv_swap_b32 v{R+8*p+3}, v{R+8*p+5}")
        swaps(PQR)
        for k in range(10): a(f"v_mov_b32 v{ZE+k}, 0")
        a(f"s_mov_b32 s{cE}, 0x358637bd\ns_mov_b32 s{cE+1}, 0x358637bd")
        mq = [t + 4, t + 6, t + 8]
        a(f"s_mov_b32 s{mq[0]}, 0xffff\ns_mov_b32 s{mq[0]+1}, 0\ns_mov_b32 s{mq[1]}, -1\ns_mov_b32 s{mq[1]+1}, 0\ns_mov_b32 s{mq[2]}, -1\ns_mov_b32 s{mq[2]+1}, 0xffff")
        wait("Z")
        for tt in range(5):
            m1 = m2 = 0
            for l in range(64):
                hh, q = l & 3, l >> 4
                if (5*hh - q + 3) >> 2 == tt: m1 |= 1 << l
                if q == hh and hh + 1 == tt: m2 |= 1 << l
            for m, src in ((m1, ZR), (m2, ZR + 2)):
                if m:
                    a(f"s_mov_b32 exec_lo, {m & 0xffffffff:#x}\ns_mov_b32 exec_hi, {m >> 32:#x}\nv_mov_b32 v{ZE+2*tt}, v{src}\nv_mov_b32 v{ZE+2*tt+1}, v{src+1}")
        a("s_mov_b64 exec, -1")
        DN, SC, TM = AB, AB + 16, AB + 24
        def fr(base, x, tt):
            R = base + 20*(x >> 1)
            return R + 8*(tt >> 1) + 4*(x & 1) + 2*(tt & 1) if tt < 4 else R + 16 + 2*(x & 1)
        fq = lambda st, tt: fr(PQR, st, tt)
        fm = lambda jn, tt: fr(MR, jn, tt) if jn < 4 else MR + 40 + 2*tt
        def den(sts):
            for p in range(2):
                for st in sts:
                    d = DN + 4*st
                    a(f"v_mfma_f32_16x16x32_bf16 v[{d}:{d+3}], v[{ZE+4*p}:{ZE+4*p+3}], v[{fq(st,2*p)}:{fq(st,2*p)+3}], {'0' if p == 0 else f'v[{d}:{d+3}]'}")
            a("s_nop 4")
            for st in sts:
                d = DN + 4*st
                a(f"v_mfma_f32_16x16x16_bf16 v[{d}:{d+3}], v[{ZE+8}:{ZE+9}], v[{fq(st,4)}:{fq(st,4)+1}], v[{d}:{d+3}]")
        def scale(st):
            d = DN + 4*st
            sel = "op_sel_hi:[1,0]" if st % 2 == 0 else "op_sel:[0,1]"
            gp = f"v[{vG + (st & 2)}:{vG + (st & 2) + 1}]"
            a(f"v_pk_add_f32 v[{d}:{d+1}], v[{d}:{d+1}], s[{cE}:{cE+1}]\nv_pk_add_f32 v[{d+2}:{d+3}], v[{d+2}:{d+3}], s[{cE}:{cE+1}]")
            for k in range(4): a(f"v_rcp_f32 v{d+k}, v{d+k}")
            a(f"v_pk_mul_f32 v[{d}:{d+1}], v[{d}:{d+1}], {gp} {sel}\nv_pk_mul_f32 v[{d+2}:{d+3}], v[{d+2}:{d+3}], {gp} {sel}")
            a(f"v_mov_b32 v{SC}, v{d}\nv_mov_b32 v{SC+4}, v{d+3}")
            for k in range(3): a(f"v_cndmask_b32 v{SC+1+k}, v{d+k+1}, v{d+k}, s[{mq[k]}:{mq[k]+1}]")
            for tt in range(5):
                r = fq(st, tt); T = TM + 4*(tt & 1)
                sel2 = "op_sel_hi:[1,0]" if tt % 2 == 0 else "op_sel:[0,1]"
                sp = f"v[{SC + (tt & 6)}:{SC + (tt & 6) + 1}]"
                a(f"v_lshlrev_b32 v{T}, 16, v{r}\nv_and_b32 v{T+1}, 0xffff0000, v{r}\nv_lshlrev_b32 v{T+2}, 16, v{r+1}\nv_and_b32 v{T+3}, 0xffff0000, v{r+1}")
                a(f"v_pk_mul_f32 v[{T}:{T+1}], v[{T}:{T+1}], {sp} {sel2}\nv_pk_mul_f32 v[{T+2}:{T+3}], v[{T+2}:{T+3}], {sp} {sel2}")
                a(f"v_cvt_pk_bf16_f32 v{r}, v{T}, v{T+1}\nv_cvt_pk_bf16_f32 v{r+1}, v{T+2}, v{T+3}")
        def attn(st):
            for p in range(3):
                for jn in range(5):
                    d = 20*st + 4*jn
                    if p < 2:
                        a(f"v_mfma_f32_16x16x32_bf16 v[{d}:{d+3}], v[{fm(jn,2*p)}:{fm(jn,2*p)+3}], v[{fq(st,2*p)}:{fq(st,2*p)+3}], v[{d}:{d+3}]")
                    else:
                        a(f"v_mfma_f32_16x16x16_bf16 v[{d}:{d+3}], v[{fm(jn,4)}:{fm(jn,4)+1}], v[{fq(st,4)}:{fq(st,4)+1}], v[{d}:{d+3}]")
                if p == 1: a("s_nop 1")
        def wr(st):
            for jn in range(5):
                d = 20*st + 4*jn
                a(f"ds_write_b128 v{vRW}, v[{d}:{d+3}] offset:{2560*st + 32*jn}")
        a("s_nop 1")
        den((0, 1)); a("s_nop 7"); scale(0); scale(1)
        wait("M")
        swaps(MR); swaps(MR + 20)
        a("s_nop 1")
        attn(0); attn(1)
        wait("pq1")
        swaps(PQR + 20)
        a("s_nop 1")
        den((2, 3))
        a("s_barrier")
        wr(0); a("s_nop 1"); scale(2); wr(1); scale(3)
        a("s_nop 1")
        attn(2); attn(3); wr(2)
        a(f"s_mul_i32 s{t}, s{sWAVE}, 80\nv_add_u32 v{AB}, s{t}, v{LN}\nv_add_u32 v{AB+1}, 64, v{AB}")
        for k in range(2):
            a(f"v_mul_u32_u24 v{AB+2}, 6554, v{AB+k}\nv_lshrrev_b32 v{AB+2}, 16, v{AB+2}\nv_mad_i32_i24 v{AB+3}, v{AB+2}, -10, v{AB+k}")
            a(f"v_mul_u32_u24 v{AB+2}, 1280, v{AB+2}\nv_lshl_add_u32 v{AB+4+k}, v{AB+3}, 4, v{AB+2}\nv_lshlrev_b32 v{AB+k}, 4, v{AB+k}")
        wr(3)
        self.srd(SRD_M, pOUT, 2048*640*2)
        a(f"s_mul_i32 s{t}, s{sR64}, 81920\ns_mul_i32 s{t+1}, s{sC}, 160\ns_add_u32 s{t}, s{t}, s{t+1}")
        a(f"v_add_u32 v{AB+6}, 61440, v{AB}\nv_add_u32 v{AB+7}, 61440, v{AB+1}\nv_add_u32 v{AB+8}, 122880, v{AB}\nv_add_u32 v{AB+9}, 122880, v{AB+1}")
        a("s_waitcnt lgkmcnt(0)\ns_barrier")
        self.stamp(9)
        for k in range(2):
            if k == 1: a("s_mov_b64 exec, 0xffff")
            R = 64*k
            for w in range(8):
                for par in range(2):
                    base = [AB + k, AB + 6 + k, AB + 8 + k][w // 3]
                    a(f"ds_read_b128 v[{R+8*w+4*par}:{R+8*w+4*par+3}], v{base} offset:{20480*(w % 3) + 10240*par}")
        a("s_mov_b64 exec, -1")
        for k in range(2):
            R = 64*k
            a(f"s_waitcnt lgkmcnt({15 if k == 0 else 0})")
            for pairs in (((0, 4), (1, 5), (2, 6), (3, 7)), ((0, 2), (1, 3)), ((0, 1),)):
                for x, y in pairs:
                    for j in range(4):
                        a(f"v_pk_add_f32 v[{R+8*x+2*j}:{R+8*x+2*j+1}], v[{R+8*x+2*j}:{R+8*x+2*j+1}], v[{R+8*y+2*j}:{R+8*y+2*j+1}]")
            for j in range(4): a(f"v_cvt_pk_bf16_f32 v{R+j}, v{R+2*j}, v{R+2*j+1}")
            if k == 1: a("s_mov_b64 exec, 0xffff")
            a(f"buffer_store_dwordx4 v[{R}:{R+3}], v{AB+4+k}, s[{SRD_M}:{SRD_M+3}], s{t} offen")
        a("s_mov_b64 exec, -1")


def descriptor(name):
    return f""".p2align 6
.amdhsa_kernel {name}
  .amdhsa_next_free_vgpr 256
  .amdhsa_next_free_sgpr 102
  .amdhsa_accum_offset 256
  .amdhsa_group_segment_fixed_size 0
  .amdhsa_kernarg_size 88
  .amdhsa_user_sgpr_count 2
  .amdhsa_user_sgpr_kernarg_segment_ptr 1
  .amdhsa_system_sgpr_workgroup_id_x 1
.end_amdhsa_kernel
"""

def build(stamps):
    g = Gen(stamps=stamps)
    a = g.a
    K = NAME + "_kernel"
    hdr = open(os.path.join(os.path.dirname(os.path.abspath(__file__)), "header.txt")).read()
    for l in hdr.strip().split("\n"): a.lines.append(l)
    a(f"; @launch grid=(256,1,1) block=(512,1,1) lds={LDS_TOTAL}")
    a('.amdgcn_target "amdgcn-amd-amdhsa--gfx950"\n.text')
    a(f".globl {K}\n.p2align 8\n.type {K},@function")
    a.label(K)
    g.common_prologue("L_end")
    a(f"s_cmp_lt_u32 s{sWAVE}, 4\ns_cbranch_scc1 L_comp")
    g.loader1()
    a("s_setprio 0")
    g.setup2()
    g.srd(SRD_WS, pWS, WS_SIZE)
    a(f"s_cmp_lg_u32 s{sWAVE}, 7\ns_cbranch_scc1 L_l1")
    g.wo_dma()
    a.label("L_l1")
    a("s_barrier")
    g.preload_b(0, 10)
    a(f"s_cmp_lg_u32 s{sTYPE}, 0\ns_cbranch_scc1 L_l2\ns_barrier")
    a.label("L_l2")
    g.preload_b(10, 30)
    g.stamp(3)
    a(f"s_cmp_lg_u32 s{sWAVE}, 7\ns_cbranch_scc1 L_g2")
    g.mstage()
    a.label("L_g2")
    g.gemm2()
    g.dump_stamps()
    a.label("L_end")
    a("s_endpgm")
    a.label("L_comp")
    a(f"s_cmp_eq_u32 s{sTYPE}, 0\ns_cbranch_scc1 L_kv")
    g.compute_P(); a("s_branch L_g2")
    a.label("L_kv")
    g.compute_KV(); a("s_branch L_g2")
    errs = lint(a.lines)
    for e in errs: print("HAZARD:", e, file=sys.stderr)
    return a.text() + '.section .rodata,"a"\n' + descriptor(K)

if __name__ == "__main__":
    open(sys.argv[1], "w").write(build(sys.argv[2] if len(sys.argv) > 2 else False))
```

```python
import sys, os
sys.path.insert(0, os.path.dirname(os.path.abspath(__file__)))
from asmlib import *

NAME = "gated_mix__linear_attn_block__dense_activation_mish__prompt"
ENV = os.environ.get

CNT_ACT, CNT_PQ, CNT_KV = 0, 256*128, 288*128
WS_G = 0x10000
WS_KVP = 0x100000
WS_WOR = 0x200000
WS_W2R = 0x300000
WS_PQ = 0x500000
WS_ACT = 0x800000
WS_SIZE = 0x1000000
WS_STAMP = 0x8000000
BIG = 0x20000000
DBGW = int(ENV("DBGW", "0"))
ROTMODE = ENV("ROT", "two")
ROT2 = ENV("ROT2", "none")
NPRE = int(ENV("NPRE", "10"))
SPIN = 0x40000
WOAT = int(ENV("WOAT", "2"))
KVAT = int(ENV("KVAT", "4"))
GSYNC = int(ENV("GSYNC", "0"))
PICK = int(ENV("PICK", "0"))
SLEEP = int(ENV("SLEEP", "1"))
BLDS = int(ENV("BLDS", "1"))
NL0 = int(ENV("NL0", "4"))
MAP2 = ENV("MAP2", "x2")
TOUCH = int(ENV("TOUCH", "0"))
MSDBG = int(ENV("MSDBG", "0"))
MSPRIO = int(ENV("MSPRIO", "1"))
MSPRIO2 = int(ENV("MSPRIO2", "1"))

XR = 0
STG = 40960
WR = 49152
WSLOT = 14336
NS = 6
GATE = WR + NS * WSLOT
SCR = GATE + 2048
MS = WR
BL = WR + 32768
BLF = STG + 2040
LDS_TOTAL = 163840

sWG = 2
pX, pWQKV, pWO, pW1, pB1, pW2, pGATE, pOUT, pDBG, pWS = 4, 6, 8, 12, 14, 16, 18, 20, 22, 24
sWAVE, sRB, sHALF, sCBL, sGRP, sF1, sROT, sPIDX, sTYPE, sT = 26, 27, 28, 29, 30, 31, 32, 33, 34, 35
SRD_WS, SRD_X, SRD_W, SRD_M, SRD_D = 36, 40, 44, 52, 56
T0 = 60
sST = 76
cL2E, cC, cE = 96, 98, 100
sR64, sC = 27, 28
sB0, sA0 = 40, 46
sPQb, sMb, sKv, sFk = 0, 1, 3, 29
sFa, sFq = 10, 11
BS, AB = 80, 200
PQR, MR, KA, KD = 80, 120, 120, 176
sLB, sN208 = 30, 31
vG, vP, vL16, vL16b = 248, 252, 254, 255
WSR = f"s[{SRD_WS}:{SRD_WS+3}]"


class Gen:
    def __init__(self, stamps=False):
        self.a = Asm()
        self.stamps = stamps

    def stamp(self, k):
        if self.stamps and not (self.stamps == "dbg" and k == 9):
            if k < 2 and self.stamps != "dbg":
                self.a(f"s_memtime s[58:59]\ns_waitcnt lgkmcnt(0)\ns_mov_b32 s{sST+2*k}, s58")
            else:
                self.a(f"s_memtime s[{sST+2*k}:{sST+2*k+1}]")

    def srd(self, d, ptr, size, add=None):
        a = self.a
        if add is None:
            a(f"s_mov_b32 s{d}, s{ptr}\ns_mov_b32 s{d+1}, s{ptr+1}")
        else:
            a(f"s_add_u32 s{d}, s{ptr}, {add}\ns_addc_u32 s{d+1}, s{ptr+1}, 0")
        a(f"s_mov_b32 s{d+2}, {size}\ns_mov_b32 s{d+3}, 0x20000")

    def signal(self, soff, v):
        self.a(f"v_mov_b32 v{v}, 1\nv_mov_b32 v{v+1}, 0\ns_mov_b64 exec, 1\nbuffer_atomic_add v{v}, v{v+1}, {WSR}, s{soff} offen sc1\ns_mov_b64 exec, -1")

    def poll(self, soff, target, va, vd, srd=SRD_WS):
        a = self.a
        t = T0 + 15
        loop, done = a.newlabel("L_poll"), a.newlabel("L_polld")
        a(f"s_mov_b32 s{t}, 0")
        a.label(loop)
        a(f"buffer_load_dword v{vd}, v{va}, s[{srd}:{srd+3}], {soff} offen sc1\ns_waitcnt vmcnt(0)")
        a(f"v_cmp_le_u32 vcc, {target}, v{vd}\ns_add_u32 s{t}, s{t}, 1\ns_nop 0")
        a(f"s_cmp_eq_u64 vcc, -1\ns_cbranch_scc1 {done}")
        a(f"s_sleep {SLEEP}\ns_cmp_lt_u32 s{t}, {SPIN}\ns_cbranch_scc1 {loop}")
        a.label(done)

    def dump_stamps(self):
        if not self.stamps:
            return
        a = self.a
        a("s_waitcnt vmcnt(0) lgkmcnt(0)")
        a(f"s_memrealtime s[{T0}:{T0+1}]\ns_memtime s[{T0+2}:{T0+3}]")
        if self.stamps == "dbg":
            self.srd(SRD_M, pDBG, 256)
            a("s_waitcnt lgkmcnt(0)\nv_mov_b32 v2, 0\ns_mov_b64 exec, 1")
            sk = a.newlabel("L_dbg")
            a(f"s_lshl_b32 s{T0+5}, s{sWG}, 3\ns_add_u32 s{T0+5}, s{T0+5}, s{sWAVE}\ns_cmp_lg_u32 s{T0+5}, {DBGW}\ns_cbranch_scc1 {sk}")
            for k in range(1, 10):
                a(f"s_sub_u32 s{T0+5}, s{sST+2*k}, s{sST}\nv_mov_b32 v{3+k}, s{T0+5}")
            a(f"s_sub_u32 s{T0+5}, s{T0+2}, s{sST}\nv_mov_b32 v13, s{T0+5}\ns_sub_u32 s{T0+5}, s{T0}, s94\nv_mov_b32 v14, s{T0+5}\nv_mov_b32 v15, s94")
            for k in range(3):
                a(f"buffer_store_dwordx4 v[{4+4*k}:{7+4*k}], v2, s[{SRD_M}:{SRD_M+3}], 0 offen offset:{16+16*k}")
            a.label(sk)
            a("s_waitcnt vmcnt(0)")
            return
        a(f"s_getreg_b32 s{T0+4}, hwreg(HW_REG_XCC_ID)")
        self.srd(SRD_M, pWS, 0x10000000)
        a("s_waitcnt lgkmcnt(0)")
        for k in range(10):
            a(f"v_mov_b32 v{k}, s{sST+2*k}")
        a(f"v_mov_b32 v10, s{T0}\nv_mov_b32 v11, s{T0+2}\nv_mov_b32 v12, s{T0+4}\nv_mov_b32 v13, s{sTYPE}\nv_mov_b32 v14, s77\nv_mov_b32 v15, s79")
        a(f"s_lshl_b32 s{T0+5}, s{sWG}, 3\ns_add_u32 s{T0+5}, s{T0+5}, s{sWAVE}\ns_lshl_b32 s{T0+5}, s{T0+5}, 6\ns_add_u32 s{T0+5}, s{T0+5}, {WS_STAMP}")
        a("v_mov_b32 v16, 0\ns_mov_b64 exec, 1")
        for k in range(4):
            a(f"buffer_store_dwordx4 v[{4*k}:{4*k+3}], v16, s[{SRD_M}:{SRD_M+3}], s{T0+5} offen offset:{16*k}")
        a("s_waitcnt vmcnt(0)")

    def common_prologue(self, endlabel):
        a = self.a
        t = T0
        a(f"s_cmp_ge_u32 s{sWG}, 256\ns_cbranch_scc1 {endlabel}")
        a("s_load_dwordx16 s[4:19], s[0:1], 0\ns_load_dwordx4 s[20:23], s[0:1], 64\ns_load_dwordx2 s[24:25], s[0:1], 80")
        if self.stamps:
            for k in range(10): a(f"s_mov_b32 s{sST+2*k}, 0")
            if self.stamps == "dbg": a("s_memrealtime s[94:95]")
            else: a("s_memrealtime s[56:57]\ns_memtime s[58:59]\ns_waitcnt lgkmcnt(0)\ns_mov_b32 s77, s56\ns_mov_b32 s79, s58")
        a("v_lshrrev_b32 v1, 6, v0\nv_and_b32 v0, 63, v0")
        a(f"v_readfirstlane_b32 s{sWAVE}, v1")
        a(f"s_bfe_u32 s{t+2}, s{sWG}, 0x20001\ns_bfe_u32 s{t+3}, s{sWG}, 0x20003")
        a(f"s_lshl2_add_u32 s{sRB}, s{t+2}, s{t+3}\ns_and_b32 s{sHALF}, s{sWG}, 1\ns_lshr_b32 s{sCBL}, s{sWG}, 5")
        a(f"s_and_b32 s{t}, s{sCBL}, 3\ns_lshl2_add_u32 s{sGRP}, s{sHALF}, s{t}\ns_lshr_b32 s{sTYPE}, s{sCBL}, 2")
        if ROTMODE == "full":
            a(f"s_mul_i32 s{t+4}, s{t+3}, 5\ns_add_u32 s{t+4}, s{t+4}, 1\ns_lshr_b32 s{t+4}, s{t+4}, 1")
            a(f"s_add_u32 s{t+4}, s{t+4}, s{sCBL}\ns_add_u32 s{t+4}, s{t+4}, s{t+2}")
            a(f"s_mul_i32 s{t+5}, s{sHALF}, 5\ns_add_u32 s{sROT}, s{t+4}, s{t+5}")
            for _ in range(2):
                a(f"s_sub_u32 s{t+4}, s{sROT}, 10\ns_cmp_ge_u32 s{sROT}, 10\ns_cselect_b32 s{sROT}, s{t+4}, s{sROT}")
        elif ROTMODE == "none":
            a(f"s_mov_b32 s{sROT}, 0")
        elif ROTMODE == "xcd":
            a(f"s_mul_i32 s{t+4}, s{t+2}, 5\ns_add_u32 s{t+4}, s{t+4}, 1\ns_lshr_b32 s{t+4}, s{t+4}, 1\ns_add_u32 s{sROT}, s{t+4}, s{sHALF}")
        elif ROTMODE == "two":
            a(f"s_add_u32 s{t+4}, s{t+3}, s{sCBL}\ns_and_b32 s{t+4}, s{t+4}, 1\ns_mul_i32 s{t+4}, s{t+4}, 5")
            a(f"s_add_u32 s{t+4}, s{t+4}, s{t+2}\ns_add_u32 s{sROT}, s{t+4}, s{sHALF}")

    def loader1(self):
        a = self.a
        t = T0
        sLW = sT
        vXE, vXO, vW, vGt = 2, 3, 4, 8
        sStr, sCol, sA32, sA64, sOff, sXo, sWB, sWB2, sXB, sXP, sSel = 48, 49, 50, 51, t+4, t+5, t+6, t+7, t+8, t+9, t+10
        a(f"s_setprio 2\ns_sub_u32 s{sLW}, s{sWAVE}, 4")
        a("v_lshrrev_b32 v10, 3, v0\nv_and_b32 v11, 7, v0\nv_lshrrev_b32 v12, 4, v0\nv_mul_u32_u24 v13, 1280, v10\nv_xor_b32 v14, v11, v12")
        a(f"s_and_b32 s{t}, s{sLW}, 1\ns_lshl_b32 s{t}, s{t}, 6")
        a(f"v_lshl_add_u32 v13, v14, 4, v13\nv_xor_b32 v{vXE}, s{t}, v13\nv_xor_b32 v{vXO}, 64, v{vXE}")
        a(f"s_lshl_b32 s{sA32}, s{sROT}, 1\ns_mov_b32 s{sA64}, s{sROT}\ns_mul_i32 s{sXB}, s{sLW}, 3072\ns_mul_i32 s{sXP}, s{sLW}, 30720")
        for k in range(6, 10): a(f"v_mov_b32 v{k}, {BIG}")
        lKV, lQH, lLN, lJ = a.newlabel("L_wkv"), a.newlabel("L_wqh"), a.newlabel("L_wln"), a.newlabel("L_wj")
        a(f"s_cmp_eq_u32 s{sTYPE}, 0\ns_cbranch_scc1 {lKV}")
        a(f"s_cmp_eq_u32 s{sLW}, 3\ns_cbranch_scc1 {lQH}")
        a(f"s_mov_b32 s{sSel}, 1\ns_mov_b32 s{sStr}, 3072\ns_mul_i32 s{sCol}, s{sGRP}, 3\ns_add_u32 s{sCol}, s{sCol}, s{sLW}\ns_lshl_b32 s{sCol}, s{sCol}, 7\ns_lshl_b32 s{sWB}, s{sLW}, 12")
        a.label(lLN)
        a(f"v_and_b32 v13, 4, v10\nv_add_u32 v13, v13, v10\nv_mul_u32_u24 v13, s{sStr}, v13\nv_lshlrev_b32 v12, 1, v12\nv_xor_b32 v12, v11, v12\nv_lshl_add_u32 v{vW}, v12, 4, v13")
        a(f"s_lshl_b32 s{t}, s{sStr}, 4\ns_lshl_b32 s{t+1}, s{sStr}, 2\nv_add_u32 v{vW+1}, s{t}, v{vW}\nv_add_u32 v{vW+2}, s{t+1}, v{vW}\nv_add_u32 v{vW+3}, s{t}, v{vW+2}")
        a(f"s_branch {lJ}")
        a.label(lQH)
        a(f"s_mov_b32 s{sSel}, 0\ns_mov_b32 s{sStr}, 3840\ns_lshl_b32 s{sCol}, s{sHALF}, 1\ns_add_u32 s{sCol}, s{sCol}, s{sCBL}\ns_add_u32 s{sCol}, s{sCol}, 12\ns_lshl_b32 s{sCol}, s{sCol}, 6")
        a(f"s_cmp_lt_u32 s{sCBL}, 6\ns_cselect_b32 s{sCol}, s{sCol}, {BIG}\ns_mov_b32 s{sWB}, 12288\ns_mov_b32 s{sWB2}, 13312")
        a(f"v_lshrrev_b32 v10, 2, v0\nv_and_b32 v13, 12, v10\nv_add_u32 v13, v13, v10\nv_mul_u32_u24 v13, 3840, v13\nv_and_b32 v11, 3, v0\nv_and_b32 v12, 1, v12\nv_lshlrev_b32 v12, 1, v12\nv_xor_b32 v12, v11, v12")
        a(f"v_lshl_add_u32 v{vW}, v12, 4, v13\nv_add_u32 v{vW+1}, 15360, v{vW}")
        a(f"s_lshl_b32 s{t}, s{sROT}, 3\nv_mov_b32 v14, {BIG}")
        for j in range(2):
            a(f"v_add_u32 v10, {64*j}, v0\nv_add_u32 v11, s{t}, v10\nv_cmp_gt_u32 vcc, 80, v10\nv_subrev_u32 v12, 80, v11\nv_min_u32 v11, v11, v12\nv_lshlrev_b32 v11, 4, v11\nv_cndmask_b32 v{vGt+j}, v14, v11, vcc")
        a(f"s_branch {lJ}")
        a.label(lKV)
        a(f"s_mov_b32 s{sSel}, 0\ns_mov_b32 s{sStr}, 3840\ns_mul_i32 s{sWB}, s{sLW}, 5120\ns_lshl_b32 s{sCol}, s{sGRP}, 7")
        a(f"s_cmp_eq_u32 s{sLW}, 2\ns_cbranch_scc1 {lLN}")
        a(f"s_mul_i32 s{sCol}, s{sGRP}, 160\ns_cmp_eq_u32 s{sLW}, 1\ns_cselect_b32 s{t}, 2560, 1280\ns_add_u32 s{sCol}, s{sCol}, s{t}")
        a(f"s_cmp_eq_u32 s{sLW}, 3\ns_cselect_b32 s{t}, 256, 0\ns_cselect_b32 s{sWB}, 4096, s{sWB}\ns_mov_b32 s{sWB2}, 9216")
        a(f"v_add_u32 v14, s{t}, v0")
        for j in range(4):
            a(f"v_add_u32 v10, {64*j}, v14\nv_mul_u32_u24 v11, 6554, v10\nv_lshrrev_b32 v11, 16, v11\nv_mad_i32_i24 v10, v11, -10, v10")
            a("v_and_b32 v12, 12, v11\nv_and_b32 v13, 3, v11\nv_lshl_or_b32 v12, v12, 1, v13\nv_bfe_u32 v13, v11, 4, 1\nv_lshl_or_b32 v12, v13, 2, v12")
            a(f"v_mul_u32_u24 v12, 3840, v12\nv_lshl_add_u32 v{vW+j}, v10, 4, v12")
            if j == 0:
                a(f"v_add_u32 v{vW+1}, 1280, v{vW}\ns_cmp_eq_u32 s{sLW}, 3\ns_cbranch_scc1 {lJ}")
        a.label(lJ)
        a(f"s_lshl_b32 s{sStr}, s{sStr}, 5\ns_mul_i32 s{t}, s{sRB}, 163840")
        a("s_waitcnt lgkmcnt(0)")
        self.stamp(0)
        self.srd(SRD_X, pX, 163840, add=f"s{t}")
        a(f"s_cmp_eq_u32 s{sSel}, 0\ns_cselect_b32 s{SRD_W}, s{pWQKV}, s{pW1}\ns_cselect_b32 s{SRD_W+1}, s{pWQKV+1}, s{pW1+1}\ns_cselect_b32 s{SRD_W+2}, {640*1920*2}, {640*1536*2}\ns_mov_b32 s{SRD_W+3}, 0x20000")
        lab3, lab4, labj = a.newlabel("L_ld3"), a.newlabel("L_ld4"), a.newlabel("L_ldj")
        a(f"s_cmp_eq_u32 s{sLW}, 3\ns_cbranch_scc1 {lab3}")
        for variant in (0, 3, 4):
            if variant == 3:
                a.label(lab3)
                a(f"s_cmp_ge_u32 s{sCBL}, 6\ns_cbranch_scc1 {lab4}")
            if variant == 4:
                a.label(lab4)
            nW = {0: 4, 3: 2, 4: 0}[variant]
            nX = 3 if variant == 0 else 7
            seq = []
            def issue_W(i):
                if nW == 0: return
                a(f"s_mul_i32 s{sOff}, s{sA32}, s{sStr}")
                for j in range(nW):
                    base, off = (sWB, 1024*j) if variant == 0 else ((sWB, sWB2)[j], 0)
                    a(f"s_add_u32 m0, s{base}, {WR + (i % NS)*WSLOT + off}")
                    a(f"s_add_u32 s{sOff}, s{sOff}, s{sCol}" if j == 0 else "s_nop 0")
                    a(f"buffer_load_dwordx4 v{vW+j}, s[{SRD_W}:{SRD_W+3}], s{sOff} offen lds")
                    seq.append(("W", i))
                a(f"s_add_u32 s{sA32}, s{sA32}, 1\ns_cmp_eq_u32 s{sA32}, 20\ns_cselect_b32 s{sA32}, 0, s{sA32}")
            def issue_X(jx):
                a(f"s_lshl_b32 s{sXo}, s{sA64}, 7")
                for j in range(nX):
                    a(f"s_add_u32 m0, s{sXB}, {XR + (jx % 3)*16384 + 1024*j}")
                    a(f"s_add_u32 s{sXo}, s{sXo}, " + (f"s{sXP}" if j == 0 else "10240"))
                    a(f"buffer_load_dwordx4 v{vXE + (j & 1)}, s[{SRD_X}:{SRD_X+3}], s{sXo} offen lds")
                    seq.append(("X", jx))
                a(f"s_add_u32 s{sA64}, s{sA64}, 1\ns_cmp_eq_u32 s{sA64}, 10\ns_cselect_b32 s{sA64}, 0, s{sA64}")
            def wait_for(items):
                last = max([n for n, it in enumerate(seq) if it in items] + [-1])
                if last >= 0: a(f"s_waitcnt vmcnt({len(seq) - 1 - last})")
            issue_X(0); issue_W(0)
            if variant == 4:
                self.srd(SRD_M, pGATE, 1280)
                for j in range(2):
                    a(f"s_mov_b32 m0, {GATE + 1024*j}\ns_nop 0\nbuffer_load_dwordx4 v{vGt+j}, s[{SRD_M}:{SRD_M+3}], 0 offen lds")
                    seq.append(("W", 0))
            issue_W(1)
            wait_for([("W", 0), ("X", 0)]); self.stamp(1); a("s_barrier")
            issue_X(1)
            wait_for([("W", 1)]); a("s_barrier")
            issue_W(2); issue_W(3); issue_X(2); issue_W(4)
            for j in range(1, 10):
                if j == 9 and variant == 0:
                    sk = a.newlabel("L_s1skip")
                    a(f"s_cmp_lg_u32 s{sWAVE}, 4\ns_cbranch_scc1 {sk}")
                    self.srd(SRD_D, pDBG, 256)
                    a(f"v_mov_b32 v10, 0\ns_mov_b32 s{t}, 128")
                    self.poll("0", f"s{t}", 10, 11, SRD_D)
                    a.label(sk)
                wait_for([("W", 2*j), ("W", 2*j + 1), ("X", j)]); a("s_barrier")
                if j + 1 < 10: issue_W(2*j + 3)
                if j + 2 < 10: issue_X(j + 2); issue_W(2*j + 4)
            if variant != 4:
                a(f"s_branch {labj}")
        a.label(labj)
        self.stamp(2)

    def mish_quad(self, h, dst, tmp):
        P = lambda r: f"v[{r}:{r+1}]"
        return [
            f"v_pk_fma_f32 {P(tmp)}, {P(h)}, s[{cL2E}:{cL2E+1}], -0.5 op_sel_hi:[1,1,0]",
            f"v_pk_fma_f32 {P(tmp+2)}, {P(h+2)}, s[{cL2E}:{cL2E+1}], -0.5 op_sel_hi:[1,1,0]",
            f"v_exp_f32 v{tmp}, v{tmp}", f"v_exp_f32 v{tmp+1}, v{tmp+1}", f"v_exp_f32 v{tmp+2}, v{tmp+2}", f"v_exp_f32 v{tmp+3}, v{tmp+3}",
            f"v_pk_add_f32 {P(tmp)}, {P(tmp)}, s[{cC}:{cC+1}]", f"v_pk_add_f32 {P(tmp+2)}, {P(tmp+2)}, s[{cC}:{cC+1}]",
            f"v_pk_fma_f32 {P(tmp)}, {P(tmp)}, {P(tmp)}, 0.5 op_sel_hi:[1,1,0]",
            f"v_pk_fma_f32 {P(tmp+2)}, {P(tmp+2)}, {P(tmp+2)}, 0.5 op_sel_hi:[1,1,0]",
            f"v_rcp_f32 v{tmp}, v{tmp}", f"v_rcp_f32 v{tmp+1}, v{tmp+1}", f"v_rcp_f32 v{tmp+2}, v{tmp+2}", f"v_rcp_f32 v{tmp+3}, v{tmp+3}",
            f"v_pk_fma_f32 {P(tmp)}, {P(h)}, {P(tmp)}, {P(h)} neg_lo:[1,0,0] neg_hi:[1,0,0]",
            f"v_pk_fma_f32 {P(tmp+2)}, {P(h+2)}, {P(tmp+2)}, {P(h+2)} neg_lo:[1,0,0] neg_hi:[1,0,0]",
            f"v_cvt_pk_bf16_f32 v{dst}, v{tmp}, v{tmp+1}", f"v_cvt_pk_bf16_f32 v{dst+1}, v{tmp+2}, v{tmp+3}",
        ]

    def phi_quad(self, h, dst, tmp):
        P = lambda r: f"v[{r}:{r+1}]"
        return [
            f"v_pk_mul_f32 {P(tmp)}, {P(h)}, s[{cL2E}:{cL2E+1}]", f"v_pk_mul_f32 {P(tmp+2)}, {P(h+2)}, s[{cL2E}:{cL2E+1}]",
            f"v_exp_f32 v{tmp}, v{tmp} clamp", f"v_exp_f32 v{tmp+1}, v{tmp+1} clamp", f"v_exp_f32 v{tmp+2}, v{tmp+2} clamp", f"v_exp_f32 v{tmp+3}, v{tmp+3} clamp",
            f"v_pk_add_f32 {P(h)}, {P(h)}, s[{cC}:{cC+1}]", f"v_pk_add_f32 {P(h+2)}, {P(h+2)}, s[{cC}:{cC+1}]",
            f"v_pk_add_f32 {P(tmp)}, {P(tmp)}, s[{cE}:{cE+1}]", f"v_pk_add_f32 {P(tmp+2)}, {P(tmp+2)}, s[{cE}:{cE+1}]",
            f"v_max_f32 v{tmp}, v{tmp}, v{h}", f"v_max_f32 v{tmp+1}, v{tmp+1}, v{h+1}", f"v_max_f32 v{tmp+2}, v{tmp+2}, v{h+2}", f"v_max_f32 v{tmp+3}, v{tmp+3}, v{h+3}",
            f"v_cvt_pk_bf16_f32 v{dst}, v{tmp}, v{tmp+1}", f"v_cvt_pk_bf16_f32 v{dst+1}, v{tmp+2}, v{tmp+3}",
        ]

    def consts(self, kind):
        if kind == "mish":
            self.a(f"s_mov_b32 s{cC}, 0x3f3504f3\ns_mov_b32 s{cC+1}, 0x3f3504f3")
        else:
            self.a(f"s_mov_b32 s{cC}, 0x3f800008\ns_mov_b32 s{cC+1}, 0x3f800008\ns_mov_b32 s{cE}, 0x358637bd\ns_mov_b32 s{cE+1}, 0x358637bd")

    def main_loop(self, reads, mfmas, extra, nread_end, bases):
        a = self.a
        a("s_barrier")
        self.stamp(1)
        for l in reads(0): a(l)
        for l in extra.get(0, ([], [], []))[1]: a(l)
        a("s_waitcnt lgkmcnt(0)")
        for i in range(1, 21):
            if i == 1 or i % 2 == 0: a("s_barrier")
            pre, fill, preb = extra.get(i, ([], [], []))
            for l in pre: a(l)
            if i < 20:
                tail = []
                if (i + 1) % 3 == 0 and i + 1 < 20:
                    op = "v_add_u32" if ((i + 1) % NS) == 3 else "v_subrev_u32"
                    tail = [f"{op} v{b}, {3*WSLOT}, v{b}" for b in bases]
                body = interleave(mfmas(i - 1), reads(i) + fill + tail, 0, nread_end)
                for l in body: a(l)
                for l in preb: a(l)
                a("s_waitcnt lgkmcnt(0)")
            else:
                for l in mfmas(19): a(l)
        self.stamp(2)

    def finish1(self, flags, strict=False):
        a = self.a
        self.setup2()
        npre = 0 if strict else NPRE
        self.preload_b(0, npre)
        a(f"s_waitcnt vmcnt({npre})")
        self.stamp(5)
        for f in flags: self.signal(f, 1)
        self.preload_b(npre, NPRE)
        if not BLDS:
            self.preload_b(NPRE, 30)
            return

    def pickup(self):
        a = self.a
        t = T0
        sk = a.newlabel("L_pk")
        a(f"s_cmp_ge_u32 s{sWAVE}, 4\ns_cbranch_scc1 {sk}")
        a(f"s_mul_i32 s{t+1}, s{sWAVE}, 20480\ns_add_u32 s{t+1}, s{t+1}, {BL}\nv_add_u32 v{BS+117}, s{t+1}, v{vL16}")
        for n in range(20):
            a(f"ds_read_b128 v[{BS+40+4*n}:{BS+43+4*n}], v{BS+117} offset:{1024*n}")
        a.label(sk)

    def touch(self, vLane, v):
        a = self.a
        t = T0
        a(f"v_lshlrev_b32 v{v}, 21, v{vLane}\nv_add_u32 v{v}, 0xff000, v{v}\ns_mov_b64 exec, 0xff")
        a(f"buffer_load_dword v{v+1}, v{v}, {WSR}, 0 offen")
        self.srd(SRD_M, pOUT, 2048*640*2)
        a(f"v_lshlrev_b32 v{v}, 20, v{vLane}\ns_mov_b64 exec, 7\nbuffer_load_dword v{v+2}, v{v}, s[{SRD_M}:{SRD_M+3}], 0 offen")
        self.srd(SRD_M, pWO, 640*640*2)
        a(f"v_lshlrev_b32 v{v}, 19, v{vLane}\ns_mov_b64 exec, 3\nbuffer_load_dword v{v+3}, v{v}, s[{SRD_M}:{SRD_M+3}], 0 offen\ns_mov_b64 exec, -1")

    def compute_P(self):
        a = self.a
        t = T0
        ACC, XB, WB, BI = 0, 112, 144, 200
        vX0, vX1, vH0, vH1, vQ, vGt, vL, vRd, vRr, vBo, vT = 228, 229, 230, 231, 232, 233, 234, 235, 236, 237, 238
        vLane = 253
        sSH, sNH = sT, 48
        sAct, sPq, sF2, sGs = 49, 72, 73, 74
        a(f"v_mov_b32 v{vLane}, v0\ns_lshr_b32 s{sSH}, s{sWAVE}, 1\ns_and_b32 s{sNH}, s{sWAVE}, 1")
        a(f"v_and_b32 v1, 15, v0\nv_lshrrev_b32 v2, 4, v0\nv_lshrrev_b32 v3, 1, v1\nv_xor_b32 v3, v3, v2\nv_lshlrev_b32 v3, 4, v3\nv_lshl_add_u32 v3, v1, 7, v3")
        a(f"s_lshl_b32 s{t}, s{sSH}, 13\nv_add_u32 v{vX0}, s{t}, v3\nv_xor_b32 v{vX1}, 64, v{vX0}")
        a(f"v_lshrrev_b32 v3, 2, v0\nv_and_b32 v4, 3, v0\nv_lshlrev_b32 v4, 3, v4")
        a(f"v_lshl_add_u32 v5, v3, 7, v4\nv_bfe_u32 v6, v0, 3, 2\ns_lshl_b32 s{t}, s{sNH}, 1\nv_xor_b32 v6, s{t}, v6\nv_lshl_add_u32 v6, v6, 5, v5")
        a(f"v_add_u32 v{vH0}, {WR}, v6\nv_xor_b32 v{vH1}, 32, v{vH0}")
        a(f"v_lshl_add_u32 v6, v3, 6, v4\nv_and_b32 v7, 1, v2\nv_xor_b32 v7, s{sNH}, v7\nv_lshl_add_u32 v6, v7, 5, v6\nv_add_u32 v{vQ}, {WR+12288}, v6")
        a(f"v_lshlrev_b32 v6, 4, v2\nv_add_u32 v{vGt}, {GATE}, v6\nv_lshlrev_b32 v{vL}, 4, v0\nv_lshlrev_b32 v{vBo}, 3, v2")
        a(f"v_lshrrev_b32 v6, 3, v0\nv_mul_u32_u24 v6, 1280, v6\nv_and_b32 v7, 7, v0\nv_lshl_add_u32 v{vRd}, v7, 4, v6")
        a(f"s_lshl_b32 s{t}, s{sWAVE}, 12\ns_add_u32 s{t}, s{t}, {SCR}\nv_add_u32 v{vRr}, s{t}, v5")
        a(f"s_lshl3_add_u32 s{sPIDX}, s{sRB}, s{sGRP}")
        a(f"s_mov_b32 s{cL2E}, 0x3fb8aa3b\ns_mov_b32 s{cL2E+1}, 0x3fb8aa3b")
        a(f"s_lshl2_add_u32 s{t}, s{sPIDX}, s{sWAVE}\ns_min_u32 s{t}, s{t}, 479")
        a(f"s_mul_i32 s{t+1}, s{t}, 6554\ns_lshr_b32 s{t+1}, s{t+1}, 16\ns_mul_i32 s{t+2}, s{t+1}, 10\ns_sub_u32 s{t+2}, s{t}, s{t+2}")
        a(f"s_mul_i32 s{t+6}, s{t+1}, 40960\ns_lshl_b32 s{t+3}, s{t+2}, 7\ns_add_u32 s{t+6}, s{t+6}, s{t+3}")
        a(f"s_mul_i32 s{t+7}, s{sGRP}, 384\ns_lshl_b32 s{t+3}, s{sNH}, 6\ns_add_u32 s{t+7}, s{t+7}, s{t+3}")
        a("s_waitcnt lgkmcnt(0)")
        self.stamp(0)
        self.srd(SRD_M, pB1, 3072)
        self.srd(SRD_W, pW2, 1536*640*2)
        for u in range(6):
            a(f"buffer_load_dwordx2 v[{BI+4*u+2}:{BI+4*u+3}], v{vBo}, s[{SRD_M}:{SRD_M+3}], s{t+7} offen offset:{128*(u >> 1) + 32*(u & 1)}")
        a(f"s_lshl_b32 s{t+3}, s{sWAVE}, 12")
        for j in range(4):
            a(f"s_add_u32 m0, s{t+3}, {SCR + 1024*j}\ns_nop 0\nbuffer_load_dwordx4 v{vRd}, s[{SRD_W}:{SRD_W+3}], s{t+6} offen lds")
            if j < 3: a(f"s_add_u32 s{t+6}, s{t+6}, 10240")
        self.srd(SRD_WS, pWS, WS_SIZE)
        if TOUCH == 2: self.touch(vLane, 240)
        dsts = [10, 11, 1, 3]
        for u in range(4):
            a(f"s_lshl2_add_u32 s{t+3}, s{t+2}, {u}\ns_mul_i32 s{t+4}, s{t+3}, 205\ns_lshr_b32 s{t+4}, s{t+4}, 10")
            a(f"s_mul_i32 s{t+5}, s{t+4}, 235\ns_add_u32 s{t+5}, s{t+5}, s{t+3}\ns_mul_i32 s{t+4}, s{t+1}, 5\ns_add_u32 s{t+5}, s{t+5}, s{t+4}")
            a(f"s_lshl_b32 s{t+5}, s{t+5}, 10\ns_add_u32 s{t+5}, s{t+5}, {WS_W2R}")
            a(f"s_cmp_lt_u32 s{sPIDX}, 120\ns_cselect_b32 s{dsts[u]}, s{t+5}, {BIG}")
        d2, sSrc2, sK2, sInc2 = 40, 0, 75, 70
        self.srd(SRD_M, pWO, 640*640*2)
        a(f"s_lshl1_add_u32 s{t}, s{sPIDX}, s{sWAVE}\ns_sub_u32 s{t}, s{t}, 2")
        a(f"s_cmp_lt_u32 s{t}, 160\ns_cselect_b32 s{sK2}, 1, 2\ns_cmp_lt_u32 s{t}, 200\ns_cselect_b32 s{sK2}, s{sK2}, 0\ns_cmp_lt_u32 s{sWAVE}, 2\ns_cselect_b32 s{sK2}, 0, s{sK2}")
        a(f"s_mul_i32 s{t+1}, s{t}, 6554\ns_lshr_b32 s{t+1}, s{t+1}, 16\ns_mul_i32 s{t+2}, s{t+1}, 10\ns_sub_u32 s{t+2}, s{t}, s{t+2}")
        a(f"s_lshr_b32 s{t+3}, s{t+1}, 1\ns_and_b32 s{t+4}, s{t+1}, 1\ns_sub_u32 s{t+5}, s{t+1}, 16\ns_lshl_b32 s{t+5}, s{t+5}, 1")
        a(f"s_cmp_eq_u32 s{sK2}, 2\ns_cselect_b32 s{t+3}, s{t+5}, s{t+3}\ns_cselect_b32 s{t+4}, 2, s{t+4}\ns_cselect_b32 s{sInc2}, {10240 + 64*1280}, 10240")
        a(f"s_mul_i32 s{sSrc2}, s{t+3}, {80*1280}\ns_mul_i32 s{t+5}, s{t+4}, {32*1280}\ns_add_u32 s{sSrc2}, s{sSrc2}, s{t+5}\ns_lshl_b32 s{t+5}, s{t+2}, 7\ns_add_u32 s{sSrc2}, s{sSrc2}, s{t+5}")
        a(f"s_mul_i32 s{t+3}, s{t+3}, 12800\ns_lshl_b32 s{t+5}, s{t+4}, 10\ns_cmp_eq_u32 s{sK2}, 2\ns_cselect_b32 s{t+5}, 10240, s{t+5}\ns_cselect_b32 s{t+6}, 512, 2048\ns_add_u32 s{t+3}, s{t+3}, s{t+5}\ns_add_u32 s{t+3}, s{t+3}, {WS_WOR}")
        for u in range(4):
            a(f"s_lshl2_add_u32 s{t+4}, s{t+2}, {u}\ns_mul_i32 s{t+5}, s{t+4}, 205\ns_lshr_b32 s{t+5}, s{t+5}, 10\ns_mul_i32 s{t+7}, s{t+5}, 5\ns_sub_u32 s{t+4}, s{t+4}, s{t+7}")
            a(f"s_mul_i32 s{t+5}, s{t+5}, 102400\ns_mul_i32 s{t+4}, s{t+4}, s{t+6}\ns_add_u32 s{t+5}, s{t+5}, s{t+4}\ns_add_u32 s{d2+u}, s{t+5}, s{t+3}")
        sRb64 = t + 11
        a(f"s_lshl1_add_u32 s{sRb64}, s{sRB}, s{sSH}")
        a(f"s_mul_i32 s{t}, s{sRb64}, 48\ns_mul_i32 s{t+1}, s{sGRP}, 6\ns_add_u32 s{t}, s{t}, s{t+1}\ns_add_u32 s{t}, s{t}, s{sNH}\ns_lshl_b32 s{t}, s{t}, 12")
        a(f"s_add_u32 s{sAct}, s{t}, {WS_ACT}\ns_add_u32 s{sAct+1}, s{t}, {WS_ACT + 8192}\ns_add_u32 s{sAct+2}, s{t}, {WS_ACT + 16384}")
        a(f"s_mul_i32 s{t}, s{sRb64}, 40\ns_lshl2_add_u32 s{t}, s{sHALF}, s{t}\ns_lshl1_add_u32 s{t}, s{sCBL}, s{t}\ns_add_u32 s{t}, s{t}, s{sNH}\ns_add_u32 s{t}, s{t}, 24\ns_lshl_b32 s{t}, s{t}, 11\ns_add_u32 s{sPq}, s{t}, {WS_PQ}")
        a(f"s_lshl3_add_u32 s{sF1}, s{sRb64}, s{sGRP}\ns_lshl_b32 s{sF1}, s{sF1}, 7")
        a(f"s_lshl1_add_u32 s{t}, s{sGRP}, s{sNH}\ns_cmp_eq_u32 s{t}, 5\ns_cselect_b32 s{sGs}, 1, 0")
        a(f"s_lshl_b32 s{sF2}, s{sRb64}, 7\ns_add_u32 s{sF2}, s{sF2}, {CNT_PQ}\ns_cmp_lt_u32 s{sCBL}, 6\ns_cselect_b32 s{t}, 1, s{sGs}\ns_cmp_eq_u32 s{t}, 1\ns_cselect_b32 s{sF2}, s{sF2}, {BIG}")
        a(f"s_cmp_ge_u32 s{sCBL}, 6\ns_cselect_b64 vcc, -1, 0")
        def reads(i):
            b = i & 1; so = (i % 3) * WSLOT
            xs = XR + ((i >> 1) % 3) * 16384
            r = [f"ds_read_b128 v[{XB+16*b+4*s}:{XB+16*b+4*s+3}], v{vX1 if i & 1 else vX0} offset:{xs + 2048*s}" for s in range(4)]
            for u in range(6):
                d = WB + 28*b + 4*u
                r.append(f"ds_read_b64_tr_b16 v[{d}:{d+1}], v{vH0 + (u & 1)} offset:{so + 4096*(u >> 1)}")
                r.append(f"ds_read_b64_tr_b16 v[{d+2}:{d+3}], v{vH0 + (u & 1)} offset:{so + 4096*(u >> 1) + 2048}")
            d = WB + 28*b + 24
            l1, l2 = a.newlabel("L_g"), a.newlabel("L_gj")
            r.append(f"s_cbranch_vccnz {l1}\nds_read_b64_tr_b16 v[{d}:{d+1}], v{vQ} offset:{so}\nds_read_b64_tr_b16 v[{d+2}:{d+3}], v{vQ} offset:{so + 1024}\ns_branch {l2}\n"
                     f"{l1}:\nds_read_b128 v[{d}:{d+3}], v{vGt} offset:{64*i}\n{l2}:")
            return r
        def mfmas(i):
            b = i & 1
            r = []
            for u in range(7):
                for s in range(4):
                    d = ACC + 16*u + 4*s
                    c = f"v[{d}:{d+3}]" if i > 0 else ("0" if u == 6 else f"v[{BI+4*u}:{BI+4*u+3}]")
                    r.append(f"v_mfma_f32_16x16x32_bf16 v[{d}:{d+3}], v[{WB+28*b+4*u}:{WB+28*b+4*u+3}], v[{XB+16*b+4*s}:{XB+16*b+4*s+3}], {c}")
            return r
        unpack = [f"s_waitcnt vmcnt({7 if TOUCH == 2 else 4})"]
        for u in range(6):
            p = BI + 4*u
            unpack += [f"v_lshlrev_b32 v{p}, 16, v{p+2}", f"v_and_b32 v{p+1}, 0xffff0000, v{p+2}", f"v_lshlrev_b32 v{p+2}, 16, v{p+3}", f"v_and_b32 v{p+3}, 0xffff0000, v{p+3}"]
        RP = BI
        rp_reads = []
        for u in range(4):
            rp_reads += [f"ds_read_b64_tr_b16 v[{RP+4*u}:{RP+4*u+1}], v{vRr} offset:{32*u}", f"ds_read_b64_tr_b16 v[{RP+4*u+2}:{RP+4*u+3}], v{vRr} offset:{32*u + 2048}"]
        rp_st = [f"buffer_store_dwordx4 v[{RP+4*u}:{RP+4*u+3}], v{vL}, {WSR}, s{dsts[u]} offen sc1" for u in range(4)]
        z = [f"s_lshl_b32 s{t}, s{sPIDX}, 9", f"s_mul_i32 s{t+1}, s{sWAVE}, {WS_KVP}", f"s_add_u32 s{t}, s{t}, s{t+1}", f"s_cmp_lt_u32 s{sWAVE}, 2", f"s_cselect_b32 s{t}, s{t}, {BIG}"] + \
            [f"v_mov_b32 v{RP+16+k}, 0" for k in range(4)] + \
            [f"s_mov_b32 exec_hi, 0\nbuffer_store_dwordx4 v[{RP+16}:{RP+19}], v{vL}, {WSR}, s{t} offen sc1\ns_mov_b32 exec_hi, -1"]
        k1, k2, k3, k4 = [a.newlabel("L_r2") for _ in range(4)]
        dma2 = f"s_cmp_eq_u32 s{sK2}, 0\ns_cbranch_scc1 {k1}\ns_lshl_b32 s{t+3}, s{sWAVE}, 12\n"
        for j in range(4):
            dma2 += f"s_add_u32 m0, s{t+3}, {SCR + 1024*j}\ns_nop 0\nbuffer_load_dwordx4 v{vRd}, s[{SRD_M}:{SRD_M+3}], s{sSrc2} offen lds\n"
            if j < 3: dma2 += f"s_add_u32 s{sSrc2}, s{sSrc2}, " + (f"s{sInc2}" if j == 1 else "10240") + "\n"
        dma2 += k1 + ":"
        st2 = f"s_cmp_eq_u32 s{sK2}, 0\ns_cbranch_scc1 {k2}\ns_cmp_eq_u32 s{sK2}, 2\ns_cbranch_scc1 {k3}\n"
        st2 += "".join(f"buffer_store_dwordx4 v[{RP+4*u}:{RP+4*u+3}], v{vL}, {WSR}, s{d2+u} offen sc1\n" for u in range(4))
        st2 += f"s_branch {k2}\n{k3}:\nv_lshrrev_b32 v{vT}, 1, v{vL}\n"
        for u in range(4):
            st2 += f"buffer_store_dwordx2 v[{RP+4*u}:{RP+4*u+1}], v{vT}, {WSR}, s{d2+u} offen sc1\ns_add_u32 s{d2+u}, s{d2+u}, 12800\n"
            st2 += f"buffer_store_dwordx2 v[{RP+4*u+2}:{RP+4*u+3}], v{vT}, {WSR}, s{d2+u} offen sc1\n"
        st2 += k2 + ":"
        def arr(off):
            sk = a.newlabel("L_s1a")
            return [f"s_cmp_lg_u32 s{sWAVE}, 0", f"s_cbranch_scc1 {sk}",
                    f"s_mov_b32 s{SRD_D}, s{pDBG}", f"s_mov_b32 s{SRD_D+1}, s{pDBG+1}", f"s_mov_b32 s{SRD_D+2}, 256", f"s_mov_b32 s{SRD_D+3}, 0x20000",
                    f"v_mov_b32 v{vT}, 1", f"s_mov_b64 exec, 1\nbuffer_atomic_add v{vT}, v{vL}, s[{SRD_D}:{SRD_D+3}], 0 offen offset:{off} sc1\ns_mov_b64 exec, -1", sk + ":"]
        extra = {0: ([], unpack, []), 3: (["s_waitcnt vmcnt(0)"], rp_reads, []), 4: ([], [dma2] + rp_st, []), 5: ([], z, []),
                 7: ([], [], ["s_waitcnt vmcnt(0)"]), 8: (arr(0), rp_reads, []), 9: ([], [st2], []), 13: ([], [], ["s_waitcnt vmcnt(0)"]), 14: (arr(128), [], [])}
        self.main_loop(reads, mfmas, extra, 20, [vH0, vH1, vQ])
        self.consts("mish")
        TM = XB
        for L in range(3):
            for s in range(4):
                e, o = ACC + 32*L + 4*s, ACC + 32*L + 16 + 4*s
                for l in self.mish_quad(e, e, TM + 8*(s & 1)): a(l)
                for l in self.mish_quad(o, e + 2, TM + 4 + 8*(s & 1)): a(l)
                a(f"buffer_store_dwordx4 v[{e}:{e+3}], v{vL}, {WSR}, s{sAct+L} offen offset:{1024*s} sc1")
        labG, labE = a.newlabel("L_epG"), a.newlabel("L_epE")
        a(f"s_cbranch_vccnz {labG}")
        self.consts("phi")
        for sp in range(2):
            e = ACC + 96 + 8*sp
            for l in self.phi_quad(e, e, TM): a(l)
            for l in self.phi_quad(e + 4, e + 2, TM + 4): a(l)
            a(f"buffer_store_dwordx4 v[{e}:{e+3}], v{vL}, {WSR}, s{sPq} offen offset:{1024*sp} sc1")
        a(f"s_branch {labE}")
        a.label(labG)
        a(f"s_cmp_eq_u32 s{sGs}, 0\ns_cbranch_scc1 {labE}")
        G = ACC + 96
        a(f"v_cmp_le_u32 vcc, 16, v{vLane}\nv_cmp_le_u32 s[{t+2}:{t+3}], 32, v{vLane}\nv_cmp_le_u32 s[{t+4}:{t+5}], 48, v{vLane}\ns_nop 0")
        a(f"v_cndmask_b32 v{G}, v{G}, v{G+4}, vcc\nv_cndmask_b32 v{G}, v{G}, v{G+8}, s[{t+2}:{t+3}]\nv_cndmask_b32 v{G}, v{G}, v{G+12}, s[{t+4}:{t+5}]")
        a(f"v_mul_f32 v{G}, s{cL2E}, v{G}\nv_exp_f32 v{G}, -v{G}\ns_nop 0\nv_add_f32 v{G}, 1.0, v{G}\nv_rcp_f32 v{G}, v{G}")
        a(f"s_lshl_b32 s{t}, s{sRb64}, 8\ns_add_u32 s{t}, s{t}, {WS_G}\nv_lshlrev_b32 v{G+1}, 2, v{vLane}")
        a(f"buffer_store_dword v{G}, v{G+1}, {WSR}, s{t} offen sc1")
        a.label(labE)
        a(f"v_mov_b32 v0, v{vLane}")
        self.stamp(3)
        self.finish1([sF1, sF2])

    def compute_KV(self):
        a = self.a
        t = T0
        ACC, XB, WB = 0, 112, 128
        vX0, vX1, vK, vQ0, vL = 240, 241, 242, 243, 247
        vLane = 253
        sPq, sF2, sRec = 72, 73, 74
        a(f"v_mov_b32 v{vLane}, v0")
        a(f"v_and_b32 v1, 15, v0\nv_lshrrev_b32 v2, 4, v0\nv_lshrrev_b32 v3, 1, v1\nv_xor_b32 v3, v3, v2\nv_lshlrev_b32 v3, 4, v3\nv_lshl_add_u32 v3, v1, 7, v3")
        a(f"s_lshl_b32 s{t}, s{sWAVE}, 12\nv_add_u32 v{vX0}, s{t}, v3\nv_xor_b32 v{vX1}, 64, v{vX0}")
        a(f"v_lshrrev_b32 v3, 2, v0\nv_and_b32 v4, 3, v0\nv_lshlrev_b32 v4, 3, v4")
        a(f"v_mul_u32_u24 v5, 160, v3\nv_add_u32 v5, v5, v4\nv_add_u32 v{vK}, {WR}, v5")
        a(f"v_lshl_add_u32 v5, v3, 7, v4\nv_bfe_u32 v6, v0, 3, 2\nv_lshl_add_u32 v5, v6, 5, v5\nv_add_u32 v{vQ0}, {WR+10240}, v5")
        for u in range(1, 4): a(f"v_xor_b32 v{vQ0+u}, {32*u}, v{vQ0}")
        a(f"v_lshlrev_b32 v{vL}, 4, v0")
        a(f"s_lshr_b32 s{t}, s{sWAVE}, 1\ns_lshl1_add_u32 s{t+1}, s{sRB}, s{t}")
        a(f"s_lshl_b32 s{sF2}, s{t+1}, 7\ns_add_u32 s{sF2}, s{sF2}, {CNT_PQ}")
        a(f"s_mul_i32 s{t+1}, s{t+1}, 40\ns_lshl2_add_u32 s{t+1}, s{sGRP}, s{t+1}\ns_and_b32 s{t}, s{sWAVE}, 1\ns_lshl1_add_u32 s{t+1}, s{t+1}, s{t}\ns_lshl_b32 s{t+1}, s{t+1}, 10\ns_add_u32 s{sPq}, s{t+1}, {WS_PQ}")
        a(f"s_lshl2_add_u32 s{t}, s{sGRP}, s{sWAVE}\ns_lshl_b32 s{sF1}, s{t}, 7\ns_add_u32 s{sF1}, s{sF1}, {CNT_KV}")
        a(f"s_mul_i32 s{t}, s{t}, 1792\ns_add_u32 s{sRec}, s{t}, {WS_KVP}")
        a(f"s_mov_b32 s{cL2E}, 0x3fb8aa3b\ns_mov_b32 s{cL2E+1}, 0x3fb8aa3b")
        self.consts("phi")
        a("s_waitcnt lgkmcnt(0)")
        self.stamp(0)
        self.srd(SRD_WS, pWS, WS_SIZE)
        if TOUCH: self.touch(vLane, 248)
        def reads(i):
            b = i & 1; so = (i % 3) * WSLOT
            xs = XR + ((i >> 1) % 3) * 16384
            r = [f"ds_read_b128 v[{XB+8*b+4*s}:{XB+8*b+4*s+3}], v{vX1 if i & 1 else vX0} offset:{xs + 2048*s}" for s in range(2)]
            for u in range(14):
                d = WB + 56*b + 4*u
                if u < 10: base, off, d2 = vK, 5120*(u // 5) + 32*(u % 5), 2560
                else: base, off, d2 = vQ0 + u - 10, 0, 2048
                r.append(f"ds_read_b64_tr_b16 v[{d}:{d+1}], v{base} offset:{so + off}")
                r.append(f"ds_read_b64_tr_b16 v[{d+2}:{d+3}], v{base} offset:{so + off + d2}")
            return r
        def mfmas(i):
            b = i & 1
            r = []
            order = list(range(14)) if i < 19 else [5, 6, 7, 8, 9, 0, 1, 2, 3, 4, 10, 11, 12, 13]
            for u in order:
                for s in range(2):
                    d = ACC + 8*u + 4*s
                    c = f"v[{d}:{d+3}]" if i > 0 else "0"
                    w, x = f"v[{WB+56*b+4*u}:{WB+56*b+4*u+3}]", f"v[{XB+8*b+4*s}:{XB+8*b+4*s+3}]"
                    r.append(f"v_mfma_f32_16x16x32_bf16 v[{d}:{d+3}], {x if u < 10 else w}, {w if u < 10 else x}, {c}")
            return r
        self.main_loop(reads, mfmas, {}, 24, [vK, vQ0, vQ0+1, vQ0+2, vQ0+3])
        TM = XB
        vEx = vX0
        a(f"s_mul_i32 s{t}, s{sWAVE}, 10240\nv_add_u32 v{vEx}, s{t}, v{vL}")
        for u in range(5, 10):
            e = ACC + 8*u
            a(f"v_cvt_pk_bf16_f32 v{e}, v{e}, v{e+1}\nv_cvt_pk_bf16_f32 v{e+1}, v{e+2}, v{e+3}\nv_cvt_pk_bf16_f32 v{e+2}, v{e+4}, v{e+5}\nv_cvt_pk_bf16_f32 v{e+3}, v{e+6}, v{e+7}")
            a(f"ds_write_b128 v{vEx}, v[{e}:{e+3}] offset:{XR + 1024*u}")
        for u in range(5):
            e = ACC + 8*u
            for l in self.phi_quad(e, e, TM): a(l)
            for l in self.phi_quad(e + 4, e + 2, TM + 4): a(l)
            a(f"ds_write_b128 v{vEx}, v[{e}:{e+3}] offset:{XR + 1024*u}")
        a(f"s_lshl_b32 s{t}, s{sWAVE}, 10\nv_add_u32 v{vEx}, s{t}, v{vL}")
        ONE = WB + 64
        for k in range(4): a(f"v_mov_b32 v{ONE+k}, 0x3f803f80")
        a("s_waitcnt lgkmcnt(0)\ns_barrier")
        FR = WB
        for g in range(4):
            for j, off in enumerate((0, 1024, 5120, 6144)):
                a(f"ds_read_b128 v[{FR+16*g+4*j}:{FR+16*g+4*j+3}], v{vEx} offset:{XR + 10240*g + off}")
        AD = WB + 72
        dc, BG, ev, R = AD, AD + 2, AD + 3, AD + 8
        ad = [f"v_lshrrev_b32 v{dc}, 4, v{vLane}", f"v_and_b32 v{ev}, 15, v{vLane}", f"v_mov_b32 v{BG}, 0x10000", f"v_cmp_eq_u32 vcc, 0, v{ev}",
              f"v_mov_b32 v{R}, 320", f"v_subrev_u32 v{dc}, s{sWAVE}, v{dc}", f"v_cndmask_b32 v{ev+2}, v{BG}, v{R}, vcc", f"v_add_u32 v{dc+1}, 4, v{dc}",
              f"s_lshl_b32 s{t}, s{sWAVE}, 2", f"v_subrev_u32 v{ev}, s{t}, v{ev}", f"v_add_u32 v{ev+1}, 16, v{ev}",
              f"s_lshl_b32 s{t+4}, s{sWAVE}, 11", f"s_add_u32 s{t+4}, s{t+4}, {STG}"]
        for k in range(2):
            ad += [f"v_cmp_gt_u32 vcc, 5, v{dc+k}", f"v_cmp_gt_u32 s[{t+2}:{t+3}], 20, v{ev+k}", f"v_mul_u32_u24 v{dc+k}, 336, v{dc+k}", f"v_lshlrev_b32 v{ev+k}, 4, v{ev+k}",
                   f"v_cndmask_b32 v{dc+k}, v{BG}, v{dc+k}, vcc", f"v_cndmask_b32 v{ev+k}, v{BG}, v{ev+k}, s[{t+2}:{t+3}]"]
        for k in range(2):
            ad += [f"v_add_u32 v{R+3*k+b}, v{dc+k}, v{ev+b}" for b in range(3)]
            ad += [f"v_min_u32 v{R+3*k+b}, 1680, v{R+3*k+b}" for b in range(3)]
            ad += [f"v_add_u32 v{R+3*k+b}, s{t+4}, v{R+3*k+b}" for b in range(3)]
        ad += [f"v_lshlrev_b32 v{dc}, 2, v{vLane}", f"v_add_u32 v{vEx}, s{t+4}, v{dc}"]
        for l in ad[:20]: a(l)
        D = ACC
        mm = []
        for g in range(4):
            for k in range(2):
                for b in range(3):
                    d = D + 12*k + 4*b
                    B = f"v[{FR+16*g+8+4*b}:{FR+16*g+8+4*b+3}]" if b < 2 else f"v[{ONE}:{ONE+3}]"
                    mm.append(f"v_mfma_f32_16x16x32_bf16 v[{d}:{d+3}], v[{FR+16*g+4*k}:{FR+16*g+4*k+3}], {B}, {'0' if g == 0 else f'v[{d}:{d+3}]'}")
        a("s_waitcnt lgkmcnt(0)")
        for l in interleave(mm, ad[20:], 0, 16): a(l)
        def qmath(u):
            e = ACC + 8*u
            return self.phi_quad(e, e, TM) + self.phi_quad(e + 4, e + 2, TM + 4)
        q10 = qmath(10)
        for l in q10[:8]: a(l)
        for j in range(6): a(f"ds_write_b128 v{R+j}, v[{D+4*j}:{D+4*j+3}]")
        for l in q10[8:20]: a(l)
        a("s_waitcnt lgkmcnt(0)")
        for j in range(7): a(f"ds_read_b32 v{j}, v{vEx} offset:{256*j}")
        for l in q10[20:]: a(l)
        a("s_waitcnt lgkmcnt(0)")
        for j in range(7):
            if j == 6: a("s_mov_b32 exec_hi, 15")
            a(f"buffer_atomic_add_f32 v{j}, v{dc}, {WSR}, s{sRec} offen offset:{256*j} sc1")
        a("s_mov_b32 exec_hi, -1")
        a(f"s_add_u32 s{t}, s{sPq}, 4096")
        def qst(u):
            e = ACC + 8*(10 + u)
            a(f"buffer_store_dwordx4 v[{e}:{e+3}], v{vL}, {WSR}, s{sPq if u < 2 else t} offen offset:{2048*(u & 1)} sc1")
        qst(0)
        for u in (1, 2, 3):
            for l in qmath(10 + u): a(l)
            qst(u)
        a(f"v_mov_b32 v0, v{vLane}")
        self.stamp(3)
        self.finish1([sF1, sF2], strict=True)

    def setup2(self):
        a = self.a
        t = T0
        if MAP2 == "x2":
            a(f"s_bfe_u32 s{t+2}, s{sWG}, 0x20001\ns_bfe_u32 s{t+3}, s{sWG}, 0x30003\ns_lshl3_add_u32 s{sR64}, s{t+2}, s{t+3}")
            a(f"s_and_b32 s{t+2}, s{sWG}, 1\ns_lshr_b32 s{t+3}, s{sWG}, 6\ns_lshl2_add_u32 s{sC}, s{t+2}, s{t+3}")
        else:
            a(f"s_and_b32 s{t+2}, s{sWG}, 7\ns_bfe_u32 s{t+3}, s{sWG}, 0x20003\ns_lshl2_add_u32 s{sR64}, s{t+2}, s{t+3}\ns_lshr_b32 s{sC}, s{sWG}, 5")
        a(f"v_lshlrev_b32 v{vL16}, 4, v0\nv_add_u32 v{vL16b}, 4096, v{vL16}")
        if ROT2 == "none":
            a(f"s_mov_b32 s{t}, 0")
        elif ROT2 == "two":
            a(f"s_lshr_b32 s{t}, s{sWG}, 3\ns_lshr_b32 s{t+1}, s{sWG}, {6 if MAP2 == 'x2' else 5}\ns_xor_b32 s{t}, s{t}, s{t+1}\ns_and_b32 s{t}, s{t}, 1\ns_mul_i32 s{t}, s{t}, 3")
        elif MAP2 == "x2":
            a(f"s_and_b32 s{t}, s{sC}, 3\ns_mul_i32 s{t}, s{t}, 3\ns_lshr_b32 s{t}, s{t}, 1")
        else:
            a(f"s_mul_i32 s{t}, s{sC}, 3\ns_lshr_b32 s{t}, s{t}, 2")
        a(f"s_mul_i32 s{t+1}, s{sWAVE}, 6")
        a(f"s_mul_i32 s{t+2}, s{sC}, {48*5120}\ns_add_u32 s{t+2}, s{t+2}, {WS_W2R}")
        a(f"s_mul_i32 s{t+3}, s{sR64}, {48*4096}\ns_add_u32 s{t+3}, s{t+3}, {WS_ACT}")
        for i in range(6):
            a(f"s_add_u32 s{t+4}, s{t+1}, s{t}\ns_mul_i32 s{sB0+i}, s{t+4}, 5120\ns_add_u32 s{sB0+i}, s{sB0+i}, s{t+2}")
            a(f"s_lshl_b32 s{sA0+i}, s{t+4}, 12\ns_add_u32 s{sA0+i}, s{sA0+i}, s{t+3}")
            if i < 5: a(f"s_add_u32 s{t}, s{t}, 1\ns_cmp_eq_u32 s{t}, 6\ns_cselect_b32 s{t}, 0, s{t}")
        a(f"s_lshl3_add_u32 s{sFa}, s{sR64}, s{sWAVE}\ns_lshl_b32 s{sFa}, s{sFa}, 7\ns_lshl_b32 s{sFq}, s{sR64}, 7\ns_add_u32 s{sFq}, s{sFq}, {CNT_PQ}")
        a(f"s_mul_i32 s{sPQb}, s{sR64}, 40\ns_mul_i32 s{t}, s{sWAVE}, 5\ns_add_u32 s{sPQb}, s{sPQb}, s{t}\ns_lshl_b32 s{sPQb}, s{sPQb}, 11\ns_add_u32 s{sPQb}, s{sPQb}, {WS_PQ}")
        a(f"s_lshl3_add_u32 s{sMb}, s{sC}, s{sWAVE}\ns_mul_i32 s{sMb}, s{sMb}, 12800\ns_add_u32 s{sMb}, s{sMb}, {WS_WOR}")
        a(f"s_mul_i32 s{sKv}, s{sWAVE}, 7168\ns_add_u32 s{sKv}, s{sKv}, {WS_KVP}\ns_lshl_b32 s{sFk}, s{sWAVE}, 9\ns_add_u32 s{sFk}, s{sFk}, {CNT_KV}")

    def preload_b(self, n0, n1):
        for n in range(n0, n1):
            i, jn = divmod(n, 5)
            d = BS + 20*i + 4*jn
            self.a(f"buffer_load_dwordx4 v[{d}:{d+3}], v{vL16 if jn < 4 else vL16b}, {WSR}, s{sB0+i} offen offset:{1024*jn if jn < 4 else 0} sc1")

    def stage_b(self):
        a = self.a
        t = T0
        a(f"s_mul_i32 s{t}, s{sT}, 20480\ns_add_u32 s{t}, s{t}, {BL}")
        for i in range(2, 6):
            a(f"s_sub_u32 s{t+1}, s{sB0+i}, 122880")
            for jn in range(5):
                if jn in (0, 4):
                    a(f"s_add_u32 m0, s{t}, {5120*(i-2) + 1024*jn}")
                    a(f"s_add_u32 s{t+1}, s{t+1}, 4096" if jn else "s_nop 0")
                a(f"buffer_load_dwordx4 v{vL16}, {WSR}, s{t+1} offen offset:{1024*(jn % 4)} sc1 lds")
        self.srd(SRD_D, pDBG, 256)
        sk = a.newlabel("L_s2")
        a(f"s_cmp_lg_u32 s{sWAVE}, 4\ns_cbranch_scc1 {sk}\nv_mov_b32 v8, 128\ns_mov_b32 s{t}, 128")
        self.poll("0", f"s{t}", 8, 9, SRD_D)
        a.label(sk)
        a("s_waitcnt vmcnt(0)")

    def gemm2(self):
        a = self.a
        t = T0
        seq = []
        def ld(dst, n, v, so, off, tag):
            a(f"buffer_load_dword{ {1: '', 2: 'x2', 4: 'x4'}[n] } {vr(dst, n)}, v{v}, {WSR}, s{so} offen offset:{off} sc1"); seq.append(tag)
        def wait(tag):
            last = max(n for n, x in enumerate(seq) if x == tag)
            a(f"s_waitcnt vmcnt({len(seq) - 1 - last})")
        def act(i):
            for st in range(4): ld(AB + 16*(i % 3) + 4*st, 4, vL16, sA0 + i, 1024*st, f"act{i}")
        def check(soff, target):
            ok = a.newlabel("L_ok")
            a(f"v_cmp_le_u32 vcc, {target}, v{vP+1}\ns_nop 1\ns_cmp_eq_u64 vcc, -1\ns_cbranch_scc1 {ok}")
            self.poll(f"s{soff}", target, vP, vP + 1)
            a.label(ok)
        LN = 255
        a(f"v_lshrrev_b32 v{LN}, 4, v{vL16}\nv_mov_b32 v{vP}, 0")
        a("s_barrier")
        self.stamp(4)
        self.pickup()
        if GSYNC:
            sk = a.newlabel("L_gs")
            a(f"s_waitcnt vmcnt(0)\ns_barrier\ns_cmp_lg_u32 s{sWAVE}, 4\ns_cbranch_scc1 {sk}")
            self.srd(SRD_D, pDBG, 256)
            a(f"v_mov_b32 v1, 1\nv_mov_b32 v2, 192\ns_mov_b64 exec, 1\nbuffer_atomic_add v1, v2, s[{SRD_D}:{SRD_D+3}], 0 offen sc1\ns_mov_b64 exec, -1\ns_sleep 127\ns_sleep 127\ns_mov_b32 s{t}, 256")
            global SLEEP
            old = SLEEP; SLEEP = 64
            self.poll("0", f"s{t}", 2, 3, SRD_D)
            SLEEP = old
            a.label(sk)
            a("s_barrier")
        self.poll(f"s{sFa}", 2, vP, vP + 1)
        self.stamp(6)
        act(0)
        ld(vP + 1, 1, vP, sFq, 0, "fq")
        act(1); act(2)
        def pq(sp):
            for tt in range(5):
                ld(PQR + 20*sp + 4*tt, 4, vL16, (sPQb, t, t + 1)[tt >> 1], 2048*(tt & 1) + 1024*sp, f"pq{sp}")
        chunks = [(0, 0), (0, 1), (1, 0), (1, 1), (1, 2), (2, 1), (2, 2), (2, 3), (3, 2), (3, 3), (4, 3), (3, 4), (4, 4)] + [("z", tt) for tt in range(5)]
        slot = dict(zip(chunks, [0, 1, 2, 3, 4, 7, 8, 9, 10, 11, 13, 14, 15, 16, 17, 18, 19, 20]))
        X = 140
        ad = [f"v_and_b32 v{X}, 15, v{LN}", f"v_lshrrev_b32 v{X+1}, 4, v{LN}", f"s_add_u32 s{t+2}, s{sLB}, 13312", f"v_mul_u32_u24 v{X+3}, 336, v{X+1}", f"v_add_u32 v{X+3}, s{t+2}, v{X+3}",
              f"s_add_u32 s{t+2}, s{t+2}, 7056", f"v_mov_b32 v{X+13}, s{t+2}"] + [f"v_subrev_u32 v{X+13+k}, {1344*k}, v{X+13}" for k in range(1, 5)]
        for te in (0, 1, 2, 3, 4, "z"):
            if te == "z":
                ad += [f"v_and_b32 v{X+4}, 3, v{LN}", f"v_mul_u32_u24 v{X+5}, 112, v{X+4}", f"v_add_u32 v{X+6}, 320, v{X+3}", f"v_add_u32 v{X+5}, v{X+5}, v{X+6}"]
            else:
                ad += [f"v_add_u32 v{X+6}, {16*te}, v{X}", f"v_mul_u32_u24 v{X+4}, 3277, v{X+6}", f"v_lshrrev_b32 v{X+4}, 16, v{X+4}",
                       f"v_lshl_add_u32 v{X+6}, v{X+6}, 4, v{X+3}", f"v_mad_i32_i24 v{X+5}, v{X+4}, s{sN208}, v{X+6}"]
            ad += [f"v_mad_i32_i24 v{X+4}, v{X+4}, -5, v{X+1}"]
            mine = [(j, c) for j, c in enumerate(chunks) if c[0] == te]
            for n, (j, c) in enumerate(mine):
                ad += [f"v_add_u32 v{X+8+n}, {4*c[1]}, v{X+4}"]
            for n, (j, c) in enumerate(mine):
                ad += [f"v_cmp_gt_u32 s[{t+4+2*n}:{t+5+2*n}], 5, v{X+8+n}"]
            ad += ["s_nop 0"]
            for n, (j, c) in enumerate(mine):
                ad += [f"v_cndmask_b32 v{KA+j}, v{X+13+c[1]}, v{X+5}, s[{t+4+2*n}:{t+5+2*n}]"]
        na = (len(ad) + 1) // 2
        def dma(so, n, lds, tag):
            for k in range(n):
                if k % 4 == 0:
                    a(f"s_add_u32 m0, s{sLB}, {lds + 1024*k}")
                    a(f"s_add_u32 s{so}, s{so}, 4096" if k else "s_nop 0")
                a(f"buffer_load_dwordx4 v{vL16}, {WSR}, s{so} offen offset:{1024*(k % 4)} sc1 lds"); seq.append(tag)
        a(f"s_xor_b32 s{sLB}, s{sWAVE}, 4\ns_mul_i32 s{sLB}, s{sLB}, 20480\ns_mov_b32 s{sN208}, -208")
        for i in range(6):
            wait(f"act{i}")
            mm = []
            for jn in range(5):
                for st in range(4):
                    d = 20*st + 4*jn
                    mm.append(f"v_mfma_f32_16x16x32_bf16 v[{d}:{d+3}], v[{BS+20*i+4*jn}:{BS+20*i+4*jn+3}], v[{AB+16*(i%3)+4*st}:{AB+16*(i%3)+4*st+3}], {'0' if i == 0 else f'v[{d}:{d+3}]'}")
            for l in interleave(mm, ad[na*(i-4):na*(i-3)] if i >= 4 else []): a(l)
            if i < 3: act(i + 3)
            if i == 1: a("s_waitcnt lgkmcnt(0)")
            if i == 2:
                check(sFq, 25)
                a(f"s_add_u32 s{t}, s{sPQb}, 4096\ns_add_u32 s{t+1}, s{sPQb}, 8192")
                a(f"v_and_b32 v{vP+1}, 15, v{LN}\nv_lshlrev_b32 v{vP+1}, 2, v{vP+1}\ns_lshl_b32 s{t+2}, s{sR64}, 8\ns_add_u32 s{t+2}, s{t+2}, {WS_G}")
                for st in range(4): ld(vG + st, 1, vP + 1, t + 2, 64*st, "g")
                a(f"v_and_b32 v{vP}, 3, v{LN}\nv_lshlrev_b32 v{vP}, 7, v{vP}")
                ld(vP + 1, 1, vP, sFk, 0, "fk")
                pq(0)
                if WOAT == 2: dma(sMb, 13, 0, "wo")
            if i == 3 and WOAT == 3: dma(sMb, 13, 0, "wo")
            if i == KVAT:
                wait("fk")
                check(sFk, 16)
                dma(sKv, 7, 13312, "kv")
                pq(1)
        self.stamp(7)
        OM = 170
        for st in range(4): a(f"v_sub_f32 v{OM+st}, 1.0, v{vG+st}")
        for st in range(4):
            sel = "op_sel_hi:[1,0]" if st % 2 == 0 else "op_sel:[0,1]"
            for k in range(10):
                d = 20*st + 2*k
                a(f"v_pk_mul_f32 v[{d}:{d+1}], v[{d}:{d+1}], v[{OM + (st & 2)}:{OM + (st & 2) + 1}] {sel}")
        vRW = vP + 1
        a(f"v_and_b32 v{OM}, 15, v{LN}\nv_mul_u32_u24 v{OM}, 160, v{OM}\nv_bfe_u32 v{OM+1}, v{LN}, 5, 1\nv_lshl_add_u32 v{OM}, v{OM+1}, 4, v{OM}")
        a(f"v_bfe_u32 v{OM+1}, v{LN}, 4, 1\nv_mul_u32_u24 v{OM+1}, 10240, v{OM+1}\nv_add3_u32 v{vRW}, v{OM}, v{OM+1}, s{sLB}")
        def swaps(R):
            return [f"v_swap_b32 v{R+8*p+2+k}, v{R+8*p+4+k}" for p in range(2) for k in range(2)]
        a(f"s_mov_b32 s{cE}, 0x358637bd")
        mq = [t + 4, t + 6, t + 8]
        a(f"s_mov_b32 s{mq[0]}, 0xffff\ns_mov_b32 s{mq[0]+1}, 0\ns_mov_b32 s{mq[1]}, -1\ns_mov_b32 s{mq[1]+1}, 0\ns_mov_b32 s{mq[2]}, -1\ns_mov_b32 s{mq[2]+1}, 0xffff")
        a(f"v_add_u32 v{OM}, s{sLB}, v{vL16}\nv_lshlrev_b32 v{OM+1}, 3, v{LN}\nv_add_u32 v{OM+1}, s{sLB}, v{OM+1}")
        wait("kv")
        self.stamp(8)
        for j, c in enumerate(chunks):
            a(f"ds_read_b128 v[{KD+4*j}:{KD+4*j+3}], v{KA+j} offset:{1344*c[1]}")
        for l in swaps(PQR): a(l)
        a("s_waitcnt lgkmcnt(0)")
        for f in range(10): a(f"ds_read_b128 v[{MR+4*f}:{MR+4*f+3}], v{OM} offset:{1024*f}")
        for jn in range(5): a(f"ds_read_b64 v[{MR+40+2*jn}:{MR+41+2*jn}], v{OM+1} offset:{10240 + 512*jn}")
        for j, c in enumerate(chunks):
            d, r = KD + 2*slot[c], KD + 4*j
            a(f"v_cvt_pk_bf16_f32 v{d}, v{r}, v{r+1}\nv_cvt_pk_bf16_f32 v{d+1}, v{r+2}, v{r+3}")
        for z in (5, 6, 12): a(f"v_mov_b32 v{KD+2*z}, 0\nv_mov_b32 v{KD+2*z+1}, 0")
        O, DN, SC = 218, 238, 242
        def fq(st, tt):
            R = PQR + 20*(st >> 1)
            return R + 8*(tt >> 1) + 4*(st & 1) + 2*(tt & 1) if tt < 4 else R + 16 + 2*(st & 1)
        K32 = lambda d, A, B, c: f"v_mfma_f32_16x16x32_bf16 v[{d}:{d+3}], v[{A}:{A+3}], v[{B}:{B+3}], {c}"
        K16 = lambda d, A, B: f"v_mfma_f32_16x16x16_bf16 v[{d}:{d+3}], v[{A}:{A+1}], v[{B}:{B+1}], v[{d}:{d+3}]"
        acc = lambda d: f"v[{d}:{d+3}]"
        S = lambda k: KD + 2*k
        def Xb(st):
            p0, p1, ps = fq(st, 0), fq(st, 2), fq(st, 4)
            return [K32(DN, S(16), p0, "0"), K32(O+12, S(10), p1, "0"), K32(O+16, S(12), p1, "0"), K32(DN, S(18), p1, acc(DN)),
                    K32(O, S(0), p0, "0"), K32(O+4, S(2), p0, "0"), K32(O+8, S(6), p0, "0"), K32(O+4, S(4), p1, acc(O+4)), K32(O+8, S(8), p1, acc(O+8)),
                    "s_nop 0", K16(DN, S(20), ps), K16(O+12, S(14), ps), K16(O+16, S(15), ps)]
        def Vb(st):
            r = [f"v_add_f32 v{DN+k}, s{cE}, v{DN+k}" for k in range(4)] + [f"v_rcp_f32 v{DN+k}, v{DN+k}" for k in range(4)]
            r += [f"v_mul_f32 v{DN+k}, v{vG+st}, v{DN+k}" for k in range(4)]
            r += [f"v_cndmask_b32 v{SC+k}, v{DN+k+1}, v{DN+k}, s[{mq[k]}:{mq[k]+1}]" for k in range(3)]
            for tt in range(5):
                sc = (DN, SC, SC + 1, SC + 2, DN + 3)[tt]; o = O + 4*tt
                r += [f"v_mul_f32 v{o+k}, v{sc}, v{o+k}" for k in range(4)]
                r += [f"v_cvt_pk_bf16_f32 v{fq(st,tt)}, v{o}, v{o+1}", f"v_cvt_pk_bf16_f32 v{fq(st,tt)+1}, v{o+2}, v{o+3}"]
            return r
        def Yb(st):
            r = []
            for p in range(2):
                r += [K32(20*st + 4*jn, MR + 4*(2*jn + p), fq(st, 2*p), acc(20*st + 4*jn)) for jn in range(5)]
            r += ["s_nop 1"] + [K16(20*st + 4*jn, MR + 40 + 2*jn, fq(st, 4)) for jn in range(5)]
            return r
        def wrl(st):
            return [f"ds_write_b128 v{vRW}, v[{20*st+4*jn}:{20*st+4*jn+3}] offset:{2560*st + 32*jn}" for jn in range(5)]
        def wr(st):
            for l in wrl(st): a(l)
        a("s_nop 1")
        for l in Xb(0): a(l)
        a("s_nop 5")
        for l in Vb(0): a(l)
        for l in Xb(1): a(l)
        a("s_waitcnt lgkmcnt(0)")
        y = Yb(0)
        for l in y[:4] + interleave(y[4:], Vb(1)): a(l)
        wait("pq1")
        for l in swaps(PQR + 20): a(l)
        a("s_nop 1")
        for st in (2, 3):
            for l in Xb(st): a(l)
            y = Yb(st - 1)
            for l in interleave(y[:5], wrl(st - 2)) + interleave(y[5:], Vb(st)): a(l)
        a("s_nop 1")
        for l in interleave(Yb(3), wrl(2)): a(l)
        AB2 = AB
        a(f"s_mul_i32 s{t}, s{sWAVE}, 80\nv_add_u32 v{AB}, s{t}, v{LN}\nv_add_u32 v{AB+1}, 64, v{AB}")
        for k in range(2):
            a(f"v_mul_u32_u24 v{AB+2}, 6554, v{AB+k}\nv_lshrrev_b32 v{AB+2}, 16, v{AB+2}\nv_mad_i32_i24 v{AB+3}, v{AB+2}, -10, v{AB+k}")
            a(f"v_mul_u32_u24 v{AB+2}, 1280, v{AB+2}\nv_lshl_add_u32 v{AB+4+k}, v{AB+3}, 4, v{AB+2}\nv_lshlrev_b32 v{AB+k}, 4, v{AB+k}")
        wr(3)
        self.srd(SRD_M, pOUT, 2048*640*2)
        a(f"s_mul_i32 s{t}, s{sR64}, 81920\ns_mul_i32 s{t+1}, s{sC}, 160\ns_add_u32 s{t}, s{t}, s{t+1}")
        a(f"v_add_u32 v{AB+6}, 61440, v{AB}\nv_add_u32 v{AB+7}, 61440, v{AB+1}\nv_add_u32 v{AB+8}, 122880, v{AB}\nv_add_u32 v{AB+9}, 122880, v{AB+1}")
        a("s_waitcnt lgkmcnt(0)\ns_barrier")
        self.stamp(9)
        for k in range(2):
            if k == 1: a("s_mov_b64 exec, 0xffff")
            R = 64*k
            for w in range(8):
                for par in range(2):
                    base = [AB + k, AB + 6 + k, AB + 8 + k][w // 3]
                    a(f"ds_read_b128 v[{R+8*w+4*par}:{R+8*w+4*par+3}], v{base} offset:{20480*(w % 3) + 10240*par}")
        a("s_mov_b64 exec, -1")
        for k in range(2):
            R = 64*k
            a(f"s_waitcnt lgkmcnt({15 if k == 0 else 0})")
            for pairs in (((0, 4), (1, 5), (2, 6), (3, 7)), ((0, 2), (1, 3)), ((0, 1),)):
                for x, y in pairs:
                    for j in range(4):
                        a(f"v_pk_add_f32 v[{R+8*x+2*j}:{R+8*x+2*j+1}], v[{R+8*x+2*j}:{R+8*x+2*j+1}], v[{R+8*y+2*j}:{R+8*y+2*j+1}]")
            for j in range(4): a(f"v_cvt_pk_bf16_f32 v{R+j}, v{R+2*j}, v{R+2*j+1}")
            if k == 1: a("s_mov_b64 exec, 0xffff")
            a(f"buffer_store_dwordx4 v[{R}:{R+3}], v{AB+4+k}, s[{SRD_M}:{SRD_M+3}], s{t} offen")
        a("s_mov_b64 exec, -1")


def descriptor(name):
    return f""".p2align 6
.amdhsa_kernel {name}
  .amdhsa_next_free_vgpr 256
  .amdhsa_next_free_sgpr 102
  .amdhsa_accum_offset 256
  .amdhsa_group_segment_fixed_size 0
  .amdhsa_kernarg_size 88
  .amdhsa_user_sgpr_count 2
  .amdhsa_user_sgpr_kernarg_segment_ptr 1
  .amdhsa_system_sgpr_workgroup_id_x 1
.end_amdhsa_kernel
"""

def build(stamps):
    g = Gen(stamps=stamps)
    a = g.a
    K = NAME + "_kernel"
    hdr = open(os.path.join(os.path.dirname(os.path.abspath(__file__)), "header.txt")).read()
    for l in hdr.strip().split("\n"): a.lines.append(l)
    a(f"; @launch grid=(256,1,1) block=(512,1,1) lds={LDS_TOTAL}")
    a('.amdgcn_target "amdgcn-amd-amdhsa--gfx950"\n.text')
    a(f".globl {K}\n.p2align 8\n.type {K},@function")
    a.label(K)
    g.common_prologue("L_end")
    a(f"s_cmp_lt_u32 s{sWAVE}, 4\ns_cbranch_scc1 L_comp")
    g.loader1()
    a("s_setprio 0")
    g.setup2()
    g.srd(SRD_WS, pWS, WS_SIZE)
    g.preload_b(0, NL0)
    a("s_barrier")
    g.preload_b(NL0, 10)
    a(f"s_cmp_lg_u32 s{sTYPE}, 0\ns_cbranch_scc1 L_l2\ns_barrier")
    a.label("L_l2")
    g.preload_b(10, 30)
    if BLDS: g.stage_b()
    g.stamp(3)
    a.label("L_g2")
    g.gemm2()
    g.dump_stamps()
    a.label("L_end")
    a("s_endpgm")
    a.label("L_comp")
    a(f"s_cmp_eq_u32 s{sTYPE}, 0\ns_cbranch_scc1 L_kv")
    g.compute_P(); a("s_branch L_g2")
    a.label("L_kv")
    g.compute_KV(); a("s_branch L_g2")
    errs = lint(a.lines)
    for e in errs: print("HAZARD:", e, file=sys.stderr)
    return a.text() + '.section .rodata,"a"\n' + descriptor(K)

if __name__ == "__main__":
    open(sys.argv[1], "w").write(build(sys.argv[2] if len(sys.argv) > 2 else False))
```

```python
import sys, os
sys.path.insert(0, os.path.dirname(os.path.abspath(__file__)))
from asmlib import *

NAME = "gated_mix__linear_attn_block__dense_activation_mish__prompt"
ENV = os.environ.get

CNT_ACT, CNT_PQ, CNT_KV = 0, 256*128, 288*128
WS_G = 0x10000
WS_KVP = 0x100000
WS_WOR = 0x200000
WS_W2R = 0x300000
WS_PQ = 0x500000
WS_ACT = 0x800000
WS_SIZE = 0x1000000
WS_STAMP = 0x8000000
BIG = 0x20000000
DBGW = int(ENV("DBGW", "0"))
ROTMODE = ENV("ROT", "two")
ROT2 = ENV("ROT2", "two")
NPRE = int(ENV("NPRE", "10"))
SPIN = 0x40000
WOAT = int(ENV("WOAT", "2"))
KVAT = int(ENV("KVAT", "4"))
GSYNC = int(ENV("GSYNC", "0"))
PICK = int(ENV("PICK", "0"))
SLEEP = int(ENV("SLEEP", "1"))
BLDS = int(ENV("BLDS", "1"))
NL0 = int(ENV("NL0", "4"))
MAP2 = ENV("MAP2", "x2")
TOUCH = int(ENV("TOUCH", "0"))
MSDBG = int(ENV("MSDBG", "0"))
MSPRIO = int(ENV("MSPRIO", "1"))
MSPRIO2 = int(ENV("MSPRIO2", "1"))

XR = 0
STG = 40960
WR = 49152
WSLOT = 14336
NS = 6
GATE = WR + NS * WSLOT
SCR = GATE + 2048
MS = WR
BL = WR + 32768
BLF = STG + 2040
LDS_TOTAL = 163840

sWG = 2
pX, pWQKV, pWO, pW1, pB1, pW2, pGATE, pOUT, pDBG, pWS = 4, 6, 8, 12, 14, 16, 18, 20, 22, 24
sWAVE, sRB, sHALF, sCBL, sGRP, sF1, sROT, sPIDX, sTYPE, sT = 26, 27, 28, 29, 30, 31, 32, 33, 34, 35
SRD_WS, SRD_X, SRD_W, SRD_M, SRD_D = 36, 40, 44, 52, 56
T0 = 60
sST = 76
cL2E, cC, cE = 96, 98, 100
sR64, sC = 27, 28
sB0, sA0 = 40, 46
sPQb, sMb, sKv, sFk = 0, 1, 3, 29
sFa, sFq = 10, 11
BS, AB = 80, 200
PQR, MR, KA, KD = 80, 120, 120, 176
sLB, sN208 = 30, 31
vG, vP, vL16, vL16b = 248, 252, 254, 255
WSR = f"s[{SRD_WS}:{SRD_WS+3}]"


class Gen:
    def __init__(self, stamps=False):
        self.a = Asm()
        self.stamps = stamps

    def stamp(self, k):
        if self.stamps and not (self.stamps == "dbg" and k == 9):
            if k < 2 and self.stamps != "dbg":
                self.a(f"s_memtime s[58:59]\ns_waitcnt lgkmcnt(0)\ns_mov_b32 s{sST+2*k}, s58")
            else:
                self.a(f"s_memtime s[{sST+2*k}:{sST+2*k+1}]")

    def srd(self, d, ptr, size, add=None):
        a = self.a
        if add is None:
            a(f"s_mov_b32 s{d}, s{ptr}\ns_mov_b32 s{d+1}, s{ptr+1}")
        else:
            a(f"s_add_u32 s{d}, s{ptr}, {add}\ns_addc_u32 s{d+1}, s{ptr+1}, 0")
        a(f"s_mov_b32 s{d+2}, {size}\ns_mov_b32 s{d+3}, 0x20000")

    def signal(self, soff, v):
        self.a(f"v_mov_b32 v{v}, 1\nv_mov_b32 v{v+1}, 0\ns_mov_b64 exec, 1\nbuffer_atomic_add v{v}, v{v+1}, {WSR}, s{soff} offen sc1\ns_mov_b64 exec, -1")

    def poll(self, soff, target, va, vd, srd=SRD_WS):
        a = self.a
        t = T0 + 15
        loop, done = a.newlabel("L_poll"), a.newlabel("L_polld")
        a(f"s_mov_b32 s{t}, 0")
        a.label(loop)
        a(f"buffer_load_dword v{vd}, v{va}, s[{srd}:{srd+3}], {soff} offen sc1\ns_waitcnt vmcnt(0)")
        a(f"v_cmp_le_u32 vcc, {target}, v{vd}\ns_add_u32 s{t}, s{t}, 1\ns_nop 0")
        a(f"s_cmp_eq_u64 vcc, -1\ns_cbranch_scc1 {done}")
        a(f"s_sleep {SLEEP}\ns_cmp_lt_u32 s{t}, {SPIN}\ns_cbranch_scc1 {loop}")
        a.label(done)

    def dump_stamps(self):
        if not self.stamps:
            return
        a = self.a
        a("s_waitcnt vmcnt(0) lgkmcnt(0)")
        a(f"s_memrealtime s[{T0}:{T0+1}]\ns_memtime s[{T0+2}:{T0+3}]")
        if self.stamps == "dbg":
            self.srd(SRD_M, pDBG, 256)
            a("s_waitcnt lgkmcnt(0)\nv_mov_b32 v2, 0\ns_mov_b64 exec, 1")
            sk = a.newlabel("L_dbg")
            a(f"s_lshl_b32 s{T0+5}, s{sWG}, 3\ns_add_u32 s{T0+5}, s{T0+5}, s{sWAVE}\ns_cmp_lg_u32 s{T0+5}, {DBGW}\ns_cbranch_scc1 {sk}")
            for k in range(1, 10):
                a(f"s_sub_u32 s{T0+5}, s{sST+2*k}, s{sST}\nv_mov_b32 v{3+k}, s{T0+5}")
            a(f"s_sub_u32 s{T0+5}, s{T0+2}, s{sST}\nv_mov_b32 v13, s{T0+5}\ns_sub_u32 s{T0+5}, s{T0}, s94\nv_mov_b32 v14, s{T0+5}\nv_mov_b32 v15, s94")
            for k in range(3):
                a(f"buffer_store_dwordx4 v[{4+4*k}:{7+4*k}], v2, s[{SRD_M}:{SRD_M+3}], 0 offen offset:{16+16*k}")
            a.label(sk)
            a("s_waitcnt vmcnt(0)")
            return
        a(f"s_getreg_b32 s{T0+4}, hwreg(HW_REG_XCC_ID)")
        self.srd(SRD_M, pWS, 0x10000000)
        a("s_waitcnt lgkmcnt(0)")
        for k in range(10):
            a(f"v_mov_b32 v{k}, s{sST+2*k}")
        a(f"v_mov_b32 v10, s{T0}\nv_mov_b32 v11, s{T0+2}\nv_mov_b32 v12, s{T0+4}\nv_mov_b32 v13, s{sTYPE}\nv_mov_b32 v14, s77\nv_mov_b32 v15, s79")
        a(f"s_lshl_b32 s{T0+5}, s{sWG}, 3\ns_add_u32 s{T0+5}, s{T0+5}, s{sWAVE}\ns_lshl_b32 s{T0+5}, s{T0+5}, 6\ns_add_u32 s{T0+5}, s{T0+5}, {WS_STAMP}")
        a("v_mov_b32 v16, 0\ns_mov_b64 exec, 1")
        for k in range(4):
            a(f"buffer_store_dwordx4 v[{4*k}:{4*k+3}], v16, s[{SRD_M}:{SRD_M+3}], s{T0+5} offen offset:{16*k}")
        a("s_waitcnt vmcnt(0)")

    def common_prologue(self, endlabel):
        a = self.a
        t = T0
        a(f"s_cmp_ge_u32 s{sWG}, 256\ns_cbranch_scc1 {endlabel}")
        a("s_load_dwordx16 s[4:19], s[0:1], 0\ns_load_dwordx4 s[20:23], s[0:1], 64\ns_load_dwordx2 s[24:25], s[0:1], 80")
        if self.stamps:
            for k in range(10): a(f"s_mov_b32 s{sST+2*k}, 0")
            if self.stamps == "dbg": a("s_memrealtime s[94:95]")
            else: a("s_memrealtime s[56:57]\ns_memtime s[58:59]\ns_waitcnt lgkmcnt(0)\ns_mov_b32 s77, s56\ns_mov_b32 s79, s58")
        a("v_lshrrev_b32 v1, 6, v0\nv_and_b32 v0, 63, v0")
        a(f"v_readfirstlane_b32 s{sWAVE}, v1")
        a(f"s_bfe_u32 s{t+2}, s{sWG}, 0x20001\ns_bfe_u32 s{t+3}, s{sWG}, 0x20003")
        a(f"s_lshl2_add_u32 s{sRB}, s{t+2}, s{t+3}\ns_and_b32 s{sHALF}, s{sWG}, 1\ns_lshr_b32 s{sCBL}, s{sWG}, 5")
        a(f"s_and_b32 s{t}, s{sCBL}, 3\ns_lshl2_add_u32 s{sGRP}, s{sHALF}, s{t}\ns_lshr_b32 s{sTYPE}, s{sCBL}, 2")
        if ROTMODE == "full":
            a(f"s_mul_i32 s{t+4}, s{t+3}, 5\ns_add_u32 s{t+4}, s{t+4}, 1\ns_lshr_b32 s{t+4}, s{t+4}, 1")
            a(f"s_add_u32 s{t+4}, s{t+4}, s{sCBL}\ns_add_u32 s{t+4}, s{t+4}, s{t+2}")
            a(f"s_mul_i32 s{t+5}, s{sHALF}, 5\ns_add_u32 s{sROT}, s{t+4}, s{t+5}")
            for _ in range(2):
                a(f"s_sub_u32 s{t+4}, s{sROT}, 10\ns_cmp_ge_u32 s{sROT}, 10\ns_cselect_b32 s{sROT}, s{t+4}, s{sROT}")
        elif ROTMODE == "none":
            a(f"s_mov_b32 s{sROT}, 0")
        elif ROTMODE == "xcd":
            a(f"s_mul_i32 s{t+4}, s{t+2}, 5\ns_add_u32 s{t+4}, s{t+4}, 1\ns_lshr_b32 s{t+4}, s{t+4}, 1\ns_add_u32 s{sROT}, s{t+4}, s{sHALF}")
        elif ROTMODE == "two":
            a(f"s_add_u32 s{t+4}, s{t+3}, s{sCBL}\ns_and_b32 s{t+4}, s{t+4}, 1\ns_mul_i32 s{t+4}, s{t+4}, 5")
            a(f"s_add_u32 s{t+4}, s{t+4}, s{t+2}\ns_add_u32 s{sROT}, s{t+4}, s{sHALF}")

    def loader1(self):
        a = self.a
        t = T0
        sLW = sT
        vXE, vXO, vW, vGt = 2, 3, 4, 8
        sStr, sCol, sA32, sA64, sOff, sXo, sWB, sWB2, sXB, sXP, sSel = 48, 49, 50, 51, t+4, t+5, t+6, t+7, t+8, t+9, t+10
        a(f"s_setprio 2\ns_sub_u32 s{sLW}, s{sWAVE}, 4")
        a("v_lshrrev_b32 v10, 3, v0\nv_and_b32 v11, 7, v0\nv_lshrrev_b32 v12, 4, v0\nv_mul_u32_u24 v13, 1280, v10\nv_xor_b32 v14, v11, v12")
        a(f"s_and_b32 s{t}, s{sLW}, 1\ns_lshl_b32 s{t}, s{t}, 6")
        a(f"v_lshl_add_u32 v13, v14, 4, v13\nv_xor_b32 v{vXE}, s{t}, v13\nv_xor_b32 v{vXO}, 64, v{vXE}")
        a(f"s_lshl_b32 s{sA32}, s{sROT}, 1\ns_mov_b32 s{sA64}, s{sROT}\ns_mul_i32 s{sXB}, s{sLW}, 3072\ns_mul_i32 s{sXP}, s{sLW}, 30720")
        for k in range(6, 10): a(f"v_mov_b32 v{k}, {BIG}")
        lKV, lQH, lLN, lJ = a.newlabel("L_wkv"), a.newlabel("L_wqh"), a.newlabel("L_wln"), a.newlabel("L_wj")
        a(f"s_cmp_eq_u32 s{sTYPE}, 0\ns_cbranch_scc1 {lKV}")
        a(f"s_cmp_eq_u32 s{sLW}, 3\ns_cbranch_scc1 {lQH}")
        a(f"s_mov_b32 s{sSel}, 1\ns_mov_b32 s{sStr}, 3072\ns_mul_i32 s{sCol}, s{sGRP}, 3\ns_add_u32 s{sCol}, s{sCol}, s{sLW}\ns_lshl_b32 s{sCol}, s{sCol}, 7\ns_lshl_b32 s{sWB}, s{sLW}, 12")
        a.label(lLN)
        a(f"v_and_b32 v13, 4, v10\nv_add_u32 v13, v13, v10\nv_mul_u32_u24 v13, s{sStr}, v13\nv_lshlrev_b32 v12, 1, v12\nv_xor_b32 v12, v11, v12\nv_lshl_add_u32 v{vW}, v12, 4, v13")
        a(f"s_lshl_b32 s{t}, s{sStr}, 4\ns_lshl_b32 s{t+1}, s{sStr}, 2\nv_add_u32 v{vW+1}, s{t}, v{vW}\nv_add_u32 v{vW+2}, s{t+1}, v{vW}\nv_add_u32 v{vW+3}, s{t}, v{vW+2}")
        a(f"s_branch {lJ}")
        a.label(lQH)
        a(f"s_mov_b32 s{sSel}, 0\ns_mov_b32 s{sStr}, 3840\ns_lshl_b32 s{sCol}, s{sHALF}, 1\ns_add_u32 s{sCol}, s{sCol}, s{sCBL}\ns_add_u32 s{sCol}, s{sCol}, 12\ns_lshl_b32 s{sCol}, s{sCol}, 6")
        a(f"s_cmp_lt_u32 s{sCBL}, 6\ns_cselect_b32 s{sCol}, s{sCol}, {BIG}\ns_mov_b32 s{sWB}, 12288\ns_mov_b32 s{sWB2}, 13312")
        a(f"v_lshrrev_b32 v10, 2, v0\nv_and_b32 v13, 12, v10\nv_add_u32 v13, v13, v10\nv_mul_u32_u24 v13, 3840, v13\nv_and_b32 v11, 3, v0\nv_and_b32 v12, 1, v12\nv_lshlrev_b32 v12, 1, v12\nv_xor_b32 v12, v11, v12")
        a(f"v_lshl_add_u32 v{vW}, v12, 4, v13\nv_add_u32 v{vW+1}, 15360, v{vW}")
        a(f"s_lshl_b32 s{t}, s{sROT}, 3\nv_mov_b32 v14, {BIG}")
        for j in range(2):
            a(f"v_add_u32 v10, {64*j}, v0\nv_add_u32 v11, s{t}, v10\nv_cmp_gt_u32 vcc, 80, v10\nv_subrev_u32 v12, 80, v11\nv_min_u32 v11, v11, v12\nv_lshlrev_b32 v11, 4, v11\nv_cndmask_b32 v{vGt+j}, v14, v11, vcc")
        a(f"s_branch {lJ}")
        a.label(lKV)
        a(f"s_mov_b32 s{sSel}, 0\ns_mov_b32 s{sStr}, 3840\ns_mul_i32 s{sWB}, s{sLW}, 5120\ns_lshl_b32 s{sCol}, s{sGRP}, 7")
        a(f"s_cmp_eq_u32 s{sLW}, 2\ns_cbranch_scc1 {lLN}")
        a(f"s_mul_i32 s{sCol}, s{sGRP}, 160\ns_cmp_eq_u32 s{sLW}, 1\ns_cselect_b32 s{t}, 2560, 1280\ns_add_u32 s{sCol}, s{sCol}, s{t}")
        a(f"s_cmp_eq_u32 s{sLW}, 3\ns_cselect_b32 s{t}, 256, 0\ns_cselect_b32 s{sWB}, 4096, s{sWB}\ns_mov_b32 s{sWB2}, 9216")
        a(f"v_add_u32 v14, s{t}, v0")
        for j in range(4):
            a(f"v_add_u32 v10, {64*j}, v14\nv_mul_u32_u24 v11, 6554, v10\nv_lshrrev_b32 v11, 16, v11\nv_mad_i32_i24 v10, v11, -10, v10")
            a("v_and_b32 v12, 12, v11\nv_and_b32 v13, 3, v11\nv_lshl_or_b32 v12, v12, 1, v13\nv_bfe_u32 v13, v11, 4, 1\nv_lshl_or_b32 v12, v13, 2, v12")
            a(f"v_mul_u32_u24 v12, 3840, v12\nv_lshl_add_u32 v{vW+j}, v10, 4, v12")
            if j == 0:
                a(f"v_add_u32 v{vW+1}, 1280, v{vW}\ns_cmp_eq_u32 s{sLW}, 3\ns_cbranch_scc1 {lJ}")
        a.label(lJ)
        a(f"s_lshl_b32 s{sStr}, s{sStr}, 5\ns_mul_i32 s{t}, s{sRB}, 163840")
        a("s_waitcnt lgkmcnt(0)")
        self.stamp(0)
        self.srd(SRD_X, pX, 163840, add=f"s{t}")
        a(f"s_cmp_eq_u32 s{sSel}, 0\ns_cselect_b32 s{SRD_W}, s{pWQKV}, s{pW1}\ns_cselect_b32 s{SRD_W+1}, s{pWQKV+1}, s{pW1+1}\ns_cselect_b32 s{SRD_W+2}, {640*1920*2}, {640*1536*2}\ns_mov_b32 s{SRD_W+3}, 0x20000")
        lab3, lab4, labj = a.newlabel("L_ld3"), a.newlabel("L_ld4"), a.newlabel("L_ldj")
        a(f"s_cmp_eq_u32 s{sLW}, 3\ns_cbranch_scc1 {lab3}")
        for variant in (0, 3, 4):
            if variant == 3:
                a.label(lab3)
                a(f"s_cmp_ge_u32 s{sCBL}, 6\ns_cbranch_scc1 {lab4}")
            if variant == 4:
                a.label(lab4)
            nW = {0: 4, 3: 2, 4: 0}[variant]
            nX = 3 if variant == 0 else 7
            seq = []
            def issue_W(i):
                if nW == 0: return
                a(f"s_mul_i32 s{sOff}, s{sA32}, s{sStr}")
                for j in range(nW):
                    base, off = (sWB, 1024*j) if variant == 0 else ((sWB, sWB2)[j], 0)
                    a(f"s_add_u32 m0, s{base}, {WR + (i % NS)*WSLOT + off}")
                    a(f"s_add_u32 s{sOff}, s{sOff}, s{sCol}" if j == 0 else "s_nop 0")
                    a(f"buffer_load_dwordx4 v{vW+j}, s[{SRD_W}:{SRD_W+3}], s{sOff} offen lds")
                    seq.append(("W", i))
                a(f"s_add_u32 s{sA32}, s{sA32}, 1\ns_cmp_eq_u32 s{sA32}, 20\ns_cselect_b32 s{sA32}, 0, s{sA32}")
            def issue_X(jx):
                a(f"s_lshl_b32 s{sXo}, s{sA64}, 7")
                for j in range(nX):
                    a(f"s_add_u32 m0, s{sXB}, {XR + (jx % 3)*16384 + 1024*j}")
                    a(f"s_add_u32 s{sXo}, s{sXo}, " + (f"s{sXP}" if j == 0 else "10240"))
                    a(f"buffer_load_dwordx4 v{vXE + (j & 1)}, s[{SRD_X}:{SRD_X+3}], s{sXo} offen lds")
                    seq.append(("X", jx))
                a(f"s_add_u32 s{sA64}, s{sA64}, 1\ns_cmp_eq_u32 s{sA64}, 10\ns_cselect_b32 s{sA64}, 0, s{sA64}")
            def wait_for(items):
                last = max([n for n, it in enumerate(seq) if it in items] + [-1])
                if last >= 0: a(f"s_waitcnt vmcnt({len(seq) - 1 - last})")
            issue_X(0); issue_W(0)
            if variant == 4:
                self.srd(SRD_M, pGATE, 1280)
                for j in range(2):
                    a(f"s_mov_b32 m0, {GATE + 1024*j}\ns_nop 0\nbuffer_load_dwordx4 v{vGt+j}, s[{SRD_M}:{SRD_M+3}], 0 offen lds")
                    seq.append(("W", 0))
            issue_W(1)
            wait_for([("W", 0), ("X", 0)]); self.stamp(1); a("s_barrier")
            issue_X(1)
            wait_for([("W", 1)]); a("s_barrier")
            issue_W(2); issue_W(3); issue_X(2); issue_W(4)
            for j in range(1, 10):
                if j == 9 and variant == 0:
                    sk = a.newlabel("L_s1skip")
                    a(f"s_cmp_lg_u32 s{sWAVE}, 4\ns_cbranch_scc1 {sk}")
                    self.srd(SRD_D, pDBG, 256)
                    a(f"v_mov_b32 v10, 0\ns_mov_b32 s{t}, 128")
                    self.poll("0", f"s{t}", 10, 11, SRD_D)
                    a.label(sk)
                wait_for([("W", 2*j), ("W", 2*j + 1), ("X", j)]); a("s_barrier")
                if j + 1 < 10: issue_W(2*j + 3)
                if j + 2 < 10: issue_X(j + 2); issue_W(2*j + 4)
            if variant != 4:
                a(f"s_branch {labj}")
        a.label(labj)
        self.stamp(2)

    def mish_quad(self, h, dst, tmp):
        P = lambda r: f"v[{r}:{r+1}]"
        return [
            f"v_pk_fma_f32 {P(tmp)}, {P(h)}, s[{cL2E}:{cL2E+1}], -0.5 op_sel_hi:[1,1,0]",
            f"v_pk_fma_f32 {P(tmp+2)}, {P(h+2)}, s[{cL2E}:{cL2E+1}], -0.5 op_sel_hi:[1,1,0]",
            f"v_exp_f32 v{tmp}, v{tmp}", f"v_exp_f32 v{tmp+1}, v{tmp+1}", f"v_exp_f32 v{tmp+2}, v{tmp+2}", f"v_exp_f32 v{tmp+3}, v{tmp+3}",
            f"v_pk_add_f32 {P(tmp)}, {P(tmp)}, s[{cC}:{cC+1}]", f"v_pk_add_f32 {P(tmp+2)}, {P(tmp+2)}, s[{cC}:{cC+1}]",
            f"v_pk_fma_f32 {P(tmp)}, {P(tmp)}, {P(tmp)}, 0.5 op_sel_hi:[1,1,0]",
            f"v_pk_fma_f32 {P(tmp+2)}, {P(tmp+2)}, {P(tmp+2)}, 0.5 op_sel_hi:[1,1,0]",
            f"v_rcp_f32 v{tmp}, v{tmp}", f"v_rcp_f32 v{tmp+1}, v{tmp+1}", f"v_rcp_f32 v{tmp+2}, v{tmp+2}", f"v_rcp_f32 v{tmp+3}, v{tmp+3}",
            f"v_pk_fma_f32 {P(tmp)}, {P(h)}, {P(tmp)}, {P(h)} neg_lo:[1,0,0] neg_hi:[1,0,0]",
            f"v_pk_fma_f32 {P(tmp+2)}, {P(h+2)}, {P(tmp+2)}, {P(h+2)} neg_lo:[1,0,0] neg_hi:[1,0,0]",
            f"v_cvt_pk_bf16_f32 v{dst}, v{tmp}, v{tmp+1}", f"v_cvt_pk_bf16_f32 v{dst+1}, v{tmp+2}, v{tmp+3}",
        ]

    def phi_quad(self, h, dst, tmp):
        P = lambda r: f"v[{r}:{r+1}]"
        return [
            f"v_pk_mul_f32 {P(tmp)}, {P(h)}, s[{cL2E}:{cL2E+1}]", f"v_pk_mul_f32 {P(tmp+2)}, {P(h+2)}, s[{cL2E}:{cL2E+1}]",
            f"v_exp_f32 v{tmp}, v{tmp} clamp", f"v_exp_f32 v{tmp+1}, v{tmp+1} clamp", f"v_exp_f32 v{tmp+2}, v{tmp+2} clamp", f"v_exp_f32 v{tmp+3}, v{tmp+3} clamp",
            f"v_pk_add_f32 {P(h)}, {P(h)}, s[{cC}:{cC+1}]", f"v_pk_add_f32 {P(h+2)}, {P(h+2)}, s[{cC}:{cC+1}]",
            f"v_pk_add_f32 {P(tmp)}, {P(tmp)}, s[{cE}:{cE+1}]", f"v_pk_add_f32 {P(tmp+2)}, {P(tmp+2)}, s[{cE}:{cE+1}]",
            f"v_max_f32 v{tmp}, v{tmp}, v{h}", f"v_max_f32 v{tmp+1}, v{tmp+1}, v{h+1}", f"v_max_f32 v{tmp+2}, v{tmp+2}, v{h+2}", f"v_max_f32 v{tmp+3}, v{tmp+3}, v{h+3}",
            f"v_cvt_pk_bf16_f32 v{dst}, v{tmp}, v{tmp+1}", f"v_cvt_pk_bf16_f32 v{dst+1}, v{tmp+2}, v{tmp+3}",
        ]

    def consts(self, kind):
        if kind == "mish":
            self.a(f"s_mov_b32 s{cC}, 0x3f3504f3\ns_mov_b32 s{cC+1}, 0x3f3504f3")
        else:
            self.a(f"s_mov_b32 s{cC}, 0x3f800008\ns_mov_b32 s{cC+1}, 0x3f800008\ns_mov_b32 s{cE}, 0x358637bd\ns_mov_b32 s{cE+1}, 0x358637bd")

    def main_loop(self, reads, mfmas, extra, nread_end, bases):
        a = self.a
        a("s_barrier")
        self.stamp(1)
        for l in reads(0): a(l)
        for l in extra.get(0, ([], [], []))[1]: a(l)
        a("s_waitcnt lgkmcnt(0)")
        for i in range(1, 21):
            if i == 1 or i % 2 == 0: a("s_barrier")
            pre, fill, preb = extra.get(i, ([], [], []))
            for l in pre: a(l)
            if i < 20:
                tail = []
                if (i + 1) % 3 == 0 and i + 1 < 20:
                    op = "v_add_u32" if ((i + 1) % NS) == 3 else "v_subrev_u32"
                    tail = [f"{op} v{b}, {3*WSLOT}, v{b}" for b in bases]
                body = interleave(mfmas(i - 1), reads(i) + fill + tail, 0, nread_end)
                for l in body: a(l)
                for l in preb: a(l)
                a("s_waitcnt lgkmcnt(0)")
            else:
                for l in mfmas(19): a(l)
        self.stamp(2)

    def finish1(self, flags, strict=False):
        a = self.a
        self.setup2()
        npre = 0 if strict else NPRE
        self.preload_b(0, npre)
        a(f"s_waitcnt vmcnt({npre})")
        self.stamp(5)
        for f in flags: self.signal(f, 1)
        self.preload_b(npre, NPRE)
        if not BLDS:
            self.preload_b(NPRE, 30)
            return

    def pickup(self):
        a = self.a
        t = T0
        sk = a.newlabel("L_pk")
        a(f"s_cmp_ge_u32 s{sWAVE}, 4\ns_cbranch_scc1 {sk}")
        a(f"s_mul_i32 s{t+1}, s{sWAVE}, 20480\ns_add_u32 s{t+1}, s{t+1}, {BL}\nv_add_u32 v{BS+117}, s{t+1}, v{vL16}")
        for n in range(20):
            a(f"ds_read_b128 v[{BS+40+4*n}:{BS+43+4*n}], v{BS+117} offset:{1024*n}")
        a.label(sk)

    def touch(self, vLane, v):
        a = self.a
        t = T0
        a(f"v_lshlrev_b32 v{v}, 21, v{vLane}\nv_add_u32 v{v}, 0xff000, v{v}\ns_mov_b64 exec, 0xff")
        a(f"buffer_load_dword v{v+1}, v{v}, {WSR}, 0 offen")
        self.srd(SRD_M, pOUT, 2048*640*2)
        a(f"v_lshlrev_b32 v{v}, 20, v{vLane}\ns_mov_b64 exec, 7\nbuffer_load_dword v{v+2}, v{v}, s[{SRD_M}:{SRD_M+3}], 0 offen")
        self.srd(SRD_M, pWO, 640*640*2)
        a(f"v_lshlrev_b32 v{v}, 19, v{vLane}\ns_mov_b64 exec, 3\nbuffer_load_dword v{v+3}, v{v}, s[{SRD_M}:{SRD_M+3}], 0 offen\ns_mov_b64 exec, -1")

    def compute_P(self):
        a = self.a
        t = T0
        ACC, XB, WB, BI = 0, 112, 144, 200
        vX0, vX1, vH0, vH1, vQ, vGt, vL, vRd, vRr, vBo, vT = 228, 229, 230, 231, 232, 233, 234, 235, 236, 237, 238
        vLane = 253
        sSH, sNH = sT, 48
        sAct, sPq, sF2, sGs = 49, 72, 73, 74
        a(f"v_mov_b32 v{vLane}, v0\ns_lshr_b32 s{sSH}, s{sWAVE}, 1\ns_and_b32 s{sNH}, s{sWAVE}, 1")
        a(f"v_and_b32 v1, 15, v0\nv_lshrrev_b32 v2, 4, v0\nv_lshrrev_b32 v3, 1, v1\nv_xor_b32 v3, v3, v2\nv_lshlrev_b32 v3, 4, v3\nv_lshl_add_u32 v3, v1, 7, v3")
        a(f"s_lshl_b32 s{t}, s{sSH}, 13\nv_add_u32 v{vX0}, s{t}, v3\nv_xor_b32 v{vX1}, 64, v{vX0}")
        a(f"v_lshrrev_b32 v3, 2, v0\nv_and_b32 v4, 3, v0\nv_lshlrev_b32 v4, 3, v4")
        a(f"v_lshl_add_u32 v5, v3, 7, v4\nv_bfe_u32 v6, v0, 3, 2\ns_lshl_b32 s{t}, s{sNH}, 1\nv_xor_b32 v6, s{t}, v6\nv_lshl_add_u32 v6, v6, 5, v5")
        a(f"v_add_u32 v{vH0}, {WR}, v6\nv_xor_b32 v{vH1}, 32, v{vH0}")
        a(f"v_lshl_add_u32 v6, v3, 6, v4\nv_and_b32 v7, 1, v2\nv_xor_b32 v7, s{sNH}, v7\nv_lshl_add_u32 v6, v7, 5, v6\nv_add_u32 v{vQ}, {WR+12288}, v6")
        a(f"v_lshlrev_b32 v6, 4, v2\nv_add_u32 v{vGt}, {GATE}, v6\nv_lshlrev_b32 v{vL}, 4, v0\nv_lshlrev_b32 v{vBo}, 3, v2")
        a(f"v_lshrrev_b32 v6, 3, v0\nv_mul_u32_u24 v6, 1280, v6\nv_and_b32 v7, 7, v0\nv_lshl_add_u32 v{vRd}, v7, 4, v6")
        a(f"s_lshl_b32 s{t}, s{sWAVE}, 12\ns_add_u32 s{t}, s{t}, {SCR}\nv_add_u32 v{vRr}, s{t}, v5")
        a(f"s_lshl3_add_u32 s{sPIDX}, s{sRB}, s{sGRP}")
        a(f"s_mov_b32 s{cL2E}, 0x3fb8aa3b\ns_mov_b32 s{cL2E+1}, 0x3fb8aa3b")
        a(f"s_lshl2_add_u32 s{t}, s{sPIDX}, s{sWAVE}\ns_min_u32 s{t}, s{t}, 479")
        a(f"s_mul_i32 s{t+1}, s{t}, 6554\ns_lshr_b32 s{t+1}, s{t+1}, 16\ns_mul_i32 s{t+2}, s{t+1}, 10\ns_sub_u32 s{t+2}, s{t}, s{t+2}")
        a(f"s_mul_i32 s{t+6}, s{t+1}, 40960\ns_lshl_b32 s{t+3}, s{t+2}, 7\ns_add_u32 s{t+6}, s{t+6}, s{t+3}")
        a(f"s_mul_i32 s{t+7}, s{sGRP}, 384\ns_lshl_b32 s{t+3}, s{sNH}, 6\ns_add_u32 s{t+7}, s{t+7}, s{t+3}")
        a("s_waitcnt lgkmcnt(0)")
        self.stamp(0)
        self.srd(SRD_M, pB1, 3072)
        self.srd(SRD_W, pW2, 1536*640*2)
        for u in range(6):
            a(f"buffer_load_dwordx2 v[{BI+4*u+2}:{BI+4*u+3}], v{vBo}, s[{SRD_M}:{SRD_M+3}], s{t+7} offen offset:{128*(u >> 1) + 32*(u & 1)}")
        a(f"s_lshl_b32 s{t+3}, s{sWAVE}, 12")
        for j in range(4):
            a(f"s_add_u32 m0, s{t+3}, {SCR + 1024*j}\ns_nop 0\nbuffer_load_dwordx4 v{vRd}, s[{SRD_W}:{SRD_W+3}], s{t+6} offen lds")
            if j < 3: a(f"s_add_u32 s{t+6}, s{t+6}, 10240")
        self.srd(SRD_WS, pWS, WS_SIZE)
        if TOUCH == 2: self.touch(vLane, 240)
        dsts = [10, 11, 1, 3]
        for u in range(4):
            a(f"s_lshl2_add_u32 s{t+3}, s{t+2}, {u}\ns_mul_i32 s{t+4}, s{t+3}, 205\ns_lshr_b32 s{t+4}, s{t+4}, 10")
            a(f"s_mul_i32 s{t+5}, s{t+4}, 235\ns_add_u32 s{t+5}, s{t+5}, s{t+3}\ns_mul_i32 s{t+4}, s{t+1}, 5\ns_add_u32 s{t+5}, s{t+5}, s{t+4}")
            a(f"s_lshl_b32 s{t+5}, s{t+5}, 10\ns_add_u32 s{t+5}, s{t+5}, {WS_W2R}")
            a(f"s_cmp_lt_u32 s{sPIDX}, 120\ns_cselect_b32 s{dsts[u]}, s{t+5}, {BIG}")
        d2, sSrc2, sK2, sInc2 = 40, 0, 75, 70
        self.srd(SRD_M, pWO, 640*640*2)
        a(f"s_lshl1_add_u32 s{t}, s{sPIDX}, s{sWAVE}\ns_sub_u32 s{t}, s{t}, 2")
        a(f"s_cmp_lt_u32 s{t}, 160\ns_cselect_b32 s{sK2}, 1, 2\ns_cmp_lt_u32 s{t}, 200\ns_cselect_b32 s{sK2}, s{sK2}, 0\ns_cmp_lt_u32 s{sWAVE}, 2\ns_cselect_b32 s{sK2}, 0, s{sK2}")
        a(f"s_mul_i32 s{t+1}, s{t}, 6554\ns_lshr_b32 s{t+1}, s{t+1}, 16\ns_mul_i32 s{t+2}, s{t+1}, 10\ns_sub_u32 s{t+2}, s{t}, s{t+2}")
        a(f"s_lshr_b32 s{t+3}, s{t+1}, 1\ns_and_b32 s{t+4}, s{t+1}, 1\ns_sub_u32 s{t+5}, s{t+1}, 16\ns_lshl_b32 s{t+5}, s{t+5}, 1")
        a(f"s_cmp_eq_u32 s{sK2}, 2\ns_cselect_b32 s{t+3}, s{t+5}, s{t+3}\ns_cselect_b32 s{t+4}, 2, s{t+4}\ns_cselect_b32 s{sInc2}, {10240 + 64*1280}, 10240")
        a(f"s_mul_i32 s{sSrc2}, s{t+3}, {80*1280}\ns_mul_i32 s{t+5}, s{t+4}, {32*1280}\ns_add_u32 s{sSrc2}, s{sSrc2}, s{t+5}\ns_lshl_b32 s{t+5}, s{t+2}, 7\ns_add_u32 s{sSrc2}, s{sSrc2}, s{t+5}")
        a(f"s_mul_i32 s{t+3}, s{t+3}, 12800\ns_lshl_b32 s{t+5}, s{t+4}, 10\ns_cmp_eq_u32 s{sK2}, 2\ns_cselect_b32 s{t+5}, 10240, s{t+5}\ns_cselect_b32 s{t+6}, 512, 2048\ns_add_u32 s{t+3}, s{t+3}, s{t+5}\ns_add_u32 s{t+3}, s{t+3}, {WS_WOR}")
        for u in range(4):
            a(f"s_lshl2_add_u32 s{t+4}, s{t+2}, {u}\ns_mul_i32 s{t+5}, s{t+4}, 205\ns_lshr_b32 s{t+5}, s{t+5}, 10\ns_mul_i32 s{t+7}, s{t+5}, 5\ns_sub_u32 s{t+4}, s{t+4}, s{t+7}")
            a(f"s_mul_i32 s{t+5}, s{t+5}, 102400\ns_mul_i32 s{t+4}, s{t+4}, s{t+6}\ns_add_u32 s{t+5}, s{t+5}, s{t+4}\ns_add_u32 s{d2+u}, s{t+5}, s{t+3}")
        sRb64 = t + 11
        a(f"s_lshl1_add_u32 s{sRb64}, s{sRB}, s{sSH}")
        a(f"s_mul_i32 s{t}, s{sRb64}, 48\ns_mul_i32 s{t+1}, s{sGRP}, 6\ns_add_u32 s{t}, s{t}, s{t+1}\ns_add_u32 s{t}, s{t}, s{sNH}\ns_lshl_b32 s{t}, s{t}, 12")
        a(f"s_add_u32 s{sAct}, s{t}, {WS_ACT}\ns_add_u32 s{sAct+1}, s{t}, {WS_ACT + 8192}\ns_add_u32 s{sAct+2}, s{t}, {WS_ACT + 16384}")
        a(f"s_mul_i32 s{t}, s{sRb64}, 40\ns_lshl2_add_u32 s{t}, s{sHALF}, s{t}\ns_lshl1_add_u32 s{t}, s{sCBL}, s{t}\ns_add_u32 s{t}, s{t}, s{sNH}\ns_add_u32 s{t}, s{t}, 24\ns_lshl_b32 s{t}, s{t}, 11\ns_add_u32 s{sPq}, s{t}, {WS_PQ}")
        a(f"s_lshl3_add_u32 s{sF1}, s{sRb64}, s{sGRP}\ns_lshl_b32 s{sF1}, s{sF1}, 7")
        a(f"s_lshl1_add_u32 s{t}, s{sGRP}, s{sNH}\ns_cmp_eq_u32 s{t}, 5\ns_cselect_b32 s{sGs}, 1, 0")
        a(f"s_lshl_b32 s{sF2}, s{sRb64}, 7\ns_add_u32 s{sF2}, s{sF2}, {CNT_PQ}\ns_cmp_lt_u32 s{sCBL}, 6\ns_cselect_b32 s{t}, 1, s{sGs}\ns_cmp_eq_u32 s{t}, 1\ns_cselect_b32 s{sF2}, s{sF2}, {BIG}")
        a(f"s_cmp_ge_u32 s{sCBL}, 6\ns_cselect_b64 vcc, -1, 0")
        def reads(i):
            b = i & 1; so = (i % 3) * WSLOT
            xs = XR + ((i >> 1) % 3) * 16384
            r = [f"ds_read_b128 v[{XB+16*b+4*s}:{XB+16*b+4*s+3}], v{vX1 if i & 1 else vX0} offset:{xs + 2048*s}" for s in range(4)]
            for u in range(6):
                d = WB + 28*b + 4*u
                r.append(f"ds_read_b64_tr_b16 v[{d}:{d+1}], v{vH0 + (u & 1)} offset:{so + 4096*(u >> 1)}")
                r.append(f"ds_read_b64_tr_b16 v[{d+2}:{d+3}], v{vH0 + (u & 1)} offset:{so + 4096*(u >> 1) + 2048}")
            d = WB + 28*b + 24
            l1, l2 = a.newlabel("L_g"), a.newlabel("L_gj")
            r.append(f"s_cbranch_vccnz {l1}\nds_read_b64_tr_b16 v[{d}:{d+1}], v{vQ} offset:{so}\nds_read_b64_tr_b16 v[{d+2}:{d+3}], v{vQ} offset:{so + 1024}\ns_branch {l2}\n"
                     f"{l1}:\nds_read_b128 v[{d}:{d+3}], v{vGt} offset:{64*i}\n{l2}:")
            return r
        def mfmas(i):
            b = i & 1
            r = []
            for u in range(7):
                for s in range(4):
                    d = ACC + 16*u + 4*s
                    c = f"v[{d}:{d+3}]" if i > 0 else ("0" if u == 6 else f"v[{BI+4*u}:{BI+4*u+3}]")
                    r.append(f"v_mfma_f32_16x16x32_bf16 v[{d}:{d+3}], v[{WB+28*b+4*u}:{WB+28*b+4*u+3}], v[{XB+16*b+4*s}:{XB+16*b+4*s+3}], {c}")
            return r
        unpack = [f"s_waitcnt vmcnt({7 if TOUCH == 2 else 4})"]
        for u in range(6):
            p = BI + 4*u
            unpack += [f"v_lshlrev_b32 v{p}, 16, v{p+2}", f"v_and_b32 v{p+1}, 0xffff0000, v{p+2}", f"v_lshlrev_b32 v{p+2}, 16, v{p+3}", f"v_and_b32 v{p+3}, 0xffff0000, v{p+3}"]
        RP = BI
        rp_reads = []
        for u in range(4):
            rp_reads += [f"ds_read_b64_tr_b16 v[{RP+4*u}:{RP+4*u+1}], v{vRr} offset:{32*u}", f"ds_read_b64_tr_b16 v[{RP+4*u+2}:{RP+4*u+3}], v{vRr} offset:{32*u + 2048}"]
        rp_st = [f"buffer_store_dwordx4 v[{RP+4*u}:{RP+4*u+3}], v{vL}, {WSR}, s{dsts[u]} offen sc1" for u in range(4)]
        z = [f"s_lshl_b32 s{t}, s{sPIDX}, 9", f"s_mul_i32 s{t+1}, s{sWAVE}, {WS_KVP}", f"s_add_u32 s{t}, s{t}, s{t+1}", f"s_cmp_lt_u32 s{sWAVE}, 2", f"s_cselect_b32 s{t}, s{t}, {BIG}"] + \
            [f"v_mov_b32 v{RP+16+k}, 0" for k in range(4)] + \
            [f"s_mov_b32 exec_hi, 0\nbuffer_store_dwordx4 v[{RP+16}:{RP+19}], v{vL}, {WSR}, s{t} offen sc1\ns_mov_b32 exec_hi, -1"]
        k1, k2, k3, k4 = [a.newlabel("L_r2") for _ in range(4)]
        dma2 = f"s_cmp_eq_u32 s{sK2}, 0\ns_cbranch_scc1 {k1}\ns_lshl_b32 s{t+3}, s{sWAVE}, 12\n"
        for j in range(4):
            dma2 += f"s_add_u32 m0, s{t+3}, {SCR + 1024*j}\ns_nop 0\nbuffer_load_dwordx4 v{vRd}, s[{SRD_M}:{SRD_M+3}], s{sSrc2} offen lds\n"
            if j < 3: dma2 += f"s_add_u32 s{sSrc2}, s{sSrc2}, " + (f"s{sInc2}" if j == 1 else "10240") + "\n"
        dma2 += k1 + ":"
        st2 = f"s_cmp_eq_u32 s{sK2}, 0\ns_cbranch_scc1 {k2}\ns_cmp_eq_u32 s{sK2}, 2\ns_cbranch_scc1 {k3}\n"
        st2 += "".join(f"buffer_store_dwordx4 v[{RP+4*u}:{RP+4*u+3}], v{vL}, {WSR}, s{d2+u} offen sc1\n" for u in range(4))
        st2 += f"s_branch {k2}\n{k3}:\nv_lshrrev_b32 v{vT}, 1, v{vL}\n"
        for u in range(4):
            st2 += f"buffer_store_dwordx2 v[{RP+4*u}:{RP+4*u+1}], v{vT}, {WSR}, s{d2+u} offen sc1\ns_add_u32 s{d2+u}, s{d2+u}, 12800\n"
            st2 += f"buffer_store_dwordx2 v[{RP+4*u+2}:{RP+4*u+3}], v{vT}, {WSR}, s{d2+u} offen sc1\n"
        st2 += k2 + ":"
        def arr(off):
            sk = a.newlabel("L_s1a")
            return [f"s_cmp_lg_u32 s{sWAVE}, 0", f"s_cbranch_scc1 {sk}",
                    f"s_mov_b32 s{SRD_D}, s{pDBG}", f"s_mov_b32 s{SRD_D+1}, s{pDBG+1}", f"s_mov_b32 s{SRD_D+2}, 256", f"s_mov_b32 s{SRD_D+3}, 0x20000",
                    f"v_mov_b32 v{vT}, 1", f"s_mov_b64 exec, 1\nbuffer_atomic_add v{vT}, v{vL}, s[{SRD_D}:{SRD_D+3}], 0 offen offset:{off} sc1\ns_mov_b64 exec, -1", sk + ":"]
        extra = {0: ([], unpack, []), 3: (["s_waitcnt vmcnt(0)"], rp_reads, []), 4: ([], [dma2] + rp_st, []), 5: ([], z, []),
                 7: ([], [], ["s_waitcnt vmcnt(0)"]), 8: (arr(0), rp_reads, []), 9: ([], [st2], []), 13: ([], [], ["s_waitcnt vmcnt(0)"]), 14: (arr(128), [], [])}
        self.main_loop(reads, mfmas, extra, 20, [vH0, vH1, vQ])
        self.consts("mish")
        TM = XB
        for L in range(3):
            for s in range(4):
                e, o = ACC + 32*L + 4*s, ACC + 32*L + 16 + 4*s
                for l in self.mish_quad(e, e, TM + 8*(s & 1)): a(l)
                for l in self.mish_quad(o, e + 2, TM + 4 + 8*(s & 1)): a(l)
                a(f"buffer_store_dwordx4 v[{e}:{e+3}], v{vL}, {WSR}, s{sAct+L} offen offset:{1024*s} sc1")
        labG, labE = a.newlabel("L_epG"), a.newlabel("L_epE")
        a(f"s_cbranch_vccnz {labG}")
        self.consts("phi")
        for sp in range(2):
            e = ACC + 96 + 8*sp
            for l in self.phi_quad(e, e, TM): a(l)
            for l in self.phi_quad(e + 4, e + 2, TM + 4): a(l)
            a(f"buffer_store_dwordx4 v[{e}:{e+3}], v{vL}, {WSR}, s{sPq} offen offset:{1024*sp} sc1")
        a(f"s_branch {labE}")
        a.label(labG)
        a(f"s_cmp_eq_u32 s{sGs}, 0\ns_cbranch_scc1 {labE}")
        G = ACC + 96
        a(f"v_cmp_le_u32 vcc, 16, v{vLane}\nv_cmp_le_u32 s[{t+2}:{t+3}], 32, v{vLane}\nv_cmp_le_u32 s[{t+4}:{t+5}], 48, v{vLane}\ns_nop 0")
        a(f"v_cndmask_b32 v{G}, v{G}, v{G+4}, vcc\nv_cndmask_b32 v{G}, v{G}, v{G+8}, s[{t+2}:{t+3}]\nv_cndmask_b32 v{G}, v{G}, v{G+12}, s[{t+4}:{t+5}]")
        a(f"v_mul_f32 v{G}, s{cL2E}, v{G}\nv_exp_f32 v{G}, -v{G}\ns_nop 0\nv_add_f32 v{G}, 1.0, v{G}\nv_rcp_f32 v{G}, v{G}")
        a(f"s_lshl_b32 s{t}, s{sRb64}, 8\ns_add_u32 s{t}, s{t}, {WS_G}\nv_lshlrev_b32 v{G+1}, 2, v{vLane}")
        a(f"buffer_store_dword v{G}, v{G+1}, {WSR}, s{t} offen sc1")
        a.label(labE)
        a(f"v_mov_b32 v0, v{vLane}")
        self.stamp(3)
        self.finish1([sF1, sF2])

    def compute_KV(self):
        a = self.a
        t = T0
        ACC, XB, WB = 0, 112, 128
        vX0, vX1, vK, vQ0, vL = 240, 241, 242, 243, 247
        vLane = 253
        sPq, sF2, sRec = 72, 73, 74
        a(f"v_mov_b32 v{vLane}, v0")
        a(f"v_and_b32 v1, 15, v0\nv_lshrrev_b32 v2, 4, v0\nv_lshrrev_b32 v3, 1, v1\nv_xor_b32 v3, v3, v2\nv_lshlrev_b32 v3, 4, v3\nv_lshl_add_u32 v3, v1, 7, v3")
        a(f"s_lshl_b32 s{t}, s{sWAVE}, 12\nv_add_u32 v{vX0}, s{t}, v3\nv_xor_b32 v{vX1}, 64, v{vX0}")
        a(f"v_lshrrev_b32 v3, 2, v0\nv_and_b32 v4, 3, v0\nv_lshlrev_b32 v4, 3, v4")
        a(f"v_mul_u32_u24 v5, 160, v3\nv_add_u32 v5, v5, v4\nv_add_u32 v{vK}, {WR}, v5")
        a(f"v_lshl_add_u32 v5, v3, 7, v4\nv_bfe_u32 v6, v0, 3, 2\nv_lshl_add_u32 v5, v6, 5, v5\nv_add_u32 v{vQ0}, {WR+10240}, v5")
        for u in range(1, 4): a(f"v_xor_b32 v{vQ0+u}, {32*u}, v{vQ0}")
        a(f"v_lshlrev_b32 v{vL}, 4, v0")
        a(f"s_lshr_b32 s{t}, s{sWAVE}, 1\ns_lshl1_add_u32 s{t+1}, s{sRB}, s{t}")
        a(f"s_lshl_b32 s{sF2}, s{t+1}, 7\ns_add_u32 s{sF2}, s{sF2}, {CNT_PQ}")
        a(f"s_mul_i32 s{t+1}, s{t+1}, 40\ns_lshl2_add_u32 s{t+1}, s{sGRP}, s{t+1}\ns_and_b32 s{t}, s{sWAVE}, 1\ns_lshl1_add_u32 s{t+1}, s{t+1}, s{t}\ns_lshl_b32 s{t+1}, s{t+1}, 10\ns_add_u32 s{sPq}, s{t+1}, {WS_PQ}")
        a(f"s_lshl2_add_u32 s{t}, s{sGRP}, s{sWAVE}\ns_lshl_b32 s{sF1}, s{t}, 7\ns_add_u32 s{sF1}, s{sF1}, {CNT_KV}")
        a(f"s_mul_i32 s{t}, s{t}, 1792\ns_add_u32 s{sRec}, s{t}, {WS_KVP}")
        a(f"s_mov_b32 s{cL2E}, 0x3fb8aa3b\ns_mov_b32 s{cL2E+1}, 0x3fb8aa3b")
        self.consts("phi")
        a("s_waitcnt lgkmcnt(0)")
        self.stamp(0)
        self.srd(SRD_WS, pWS, WS_SIZE)
        if TOUCH: self.touch(vLane, 248)
        def reads(i):
            b = i & 1; so = (i % 3) * WSLOT
            xs = XR + ((i >> 1) % 3) * 16384
            r = [f"ds_read_b128 v[{XB+8*b+4*s}:{XB+8*b+4*s+3}], v{vX1 if i & 1 else vX0} offset:{xs + 2048*s}" for s in range(2)]
            for u in range(14):
                d = WB + 56*b + 4*u
                if u < 10: base, off, d2 = vK, 5120*(u // 5) + 32*(u % 5), 2560
                else: base, off, d2 = vQ0 + u - 10, 0, 2048
                r.append(f"ds_read_b64_tr_b16 v[{d}:{d+1}], v{base} offset:{so + off}")
                r.append(f"ds_read_b64_tr_b16 v[{d+2}:{d+3}], v{base} offset:{so + off + d2}")
            return r
        def mfmas(i):
            b = i & 1
            r = []
            order = list(range(14)) if i < 19 else [5, 6, 7, 8, 9, 0, 1, 2, 3, 4, 10, 11, 12, 13]
            for u in order:
                for s in range(2):
                    d = ACC + 8*u + 4*s
                    c = f"v[{d}:{d+3}]" if i > 0 else "0"
                    w, x = f"v[{WB+56*b+4*u}:{WB+56*b+4*u+3}]", f"v[{XB+8*b+4*s}:{XB+8*b+4*s+3}]"
                    r.append(f"v_mfma_f32_16x16x32_bf16 v[{d}:{d+3}], {x if u < 10 else w}, {w if u < 10 else x}, {c}")
            return r
        self.main_loop(reads, mfmas, {}, 24, [vK, vQ0, vQ0+1, vQ0+2, vQ0+3])
        TM = XB
        vEx = vX0
        a(f"s_mul_i32 s{t}, s{sWAVE}, 10240\nv_add_u32 v{vEx}, s{t}, v{vL}")
        for u in range(5, 10):
            e = ACC + 8*u
            a(f"v_cvt_pk_bf16_f32 v{e}, v{e}, v{e+1}\nv_cvt_pk_bf16_f32 v{e+1}, v{e+2}, v{e+3}\nv_cvt_pk_bf16_f32 v{e+2}, v{e+4}, v{e+5}\nv_cvt_pk_bf16_f32 v{e+3}, v{e+6}, v{e+7}")
            a(f"ds_write_b128 v{vEx}, v[{e}:{e+3}] offset:{XR + 1024*u}")
        for u in range(5):
            e = ACC + 8*u
            for l in self.phi_quad(e, e, TM): a(l)
            for l in self.phi_quad(e + 4, e + 2, TM + 4): a(l)
            a(f"ds_write_b128 v{vEx}, v[{e}:{e+3}] offset:{XR + 1024*u}")
        a(f"s_lshl_b32 s{t}, s{sWAVE}, 10\nv_add_u32 v{vEx}, s{t}, v{vL}")
        ONE = WB + 64
        for k in range(4): a(f"v_mov_b32 v{ONE+k}, 0x3f803f80")
        a("s_waitcnt lgkmcnt(0)\ns_barrier")
        FR = WB
        for g in range(4):
            for j, off in enumerate((0, 1024, 5120, 6144)):
                a(f"ds_read_b128 v[{FR+16*g+4*j}:{FR+16*g+4*j+3}], v{vEx} offset:{XR + 10240*g + off}")
        AD = WB + 72
        dc, BG, ev, R = AD, AD + 2, AD + 3, AD + 8
        ad = [f"v_lshrrev_b32 v{dc}, 4, v{vLane}", f"v_and_b32 v{ev}, 15, v{vLane}", f"v_mov_b32 v{BG}, 0x10000", f"v_cmp_eq_u32 vcc, 0, v{ev}",
              f"v_mov_b32 v{R}, 320", f"v_subrev_u32 v{dc}, s{sWAVE}, v{dc}", f"v_cndmask_b32 v{ev+2}, v{BG}, v{R}, vcc", f"v_add_u32 v{dc+1}, 4, v{dc}",
              f"s_lshl_b32 s{t}, s{sWAVE}, 2", f"v_subrev_u32 v{ev}, s{t}, v{ev}", f"v_add_u32 v{ev+1}, 16, v{ev}",
              f"s_lshl_b32 s{t+4}, s{sWAVE}, 11", f"s_add_u32 s{t+4}, s{t+4}, {STG}"]
        for k in range(2):
            ad += [f"v_cmp_gt_u32 vcc, 5, v{dc+k}", f"v_cmp_gt_u32 s[{t+2}:{t+3}], 20, v{ev+k}", f"v_mul_u32_u24 v{dc+k}, 336, v{dc+k}", f"v_lshlrev_b32 v{ev+k}, 4, v{ev+k}",
                   f"v_cndmask_b32 v{dc+k}, v{BG}, v{dc+k}, vcc", f"v_cndmask_b32 v{ev+k}, v{BG}, v{ev+k}, s[{t+2}:{t+3}]"]
        for k in range(2):
            ad += [f"v_add_u32 v{R+3*k+b}, v{dc+k}, v{ev+b}" for b in range(3)]
            ad += [f"v_min_u32 v{R+3*k+b}, 1680, v{R+3*k+b}" for b in range(3)]
            ad += [f"v_add_u32 v{R+3*k+b}, s{t+4}, v{R+3*k+b}" for b in range(3)]
        ad += [f"v_lshlrev_b32 v{dc}, 2, v{vLane}", f"v_add_u32 v{vEx}, s{t+4}, v{dc}"]
        for l in ad[:20]: a(l)
        D = ACC
        mm = []
        for g in range(4):
            for k in range(2):
                for b in range(3):
                    d = D + 12*k + 4*b
                    B = f"v[{FR+16*g+8+4*b}:{FR+16*g+8+4*b+3}]" if b < 2 else f"v[{ONE}:{ONE+3}]"
                    mm.append(f"v_mfma_f32_16x16x32_bf16 v[{d}:{d+3}], v[{FR+16*g+4*k}:{FR+16*g+4*k+3}], {B}, {'0' if g == 0 else f'v[{d}:{d+3}]'}")
        a("s_waitcnt lgkmcnt(0)")
        for l in interleave(mm, ad[20:], 0, 16): a(l)
        def qmath(u):
            e = ACC + 8*u
            return self.phi_quad(e, e, TM) + self.phi_quad(e + 4, e + 2, TM + 4)
        q10 = qmath(10)
        for l in q10[:8]: a(l)
        for j in range(6): a(f"ds_write_b128 v{R+j}, v[{D+4*j}:{D+4*j+3}]")
        for l in q10[8:20]: a(l)
        a("s_waitcnt lgkmcnt(0)")
        for j in range(7): a(f"ds_read_b32 v{j}, v{vEx} offset:{256*j}")
        for l in q10[20:]: a(l)
        a("s_waitcnt lgkmcnt(0)")
        for j in range(7):
            if j == 6: a("s_mov_b32 exec_hi, 15")
            a(f"buffer_atomic_add_f32 v{j}, v{dc}, {WSR}, s{sRec} offen offset:{256*j} sc1")
        a("s_mov_b32 exec_hi, -1")
        a(f"s_add_u32 s{t}, s{sPq}, 4096")
        def qst(u):
            e = ACC + 8*(10 + u)
            a(f"buffer_store_dwordx4 v[{e}:{e+3}], v{vL}, {WSR}, s{sPq if u < 2 else t} offen offset:{2048*(u & 1)} sc1")
        qst(0)
        for u in (1, 2, 3):
            for l in qmath(10 + u): a(l)
            qst(u)
        a(f"v_mov_b32 v0, v{vLane}")
        self.stamp(3)
        self.finish1([sF1, sF2], strict=True)

    def setup2(self):
        a = self.a
        t = T0
        if MAP2 == "x2":
            a(f"s_bfe_u32 s{t+2}, s{sWG}, 0x20001\ns_bfe_u32 s{t+3}, s{sWG}, 0x30003\ns_lshl3_add_u32 s{sR64}, s{t+2}, s{t+3}")
            a(f"s_and_b32 s{t+2}, s{sWG}, 1\ns_lshr_b32 s{t+3}, s{sWG}, 6\ns_lshl2_add_u32 s{sC}, s{t+2}, s{t+3}")
        else:
            a(f"s_and_b32 s{t+2}, s{sWG}, 7\ns_bfe_u32 s{t+3}, s{sWG}, 0x20003\ns_lshl2_add_u32 s{sR64}, s{t+2}, s{t+3}\ns_lshr_b32 s{sC}, s{sWG}, 5")
        a(f"v_lshlrev_b32 v{vL16}, 4, v0\nv_add_u32 v{vL16b}, 4096, v{vL16}")
        if ROT2 == "none":
            a(f"s_mov_b32 s{t}, 0")
        elif ROT2 == "two":
            a(f"s_lshr_b32 s{t}, s{sWG}, 3\ns_lshr_b32 s{t+1}, s{sWG}, {6 if MAP2 == 'x2' else 5}\ns_xor_b32 s{t}, s{t}, s{t+1}\ns_and_b32 s{t}, s{t}, 1\ns_mul_i32 s{t}, s{t}, 3")
        elif MAP2 == "x2":
            a(f"s_and_b32 s{t}, s{sC}, 3\ns_mul_i32 s{t}, s{t}, 3\ns_lshr_b32 s{t}, s{t}, 1")
        else:
            a(f"s_mul_i32 s{t}, s{sC}, 3\ns_lshr_b32 s{t}, s{t}, 2")
        a(f"s_mul_i32 s{t+1}, s{sWAVE}, 6")
        a(f"s_mul_i32 s{t+2}, s{sC}, {48*5120}\ns_add_u32 s{t+2}, s{t+2}, {WS_W2R}")
        a(f"s_mul_i32 s{t+3}, s{sR64}, {48*4096}\ns_add_u32 s{t+3}, s{t+3}, {WS_ACT}")
        for i in range(6):
            a(f"s_add_u32 s{t+4}, s{t+1}, s{t}\ns_mul_i32 s{sB0+i}, s{t+4}, 5120\ns_add_u32 s{sB0+i}, s{sB0+i}, s{t+2}")
            a(f"s_lshl_b32 s{sA0+i}, s{t+4}, 12\ns_add_u32 s{sA0+i}, s{sA0+i}, s{t+3}")
            if i < 5: a(f"s_add_u32 s{t}, s{t}, 1\ns_cmp_eq_u32 s{t}, 6\ns_cselect_b32 s{t}, 0, s{t}")
        a(f"s_lshl3_add_u32 s{sFa}, s{sR64}, s{sWAVE}\ns_lshl_b32 s{sFa}, s{sFa}, 7\ns_lshl_b32 s{sFq}, s{sR64}, 7\ns_add_u32 s{sFq}, s{sFq}, {CNT_PQ}")
        a(f"s_mul_i32 s{sPQb}, s{sR64}, 40\ns_mul_i32 s{t}, s{sWAVE}, 5\ns_add_u32 s{sPQb}, s{sPQb}, s{t}\ns_lshl_b32 s{sPQb}, s{sPQb}, 11\ns_add_u32 s{sPQb}, s{sPQb}, {WS_PQ}")
        a(f"s_lshl3_add_u32 s{sMb}, s{sC}, s{sWAVE}\ns_mul_i32 s{sMb}, s{sMb}, 12800\ns_add_u32 s{sMb}, s{sMb}, {WS_WOR}")
        a(f"s_mul_i32 s{sKv}, s{sWAVE}, 7168\ns_add_u32 s{sKv}, s{sKv}, {WS_KVP}\ns_lshl_b32 s{sFk}, s{sWAVE}, 9\ns_add_u32 s{sFk}, s{sFk}, {CNT_KV}")

    def preload_b(self, n0, n1):
        for n in range(n0, n1):
            i, jn = divmod(n, 5)
            d = BS + 20*i + 4*jn
            self.a(f"buffer_load_dwordx4 v[{d}:{d+3}], v{vL16 if jn < 4 else vL16b}, {WSR}, s{sB0+i} offen offset:{1024*jn if jn < 4 else 0} sc1")

    def stage_b(self):
        a = self.a
        t = T0
        a(f"s_mul_i32 s{t}, s{sT}, 20480\ns_add_u32 s{t}, s{t}, {BL}")
        for i in range(2, 6):
            a(f"s_sub_u32 s{t+1}, s{sB0+i}, 122880")
            for jn in range(5):
                if jn in (0, 4):
                    a(f"s_add_u32 m0, s{t}, {5120*(i-2) + 1024*jn}")
                    a(f"s_add_u32 s{t+1}, s{t+1}, 4096" if jn else "s_nop 0")
                a(f"buffer_load_dwordx4 v{vL16}, {WSR}, s{t+1} offen offset:{1024*(jn % 4)} sc1 lds")
        self.srd(SRD_D, pDBG, 256)
        sk = a.newlabel("L_s2")
        a(f"s_cmp_lg_u32 s{sWAVE}, 4\ns_cbranch_scc1 {sk}\nv_mov_b32 v8, 128\ns_mov_b32 s{t}, 128")
        self.poll("0", f"s{t}", 8, 9, SRD_D)
        a.label(sk)
        a("s_waitcnt vmcnt(0)")

    def gemm2(self):
        a = self.a
        t = T0
        seq = []
        def ld(dst, n, v, so, off, tag):
            a(f"buffer_load_dword{ {1: '', 2: 'x2', 4: 'x4'}[n] } {vr(dst, n)}, v{v}, {WSR}, s{so} offen offset:{off} sc1"); seq.append(tag)
        def wait(tag):
            last = max(n for n, x in enumerate(seq) if x == tag)
            a(f"s_waitcnt vmcnt({len(seq) - 1 - last})")
        def act(i):
            for st in range(4): ld(AB + 16*(i % 3) + 4*st, 4, vL16, sA0 + i, 1024*st, f"act{i}")
        def check(soff, target):
            ok = a.newlabel("L_ok")
            a(f"v_cmp_le_u32 vcc, {target}, v{vP+1}\ns_nop 1\ns_cmp_eq_u64 vcc, -1\ns_cbranch_scc1 {ok}")
            self.poll(f"s{soff}", target, vP, vP + 1)
            a.label(ok)
        LN = 255
        a(f"v_lshrrev_b32 v{LN}, 4, v{vL16}\nv_mov_b32 v{vP}, 0")
        a("s_barrier")
        self.stamp(4)
        self.pickup()
        if GSYNC:
            sk = a.newlabel("L_gs")
            a(f"s_waitcnt vmcnt(0)\ns_barrier\ns_cmp_lg_u32 s{sWAVE}, 4\ns_cbranch_scc1 {sk}")
            self.srd(SRD_D, pDBG, 256)
            a(f"v_mov_b32 v1, 1\nv_mov_b32 v2, 192\ns_mov_b64 exec, 1\nbuffer_atomic_add v1, v2, s[{SRD_D}:{SRD_D+3}], 0 offen sc1\ns_mov_b64 exec, -1\ns_sleep 127\ns_sleep 127\ns_mov_b32 s{t}, 256")
            global SLEEP
            old = SLEEP; SLEEP = 64
            self.poll("0", f"s{t}", 2, 3, SRD_D)
            SLEEP = old
            a.label(sk)
            a("s_barrier")
        self.poll(f"s{sFa}", 2, vP, vP + 1)
        self.stamp(6)
        act(0)
        ld(vP + 1, 1, vP, sFq, 0, "fq")
        act(1); act(2)
        def pq(sp):
            for tt in range(5):
                ld(PQR + 20*sp + 4*tt, 4, vL16, (sPQb, t, t + 1)[tt >> 1], 2048*(tt & 1) + 1024*sp, f"pq{sp}")
        chunks = [(0, 0), (0, 1), (1, 0), (1, 1), (1, 2), (2, 1), (2, 2), (2, 3), (3, 2), (3, 3), (4, 3), (3, 4), (4, 4)] + [("z", tt) for tt in range(5)]
        slot = dict(zip(chunks, [0, 1, 2, 3, 4, 7, 8, 9, 10, 11, 13, 14, 15, 16, 17, 18, 19, 20]))
        X = 140
        ad = [f"v_and_b32 v{X}, 15, v{LN}", f"v_lshrrev_b32 v{X+1}, 4, v{LN}", f"s_add_u32 s{t+2}, s{sLB}, 13312", f"v_mul_u32_u24 v{X+3}, 336, v{X+1}", f"v_add_u32 v{X+3}, s{t+2}, v{X+3}",
              f"s_add_u32 s{t+2}, s{t+2}, 7056", f"v_mov_b32 v{X+13}, s{t+2}"] + [f"v_subrev_u32 v{X+13+k}, {1344*k}, v{X+13}" for k in range(1, 5)]
        for te in (0, 1, 2, 3, 4, "z"):
            if te == "z":
                ad += [f"v_and_b32 v{X+4}, 3, v{LN}", f"v_mul_u32_u24 v{X+5}, 112, v{X+4}", f"v_add_u32 v{X+6}, 320, v{X+3}", f"v_add_u32 v{X+5}, v{X+5}, v{X+6}"]
            else:
                ad += [f"v_add_u32 v{X+6}, {16*te}, v{X}", f"v_mul_u32_u24 v{X+4}, 3277, v{X+6}", f"v_lshrrev_b32 v{X+4}, 16, v{X+4}",
                       f"v_lshl_add_u32 v{X+6}, v{X+6}, 4, v{X+3}", f"v_mad_i32_i24 v{X+5}, v{X+4}, s{sN208}, v{X+6}"]
            ad += [f"v_mad_i32_i24 v{X+4}, v{X+4}, -5, v{X+1}"]
            mine = [(j, c) for j, c in enumerate(chunks) if c[0] == te]
            for n, (j, c) in enumerate(mine):
                ad += [f"v_add_u32 v{X+8+n}, {4*c[1]}, v{X+4}"]
            for n, (j, c) in enumerate(mine):
                ad += [f"v_cmp_gt_u32 s[{t+4+2*n}:{t+5+2*n}], 5, v{X+8+n}"]
            ad += ["s_nop 0"]
            for n, (j, c) in enumerate(mine):
                ad += [f"v_cndmask_b32 v{KA+j}, v{X+13+c[1]}, v{X+5}, s[{t+4+2*n}:{t+5+2*n}]"]
        na = (len(ad) + 1) // 2
        def dma(so, n, lds, tag):
            for k in range(n):
                if k % 4 == 0:
                    a(f"s_add_u32 m0, s{sLB}, {lds + 1024*k}")
                    a(f"s_add_u32 s{so}, s{so}, 4096" if k else "s_nop 0")
                a(f"buffer_load_dwordx4 v{vL16}, {WSR}, s{so} offen offset:{1024*(k % 4)} sc1 lds"); seq.append(tag)
        a(f"s_xor_b32 s{sLB}, s{sWAVE}, 4\ns_mul_i32 s{sLB}, s{sLB}, 20480\ns_mov_b32 s{sN208}, -208")
        for i in range(6):
            wait(f"act{i}")
            mm = []
            for jn in range(5):
                for st in range(4):
                    d = 20*st + 4*jn
                    mm.append(f"v_mfma_f32_16x16x32_bf16 v[{d}:{d+3}], v[{BS+20*i+4*jn}:{BS+20*i+4*jn+3}], v[{AB+16*(i%3)+4*st}:{AB+16*(i%3)+4*st+3}], {'0' if i == 0 else f'v[{d}:{d+3}]'}")
            for l in interleave(mm, ad[na*(i-4):na*(i-3)] if i >= 4 else []): a(l)
            if i < 3: act(i + 3)
            if i == 1: a("s_waitcnt lgkmcnt(0)")
            if i == 2:
                check(sFq, 25)
                a(f"s_add_u32 s{t}, s{sPQb}, 4096\ns_add_u32 s{t+1}, s{sPQb}, 8192")
                a(f"v_and_b32 v{vP+1}, 15, v{LN}\nv_lshlrev_b32 v{vP+1}, 2, v{vP+1}\ns_lshl_b32 s{t+2}, s{sR64}, 8\ns_add_u32 s{t+2}, s{t+2}, {WS_G}")
                for st in range(4): ld(vG + st, 1, vP + 1, t + 2, 64*st, "g")
                a(f"v_and_b32 v{vP}, 3, v{LN}\nv_lshlrev_b32 v{vP}, 7, v{vP}")
                ld(vP + 1, 1, vP, sFk, 0, "fk")
                pq(0)
                if WOAT == 2: dma(sMb, 13, 0, "wo")
            if i == 3 and WOAT == 3: dma(sMb, 13, 0, "wo")
            if i == KVAT:
                wait("fk")
                check(sFk, 16)
                pq(1)
                dma(sKv, 7, 13312, "kv")
        self.stamp(7)
        OM = 170
        for st in range(4): a(f"v_sub_f32 v{OM+st}, 1.0, v{vG+st}")
        for st in range(4):
            sel = "op_sel_hi:[1,0]" if st % 2 == 0 else "op_sel:[0,1]"
            for k in range(10):
                d = 20*st + 2*k
                a(f"v_pk_mul_f32 v[{d}:{d+1}], v[{d}:{d+1}], v[{OM + (st & 2)}:{OM + (st & 2) + 1}] {sel}")
        vRW = vP + 1
        a(f"v_and_b32 v{OM}, 15, v{LN}\nv_mul_u32_u24 v{OM}, 160, v{OM}\nv_bfe_u32 v{OM+1}, v{LN}, 5, 1\nv_lshl_add_u32 v{OM}, v{OM+1}, 4, v{OM}")
        a(f"v_bfe_u32 v{OM+1}, v{LN}, 4, 1\nv_mul_u32_u24 v{OM+1}, 10240, v{OM+1}\nv_add3_u32 v{vRW}, v{OM}, v{OM+1}, s{sLB}")
        def swaps(R):
            return [f"v_swap_b32 v{R+8*p+2+k}, v{R+8*p+4+k}" for p in range(2) for k in range(2)]
        a(f"s_mov_b32 s{cE}, 0x358637bd")
        mq = [t + 4, t + 6, t + 8]
        a(f"s_mov_b32 s{mq[0]}, 0xffff\ns_mov_b32 s{mq[0]+1}, 0\ns_mov_b32 s{mq[1]}, -1\ns_mov_b32 s{mq[1]+1}, 0\ns_mov_b32 s{mq[2]}, -1\ns_mov_b32 s{mq[2]+1}, 0xffff")
        a(f"v_add_u32 v{OM}, s{sLB}, v{vL16}\nv_lshlrev_b32 v{OM+1}, 3, v{LN}\nv_add_u32 v{OM+1}, s{sLB}, v{OM+1}")
        wait("kv")
        self.stamp(8)
        for j, c in enumerate(chunks):
            a(f"ds_read_b128 v[{KD+4*j}:{KD+4*j+3}], v{KA+j} offset:{1344*c[1]}")
        for l in swaps(PQR) + swaps(PQR + 20): a(l)
        a("s_waitcnt lgkmcnt(0)")
        for f in range(10): a(f"ds_read_b128 v[{MR+4*f}:{MR+4*f+3}], v{OM} offset:{1024*f}")
        for jn in range(5): a(f"ds_read_b64 v[{MR+40+2*jn}:{MR+41+2*jn}], v{OM+1} offset:{10240 + 512*jn}")
        for j, c in enumerate(chunks):
            d, r = KD + 2*slot[c], KD + 4*j
            a(f"v_cvt_pk_bf16_f32 v{d}, v{r}, v{r+1}\nv_cvt_pk_bf16_f32 v{d+1}, v{r+2}, v{r+3}")
        for z in (5, 6, 12): a(f"v_mov_b32 v{KD+2*z}, 0\nv_mov_b32 v{KD+2*z+1}, 0")
        O, DN, SC = 218, 238, 242
        def fq(st, tt):
            R = PQR + 20*(st >> 1)
            return R + 8*(tt >> 1) + 4*(st & 1) + 2*(tt & 1) if tt < 4 else R + 16 + 2*(st & 1)
        K32 = lambda d, A, B, c: f"v_mfma_f32_16x16x32_bf16 v[{d}:{d+3}], v[{A}:{A+3}], v[{B}:{B+3}], {c}"
        K16 = lambda d, A, B: f"v_mfma_f32_16x16x16_bf16 v[{d}:{d+3}], v[{A}:{A+1}], v[{B}:{B+1}], v[{d}:{d+3}]"
        acc = lambda d: f"v[{d}:{d+3}]"
        S = lambda k: KD + 2*k
        def Xb(st):
            p0, p1, ps = fq(st, 0), fq(st, 2), fq(st, 4)
            return [K32(DN, S(16), p0, "0"), K32(O+12, S(10), p1, "0"), K32(O+16, S(12), p1, "0"), K32(DN, S(18), p1, acc(DN)),
                    K32(O, S(0), p0, "0"), K32(O+4, S(2), p0, "0"), K32(O+8, S(6), p0, "0"), K32(O+4, S(4), p1, acc(O+4)), K32(O+8, S(8), p1, acc(O+8)),
                    "s_nop 0", K16(DN, S(20), ps), K16(O+12, S(14), ps), K16(O+16, S(15), ps)]
        def Vb(st):
            r = [f"v_add_f32 v{DN+k}, s{cE}, v{DN+k}" for k in range(4)] + [f"v_rcp_f32 v{DN+k}, v{DN+k}" for k in range(4)]
            r += [f"v_mul_f32 v{DN+k}, v{vG+st}, v{DN+k}" for k in range(4)]
            r += [f"v_cndmask_b32 v{SC+k}, v{DN+k+1}, v{DN+k}, s[{mq[k]}:{mq[k]+1}]" for k in range(3)]
            for tt in range(5):
                sc = (DN, SC, SC + 1, SC + 2, DN + 3)[tt]; o = O + 4*tt
                r += [f"v_mul_f32 v{o+k}, v{sc}, v{o+k}" for k in range(4)]
                r += [f"v_cvt_pk_bf16_f32 v{fq(st,tt)}, v{o}, v{o+1}", f"v_cvt_pk_bf16_f32 v{fq(st,tt)+1}, v{o+2}, v{o+3}"]
            return r
        def Yb(st):
            r = []
            for p in range(2):
                r += [K32(20*st + 4*jn, MR + 4*(2*jn + p), fq(st, 2*p), acc(20*st + 4*jn)) for jn in range(5)]
            r += ["s_nop 1"] + [K16(20*st + 4*jn, MR + 40 + 2*jn, fq(st, 4)) for jn in range(5)]
            return r
        def wrl(st):
            return [f"ds_write_b128 v{vRW}, v[{20*st+4*jn}:{20*st+4*jn+3}] offset:{2560*st + 32*jn}" for jn in range(5)]
        def wr(st):
            for l in wrl(st): a(l)
        a("s_nop 1")
        for l in Xb(0): a(l)
        a("s_nop 5")
        for l in Vb(0): a(l)
        for l in Xb(1): a(l)
        a("s_waitcnt lgkmcnt(0)")
        y = Yb(0)
        for l in y[:4] + interleave(y[4:], Vb(1)): a(l)
        for st in (2, 3):
            for l in Xb(st): a(l)
            y = Yb(st - 1)
            for l in interleave(y[:5], wrl(st - 2)) + interleave(y[5:], Vb(st)): a(l)
        a("s_nop 1")
        for l in interleave(Yb(3), wrl(2)): a(l)
        AB2 = AB
        a(f"s_mul_i32 s{t}, s{sWAVE}, 80\nv_add_u32 v{AB}, s{t}, v{LN}\nv_add_u32 v{AB+1}, 64, v{AB}")
        for k in range(2):
            a(f"v_mul_u32_u24 v{AB+2}, 6554, v{AB+k}\nv_lshrrev_b32 v{AB+2}, 16, v{AB+2}\nv_mad_i32_i24 v{AB+3}, v{AB+2}, -10, v{AB+k}")
            a(f"v_mul_u32_u24 v{AB+2}, 1280, v{AB+2}\nv_lshl_add_u32 v{AB+4+k}, v{AB+3}, 4, v{AB+2}\nv_lshlrev_b32 v{AB+k}, 4, v{AB+k}")
        wr(3)
        self.srd(SRD_M, pOUT, 2048*640*2)
        a(f"s_mul_i32 s{t}, s{sR64}, 81920\ns_mul_i32 s{t+1}, s{sC}, 160\ns_add_u32 s{t}, s{t}, s{t+1}")
        a(f"v_add_u32 v{AB+6}, 61440, v{AB}\nv_add_u32 v{AB+7}, 61440, v{AB+1}\nv_add_u32 v{AB+8}, 122880, v{AB}\nv_add_u32 v{AB+9}, 122880, v{AB+1}")
        a("s_waitcnt lgkmcnt(0)\ns_barrier")
        self.stamp(9)
        for k in range(2):
            if k == 1: a("s_mov_b64 exec, 0xffff")
            R = 64*k
            for w in range(8):
                for par in range(2):
                    base = [AB + k, AB + 6 + k, AB + 8 + k][w // 3]
                    a(f"ds_read_b128 v[{R+8*w+4*par}:{R+8*w+4*par+3}], v{base} offset:{20480*(w % 3) + 10240*par}")
        a("s_mov_b64 exec, -1")
        for k in range(2):
            R = 64*k
            a(f"s_waitcnt lgkmcnt({15 if k == 0 else 0})")
            for pairs in (((0, 4), (1, 5), (2, 6), (3, 7)), ((0, 2), (1, 3)), ((0, 1),)):
                for x, y in pairs:
                    for j in range(4):
                        a(f"v_pk_add_f32 v[{R+8*x+2*j}:{R+8*x+2*j+1}], v[{R+8*x+2*j}:{R+8*x+2*j+1}], v[{R+8*y+2*j}:{R+8*y+2*j+1}]")
            for j in range(4): a(f"v_cvt_pk_bf16_f32 v{R+j}, v{R+2*j}, v{R+2*j+1}")
            if k == 1: a("s_mov_b64 exec, 0xffff")
            a(f"buffer_store_dwordx4 v[{R}:{R+3}], v{AB+4+k}, s[{SRD_M}:{SRD_M+3}], s{t} offen")
        a("s_mov_b64 exec, -1")


def descriptor(name):
    return f""".p2align 6
.amdhsa_kernel {name}
  .amdhsa_next_free_vgpr 256
  .amdhsa_next_free_sgpr 102
  .amdhsa_accum_offset 256
  .amdhsa_group_segment_fixed_size 0
  .amdhsa_kernarg_size 88
  .amdhsa_user_sgpr_count 2
  .amdhsa_user_sgpr_kernarg_segment_ptr 1
  .amdhsa_system_sgpr_workgroup_id_x 1
.end_amdhsa_kernel
"""

def build(stamps):
    g = Gen(stamps=stamps)
    a = g.a
    K = NAME + "_kernel"
    hdr = open(os.path.join(os.path.dirname(os.path.abspath(__file__)), "header.txt")).read()
    for l in hdr.strip().split("\n"): a.lines.append(l)
    a(f"; @launch grid=(256,1,1) block=(512,1,1) lds={LDS_TOTAL}")
    a('.amdgcn_target "amdgcn-amd-amdhsa--gfx950"\n.text')
    a(f".globl {K}\n.p2align 8\n.type {K},@function")
    a.label(K)
    g.common_prologue("L_end")
    a(f"s_cmp_lt_u32 s{sWAVE}, 4\ns_cbranch_scc1 L_comp")
    g.loader1()
    a("s_setprio 0")
    g.setup2()
    g.srd(SRD_WS, pWS, WS_SIZE)
    g.preload_b(0, NL0)
    a("s_barrier")
    g.preload_b(NL0, 10)
    a(f"s_cmp_lg_u32 s{sTYPE}, 0\ns_cbranch_scc1 L_l2\ns_barrier")
    a.label("L_l2")
    g.preload_b(10, 30)
    if BLDS: g.stage_b()
    g.stamp(3)
    a.label("L_g2")
    g.gemm2()
    g.dump_stamps()
    a.label("L_end")
    a("s_endpgm")
    a.label("L_comp")
    a(f"s_cmp_eq_u32 s{sTYPE}, 0\ns_cbranch_scc1 L_kv")
    g.compute_P(); a("s_branch L_g2")
    a.label("L_kv")
    g.compute_KV(); a("s_branch L_g2")
    errs = lint(a.lines)
    for e in errs: print("HAZARD:", e, file=sys.stderr)
    return a.text() + '.section .rodata,"a"\n' + descriptor(K)

if __name__ == "__main__":
    open(sys.argv[1], "w").write(build(sys.argv[2] if len(sys.argv) > 2 else False))
```

```python
import sys, os
sys.path.insert(0, os.path.dirname(os.path.abspath(__file__)))
from asmlib import *

NAME = "gated_mix__linear_attn_block__dense_activation_mish__prompt"
ENV = os.environ.get

CNT_ACT, CNT_PQ, CNT_KV = 0, 256*128, 288*128
WS_G = 0x10000
WS_KVP = 0x100000
WS_WOR = 0x200000
WS_W2R = 0x300000
WS_PQ = 0x500000
WS_ACT = 0x800000
WS_SIZE = 0x1000000
WS_STAMP = 0x8000000
BIG = 0x20000000
DBGW = int(ENV("DBGW", "0"))
ROTMODE = ENV("ROT", "two")
ROT2 = ENV("ROT2", "two")
NPRE = int(ENV("NPRE", "10"))
SPIN = int(ENV("SPIN", str(0x100000)))
WOAT = int(ENV("WOAT", "-1"))
ADPRE = int(ENV("ADPRE", "0"))
KVAT = int(ENV("KVAT", "3"))
GSYNC = int(ENV("GSYNC", "0"))
PF = int(ENV("PF", "0"))
RS = int(ENV("RS", "3"))
S1AT = int(ENV("S1AT", "8"))
S1SLEEP = int(ENV("S1SLEEP", "2"))
LOOPDBG = int(ENV("LOOPDBG", "0"))
CPF = int(ENV("CPF", "1"))
RD = int(ENV("RD", "-1"))
SKEW = int(ENV("SKEW", "0"))
HINT = 3*20480 + 12800
TAILDBG = int(ENV("TAILDBG", "0"))
OUTFL = ENV("OUTFL", "").replace("_", " ")
PICK = int(ENV("PICK", "0"))
SLEEP = int(ENV("SLEEP", "1"))
BLDS = int(ENV("BLDS", "1"))
NL0 = int(ENV("NL0", "4"))
MAP2 = ENV("MAP2", "x2")
TOUCH = int(ENV("TOUCH", "0"))
MSDBG = int(ENV("MSDBG", "0"))
MSPRIO = int(ENV("MSPRIO", "1"))
MSPRIO2 = int(ENV("MSPRIO2", "1"))

XR = 0
STG = 40960
WR = 49152
WSLOT = 14336
NS = 6
GATE = WR + NS * WSLOT
SCR = GATE + 2048
MS = WR
BL = WR + 32768
BLF = STG + 2040
LDS_TOTAL = 163840

sWG = 2
pX, pWQKV, pWO, pW1, pB1, pW2, pGATE, pOUT, pDBG, pWS = 4, 6, 8, 12, 14, 16, 18, 20, 22, 24
sWAVE, sRB, sHALF, sCBL, sGRP, sF1, sROT, sPIDX, sTYPE, sT = 26, 27, 28, 29, 30, 31, 32, 33, 34, 35
SRD_WS, SRD_X, SRD_W, SRD_M, SRD_D = 36, 40, 44, 52, 56
T0 = 60
sST = 76
cL2E, cC, cE = 96, 98, 100
sR64, sC = 27, 28
sB0, sA0 = 40, 46
sPQb, sMb, sKv, sFk = 0, 1, 3, 29
sFa, sFq = 10, 11
BS, AB = 80, 200
PQR, MR, KA, KD = 80, 120, 120, 176
sLB, sN208 = 30, 31
vG, vP, vL16, vL16b = 248, 252, 254, 255
WSR = f"s[{SRD_WS}:{SRD_WS+3}]"


class Gen:
    def __init__(self, stamps=False):
        self.a = Asm()
        self.stamps = stamps

    def stamp(self, k, loop=False):
        if loop == "tail":
            if not TAILDBG: return
        elif TAILDBG and 1 <= k <= 7: return
        elif LOOPDBG and k >= 3 and not loop: return
        elif loop and not LOOPDBG: return
        if self.stamps and not (self.stamps == "dbg" and k == 9):
            if k < 2 and self.stamps != "dbg" and loop != "tail":
                self.a(f"s_memtime s[58:59]\ns_waitcnt lgkmcnt(0)\ns_mov_b32 s{sST+2*k}, s58")
            else:
                self.a(f"s_memtime s[{sST+2*k}:{sST+2*k+1}]")

    def srd(self, d, ptr, size, add=None):
        a = self.a
        if add is None:
            a(f"s_mov_b32 s{d}, s{ptr}\ns_mov_b32 s{d+1}, s{ptr+1}")
        else:
            a(f"s_add_u32 s{d}, s{ptr}, {add}\ns_addc_u32 s{d+1}, s{ptr+1}, 0")
        a(f"s_mov_b32 s{d+2}, {size}\ns_mov_b32 s{d+3}, 0x20000")

    def signal(self, soff, v):
        self.a(f"v_mov_b32 v{v}, 1\nv_mov_b32 v{v+1}, 0\ns_mov_b64 exec, 1\nbuffer_atomic_add v{v}, v{v+1}, {WSR}, s{soff} offen sc1\ns_mov_b64 exec, -1")

    def poll(self, soff, target, va, vd, srd=SRD_WS, sleep=None):
        a = self.a
        t = T0 + 15
        loop, done = a.newlabel("L_poll"), a.newlabel("L_polld")
        a(f"s_mov_b32 s{t}, 0")
        a.label(loop)
        a(f"buffer_load_dword v{vd}, v{va}, s[{srd}:{srd+3}], {soff} offen sc1\ns_waitcnt vmcnt(0)")
        a(f"v_cmp_le_u32 vcc, {target}, v{vd}\ns_add_u32 s{t}, s{t}, 1\ns_nop 0")
        a(f"s_cmp_eq_u64 vcc, -1\ns_cbranch_scc1 {done}")
        a(f"s_sleep {SLEEP if sleep is None else sleep}\ns_cmp_lt_u32 s{t}, {SPIN}\ns_cbranch_scc1 {loop}")
        a.label(done)

    def dump_stamps(self):
        if not self.stamps:
            return
        a = self.a
        a("s_waitcnt vmcnt(0) lgkmcnt(0)")
        a(f"s_memrealtime s[{T0}:{T0+1}]\ns_memtime s[{T0+2}:{T0+3}]")
        if self.stamps == "dbg":
            self.srd(SRD_M, pDBG, 256)
            a("s_waitcnt lgkmcnt(0)\nv_mov_b32 v2, 0\ns_mov_b64 exec, 1")
            sk = a.newlabel("L_dbg")
            a(f"s_lshl_b32 s{T0+5}, s{sWG}, 3\ns_add_u32 s{T0+5}, s{T0+5}, s{sWAVE}\ns_cmp_lg_u32 s{T0+5}, {DBGW}\ns_cbranch_scc1 {sk}")
            for k in range(1, 10):
                a(f"s_sub_u32 s{T0+5}, s{sST+2*k}, s{sST}\nv_mov_b32 v{3+k}, s{T0+5}")
            a(f"s_sub_u32 s{T0+5}, s{T0+2}, s{sST}\nv_mov_b32 v13, s{T0+5}\ns_sub_u32 s{T0+5}, s{T0}, s94\nv_mov_b32 v14, s{T0+5}\nv_mov_b32 v15, s94")
            for k in range(3):
                a(f"buffer_store_dwordx4 v[{4+4*k}:{7+4*k}], v2, s[{SRD_M}:{SRD_M+3}], 0 offen offset:{16+16*k}")
            a.label(sk)
            a("s_waitcnt vmcnt(0)")
            return
        a(f"s_getreg_b32 s{T0+4}, hwreg(HW_REG_XCC_ID)")
        self.srd(SRD_M, pWS, 0x10000000)
        a("s_waitcnt lgkmcnt(0)")
        for k in range(10):
            a(f"v_mov_b32 v{k}, s{sST+2*k}")
        a(f"v_mov_b32 v10, s{T0}\nv_mov_b32 v11, s{T0+2}\nv_mov_b32 v12, s{T0+4}\nv_mov_b32 v13, s{sTYPE}\nv_mov_b32 v14, s77\nv_mov_b32 v15, s79")
        a(f"s_lshl_b32 s{T0+5}, s{sWG}, 3\ns_add_u32 s{T0+5}, s{T0+5}, s{sWAVE}\ns_lshl_b32 s{T0+5}, s{T0+5}, 6\ns_add_u32 s{T0+5}, s{T0+5}, {WS_STAMP}")
        a("v_mov_b32 v16, 0\ns_mov_b64 exec, 1")
        for k in range(4):
            a(f"buffer_store_dwordx4 v[{4*k}:{4*k+3}], v16, s[{SRD_M}:{SRD_M+3}], s{T0+5} offen offset:{16*k}")
        a("s_waitcnt vmcnt(0)")

    def common_prologue(self, endlabel):
        a = self.a
        t = T0
        a(f"s_cmp_ge_u32 s{sWG}, 256\ns_cbranch_scc1 {endlabel}")
        a("s_load_dwordx16 s[4:19], s[0:1], 0\ns_load_dwordx4 s[20:23], s[0:1], 64\ns_load_dwordx2 s[24:25], s[0:1], 80")
        if self.stamps:
            for k in range(10): a(f"s_mov_b32 s{sST+2*k}, 0")
            if self.stamps == "dbg": a("s_memrealtime s[94:95]")
            else: a("s_memrealtime s[56:57]\ns_memtime s[58:59]\ns_waitcnt lgkmcnt(0)\ns_mov_b32 s77, s56\ns_mov_b32 s79, s58")
        if CPF:
            sk = a.newlabel("L_cpf")
            a(f"s_getpc_b64 s[{t}:{t+1}]\nL_pc0:\ns_lshr_b32 s{t+2}, s{sWG}, 3\ns_lshl_b32 s{t+2}, s{t+2}, 11\nv_lshlrev_b32 v2, 4, v0\nv_add_u32 v2, s{t+2}, v2")
            a(f"v_cmp_gt_u32 vcc, 128, v0\nv_min_u32 v2, L_code_end-L_pc0-16, v2\ns_and_saveexec_b64 s[{t+4}:{t+5}], vcc\ns_cbranch_execz {sk}")
            a(f"global_load_dwordx4 v[248:251], v2, s[{t}:{t+1}]")
            a.label(sk)
            a(f"s_mov_b64 exec, s[{t+4}:{t+5}]")
        a("v_lshrrev_b32 v1, 6, v0\nv_and_b32 v0, 63, v0")
        a(f"v_readfirstlane_b32 s{sWAVE}, v1")
        a(f"s_bfe_u32 s{t+2}, s{sWG}, 0x20001\ns_bfe_u32 s{t+3}, s{sWG}, 0x20003")
        a(f"s_lshl2_add_u32 s{sRB}, s{t+2}, s{t+3}\ns_and_b32 s{sHALF}, s{sWG}, 1\ns_lshr_b32 s{sCBL}, s{sWG}, 5")
        a(f"s_and_b32 s{t}, s{sCBL}, 3\ns_lshl2_add_u32 s{sGRP}, s{sHALF}, s{t}\ns_lshr_b32 s{sTYPE}, s{sCBL}, 2")
        if ROTMODE == "full":
            a(f"s_mul_i32 s{t+4}, s{t+3}, 5\ns_add_u32 s{t+4}, s{t+4}, 1\ns_lshr_b32 s{t+4}, s{t+4}, 1")
            a(f"s_add_u32 s{t+4}, s{t+4}, s{sCBL}\ns_add_u32 s{t+4}, s{t+4}, s{t+2}")
            a(f"s_mul_i32 s{t+5}, s{sHALF}, 5\ns_add_u32 s{sROT}, s{t+4}, s{t+5}")
            for _ in range(2):
                a(f"s_sub_u32 s{t+4}, s{sROT}, 10\ns_cmp_ge_u32 s{sROT}, 10\ns_cselect_b32 s{sROT}, s{t+4}, s{sROT}")
        elif ROTMODE == "none":
            a(f"s_mov_b32 s{sROT}, 0")
        elif ROTMODE == "xcd":
            a(f"s_mul_i32 s{t+4}, s{t+2}, 5\ns_add_u32 s{t+4}, s{t+4}, 1\ns_lshr_b32 s{t+4}, s{t+4}, 1\ns_add_u32 s{sROT}, s{t+4}, s{sHALF}")
        elif ROTMODE == "two0":
            a(f"s_add_u32 s{t+4}, s{t+3}, s{sCBL}\ns_and_b32 s{t+4}, s{t+4}, 1\ns_mul_i32 s{sROT}, s{t+4}, 5")
        elif ROTMODE == "two1":
            a(f"s_add_u32 s{t+4}, s{t+3}, s{sCBL}\ns_and_b32 s{t+4}, s{t+4}, 1\ns_mul_i32 s{t+4}, s{t+4}, 5\ns_and_b32 s{t+5}, s{t+2}, 1\ns_lshl1_add_u32 s{sROT}, s{t+5}, s{t+4}")
        elif ROTMODE == "two":
            a(f"s_add_u32 s{t+4}, s{t+3}, s{sCBL}\ns_and_b32 s{t+4}, s{t+4}, 1\ns_mul_i32 s{t+4}, s{t+4}, 5")
            a(f"s_add_u32 s{t+4}, s{t+4}, s{t+2}\ns_add_u32 s{sROT}, s{t+4}, s{sHALF}")

    def loader1(self):
        a = self.a
        t = T0
        sLW = sT
        vXE, vXO, vW, vGt = 2, 3, 4, 8
        sStr, sCol, sA32, sA64, sOff, sXo, sWB, sWB2, sXB, sXP, sSel = 48, 49, 50, 51, t+4, t+5, t+6, t+7, t+8, t+9, t+10
        a(f"s_setprio 2\ns_sub_u32 s{sLW}, s{sWAVE}, 4")
        a("v_lshrrev_b32 v10, 3, v0\nv_and_b32 v11, 7, v0\nv_lshrrev_b32 v12, 4, v0\nv_mul_u32_u24 v13, 1280, v10\nv_xor_b32 v14, v11, v12")
        a(f"s_and_b32 s{t}, s{sLW}, 1\ns_lshl_b32 s{t}, s{t}, 6")
        a(f"v_lshl_add_u32 v13, v14, 4, v13\nv_xor_b32 v{vXE}, s{t}, v13\nv_xor_b32 v{vXO}, 64, v{vXE}")
        a(f"s_lshl_b32 s{sA32}, s{sROT}, 1\ns_mov_b32 s{sA64}, s{sROT}\ns_mul_i32 s{sXB}, s{sLW}, 3072\ns_mul_i32 s{sXP}, s{sLW}, 30720")
        for k in range(6, 10): a(f"v_mov_b32 v{k}, {BIG}")
        lKV, lQH, lLN, lJ = a.newlabel("L_wkv"), a.newlabel("L_wqh"), a.newlabel("L_wln"), a.newlabel("L_wj")
        a(f"s_cmp_eq_u32 s{sTYPE}, 0\ns_cbranch_scc1 {lKV}")
        a(f"s_cmp_eq_u32 s{sLW}, 3\ns_cbranch_scc1 {lQH}")
        a(f"s_mov_b32 s{sSel}, 1\ns_mov_b32 s{sStr}, 3072\ns_mul_i32 s{sCol}, s{sGRP}, 3\ns_add_u32 s{sCol}, s{sCol}, s{sLW}\ns_lshl_b32 s{sCol}, s{sCol}, 7\ns_lshl_b32 s{sWB}, s{sLW}, 12")
        a.label(lLN)
        a(f"v_and_b32 v13, 4, v10\nv_add_u32 v13, v13, v10\nv_mul_u32_u24 v13, s{sStr}, v13\nv_lshlrev_b32 v12, 1, v12\nv_xor_b32 v12, v11, v12\nv_lshl_add_u32 v{vW}, v12, 4, v13")
        a(f"s_lshl_b32 s{t}, s{sStr}, 4\ns_lshl_b32 s{t+1}, s{sStr}, 2\nv_add_u32 v{vW+1}, s{t}, v{vW}\nv_add_u32 v{vW+2}, s{t+1}, v{vW}\nv_add_u32 v{vW+3}, s{t}, v{vW+2}")
        a(f"s_branch {lJ}")
        a.label(lQH)
        a(f"s_mov_b32 s{sSel}, 0\ns_mov_b32 s{sStr}, 3840\ns_lshl_b32 s{sCol}, s{sHALF}, 1\ns_add_u32 s{sCol}, s{sCol}, s{sCBL}\ns_add_u32 s{sCol}, s{sCol}, 12\ns_lshl_b32 s{sCol}, s{sCol}, 6")
        a(f"s_cmp_lt_u32 s{sCBL}, 6\ns_cselect_b32 s{sCol}, s{sCol}, {BIG}\ns_mov_b32 s{sWB}, 12288\ns_mov_b32 s{sWB2}, 13312")
        a(f"v_lshrrev_b32 v10, 2, v0\nv_and_b32 v13, 12, v10\nv_add_u32 v13, v13, v10\nv_mul_u32_u24 v13, 3840, v13\nv_and_b32 v11, 3, v0\nv_and_b32 v12, 1, v12\nv_lshlrev_b32 v12, 1, v12\nv_xor_b32 v12, v11, v12")
        a(f"v_lshl_add_u32 v{vW}, v12, 4, v13\nv_add_u32 v{vW+1}, 15360, v{vW}")
        a(f"s_lshl_b32 s{t}, s{sROT}, 3\nv_mov_b32 v14, {BIG}")
        for j in range(2):
            a(f"v_add_u32 v10, {64*j}, v0\nv_add_u32 v11, s{t}, v10\nv_cmp_gt_u32 vcc, 80, v10\nv_subrev_u32 v12, 80, v11\nv_min_u32 v11, v11, v12\nv_lshlrev_b32 v11, 4, v11\nv_cndmask_b32 v{vGt+j}, v14, v11, vcc")
        a(f"s_branch {lJ}")
        a.label(lKV)
        a(f"s_mov_b32 s{sSel}, 0\ns_mov_b32 s{sStr}, 3840\ns_mul_i32 s{sWB}, s{sLW}, 5120\ns_lshl_b32 s{sCol}, s{sGRP}, 7")
        a(f"s_cmp_eq_u32 s{sLW}, 2\ns_cbranch_scc1 {lLN}")
        a(f"s_mul_i32 s{sCol}, s{sGRP}, 160\ns_cmp_eq_u32 s{sLW}, 1\ns_cselect_b32 s{t}, 2560, 1280\ns_add_u32 s{sCol}, s{sCol}, s{t}")
        a(f"s_cmp_eq_u32 s{sLW}, 3\ns_cselect_b32 s{t}, 256, 0\ns_cselect_b32 s{sWB}, 4096, s{sWB}\ns_mov_b32 s{sWB2}, 9216")
        a(f"v_add_u32 v14, s{t}, v0")
        for j in range(4):
            a(f"v_add_u32 v10, {64*j}, v14\nv_mul_u32_u24 v11, 6554, v10\nv_lshrrev_b32 v11, 16, v11\nv_mad_i32_i24 v10, v11, -10, v10")
            a("v_and_b32 v12, 12, v11\nv_and_b32 v13, 3, v11\nv_lshl_or_b32 v12, v12, 1, v13\nv_bfe_u32 v13, v11, 4, 1\nv_lshl_or_b32 v12, v13, 2, v12")
            a(f"v_mul_u32_u24 v12, 3840, v12\nv_lshl_add_u32 v{vW+j}, v10, 4, v12")
            if j == 0:
                a(f"v_add_u32 v{vW+1}, 1280, v{vW}\ns_cmp_eq_u32 s{sLW}, 3\ns_cbranch_scc1 {lJ}")
        a.label(lJ)
        a(f"s_lshl_b32 s{sStr}, s{sStr}, 5\ns_mul_i32 s{t}, s{sRB}, 163840")
        a("s_waitcnt lgkmcnt(0)")
        self.stamp(0)
        self.srd(SRD_X, pX, 163840, add=f"s{t}")
        a(f"s_cmp_eq_u32 s{sSel}, 0\ns_cselect_b32 s{SRD_W}, s{pWQKV}, s{pW1}\ns_cselect_b32 s{SRD_W+1}, s{pWQKV+1}, s{pW1+1}\ns_cselect_b32 s{SRD_W+2}, {640*1920*2}, {640*1536*2}\ns_mov_b32 s{SRD_W+3}, 0x20000")
        lab3, lab4, labj = a.newlabel("L_ld3"), a.newlabel("L_ld4"), a.newlabel("L_ldj")
        a(f"s_cmp_eq_u32 s{sLW}, 3\ns_cbranch_scc1 {lab3}")
        for variant in (0, 3, 4):
            if variant == 3:
                a.label(lab3)
                a(f"s_cmp_ge_u32 s{sCBL}, 6\ns_cbranch_scc1 {lab4}")
            if variant == 4:
                a.label(lab4)
            nW = {0: 4, 3: 2, 4: 0}[variant]
            nX = 3 if variant == 0 else 7
            seq = []
            def issue_W(i):
                if nW == 0: return
                a(f"s_mul_i32 s{sOff}, s{sA32}, s{sStr}")
                for j in range(nW):
                    base, off = (sWB, 1024*j) if variant == 0 else ((sWB, sWB2)[j], 0)
                    a(f"s_add_u32 m0, s{base}, {WR + (i % NS)*WSLOT + off}")
                    a(f"s_add_u32 s{sOff}, s{sOff}, s{sCol}" if j == 0 else "s_nop 0")
                    a(f"buffer_load_dwordx4 v{vW+j}, s[{SRD_W}:{SRD_W+3}], s{sOff} offen lds")
                    seq.append(("W", i))
                a(f"s_add_u32 s{sA32}, s{sA32}, 1\ns_cmp_eq_u32 s{sA32}, 20\ns_cselect_b32 s{sA32}, 0, s{sA32}")
            def issue_X(jx):
                a(f"s_lshl_b32 s{sXo}, s{sA64}, 7")
                for j in range(nX):
                    a(f"s_add_u32 m0, s{sXB}, {XR + (jx % 3)*16384 + 1024*j}")
                    a(f"s_add_u32 s{sXo}, s{sXo}, " + (f"s{sXP}" if j == 0 else "10240"))
                    a(f"buffer_load_dwordx4 v{vXE + (j & 1)}, s[{SRD_X}:{SRD_X+3}], s{sXo} offen lds")
                    seq.append(("X", jx))
                a(f"s_add_u32 s{sA64}, s{sA64}, 1\ns_cmp_eq_u32 s{sA64}, 10\ns_cselect_b32 s{sA64}, 0, s{sA64}")
            def wait_for(items):
                last = max([n for n, it in enumerate(seq) if it in items] + [-1])
                if last >= 0: a(f"s_waitcnt vmcnt({len(seq) - 1 - last})")
            issue_X(0); issue_W(0)
            if variant == 4:
                self.srd(SRD_M, pGATE, 1280)
                for j in range(2):
                    a(f"s_mov_b32 m0, {GATE + 1024*j}\ns_nop 0\nbuffer_load_dwordx4 v{vGt+j}, s[{SRD_M}:{SRD_M+3}], 0 offen lds")
                    seq.append(("W", 0))
            issue_W(1)
            wait_for([("W", 0), ("X", 0)]); self.stamp(1); a("s_barrier")
            issue_X(1)
            wait_for([("W", 1)]); a("s_barrier")
            issue_W(2); issue_W(3); issue_X(2); issue_W(4)
            for j in range(1, 10):
                if j == 9 and variant == 0:
                    sk = a.newlabel("L_s1skip")
                    a(f"s_cmp_lg_u32 s{sWAVE}, 4\ns_cbranch_scc1 {sk}")
                    self.srd(SRD_D, pDBG, 256)
                    a("v_mov_b32 v10, 128")
                    self.poll("0", 1, 10, 11, SRD_D, S1SLEEP)
                    a.label(sk)
                wait_for([("W", 2*j), ("W", 2*j + 1), ("X", j)]); a("s_barrier")
                if j + 1 < 10: issue_W(2*j + 3)
                if j + 2 < 10: issue_X(j + 2); issue_W(2*j + 4)
            if variant != 4:
                a(f"s_branch {labj}")
        a.label(labj)
        self.stamp(2)

    def mish_quad(self, h, dst, tmp):
        P = lambda r: f"v[{r}:{r+1}]"
        return [
            f"v_pk_fma_f32 {P(tmp)}, {P(h)}, s[{cL2E}:{cL2E+1}], -0.5 op_sel_hi:[1,1,0]",
            f"v_pk_fma_f32 {P(tmp+2)}, {P(h+2)}, s[{cL2E}:{cL2E+1}], -0.5 op_sel_hi:[1,1,0]",
            f"v_exp_f32 v{tmp}, v{tmp}", f"v_exp_f32 v{tmp+1}, v{tmp+1}", f"v_exp_f32 v{tmp+2}, v{tmp+2}", f"v_exp_f32 v{tmp+3}, v{tmp+3}",
            f"v_pk_add_f32 {P(tmp)}, {P(tmp)}, s[{cC}:{cC+1}]", f"v_pk_add_f32 {P(tmp+2)}, {P(tmp+2)}, s[{cC}:{cC+1}]",
            f"v_pk_fma_f32 {P(tmp)}, {P(tmp)}, {P(tmp)}, 0.5 op_sel_hi:[1,1,0]",
            f"v_pk_fma_f32 {P(tmp+2)}, {P(tmp+2)}, {P(tmp+2)}, 0.5 op_sel_hi:[1,1,0]",
            f"v_rcp_f32 v{tmp}, v{tmp}", f"v_rcp_f32 v{tmp+1}, v{tmp+1}", f"v_rcp_f32 v{tmp+2}, v{tmp+2}", f"v_rcp_f32 v{tmp+3}, v{tmp+3}",
            f"v_pk_fma_f32 {P(tmp)}, {P(h)}, {P(tmp)}, {P(h)} neg_lo:[1,0,0] neg_hi:[1,0,0]",
            f"v_pk_fma_f32 {P(tmp+2)}, {P(h+2)}, {P(tmp+2)}, {P(h+2)} neg_lo:[1,0,0] neg_hi:[1,0,0]",
            f"v_cvt_pk_bf16_f32 v{dst}, v{tmp}, v{tmp+1}", f"v_cvt_pk_bf16_f32 v{dst+1}, v{tmp+2}, v{tmp+3}",
        ]

    def phi_quad(self, h, dst, tmp):
        P = lambda r: f"v[{r}:{r+1}]"
        return [
            f"v_pk_mul_f32 {P(tmp)}, {P(h)}, s[{cL2E}:{cL2E+1}]", f"v_pk_mul_f32 {P(tmp+2)}, {P(h+2)}, s[{cL2E}:{cL2E+1}]",
            f"v_exp_f32 v{tmp}, v{tmp} clamp", f"v_exp_f32 v{tmp+1}, v{tmp+1} clamp", f"v_exp_f32 v{tmp+2}, v{tmp+2} clamp", f"v_exp_f32 v{tmp+3}, v{tmp+3} clamp",
            f"v_pk_add_f32 {P(h)}, {P(h)}, s[{cC}:{cC+1}]", f"v_pk_add_f32 {P(h+2)}, {P(h+2)}, s[{cC}:{cC+1}]",
            f"v_pk_add_f32 {P(tmp)}, {P(tmp)}, s[{cE}:{cE+1}]", f"v_pk_add_f32 {P(tmp+2)}, {P(tmp+2)}, s[{cE}:{cE+1}]",
            f"v_max_f32 v{tmp}, v{tmp}, v{h}", f"v_max_f32 v{tmp+1}, v{tmp+1}, v{h+1}", f"v_max_f32 v{tmp+2}, v{tmp+2}, v{h+2}", f"v_max_f32 v{tmp+3}, v{tmp+3}, v{h+3}",
            f"v_cvt_pk_bf16_f32 v{dst}, v{tmp}, v{tmp+1}", f"v_cvt_pk_bf16_f32 v{dst+1}, v{tmp+2}, v{tmp+3}",
        ]

    def consts(self, kind):
        if kind == "mish":
            self.a(f"s_mov_b32 s{cC}, 0x3f3504f3\ns_mov_b32 s{cC+1}, 0x3f3504f3")
        else:
            self.a(f"s_mov_b32 s{cC}, 0x3f800008\ns_mov_b32 s{cC+1}, 0x3f800008\ns_mov_b32 s{cE}, 0x358637bd\ns_mov_b32 s{cE+1}, 0x358637bd")

    def main_loop(self, reads, mfmas, extra, nread_end, bases):
        a = self.a
        a("s_barrier")
        self.stamp(1)
        for l in reads(0): a(l)
        for l in extra.get(0, ([], [], []))[1]: a(l)
        a("s_waitcnt lgkmcnt(0)")
        for i in range(1, 21):
            if i == 1 or i % 2 == 0: a("s_barrier")
            if i in (2, 4, 6, 8, 10, 14, 18): self.stamp(3 + (2, 4, 6, 8, 10, 14, 18).index(i), True)
            pre, fill, preb = extra.get(i, ([], [], []))
            for l in pre: a(l)
            if i < 20:
                tail = []
                if (i + 1) % 3 == 0 and i + 1 < 20:
                    op = "v_add_u32" if ((i + 1) % NS) == 3 else "v_subrev_u32"
                    tail = [f"{op} v{b}, {3*WSLOT}, v{b}" for b in bases]
                body = interleave(mfmas(i - 1), reads(i) + fill + tail, 0, nread_end)
                for l in body: a(l)
                for l in preb: a(l)
                a("s_waitcnt lgkmcnt(0)")
            else:
                for l in mfmas(19): a(l)
        self.stamp(2)

    def finish1(self, flags, strict=False):
        a = self.a
        self.setup2()
        npre = 0 if strict else NPRE
        self.preload_b(0, npre)
        a(f"s_waitcnt vmcnt({npre})")
        self.stamp(5)
        for f in flags: self.signal(f, 1)
        self.preload_b(npre, NPRE)
        if not BLDS:
            self.preload_b(NPRE, 30)
            return

    def pickup(self):
        a = self.a
        t = T0
        sk = a.newlabel("L_pk")
        a(f"s_cmp_ge_u32 s{sWAVE}, 4\ns_cbranch_scc1 {sk}")
        a(f"s_mul_i32 s{t+1}, s{sWAVE}, 20480\ns_add_u32 s{t+1}, s{t+1}, {BL}\nv_add_u32 v{BS+117}, s{t+1}, v{vL16}")
        for n in range(20):
            a(f"ds_read_b128 v[{BS+40+4*n}:{BS+43+4*n}], v{BS+117} offset:{1024*n}")
        a.label(sk)

    def prefetch(self, vL, v, S=SRD_X):
        a = self.a
        t = T0
        for ptr, size, share, n in ((pX, 2048*1280, 10240, 3), (pWQKV, 640*3840, 9600, 3), (pW1, 640*3072, 7680, 2)):
            self.srd(S, ptr, size)
            per = -(-share // 4 // 128) * 128
            a(f"s_mul_i32 s{t}, s{sWG}, {share}\ns_and_b32 s{t}, s{t}, 0xffffff80\ns_mul_i32 s{t+1}, s{sWAVE}, {per}\ns_add_u32 s{t}, s{t}, s{t+1}\ns_min_u32 s{t}, s{t}, {size - n*1024}")
            for k in range(n):
                a(f"buffer_load_dwordx4 v[{v}:{v+3}], v{vL}, s[{S}:{S+3}], s{t} offen offset:{1024*k}")

    def touch(self, vLane, v):
        a = self.a
        t = T0
        a(f"v_lshlrev_b32 v{v}, 21, v{vLane}\nv_add_u32 v{v}, 0xff000, v{v}\ns_mov_b64 exec, 0xff")
        a(f"buffer_load_dword v{v+1}, v{v}, {WSR}, 0 offen")
        self.srd(SRD_M, pOUT, 2048*640*2)
        a(f"v_lshlrev_b32 v{v}, 20, v{vLane}\ns_mov_b64 exec, 7\nbuffer_load_dword v{v+2}, v{v}, s[{SRD_M}:{SRD_M+3}], 0 offen")
        self.srd(SRD_M, pWO, 640*640*2)
        a(f"v_lshlrev_b32 v{v}, 19, v{vLane}\ns_mov_b64 exec, 3\nbuffer_load_dword v{v+3}, v{v}, s[{SRD_M}:{SRD_M+3}], 0 offen\ns_mov_b64 exec, -1")

    def compute_P(self):
        a = self.a
        t = T0
        ACC, XB, WB, BI = 0, 112, 144, 200
        vX0, vX1, vH0, vH1, vQ, vGt, vL, vRd, vRr, vBo, vT = 228, 229, 230, 231, 232, 233, 234, 235, 236, 237, 238
        vLane = 253
        sSH, sNH = sT, 48
        sAct, sPq, sF2, sGs = 49, 72, 73, 74
        a(f"v_mov_b32 v{vLane}, v0\ns_lshr_b32 s{sSH}, s{sWAVE}, 1\ns_and_b32 s{sNH}, s{sWAVE}, 1")
        a(f"v_and_b32 v1, 15, v0\nv_lshrrev_b32 v2, 4, v0\nv_lshrrev_b32 v3, 1, v1\nv_xor_b32 v3, v3, v2\nv_lshlrev_b32 v3, 4, v3\nv_lshl_add_u32 v3, v1, 7, v3")
        a(f"s_lshl_b32 s{t}, s{sSH}, 13\nv_add_u32 v{vX0}, s{t}, v3\nv_xor_b32 v{vX1}, 64, v{vX0}")
        a(f"v_lshrrev_b32 v3, 2, v0\nv_and_b32 v4, 3, v0\nv_lshlrev_b32 v4, 3, v4")
        a(f"v_lshl_add_u32 v5, v3, 7, v4\nv_bfe_u32 v6, v0, 3, 2\ns_lshl_b32 s{t}, s{sNH}, 1\nv_xor_b32 v6, s{t}, v6\nv_lshl_add_u32 v6, v6, 5, v5")
        a(f"v_add_u32 v{vH0}, {WR}, v6\nv_xor_b32 v{vH1}, 32, v{vH0}")
        a(f"v_lshl_add_u32 v6, v3, 6, v4\nv_and_b32 v7, 1, v2\nv_xor_b32 v7, s{sNH}, v7\nv_lshl_add_u32 v6, v7, 5, v6\nv_add_u32 v{vQ}, {WR+12288}, v6")
        a(f"v_lshlrev_b32 v6, 4, v2\nv_add_u32 v{vGt}, {GATE}, v6\nv_lshlrev_b32 v{vL}, 4, v0\nv_lshlrev_b32 v{vBo}, 3, v2")
        a(f"v_lshrrev_b32 v6, 3, v0\nv_mul_u32_u24 v6, 1280, v6\nv_and_b32 v7, 7, v0\nv_lshl_add_u32 v{vRd}, v7, 4, v6")
        a(f"s_lshl_b32 s{t}, s{sWAVE}, 12\ns_add_u32 s{t}, s{t}, {SCR}\nv_add_u32 v{vRr}, s{t}, v5")
        a(f"s_lshl3_add_u32 s{sPIDX}, s{sRB}, s{sGRP}")
        a(f"s_mov_b32 s{cL2E}, 0x3fb8aa3b\ns_mov_b32 s{cL2E+1}, 0x3fb8aa3b")
        a(f"s_lshl2_add_u32 s{t}, s{sPIDX}, s{sWAVE}\ns_min_u32 s{t}, s{t}, 479")
        a(f"s_mul_i32 s{t+1}, s{t}, 6554\ns_lshr_b32 s{t+1}, s{t+1}, 16\ns_mul_i32 s{t+2}, s{t+1}, 10\ns_sub_u32 s{t+2}, s{t}, s{t+2}")
        a(f"s_mul_i32 s{t+6}, s{t+1}, 40960\ns_lshl_b32 s{t+3}, s{t+2}, 7\ns_add_u32 s{t+6}, s{t+6}, s{t+3}")
        a(f"s_mul_i32 s{t+7}, s{sGRP}, 384\ns_lshl_b32 s{t+3}, s{sNH}, 6\ns_add_u32 s{t+7}, s{t+7}, s{t+3}")
        a("s_waitcnt lgkmcnt(0)")
        self.stamp(0)
        self.srd(SRD_M, pB1, 3072)
        self.srd(SRD_W, pW2, 1536*640*2)
        for u in range(6):
            a(f"buffer_load_dwordx2 v[{BI+4*u+2}:{BI+4*u+3}], v{vBo}, s[{SRD_M}:{SRD_M+3}], s{t+7} offen offset:{128*(u >> 1) + 32*(u & 1)}")
        sSrc1 = 69
        a(f"s_mov_b32 s{sSrc1}, s{t+6}")
        self.srd(SRD_WS, pWS, WS_SIZE)
        if TOUCH == 2: self.touch(vLane, 240)
        dsts = [10, 11, 1, 3]
        for u in range(4):
            a(f"s_lshl2_add_u32 s{t+3}, s{t+2}, {u}\ns_mul_i32 s{t+4}, s{t+3}, 205\ns_lshr_b32 s{t+4}, s{t+4}, 10")
            a(f"s_mul_i32 s{t+5}, s{t+4}, 235\ns_add_u32 s{t+5}, s{t+5}, s{t+3}\ns_mul_i32 s{t+4}, s{t+1}, 5\ns_add_u32 s{t+5}, s{t+5}, s{t+4}")
            a(f"s_lshl_b32 s{t+5}, s{t+5}, 10\ns_add_u32 s{t+5}, s{t+5}, {WS_W2R}")
            a(f"s_cmp_lt_u32 s{sPIDX}, 120\ns_cselect_b32 s{dsts[u]}, s{t+5}, {BIG}")
        d2, sSrc2, sK2, sInc2 = 40, 0, 75, 70
        self.srd(SRD_M, pWO, 640*640*2)
        a(f"s_lshl1_add_u32 s{t}, s{sPIDX}, s{sWAVE}\ns_sub_u32 s{t}, s{t}, 2")
        a(f"s_cmp_lt_u32 s{t}, 160\ns_cselect_b32 s{sK2}, 1, 2\ns_cmp_lt_u32 s{t}, 200\ns_cselect_b32 s{sK2}, s{sK2}, 0\ns_cmp_lt_u32 s{sWAVE}, 2\ns_cselect_b32 s{sK2}, 0, s{sK2}")
        a(f"s_mul_i32 s{t+1}, s{t}, 6554\ns_lshr_b32 s{t+1}, s{t+1}, 16\ns_mul_i32 s{t+2}, s{t+1}, 10\ns_sub_u32 s{t+2}, s{t}, s{t+2}")
        a(f"s_lshr_b32 s{t+3}, s{t+1}, 1\ns_and_b32 s{t+4}, s{t+1}, 1\ns_sub_u32 s{t+5}, s{t+1}, 16\ns_lshl_b32 s{t+5}, s{t+5}, 1")
        a(f"s_cmp_eq_u32 s{sK2}, 2\ns_cselect_b32 s{t+3}, s{t+5}, s{t+3}\ns_cselect_b32 s{t+4}, 2, s{t+4}\ns_cselect_b32 s{sInc2}, {10240 + 64*1280}, 10240")
        a(f"s_mul_i32 s{sSrc2}, s{t+3}, {80*1280}\ns_mul_i32 s{t+5}, s{t+4}, {32*1280}\ns_add_u32 s{sSrc2}, s{sSrc2}, s{t+5}\ns_lshl_b32 s{t+5}, s{t+2}, 7\ns_add_u32 s{sSrc2}, s{sSrc2}, s{t+5}")
        a(f"s_mul_i32 s{t+3}, s{t+3}, 12800\ns_lshl_b32 s{t+5}, s{t+4}, 10\ns_cmp_eq_u32 s{sK2}, 2\ns_cselect_b32 s{t+5}, 10240, s{t+5}\ns_cselect_b32 s{t+6}, 512, 2048\ns_add_u32 s{t+3}, s{t+3}, s{t+5}\ns_add_u32 s{t+3}, s{t+3}, {WS_WOR}")
        for u in range(4):
            a(f"s_lshl2_add_u32 s{t+4}, s{t+2}, {u}\ns_mul_i32 s{t+5}, s{t+4}, 205\ns_lshr_b32 s{t+5}, s{t+5}, 10\ns_mul_i32 s{t+7}, s{t+5}, 5\ns_sub_u32 s{t+4}, s{t+4}, s{t+7}")
            a(f"s_mul_i32 s{t+5}, s{t+5}, 102400\ns_mul_i32 s{t+4}, s{t+4}, s{t+6}\ns_add_u32 s{t+5}, s{t+5}, s{t+4}\ns_add_u32 s{d2+u}, s{t+5}, s{t+3}")
        sRb64 = t + 11
        a(f"s_lshl1_add_u32 s{sRb64}, s{sRB}, s{sSH}")
        a(f"s_mul_i32 s{t}, s{sRb64}, 48\ns_mul_i32 s{t+1}, s{sGRP}, 6\ns_add_u32 s{t}, s{t}, s{t+1}\ns_add_u32 s{t}, s{t}, s{sNH}\ns_lshl_b32 s{t}, s{t}, 12")
        a(f"s_add_u32 s{sAct}, s{t}, {WS_ACT}\ns_add_u32 s{sAct+1}, s{t}, {WS_ACT + 8192}\ns_add_u32 s{sAct+2}, s{t}, {WS_ACT + 16384}")
        a(f"s_mul_i32 s{t}, s{sRb64}, 40\ns_lshl2_add_u32 s{t}, s{sHALF}, s{t}\ns_lshl1_add_u32 s{t}, s{sCBL}, s{t}\ns_add_u32 s{t}, s{t}, s{sNH}\ns_add_u32 s{t}, s{t}, 24\ns_lshl_b32 s{t}, s{t}, 11\ns_add_u32 s{sPq}, s{t}, {WS_PQ}")
        a(f"s_lshl3_add_u32 s{sF1}, s{sRb64}, s{sGRP}\ns_lshl_b32 s{sF1}, s{sF1}, 7")
        a(f"s_lshl1_add_u32 s{t}, s{sGRP}, s{sNH}\ns_cmp_eq_u32 s{t}, 5\ns_cselect_b32 s{sGs}, 1, 0")
        a(f"s_lshl_b32 s{sF2}, s{sRb64}, 7\ns_add_u32 s{sF2}, s{sF2}, {CNT_PQ}\ns_cmp_lt_u32 s{sCBL}, 6\ns_cselect_b32 s{t}, 1, s{sGs}\ns_cmp_eq_u32 s{t}, 1\ns_cselect_b32 s{sF2}, s{sF2}, {BIG}")
        a(f"s_cmp_ge_u32 s{sCBL}, 6\ns_cselect_b64 vcc, -1, 0")
        def reads(i):
            b = i & 1; so = (i % 3) * WSLOT
            xs = XR + ((i >> 1) % 3) * 16384
            r = [f"ds_read_b128 v[{XB+16*b+4*s}:{XB+16*b+4*s+3}], v{vX1 if i & 1 else vX0} offset:{xs + 2048*s}" for s in range(4)]
            for u in range(6):
                d = WB + 28*b + 4*u
                r.append(f"ds_read_b64_tr_b16 v[{d}:{d+1}], v{vH0 + (u & 1)} offset:{so + 4096*(u >> 1)}")
                r.append(f"ds_read_b64_tr_b16 v[{d+2}:{d+3}], v{vH0 + (u & 1)} offset:{so + 4096*(u >> 1) + 2048}")
            d = WB + 28*b + 24
            l1, l2 = a.newlabel("L_g"), a.newlabel("L_gj")
            r.append(f"s_cbranch_vccnz {l1}\nds_read_b64_tr_b16 v[{d}:{d+1}], v{vQ} offset:{so}\nds_read_b64_tr_b16 v[{d+2}:{d+3}], v{vQ} offset:{so + 1024}\ns_branch {l2}\n"
                     f"{l1}:\nds_read_b128 v[{d}:{d+3}], v{vGt} offset:{64*i}\n{l2}:")
            return r
        def mfmas(i):
            b = i & 1
            r = []
            for u in range(7):
                for s in range(4):
                    d = ACC + 16*u + 4*s
                    c = f"v[{d}:{d+3}]" if i > 0 else ("0" if u == 6 else f"v[{BI+4*u}:{BI+4*u+3}]")
                    r.append(f"v_mfma_f32_16x16x32_bf16 v[{d}:{d+3}], v[{WB+28*b+4*u}:{WB+28*b+4*u+3}], v[{XB+16*b+4*s}:{XB+16*b+4*s+3}], {c}")
            return r
        unpack = [f"s_waitcnt vmcnt({(3 if TOUCH == 2 else 0) + (4 if RD < 0 else 0) + (8 if PF else 0)})"]
        for u in range(6):
            p = BI + 4*u
            unpack += [f"v_lshlrev_b32 v{p}, 16, v{p+2}", f"v_and_b32 v{p+1}, 0xffff0000, v{p+2}", f"v_lshlrev_b32 v{p+2}, 16, v{p+3}", f"v_and_b32 v{p+3}, 0xffff0000, v{p+3}"]
        RP = BI
        rp_reads = []
        for u in range(4):
            rp_reads += [f"ds_read_b64_tr_b16 v[{RP+4*u}:{RP+4*u+1}], v{vRr} offset:{32*u}", f"ds_read_b64_tr_b16 v[{RP+4*u+2}:{RP+4*u+3}], v{vRr} offset:{32*u + 2048}"]
        rp_st = [f"buffer_store_dwordx4 v[{RP+4*u}:{RP+4*u+3}], v{vL}, {WSR}, s{dsts[u]} offen sc1" for u in range(4)]
        z = [f"s_lshl_b32 s{t}, s{sPIDX}, 9", f"s_mul_i32 s{t+1}, s{sWAVE}, {WS_KVP}", f"s_add_u32 s{t}, s{t}, s{t+1}", f"s_cmp_lt_u32 s{sWAVE}, 2", f"s_cselect_b32 s{t}, s{t}, {BIG}"] + \
            [f"v_mov_b32 v{RP+16+k}, 0" for k in range(4)] + \
            [f"s_mov_b32 exec_hi, 0\nbuffer_store_dwordx4 v[{RP+16}:{RP+19}], v{vL}, {WSR}, s{t} offen sc1\ns_mov_b32 exec_hi, -1"]
        k1, k2, k3, k4 = [a.newlabel("L_r2") for _ in range(4)]
        dma1 = [f"s_lshl_b32 s{t+3}, s{sWAVE}, 12"]
        for j in range(4):
            dma1.append(f"s_add_u32 m0, s{t+3}, {SCR + 1024*j}\ns_nop 0\nbuffer_load_dwordx4 v{vRd}, s[{SRD_W}:{SRD_W+3}], s{sSrc1} offen lds\ns_add_u32 s{sSrc1}, s{sSrc1}, 10240")
        rp_reads2 = [l.replace("offset:", "offset:8192+") for l in rp_reads]
        dma2 = f"s_cmp_eq_u32 s{sK2}, 0\ns_cbranch_scc1 {k1}\n"
        for j in range(4):
            dma2 += f"s_add_u32 m0, s{t+3}, {SCR + 8192 + 1024*j}\ns_nop 0\nbuffer_load_dwordx4 v{vRd}, s[{SRD_M}:{SRD_M+3}], s{sSrc2} offen lds\n"
            if j < 3: dma2 += f"s_add_u32 s{sSrc2}, s{sSrc2}, " + (f"s{sInc2}" if j == 1 else "10240") + "\n"
        dma2 += k1 + ":"
        st2 = f"s_cmp_eq_u32 s{sK2}, 0\ns_cbranch_scc1 {k2}\ns_cmp_eq_u32 s{sK2}, 2\ns_cbranch_scc1 {k3}\n"
        st2 += "".join(f"buffer_store_dwordx4 v[{RP+4*u}:{RP+4*u+3}], v{vL}, {WSR}, s{d2+u} offen sc1\n" for u in range(4))
        st2 += f"s_branch {k2}\n{k3}:\nv_lshrrev_b32 v{vT}, 1, v{vL}\n"
        for u in range(4):
            st2 += f"buffer_store_dwordx2 v[{RP+4*u}:{RP+4*u+1}], v{vT}, {WSR}, s{d2+u} offen sc1\ns_add_u32 s{d2+u}, s{d2+u}, 12800\n"
            st2 += f"buffer_store_dwordx2 v[{RP+4*u+2}:{RP+4*u+3}], v{vT}, {WSR}, s{d2+u} offen sc1\n"
        st2 += k2 + ":"
        sk, sk2 = a.newlabel("L_s1a"), a.newlabel("L_s1b")
        arr = [f"s_cmp_lg_u32 s{sWAVE}, 0", f"s_cbranch_scc1 {sk}",
               f"s_mov_b32 s{SRD_D}, s{pDBG}", f"s_mov_b32 s{SRD_D+1}, s{pDBG+1}", f"s_mov_b32 s{SRD_D+2}, 256", f"s_mov_b32 s{SRD_D+3}, 0x20000",
               f"v_mov_b32 v{vT}, 1", f"s_mov_b64 exec, 1\nbuffer_atomic_add v{vT}, v{vL}, s[{SRD_D}:{SRD_D+3}], 0 offen sc0 sc1\ns_mov_b64 exec, -1", sk + ":"]
        arr2 = [f"s_cmp_lg_u32 s{sWAVE}, 0", f"s_cbranch_scc1 {sk2}", "s_waitcnt vmcnt(0)", f"v_readfirstlane_b32 s{t}, v{vT}", f"v_mov_b32 v{vT+1}, 1",
                f"s_cmp_lg_u32 s{t}, 127", f"s_cbranch_scc1 {sk2}",
                f"s_mov_b32 s{SRD_D}, s{pDBG}", f"s_mov_b32 s{SRD_D+1}, s{pDBG+1}", f"s_mov_b32 s{SRD_D+2}, 256", f"s_mov_b32 s{SRD_D+3}, 0x20000",
                f"s_mov_b64 exec, 1\nbuffer_store_dword v{vT+1}, v{vL}, s[{SRD_D}:{SRD_D+3}], 0 offen offset:128 sc1\ns_mov_b64 exec, -1", sk2 + ":"]
        if RD < 0:
            for l in dma1 + [dma2]: a(l)
        if PF: self.prefetch(vL, 240, S=SRD_D)
        extra = {0: ([], unpack, []), RS: (["s_waitcnt vmcnt(0)"], rp_reads, []), RS+1: ([], rp_st + rp_reads2, []),
                 RS+2: ([], [st2] + z, []), S1AT-1: ([], [], ["s_waitcnt vmcnt(0)"]), S1AT: (arr, [], []), S1AT+2: (arr2, [], [])}
        if RD >= 0: extra[RD] = ([], dma1 + [dma2], [])
        self.main_loop(reads, mfmas, extra, 20, [vH0, vH1, vQ])
        self.consts("mish")
        TM = XB
        for L in range(3):
            for s in range(4):
                e, o = ACC + 32*L + 4*s, ACC + 32*L + 16 + 4*s
                for l in self.mish_quad(e, e, TM + 8*(s & 1)): a(l)
                for l in self.mish_quad(o, e + 2, TM + 4 + 8*(s & 1)): a(l)
                a(f"buffer_store_dwordx4 v[{e}:{e+3}], v{vL}, {WSR}, s{sAct+L} offen offset:{1024*s} sc1")
        labG, labE = a.newlabel("L_epG"), a.newlabel("L_epE")
        a(f"s_cbranch_vccnz {labG}")
        self.consts("phi")
        for sp in range(2):
            e = ACC + 96 + 8*sp
            for l in self.phi_quad(e, e, TM): a(l)
            for l in self.phi_quad(e + 4, e + 2, TM + 4): a(l)
            a(f"buffer_store_dwordx4 v[{e}:{e+3}], v{vL}, {WSR}, s{sPq} offen offset:{1024*sp} sc1")
        a(f"s_branch {labE}")
        a.label(labG)
        a(f"s_cmp_eq_u32 s{sGs}, 0\ns_cbranch_scc1 {labE}")
        G = ACC + 96
        a(f"v_cmp_le_u32 vcc, 16, v{vLane}\nv_cmp_le_u32 s[{t+2}:{t+3}], 32, v{vLane}\nv_cmp_le_u32 s[{t+4}:{t+5}], 48, v{vLane}\ns_nop 0")
        a(f"v_cndmask_b32 v{G}, v{G}, v{G+4}, vcc\nv_cndmask_b32 v{G}, v{G}, v{G+8}, s[{t+2}:{t+3}]\nv_cndmask_b32 v{G}, v{G}, v{G+12}, s[{t+4}:{t+5}]")
        a(f"s_mov_b32 s{t}, 0x42700000\nv_min_f32 v{G}, s{t}, v{G}\nv_max_f32 v{G}, -s{t}, v{G}\nv_mul_f32 v{G}, s{cL2E}, v{G}\nv_exp_f32 v{G}, v{G}")
        a(f"s_lshl_b32 s{t}, s{sRb64}, 8\ns_add_u32 s{t}, s{t}, {WS_G}\nv_add_f32 v{G+2}, 1.0, v{G}\nv_rcp_f32 v{G+2}, v{G+2}\nv_lshlrev_b32 v{G+1}, 2, v{vLane}\ns_add_u32 s{t+1}, s{t}, 8192")
        a(f"buffer_store_dword v{G}, v{G+1}, {WSR}, s{t} offen sc1\nbuffer_store_dword v{G+2}, v{G+1}, {WSR}, s{t+1} offen sc1")
        a.label(labE)
        a(f"v_mov_b32 v0, v{vLane}")
        self.stamp(3)
        self.finish1([sF1, sF2])

    def compute_KV(self):
        a = self.a
        t = T0
        ACC, XB, WB = 0, 112, 128
        vX0, vX1, vK, vQ0, vL = 240, 241, 242, 243, 247
        vLane = 253
        sPq, sF2, sRec = 72, 73, 74
        a(f"v_mov_b32 v{vLane}, v0")
        a(f"v_and_b32 v1, 15, v0\nv_lshrrev_b32 v2, 4, v0\nv_lshrrev_b32 v3, 1, v1\nv_xor_b32 v3, v3, v2\nv_lshlrev_b32 v3, 4, v3\nv_lshl_add_u32 v3, v1, 7, v3")
        a(f"s_lshl_b32 s{t}, s{sWAVE}, 12\nv_add_u32 v{vX0}, s{t}, v3\nv_xor_b32 v{vX1}, 64, v{vX0}")
        a(f"v_lshrrev_b32 v3, 2, v0\nv_and_b32 v4, 3, v0\nv_lshlrev_b32 v4, 3, v4")
        a(f"v_mul_u32_u24 v5, 160, v3\nv_add_u32 v5, v5, v4\nv_add_u32 v{vK}, {WR}, v5")
        a(f"v_lshl_add_u32 v5, v3, 7, v4\nv_bfe_u32 v6, v0, 3, 2\nv_lshl_add_u32 v5, v6, 5, v5\nv_add_u32 v{vQ0}, {WR+10240}, v5")
        for u in range(1, 4): a(f"v_xor_b32 v{vQ0+u}, {32*u}, v{vQ0}")
        a(f"v_lshlrev_b32 v{vL}, 4, v0")
        a(f"s_lshr_b32 s{t}, s{sWAVE}, 1\ns_lshl1_add_u32 s{t+1}, s{sRB}, s{t}")
        a(f"s_lshl_b32 s{sF2}, s{t+1}, 7\ns_add_u32 s{sF2}, s{sF2}, {CNT_PQ}")
        a(f"s_mul_i32 s{t+1}, s{t+1}, 40\ns_lshl2_add_u32 s{t+1}, s{sGRP}, s{t+1}\ns_and_b32 s{t}, s{sWAVE}, 1\ns_lshl1_add_u32 s{t+1}, s{t+1}, s{t}\ns_lshl_b32 s{t+1}, s{t+1}, 10\ns_add_u32 s{sPq}, s{t+1}, {WS_PQ}")
        a(f"s_lshl2_add_u32 s{t}, s{sGRP}, s{sWAVE}\ns_lshl_b32 s{sF1}, s{t}, 7\ns_add_u32 s{sF1}, s{sF1}, {CNT_KV}")
        a(f"s_mul_i32 s{t}, s{t}, 1792\ns_add_u32 s{sRec}, s{t}, {WS_KVP}")
        a(f"s_mov_b32 s{cL2E}, 0x3fb8aa3b\ns_mov_b32 s{cL2E+1}, 0x3fb8aa3b")
        self.consts("phi")
        a("s_waitcnt lgkmcnt(0)")
        self.stamp(0)
        self.srd(SRD_WS, pWS, WS_SIZE)
        if TOUCH: self.touch(vLane, 248)
        if PF: self.prefetch(vL, 248)
        def reads(i):
            b = i & 1; so = (i % 3) * WSLOT
            xs = XR + ((i >> 1) % 3) * 16384
            r = [f"ds_read_b128 v[{XB+8*b+4*s}:{XB+8*b+4*s+3}], v{vX1 if i & 1 else vX0} offset:{xs + 2048*s}" for s in range(2)]
            for u in range(14):
                d = WB + 56*b + 4*u
                if u < 10: base, off, d2 = vK, 5120*(u // 5) + 32*(u % 5), 2560
                else: base, off, d2 = vQ0 + u - 10, 0, 2048
                r.append(f"ds_read_b64_tr_b16 v[{d}:{d+1}], v{base} offset:{so + off}")
                r.append(f"ds_read_b64_tr_b16 v[{d+2}:{d+3}], v{base} offset:{so + off + d2}")
            return r
        def mfmas(i):
            b = i & 1
            r = []
            order = list(range(14)) if i < 19 else [5, 6, 7, 8, 9, 0, 1, 2, 3, 4, 10, 11, 12, 13]
            for u in order:
                for s in range(2):
                    d = ACC + 8*u + 4*s
                    c = f"v[{d}:{d+3}]" if i > 0 else "0"
                    w, x = f"v[{WB+56*b+4*u}:{WB+56*b+4*u+3}]", f"v[{XB+8*b+4*s}:{XB+8*b+4*s+3}]"
                    r.append(f"v_mfma_f32_16x16x32_bf16 v[{d}:{d+3}], {x if u < 10 else w}, {w if u < 10 else x}, {c}")
            return r
        self.main_loop(reads, mfmas, {}, 24, [vK, vQ0, vQ0+1, vQ0+2, vQ0+3])
        TM = XB
        vEx = vX0
        a(f"s_mul_i32 s{t}, s{sWAVE}, 10240\nv_add_u32 v{vEx}, s{t}, v{vL}")
        for u in range(5, 10):
            e = ACC + 8*u
            a(f"v_cvt_pk_bf16_f32 v{e}, v{e}, v{e+1}\nv_cvt_pk_bf16_f32 v{e+1}, v{e+2}, v{e+3}\nv_cvt_pk_bf16_f32 v{e+2}, v{e+4}, v{e+5}\nv_cvt_pk_bf16_f32 v{e+3}, v{e+6}, v{e+7}")
            a(f"ds_write_b128 v{vEx}, v[{e}:{e+3}] offset:{XR + 1024*u}")
        for u in range(5):
            e = ACC + 8*u
            for l in self.phi_quad(e, e, TM): a(l)
            for l in self.phi_quad(e + 4, e + 2, TM + 4): a(l)
            a(f"ds_write_b128 v{vEx}, v[{e}:{e+3}] offset:{XR + 1024*u}")
        a(f"s_lshl_b32 s{t}, s{sWAVE}, 10\nv_add_u32 v{vEx}, s{t}, v{vL}")
        ONE = WB + 64
        for k in range(4): a(f"v_mov_b32 v{ONE+k}, 0x3f803f80")
        a("s_waitcnt lgkmcnt(0)\ns_barrier")
        FR = WB
        for g in range(4):
            for j, off in enumerate((0, 1024, 5120, 6144)):
                a(f"ds_read_b128 v[{FR+16*g+4*j}:{FR+16*g+4*j+3}], v{vEx} offset:{XR + 10240*g + off}")
        AD = WB + 72
        dc, BG, ev, R = AD, AD + 2, AD + 3, AD + 8
        ad = [f"v_lshrrev_b32 v{dc}, 4, v{vLane}", f"v_and_b32 v{ev}, 15, v{vLane}", f"v_mov_b32 v{BG}, 0x10000", f"v_cmp_eq_u32 vcc, 0, v{ev}",
              f"v_mov_b32 v{R}, 320", f"v_subrev_u32 v{dc}, s{sWAVE}, v{dc}", f"v_cndmask_b32 v{ev+2}, v{BG}, v{R}, vcc", f"v_add_u32 v{dc+1}, 4, v{dc}",
              f"s_lshl_b32 s{t}, s{sWAVE}, 2", f"v_subrev_u32 v{ev}, s{t}, v{ev}", f"v_add_u32 v{ev+1}, 16, v{ev}",
              f"s_lshl_b32 s{t+4}, s{sWAVE}, 11", f"s_add_u32 s{t+4}, s{t+4}, {STG}"]
        for k in range(2):
            ad += [f"v_cmp_gt_u32 vcc, 5, v{dc+k}", f"v_cmp_gt_u32 s[{t+2}:{t+3}], 20, v{ev+k}", f"v_mul_u32_u24 v{dc+k}, 336, v{dc+k}", f"v_lshlrev_b32 v{ev+k}, 4, v{ev+k}",
                   f"v_cndmask_b32 v{dc+k}, v{BG}, v{dc+k}, vcc", f"v_cndmask_b32 v{ev+k}, v{BG}, v{ev+k}, s[{t+2}:{t+3}]"]
        for k in range(2):
            ad += [f"v_add_u32 v{R+3*k+b}, v{dc+k}, v{ev+b}" for b in range(3)]
            ad += [f"v_min_u32 v{R+3*k+b}, 1680, v{R+3*k+b}" for b in range(3)]
            ad += [f"v_add_u32 v{R+3*k+b}, s{t+4}, v{R+3*k+b}" for b in range(3)]
        ad += [f"v_lshlrev_b32 v{dc}, 2, v{vLane}", f"v_add_u32 v{vEx}, s{t+4}, v{dc}"]
        for l in ad[:20]: a(l)
        D = ACC
        mm = []
        for g in range(4):
            for k in range(2):
                for b in range(3):
                    d = D + 12*k + 4*b
                    B = f"v[{FR+16*g+8+4*b}:{FR+16*g+8+4*b+3}]" if b < 2 else f"v[{ONE}:{ONE+3}]"
                    mm.append(f"v_mfma_f32_16x16x32_bf16 v[{d}:{d+3}], v[{FR+16*g+4*k}:{FR+16*g+4*k+3}], {B}, {'0' if g == 0 else f'v[{d}:{d+3}]'}")
        a("s_waitcnt lgkmcnt(0)")
        for l in interleave(mm, ad[20:], 0, 16): a(l)
        def qmath(u):
            e = ACC + 8*u
            return self.phi_quad(e, e, TM) + self.phi_quad(e + 4, e + 2, TM + 4)
        q10 = qmath(10)
        for l in q10[:8]: a(l)
        for j in range(6): a(f"ds_write_b128 v{R+j}, v[{D+4*j}:{D+4*j+3}]")
        for l in q10[8:20]: a(l)
        a("s_waitcnt lgkmcnt(0)")
        for j in range(7): a(f"ds_read_b32 v{j}, v{vEx} offset:{256*j}")
        for l in q10[20:]: a(l)
        a("s_waitcnt lgkmcnt(0)")
        for j in range(7):
            if j == 6: a("s_mov_b32 exec_hi, 15")
            a(f"buffer_atomic_add_f32 v{j}, v{dc}, {WSR}, s{sRec} offen offset:{256*j} sc1")
        a("s_mov_b32 exec_hi, -1")
        a(f"s_add_u32 s{t}, s{sPq}, 4096")
        def qst(u):
            e = ACC + 8*(10 + u)
            a(f"buffer_store_dwordx4 v[{e}:{e+3}], v{vL}, {WSR}, s{sPq if u < 2 else t} offen offset:{2048*(u & 1)} sc1")
        qst(0)
        for u in (1, 2, 3):
            for l in qmath(10 + u): a(l)
            qst(u)
        a(f"v_mov_b32 v0, v{vLane}")
        self.stamp(3)
        self.finish1([sF1, sF2], strict=True)

    def setup2(self):
        a = self.a
        t = T0
        if MAP2 == "x2":
            a(f"s_bfe_u32 s{t+2}, s{sWG}, 0x20001\ns_bfe_u32 s{t+3}, s{sWG}, 0x30003\ns_lshl3_add_u32 s{sR64}, s{t+2}, s{t+3}")
            a(f"s_and_b32 s{t+2}, s{sWG}, 1\ns_lshr_b32 s{t+3}, s{sWG}, 6\ns_lshl2_add_u32 s{sC}, s{t+2}, s{t+3}")
        else:
            a(f"s_and_b32 s{t+2}, s{sWG}, 7\ns_bfe_u32 s{t+3}, s{sWG}, 0x20003\ns_lshl2_add_u32 s{sR64}, s{t+2}, s{t+3}\ns_lshr_b32 s{sC}, s{sWG}, 5")
        a(f"v_lshlrev_b32 v{vL16}, 4, v0\nv_add_u32 v{vL16b}, 4096, v{vL16}")
        if ROT2 == "none":
            a(f"s_mov_b32 s{t}, 0")
        elif ROT2 == "two":
            a(f"s_lshr_b32 s{t}, s{sWG}, 3\ns_lshr_b32 s{t+1}, s{sWG}, {6 if MAP2 == 'x2' else 5}\ns_xor_b32 s{t}, s{t}, s{t+1}\ns_and_b32 s{t}, s{t}, 1\ns_mul_i32 s{t}, s{t}, 3")
        elif MAP2 == "x2":
            a(f"s_and_b32 s{t}, s{sC}, 3\ns_mul_i32 s{t}, s{t}, 3\ns_lshr_b32 s{t}, s{t}, 1")
        else:
            a(f"s_mul_i32 s{t}, s{sC}, 3\ns_lshr_b32 s{t}, s{t}, 2")
        a(f"s_mul_i32 s{t+1}, s{sWAVE}, 6")
        a(f"s_mul_i32 s{t+2}, s{sC}, {48*5120}\ns_add_u32 s{t+2}, s{t+2}, {WS_W2R}")
        a(f"s_mul_i32 s{t+3}, s{sR64}, {48*4096}\ns_add_u32 s{t+3}, s{t+3}, {WS_ACT}")
        for i in range(6):
            a(f"s_add_u32 s{t+4}, s{t+1}, s{t}\ns_mul_i32 s{sB0+i}, s{t+4}, 5120\ns_add_u32 s{sB0+i}, s{sB0+i}, s{t+2}")
            a(f"s_lshl_b32 s{sA0+i}, s{t+4}, 12\ns_add_u32 s{sA0+i}, s{sA0+i}, s{t+3}")
            if i < 5: a(f"s_add_u32 s{t}, s{t}, 1\ns_cmp_eq_u32 s{t}, 6\ns_cselect_b32 s{t}, 0, s{t}")
        a(f"s_lshl3_add_u32 s{sFa}, s{sR64}, s{sWAVE}\ns_lshl_b32 s{sFa}, s{sFa}, 7\ns_lshl_b32 s{sFq}, s{sR64}, 7\ns_add_u32 s{sFq}, s{sFq}, {CNT_PQ}")
        a(f"s_mul_i32 s{sPQb}, s{sR64}, 40\ns_mul_i32 s{t}, s{sWAVE}, 5\ns_add_u32 s{sPQb}, s{sPQb}, s{t}\ns_lshl_b32 s{sPQb}, s{sPQb}, 11\ns_add_u32 s{sPQb}, s{sPQb}, {WS_PQ}")
        a(f"s_lshl3_add_u32 s{sMb}, s{sC}, s{sWAVE}\ns_mul_i32 s{sMb}, s{sMb}, 12800\ns_add_u32 s{sMb}, s{sMb}, {WS_WOR}")
        a(f"s_mul_i32 s{sKv}, s{sWAVE}, 7168\ns_add_u32 s{sKv}, s{sKv}, {WS_KVP}\ns_lshl_b32 s{sFk}, s{sWAVE}, 9\ns_add_u32 s{sFk}, s{sFk}, {CNT_KV}")

    def preload_b(self, n0, n1):
        for n in range(n0, n1):
            i, jn = divmod(n, 5)
            d = BS + 20*i + 4*jn
            self.a(f"buffer_load_dwordx4 v[{d}:{d+3}], v{vL16 if jn < 4 else vL16b}, {WSR}, s{sB0+i} offen offset:{1024*jn if jn < 4 else 0} sc1")

    def stage_b(self):
        a = self.a
        t = T0
        a(f"s_mul_i32 s{t}, s{sT}, 20480\ns_add_u32 s{t}, s{t}, {BL}")
        for i in range(2, 6):
            a(f"s_sub_u32 s{t+1}, s{sB0+i}, 122880")
            for jn in range(5):
                if jn in (0, 4):
                    a(f"s_add_u32 m0, s{t}, {5120*(i-2) + 1024*jn}")
                    a(f"s_add_u32 s{t+1}, s{t+1}, 4096" if jn else "s_nop 0")
                a(f"buffer_load_dwordx4 v{vL16}, {WSR}, s{t+1} offen offset:{1024*(jn % 4)} sc1 lds")
        a("s_waitcnt vmcnt(0)")

    def gemm2(self):
        a = self.a
        t = T0
        seq = []
        def ld(dst, n, v, so, off, tag):
            a(f"buffer_load_dword{ {1: '', 2: 'x2', 4: 'x4'}[n] } {vr(dst, n)}, v{v}, {WSR}, s{so} offen offset:{off} sc1"); seq.append(tag)
        def wait(tag):
            last = max(n for n, x in enumerate(seq) if x == tag)
            a(f"s_waitcnt vmcnt({len(seq) - 1 - last})")
        def act(i):
            for st in range(4): ld(AB + 16*(i % 3) + 4*st, 4, vL16, sA0 + i, 1024*st, f"act{i}")
        def check(soff, target):
            ok = a.newlabel("L_ok")
            a(f"v_cmp_le_u32 vcc, {target}, v{vP+1}\ns_nop 1\ns_cmp_eq_u64 vcc, -1\ns_cbranch_scc1 {ok}")
            self.poll(f"s{soff}", target, vP, vP + 1)
            a.label(ok)
        LN = 255
        def dma(so, n, lds, tag):
            for k in range(n):
                if k == 12: a("s_mov_b32 exec_hi, 0")
                if k % 4 == 0:
                    a(f"s_add_u32 m0, s{sLB}, {lds + 1024*k}")
                    a(f"s_add_u32 s{so}, s{so}, 4096" if k else "s_nop 0")
                a(f"buffer_load_dwordx4 v{vL16}, {WSR}, s{so} offen offset:{1024*(k % 4)} sc1 lds"); seq.append(tag)
                if k == 12: a("s_mov_b32 exec_hi, -1")
        def pq(sp):
            for tt in range(5):
                ld(PQR + 20*sp + 4*tt, 4, vL16, (sPQb, t, t + 1)[tt >> 1], 2048*(tt & 1) + 1024*sp, f"pq{sp}")
        a(f"v_lshrrev_b32 v{LN}, 4, v{vL16}\nv_mov_b32 v{vP}, 0")
        a(f"s_xor_b32 s{sLB}, s{sWAVE}, 4\ns_mul_i32 s{sLB}, s{sLB}, 20480\ns_mov_b32 s{sN208}, -208")
        chunks = [(0, 0), (0, 1), (1, 0), (1, 1), (1, 2), (2, 1), (2, 2), (2, 3), (3, 2), (3, 3), (4, 3), (3, 4), (4, 4)] + [("z", tt) for tt in range(5)]
        slot = dict(zip(chunks, [0, 1, 2, 3, 4, 7, 8, 9, 10, 11, 13, 14, 15, 16, 17, 18, 19, 20]))
        X, K0 = 24, 4
        ad = [f"v_and_b32 v{X}, 15, v{LN}", f"v_lshrrev_b32 v{X+1}, 4, v{LN}", f"s_add_u32 s{t+2}, s{sLB}, 13312", f"v_mul_u32_u24 v{X+3}, 336, v{X+1}", f"v_add_u32 v{X+3}, s{t+2}, v{X+3}",
              f"v_add_u32 v{X+18}, s{t+2}, v{vL16}", f"s_add_u32 s{t+2}, s{t+2}, 7056", f"v_mov_b32 v{X+13}, s{t+2}"] + [f"v_subrev_u32 v{X+13+k}, {1344*k}, v{X+13}" for k in range(1, 5)]
        for te in (0, 1, 2, 3, 4, "z"):
            if te == "z":
                ad += [f"v_and_b32 v{X+4}, 3, v{LN}", f"v_mul_u32_u24 v{X+5}, 112, v{X+4}", f"v_add_u32 v{X+6}, 320, v{X+3}", f"v_add_u32 v{X+5}, v{X+5}, v{X+6}"]
            else:
                ad += [f"v_add_u32 v{X+6}, {16*te}, v{X}", f"v_mul_u32_u24 v{X+4}, 3277, v{X+6}", f"v_lshrrev_b32 v{X+4}, 16, v{X+4}",
                       f"v_lshl_add_u32 v{X+6}, v{X+6}, 4, v{X+3}", f"v_mad_i32_i24 v{X+5}, v{X+4}, s{sN208}, v{X+6}"]
            ad += [f"v_mad_i32_i24 v{X+4}, v{X+4}, -5, v{X+1}"]
            mine = [(j, c) for j, c in enumerate(chunks) if c[0] == te]
            ad += [f"v_add_u32 v{X+8+n}, {4*c[1]}, v{X+4}" for n, (j, c) in enumerate(mine)]
            ad += [f"v_cmp_gt_u32 s[{t+4+2*n}:{t+5+2*n}], 5, v{X+8+n}" for n, (j, c) in enumerate(mine)]
            ad += ["s_nop 0"]
            ad += [f"v_cndmask_b32 v{K0+j}, v{X+13+c[1]}, v{X+5}, s[{t+4+2*n}:{t+5+2*n}]" for n, (j, c) in enumerate(mine)]
        if ADPRE:
            for l in ad: a(l)
        a("s_barrier")
        self.stamp(4)
        self.pickup()
        a("s_waitcnt lgkmcnt(0)")
        if WOAT < 0: dma(sMb, 13, 0, "wo")
        if not ADPRE:
            for l in ad: a(l)
        for k in range(5): a(f"ds_write_b128 v{X+18}, v[{K0+4*k}:{K0+4*k+3}] offset:{1024*k}")
        if GSYNC:
            sk = a.newlabel("L_gs")
            a(f"s_waitcnt vmcnt(0)\ns_barrier\ns_cmp_lg_u32 s{sWAVE}, 4\ns_cbranch_scc1 {sk}")
            self.srd(SRD_D, pDBG, 256)
            a(f"v_mov_b32 v1, 1\nv_mov_b32 v2, 192\ns_mov_b64 exec, 1\nbuffer_atomic_add v1, v2, s[{SRD_D}:{SRD_D+3}], 0 offen sc1\ns_mov_b64 exec, -1\ns_sleep 127\ns_sleep 127\ns_mov_b32 s{t}, 256")
            global SLEEP
            old = SLEEP; SLEEP = 64
            self.poll("0", f"s{t}", 2, 3, SRD_D)
            SLEEP = old
            a.label(sk)
            a("s_barrier")
        if SKEW:
            sk, lp = a.newlabel("L_sk"), a.newlabel("L_skl")
            a(f"s_cmp_lt_u32 s{sWAVE}, 4\ns_cbranch_scc1 {sk}\ns_lshl_b32 s{t}, s{sWAVE}, 2\ns_add_u32 s{t}, s{t}, {HINT - 16}\nv_mov_b32 v1, s{t}\ns_mov_b32 s{t}, 0")
            a.label(lp)
            a(f"ds_read_b32 v2, v1\ns_waitcnt lgkmcnt(0)\nv_readfirstlane_b32 s{t+1}, v2\ns_add_u32 s{t}, s{t}, 1\ns_cmp_lg_u32 s{t+1}, 0\ns_cbranch_scc1 {sk}")
            a(f"s_sleep 2\ns_cmp_lt_u32 s{t}, 64\ns_cbranch_scc1 {lp}")
            a.label(sk)
        self.poll(f"s{sFa}", 2, vP, vP + 1)
        self.stamp(6)
        act(0)
        ld(vP + 1, 1, vP, sFq, 0, "fq")
        act(1); act(2)
        def mlp(i):
            return [f"v_mfma_f32_16x16x32_bf16 v[{20*st+4*jn}:{20*st+4*jn+3}], v[{BS+20*i+4*jn}:{BS+20*i+4*jn+3}], v[{AB+16*(i%3)+4*st}:{AB+16*(i%3)+4*st+3}], "
                    + ('0' if i == 0 else f'v[{20*st+4*jn}:{20*st+4*jn+3}]') for jn in range(5) for st in range(4)]
        for i in range(5):
            wait(f"act{i}")
            for l in mlp(i): a(l)
            if i < 2: act(i + 3)
            if i == 2:
                check(sFq, 25)
                a(f"s_add_u32 s{t}, s{sPQb}, 4096\ns_add_u32 s{t+1}, s{sPQb}, 8192")
                a(f"v_and_b32 v{vP+1}, 15, v{LN}\nv_lshlrev_b32 v{vP+1}, 2, v{vP+1}\ns_lshl_b32 s{t+2}, s{sR64}, 8\ns_add_u32 s{t+2}, s{t+2}, {WS_G}")
                for st in range(4): ld(vG + st, 1, vP + 1, t + 2, 64*st, "g")
                a(f"v_and_b32 v{vP}, 3, v{LN}\nv_lshlrev_b32 v{vP}, 7, v{vP}")
                ld(vP + 1, 1, vP, sFk, 0, "fk")
                pq(0); pq(1)
                if WOAT == 2: dma(sMb, 13, 0, "wo")
                a(f"s_add_u32 s{t+2}, s{sLB}, 13312\nv_add_u32 v{KA+19}, s{t+2}, v{vL16}")
                for k in range(5): a(f"ds_read_b128 v[{KA+4*k}:{KA+4*k+3}], v{KA+19} offset:{1024*k}")
            if SKEW and i == SKEW - 1:
                sk = a.newlabel("L_sks")
                a(f"s_cmp_ge_u32 s{sWAVE}, 4\ns_cbranch_scc1 {sk}\ns_lshl_b32 s{t+3}, s{sWAVE}, 2\ns_add_u32 s{t+3}, s{t+3}, {HINT}\nv_mov_b32 v{BS}, s{t+3}\nds_write_b32 v{BS}, v{BS}") if i < 2 else a(f"s_cmp_ge_u32 s{sWAVE}, 4\ns_cbranch_scc1 {sk}\ns_lshl_b32 s{t+3}, s{sWAVE}, 2\ns_add_u32 s{t+3}, s{t+3}, {HINT}\nv_mov_b32 v232, s{t+3}\nds_write_b32 v232, v232")
                a.label(sk)
            if i == KVAT:
                wait("fk")
                check(sFk, 16)
                a("s_waitcnt lgkmcnt(0)")
                dma(sKv, 7, 13312, "kv")
                act(5)
        self.stamp(7)
        def swaps(R):
            return [f"v_swap_b32 v{R+8*p+2+k}, v{R+8*p+4+k}" for p in range(2) for k in range(2)]
        a(f"s_mov_b32 s{cE}, 0x358637bd")
        mq = [t + 4, t + 6, t + 8]
        a(f"s_mov_b32 s{mq[0]}, 0xffff\ns_mov_b32 s{mq[0]+1}, 0\ns_mov_b32 s{mq[1]}, -1\ns_mov_b32 s{mq[1]+1}, 0\ns_mov_b32 s{mq[2]}, -1\ns_mov_b32 s{mq[2]+1}, 0xffff")
        raw = lambda j: 200 + 4*j if j < 8 else 140 + 4*(j - 8)
        KP = 120
        wait("kv")
        self.stamp(8)
        for j, c in enumerate(chunks):
            a(f"ds_read_b128 v[{raw(j)}:{raw(j)+3}], v{KA+j} offset:{1344*c[1]}")
        for l in swaps(PQR) + swaps(PQR + 20): a(l)
        for j, c in enumerate(chunks):
            if j in (0, 8): a(f"s_waitcnt lgkmcnt({10 if j == 0 else 0})")
            d, r = KP + 2*slot[c], raw(j)
            a(f"v_cvt_pk_bf16_f32 v{d}, v{r}, v{r+1}\nv_cvt_pk_bf16_f32 v{d+1}, v{r+2}, v{r+3}")
        for z in (5, 6, 12): a(f"v_mov_b32 v{KP+2*z}, 0\nv_mov_b32 v{KP+2*z+1}, 0")
        Oset = {1: ([200, 204, 208, 212, 216], 220), 0: ([162, 166, 170, 174, 224], 228)}
        SC = [178, 179, vP + 1]
        def fq(st, tt):
            R = PQR + 20*(st >> 1)
            return R + 8*(tt >> 1) + 4*(st & 1) + 2*(tt & 1) if tt < 4 else R + 16 + 2*(st & 1)
        K32 = lambda d, A, B, c: f"v_mfma_f32_16x16x32_bf16 v[{d}:{d+3}], v[{A}:{A+3}], v[{B}:{B+3}], {c}"
        K16 = lambda d, A, B: f"v_mfma_f32_16x16x16_bf16 v[{d}:{d+3}], v[{A}:{A+1}], v[{B}:{B+1}], v[{d}:{d+3}]"
        acc = lambda d: f"v[{d}:{d+3}]"
        S = lambda k: KP + 2*k
        def Xb(st):
            O, DN = Oset[st & 1]
            p0, p1, ps = fq(st, 0), fq(st, 2), fq(st, 4)
            return [K32(DN, S(16), p0, "0"), K32(O[3], S(10), p1, "0"), K32(O[4], S(12), p1, "0"), K32(DN, S(18), p1, acc(DN)),
                    K32(O[0], S(0), p0, "0"), K32(O[1], S(2), p0, "0"), K32(O[2], S(6), p0, "0"), K32(O[1], S(4), p1, acc(O[1])), K32(O[2], S(8), p1, acc(O[2])),
                    "s_nop 0", K16(DN, S(20), ps), K16(O[3], S(14), ps), K16(O[4], S(15), ps)]
        def Vb(st):
            O, DN = Oset[st & 1]
            r = [f"v_add_f32 v{DN+k}, s{cE}, v{DN+k}" for k in range(4)] + [f"v_rcp_f32 v{DN+k}, v{DN+k}" for k in range(4)]
            r += [f"v_mul_f32 v{DN+k}, v{vG+st}, v{DN+k}" for k in range(4)]
            r += [f"v_cndmask_b32 v{SC[k]}, v{DN+k+1}, v{DN+k}, s[{mq[k]}:{mq[k]+1}]" for k in range(3)]
            for tt in range(5):
                sc = (DN, SC[0], SC[1], SC[2], DN + 3)[tt]; o = O[tt]
                r += [f"v_mul_f32 v{o+k}, v{sc}, v{o+k}" for k in range(4)]
                r += [f"v_cvt_pk_bf16_f32 v{fq(st,tt)}, v{o}, v{o+1}", f"v_cvt_pk_bf16_f32 v{fq(st,tt)+1}, v{o+2}, v{o+3}"]
            return r
        def Yb(st):
            r = []
            for p in range(2):
                r += [K32(20*st + 4*jn, MR + 4*(2*jn + p), fq(st, 2*p), acc(20*st + 4*jn)) for jn in range(5)]
            r += ["s_nop 1"] + [K16(20*st + 4*jn, MR + 40 + 2*jn, fq(st, 4)) for jn in range(5)]
            return r
        self.stamp(2, "tail")
        a("s_nop 1")
        for l in Xb(0): a(l)
        for st in range(1, 4):
            x = Xb(st)
            for l in x[:6] + interleave(x[6:], Vb(st - 1)): a(l)
        self.stamp(3, "tail")
        TA = 224
        a(f"v_add_u32 v{TA}, s{sLB}, v{vL16}\nv_lshlrev_b32 v{TA+1}, 3, v{LN}\nv_add_u32 v{TA+1}, s{sLB}, v{TA+1}")
        for f in range(10): a(f"ds_read_b128 v[{MR+4*f}:{MR+4*f+3}], v{TA} offset:{1024*f}")
        for jn in range(5): a(f"ds_read_b64 v[{MR+40+2*jn}:{MR+41+2*jn}], v{TA+1} offset:{10240 + 512*jn}")
        vRW = vP
        rw = [f"v_and_b32 v{TA}, 15, v{LN}", f"v_mul_u32_u24 v{TA}, 160, v{TA}", f"v_bfe_u32 v{TA+1}, v{LN}, 5, 1", f"v_bfe_u32 v{vRW}, v{LN}, 2, 1", f"v_xor_b32 v{TA+1}, v{TA+1}, v{vRW}", f"v_lshl_add_u32 v{TA}, v{TA+1}, 4, v{TA}",
              f"v_bfe_u32 v{TA+1}, v{LN}, 4, 1", f"v_mul_u32_u24 v{TA+1}, 10240, v{TA+1}", f"v_add3_u32 v{vRW}, v{TA}, v{TA+1}, s{sLB}"]
        wrl = lambda st: [f"ds_write_b128 v{vRW}, v[{20*st+4*jn}:{20*st+4*jn+3}] offset:{2560*st + 32*jn}" for jn in range(5)]
        RA = 170
        rd = [f"s_mul_i32 s{t}, s{sWAVE}, 80", f"v_add_u32 v{RA}, s{t}, v{LN}", f"v_add_u32 v{RA+1}, 64, v{RA}",
              f"s_lshl_b32 s{t+2}, s{sR64}, 8", f"s_add_u32 s{t+2}, s{t+2}, {WS_G + 8192}"]
        for k in range(2):
            rd += [f"v_mul_u32_u24 v{RA+2}, 6554, v{RA+k}", f"v_lshrrev_b32 v{RA+2}, 16, v{RA+2}", f"v_mad_i32_i24 v{RA+3}, v{RA+2}, -10, v{RA+k}", f"v_lshlrev_b32 v{TA+2+k}, 2, v{RA+2}",
                   f"buffer_load_dword v{TA+2+k}, v{TA+2+k}, {WSR}, s{t+2} offen sc1",
                   f"v_bfe_u32 v{RA+6}, v{RA+2}, 2, 1", f"v_xor_b32 v{RA+k}, v{RA+k}, v{RA+6}",
                   f"v_mul_u32_u24 v{RA+2}, 1280, v{RA+2}", f"v_lshl_add_u32 v{RA+4+k}, v{RA+3}, 4, v{RA+2}", f"v_lshlrev_b32 v{RA+k}, 4, v{RA+k}"]
        rd += [f"v_add_u32 v{RA+6}, 61440, v{RA}", f"v_add_u32 v{RA+7}, 61440, v{RA+1}", f"v_add_u32 v{RA+8}, 122880, v{RA}", f"v_add_u32 v{RA+9}, 122880, v{RA+1}"]
        rd += [f"s_mov_b32 s{SRD_M}, s{pOUT}", f"s_mov_b32 s{SRD_M+1}, s{pOUT+1}", f"s_mov_b32 s{SRD_M+2}, {2048*640*2}", f"s_mov_b32 s{SRD_M+3}, 0x20000",
               f"s_mul_i32 s{t}, s{sR64}, 81920", f"s_mul_i32 s{t+1}, s{sC}, 160", f"s_add_u32 s{t}, s{t}, s{t+1}"]
        self.stamp(4, "tail")
        wait("act5")
        self.stamp(5, "tail")
        for l in interleave(mlp(5), Vb(3) + rw): a(l)
        a("s_waitcnt lgkmcnt(0)")
        self.stamp(6, "tail")
        for l in interleave(Yb(0), rd[:25]): a(l)
        for l in interleave(Yb(1), rd[25:] + wrl(0), 2): a(l)
        for l in interleave(Yb(2), wrl(1), 6): a(l)
        for l in interleave(Yb(3), wrl(2), 6): a(l)
        self.stamp(7, "tail")
        a("s_nop 4")
        for l in wrl(3): a(l)
        a("s_waitcnt lgkmcnt(0)\ns_barrier")
        self.stamp(9)
        for k in range(2):
            if k == 1: a("s_mov_b64 exec, 0xffff")
            R = 64*k
            for w in range(8):
                for par in range(2):
                    base = [RA + k, RA + 6 + k, RA + 8 + k][w // 3]
                    a(f"ds_read_b128 v[{R+8*w+4*par}:{R+8*w+4*par+3}], v{base} offset:{20480*(w % 3) + 10240*par}")
        a("s_mov_b64 exec, -1")
        for k in range(2):
            R = 64*k
            a(f"s_waitcnt lgkmcnt({15 if k == 0 else 0})")
            for pairs in (((0, 4), (1, 5), (2, 6), (3, 7)), ((0, 2), (1, 3)), ((0, 1),)):
                for x, y in pairs:
                    for j in range(4):
                        a(f"v_pk_add_f32 v[{R+8*x+2*j}:{R+8*x+2*j+1}], v[{R+8*x+2*j}:{R+8*x+2*j+1}], v[{R+8*y+2*j}:{R+8*y+2*j+1}]")
            if k == 0: a("s_waitcnt vmcnt(0)")
            for j in range(8): a(f"v_mul_f32 v{R+j}, v{TA+2+k}, v{R+j}")
            for j in range(4): a(f"v_cvt_pk_bf16_f32 v{R+j}, v{R+2*j}, v{R+2*j+1}")
            if k == 1: a("s_mov_b64 exec, 0xffff")
            a(f"buffer_store_dwordx4 v[{R}:{R+3}], v{RA+4+k}, s[{SRD_M}:{SRD_M+3}], s{t} offen {OUTFL}")
        a("s_mov_b64 exec, -1")


def descriptor(name):
    return f""".p2align 6
.amdhsa_kernel {name}
  .amdhsa_next_free_vgpr 256
  .amdhsa_next_free_sgpr 102
  .amdhsa_accum_offset 256
  .amdhsa_group_segment_fixed_size 0
  .amdhsa_kernarg_size 88
  .amdhsa_user_sgpr_count 2
  .amdhsa_user_sgpr_kernarg_segment_ptr 1
  .amdhsa_system_sgpr_workgroup_id_x 1
.end_amdhsa_kernel
"""

def build(stamps):
    g = Gen(stamps=stamps)
    a = g.a
    K = NAME + "_kernel"
    hdr = open(os.path.join(os.path.dirname(os.path.abspath(__file__)), "header.txt")).read()
    for l in hdr.strip().split("\n"): a.lines.append(l)
    a(f"; @launch grid=(256,1,1) block=(512,1,1) lds={LDS_TOTAL}")
    a('.amdgcn_target "amdgcn-amd-amdhsa--gfx950"\n.text')
    a(f".globl {K}\n.p2align 8\n.type {K},@function")
    a.label(K)
    g.common_prologue("L_end")
    a(f"s_cmp_lt_u32 s{sWAVE}, 4\ns_cbranch_scc1 L_comp")
    g.loader1()
    a("s_setprio 0")
    g.setup2()
    g.srd(SRD_WS, pWS, WS_SIZE)
    g.preload_b(0, NL0)
    a("s_barrier")
    if SKEW: a(f"v_mov_b32 v6, {HINT}\nv_mov_b32 v8, 0\nv_mov_b32 v9, 0\nv_mov_b32 v10, 0\nv_mov_b32 v11, 0\nds_write_b128 v6, v[8:11]\ns_waitcnt lgkmcnt(0)")
    g.preload_b(NL0, 10)
    a(f"s_cmp_lg_u32 s{sTYPE}, 0\ns_cbranch_scc1 L_l2\ns_barrier")
    a.label("L_l2")
    g.preload_b(10, 30)
    if BLDS: g.stage_b()
    g.stamp(3)
    a.label("L_g2")
    g.gemm2()
    g.dump_stamps()
    a.label("L_end")
    a("s_endpgm")
    a.label("L_comp")
    a(f"s_cmp_eq_u32 s{sTYPE}, 0\ns_cbranch_scc1 L_kv")
    g.compute_P(); a("s_branch L_g2")
    a.label("L_kv")
    g.compute_KV(); a("s_branch L_g2")
    a.label("L_code_end")
    errs = lint(a.lines)
    for e in errs: print("HAZARD:", e, file=sys.stderr)
    return a.text() + '.section .rodata,"a"\n' + descriptor(K)

if __name__ == "__main__":
    open(sys.argv[1], "w").write(build(sys.argv[2] if len(sys.argv) > 2 else False))
```

```python
import sys, os
sys.path.insert(0, os.path.dirname(os.path.abspath(__file__)))
from asmlib import *

NAME = "gated_mix__linear_attn_block__dense_activation_mish__prompt"
ENV = os.environ.get

CNT_ACT, CNT_PQ, CNT_KV = 0, 256*128, 288*128
DONE_KV, DONE_PQ = 320*128, 328*128
WS_G = 0x10000
WS_KVP = 0x100000
WS_WOR = 0x200000
WS_W2R = 0x300000
WS_PQ = 0x500000
WS_ACT = 0x800000
WS_SIZE = 0x1000000
WS_STAMP = 0x8000000
BIG = 0x20000000
DBGW = int(ENV("DBGW", "0"))
ROTMODE = ENV("ROT", "two")
ROT2 = ENV("ROT2", "two")
NPRE = int(ENV("NPRE", "10"))
SPIN = int(ENV("SPIN", str(0x100000)))
WOAT = 3
ADPRE = int(ENV("ADPRE", "0"))
KVAT = int(ENV("KVAT", "-1"))
GSYNC = int(ENV("GSYNC", "0"))
PF = int(ENV("PF", "0"))
RS = int(ENV("RS", "3"))
S1AT = int(ENV("S1AT", "8"))
S1SLEEP = int(ENV("S1SLEEP", "2"))
LOOPDBG = int(ENV("LOOPDBG", "0"))
CPF = int(ENV("CPF", "1"))
RD = int(ENV("RD", "-1"))
SKEW = int(ENV("SKEW", "0"))
HINT = 3*20480 + 12800
TAILDBG = int(ENV("TAILDBG", "0"))
OUTFL = ENV("OUTFL", "").replace("_", " ")
LFLAG = 0
FAKE = int(ENV("FAKE", "0"))
SPLIT = int(ENV("SPLIT", "1"))
YSLEEP = int(ENV("YSLEEP", "8"))
PQAT = int(ENV("PQAT", "1"))
FILLI = int(ENV("FILLI", "1"))
FIRST0 = int(ENV("FIRST0", "0"))
PRIO = ENV("PRIO", "")
PICK = int(ENV("PICK", "0"))
SLEEP = int(ENV("SLEEP", "1"))
BLDS = int(ENV("BLDS", "1"))
NL0 = int(ENV("NL0", "4"))
MAP2 = ENV("MAP2", "x2")
TOUCH = int(ENV("TOUCH", "0"))
MSDBG = int(ENV("MSDBG", "0"))
MSPRIO = int(ENV("MSPRIO", "1"))
MSPRIO2 = int(ENV("MSPRIO2", "1"))

XR = 0
STG = 40960
WR = 49152
WSLOT = 14336
NS = 6
GATE = WR + NS * WSLOT
SCR = GATE + 2048
MS = WR
BL = WR + 32768
BLF = STG + 2040
LDS_TOTAL = 163840

sWG = 2
pX, pWQKV, pWO, pW1, pB1, pW2, pGATE, pOUT, pDBG, pWS = 4, 6, 8, 12, 14, 16, 18, 20, 22, 24
sWAVE, sRB, sHALF, sCBL, sGRP, sF1, sROT, sPIDX, sTYPE, sT = 26, 27, 28, 29, 30, 31, 32, 33, 34, 35
SRD_WS, SRD_X, SRD_W, SRD_M, SRD_D = 36, 40, 44, 52, 56
T0 = 60
sST = 76
cL2E, cC, cE = 96, 98, 100
sR64, sC = 27, 28
sB0, sA0 = 40, 46
sPQb, sMb, sKv, sFk = 0, 1, 3, 29
sFa, sFq = 10, 11
BS, AB = 80, 200
PQR, MR, KA, KD = 80, 120, 120, 176
sLB, sN208 = 30, 31
vG, vP, vL16, vL16b = 248, 252, 254, 255
WSR = f"s[{SRD_WS}:{SRD_WS+3}]"


class Gen:
    def __init__(self, stamps=False):
        self.a = Asm()
        self.stamps = stamps

    def stamp(self, k, loop=False):
        if loop == "tail":
            if not TAILDBG: return
        elif TAILDBG and 1 <= k <= 7: return
        elif LOOPDBG and k >= 3 and not loop: return
        elif loop and not LOOPDBG: return
        if self.stamps and not (self.stamps == "dbg" and k == 9):
            if k < 2 and self.stamps != "dbg" and loop != "tail":
                self.a(f"s_memtime s[58:59]\ns_waitcnt lgkmcnt(0)\ns_mov_b32 s{sST+2*k}, s58")
            else:
                self.a(f"s_memtime s[{sST+2*k}:{sST+2*k+1}]")

    def srd(self, d, ptr, size, add=None):
        a = self.a
        if add is None:
            a(f"s_mov_b32 s{d}, s{ptr}\ns_mov_b32 s{d+1}, s{ptr+1}")
        else:
            a(f"s_add_u32 s{d}, s{ptr}, {add}\ns_addc_u32 s{d+1}, s{ptr+1}, 0")
        a(f"s_mov_b32 s{d+2}, {size}\ns_mov_b32 s{d+3}, 0x20000")

    def signal(self, soff, v, off=0):
        self.a(f"v_mov_b32 v{v}, 1\nv_mov_b32 v{v+1}, 0\ns_mov_b64 exec, 1\nbuffer_atomic_add v{v}, v{v+1}, {WSR}, s{soff} offen offset:{off} sc1\ns_mov_b64 exec, -1")

    def arrive(self, soff, v):
        self.a(f"v_mov_b32 v{v}, 1\nv_mov_b32 v{v+1}, 0\ns_mov_b64 exec, 1\nbuffer_atomic_add v{v}, v{v+1}, {WSR}, s{soff} offen sc0 sc1\ns_mov_b64 exec, -1")

    def raise_if_last(self, v, last, soff):
        a = self.a
        sk = a.newlabel("L_last")
        a(f"v_readfirstlane_b32 s{T0+14}, v{v}\nv_mov_b32 v{v}, 1\nv_mov_b32 v{v+1}, 0\ns_cmp_lg_u32 s{T0+14}, {last}\ns_cbranch_scc1 {sk}")
        a(f"s_mov_b64 exec, 1\nbuffer_store_dword v{v}, v{v+1}, {WSR}, s{soff} offen sc1\ns_mov_b64 exec, -1")
        a.label(sk)

    def poll(self, soff, target, va, vd, srd=SRD_WS, sleep=None):
        a = self.a
        t = T0 + 15
        loop, done = a.newlabel("L_poll"), a.newlabel("L_polld")
        a(f"s_mov_b32 s{t}, 0")
        a.label(loop)
        a(f"buffer_load_dword v{vd}, v{va}, s[{srd}:{srd+3}], {soff} offen sc1\ns_waitcnt vmcnt(0)")
        a(f"v_cmp_le_u32 vcc, {target}, v{vd}\ns_add_u32 s{t}, s{t}, 1\ns_nop 0")
        a(f"s_cmp_eq_u64 vcc, -1\ns_cbranch_scc1 {done}")
        a(f"s_sleep {SLEEP if sleep is None else sleep}\ns_cmp_lt_u32 s{t}, {SPIN}\ns_cbranch_scc1 {loop}")
        a.label(done)

    def dump_stamps(self):
        if not self.stamps:
            return
        a = self.a
        a("s_waitcnt vmcnt(0) lgkmcnt(0)")
        a(f"s_memrealtime s[{T0}:{T0+1}]\ns_memtime s[{T0+2}:{T0+3}]")
        if self.stamps == "dbg":
            self.srd(SRD_M, pDBG, 256)
            a("s_waitcnt lgkmcnt(0)\nv_mov_b32 v2, 0\ns_mov_b64 exec, 1")
            sk = a.newlabel("L_dbg")
            a(f"s_lshl_b32 s{T0+5}, s{sWG}, 3\ns_add_u32 s{T0+5}, s{T0+5}, s{sWAVE}\ns_cmp_lg_u32 s{T0+5}, {DBGW}\ns_cbranch_scc1 {sk}")
            for k in range(1, 10):
                a(f"s_sub_u32 s{T0+5}, s{sST+2*k}, s{sST}\nv_mov_b32 v{3+k}, s{T0+5}")
            a(f"s_sub_u32 s{T0+5}, s{T0+2}, s{sST}\nv_mov_b32 v13, s{T0+5}\ns_sub_u32 s{T0+5}, s{T0}, s94\nv_mov_b32 v14, s{T0+5}\nv_mov_b32 v15, s94")
            for k in range(3):
                a(f"buffer_store_dwordx4 v[{4+4*k}:{7+4*k}], v2, s[{SRD_M}:{SRD_M+3}], 0 offen offset:{16+16*k}")
            a.label(sk)
            a("s_waitcnt vmcnt(0)")
            return
        a(f"s_getreg_b32 s{T0+4}, hwreg(HW_REG_XCC_ID)")
        self.srd(SRD_M, pWS, 0x10000000)
        a("s_waitcnt lgkmcnt(0)")
        for k in range(10):
            a(f"v_mov_b32 v{k}, s{sST+2*k}")
        a(f"v_mov_b32 v10, s{T0}\nv_mov_b32 v11, s{T0+2}\nv_mov_b32 v12, s{T0+4}\nv_mov_b32 v13, s{sTYPE}\nv_mov_b32 v14, s77\nv_mov_b32 v15, s79")
        a(f"s_lshl_b32 s{T0+5}, s{sWG}, 3\ns_add_u32 s{T0+5}, s{T0+5}, s{sWAVE}\ns_lshl_b32 s{T0+5}, s{T0+5}, 6\ns_add_u32 s{T0+5}, s{T0+5}, {WS_STAMP}")
        a("v_mov_b32 v16, 0\ns_mov_b64 exec, 1")
        for k in range(4):
            a(f"buffer_store_dwordx4 v[{4*k}:{4*k+3}], v16, s[{SRD_M}:{SRD_M+3}], s{T0+5} offen offset:{16*k}")
        a("s_waitcnt vmcnt(0)")

    def common_prologue(self, endlabel):
        a = self.a
        t = T0
        a(f"s_cmp_ge_u32 s{sWG}, 256\ns_cbranch_scc1 {endlabel}")
        a("s_load_dwordx16 s[4:19], s[0:1], 0\ns_load_dwordx4 s[20:23], s[0:1], 64\ns_load_dwordx2 s[24:25], s[0:1], 80")
        if self.stamps:
            for k in range(10): a(f"s_mov_b32 s{sST+2*k}, 0")
            if self.stamps == "dbg": a("s_memrealtime s[94:95]")
            else: a("s_memrealtime s[56:57]\ns_memtime s[58:59]\ns_waitcnt lgkmcnt(0)\ns_mov_b32 s77, s56\ns_mov_b32 s79, s58")
        if CPF:
            sk = a.newlabel("L_cpf")
            a(f"s_getpc_b64 s[{t}:{t+1}]\nL_pc0:\ns_lshr_b32 s{t+2}, s{sWG}, 3\ns_lshl_b32 s{t+2}, s{t+2}, 11\nv_lshlrev_b32 v2, 4, v0\nv_add_u32 v2, s{t+2}, v2")
            a(f"v_cmp_gt_u32 vcc, 128, v0\nv_min_u32 v2, L_code_end-L_pc0-16, v2\ns_and_saveexec_b64 s[{t+4}:{t+5}], vcc\ns_cbranch_execz {sk}")
            a(f"global_load_dwordx4 v[248:251], v2, s[{t}:{t+1}]")
            a.label(sk)
            a(f"s_mov_b64 exec, s[{t+4}:{t+5}]")
        a("v_lshrrev_b32 v1, 6, v0\nv_and_b32 v0, 63, v0")
        a(f"v_readfirstlane_b32 s{sWAVE}, v1")
        a(f"s_bfe_u32 s{t+2}, s{sWG}, 0x20001\ns_bfe_u32 s{t+3}, s{sWG}, 0x20003")
        a(f"s_lshl2_add_u32 s{sRB}, s{t+2}, s{t+3}\ns_and_b32 s{sHALF}, s{sWG}, 1\ns_lshr_b32 s{sCBL}, s{sWG}, 5")
        a(f"s_and_b32 s{t}, s{sCBL}, 3\ns_lshl2_add_u32 s{sGRP}, s{sHALF}, s{t}\ns_lshr_b32 s{sTYPE}, s{sCBL}, 2")
        if ROTMODE == "full":
            a(f"s_mul_i32 s{t+4}, s{t+3}, 5\ns_add_u32 s{t+4}, s{t+4}, 1\ns_lshr_b32 s{t+4}, s{t+4}, 1")
            a(f"s_add_u32 s{t+4}, s{t+4}, s{sCBL}\ns_add_u32 s{t+4}, s{t+4}, s{t+2}")
            a(f"s_mul_i32 s{t+5}, s{sHALF}, 5\ns_add_u32 s{sROT}, s{t+4}, s{t+5}")
            for _ in range(2):
                a(f"s_sub_u32 s{t+4}, s{sROT}, 10\ns_cmp_ge_u32 s{sROT}, 10\ns_cselect_b32 s{sROT}, s{t+4}, s{sROT}")
        elif ROTMODE == "none":
            a(f"s_mov_b32 s{sROT}, 0")
        elif ROTMODE == "xcd":
            a(f"s_mul_i32 s{t+4}, s{t+2}, 5\ns_add_u32 s{t+4}, s{t+4}, 1\ns_lshr_b32 s{t+4}, s{t+4}, 1\ns_add_u32 s{sROT}, s{t+4}, s{sHALF}")
        elif ROTMODE == "two0":
            a(f"s_add_u32 s{t+4}, s{t+3}, s{sCBL}\ns_and_b32 s{t+4}, s{t+4}, 1\ns_mul_i32 s{sROT}, s{t+4}, 5")
        elif ROTMODE == "two1":
            a(f"s_add_u32 s{t+4}, s{t+3}, s{sCBL}\ns_and_b32 s{t+4}, s{t+4}, 1\ns_mul_i32 s{t+4}, s{t+4}, 5\ns_and_b32 s{t+5}, s{t+2}, 1\ns_lshl1_add_u32 s{sROT}, s{t+5}, s{t+4}")
        elif ROTMODE == "two":
            a(f"s_add_u32 s{t+4}, s{t+3}, s{sCBL}\ns_and_b32 s{t+4}, s{t+4}, 1\ns_mul_i32 s{t+4}, s{t+4}, 5")
            a(f"s_add_u32 s{t+4}, s{t+4}, s{t+2}\ns_add_u32 s{sROT}, s{t+4}, s{sHALF}")

    def loader1(self):
        a = self.a
        t = T0
        sLW = sT
        vXE, vXO, vW, vGt = 2, 3, 4, 8
        sStr, sCol, sA32, sA64, sOff, sXo, sWB, sWB2, sXB, sXP, sSel = 48, 49, 50, 51, t+4, t+5, t+6, t+7, t+8, t+9, t+10
        a(f"s_setprio 2\ns_sub_u32 s{sLW}, s{sWAVE}, 4")
        a("v_lshrrev_b32 v10, 3, v0\nv_and_b32 v11, 7, v0\nv_lshrrev_b32 v12, 4, v0\nv_mul_u32_u24 v13, 1280, v10\nv_xor_b32 v14, v11, v12")
        a(f"s_and_b32 s{t}, s{sLW}, 1\ns_lshl_b32 s{t}, s{t}, 6")
        a(f"v_lshl_add_u32 v13, v14, 4, v13\nv_xor_b32 v{vXE}, s{t}, v13\nv_xor_b32 v{vXO}, 64, v{vXE}")
        if FIRST0: a(f"s_mov_b32 s{sA32}, 0\ns_mov_b32 s{sA64}, 0\ns_min_u32 s{sROT}, s{sROT}, 8")
        else: a(f"s_lshl_b32 s{sA32}, s{sROT}, 1\ns_mov_b32 s{sA64}, s{sROT}")
        a(f"s_mul_i32 s{sXB}, s{sLW}, 3072\ns_mul_i32 s{sXP}, s{sLW}, 30720")
        for k in range(6, 10): a(f"v_mov_b32 v{k}, {BIG}")
        lKV, lQH, lLN, lJ = a.newlabel("L_wkv"), a.newlabel("L_wqh"), a.newlabel("L_wln"), a.newlabel("L_wj")
        a(f"s_cmp_eq_u32 s{sTYPE}, 0\ns_cbranch_scc1 {lKV}")
        a(f"s_cmp_eq_u32 s{sLW}, 3\ns_cbranch_scc1 {lQH}")
        a(f"s_mov_b32 s{sSel}, 1\ns_mov_b32 s{sStr}, 3072\ns_mul_i32 s{sCol}, s{sGRP}, 3\ns_add_u32 s{sCol}, s{sCol}, s{sLW}\ns_lshl_b32 s{sCol}, s{sCol}, 7\ns_lshl_b32 s{sWB}, s{sLW}, 12")
        a.label(lLN)
        a(f"v_and_b32 v13, 4, v10\nv_add_u32 v13, v13, v10\nv_mul_u32_u24 v13, s{sStr}, v13\nv_lshlrev_b32 v12, 1, v12\nv_xor_b32 v12, v11, v12\nv_lshl_add_u32 v{vW}, v12, 4, v13")
        a(f"s_lshl_b32 s{t}, s{sStr}, 4\ns_lshl_b32 s{t+1}, s{sStr}, 2\nv_add_u32 v{vW+1}, s{t}, v{vW}\nv_add_u32 v{vW+2}, s{t+1}, v{vW}\nv_add_u32 v{vW+3}, s{t}, v{vW+2}")
        a(f"s_branch {lJ}")
        a.label(lQH)
        a(f"s_mov_b32 s{sSel}, 0\ns_mov_b32 s{sStr}, 3840\ns_lshl_b32 s{sCol}, s{sHALF}, 1\ns_add_u32 s{sCol}, s{sCol}, s{sCBL}\ns_add_u32 s{sCol}, s{sCol}, 12\ns_lshl_b32 s{sCol}, s{sCol}, 6")
        a(f"s_cmp_lt_u32 s{sCBL}, 6\ns_cselect_b32 s{sCol}, s{sCol}, {BIG}\ns_mov_b32 s{sWB}, 12288\ns_mov_b32 s{sWB2}, 13312")
        a(f"v_lshrrev_b32 v10, 2, v0\nv_and_b32 v13, 12, v10\nv_add_u32 v13, v13, v10\nv_mul_u32_u24 v13, 3840, v13\nv_and_b32 v11, 3, v0\nv_and_b32 v12, 1, v12\nv_lshlrev_b32 v12, 1, v12\nv_xor_b32 v12, v11, v12")
        a(f"v_lshl_add_u32 v{vW}, v12, 4, v13\nv_add_u32 v{vW+1}, 15360, v{vW}")
        a(f"s_lshl_b32 s{t}, s{sROT}, 3\nv_mov_b32 v14, {BIG}")
        for j in range(2):
            if FIRST0:
                a(f"v_add_u32 v10, {64*j}, v0\nv_add_u32 v11, s{t}, v10\nv_subrev_u32 v12, 72, v11\nv_cmp_gt_u32 vcc, 80, v11\ns_nop 1\nv_cndmask_b32 v11, v12, v11, vcc\nv_cmp_gt_u32 vcc, 8, v10\ns_nop 1\nv_cndmask_b32 v11, v11, v10, vcc")
                a(f"v_cmp_gt_u32 vcc, 80, v10\nv_lshlrev_b32 v11, 4, v11\ns_nop 0\nv_cndmask_b32 v{vGt+j}, v14, v11, vcc")
            else:
                a(f"v_add_u32 v10, {64*j}, v0\nv_add_u32 v11, s{t}, v10\nv_cmp_gt_u32 vcc, 80, v10\nv_subrev_u32 v12, 80, v11\nv_min_u32 v11, v11, v12\nv_lshlrev_b32 v11, 4, v11\nv_cndmask_b32 v{vGt+j}, v14, v11, vcc")
        a(f"s_branch {lJ}")
        a.label(lKV)
        a(f"s_mov_b32 s{sSel}, 0\ns_mov_b32 s{sStr}, 3840\ns_mul_i32 s{sWB}, s{sLW}, 5120\ns_lshl_b32 s{sCol}, s{sGRP}, 7")
        a(f"s_cmp_eq_u32 s{sLW}, 2\ns_cbranch_scc1 {lLN}")
        a(f"s_mul_i32 s{sCol}, s{sGRP}, 160\ns_cmp_eq_u32 s{sLW}, 1\ns_cselect_b32 s{t}, 2560, 1280\ns_add_u32 s{sCol}, s{sCol}, s{t}")
        a(f"s_cmp_eq_u32 s{sLW}, 3\ns_cselect_b32 s{t}, 256, 0\ns_cselect_b32 s{sWB}, 4096, s{sWB}\ns_mov_b32 s{sWB2}, 9216")
        a(f"v_add_u32 v14, s{t}, v0")
        for j in range(4):
            a(f"v_add_u32 v10, {64*j}, v14\nv_mul_u32_u24 v11, 6554, v10\nv_lshrrev_b32 v11, 16, v11\nv_mad_i32_i24 v10, v11, -10, v10")
            a("v_and_b32 v12, 12, v11\nv_and_b32 v13, 3, v11\nv_lshl_or_b32 v12, v12, 1, v13\nv_bfe_u32 v13, v11, 4, 1\nv_lshl_or_b32 v12, v13, 2, v12")
            a(f"v_mul_u32_u24 v12, 3840, v12\nv_lshl_add_u32 v{vW+j}, v10, 4, v12")
            if j == 0:
                a(f"v_add_u32 v{vW+1}, 1280, v{vW}\ns_cmp_eq_u32 s{sLW}, 3\ns_cbranch_scc1 {lJ}")
        a.label(lJ)
        a(f"s_lshl_b32 s{sStr}, s{sStr}, 5\ns_mul_i32 s{t}, s{sRB}, 163840")
        a("s_waitcnt lgkmcnt(0)")
        self.stamp(0)
        self.srd(SRD_X, pX, 163840, add=f"s{t}")
        a(f"s_cmp_eq_u32 s{sSel}, 0\ns_cselect_b32 s{SRD_W}, s{pWQKV}, s{pW1}\ns_cselect_b32 s{SRD_W+1}, s{pWQKV+1}, s{pW1+1}\ns_cselect_b32 s{SRD_W+2}, {640*1920*2}, {640*1536*2}\ns_mov_b32 s{SRD_W+3}, 0x20000")
        lab3, lab4, labj = a.newlabel("L_ld3"), a.newlabel("L_ld4"), a.newlabel("L_ldj")
        a(f"s_cmp_eq_u32 s{sLW}, 3\ns_cbranch_scc1 {lab3}")
        for variant in (0, 3, 4):
            if variant == 3:
                a.label(lab3)
                a(f"s_cmp_ge_u32 s{sCBL}, 6\ns_cbranch_scc1 {lab4}")
            if variant == 4:
                a.label(lab4)
            nW = {0: 4, 3: 2, 4: 0}[variant]
            nX = 3 if variant == 0 else 7
            seq = []
            def issue_W(i):
                if nW == 0: return
                a(f"s_mul_i32 s{sOff}, s{sA32}, s{sStr}")
                for j in range(nW):
                    base, off = (sWB, 1024*j) if variant == 0 else ((sWB, sWB2)[j], 0)
                    a(f"s_add_u32 m0, s{base}, {WR + (i % NS)*WSLOT + off}")
                    a(f"s_add_u32 s{sOff}, s{sOff}, s{sCol}" if j == 0 else "s_nop 0")
                    a(f"buffer_load_dwordx4 v{vW+j}, s[{SRD_W}:{SRD_W+3}], s{sOff} offen lds")
                    seq.append(("W", i))
                if FIRST0 and i == 1: a(f"s_lshl1_add_u32 s{sA32}, s{sROT}, 2")
                else: a(f"s_add_u32 s{sA32}, s{sA32}, 1\ns_cmp_eq_u32 s{sA32}, 20\ns_cselect_b32 s{sA32}, {2 if FIRST0 else 0}, s{sA32}")
            def issue_X(jx):
                a(f"s_lshl_b32 s{sXo}, s{sA64}, 7")
                for j in range(nX):
                    a(f"s_add_u32 m0, s{sXB}, {XR + (jx % 3)*16384 + 1024*j}")
                    a(f"s_add_u32 s{sXo}, s{sXo}, " + (f"s{sXP}" if j == 0 else "10240"))
                    a(f"buffer_load_dwordx4 v{vXE + (j & 1)}, s[{SRD_X}:{SRD_X+3}], s{sXo} offen lds")
                    seq.append(("X", jx))
                if FIRST0 and jx == 0: a(f"s_add_u32 s{sA64}, s{sROT}, 1")
                else: a(f"s_add_u32 s{sA64}, s{sA64}, 1\ns_cmp_eq_u32 s{sA64}, 10\ns_cselect_b32 s{sA64}, {1 if FIRST0 else 0}, s{sA64}")
            def wait_for(items):
                last = max([n for n, it in enumerate(seq) if it in items] + [-1])
                if last >= 0: a(f"s_waitcnt vmcnt({len(seq) - 1 - last})")
            issue_X(0); issue_W(0)
            if variant == 4:
                self.srd(SRD_M, pGATE, 1280)
                for j in range(2):
                    a(f"s_mov_b32 m0, {GATE + 1024*j}\ns_nop 0\nbuffer_load_dwordx4 v{vGt+j}, s[{SRD_M}:{SRD_M+3}], 0 offen lds")
                    seq.append(("W", 0))
            issue_W(1)
            wait_for([("W", 0), ("X", 0)]); self.stamp(1); a("s_barrier")
            issue_X(1)
            wait_for([("W", 1)]); a("s_barrier")
            issue_W(2); issue_W(3); issue_X(2); issue_W(4)
            for j in range(1, 10):
                if j == 9 and variant == 0:
                    sk = a.newlabel("L_s1skip")
                    a(f"s_cmp_lg_u32 s{sWAVE}, 4\ns_cbranch_scc1 {sk}")
                    self.srd(SRD_D, pDBG, 256)
                    a("v_mov_b32 v10, 128")
                    self.poll("0", 1, 10, 11, SRD_D, S1SLEEP)
                    a.label(sk)
                wait_for([("W", 2*j), ("W", 2*j + 1), ("X", j)]); a("s_barrier")
                if j + 1 < 10: issue_W(2*j + 3)
                if j + 2 < 10: issue_X(j + 2); issue_W(2*j + 4)
            if variant != 4:
                a(f"s_branch {labj}")
        a.label(labj)
        self.stamp(2)

    def mish_quad(self, h, dst, tmp):
        P = lambda r: f"v[{r}:{r+1}]"
        return [
            f"v_pk_fma_f32 {P(tmp)}, {P(h)}, s[{cL2E}:{cL2E+1}], -0.5 op_sel_hi:[1,1,0]",
            f"v_pk_fma_f32 {P(tmp+2)}, {P(h+2)}, s[{cL2E}:{cL2E+1}], -0.5 op_sel_hi:[1,1,0]",
            f"v_exp_f32 v{tmp}, v{tmp}", f"v_exp_f32 v{tmp+1}, v{tmp+1}", f"v_exp_f32 v{tmp+2}, v{tmp+2}", f"v_exp_f32 v{tmp+3}, v{tmp+3}",
            f"v_pk_add_f32 {P(tmp)}, {P(tmp)}, s[{cC}:{cC+1}]", f"v_pk_add_f32 {P(tmp+2)}, {P(tmp+2)}, s[{cC}:{cC+1}]",
            f"v_pk_fma_f32 {P(tmp)}, {P(tmp)}, {P(tmp)}, 0.5 op_sel_hi:[1,1,0]",
            f"v_pk_fma_f32 {P(tmp+2)}, {P(tmp+2)}, {P(tmp+2)}, 0.5 op_sel_hi:[1,1,0]",
            f"v_rcp_f32 v{tmp}, v{tmp}", f"v_rcp_f32 v{tmp+1}, v{tmp+1}", f"v_rcp_f32 v{tmp+2}, v{tmp+2}", f"v_rcp_f32 v{tmp+3}, v{tmp+3}",
            f"v_pk_fma_f32 {P(tmp)}, {P(h)}, {P(tmp)}, {P(h)} neg_lo:[1,0,0] neg_hi:[1,0,0]",
            f"v_pk_fma_f32 {P(tmp+2)}, {P(h+2)}, {P(tmp+2)}, {P(h+2)} neg_lo:[1,0,0] neg_hi:[1,0,0]",
            f"v_cvt_pk_bf16_f32 v{dst}, v{tmp}, v{tmp+1}", f"v_cvt_pk_bf16_f32 v{dst+1}, v{tmp+2}, v{tmp+3}",
        ]

    def phi_quad(self, h, dst, tmp):
        P = lambda r: f"v[{r}:{r+1}]"
        return [
            f"v_pk_mul_f32 {P(tmp)}, {P(h)}, s[{cL2E}:{cL2E+1}]", f"v_pk_mul_f32 {P(tmp+2)}, {P(h+2)}, s[{cL2E}:{cL2E+1}]",
            f"v_exp_f32 v{tmp}, v{tmp} clamp", f"v_exp_f32 v{tmp+1}, v{tmp+1} clamp", f"v_exp_f32 v{tmp+2}, v{tmp+2} clamp", f"v_exp_f32 v{tmp+3}, v{tmp+3} clamp",
            f"v_pk_add_f32 {P(h)}, {P(h)}, s[{cC}:{cC+1}]", f"v_pk_add_f32 {P(h+2)}, {P(h+2)}, s[{cC}:{cC+1}]",
            f"v_pk_add_f32 {P(tmp)}, {P(tmp)}, s[{cE}:{cE+1}]", f"v_pk_add_f32 {P(tmp+2)}, {P(tmp+2)}, s[{cE}:{cE+1}]",
            f"v_max_f32 v{tmp}, v{tmp}, v{h}", f"v_max_f32 v{tmp+1}, v{tmp+1}, v{h+1}", f"v_max_f32 v{tmp+2}, v{tmp+2}, v{h+2}", f"v_max_f32 v{tmp+3}, v{tmp+3}, v{h+3}",
            f"v_cvt_pk_bf16_f32 v{dst}, v{tmp}, v{tmp+1}", f"v_cvt_pk_bf16_f32 v{dst+1}, v{tmp+2}, v{tmp+3}",
        ]

    def consts(self, kind):
        if kind == "mish":
            self.a(f"s_mov_b32 s{cC}, 0x3f3504f3\ns_mov_b32 s{cC+1}, 0x3f3504f3")
        else:
            self.a(f"s_mov_b32 s{cC}, 0x3f800008\ns_mov_b32 s{cC+1}, 0x3f800008\ns_mov_b32 s{cE}, 0x358637bd\ns_mov_b32 s{cE+1}, 0x358637bd")

    def main_loop(self, reads, mfmas, extra, nread_end, bases):
        a = self.a
        a("s_barrier")
        self.stamp(1)
        for l in reads(0): a(l)
        for l in extra.get(0, ([], [], []))[1]: a(l)
        a("s_waitcnt lgkmcnt(0)")
        for i in range(1, 21):
            if i == 1 or i % 2 == 0: a("s_barrier")
            if i in (2, 4, 6, 8, 10, 14, 18): self.stamp(3 + (2, 4, 6, 8, 10, 14, 18).index(i), True)
            pre, fill, preb = extra.get(i, ([], [], []))
            for l in pre: a(l)
            if i < 20:
                tail = []
                if (i + 1) % 3 == 0 and i + 1 < 20:
                    op = "v_add_u32" if ((i + 1) % NS) == 3 else "v_subrev_u32"
                    tail = [f"{op} v{b}, {3*WSLOT}, v{b}" for b in bases]
                body = interleave(mfmas(i - 1), reads(i) + fill + tail, 0, nread_end)
                for l in body: a(l)
                for l in preb: a(l)
                a("s_waitcnt lgkmcnt(0)")
            else:
                for l in mfmas(19): a(l)
        self.stamp(2)

    def finish1(self, flags, strict=False):
        a = self.a
        self.setup2()
        if strict:
            a("s_waitcnt vmcnt(0)")
            self.stamp(5)
            self.arrive(flags[0], 2); self.arrive(flags[1], 4)
            self.preload_b(0, NPRE)
            a(f"s_add_u32 s{flags[1]}, s{flags[1]}, {DONE_PQ - CNT_PQ}\ns_barrier")
            a(f"s_waitcnt vmcnt({NPRE})")
            self.raise_if_last(2, 15, flags[2]); self.raise_if_last(4, 24, flags[1])
            return
        self.preload_b(0, NPRE)
        a(f"s_waitcnt vmcnt({NPRE})")
        self.stamp(5)
        self.signal(flags[0], 1)
        if not BLDS:
            self.preload_b(NPRE, 30)
            return

    def pickup(self):
        a = self.a
        t = T0
        sk = a.newlabel("L_pk")
        a(f"s_cmp_ge_u32 s{sWAVE}, 4\ns_cbranch_scc1 {sk}")
        a(f"s_mul_i32 s{t+14}, s{sWAVE}, 20480\ns_add_u32 s{t+14}, s{t+14}, {BL}\nv_add_u32 v{BS+117}, s{t+14}, v{vL16}")
        for n in range(20):
            a(f"ds_read_b128 v[{BS+40+4*n}:{BS+43+4*n}], v{BS+117} offset:{1024*n}")
        a.label(sk)

    def prefetch(self, vL, v, S=SRD_X):
        a = self.a
        t = T0
        for ptr, size, share, n in ((pX, 2048*1280, 10240, 3), (pWQKV, 640*3840, 9600, 3), (pW1, 640*3072, 7680, 2))[:(1 if PF == 2 else 3)]:
            self.srd(S, ptr, size)
            per = -(-share // 4 // 128) * 128
            a(f"s_mul_i32 s{t}, s{sWG}, {share}\ns_and_b32 s{t}, s{t}, 0xffffff80\ns_mul_i32 s{t+1}, s{sWAVE}, {per}\ns_add_u32 s{t}, s{t}, s{t+1}\ns_min_u32 s{t}, s{t}, {size - n*1024}")
            for k in range(n):
                a(f"buffer_load_dwordx4 v[{v}:{v+3}], v{vL}, s[{S}:{S+3}], s{t} offen offset:{1024*k}")

    def touch(self, vLane, v):
        a = self.a
        t = T0
        a(f"v_lshlrev_b32 v{v}, 21, v{vLane}\nv_add_u32 v{v}, 0xff000, v{v}\ns_mov_b64 exec, 0xff")
        a(f"buffer_load_dword v{v+1}, v{v}, {WSR}, 0 offen")
        self.srd(SRD_M, pOUT, 2048*640*2)
        a(f"v_lshlrev_b32 v{v}, 20, v{vLane}\ns_mov_b64 exec, 7\nbuffer_load_dword v{v+2}, v{v}, s[{SRD_M}:{SRD_M+3}], 0 offen")
        self.srd(SRD_M, pWO, 640*640*2)
        a(f"v_lshlrev_b32 v{v}, 19, v{vLane}\ns_mov_b64 exec, 3\nbuffer_load_dword v{v+3}, v{v}, s[{SRD_M}:{SRD_M+3}], 0 offen\ns_mov_b64 exec, -1")

    def compute_P(self):
        a = self.a
        t = T0
        ACC, XB, WB, BI = 0, 112, 144, 200
        vX0, vX1, vH0, vH1, vQ, vGt, vL, vRd, vRr, vBo, vT = 228, 229, 230, 231, 232, 233, 234, 235, 236, 237, 238
        vLane = 253
        sSH, sNH = sT, 48
        sAct, sPq, sF2, sGs = 49, 72, 73, 74
        a(f"v_mov_b32 v{vLane}, v0\ns_lshr_b32 s{sSH}, s{sWAVE}, 1\ns_and_b32 s{sNH}, s{sWAVE}, 1")
        a(f"v_and_b32 v1, 15, v0\nv_lshrrev_b32 v2, 4, v0\nv_lshrrev_b32 v3, 1, v1\nv_xor_b32 v3, v3, v2\nv_lshlrev_b32 v3, 4, v3\nv_lshl_add_u32 v3, v1, 7, v3")
        a(f"s_lshl_b32 s{t}, s{sSH}, 13\nv_add_u32 v{vX0}, s{t}, v3\nv_xor_b32 v{vX1}, 64, v{vX0}")
        a(f"v_lshrrev_b32 v3, 2, v0\nv_and_b32 v4, 3, v0\nv_lshlrev_b32 v4, 3, v4")
        a(f"v_lshl_add_u32 v5, v3, 7, v4\nv_bfe_u32 v6, v0, 3, 2\ns_lshl_b32 s{t}, s{sNH}, 1\nv_xor_b32 v6, s{t}, v6\nv_lshl_add_u32 v6, v6, 5, v5")
        a(f"v_add_u32 v{vH0}, {WR}, v6\nv_xor_b32 v{vH1}, 32, v{vH0}")
        a(f"v_lshl_add_u32 v6, v3, 6, v4\nv_and_b32 v7, 1, v2\nv_xor_b32 v7, s{sNH}, v7\nv_lshl_add_u32 v6, v7, 5, v6\nv_add_u32 v{vQ}, {WR+12288}, v6")
        a(f"v_lshlrev_b32 v6, 4, v2\nv_add_u32 v{vGt}, {GATE}, v6\nv_lshlrev_b32 v{vL}, 4, v0\nv_lshlrev_b32 v{vBo}, 3, v2")
        a(f"v_lshrrev_b32 v6, 3, v0\nv_mul_u32_u24 v6, 1280, v6\nv_and_b32 v7, 7, v0\nv_lshl_add_u32 v{vRd}, v7, 4, v6")
        a(f"s_lshl_b32 s{t}, s{sWAVE}, 12\ns_add_u32 s{t}, s{t}, {SCR}\nv_add_u32 v{vRr}, s{t}, v5")
        a(f"s_lshl3_add_u32 s{sPIDX}, s{sRB}, s{sGRP}")
        a(f"s_mov_b32 s{cL2E}, 0x3fb8aa3b\ns_mov_b32 s{cL2E+1}, 0x3fb8aa3b")
        a(f"s_lshl2_add_u32 s{t}, s{sPIDX}, s{sWAVE}\ns_min_u32 s{t}, s{t}, 479")
        a(f"s_mul_i32 s{t+1}, s{t}, 6554\ns_lshr_b32 s{t+1}, s{t+1}, 16\ns_mul_i32 s{t+2}, s{t+1}, 10\ns_sub_u32 s{t+2}, s{t}, s{t+2}")
        a(f"s_mul_i32 s{t+6}, s{t+1}, 40960\ns_lshl_b32 s{t+3}, s{t+2}, 7\ns_add_u32 s{t+6}, s{t+6}, s{t+3}")
        a(f"s_mul_i32 s{t+7}, s{sGRP}, 384\ns_lshl_b32 s{t+3}, s{sNH}, 6\ns_add_u32 s{t+7}, s{t+7}, s{t+3}")
        a("s_waitcnt lgkmcnt(0)")
        self.stamp(0)
        self.srd(SRD_M, pB1, 3072)
        self.srd(SRD_W, pW2, 1536*640*2)
        for u in range(6):
            a(f"buffer_load_dwordx2 v[{BI+4*u+2}:{BI+4*u+3}], v{vBo}, s[{SRD_M}:{SRD_M+3}], s{t+7} offen offset:{128*(u >> 1) + 32*(u & 1)}")
        sSrc1 = 69
        a(f"s_mov_b32 s{sSrc1}, s{t+6}")
        self.srd(SRD_WS, pWS, WS_SIZE)
        if TOUCH == 2: self.touch(vLane, 240)
        dsts = [10, 11, 1, 3]
        for u in range(4):
            a(f"s_lshl2_add_u32 s{t+3}, s{t+2}, {u}\ns_mul_i32 s{t+4}, s{t+3}, 205\ns_lshr_b32 s{t+4}, s{t+4}, 10")
            a(f"s_mul_i32 s{t+5}, s{t+4}, 235\ns_add_u32 s{t+5}, s{t+5}, s{t+3}\ns_mul_i32 s{t+4}, s{t+1}, 5\ns_add_u32 s{t+5}, s{t+5}, s{t+4}")
            a(f"s_lshl_b32 s{t+5}, s{t+5}, 10\ns_add_u32 s{t+5}, s{t+5}, {WS_W2R}")
            a(f"s_cmp_lt_u32 s{sPIDX}, 120\ns_cselect_b32 s{dsts[u]}, s{t+5}, {BIG}")
        d2, sSrc2, sK2, sInc2 = 40, 0, 75, 70
        self.srd(SRD_M, pWO, 640*640*2)
        a(f"s_lshl1_add_u32 s{t}, s{sPIDX}, s{sWAVE}\ns_sub_u32 s{t}, s{t}, 2")
        a(f"s_cmp_lt_u32 s{t}, 160\ns_cselect_b32 s{sK2}, 1, 2\ns_cmp_lt_u32 s{t}, 200\ns_cselect_b32 s{sK2}, s{sK2}, 0\ns_cmp_lt_u32 s{sWAVE}, 2\ns_cselect_b32 s{sK2}, 0, s{sK2}")
        a(f"s_mul_i32 s{t+1}, s{t}, 6554\ns_lshr_b32 s{t+1}, s{t+1}, 16\ns_mul_i32 s{t+2}, s{t+1}, 10\ns_sub_u32 s{t+2}, s{t}, s{t+2}")
        a(f"s_lshr_b32 s{t+3}, s{t+1}, 1\ns_and_b32 s{t+4}, s{t+1}, 1\ns_sub_u32 s{t+5}, s{t+1}, 16\ns_lshl_b32 s{t+5}, s{t+5}, 1")
        a(f"s_cmp_eq_u32 s{sK2}, 2\ns_cselect_b32 s{t+3}, s{t+5}, s{t+3}\ns_cselect_b32 s{t+4}, 2, s{t+4}\ns_cselect_b32 s{sInc2}, {10240 + 64*1280}, 10240")
        a(f"s_mul_i32 s{sSrc2}, s{t+3}, {80*1280}\ns_mul_i32 s{t+5}, s{t+4}, {32*1280}\ns_add_u32 s{sSrc2}, s{sSrc2}, s{t+5}\ns_lshl_b32 s{t+5}, s{t+2}, 7\ns_add_u32 s{sSrc2}, s{sSrc2}, s{t+5}")
        a(f"s_mul_i32 s{t+3}, s{t+3}, 12800\ns_lshl_b32 s{t+5}, s{t+4}, 10\ns_cmp_eq_u32 s{sK2}, 2\ns_cselect_b32 s{t+5}, 10240, s{t+5}\ns_cselect_b32 s{t+6}, 512, 2048\ns_add_u32 s{t+3}, s{t+3}, s{t+5}\ns_add_u32 s{t+3}, s{t+3}, {WS_WOR}")
        for u in range(4):
            a(f"s_lshl2_add_u32 s{t+4}, s{t+2}, {u}\ns_mul_i32 s{t+5}, s{t+4}, 205\ns_lshr_b32 s{t+5}, s{t+5}, 10\ns_mul_i32 s{t+7}, s{t+5}, 5\ns_sub_u32 s{t+4}, s{t+4}, s{t+7}")
            a(f"s_mul_i32 s{t+5}, s{t+5}, 102400\ns_mul_i32 s{t+4}, s{t+4}, s{t+6}\ns_add_u32 s{t+5}, s{t+5}, s{t+4}\ns_add_u32 s{d2+u}, s{t+5}, s{t+3}")
        sRb64 = t + 11
        a(f"s_lshl1_add_u32 s{sRb64}, s{sRB}, s{sSH}")
        a(f"s_mul_i32 s{t}, s{sRb64}, 48\ns_mul_i32 s{t+1}, s{sGRP}, 6\ns_add_u32 s{t}, s{t}, s{t+1}\ns_add_u32 s{t}, s{t}, s{sNH}\ns_lshl_b32 s{t}, s{t}, 12")
        a(f"s_add_u32 s{sAct}, s{t}, {WS_ACT}\ns_add_u32 s{sAct+1}, s{t}, {WS_ACT + 8192}\ns_add_u32 s{sAct+2}, s{t}, {WS_ACT + 16384}")
        a(f"s_mul_i32 s{t}, s{sRb64}, 40\ns_lshl2_add_u32 s{t}, s{sHALF}, s{t}\ns_lshl1_add_u32 s{t}, s{sCBL}, s{t}\ns_add_u32 s{t}, s{t}, s{sNH}\ns_add_u32 s{t}, s{t}, 24\ns_lshl_b32 s{t}, s{t}, 11\ns_add_u32 s{sPq}, s{t}, {WS_PQ}")
        a(f"s_lshl3_add_u32 s{sF1}, s{sRb64}, s{sGRP}\ns_lshl_b32 s{sF1}, s{sF1}, 7")
        a(f"s_lshl1_add_u32 s{t}, s{sGRP}, s{sNH}\ns_cmp_eq_u32 s{t}, 5\ns_cselect_b32 s{sGs}, 1, 0")
        a(f"s_lshl_b32 s{sF2}, s{sRb64}, 7\ns_add_u32 s{sF2}, s{sF2}, {CNT_PQ}\ns_cmp_lt_u32 s{sCBL}, 6\ns_cselect_b32 s{t}, 1, s{sGs}\ns_cmp_eq_u32 s{t}, 1\ns_cselect_b32 s{sF2}, s{sF2}, {BIG}")
        a(f"s_cmp_ge_u32 s{sCBL}, 6\ns_cselect_b64 vcc, -1, 0")
        def reads(i):
            b = i & 1; so = (i % 3) * WSLOT
            xs = XR + ((i >> 1) % 3) * 16384
            r = [f"ds_read_b128 v[{XB+16*b+4*s}:{XB+16*b+4*s+3}], v{vX1 if i & 1 else vX0} offset:{xs + 2048*s}" for s in range(4)]
            for u in range(6):
                d = WB + 28*b + 4*u
                r.append(f"ds_read_b64_tr_b16 v[{d}:{d+1}], v{vH0 + (u & 1)} offset:{so + 4096*(u >> 1)}")
                r.append(f"ds_read_b64_tr_b16 v[{d+2}:{d+3}], v{vH0 + (u & 1)} offset:{so + 4096*(u >> 1) + 2048}")
            d = WB + 28*b + 24
            l1, l2 = a.newlabel("L_g"), a.newlabel("L_gj")
            r.append(f"s_cbranch_vccnz {l1}\nds_read_b64_tr_b16 v[{d}:{d+1}], v{vQ} offset:{so}\nds_read_b64_tr_b16 v[{d+2}:{d+3}], v{vQ} offset:{so + 1024}\ns_branch {l2}\n"
                     f"{l1}:\nds_read_b128 v[{d}:{d+3}], v{vGt} offset:{64*i}\n{l2}:")
            return r
        def mfmas(i):
            b = i & 1
            r = []
            for u in (range(7) if i < 19 else (6, 0, 1, 2, 3, 4, 5)):
                for s in range(4):
                    d = ACC + 16*u + 4*s
                    c = f"v[{d}:{d+3}]" if i > 0 else ("0" if u == 6 else f"v[{BI+4*u}:{BI+4*u+3}]")
                    r.append(f"v_mfma_f32_16x16x32_bf16 v[{d}:{d+3}], v[{WB+28*b+4*u}:{WB+28*b+4*u+3}], v[{XB+16*b+4*s}:{XB+16*b+4*s+3}], {c}")
            return r
        unpack = [f"s_waitcnt vmcnt({(3 if TOUCH == 2 else 0) + (4 if RD < 0 else 0) + {0: 0, 1: 8, 2: 3}[PF]})"]
        for u in range(6):
            p = BI + 4*u
            unpack += [f"v_lshlrev_b32 v{p}, 16, v{p+2}", f"v_and_b32 v{p+1}, 0xffff0000, v{p+2}", f"v_lshlrev_b32 v{p+2}, 16, v{p+3}", f"v_and_b32 v{p+3}, 0xffff0000, v{p+3}"]
        RP = BI
        rp_reads = []
        for u in range(4):
            rp_reads += [f"ds_read_b64_tr_b16 v[{RP+4*u}:{RP+4*u+1}], v{vRr} offset:{32*u}", f"ds_read_b64_tr_b16 v[{RP+4*u+2}:{RP+4*u+3}], v{vRr} offset:{32*u + 2048}"]
        rp_st = [f"buffer_store_dwordx4 v[{RP+4*u}:{RP+4*u+3}], v{vL}, {WSR}, s{dsts[u]} offen sc1" for u in range(4)]
        z = [f"s_lshl_b32 s{t}, s{sPIDX}, 9", f"s_mul_i32 s{t+1}, s{sWAVE}, {WS_KVP}", f"s_add_u32 s{t}, s{t}, s{t+1}", f"s_cmp_lt_u32 s{sWAVE}, 2", f"s_cselect_b32 s{t}, s{t}, {BIG}"] + \
            [f"v_mov_b32 v{RP+16+k}, 0" for k in range(4)] + \
            [f"s_mov_b32 exec_hi, 0\nbuffer_store_dwordx4 v[{RP+16}:{RP+19}], v{vL}, {WSR}, s{t} offen sc1\ns_mov_b32 exec_hi, -1"]
        k1, k2, k3, k4 = [a.newlabel("L_r2") for _ in range(4)]
        dma1 = [f"s_lshl_b32 s{t+3}, s{sWAVE}, 12"]
        for j in range(4):
            dma1.append(f"s_add_u32 m0, s{t+3}, {SCR + 1024*j}\ns_nop 0\nbuffer_load_dwordx4 v{vRd}, s[{SRD_W}:{SRD_W+3}], s{sSrc1} offen lds\ns_add_u32 s{sSrc1}, s{sSrc1}, 10240")
        rp_reads2 = [l.replace("offset:", "offset:8192+") for l in rp_reads]
        dma2 = f"s_cmp_eq_u32 s{sK2}, 0\ns_cbranch_scc1 {k1}\n"
        for j in range(4):
            dma2 += f"s_add_u32 m0, s{t+3}, {SCR + 8192 + 1024*j}\ns_nop 0\nbuffer_load_dwordx4 v{vRd}, s[{SRD_M}:{SRD_M+3}], s{sSrc2} offen lds\n"
            if j < 3: dma2 += f"s_add_u32 s{sSrc2}, s{sSrc2}, " + (f"s{sInc2}" if j == 1 else "10240") + "\n"
        dma2 += k1 + ":"
        st2 = f"s_cmp_eq_u32 s{sK2}, 0\ns_cbranch_scc1 {k2}\ns_cmp_eq_u32 s{sK2}, 2\ns_cbranch_scc1 {k3}\n"
        st2 += "".join(f"buffer_store_dwordx4 v[{RP+4*u}:{RP+4*u+3}], v{vL}, {WSR}, s{d2+u} offen sc1\n" for u in range(4))
        st2 += f"s_branch {k2}\n{k3}:\nv_lshrrev_b32 v{vT}, 1, v{vL}\n"
        for u in range(4):
            st2 += f"buffer_store_dwordx2 v[{RP+4*u}:{RP+4*u+1}], v{vT}, {WSR}, s{d2+u} offen sc1\ns_add_u32 s{d2+u}, s{d2+u}, 12800\n"
            st2 += f"buffer_store_dwordx2 v[{RP+4*u+2}:{RP+4*u+3}], v{vT}, {WSR}, s{d2+u} offen sc1\n"
        st2 += k2 + ":"
        sk, sk2 = a.newlabel("L_s1a"), a.newlabel("L_s1b")
        arr = [f"s_cmp_lg_u32 s{sWAVE}, 0", f"s_cbranch_scc1 {sk}",
               f"s_mov_b32 s{SRD_D}, s{pDBG}", f"s_mov_b32 s{SRD_D+1}, s{pDBG+1}", f"s_mov_b32 s{SRD_D+2}, 256", f"s_mov_b32 s{SRD_D+3}, 0x20000",
               f"v_mov_b32 v{vT}, 1", f"s_mov_b64 exec, 1\nbuffer_atomic_add v{vT}, v{vL}, s[{SRD_D}:{SRD_D+3}], 0 offen sc0 sc1\ns_mov_b64 exec, -1", sk + ":"]
        arr2 = [f"s_cmp_lg_u32 s{sWAVE}, 0", f"s_cbranch_scc1 {sk2}", "s_waitcnt vmcnt(0)", f"v_readfirstlane_b32 s{t}, v{vT}", f"v_mov_b32 v{vT+1}, 1",
                f"s_cmp_lg_u32 s{t}, 127", f"s_cbranch_scc1 {sk2}",
                f"s_mov_b32 s{SRD_D}, s{pDBG}", f"s_mov_b32 s{SRD_D+1}, s{pDBG+1}", f"s_mov_b32 s{SRD_D+2}, 256", f"s_mov_b32 s{SRD_D+3}, 0x20000",
                f"s_mov_b64 exec, 1\nbuffer_store_dword v{vT+1}, v{vL}, s[{SRD_D}:{SRD_D+3}], 0 offen offset:128 sc1\ns_mov_b64 exec, -1", sk2 + ":"]
        if RD < 0:
            for l in dma1 + [dma2]: a(l)
        if PF: self.prefetch(vL, 240, S=SRD_D)
        extra = {0: ([], unpack, []), RS: (["s_waitcnt vmcnt(0)"], rp_reads, []), RS+1: ([], rp_st + rp_reads2, []),
                 RS+2: ([], [st2] + z, []), S1AT-1: ([], [], ["s_waitcnt vmcnt(0)"]), S1AT: (arr, [], []), S1AT+2: (arr2, [], [])}
        if RD > 0: extra[RD] = ([], dma1 + [dma2], [])
        if RD == 0: extra[0] = ([], unpack + dma1 + [dma2], [])
        self.main_loop(reads, mfmas, extra, 20, [vH0, vH1, vQ])
        TM = XB
        a("s_nop 3")
        labG, labE = a.newlabel("L_epG"), a.newlabel("L_epE")
        a(f"s_cbranch_vccnz {labG}")
        self.consts("phi")
        for sp in range(2):
            e = ACC + 96 + 8*sp
            for l in self.phi_quad(e, e, TM): a(l)
            for l in self.phi_quad(e + 4, e + 2, TM + 4): a(l)
            a(f"buffer_store_dwordx4 v[{e}:{e+3}], v{vL}, {WSR}, s{sPq} offen offset:{1024*sp} sc1")
        a(f"s_branch {labE}")
        a.label(labG)
        a(f"s_cmp_eq_u32 s{sGs}, 0\ns_cbranch_scc1 {labE}")
        G = ACC + 96
        a(f"v_cmp_le_u32 vcc, 16, v{vLane}\nv_cmp_le_u32 s[{t+2}:{t+3}], 32, v{vLane}\nv_cmp_le_u32 s[{t+4}:{t+5}], 48, v{vLane}\ns_nop 0")
        a(f"v_cndmask_b32 v{G}, v{G}, v{G+4}, vcc\nv_cndmask_b32 v{G}, v{G}, v{G+8}, s[{t+2}:{t+3}]\nv_cndmask_b32 v{G}, v{G}, v{G+12}, s[{t+4}:{t+5}]")
        a(f"s_mov_b32 s{t}, 0x42700000\nv_min_f32 v{G}, s{t}, v{G}\nv_max_f32 v{G}, -s{t}, v{G}\nv_mul_f32 v{G}, s{cL2E}, v{G}\nv_exp_f32 v{G}, v{G}")
        a(f"s_lshl_b32 s{t}, s{sRb64}, 8\ns_add_u32 s{t}, s{t}, {WS_G}\nv_add_f32 v{G+2}, 1.0, v{G}\nv_rcp_f32 v{G+2}, v{G+2}\nv_lshlrev_b32 v{G+1}, 2, v{vLane}\ns_add_u32 s{t+1}, s{t}, 8192")
        a(f"buffer_store_dword v{G}, v{G+1}, {WSR}, s{t} offen sc1\nbuffer_store_dword v{G+2}, v{G+1}, {WSR}, s{t+1} offen sc1")
        a.label(labE)
        self.consts("mish")
        for L in range(3):
            for s in range(4):
                e, o = ACC + 32*L + 4*s, ACC + 32*L + 16 + 4*s
                for l in self.mish_quad(e, e, TM + 8*(s & 1)): a(l)
                for l in self.mish_quad(o, e + 2, TM + 4 + 8*(s & 1)): a(l)
                a(f"buffer_store_dwordx4 v[{e}:{e+3}], v{vL}, {WSR}, s{sAct+L} offen offset:{1024*s} sc1")
            if L == 0:
                a("s_waitcnt vmcnt(4)")
                self.arrive(sF2, vT + 2)
            if L == 1:
                a(f"s_waitcnt vmcnt(4)\ns_add_u32 s{sF2}, s{sF2}, {DONE_PQ - CNT_PQ}")
                self.raise_if_last(vT + 2, 24, sF2)
            if LFLAG and L >= 1:
                if L == 2: a("s_waitcnt vmcnt(5)")
                self.signal(sF1, vT, 4*(L - 1))
        a(f"v_mov_b32 v0, v{vLane}")
        self.stamp(3)
        self.finish1([sF1])

    def compute_KV(self):
        a = self.a
        t = T0
        ACC, XB, WB = 0, 112, 128
        vX0, vX1, vK, vQ0, vL = 240, 241, 242, 243, 247
        vLane = 253
        sPq, sF2, sRec = 72, 73, 74
        a(f"v_mov_b32 v{vLane}, v0")
        a(f"v_and_b32 v1, 15, v0\nv_lshrrev_b32 v2, 4, v0\nv_lshrrev_b32 v3, 1, v1\nv_xor_b32 v3, v3, v2\nv_lshlrev_b32 v3, 4, v3\nv_lshl_add_u32 v3, v1, 7, v3")
        a(f"s_lshl_b32 s{t}, s{sWAVE}, 12\nv_add_u32 v{vX0}, s{t}, v3\nv_xor_b32 v{vX1}, 64, v{vX0}")
        a(f"v_lshrrev_b32 v3, 2, v0\nv_and_b32 v4, 3, v0\nv_lshlrev_b32 v4, 3, v4")
        a(f"v_mul_u32_u24 v5, 160, v3\nv_add_u32 v5, v5, v4\nv_add_u32 v{vK}, {WR}, v5")
        a(f"v_lshl_add_u32 v5, v3, 7, v4\nv_bfe_u32 v6, v0, 3, 2\nv_lshl_add_u32 v5, v6, 5, v5\nv_add_u32 v{vQ0}, {WR+10240}, v5")
        for u in range(1, 4): a(f"v_xor_b32 v{vQ0+u}, {32*u}, v{vQ0}")
        a(f"v_lshlrev_b32 v{vL}, 4, v0")
        a(f"s_lshr_b32 s{t}, s{sWAVE}, 1\ns_lshl1_add_u32 s{t+1}, s{sRB}, s{t}")
        a(f"s_lshl_b32 s{sF2}, s{t+1}, 7\ns_add_u32 s{sF2}, s{sF2}, {CNT_PQ}")
        a(f"s_mul_i32 s{t+1}, s{t+1}, 40\ns_lshl2_add_u32 s{t+1}, s{sGRP}, s{t+1}\ns_and_b32 s{t}, s{sWAVE}, 1\ns_lshl1_add_u32 s{t+1}, s{t+1}, s{t}\ns_lshl_b32 s{t+1}, s{t+1}, 10\ns_add_u32 s{sPq}, s{t+1}, {WS_PQ}")
        a(f"s_lshl2_add_u32 s{t}, s{sGRP}, s{sWAVE}\ns_lshl_b32 s{sF1}, s{t}, 7\ns_add_u32 s{sF1}, s{sF1}, {CNT_KV}")
        a(f"s_mul_i32 s{t}, s{t}, 1792\ns_add_u32 s{sRec}, s{t}, {WS_KVP}")
        a(f"s_mov_b32 s{cL2E}, 0x3fb8aa3b\ns_mov_b32 s{cL2E+1}, 0x3fb8aa3b")
        self.consts("phi")
        a("s_waitcnt lgkmcnt(0)")
        self.stamp(0)
        self.srd(SRD_WS, pWS, WS_SIZE)
        if TOUCH: self.touch(vLane, 248)
        if PF: self.prefetch(vL, 248)
        def reads(i):
            b = i & 1; so = (i % 3) * WSLOT
            xs = XR + ((i >> 1) % 3) * 16384
            r = [f"ds_read_b128 v[{XB+8*b+4*s}:{XB+8*b+4*s+3}], v{vX1 if i & 1 else vX0} offset:{xs + 2048*s}" for s in range(2)]
            for u in range(14):
                d = WB + 56*b + 4*u
                if u < 10: base, off, d2 = vK, 5120*(u // 5) + 32*(u % 5), 2560
                else: base, off, d2 = vQ0 + u - 10, 0, 2048
                r.append(f"ds_read_b64_tr_b16 v[{d}:{d+1}], v{base} offset:{so + off}")
                r.append(f"ds_read_b64_tr_b16 v[{d+2}:{d+3}], v{base} offset:{so + off + d2}")
            return r
        def mfmas(i):
            b = i & 1
            r = []
            order = list(range(14)) if i < 19 else [5, 6, 7, 8, 9, 0, 1, 2, 3, 4, 10, 11, 12, 13]
            for u in order:
                for s in range(2):
                    d = ACC + 8*u + 4*s
                    c = f"v[{d}:{d+3}]" if i > 0 else "0"
                    w, x = f"v[{WB+56*b+4*u}:{WB+56*b+4*u+3}]", f"v[{XB+8*b+4*s}:{XB+8*b+4*s+3}]"
                    r.append(f"v_mfma_f32_16x16x32_bf16 v[{d}:{d+3}], {x if u < 10 else w}, {w if u < 10 else x}, {c}")
            return r
        self.main_loop(reads, mfmas, {}, 24, [vK, vQ0, vQ0+1, vQ0+2, vQ0+3])
        TM = XB
        vEx = vX0
        a(f"s_mul_i32 s{t}, s{sWAVE}, 10240\nv_add_u32 v{vEx}, s{t}, v{vL}")
        for u in range(5, 10):
            e = ACC + 8*u
            a(f"v_cvt_pk_bf16_f32 v{e}, v{e}, v{e+1}\nv_cvt_pk_bf16_f32 v{e+1}, v{e+2}, v{e+3}\nv_cvt_pk_bf16_f32 v{e+2}, v{e+4}, v{e+5}\nv_cvt_pk_bf16_f32 v{e+3}, v{e+6}, v{e+7}")
            a(f"ds_write_b128 v{vEx}, v[{e}:{e+3}] offset:{XR + 1024*u}")
        for u in range(5):
            e = ACC + 8*u
            for l in self.phi_quad(e, e, TM): a(l)
            for l in self.phi_quad(e + 4, e + 2, TM + 4): a(l)
            a(f"ds_write_b128 v{vEx}, v[{e}:{e+3}] offset:{XR + 1024*u}")
        a(f"s_lshl_b32 s{t}, s{sWAVE}, 10\nv_add_u32 v{vEx}, s{t}, v{vL}")
        ONE = WB + 64
        for k in range(4): a(f"v_mov_b32 v{ONE+k}, 0x3f803f80")
        a("s_waitcnt lgkmcnt(0)\ns_barrier")
        FR = WB
        for g in range(4):
            for j, off in enumerate((0, 1024, 5120, 6144)):
                a(f"ds_read_b128 v[{FR+16*g+4*j}:{FR+16*g+4*j+3}], v{vEx} offset:{XR + 10240*g + off}")
        AD = WB + 72
        dc, BG, ev, R = AD, AD + 2, AD + 3, AD + 8
        ad = [f"v_lshrrev_b32 v{dc}, 4, v{vLane}", f"v_and_b32 v{ev}, 15, v{vLane}", f"v_mov_b32 v{BG}, 0x10000", f"v_cmp_eq_u32 vcc, 0, v{ev}",
              f"v_mov_b32 v{R}, 320", f"v_subrev_u32 v{dc}, s{sWAVE}, v{dc}", f"v_cndmask_b32 v{ev+2}, v{BG}, v{R}, vcc", f"v_add_u32 v{dc+1}, 4, v{dc}",
              f"s_lshl_b32 s{t}, s{sWAVE}, 2", f"v_subrev_u32 v{ev}, s{t}, v{ev}", f"v_add_u32 v{ev+1}, 16, v{ev}",
              f"s_lshl_b32 s{t+4}, s{sWAVE}, 11", f"s_add_u32 s{t+4}, s{t+4}, {STG}"]
        for k in range(2):
            ad += [f"v_cmp_gt_u32 vcc, 5, v{dc+k}", f"v_cmp_gt_u32 s[{t+2}:{t+3}], 20, v{ev+k}", f"v_mul_u32_u24 v{dc+k}, 336, v{dc+k}", f"v_lshlrev_b32 v{ev+k}, 4, v{ev+k}",
                   f"v_cndmask_b32 v{dc+k}, v{BG}, v{dc+k}, vcc", f"v_cndmask_b32 v{ev+k}, v{BG}, v{ev+k}, s[{t+2}:{t+3}]"]
        for k in range(2):
            ad += [f"v_add_u32 v{R+3*k+b}, v{dc+k}, v{ev+b}" for b in range(3)]
            ad += [f"v_min_u32 v{R+3*k+b}, 1680, v{R+3*k+b}" for b in range(3)]
            ad += [f"v_add_u32 v{R+3*k+b}, s{t+4}, v{R+3*k+b}" for b in range(3)]
        ad += [f"v_lshlrev_b32 v{dc}, 2, v{vLane}", f"v_add_u32 v{vEx}, s{t+4}, v{dc}"]
        for l in ad[:20]: a(l)
        D = ACC
        mm = []
        for g in range(4):
            for k in range(2):
                for b in range(3):
                    d = D + 12*k + 4*b
                    B = f"v[{FR+16*g+8+4*b}:{FR+16*g+8+4*b+3}]" if b < 2 else f"v[{ONE}:{ONE+3}]"
                    mm.append(f"v_mfma_f32_16x16x32_bf16 v[{d}:{d+3}], v[{FR+16*g+4*k}:{FR+16*g+4*k+3}], {B}, {'0' if g == 0 else f'v[{d}:{d+3}]'}")
        a("s_waitcnt lgkmcnt(0)")
        for l in interleave(mm, ad[20:], 0, 16): a(l)
        def qmath(u):
            e = ACC + 8*u
            return self.phi_quad(e, e, TM) + self.phi_quad(e + 4, e + 2, TM + 4)
        q10 = qmath(10)
        for l in q10[:8]: a(l)
        for j in range(6): a(f"ds_write_b128 v{R+j}, v[{D+4*j}:{D+4*j+3}]")
        for l in q10[8:20]: a(l)
        a("s_waitcnt lgkmcnt(0)")
        for j in range(7): a(f"ds_read_b32 v{j}, v{vEx} offset:{256*j}")
        for l in q10[20:]: a(l)
        a("s_waitcnt lgkmcnt(0)")
        for j in range(7):
            if j == 6: a("s_mov_b32 exec_hi, 15")
            a(f"buffer_atomic_add_f32 v{j}, v{dc}, {WSR}, s{sRec} offen offset:{256*j} sc1")
        a("s_mov_b32 exec_hi, -1")
        a(f"s_add_u32 s{t}, s{sPq}, 4096")
        def qst(u):
            e = ACC + 8*(10 + u)
            a(f"buffer_store_dwordx4 v[{e}:{e+3}], v{vL}, {WSR}, s{sPq if u < 2 else t} offen offset:{2048*(u & 1)} sc1")
        qst(0)
        for u in (1, 2, 3):
            for l in qmath(10 + u): a(l)
            qst(u)
        a(f"v_mov_b32 v0, v{vLane}")
        self.stamp(3)
        a(f"s_lshl_b32 s{sRec}, s{sGRP}, 7\ns_lshl2_add_u32 s{sRec}, s{sWAVE}, s{sRec}\ns_add_u32 s{sRec}, s{sRec}, {DONE_KV}\ns_mov_b32 s71, s{sRec}")
        self.finish1([sF1, sF2, 71], strict=True)

    def setup2(self):
        a = self.a
        t = T0
        if MAP2 == "x2":
            a(f"s_bfe_u32 s{t+2}, s{sWG}, 0x20001\ns_bfe_u32 s{t+3}, s{sWG}, 0x30003\ns_lshl3_add_u32 s{sR64}, s{t+2}, s{t+3}")
            a(f"s_and_b32 s{t+2}, s{sWG}, 1\ns_lshr_b32 s{t+3}, s{sWG}, 6\ns_lshl2_add_u32 s{sC}, s{t+2}, s{t+3}")
        else:
            a(f"s_and_b32 s{t+2}, s{sWG}, 7\ns_bfe_u32 s{t+3}, s{sWG}, 0x20003\ns_lshl2_add_u32 s{sR64}, s{t+2}, s{t+3}\ns_lshr_b32 s{sC}, s{sWG}, 5")
        if FAKE == 1: a(f"s_and_b32 s{sR64}, s{sWG}, 7\ns_lshl_b32 s{sR64}, s{sR64}, 2\ns_mov_b32 s{sC}, 0")
        if FAKE == 2: a(f"s_mov_b32 s{sC}, 0")
        if FAKE == 3: a(f"s_and_b32 s{sR64}, s{sWG}, 7\ns_lshl_b32 s{sR64}, s{sR64}, 2")
        a(f"v_lshlrev_b32 v{vL16}, 4, v0\nv_add_u32 v{vL16b}, 4096, v{vL16}")
        if ROT2 == "none":
            a(f"s_mov_b32 s{t}, 0")
        elif ROT2 == "xor":
            a(f"s_lshr_b32 s{t}, s{sWG}, 3\ns_lshr_b32 s{t+1}, s{sWG}, 6\ns_xor_b32 s{t}, s{t}, s{t+1}\ns_and_b32 s{t}, s{t}, 1")
        elif ROT2 == "two":
            a(f"s_lshr_b32 s{t}, s{sWG}, 3\ns_lshr_b32 s{t+1}, s{sWG}, {6 if MAP2 == 'x2' else 5}\ns_xor_b32 s{t}, s{t}, s{t+1}\ns_and_b32 s{t}, s{t}, 1\ns_mul_i32 s{t}, s{t}, 3")
        elif MAP2 == "x2":
            a(f"s_and_b32 s{t}, s{sC}, 3\ns_mul_i32 s{t}, s{t}, 3\ns_lshr_b32 s{t}, s{t}, 1")
        else:
            a(f"s_mul_i32 s{t}, s{sC}, 3\ns_lshr_b32 s{t}, s{t}, 2")
        a(f"s_mul_i32 s{t+1}, s{sWAVE}, 6")
        a(f"s_mul_i32 s{t+2}, s{sC}, {48*5120}\ns_add_u32 s{t+2}, s{t+2}, {WS_W2R}")
        a(f"s_mul_i32 s{t+3}, s{sR64}, {48*4096}\ns_add_u32 s{t+3}, s{t+3}, {WS_ACT}")
        for i in range(6):
            a(f"s_add_u32 s{t+4}, s{t+1}, s{t}\ns_mul_i32 s{sB0+i}, s{t+4}, 5120\ns_add_u32 s{sB0+i}, s{sB0+i}, s{t+2}")
            a(f"s_lshl_b32 s{sA0+i}, s{t+4}, 12\ns_add_u32 s{sA0+i}, s{sA0+i}, s{t+3}")
            if i < 5 and ROT2 == "xor": a(f"s_xor_b32 s{t}, s{t}, {i ^ (i + 1)}")
            elif i < 5: a(f"s_add_u32 s{t}, s{t}, 1\ns_cmp_eq_u32 s{t}, 6\ns_cselect_b32 s{t}, 0, s{t}")
        a(f"s_lshl3_add_u32 s{sFa}, s{sR64}, s{sWAVE}\ns_lshl_b32 s{sFa}, s{sFa}, 7\ns_lshl_b32 s{sFq}, s{sR64}, 7\ns_add_u32 s{sFq}, s{sFq}, {DONE_PQ}")
        a(f"s_mul_i32 s{sPQb}, s{sR64}, 40\ns_mul_i32 s{t}, s{sWAVE}, 5\ns_add_u32 s{sPQb}, s{sPQb}, s{t}\ns_lshl_b32 s{sPQb}, s{sPQb}, 11\ns_add_u32 s{sPQb}, s{sPQb}, {WS_PQ}")
        a(f"s_lshl3_add_u32 s{sMb}, s{sC}, s{sWAVE}\ns_mul_i32 s{sMb}, s{sMb}, 12800\ns_add_u32 s{sMb}, s{sMb}, {WS_WOR}")
        a(f"s_mul_i32 s{sKv}, s{sWAVE}, 7168\ns_add_u32 s{sKv}, s{sKv}, {WS_KVP}\ns_lshl_b32 s{sFk}, s{sWAVE}, 7\ns_add_u32 s{sFk}, s{sFk}, {DONE_KV}")

    def preload_b(self, n0, n1):
        for n in range(n0, n1):
            i, jn = divmod(n, 5)
            d = BS + 20*i + 4*jn
            self.a(f"buffer_load_dwordx4 v[{d}:{d+3}], v{vL16 if jn < 4 else vL16b}, {WSR}, s{sB0+i} offen offset:{1024*jn if jn < 4 else 0} sc1")

    def stage_b(self):
        a = self.a
        t = T0
        a(f"s_mul_i32 s{t}, s{sT}, 20480\ns_add_u32 s{t}, s{t}, {BL}")
        for i in range(2, 6):
            a(f"s_sub_u32 s{t+1}, s{sB0+i}, 122880")
            for jn in range(5):
                if jn in (0, 4):
                    a(f"s_add_u32 m0, s{t}, {5120*(i-2) + 1024*jn}")
                    a(f"s_add_u32 s{t+1}, s{t+1}, 4096" if jn else "s_nop 0")
                a(f"buffer_load_dwordx4 v{vL16}, {WSR}, s{t+1} offen offset:{1024*(jn % 4)} sc1 lds")
        a("s_waitcnt vmcnt(0)")

    def gemm2(self):
        a = self.a
        t = T0
        seq = []
        LN = 255
        def ldl(dst, n, v, so, off, tag):
            seq.append(tag)
            return [f"buffer_load_dword{ {1: '', 2: 'x2', 4: 'x4'}[n] } {vr(dst, n)}, v{v}, {WSR}, s{so} offen offset:{off} sc1"]
        def emit(L):
            for l in L: a(l)
        def wait(tag):
            last = max(n for n, x in enumerate(seq) if x == tag)
            a(f"s_waitcnt vmcnt({len(seq) - 1 - last})")
        def act(i):
            return sum((ldl(AB + 16*(i % 3) + 4*st, 4, vL16, sA0 + i, 1024*st, f"act{i}") for st in range(4)), [])
        def check(soff, target, sleep=None):
            ok = a.newlabel("L_ok")
            a(f"v_cmp_le_u32 vcc, {target}, v{vP+1}\ns_nop 1\ns_cmp_eq_u64 vcc, -1\ns_cbranch_scc1 {ok}")
            self.poll(soff, target, vP, vP + 1, sleep=sleep)
            a.label(ok)
        def dma(so, n, lds, tag):
            r = []
            for k in range(n):
                pre = ""
                if k % 4 == 0:
                    pre = f"s_add_u32 m0, s{sLB}, {lds + 1024*k}\n" + (f"s_add_u32 s{so}, s{so}, 4096\n" if k else "s_nop 0\n")
                r.append(pre + f"buffer_load_dwordx4 v{vL16}, {WSR}, s{so} offen offset:{1024*(k % 4)} sc1 lds"); seq.append(tag)
            return r
        def pq(base, sp):
            return sum((ldl(base + 20*sp + 4*tt, 4, vL16, (sPQb, t, t + 1)[tt >> 1], 2048*(tt & 1) + 1024*sp, f"pq{sp}") for tt in range(5)), [])
        def gld(va):
            return sum((ldl(vG + st, 1, va, t + 3, 64*st, "g") for st in range(4)), [])
        chunks = [(0, 0), (0, 1), (1, 0), (1, 1), (1, 2), (2, 1), (2, 2), (2, 3), (3, 2), (3, 3), (4, 3), (3, 4), (4, 4)] + [("z", tt) for tt in range(5)]
        slot = dict(zip(chunks, [0, 1, 2, 3, 4, 7, 8, 9, 10, 11, 13, 14, 15, 16, 17, 18, 19, 20]))
        X, K0 = 24, 0
        ad = [f"v_and_b32 v{X}, 15, v{LN}", f"v_lshrrev_b32 v{X+1}, 4, v{LN}", f"s_add_u32 s{t+2}, s{sLB}, 13312", f"v_mul_u32_u24 v{X+3}, 336, v{X+1}", f"v_add_u32 v{X+3}, s{t+2}, v{X+3}",
              f"v_add_u32 v{X+18}, s{sLB}, v{vL16}", f"s_add_u32 s{t+2}, s{t+2}, 7056", f"v_mov_b32 v{X+13}, s{t+2}"] + [f"v_subrev_u32 v{X+13+k}, {1344*k}, v{X+13}" for k in range(1, 5)]
        for te in (0, 1, 2, 3, 4, "z"):
            if te == "z":
                ad += [f"v_and_b32 v{X+4}, 3, v{LN}", f"v_mul_u32_u24 v{X+5}, 112, v{X+4}", f"v_add_u32 v{X+6}, 320, v{X+3}", f"v_add_u32 v{X+5}, v{X+5}, v{X+6}"]
            else:
                ad += [f"v_add_u32 v{X+6}, {16*te}, v{X}", f"v_mul_u32_u24 v{X+4}, 3277, v{X+6}", f"v_lshrrev_b32 v{X+4}, 16, v{X+4}",
                       f"v_lshl_add_u32 v{X+6}, v{X+6}, 4, v{X+3}", f"v_mad_i32_i24 v{X+5}, v{X+4}, s{sN208}, v{X+6}"]
            ad += [f"v_mad_i32_i24 v{X+4}, v{X+4}, -5, v{X+1}"]
            mine = [(j, c) for j, c in enumerate(chunks) if c[0] == te]
            ad += [f"v_add_u32 v{X+8+n}, {4*c[1]}, v{X+4}" for n, (j, c) in enumerate(mine)]
            ad += [f"v_cmp_gt_u32 s[{t+4+2*n}:{t+5+2*n}], 5, v{X+8+n}" for n, (j, c) in enumerate(mine)]
            ad += ["s_nop 0"]
            ad += [f"v_cndmask_b32 v{K0+j}, v{X+13+c[1]}, v{X+5}, s[{t+4+2*n}:{t+5+2*n}]" for n, (j, c) in enumerate(mine)]
        mq = [t + 4, t + 6, t + 8]
        consts = [f"s_mov_b32 s{cE}, 0x358637bd", f"s_mov_b32 s{mq[0]}, 0xffff", f"s_mov_b32 s{mq[0]+1}, 0", f"s_mov_b32 s{mq[1]}, -1", f"s_mov_b32 s{mq[1]+1}, 0",
                  f"s_mov_b32 s{mq[2]}, -1", f"s_mov_b32 s{mq[2]+1}, 0xffff"]
        swaps = lambda R: [f"v_swap_b32 v{R+8*p+2+k}, v{R+8*p+4+k}" for p in range(2) for k in range(2)]
        K32 = lambda d, A, B, c: f"v_mfma_f32_16x16x32_bf16 v[{d}:{d+3}], v[{A}:{A+3}], v[{B}:{B+3}], {c}"
        K16 = lambda d, A, B: f"v_mfma_f32_16x16x16_bf16 v[{d}:{d+3}], v[{A}:{A+1}], v[{B}:{B+1}], v[{d}:{d+3}]"
        acc = lambda d: f"v[{d}:{d+3}]"
        def fqf(base):
            def fq(st, tt):
                R = base + 20*(st >> 1)
                return R + 8*(tt >> 1) + 4*(st & 1) + 2*(tt & 1) if tt < 4 else R + 16 + 2*(st & 1)
            return fq
        def gather(KAr, raw, KP, PQb, first):
            for j, c in enumerate(chunks):
                a(f"ds_read_b128 v[{raw(j)}:{raw(j)+3}], v{KAr+j} offset:{1344*c[1]}")
            emit(swaps(PQb) + swaps(PQb + 20))
            for j, c in enumerate(chunks):
                if j in (0, first): a(f"s_waitcnt lgkmcnt({18 - first if j == 0 else 0})")
                d, r = KP + 2*slot[c], raw(j)
                a(f"v_cvt_pk_bf16_f32 v{d}, v{r}, v{r+1}\nv_cvt_pk_bf16_f32 v{d+1}, v{r+2}, v{r+3}")
            for z in (5, 6, 12): a(f"v_mov_b32 v{KP+2*z}, 0\nv_mov_b32 v{KP+2*z+1}, 0")
        def scales(st, DN, SC):
            r = [f"v_add_f32 v{DN+k}, s{cE}, v{DN+k}" for k in range(4)] + [f"v_rcp_f32 v{DN+k}, v{DN+k}" for k in range(4)]
            r += [f"v_mul_f32 v{DN+k}, v{vG+st}, v{DN+k}" for k in range(4)]
            return r + [f"v_cndmask_b32 v{SC[k]}, v{DN+k+1}, v{DN+k}, s[{mq[k]}:{mq[k]+1}]" for k in range(3)]
        def vtile(st, tt, o, DN, SC, fq):
            sc = (DN, SC[0], SC[1], SC[2], DN + 3)[tt]
            return [f"v_mul_f32 v{o+k}, v{sc}, v{o+k}" for k in range(4)] + [f"v_cvt_pk_bf16_f32 v{fq(st,tt)}, v{o}, v{o+1}", f"v_cvt_pk_bf16_f32 v{fq(st,tt)+1}, v{o+2}, v{o+3}"]
        def mlp(i, zero, sts=None):
            order = [(jn, st) for jn in range(5) for st in range(4)] if sts is None else [(jn, st) for st in sts for jn in range(5)]
            return [K32(20*st + 4*jn, BS + 20*i + 4*jn, AB + 16*(i % 3) + 4*st, "0" if zero else acc(20*st + 4*jn)) for jn, st in order]
        TA, RA, vRW = 224, 170, vP
        rw = [f"v_and_b32 v{TA}, 15, v{LN}", f"v_mul_u32_u24 v{TA}, 160, v{TA}", f"v_bfe_u32 v{TA+1}, v{LN}, 5, 1", f"v_bfe_u32 v{vRW}, v{LN}, 2, 1", f"v_xor_b32 v{TA+1}, v{TA+1}, v{vRW}",
              f"v_lshl_add_u32 v{TA}, v{TA+1}, 4, v{TA}", f"v_bfe_u32 v{TA+1}, v{LN}, 4, 1", f"v_mul_u32_u24 v{TA+1}, 10240, v{TA+1}", f"v_add3_u32 v{vRW}, v{TA}, v{TA+1}, s{sLB}"]
        wrl = lambda st: [f"ds_write_b128 v{vRW}, v[{20*st+4*jn}:{20*st+4*jn+3}] offset:{2560*st + 32*jn}" for jn in range(5)]
        rd = [f"s_mul_i32 s{t}, s{sWAVE}, 80", f"v_add_u32 v{RA}, s{t}, v{LN}", f"v_add_u32 v{RA+1}, 64, v{RA}",
              f"s_lshl_b32 s{t+2}, s{sR64}, 8", f"s_add_u32 s{t+2}, s{t+2}, {WS_G + 8192}"]
        for k in range(2):
            rd += [f"v_mul_u32_u24 v{RA+2}, 6554, v{RA+k}", f"v_lshrrev_b32 v{RA+2}, 16, v{RA+2}", f"v_mad_i32_i24 v{RA+3}, v{RA+2}, -10, v{RA+k}", f"v_lshlrev_b32 v{TA+2+k}, 2, v{RA+2}",
                   f"buffer_load_dword v{TA+2+k}, v{TA+2+k}, {WSR}, s{t+2} offen sc1",
                   f"v_bfe_u32 v{RA+6}, v{RA+2}, 2, 1", f"v_xor_b32 v{RA+k}, v{RA+k}, v{RA+6}",
                   f"v_mul_u32_u24 v{RA+2}, 1280, v{RA+2}", f"v_lshl_add_u32 v{RA+4+k}, v{RA+3}, 4, v{RA+2}", f"v_lshlrev_b32 v{RA+k}, 4, v{RA+k}"]
        rd += [f"v_add_u32 v{RA+6}, 61440, v{RA}", f"v_add_u32 v{RA+7}, 61440, v{RA+1}", f"v_add_u32 v{RA+8}, 122880, v{RA}", f"v_add_u32 v{RA+9}, 122880, v{RA+1}"]
        rd += [f"s_mov_b32 s{SRD_M}, s{pOUT}", f"s_mov_b32 s{SRD_M+1}, s{pOUT+1}", f"s_mov_b32 s{SRD_M+2}, {2048*640*2}", f"s_mov_b32 s{SRD_M+3}, 0x20000",
               f"s_mul_i32 s{t}, s{sR64}, 81920", f"s_mul_i32 s{t+1}, s{sC}, 160", f"s_add_u32 s{t}, s{t}, s{t+1}"]
        def flagvec(vt, with_act):
            a(f"v_lshlrev_b32 v{vP}, 2, v{LN}\nv_add_u32 v{vP}, s{sFk}, v{vP}\nv_mov_b32 v{vt}, 1\nv_cmp_le_u32 vcc, 4, v{LN}\nv_mov_b32 v{vt+1}, s{sFq}\ns_add_u32 s{t+2}, s{sFa}, 8")
            a(f"v_cndmask_b32 v{vP}, v{vP}, v{vt+1}, vcc")
            if with_act:
                a(f"v_cmp_lt_u32 vcc, 4, v{LN}\nv_mov_b32 v{vt+1}, s{t+2}\ns_nop 0\nv_cndmask_b32 v{vP}, v{vP}, v{vt+1}, vcc\nv_cndmask_b32 v{vt}, v{vt}, 2, vcc")

        a(f"v_lshrrev_b32 v{LN}, 4, v{vL16}")
        a(f"s_xor_b32 s{sLB}, s{sWAVE}, 4\ns_mul_i32 s{sLB}, s{sLB}, 20480\ns_mov_b32 s{sN208}, -208")
        a(f"s_lshl_b32 s{t+3}, s{sR64}, 8\ns_add_u32 s{t+3}, s{t+3}, {WS_G}\ns_add_u32 s{t}, s{sPQb}, 4096\ns_add_u32 s{t+1}, s{sPQb}, 8192")
        vt = 44
        a(f"v_lshlrev_b32 v{vP}, 2, v{LN}\nv_add_u32 v{vP}, s{sFk}, v{vP}\nv_cmp_eq_u32 vcc, 4, v{LN}\nv_mov_b32 v{vt+1}, s{sFq}\nv_cmp_lt_u32 s[{t+4}:{t+5}], 4, v{LN}\nv_mov_b32 v{vt}, 1")
        a(f"v_cndmask_b32 v{vP}, v{vP}, v{vt+1}, vcc\nv_mov_b32 v{vt+1}, s{sFa}\nv_cndmask_b32 v{vt}, v{vt}, 2, s[{t+4}:{t+5}]\nv_cndmask_b32 v{vP}, v{vP}, v{vt+1}, s[{t+4}:{t+5}]")
        if ADPRE: emit(ad)
        sk = a.newlabel("L_e1")
        a(f"s_lshr_b32 s{t+14}, s{sWAVE}, 2\ns_or_b32 s{t+14}, s{t+14}, s{sTYPE}\ns_cmp_eq_u32 s{t+14}, 0\ns_cbranch_scc1 {sk}")
        a("s_barrier")
        a.label(sk)
        self.stamp(4)
        self.pickup()
        a("s_waitcnt lgkmcnt(0)")
        emit(dma(sMb, 13, 0, "wo"))
        if not ADPRE: emit(ad)
        for k in range(5): a(f"ds_write_b128 v{X+18}, v[{K0+4*k}:{K0+4*k+3}] offset:{13312 + 1024*k}")
        sRest = t + 14
        lp, ok = a.newlabel("L_pa"), a.newlabel("L_pad")
        a(f"s_mov_b32 s{t+15}, 0")
        a.label(lp)
        a(f"buffer_load_dword v{vP+1}, v{vP}, {WSR}, 0 offen sc1\ns_waitcnt vmcnt(0)\nv_cmp_le_u32 vcc, v{vt}, v{vP+1}\ns_add_u32 s{t+15}, s{t+15}, 1\ns_nop 0")
        a(f"s_mov_b32 s{sRest}, vcc_lo\ns_cmp_eq_u32 vcc_hi, -1\ns_cbranch_scc1 {ok}\ns_sleep {SLEEP}\ns_cmp_lt_u32 s{t+15}, {SPIN}\ns_cbranch_scc1 {lp}")
        a.label(ok)
        self.stamp(6)
        PR = {"a": {-1: 3, 2: 2, 5: 1, 6: 0}, "b": {-1: 3, 1: 2, 3: 1, 6: 0}, "c": {-1: 1, 5: 0}, "d": {-1: 2, 5: 1, 7: 0}, "e": {-1: 3, 3: 2, 6: 1, 8: 0}}.get(PRIO, {})
        prio = lambda k: a(f"s_setprio {PR[k]}") if k in PR else None
        prio(-1)
        emit(act(0) + act(1) + act(2))
        fill = None
        for i in range(5):
            prio(i)
            wait(f"act{i}")
            emit(interleave(mlp(i, i == 0), fill() if fill else []))
            fill = None
            if i < 2: emit(act(i + 3))
            if i == PQAT:
                ok2 = a.newlabel("L_ok")
                a(f"s_cmp_eq_u32 s{sRest}, -1\ns_cbranch_scc1 {ok2}")
                self.poll("0", 1, vP, vP + 1, sleep=4)
                a.label(ok2)
                a(f"v_and_b32 v{vP+1}, 15, v{LN}\nv_lshlrev_b32 v{vP+1}, 2, v{vP+1}")
                f1 = lambda: pq(PQR, 0) + pq(PQR, 1) + gld(vP + 1)
                if FILLI and i < 2: fill = f1
                else: emit(f1())
            if i == 2:
                a(f"v_add_u32 v{KA+19}, s{sLB}, v{vL16}")
                for k in range(5): a(f"ds_read_b128 v[{KA+4*k}:{KA+4*k+3}], v{KA+19} offset:{13312 + 1024*k}")
                a("s_waitcnt lgkmcnt(0)")
                f2 = lambda: dma(sKv, 7, 13312, "kv") + act(5)
                if FILLI: fill = f2
                else: emit(f2())
        self.stamp(7)
        prio(5)
        emit(consts)
        KP = 120
        wait("kv")
        self.stamp(8)
        gather(KA, lambda j: 200 + 4*j if j < 8 else 140 + 4*(j - 8), KP, PQR, 8)
        Oset = {1: ([200, 204, 208, 212, 216], 220), 0: ([162, 166, 170, 174, 224], 228)}
        SC = [178, 179, vP + 1]
        fq = fqf(PQR)
        S = lambda k: KP + 2*k
        def Xb(st):
            O, DN = Oset[st & 1]
            p0, p1, ps = fq(st, 0), fq(st, 2), fq(st, 4)
            return [K32(DN, S(16), p0, "0"), K32(O[3], S(10), p1, "0"), K32(O[4], S(12), p1, "0"), K32(DN, S(18), p1, acc(DN)),
                    K32(O[0], S(0), p0, "0"), K32(O[1], S(2), p0, "0"), K32(O[2], S(6), p0, "0"), K32(O[1], S(4), p1, acc(O[1])), K32(O[2], S(8), p1, acc(O[2])),
                    "s_nop 0", K16(DN, S(20), ps), K16(O[3], S(14), ps), K16(O[4], S(15), ps)]
        def Vb(st):
            O, DN = Oset[st & 1]
            return scales(st, DN, SC) + sum((vtile(st, tt, O[tt], DN, SC, fq) for tt in range(5)), [])
        def Yb(st):
            r = []
            for p in range(2):
                r += [K32(20*st + 4*jn, MR + 4*(2*jn + p), fq(st, 2*p), acc(20*st + 4*jn)) for jn in range(5)]
            return r + ["s_nop 1"] + [K16(20*st + 4*jn, MR + 40 + 2*jn, fq(st, 4)) for jn in range(5)]
        a("s_nop 1")
        emit(Xb(0))
        for st in range(1, 4):
            x = Xb(st)
            emit(x[:6] + interleave(x[6:], Vb(st - 1)))
        a(f"v_add_u32 v{TA}, s{sLB}, v{vL16}\nv_lshlrev_b32 v{TA+1}, 3, v{LN}\nv_add_u32 v{TA+1}, s{sLB}, v{TA+1}")
        for f in range(10): a(f"ds_read_b128 v[{MR+4*f}:{MR+4*f+3}], v{TA} offset:{1024*f}")
        for jn in range(5): a(f"ds_read_b64 v[{MR+40+2*jn}:{MR+41+2*jn}], v{TA+1} offset:{10240 + 512*jn}")
        prio(6)
        wait("act5")
        emit(interleave(mlp(5, False), Vb(3) + rw))
        a("s_waitcnt lgkmcnt(0)")
        emit(interleave(Yb(0), rd[:25]))
        prio(7)
        emit(interleave(Yb(1), rd[25:] + wrl(0), 2))
        prio(8)
        emit(interleave(Yb(2), wrl(1), 6))
        emit(interleave(Yb(3), wrl(2), 6))
        a("s_nop 4")
        emit(wrl(3))
        a("s_waitcnt lgkmcnt(0)\ns_barrier")
        self.stamp(9)
        for k in range(2):
            if k == 1: a("s_mov_b64 exec, 0xffff")
            R = 64*k
            for w in range(8):
                for par in range(2):
                    base = [RA + k, RA + 6 + k, RA + 8 + k][w // 3]
                    a(f"ds_read_b128 v[{R+8*w+4*par}:{R+8*w+4*par+3}], v{base} offset:{20480*(w % 3) + 10240*par}")
        a("s_mov_b64 exec, -1")
        for k in range(2):
            R = 64*k
            a(f"s_waitcnt lgkmcnt({15 if k == 0 else 0})")
            for pairs in (((0, 4), (1, 5), (2, 6), (3, 7)), ((0, 2), (1, 3)), ((0, 1),)):
                for x, y in pairs:
                    for j in range(4):
                        a(f"v_pk_add_f32 v[{R+8*x+2*j}:{R+8*x+2*j+1}], v[{R+8*x+2*j}:{R+8*x+2*j+1}], v[{R+8*y+2*j}:{R+8*y+2*j+1}]")
            if k == 0: a("s_waitcnt vmcnt(0)")
            for j in range(8): a(f"v_mul_f32 v{R+j}, v{TA+2+k}, v{R+j}")
            for j in range(4): a(f"v_cvt_pk_bf16_f32 v{R+j}, v{R+2*j}, v{R+2*j+1}")
            if k == 1: a("s_mov_b64 exec, 0xffff")
            a(f"buffer_store_dwordx4 v[{R}:{R+3}], v{RA+4+k}, s[{SRD_M}:{SRD_M+3}], s{t} offen {OUTFL}")
        a("s_mov_b64 exec, -1")


def descriptor(name):
    return f""".p2align 6
.amdhsa_kernel {name}
  .amdhsa_next_free_vgpr 256
  .amdhsa_next_free_sgpr 102
  .amdhsa_accum_offset 256
  .amdhsa_group_segment_fixed_size 0
  .amdhsa_kernarg_size 88
  .amdhsa_user_sgpr_count 2
  .amdhsa_user_sgpr_kernarg_segment_ptr 1
  .amdhsa_system_sgpr_workgroup_id_x 1
.end_amdhsa_kernel
"""

def build(stamps):
    g = Gen(stamps=stamps)
    a = g.a
    K = NAME + "_kernel"
    hdr = open(os.path.join(os.path.dirname(os.path.abspath(__file__)), "header.txt")).read()
    for l in hdr.strip().split("\n"): a.lines.append(l)
    a(f"; @launch grid=(256,1,1) block=(512,1,1) lds={LDS_TOTAL}")
    a('.amdgcn_target "amdgcn-amd-amdhsa--gfx950"\n.text')
    a(f".globl {K}\n.p2align 8\n.type {K},@function")
    a.label(K)
    g.common_prologue("L_end")
    a(f"s_cmp_lt_u32 s{sWAVE}, 4\ns_cbranch_scc1 L_comp")
    g.loader1()
    a("s_setprio 0")
    g.setup2()
    g.srd(SRD_WS, pWS, WS_SIZE)
    g.preload_b(0, NL0)
    a("s_barrier")
    if SKEW: a(f"v_mov_b32 v6, {HINT}\nv_mov_b32 v8, 0\nv_mov_b32 v9, 0\nv_mov_b32 v10, 0\nv_mov_b32 v11, 0\nds_write_b128 v6, v[8:11]\ns_waitcnt lgkmcnt(0)")
    g.preload_b(NL0, 10)
    a(f"s_cmp_lg_u32 s{sTYPE}, 0\ns_cbranch_scc1 L_l2\ns_barrier")
    a.label("L_l2")
    g.preload_b(10, 30)
    if BLDS: g.stage_b()
    g.stamp(3)
    a.label("L_g2")
    g.gemm2()
    g.dump_stamps()
    a.label("L_end")
    a("s_endpgm")
    a.label("L_comp")
    a(f"s_cmp_eq_u32 s{sTYPE}, 0\ns_cbranch_scc1 L_kv")
    g.compute_P(); a("s_branch L_g2")
    a.label("L_kv")
    g.compute_KV(); a("s_branch L_g2")
    a.label("L_code_end")
    errs = lint(a.lines)
    for e in errs: print("HAZARD:", e, file=sys.stderr)
    return a.text() + '.section .rodata,"a"\n' + descriptor(K)

if __name__ == "__main__":
    open(sys.argv[1], "w").write(build(sys.argv[2] if len(sys.argv) > 2 else False))
```

```python
import sys, os, re
sys.path.insert(0, os.path.dirname(os.path.abspath(__file__)))
from asmlib import *

NAME = "gated_mix__linear_attn_block__dense_activation_mish__prompt"
ENV = os.environ.get

CNT_ACT, CNT_PQ, CNT_KV = 0, 256*128, 288*128
DONE_KV, DONE_PQ = 320*128, 328*128
WS_G = 0x10000
WS_KVP = 0x100000
WS_WOR = 0x200000
WS_W2R = 0x300000
WS_PQ = 0x500000
WS_ACT = 0x800000
WS_SIZE = 0x1000000
WS_STAMP = 0x8000000
BIG = 0x20000000
DBGW = int(ENV("DBGW", "0"))
ROTMODE = ENV("ROT", "two")
ROT2 = ENV("ROT2", "two")
NPRE = int(ENV("NPRE", "10"))
SPIN = int(ENV("SPIN", str(0x100000)))
WOAT = 3
ADPRE = int(ENV("ADPRE", "1"))
KVAT = int(ENV("KVAT", "-1"))
GSYNC = int(ENV("GSYNC", "0"))
PF = int(ENV("PF", "0"))
RS = int(ENV("RS", "3"))
S1AT = int(ENV("S1AT", "8"))
S1SLEEP = int(ENV("S1SLEEP", "2"))
LOOPDBG = int(ENV("LOOPDBG", "0"))
CPF = int(ENV("CPF", "1"))
RD = int(ENV("RD", "-1"))
SKEW = int(ENV("SKEW", "0"))
HINT = 3*20480 + 12800
TAILDBG = int(ENV("TAILDBG", "0"))
OUTFL = ENV("OUTFL", "").replace("_", " ")
LFLAG = 0
FAKE = int(ENV("FAKE", "0"))
SPLIT = int(ENV("SPLIT", "1"))
YSLEEP = int(ENV("YSLEEP", "8"))
PQAT = int(ENV("PQAT", "1"))
FILLI = int(ENV("FILLI", "1"))
FIRST0 = int(ENV("FIRST0", "0"))
PRIO = ENV("PRIO", "c")
LOOK = ENV("LOOK", "xw")
GBR = int(ENV("GBR", "0"))
STPRIO = int(ENV("STPRIO", "1"))
NRE = int(ENV("NRE", "20"))
SPREAD = int(ENV("SPREAD", "0"))
NE16 = int(ENV("NE16", "0"))
NL1 = int(ENV("NL1", "16"))
K1LDS = int(ENV("K1LDS", "1"))
K1C = 40960 + 2032
FVAT = int(ENV("FVAT", "0"))
WOPOS = ENV("WOPOS", "x")
RED = int(ENV("RED", "1"))
DIAG = int(ENV("DIAG", "0"))
LPRIO = int(ENV("LPRIO", "0"))
EPRIO = int(ENV("EPRIO", "0"))
TH = int(ENV("TH", "4"))
EARLYQ = int(ENV("EARLYQ", "0"))
NB = int(ENV("NB", "5"))
NTH = int(ENV("NTH", "40"))
XSPLIT = [int(v) for v in ENV("XSPLIT", "30,55,80").split(",")]
PICK = int(ENV("PICK", "0"))
SLEEP = int(ENV("SLEEP", "1"))
BLDS = int(ENV("BLDS", "1"))
NL0 = int(ENV("NL0", "10"))
MAP2 = ENV("MAP2", "x2")
TOUCH = int(ENV("TOUCH", "0"))
MSDBG = int(ENV("MSDBG", "0"))
MSPRIO = int(ENV("MSPRIO", "1"))
MSPRIO2 = int(ENV("MSPRIO2", "1"))

XR = 0
STG = 40960
WR = 49152
WSLOT = 14336
NS = 6
GATE = WR + NS * WSLOT
SCR = GATE + 2048
MS = WR
BL = WR + 32768
BLF = STG + 2040
LDS_TOTAL = 163840

sWG = 2
pX, pWQKV, pWO, pW1, pB1, pW2, pGATE, pOUT, pDBG, pWS = 4, 6, 8, 12, 14, 16, 18, 20, 22, 24
sWAVE, sRB, sHALF, sCBL, sGRP, sF1, sROT, sPIDX, sTYPE, sT = 26, 27, 28, 29, 30, 31, 32, 33, 34, 35
SRD_WS, SRD_X, SRD_W, SRD_M, SRD_D = 36, 40, 44, 52, 56
T0 = 60
sST = 76
cL2E, cC, cE = 96, 98, 100
sR64, sC = 27, 28
sB0, sA0 = 40, 46
sPQb, sMb, sKv, sFk = 0, 1, 3, 29
sFa, sFq = 10, 11
BS, AB = 80, 200
PQR, MR, KA, KD = 80, 120, 120, 176
sLB, sN208 = 30, 31
vG, vP, vL16, vL16b = 248, 252, 254, 255
WSR = f"s[{SRD_WS}:{SRD_WS+3}]"


class Gen:
    def __init__(self, stamps=False):
        self.a = Asm()
        self.stamps = stamps

    def stamp(self, k, loop=False):
        if loop == "tail":
            if not TAILDBG: return
        elif TAILDBG and 1 <= k <= 7: return
        elif LOOPDBG and k >= 3 and not loop: return
        elif loop and not LOOPDBG: return
        if self.stamps and not (self.stamps == "dbg" and k == 9):
            if k < 2 and self.stamps != "dbg" and loop != "tail":
                self.a(f"s_memtime s[58:59]\ns_waitcnt lgkmcnt(0)\ns_mov_b32 s{sST+2*k}, s58")
            else:
                self.a(f"s_memtime s[{sST+2*k}:{sST+2*k+1}]")

    def srd(self, d, ptr, size, add=None):
        a = self.a
        if add is None:
            a(f"s_mov_b32 s{d}, s{ptr}\ns_mov_b32 s{d+1}, s{ptr+1}")
        else:
            a(f"s_add_u32 s{d}, s{ptr}, {add}\ns_addc_u32 s{d+1}, s{ptr+1}, 0")
        a(f"s_mov_b32 s{d+2}, {size}\ns_mov_b32 s{d+3}, 0x20000")

    def signal(self, soff, v, off=0):
        self.a(f"v_mov_b32 v{v}, 1\nv_mov_b32 v{v+1}, 0\ns_mov_b64 exec, 1\nbuffer_atomic_add v{v}, v{v+1}, {WSR}, s{soff} offen offset:{off} sc1\ns_mov_b64 exec, -1")

    def arrive(self, soff, v):
        self.a(f"v_mov_b32 v{v}, 1\nv_mov_b32 v{v+1}, 0\ns_mov_b64 exec, 1\nbuffer_atomic_add v{v}, v{v+1}, {WSR}, s{soff} offen sc0 sc1\ns_mov_b64 exec, -1")

    def raise_if_last(self, v, last, soff):
        a = self.a
        sk = a.newlabel("L_last")
        a(f"v_readfirstlane_b32 s{T0+14}, v{v}\nv_mov_b32 v{v}, 1\nv_mov_b32 v{v+1}, 0\ns_cmp_lg_u32 s{T0+14}, {last}\ns_cbranch_scc1 {sk}")
        a(f"s_mov_b64 exec, 1\nbuffer_store_dword v{v}, v{v+1}, {WSR}, s{soff} offen sc1\ns_mov_b64 exec, -1")
        a.label(sk)

    def poll(self, soff, target, va, vd, srd=SRD_WS, sleep=None):
        a = self.a
        t = T0 + 15
        loop, done = a.newlabel("L_poll"), a.newlabel("L_polld")
        a(f"s_mov_b32 s{t}, 0")
        a.label(loop)
        a(f"buffer_load_dword v{vd}, v{va}, s[{srd}:{srd+3}], {soff} offen sc1\ns_waitcnt vmcnt(0)")
        a(f"v_cmp_le_u32 vcc, {target}, v{vd}\ns_add_u32 s{t}, s{t}, 1\ns_nop 0")
        a(f"s_cmp_eq_u64 vcc, -1\ns_cbranch_scc1 {done}")
        a(f"s_sleep {SLEEP if sleep is None else sleep}\ns_cmp_lt_u32 s{t}, {SPIN}\ns_cbranch_scc1 {loop}")
        a.label(done)

    def dump_stamps(self):
        if not self.stamps:
            return
        a = self.a
        a("s_waitcnt vmcnt(0) lgkmcnt(0)")
        a(f"s_memrealtime s[{T0}:{T0+1}]\ns_memtime s[{T0+2}:{T0+3}]")
        if self.stamps == "dbg":
            self.srd(SRD_M, pDBG, 256)
            a("s_waitcnt lgkmcnt(0)\nv_mov_b32 v2, 0\ns_mov_b64 exec, 1")
            sk = a.newlabel("L_dbg")
            a(f"s_lshl_b32 s{T0+5}, s{sWG}, 3\ns_add_u32 s{T0+5}, s{T0+5}, s{sWAVE}\ns_cmp_lg_u32 s{T0+5}, {DBGW}\ns_cbranch_scc1 {sk}")
            for k in range(1, 10):
                a(f"s_sub_u32 s{T0+5}, s{sST+2*k}, s{sST}\nv_mov_b32 v{3+k}, s{T0+5}")
            a(f"s_sub_u32 s{T0+5}, s{T0+2}, s{sST}\nv_mov_b32 v13, s{T0+5}\ns_sub_u32 s{T0+5}, s{T0}, s94\nv_mov_b32 v14, s{T0+5}\nv_mov_b32 v15, s94")
            for k in range(3):
                a(f"buffer_store_dwordx4 v[{4+4*k}:{7+4*k}], v2, s[{SRD_M}:{SRD_M+3}], 0 offen offset:{16+16*k}")
            a.label(sk)
            a("s_waitcnt vmcnt(0)")
            return
        a(f"s_getreg_b32 s{T0+4}, hwreg(HW_REG_XCC_ID)")
        self.srd(SRD_M, pWS, 0x10000000)
        a("s_waitcnt lgkmcnt(0)")
        for k in range(10):
            a(f"v_mov_b32 v{k}, s{sST+2*k}")
        a(f"v_mov_b32 v10, s{T0}\nv_mov_b32 v11, s{T0+2}\nv_mov_b32 v12, s{T0+4}\nv_mov_b32 v13, s{sTYPE}\nv_mov_b32 v14, s77\nv_mov_b32 v15, s79")
        a(f"s_lshl_b32 s{T0+5}, s{sWG}, 3\ns_add_u32 s{T0+5}, s{T0+5}, s{sWAVE}\ns_lshl_b32 s{T0+5}, s{T0+5}, 6\ns_add_u32 s{T0+5}, s{T0+5}, {WS_STAMP}")
        a("v_mov_b32 v16, 0\ns_mov_b64 exec, 1")
        for k in range(4):
            a(f"buffer_store_dwordx4 v[{4*k}:{4*k+3}], v16, s[{SRD_M}:{SRD_M+3}], s{T0+5} offen offset:{16*k}")
        a("s_waitcnt vmcnt(0)")

    def common_prologue(self, endlabel):
        a = self.a
        t = T0
        a(f"s_cmp_ge_u32 s{sWG}, 256\ns_cbranch_scc1 {endlabel}")
        a("s_load_dwordx16 s[4:19], s[0:1], 0\ns_load_dwordx4 s[20:23], s[0:1], 64\ns_load_dwordx2 s[24:25], s[0:1], 80")
        if self.stamps:
            for k in range(10): a(f"s_mov_b32 s{sST+2*k}, 0")
            if self.stamps == "dbg": a("s_memrealtime s[94:95]")
            else: a("s_memrealtime s[56:57]\ns_memtime s[58:59]\ns_waitcnt lgkmcnt(0)\ns_mov_b32 s77, s56\ns_mov_b32 s79, s58")
        if CPF:
            sk = a.newlabel("L_cpf")
            a(f"s_getpc_b64 s[{t}:{t+1}]\nL_pc0:\ns_lshr_b32 s{t+2}, s{sWG}, 3\ns_lshl_b32 s{t+2}, s{t+2}, 11\nv_lshlrev_b32 v2, 4, v0\nv_add_u32 v2, s{t+2}, v2")
            a(f"v_cmp_gt_u32 vcc, 128, v0\nv_min_u32 v2, L_code_end-L_pc0-16, v2\ns_and_saveexec_b64 s[{t+4}:{t+5}], vcc\ns_cbranch_execz {sk}")
            a(f"global_load_dwordx4 v[248:251], v2, s[{t}:{t+1}]")
            a.label(sk)
            a(f"s_mov_b64 exec, s[{t+4}:{t+5}]")
        a("v_lshrrev_b32 v1, 6, v0\nv_and_b32 v0, 63, v0")
        a(f"v_readfirstlane_b32 s{sWAVE}, v1")
        a(f"s_bfe_u32 s{t+2}, s{sWG}, 0x20001\ns_bfe_u32 s{t+3}, s{sWG}, 0x20003")
        a(f"s_lshl2_add_u32 s{sRB}, s{t+2}, s{t+3}\ns_and_b32 s{sHALF}, s{sWG}, 1\ns_lshr_b32 s{sCBL}, s{sWG}, 5")
        a(f"s_and_b32 s{t}, s{sCBL}, 3\ns_lshl2_add_u32 s{sGRP}, s{sHALF}, s{t}\ns_lshr_b32 s{sTYPE}, s{sCBL}, 2")
        if ROTMODE == "full":
            a(f"s_mul_i32 s{t+4}, s{t+3}, 5\ns_add_u32 s{t+4}, s{t+4}, 1\ns_lshr_b32 s{t+4}, s{t+4}, 1")
            a(f"s_add_u32 s{t+4}, s{t+4}, s{sCBL}\ns_add_u32 s{t+4}, s{t+4}, s{t+2}")
            a(f"s_mul_i32 s{t+5}, s{sHALF}, 5\ns_add_u32 s{sROT}, s{t+4}, s{t+5}")
            for _ in range(2):
                a(f"s_sub_u32 s{t+4}, s{sROT}, 10\ns_cmp_ge_u32 s{sROT}, 10\ns_cselect_b32 s{sROT}, s{t+4}, s{sROT}")
        elif ROTMODE == "none":
            a(f"s_mov_b32 s{sROT}, 0")
        elif ROTMODE == "xcd":
            a(f"s_mul_i32 s{t+4}, s{t+2}, 5\ns_add_u32 s{t+4}, s{t+4}, 1\ns_lshr_b32 s{t+4}, s{t+4}, 1\ns_add_u32 s{sROT}, s{t+4}, s{sHALF}")
        elif ROTMODE == "two0":
            a(f"s_add_u32 s{t+4}, s{t+3}, s{sCBL}\ns_and_b32 s{t+4}, s{t+4}, 1\ns_mul_i32 s{sROT}, s{t+4}, 5")
        elif ROTMODE == "two1":
            a(f"s_add_u32 s{t+4}, s{t+3}, s{sCBL}\ns_and_b32 s{t+4}, s{t+4}, 1\ns_mul_i32 s{t+4}, s{t+4}, 5\ns_and_b32 s{t+5}, s{t+2}, 1\ns_lshl1_add_u32 s{sROT}, s{t+5}, s{t+4}")
        elif ROTMODE == "two":
            a(f"s_add_u32 s{t+4}, s{t+3}, s{sCBL}\ns_and_b32 s{t+4}, s{t+4}, 1\ns_mul_i32 s{t+4}, s{t+4}, 5")
            a(f"s_add_u32 s{t+4}, s{t+4}, s{t+2}\ns_add_u32 s{sROT}, s{t+4}, s{sHALF}")

    def loader1(self):
        a = self.a
        t = T0
        sLW = sT
        vXE, vXO, vW, vGt = 2, 3, 4, 8
        sStr, sCol, sA32, sA64, sOff, sXo, sWB, sWB2, sXB, sXP, sSel = 48, 49, 50, 51, t+4, t+5, t+6, t+7, t+8, t+9, t+10
        a(f"s_setprio 2\ns_sub_u32 s{sLW}, s{sWAVE}, 4")
        a("v_lshrrev_b32 v10, 3, v0\nv_and_b32 v11, 7, v0\nv_lshrrev_b32 v12, 4, v0\nv_mul_u32_u24 v13, 1280, v10\nv_xor_b32 v14, v11, v12")
        a(f"s_and_b32 s{t}, s{sLW}, 1\ns_lshl_b32 s{t}, s{t}, 6")
        a(f"v_lshl_add_u32 v13, v14, 4, v13\nv_xor_b32 v{vXE}, s{t}, v13\nv_xor_b32 v{vXO}, 64, v{vXE}")
        if FIRST0: a(f"s_mov_b32 s{sA32}, 0\ns_mov_b32 s{sA64}, 0\ns_min_u32 s{sROT}, s{sROT}, 8")
        else: a(f"s_lshl_b32 s{sA32}, s{sROT}, 1\ns_mov_b32 s{sA64}, s{sROT}")
        a(f"s_mul_i32 s{sXB}, s{sLW}, 3072\ns_mul_i32 s{sXP}, s{sLW}, 30720")
        for k in range(6, 10): a(f"v_mov_b32 v{k}, {BIG}")
        lKV, lQH, lLN, lJ = a.newlabel("L_wkv"), a.newlabel("L_wqh"), a.newlabel("L_wln"), a.newlabel("L_wj")
        a(f"s_cmp_eq_u32 s{sTYPE}, 0\ns_cbranch_scc1 {lKV}")
        a(f"s_cmp_eq_u32 s{sLW}, 3\ns_cbranch_scc1 {lQH}")
        a(f"s_mov_b32 s{sSel}, 1\ns_mov_b32 s{sStr}, 3072\ns_mul_i32 s{sCol}, s{sGRP}, 3\ns_add_u32 s{sCol}, s{sCol}, s{sLW}\ns_lshl_b32 s{sCol}, s{sCol}, 7\ns_lshl_b32 s{sWB}, s{sLW}, 12")
        a.label(lLN)
        a(f"v_and_b32 v13, 4, v10\nv_add_u32 v13, v13, v10\nv_mul_u32_u24 v13, s{sStr}, v13\nv_lshlrev_b32 v12, 1, v12\nv_xor_b32 v12, v11, v12\nv_lshl_add_u32 v{vW}, v12, 4, v13")
        a(f"s_lshl_b32 s{t}, s{sStr}, 4\ns_lshl_b32 s{t+1}, s{sStr}, 2\nv_add_u32 v{vW+1}, s{t}, v{vW}\nv_add_u32 v{vW+2}, s{t+1}, v{vW}\nv_add_u32 v{vW+3}, s{t}, v{vW+2}")
        a(f"s_branch {lJ}")
        a.label(lQH)
        a(f"s_mov_b32 s{sSel}, 0\ns_mov_b32 s{sStr}, 3840\ns_lshl_b32 s{sCol}, s{sHALF}, 1\ns_add_u32 s{sCol}, s{sCol}, s{sCBL}\ns_add_u32 s{sCol}, s{sCol}, 12\ns_lshl_b32 s{sCol}, s{sCol}, 6")
        a(f"s_cmp_lt_u32 s{sCBL}, 6\ns_cselect_b32 s{sCol}, s{sCol}, {BIG}\ns_mov_b32 s{sWB}, 12288\ns_mov_b32 s{sWB2}, 13312")
        a(f"v_lshrrev_b32 v10, 2, v0\nv_and_b32 v13, 12, v10\nv_add_u32 v13, v13, v10\nv_mul_u32_u24 v13, 3840, v13\nv_and_b32 v11, 3, v0\nv_and_b32 v12, 1, v12\nv_lshlrev_b32 v12, 1, v12\nv_xor_b32 v12, v11, v12")
        a(f"v_lshl_add_u32 v{vW}, v12, 4, v13\nv_add_u32 v{vW+1}, 15360, v{vW}")
        a(f"s_lshl_b32 s{t}, s{sROT}, 3\nv_mov_b32 v14, {BIG}")
        for j in range(2):
            if FIRST0:
                a(f"v_add_u32 v10, {64*j}, v0\nv_add_u32 v11, s{t}, v10\nv_subrev_u32 v12, 72, v11\nv_cmp_gt_u32 vcc, 80, v11\ns_nop 1\nv_cndmask_b32 v11, v12, v11, vcc\nv_cmp_gt_u32 vcc, 8, v10\ns_nop 1\nv_cndmask_b32 v11, v11, v10, vcc")
                a(f"v_cmp_gt_u32 vcc, 80, v10\nv_lshlrev_b32 v11, 4, v11\ns_nop 0\nv_cndmask_b32 v{vGt+j}, v14, v11, vcc")
            else:
                a(f"v_add_u32 v10, {64*j}, v0\nv_add_u32 v11, s{t}, v10\nv_cmp_gt_u32 vcc, 80, v10\nv_subrev_u32 v12, 80, v11\nv_min_u32 v11, v11, v12\nv_lshlrev_b32 v11, 4, v11\nv_cndmask_b32 v{vGt+j}, v14, v11, vcc")
        a(f"s_branch {lJ}")
        a.label(lKV)
        a(f"s_mov_b32 s{sSel}, 0\ns_mov_b32 s{sStr}, 3840\ns_mul_i32 s{sWB}, s{sLW}, 5120\ns_lshl_b32 s{sCol}, s{sGRP}, 7")
        a(f"s_cmp_eq_u32 s{sLW}, 2\ns_cbranch_scc1 {lLN}")
        a(f"s_mul_i32 s{sCol}, s{sGRP}, 160\ns_cmp_eq_u32 s{sLW}, 1\ns_cselect_b32 s{t}, 2560, 1280\ns_add_u32 s{sCol}, s{sCol}, s{t}")
        a(f"s_cmp_eq_u32 s{sLW}, 3\ns_cselect_b32 s{t}, 256, 0\ns_cselect_b32 s{sWB}, 4096, s{sWB}\ns_mov_b32 s{sWB2}, 9216")
        a(f"v_add_u32 v14, s{t}, v0")
        for j in range(4):
            a(f"v_add_u32 v10, {64*j}, v14\nv_mul_u32_u24 v11, 6554, v10\nv_lshrrev_b32 v11, 16, v11\nv_mad_i32_i24 v10, v11, -10, v10")
            a("v_and_b32 v12, 12, v11\nv_and_b32 v13, 3, v11\nv_lshl_or_b32 v12, v12, 1, v13\nv_bfe_u32 v13, v11, 4, 1\nv_lshl_or_b32 v12, v13, 2, v12")
            a(f"v_mul_u32_u24 v12, 3840, v12\nv_lshl_add_u32 v{vW+j}, v10, 4, v12")
            if j == 0:
                a(f"v_add_u32 v{vW+1}, 1280, v{vW}\ns_cmp_eq_u32 s{sLW}, 3\ns_cbranch_scc1 {lJ}")
        a.label(lJ)
        a(f"s_lshl_b32 s{sStr}, s{sStr}, 5\ns_mul_i32 s{t}, s{sRB}, 163840")
        a("s_waitcnt lgkmcnt(0)")
        self.stamp(0)
        self.srd(SRD_X, pX, 163840, add=f"s{t}")
        a(f"s_cmp_eq_u32 s{sSel}, 0\ns_cselect_b32 s{SRD_W}, s{pWQKV}, s{pW1}\ns_cselect_b32 s{SRD_W+1}, s{pWQKV+1}, s{pW1+1}\ns_cselect_b32 s{SRD_W+2}, {640*1920*2}, {640*1536*2}\ns_mov_b32 s{SRD_W+3}, 0x20000")
        lab3, lab4, labj = a.newlabel("L_ld3"), a.newlabel("L_ld4"), a.newlabel("L_ldj")
        a(f"s_cmp_eq_u32 s{sLW}, 3\ns_cbranch_scc1 {lab3}")
        for variant in (0, 3, 4):
            if variant == 3:
                a.label(lab3)
                a(f"s_cmp_ge_u32 s{sCBL}, 6\ns_cbranch_scc1 {lab4}")
            if variant == 4:
                a.label(lab4)
            nW = {0: 4, 3: 2, 4: 0}[variant]
            nX = 3 if variant == 0 else 7
            seq = []
            def issue_W(i):
                if nW == 0: return
                a(f"s_mul_i32 s{sOff}, s{sA32}, s{sStr}")
                for j in range(nW):
                    base, off = (sWB, 1024*j) if variant == 0 else ((sWB, sWB2)[j], 0)
                    a(f"s_add_u32 m0, s{base}, {WR + (i % NS)*WSLOT + off}")
                    a(f"s_add_u32 s{sOff}, s{sOff}, s{sCol}" if j == 0 else "s_nop 0")
                    a(f"buffer_load_dwordx4 v{vW+j}, s[{SRD_W}:{SRD_W+3}], s{sOff} offen lds")
                    seq.append(("W", i))
                if FIRST0 and i == 1: a(f"s_lshl1_add_u32 s{sA32}, s{sROT}, 2")
                else: a(f"s_add_u32 s{sA32}, s{sA32}, 1\ns_cmp_eq_u32 s{sA32}, 20\ns_cselect_b32 s{sA32}, {2 if FIRST0 else 0}, s{sA32}")
            def issue_X(jx):
                a(f"s_lshl_b32 s{sXo}, s{sA64}, 7")
                for j in range(nX):
                    a(f"s_add_u32 m0, s{sXB}, {XR + (jx % 3)*16384 + 1024*j}")
                    a(f"s_add_u32 s{sXo}, s{sXo}, " + (f"s{sXP}" if j == 0 else "10240"))
                    a(f"buffer_load_dwordx4 v{vXE + (j & 1)}, s[{SRD_X}:{SRD_X+3}], s{sXo} offen lds")
                    seq.append(("X", jx))
                if FIRST0 and jx == 0: a(f"s_add_u32 s{sA64}, s{sROT}, 1")
                else: a(f"s_add_u32 s{sA64}, s{sA64}, 1\ns_cmp_eq_u32 s{sA64}, 10\ns_cselect_b32 s{sA64}, {1 if FIRST0 else 0}, s{sA64}")
            def wait_for(items):
                last = max([n for n, it in enumerate(seq) if it in items] + [-1])
                if last >= 0: a(f"s_waitcnt vmcnt({len(seq) - 1 - last})")
            issue_X(0); issue_W(0)
            if variant == 4:
                self.srd(SRD_M, pGATE, 1280)
                for j in range(2):
                    a(f"s_mov_b32 m0, {GATE + 1024*j}\ns_nop 0\nbuffer_load_dwordx4 v{vGt+j}, s[{SRD_M}:{SRD_M+3}], 0 offen lds")
                    seq.append(("W", 0))
            issue_W(1)
            wait_for([("W", 0), ("X", 0)]); self.stamp(1); a("s_barrier")
            issue_X(1)
            wait_for([("W", 1)]); a("s_barrier")
            issue_W(2); issue_W(3); issue_X(2); issue_W(4)
            if LOOK == "full": issue_W(5)
            for j in range(1, 10):
                if j == (8 if NE16 else 9) and variant == 0:
                    sk = a.newlabel("L_s1skip")
                    a(f"s_cmp_lg_u32 s{sWAVE}, 4\ns_cbranch_scc1 {sk}")
                    self.srd(SRD_D, pDBG, 256)
                    a("v_mov_b32 v10, 128")
                    self.poll("0", 1, 10, 11, SRD_D, S1SLEEP)
                    a.label(sk)
                wait_for([("W", 2*j), ("W", 2*j + 1), ("X", j)]); a("s_barrier")
                if LOOK == "ramp" and j == 1: issue_W(5)
                if j + 1 < 10 and LOOK == "xw": issue_W(2*j + 3)
                if j + 2 < 10: issue_X(j + 2); issue_W(2*j + 4)
                if j + 2 < 10 and LOOK != "xw": issue_W(2*j + 5)
                if j == 8 and NE16:
                    self.setup2()
                    self.srd(SRD_WS, pWS, WS_SIZE)
                    self.preload_b(0, NE16)
                    seq.extend(["B"] * NE16)
            if variant != 4:
                a(f"s_branch {labj}")
        a.label(labj)
        self.stamp(2)

    def mish_quad(self, h, dst, tmp):
        P = lambda r: f"v[{r}:{r+1}]"
        return [
            f"v_pk_fma_f32 {P(tmp)}, {P(h)}, s[{cL2E}:{cL2E+1}], -0.5 op_sel_hi:[1,1,0]",
            f"v_pk_fma_f32 {P(tmp+2)}, {P(h+2)}, s[{cL2E}:{cL2E+1}], -0.5 op_sel_hi:[1,1,0]",
            f"v_exp_f32 v{tmp}, v{tmp}", f"v_exp_f32 v{tmp+1}, v{tmp+1}", f"v_exp_f32 v{tmp+2}, v{tmp+2}", f"v_exp_f32 v{tmp+3}, v{tmp+3}",
            f"v_pk_add_f32 {P(tmp)}, {P(tmp)}, s[{cC}:{cC+1}]", f"v_pk_add_f32 {P(tmp+2)}, {P(tmp+2)}, s[{cC}:{cC+1}]",
            f"v_pk_fma_f32 {P(tmp)}, {P(tmp)}, {P(tmp)}, 0.5 op_sel_hi:[1,1,0]",
            f"v_pk_fma_f32 {P(tmp+2)}, {P(tmp+2)}, {P(tmp+2)}, 0.5 op_sel_hi:[1,1,0]",
            f"v_rcp_f32 v{tmp}, v{tmp}", f"v_rcp_f32 v{tmp+1}, v{tmp+1}", f"v_rcp_f32 v{tmp+2}, v{tmp+2}", f"v_rcp_f32 v{tmp+3}, v{tmp+3}",
            f"v_pk_fma_f32 {P(tmp)}, {P(h)}, {P(tmp)}, {P(h)} neg_lo:[1,0,0] neg_hi:[1,0,0]",
            f"v_pk_fma_f32 {P(tmp+2)}, {P(h+2)}, {P(tmp+2)}, {P(h+2)} neg_lo:[1,0,0] neg_hi:[1,0,0]",
            f"v_cvt_pk_bf16_f32 v{dst}, v{tmp}, v{tmp+1}", f"v_cvt_pk_bf16_f32 v{dst+1}, v{tmp+2}, v{tmp+3}",
        ]

    def phi_quad(self, h, dst, tmp):
        P = lambda r: f"v[{r}:{r+1}]"
        return [
            f"v_pk_mul_f32 {P(tmp)}, {P(h)}, s[{cL2E}:{cL2E+1}]", f"v_pk_mul_f32 {P(tmp+2)}, {P(h+2)}, s[{cL2E}:{cL2E+1}]",
            f"v_exp_f32 v{tmp}, v{tmp} clamp", f"v_exp_f32 v{tmp+1}, v{tmp+1} clamp", f"v_exp_f32 v{tmp+2}, v{tmp+2} clamp", f"v_exp_f32 v{tmp+3}, v{tmp+3} clamp",
            f"v_pk_add_f32 {P(h)}, {P(h)}, s[{cC}:{cC+1}]", f"v_pk_add_f32 {P(h+2)}, {P(h+2)}, s[{cC}:{cC+1}]",
            f"v_pk_add_f32 {P(tmp)}, {P(tmp)}, s[{cE}:{cE+1}]", f"v_pk_add_f32 {P(tmp+2)}, {P(tmp+2)}, s[{cE}:{cE+1}]",
            f"v_max_f32 v{tmp}, v{tmp}, v{h}", f"v_max_f32 v{tmp+1}, v{tmp+1}, v{h+1}", f"v_max_f32 v{tmp+2}, v{tmp+2}, v{h+2}", f"v_max_f32 v{tmp+3}, v{tmp+3}, v{h+3}",
            f"v_cvt_pk_bf16_f32 v{dst}, v{tmp}, v{tmp+1}", f"v_cvt_pk_bf16_f32 v{dst+1}, v{tmp+2}, v{tmp+3}",
        ]

    def consts(self, kind):
        if kind == "mish":
            self.a(f"s_mov_b32 s{cC}, 0x3f3504f3\ns_mov_b32 s{cC+1}, 0x3f3504f3")
        else:
            self.a(f"s_mov_b32 s{cC}, 0x3f800008\ns_mov_b32 s{cC+1}, 0x3f800008\ns_mov_b32 s{cE}, 0x358637bd\ns_mov_b32 s{cE+1}, 0x358637bd")

    def main_loop(self, reads, mfmas, extra, nread_end, bases):
        a = self.a
        a("s_barrier")
        self.stamp(1)
        for l in reads(0): a(l)
        for l in extra.get(0, ([], [], []))[1]: a(l)
        a("s_waitcnt lgkmcnt(0)")
        for i in range(1, 21):
            if i == 1 or i % 2 == 0: a("s_barrier")
            if i in (2, 4, 6, 8, 10, 14, 18): self.stamp(3 + (2, 4, 6, 8, 10, 14, 18).index(i), True)
            pre, fill, preb = extra.get(i, ([], [], []))
            for l in pre: a(l)
            if i < 20:
                tail = []
                if (i + 1) % 3 == 0 and i + 1 < 20:
                    op = "v_add_u32" if ((i + 1) % NS) == 3 else "v_subrev_u32"
                    tail = [f"{op} v{b}, {3*WSLOT}, v{b}" for b in bases]
                body = interleave(mfmas(i - 1), reads(i) + fill + tail, 0, nread_end)
                for l in body: a(l)
                for l in preb: a(l)
                a("s_waitcnt lgkmcnt(0)")
            else:
                for l in mfmas(19): a(l)
        self.stamp(2)

    def finish1(self, flags, strict=False):
        a = self.a
        self.setup2()
        if strict:
            a("s_waitcnt vmcnt(0)")
            self.stamp(5)
            self.signal(flags[0], 1); self.signal(flags[1], 1)
            self.preload_b(0, NPRE)
            return
        self.preload_b(0, NPRE)
        a(f"s_waitcnt vmcnt({NPRE})")
        self.stamp(5)
        for f in flags: self.signal(f, 1)
        if not BLDS:
            self.preload_b(NPRE, 30)
            return

    def pickup(self):
        a = self.a
        t = T0
        sk = a.newlabel("L_pk")
        a(f"s_cmp_ge_u32 s{sWAVE}, 4\ns_cbranch_scc1 {sk}")
        a(f"s_mul_i32 s{t+14}, s{sWAVE}, 20480\ns_add_u32 s{t+14}, s{t+14}, {BL}\nv_add_u32 v{BS+117}, s{t+14}, v{vL16}")
        for n in range(5*NB - 10):
            a(f"ds_read_b128 v[{BS+40+4*n}:{BS+43+4*n}], v{BS+117} offset:{1024*n}")
        a.label(sk)

    def prefetch(self, vL, v, S=SRD_X):
        a = self.a
        t = T0
        for ptr, size, share, n in ((pX, 2048*1280, 10240, 3), (pWQKV, 640*3840, 9600, 3), (pW1, 640*3072, 7680, 2))[:(1 if PF == 2 else 3)]:
            self.srd(S, ptr, size)
            per = -(-share // 4 // 128) * 128
            a(f"s_mul_i32 s{t}, s{sWG}, {share}\ns_and_b32 s{t}, s{t}, 0xffffff80\ns_mul_i32 s{t+1}, s{sWAVE}, {per}\ns_add_u32 s{t}, s{t}, s{t+1}\ns_min_u32 s{t}, s{t}, {size - n*1024}")
            for k in range(n):
                a(f"buffer_load_dwordx4 v[{v}:{v+3}], v{vL}, s[{S}:{S+3}], s{t} offen offset:{1024*k}")

    def touch(self, vLane, v):
        a = self.a
        t = T0
        a(f"v_lshlrev_b32 v{v}, 21, v{vLane}\nv_add_u32 v{v}, 0xff000, v{v}\ns_mov_b64 exec, 0xff")
        a(f"buffer_load_dword v{v+1}, v{v}, {WSR}, 0 offen")
        self.srd(SRD_M, pOUT, 2048*640*2)
        a(f"v_lshlrev_b32 v{v}, 20, v{vLane}\ns_mov_b64 exec, 7\nbuffer_load_dword v{v+2}, v{v}, s[{SRD_M}:{SRD_M+3}], 0 offen")
        self.srd(SRD_M, pWO, 640*640*2)
        a(f"v_lshlrev_b32 v{v}, 19, v{vLane}\ns_mov_b64 exec, 3\nbuffer_load_dword v{v+3}, v{v}, s[{SRD_M}:{SRD_M+3}], 0 offen\ns_mov_b64 exec, -1")

    def compute_P(self):
        a = self.a
        t = T0
        ACC, XB, WB, BI = 0, 112, 144, 200
        vX0, vX1, vH0, vH1, vQ, vGt, vL, vRd, vRr, vBo, vT = 228, 229, 230, 231, 232, 233, 234, 235, 236, 237, 238
        vLane = 253
        sSH, sNH = sT, 48
        sAct, sPq, sF2, sGs = 49, 72, 73, 74
        a(f"v_mov_b32 v{vLane}, v0\ns_lshr_b32 s{sSH}, s{sWAVE}, 1\ns_and_b32 s{sNH}, s{sWAVE}, 1")
        a(f"v_and_b32 v1, 15, v0\nv_lshrrev_b32 v2, 4, v0\nv_lshrrev_b32 v3, 1, v1\nv_xor_b32 v3, v3, v2\nv_lshlrev_b32 v3, 4, v3\nv_lshl_add_u32 v3, v1, 7, v3")
        a(f"s_lshl_b32 s{t}, s{sSH}, 13\nv_add_u32 v{vX0}, s{t}, v3\nv_xor_b32 v{vX1}, 64, v{vX0}")
        a(f"v_lshrrev_b32 v3, 2, v0\nv_and_b32 v4, 3, v0\nv_lshlrev_b32 v4, 3, v4")
        a(f"v_lshl_add_u32 v5, v3, 7, v4\nv_bfe_u32 v6, v0, 3, 2\ns_lshl_b32 s{t}, s{sNH}, 1\nv_xor_b32 v6, s{t}, v6\nv_lshl_add_u32 v6, v6, 5, v5")
        a(f"v_add_u32 v{vH0}, {WR}, v6\nv_xor_b32 v{vH1}, 32, v{vH0}")
        a(f"v_lshl_add_u32 v6, v3, 6, v4\nv_and_b32 v7, 1, v2\nv_xor_b32 v7, s{sNH}, v7\nv_lshl_add_u32 v6, v7, 5, v6\nv_add_u32 v{vQ}, {WR+12288}, v6")
        a(f"v_lshlrev_b32 v6, 4, v2\nv_add_u32 v{vGt}, {GATE}, v6\nv_lshlrev_b32 v{vL}, 4, v0\nv_lshlrev_b32 v{vBo}, 3, v2")
        a(f"v_lshrrev_b32 v6, 3, v0\nv_mul_u32_u24 v6, 1280, v6\nv_and_b32 v7, 7, v0\nv_lshl_add_u32 v{vRd}, v7, 4, v6")
        a(f"s_lshl_b32 s{t}, s{sWAVE}, 12\ns_add_u32 s{t}, s{t}, {SCR}\nv_add_u32 v{vRr}, s{t}, v5")
        a(f"s_lshl3_add_u32 s{sPIDX}, s{sRB}, s{sGRP}")
        a(f"s_mov_b32 s{cL2E}, 0x3fb8aa3b\ns_mov_b32 s{cL2E+1}, 0x3fb8aa3b")
        a(f"s_lshl2_add_u32 s{t}, s{sPIDX}, s{sWAVE}\ns_min_u32 s{t}, s{t}, 479")
        a(f"s_mul_i32 s{t+1}, s{t}, 6554\ns_lshr_b32 s{t+1}, s{t+1}, 16\ns_mul_i32 s{t+2}, s{t+1}, 10\ns_sub_u32 s{t+2}, s{t}, s{t+2}")
        a(f"s_mul_i32 s{t+6}, s{t+1}, 40960\ns_lshl_b32 s{t+3}, s{t+2}, 7\ns_add_u32 s{t+6}, s{t+6}, s{t+3}")
        a(f"s_mul_i32 s{t+7}, s{sGRP}, 384\ns_lshl_b32 s{t+3}, s{sNH}, 6\ns_add_u32 s{t+7}, s{t+7}, s{t+3}")
        a("s_waitcnt lgkmcnt(0)")
        self.stamp(0)
        self.srd(SRD_M, pB1, 3072)
        self.srd(SRD_W, pW2, 1536*640*2)
        for u in range(6):
            a(f"buffer_load_dwordx2 v[{BI+4*u+2}:{BI+4*u+3}], v{vBo}, s[{SRD_M}:{SRD_M+3}], s{t+7} offen offset:{128*(u >> 1) + 32*(u & 1)}")
        sSrc1 = 69
        a(f"s_mov_b32 s{sSrc1}, s{t+6}")
        self.srd(SRD_WS, pWS, WS_SIZE)
        if TOUCH == 2: self.touch(vLane, 240)
        dsts = [10, 11, 1, 3]
        for u in range(4):
            a(f"s_lshl2_add_u32 s{t+3}, s{t+2}, {u}\ns_mul_i32 s{t+4}, s{t+3}, 205\ns_lshr_b32 s{t+4}, s{t+4}, 10")
            a(f"s_mul_i32 s{t+5}, s{t+4}, 235\ns_add_u32 s{t+5}, s{t+5}, s{t+3}\ns_mul_i32 s{t+4}, s{t+1}, 5\ns_add_u32 s{t+5}, s{t+5}, s{t+4}")
            a(f"s_lshl_b32 s{t+5}, s{t+5}, 10\ns_add_u32 s{t+5}, s{t+5}, {WS_W2R}")
            a(f"s_cmp_lt_u32 s{sPIDX}, 120\ns_cselect_b32 s{dsts[u]}, s{t+5}, {BIG}")
        d2, sSrc2, sK2, sInc2 = 40, 0, 75, 70
        self.srd(SRD_M, pWO, 640*640*2)
        a(f"s_lshl1_add_u32 s{t}, s{sPIDX}, s{sWAVE}\ns_sub_u32 s{t}, s{t}, 2")
        a(f"s_cmp_lt_u32 s{t}, 160\ns_cselect_b32 s{sK2}, 1, 2\ns_cmp_lt_u32 s{t}, 200\ns_cselect_b32 s{sK2}, s{sK2}, 0\ns_cmp_lt_u32 s{sWAVE}, 2\ns_cselect_b32 s{sK2}, 0, s{sK2}")
        a(f"s_mul_i32 s{t+1}, s{t}, 6554\ns_lshr_b32 s{t+1}, s{t+1}, 16\ns_mul_i32 s{t+2}, s{t+1}, 10\ns_sub_u32 s{t+2}, s{t}, s{t+2}")
        a(f"s_lshr_b32 s{t+3}, s{t+1}, 1\ns_and_b32 s{t+4}, s{t+1}, 1\ns_sub_u32 s{t+5}, s{t+1}, 16\ns_lshl_b32 s{t+5}, s{t+5}, 1")
        a(f"s_cmp_eq_u32 s{sK2}, 2\ns_cselect_b32 s{t+3}, s{t+5}, s{t+3}\ns_cselect_b32 s{t+4}, 2, s{t+4}\ns_cselect_b32 s{sInc2}, {10240 + 64*1280}, 10240")
        a(f"s_mul_i32 s{sSrc2}, s{t+3}, {80*1280}\ns_mul_i32 s{t+5}, s{t+4}, {32*1280}\ns_add_u32 s{sSrc2}, s{sSrc2}, s{t+5}\ns_lshl_b32 s{t+5}, s{t+2}, 7\ns_add_u32 s{sSrc2}, s{sSrc2}, s{t+5}")
        a(f"s_mul_i32 s{t+3}, s{t+3}, 12800\ns_lshl_b32 s{t+5}, s{t+4}, 10\ns_cmp_eq_u32 s{sK2}, 2\ns_cselect_b32 s{t+5}, 10240, s{t+5}\ns_cselect_b32 s{t+6}, 512, 2048\ns_add_u32 s{t+3}, s{t+3}, s{t+5}\ns_add_u32 s{t+3}, s{t+3}, {WS_WOR}")
        for u in range(4):
            a(f"s_lshl2_add_u32 s{t+4}, s{t+2}, {u}\ns_mul_i32 s{t+5}, s{t+4}, 205\ns_lshr_b32 s{t+5}, s{t+5}, 10\ns_mul_i32 s{t+7}, s{t+5}, 5\ns_sub_u32 s{t+4}, s{t+4}, s{t+7}")
            a(f"s_mul_i32 s{t+5}, s{t+5}, 102400\ns_mul_i32 s{t+4}, s{t+4}, s{t+6}\ns_add_u32 s{t+5}, s{t+5}, s{t+4}\ns_add_u32 s{d2+u}, s{t+5}, s{t+3}")
        sRb64 = t + 11
        a(f"s_lshl1_add_u32 s{sRb64}, s{sRB}, s{sSH}")
        a(f"s_mul_i32 s{t}, s{sRb64}, 48\ns_mul_i32 s{t+1}, s{sGRP}, 6\ns_add_u32 s{t}, s{t}, s{t+1}\ns_add_u32 s{t}, s{t}, s{sNH}\ns_lshl_b32 s{t}, s{t}, 12")
        a(f"s_add_u32 s{sAct}, s{t}, {WS_ACT}\ns_add_u32 s{sAct+1}, s{t}, {WS_ACT + 8192}\ns_add_u32 s{sAct+2}, s{t}, {WS_ACT + 16384}")
        a(f"s_mul_i32 s{t}, s{sRb64}, 40\ns_lshl2_add_u32 s{t}, s{sHALF}, s{t}\ns_lshl1_add_u32 s{t}, s{sCBL}, s{t}\ns_add_u32 s{t}, s{t}, s{sNH}\ns_add_u32 s{t}, s{t}, 24\ns_lshl_b32 s{t}, s{t}, 11\ns_add_u32 s{sPq}, s{t}, {WS_PQ}")
        a(f"s_lshl3_add_u32 s{sF1}, s{sRb64}, s{sGRP}\ns_lshl_b32 s{sF1}, s{sF1}, 7")
        a(f"s_lshl1_add_u32 s{t}, s{sGRP}, s{sNH}\ns_cmp_eq_u32 s{t}, 5\ns_cselect_b32 s{sGs}, 1, 0")
        a(f"s_lshl_b32 s{sF2}, s{sRb64}, 7\ns_add_u32 s{sF2}, s{sF2}, {CNT_PQ}\ns_cmp_lt_u32 s{sCBL}, 6\ns_cselect_b32 s{t}, 1, s{sGs}\ns_cmp_eq_u32 s{t}, 1\ns_cselect_b32 s{sF2}, s{sF2}, {BIG}")
        a(f"s_cmp_ge_u32 s{sCBL}, 6\ns_cselect_b64 vcc, -1, 0")
        def reads(i):
            b = i & 1; so = (i % 3) * WSLOT
            xs = XR + ((i >> 1) % 3) * 16384
            r = [f"ds_read_b128 v[{XB+16*b+4*s}:{XB+16*b+4*s+3}], v{vX1 if i & 1 else vX0} offset:{xs + 2048*s}" for s in range(4)]
            for u in range(6):
                d = WB + 28*b + 4*u
                r.append(f"ds_read_b64_tr_b16 v[{d}:{d+1}], v{vH0 + (u & 1)} offset:{so + 4096*(u >> 1)}")
                r.append(f"ds_read_b64_tr_b16 v[{d+2}:{d+3}], v{vH0 + (u & 1)} offset:{so + 4096*(u >> 1) + 2048}")
            d = WB + 28*b + 24
            if GBR:
                l1, l2 = a.newlabel("L_g"), a.newlabel("L_gj")
                r.append(f"s_cbranch_vccnz {l1}\nds_read_b64_tr_b16 v[{d}:{d+1}], v{vQ} offset:{so}\nds_read_b64_tr_b16 v[{d+2}:{d+3}], v{vQ} offset:{so + 1024}\ns_branch {l2}\n"
                         f"{l1}:\nds_read_b128 v[{d}:{d+3}], v{vGt} offset:{64*i}\n{l2}:")
            else:
                r += [f"ds_read_b64_tr_b16 v[{d}:{d+1}], v{vQ} offset:{so}", f"ds_read_b64_tr_b16 v[{d+2}:{d+3}], v{vQ} offset:{so + 1024}",
                      f"s_mov_b64 exec, vcc\nds_read_b128 v[{d}:{d+3}], v{vGt} offset:{64*i}\ns_mov_b64 exec, -1"]
            return r
        def mfmas(i):
            b = i & 1
            r = []
            for u in (range(7) if i < 19 else (6, 0, 1, 2, 3, 4, 5)):
                for s in range(4):
                    d = ACC + 16*u + 4*s
                    c = f"v[{d}:{d+3}]" if i > 0 else ("0" if u == 6 else f"v[{BI+4*u}:{BI+4*u+3}]")
                    r.append(f"v_mfma_f32_16x16x32_bf16 v[{d}:{d+3}], v[{WB+28*b+4*u}:{WB+28*b+4*u+3}], v[{XB+16*b+4*s}:{XB+16*b+4*s+3}], {c}")
            return r
        unpack = [f"s_waitcnt vmcnt({(3 if TOUCH == 2 else 0) + (4 if RD < 0 else 0) + {0: 0, 1: 8, 2: 3}[PF]})"]
        for u in range(6):
            p = BI + 4*u
            unpack += [f"v_lshlrev_b32 v{p}, 16, v{p+2}", f"v_and_b32 v{p+1}, 0xffff0000, v{p+2}", f"v_lshlrev_b32 v{p+2}, 16, v{p+3}", f"v_and_b32 v{p+3}, 0xffff0000, v{p+3}"]
        RP = BI
        rp_reads = []
        for u in range(4):
            rp_reads += [f"ds_read_b64_tr_b16 v[{RP+4*u}:{RP+4*u+1}], v{vRr} offset:{32*u}", f"ds_read_b64_tr_b16 v[{RP+4*u+2}:{RP+4*u+3}], v{vRr} offset:{32*u + 2048}"]
        rp_st = [f"buffer_store_dwordx4 v[{RP+4*u}:{RP+4*u+3}], v{vL}, {WSR}, s{dsts[u]} offen sc1" for u in range(4)]
        z = [f"s_lshl_b32 s{t}, s{sPIDX}, 9", f"s_mul_i32 s{t+1}, s{sWAVE}, {WS_KVP}", f"s_add_u32 s{t}, s{t}, s{t+1}", f"s_cmp_lt_u32 s{sWAVE}, 2", f"s_cselect_b32 s{t}, s{t}, {BIG}"] + \
            [f"v_mov_b32 v{RP+16+k}, 0" for k in range(4)] + \
            [f"s_mov_b32 exec_hi, 0\nbuffer_store_dwordx4 v[{RP+16}:{RP+19}], v{vL}, {WSR}, s{t} offen sc1\ns_mov_b32 exec_hi, -1"]
        k1, k2, k3, k4 = [a.newlabel("L_r2") for _ in range(4)]
        dma1 = [f"s_lshl_b32 s{t+3}, s{sWAVE}, 12"]
        for j in range(4):
            dma1.append(f"s_add_u32 m0, s{t+3}, {SCR + 1024*j}\ns_nop 0\nbuffer_load_dwordx4 v{vRd}, s[{SRD_W}:{SRD_W+3}], s{sSrc1} offen lds\ns_add_u32 s{sSrc1}, s{sSrc1}, 10240")
        rp_reads2 = [l.replace("offset:", "offset:8192+") for l in rp_reads]
        dma2 = f"s_cmp_eq_u32 s{sK2}, 0\ns_cbranch_scc1 {k1}\n"
        for j in range(4):
            dma2 += f"s_add_u32 m0, s{t+3}, {SCR + 8192 + 1024*j}\ns_nop 0\nbuffer_load_dwordx4 v{vRd}, s[{SRD_M}:{SRD_M+3}], s{sSrc2} offen lds\n"
            if j < 3: dma2 += f"s_add_u32 s{sSrc2}, s{sSrc2}, " + (f"s{sInc2}" if j == 1 else "10240") + "\n"
        dma2 += k1 + ":"
        st2 = f"s_cmp_eq_u32 s{sK2}, 0\ns_cbranch_scc1 {k2}\ns_cmp_eq_u32 s{sK2}, 2\ns_cbranch_scc1 {k3}\n"
        st2 += "".join(f"buffer_store_dwordx4 v[{RP+4*u}:{RP+4*u+3}], v{vL}, {WSR}, s{d2+u} offen sc1\n" for u in range(4))
        st2 += f"s_branch {k2}\n{k3}:\nv_lshrrev_b32 v{vT}, 1, v{vL}\n"
        for u in range(4):
            st2 += f"buffer_store_dwordx2 v[{RP+4*u}:{RP+4*u+1}], v{vT}, {WSR}, s{d2+u} offen sc1\ns_add_u32 s{d2+u}, s{d2+u}, 12800\n"
            st2 += f"buffer_store_dwordx2 v[{RP+4*u+2}:{RP+4*u+3}], v{vT}, {WSR}, s{d2+u} offen sc1\n"
        st2 += k2 + ":"
        sk, sk2 = a.newlabel("L_s1a"), a.newlabel("L_s1b")
        arr = [f"s_cmp_lg_u32 s{sWAVE}, 0", f"s_cbranch_scc1 {sk}",
               f"s_mov_b32 s{SRD_D}, s{pDBG}", f"s_mov_b32 s{SRD_D+1}, s{pDBG+1}", f"s_mov_b32 s{SRD_D+2}, 256", f"s_mov_b32 s{SRD_D+3}, 0x20000",
               f"v_mov_b32 v{vT}, 1", f"s_mov_b64 exec, 1\nbuffer_atomic_add v{vT}, v{vL}, s[{SRD_D}:{SRD_D+3}], 0 offen sc0 sc1\ns_mov_b64 exec, -1", sk + ":"]
        arr2 = [f"s_cmp_lg_u32 s{sWAVE}, 0", f"s_cbranch_scc1 {sk2}", "s_waitcnt vmcnt(0)", f"v_readfirstlane_b32 s{t}, v{vT}", f"v_mov_b32 v{vT+1}, 1",
                f"s_cmp_lg_u32 s{t}, 127", f"s_cbranch_scc1 {sk2}",
                f"s_mov_b32 s{SRD_D}, s{pDBG}", f"s_mov_b32 s{SRD_D+1}, s{pDBG+1}", f"s_mov_b32 s{SRD_D+2}, 256", f"s_mov_b32 s{SRD_D+3}, 0x20000",
                f"s_mov_b64 exec, 1\nbuffer_store_dword v{vT+1}, v{vL}, s[{SRD_D}:{SRD_D+3}], 0 offen offset:128 sc1\ns_mov_b64 exec, -1", sk2 + ":"]
        if RD < 0:
            for l in dma1 + [dma2]: a(l)
        if PF: self.prefetch(vL, 240, S=SRD_D)
        hi, lo = (["s_setprio 3"], ["s_setprio 0"]) if STPRIO else ([], [])
        extra = {0: ([], unpack, []), RS: (["s_waitcnt vmcnt(0)"], rp_reads, []), RS+1: (hi, rp_st + rp_reads2, []),
                 RS+2: ([], [st2] + z, lo), S1AT-1: ([], [], ["s_waitcnt vmcnt(0)"]), S1AT: (arr, [], []), S1AT+2: (arr2, [], [])}
        if SPREAD:
            R2 = [216, 220, 240, 244]
            rd2 = []
            for u in range(4):
                rd2 += [f"ds_read_b64_tr_b16 v[{R2[u]}:{R2[u]+1}], v{vRr} offset:{8192 + 32*u}", f"ds_read_b64_tr_b16 v[{R2[u]+2}:{R2[u]+3}], v{vRr} offset:{8192 + 32*u + 2048}"]
            zz = [l.replace(f"v{RP+16}", "v248").replace(f"v{RP+17}", "v249").replace(f"v{RP+18}", "v250").replace(f"v{RP+19}", "v251").replace(f"v[{RP+16}:{RP+19}]", "v[248:251]") for l in z]
            pre2 = [f"v_lshrrev_b32 v{vT+1}, 1, v{vL}"]
            def st2u(u):
                k5, k6 = a.newlabel("L_r2"), a.newlabel("L_r2")
                return (f"s_cmp_eq_u32 s{sK2}, 1\ns_cbranch_scc0 {k5}\nbuffer_store_dwordx4 v[{R2[u]}:{R2[u]+3}], v{vL}, {WSR}, s{d2+u} offen sc1\n{k5}:\n"
                        f"s_cmp_eq_u32 s{sK2}, 2\ns_cbranch_scc0 {k6}\nbuffer_store_dwordx2 v[{R2[u]}:{R2[u]+1}], v{vT+1}, {WSR}, s{d2+u} offen sc1\ns_add_u32 s{d2+u}, s{d2+u}, 12800\n"
                        f"buffer_store_dwordx2 v[{R2[u]+2}:{R2[u]+3}], v{vT+1}, {WSR}, s{d2+u} offen sc1\n{k6}:")
            extra = {0: extra[0], RS: (["s_waitcnt vmcnt(0)"], rp_reads + rd2 + pre2 + zz, []), S1AT: extra[S1AT], S1AT+2: extra[S1AT+2]}
            if SPREAD == 1:
                for u in range(4): extra[RS+1+u] = ([], [rp_st[u], st2u(u)], [])
            else:
                for u in range(4):
                    extra[RS+1+2*u] = ([], [rp_st[u]], []); extra[RS+2+2*u] = ([], [st2u(u)], [])
            e_ = extra.get(S1AT-1, ([], [], []))
            extra[S1AT-1] = (e_[0], e_[1], ["s_waitcnt vmcnt(0)"])
        if RD > 0: extra[RD] = ([], dma1 + [dma2], [])
        if RD == 0: extra[0] = ([], unpack + dma1 + [dma2], [])
        self.main_loop(reads, mfmas, extra, NRE, [vH0, vH1, vQ])
        if EPRIO: a(f"s_setprio {EPRIO}")
        TM = XB
        a("s_nop 3")
        labG, labE = a.newlabel("L_epG"), a.newlabel("L_epE")
        a(f"s_cbranch_vccnz {labG}")
        self.consts("phi")
        for sp in range(2):
            e = ACC + 96 + 8*sp
            for l in self.phi_quad(e, e, TM): a(l)
            for l in self.phi_quad(e + 4, e + 2, TM + 4): a(l)
            a(f"buffer_store_dwordx4 v[{e}:{e+3}], v{vL}, {WSR}, s{sPq} offen offset:{1024*sp} sc1")
        a(f"s_branch {labE}")
        a.label(labG)
        a(f"s_cmp_eq_u32 s{sGs}, 0\ns_cbranch_scc1 {labE}")
        G = ACC + 96
        a(f"v_cmp_le_u32 vcc, 16, v{vLane}\nv_cmp_le_u32 s[{t+2}:{t+3}], 32, v{vLane}\nv_cmp_le_u32 s[{t+4}:{t+5}], 48, v{vLane}\ns_nop 0")
        a(f"v_cndmask_b32 v{G}, v{G}, v{G+4}, vcc\nv_cndmask_b32 v{G}, v{G}, v{G+8}, s[{t+2}:{t+3}]\nv_cndmask_b32 v{G}, v{G}, v{G+12}, s[{t+4}:{t+5}]")
        a(f"s_mov_b32 s{t}, 0x42700000\nv_min_f32 v{G}, s{t}, v{G}\nv_max_f32 v{G}, -s{t}, v{G}\nv_mul_f32 v{G}, s{cL2E}, v{G}\nv_exp_f32 v{G}, v{G}")
        a(f"s_lshl_b32 s{t}, s{sRb64}, 8\ns_add_u32 s{t}, s{t}, {WS_G}\nv_add_f32 v{G+2}, 1.0, v{G}\nv_rcp_f32 v{G+2}, v{G+2}\nv_lshlrev_b32 v{G+1}, 2, v{vLane}\ns_add_u32 s{t+1}, s{t}, 8192")
        a(f"buffer_store_dword v{G}, v{G+1}, {WSR}, s{t} offen sc1\nbuffer_store_dword v{G+2}, v{G+1}, {WSR}, s{t+1} offen sc1")
        a.label(labE)
        self.consts("mish")
        for L in range(3):
            for s in range(4):
                e, o = ACC + 32*L + 4*s, ACC + 32*L + 16 + 4*s
                for l in self.mish_quad(e, e, TM + 8*(s & 1)): a(l)
                for l in self.mish_quad(o, e + 2, TM + 4 + 8*(s & 1)): a(l)
                if DIAG != 1: a(f"buffer_store_dwordx4 v[{e}:{e+3}], v{vL}, {WSR}, s{sAct+L} offen offset:{1024*s} {'' if DIAG == 2 else 'sc1'}")
            if L == 0 and EARLYQ:
                a("s_waitcnt vmcnt(4)")
                self.signal(sF2, vT)
            if LFLAG and L >= 1:
                if L == 2: a("s_waitcnt vmcnt(5)")
                self.signal(sF1, vT, 4*(L - 1))
        a(f"v_mov_b32 v0, v{vLane}")
        self.stamp(3)
        self.finish1([sF1] if EARLYQ else [sF1, sF2])

    def compute_KV(self):
        a = self.a
        t = T0
        ACC, XB, WB = 0, 112, 128
        vX0, vX1, vK, vQ0, vL = 240, 241, 242, 243, 247
        vLane = 253
        sPq, sF2, sRec = 72, 73, 74
        a(f"v_mov_b32 v{vLane}, v0")
        a(f"v_and_b32 v1, 15, v0\nv_lshrrev_b32 v2, 4, v0\nv_lshrrev_b32 v3, 1, v1\nv_xor_b32 v3, v3, v2\nv_lshlrev_b32 v3, 4, v3\nv_lshl_add_u32 v3, v1, 7, v3")
        a(f"s_lshl_b32 s{t}, s{sWAVE}, 12\nv_add_u32 v{vX0}, s{t}, v3\nv_xor_b32 v{vX1}, 64, v{vX0}")
        a(f"v_lshrrev_b32 v3, 2, v0\nv_and_b32 v4, 3, v0\nv_lshlrev_b32 v4, 3, v4")
        a(f"v_mul_u32_u24 v5, 160, v3\nv_add_u32 v5, v5, v4\nv_add_u32 v{vK}, {WR}, v5")
        a(f"v_lshl_add_u32 v5, v3, 7, v4\nv_bfe_u32 v6, v0, 3, 2\nv_lshl_add_u32 v5, v6, 5, v5\nv_add_u32 v{vQ0}, {WR+10240}, v5")
        for u in range(1, 4): a(f"v_xor_b32 v{vQ0+u}, {32*u}, v{vQ0}")
        a(f"v_lshlrev_b32 v{vL}, 4, v0")
        a(f"s_lshr_b32 s{t}, s{sWAVE}, 1\ns_lshl1_add_u32 s{t+1}, s{sRB}, s{t}")
        a(f"s_lshl_b32 s{sF2}, s{t+1}, 7\ns_add_u32 s{sF2}, s{sF2}, {CNT_PQ}")
        a(f"s_mul_i32 s{t+1}, s{t+1}, 40\ns_lshl2_add_u32 s{t+1}, s{sGRP}, s{t+1}\ns_and_b32 s{t}, s{sWAVE}, 1\ns_lshl1_add_u32 s{t+1}, s{t+1}, s{t}\ns_lshl_b32 s{t+1}, s{t+1}, 10\ns_add_u32 s{sPq}, s{t+1}, {WS_PQ}")
        a(f"s_lshl2_add_u32 s{t}, s{sGRP}, s{sWAVE}\ns_lshl_b32 s{sF1}, s{t}, 7\ns_add_u32 s{sF1}, s{sF1}, {CNT_KV}")
        a(f"s_mul_i32 s{t}, s{t}, 1792\ns_add_u32 s{sRec}, s{t}, {WS_KVP}")
        a(f"s_mov_b32 s{cL2E}, 0x3fb8aa3b\ns_mov_b32 s{cL2E+1}, 0x3fb8aa3b")
        self.consts("phi")
        a("s_waitcnt lgkmcnt(0)")
        self.stamp(0)
        self.srd(SRD_WS, pWS, WS_SIZE)
        if TOUCH: self.touch(vLane, 248)
        if PF: self.prefetch(vL, 248)
        def reads(i):
            b = i & 1; so = (i % 3) * WSLOT
            xs = XR + ((i >> 1) % 3) * 16384
            r = [f"ds_read_b128 v[{XB+8*b+4*s}:{XB+8*b+4*s+3}], v{vX1 if i & 1 else vX0} offset:{xs + 2048*s}" for s in range(2)]
            for u in range(14):
                d = WB + 56*b + 4*u
                if u < 10: base, off, d2 = vK, 5120*(u // 5) + 32*(u % 5), 2560
                else: base, off, d2 = vQ0 + u - 10, 0, 2048
                r.append(f"ds_read_b64_tr_b16 v[{d}:{d+1}], v{base} offset:{so + off}")
                r.append(f"ds_read_b64_tr_b16 v[{d+2}:{d+3}], v{base} offset:{so + off + d2}")
            return r
        def mfmas(i):
            b = i & 1
            r = []
            order = list(range(14)) if i < 19 else [5, 6, 7, 8, 9, 0, 1, 2, 3, 4, 10, 11, 12, 13]
            for u in order:
                for s in range(2):
                    d = ACC + 8*u + 4*s
                    c = f"v[{d}:{d+3}]" if i > 0 else "0"
                    w, x = f"v[{WB+56*b+4*u}:{WB+56*b+4*u+3}]", f"v[{XB+8*b+4*s}:{XB+8*b+4*s+3}]"
                    r.append(f"v_mfma_f32_16x16x32_bf16 v[{d}:{d+3}], {x if u < 10 else w}, {w if u < 10 else x}, {c}")
            return r
        self.main_loop(reads, mfmas, {}, 24, [vK, vQ0, vQ0+1, vQ0+2, vQ0+3])
        TM = XB
        vEx = vX0
        a(f"s_mul_i32 s{t}, s{sWAVE}, 10240\nv_add_u32 v{vEx}, s{t}, v{vL}")
        for u in range(5, 10):
            e = ACC + 8*u
            a(f"v_cvt_pk_bf16_f32 v{e}, v{e}, v{e+1}\nv_cvt_pk_bf16_f32 v{e+1}, v{e+2}, v{e+3}\nv_cvt_pk_bf16_f32 v{e+2}, v{e+4}, v{e+5}\nv_cvt_pk_bf16_f32 v{e+3}, v{e+6}, v{e+7}")
            a(f"ds_write_b128 v{vEx}, v[{e}:{e+3}] offset:{XR + 1024*u}")
        for u in range(5):
            e = ACC + 8*u
            for l in self.phi_quad(e, e, TM): a(l)
            for l in self.phi_quad(e + 4, e + 2, TM + 4): a(l)
            a(f"ds_write_b128 v{vEx}, v[{e}:{e+3}] offset:{XR + 1024*u}")
        a(f"s_lshl_b32 s{t}, s{sWAVE}, 10\nv_add_u32 v{vEx}, s{t}, v{vL}")
        ONE = WB + 64
        for k in range(4): a(f"v_mov_b32 v{ONE+k}, 0x3f803f80")
        if K1LDS:
            lp, dn = a.newlabel("L_k1"), a.newlabel("L_k1d")
            a(f"v_mov_b32 v{vK}, {K1C}\nv_mov_b32 v{vQ0}, 1\ns_mov_b32 s{t}, 0\ns_waitcnt lgkmcnt(0)\ns_mov_b64 exec, 1\nds_add_u32 v{vK}, v{vQ0}\ns_mov_b64 exec, -1")
            a.label(lp)
            a(f"ds_read_b32 v{vQ0}, v{vK}\ns_add_u32 s{t}, s{t}, 1\ns_waitcnt lgkmcnt(0)\nv_readfirstlane_b32 s{t+1}, v{vQ0}\ns_cmp_ge_u32 s{t}, {SPIN}\ns_cbranch_scc1 {dn}\ns_cmp_lt_u32 s{t+1}, 4\ns_cbranch_scc1 {lp}")
            a.label(dn)
        else:
            a("s_waitcnt lgkmcnt(0)\ns_barrier")
        FR = WB
        for g in range(4):
            for j, off in enumerate((0, 1024, 5120, 6144)):
                a(f"ds_read_b128 v[{FR+16*g+4*j}:{FR+16*g+4*j+3}], v{vEx} offset:{XR + 10240*g + off}")
        AD = WB + 72
        dc, BG, ev, R = AD, AD + 2, AD + 3, AD + 8
        ad = [f"v_lshrrev_b32 v{dc}, 4, v{vLane}", f"v_and_b32 v{ev}, 15, v{vLane}", f"v_mov_b32 v{BG}, 0x10000", f"v_cmp_eq_u32 vcc, 0, v{ev}",
              f"v_mov_b32 v{R}, 320", f"v_subrev_u32 v{dc}, s{sWAVE}, v{dc}", f"v_cndmask_b32 v{ev+2}, v{BG}, v{R}, vcc", f"v_add_u32 v{dc+1}, 4, v{dc}",
              f"s_lshl_b32 s{t}, s{sWAVE}, 2", f"v_subrev_u32 v{ev}, s{t}, v{ev}", f"v_add_u32 v{ev+1}, 16, v{ev}",
              f"s_lshl_b32 s{t+4}, s{sWAVE}, 11", f"s_add_u32 s{t+4}, s{t+4}, {STG}"]
        for k in range(2):
            ad += [f"v_cmp_gt_u32 vcc, 5, v{dc+k}", f"v_cmp_gt_u32 s[{t+2}:{t+3}], 20, v{ev+k}", f"v_mul_u32_u24 v{dc+k}, 336, v{dc+k}", f"v_lshlrev_b32 v{ev+k}, 4, v{ev+k}",
                   f"v_cndmask_b32 v{dc+k}, v{BG}, v{dc+k}, vcc", f"v_cndmask_b32 v{ev+k}, v{BG}, v{ev+k}, s[{t+2}:{t+3}]"]
        for k in range(2):
            ad += [f"v_add_u32 v{R+3*k+b}, v{dc+k}, v{ev+b}" for b in range(3)]
            ad += [f"v_min_u32 v{R+3*k+b}, 1680, v{R+3*k+b}" for b in range(3)]
            ad += [f"v_add_u32 v{R+3*k+b}, s{t+4}, v{R+3*k+b}" for b in range(3)]
        ad += [f"v_lshlrev_b32 v{dc}, 2, v{vLane}", f"v_add_u32 v{vEx}, s{t+4}, v{dc}"]
        for l in ad[:20]: a(l)
        D = ACC
        mm = []
        for g in range(4):
            for k in range(2):
                for b in range(3):
                    d = D + 12*k + 4*b
                    B = f"v[{FR+16*g+8+4*b}:{FR+16*g+8+4*b+3}]" if b < 2 else f"v[{ONE}:{ONE+3}]"
                    mm.append(f"v_mfma_f32_16x16x32_bf16 v[{d}:{d+3}], v[{FR+16*g+4*k}:{FR+16*g+4*k+3}], {B}, {'0' if g == 0 else f'v[{d}:{d+3}]'}")
        a("s_waitcnt lgkmcnt(0)")
        for l in interleave(mm, ad[20:], 0, 16): a(l)
        def qmath(u):
            e = ACC + 8*u
            return self.phi_quad(e, e, TM) + self.phi_quad(e + 4, e + 2, TM + 4)
        q10 = qmath(10)
        for l in q10[:8]: a(l)
        for j in range(6): a(f"ds_write_b128 v{R+j}, v[{D+4*j}:{D+4*j+3}]")
        for l in q10[8:20]: a(l)
        a("s_waitcnt lgkmcnt(0)")
        for j in range(7): a(f"ds_read_b32 v{j}, v{vEx} offset:{256*j}")
        for l in q10[20:]: a(l)
        a("s_waitcnt lgkmcnt(0)")
        for j in range(7):
            if j == 6: a("s_mov_b32 exec_hi, 15")
            a(f"buffer_atomic_add_f32 v{j}, v{dc}, {WSR}, s{sRec} offen offset:{256*j} sc1")
        a("s_mov_b32 exec_hi, -1")
        a(f"s_add_u32 s{t}, s{sPq}, 4096")
        def qst(u):
            e = ACC + 8*(10 + u)
            a(f"buffer_store_dwordx4 v[{e}:{e+3}], v{vL}, {WSR}, s{sPq if u < 2 else t} offen offset:{2048*(u & 1)} sc1")
        qst(0)
        for u in (1, 2, 3):
            for l in qmath(10 + u): a(l)
            qst(u)
        a(f"v_mov_b32 v0, v{vLane}")
        self.stamp(3)
        self.finish1([sF1, sF2], strict=True)

    def setup2(self):
        a = self.a
        t = T0
        if MAP2 == "x2":
            a(f"s_bfe_u32 s{t+2}, s{sWG}, 0x20001\ns_bfe_u32 s{t+3}, s{sWG}, 0x30003\ns_lshl3_add_u32 s{sR64}, s{t+2}, s{t+3}")
            a(f"s_and_b32 s{t+2}, s{sWG}, 1\ns_lshr_b32 s{t+3}, s{sWG}, 6\ns_lshl2_add_u32 s{sC}, s{t+2}, s{t+3}")
        else:
            a(f"s_and_b32 s{t+2}, s{sWG}, 7\ns_bfe_u32 s{t+3}, s{sWG}, 0x20003\ns_lshl2_add_u32 s{sR64}, s{t+2}, s{t+3}\ns_lshr_b32 s{sC}, s{sWG}, 5")
        if FAKE == 1: a(f"s_and_b32 s{sR64}, s{sWG}, 7\ns_lshl_b32 s{sR64}, s{sR64}, 2\ns_mov_b32 s{sC}, 0")
        if FAKE == 2: a(f"s_mov_b32 s{sC}, 0")
        if FAKE == 3: a(f"s_and_b32 s{sR64}, s{sWG}, 7\ns_lshl_b32 s{sR64}, s{sR64}, 2")
        a(f"v_lshlrev_b32 v{vL16}, 4, v0\nv_add_u32 v{vL16b}, 4096, v{vL16}")
        if ROT2 == "none":
            a(f"s_mov_b32 s{t}, 0")
        elif ROT2 == "xor":
            a(f"s_lshr_b32 s{t}, s{sWG}, 3\ns_lshr_b32 s{t+1}, s{sWG}, 6\ns_xor_b32 s{t}, s{t}, s{t+1}\ns_and_b32 s{t}, s{t}, 1")
        elif ROT2 == "two":
            a(f"s_lshr_b32 s{t}, s{sWG}, 3\ns_lshr_b32 s{t+1}, s{sWG}, {6 if MAP2 == 'x2' else 5}\ns_xor_b32 s{t}, s{t}, s{t+1}\ns_and_b32 s{t}, s{t}, 1\ns_mul_i32 s{t}, s{t}, 3")
        elif MAP2 == "x2":
            a(f"s_and_b32 s{t}, s{sC}, 3\ns_mul_i32 s{t}, s{t}, 3\ns_lshr_b32 s{t}, s{t}, 1")
        else:
            a(f"s_mul_i32 s{t}, s{sC}, 3\ns_lshr_b32 s{t}, s{t}, 2")
        a(f"s_mul_i32 s{t+1}, s{sWAVE}, 6")
        a(f"s_mul_i32 s{t+2}, s{sC}, {48*5120}\ns_add_u32 s{t+2}, s{t+2}, {WS_W2R}")
        a(f"s_mul_i32 s{t+3}, s{sR64}, {48*4096}\ns_add_u32 s{t+3}, s{t+3}, {WS_ACT}")
        for i in range(6):
            a(f"s_add_u32 s{t+4}, s{t+1}, s{t}\ns_mul_i32 s{sB0+i}, s{t+4}, 5120\ns_add_u32 s{sB0+i}, s{sB0+i}, s{t+2}")
            a(f"s_lshl_b32 s{sA0+i}, s{t+4}, 12\ns_add_u32 s{sA0+i}, s{sA0+i}, s{t+3}")
            if i < 5 and ROT2 == "xor": a(f"s_xor_b32 s{t}, s{t}, {i ^ (i + 1)}")
            elif i < 5: a(f"s_add_u32 s{t}, s{t}, 1\ns_cmp_eq_u32 s{t}, 6\ns_cselect_b32 s{t}, 0, s{t}")
        a(f"s_lshl3_add_u32 s{sFa}, s{sR64}, s{sWAVE}\ns_lshl_b32 s{sFa}, s{sFa}, 7\ns_lshl_b32 s{sFq}, s{sR64}, 7\ns_add_u32 s{sFq}, s{sFq}, {CNT_PQ}")
        a(f"s_mul_i32 s{sPQb}, s{sR64}, 40\ns_mul_i32 s{t}, s{sWAVE}, 5\ns_add_u32 s{sPQb}, s{sPQb}, s{t}\ns_lshl_b32 s{sPQb}, s{sPQb}, 11\ns_add_u32 s{sPQb}, s{sPQb}, {WS_PQ}")
        a(f"s_lshl3_add_u32 s{sMb}, s{sC}, s{sWAVE}\ns_mul_i32 s{sMb}, s{sMb}, 12800\ns_add_u32 s{sMb}, s{sMb}, {WS_WOR}")
        a(f"s_mul_i32 s{sKv}, s{sWAVE}, 7168\ns_add_u32 s{sKv}, s{sKv}, {WS_KVP}\ns_lshl_b32 s{sFk}, s{sWAVE}, 9\ns_add_u32 s{sFk}, s{sFk}, {CNT_KV}")

    def preload_b(self, n0, n1, th=0):
        for n in range(n0, n1):
            if th and n < NTH: self.a(f"s_waitcnt vmcnt({th - 1})")
            i, jn = divmod(n, 5)
            d = BS + 20*i + 4*jn
            self.a(f"buffer_load_dwordx4 v[{d}:{d+3}], v{vL16 if jn < 4 else vL16b}, {WSR}, s{sB0+i} offen offset:{1024*jn if jn < 4 else 0} sc1")

    def stage_b(self):
        a = self.a
        t = T0
        a(f"s_mul_i32 s{t}, s{sT}, 20480\ns_add_u32 s{t}, s{t}, {BL}")
        for i in range(2, NB):
            a(f"s_sub_u32 s{t+1}, s{sB0+i}, 122880")
            for jn in range(5):
                if jn in (0, 4):
                    a(f"s_add_u32 m0, s{t}, {5120*(i-2) + 1024*jn}")
                    a(f"s_add_u32 s{t+1}, s{t+1}, 4096" if jn else "s_nop 0")
                if TH and NB*5 + 5*(i - 2) + jn < NTH: a(f"s_waitcnt vmcnt({TH - 1})")
                a(f"buffer_load_dwordx4 v{vL16}, {WSR}, s{t+1} offen offset:{1024*(jn % 4)} sc1 lds")
        a("s_waitcnt vmcnt(0)")

    def gemm2(self):
        a = self.a
        t = T0
        seq = []
        LN = 255
        def ldl(dst, n, v, so, off, tag):
            seq.append(tag)
            return [f"buffer_load_dword{ {1: '', 2: 'x2', 4: 'x4'}[n] } {vr(dst, n)}, v{v}, {WSR}, s{so} offen offset:{off} sc1"]
        def emit(L):
            for l in L: a(l)
        def wait(tag):
            last = max(n for n, x in enumerate(seq) if x == tag)
            a(f"s_waitcnt vmcnt({len(seq) - 1 - last})")
        def act(i):
            return sum((ldl(AB + 16*(i % 3) + 4*st, 4, vL16, sA0 + i, 1024*st, f"act{i}") for st in range(4)), [])
        def check(soff, target, sleep=None):
            ok = a.newlabel("L_ok")
            a(f"v_cmp_le_u32 vcc, {target}, v{vP+1}\ns_nop 1\ns_cmp_eq_u64 vcc, -1\ns_cbranch_scc1 {ok}")
            self.poll(soff, target, vP, vP + 1, sleep=sleep)
            a.label(ok)
        def dma(so, n, lds, tag):
            r = []
            for k in range(n):
                pre = ""
                if k % 4 == 0:
                    pre = f"s_add_u32 m0, s{sLB}, {lds + 1024*k}\n" + (f"s_add_u32 s{so}, s{so}, 4096\n" if k else "s_nop 0\n")
                r.append(pre + f"buffer_load_dwordx4 v{vL16}, {WSR}, s{so} offen offset:{1024*(k % 4)} sc1 lds"); seq.append(tag)
            return r
        def pq(base, sp):
            return sum((ldl(base + 20*sp + 4*tt, 4, vL16, (sPQb, t, t + 1)[tt >> 1], 2048*(tt & 1) + 1024*sp, f"pq{sp}") for tt in range(5)), [])
        def gld(va):
            return sum((ldl(vG + st, 1, va, t + 3, 64*st, "g") for st in range(4)), [])
        def lateb(i=5):
            if i < NB: return []
            r = sum((ldl(BS + 20*i + 4*jn, 4, vL16, sB0 + i, 1024*jn, f"act{i}") for jn in range(4)), [])
            return r + [f"s_add_u32 s{sB0+i}, s{sB0+i}, 4096"] + ldl(BS + 20*i + 16, 4, vL16, sB0 + i, 0, f"act{i}")
        chunks = [(0, 0), (0, 1), (1, 0), (1, 1), (1, 2), (2, 1), (2, 2), (2, 3), (3, 2), (3, 3), (4, 3), (3, 4), (4, 4)] + [("z", tt) for tt in range(5)]
        slot = dict(zip(chunks, [0, 1, 2, 3, 4, 7, 8, 9, 10, 11, 13, 14, 15, 16, 17, 18, 19, 20]))
        X, K0 = 24, 0
        ad = [f"v_and_b32 v{X}, 15, v{LN}", f"v_lshrrev_b32 v{X+1}, 4, v{LN}", f"s_add_u32 s{t+2}, s{sLB}, 13312", f"v_mul_u32_u24 v{X+3}, 336, v{X+1}", f"v_add_u32 v{X+3}, s{t+2}, v{X+3}",
              f"v_add_u32 v{X+18}, s{sLB}, v{vL16}", f"s_add_u32 s{t+2}, s{t+2}, 7056", f"v_mov_b32 v{X+13}, s{t+2}"] + [f"v_subrev_u32 v{X+13+k}, {1344*k}, v{X+13}" for k in range(1, 5)]
        for te in (0, 1, 2, 3, 4, "z"):
            if te == "z":
                ad += [f"v_and_b32 v{X+4}, 3, v{LN}", f"v_mul_u32_u24 v{X+5}, 112, v{X+4}", f"v_add_u32 v{X+6}, 320, v{X+3}", f"v_add_u32 v{X+5}, v{X+5}, v{X+6}"]
            else:
                ad += [f"v_add_u32 v{X+6}, {16*te}, v{X}", f"v_mul_u32_u24 v{X+4}, 3277, v{X+6}", f"v_lshrrev_b32 v{X+4}, 16, v{X+4}",
                       f"v_lshl_add_u32 v{X+6}, v{X+6}, 4, v{X+3}", f"v_mad_i32_i24 v{X+5}, v{X+4}, s{sN208}, v{X+6}"]
            ad += [f"v_mad_i32_i24 v{X+4}, v{X+4}, -5, v{X+1}"]
            mine = [(j, c) for j, c in enumerate(chunks) if c[0] == te]
            ad += [f"v_add_u32 v{X+8+n}, {4*c[1]}, v{X+4}" for n, (j, c) in enumerate(mine)]
            ad += [f"v_cmp_gt_u32 s[{t+4+2*n}:{t+5+2*n}], 5, v{X+8+n}" for n, (j, c) in enumerate(mine)]
            ad += ["s_nop 0"]
            ad += [f"v_cndmask_b32 v{K0+j}, v{X+13+c[1]}, v{X+5}, s[{t+4+2*n}:{t+5+2*n}]" for n, (j, c) in enumerate(mine)]
        mq = [t + 4, t + 6, t + 8]
        consts = [f"s_mov_b32 s{cE}, 0x358637bd", f"s_mov_b32 s{mq[0]}, 0xffff", f"s_mov_b32 s{mq[0]+1}, 0", f"s_mov_b32 s{mq[1]}, -1", f"s_mov_b32 s{mq[1]+1}, 0",
                  f"s_mov_b32 s{mq[2]}, -1", f"s_mov_b32 s{mq[2]+1}, 0xffff"]
        swaps = lambda R: [f"v_swap_b32 v{R+8*p+2+k}, v{R+8*p+4+k}" for p in range(2) for k in range(2)]
        K32 = lambda d, A, B, c: f"v_mfma_f32_16x16x32_bf16 v[{d}:{d+3}], v[{A}:{A+3}], v[{B}:{B+3}], {c}"
        K16 = lambda d, A, B: f"v_mfma_f32_16x16x16_bf16 v[{d}:{d+3}], v[{A}:{A+1}], v[{B}:{B+1}], v[{d}:{d+3}]"
        acc = lambda d: f"v[{d}:{d+3}]"
        def fqf(base):
            def fq(st, tt):
                R = base + 20*(st >> 1)
                return R + 8*(tt >> 1) + 4*(st & 1) + 2*(tt & 1) if tt < 4 else R + 16 + 2*(st & 1)
            return fq
        def gather(KAr, raw, KP, PQb, first):
            for j, c in enumerate(chunks):
                a(f"ds_read_b128 v[{raw(j)}:{raw(j)+3}], v{KAr+j} offset:{1344*c[1]}")
            emit(swaps(PQb) + swaps(PQb + 20))
            for j, c in enumerate(chunks):
                if j in (0, first): a(f"s_waitcnt lgkmcnt({18 - first if j == 0 else 0})")
                d, r = KP + 2*slot[c], raw(j)
                a(f"v_cvt_pk_bf16_f32 v{d}, v{r}, v{r+1}\nv_cvt_pk_bf16_f32 v{d+1}, v{r+2}, v{r+3}")
            for z in (5, 6, 12): a(f"v_mov_b32 v{KP+2*z}, 0\nv_mov_b32 v{KP+2*z+1}, 0")
        def scales(st, DN, SC):
            r = [f"v_add_f32 v{DN+k}, s{cE}, v{DN+k}" for k in range(4)] + [f"v_rcp_f32 v{DN+k}, v{DN+k}" for k in range(4)]
            r += [f"v_mul_f32 v{DN+k}, v{vG+st}, v{DN+k}" for k in range(4)]
            return r + [f"v_cndmask_b32 v{SC[k]}, v{DN+k+1}, v{DN+k}, s[{mq[k]}:{mq[k]+1}]" for k in range(3)]
        def vtile(st, tt, o, DN, SC, fq):
            sc = (DN, SC[0], SC[1], SC[2], DN + 3)[tt]
            return [f"v_mul_f32 v{o+k}, v{sc}, v{o+k}" for k in range(4)] + [f"v_cvt_pk_bf16_f32 v{fq(st,tt)}, v{o}, v{o+1}", f"v_cvt_pk_bf16_f32 v{fq(st,tt)+1}, v{o+2}, v{o+3}"]
        def mlp(i, zero, sts=None):
            order = [(jn, st) for jn in range(5) for st in range(4)] if sts is None else [(jn, st) for st in sts for jn in range(5)]
            return [K32(20*st + 4*jn, BS + 20*i + 4*jn, AB + 16*(i % 3) + 4*st, "0" if zero else acc(20*st + 4*jn)) for jn, st in order]
        TA, RA, vRW = 224, 170, vP
        rw = [f"v_and_b32 v{TA}, 15, v{LN}", f"v_mul_u32_u24 v{TA}, 160, v{TA}", f"v_bfe_u32 v{TA+1}, v{LN}, 5, 1", f"v_bfe_u32 v{vRW}, v{LN}, 2, 1", f"v_xor_b32 v{TA+1}, v{TA+1}, v{vRW}",
              f"v_lshl_add_u32 v{TA}, v{TA+1}, 4, v{TA}", f"v_bfe_u32 v{TA+1}, v{LN}, 4, 1", f"v_mul_u32_u24 v{TA+1}, 10240, v{TA+1}", f"v_add3_u32 v{vRW}, v{TA}, v{TA+1}, s{sLB}"]
        wrl = lambda st: [f"ds_write_b128 v{vRW}, v[{20*st+4*jn}:{20*st+4*jn+3}] offset:{2560*st + 32*jn}" for jn in range(5)]
        rd = [f"s_mul_i32 s{t}, s{sWAVE}, 80", f"v_add_u32 v{RA}, s{t}, v{LN}", f"v_add_u32 v{RA+1}, 64, v{RA}",
              f"s_lshl_b32 s{t+2}, s{sR64}, 8", f"s_add_u32 s{t+2}, s{t+2}, {WS_G + 8192}"]
        for k in range(2):
            rd += [f"v_mul_u32_u24 v{RA+2}, 6554, v{RA+k}", f"v_lshrrev_b32 v{RA+2}, 16, v{RA+2}", f"v_mad_i32_i24 v{RA+3}, v{RA+2}, -10, v{RA+k}", f"v_lshlrev_b32 v{TA+2+k}, 2, v{RA+2}",
                   f"buffer_load_dword v{TA+2+k}, v{TA+2+k}, {WSR}, s{t+2} offen sc1",
                   f"v_bfe_u32 v{RA+6}, v{RA+2}, 2, 1", f"v_xor_b32 v{RA+k}, v{RA+k}, v{RA+6}",
                   f"v_mul_u32_u24 v{RA+2}, 1280, v{RA+2}", f"v_lshl_add_u32 v{RA+4+k}, v{RA+3}, 4, v{RA+2}", f"v_lshlrev_b32 v{RA+k}, 4, v{RA+k}"]
        rd += [f"v_add_u32 v{RA+6}, 61440, v{RA}", f"v_add_u32 v{RA+7}, 61440, v{RA+1}", f"v_add_u32 v{RA+8}, 122880, v{RA}", f"v_add_u32 v{RA+9}, 122880, v{RA+1}"]
        rd += [f"s_mov_b32 s{SRD_M}, s{pOUT}", f"s_mov_b32 s{SRD_M+1}, s{pOUT+1}", f"s_mov_b32 s{SRD_M+2}, {2048*640*2}", f"s_mov_b32 s{SRD_M+3}, 0x20000",
               f"s_mul_i32 s{t}, s{sR64}, 81920", f"s_mul_i32 s{t+1}, s{sC}, 160", f"s_add_u32 s{t}, s{t}, s{t+1}"]
        def flagvec(vt, with_act):
            a(f"v_lshlrev_b32 v{vP}, 2, v{LN}\nv_add_u32 v{vP}, s{sFk}, v{vP}\nv_mov_b32 v{vt}, 1\nv_cmp_le_u32 vcc, 4, v{LN}\nv_mov_b32 v{vt+1}, s{sFq}\ns_add_u32 s{t+2}, s{sFa}, 8")
            a(f"v_cndmask_b32 v{vP}, v{vP}, v{vt+1}, vcc")
            if with_act:
                a(f"v_cmp_lt_u32 vcc, 4, v{LN}\nv_mov_b32 v{vt+1}, s{t+2}\ns_nop 0\nv_cndmask_b32 v{vP}, v{vP}, v{vt+1}, vcc\nv_cndmask_b32 v{vt}, v{vt}, 2, vcc")

        a(f"s_setprio 0\nv_lshrrev_b32 v{LN}, 4, v{vL16}")
        a(f"s_xor_b32 s{sLB}, s{sWAVE}, 4\ns_mul_i32 s{sLB}, s{sLB}, 20480\ns_mov_b32 s{sN208}, -208")
        a(f"s_lshl_b32 s{t+3}, s{sR64}, 8\ns_add_u32 s{t+3}, s{t+3}, {WS_G}\ns_add_u32 s{t}, s{sPQb}, 4096\ns_add_u32 s{t+1}, s{sPQb}, 8192")
        a(f"v_mov_b32 v{vP}, 0")
        if ADPRE: emit(ad)
        a("s_barrier")
        self.stamp(4)
        if WOPOS != "pre": a(f"buffer_load_dword v{vP+1}, v{vP}, {WSR}, s{sFa} offen sc1")
        self.pickup()
        if WOPOS == "pre":
            a("s_waitcnt lgkmcnt(0)")
            emit(dma(sMb, 13, 0, "wo"))
        if not ADPRE: emit(ad)
        a("s_waitcnt lgkmcnt(0)")
        for k in range(5): a(f"ds_write_b128 v{X+18}, v[{K0+4*k}:{K0+4*k+3}] offset:{13312 + 1024*k}")
        if WOPOS == "pre": self.poll(f"s{sFa}", 2, vP, vP + 1)
        else:
            a("s_waitcnt vmcnt(0)")
            check(f"s{sFa}", 2)
        self.stamp(6)
        PR = {"a": {-1: 3, 2: 2, 5: 1, 6: 0}, "b": {-1: 3, 1: 2, 3: 1, 6: 0}, "c": {-1: 1, 5: 0}, "d": {-1: 2, 5: 1, 7: 0}, "e": {-1: 3, 3: 2, 6: 1, 8: 0}}.get(PRIO, {})
        prio = lambda k: a(f"s_setprio {PR[k]}") if k in PR else None
        prio(-1)
        emit(act(0))
        a(f"v_lshlrev_b32 v{vP}, 7, v{LN}\nv_add_u32 v{vP}, s{sFk}, v{vP}\nv_cmp_le_u32 vcc, 4, v{LN}\nv_mov_b32 v{vG+1}, s{sFq}\nv_mov_b32 v{vG}, 16")
        a(f"v_cndmask_b32 v{vP}, v{vP}, v{vG+1}, vcc\nv_cndmask_b32 v{vG}, v{vG}, 25, vcc")
        fv = lambda: (a(f"buffer_load_dword v{vP+1}, v{vP}, {WSR}, 0 offen sc1"), seq.append("fv"))
        if FVAT < 0: fv()
        emit(act(1) + act(2))
        fill = (lambda: dma(sMb, 13, 0, "wo")) if WOPOS == "s0" else (lambda: lateb(3))
        for i in range(5):
            prio(i)
            wait(f"act{i}")
            emit(interleave(mlp(i, i == 0), fill() if fill else []))
            fill = None
            if i == 0 and WOPOS == "s1": fill = lambda: dma(sMb, 13, 0, "wo")
            if i == 3 and WOPOS == "s4": fill = lambda: dma(sMb, 13, 0, "wo")
            if i == FVAT: fv()
            if i < 2: emit(act(i + 3))
            if i == PQAT:
                wait("fv")
                check("0", f"v{vG}", 8)
                a(f"v_and_b32 v{vP+1}, 15, v{LN}\nv_lshlrev_b32 v{vP+1}, 2, v{vP+1}")
                f1 = lambda: lateb(4) + pq(PQR, 0) + pq(PQR, 1) + gld(vP + 1)
                if FILLI and i < 2: fill = f1
                else: emit(f1())
            if i == 2:
                a(f"v_add_u32 v{KA+19}, s{sLB}, v{vL16}")
                for k in range(5): a(f"ds_read_b128 v[{KA+4*k}:{KA+4*k+3}], v{KA+19} offset:{13312 + 1024*k}")
                a("s_waitcnt lgkmcnt(0)")
                f2 = lambda: dma(sKv, 7, 13312, "kv") + (act(5) + lateb() if WOPOS != "x" else []) + (dma(sMb, 13, 0, "wo") if WOPOS == "s3" else [])
                if FILLI: fill = f2
                else: emit(f2())
        self.stamp(7)
        prio(5)
        emit(consts)
        KP = 120
        wait("kv")
        self.stamp(8)
        gather(KA, lambda j: 200 + 4*j if j < 8 else 140 + 4*(j - 8), KP, PQR, 8)
        Oset = {1: ([200, 204, 208, 212, 216], 220), 0: ([162, 166, 170, 174, 224], 228)}
        SC = [178, 179, vP + 1]
        fq = fqf(PQR)
        S = lambda k: KP + 2*k
        def Xb(st):
            O, DN = Oset[st & 1]
            p0, p1, ps = fq(st, 0), fq(st, 2), fq(st, 4)
            return [K32(DN, S(16), p0, "0"), K32(O[3], S(10), p1, "0"), K32(O[4], S(12), p1, "0"), K32(DN, S(18), p1, acc(DN)),
                    K32(O[0], S(0), p0, "0"), K32(O[1], S(2), p0, "0"), K32(O[2], S(6), p0, "0"), K32(O[1], S(4), p1, acc(O[1])), K32(O[2], S(8), p1, acc(O[2])),
                    "s_nop 0", K16(DN, S(20), ps), K16(O[3], S(14), ps), K16(O[4], S(15), ps)]
        def Vb(st):
            O, DN = Oset[st & 1]
            return scales(st, DN, SC) + sum((vtile(st, tt, O[tt], DN, SC, fq) for tt in range(5)), [])
        def Yb(st):
            r = []
            for p in range(2):
                r += [K32(20*st + 4*jn, MR + 4*(2*jn + p), fq(st, 2*p), acc(20*st + 4*jn)) for jn in range(5)]
            return r + ["s_nop 1"] + [K16(20*st + 4*jn, MR + 40 + 2*jn, fq(st, 4)) for jn in range(5)]
        a("s_nop 1")
        late = (act(5) + lateb() + dma(sMb, 13, 0, "wo")) if WOPOS == "x" else []
        cuts = [0] + [len(late)*c//100 for c in XSPLIT] + [len(late)]
        emit(interleave(Xb(0), late[cuts[0]:cuts[1]]))
        for st in range(1, 4):
            x = Xb(st)
            emit(interleave(x[:6], late[cuts[st]:cuts[st+1]]) + interleave(x[6:], Vb(st - 1)))
        a(f"v_add_u32 v{TA}, s{sLB}, v{vL16}\nv_lshlrev_b32 v{TA+1}, 3, v{LN}\nv_add_u32 v{TA+1}, s{sLB}, v{TA+1}")
        wor = [f"ds_read_b128 v[{MR+4*f}:{MR+4*f+3}], v{TA} offset:{1024*f}" for f in range(10)]
        wor += [f"ds_read_b64 v[{MR+40+2*jn}:{MR+41+2*jn}], v{TA+1} offset:{10240 + 512*jn}" for jn in range(5)]
        prio(6)
        if WOPOS in ("s3", "s4", "x"):
            wait("act5")
            emit(interleave(mlp(5, False), Vb(3)))
            a("s_waitcnt vmcnt(0)")
            emit(wor + rw)
        else:
            emit(wor)
            wait("act5")
            emit(interleave(mlp(5, False), Vb(3) + rw))
        a("s_waitcnt lgkmcnt(0)")
        emit(interleave(Yb(0), rd[:25]))
        prio(7)
        emit(interleave(Yb(1), rd[25:] + wrl(0), 2))
        prio(8)
        emit(interleave(Yb(2), wrl(1), 6))
        emit(interleave(Yb(3), wrl(2), 6))
        a("s_nop 4")
        emit(wrl(3))
        a("s_waitcnt lgkmcnt(0)\ns_barrier")
        self.stamp(9)
        if RED == 0:
            for k in range(2):
                if k == 1: a("s_mov_b64 exec, 0xffff")
                R = 64*k
                for w in range(8):
                    for par in range(2):
                        base = [RA + k, RA + 6 + k, RA + 8 + k][w // 3]
                        a(f"ds_read_b128 v[{R+8*w+4*par}:{R+8*w+4*par+3}], v{base} offset:{20480*(w % 3) + 10240*par}")
            a("s_mov_b64 exec, -1")
            for k in range(2):
                R = 64*k
                a(f"s_waitcnt lgkmcnt({15 if k == 0 else 0})")
                for pairs in (((0, 4), (1, 5), (2, 6), (3, 7)), ((0, 2), (1, 3)), ((0, 1),)):
                    for x, y in pairs:
                        for j in range(4):
                            a(f"v_pk_add_f32 v[{R+8*x+2*j}:{R+8*x+2*j+1}], v[{R+8*x+2*j}:{R+8*x+2*j+1}], v[{R+8*y+2*j}:{R+8*y+2*j+1}]")
                if k == 0: a("s_waitcnt vmcnt(0)")
                for j in range(8): a(f"v_mul_f32 v{R+j}, v{TA+2+k}, v{R+j}")
                for j in range(4): a(f"v_cvt_pk_bf16_f32 v{R+j}, v{R+2*j}, v{R+2*j+1}")
                if k == 1: a("s_mov_b64 exec, 0xffff")
                a(f"buffer_store_dwordx4 v[{R}:{R+3}], v{RA+4+k}, s[{SRD_M}:{SRD_M+3}], s{t} offen {OUTFL}")
            a("s_mov_b64 exec, -1")


        else:
            items = [(k, w) for k in range(2) for w in range(8)]
            def rdp(n):
                k, w = items[n]
                base = [RA + k, RA + 6 + k, RA + 8 + k][w // 3]
                r = [f"ds_read_b128 v[{8*n+4*par}:{8*n+4*par+3}], v{base} offset:{20480*(w % 3) + 10240*par}" for par in range(2)]
                return r if k == 0 else ["s_mov_b64 exec, 0xffff"] + r + ["s_mov_b64 exec, -1"]
            AH = 6
            for n in range(AH): emit(rdp(n))
            for n, (k, w) in enumerate(items):
                if n + AH < 16: emit(rdp(n + AH))
                if w == 0: continue
                a(f"s_waitcnt lgkmcnt({2*min(AH, 15 - n)})")
                R = 64*k
                for j in range(4):
                    a(f"v_pk_add_f32 v[{R+2*j}:{R+2*j+1}], v[{R+2*j}:{R+2*j+1}], v[{8*n+2*j}:{8*n+2*j+1}]")
                if w == 7:
                    if k == 0: a("s_waitcnt vmcnt(0)")
                    for j in range(8): a(f"v_mul_f32 v{R+j}, v{TA+2+k}, v{R+j}")
                    for j in range(4): a(f"v_cvt_pk_bf16_f32 v{R+j}, v{R+2*j}, v{R+2*j+1}")
                    if k == 1: a("s_mov_b64 exec, 0xffff")
                    a(f"buffer_store_dwordx4 v[{R}:{R+3}], v{RA+4+k}, s[{SRD_M}:{SRD_M+3}], s{t} offen {OUTFL}")
            a("s_mov_b64 exec, -1")


def descriptor(name):
    return f""".p2align 6
.amdhsa_kernel {name}
  .amdhsa_next_free_vgpr 256
  .amdhsa_next_free_sgpr 102
  .amdhsa_accum_offset 256
  .amdhsa_group_segment_fixed_size 0
  .amdhsa_kernarg_size 88
  .amdhsa_user_sgpr_count 2
  .amdhsa_user_sgpr_kernarg_segment_ptr 1
  .amdhsa_system_sgpr_workgroup_id_x 1
.end_amdhsa_kernel
"""

def build(stamps):
    g = Gen(stamps=stamps)
    a = g.a
    K = NAME + "_kernel"
    hdr = open(os.path.join(os.path.dirname(os.path.abspath(__file__)), "header.txt")).read()
    for l in hdr.strip().split("\n"): a.lines.append(l)
    a(f"; @launch grid=(256,1,1) block=(512,1,1) lds={LDS_TOTAL}")
    a('.amdgcn_target "amdgcn-amd-amdhsa--gfx950"\n.text')
    a(f".globl {K}\n.p2align 8\n.type {K},@function")
    a.label(K)
    g.common_prologue("L_end")
    a(f"s_cmp_lt_u32 s{sWAVE}, 4\ns_cbranch_scc1 L_comp")
    g.loader1()
    a(f"s_setprio {LPRIO}")
    if not NE16:
        g.setup2()
        g.srd(SRD_WS, pWS, WS_SIZE)
    g.preload_b(NE16, NL0)
    if K1LDS: a(f"v_mov_b32 v6, {K1C}\nv_mov_b32 v7, 0\nds_write_b32 v6, v7\ns_waitcnt lgkmcnt(0)")
    a("s_barrier")
    if SKEW: a(f"v_mov_b32 v6, {HINT}\nv_mov_b32 v8, 0\nv_mov_b32 v9, 0\nv_mov_b32 v10, 0\nv_mov_b32 v11, 0\nds_write_b128 v6, v[8:11]\ns_waitcnt lgkmcnt(0)")
    g.preload_b(NL0, NL1, TH)
    if not K1LDS: a(f"s_cmp_lg_u32 s{sTYPE}, 0\ns_cbranch_scc1 L_l2\ns_barrier")
    a.label("L_l2")
    if DIAG != 3: g.preload_b(NL1, 5*NB, TH)
    if BLDS and DIAG != 3: g.stage_b()
    g.stamp(3)
    a.label("L_g2")
    g.gemm2()
    g.dump_stamps()
    a.label("L_end")
    a("s_endpgm")
    a.label("L_comp")
    a(f"s_cmp_eq_u32 s{sTYPE}, 0\ns_cbranch_scc1 L_kv")
    g.compute_P(); a("s_branch L_g2")
    a.label("L_kv")
    g.compute_KV(); a("s_branch L_g2")
    a.label("L_code_end")
    errs = lint(a.lines)
    for e in errs: print("HAZARD:", e, file=sys.stderr)
    return a.text() + '.section .rodata,"a"\n' + descriptor(K)

if __name__ == "__main__":
    open(sys.argv[1], "w").write(build(sys.argv[2] if len(sys.argv) > 2 else False))
```

```python
import sys, os, re
sys.path.insert(0, os.path.dirname(os.path.abspath(__file__)))
from asmlib import *

NAME = "gated_mix__linear_attn_block__dense_activation_mish__prompt"
ENV = os.environ.get

CNT_ACT, CNT_PQ, CNT_KV = 0, 256*128, 288*128
DONE_KV, DONE_PQ = 320*128, 328*128
WS_G = 0x10000
WS_KVP = 0x100000
WS_WOR = 0x200000
WS_W2R = 0x300000
WS_PQ = 0x500000
WS_ACT = 0x800000
WS_SIZE = 0x1000000
WS_STAMP = 0x8000000
BIG = 0x20000000
DBGW = int(ENV("DBGW", "0"))
ROTMODE = ENV("ROT", "two")
ROT2 = ENV("ROT2", "two")
NPRE = int(ENV("NPRE", "10"))
SPIN = int(ENV("SPIN", str(0x100000)))
WOAT = 3
ADPRE = int(ENV("ADPRE", "1"))
KVAT = int(ENV("KVAT", "-1"))
GSYNC = int(ENV("GSYNC", "0"))
PF = int(ENV("PF", "0"))
RS = int(ENV("RS", "3"))
S1AT = int(ENV("S1AT", "8"))
S1SLEEP = int(ENV("S1SLEEP", "2"))
LOOPDBG = int(ENV("LOOPDBG", "0"))
CPF = int(ENV("CPF", "1"))
RD = int(ENV("RD", "-1"))
SKEW = int(ENV("SKEW", "0"))
HINT = 3*20480 + 12800
TAILDBG = int(ENV("TAILDBG", "0"))
OUTFL = ENV("OUTFL", "").replace("_", " ")
LFLAG = 0
FAKE = int(ENV("FAKE", "0"))
SPLIT = int(ENV("SPLIT", "1"))
YSLEEP = int(ENV("YSLEEP", "8"))
PQAT = int(ENV("PQAT", "1"))
FILLI = int(ENV("FILLI", "1"))
FIRST0 = int(ENV("FIRST0", "0"))
PRIO = ENV("PRIO", "c")
LOOK = ENV("LOOK", "xw")
GBR = int(ENV("GBR", "0"))
STPRIO = int(ENV("STPRIO", "1"))
NRE = int(ENV("NRE", "20"))
SPREAD = int(ENV("SPREAD", "0"))
NE16 = int(ENV("NE16", "0"))
NL1 = int(ENV("NL1", "16"))
K1LDS = int(ENV("K1LDS", "1"))
K1C = 40960 + 2032
FVAT = int(ENV("FVAT", "0"))
WOPOS = ENV("WOPOS", "x")
RED = int(ENV("RED", "1"))
DIAG = int(ENV("DIAG", "0"))
LPRIO = int(ENV("LPRIO", "0"))
EPRIO = int(ENV("EPRIO", "0"))
TH = int(ENV("TH", "4"))
EARLYQ = int(ENV("EARLYQ", "0"))
NB = int(ENV("NB", "5"))
NTH = int(ENV("NTH", "36"))
XSPLIT = [int(v) for v in ENV("XSPLIT", "30,55,80").split(",")]
LRP = int(ENV("LRP", "0"))
MBOX = 161792
PICK = int(ENV("PICK", "0"))
SLEEP = int(ENV("SLEEP", "8"))
BLDS = int(ENV("BLDS", "1"))
NL0 = int(ENV("NL0", "13"))
MAP2 = ENV("MAP2", "x2")
TOUCH = int(ENV("TOUCH", "0"))
MSDBG = int(ENV("MSDBG", "0"))
MSPRIO = int(ENV("MSPRIO", "1"))
MSPRIO2 = int(ENV("MSPRIO2", "1"))

XR = 0
STG = 40960
WR = 49152
WSLOT = 14336
NS = 6
GATE = WR + NS * WSLOT
SCR = GATE + 2048
MS = WR
BL = WR + 32768
BLF = STG + 2040
LDS_TOTAL = 163840

sWG = 2
pX, pWQKV, pWO, pW1, pB1, pW2, pGATE, pOUT, pDBG, pWS = 4, 6, 8, 12, 14, 16, 18, 20, 22, 24
sWAVE, sRB, sHALF, sCBL, sGRP, sF1, sROT, sPIDX, sTYPE, sT = 26, 27, 28, 29, 30, 31, 32, 33, 34, 35
SRD_WS, SRD_X, SRD_W, SRD_M, SRD_D = 36, 40, 44, 52, 56
T0 = 60
sST = 76
cL2E, cC, cE = 96, 98, 100
sR64, sC = 27, 28
sB0, sA0 = 40, 46
sPQb, sMb, sKv, sFk = 0, 1, 3, 29
sFa, sFq = 10, 11
BS, AB = 80, 200
PQR, MR, KA, KD = 80, 120, 120, 176
sLB, sN208 = 30, 31
vG, vP, vL16, vL16b = 248, 252, 254, 255
WSR = f"s[{SRD_WS}:{SRD_WS+3}]"


class Gen:
    def __init__(self, stamps=False):
        self.a = Asm()
        self.stamps = stamps

    def stamp(self, k, loop=False):
        if loop == "tail":
            if not TAILDBG: return
        elif TAILDBG and 1 <= k <= 7 and not (TAILDBG == 2 and k == 6): return
        elif LOOPDBG and k >= 3 and not loop: return
        elif loop and not LOOPDBG: return
        if self.stamps and not (self.stamps == "dbg" and k == 9):
            if k < 2 and self.stamps != "dbg" and loop != "tail":
                self.a(f"s_memtime s[58:59]\ns_waitcnt lgkmcnt(0)\ns_mov_b32 s{sST+2*k}, s58")
            else:
                self.a(f"s_memtime s[{sST+2*k}:{sST+2*k+1}]")

    def srd(self, d, ptr, size, add=None):
        a = self.a
        if add is None:
            a(f"s_mov_b32 s{d}, s{ptr}\ns_mov_b32 s{d+1}, s{ptr+1}")
        else:
            a(f"s_add_u32 s{d}, s{ptr}, {add}\ns_addc_u32 s{d+1}, s{ptr+1}, 0")
        a(f"s_mov_b32 s{d+2}, {size}\ns_mov_b32 s{d+3}, 0x20000")

    def signal(self, soff, v, off=0):
        self.a(f"v_mov_b32 v{v}, 1\nv_mov_b32 v{v+1}, 0\ns_mov_b64 exec, 1\nbuffer_atomic_add v{v}, v{v+1}, {WSR}, s{soff} offen offset:{off} sc1\ns_mov_b64 exec, -1")

    def arrive(self, soff, v):
        self.a(f"v_mov_b32 v{v}, 1\nv_mov_b32 v{v+1}, 0\ns_mov_b64 exec, 1\nbuffer_atomic_add v{v}, v{v+1}, {WSR}, s{soff} offen sc0 sc1\ns_mov_b64 exec, -1")

    def raise_if_last(self, v, last, soff):
        a = self.a
        sk = a.newlabel("L_last")
        a(f"v_readfirstlane_b32 s{T0+14}, v{v}\nv_mov_b32 v{v}, 1\nv_mov_b32 v{v+1}, 0\ns_cmp_lg_u32 s{T0+14}, {last}\ns_cbranch_scc1 {sk}")
        a(f"s_mov_b64 exec, 1\nbuffer_store_dword v{v}, v{v+1}, {WSR}, s{soff} offen sc1\ns_mov_b64 exec, -1")
        a.label(sk)

    def poll(self, soff, target, va, vd, srd=SRD_WS, sleep=None):
        a = self.a
        t = T0 + 15
        loop, done = a.newlabel("L_poll"), a.newlabel("L_polld")
        a(f"s_mov_b32 s{t}, 0")
        a.label(loop)
        a(f"buffer_load_dword v{vd}, v{va}, s[{srd}:{srd+3}], {soff} offen sc1\ns_waitcnt vmcnt(0)")
        a(f"v_cmp_le_u32 vcc, {target}, v{vd}\ns_add_u32 s{t}, s{t}, 1\ns_nop 0")
        a(f"s_cmp_eq_u64 vcc, -1\ns_cbranch_scc1 {done}")
        a(f"s_sleep {SLEEP if sleep is None else sleep}\ns_cmp_lt_u32 s{t}, {SPIN}\ns_cbranch_scc1 {loop}")
        a.label(done)

    def dump_stamps(self):
        if not self.stamps:
            return
        a = self.a
        a("s_waitcnt vmcnt(0) lgkmcnt(0)")
        a(f"s_memrealtime s[{T0}:{T0+1}]\ns_memtime s[{T0+2}:{T0+3}]")
        if self.stamps == "dbg":
            self.srd(SRD_M, pDBG, 256)
            a("s_waitcnt lgkmcnt(0)\nv_mov_b32 v2, 0\ns_mov_b64 exec, 1")
            sk = a.newlabel("L_dbg")
            a(f"s_lshl_b32 s{T0+5}, s{sWG}, 3\ns_add_u32 s{T0+5}, s{T0+5}, s{sWAVE}\ns_cmp_lg_u32 s{T0+5}, {DBGW}\ns_cbranch_scc1 {sk}")
            for k in range(1, 10):
                a(f"s_sub_u32 s{T0+5}, s{sST+2*k}, s{sST}\nv_mov_b32 v{3+k}, s{T0+5}")
            a(f"s_sub_u32 s{T0+5}, s{T0+2}, s{sST}\nv_mov_b32 v13, s{T0+5}\ns_sub_u32 s{T0+5}, s{T0}, s94\nv_mov_b32 v14, s{T0+5}\nv_mov_b32 v15, s94")
            for k in range(3):
                a(f"buffer_store_dwordx4 v[{4+4*k}:{7+4*k}], v2, s[{SRD_M}:{SRD_M+3}], 0 offen offset:{16+16*k}")
            a.label(sk)
            a("s_waitcnt vmcnt(0)")
            return
        a(f"s_getreg_b32 s{T0+4}, hwreg(HW_REG_XCC_ID)")
        self.srd(SRD_M, pWS, 0x10000000)
        a("s_waitcnt lgkmcnt(0)")
        for k in range(10):
            a(f"v_mov_b32 v{k}, s{sST+2*k}")
        a(f"v_mov_b32 v10, s{T0}\nv_mov_b32 v11, s{T0+2}\nv_mov_b32 v12, s{T0+4}\nv_mov_b32 v13, s{sTYPE}\nv_mov_b32 v14, s77\nv_mov_b32 v15, s79")
        a(f"s_lshl_b32 s{T0+5}, s{sWG}, 3\ns_add_u32 s{T0+5}, s{T0+5}, s{sWAVE}\ns_lshl_b32 s{T0+5}, s{T0+5}, 6\ns_add_u32 s{T0+5}, s{T0+5}, {WS_STAMP}")
        a("v_mov_b32 v16, 0\ns_mov_b64 exec, 1")
        for k in range(4):
            a(f"buffer_store_dwordx4 v[{4*k}:{4*k+3}], v16, s[{SRD_M}:{SRD_M+3}], s{T0+5} offen offset:{16*k}")
        a("s_waitcnt vmcnt(0)")

    def common_prologue(self, endlabel):
        a = self.a
        t = T0
        a(f"s_cmp_ge_u32 s{sWG}, 256\ns_cbranch_scc1 {endlabel}")
        a("s_load_dwordx16 s[4:19], s[0:1], 0\ns_load_dwordx4 s[20:23], s[0:1], 64\ns_load_dwordx2 s[24:25], s[0:1], 80")
        if self.stamps:
            for k in range(10): a(f"s_mov_b32 s{sST+2*k}, 0")
            if self.stamps == "dbg": a("s_memrealtime s[94:95]")
            else: a("s_memrealtime s[56:57]\ns_memtime s[58:59]\ns_waitcnt lgkmcnt(0)\ns_mov_b32 s77, s56\ns_mov_b32 s79, s58")
        if CPF:
            sk = a.newlabel("L_cpf")
            a(f"s_getpc_b64 s[{t}:{t+1}]\nL_pc0:\ns_lshr_b32 s{t+2}, s{sWG}, 3\ns_lshl_b32 s{t+2}, s{t+2}, 11\nv_lshlrev_b32 v2, 4, v0\nv_add_u32 v2, s{t+2}, v2")
            a(f"v_cmp_gt_u32 vcc, 128, v0\nv_min_u32 v2, L_code_end-L_pc0-16, v2\ns_and_saveexec_b64 s[{t+4}:{t+5}], vcc\ns_cbranch_execz {sk}")
            a(f"global_load_dwordx4 v[248:251], v2, s[{t}:{t+1}]")
            a.label(sk)
            a(f"s_mov_b64 exec, s[{t+4}:{t+5}]")
        a("v_lshrrev_b32 v1, 6, v0\nv_and_b32 v0, 63, v0")
        a(f"v_readfirstlane_b32 s{sWAVE}, v1")
        a(f"s_bfe_u32 s{t+2}, s{sWG}, 0x20001\ns_bfe_u32 s{t+3}, s{sWG}, 0x20003")
        a(f"s_lshl2_add_u32 s{sRB}, s{t+2}, s{t+3}\ns_and_b32 s{sHALF}, s{sWG}, 1\ns_lshr_b32 s{sCBL}, s{sWG}, 5")
        a(f"s_and_b32 s{t}, s{sCBL}, 3\ns_lshl2_add_u32 s{sGRP}, s{sHALF}, s{t}\ns_lshr_b32 s{sTYPE}, s{sCBL}, 2")
        if ROTMODE == "full":
            a(f"s_mul_i32 s{t+4}, s{t+3}, 5\ns_add_u32 s{t+4}, s{t+4}, 1\ns_lshr_b32 s{t+4}, s{t+4}, 1")
            a(f"s_add_u32 s{t+4}, s{t+4}, s{sCBL}\ns_add_u32 s{t+4}, s{t+4}, s{t+2}")
            a(f"s_mul_i32 s{t+5}, s{sHALF}, 5\ns_add_u32 s{sROT}, s{t+4}, s{t+5}")
            for _ in range(2):
                a(f"s_sub_u32 s{t+4}, s{sROT}, 10\ns_cmp_ge_u32 s{sROT}, 10\ns_cselect_b32 s{sROT}, s{t+4}, s{sROT}")
        elif ROTMODE == "none":
            a(f"s_mov_b32 s{sROT}, 0")
        elif ROTMODE == "xcd":
            a(f"s_mul_i32 s{t+4}, s{t+2}, 5\ns_add_u32 s{t+4}, s{t+4}, 1\ns_lshr_b32 s{t+4}, s{t+4}, 1\ns_add_u32 s{sROT}, s{t+4}, s{sHALF}")
        elif ROTMODE == "two0":
            a(f"s_add_u32 s{t+4}, s{t+3}, s{sCBL}\ns_and_b32 s{t+4}, s{t+4}, 1\ns_mul_i32 s{sROT}, s{t+4}, 5")
        elif ROTMODE == "two1":
            a(f"s_add_u32 s{t+4}, s{t+3}, s{sCBL}\ns_and_b32 s{t+4}, s{t+4}, 1\ns_mul_i32 s{t+4}, s{t+4}, 5\ns_and_b32 s{t+5}, s{t+2}, 1\ns_lshl1_add_u32 s{sROT}, s{t+5}, s{t+4}")
        elif ROTMODE == "two":
            a(f"s_add_u32 s{t+4}, s{t+3}, s{sCBL}\ns_and_b32 s{t+4}, s{t+4}, 1\ns_mul_i32 s{t+4}, s{t+4}, 5")
            a(f"s_add_u32 s{t+4}, s{t+4}, s{t+2}\ns_add_u32 s{sROT}, s{t+4}, s{sHALF}")

    def loader1(self):
        a = self.a
        t = T0
        sLW = sT
        vXE, vXO, vW, vGt = 2, 3, 4, 8
        sStr, sCol, sA32, sA64, sOff, sXo, sWB, sWB2, sXB, sXP, sSel = 48, 49, 50, 51, t+4, t+5, t+6, t+7, t+8, t+9, t+10
        sKind = 72
        a(f"s_setprio 2\ns_sub_u32 s{sLW}, s{sWAVE}, 4")
        a("v_lshrrev_b32 v10, 3, v0\nv_and_b32 v11, 7, v0\nv_lshrrev_b32 v12, 4, v0\nv_mul_u32_u24 v13, 1280, v10\nv_xor_b32 v14, v11, v12")
        a(f"s_and_b32 s{t}, s{sLW}, 1\ns_lshl_b32 s{t}, s{t}, 6")
        a(f"v_lshl_add_u32 v13, v14, 4, v13\nv_xor_b32 v{vXE}, s{t}, v13\nv_xor_b32 v{vXO}, 64, v{vXE}")
        if FIRST0: a(f"s_mov_b32 s{sA32}, 0\ns_mov_b32 s{sA64}, 0\ns_min_u32 s{sROT}, s{sROT}, 8")
        else: a(f"s_lshl_b32 s{sA32}, s{sROT}, 1\ns_mov_b32 s{sA64}, s{sROT}")
        a(f"s_mul_i32 s{sXB}, s{sLW}, 3072\ns_mul_i32 s{sXP}, s{sLW}, 30720")
        for k in range(6, 10): a(f"v_mov_b32 v{k}, {BIG}")
        lKV, lQH, lLN, lJ = a.newlabel("L_wkv"), a.newlabel("L_wqh"), a.newlabel("L_wln"), a.newlabel("L_wj")
        a(f"s_cmp_eq_u32 s{sTYPE}, 0\ns_cbranch_scc1 {lKV}")
        a(f"s_cmp_eq_u32 s{sLW}, 3\ns_cbranch_scc1 {lQH}")
        a(f"s_mov_b32 s{sSel}, 1\ns_mov_b32 s{sStr}, 3072\ns_mul_i32 s{sCol}, s{sGRP}, 3\ns_add_u32 s{sCol}, s{sCol}, s{sLW}\ns_lshl_b32 s{sCol}, s{sCol}, 7\ns_lshl_b32 s{sWB}, s{sLW}, 12")
        a.label(lLN)
        a(f"v_and_b32 v13, 4, v10\nv_add_u32 v13, v13, v10\nv_mul_u32_u24 v13, s{sStr}, v13\nv_lshlrev_b32 v12, 1, v12\nv_xor_b32 v12, v11, v12\nv_lshl_add_u32 v{vW}, v12, 4, v13")
        a(f"s_lshl_b32 s{t}, s{sStr}, 4\ns_lshl_b32 s{t+1}, s{sStr}, 2\nv_add_u32 v{vW+1}, s{t}, v{vW}\nv_add_u32 v{vW+2}, s{t+1}, v{vW}\nv_add_u32 v{vW+3}, s{t}, v{vW+2}")
        a(f"s_branch {lJ}")
        a.label(lQH)
        a(f"s_mov_b32 s{sSel}, 0\ns_mov_b32 s{sStr}, 3840\ns_lshl_b32 s{sCol}, s{sHALF}, 1\ns_add_u32 s{sCol}, s{sCol}, s{sCBL}\ns_add_u32 s{sCol}, s{sCol}, 12\ns_lshl_b32 s{sCol}, s{sCol}, 6")
        a(f"s_cmp_lt_u32 s{sCBL}, 6\ns_cselect_b32 s{sCol}, s{sCol}, {BIG}\ns_mov_b32 s{sWB}, 12288\ns_mov_b32 s{sWB2}, 13312")
        a(f"v_lshrrev_b32 v10, 2, v0\nv_and_b32 v13, 12, v10\nv_add_u32 v13, v13, v10\nv_mul_u32_u24 v13, 3840, v13\nv_and_b32 v11, 3, v0\nv_and_b32 v12, 1, v12\nv_lshlrev_b32 v12, 1, v12\nv_xor_b32 v12, v11, v12")
        a(f"v_lshl_add_u32 v{vW}, v12, 4, v13\nv_add_u32 v{vW+1}, 15360, v{vW}")
        a(f"s_lshl_b32 s{t}, s{sROT}, 3\nv_mov_b32 v14, {BIG}")
        for j in range(2):
            if FIRST0:
                a(f"v_add_u32 v10, {64*j}, v0\nv_add_u32 v11, s{t}, v10\nv_subrev_u32 v12, 72, v11\nv_cmp_gt_u32 vcc, 80, v11\ns_nop 1\nv_cndmask_b32 v11, v12, v11, vcc\nv_cmp_gt_u32 vcc, 8, v10\ns_nop 1\nv_cndmask_b32 v11, v11, v10, vcc")
                a(f"v_cmp_gt_u32 vcc, 80, v10\nv_lshlrev_b32 v11, 4, v11\ns_nop 0\nv_cndmask_b32 v{vGt+j}, v14, v11, vcc")
            else:
                a(f"v_add_u32 v10, {64*j}, v0\nv_add_u32 v11, s{t}, v10\nv_cmp_gt_u32 vcc, 80, v10\nv_subrev_u32 v12, 80, v11\nv_min_u32 v11, v11, v12\nv_lshlrev_b32 v11, 4, v11\nv_cndmask_b32 v{vGt+j}, v14, v11, vcc")
        a(f"s_branch {lJ}")
        a.label(lKV)
        a(f"s_mov_b32 s{sSel}, 0\ns_mov_b32 s{sStr}, 3840\ns_mul_i32 s{sWB}, s{sLW}, 5120\ns_lshl_b32 s{sCol}, s{sGRP}, 7")
        a(f"s_cmp_eq_u32 s{sLW}, 2\ns_cbranch_scc1 {lLN}")
        a(f"s_mul_i32 s{sCol}, s{sGRP}, 160\ns_cmp_eq_u32 s{sLW}, 1\ns_cselect_b32 s{t}, 2560, 1280\ns_add_u32 s{sCol}, s{sCol}, s{t}")
        a(f"s_cmp_eq_u32 s{sLW}, 3\ns_cselect_b32 s{t}, 256, 0\ns_cselect_b32 s{sWB}, 4096, s{sWB}\ns_mov_b32 s{sWB2}, 9216")
        a(f"v_add_u32 v14, s{t}, v0")
        for j in range(4):
            a(f"v_add_u32 v10, {64*j}, v14\nv_mul_u32_u24 v11, 6554, v10\nv_lshrrev_b32 v11, 16, v11\nv_mad_i32_i24 v10, v11, -10, v10")
            a("v_and_b32 v12, 12, v11\nv_and_b32 v13, 3, v11\nv_lshl_or_b32 v12, v12, 1, v13\nv_bfe_u32 v13, v11, 4, 1\nv_lshl_or_b32 v12, v13, 2, v12")
            a(f"v_mul_u32_u24 v12, 3840, v12\nv_lshl_add_u32 v{vW+j}, v10, 4, v12")
            if j == 0:
                a(f"v_add_u32 v{vW+1}, 1280, v{vW}\ns_cmp_eq_u32 s{sLW}, 3\ns_cbranch_scc1 {lJ}")
        a.label(lJ)
        a(f"s_lshl_b32 s{sStr}, s{sStr}, 5\ns_mul_i32 s{t}, s{sRB}, 163840")
        a("s_waitcnt lgkmcnt(0)")
        self.stamp(0)
        self.srd(SRD_X, pX, 163840, add=f"s{t}")
        a(f"s_cmp_eq_u32 s{sSel}, 0\ns_cselect_b32 s{SRD_W}, s{pWQKV}, s{pW1}\ns_cselect_b32 s{SRD_W+1}, s{pWQKV+1}, s{pW1+1}\ns_cselect_b32 s{SRD_W+2}, {640*1920*2}, {640*1536*2}\ns_mov_b32 s{SRD_W+3}, 0x20000")
        lab3, lab4, labj = a.newlabel("L_ld3"), a.newlabel("L_ld4"), a.newlabel("L_ldj")
        lab0k, lab3k = a.newlabel("L_ld0k"), a.newlabel("L_ld3k")
        a(f"s_cmp_eq_u32 s{sLW}, 3\ns_cbranch_scc1 {lab3}")
        for variant, rp in (((0, 1), (0, 0), (3, 1), (3, 0), (4, 1)) if LRP else ((0, 0), (3, 0), (4, 0))):
            if LRP and (variant, rp) == (0, 1): a(f"s_cmp_eq_u32 s{sTYPE}, 0\ns_cbranch_scc1 {lab0k}")
            if LRP and (variant, rp) == (0, 0): a.label(lab0k)
            if LRP and (variant, rp) == (3, 0): a.label(lab3k)
            if variant == 3 and (rp or not LRP):
                a.label(lab3)
                a(f"s_cmp_ge_u32 s{sCBL}, 6\ns_cbranch_scc1 {lab4}")
                if LRP: a(f"s_cmp_eq_u32 s{sTYPE}, 0\ns_cbranch_scc1 {lab3k}")
            if variant == 4:
                a.label(lab4)
            nW = {0: 4, 3: 2, 4: 0}[variant]
            nX = 3 if variant == 0 else 7
            seq = []
            def issue_W(i):
                if nW == 0: return
                a(f"s_mul_i32 s{sOff}, s{sA32}, s{sStr}")
                for j in range(nW):
                    base, off = (sWB, 1024*j) if variant == 0 else ((sWB, sWB2)[j], 0)
                    a(f"s_add_u32 m0, s{base}, {WR + (i % NS)*WSLOT + off}")
                    a(f"s_add_u32 s{sOff}, s{sOff}, s{sCol}" if j == 0 else "s_nop 0")
                    a(f"buffer_load_dwordx4 v{vW+j}, s[{SRD_W}:{SRD_W+3}], s{sOff} offen lds")
                    seq.append(("W", i))
                if FIRST0 and i == 1: a(f"s_lshl1_add_u32 s{sA32}, s{sROT}, 2")
                else: a(f"s_add_u32 s{sA32}, s{sA32}, 1\ns_cmp_eq_u32 s{sA32}, 20\ns_cselect_b32 s{sA32}, {2 if FIRST0 else 0}, s{sA32}")
            def issue_X(jx):
                a(f"s_lshl_b32 s{sXo}, s{sA64}, 7")
                for j in range(nX):
                    a(f"s_add_u32 m0, s{sXB}, {XR + (jx % 3)*16384 + 1024*j}")
                    a(f"s_add_u32 s{sXo}, s{sXo}, " + (f"s{sXP}" if j == 0 else "10240"))
                    a(f"buffer_load_dwordx4 v{vXE + (j & 1)}, s[{SRD_X}:{SRD_X+3}], s{sXo} offen lds")
                    seq.append(("X", jx))
                if FIRST0 and jx == 0: a(f"s_add_u32 s{sA64}, s{sROT}, 1")
                else: a(f"s_add_u32 s{sA64}, s{sA64}, 1\ns_cmp_eq_u32 s{sA64}, 10\ns_cselect_b32 s{sA64}, {1 if FIRST0 else 0}, s{sA64}")
            def wait_for(items):
                last = max([n for n, it in enumerate(seq) if it in items] + [-1])
                if last >= 0: a(f"s_waitcnt vmcnt({len(seq) - 1 - last})")
            issue_X(0); issue_W(0)
            if variant == 4:
                self.srd(SRD_M, pGATE, 1280)
                for j in range(2):
                    a(f"s_mov_b32 m0, {GATE + 1024*j}\ns_nop 0\nbuffer_load_dwordx4 v{vGt+j}, s[{SRD_M}:{SRD_M+3}], 0 offen lds")
                    seq.append(("W", 0))
            issue_W(1)
            wait_for([("W", 0), ("X", 0)]); self.stamp(1); a("s_barrier")
            issue_X(1)
            wait_for([("W", 1)]); a("s_barrier")
            issue_W(2); issue_W(3); issue_X(2); issue_W(4)
            if LOOK == "full": issue_W(5)
            for j in range(1, 10):
                if j == (8 if NE16 else 9) and variant == 0:
                    sk = a.newlabel("L_s1skip")
                    a(f"s_cmp_lg_u32 s{sWAVE}, 4\ns_cbranch_scc1 {sk}")
                    self.srd(SRD_D, pDBG, 256)
                    a("v_mov_b32 v10, 128")
                    self.poll("0", 1, 10, 11, SRD_D, S1SLEEP)
                    a.label(sk)
                if rp and j == LRP + 2:
                    last = max(n for n, it in enumerate(seq) if it in (("W", 2*j), ("W", 2*j + 1), ("X", j)))
                    N = len(seq) - 1 - last
                    w1, w2, w3 = a.newlabel("L_wv"), a.newlabel("L_wv"), a.newlabel("L_wv")
                    a(f"s_cmp_eq_u32 s{sKind}, 1\ns_cbranch_scc1 {w1}\ns_cmp_eq_u32 s{sKind}, 2\ns_cbranch_scc1 {w2}\ns_waitcnt vmcnt({N})\ns_branch {w3}\n{w1}:\ns_waitcnt vmcnt({N+4})\ns_branch {w3}\n{w2}:\ns_waitcnt vmcnt({N+8})\n{w3}:")
                else:
                    wait_for([("W", 2*j), ("W", 2*j + 1), ("X", j)])
                if rp and variant == 0 and j == LRP + 4:
                    sk = a.newlabel("L_s1b")
                    a(f"s_cmp_lg_u32 s{sWAVE}, 4\ns_cbranch_scc1 {sk}\nv_readfirstlane_b32 s{t}, v70\nv_mov_b32 v71, 1\ns_cmp_lg_u32 s{t}, 127\ns_cbranch_scc1 {sk}")
                    self.srd(SRD_D, pDBG, 256)
                    a(f"s_mov_b64 exec, 1\nbuffer_store_dword v71, v69, s[{SRD_D}:{SRD_D+3}], 0 offen offset:128 sc1\ns_mov_b64 exec, -1")
                    a.label(sk)
                a("s_barrier")
                if rp and j == LRP:
                    self.srd(SRD_WS, pWS, WS_SIZE)
                    sk = a.newlabel("L_z")
                    a(f"v_lshlrev_b32 v69, 4, v0\ns_cmp_ge_u32 s{sLW}, 2\ns_cbranch_scc1 {sk}\ns_lshl3_add_u32 s{t}, s{sRB}, s{sGRP}\ns_lshl_b32 s{t}, s{t}, 9\ns_mul_i32 s{t+1}, s{sLW}, {WS_KVP}\ns_add_u32 s{t}, s{t}, s{t+1}")
                    a("v_mov_b32 v64, 0\nv_mov_b32 v65, 0\nv_mov_b32 v66, 0\nv_mov_b32 v67, 0\ns_mov_b32 exec_hi, 0")
                    a(f"buffer_store_dwordx4 v[64:67], v69, {WSR}, s{t} offen sc1\ns_mov_b32 exec_hi, -1")
                    a.label(sk)
                if rp and variant == 0 and j == LRP + 3:
                    sk = a.newlabel("L_s1a")
                    a(f"s_cmp_lg_u32 s{sWAVE}, 4\ns_cbranch_scc1 {sk}")
                    self.srd(SRD_D, pDBG, 256)
                    a(f"v_mov_b32 v70, 1\ns_mov_b64 exec, 1\nbuffer_atomic_add v70, v69, s[{SRD_D}:{SRD_D+3}], 0 offen sc0 sc1\ns_mov_b64 exec, -1")
                    a.label(sk)
                if LOOK == "ramp" and j == 1: issue_W(5)
                if j + 1 < 10 and LOOK == "xw": issue_W(2*j + 3)
                if j + 2 < 10: issue_X(j + 2); issue_W(2*j + 4)
                if j + 2 < 10 and LOOK != "xw": issue_W(2*j + 5)
                if rp and j == LRP:
                    a(f"s_lshl_b32 s{t}, s{sLW}, 6\ns_add_u32 s{t}, s{t}, {MBOX}\nv_mov_b32 v68, s{t}\nds_read_b128 v[16:19], v68\nds_read_b128 v[20:23], v68 offset:16\nds_read_b32 v24, v68 offset:32")
                    a(f"v_lshrrev_b32 v10, 2, v0\nv_and_b32 v11, 3, v0\nv_lshlrev_b32 v11, 3, v11\nv_lshl_add_u32 v10, v10, 7, v11\ns_lshl_b32 s{t}, s{sLW}, 12\ns_add_u32 s{t}, s{t}, {SCR}\nv_add_u32 v10, s{t}, v10")
                    for r in range(2):
                        for u in range(4):
                            a(f"ds_read_b64_tr_b16 v[{32+16*r+4*u}:{33+16*r+4*u}], v10 offset:{8192*r + 32*u}\nds_read_b64_tr_b16 v[{34+16*r+4*u}:{35+16*r+4*u}], v10 offset:{8192*r + 32*u + 2048}")
                    a(f"s_waitcnt lgkmcnt(0)\nv_readfirstlane_b32 s{sKind}, v24\nv_lshrrev_b32 v25, 1, v69")
                    for u in range(4): a(f"v_add_u32 v{16+u}, v{16+u}, v69")
                    for u in range(4):
                        a(f"buffer_store_dwordx4 v[{32+4*u}:{35+4*u}], v{16+u}, {WSR}, 0 offen sc1"); seq.append(("S", u))
                if rp and j == LRP + 1:
                    k2, k3 = a.newlabel("L_r2"), a.newlabel("L_r2")
                    a(f"s_cmp_eq_u32 s{sKind}, 0\ns_cbranch_scc1 {k2}\ns_cmp_eq_u32 s{sKind}, 2\ns_cbranch_scc1 {k3}")
                    for u in range(4): a(f"v_add_u32 v{20+u}, v{20+u}, v69\nbuffer_store_dwordx4 v[{48+4*u}:{51+4*u}], v{20+u}, {WSR}, 0 offen sc1")
                    a(f"s_branch {k2}\n{k3}:\ns_mov_b32 s{t}, 12800")
                    for u in range(4): a(f"v_add_u32 v{20+u}, v{20+u}, v25\nbuffer_store_dwordx2 v[{48+4*u}:{49+4*u}], v{20+u}, {WSR}, 0 offen sc1\nbuffer_store_dwordx2 v[{50+4*u}:{51+4*u}], v{20+u}, {WSR}, s{t} offen sc1")
                    a.label(k2)
                if j == 8 and NE16:
                    self.setup2()
                    self.srd(SRD_WS, pWS, WS_SIZE)
                    self.preload_b(0, NE16)
                    seq.extend(["B"] * NE16)
            if variant != 4:
                a(f"s_branch {labj}")
        a.label(labj)
        self.stamp(2)

    def mish_quad(self, h, dst, tmp):
        P = lambda r: f"v[{r}:{r+1}]"
        return [
            f"v_pk_fma_f32 {P(tmp)}, {P(h)}, s[{cL2E}:{cL2E+1}], -0.5 op_sel_hi:[1,1,0]",
            f"v_pk_fma_f32 {P(tmp+2)}, {P(h+2)}, s[{cL2E}:{cL2E+1}], -0.5 op_sel_hi:[1,1,0]",
            f"v_exp_f32 v{tmp}, v{tmp}", f"v_exp_f32 v{tmp+1}, v{tmp+1}", f"v_exp_f32 v{tmp+2}, v{tmp+2}", f"v_exp_f32 v{tmp+3}, v{tmp+3}",
            f"v_pk_add_f32 {P(tmp)}, {P(tmp)}, s[{cC}:{cC+1}]", f"v_pk_add_f32 {P(tmp+2)}, {P(tmp+2)}, s[{cC}:{cC+1}]",
            f"v_pk_fma_f32 {P(tmp)}, {P(tmp)}, {P(tmp)}, 0.5 op_sel_hi:[1,1,0]",
            f"v_pk_fma_f32 {P(tmp+2)}, {P(tmp+2)}, {P(tmp+2)}, 0.5 op_sel_hi:[1,1,0]",
            f"v_rcp_f32 v{tmp}, v{tmp}", f"v_rcp_f32 v{tmp+1}, v{tmp+1}", f"v_rcp_f32 v{tmp+2}, v{tmp+2}", f"v_rcp_f32 v{tmp+3}, v{tmp+3}",
            f"v_pk_fma_f32 {P(tmp)}, {P(h)}, {P(tmp)}, {P(h)} neg_lo:[1,0,0] neg_hi:[1,0,0]",
            f"v_pk_fma_f32 {P(tmp+2)}, {P(h+2)}, {P(tmp+2)}, {P(h+2)} neg_lo:[1,0,0] neg_hi:[1,0,0]",
            f"v_cvt_pk_bf16_f32 v{dst}, v{tmp}, v{tmp+1}", f"v_cvt_pk_bf16_f32 v{dst+1}, v{tmp+2}, v{tmp+3}",
        ]

    def phi_quad(self, h, dst, tmp):
        P = lambda r: f"v[{r}:{r+1}]"
        return [
            f"v_pk_mul_f32 {P(tmp)}, {P(h)}, s[{cL2E}:{cL2E+1}]", f"v_pk_mul_f32 {P(tmp+2)}, {P(h+2)}, s[{cL2E}:{cL2E+1}]",
            f"v_exp_f32 v{tmp}, v{tmp} clamp", f"v_exp_f32 v{tmp+1}, v{tmp+1} clamp", f"v_exp_f32 v{tmp+2}, v{tmp+2} clamp", f"v_exp_f32 v{tmp+3}, v{tmp+3} clamp",
            f"v_pk_add_f32 {P(h)}, {P(h)}, s[{cC}:{cC+1}]", f"v_pk_add_f32 {P(h+2)}, {P(h+2)}, s[{cC}:{cC+1}]",
            f"v_pk_add_f32 {P(tmp)}, {P(tmp)}, s[{cE}:{cE+1}]", f"v_pk_add_f32 {P(tmp+2)}, {P(tmp+2)}, s[{cE}:{cE+1}]",
            f"v_max_f32 v{tmp}, v{tmp}, v{h}", f"v_max_f32 v{tmp+1}, v{tmp+1}, v{h+1}", f"v_max_f32 v{tmp+2}, v{tmp+2}, v{h+2}", f"v_max_f32 v{tmp+3}, v{tmp+3}, v{h+3}",
            f"v_cvt_pk_bf16_f32 v{dst}, v{tmp}, v{tmp+1}", f"v_cvt_pk_bf16_f32 v{dst+1}, v{tmp+2}, v{tmp+3}",
        ]

    def consts(self, kind):
        if kind == "mish":
            self.a(f"s_mov_b32 s{cC}, 0x3f3504f3\ns_mov_b32 s{cC+1}, 0x3f3504f3")
        else:
            self.a(f"s_mov_b32 s{cC}, 0x3f800008\ns_mov_b32 s{cC+1}, 0x3f800008\ns_mov_b32 s{cE}, 0x358637bd\ns_mov_b32 s{cE+1}, 0x358637bd")

    def main_loop(self, reads, mfmas, extra, nread_end, bases):
        a = self.a
        a("s_barrier")
        self.stamp(1)
        for l in reads(0): a(l)
        for l in extra.get(0, ([], [], []))[1]: a(l)
        a("s_waitcnt lgkmcnt(0)")
        for i in range(1, 21):
            if i == 1 or i % 2 == 0: a("s_barrier")
            if i in (2, 4, 6, 8, 10, 14, 18): self.stamp(3 + (2, 4, 6, 8, 10, 14, 18).index(i), True)
            pre, fill, preb = extra.get(i, ([], [], []))
            for l in pre: a(l)
            if i < 20:
                tail = []
                if (i + 1) % 3 == 0 and i + 1 < 20:
                    op = "v_add_u32" if ((i + 1) % NS) == 3 else "v_subrev_u32"
                    tail = [f"{op} v{b}, {3*WSLOT}, v{b}" for b in bases]
                body = interleave(mfmas(i - 1), reads(i) + fill + tail, 0, nread_end)
                for l in body: a(l)
                for l in preb: a(l)
                a("s_waitcnt lgkmcnt(0)")
            else:
                for l in mfmas(19): a(l)
        self.stamp(2)

    def finish1(self, flags, strict=False):
        a = self.a
        self.setup2()
        if strict:
            a("s_waitcnt vmcnt(0)")
            self.stamp(5)
            self.signal(flags[0], 1); self.signal(flags[1], 1)
            self.preload_b(0, NPRE)
            return
        self.preload_b(0, NPRE)
        a(f"s_waitcnt vmcnt({NPRE})")
        self.stamp(5)
        for f in flags: self.signal(f, 1)
        if not BLDS:
            self.preload_b(NPRE, 30)
            return

    def pickup(self):
        a = self.a
        t = T0
        sk = a.newlabel("L_pk")
        a(f"s_cmp_ge_u32 s{sWAVE}, 4\ns_cbranch_scc1 {sk}")
        a(f"s_mul_i32 s{t+14}, s{sWAVE}, 20480\ns_add_u32 s{t+14}, s{t+14}, {BL}\nv_add_u32 v{BS+117}, s{t+14}, v{vL16}")
        for n in range(5*NB - 10):
            a(f"ds_read_b128 v[{BS+40+4*n}:{BS+43+4*n}], v{BS+117} offset:{1024*n}")
        a.label(sk)

    def prefetch(self, vL, v, S=SRD_X):
        a = self.a
        t = T0
        for ptr, size, share, n in ((pX, 2048*1280, 10240, 3), (pWQKV, 640*3840, 9600, 3), (pW1, 640*3072, 7680, 2))[:(1 if PF == 2 else 3)]:
            self.srd(S, ptr, size)
            per = -(-share // 4 // 128) * 128
            a(f"s_mul_i32 s{t}, s{sWG}, {share}\ns_and_b32 s{t}, s{t}, 0xffffff80\ns_mul_i32 s{t+1}, s{sWAVE}, {per}\ns_add_u32 s{t}, s{t}, s{t+1}\ns_min_u32 s{t}, s{t}, {size - n*1024}")
            for k in range(n):
                a(f"buffer_load_dwordx4 v[{v}:{v+3}], v{vL}, s[{S}:{S+3}], s{t} offen offset:{1024*k}")

    def touch(self, vLane, v):
        a = self.a
        t = T0
        a(f"v_lshlrev_b32 v{v}, 21, v{vLane}\nv_add_u32 v{v}, 0xff000, v{v}\ns_mov_b64 exec, 0xff")
        a(f"buffer_load_dword v{v+1}, v{v}, {WSR}, 0 offen")
        self.srd(SRD_M, pOUT, 2048*640*2)
        a(f"v_lshlrev_b32 v{v}, 20, v{vLane}\ns_mov_b64 exec, 7\nbuffer_load_dword v{v+2}, v{v}, s[{SRD_M}:{SRD_M+3}], 0 offen")
        self.srd(SRD_M, pWO, 640*640*2)
        a(f"v_lshlrev_b32 v{v}, 19, v{vLane}\ns_mov_b64 exec, 3\nbuffer_load_dword v{v+3}, v{v}, s[{SRD_M}:{SRD_M+3}], 0 offen\ns_mov_b64 exec, -1")

    def compute_P(self):
        a = self.a
        t = T0
        ACC, XB, WB, BI = 0, 112, 144, 200
        vX0, vX1, vH0, vH1, vQ, vGt, vL, vRd, vRr, vBo, vT = 228, 229, 230, 231, 232, 233, 234, 235, 236, 237, 238
        vLane = 253
        sSH, sNH = sT, 48
        sAct, sPq, sF2, sGs = 49, 72, 73, 74
        a(f"v_mov_b32 v{vLane}, v0\ns_lshr_b32 s{sSH}, s{sWAVE}, 1\ns_and_b32 s{sNH}, s{sWAVE}, 1")
        a(f"v_and_b32 v1, 15, v0\nv_lshrrev_b32 v2, 4, v0\nv_lshrrev_b32 v3, 1, v1\nv_xor_b32 v3, v3, v2\nv_lshlrev_b32 v3, 4, v3\nv_lshl_add_u32 v3, v1, 7, v3")
        a(f"s_lshl_b32 s{t}, s{sSH}, 13\nv_add_u32 v{vX0}, s{t}, v3\nv_xor_b32 v{vX1}, 64, v{vX0}")
        a(f"v_lshrrev_b32 v3, 2, v0\nv_and_b32 v4, 3, v0\nv_lshlrev_b32 v4, 3, v4")
        a(f"v_lshl_add_u32 v5, v3, 7, v4\nv_bfe_u32 v6, v0, 3, 2\ns_lshl_b32 s{t}, s{sNH}, 1\nv_xor_b32 v6, s{t}, v6\nv_lshl_add_u32 v6, v6, 5, v5")
        a(f"v_add_u32 v{vH0}, {WR}, v6\nv_xor_b32 v{vH1}, 32, v{vH0}")
        a(f"v_lshl_add_u32 v6, v3, 6, v4\nv_and_b32 v7, 1, v2\nv_xor_b32 v7, s{sNH}, v7\nv_lshl_add_u32 v6, v7, 5, v6\nv_add_u32 v{vQ}, {WR+12288}, v6")
        a(f"v_lshlrev_b32 v6, 4, v2\nv_add_u32 v{vGt}, {GATE}, v6\nv_lshlrev_b32 v{vL}, 4, v0\nv_lshlrev_b32 v{vBo}, 3, v2")
        a(f"v_lshrrev_b32 v6, 3, v0\nv_mul_u32_u24 v6, 1280, v6\nv_and_b32 v7, 7, v0\nv_lshl_add_u32 v{vRd}, v7, 4, v6")
        a(f"s_lshl_b32 s{t}, s{sWAVE}, 12\ns_add_u32 s{t}, s{t}, {SCR}\nv_add_u32 v{vRr}, s{t}, v5")
        a(f"s_lshl3_add_u32 s{sPIDX}, s{sRB}, s{sGRP}")
        a(f"s_mov_b32 s{cL2E}, 0x3fb8aa3b\ns_mov_b32 s{cL2E+1}, 0x3fb8aa3b")
        a(f"s_lshl2_add_u32 s{t}, s{sPIDX}, s{sWAVE}\ns_min_u32 s{t}, s{t}, 479")
        a(f"s_mul_i32 s{t+1}, s{t}, 6554\ns_lshr_b32 s{t+1}, s{t+1}, 16\ns_mul_i32 s{t+2}, s{t+1}, 10\ns_sub_u32 s{t+2}, s{t}, s{t+2}")
        a(f"s_mul_i32 s{t+6}, s{t+1}, 40960\ns_lshl_b32 s{t+3}, s{t+2}, 7\ns_add_u32 s{t+6}, s{t+6}, s{t+3}")
        a(f"s_mul_i32 s{t+7}, s{sGRP}, 384\ns_lshl_b32 s{t+3}, s{sNH}, 6\ns_add_u32 s{t+7}, s{t+7}, s{t+3}")
        a("s_waitcnt lgkmcnt(0)")
        self.stamp(0)
        self.srd(SRD_M, pB1, 3072)
        self.srd(SRD_W, pW2, 1536*640*2)
        for u in range(6):
            a(f"buffer_load_dwordx2 v[{BI+4*u+2}:{BI+4*u+3}], v{vBo}, s[{SRD_M}:{SRD_M+3}], s{t+7} offen offset:{128*(u >> 1) + 32*(u & 1)}")
        sSrc1 = 69
        a(f"s_mov_b32 s{sSrc1}, s{t+6}")
        self.srd(SRD_WS, pWS, WS_SIZE)
        if TOUCH == 2: self.touch(vLane, 240)
        dsts = [10, 11, 1, 3]
        for u in range(4):
            a(f"s_lshl2_add_u32 s{t+3}, s{t+2}, {u}\ns_mul_i32 s{t+4}, s{t+3}, 205\ns_lshr_b32 s{t+4}, s{t+4}, 10")
            a(f"s_mul_i32 s{t+5}, s{t+4}, 235\ns_add_u32 s{t+5}, s{t+5}, s{t+3}\ns_mul_i32 s{t+4}, s{t+1}, 5\ns_add_u32 s{t+5}, s{t+5}, s{t+4}")
            a(f"s_lshl_b32 s{t+5}, s{t+5}, 10\ns_add_u32 s{t+5}, s{t+5}, {WS_W2R}")
            if LRP: a(f"s_mov_b32 s{dsts[u]}, s{t+5}")
            else: a(f"s_cmp_lt_u32 s{sPIDX}, 120\ns_cselect_b32 s{dsts[u]}, s{t+5}, {BIG}")
        d2, sSrc2, sK2, sInc2 = 40, 0, 75, 70
        self.srd(SRD_M, pWO, 640*640*2)
        a(f"s_lshl1_add_u32 s{t}, s{sPIDX}, s{sWAVE}\ns_sub_u32 s{t}, s{t}, 2")
        a(f"s_cmp_lt_u32 s{t}, 160\ns_cselect_b32 s{sK2}, 1, 2\ns_cmp_lt_u32 s{t}, 200\ns_cselect_b32 s{sK2}, s{sK2}, 0\ns_cmp_lt_u32 s{sWAVE}, 2\ns_cselect_b32 s{sK2}, 0, s{sK2}")
        a(f"s_mul_i32 s{t+1}, s{t}, 6554\ns_lshr_b32 s{t+1}, s{t+1}, 16\ns_mul_i32 s{t+2}, s{t+1}, 10\ns_sub_u32 s{t+2}, s{t}, s{t+2}")
        a(f"s_lshr_b32 s{t+3}, s{t+1}, 1\ns_and_b32 s{t+4}, s{t+1}, 1\ns_sub_u32 s{t+5}, s{t+1}, 16\ns_lshl_b32 s{t+5}, s{t+5}, 1")
        a(f"s_cmp_eq_u32 s{sK2}, 2\ns_cselect_b32 s{t+3}, s{t+5}, s{t+3}\ns_cselect_b32 s{t+4}, 2, s{t+4}\ns_cselect_b32 s{sInc2}, {10240 + 64*1280}, 10240")
        a(f"s_mul_i32 s{sSrc2}, s{t+3}, {80*1280}\ns_mul_i32 s{t+5}, s{t+4}, {32*1280}\ns_add_u32 s{sSrc2}, s{sSrc2}, s{t+5}\ns_lshl_b32 s{t+5}, s{t+2}, 7\ns_add_u32 s{sSrc2}, s{sSrc2}, s{t+5}")
        a(f"s_mul_i32 s{t+3}, s{t+3}, 12800\ns_lshl_b32 s{t+5}, s{t+4}, 10\ns_cmp_eq_u32 s{sK2}, 2\ns_cselect_b32 s{t+5}, 10240, s{t+5}\ns_cselect_b32 s{t+6}, 512, 2048\ns_add_u32 s{t+3}, s{t+3}, s{t+5}\ns_add_u32 s{t+3}, s{t+3}, {WS_WOR}")
        for u in range(4):
            a(f"s_lshl2_add_u32 s{t+4}, s{t+2}, {u}\ns_mul_i32 s{t+5}, s{t+4}, 205\ns_lshr_b32 s{t+5}, s{t+5}, 10\ns_mul_i32 s{t+7}, s{t+5}, 5\ns_sub_u32 s{t+4}, s{t+4}, s{t+7}")
            a(f"s_mul_i32 s{t+5}, s{t+5}, 102400\ns_mul_i32 s{t+4}, s{t+4}, s{t+6}\ns_add_u32 s{t+5}, s{t+5}, s{t+4}\ns_add_u32 s{d2+u}, s{t+5}, s{t+3}")
        sRb64 = t + 11
        a(f"s_lshl1_add_u32 s{sRb64}, s{sRB}, s{sSH}")
        a(f"s_mul_i32 s{t}, s{sRb64}, 48\ns_mul_i32 s{t+1}, s{sGRP}, 6\ns_add_u32 s{t}, s{t}, s{t+1}\ns_add_u32 s{t}, s{t}, s{sNH}\ns_lshl_b32 s{t}, s{t}, 12")
        a(f"s_add_u32 s{sAct}, s{t}, {WS_ACT}\ns_add_u32 s{sAct+1}, s{t}, {WS_ACT + 8192}\ns_add_u32 s{sAct+2}, s{t}, {WS_ACT + 16384}")
        a(f"s_mul_i32 s{t}, s{sRb64}, 40\ns_lshl2_add_u32 s{t}, s{sHALF}, s{t}\ns_lshl1_add_u32 s{t}, s{sCBL}, s{t}\ns_add_u32 s{t}, s{t}, s{sNH}\ns_add_u32 s{t}, s{t}, 24\ns_lshl_b32 s{t}, s{t}, 11\ns_add_u32 s{sPq}, s{t}, {WS_PQ}")
        a(f"s_lshl3_add_u32 s{sF1}, s{sRb64}, s{sGRP}\ns_lshl_b32 s{sF1}, s{sF1}, 7")
        a(f"s_lshl1_add_u32 s{t}, s{sGRP}, s{sNH}\ns_cmp_eq_u32 s{t}, 5\ns_cselect_b32 s{sGs}, 1, 0")
        a(f"s_lshl_b32 s{sF2}, s{sRb64}, 7\ns_add_u32 s{sF2}, s{sF2}, {CNT_PQ}\ns_cmp_lt_u32 s{sCBL}, 6\ns_cselect_b32 s{t}, 1, s{sGs}\ns_cmp_eq_u32 s{t}, 1\ns_cselect_b32 s{sF2}, s{sF2}, {BIG}")
        a(f"s_cmp_ge_u32 s{sCBL}, 6\ns_cselect_b64 vcc, -1, 0")
        def reads(i):
            b = i & 1; so = (i % 3) * WSLOT
            xs = XR + ((i >> 1) % 3) * 16384
            r = [f"ds_read_b128 v[{XB+16*b+4*s}:{XB+16*b+4*s+3}], v{vX1 if i & 1 else vX0} offset:{xs + 2048*s}" for s in range(4)]
            for u in range(6):
                d = WB + 28*b + 4*u
                r.append(f"ds_read_b64_tr_b16 v[{d}:{d+1}], v{vH0 + (u & 1)} offset:{so + 4096*(u >> 1)}")
                r.append(f"ds_read_b64_tr_b16 v[{d+2}:{d+3}], v{vH0 + (u & 1)} offset:{so + 4096*(u >> 1) + 2048}")
            d = WB + 28*b + 24
            if GBR:
                l1, l2 = a.newlabel("L_g"), a.newlabel("L_gj")
                r.append(f"s_cbranch_vccnz {l1}\nds_read_b64_tr_b16 v[{d}:{d+1}], v{vQ} offset:{so}\nds_read_b64_tr_b16 v[{d+2}:{d+3}], v{vQ} offset:{so + 1024}\ns_branch {l2}\n"
                         f"{l1}:\nds_read_b128 v[{d}:{d+3}], v{vGt} offset:{64*i}\n{l2}:")
            else:
                r += [f"ds_read_b64_tr_b16 v[{d}:{d+1}], v{vQ} offset:{so}", f"ds_read_b64_tr_b16 v[{d+2}:{d+3}], v{vQ} offset:{so + 1024}",
                      f"s_mov_b64 exec, vcc\nds_read_b128 v[{d}:{d+3}], v{vGt} offset:{64*i}\ns_mov_b64 exec, -1"]
            return r
        def mfmas(i):
            b = i & 1
            r = []
            for u in (range(7) if i < 19 else (6, 0, 1, 2, 3, 4, 5)):
                for s in range(4):
                    d = ACC + 16*u + 4*s
                    c = f"v[{d}:{d+3}]" if i > 0 else ("0" if u == 6 else f"v[{BI+4*u}:{BI+4*u+3}]")
                    r.append(f"v_mfma_f32_16x16x32_bf16 v[{d}:{d+3}], v[{WB+28*b+4*u}:{WB+28*b+4*u+3}], v[{XB+16*b+4*s}:{XB+16*b+4*s+3}], {c}")
            return r
        unpack = [f"s_waitcnt vmcnt({(3 if TOUCH == 2 else 0) + (4 if RD < 0 else 0) + {0: 0, 1: 8, 2: 3}[PF]})"]
        for u in range(6):
            p = BI + 4*u
            unpack += [f"v_lshlrev_b32 v{p}, 16, v{p+2}", f"v_and_b32 v{p+1}, 0xffff0000, v{p+2}", f"v_lshlrev_b32 v{p+2}, 16, v{p+3}", f"v_and_b32 v{p+3}, 0xffff0000, v{p+3}"]
        RP = BI
        rp_reads = []
        for u in range(4):
            rp_reads += [f"ds_read_b64_tr_b16 v[{RP+4*u}:{RP+4*u+1}], v{vRr} offset:{32*u}", f"ds_read_b64_tr_b16 v[{RP+4*u+2}:{RP+4*u+3}], v{vRr} offset:{32*u + 2048}"]
        rp_st = [f"buffer_store_dwordx4 v[{RP+4*u}:{RP+4*u+3}], v{vL}, {WSR}, s{dsts[u]} offen sc1" for u in range(4)]
        z = [f"s_lshl_b32 s{t}, s{sPIDX}, 9", f"s_mul_i32 s{t+1}, s{sWAVE}, {WS_KVP}", f"s_add_u32 s{t}, s{t}, s{t+1}", f"s_cmp_lt_u32 s{sWAVE}, 2", f"s_cselect_b32 s{t}, s{t}, {BIG}"] + \
            [f"v_mov_b32 v{RP+16+k}, 0" for k in range(4)] + \
            [f"s_mov_b32 exec_hi, 0\nbuffer_store_dwordx4 v[{RP+16}:{RP+19}], v{vL}, {WSR}, s{t} offen sc1\ns_mov_b32 exec_hi, -1"]
        k1, k2, k3, k4 = [a.newlabel("L_r2") for _ in range(4)]
        dma1 = [f"s_lshl_b32 s{t+3}, s{sWAVE}, 12"]
        for j in range(4):
            dma1.append(f"s_add_u32 m0, s{t+3}, {SCR + 1024*j}\ns_nop 0\nbuffer_load_dwordx4 v{vRd}, s[{SRD_W}:{SRD_W+3}], s{sSrc1} offen lds\ns_add_u32 s{sSrc1}, s{sSrc1}, 10240")
        rp_reads2 = [l.replace("offset:", "offset:8192+") for l in rp_reads]
        dma2 = f"s_cmp_eq_u32 s{sK2}, 0\ns_cbranch_scc1 {k1}\n"
        for j in range(4):
            dma2 += f"s_add_u32 m0, s{t+3}, {SCR + 8192 + 1024*j}\ns_nop 0\nbuffer_load_dwordx4 v{vRd}, s[{SRD_M}:{SRD_M+3}], s{sSrc2} offen lds\n"
            if j < 3: dma2 += f"s_add_u32 s{sSrc2}, s{sSrc2}, " + (f"s{sInc2}" if j == 1 else "10240") + "\n"
        dma2 += k1 + ":"
        st2 = f"s_cmp_eq_u32 s{sK2}, 0\ns_cbranch_scc1 {k2}\ns_cmp_eq_u32 s{sK2}, 2\ns_cbranch_scc1 {k3}\n"
        st2 += "".join(f"buffer_store_dwordx4 v[{RP+4*u}:{RP+4*u+3}], v{vL}, {WSR}, s{d2+u} offen sc1\n" for u in range(4))
        st2 += f"s_branch {k2}\n{k3}:\nv_lshrrev_b32 v{vT}, 1, v{vL}\n"
        for u in range(4):
            st2 += f"buffer_store_dwordx2 v[{RP+4*u}:{RP+4*u+1}], v{vT}, {WSR}, s{d2+u} offen sc1\ns_add_u32 s{d2+u}, s{d2+u}, 12800\n"
            st2 += f"buffer_store_dwordx2 v[{RP+4*u+2}:{RP+4*u+3}], v{vT}, {WSR}, s{d2+u} offen sc1\n"
        st2 += k2 + ":"
        sk, sk2 = a.newlabel("L_s1a"), a.newlabel("L_s1b")
        arr = [f"s_cmp_lg_u32 s{sWAVE}, 0", f"s_cbranch_scc1 {sk}",
               f"s_mov_b32 s{SRD_D}, s{pDBG}", f"s_mov_b32 s{SRD_D+1}, s{pDBG+1}", f"s_mov_b32 s{SRD_D+2}, 256", f"s_mov_b32 s{SRD_D+3}, 0x20000",
               f"v_mov_b32 v{vT}, 1", f"s_mov_b64 exec, 1\nbuffer_atomic_add v{vT}, v{vL}, s[{SRD_D}:{SRD_D+3}], 0 offen sc0 sc1\ns_mov_b64 exec, -1", sk + ":"]
        arr2 = [f"s_cmp_lg_u32 s{sWAVE}, 0", f"s_cbranch_scc1 {sk2}", "s_waitcnt vmcnt(0)", f"v_readfirstlane_b32 s{t}, v{vT}", f"v_mov_b32 v{vT+1}, 1",
                f"s_cmp_lg_u32 s{t}, 127", f"s_cbranch_scc1 {sk2}",
                f"s_mov_b32 s{SRD_D}, s{pDBG}", f"s_mov_b32 s{SRD_D+1}, s{pDBG+1}", f"s_mov_b32 s{SRD_D+2}, 256", f"s_mov_b32 s{SRD_D+3}, 0x20000",
                f"s_mov_b64 exec, 1\nbuffer_store_dword v{vT+1}, v{vL}, s[{SRD_D}:{SRD_D+3}], 0 offen offset:128 sc1\ns_mov_b64 exec, -1", sk2 + ":"]
        if RD < 0:
            for l in dma1 + [dma2]: a(l)
        if PF: self.prefetch(vL, 240, S=SRD_D)
        hi, lo = (["s_setprio 3"], ["s_setprio 0"]) if STPRIO else ([], [])
        extra = {0: ([], unpack, []), RS: (["s_waitcnt vmcnt(0)"], rp_reads, []), RS+1: (hi, rp_st + rp_reads2, []),
                 RS+2: ([], [st2] + z, lo), S1AT-1: ([], [], ["s_waitcnt vmcnt(0)"]), S1AT: (arr, [], []), S1AT+2: (arr2, [], [])}
        if LRP:
            a(f"s_lshl_b32 s{t}, s{sWAVE}, 6\ns_add_u32 s{t}, s{t}, {MBOX}\nv_mov_b32 v8, s{t}")
            for u in range(4): a(f"v_mov_b32 v{12+u}, s{dsts[u]}\nv_mov_b32 v{16+u}, s{d2+u}")
            a(f"v_mov_b32 v20, s{sK2}\nds_write_b128 v8, v[12:15]\nds_write_b128 v8, v[16:19] offset:16\nds_write_b32 v8, v20 offset:32\ns_waitcnt lgkmcnt(0)")
            extra = {0: extra[0], 2*LRP - 1: ([], [], ["s_waitcnt vmcnt(0)"])}
        if SPREAD:
            R2 = [216, 220, 240, 244]
            rd2 = []
            for u in range(4):
                rd2 += [f"ds_read_b64_tr_b16 v[{R2[u]}:{R2[u]+1}], v{vRr} offset:{8192 + 32*u}", f"ds_read_b64_tr_b16 v[{R2[u]+2}:{R2[u]+3}], v{vRr} offset:{8192 + 32*u + 2048}"]
            zz = [l.replace(f"v{RP+16}", "v248").replace(f"v{RP+17}", "v249").replace(f"v{RP+18}", "v250").replace(f"v{RP+19}", "v251").replace(f"v[{RP+16}:{RP+19}]", "v[248:251]") for l in z]
            pre2 = [f"v_lshrrev_b32 v{vT+1}, 1, v{vL}"]
            def st2u(u):
                k5, k6 = a.newlabel("L_r2"), a.newlabel("L_r2")
                return (f"s_cmp_eq_u32 s{sK2}, 1\ns_cbranch_scc0 {k5}\nbuffer_store_dwordx4 v[{R2[u]}:{R2[u]+3}], v{vL}, {WSR}, s{d2+u} offen sc1\n{k5}:\n"
                        f"s_cmp_eq_u32 s{sK2}, 2\ns_cbranch_scc0 {k6}\nbuffer_store_dwordx2 v[{R2[u]}:{R2[u]+1}], v{vT+1}, {WSR}, s{d2+u} offen sc1\ns_add_u32 s{d2+u}, s{d2+u}, 12800\n"
                        f"buffer_store_dwordx2 v[{R2[u]+2}:{R2[u]+3}], v{vT+1}, {WSR}, s{d2+u} offen sc1\n{k6}:")
            extra = {0: extra[0], RS: (["s_waitcnt vmcnt(0)"], rp_reads + rd2 + pre2 + zz, []), S1AT: extra[S1AT], S1AT+2: extra[S1AT+2]}
            if SPREAD == 1:
                for u in range(4): extra[RS+1+u] = ([], [rp_st[u], st2u(u)], [])
            else:
                for u in range(4):
                    extra[RS+1+2*u] = ([], [rp_st[u]], []); extra[RS+2+2*u] = ([], [st2u(u)], [])
            e_ = extra.get(S1AT-1, ([], [], []))
            extra[S1AT-1] = (e_[0], e_[1], ["s_waitcnt vmcnt(0)"])
        if RD > 0: extra[RD] = ([], dma1 + [dma2], [])
        if RD == 0: extra[0] = ([], unpack + dma1 + [dma2], [])
        self.main_loop(reads, mfmas, extra, NRE, [vH0, vH1, vQ])
        if EPRIO: a(f"s_setprio {EPRIO}")
        TM = XB
        a("s_nop 3")
        labG, labE = a.newlabel("L_epG"), a.newlabel("L_epE")
        a(f"s_cbranch_vccnz {labG}")
        self.consts("phi")
        for sp in range(2):
            e = ACC + 96 + 8*sp
            for l in self.phi_quad(e, e, TM): a(l)
            for l in self.phi_quad(e + 4, e + 2, TM + 4): a(l)
            a(f"buffer_store_dwordx4 v[{e}:{e+3}], v{vL}, {WSR}, s{sPq} offen offset:{1024*sp} sc1")
        a(f"s_branch {labE}")
        a.label(labG)
        a(f"s_cmp_eq_u32 s{sGs}, 0\ns_cbranch_scc1 {labE}")
        G = ACC + 96
        a(f"v_cmp_le_u32 vcc, 16, v{vLane}\nv_cmp_le_u32 s[{t+2}:{t+3}], 32, v{vLane}\nv_cmp_le_u32 s[{t+4}:{t+5}], 48, v{vLane}\ns_nop 0")
        a(f"v_cndmask_b32 v{G}, v{G}, v{G+4}, vcc\nv_cndmask_b32 v{G}, v{G}, v{G+8}, s[{t+2}:{t+3}]\nv_cndmask_b32 v{G}, v{G}, v{G+12}, s[{t+4}:{t+5}]")
        a(f"s_mov_b32 s{t}, 0x42700000\nv_min_f32 v{G}, s{t}, v{G}\nv_max_f32 v{G}, -s{t}, v{G}\nv_mul_f32 v{G}, s{cL2E}, v{G}\nv_exp_f32 v{G}, v{G}")
        a(f"s_lshl_b32 s{t}, s{sRb64}, 8\ns_add_u32 s{t}, s{t}, {WS_G}\nv_add_f32 v{G+2}, 1.0, v{G}\nv_rcp_f32 v{G+2}, v{G+2}\nv_lshlrev_b32 v{G+1}, 2, v{vLane}\ns_add_u32 s{t+1}, s{t}, 8192")
        a(f"buffer_store_dword v{G}, v{G+1}, {WSR}, s{t} offen sc1\nbuffer_store_dword v{G+2}, v{G+1}, {WSR}, s{t+1} offen sc1")
        a.label(labE)
        self.consts("mish")
        for L in range(3):
            for s in range(4):
                e, o = ACC + 32*L + 4*s, ACC + 32*L + 16 + 4*s
                for l in self.mish_quad(e, e, TM + 8*(s & 1)): a(l)
                for l in self.mish_quad(o, e + 2, TM + 4 + 8*(s & 1)): a(l)
                if DIAG != 1: a(f"buffer_store_dwordx4 v[{e}:{e+3}], v{vL}, {WSR}, s{sAct+L} offen offset:{1024*s} {'' if DIAG == 2 else 'sc1'}")
            if L == 0 and EARLYQ:
                a("s_waitcnt vmcnt(4)")
                self.signal(sF2, vT)
            if LFLAG and L >= 1:
                if L == 2: a("s_waitcnt vmcnt(5)")
                self.signal(sF1, vT, 4*(L - 1))
        a(f"v_mov_b32 v0, v{vLane}")
        self.stamp(3)
        self.finish1([sF1] if EARLYQ else [sF1, sF2])

    def compute_KV(self):
        a = self.a
        t = T0
        ACC, XB, WB = 0, 112, 128
        vX0, vX1, vK, vQ0, vL = 240, 241, 242, 243, 247
        vLane = 253
        sPq, sF2, sRec = 72, 73, 74
        a(f"v_mov_b32 v{vLane}, v0")
        a(f"v_and_b32 v1, 15, v0\nv_lshrrev_b32 v2, 4, v0\nv_lshrrev_b32 v3, 1, v1\nv_xor_b32 v3, v3, v2\nv_lshlrev_b32 v3, 4, v3\nv_lshl_add_u32 v3, v1, 7, v3")
        a(f"s_lshl_b32 s{t}, s{sWAVE}, 12\nv_add_u32 v{vX0}, s{t}, v3\nv_xor_b32 v{vX1}, 64, v{vX0}")
        a(f"v_lshrrev_b32 v3, 2, v0\nv_and_b32 v4, 3, v0\nv_lshlrev_b32 v4, 3, v4")
        a(f"v_mul_u32_u24 v5, 160, v3\nv_add_u32 v5, v5, v4\nv_add_u32 v{vK}, {WR}, v5")
        a(f"v_lshl_add_u32 v5, v3, 7, v4\nv_bfe_u32 v6, v0, 3, 2\nv_lshl_add_u32 v5, v6, 5, v5\nv_add_u32 v{vQ0}, {WR+10240}, v5")
        for u in range(1, 4): a(f"v_xor_b32 v{vQ0+u}, {32*u}, v{vQ0}")
        a(f"v_lshlrev_b32 v{vL}, 4, v0")
        a(f"s_lshr_b32 s{t}, s{sWAVE}, 1\ns_lshl1_add_u32 s{t+1}, s{sRB}, s{t}")
        a(f"s_lshl_b32 s{sF2}, s{t+1}, 7\ns_add_u32 s{sF2}, s{sF2}, {CNT_PQ}")
        a(f"s_mul_i32 s{t+1}, s{t+1}, 40\ns_lshl2_add_u32 s{t+1}, s{sGRP}, s{t+1}\ns_and_b32 s{t}, s{sWAVE}, 1\ns_lshl1_add_u32 s{t+1}, s{t+1}, s{t}\ns_lshl_b32 s{t+1}, s{t+1}, 10\ns_add_u32 s{sPq}, s{t+1}, {WS_PQ}")
        a(f"s_lshl2_add_u32 s{t}, s{sGRP}, s{sWAVE}\ns_lshl_b32 s{sF1}, s{t}, 7\ns_add_u32 s{sF1}, s{sF1}, {CNT_KV}")
        a(f"s_mul_i32 s{t}, s{t}, 1792\ns_add_u32 s{sRec}, s{t}, {WS_KVP}")
        a(f"s_mov_b32 s{cL2E}, 0x3fb8aa3b\ns_mov_b32 s{cL2E+1}, 0x3fb8aa3b")
        self.consts("phi")
        a("s_waitcnt lgkmcnt(0)")
        self.stamp(0)
        self.srd(SRD_WS, pWS, WS_SIZE)
        if TOUCH: self.touch(vLane, 248)
        if PF: self.prefetch(vL, 248)
        def reads(i):
            b = i & 1; so = (i % 3) * WSLOT
            xs = XR + ((i >> 1) % 3) * 16384
            r = [f"ds_read_b128 v[{XB+8*b+4*s}:{XB+8*b+4*s+3}], v{vX1 if i & 1 else vX0} offset:{xs + 2048*s}" for s in range(2)]
            for u in range(14):
                d = WB + 56*b + 4*u
                if u < 10: base, off, d2 = vK, 5120*(u // 5) + 32*(u % 5), 2560
                else: base, off, d2 = vQ0 + u - 10, 0, 2048
                r.append(f"ds_read_b64_tr_b16 v[{d}:{d+1}], v{base} offset:{so + off}")
                r.append(f"ds_read_b64_tr_b16 v[{d+2}:{d+3}], v{base} offset:{so + off + d2}")
            return r
        def mfmas(i):
            b = i & 1
            r = []
            order = list(range(14)) if i < 19 else [5, 6, 7, 8, 9, 0, 1, 2, 3, 4, 10, 11, 12, 13]
            for u in order:
                for s in range(2):
                    d = ACC + 8*u + 4*s
                    c = f"v[{d}:{d+3}]" if i > 0 else "0"
                    w, x = f"v[{WB+56*b+4*u}:{WB+56*b+4*u+3}]", f"v[{XB+8*b+4*s}:{XB+8*b+4*s+3}]"
                    r.append(f"v_mfma_f32_16x16x32_bf16 v[{d}:{d+3}], {x if u < 10 else w}, {w if u < 10 else x}, {c}")
            return r
        self.main_loop(reads, mfmas, {}, 24, [vK, vQ0, vQ0+1, vQ0+2, vQ0+3])
        TM = XB
        vEx = vX0
        a(f"s_mul_i32 s{t}, s{sWAVE}, 10240\nv_add_u32 v{vEx}, s{t}, v{vL}")
        for u in range(5, 10):
            e = ACC + 8*u
            a(f"v_cvt_pk_bf16_f32 v{e}, v{e}, v{e+1}\nv_cvt_pk_bf16_f32 v{e+1}, v{e+2}, v{e+3}\nv_cvt_pk_bf16_f32 v{e+2}, v{e+4}, v{e+5}\nv_cvt_pk_bf16_f32 v{e+3}, v{e+6}, v{e+7}")
            a(f"ds_write_b128 v{vEx}, v[{e}:{e+3}] offset:{XR + 1024*u}")
        for u in range(5):
            e = ACC + 8*u
            for l in self.phi_quad(e, e, TM): a(l)
            for l in self.phi_quad(e + 4, e + 2, TM + 4): a(l)
            a(f"ds_write_b128 v{vEx}, v[{e}:{e+3}] offset:{XR + 1024*u}")
        a(f"s_lshl_b32 s{t}, s{sWAVE}, 10\nv_add_u32 v{vEx}, s{t}, v{vL}")
        ONE = WB + 64
        for k in range(4): a(f"v_mov_b32 v{ONE+k}, 0x3f803f80")
        if K1LDS:
            lp, dn = a.newlabel("L_k1"), a.newlabel("L_k1d")
            a(f"v_mov_b32 v{vK}, {K1C}\nv_mov_b32 v{vQ0}, 1\ns_mov_b32 s{t}, 0\ns_waitcnt lgkmcnt(0)\ns_mov_b64 exec, 1\nds_add_u32 v{vK}, v{vQ0}\ns_mov_b64 exec, -1")
            a.label(lp)
            a(f"ds_read_b32 v{vQ0}, v{vK}\ns_add_u32 s{t}, s{t}, 1\ns_waitcnt lgkmcnt(0)\nv_readfirstlane_b32 s{t+1}, v{vQ0}\ns_cmp_ge_u32 s{t}, {SPIN}\ns_cbranch_scc1 {dn}\ns_cmp_lt_u32 s{t+1}, 4\ns_cbranch_scc1 {lp}")
            a.label(dn)
        else:
            a("s_waitcnt lgkmcnt(0)\ns_barrier")
        FR = WB
        for g in range(4):
            for j, off in enumerate((0, 1024, 5120, 6144)):
                a(f"ds_read_b128 v[{FR+16*g+4*j}:{FR+16*g+4*j+3}], v{vEx} offset:{XR + 10240*g + off}")
        AD = WB + 72
        dc, BG, ev, R = AD, AD + 2, AD + 3, AD + 8
        ad = [f"v_lshrrev_b32 v{dc}, 4, v{vLane}", f"v_and_b32 v{ev}, 15, v{vLane}", f"v_mov_b32 v{BG}, 0x10000", f"v_cmp_eq_u32 vcc, 0, v{ev}",
              f"v_mov_b32 v{R}, 320", f"v_subrev_u32 v{dc}, s{sWAVE}, v{dc}", f"v_cndmask_b32 v{ev+2}, v{BG}, v{R}, vcc", f"v_add_u32 v{dc+1}, 4, v{dc}",
              f"s_lshl_b32 s{t}, s{sWAVE}, 2", f"v_subrev_u32 v{ev}, s{t}, v{ev}", f"v_add_u32 v{ev+1}, 16, v{ev}",
              f"s_lshl_b32 s{t+4}, s{sWAVE}, 11", f"s_add_u32 s{t+4}, s{t+4}, {STG}"]
        for k in range(2):
            ad += [f"v_cmp_gt_u32 vcc, 5, v{dc+k}", f"v_cmp_gt_u32 s[{t+2}:{t+3}], 20, v{ev+k}", f"v_mul_u32_u24 v{dc+k}, 336, v{dc+k}", f"v_lshlrev_b32 v{ev+k}, 4, v{ev+k}",
                   f"v_cndmask_b32 v{dc+k}, v{BG}, v{dc+k}, vcc", f"v_cndmask_b32 v{ev+k}, v{BG}, v{ev+k}, s[{t+2}:{t+3}]"]
        for k in range(2):
            ad += [f"v_add_u32 v{R+3*k+b}, v{dc+k}, v{ev+b}" for b in range(3)]
            ad += [f"v_min_u32 v{R+3*k+b}, 1680, v{R+3*k+b}" for b in range(3)]
            ad += [f"v_add_u32 v{R+3*k+b}, s{t+4}, v{R+3*k+b}" for b in range(3)]
        ad += [f"v_lshlrev_b32 v{dc}, 2, v{vLane}", f"v_add_u32 v{vEx}, s{t+4}, v{dc}"]
        for l in ad[:20]: a(l)
        D = ACC
        mm = []
        for g in range(4):
            for k in range(2):
                for b in range(3):
                    d = D + 12*k + 4*b
                    B = f"v[{FR+16*g+8+4*b}:{FR+16*g+8+4*b+3}]" if b < 2 else f"v[{ONE}:{ONE+3}]"
                    mm.append(f"v_mfma_f32_16x16x32_bf16 v[{d}:{d+3}], v[{FR+16*g+4*k}:{FR+16*g+4*k+3}], {B}, {'0' if g == 0 else f'v[{d}:{d+3}]'}")
        a("s_waitcnt lgkmcnt(0)")
        for l in interleave(mm, ad[20:], 0, 16): a(l)
        def qmath(u):
            e = ACC + 8*u
            return self.phi_quad(e, e, TM) + self.phi_quad(e + 4, e + 2, TM + 4)
        q10 = qmath(10)
        for l in q10[:8]: a(l)
        for j in range(6): a(f"ds_write_b128 v{R+j}, v[{D+4*j}:{D+4*j+3}]")
        for l in q10[8:20]: a(l)
        a("s_waitcnt lgkmcnt(0)")
        for j in range(7): a(f"ds_read_b32 v{j}, v{vEx} offset:{256*j}")
        for l in q10[20:]: a(l)
        a("s_waitcnt lgkmcnt(0)")
        for j in range(7):
            if j == 6: a("s_mov_b32 exec_hi, 15")
            a(f"buffer_atomic_add_f32 v{j}, v{dc}, {WSR}, s{sRec} offen offset:{256*j} sc1")
        a("s_mov_b32 exec_hi, -1")
        a(f"s_add_u32 s{t}, s{sPq}, 4096")
        def qst(u):
            e = ACC + 8*(10 + u)
            a(f"buffer_store_dwordx4 v[{e}:{e+3}], v{vL}, {WSR}, s{sPq if u < 2 else t} offen offset:{2048*(u & 1)} sc1")
        qst(0)
        for u in (1, 2, 3):
            for l in qmath(10 + u): a(l)
            qst(u)
        a(f"v_mov_b32 v0, v{vLane}")
        self.stamp(3)
        self.finish1([sF1, sF2], strict=True)

    def setup2(self):
        a = self.a
        t = T0
        if MAP2 == "x2":
            a(f"s_bfe_u32 s{t+2}, s{sWG}, 0x20001\ns_bfe_u32 s{t+3}, s{sWG}, 0x30003\ns_lshl3_add_u32 s{sR64}, s{t+2}, s{t+3}")
            a(f"s_and_b32 s{t+2}, s{sWG}, 1\ns_lshr_b32 s{t+3}, s{sWG}, 6\ns_lshl2_add_u32 s{sC}, s{t+2}, s{t+3}")
        else:
            a(f"s_and_b32 s{t+2}, s{sWG}, 7\ns_bfe_u32 s{t+3}, s{sWG}, 0x20003\ns_lshl2_add_u32 s{sR64}, s{t+2}, s{t+3}\ns_lshr_b32 s{sC}, s{sWG}, 5")
        if FAKE == 1: a(f"s_and_b32 s{sR64}, s{sWG}, 7\ns_lshl_b32 s{sR64}, s{sR64}, 2\ns_mov_b32 s{sC}, 0")
        if FAKE == 2: a(f"s_mov_b32 s{sC}, 0")
        if FAKE == 3: a(f"s_and_b32 s{sR64}, s{sWG}, 7\ns_lshl_b32 s{sR64}, s{sR64}, 2")
        a(f"v_lshlrev_b32 v{vL16}, 4, v0\nv_add_u32 v{vL16b}, 4096, v{vL16}")
        if ROT2 == "none":
            a(f"s_mov_b32 s{t}, 0")
        elif ROT2 == "xor":
            a(f"s_lshr_b32 s{t}, s{sWG}, 3\ns_lshr_b32 s{t+1}, s{sWG}, 6\ns_xor_b32 s{t}, s{t}, s{t+1}\ns_and_b32 s{t}, s{t}, 1")
        elif ROT2 == "two":
            a(f"s_lshr_b32 s{t}, s{sWG}, 3\ns_lshr_b32 s{t+1}, s{sWG}, {6 if MAP2 == 'x2' else 5}\ns_xor_b32 s{t}, s{t}, s{t+1}\ns_and_b32 s{t}, s{t}, 1\ns_mul_i32 s{t}, s{t}, 3")
        elif MAP2 == "x2":
            a(f"s_and_b32 s{t}, s{sC}, 3\ns_mul_i32 s{t}, s{t}, 3\ns_lshr_b32 s{t}, s{t}, 1")
        else:
            a(f"s_mul_i32 s{t}, s{sC}, 3\ns_lshr_b32 s{t}, s{t}, 2")
        a(f"s_mul_i32 s{t+1}, s{sWAVE}, 6")
        a(f"s_mul_i32 s{t+2}, s{sC}, {48*5120}\ns_add_u32 s{t+2}, s{t+2}, {WS_W2R}")
        a(f"s_mul_i32 s{t+3}, s{sR64}, {48*4096}\ns_add_u32 s{t+3}, s{t+3}, {WS_ACT}")
        for i in range(6):
            a(f"s_add_u32 s{t+4}, s{t+1}, s{t}\ns_mul_i32 s{sB0+i}, s{t+4}, 5120\ns_add_u32 s{sB0+i}, s{sB0+i}, s{t+2}")
            a(f"s_lshl_b32 s{sA0+i}, s{t+4}, 12\ns_add_u32 s{sA0+i}, s{sA0+i}, s{t+3}")
            if i < 5 and ROT2 == "xor": a(f"s_xor_b32 s{t}, s{t}, {i ^ (i + 1)}")
            elif i < 5: a(f"s_add_u32 s{t}, s{t}, 1\ns_cmp_eq_u32 s{t}, 6\ns_cselect_b32 s{t}, 0, s{t}")
        a(f"s_lshl3_add_u32 s{sFa}, s{sR64}, s{sWAVE}\ns_lshl_b32 s{sFa}, s{sFa}, 7\ns_lshl_b32 s{sFq}, s{sR64}, 7\ns_add_u32 s{sFq}, s{sFq}, {CNT_PQ}")
        a(f"s_mul_i32 s{sPQb}, s{sR64}, 40\ns_mul_i32 s{t}, s{sWAVE}, 5\ns_add_u32 s{sPQb}, s{sPQb}, s{t}\ns_lshl_b32 s{sPQb}, s{sPQb}, 11\ns_add_u32 s{sPQb}, s{sPQb}, {WS_PQ}")
        a(f"s_lshl3_add_u32 s{sMb}, s{sC}, s{sWAVE}\ns_mul_i32 s{sMb}, s{sMb}, 12800\ns_add_u32 s{sMb}, s{sMb}, {WS_WOR}")
        a(f"s_mul_i32 s{sKv}, s{sWAVE}, 7168\ns_add_u32 s{sKv}, s{sKv}, {WS_KVP}\ns_lshl_b32 s{sFk}, s{sWAVE}, 9\ns_add_u32 s{sFk}, s{sFk}, {CNT_KV}")

    def preload_b(self, n0, n1, th=0):
        for n in range(n0, n1):
            if th and n < NTH: self.a(f"s_waitcnt vmcnt({th - 1})")
            i, jn = divmod(n, 5)
            d = BS + 20*i + 4*jn
            self.a(f"buffer_load_dwordx4 v[{d}:{d+3}], v{vL16 if jn < 4 else vL16b}, {WSR}, s{sB0+i} offen offset:{1024*jn if jn < 4 else 0} sc1")

    def stage_b(self):
        a = self.a
        t = T0
        a(f"s_mul_i32 s{t}, s{sT}, 20480\ns_add_u32 s{t}, s{t}, {BL}")
        for i in range(2, NB):
            a(f"s_sub_u32 s{t+1}, s{sB0+i}, 122880")
            for jn in range(5):
                if jn in (0, 4):
                    a(f"s_add_u32 m0, s{t}, {5120*(i-2) + 1024*jn}")
                    a(f"s_add_u32 s{t+1}, s{t+1}, 4096" if jn else "s_nop 0")
                if TH and NB*5 + 5*(i - 2) + jn < NTH: a(f"s_waitcnt vmcnt({TH - 1})")
                a(f"buffer_load_dwordx4 v{vL16}, {WSR}, s{t+1} offen offset:{1024*(jn % 4)} sc1 lds")
        a("s_waitcnt vmcnt(0)")

    def gemm2(self):
        a = self.a
        t = T0
        seq = []
        LN = 255
        def ldl(dst, n, v, so, off, tag):
            seq.append(tag)
            return [f"buffer_load_dword{ {1: '', 2: 'x2', 4: 'x4'}[n] } {vr(dst, n)}, v{v}, {WSR}, s{so} offen offset:{off} sc1"]
        def emit(L):
            for l in L: a(l)
        def wait(tag):
            last = max(n for n, x in enumerate(seq) if x == tag)
            a(f"s_waitcnt vmcnt({len(seq) - 1 - last})")
        def act(i):
            return sum((ldl(AB + 16*(i % 3) + 4*st, 4, vL16, sA0 + i, 1024*st, f"act{i}") for st in range(4)), [])
        def check(soff, target, sleep=None):
            ok = a.newlabel("L_ok")
            a(f"v_cmp_le_u32 vcc, {target}, v{vP+1}\ns_nop 1\ns_cmp_eq_u64 vcc, -1\ns_cbranch_scc1 {ok}")
            self.poll(soff, target, vP, vP + 1, sleep=sleep)
            a.label(ok)
        def dma(so, n, lds, tag):
            r = []
            for k in range(n):
                pre = ""
                if k % 4 == 0:
                    pre = f"s_add_u32 m0, s{sLB}, {lds + 1024*k}\n" + (f"s_add_u32 s{so}, s{so}, 4096\n" if k else "s_nop 0\n")
                r.append(pre + f"buffer_load_dwordx4 v{vL16}, {WSR}, s{so} offen offset:{1024*(k % 4)} sc1 lds"); seq.append(tag)
            return r
        def pq(base, sp):
            return sum((ldl(base + 20*sp + 4*tt, 4, vL16, (sPQb, t, t + 1)[tt >> 1], 2048*(tt & 1) + 1024*sp, f"pq{sp}") for tt in range(5)), [])
        def gld(va):
            return sum((ldl(vG + st, 1, va, t + 3, 64*st, "g") for st in range(4)), [])
        def lateb(i=5):
            if i < NB: return []
            r = sum((ldl(BS + 20*i + 4*jn, 4, vL16, sB0 + i, 1024*jn, f"act{i}") for jn in range(4)), [])
            return r + [f"s_add_u32 s{sB0+i}, s{sB0+i}, 4096"] + ldl(BS + 20*i + 16, 4, vL16, sB0 + i, 0, f"act{i}")
        chunks = [(0, 0), (0, 1), (1, 0), (1, 1), (1, 2), (2, 1), (2, 2), (2, 3), (3, 2), (3, 3), (4, 3), (3, 4), (4, 4)] + [("z", tt) for tt in range(5)]
        slot = dict(zip(chunks, [0, 1, 2, 3, 4, 7, 8, 9, 10, 11, 13, 14, 15, 16, 17, 18, 19, 20]))
        X, K0 = 24, 0
        ad = [f"v_and_b32 v{X}, 15, v{LN}", f"v_lshrrev_b32 v{X+1}, 4, v{LN}", f"s_add_u32 s{t+2}, s{sLB}, 13312", f"v_mul_u32_u24 v{X+3}, 336, v{X+1}", f"v_add_u32 v{X+3}, s{t+2}, v{X+3}",
              f"v_add_u32 v{X+18}, s{sLB}, v{vL16}", f"s_add_u32 s{t+2}, s{t+2}, 7056", f"v_mov_b32 v{X+13}, s{t+2}"] + [f"v_subrev_u32 v{X+13+k}, {1344*k}, v{X+13}" for k in range(1, 5)]
        for te in (0, 1, 2, 3, 4, "z"):
            if te == "z":
                ad += [f"v_and_b32 v{X+4}, 3, v{LN}", f"v_mul_u32_u24 v{X+5}, 112, v{X+4}", f"v_add_u32 v{X+6}, 320, v{X+3}", f"v_add_u32 v{X+5}, v{X+5}, v{X+6}"]
            else:
                ad += [f"v_add_u32 v{X+6}, {16*te}, v{X}", f"v_mul_u32_u24 v{X+4}, 3277, v{X+6}", f"v_lshrrev_b32 v{X+4}, 16, v{X+4}",
                       f"v_lshl_add_u32 v{X+6}, v{X+6}, 4, v{X+3}", f"v_mad_i32_i24 v{X+5}, v{X+4}, s{sN208}, v{X+6}"]
            ad += [f"v_mad_i32_i24 v{X+4}, v{X+4}, -5, v{X+1}"]
            mine = [(j, c) for j, c in enumerate(chunks) if c[0] == te]
            ad += [f"v_add_u32 v{X+8+n}, {4*c[1]}, v{X+4}" for n, (j, c) in enumerate(mine)]
            ad += [f"v_cmp_gt_u32 s[{t+4+2*n}:{t+5+2*n}], 5, v{X+8+n}" for n, (j, c) in enumerate(mine)]
            ad += ["s_nop 0"]
            ad += [f"v_cndmask_b32 v{K0+j}, v{X+13+c[1]}, v{X+5}, s[{t+4+2*n}:{t+5+2*n}]" for n, (j, c) in enumerate(mine)]
        mq = [t + 4, t + 6, t + 8]
        consts = [f"s_mov_b32 s{cE}, 0x358637bd", f"s_mov_b32 s{mq[0]}, 0xffff", f"s_mov_b32 s{mq[0]+1}, 0", f"s_mov_b32 s{mq[1]}, -1", f"s_mov_b32 s{mq[1]+1}, 0",
                  f"s_mov_b32 s{mq[2]}, -1", f"s_mov_b32 s{mq[2]+1}, 0xffff"]
        swaps = lambda R: [f"v_swap_b32 v{R+8*p+2+k}, v{R+8*p+4+k}" for p in range(2) for k in range(2)]
        K32 = lambda d, A, B, c: f"v_mfma_f32_16x16x32_bf16 v[{d}:{d+3}], v[{A}:{A+3}], v[{B}:{B+3}], {c}"
        K16 = lambda d, A, B: f"v_mfma_f32_16x16x16_bf16 v[{d}:{d+3}], v[{A}:{A+1}], v[{B}:{B+1}], v[{d}:{d+3}]"
        acc = lambda d: f"v[{d}:{d+3}]"
        def fqf(base):
            def fq(st, tt):
                R = base + 20*(st >> 1)
                return R + 8*(tt >> 1) + 4*(st & 1) + 2*(tt & 1) if tt < 4 else R + 16 + 2*(st & 1)
            return fq
        def gather(KAr, raw, KP, PQb, first):
            for j, c in enumerate(chunks):
                a(f"ds_read_b128 v[{raw(j)}:{raw(j)+3}], v{KAr+j} offset:{1344*c[1]}")
            emit(swaps(PQb) + swaps(PQb + 20))
            for j, c in enumerate(chunks):
                if j in (0, first): a(f"s_waitcnt lgkmcnt({18 - first if j == 0 else 0})")
                d, r = KP + 2*slot[c], raw(j)
                a(f"v_cvt_pk_bf16_f32 v{d}, v{r}, v{r+1}\nv_cvt_pk_bf16_f32 v{d+1}, v{r+2}, v{r+3}")
            for z in (5, 6, 12): a(f"v_mov_b32 v{KP+2*z}, 0\nv_mov_b32 v{KP+2*z+1}, 0")
        def scales(st, DN, SC):
            r = [f"v_add_f32 v{DN+k}, s{cE}, v{DN+k}" for k in range(4)] + [f"v_rcp_f32 v{DN+k}, v{DN+k}" for k in range(4)]
            r += [f"v_mul_f32 v{DN+k}, v{vG+st}, v{DN+k}" for k in range(4)]
            return r + [f"v_cndmask_b32 v{SC[k]}, v{DN+k+1}, v{DN+k}, s[{mq[k]}:{mq[k]+1}]" for k in range(3)]
        def vtile(st, tt, o, DN, SC, fq):
            sc = (DN, SC[0], SC[1], SC[2], DN + 3)[tt]
            return [f"v_mul_f32 v{o+k}, v{sc}, v{o+k}" for k in range(4)] + [f"v_cvt_pk_bf16_f32 v{fq(st,tt)}, v{o}, v{o+1}", f"v_cvt_pk_bf16_f32 v{fq(st,tt)+1}, v{o+2}, v{o+3}"]
        def mlp(i, zero, sts=None):
            order = [(jn, st) for jn in range(5) for st in range(4)] if sts is None else [(jn, st) for st in sts for jn in range(5)]
            return [K32(20*st + 4*jn, BS + 20*i + 4*jn, AB + 16*(i % 3) + 4*st, "0" if zero else acc(20*st + 4*jn)) for jn, st in order]
        TA, RA, vRW = 224, 170, vP
        rw = [f"v_and_b32 v{TA}, 15, v{LN}", f"v_mul_u32_u24 v{TA}, 160, v{TA}", f"v_bfe_u32 v{TA+1}, v{LN}, 5, 1", f"v_bfe_u32 v{vRW}, v{LN}, 2, 1", f"v_xor_b32 v{TA+1}, v{TA+1}, v{vRW}",
              f"v_lshl_add_u32 v{TA}, v{TA+1}, 4, v{TA}", f"v_bfe_u32 v{TA+1}, v{LN}, 4, 1", f"v_mul_u32_u24 v{TA+1}, 10240, v{TA+1}", f"v_add3_u32 v{vRW}, v{TA}, v{TA+1}, s{sLB}"]
        wrl = lambda st: [f"ds_write_b128 v{vRW}, v[{20*st+4*jn}:{20*st+4*jn+3}] offset:{2560*st + 32*jn}" for jn in range(5)]
        rd = [f"s_mul_i32 s{t}, s{sWAVE}, 80", f"v_add_u32 v{RA}, s{t}, v{LN}", f"v_add_u32 v{RA+1}, 64, v{RA}",
              f"s_lshl_b32 s{t+2}, s{sR64}, 8", f"s_add_u32 s{t+2}, s{t+2}, {WS_G + 8192}"]
        for k in range(2):
            rd += [f"v_mul_u32_u24 v{RA+2}, 6554, v{RA+k}", f"v_lshrrev_b32 v{RA+2}, 16, v{RA+2}", f"v_mad_i32_i24 v{RA+3}, v{RA+2}, -10, v{RA+k}", f"v_lshlrev_b32 v{TA+2+k}, 2, v{RA+2}",
                   f"buffer_load_dword v{TA+2+k}, v{TA+2+k}, {WSR}, s{t+2} offen sc1",
                   f"v_bfe_u32 v{RA+6}, v{RA+2}, 2, 1", f"v_xor_b32 v{RA+k}, v{RA+k}, v{RA+6}",
                   f"v_mul_u32_u24 v{RA+2}, 1280, v{RA+2}", f"v_lshl_add_u32 v{RA+4+k}, v{RA+3}, 4, v{RA+2}", f"v_lshlrev_b32 v{RA+k}, 4, v{RA+k}"]
        rd += [f"v_add_u32 v{RA+6}, 61440, v{RA}", f"v_add_u32 v{RA+7}, 61440, v{RA+1}", f"v_add_u32 v{RA+8}, 122880, v{RA}", f"v_add_u32 v{RA+9}, 122880, v{RA+1}"]
        rd += [f"s_mov_b32 s{SRD_M}, s{pOUT}", f"s_mov_b32 s{SRD_M+1}, s{pOUT+1}", f"s_mov_b32 s{SRD_M+2}, {2048*640*2}", f"s_mov_b32 s{SRD_M+3}, 0x20000",
               f"s_mul_i32 s{t}, s{sR64}, 81920", f"s_mul_i32 s{t+1}, s{sC}, 160", f"s_add_u32 s{t}, s{t}, s{t+1}"]
        def flagvec(vt, with_act):
            a(f"v_lshlrev_b32 v{vP}, 2, v{LN}\nv_add_u32 v{vP}, s{sFk}, v{vP}\nv_mov_b32 v{vt}, 1\nv_cmp_le_u32 vcc, 4, v{LN}\nv_mov_b32 v{vt+1}, s{sFq}\ns_add_u32 s{t+2}, s{sFa}, 8")
            a(f"v_cndmask_b32 v{vP}, v{vP}, v{vt+1}, vcc")
            if with_act:
                a(f"v_cmp_lt_u32 vcc, 4, v{LN}\nv_mov_b32 v{vt+1}, s{t+2}\ns_nop 0\nv_cndmask_b32 v{vP}, v{vP}, v{vt+1}, vcc\nv_cndmask_b32 v{vt}, v{vt}, 2, vcc")

        a(f"s_setprio 0\nv_lshrrev_b32 v{LN}, 4, v{vL16}")
        a(f"s_xor_b32 s{sLB}, s{sWAVE}, 4\ns_mul_i32 s{sLB}, s{sLB}, 20480\ns_mov_b32 s{sN208}, -208")
        a(f"s_lshl_b32 s{t+3}, s{sR64}, 8\ns_add_u32 s{t+3}, s{t+3}, {WS_G}\ns_add_u32 s{t}, s{sPQb}, 4096\ns_add_u32 s{t+1}, s{sPQb}, 8192")
        a(f"v_mov_b32 v{vP}, 0")
        if ADPRE: emit(ad)
        a("s_barrier")
        self.stamp(4)
        if WOPOS != "pre": a(f"buffer_load_dword v{vP+1}, v{vP}, {WSR}, s{sFa} offen sc1")
        self.pickup()
        if WOPOS == "pre":
            a("s_waitcnt lgkmcnt(0)")
            emit(dma(sMb, 13, 0, "wo"))
        if not ADPRE: emit(ad)
        a("s_waitcnt lgkmcnt(0)")
        for k in range(5): a(f"ds_write_b128 v{X+18}, v[{K0+4*k}:{K0+4*k+3}] offset:{13312 + 1024*k}")
        if WOPOS == "pre": self.poll(f"s{sFa}", 2, vP, vP + 1)
        else:
            a("s_waitcnt vmcnt(0)")
            check(f"s{sFa}", 2)
        self.stamp(6)
        PR = {"a": {-1: 3, 2: 2, 5: 1, 6: 0}, "b": {-1: 3, 1: 2, 3: 1, 6: 0}, "c": {-1: 1, 5: 0}, "d": {-1: 2, 5: 1, 7: 0}, "e": {-1: 3, 3: 2, 6: 1, 8: 0}}.get(PRIO, {})
        prio = lambda k: a(f"s_setprio {PR[k]}") if k in PR else None
        prio(-1)
        emit(act(0))
        a(f"v_lshlrev_b32 v{vP}, 7, v{LN}\nv_add_u32 v{vP}, s{sFk}, v{vP}\nv_cmp_le_u32 vcc, 4, v{LN}\nv_mov_b32 v{vG+1}, s{sFq}\nv_mov_b32 v{vG}, 16")
        a(f"v_cndmask_b32 v{vP}, v{vP}, v{vG+1}, vcc\nv_cndmask_b32 v{vG}, v{vG}, 25, vcc")
        fv = lambda: (a(f"buffer_load_dword v{vP+1}, v{vP}, {WSR}, 0 offen sc1"), seq.append("fv"))
        if FVAT < 0: fv()
        emit(act(1) + act(2))
        fill = (lambda: dma(sMb, 13, 0, "wo")) if WOPOS == "s0" else (lambda: lateb(3))
        for i in range(5):
            prio(i)
            wait(f"act{i}")
            if TAILDBG == 2 and i < 4: self.stamp((2, 3, 5, 7)[i], "tail")
            emit(interleave(mlp(i, i == 0), fill() if fill else []))
            fill = None
            if i == 0 and WOPOS == "s1": fill = lambda: dma(sMb, 13, 0, "wo")
            if i == 3 and WOPOS == "s4": fill = lambda: dma(sMb, 13, 0, "wo")
            if i == FVAT: fv()
            if i < 2: emit(act(i + 3))
            if i == PQAT:
                wait("fv")
                check("0", f"v{vG}", 8)
                if TAILDBG == 2: self.stamp(4, "tail")
                a(f"v_and_b32 v{vP+1}, 15, v{LN}\nv_lshlrev_b32 v{vP+1}, 2, v{vP+1}")
                f1 = lambda: lateb(4) + pq(PQR, 0) + pq(PQR, 1) + gld(vP + 1)
                if FILLI and i < 2: fill = f1
                else: emit(f1())
            if i == 2:
                a(f"v_add_u32 v{KA+19}, s{sLB}, v{vL16}")
                for k in range(5): a(f"ds_read_b128 v[{KA+4*k}:{KA+4*k+3}], v{KA+19} offset:{13312 + 1024*k}")
                a("s_waitcnt lgkmcnt(0)")
                f2 = lambda: dma(sKv, 7, 13312, "kv") + (act(5) + lateb() if WOPOS != "x" else []) + (dma(sMb, 13, 0, "wo") if WOPOS == "s3" else [])
                if FILLI: fill = f2
                else: emit(f2())
        self.stamp(7)
        prio(5)
        emit(consts)
        KP = 120
        wait("kv")
        self.stamp(8)
        gather(KA, lambda j: 200 + 4*j if j < 8 else 140 + 4*(j - 8), KP, PQR, 8)
        Oset = {1: ([200, 204, 208, 212, 216], 220), 0: ([162, 166, 170, 174, 224], 228)}
        SC = [178, 179, vP + 1]
        fq = fqf(PQR)
        S = lambda k: KP + 2*k
        def Xb(st):
            O, DN = Oset[st & 1]
            p0, p1, ps = fq(st, 0), fq(st, 2), fq(st, 4)
            return [K32(DN, S(16), p0, "0"), K32(O[3], S(10), p1, "0"), K32(O[4], S(12), p1, "0"), K32(DN, S(18), p1, acc(DN)),
                    K32(O[0], S(0), p0, "0"), K32(O[1], S(2), p0, "0"), K32(O[2], S(6), p0, "0"), K32(O[1], S(4), p1, acc(O[1])), K32(O[2], S(8), p1, acc(O[2])),
                    "s_nop 0", K16(DN, S(20), ps), K16(O[3], S(14), ps), K16(O[4], S(15), ps)]
        def Vb(st):
            O, DN = Oset[st & 1]
            return scales(st, DN, SC) + sum((vtile(st, tt, O[tt], DN, SC, fq) for tt in range(5)), [])
        def Yb(st):
            r = []
            for p in range(2):
                r += [K32(20*st + 4*jn, MR + 4*(2*jn + p), fq(st, 2*p), acc(20*st + 4*jn)) for jn in range(5)]
            return r + ["s_nop 1"] + [K16(20*st + 4*jn, MR + 40 + 2*jn, fq(st, 4)) for jn in range(5)]
        a("s_nop 1")
        late = (act(5) + lateb() + dma(sMb, 13, 0, "wo")) if WOPOS == "x" else []
        cuts = [0] + [len(late)*c//100 for c in XSPLIT] + [len(late)]
        emit(interleave(Xb(0), late[cuts[0]:cuts[1]]))
        for st in range(1, 4):
            x = Xb(st)
            emit(interleave(x[:6], late[cuts[st]:cuts[st+1]]) + interleave(x[6:], Vb(st - 1)))
        a(f"v_add_u32 v{TA}, s{sLB}, v{vL16}\nv_lshlrev_b32 v{TA+1}, 3, v{LN}\nv_add_u32 v{TA+1}, s{sLB}, v{TA+1}")
        wor = [f"ds_read_b128 v[{MR+4*f}:{MR+4*f+3}], v{TA} offset:{1024*f}" for f in range(10)]
        wor += [f"ds_read_b64 v[{MR+40+2*jn}:{MR+41+2*jn}], v{TA+1} offset:{10240 + 512*jn}" for jn in range(5)]
        prio(6)
        if WOPOS in ("s3", "s4", "x"):
            wait("act5")
            emit(interleave(mlp(5, False), Vb(3)))
            a("s_waitcnt vmcnt(0)")
            emit(wor + rw)
        else:
            emit(wor)
            wait("act5")
            emit(interleave(mlp(5, False), Vb(3) + rw))
        a("s_waitcnt lgkmcnt(0)")
        emit(interleave(Yb(0), rd[:25]))
        prio(7)
        emit(interleave(Yb(1), rd[25:] + wrl(0), 2))
        prio(8)
        emit(interleave(Yb(2), wrl(1), 6))
        emit(interleave(Yb(3), wrl(2), 6))
        a("s_nop 4")
        emit(wrl(3))
        a("s_waitcnt lgkmcnt(0)\ns_barrier")
        self.stamp(9)
        if RED == 0:
            for k in range(2):
                if k == 1: a("s_mov_b64 exec, 0xffff")
                R = 64*k
                for w in range(8):
                    for par in range(2):
                        base = [RA + k, RA + 6 + k, RA + 8 + k][w // 3]
                        a(f"ds_read_b128 v[{R+8*w+4*par}:{R+8*w+4*par+3}], v{base} offset:{20480*(w % 3) + 10240*par}")
            a("s_mov_b64 exec, -1")
            for k in range(2):
                R = 64*k
                a(f"s_waitcnt lgkmcnt({15 if k == 0 else 0})")
                for pairs in (((0, 4), (1, 5), (2, 6), (3, 7)), ((0, 2), (1, 3)), ((0, 1),)):
                    for x, y in pairs:
                        for j in range(4):
                            a(f"v_pk_add_f32 v[{R+8*x+2*j}:{R+8*x+2*j+1}], v[{R+8*x+2*j}:{R+8*x+2*j+1}], v[{R+8*y+2*j}:{R+8*y+2*j+1}]")
                if k == 0: a("s_waitcnt vmcnt(0)")
                for j in range(8): a(f"v_mul_f32 v{R+j}, v{TA+2+k}, v{R+j}")
                for j in range(4): a(f"v_cvt_pk_bf16_f32 v{R+j}, v{R+2*j}, v{R+2*j+1}")
                if k == 1: a("s_mov_b64 exec, 0xffff")
                a(f"buffer_store_dwordx4 v[{R}:{R+3}], v{RA+4+k}, s[{SRD_M}:{SRD_M+3}], s{t} offen {OUTFL}")
            a("s_mov_b64 exec, -1")


        else:
            items = [(k, w) for k in range(2) for w in range(8)]
            def rdp(n):
                k, w = items[n]
                base = [RA + k, RA + 6 + k, RA + 8 + k][w // 3]
                r = [f"ds_read_b128 v[{8*n+4*par}:{8*n+4*par+3}], v{base} offset:{20480*(w % 3) + 10240*par}" for par in range(2)]
                return r if k == 0 else ["s_mov_b64 exec, 0xffff"] + r + ["s_mov_b64 exec, -1"]
            AH = 6
            for n in range(AH): emit(rdp(n))
            for n, (k, w) in enumerate(items):
                if n + AH < 16: emit(rdp(n + AH))
                if w == 0: continue
                a(f"s_waitcnt lgkmcnt({2*min(AH, 15 - n)})")
                R = 64*k
                for j in range(4):
                    a(f"v_pk_add_f32 v[{R+2*j}:{R+2*j+1}], v[{R+2*j}:{R+2*j+1}], v[{8*n+2*j}:{8*n+2*j+1}]")
                if w == 7:
                    if k == 0: a("s_waitcnt vmcnt(0)")
                    for j in range(8): a(f"v_mul_f32 v{R+j}, v{TA+2+k}, v{R+j}")
                    for j in range(4): a(f"v_cvt_pk_bf16_f32 v{R+j}, v{R+2*j}, v{R+2*j+1}")
                    if k == 1: a("s_mov_b64 exec, 0xffff")
                    a(f"buffer_store_dwordx4 v[{R}:{R+3}], v{RA+4+k}, s[{SRD_M}:{SRD_M+3}], s{t} offen {OUTFL}")
            a("s_mov_b64 exec, -1")


def descriptor(name):
    return f""".p2align 6
.amdhsa_kernel {name}
  .amdhsa_next_free_vgpr 256
  .amdhsa_next_free_sgpr 102
  .amdhsa_accum_offset 256
  .amdhsa_group_segment_fixed_size 0
  .amdhsa_kernarg_size 88
  .amdhsa_user_sgpr_count 2
  .amdhsa_user_sgpr_kernarg_segment_ptr 1
  .amdhsa_system_sgpr_workgroup_id_x 1
.end_amdhsa_kernel
"""

def build(stamps):
    g = Gen(stamps=stamps)
    a = g.a
    K = NAME + "_kernel"
    hdr = open(os.path.join(os.path.dirname(os.path.abspath(__file__)), "header.txt")).read()
    for l in hdr.strip().split("\n"): a.lines.append(l)
    a(f"; @launch grid=(256,1,1) block=(512,1,1) lds={LDS_TOTAL}")
    a('.amdgcn_target "amdgcn-amd-amdhsa--gfx950"\n.text')
    a(f".globl {K}\n.p2align 8\n.type {K},@function")
    a.label(K)
    g.common_prologue("L_end")
    a(f"s_cmp_lt_u32 s{sWAVE}, 4\ns_cbranch_scc1 L_comp")
    g.loader1()
    a(f"s_setprio {LPRIO}")
    if not NE16:
        g.setup2()
        g.srd(SRD_WS, pWS, WS_SIZE)
    g.preload_b(NE16, NL0)
    if K1LDS: a(f"v_mov_b32 v6, {K1C}\nv_mov_b32 v7, 0\nds_write_b32 v6, v7\ns_waitcnt lgkmcnt(0)")
    a("s_barrier")
    if SKEW: a(f"v_mov_b32 v6, {HINT}\nv_mov_b32 v8, 0\nv_mov_b32 v9, 0\nv_mov_b32 v10, 0\nv_mov_b32 v11, 0\nds_write_b128 v6, v[8:11]\ns_waitcnt lgkmcnt(0)")
    g.preload_b(NL0, NL1, TH)
    if not K1LDS: a(f"s_cmp_lg_u32 s{sTYPE}, 0\ns_cbranch_scc1 L_l2\ns_barrier")
    a.label("L_l2")
    if DIAG != 3: g.preload_b(NL1, 5*NB, TH)
    if BLDS and DIAG != 3: g.stage_b()
    g.stamp(3)
    a.label("L_g2")
    g.gemm2()
    g.dump_stamps()
    a.label("L_end")
    a("s_endpgm")
    a.label("L_comp")
    a(f"s_cmp_eq_u32 s{sTYPE}, 0\ns_cbranch_scc1 L_kv")
    g.compute_P(); a("s_branch L_g2")
    a.label("L_kv")
    g.compute_KV(); a("s_branch L_g2")
    a.label("L_code_end")
    errs = lint(a.lines)
    for e in errs: print("HAZARD:", e, file=sys.stderr)
    return a.text() + '.section .rodata,"a"\n' + descriptor(K)

if __name__ == "__main__":
    open(sys.argv[1], "w").write(build(sys.argv[2] if len(sys.argv) > 2 else False))
```

```python
import sys, os, re
sys.path.insert(0, os.path.dirname(os.path.abspath(__file__)))
from asmlib import *

NAME = "gated_mix__linear_attn_block__dense_activation_mish__prompt"
ENV = os.environ.get

CNT_ACT, CNT_PQ, CNT_KV = 0, 256*128, 288*128
DONE_KV, DONE_PQ = 320*128, 328*128
WS_G = 0x10000
WS_KVP = 0x100000
WS_WOR = 0x200000
WS_W2R = 0x300000
WS_PQ = 0x500000
WS_ACT = 0x800000
WS_SIZE = 0x1000000
WS_STAMP = 0x8000000
BIG = 0x20000000
DBGW = int(ENV("DBGW", "0"))
ROTMODE = ENV("ROT", "two")
ROT2 = ENV("ROT2", "none")
NPRE = int(ENV("NPRE", "10"))
SPIN = int(ENV("SPIN", str(0x100000)))
WOAT = 3
ADPRE = int(ENV("ADPRE", "1"))
KVAT = int(ENV("KVAT", "-1"))
GSYNC = int(ENV("GSYNC", "0"))
PF = int(ENV("PF", "0"))
RS = int(ENV("RS", "3"))
S1AT = int(ENV("S1AT", "8"))
S1SLEEP = int(ENV("S1SLEEP", "2"))
LOOPDBG = int(ENV("LOOPDBG", "0"))
CPF = int(ENV("CPF", "1"))
RD = int(ENV("RD", "-1"))
SKEW = int(ENV("SKEW", "0"))
HINT = 3*20480 + 12800
TAILDBG = int(ENV("TAILDBG", "0"))
OUTFL = ENV("OUTFL", "").replace("_", " ")
LFLAG = int(ENV("LFLAG", "0"))
FAKE = int(ENV("FAKE", "0"))
SPLIT = int(ENV("SPLIT", "1"))
YSLEEP = int(ENV("YSLEEP", "8"))
PQAT = int(ENV("PQAT", "1"))
FILLI = int(ENV("FILLI", "1"))
FIRST0 = int(ENV("FIRST0", "0"))
PRIO = ENV("PRIO", "c")
LOOK = ENV("LOOK", "xw")
GBR = int(ENV("GBR", "0"))
STPRIO = int(ENV("STPRIO", "1"))
NRE = int(ENV("NRE", "20"))
SPREAD = int(ENV("SPREAD", "0"))
NE16 = int(ENV("NE16", "0"))
NL1 = int(ENV("NL1", "16"))
K1LDS = int(ENV("K1LDS", "1"))
K1C = 40960 + 2032
FVAT = int(ENV("FVAT", "0"))
WOPOS = ENV("WOPOS", "x")
RED = int(ENV("RED", "1"))
DIAG = int(ENV("DIAG", "0"))
LPRIO = int(ENV("LPRIO", "0"))
EPRIO = int(ENV("EPRIO", "0"))
TH = int(ENV("TH", "4"))
EARLYQ = int(ENV("EARLYQ", "0"))
NB = int(ENV("NB", "5"))
NTH = int(ENV("NTH", "36"))
XSPLIT = [int(v) for v in ENV("XSPLIT", "30,55,80").split(",")]
LRP = int(ENV("LRP", "0"))
MBOX = 161792
STRICTP = int(ENV("STRICTP", "1"))
LATEORD = int(ENV("LATEORD", "0"))
B20AT = int(ENV("B20AT", "14"))
MAP1 = ENV("MAP1", "h")
ROTQ = int(ENV("ROTQ", "1"))
PICK = int(ENV("PICK", "0"))
SLEEP = int(ENV("SLEEP", "8"))
BLDS = int(ENV("BLDS", "1"))
NL0 = int(ENV("NL0", "13"))
MAP2 = ENV("MAP2", "x2")
TOUCH = int(ENV("TOUCH", "0"))
MSDBG = int(ENV("MSDBG", "0"))
MSPRIO = int(ENV("MSPRIO", "1"))
MSPRIO2 = int(ENV("MSPRIO2", "1"))

XR = 0
STG = 40960
WR = 49152
WSLOT = 14336
NS = 6
GATE = WR + NS * WSLOT
SCR = GATE + 2048
MS = WR
BL = WR + 32768
BLF = STG + 2040
LDS_TOTAL = 163840

sWG = 2
pX, pWQKV, pWO, pW1, pB1, pW2, pGATE, pOUT, pDBG, pWS = 4, 6, 8, 12, 14, 16, 18, 20, 22, 24
sWAVE, sRB, sHALF, sCBL, sGRP, sF1, sROT, sPIDX, sTYPE, sT = 26, 27, 28, 29, 30, 31, 32, 33, 34, 35
SRD_WS, SRD_X, SRD_W, SRD_M, SRD_D = 36, 40, 44, 52, 56
T0 = 60
sST = 76
cL2E, cC, cE = 96, 98, 100
sR64, sC = 27, 28
sB0, sA0 = 40, 46
sPQb, sMb, sKv, sFk = 0, 1, 3, 29
sFa, sFq = 10, 11
BS, AB = 80, 200
PQR, MR, KA, KD = 80, 120, 120, 176
sLB, sN208 = 30, 33
vG, vP, vL16, vL16b = 248, 252, 254, 255
WSR = f"s[{SRD_WS}:{SRD_WS+3}]"


class Gen:
    def __init__(self, stamps=False):
        self.a = Asm()
        self.stamps = stamps

    def stamp(self, k, loop=False):
        if loop == "tail":
            if not TAILDBG: return
        elif TAILDBG and 1 <= k <= 7 and not (TAILDBG == 2 and k == 6): return
        elif LOOPDBG and k >= 3 and not loop: return
        elif loop and not LOOPDBG: return
        if self.stamps and not (self.stamps == "dbg" and k == 9):
            if k < 2 and self.stamps != "dbg" and loop != "tail":
                self.a(f"s_memtime s[58:59]\ns_waitcnt lgkmcnt(0)\ns_mov_b32 s{sST+2*k}, s58")
            else:
                self.a(f"s_memtime s[{sST+2*k}:{sST+2*k+1}]")

    def srd(self, d, ptr, size, add=None):
        a = self.a
        if add is None:
            a(f"s_mov_b32 s{d}, s{ptr}\ns_mov_b32 s{d+1}, s{ptr+1}")
        else:
            a(f"s_add_u32 s{d}, s{ptr}, {add}\ns_addc_u32 s{d+1}, s{ptr+1}, 0")
        a(f"s_mov_b32 s{d+2}, {size}\ns_mov_b32 s{d+3}, 0x20000")

    def signal(self, soff, v, off=0):
        self.a(f"v_mov_b32 v{v}, 1\nv_mov_b32 v{v+1}, 0\ns_mov_b64 exec, 1\nbuffer_atomic_add v{v}, v{v+1}, {WSR}, s{soff} offen offset:{off} sc1\ns_mov_b64 exec, -1")

    def arrive(self, soff, v):
        self.a(f"v_mov_b32 v{v}, 1\nv_mov_b32 v{v+1}, 0\ns_mov_b64 exec, 1\nbuffer_atomic_add v{v}, v{v+1}, {WSR}, s{soff} offen sc0 sc1\ns_mov_b64 exec, -1")

    def raise_if_last(self, v, last, soff):
        a = self.a
        sk = a.newlabel("L_last")
        a(f"v_readfirstlane_b32 s{T0+14}, v{v}\nv_mov_b32 v{v}, 1\nv_mov_b32 v{v+1}, 0\ns_cmp_lg_u32 s{T0+14}, {last}\ns_cbranch_scc1 {sk}")
        a(f"s_mov_b64 exec, 1\nbuffer_store_dword v{v}, v{v+1}, {WSR}, s{soff} offen sc1\ns_mov_b64 exec, -1")
        a.label(sk)

    def poll(self, soff, target, va, vd, srd=SRD_WS, sleep=None):
        a = self.a
        t = T0 + 15
        loop, done = a.newlabel("L_poll"), a.newlabel("L_polld")
        a(f"s_mov_b32 s{t}, 0")
        a.label(loop)
        a(f"buffer_load_dword v{vd}, v{va}, s[{srd}:{srd+3}], {soff} offen sc1\ns_waitcnt vmcnt(0)")
        a(f"v_cmp_le_u32 vcc, {target}, v{vd}\ns_add_u32 s{t}, s{t}, 1\ns_nop 0")
        a(f"s_cmp_eq_u64 vcc, -1\ns_cbranch_scc1 {done}")
        a(f"s_sleep {SLEEP if sleep is None else sleep}\ns_cmp_lt_u32 s{t}, {SPIN}\ns_cbranch_scc1 {loop}")
        a.label(done)

    def dump_stamps(self):
        if not self.stamps:
            return
        a = self.a
        a("s_waitcnt vmcnt(0) lgkmcnt(0)")
        a(f"s_memrealtime s[{T0}:{T0+1}]\ns_memtime s[{T0+2}:{T0+3}]")
        if self.stamps == "dbg":
            self.srd(SRD_M, pDBG, 256)
            a("s_waitcnt lgkmcnt(0)\nv_mov_b32 v2, 0\ns_mov_b64 exec, 1")
            sk = a.newlabel("L_dbg")
            a(f"s_lshl_b32 s{T0+5}, s{sWG}, 3\ns_add_u32 s{T0+5}, s{T0+5}, s{sWAVE}\ns_cmp_lg_u32 s{T0+5}, {DBGW}\ns_cbranch_scc1 {sk}")
            for k in range(1, 10):
                a(f"s_sub_u32 s{T0+5}, s{sST+2*k}, s{sST}\nv_mov_b32 v{3+k}, s{T0+5}")
            a(f"s_sub_u32 s{T0+5}, s{T0+2}, s{sST}\nv_mov_b32 v13, s{T0+5}\ns_sub_u32 s{T0+5}, s{T0}, s94\nv_mov_b32 v14, s{T0+5}\nv_mov_b32 v15, s94")
            for k in range(3):
                a(f"buffer_store_dwordx4 v[{4+4*k}:{7+4*k}], v2, s[{SRD_M}:{SRD_M+3}], 0 offen offset:{16+16*k}")
            a.label(sk)
            a("s_waitcnt vmcnt(0)")
            return
        a(f"s_getreg_b32 s{T0+4}, hwreg(HW_REG_XCC_ID)")
        self.srd(SRD_M, pWS, 0x10000000)
        a("s_waitcnt lgkmcnt(0)")
        for k in range(10):
            a(f"v_mov_b32 v{k}, s{sST+2*k}")
        a(f"v_mov_b32 v10, s{T0}\nv_mov_b32 v11, s{T0+2}\nv_mov_b32 v12, s{T0+4}\nv_mov_b32 v13, s{sTYPE}\nv_mov_b32 v14, s77\nv_mov_b32 v15, s79")
        a(f"s_lshl_b32 s{T0+5}, s{sWG}, 3\ns_add_u32 s{T0+5}, s{T0+5}, s{sWAVE}\ns_lshl_b32 s{T0+5}, s{T0+5}, 6\ns_add_u32 s{T0+5}, s{T0+5}, {WS_STAMP}")
        a("v_mov_b32 v16, 0\ns_mov_b64 exec, 1")
        for k in range(4):
            a(f"buffer_store_dwordx4 v[{4*k}:{4*k+3}], v16, s[{SRD_M}:{SRD_M+3}], s{T0+5} offen offset:{16*k}")
        a("s_waitcnt vmcnt(0)")

    def common_prologue(self, endlabel):
        a = self.a
        t = T0
        a(f"s_cmp_ge_u32 s{sWG}, 256\ns_cbranch_scc1 {endlabel}")
        a("s_load_dwordx16 s[4:19], s[0:1], 0\ns_load_dwordx4 s[20:23], s[0:1], 64\ns_load_dwordx2 s[24:25], s[0:1], 80")
        if self.stamps:
            for k in range(10): a(f"s_mov_b32 s{sST+2*k}, 0")
            if self.stamps == "dbg": a("s_memrealtime s[94:95]")
            else: a("s_memrealtime s[56:57]\ns_memtime s[58:59]\ns_waitcnt lgkmcnt(0)\ns_mov_b32 s77, s56\ns_mov_b32 s79, s58")
        if CPF:
            sk = a.newlabel("L_cpf")
            a(f"s_getpc_b64 s[{t}:{t+1}]\nL_pc0:\ns_lshr_b32 s{t+2}, s{sWG}, 3\ns_lshl_b32 s{t+2}, s{t+2}, 11\nv_lshlrev_b32 v2, 4, v0\nv_add_u32 v2, s{t+2}, v2")
            a(f"v_cmp_gt_u32 vcc, 128, v0\nv_min_u32 v2, L_code_end-L_pc0-16, v2\ns_and_saveexec_b64 s[{t+4}:{t+5}], vcc\ns_cbranch_execz {sk}")
            a(f"global_load_dwordx4 v[248:251], v2, s[{t}:{t+1}]")
            a.label(sk)
            a(f"s_mov_b64 exec, s[{t+4}:{t+5}]")
        a("v_lshrrev_b32 v1, 6, v0\nv_and_b32 v0, 63, v0")
        a(f"v_readfirstlane_b32 s{sWAVE}, v1")
        if MAP1 == "h":
            a(f"s_bfe_u32 s{t+2}, s{sWG}, 0x20001\ns_bfe_u32 s{t+3}, s{sWG}, 0x20003")
            a(f"s_lshl2_add_u32 s{sRB}, s{t+2}, s{t+3}\ns_and_b32 s{sHALF}, s{sWG}, 1\ns_lshr_b32 s{sCBL}, s{sWG}, 5")
            a(f"s_and_b32 s{t}, s{sCBL}, 3\ns_lshl2_add_u32 s{sGRP}, s{sHALF}, s{t}\ns_lshr_b32 s{sTYPE}, s{sCBL}, 2")
        else:
            a(f"s_bfe_u32 s{t+2}, s{sWG}, 0x10002\ns_bfe_u32 s{t+3}, s{sWG}, 0x30003\ns_lshl3_add_u32 s{sRB}, s{t+2}, s{t+3}")
            a(f"s_bfe_u32 s{sHALF}, s{sWG}, 0x10001\ns_lshr_b32 s{sTYPE}, s{sWG}, 7\ns_bfe_u32 s{t}, s{sWG}, 0x10006\ns_and_b32 s{t+1}, s{sWG}, 1")
            a(f"s_lshl1_add_u32 s{t+4}, s{t+1}, s{t}\ns_lshl1_add_u32 s{t+5}, s{t}, s{t+1}\ns_cmp_eq_u32 s{sTYPE}, 0\ns_cselect_b32 s{t}, s{t+4}, s{t+5}")
            a(f"s_lshl2_add_u32 s{sCBL}, s{sTYPE}, s{t}\ns_lshl2_add_u32 s{sGRP}, s{sHALF}, s{t}")
            a(f"s_lshr_b32 s{t+4}, s{sWG}, 6\ns_add_u32 s{t+4}, s{t+4}, s{t+3}\ns_and_b32 s{t+4}, s{t+4}, 1\ns_mul_i32 s{t+4}, s{t+4}, 5\ns_lshl_b32 s{t+5}, s{t+2}, 1\ns_add_u32 s{t+4}, s{t+4}, s{t+5}\ns_and_b32 s{t+5}, s{sWG}, {ROTQ}\ns_min_u32 s{t+5}, s{t+5}, 2\ns_add_u32 s{sROT}, s{t+4}, s{t+5}")
        if MAP1 != "h": pass
        elif ROTMODE == "full":
            a(f"s_mul_i32 s{t+4}, s{t+3}, 5\ns_add_u32 s{t+4}, s{t+4}, 1\ns_lshr_b32 s{t+4}, s{t+4}, 1")
            a(f"s_add_u32 s{t+4}, s{t+4}, s{sCBL}\ns_add_u32 s{t+4}, s{t+4}, s{t+2}")
            a(f"s_mul_i32 s{t+5}, s{sHALF}, 5\ns_add_u32 s{sROT}, s{t+4}, s{t+5}")
            for _ in range(2):
                a(f"s_sub_u32 s{t+4}, s{sROT}, 10\ns_cmp_ge_u32 s{sROT}, 10\ns_cselect_b32 s{sROT}, s{t+4}, s{sROT}")
        elif ROTMODE == "none":
            a(f"s_mov_b32 s{sROT}, 0")
        elif ROTMODE == "xcd":
            a(f"s_mul_i32 s{t+4}, s{t+2}, 5\ns_add_u32 s{t+4}, s{t+4}, 1\ns_lshr_b32 s{t+4}, s{t+4}, 1\ns_add_u32 s{sROT}, s{t+4}, s{sHALF}")
        elif ROTMODE == "two0":
            a(f"s_add_u32 s{t+4}, s{t+3}, s{sCBL}\ns_and_b32 s{t+4}, s{t+4}, 1\ns_mul_i32 s{sROT}, s{t+4}, 5")
        elif ROTMODE == "two1":
            a(f"s_add_u32 s{t+4}, s{t+3}, s{sCBL}\ns_and_b32 s{t+4}, s{t+4}, 1\ns_mul_i32 s{t+4}, s{t+4}, 5\ns_and_b32 s{t+5}, s{t+2}, 1\ns_lshl1_add_u32 s{sROT}, s{t+5}, s{t+4}")
        elif ROTMODE == "two":
            a(f"s_add_u32 s{t+4}, s{t+3}, s{sCBL}\ns_and_b32 s{t+4}, s{t+4}, 1\ns_mul_i32 s{t+4}, s{t+4}, 5")
            a(f"s_add_u32 s{t+4}, s{t+4}, s{t+2}\ns_add_u32 s{sROT}, s{t+4}, s{sHALF}")

    def loader1(self):
        a = self.a
        t = T0
        sLW = sT
        vXE, vXO, vW, vGt = 2, 3, 4, 8
        sStr, sCol, sA32, sA64, sOff, sXo, sWB, sWB2, sXB, sXP, sSel = 48, 49, 50, 51, t+4, t+5, t+6, t+7, t+8, t+9, t+10
        sKind = 72
        a(f"s_setprio 2\ns_sub_u32 s{sLW}, s{sWAVE}, 4")
        a("v_lshrrev_b32 v10, 3, v0\nv_and_b32 v11, 7, v0\nv_lshrrev_b32 v12, 4, v0\nv_mul_u32_u24 v13, 1280, v10\nv_xor_b32 v14, v11, v12")
        a(f"s_and_b32 s{t}, s{sLW}, 1\ns_lshl_b32 s{t}, s{t}, 6")
        a(f"v_lshl_add_u32 v13, v14, 4, v13\nv_xor_b32 v{vXE}, s{t}, v13\nv_xor_b32 v{vXO}, 64, v{vXE}")
        if FIRST0: a(f"s_mov_b32 s{sA32}, 0\ns_mov_b32 s{sA64}, 0\ns_min_u32 s{sROT}, s{sROT}, 8")
        else: a(f"s_lshl_b32 s{sA32}, s{sROT}, 1\ns_mov_b32 s{sA64}, s{sROT}")
        a(f"s_mul_i32 s{sXB}, s{sLW}, 3072\ns_mul_i32 s{sXP}, s{sLW}, 30720")
        for k in range(6, 10): a(f"v_mov_b32 v{k}, {BIG}")
        lKV, lQH, lLN, lJ = a.newlabel("L_wkv"), a.newlabel("L_wqh"), a.newlabel("L_wln"), a.newlabel("L_wj")
        a(f"s_cmp_eq_u32 s{sTYPE}, 0\ns_cbranch_scc1 {lKV}")
        a(f"s_cmp_eq_u32 s{sLW}, 3\ns_cbranch_scc1 {lQH}")
        a(f"s_mov_b32 s{sSel}, 1\ns_mov_b32 s{sStr}, 3072\ns_mul_i32 s{sCol}, s{sGRP}, 3\ns_add_u32 s{sCol}, s{sCol}, s{sLW}\ns_lshl_b32 s{sCol}, s{sCol}, 7\ns_lshl_b32 s{sWB}, s{sLW}, 12")
        a.label(lLN)
        a(f"v_and_b32 v13, 4, v10\nv_add_u32 v13, v13, v10\nv_mul_u32_u24 v13, s{sStr}, v13\nv_lshlrev_b32 v12, 1, v12\nv_xor_b32 v12, v11, v12\nv_lshl_add_u32 v{vW}, v12, 4, v13")
        a(f"s_lshl_b32 s{t}, s{sStr}, 4\ns_lshl_b32 s{t+1}, s{sStr}, 2\nv_add_u32 v{vW+1}, s{t}, v{vW}\nv_add_u32 v{vW+2}, s{t+1}, v{vW}\nv_add_u32 v{vW+3}, s{t}, v{vW+2}")
        a(f"s_branch {lJ}")
        a.label(lQH)
        a(f"s_mov_b32 s{sSel}, 0\ns_mov_b32 s{sStr}, 3840\ns_lshl_b32 s{sCol}, s{sHALF}, 1\ns_add_u32 s{sCol}, s{sCol}, s{sCBL}\ns_add_u32 s{sCol}, s{sCol}, 12\ns_lshl_b32 s{sCol}, s{sCol}, 6")
        a(f"s_cmp_lt_u32 s{sCBL}, 6\ns_cselect_b32 s{sCol}, s{sCol}, {BIG}\ns_mov_b32 s{sWB}, 12288\ns_mov_b32 s{sWB2}, 13312")
        a(f"v_lshrrev_b32 v10, 2, v0\nv_and_b32 v13, 12, v10\nv_add_u32 v13, v13, v10\nv_mul_u32_u24 v13, 3840, v13\nv_and_b32 v11, 3, v0\nv_and_b32 v12, 1, v12\nv_lshlrev_b32 v12, 1, v12\nv_xor_b32 v12, v11, v12")
        a(f"v_lshl_add_u32 v{vW}, v12, 4, v13\nv_add_u32 v{vW+1}, 15360, v{vW}")
        a(f"s_lshl_b32 s{t}, s{sROT}, 3\nv_mov_b32 v14, {BIG}")
        for j in range(2):
            if FIRST0:
                a(f"v_add_u32 v10, {64*j}, v0\nv_add_u32 v11, s{t}, v10\nv_subrev_u32 v12, 72, v11\nv_cmp_gt_u32 vcc, 80, v11\ns_nop 1\nv_cndmask_b32 v11, v12, v11, vcc\nv_cmp_gt_u32 vcc, 8, v10\ns_nop 1\nv_cndmask_b32 v11, v11, v10, vcc")
                a(f"v_cmp_gt_u32 vcc, 80, v10\nv_lshlrev_b32 v11, 4, v11\ns_nop 0\nv_cndmask_b32 v{vGt+j}, v14, v11, vcc")
            else:
                a(f"v_add_u32 v10, {64*j}, v0\nv_add_u32 v11, s{t}, v10\nv_cmp_gt_u32 vcc, 80, v10\nv_subrev_u32 v12, 80, v11\nv_min_u32 v11, v11, v12\nv_lshlrev_b32 v11, 4, v11\nv_cndmask_b32 v{vGt+j}, v14, v11, vcc")
        a(f"s_branch {lJ}")
        a.label(lKV)
        a(f"s_mov_b32 s{sSel}, 0\ns_mov_b32 s{sStr}, 3840\ns_mul_i32 s{sWB}, s{sLW}, 5120\ns_lshl_b32 s{sCol}, s{sGRP}, 7")
        a(f"s_cmp_eq_u32 s{sLW}, 2\ns_cbranch_scc1 {lLN}")
        a(f"s_mul_i32 s{sCol}, s{sGRP}, 160\ns_cmp_eq_u32 s{sLW}, 1\ns_cselect_b32 s{t}, 2560, 1280\ns_add_u32 s{sCol}, s{sCol}, s{t}")
        a(f"s_cmp_eq_u32 s{sLW}, 3\ns_cselect_b32 s{t}, 256, 0\ns_cselect_b32 s{sWB}, 4096, s{sWB}\ns_mov_b32 s{sWB2}, 9216")
        a(f"v_add_u32 v14, s{t}, v0")
        for j in range(4):
            a(f"v_add_u32 v10, {64*j}, v14\nv_mul_u32_u24 v11, 6554, v10\nv_lshrrev_b32 v11, 16, v11\nv_mad_i32_i24 v10, v11, -10, v10")
            a("v_and_b32 v12, 12, v11\nv_and_b32 v13, 3, v11\nv_lshl_or_b32 v12, v12, 1, v13\nv_bfe_u32 v13, v11, 4, 1\nv_lshl_or_b32 v12, v13, 2, v12")
            a(f"v_mul_u32_u24 v12, 3840, v12\nv_lshl_add_u32 v{vW+j}, v10, 4, v12")
            if j == 0:
                a(f"v_add_u32 v{vW+1}, 1280, v{vW}\ns_cmp_eq_u32 s{sLW}, 3\ns_cbranch_scc1 {lJ}")
        a.label(lJ)
        a(f"s_lshl_b32 s{sStr}, s{sStr}, 5\ns_mul_i32 s{t}, s{sRB}, 163840")
        a("s_waitcnt lgkmcnt(0)")
        self.stamp(0)
        self.srd(SRD_X, pX, 163840, add=f"s{t}")
        a(f"s_cmp_eq_u32 s{sSel}, 0\ns_cselect_b32 s{SRD_W}, s{pWQKV}, s{pW1}\ns_cselect_b32 s{SRD_W+1}, s{pWQKV+1}, s{pW1+1}\ns_cselect_b32 s{SRD_W+2}, {640*1920*2}, {640*1536*2}\ns_mov_b32 s{SRD_W+3}, 0x20000")
        lab3, lab4, labj = a.newlabel("L_ld3"), a.newlabel("L_ld4"), a.newlabel("L_ldj")
        lab0k, lab3k = a.newlabel("L_ld0k"), a.newlabel("L_ld3k")
        a(f"s_cmp_eq_u32 s{sLW}, 3\ns_cbranch_scc1 {lab3}")
        for variant, rp in (((0, 1), (0, 0), (3, 1), (3, 0), (4, 1)) if LRP else ((0, 0), (3, 0), (4, 0))):
            if LRP and (variant, rp) == (0, 1): a(f"s_cmp_eq_u32 s{sTYPE}, 0\ns_cbranch_scc1 {lab0k}")
            if LRP and (variant, rp) == (0, 0): a.label(lab0k)
            if LRP and (variant, rp) == (3, 0): a.label(lab3k)
            if variant == 3 and (rp or not LRP):
                a.label(lab3)
                a(f"s_cmp_ge_u32 s{sCBL}, 6\ns_cbranch_scc1 {lab4}")
                if LRP: a(f"s_cmp_eq_u32 s{sTYPE}, 0\ns_cbranch_scc1 {lab3k}")
            if variant == 4:
                a.label(lab4)
            nW = {0: 4, 3: 2, 4: 0}[variant]
            nX = 3 if variant == 0 else 7
            seq = []
            def issue_W(i):
                if nW == 0: return
                a(f"s_mul_i32 s{sOff}, s{sA32}, s{sStr}")
                for j in range(nW):
                    base, off = (sWB, 1024*j) if variant == 0 else ((sWB, sWB2)[j], 0)
                    a(f"s_add_u32 m0, s{base}, {WR + (i % NS)*WSLOT + off}")
                    a(f"s_add_u32 s{sOff}, s{sOff}, s{sCol}" if j == 0 else "s_nop 0")
                    a(f"buffer_load_dwordx4 v{vW+j}, s[{SRD_W}:{SRD_W+3}], s{sOff} offen lds")
                    seq.append(("W", i))
                if FIRST0 and i == 1: a(f"s_lshl1_add_u32 s{sA32}, s{sROT}, 2")
                else: a(f"s_add_u32 s{sA32}, s{sA32}, 1\ns_cmp_eq_u32 s{sA32}, 20\ns_cselect_b32 s{sA32}, {2 if FIRST0 else 0}, s{sA32}")
            def issue_X(jx):
                a(f"s_lshl_b32 s{sXo}, s{sA64}, 7")
                for j in range(nX):
                    a(f"s_add_u32 m0, s{sXB}, {XR + (jx % 3)*16384 + 1024*j}")
                    a(f"s_add_u32 s{sXo}, s{sXo}, " + (f"s{sXP}" if j == 0 else "10240"))
                    a(f"buffer_load_dwordx4 v{vXE + (j & 1)}, s[{SRD_X}:{SRD_X+3}], s{sXo} offen lds")
                    seq.append(("X", jx))
                if FIRST0 and jx == 0: a(f"s_add_u32 s{sA64}, s{sROT}, 1")
                else: a(f"s_add_u32 s{sA64}, s{sA64}, 1\ns_cmp_eq_u32 s{sA64}, 10\ns_cselect_b32 s{sA64}, {1 if FIRST0 else 0}, s{sA64}")
            def wait_for(items):
                last = max([n for n, it in enumerate(seq) if it in items] + [-1])
                if last >= 0: a(f"s_waitcnt vmcnt({len(seq) - 1 - last})")
            issue_X(0); issue_W(0)
            if variant == 4:
                self.srd(SRD_M, pGATE, 1280)
                for j in range(2):
                    a(f"s_mov_b32 m0, {GATE + 1024*j}\ns_nop 0\nbuffer_load_dwordx4 v{vGt+j}, s[{SRD_M}:{SRD_M+3}], 0 offen lds")
                    seq.append(("W", 0))
            issue_W(1)
            wait_for([("W", 0), ("X", 0)]); self.stamp(1); a("s_barrier")
            issue_X(1)
            wait_for([("W", 1)]); a("s_barrier")
            issue_W(2); issue_W(3); issue_X(2); issue_W(4)
            if LOOK == "full": issue_W(5)
            for j in range(1, 10):
                if j == (8 if NE16 else 9) and variant == 0:
                    sk = a.newlabel("L_s1skip")
                    a(f"s_cmp_lg_u32 s{sWAVE}, 4\ns_cbranch_scc1 {sk}")
                    self.srd(SRD_D, pDBG, 256)
                    a("v_mov_b32 v10, 128")
                    self.poll("0", 1, 10, 11, SRD_D, S1SLEEP)
                    a.label(sk)
                if rp and j == LRP + 2:
                    last = max(n for n, it in enumerate(seq) if it in (("W", 2*j), ("W", 2*j + 1), ("X", j)))
                    N = len(seq) - 1 - last
                    w1, w2, w3 = a.newlabel("L_wv"), a.newlabel("L_wv"), a.newlabel("L_wv")
                    a(f"s_cmp_eq_u32 s{sKind}, 1\ns_cbranch_scc1 {w1}\ns_cmp_eq_u32 s{sKind}, 2\ns_cbranch_scc1 {w2}\ns_waitcnt vmcnt({N})\ns_branch {w3}\n{w1}:\ns_waitcnt vmcnt({N+4})\ns_branch {w3}\n{w2}:\ns_waitcnt vmcnt({N+8})\n{w3}:")
                else:
                    wait_for([("W", 2*j), ("W", 2*j + 1), ("X", j)])
                if rp and variant == 0 and j == LRP + 4:
                    sk = a.newlabel("L_s1b")
                    a(f"s_cmp_lg_u32 s{sWAVE}, 4\ns_cbranch_scc1 {sk}\nv_readfirstlane_b32 s{t}, v70\nv_mov_b32 v71, 1\ns_cmp_lg_u32 s{t}, 127\ns_cbranch_scc1 {sk}")
                    self.srd(SRD_D, pDBG, 256)
                    a(f"s_mov_b64 exec, 1\nbuffer_store_dword v71, v69, s[{SRD_D}:{SRD_D+3}], 0 offen offset:128 sc1\ns_mov_b64 exec, -1")
                    a.label(sk)
                a("s_barrier")
                if rp and j == LRP:
                    self.srd(SRD_WS, pWS, WS_SIZE)
                    sk = a.newlabel("L_z")
                    a(f"v_lshlrev_b32 v69, 4, v0\ns_cmp_ge_u32 s{sLW}, 2\ns_cbranch_scc1 {sk}\ns_lshl3_add_u32 s{t}, s{sRB}, s{sGRP}\ns_lshl_b32 s{t}, s{t}, 9\ns_mul_i32 s{t+1}, s{sLW}, {WS_KVP}\ns_add_u32 s{t}, s{t}, s{t+1}")
                    a("v_mov_b32 v64, 0\nv_mov_b32 v65, 0\nv_mov_b32 v66, 0\nv_mov_b32 v67, 0\ns_mov_b32 exec_hi, 0")
                    a(f"buffer_store_dwordx4 v[64:67], v69, {WSR}, s{t} offen sc1\ns_mov_b32 exec_hi, -1")
                    a.label(sk)
                if rp and variant == 0 and j == LRP + 3:
                    sk = a.newlabel("L_s1a")
                    a(f"s_cmp_lg_u32 s{sWAVE}, 4\ns_cbranch_scc1 {sk}")
                    self.srd(SRD_D, pDBG, 256)
                    a(f"v_mov_b32 v70, 1\ns_mov_b64 exec, 1\nbuffer_atomic_add v70, v69, s[{SRD_D}:{SRD_D+3}], 0 offen sc0 sc1\ns_mov_b64 exec, -1")
                    a.label(sk)
                if LOOK == "ramp" and j == 1: issue_W(5)
                if j + 1 < 10 and LOOK == "xw": issue_W(2*j + 3)
                if j + 2 < 10: issue_X(j + 2); issue_W(2*j + 4)
                if j + 2 < 10 and LOOK != "xw": issue_W(2*j + 5)
                if rp and j == LRP:
                    a(f"s_lshl_b32 s{t}, s{sLW}, 6\ns_add_u32 s{t}, s{t}, {MBOX}\nv_mov_b32 v68, s{t}\nds_read_b128 v[16:19], v68\nds_read_b128 v[20:23], v68 offset:16\nds_read_b32 v24, v68 offset:32")
                    a(f"v_lshrrev_b32 v10, 2, v0\nv_and_b32 v11, 3, v0\nv_lshlrev_b32 v11, 3, v11\nv_lshl_add_u32 v10, v10, 7, v11\ns_lshl_b32 s{t}, s{sLW}, 12\ns_add_u32 s{t}, s{t}, {SCR}\nv_add_u32 v10, s{t}, v10")
                    for r in range(2):
                        for u in range(4):
                            a(f"ds_read_b64_tr_b16 v[{32+16*r+4*u}:{33+16*r+4*u}], v10 offset:{8192*r + 32*u}\nds_read_b64_tr_b16 v[{34+16*r+4*u}:{35+16*r+4*u}], v10 offset:{8192*r + 32*u + 2048}")
                    a(f"s_waitcnt lgkmcnt(0)\nv_readfirstlane_b32 s{sKind}, v24\nv_lshrrev_b32 v25, 1, v69")
                    for u in range(4): a(f"v_add_u32 v{16+u}, v{16+u}, v69")
                    for u in range(4):
                        a(f"buffer_store_dwordx4 v[{32+4*u}:{35+4*u}], v{16+u}, {WSR}, 0 offen sc1"); seq.append(("S", u))
                if rp and j == LRP + 1:
                    k2, k3 = a.newlabel("L_r2"), a.newlabel("L_r2")
                    a(f"s_cmp_eq_u32 s{sKind}, 0\ns_cbranch_scc1 {k2}\ns_cmp_eq_u32 s{sKind}, 2\ns_cbranch_scc1 {k3}")
                    for u in range(4): a(f"v_add_u32 v{20+u}, v{20+u}, v69\nbuffer_store_dwordx4 v[{48+4*u}:{51+4*u}], v{20+u}, {WSR}, 0 offen sc1")
                    a(f"s_branch {k2}\n{k3}:\ns_mov_b32 s{t}, 12800")
                    for u in range(4): a(f"v_add_u32 v{20+u}, v{20+u}, v25\nbuffer_store_dwordx2 v[{48+4*u}:{49+4*u}], v{20+u}, {WSR}, 0 offen sc1\nbuffer_store_dwordx2 v[{50+4*u}:{51+4*u}], v{20+u}, {WSR}, s{t} offen sc1")
                    a.label(k2)
                if j == 8 and NE16:
                    self.setup2()
                    self.srd(SRD_WS, pWS, WS_SIZE)
                    self.preload_b(0, NE16)
                    seq.extend(["B"] * NE16)
            if variant != 4:
                a(f"s_branch {labj}")
        a.label(labj)
        self.stamp(2)

    def mish_quad(self, h, dst, tmp):
        P = lambda r: f"v[{r}:{r+1}]"
        return [
            f"v_pk_fma_f32 {P(tmp)}, {P(h)}, s[{cL2E}:{cL2E+1}], -0.5 op_sel_hi:[1,1,0]",
            f"v_pk_fma_f32 {P(tmp+2)}, {P(h+2)}, s[{cL2E}:{cL2E+1}], -0.5 op_sel_hi:[1,1,0]",
            f"v_exp_f32 v{tmp}, v{tmp}", f"v_exp_f32 v{tmp+1}, v{tmp+1}", f"v_exp_f32 v{tmp+2}, v{tmp+2}", f"v_exp_f32 v{tmp+3}, v{tmp+3}",
            f"v_pk_add_f32 {P(tmp)}, {P(tmp)}, s[{cC}:{cC+1}]", f"v_pk_add_f32 {P(tmp+2)}, {P(tmp+2)}, s[{cC}:{cC+1}]",
            f"v_pk_fma_f32 {P(tmp)}, {P(tmp)}, {P(tmp)}, 0.5 op_sel_hi:[1,1,0]",
            f"v_pk_fma_f32 {P(tmp+2)}, {P(tmp+2)}, {P(tmp+2)}, 0.5 op_sel_hi:[1,1,0]",
            f"v_rcp_f32 v{tmp}, v{tmp}", f"v_rcp_f32 v{tmp+1}, v{tmp+1}", f"v_rcp_f32 v{tmp+2}, v{tmp+2}", f"v_rcp_f32 v{tmp+3}, v{tmp+3}",
            f"v_pk_fma_f32 {P(tmp)}, {P(h)}, {P(tmp)}, {P(h)} neg_lo:[1,0,0] neg_hi:[1,0,0]",
            f"v_pk_fma_f32 {P(tmp+2)}, {P(h+2)}, {P(tmp+2)}, {P(h+2)} neg_lo:[1,0,0] neg_hi:[1,0,0]",
            f"v_cvt_pk_bf16_f32 v{dst}, v{tmp}, v{tmp+1}", f"v_cvt_pk_bf16_f32 v{dst+1}, v{tmp+2}, v{tmp+3}",
        ]

    def phi_quad(self, h, dst, tmp):
        P = lambda r: f"v[{r}:{r+1}]"
        return [
            f"v_pk_mul_f32 {P(tmp)}, {P(h)}, s[{cL2E}:{cL2E+1}]", f"v_pk_mul_f32 {P(tmp+2)}, {P(h+2)}, s[{cL2E}:{cL2E+1}]",
            f"v_exp_f32 v{tmp}, v{tmp} clamp", f"v_exp_f32 v{tmp+1}, v{tmp+1} clamp", f"v_exp_f32 v{tmp+2}, v{tmp+2} clamp", f"v_exp_f32 v{tmp+3}, v{tmp+3} clamp",
            f"v_pk_add_f32 {P(h)}, {P(h)}, s[{cC}:{cC+1}]", f"v_pk_add_f32 {P(h+2)}, {P(h+2)}, s[{cC}:{cC+1}]",
            f"v_pk_add_f32 {P(tmp)}, {P(tmp)}, s[{cE}:{cE+1}]", f"v_pk_add_f32 {P(tmp+2)}, {P(tmp+2)}, s[{cE}:{cE+1}]",
            f"v_max_f32 v{tmp}, v{tmp}, v{h}", f"v_max_f32 v{tmp+1}, v{tmp+1}, v{h+1}", f"v_max_f32 v{tmp+2}, v{tmp+2}, v{h+2}", f"v_max_f32 v{tmp+3}, v{tmp+3}, v{h+3}",
            f"v_cvt_pk_bf16_f32 v{dst}, v{tmp}, v{tmp+1}", f"v_cvt_pk_bf16_f32 v{dst+1}, v{tmp+2}, v{tmp+3}",
        ]

    def consts(self, kind):
        if kind == "mish":
            self.a(f"s_mov_b32 s{cC}, 0x3f3504f3\ns_mov_b32 s{cC+1}, 0x3f3504f3")
        else:
            self.a(f"s_mov_b32 s{cC}, 0x3f800008\ns_mov_b32 s{cC+1}, 0x3f800008\ns_mov_b32 s{cE}, 0x358637bd\ns_mov_b32 s{cE+1}, 0x358637bd")

    def main_loop(self, reads, mfmas, extra, nread_end, bases):
        a = self.a
        a("s_barrier")
        self.stamp(1)
        for l in reads(0): a(l)
        for l in extra.get(0, ([], [], []))[1]: a(l)
        a("s_waitcnt lgkmcnt(0)")
        for i in range(1, 21):
            if (i == 1 or i % 2 == 0) and i < 20: a("s_barrier")
            if i in (2, 4, 6, 8, 10, 14, 18): self.stamp(3 + (2, 4, 6, 8, 10, 14, 18).index(i), True)
            pre, fill, preb = extra.get(i, ([], [], []))
            for l in pre: a(l)
            if i < 20:
                tail = []
                if (i + 1) % 3 == 0 and i + 1 < 20:
                    op = "v_add_u32" if ((i + 1) % NS) == 3 else "v_subrev_u32"
                    tail = [f"{op} v{b}, {3*WSLOT}, v{b}" for b in bases]
                body = interleave(mfmas(i - 1), reads(i) + fill + tail, 0, nread_end)
                for l in body: a(l)
                for l in preb: a(l)
                a("s_waitcnt lgkmcnt(0)")
            else:
                m19 = mfmas(19)
                for l in m19[:B20AT] + ["s_barrier"] + m19[B20AT:]: a(l)
        self.stamp(2)

    def finish1(self, flags, strict=False, late8=False):
        a = self.a
        self.setup2()
        if LFLAG:
            if late8: a(f"s_add_u32 s{flags[0]}, s{flags[0]}, 8")
            a(f"s_mov_b32 s32, s{flags[1]}")
            self.preload_b(0, NPRE)
            return
        if strict:
            a("s_waitcnt vmcnt(0)")
            self.stamp(5)
            for f in flags: self.signal(f, 1)
            self.preload_b(0, NPRE)
            return
        self.preload_b(0, NPRE)
        a(f"s_waitcnt vmcnt({NPRE})")
        self.stamp(5)
        for f in flags: self.signal(f, 1)
        if not BLDS:
            self.preload_b(NPRE, 30)
            return

    def pickup(self):
        a = self.a
        t = T0
        sk = a.newlabel("L_pk")
        a(f"s_cmp_ge_u32 s{sWAVE}, 4\ns_cbranch_scc1 {sk}")
        a(f"s_mul_i32 s{t+14}, s{sWAVE}, 20480\ns_add_u32 s{t+14}, s{t+14}, {BL}\nv_add_u32 v{BS+117}, s{t+14}, v{vL16}")
        for n in range(5*NB - 10):
            a(f"ds_read_b128 v[{BS+40+4*n}:{BS+43+4*n}], v{BS+117} offset:{1024*n}")
        a.label(sk)

    def prefetch(self, vL, v, S=SRD_X):
        a = self.a
        t = T0
        for ptr, size, share, n in ((pX, 2048*1280, 10240, 3), (pWQKV, 640*3840, 9600, 3), (pW1, 640*3072, 7680, 2))[:(1 if PF == 2 else 3)]:
            self.srd(S, ptr, size)
            per = -(-share // 4 // 128) * 128
            a(f"s_mul_i32 s{t}, s{sWG}, {share}\ns_and_b32 s{t}, s{t}, 0xffffff80\ns_mul_i32 s{t+1}, s{sWAVE}, {per}\ns_add_u32 s{t}, s{t}, s{t+1}\ns_min_u32 s{t}, s{t}, {size - n*1024}")
            for k in range(n):
                a(f"buffer_load_dwordx4 v[{v}:{v+3}], v{vL}, s[{S}:{S+3}], s{t} offen offset:{1024*k}")

    def touch(self, vLane, v):
        a = self.a
        t = T0
        a(f"v_lshlrev_b32 v{v}, 21, v{vLane}\nv_add_u32 v{v}, 0xff000, v{v}\ns_mov_b64 exec, 0xff")
        a(f"buffer_load_dword v{v+1}, v{v}, {WSR}, 0 offen")
        self.srd(SRD_M, pOUT, 2048*640*2)
        a(f"v_lshlrev_b32 v{v}, 20, v{vLane}\ns_mov_b64 exec, 7\nbuffer_load_dword v{v+2}, v{v}, s[{SRD_M}:{SRD_M+3}], 0 offen")
        self.srd(SRD_M, pWO, 640*640*2)
        a(f"v_lshlrev_b32 v{v}, 19, v{vLane}\ns_mov_b64 exec, 3\nbuffer_load_dword v{v+3}, v{v}, s[{SRD_M}:{SRD_M+3}], 0 offen\ns_mov_b64 exec, -1")

    def compute_P(self):
        a = self.a
        t = T0
        ACC, XB, WB, BI = 0, 112, 144, 200
        vX0, vX1, vH0, vH1, vQ, vGt, vL, vRd, vRr, vBo, vT = 228, 229, 230, 231, 232, 233, 234, 235, 236, 237, 238
        vLane = 253
        sSH, sNH = sT, 48
        sAct, sPq, sF2, sGs = 49, 72, 73, 74
        a(f"v_mov_b32 v{vLane}, v0\ns_lshr_b32 s{sSH}, s{sWAVE}, 1\ns_and_b32 s{sNH}, s{sWAVE}, 1")
        a(f"v_and_b32 v1, 15, v0\nv_lshrrev_b32 v2, 4, v0\nv_lshrrev_b32 v3, 1, v1\nv_xor_b32 v3, v3, v2\nv_lshlrev_b32 v3, 4, v3\nv_lshl_add_u32 v3, v1, 7, v3")
        a(f"s_lshl_b32 s{t}, s{sSH}, 13\nv_add_u32 v{vX0}, s{t}, v3\nv_xor_b32 v{vX1}, 64, v{vX0}")
        a(f"v_lshrrev_b32 v3, 2, v0\nv_and_b32 v4, 3, v0\nv_lshlrev_b32 v4, 3, v4")
        a(f"v_lshl_add_u32 v5, v3, 7, v4\nv_bfe_u32 v6, v0, 3, 2\ns_lshl_b32 s{t}, s{sNH}, 1\nv_xor_b32 v6, s{t}, v6\nv_lshl_add_u32 v6, v6, 5, v5")
        a(f"v_add_u32 v{vH0}, {WR}, v6\nv_xor_b32 v{vH1}, 32, v{vH0}")
        a(f"v_lshl_add_u32 v6, v3, 6, v4\nv_and_b32 v7, 1, v2\nv_xor_b32 v7, s{sNH}, v7\nv_lshl_add_u32 v6, v7, 5, v6\nv_add_u32 v{vQ}, {WR+12288}, v6")
        a(f"v_lshlrev_b32 v6, 4, v2\nv_add_u32 v{vGt}, {GATE}, v6\nv_lshlrev_b32 v{vL}, 4, v0\nv_lshlrev_b32 v{vBo}, 3, v2")
        a(f"v_lshrrev_b32 v6, 3, v0\nv_mul_u32_u24 v6, 1280, v6\nv_and_b32 v7, 7, v0\nv_lshl_add_u32 v{vRd}, v7, 4, v6")
        a(f"s_lshl_b32 s{t}, s{sWAVE}, 12\ns_add_u32 s{t}, s{t}, {SCR}\nv_add_u32 v{vRr}, s{t}, v5")
        a(f"s_lshl3_add_u32 s{sPIDX}, s{sRB}, s{sGRP}")
        a(f"s_mov_b32 s{cL2E}, 0x3fb8aa3b\ns_mov_b32 s{cL2E+1}, 0x3fb8aa3b")
        a(f"s_lshl2_add_u32 s{t}, s{sPIDX}, s{sWAVE}\ns_min_u32 s{t}, s{t}, 479")
        a(f"s_mul_i32 s{t+1}, s{t}, 6554\ns_lshr_b32 s{t+1}, s{t+1}, 16\ns_mul_i32 s{t+2}, s{t+1}, 10\ns_sub_u32 s{t+2}, s{t}, s{t+2}")
        a(f"s_mul_i32 s{t+6}, s{t+1}, 40960\ns_lshl_b32 s{t+3}, s{t+2}, 7\ns_add_u32 s{t+6}, s{t+6}, s{t+3}")
        a(f"s_mul_i32 s{t+7}, s{sGRP}, 384\ns_lshl_b32 s{t+3}, s{sNH}, 6\ns_add_u32 s{t+7}, s{t+7}, s{t+3}")
        a("s_waitcnt lgkmcnt(0)")
        self.stamp(0)
        self.srd(SRD_M, pB1, 3072)
        self.srd(SRD_W, pW2, 1536*640*2)
        for u in range(6):
            a(f"buffer_load_dwordx2 v[{BI+4*u+2}:{BI+4*u+3}], v{vBo}, s[{SRD_M}:{SRD_M+3}], s{t+7} offen offset:{128*(u >> 1) + 32*(u & 1)}")
        sSrc1 = 69
        a(f"s_mov_b32 s{sSrc1}, s{t+6}")
        self.srd(SRD_WS, pWS, WS_SIZE)
        if TOUCH == 2: self.touch(vLane, 240)
        dsts = [10, 11, 1, 3]
        for u in range(4):
            a(f"s_lshl2_add_u32 s{t+3}, s{t+2}, {u}\ns_mul_i32 s{t+4}, s{t+3}, 205\ns_lshr_b32 s{t+4}, s{t+4}, 10")
            a(f"s_mul_i32 s{t+5}, s{t+4}, 235\ns_add_u32 s{t+5}, s{t+5}, s{t+3}\ns_mul_i32 s{t+4}, s{t+1}, 5\ns_add_u32 s{t+5}, s{t+5}, s{t+4}")
            a(f"s_lshl_b32 s{t+5}, s{t+5}, 10\ns_add_u32 s{t+5}, s{t+5}, {WS_W2R}")
            if LRP: a(f"s_mov_b32 s{dsts[u]}, s{t+5}")
            else: a(f"s_cmp_lt_u32 s{sPIDX}, 120\ns_cselect_b32 s{dsts[u]}, s{t+5}, {BIG}")
        d2, sSrc2, sK2, sInc2 = 40, 0, 75, 70
        self.srd(SRD_M, pWO, 640*640*2)
        a(f"s_lshl1_add_u32 s{t}, s{sPIDX}, s{sWAVE}\ns_sub_u32 s{t}, s{t}, 2")
        a(f"s_cmp_lt_u32 s{t}, 160\ns_cselect_b32 s{sK2}, 1, 2\ns_cmp_lt_u32 s{t}, 200\ns_cselect_b32 s{sK2}, s{sK2}, 0\ns_cmp_lt_u32 s{sWAVE}, 2\ns_cselect_b32 s{sK2}, 0, s{sK2}")
        a(f"s_mul_i32 s{t+1}, s{t}, 6554\ns_lshr_b32 s{t+1}, s{t+1}, 16\ns_mul_i32 s{t+2}, s{t+1}, 10\ns_sub_u32 s{t+2}, s{t}, s{t+2}")
        a(f"s_lshr_b32 s{t+3}, s{t+1}, 1\ns_and_b32 s{t+4}, s{t+1}, 1\ns_sub_u32 s{t+5}, s{t+1}, 16\ns_lshl_b32 s{t+5}, s{t+5}, 1")
        a(f"s_cmp_eq_u32 s{sK2}, 2\ns_cselect_b32 s{t+3}, s{t+5}, s{t+3}\ns_cselect_b32 s{t+4}, 2, s{t+4}\ns_cselect_b32 s{sInc2}, {10240 + 64*1280}, 10240")
        a(f"s_mul_i32 s{sSrc2}, s{t+3}, {80*1280}\ns_mul_i32 s{t+5}, s{t+4}, {32*1280}\ns_add_u32 s{sSrc2}, s{sSrc2}, s{t+5}\ns_lshl_b32 s{t+5}, s{t+2}, 7\ns_add_u32 s{sSrc2}, s{sSrc2}, s{t+5}")
        a(f"s_mul_i32 s{t+3}, s{t+3}, 12800\ns_lshl_b32 s{t+5}, s{t+4}, 10\ns_cmp_eq_u32 s{sK2}, 2\ns_cselect_b32 s{t+5}, 10240, s{t+5}\ns_cselect_b32 s{t+6}, 512, 2048\ns_add_u32 s{t+3}, s{t+3}, s{t+5}\ns_add_u32 s{t+3}, s{t+3}, {WS_WOR}")
        for u in range(4):
            a(f"s_lshl2_add_u32 s{t+4}, s{t+2}, {u}\ns_mul_i32 s{t+5}, s{t+4}, 205\ns_lshr_b32 s{t+5}, s{t+5}, 10\ns_mul_i32 s{t+7}, s{t+5}, 5\ns_sub_u32 s{t+4}, s{t+4}, s{t+7}")
            a(f"s_mul_i32 s{t+5}, s{t+5}, 102400\ns_mul_i32 s{t+4}, s{t+4}, s{t+6}\ns_add_u32 s{t+5}, s{t+5}, s{t+4}\ns_add_u32 s{d2+u}, s{t+5}, s{t+3}")
        sRb64 = t + 11
        a(f"s_lshl1_add_u32 s{sRb64}, s{sRB}, s{sSH}")
        a(f"s_mul_i32 s{t}, s{sRb64}, 48\ns_mul_i32 s{t+1}, s{sGRP}, 6\ns_add_u32 s{t}, s{t}, s{t+1}\ns_add_u32 s{t}, s{t}, s{sNH}\ns_lshl_b32 s{t}, s{t}, 12")
        a(f"s_add_u32 s{sAct}, s{t}, {WS_ACT}\ns_add_u32 s{sAct+1}, s{t}, {WS_ACT + 8192}\ns_add_u32 s{sAct+2}, s{t}, {WS_ACT + 16384}")
        a(f"s_mul_i32 s{t}, s{sRb64}, 40\ns_lshl2_add_u32 s{t}, s{sHALF}, s{t}\ns_lshl1_add_u32 s{t}, s{sCBL}, s{t}\ns_add_u32 s{t}, s{t}, s{sNH}\ns_add_u32 s{t}, s{t}, 24\ns_lshl_b32 s{t}, s{t}, 11\ns_add_u32 s{sPq}, s{t}, {WS_PQ}")
        a(f"s_lshl3_add_u32 s{sF1}, s{sRb64}, s{sGRP}\ns_lshl_b32 s{sF1}, s{sF1}, 7")
        a(f"s_lshl1_add_u32 s{t}, s{sGRP}, s{sNH}\ns_cmp_eq_u32 s{t}, 5\ns_cselect_b32 s{sGs}, 1, 0")
        a(f"s_lshl_b32 s{sF2}, s{sRb64}, 7\ns_add_u32 s{sF2}, s{sF2}, {CNT_PQ}\ns_cmp_lt_u32 s{sCBL}, 6\ns_cselect_b32 s{t}, 1, s{sGs}\ns_cmp_eq_u32 s{t}, 1\ns_cselect_b32 s{sF2}, s{sF2}, {BIG}")
        a(f"s_cmp_ge_u32 s{sCBL}, 6\ns_cselect_b64 vcc, -1, 0")
        def reads(i):
            b = i & 1; so = (i % 3) * WSLOT
            xs = XR + ((i >> 1) % 3) * 16384
            r = [f"ds_read_b128 v[{XB+16*b+4*s}:{XB+16*b+4*s+3}], v{vX1 if i & 1 else vX0} offset:{xs + 2048*s}" for s in range(4)]
            for u in range(6):
                d = WB + 28*b + 4*u
                r.append(f"ds_read_b64_tr_b16 v[{d}:{d+1}], v{vH0 + (u & 1)} offset:{so + 4096*(u >> 1)}")
                r.append(f"ds_read_b64_tr_b16 v[{d+2}:{d+3}], v{vH0 + (u & 1)} offset:{so + 4096*(u >> 1) + 2048}")
            d = WB + 28*b + 24
            if GBR:
                l1, l2 = a.newlabel("L_g"), a.newlabel("L_gj")
                r.append(f"s_cbranch_vccnz {l1}\nds_read_b64_tr_b16 v[{d}:{d+1}], v{vQ} offset:{so}\nds_read_b64_tr_b16 v[{d+2}:{d+3}], v{vQ} offset:{so + 1024}\ns_branch {l2}\n"
                         f"{l1}:\nds_read_b128 v[{d}:{d+3}], v{vGt} offset:{64*i}\n{l2}:")
            else:
                r += [f"ds_read_b64_tr_b16 v[{d}:{d+1}], v{vQ} offset:{so}", f"ds_read_b64_tr_b16 v[{d+2}:{d+3}], v{vQ} offset:{so + 1024}",
                      f"s_mov_b64 exec, vcc\nds_read_b128 v[{d}:{d+3}], v{vGt} offset:{64*i}\ns_mov_b64 exec, -1"]
            return r
        def mfmas(i):
            b = i & 1
            r = []
            for u in (range(7) if i < 19 else (6, 0, 1, 2, 3, 4, 5)):
                for s in range(4):
                    d = ACC + 16*u + 4*s
                    c = f"v[{d}:{d+3}]" if i > 0 else ("0" if u == 6 else f"v[{BI+4*u}:{BI+4*u+3}]")
                    r.append(f"v_mfma_f32_16x16x32_bf16 v[{d}:{d+3}], v[{WB+28*b+4*u}:{WB+28*b+4*u+3}], v[{XB+16*b+4*s}:{XB+16*b+4*s+3}], {c}")
            return r
        unpack = [f"s_waitcnt vmcnt({(3 if TOUCH == 2 else 0) + (4 if RD < 0 else 0) + {0: 0, 1: 8, 2: 3}[PF]})"]
        for u in range(6):
            p = BI + 4*u
            unpack += [f"v_lshlrev_b32 v{p}, 16, v{p+2}", f"v_and_b32 v{p+1}, 0xffff0000, v{p+2}", f"v_lshlrev_b32 v{p+2}, 16, v{p+3}", f"v_and_b32 v{p+3}, 0xffff0000, v{p+3}"]
        RP = BI
        rp_reads = []
        for u in range(4):
            rp_reads += [f"ds_read_b64_tr_b16 v[{RP+4*u}:{RP+4*u+1}], v{vRr} offset:{32*u}", f"ds_read_b64_tr_b16 v[{RP+4*u+2}:{RP+4*u+3}], v{vRr} offset:{32*u + 2048}"]
        rp_st = [f"buffer_store_dwordx4 v[{RP+4*u}:{RP+4*u+3}], v{vL}, {WSR}, s{dsts[u]} offen sc1" for u in range(4)]
        z = [f"s_lshl_b32 s{t}, s{sPIDX}, 9", f"s_mul_i32 s{t+1}, s{sWAVE}, {WS_KVP}", f"s_add_u32 s{t}, s{t}, s{t+1}", f"s_cmp_lt_u32 s{sWAVE}, 2", f"s_cselect_b32 s{t}, s{t}, {BIG}"] + \
            [f"v_mov_b32 v{RP+16+k}, 0" for k in range(4)] + \
            [f"s_mov_b32 exec_hi, 0\nbuffer_store_dwordx4 v[{RP+16}:{RP+19}], v{vL}, {WSR}, s{t} offen sc1\ns_mov_b32 exec_hi, -1"]
        k1, k2, k3, k4 = [a.newlabel("L_r2") for _ in range(4)]
        dma1 = [f"s_lshl_b32 s{t+3}, s{sWAVE}, 12"]
        for j in range(4):
            dma1.append(f"s_add_u32 m0, s{t+3}, {SCR + 1024*j}\ns_nop 0\nbuffer_load_dwordx4 v{vRd}, s[{SRD_W}:{SRD_W+3}], s{sSrc1} offen lds\ns_add_u32 s{sSrc1}, s{sSrc1}, 10240")
        rp_reads2 = [l.replace("offset:", "offset:8192+") for l in rp_reads]
        dma2 = f"s_cmp_eq_u32 s{sK2}, 0\ns_cbranch_scc1 {k1}\n"
        for j in range(4):
            dma2 += f"s_add_u32 m0, s{t+3}, {SCR + 8192 + 1024*j}\ns_nop 0\nbuffer_load_dwordx4 v{vRd}, s[{SRD_M}:{SRD_M+3}], s{sSrc2} offen lds\n"
            if j < 3: dma2 += f"s_add_u32 s{sSrc2}, s{sSrc2}, " + (f"s{sInc2}" if j == 1 else "10240") + "\n"
        dma2 += k1 + ":"
        st2 = f"s_cmp_eq_u32 s{sK2}, 0\ns_cbranch_scc1 {k2}\ns_cmp_eq_u32 s{sK2}, 2\ns_cbranch_scc1 {k3}\n"
        st2 += "".join(f"buffer_store_dwordx4 v[{RP+4*u}:{RP+4*u+3}], v{vL}, {WSR}, s{d2+u} offen sc1\n" for u in range(4))
        st2 += f"s_branch {k2}\n{k3}:\nv_lshrrev_b32 v{vT}, 1, v{vL}\n"
        for u in range(4):
            st2 += f"buffer_store_dwordx2 v[{RP+4*u}:{RP+4*u+1}], v{vT}, {WSR}, s{d2+u} offen sc1\ns_add_u32 s{d2+u}, s{d2+u}, 12800\n"
            st2 += f"buffer_store_dwordx2 v[{RP+4*u+2}:{RP+4*u+3}], v{vT}, {WSR}, s{d2+u} offen sc1\n"
        st2 += k2 + ":"
        sk, sk2 = a.newlabel("L_s1a"), a.newlabel("L_s1b")
        arr = [f"s_cmp_lg_u32 s{sWAVE}, 0", f"s_cbranch_scc1 {sk}",
               f"s_mov_b32 s{SRD_D}, s{pDBG}", f"s_mov_b32 s{SRD_D+1}, s{pDBG+1}", f"s_mov_b32 s{SRD_D+2}, 256", f"s_mov_b32 s{SRD_D+3}, 0x20000",
               f"v_mov_b32 v{vT}, 1", f"s_mov_b64 exec, 1\nbuffer_atomic_add v{vT}, v{vL}, s[{SRD_D}:{SRD_D+3}], 0 offen sc0 sc1\ns_mov_b64 exec, -1", sk + ":"]
        arr2 = [f"s_cmp_lg_u32 s{sWAVE}, 0", f"s_cbranch_scc1 {sk2}", "s_waitcnt vmcnt(0)", f"v_readfirstlane_b32 s{t}, v{vT}", f"v_mov_b32 v{vT+1}, 1",
                f"s_cmp_lg_u32 s{t}, 127", f"s_cbranch_scc1 {sk2}",
                f"s_mov_b32 s{SRD_D}, s{pDBG}", f"s_mov_b32 s{SRD_D+1}, s{pDBG+1}", f"s_mov_b32 s{SRD_D+2}, 256", f"s_mov_b32 s{SRD_D+3}, 0x20000",
                f"s_mov_b64 exec, 1\nbuffer_store_dword v{vT+1}, v{vL}, s[{SRD_D}:{SRD_D+3}], 0 offen offset:128 sc1\ns_mov_b64 exec, -1", sk2 + ":"]
        if RD < 0:
            for l in dma1 + [dma2]: a(l)
        if PF: self.prefetch(vL, 240, S=SRD_D)
        hi, lo = (["s_setprio 3"], ["s_setprio 0"]) if STPRIO else ([], [])
        extra = {0: ([], unpack, []), RS: (["s_waitcnt vmcnt(0)"], rp_reads, []), RS+1: (hi, rp_st + rp_reads2, []),
                 RS+2: ([], [st2] + z, lo), S1AT-1: ([], [], ["s_waitcnt vmcnt(0)"]), S1AT: (arr, [], []), S1AT+2: (arr2, [], [])}
        if LRP:
            a(f"s_lshl_b32 s{t}, s{sWAVE}, 6\ns_add_u32 s{t}, s{t}, {MBOX}\nv_mov_b32 v8, s{t}")
            for u in range(4): a(f"v_mov_b32 v{12+u}, s{dsts[u]}\nv_mov_b32 v{16+u}, s{d2+u}")
            a(f"v_mov_b32 v20, s{sK2}\nds_write_b128 v8, v[12:15]\nds_write_b128 v8, v[16:19] offset:16\nds_write_b32 v8, v20 offset:32\ns_waitcnt lgkmcnt(0)")
            extra = {0: extra[0], 2*LRP - 1: ([], [], ["s_waitcnt vmcnt(0)"])}
        if SPREAD:
            R2 = [216, 220, 240, 244]
            rd2 = []
            for u in range(4):
                rd2 += [f"ds_read_b64_tr_b16 v[{R2[u]}:{R2[u]+1}], v{vRr} offset:{8192 + 32*u}", f"ds_read_b64_tr_b16 v[{R2[u]+2}:{R2[u]+3}], v{vRr} offset:{8192 + 32*u + 2048}"]
            zz = [l.replace(f"v{RP+16}", "v248").replace(f"v{RP+17}", "v249").replace(f"v{RP+18}", "v250").replace(f"v{RP+19}", "v251").replace(f"v[{RP+16}:{RP+19}]", "v[248:251]") for l in z]
            pre2 = [f"v_lshrrev_b32 v{vT+1}, 1, v{vL}"]
            def st2u(u):
                k5, k6 = a.newlabel("L_r2"), a.newlabel("L_r2")
                return (f"s_cmp_eq_u32 s{sK2}, 1\ns_cbranch_scc0 {k5}\nbuffer_store_dwordx4 v[{R2[u]}:{R2[u]+3}], v{vL}, {WSR}, s{d2+u} offen sc1\n{k5}:\n"
                        f"s_cmp_eq_u32 s{sK2}, 2\ns_cbranch_scc0 {k6}\nbuffer_store_dwordx2 v[{R2[u]}:{R2[u]+1}], v{vT+1}, {WSR}, s{d2+u} offen sc1\ns_add_u32 s{d2+u}, s{d2+u}, 12800\n"
                        f"buffer_store_dwordx2 v[{R2[u]+2}:{R2[u]+3}], v{vT+1}, {WSR}, s{d2+u} offen sc1\n{k6}:")
            extra = {0: extra[0], RS: (["s_waitcnt vmcnt(0)"], rp_reads + rd2 + pre2 + zz, []), S1AT: extra[S1AT], S1AT+2: extra[S1AT+2]}
            if SPREAD == 1:
                for u in range(4): extra[RS+1+u] = ([], [rp_st[u], st2u(u)], [])
            else:
                for u in range(4):
                    extra[RS+1+2*u] = ([], [rp_st[u]], []); extra[RS+2+2*u] = ([], [st2u(u)], [])
            e_ = extra.get(S1AT-1, ([], [], []))
            extra[S1AT-1] = (e_[0], e_[1], ["s_waitcnt vmcnt(0)"])
        if RD > 0: extra[RD] = ([], dma1 + [dma2], [])
        if RD == 0: extra[0] = ([], unpack + dma1 + [dma2], [])
        self.main_loop(reads, mfmas, extra, NRE, [vH0, vH1, vQ])
        if EPRIO: a(f"s_setprio {EPRIO}")
        TM = XB
        a("s_nop 3")
        labG, labE = a.newlabel("L_epG"), a.newlabel("L_epE")
        a(f"s_cbranch_vccnz {labG}")
        self.consts("phi")
        for sp in range(2):
            e = ACC + 96 + 8*sp
            for l in self.phi_quad(e, e, TM): a(l)
            for l in self.phi_quad(e + 4, e + 2, TM + 4): a(l)
            a(f"buffer_store_dwordx4 v[{e}:{e+3}], v{vL}, {WSR}, s{sPq} offen offset:{1024*sp} sc1")
        a(f"s_branch {labE}")
        a.label(labG)
        a(f"s_cmp_eq_u32 s{sGs}, 0\ns_cbranch_scc1 {labE}")
        G = ACC + 96
        a(f"v_cmp_le_u32 vcc, 16, v{vLane}\nv_cmp_le_u32 s[{t+2}:{t+3}], 32, v{vLane}\nv_cmp_le_u32 s[{t+4}:{t+5}], 48, v{vLane}\ns_nop 0")
        a(f"v_cndmask_b32 v{G}, v{G}, v{G+4}, vcc\nv_cndmask_b32 v{G}, v{G}, v{G+8}, s[{t+2}:{t+3}]\nv_cndmask_b32 v{G}, v{G}, v{G+12}, s[{t+4}:{t+5}]")
        a(f"s_mov_b32 s{t}, 0x42700000\nv_min_f32 v{G}, s{t}, v{G}\nv_max_f32 v{G}, -s{t}, v{G}\nv_mul_f32 v{G}, s{cL2E}, v{G}\nv_exp_f32 v{G}, v{G}")
        a(f"s_lshl_b32 s{t}, s{sRb64}, 8\ns_add_u32 s{t}, s{t}, {WS_G}\nv_add_f32 v{G+2}, 1.0, v{G}\nv_rcp_f32 v{G+2}, v{G+2}\nv_lshlrev_b32 v{G+1}, 2, v{vLane}\ns_add_u32 s{t+1}, s{t}, 8192")
        a(f"buffer_store_dword v{G}, v{G+1}, {WSR}, s{t} offen sc1\nbuffer_store_dword v{G+2}, v{G+1}, {WSR}, s{t+1} offen sc1")
        a.label(labE)
        self.consts("mish")
        for L in range(3):
            for s in range(4):
                e, o = ACC + 32*L + 4*s, ACC + 32*L + 16 + 4*s
                for l in self.mish_quad(e, e, TM + 8*(s & 1)): a(l)
                for l in self.mish_quad(o, e + 2, TM + 4 + 8*(s & 1)): a(l)
                if DIAG != 1: a(f"buffer_store_dwordx4 v[{e}:{e+3}], v{vL}, {WSR}, s{sAct+L} offen offset:{1024*s} {'' if DIAG == 2 else 'sc1'}")
            if L == 0 and EARLYQ:
                a("s_waitcnt vmcnt(4)")
                self.signal(sF2, vT)
            if LFLAG and L >= 1:
                a(f"s_waitcnt vmcnt({4 if L == 1 else 5})")
                self.signal(sF1, vT, 4*(L - 1))
        a(f"v_mov_b32 v0, v{vLane}")
        self.stamp(3)
        self.finish1([sF1] if EARLYQ else [sF1, sF2], strict=bool(STRICTP), late8=True)

    def compute_KV(self):
        a = self.a
        t = T0
        ACC, XB, WB = 0, 112, 128
        vX0, vX1, vK, vQ0, vL = 240, 241, 242, 243, 247
        vLane = 253
        sPq, sF2, sRec = 72, 73, 74
        a(f"v_mov_b32 v{vLane}, v0")
        a(f"v_and_b32 v1, 15, v0\nv_lshrrev_b32 v2, 4, v0\nv_lshrrev_b32 v3, 1, v1\nv_xor_b32 v3, v3, v2\nv_lshlrev_b32 v3, 4, v3\nv_lshl_add_u32 v3, v1, 7, v3")
        a(f"s_lshl_b32 s{t}, s{sWAVE}, 12\nv_add_u32 v{vX0}, s{t}, v3\nv_xor_b32 v{vX1}, 64, v{vX0}")
        a(f"v_lshrrev_b32 v3, 2, v0\nv_and_b32 v4, 3, v0\nv_lshlrev_b32 v4, 3, v4")
        a(f"v_mul_u32_u24 v5, 160, v3\nv_add_u32 v5, v5, v4\nv_add_u32 v{vK}, {WR}, v5")
        a(f"v_lshl_add_u32 v5, v3, 7, v4\nv_bfe_u32 v6, v0, 3, 2\nv_lshl_add_u32 v5, v6, 5, v5\nv_add_u32 v{vQ0}, {WR+10240}, v5")
        for u in range(1, 4): a(f"v_xor_b32 v{vQ0+u}, {32*u}, v{vQ0}")
        a(f"v_lshlrev_b32 v{vL}, 4, v0")
        a(f"s_lshr_b32 s{t}, s{sWAVE}, 1\ns_lshl1_add_u32 s{t+1}, s{sRB}, s{t}")
        a(f"s_lshl_b32 s{sF2}, s{t+1}, 7\ns_add_u32 s{sF2}, s{sF2}, {CNT_PQ}")
        a(f"s_mul_i32 s{t+1}, s{t+1}, 40\ns_lshl2_add_u32 s{t+1}, s{sGRP}, s{t+1}\ns_and_b32 s{t}, s{sWAVE}, 1\ns_lshl1_add_u32 s{t+1}, s{t+1}, s{t}\ns_lshl_b32 s{t+1}, s{t+1}, 10\ns_add_u32 s{sPq}, s{t+1}, {WS_PQ}")
        a(f"s_lshl2_add_u32 s{t}, s{sGRP}, s{sWAVE}\ns_lshl_b32 s{sF1}, s{t}, 7\ns_add_u32 s{sF1}, s{sF1}, {CNT_KV}")
        a(f"s_mul_i32 s{t}, s{t}, 1792\ns_add_u32 s{sRec}, s{t}, {WS_KVP}")
        a(f"s_mov_b32 s{cL2E}, 0x3fb8aa3b\ns_mov_b32 s{cL2E+1}, 0x3fb8aa3b")
        self.consts("phi")
        a("s_waitcnt lgkmcnt(0)")
        self.stamp(0)
        self.srd(SRD_WS, pWS, WS_SIZE)
        if TOUCH: self.touch(vLane, 248)
        if PF: self.prefetch(vL, 248)
        def reads(i):
            b = i & 1; so = (i % 3) * WSLOT
            xs = XR + ((i >> 1) % 3) * 16384
            r = [f"ds_read_b128 v[{XB+8*b+4*s}:{XB+8*b+4*s+3}], v{vX1 if i & 1 else vX0} offset:{xs + 2048*s}" for s in range(2)]
            for u in range(14):
                d = WB + 56*b + 4*u
                if u < 10: base, off, d2 = vK, 5120*(u // 5) + 32*(u % 5), 2560
                else: base, off, d2 = vQ0 + u - 10, 0, 2048
                r.append(f"ds_read_b64_tr_b16 v[{d}:{d+1}], v{base} offset:{so + off}")
                r.append(f"ds_read_b64_tr_b16 v[{d+2}:{d+3}], v{base} offset:{so + off + d2}")
            return r
        def mfmas(i):
            b = i & 1
            r = []
            order = list(range(14)) if i < 19 else [5, 6, 7, 8, 9, 0, 1, 2, 3, 4, 10, 11, 12, 13]
            for u in order:
                for s in range(2):
                    d = ACC + 8*u + 4*s
                    c = f"v[{d}:{d+3}]" if i > 0 else "0"
                    w, x = f"v[{WB+56*b+4*u}:{WB+56*b+4*u+3}]", f"v[{XB+8*b+4*s}:{XB+8*b+4*s+3}]"
                    r.append(f"v_mfma_f32_16x16x32_bf16 v[{d}:{d+3}], {x if u < 10 else w}, {w if u < 10 else x}, {c}")
            return r
        self.main_loop(reads, mfmas, {}, 24, [vK, vQ0, vQ0+1, vQ0+2, vQ0+3])
        TM = XB
        vEx = vX0
        a(f"s_mul_i32 s{t}, s{sWAVE}, 10240\nv_add_u32 v{vEx}, s{t}, v{vL}")
        for u in range(5, 10):
            e = ACC + 8*u
            a(f"v_cvt_pk_bf16_f32 v{e}, v{e}, v{e+1}\nv_cvt_pk_bf16_f32 v{e+1}, v{e+2}, v{e+3}\nv_cvt_pk_bf16_f32 v{e+2}, v{e+4}, v{e+5}\nv_cvt_pk_bf16_f32 v{e+3}, v{e+6}, v{e+7}")
            a(f"ds_write_b128 v{vEx}, v[{e}:{e+3}] offset:{XR + 1024*u}")
        for u in range(5):
            e = ACC + 8*u
            for l in self.phi_quad(e, e, TM): a(l)
            for l in self.phi_quad(e + 4, e + 2, TM + 4): a(l)
            a(f"ds_write_b128 v{vEx}, v[{e}:{e+3}] offset:{XR + 1024*u}")
        a(f"s_lshl_b32 s{t}, s{sWAVE}, 10\nv_add_u32 v{vEx}, s{t}, v{vL}")
        ONE = WB + 64
        for k in range(4): a(f"v_mov_b32 v{ONE+k}, 0x3f803f80")
        if K1LDS:
            lp, dn = a.newlabel("L_k1"), a.newlabel("L_k1d")
            a(f"v_mov_b32 v{vK}, {K1C}\nv_mov_b32 v{vQ0}, 1\ns_mov_b32 s{t}, 0\ns_waitcnt lgkmcnt(0)\ns_mov_b64 exec, 1\nds_add_u32 v{vK}, v{vQ0}\ns_mov_b64 exec, -1")
            a.label(lp)
            a(f"ds_read_b32 v{vQ0}, v{vK}\ns_add_u32 s{t}, s{t}, 1\ns_waitcnt lgkmcnt(0)\nv_readfirstlane_b32 s{t+1}, v{vQ0}\ns_cmp_ge_u32 s{t}, {SPIN}\ns_cbranch_scc1 {dn}\ns_cmp_lt_u32 s{t+1}, 4\ns_cbranch_scc1 {lp}")
            a.label(dn)
        else:
            a("s_waitcnt lgkmcnt(0)\ns_barrier")
        FR = WB
        for g in range(4):
            for j, off in enumerate((0, 1024, 5120, 6144)):
                a(f"ds_read_b128 v[{FR+16*g+4*j}:{FR+16*g+4*j+3}], v{vEx} offset:{XR + 10240*g + off}")
        AD = WB + 72
        dc, BG, ev, R = AD, AD + 2, AD + 3, AD + 8
        ad = [f"v_lshrrev_b32 v{dc}, 4, v{vLane}", f"v_and_b32 v{ev}, 15, v{vLane}", f"v_mov_b32 v{BG}, 0x10000", f"v_cmp_eq_u32 vcc, 0, v{ev}",
              f"v_mov_b32 v{R}, 320", f"v_subrev_u32 v{dc}, s{sWAVE}, v{dc}", f"v_cndmask_b32 v{ev+2}, v{BG}, v{R}, vcc", f"v_add_u32 v{dc+1}, 4, v{dc}",
              f"s_lshl_b32 s{t}, s{sWAVE}, 2", f"v_subrev_u32 v{ev}, s{t}, v{ev}", f"v_add_u32 v{ev+1}, 16, v{ev}",
              f"s_lshl_b32 s{t+4}, s{sWAVE}, 11", f"s_add_u32 s{t+4}, s{t+4}, {STG}"]
        for k in range(2):
            ad += [f"v_cmp_gt_u32 vcc, 5, v{dc+k}", f"v_cmp_gt_u32 s[{t+2}:{t+3}], 20, v{ev+k}", f"v_mul_u32_u24 v{dc+k}, 336, v{dc+k}", f"v_lshlrev_b32 v{ev+k}, 4, v{ev+k}",
                   f"v_cndmask_b32 v{dc+k}, v{BG}, v{dc+k}, vcc", f"v_cndmask_b32 v{ev+k}, v{BG}, v{ev+k}, s[{t+2}:{t+3}]"]
        for k in range(2):
            ad += [f"v_add_u32 v{R+3*k+b}, v{dc+k}, v{ev+b}" for b in range(3)]
            ad += [f"v_min_u32 v{R+3*k+b}, 1680, v{R+3*k+b}" for b in range(3)]
            ad += [f"v_add_u32 v{R+3*k+b}, s{t+4}, v{R+3*k+b}" for b in range(3)]
        ad += [f"v_lshlrev_b32 v{dc}, 2, v{vLane}", f"v_add_u32 v{vEx}, s{t+4}, v{dc}"]
        for l in ad[:20]: a(l)
        D = ACC
        mm = []
        for g in range(4):
            for k in range(2):
                for b in range(3):
                    d = D + 12*k + 4*b
                    B = f"v[{FR+16*g+8+4*b}:{FR+16*g+8+4*b+3}]" if b < 2 else f"v[{ONE}:{ONE+3}]"
                    mm.append(f"v_mfma_f32_16x16x32_bf16 v[{d}:{d+3}], v[{FR+16*g+4*k}:{FR+16*g+4*k+3}], {B}, {'0' if g == 0 else f'v[{d}:{d+3}]'}")
        a("s_waitcnt lgkmcnt(0)")
        for l in interleave(mm, ad[20:], 0, 16): a(l)
        def qmath(u):
            e = ACC + 8*u
            return self.phi_quad(e, e, TM) + self.phi_quad(e + 4, e + 2, TM + 4)
        q10 = qmath(10)
        for l in q10[:8]: a(l)
        for j in range(6): a(f"ds_write_b128 v{R+j}, v[{D+4*j}:{D+4*j+3}]")
        for l in q10[8:20]: a(l)
        a("s_waitcnt lgkmcnt(0)")
        for j in range(7): a(f"ds_read_b32 v{j}, v{vEx} offset:{256*j}")
        for l in q10[20:]: a(l)
        a("s_waitcnt lgkmcnt(0)")
        for j in range(7):
            if j == 6: a("s_mov_b32 exec_hi, 15")
            a(f"buffer_atomic_add_f32 v{j}, v{dc}, {WSR}, s{sRec} offen offset:{256*j} sc1")
        a("s_mov_b32 exec_hi, -1")
        a(f"s_add_u32 s{t}, s{sPq}, 4096")
        def qst(u):
            e = ACC + 8*(10 + u)
            a(f"buffer_store_dwordx4 v[{e}:{e+3}], v{vL}, {WSR}, s{sPq if u < 2 else t} offen offset:{2048*(u & 1)} sc1")
        qst(0)
        for u in (1, 2, 3):
            for l in qmath(10 + u): a(l)
            qst(u)
        a(f"v_mov_b32 v0, v{vLane}")
        self.stamp(3)
        self.finish1([sF1, sF2], strict=True)

    def setup2(self):
        a = self.a
        t = T0
        if MAP2 == "x2":
            a(f"s_bfe_u32 s{t+2}, s{sWG}, 0x20001\ns_bfe_u32 s{t+3}, s{sWG}, 0x30003\ns_lshl3_add_u32 s{sR64}, s{t+2}, s{t+3}")
            a(f"s_and_b32 s{t+2}, s{sWG}, 1\ns_lshr_b32 s{t+3}, s{sWG}, 6\ns_lshl2_add_u32 s{sC}, s{t+2}, s{t+3}")
        else:
            a(f"s_and_b32 s{t+2}, s{sWG}, 7\ns_bfe_u32 s{t+3}, s{sWG}, 0x20003\ns_lshl2_add_u32 s{sR64}, s{t+2}, s{t+3}\ns_lshr_b32 s{sC}, s{sWG}, 5")
        if FAKE == 1: a(f"s_and_b32 s{sR64}, s{sWG}, 7\ns_lshl_b32 s{sR64}, s{sR64}, 2\ns_mov_b32 s{sC}, 0")
        if FAKE == 2: a(f"s_mov_b32 s{sC}, 0")
        if FAKE == 3: a(f"s_and_b32 s{sR64}, s{sWG}, 7\ns_lshl_b32 s{sR64}, s{sR64}, 2")
        a(f"v_lshlrev_b32 v{vL16}, 4, v0\nv_add_u32 v{vL16b}, 4096, v{vL16}")
        if ROT2 == "none":
            a(f"s_mov_b32 s{t}, 0")
        elif ROT2 == "xor":
            a(f"s_lshr_b32 s{t}, s{sWG}, 3\ns_lshr_b32 s{t+1}, s{sWG}, 6\ns_xor_b32 s{t}, s{t}, s{t+1}\ns_and_b32 s{t}, s{t}, 1")
        elif ROT2 == "two":
            a(f"s_lshr_b32 s{t}, s{sWG}, 3\ns_lshr_b32 s{t+1}, s{sWG}, {6 if MAP2 == 'x2' else 5}\ns_xor_b32 s{t}, s{t}, s{t+1}\ns_and_b32 s{t}, s{t}, 1\ns_mul_i32 s{t}, s{t}, 3")
        elif MAP2 == "x2":
            a(f"s_and_b32 s{t}, s{sC}, 3\ns_mul_i32 s{t}, s{t}, 3\ns_lshr_b32 s{t}, s{t}, 1")
        else:
            a(f"s_mul_i32 s{t}, s{sC}, 3\ns_lshr_b32 s{t}, s{t}, 2")
        a(f"s_mul_i32 s{t+1}, s{sWAVE}, 6")
        a(f"s_mul_i32 s{t+2}, s{sC}, {48*5120}\ns_add_u32 s{t+2}, s{t+2}, {WS_W2R}")
        a(f"s_mul_i32 s{t+3}, s{sR64}, {48*4096}\ns_add_u32 s{t+3}, s{t+3}, {WS_ACT}")
        for i in range(6):
            a(f"s_add_u32 s{t+4}, s{t+1}, s{t}\ns_mul_i32 s{sB0+i}, s{t+4}, 5120\ns_add_u32 s{sB0+i}, s{sB0+i}, s{t+2}")
            a(f"s_lshl_b32 s{sA0+i}, s{t+4}, 12\ns_add_u32 s{sA0+i}, s{sA0+i}, s{t+3}")
            if i < 5 and ROT2 == "xor": a(f"s_xor_b32 s{t}, s{t}, {i ^ (i + 1)}")
            elif i < 5: a(f"s_add_u32 s{t}, s{t}, 1\ns_cmp_eq_u32 s{t}, 6\ns_cselect_b32 s{t}, 0, s{t}")
        a(f"s_lshl3_add_u32 s{sFa}, s{sR64}, s{sWAVE}\ns_lshl_b32 s{sFa}, s{sFa}, 7\ns_lshl_b32 s{sFq}, s{sR64}, 7\ns_add_u32 s{sFq}, s{sFq}, {CNT_PQ}")
        a(f"s_mul_i32 s{sPQb}, s{sR64}, 40\ns_mul_i32 s{t}, s{sWAVE}, 5\ns_add_u32 s{sPQb}, s{sPQb}, s{t}\ns_lshl_b32 s{sPQb}, s{sPQb}, 11\ns_add_u32 s{sPQb}, s{sPQb}, {WS_PQ}")
        a(f"s_lshl3_add_u32 s{sMb}, s{sC}, s{sWAVE}\ns_mul_i32 s{sMb}, s{sMb}, 12800\ns_add_u32 s{sMb}, s{sMb}, {WS_WOR}")
        a(f"s_mul_i32 s{sKv}, s{sWAVE}, 7168\ns_add_u32 s{sKv}, s{sKv}, {WS_KVP}\ns_lshl_b32 s{sFk}, s{sWAVE}, 9\ns_add_u32 s{sFk}, s{sFk}, {CNT_KV}")

    def preload_b(self, n0, n1, th=0):
        for n in range(n0, n1):
            if th and n < NTH: self.a(f"s_waitcnt vmcnt({th - 1})")
            i, jn = divmod(n, 5)
            d = BS + 20*i + 4*jn
            self.a(f"buffer_load_dwordx4 v[{d}:{d+3}], v{vL16 if jn < 4 else vL16b}, {WSR}, s{sB0+i} offen offset:{1024*jn if jn < 4 else 0} sc1")

    def stage_b(self):
        a = self.a
        t = T0
        a(f"s_mul_i32 s{t}, s{sT}, 20480\ns_add_u32 s{t}, s{t}, {BL}")
        for i in range(2, NB):
            a(f"s_sub_u32 s{t+1}, s{sB0+i}, 122880")
            for jn in range(5):
                if jn in (0, 4):
                    a(f"s_add_u32 m0, s{t}, {5120*(i-2) + 1024*jn}")
                    a(f"s_add_u32 s{t+1}, s{t+1}, 4096" if jn else "s_nop 0")
                if TH and NB*5 + 5*(i - 2) + jn < NTH: a(f"s_waitcnt vmcnt({TH - 1})")
                a(f"buffer_load_dwordx4 v{vL16}, {WSR}, s{t+1} offen offset:{1024*(jn % 4)} sc1 lds")
        a("s_waitcnt vmcnt(0)")

    def gemm2(self):
        a = self.a
        t = T0
        seq = []
        LN = 255
        def ldl(dst, n, v, so, off, tag):
            seq.append(tag)
            return [f"buffer_load_dword{ {1: '', 2: 'x2', 4: 'x4'}[n] } {vr(dst, n)}, v{v}, {WSR}, s{so} offen offset:{off} sc1"]
        def emit(L):
            for l in L: a(l)
        def wait(tag):
            last = max(n for n, x in enumerate(seq) if x == tag)
            a(f"s_waitcnt vmcnt({len(seq) - 1 - last})")
        def act(i):
            return sum((ldl(AB + 16*(i % 3) + 4*st, 4, vL16, sA0 + i, 1024*st, f"act{i}") for st in range(4)), [])
        def check(soff, target, sleep=None):
            ok = a.newlabel("L_ok")
            a(f"v_cmp_le_u32 vcc, {target}, v{vP+1}\ns_nop 1\ns_cmp_eq_u64 vcc, -1\ns_cbranch_scc1 {ok}")
            self.poll(soff, target, vP, vP + 1, sleep=sleep)
            a.label(ok)
        def dma(so, n, lds, tag):
            r = []
            for k in range(n):
                pre = ""
                if k % 4 == 0:
                    pre = f"s_add_u32 m0, s{sLB}, {lds + 1024*k}\n" + (f"s_add_u32 s{so}, s{so}, 4096\n" if k else "s_nop 0\n")
                r.append(pre + f"buffer_load_dwordx4 v{vL16}, {WSR}, s{so} offen offset:{1024*(k % 4)} sc1 lds"); seq.append(tag)
            return r
        def pq(base, sp):
            return sum((ldl(base + 20*sp + 4*tt, 4, vL16, (sPQb, t, t + 1)[tt >> 1], 2048*(tt & 1) + 1024*sp, f"pq{sp}") for tt in range(5)), [])
        def gld(va):
            return sum((ldl(vG + st, 1, va, t + 3, 64*st, "g") for st in range(4)), [])
        def lateb(i=5):
            if i < NB: return []
            r = sum((ldl(BS + 20*i + 4*jn, 4, vL16, sB0 + i, 1024*jn, f"act{i}") for jn in range(4)), [])
            return r + [f"s_add_u32 s{sB0+i}, s{sB0+i}, 4096"] + ldl(BS + 20*i + 16, 4, vL16, sB0 + i, 0, f"act{i}")
        chunks = [(0, 0), (0, 1), (1, 0), (1, 1), (1, 2), (2, 1), (2, 2), (2, 3), (3, 2), (3, 3), (4, 3), (3, 4), (4, 4)] + [("z", tt) for tt in range(5)]
        slot = dict(zip(chunks, [0, 1, 2, 3, 4, 7, 8, 9, 10, 11, 13, 14, 15, 16, 17, 18, 19, 20]))
        X, K0 = 24, 0
        ad = [f"v_and_b32 v{X}, 15, v{LN}", f"v_lshrrev_b32 v{X+1}, 4, v{LN}", f"s_add_u32 s{t+2}, s{sLB}, 13312", f"v_mul_u32_u24 v{X+3}, 336, v{X+1}", f"v_add_u32 v{X+3}, s{t+2}, v{X+3}",
              f"v_add_u32 v{X+18}, s{sLB}, v{vL16}", f"s_add_u32 s{t+2}, s{t+2}, 7056", f"v_mov_b32 v{X+13}, s{t+2}"] + [f"v_subrev_u32 v{X+13+k}, {1344*k}, v{X+13}" for k in range(1, 5)]
        for te in (0, 1, 2, 3, 4, "z"):
            if te == "z":
                ad += [f"v_and_b32 v{X+4}, 3, v{LN}", f"v_mul_u32_u24 v{X+5}, 112, v{X+4}", f"v_add_u32 v{X+6}, 320, v{X+3}", f"v_add_u32 v{X+5}, v{X+5}, v{X+6}"]
            else:
                ad += [f"v_add_u32 v{X+6}, {16*te}, v{X}", f"v_mul_u32_u24 v{X+4}, 3277, v{X+6}", f"v_lshrrev_b32 v{X+4}, 16, v{X+4}",
                       f"v_lshl_add_u32 v{X+6}, v{X+6}, 4, v{X+3}", f"v_mad_i32_i24 v{X+5}, v{X+4}, s{sN208}, v{X+6}"]
            ad += [f"v_mad_i32_i24 v{X+4}, v{X+4}, -5, v{X+1}"]
            mine = [(j, c) for j, c in enumerate(chunks) if c[0] == te]
            ad += [f"v_add_u32 v{X+8+n}, {4*c[1]}, v{X+4}" for n, (j, c) in enumerate(mine)]
            ad += [f"v_cmp_gt_u32 s[{t+4+2*n}:{t+5+2*n}], 5, v{X+8+n}" for n, (j, c) in enumerate(mine)]
            ad += ["s_nop 0"]
            ad += [f"v_cndmask_b32 v{K0+j}, v{X+13+c[1]}, v{X+5}, s[{t+4+2*n}:{t+5+2*n}]" for n, (j, c) in enumerate(mine)]
        mq = [t + 4, t + 6, t + 8]
        consts = [f"s_mov_b32 s{cE}, 0x358637bd", f"s_mov_b32 s{mq[0]}, 0xffff", f"s_mov_b32 s{mq[0]+1}, 0", f"s_mov_b32 s{mq[1]}, -1", f"s_mov_b32 s{mq[1]+1}, 0",
                  f"s_mov_b32 s{mq[2]}, -1", f"s_mov_b32 s{mq[2]+1}, 0xffff"]
        swaps = lambda R: [f"v_swap_b32 v{R+8*p+2+k}, v{R+8*p+4+k}" for p in range(2) for k in range(2)]
        K32 = lambda d, A, B, c: f"v_mfma_f32_16x16x32_bf16 v[{d}:{d+3}], v[{A}:{A+3}], v[{B}:{B+3}], {c}"
        K16 = lambda d, A, B: f"v_mfma_f32_16x16x16_bf16 v[{d}:{d+3}], v[{A}:{A+1}], v[{B}:{B+1}], v[{d}:{d+3}]"
        acc = lambda d: f"v[{d}:{d+3}]"
        def fqf(base):
            def fq(st, tt):
                R = base + 20*(st >> 1)
                return R + 8*(tt >> 1) + 4*(st & 1) + 2*(tt & 1) if tt < 4 else R + 16 + 2*(st & 1)
            return fq
        def gather(KAr, raw, KP, PQb, first):
            for j, c in enumerate(chunks):
                a(f"ds_read_b128 v[{raw(j)}:{raw(j)+3}], v{KAr+j} offset:{1344*c[1]}")
            emit(swaps(PQb) + swaps(PQb + 20))
            for j, c in enumerate(chunks):
                if j in (0, first): a(f"s_waitcnt lgkmcnt({18 - first if j == 0 else 0})")
                d, r = KP + 2*slot[c], raw(j)
                a(f"v_cvt_pk_bf16_f32 v{d}, v{r}, v{r+1}\nv_cvt_pk_bf16_f32 v{d+1}, v{r+2}, v{r+3}")
            for z in (5, 6, 12): a(f"v_mov_b32 v{KP+2*z}, 0\nv_mov_b32 v{KP+2*z+1}, 0")
        def scales(st, DN, SC):
            r = ([] if LATEORD else [f"v_add_f32 v{DN+k}, s{cE}, v{DN+k}" for k in range(4)]) + [f"v_rcp_f32 v{DN+k}, v{DN+k}" for k in range(4)]
            r += [f"v_mul_f32 v{DN+k}, v{vG+st}, v{DN+k}" for k in range(4)]
            return r + [f"v_cndmask_b32 v{SC[k]}, v{DN+k+1}, v{DN+k}, s[{mq[k]}:{mq[k]+1}]" for k in range(3)]
        def vtile(st, tt, o, DN, SC, fq):
            sc = (DN, SC[0], SC[1], SC[2], DN + 3)[tt]
            return [f"v_mul_f32 v{o+k}, v{sc}, v{o+k}" for k in range(4)] + [f"v_cvt_pk_bf16_f32 v{fq(st,tt)}, v{o}, v{o+1}", f"v_cvt_pk_bf16_f32 v{fq(st,tt)+1}, v{o+2}, v{o+3}"]
        def mlp(i, zero, sts=None):
            order = [(jn, st) for jn in range(5) for st in range(4)] if sts is None else [(jn, st) for st in sts for jn in range(5)]
            return [K32(20*st + 4*jn, BS + 20*i + 4*jn, AB + 16*(i % 3) + 4*st, "0" if zero else acc(20*st + 4*jn)) for jn, st in order]
        TA, RA, vRW = 224, 170, vP
        rw = [f"v_and_b32 v{TA}, 15, v{LN}", f"v_mul_u32_u24 v{TA}, 160, v{TA}", f"v_bfe_u32 v{TA+1}, v{LN}, 5, 1", f"v_bfe_u32 v{vRW}, v{LN}, 2, 1", f"v_xor_b32 v{TA+1}, v{TA+1}, v{vRW}",
              f"v_lshl_add_u32 v{TA}, v{TA+1}, 4, v{TA}", f"v_bfe_u32 v{TA+1}, v{LN}, 4, 1", f"v_mul_u32_u24 v{TA+1}, 10240, v{TA+1}", f"v_add3_u32 v{vRW}, v{TA}, v{TA+1}, s{sLB}"]
        wrl = lambda st: [f"ds_write_b128 v{vRW}, v[{20*st+4*jn}:{20*st+4*jn+3}] offset:{2560*st + 32*jn}" for jn in range(5)]
        rd = [f"s_mul_i32 s{t}, s{sWAVE}, 80", f"v_add_u32 v{RA}, s{t}, v{LN}", f"v_add_u32 v{RA+1}, 64, v{RA}",
              f"s_lshl_b32 s{t+2}, s{sR64}, 8", f"s_add_u32 s{t+2}, s{t+2}, {WS_G + 8192}"]
        for k in range(2):
            rd += [f"v_mul_u32_u24 v{RA+2}, 6554, v{RA+k}", f"v_lshrrev_b32 v{RA+2}, 16, v{RA+2}", f"v_mad_i32_i24 v{RA+3}, v{RA+2}, -10, v{RA+k}", f"v_lshlrev_b32 v{TA+2+k}, 2, v{RA+2}",
                   f"buffer_load_dword v{TA+2+k}, v{TA+2+k}, {WSR}, s{t+2} offen sc1",
                   f"v_bfe_u32 v{RA+6}, v{RA+2}, 2, 1", f"v_xor_b32 v{RA+k}, v{RA+k}, v{RA+6}",
                   f"v_mul_u32_u24 v{RA+2}, 1280, v{RA+2}", f"v_lshl_add_u32 v{RA+4+k}, v{RA+3}, 4, v{RA+2}", f"v_lshlrev_b32 v{RA+k}, 4, v{RA+k}"]
        rd += [f"v_add_u32 v{RA+6}, 61440, v{RA}", f"v_add_u32 v{RA+7}, 61440, v{RA+1}", f"v_add_u32 v{RA+8}, 122880, v{RA}", f"v_add_u32 v{RA+9}, 122880, v{RA+1}"]
        rd += [f"s_mov_b32 s{SRD_M}, s{pOUT}", f"s_mov_b32 s{SRD_M+1}, s{pOUT+1}", f"s_mov_b32 s{SRD_M+2}, {2048*640*2}", f"s_mov_b32 s{SRD_M+3}, 0x20000",
               f"s_mul_i32 s{t}, s{sR64}, 81920", f"s_mul_i32 s{t+1}, s{sC}, 160", f"s_add_u32 s{t}, s{t}, s{t+1}"]
        def flagvec(vt, with_act):
            a(f"v_lshlrev_b32 v{vP}, 2, v{LN}\nv_add_u32 v{vP}, s{sFk}, v{vP}\nv_mov_b32 v{vt}, 1\nv_cmp_le_u32 vcc, 4, v{LN}\nv_mov_b32 v{vt+1}, s{sFq}\ns_add_u32 s{t+2}, s{sFa}, 8")
            a(f"v_cndmask_b32 v{vP}, v{vP}, v{vt+1}, vcc")
            if with_act:
                a(f"v_cmp_lt_u32 vcc, 4, v{LN}\nv_mov_b32 v{vt+1}, s{t+2}\ns_nop 0\nv_cndmask_b32 v{vP}, v{vP}, v{vt+1}, vcc\nv_cndmask_b32 v{vt}, v{vt}, 2, vcc")

        a(f"s_setprio 0\nv_lshrrev_b32 v{LN}, 4, v{vL16}")
        a(f"s_xor_b32 s{sLB}, s{sWAVE}, 4\ns_mul_i32 s{sLB}, s{sLB}, 20480\ns_mov_b32 s{sN208}, -208")
        a(f"s_lshl_b32 s{t+3}, s{sR64}, 8\ns_add_u32 s{t+3}, s{t+3}, {WS_G}\ns_add_u32 s{t}, s{sPQb}, 4096\ns_add_u32 s{t+1}, s{sPQb}, 8192")
        if LFLAG: a(f"v_and_b32 v{vP}, 1, v{LN}\nv_lshlrev_b32 v{vP}, 2, v{vP}")
        else: a(f"v_mov_b32 v{vP}, 0")
        if ADPRE: emit(ad)
        a("s_barrier")
        self.stamp(4)
        if WOPOS != "pre": a(f"buffer_load_dword v{vP+1}, v{vP}, {WSR}, s{sFa} offen sc1")
        self.pickup()
        if WOPOS == "pre":
            a("s_waitcnt lgkmcnt(0)")
            emit(dma(sMb, 13, 0, "wo"))
        if not ADPRE: emit(ad)
        a("s_waitcnt lgkmcnt(0)")
        for k in range(5): a(f"ds_write_b128 v{X+18}, v[{K0+4*k}:{K0+4*k+3}] offset:{13312 + 1024*k}")
        if WOPOS == "pre": self.poll(f"s{sFa}", 2, vP, vP + 1)
        else:
            a("s_waitcnt vmcnt(0)")
            if LFLAG:
                sk = a.newlabel("L_sig")
                a(f"s_cmp_ge_u32 s{sWAVE}, 4\ns_cbranch_scc1 {sk}")
                self.stamp(5)
                self.signal(sF1, 46); self.signal(32, 46)
                a.label(sk)
            check(f"s{sFa}", 2)
        self.stamp(6)
        PR = {"a": {-1: 3, 2: 2, 5: 1, 6: 0}, "b": {-1: 3, 1: 2, 3: 1, 6: 0}, "c": {-1: 1, 5: 0}, "d": {-1: 2, 5: 1, 7: 0}, "e": {-1: 3, 3: 2, 6: 1, 8: 0}}.get(PRIO, {})
        prio = lambda k: a(f"s_setprio {PR[k]}") if k in PR else None
        prio(-1)
        emit(act(0))
        a(f"v_lshlrev_b32 v{vP}, 7, v{LN}\nv_add_u32 v{vP}, s{sFk}, v{vP}\nv_cmp_le_u32 vcc, 4, v{LN}\nv_mov_b32 v{vG+1}, s{sFq}\nv_mov_b32 v{vG}, 16")
        a(f"v_cndmask_b32 v{vP}, v{vP}, v{vG+1}, vcc\nv_cndmask_b32 v{vG}, v{vG}, 25, vcc")
        if LFLAG: a(f"v_cmp_lt_u32 vcc, 4, v{LN}\ns_add_u32 s{t+2}, s{sFa}, 8\nv_mov_b32 v{vG+1}, s{t+2}\nv_cndmask_b32 v{vP}, v{vP}, v{vG+1}, vcc\nv_cndmask_b32 v{vG}, v{vG}, 2, vcc")
        fv = lambda: (a(f"buffer_load_dword v{vP+1}, v{vP}, {WSR}, 0 offen sc1"), seq.append("fv"))
        if FVAT < 0: fv()
        emit(act(1) + act(2))
        fill = (lambda: dma(sMb, 13, 0, "wo")) if WOPOS == "s0" else (lambda: lateb(3))
        for i in range(5):
            prio(i)
            wait(f"act{i}")
            if TAILDBG == 2 and i < 4: self.stamp((2, 3, 5, 7)[i], "tail")
            emit(interleave(mlp(i, i == 0), fill() if fill else []))
            fill = None
            if i == 0 and WOPOS == "s1": fill = lambda: dma(sMb, 13, 0, "wo")
            if i == 3 and WOPOS == "s4": fill = lambda: dma(sMb, 13, 0, "wo")
            if i == FVAT: fv()
            if i < 2 and not (LFLAG and i == 1): emit(act(i + 3))
            if i == PQAT:
                wait("fv")
                check("0", f"v{vG}", 8)
                if TAILDBG == 2: self.stamp(4, "tail")
                if LFLAG: emit(act(4))
                a(f"v_and_b32 v{vP+1}, 15, v{LN}\nv_lshlrev_b32 v{vP+1}, 2, v{vP+1}")
                f1 = lambda: lateb(4) + pq(PQR, 0) + pq(PQR, 1) + gld(vP + 1)
                if FILLI and i < 2: fill = f1
                else: emit(f1())
            if i == 2:
                a(f"v_add_u32 v{KA+19}, s{sLB}, v{vL16}")
                for k in range(5): a(f"ds_read_b128 v[{KA+4*k}:{KA+4*k+3}], v{KA+19} offset:{13312 + 1024*k}")
                a("s_waitcnt lgkmcnt(0)")
                f2 = lambda: dma(sKv, 7, 13312, "kv") + (act(5) + lateb() if WOPOS != "x" else []) + (dma(sMb, 13, 0, "wo") if WOPOS == "s3" else [])
                if FILLI: fill = f2
                else: emit(f2())
        self.stamp(7)
        prio(5)
        emit(consts)
        KP = 120
        wait("kv")
        self.stamp(8)
        gather(KA, lambda j: 200 + 4*j if j < 8 else 140 + 4*(j - 8), KP, PQR, 8)
        Oset = {1: ([200, 204, 208, 212, 216], 220), 0: ([162, 166, 170, 174, 224], 228)}
        SC = [178, 179, vP + 1]
        fq = fqf(PQR)
        S = lambda k: KP + 2*k
        def Xb(st):
            O, DN = Oset[st & 1]
            p0, p1, ps = fq(st, 0), fq(st, 2), fq(st, 4)
            return [K32(DN, S(16), p0, acc(196) if LATEORD else "0"), K32(O[3], S(10), p1, "0"), K32(O[4], S(12), p1, "0"), K32(DN, S(18), p1, acc(DN)),
                    K32(O[0], S(0), p0, "0"), K32(O[1], S(2), p0, "0"), K32(O[2], S(6), p0, "0"), K32(O[1], S(4), p1, acc(O[1])), K32(O[2], S(8), p1, acc(O[2])),
                    "s_nop 0", K16(DN, S(20), ps), K16(O[3], S(14), ps), K16(O[4], S(15), ps)]
        def Vb(st):
            O, DN = Oset[st & 1]
            return scales(st, DN, SC) + sum((vtile(st, tt, O[tt], DN, SC, fq) for tt in range(5)), [])
        def Yb(st):
            r = []
            for p in range(2):
                r += [K32(20*st + 4*jn, MR + 4*(2*jn + p), fq(st, 2*p), acc(20*st + 4*jn)) for jn in range(5)]
            return r + ["s_nop 1"] + [K16(20*st + 4*jn, MR + 40 + 2*jn, fq(st, 4)) for jn in range(5)]
        a("s_nop 1")
        late = (act(5) + lateb() + dma(sMb, 13, 0, "wo")) if WOPOS == "x" else []
        if LATEORD:
            assert NB == 5 and WOPOS == "x"
            lastb = late[8:10]; late = late[:8] + late[10:]
            i5 = seq.index("act5") + 8; seq.pop(i5); seq.append("act5")
            for k in range(4): a(f"v_mov_b32 v{196+k}, 0x358637bd")
            a("s_nop 1")
        cuts = [0] + [len(late)*c//100 for c in XSPLIT] + [len(late)]
        emit(interleave(Xb(0), late[cuts[0]:cuts[1]]))
        for st in range(1, 4):
            x = Xb(st)
            emit(interleave(x[:6], late[cuts[st]:cuts[st+1]]) + (lastb if LATEORD and st == 3 else []) + interleave(x[6:], Vb(st - 1)))
        a(f"v_add_u32 v{TA}, s{sLB}, v{vL16}\nv_lshlrev_b32 v{TA+1}, 3, v{LN}\nv_add_u32 v{TA+1}, s{sLB}, v{TA+1}")
        wor = [f"ds_read_b128 v[{MR+4*f}:{MR+4*f+3}], v{TA} offset:{1024*f}" for f in range(10)]
        wor += [f"ds_read_b64 v[{MR+40+2*jn}:{MR+41+2*jn}], v{TA+1} offset:{10240 + 512*jn}" for jn in range(5)]
        prio(6)
        if WOPOS in ("s3", "s4", "x"):
            wait("act5")
            emit(interleave(mlp(5, False), Vb(3)))
            a("s_waitcnt vmcnt(0)")
            emit(wor + rw)
        else:
            emit(wor)
            wait("act5")
            emit(interleave(mlp(5, False), Vb(3) + rw))
        a("s_waitcnt lgkmcnt(0)")
        emit(interleave(Yb(0), rd[:25]))
        prio(7)
        emit(interleave(Yb(1), rd[25:] + wrl(0), 2))
        prio(8)
        emit(interleave(Yb(2), wrl(1), 6))
        emit(interleave(Yb(3), wrl(2), 6))
        a("s_nop 4")
        emit(wrl(3))
        a("s_waitcnt lgkmcnt(0)\ns_barrier")
        self.stamp(9)
        if RED == 0:
            for k in range(2):
                if k == 1: a("s_mov_b64 exec, 0xffff")
                R = 64*k
                for w in range(8):
                    for par in range(2):
                        base = [RA + k, RA + 6 + k, RA + 8 + k][w // 3]
                        a(f"ds_read_b128 v[{R+8*w+4*par}:{R+8*w+4*par+3}], v{base} offset:{20480*(w % 3) + 10240*par}")
            a("s_mov_b64 exec, -1")
            for k in range(2):
                R = 64*k
                a(f"s_waitcnt lgkmcnt({15 if k == 0 else 0})")
                for pairs in (((0, 4), (1, 5), (2, 6), (3, 7)), ((0, 2), (1, 3)), ((0, 1),)):
                    for x, y in pairs:
                        for j in range(4):
                            a(f"v_pk_add_f32 v[{R+8*x+2*j}:{R+8*x+2*j+1}], v[{R+8*x+2*j}:{R+8*x+2*j+1}], v[{R+8*y+2*j}:{R+8*y+2*j+1}]")
                if k == 0: a("s_waitcnt vmcnt(0)")
                for j in range(8): a(f"v_mul_f32 v{R+j}, v{TA+2+k}, v{R+j}")
                for j in range(4): a(f"v_cvt_pk_bf16_f32 v{R+j}, v{R+2*j}, v{R+2*j+1}")
                if k == 1: a("s_mov_b64 exec, 0xffff")
                a(f"buffer_store_dwordx4 v[{R}:{R+3}], v{RA+4+k}, s[{SRD_M}:{SRD_M+3}], s{t} offen {OUTFL}")
            a("s_mov_b64 exec, -1")


        else:
            items = [(k, w) for k in range(2) for w in range(8)]
            def rdp(n):
                k, w = items[n]
                base = [RA + k, RA + 6 + k, RA + 8 + k][w // 3]
                r = [f"ds_read_b128 v[{8*n+4*par}:{8*n+4*par+3}], v{base} offset:{20480*(w % 3) + 10240*par}" for par in range(2)]
                return r if k == 0 else ["s_mov_b64 exec, 0xffff"] + r + ["s_mov_b64 exec, -1"]
            AH = 6
            for n in range(AH): emit(rdp(n))
            for n, (k, w) in enumerate(items):
                if n + AH < 16: emit(rdp(n + AH))
                if w == 0: continue
                a(f"s_waitcnt lgkmcnt({2*min(AH, 15 - n)})")
                R = 64*k
                for j in range(4):
                    a(f"v_pk_add_f32 v[{R+2*j}:{R+2*j+1}], v[{R+2*j}:{R+2*j+1}], v[{8*n+2*j}:{8*n+2*j+1}]")
                if w == 7:
                    if k == 0: a("s_waitcnt vmcnt(0)")
                    for j in range(8): a(f"v_mul_f32 v{R+j}, v{TA+2+k}, v{R+j}")
                    for j in range(4): a(f"v_cvt_pk_bf16_f32 v{R+j}, v{R+2*j}, v{R+2*j+1}")
                    if k == 1: a("s_mov_b64 exec, 0xffff")
                    a(f"buffer_store_dwordx4 v[{R}:{R+3}], v{RA+4+k}, s[{SRD_M}:{SRD_M+3}], s{t} offen {OUTFL}")
            a("s_mov_b64 exec, -1")


def descriptor(name):
    return f""".p2align 6
.amdhsa_kernel {name}
  .amdhsa_next_free_vgpr 256
  .amdhsa_next_free_sgpr 102
  .amdhsa_accum_offset 256
  .amdhsa_group_segment_fixed_size 0
  .amdhsa_kernarg_size 88
  .amdhsa_user_sgpr_count 2
  .amdhsa_user_sgpr_kernarg_segment_ptr 1
  .amdhsa_system_sgpr_workgroup_id_x 1
.end_amdhsa_kernel
"""

def build(stamps):
    assert not LFLAG or (ROT2 == "none" and PQAT == 1 and not EARLYQ and WOPOS != "pre")
    g = Gen(stamps=stamps)
    a = g.a
    K = NAME + "_kernel"
    hdr = open(os.path.join(os.path.dirname(os.path.abspath(__file__)), "header.txt")).read()
    for l in hdr.strip().split("\n"): a.lines.append(l)
    a(f"; @launch grid=(256,1,1) block=(512,1,1) lds={LDS_TOTAL}")
    a('.amdgcn_target "amdgcn-amd-amdhsa--gfx950"\n.text')
    a(f".globl {K}\n.p2align 8\n.type {K},@function")
    a.label(K)
    g.common_prologue("L_end")
    a(f"s_cmp_lt_u32 s{sWAVE}, 4\ns_cbranch_scc1 L_comp")
    g.loader1()
    a(f"s_setprio {LPRIO}")
    if not NE16:
        g.setup2()
        g.srd(SRD_WS, pWS, WS_SIZE)
    g.preload_b(NE16, NL0)
    if K1LDS: a(f"v_mov_b32 v6, {K1C}\nv_mov_b32 v7, 0\nds_write_b32 v6, v7\ns_waitcnt lgkmcnt(0)")
    a("s_barrier")
    if SKEW: a(f"v_mov_b32 v6, {HINT}\nv_mov_b32 v8, 0\nv_mov_b32 v9, 0\nv_mov_b32 v10, 0\nv_mov_b32 v11, 0\nds_write_b128 v6, v[8:11]\ns_waitcnt lgkmcnt(0)")
    g.preload_b(NL0, NL1, TH)
    if not K1LDS: a(f"s_cmp_lg_u32 s{sTYPE}, 0\ns_cbranch_scc1 L_l2\ns_barrier")
    a.label("L_l2")
    if DIAG != 3: g.preload_b(NL1, 5*NB, TH)
    if BLDS and DIAG != 3: g.stage_b()
    g.stamp(3)
    a.label("L_g2")
    g.gemm2()
    g.dump_stamps()
    a.label("L_end")
    a("s_endpgm")
    a.label("L_comp")
    a(f"s_cmp_eq_u32 s{sTYPE}, 0\ns_cbranch_scc1 L_kv")
    g.compute_P(); a("s_branch L_g2")
    a.label("L_kv")
    g.compute_KV(); a("s_branch L_g2")
    a.label("L_code_end")
    errs = lint(a.lines)
    for e in errs: print("HAZARD:", e, file=sys.stderr)
    return a.text() + '.section .rodata,"a"\n' + descriptor(K)

if __name__ == "__main__":
    open(sys.argv[1], "w").write(build(sys.argv[2] if len(sys.argv) > 2 else False))
```

```python
import sys, os, re
sys.path.insert(0, os.path.dirname(os.path.abspath(__file__)))
from asmlib import *

NAME = "gated_mix__linear_attn_block__dense_activation_mish__prompt"
ENV = os.environ.get

CNT_ACT, CNT_PQ, CNT_KV = 0, 256*128, 288*128
DONE_KV, DONE_PQ = 320*128, 328*128
WS_G = 0x10000
WS_KVP = 0x100000
WS_WOR = 0x200000
WS_W2R = 0x300000
WS_PQ = 0x500000
WS_ACT = 0x800000
WS_SIZE = 0x1000000
WS_STAMP = 0x8000000
BIG = 0x20000000
DBGW = int(ENV("DBGW", "0"))
ROTMODE = ENV("ROT", "two")
ROT2 = ENV("ROT2", "none")
NPRE = int(ENV("NPRE", "10"))
SPIN = int(ENV("SPIN", str(0x100000)))
WOAT = 3
ADPRE = int(ENV("ADPRE", "1"))
KVAT = int(ENV("KVAT", "-1"))
GSYNC = int(ENV("GSYNC", "0"))
PF = int(ENV("PF", "0"))
RS = int(ENV("RS", "3"))
S1AT = int(ENV("S1AT", "8"))
S1SLEEP = int(ENV("S1SLEEP", "2"))
LOOPDBG = int(ENV("LOOPDBG", "0"))
CPF = int(ENV("CPF", "1"))
RD = int(ENV("RD", "-1"))
SKEW = int(ENV("SKEW", "0"))
HINT = 3*20480 + 12800
TAILDBG = int(ENV("TAILDBG", "0"))
OUTFL = ENV("OUTFL", "").replace("_", " ")
LFLAG = int(ENV("LFLAG", "0"))
FAKE = int(ENV("FAKE", "0"))
SPLIT = int(ENV("SPLIT", "1"))
YSLEEP = int(ENV("YSLEEP", "8"))
PQAT = int(ENV("PQAT", "1"))
FILLI = int(ENV("FILLI", "1"))
FIRST0 = int(ENV("FIRST0", "0"))
PRIO = ENV("PRIO", "c")
LOOK = ENV("LOOK", "xw")
GBR = int(ENV("GBR", "0"))
STPRIO = int(ENV("STPRIO", "1"))
NRE = int(ENV("NRE", "20"))
SPREAD = int(ENV("SPREAD", "0"))
NE16 = int(ENV("NE16", "0"))
NL1 = int(ENV("NL1", "16"))
K1LDS = int(ENV("K1LDS", "1"))
K1C = 40960 + 2032
FVAT = int(ENV("FVAT", "0"))
WOPOS = ENV("WOPOS", "x")
RED = int(ENV("RED", "1"))
DIAG = int(ENV("DIAG", "0"))
LPRIO = int(ENV("LPRIO", "0"))
EPRIO = int(ENV("EPRIO", "0"))
TH = int(ENV("TH", "4"))
EARLYQ = int(ENV("EARLYQ", "0"))
NB = int(ENV("NB", "5"))
NTH = int(ENV("NTH", "36"))
XSPLIT = [int(v) for v in ENV("XSPLIT", "30,55,80").split(",")]
LRP = int(ENV("LRP", "0"))
MBOX = 161792
STRICTP = int(ENV("STRICTP", "1"))
LATEORD = int(ENV("LATEORD", "0"))
B20AT = int(ENV("B20AT", "14"))
MAP1 = ENV("MAP1", "q")
ROTQ = int(ENV("ROTQ", "1"))
RG = int(ENV("RG", "5"))
RX = int(ENV("RX", "2"))
PICK = int(ENV("PICK", "0"))
SLEEP = int(ENV("SLEEP", "8"))
BLDS = int(ENV("BLDS", "1"))
NL0 = int(ENV("NL0", "13"))
MAP2 = ENV("MAP2", "x2")
TOUCH = int(ENV("TOUCH", "0"))
MSDBG = int(ENV("MSDBG", "0"))
MSPRIO = int(ENV("MSPRIO", "1"))
MSPRIO2 = int(ENV("MSPRIO2", "1"))

XR = 0
STG = 40960
WR = 49152
WSLOT = 14336
NS = 6
GATE = WR + NS * WSLOT
SCR = GATE + 2048
MS = WR
BL = WR + 32768
BLF = STG + 2040
LDS_TOTAL = 163840

sWG = 2
pX, pWQKV, pWO, pW1, pB1, pW2, pGATE, pOUT, pDBG, pWS = 4, 6, 8, 12, 14, 16, 18, 20, 22, 24
sWAVE, sRB, sHALF, sCBL, sGRP, sF1, sROT, sPIDX, sTYPE, sT = 26, 27, 28, 29, 30, 31, 32, 33, 34, 35
SRD_WS, SRD_X, SRD_W, SRD_M, SRD_D = 36, 40, 44, 52, 56
T0 = 60
sST = 76
cL2E, cC, cE = 96, 98, 100
sR64, sC = 27, 28
sB0, sA0 = 40, 46
sPQb, sMb, sKv, sFk = 0, 1, 3, 29
sFa, sFq = 10, 11
BS, AB = 80, 200
PQR, MR, KA, KD = 80, 120, 120, 176
sLB, sN208 = 30, 33
vG, vP, vL16, vL16b = 248, 252, 254, 255
WSR = f"s[{SRD_WS}:{SRD_WS+3}]"


class Gen:
    def __init__(self, stamps=False):
        self.a = Asm()
        self.stamps = stamps

    def stamp(self, k, loop=False):
        if loop == "tail":
            if not TAILDBG: return
        elif TAILDBG and 1 <= k <= 7 and not (TAILDBG == 2 and k == 6): return
        elif LOOPDBG and k >= 3 and not loop: return
        elif loop and not LOOPDBG: return
        if self.stamps and not (self.stamps == "dbg" and k == 9):
            if k < 2 and self.stamps != "dbg" and loop != "tail":
                self.a(f"s_memtime s[58:59]\ns_waitcnt lgkmcnt(0)\ns_mov_b32 s{sST+2*k}, s58")
            else:
                self.a(f"s_memtime s[{sST+2*k}:{sST+2*k+1}]")

    def srd(self, d, ptr, size, add=None):
        a = self.a
        if add is None:
            a(f"s_mov_b32 s{d}, s{ptr}\ns_mov_b32 s{d+1}, s{ptr+1}")
        else:
            a(f"s_add_u32 s{d}, s{ptr}, {add}\ns_addc_u32 s{d+1}, s{ptr+1}, 0")
        a(f"s_mov_b32 s{d+2}, {size}\ns_mov_b32 s{d+3}, 0x20000")

    def signal(self, soff, v, off=0):
        self.a(f"v_mov_b32 v{v}, 1\nv_mov_b32 v{v+1}, 0\ns_mov_b64 exec, 1\nbuffer_atomic_add v{v}, v{v+1}, {WSR}, s{soff} offen offset:{off} sc1\ns_mov_b64 exec, -1")

    def arrive(self, soff, v):
        self.a(f"v_mov_b32 v{v}, 1\nv_mov_b32 v{v+1}, 0\ns_mov_b64 exec, 1\nbuffer_atomic_add v{v}, v{v+1}, {WSR}, s{soff} offen sc0 sc1\ns_mov_b64 exec, -1")

    def raise_if_last(self, v, last, soff):
        a = self.a
        sk = a.newlabel("L_last")
        a(f"v_readfirstlane_b32 s{T0+14}, v{v}\nv_mov_b32 v{v}, 1\nv_mov_b32 v{v+1}, 0\ns_cmp_lg_u32 s{T0+14}, {last}\ns_cbranch_scc1 {sk}")
        a(f"s_mov_b64 exec, 1\nbuffer_store_dword v{v}, v{v+1}, {WSR}, s{soff} offen sc1\ns_mov_b64 exec, -1")
        a.label(sk)

    def poll(self, soff, target, va, vd, srd=SRD_WS, sleep=None):
        a = self.a
        t = T0 + 15
        loop, done = a.newlabel("L_poll"), a.newlabel("L_polld")
        a(f"s_mov_b32 s{t}, 0")
        a.label(loop)
        a(f"buffer_load_dword v{vd}, v{va}, s[{srd}:{srd+3}], {soff} offen sc1\ns_waitcnt vmcnt(0)")
        a(f"v_cmp_le_u32 vcc, {target}, v{vd}\ns_add_u32 s{t}, s{t}, 1\ns_nop 0")
        a(f"s_cmp_eq_u64 vcc, -1\ns_cbranch_scc1 {done}")
        a(f"s_sleep {SLEEP if sleep is None else sleep}\ns_cmp_lt_u32 s{t}, {SPIN}\ns_cbranch_scc1 {loop}")
        a.label(done)

    def dump_stamps(self):
        if not self.stamps:
            return
        a = self.a
        a("s_waitcnt vmcnt(0) lgkmcnt(0)")
        a(f"s_memrealtime s[{T0}:{T0+1}]\ns_memtime s[{T0+2}:{T0+3}]")
        if self.stamps == "dbg":
            self.srd(SRD_M, pDBG, 256)
            a("s_waitcnt lgkmcnt(0)\nv_mov_b32 v2, 0\ns_mov_b64 exec, 1")
            sk = a.newlabel("L_dbg")
            a(f"s_lshl_b32 s{T0+5}, s{sWG}, 3\ns_add_u32 s{T0+5}, s{T0+5}, s{sWAVE}\ns_cmp_lg_u32 s{T0+5}, {DBGW}\ns_cbranch_scc1 {sk}")
            for k in range(1, 10):
                a(f"s_sub_u32 s{T0+5}, s{sST+2*k}, s{sST}\nv_mov_b32 v{3+k}, s{T0+5}")
            a(f"s_sub_u32 s{T0+5}, s{T0+2}, s{sST}\nv_mov_b32 v13, s{T0+5}\ns_sub_u32 s{T0+5}, s{T0}, s94\nv_mov_b32 v14, s{T0+5}\nv_mov_b32 v15, s94")
            for k in range(3):
                a(f"buffer_store_dwordx4 v[{4+4*k}:{7+4*k}], v2, s[{SRD_M}:{SRD_M+3}], 0 offen offset:{16+16*k}")
            a.label(sk)
            a("s_waitcnt vmcnt(0)")
            return
        a(f"s_getreg_b32 s{T0+4}, hwreg(HW_REG_XCC_ID)")
        self.srd(SRD_M, pWS, 0x10000000)
        a("s_waitcnt lgkmcnt(0)")
        for k in range(10):
            a(f"v_mov_b32 v{k}, s{sST+2*k}")
        a(f"v_mov_b32 v10, s{T0}\nv_mov_b32 v11, s{T0+2}\nv_mov_b32 v12, s{T0+4}\nv_mov_b32 v13, s{sTYPE}\nv_mov_b32 v14, s77\nv_mov_b32 v15, s79")
        a(f"s_lshl_b32 s{T0+5}, s{sWG}, 3\ns_add_u32 s{T0+5}, s{T0+5}, s{sWAVE}\ns_lshl_b32 s{T0+5}, s{T0+5}, 6\ns_add_u32 s{T0+5}, s{T0+5}, {WS_STAMP}")
        a("v_mov_b32 v16, 0\ns_mov_b64 exec, 1")
        for k in range(4):
            a(f"buffer_store_dwordx4 v[{4*k}:{4*k+3}], v16, s[{SRD_M}:{SRD_M+3}], s{T0+5} offen offset:{16*k}")
        a("s_waitcnt vmcnt(0)")

    def common_prologue(self, endlabel):
        a = self.a
        t = T0
        a(f"s_cmp_ge_u32 s{sWG}, 256\ns_cbranch_scc1 {endlabel}")
        a("s_load_dwordx16 s[4:19], s[0:1], 0\ns_load_dwordx4 s[20:23], s[0:1], 64\ns_load_dwordx2 s[24:25], s[0:1], 80")
        if self.stamps:
            for k in range(10): a(f"s_mov_b32 s{sST+2*k}, 0")
            if self.stamps == "dbg": a("s_memrealtime s[94:95]")
            else: a("s_memrealtime s[56:57]\ns_memtime s[58:59]\ns_waitcnt lgkmcnt(0)\ns_mov_b32 s77, s56\ns_mov_b32 s79, s58")
        if CPF:
            sk = a.newlabel("L_cpf")
            a(f"s_getpc_b64 s[{t}:{t+1}]\nL_pc0:\ns_lshr_b32 s{t+2}, s{sWG}, 3\ns_lshl_b32 s{t+2}, s{t+2}, 11\nv_lshlrev_b32 v2, 4, v0\nv_add_u32 v2, s{t+2}, v2")
            a(f"v_cmp_gt_u32 vcc, 128, v0\nv_min_u32 v2, L_code_end-L_pc0-16, v2\ns_and_saveexec_b64 s[{t+4}:{t+5}], vcc\ns_cbranch_execz {sk}")
            a(f"global_load_dwordx4 v[248:251], v2, s[{t}:{t+1}]")
            a.label(sk)
            a(f"s_mov_b64 exec, s[{t+4}:{t+5}]")
        a("v_lshrrev_b32 v1, 6, v0\nv_and_b32 v0, 63, v0")
        a(f"v_readfirstlane_b32 s{sWAVE}, v1")
        if MAP1 == "h":
            a(f"s_bfe_u32 s{t+2}, s{sWG}, 0x20001\ns_bfe_u32 s{t+3}, s{sWG}, 0x20003")
            a(f"s_lshl2_add_u32 s{sRB}, s{t+2}, s{t+3}\ns_and_b32 s{sHALF}, s{sWG}, 1\ns_lshr_b32 s{sCBL}, s{sWG}, 5")
            a(f"s_and_b32 s{t}, s{sCBL}, 3\ns_lshl2_add_u32 s{sGRP}, s{sHALF}, s{t}\ns_lshr_b32 s{sTYPE}, s{sCBL}, 2")
        else:
            a(f"s_bfe_u32 s{t+2}, s{sWG}, 0x10002\ns_bfe_u32 s{t+3}, s{sWG}, 0x30003\ns_lshl3_add_u32 s{sRB}, s{t+2}, s{t+3}")
            a(f"s_bfe_u32 s{sHALF}, s{sWG}, 0x10001\ns_lshr_b32 s{sTYPE}, s{sWG}, 7\ns_bfe_u32 s{t}, s{sWG}, 0x10006\ns_and_b32 s{t+1}, s{sWG}, 1")
            a(f"s_lshl1_add_u32 s{t+4}, s{t+1}, s{t}\ns_lshl1_add_u32 s{t+5}, s{t}, s{t+1}\ns_cmp_eq_u32 s{sTYPE}, 0\ns_cselect_b32 s{t}, s{t+4}, s{t+5}")
            a(f"s_lshl2_add_u32 s{sCBL}, s{sTYPE}, s{t}\ns_lshl2_add_u32 s{sGRP}, s{sHALF}, s{t}")
            a(f"s_lshr_b32 s{t+4}, s{sWG}, 6\ns_add_u32 s{t+4}, s{t+4}, s{t+3}\ns_and_b32 s{t+4}, s{t+4}, 1\ns_mul_i32 s{t+4}, s{t+4}, {RG}\ns_mul_i32 s{t+5}, s{t+2}, {RX}\ns_add_u32 s{t+4}, s{t+4}, s{t+5}\ns_and_b32 s{t+5}, s{sWG}, {ROTQ}\ns_min_u32 s{t+5}, s{t+5}, 2\ns_add_u32 s{sROT}, s{t+4}, s{t+5}")
        if MAP1 != "h": pass
        elif ROTMODE == "full":
            a(f"s_mul_i32 s{t+4}, s{t+3}, 5\ns_add_u32 s{t+4}, s{t+4}, 1\ns_lshr_b32 s{t+4}, s{t+4}, 1")
            a(f"s_add_u32 s{t+4}, s{t+4}, s{sCBL}\ns_add_u32 s{t+4}, s{t+4}, s{t+2}")
            a(f"s_mul_i32 s{t+5}, s{sHALF}, 5\ns_add_u32 s{sROT}, s{t+4}, s{t+5}")
            for _ in range(2):
                a(f"s_sub_u32 s{t+4}, s{sROT}, 10\ns_cmp_ge_u32 s{sROT}, 10\ns_cselect_b32 s{sROT}, s{t+4}, s{sROT}")
        elif ROTMODE == "none":
            a(f"s_mov_b32 s{sROT}, 0")
        elif ROTMODE == "xcd":
            a(f"s_mul_i32 s{t+4}, s{t+2}, 5\ns_add_u32 s{t+4}, s{t+4}, 1\ns_lshr_b32 s{t+4}, s{t+4}, 1\ns_add_u32 s{sROT}, s{t+4}, s{sHALF}")
        elif ROTMODE == "two0":
            a(f"s_add_u32 s{t+4}, s{t+3}, s{sCBL}\ns_and_b32 s{t+4}, s{t+4}, 1\ns_mul_i32 s{sROT}, s{t+4}, 5")
        elif ROTMODE == "two1":
            a(f"s_add_u32 s{t+4}, s{t+3}, s{sCBL}\ns_and_b32 s{t+4}, s{t+4}, 1\ns_mul_i32 s{t+4}, s{t+4}, 5\ns_and_b32 s{t+5}, s{t+2}, 1\ns_lshl1_add_u32 s{sROT}, s{t+5}, s{t+4}")
        elif ROTMODE == "two":
            a(f"s_add_u32 s{t+4}, s{t+3}, s{sCBL}\ns_and_b32 s{t+4}, s{t+4}, 1\ns_mul_i32 s{t+4}, s{t+4}, 5")
            a(f"s_add_u32 s{t+4}, s{t+4}, s{t+2}\ns_add_u32 s{sROT}, s{t+4}, s{sHALF}")

    def loader1(self):
        a = self.a
        t = T0
        sLW = sT
        vXE, vXO, vW, vGt = 2, 3, 4, 8
        sStr, sCol, sA32, sA64, sOff, sXo, sWB, sWB2, sXB, sXP, sSel = 48, 49, 50, 51, t+4, t+5, t+6, t+7, t+8, t+9, t+10
        sKind = 72
        a(f"s_setprio 2\ns_sub_u32 s{sLW}, s{sWAVE}, 4")
        a("v_lshrrev_b32 v10, 3, v0\nv_and_b32 v11, 7, v0\nv_lshrrev_b32 v12, 4, v0\nv_mul_u32_u24 v13, 1280, v10\nv_xor_b32 v14, v11, v12")
        a(f"s_and_b32 s{t}, s{sLW}, 1\ns_lshl_b32 s{t}, s{t}, 6")
        a(f"v_lshl_add_u32 v13, v14, 4, v13\nv_xor_b32 v{vXE}, s{t}, v13\nv_xor_b32 v{vXO}, 64, v{vXE}")
        if FIRST0: a(f"s_mov_b32 s{sA32}, 0\ns_mov_b32 s{sA64}, 0\ns_min_u32 s{sROT}, s{sROT}, 8")
        else: a(f"s_lshl_b32 s{sA32}, s{sROT}, 1\ns_mov_b32 s{sA64}, s{sROT}")
        a(f"s_mul_i32 s{sXB}, s{sLW}, 3072\ns_mul_i32 s{sXP}, s{sLW}, 30720")
        for k in range(6, 10): a(f"v_mov_b32 v{k}, {BIG}")
        lKV, lQH, lLN, lJ = a.newlabel("L_wkv"), a.newlabel("L_wqh"), a.newlabel("L_wln"), a.newlabel("L_wj")
        a(f"s_cmp_eq_u32 s{sTYPE}, 0\ns_cbranch_scc1 {lKV}")
        a(f"s_cmp_eq_u32 s{sLW}, 3\ns_cbranch_scc1 {lQH}")
        a(f"s_mov_b32 s{sSel}, 1\ns_mov_b32 s{sStr}, 3072\ns_mul_i32 s{sCol}, s{sGRP}, 3\ns_add_u32 s{sCol}, s{sCol}, s{sLW}\ns_lshl_b32 s{sCol}, s{sCol}, 7\ns_lshl_b32 s{sWB}, s{sLW}, 12")
        a.label(lLN)
        a(f"v_and_b32 v13, 4, v10\nv_add_u32 v13, v13, v10\nv_mul_u32_u24 v13, s{sStr}, v13\nv_lshlrev_b32 v12, 1, v12\nv_xor_b32 v12, v11, v12\nv_lshl_add_u32 v{vW}, v12, 4, v13")
        a(f"s_lshl_b32 s{t}, s{sStr}, 4\ns_lshl_b32 s{t+1}, s{sStr}, 2\nv_add_u32 v{vW+1}, s{t}, v{vW}\nv_add_u32 v{vW+2}, s{t+1}, v{vW}\nv_add_u32 v{vW+3}, s{t}, v{vW+2}")
        a(f"s_branch {lJ}")
        a.label(lQH)
        a(f"s_mov_b32 s{sSel}, 0\ns_mov_b32 s{sStr}, 3840\ns_lshl_b32 s{sCol}, s{sHALF}, 1\ns_add_u32 s{sCol}, s{sCol}, s{sCBL}\ns_add_u32 s{sCol}, s{sCol}, 12\ns_lshl_b32 s{sCol}, s{sCol}, 6")
        a(f"s_cmp_lt_u32 s{sCBL}, 6\ns_cselect_b32 s{sCol}, s{sCol}, {BIG}\ns_mov_b32 s{sWB}, 12288\ns_mov_b32 s{sWB2}, 13312")
        a(f"v_lshrrev_b32 v10, 2, v0\nv_and_b32 v13, 12, v10\nv_add_u32 v13, v13, v10\nv_mul_u32_u24 v13, 3840, v13\nv_and_b32 v11, 3, v0\nv_and_b32 v12, 1, v12\nv_lshlrev_b32 v12, 1, v12\nv_xor_b32 v12, v11, v12")
        a(f"v_lshl_add_u32 v{vW}, v12, 4, v13\nv_add_u32 v{vW+1}, 15360, v{vW}")
        a(f"s_lshl_b32 s{t}, s{sROT}, 3\nv_mov_b32 v14, {BIG}")
        for j in range(2):
            if FIRST0:
                a(f"v_add_u32 v10, {64*j}, v0\nv_add_u32 v11, s{t}, v10\nv_subrev_u32 v12, 72, v11\nv_cmp_gt_u32 vcc, 80, v11\ns_nop 1\nv_cndmask_b32 v11, v12, v11, vcc\nv_cmp_gt_u32 vcc, 8, v10\ns_nop 1\nv_cndmask_b32 v11, v11, v10, vcc")
                a(f"v_cmp_gt_u32 vcc, 80, v10\nv_lshlrev_b32 v11, 4, v11\ns_nop 0\nv_cndmask_b32 v{vGt+j}, v14, v11, vcc")
            else:
                a(f"v_add_u32 v10, {64*j}, v0\nv_add_u32 v11, s{t}, v10\nv_cmp_gt_u32 vcc, 80, v10\nv_subrev_u32 v12, 80, v11\nv_min_u32 v11, v11, v12\nv_lshlrev_b32 v11, 4, v11\nv_cndmask_b32 v{vGt+j}, v14, v11, vcc")
        a(f"s_branch {lJ}")
        a.label(lKV)
        a(f"s_mov_b32 s{sSel}, 0\ns_mov_b32 s{sStr}, 3840\ns_mul_i32 s{sWB}, s{sLW}, 5120\ns_lshl_b32 s{sCol}, s{sGRP}, 7")
        a(f"s_cmp_eq_u32 s{sLW}, 2\ns_cbranch_scc1 {lLN}")
        a(f"s_mul_i32 s{sCol}, s{sGRP}, 160\ns_cmp_eq_u32 s{sLW}, 1\ns_cselect_b32 s{t}, 2560, 1280\ns_add_u32 s{sCol}, s{sCol}, s{t}")
        a(f"s_cmp_eq_u32 s{sLW}, 3\ns_cselect_b32 s{t}, 256, 0\ns_cselect_b32 s{sWB}, 4096, s{sWB}\ns_mov_b32 s{sWB2}, 9216")
        a(f"v_add_u32 v14, s{t}, v0")
        for j in range(4):
            a(f"v_add_u32 v10, {64*j}, v14\nv_mul_u32_u24 v11, 6554, v10\nv_lshrrev_b32 v11, 16, v11\nv_mad_i32_i24 v10, v11, -10, v10")
            a("v_and_b32 v12, 12, v11\nv_and_b32 v13, 3, v11\nv_lshl_or_b32 v12, v12, 1, v13\nv_bfe_u32 v13, v11, 4, 1\nv_lshl_or_b32 v12, v13, 2, v12")
            a(f"v_mul_u32_u24 v12, 3840, v12\nv_lshl_add_u32 v{vW+j}, v10, 4, v12")
            if j == 0:
                a(f"v_add_u32 v{vW+1}, 1280, v{vW}\ns_cmp_eq_u32 s{sLW}, 3\ns_cbranch_scc1 {lJ}")
        a.label(lJ)
        a(f"s_lshl_b32 s{sStr}, s{sStr}, 5\ns_mul_i32 s{t}, s{sRB}, 163840")
        a("s_waitcnt lgkmcnt(0)")
        self.stamp(0)
        self.srd(SRD_X, pX, 163840, add=f"s{t}")
        a(f"s_cmp_eq_u32 s{sSel}, 0\ns_cselect_b32 s{SRD_W}, s{pWQKV}, s{pW1}\ns_cselect_b32 s{SRD_W+1}, s{pWQKV+1}, s{pW1+1}\ns_cselect_b32 s{SRD_W+2}, {640*1920*2}, {640*1536*2}\ns_mov_b32 s{SRD_W+3}, 0x20000")
        lab3, lab4, labj = a.newlabel("L_ld3"), a.newlabel("L_ld4"), a.newlabel("L_ldj")
        lab0k, lab3k = a.newlabel("L_ld0k"), a.newlabel("L_ld3k")
        a(f"s_cmp_eq_u32 s{sLW}, 3\ns_cbranch_scc1 {lab3}")
        for variant, rp in (((0, 1), (0, 0), (3, 1), (3, 0), (4, 1)) if LRP else ((0, 0), (3, 0), (4, 0))):
            if LRP and (variant, rp) == (0, 1): a(f"s_cmp_eq_u32 s{sTYPE}, 0\ns_cbranch_scc1 {lab0k}")
            if LRP and (variant, rp) == (0, 0): a.label(lab0k)
            if LRP and (variant, rp) == (3, 0): a.label(lab3k)
            if variant == 3 and (rp or not LRP):
                a.label(lab3)
                a(f"s_cmp_ge_u32 s{sCBL}, 6\ns_cbranch_scc1 {lab4}")
                if LRP: a(f"s_cmp_eq_u32 s{sTYPE}, 0\ns_cbranch_scc1 {lab3k}")
            if variant == 4:
                a.label(lab4)
            nW = {0: 4, 3: 2, 4: 0}[variant]
            nX = 3 if variant == 0 else 7
            seq = []
            def issue_W(i):
                if nW == 0: return
                a(f"s_mul_i32 s{sOff}, s{sA32}, s{sStr}")
                for j in range(nW):
                    base, off = (sWB, 1024*j) if variant == 0 else ((sWB, sWB2)[j], 0)
                    a(f"s_add_u32 m0, s{base}, {WR + (i % NS)*WSLOT + off}")
                    a(f"s_add_u32 s{sOff}, s{sOff}, s{sCol}" if j == 0 else "s_nop 0")
                    a(f"buffer_load_dwordx4 v{vW+j}, s[{SRD_W}:{SRD_W+3}], s{sOff} offen lds")
                    seq.append(("W", i))
                if FIRST0 and i == 1: a(f"s_lshl1_add_u32 s{sA32}, s{sROT}, 2")
                else: a(f"s_add_u32 s{sA32}, s{sA32}, 1\ns_cmp_eq_u32 s{sA32}, 20\ns_cselect_b32 s{sA32}, {2 if FIRST0 else 0}, s{sA32}")
            def issue_X(jx):
                a(f"s_lshl_b32 s{sXo}, s{sA64}, 7")
                for j in range(nX):
                    a(f"s_add_u32 m0, s{sXB}, {XR + (jx % 3)*16384 + 1024*j}")
                    a(f"s_add_u32 s{sXo}, s{sXo}, " + (f"s{sXP}" if j == 0 else "10240"))
                    a(f"buffer_load_dwordx4 v{vXE + (j & 1)}, s[{SRD_X}:{SRD_X+3}], s{sXo} offen lds")
                    seq.append(("X", jx))
                if FIRST0 and jx == 0: a(f"s_add_u32 s{sA64}, s{sROT}, 1")
                else: a(f"s_add_u32 s{sA64}, s{sA64}, 1\ns_cmp_eq_u32 s{sA64}, 10\ns_cselect_b32 s{sA64}, {1 if FIRST0 else 0}, s{sA64}")
            def wait_for(items):
                last = max([n for n, it in enumerate(seq) if it in items] + [-1])
                if last >= 0: a(f"s_waitcnt vmcnt({len(seq) - 1 - last})")
            issue_X(0); issue_W(0)
            if variant == 4:
                self.srd(SRD_M, pGATE, 1280)
                for j in range(2):
                    a(f"s_mov_b32 m0, {GATE + 1024*j}\ns_nop 0\nbuffer_load_dwordx4 v{vGt+j}, s[{SRD_M}:{SRD_M+3}], 0 offen lds")
                    seq.append(("W", 0))
            issue_W(1)
            wait_for([("W", 0), ("X", 0)]); self.stamp(1); a("s_barrier")
            issue_X(1)
            wait_for([("W", 1)]); a("s_barrier")
            issue_W(2); issue_W(3); issue_X(2); issue_W(4)
            if LOOK == "full": issue_W(5)
            for j in range(1, 10):
                if j == (8 if NE16 else 9) and variant == 0:
                    sk = a.newlabel("L_s1skip")
                    a(f"s_cmp_lg_u32 s{sWAVE}, 4\ns_cbranch_scc1 {sk}")
                    self.srd(SRD_D, pDBG, 256)
                    a("v_mov_b32 v10, 128")
                    self.poll("0", 1, 10, 11, SRD_D, S1SLEEP)
                    a.label(sk)
                if rp and j == LRP + 2:
                    last = max(n for n, it in enumerate(seq) if it in (("W", 2*j), ("W", 2*j + 1), ("X", j)))
                    N = len(seq) - 1 - last
                    w1, w2, w3 = a.newlabel("L_wv"), a.newlabel("L_wv"), a.newlabel("L_wv")
                    a(f"s_cmp_eq_u32 s{sKind}, 1\ns_cbranch_scc1 {w1}\ns_cmp_eq_u32 s{sKind}, 2\ns_cbranch_scc1 {w2}\ns_waitcnt vmcnt({N})\ns_branch {w3}\n{w1}:\ns_waitcnt vmcnt({N+4})\ns_branch {w3}\n{w2}:\ns_waitcnt vmcnt({N+8})\n{w3}:")
                else:
                    wait_for([("W", 2*j), ("W", 2*j + 1), ("X", j)])
                if rp and variant == 0 and j == LRP + 4:
                    sk = a.newlabel("L_s1b")
                    a(f"s_cmp_lg_u32 s{sWAVE}, 4\ns_cbranch_scc1 {sk}\nv_readfirstlane_b32 s{t}, v70\nv_mov_b32 v71, 1\ns_cmp_lg_u32 s{t}, 127\ns_cbranch_scc1 {sk}")
                    self.srd(SRD_D, pDBG, 256)
                    a(f"s_mov_b64 exec, 1\nbuffer_store_dword v71, v69, s[{SRD_D}:{SRD_D+3}], 0 offen offset:128 sc1\ns_mov_b64 exec, -1")
                    a.label(sk)
                a("s_barrier")
                if rp and j == LRP:
                    self.srd(SRD_WS, pWS, WS_SIZE)
                    sk = a.newlabel("L_z")
                    a(f"v_lshlrev_b32 v69, 4, v0\ns_cmp_ge_u32 s{sLW}, 2\ns_cbranch_scc1 {sk}\ns_lshl3_add_u32 s{t}, s{sRB}, s{sGRP}\ns_lshl_b32 s{t}, s{t}, 9\ns_mul_i32 s{t+1}, s{sLW}, {WS_KVP}\ns_add_u32 s{t}, s{t}, s{t+1}")
                    a("v_mov_b32 v64, 0\nv_mov_b32 v65, 0\nv_mov_b32 v66, 0\nv_mov_b32 v67, 0\ns_mov_b32 exec_hi, 0")
                    a(f"buffer_store_dwordx4 v[64:67], v69, {WSR}, s{t} offen sc1\ns_mov_b32 exec_hi, -1")
                    a.label(sk)
                if rp and variant == 0 and j == LRP + 3:
                    sk = a.newlabel("L_s1a")
                    a(f"s_cmp_lg_u32 s{sWAVE}, 4\ns_cbranch_scc1 {sk}")
                    self.srd(SRD_D, pDBG, 256)
                    a(f"v_mov_b32 v70, 1\ns_mov_b64 exec, 1\nbuffer_atomic_add v70, v69, s[{SRD_D}:{SRD_D+3}], 0 offen sc0 sc1\ns_mov_b64 exec, -1")
                    a.label(sk)
                if LOOK == "ramp" and j == 1: issue_W(5)
                if j + 1 < 10 and LOOK == "xw": issue_W(2*j + 3)
                if j + 2 < 10: issue_X(j + 2); issue_W(2*j + 4)
                if j + 2 < 10 and LOOK != "xw": issue_W(2*j + 5)
                if rp and j == LRP:
                    a(f"s_lshl_b32 s{t}, s{sLW}, 6\ns_add_u32 s{t}, s{t}, {MBOX}\nv_mov_b32 v68, s{t}\nds_read_b128 v[16:19], v68\nds_read_b128 v[20:23], v68 offset:16\nds_read_b32 v24, v68 offset:32")
                    a(f"v_lshrrev_b32 v10, 2, v0\nv_and_b32 v11, 3, v0\nv_lshlrev_b32 v11, 3, v11\nv_lshl_add_u32 v10, v10, 7, v11\ns_lshl_b32 s{t}, s{sLW}, 12\ns_add_u32 s{t}, s{t}, {SCR}\nv_add_u32 v10, s{t}, v10")
                    for r in range(2):
                        for u in range(4):
                            a(f"ds_read_b64_tr_b16 v[{32+16*r+4*u}:{33+16*r+4*u}], v10 offset:{8192*r + 32*u}\nds_read_b64_tr_b16 v[{34+16*r+4*u}:{35+16*r+4*u}], v10 offset:{8192*r + 32*u + 2048}")
                    a(f"s_waitcnt lgkmcnt(0)\nv_readfirstlane_b32 s{sKind}, v24\nv_lshrrev_b32 v25, 1, v69")
                    for u in range(4): a(f"v_add_u32 v{16+u}, v{16+u}, v69")
                    for u in range(4):
                        a(f"buffer_store_dwordx4 v[{32+4*u}:{35+4*u}], v{16+u}, {WSR}, 0 offen sc1"); seq.append(("S", u))
                if rp and j == LRP + 1:
                    k2, k3 = a.newlabel("L_r2"), a.newlabel("L_r2")
                    a(f"s_cmp_eq_u32 s{sKind}, 0\ns_cbranch_scc1 {k2}\ns_cmp_eq_u32 s{sKind}, 2\ns_cbranch_scc1 {k3}")
                    for u in range(4): a(f"v_add_u32 v{20+u}, v{20+u}, v69\nbuffer_store_dwordx4 v[{48+4*u}:{51+4*u}], v{20+u}, {WSR}, 0 offen sc1")
                    a(f"s_branch {k2}\n{k3}:\ns_mov_b32 s{t}, 12800")
                    for u in range(4): a(f"v_add_u32 v{20+u}, v{20+u}, v25\nbuffer_store_dwordx2 v[{48+4*u}:{49+4*u}], v{20+u}, {WSR}, 0 offen sc1\nbuffer_store_dwordx2 v[{50+4*u}:{51+4*u}], v{20+u}, {WSR}, s{t} offen sc1")
                    a.label(k2)
                if j == 8 and NE16:
                    self.setup2()
                    self.srd(SRD_WS, pWS, WS_SIZE)
                    self.preload_b(0, NE16)
                    seq.extend(["B"] * NE16)
            if variant != 4:
                a(f"s_branch {labj}")
        a.label(labj)
        self.stamp(2)

    def mish_quad(self, h, dst, tmp):
        P = lambda r: f"v[{r}:{r+1}]"
        return [
            f"v_pk_fma_f32 {P(tmp)}, {P(h)}, s[{cL2E}:{cL2E+1}], -0.5 op_sel_hi:[1,1,0]",
            f"v_pk_fma_f32 {P(tmp+2)}, {P(h+2)}, s[{cL2E}:{cL2E+1}], -0.5 op_sel_hi:[1,1,0]",
            f"v_exp_f32 v{tmp}, v{tmp}", f"v_exp_f32 v{tmp+1}, v{tmp+1}", f"v_exp_f32 v{tmp+2}, v{tmp+2}", f"v_exp_f32 v{tmp+3}, v{tmp+3}",
            f"v_pk_add_f32 {P(tmp)}, {P(tmp)}, s[{cC}:{cC+1}]", f"v_pk_add_f32 {P(tmp+2)}, {P(tmp+2)}, s[{cC}:{cC+1}]",
            f"v_pk_fma_f32 {P(tmp)}, {P(tmp)}, {P(tmp)}, 0.5 op_sel_hi:[1,1,0]",
            f"v_pk_fma_f32 {P(tmp+2)}, {P(tmp+2)}, {P(tmp+2)}, 0.5 op_sel_hi:[1,1,0]",
            f"v_rcp_f32 v{tmp}, v{tmp}", f"v_rcp_f32 v{tmp+1}, v{tmp+1}", f"v_rcp_f32 v{tmp+2}, v{tmp+2}", f"v_rcp_f32 v{tmp+3}, v{tmp+3}",
            f"v_pk_fma_f32 {P(tmp)}, {P(h)}, {P(tmp)}, {P(h)} neg_lo:[1,0,0] neg_hi:[1,0,0]",
            f"v_pk_fma_f32 {P(tmp+2)}, {P(h+2)}, {P(tmp+2)}, {P(h+2)} neg_lo:[1,0,0] neg_hi:[1,0,0]",
            f"v_cvt_pk_bf16_f32 v{dst}, v{tmp}, v{tmp+1}", f"v_cvt_pk_bf16_f32 v{dst+1}, v{tmp+2}, v{tmp+3}",
        ]

    def phi_quad(self, h, dst, tmp):
        P = lambda r: f"v[{r}:{r+1}]"
        return [
            f"v_pk_mul_f32 {P(tmp)}, {P(h)}, s[{cL2E}:{cL2E+1}]", f"v_pk_mul_f32 {P(tmp+2)}, {P(h+2)}, s[{cL2E}:{cL2E+1}]",
            f"v_exp_f32 v{tmp}, v{tmp} clamp", f"v_exp_f32 v{tmp+1}, v{tmp+1} clamp", f"v_exp_f32 v{tmp+2}, v{tmp+2} clamp", f"v_exp_f32 v{tmp+3}, v{tmp+3} clamp",
            f"v_pk_add_f32 {P(h)}, {P(h)}, s[{cC}:{cC+1}]", f"v_pk_add_f32 {P(h+2)}, {P(h+2)}, s[{cC}:{cC+1}]",
            f"v_pk_add_f32 {P(tmp)}, {P(tmp)}, s[{cE}:{cE+1}]", f"v_pk_add_f32 {P(tmp+2)}, {P(tmp+2)}, s[{cE}:{cE+1}]",
            f"v_max_f32 v{tmp}, v{tmp}, v{h}", f"v_max_f32 v{tmp+1}, v{tmp+1}, v{h+1}", f"v_max_f32 v{tmp+2}, v{tmp+2}, v{h+2}", f"v_max_f32 v{tmp+3}, v{tmp+3}, v{h+3}",
            f"v_cvt_pk_bf16_f32 v{dst}, v{tmp}, v{tmp+1}", f"v_cvt_pk_bf16_f32 v{dst+1}, v{tmp+2}, v{tmp+3}",
        ]

    def consts(self, kind):
        if kind == "mish":
            self.a(f"s_mov_b32 s{cC}, 0x3f3504f3\ns_mov_b32 s{cC+1}, 0x3f3504f3")
        else:
            self.a(f"s_mov_b32 s{cC}, 0x3f800008\ns_mov_b32 s{cC+1}, 0x3f800008\ns_mov_b32 s{cE}, 0x358637bd\ns_mov_b32 s{cE+1}, 0x358637bd")

    def main_loop(self, reads, mfmas, extra, nread_end, bases):
        a = self.a
        a("s_barrier")
        self.stamp(1)
        for l in reads(0): a(l)
        for l in extra.get(0, ([], [], []))[1]: a(l)
        a("s_waitcnt lgkmcnt(0)")
        for i in range(1, 21):
            if (i == 1 or i % 2 == 0) and i < 20: a("s_barrier")
            if i in (2, 4, 6, 8, 10, 14, 18): self.stamp(3 + (2, 4, 6, 8, 10, 14, 18).index(i), True)
            pre, fill, preb = extra.get(i, ([], [], []))
            for l in pre: a(l)
            if i < 20:
                tail = []
                if (i + 1) % 3 == 0 and i + 1 < 20:
                    op = "v_add_u32" if ((i + 1) % NS) == 3 else "v_subrev_u32"
                    tail = [f"{op} v{b}, {3*WSLOT}, v{b}" for b in bases]
                body = interleave(mfmas(i - 1), reads(i) + fill + tail, 0, nread_end)
                for l in body: a(l)
                for l in preb: a(l)
                a("s_waitcnt lgkmcnt(0)")
            else:
                m19 = mfmas(19)
                for l in m19[:B20AT] + ["s_barrier"] + m19[B20AT:]: a(l)
        self.stamp(2)

    def finish1(self, flags, strict=False, late8=False):
        a = self.a
        self.setup2()
        if LFLAG:
            if late8: a(f"s_add_u32 s{flags[0]}, s{flags[0]}, 8")
            a(f"s_mov_b32 s32, s{flags[1]}")
            self.preload_b(0, NPRE)
            return
        if strict:
            a("s_waitcnt vmcnt(0)")
            self.stamp(5)
            for f in flags: self.signal(f, 1)
            self.preload_b(0, NPRE)
            return
        self.preload_b(0, NPRE)
        a(f"s_waitcnt vmcnt({NPRE})")
        self.stamp(5)
        for f in flags: self.signal(f, 1)
        if not BLDS:
            self.preload_b(NPRE, 30)
            return

    def pickup(self):
        a = self.a
        t = T0
        sk = a.newlabel("L_pk")
        a(f"s_cmp_ge_u32 s{sWAVE}, 4\ns_cbranch_scc1 {sk}")
        a(f"s_mul_i32 s{t+14}, s{sWAVE}, 20480\ns_add_u32 s{t+14}, s{t+14}, {BL}\nv_add_u32 v{BS+117}, s{t+14}, v{vL16}")
        for n in range(5*NB - 10):
            a(f"ds_read_b128 v[{BS+40+4*n}:{BS+43+4*n}], v{BS+117} offset:{1024*n}")
        a.label(sk)

    def prefetch(self, vL, v, S=SRD_X):
        a = self.a
        t = T0
        for ptr, size, share, n in ((pX, 2048*1280, 10240, 3), (pWQKV, 640*3840, 9600, 3), (pW1, 640*3072, 7680, 2))[:(1 if PF == 2 else 3)]:
            self.srd(S, ptr, size)
            per = -(-share // 4 // 128) * 128
            a(f"s_mul_i32 s{t}, s{sWG}, {share}\ns_and_b32 s{t}, s{t}, 0xffffff80\ns_mul_i32 s{t+1}, s{sWAVE}, {per}\ns_add_u32 s{t}, s{t}, s{t+1}\ns_min_u32 s{t}, s{t}, {size - n*1024}")
            for k in range(n):
                a(f"buffer_load_dwordx4 v[{v}:{v+3}], v{vL}, s[{S}:{S+3}], s{t} offen offset:{1024*k}")

    def touch(self, vLane, v):
        a = self.a
        t = T0
        a(f"v_lshlrev_b32 v{v}, 21, v{vLane}\nv_add_u32 v{v}, 0xff000, v{v}\ns_mov_b64 exec, 0xff")
        a(f"buffer_load_dword v{v+1}, v{v}, {WSR}, 0 offen")
        self.srd(SRD_M, pOUT, 2048*640*2)
        a(f"v_lshlrev_b32 v{v}, 20, v{vLane}\ns_mov_b64 exec, 7\nbuffer_load_dword v{v+2}, v{v}, s[{SRD_M}:{SRD_M+3}], 0 offen")
        self.srd(SRD_M, pWO, 640*640*2)
        a(f"v_lshlrev_b32 v{v}, 19, v{vLane}\ns_mov_b64 exec, 3\nbuffer_load_dword v{v+3}, v{v}, s[{SRD_M}:{SRD_M+3}], 0 offen\ns_mov_b64 exec, -1")

    def compute_P(self):
        a = self.a
        t = T0
        ACC, XB, WB, BI = 0, 112, 144, 200
        vX0, vX1, vH0, vH1, vQ, vGt, vL, vRd, vRr, vBo, vT = 228, 229, 230, 231, 232, 233, 234, 235, 236, 237, 238
        vLane = 253
        sSH, sNH = sT, 48
        sAct, sPq, sF2, sGs = 49, 72, 73, 74
        a(f"v_mov_b32 v{vLane}, v0\ns_lshr_b32 s{sSH}, s{sWAVE}, 1\ns_and_b32 s{sNH}, s{sWAVE}, 1")
        a(f"v_and_b32 v1, 15, v0\nv_lshrrev_b32 v2, 4, v0\nv_lshrrev_b32 v3, 1, v1\nv_xor_b32 v3, v3, v2\nv_lshlrev_b32 v3, 4, v3\nv_lshl_add_u32 v3, v1, 7, v3")
        a(f"s_lshl_b32 s{t}, s{sSH}, 13\nv_add_u32 v{vX0}, s{t}, v3\nv_xor_b32 v{vX1}, 64, v{vX0}")
        a(f"v_lshrrev_b32 v3, 2, v0\nv_and_b32 v4, 3, v0\nv_lshlrev_b32 v4, 3, v4")
        a(f"v_lshl_add_u32 v5, v3, 7, v4\nv_bfe_u32 v6, v0, 3, 2\ns_lshl_b32 s{t}, s{sNH}, 1\nv_xor_b32 v6, s{t}, v6\nv_lshl_add_u32 v6, v6, 5, v5")
        a(f"v_add_u32 v{vH0}, {WR}, v6\nv_xor_b32 v{vH1}, 32, v{vH0}")
        a(f"v_lshl_add_u32 v6, v3, 6, v4\nv_and_b32 v7, 1, v2\nv_xor_b32 v7, s{sNH}, v7\nv_lshl_add_u32 v6, v7, 5, v6\nv_add_u32 v{vQ}, {WR+12288}, v6")
        a(f"v_lshlrev_b32 v6, 4, v2\nv_add_u32 v{vGt}, {GATE}, v6\nv_lshlrev_b32 v{vL}, 4, v0\nv_lshlrev_b32 v{vBo}, 3, v2")
        a(f"v_lshrrev_b32 v6, 3, v0\nv_mul_u32_u24 v6, 1280, v6\nv_and_b32 v7, 7, v0\nv_lshl_add_u32 v{vRd}, v7, 4, v6")
        a(f"s_lshl_b32 s{t}, s{sWAVE}, 12\ns_add_u32 s{t}, s{t}, {SCR}\nv_add_u32 v{vRr}, s{t}, v5")
        a(f"s_lshl3_add_u32 s{sPIDX}, s{sRB}, s{sGRP}")
        a(f"s_mov_b32 s{cL2E}, 0x3fb8aa3b\ns_mov_b32 s{cL2E+1}, 0x3fb8aa3b")
        a(f"s_lshl2_add_u32 s{t}, s{sPIDX}, s{sWAVE}\ns_min_u32 s{t}, s{t}, 479")
        a(f"s_mul_i32 s{t+1}, s{t}, 6554\ns_lshr_b32 s{t+1}, s{t+1}, 16\ns_mul_i32 s{t+2}, s{t+1}, 10\ns_sub_u32 s{t+2}, s{t}, s{t+2}")
        a(f"s_mul_i32 s{t+6}, s{t+1}, 40960\ns_lshl_b32 s{t+3}, s{t+2}, 7\ns_add_u32 s{t+6}, s{t+6}, s{t+3}")
        a(f"s_mul_i32 s{t+7}, s{sGRP}, 384\ns_lshl_b32 s{t+3}, s{sNH}, 6\ns_add_u32 s{t+7}, s{t+7}, s{t+3}")
        a("s_waitcnt lgkmcnt(0)")
        self.stamp(0)
        self.srd(SRD_M, pB1, 3072)
        self.srd(SRD_W, pW2, 1536*640*2)
        for u in range(6):
            a(f"buffer_load_dwordx2 v[{BI+4*u+2}:{BI+4*u+3}], v{vBo}, s[{SRD_M}:{SRD_M+3}], s{t+7} offen offset:{128*(u >> 1) + 32*(u & 1)}")
        sSrc1 = 69
        a(f"s_mov_b32 s{sSrc1}, s{t+6}")
        self.srd(SRD_WS, pWS, WS_SIZE)
        if TOUCH == 2: self.touch(vLane, 240)
        dsts = [10, 11, 1, 3]
        for u in range(4):
            a(f"s_lshl2_add_u32 s{t+3}, s{t+2}, {u}\ns_mul_i32 s{t+4}, s{t+3}, 205\ns_lshr_b32 s{t+4}, s{t+4}, 10")
            a(f"s_mul_i32 s{t+5}, s{t+4}, 235\ns_add_u32 s{t+5}, s{t+5}, s{t+3}\ns_mul_i32 s{t+4}, s{t+1}, 5\ns_add_u32 s{t+5}, s{t+5}, s{t+4}")
            a(f"s_lshl_b32 s{t+5}, s{t+5}, 10\ns_add_u32 s{t+5}, s{t+5}, {WS_W2R}")
            if LRP: a(f"s_mov_b32 s{dsts[u]}, s{t+5}")
            else: a(f"s_cmp_lt_u32 s{sPIDX}, 120\ns_cselect_b32 s{dsts[u]}, s{t+5}, {BIG}")
        d2, sSrc2, sK2, sInc2 = 40, 0, 75, 70
        self.srd(SRD_M, pWO, 640*640*2)
        a(f"s_lshl1_add_u32 s{t}, s{sPIDX}, s{sWAVE}\ns_sub_u32 s{t}, s{t}, 2")
        a(f"s_cmp_lt_u32 s{t}, 160\ns_cselect_b32 s{sK2}, 1, 2\ns_cmp_lt_u32 s{t}, 200\ns_cselect_b32 s{sK2}, s{sK2}, 0\ns_cmp_lt_u32 s{sWAVE}, 2\ns_cselect_b32 s{sK2}, 0, s{sK2}")
        a(f"s_mul_i32 s{t+1}, s{t}, 6554\ns_lshr_b32 s{t+1}, s{t+1}, 16\ns_mul_i32 s{t+2}, s{t+1}, 10\ns_sub_u32 s{t+2}, s{t}, s{t+2}")
        a(f"s_lshr_b32 s{t+3}, s{t+1}, 1\ns_and_b32 s{t+4}, s{t+1}, 1\ns_sub_u32 s{t+5}, s{t+1}, 16\ns_lshl_b32 s{t+5}, s{t+5}, 1")
        a(f"s_cmp_eq_u32 s{sK2}, 2\ns_cselect_b32 s{t+3}, s{t+5}, s{t+3}\ns_cselect_b32 s{t+4}, 2, s{t+4}\ns_cselect_b32 s{sInc2}, {10240 + 64*1280}, 10240")
        a(f"s_mul_i32 s{sSrc2}, s{t+3}, {80*1280}\ns_mul_i32 s{t+5}, s{t+4}, {32*1280}\ns_add_u32 s{sSrc2}, s{sSrc2}, s{t+5}\ns_lshl_b32 s{t+5}, s{t+2}, 7\ns_add_u32 s{sSrc2}, s{sSrc2}, s{t+5}")
        a(f"s_mul_i32 s{t+3}, s{t+3}, 12800\ns_lshl_b32 s{t+5}, s{t+4}, 10\ns_cmp_eq_u32 s{sK2}, 2\ns_cselect_b32 s{t+5}, 10240, s{t+5}\ns_cselect_b32 s{t+6}, 512, 2048\ns_add_u32 s{t+3}, s{t+3}, s{t+5}\ns_add_u32 s{t+3}, s{t+3}, {WS_WOR}")
        for u in range(4):
            a(f"s_lshl2_add_u32 s{t+4}, s{t+2}, {u}\ns_mul_i32 s{t+5}, s{t+4}, 205\ns_lshr_b32 s{t+5}, s{t+5}, 10\ns_mul_i32 s{t+7}, s{t+5}, 5\ns_sub_u32 s{t+4}, s{t+4}, s{t+7}")
            a(f"s_mul_i32 s{t+5}, s{t+5}, 102400\ns_mul_i32 s{t+4}, s{t+4}, s{t+6}\ns_add_u32 s{t+5}, s{t+5}, s{t+4}\ns_add_u32 s{d2+u}, s{t+5}, s{t+3}")
        sRb64 = t + 11
        a(f"s_lshl1_add_u32 s{sRb64}, s{sRB}, s{sSH}")
        a(f"s_mul_i32 s{t}, s{sRb64}, 48\ns_mul_i32 s{t+1}, s{sGRP}, 6\ns_add_u32 s{t}, s{t}, s{t+1}\ns_add_u32 s{t}, s{t}, s{sNH}\ns_lshl_b32 s{t}, s{t}, 12")
        a(f"s_add_u32 s{sAct}, s{t}, {WS_ACT}\ns_add_u32 s{sAct+1}, s{t}, {WS_ACT + 8192}\ns_add_u32 s{sAct+2}, s{t}, {WS_ACT + 16384}")
        a(f"s_mul_i32 s{t}, s{sRb64}, 40\ns_lshl2_add_u32 s{t}, s{sHALF}, s{t}\ns_lshl1_add_u32 s{t}, s{sCBL}, s{t}\ns_add_u32 s{t}, s{t}, s{sNH}\ns_add_u32 s{t}, s{t}, 24\ns_lshl_b32 s{t}, s{t}, 11\ns_add_u32 s{sPq}, s{t}, {WS_PQ}")
        a(f"s_lshl3_add_u32 s{sF1}, s{sRb64}, s{sGRP}\ns_lshl_b32 s{sF1}, s{sF1}, 7")
        a(f"s_lshl1_add_u32 s{t}, s{sGRP}, s{sNH}\ns_cmp_eq_u32 s{t}, 5\ns_cselect_b32 s{sGs}, 1, 0")
        a(f"s_lshl_b32 s{sF2}, s{sRb64}, 7\ns_add_u32 s{sF2}, s{sF2}, {CNT_PQ}\ns_cmp_lt_u32 s{sCBL}, 6\ns_cselect_b32 s{t}, 1, s{sGs}\ns_cmp_eq_u32 s{t}, 1\ns_cselect_b32 s{sF2}, s{sF2}, {BIG}")
        a(f"s_cmp_ge_u32 s{sCBL}, 6\ns_cselect_b64 vcc, -1, 0")
        def reads(i):
            b = i & 1; so = (i % 3) * WSLOT
            xs = XR + ((i >> 1) % 3) * 16384
            r = [f"ds_read_b128 v[{XB+16*b+4*s}:{XB+16*b+4*s+3}], v{vX1 if i & 1 else vX0} offset:{xs + 2048*s}" for s in range(4)]
            for u in range(6):
                d = WB + 28*b + 4*u
                r.append(f"ds_read_b64_tr_b16 v[{d}:{d+1}], v{vH0 + (u & 1)} offset:{so + 4096*(u >> 1)}")
                r.append(f"ds_read_b64_tr_b16 v[{d+2}:{d+3}], v{vH0 + (u & 1)} offset:{so + 4096*(u >> 1) + 2048}")
            d = WB + 28*b + 24
            if GBR:
                l1, l2 = a.newlabel("L_g"), a.newlabel("L_gj")
                r.append(f"s_cbranch_vccnz {l1}\nds_read_b64_tr_b16 v[{d}:{d+1}], v{vQ} offset:{so}\nds_read_b64_tr_b16 v[{d+2}:{d+3}], v{vQ} offset:{so + 1024}\ns_branch {l2}\n"
                         f"{l1}:\nds_read_b128 v[{d}:{d+3}], v{vGt} offset:{64*i}\n{l2}:")
            else:
                r += [f"ds_read_b64_tr_b16 v[{d}:{d+1}], v{vQ} offset:{so}", f"ds_read_b64_tr_b16 v[{d+2}:{d+3}], v{vQ} offset:{so + 1024}",
                      f"s_mov_b64 exec, vcc\nds_read_b128 v[{d}:{d+3}], v{vGt} offset:{64*i}\ns_mov_b64 exec, -1"]
            return r
        def mfmas(i):
            b = i & 1
            r = []
            for u in (range(7) if i < 19 else (6, 0, 1, 2, 3, 4, 5)):
                for s in range(4):
                    d = ACC + 16*u + 4*s
                    c = f"v[{d}:{d+3}]" if i > 0 else ("0" if u == 6 else f"v[{BI+4*u}:{BI+4*u+3}]")
                    r.append(f"v_mfma_f32_16x16x32_bf16 v[{d}:{d+3}], v[{WB+28*b+4*u}:{WB+28*b+4*u+3}], v[{XB+16*b+4*s}:{XB+16*b+4*s+3}], {c}")
            return r
        unpack = [f"s_waitcnt vmcnt({(3 if TOUCH == 2 else 0) + (4 if RD < 0 else 0) + {0: 0, 1: 8, 2: 3}[PF]})"]
        for u in range(6):
            p = BI + 4*u
            unpack += [f"v_lshlrev_b32 v{p}, 16, v{p+2}", f"v_and_b32 v{p+1}, 0xffff0000, v{p+2}", f"v_lshlrev_b32 v{p+2}, 16, v{p+3}", f"v_and_b32 v{p+3}, 0xffff0000, v{p+3}"]
        RP = BI
        rp_reads = []
        for u in range(4):
            rp_reads += [f"ds_read_b64_tr_b16 v[{RP+4*u}:{RP+4*u+1}], v{vRr} offset:{32*u}", f"ds_read_b64_tr_b16 v[{RP+4*u+2}:{RP+4*u+3}], v{vRr} offset:{32*u + 2048}"]
        rp_st = [f"buffer_store_dwordx4 v[{RP+4*u}:{RP+4*u+3}], v{vL}, {WSR}, s{dsts[u]} offen sc1" for u in range(4)]
        z = [f"s_lshl_b32 s{t}, s{sPIDX}, 9", f"s_mul_i32 s{t+1}, s{sWAVE}, {WS_KVP}", f"s_add_u32 s{t}, s{t}, s{t+1}", f"s_cmp_lt_u32 s{sWAVE}, 2", f"s_cselect_b32 s{t}, s{t}, {BIG}"] + \
            [f"v_mov_b32 v{RP+16+k}, 0" for k in range(4)] + \
            [f"s_mov_b32 exec_hi, 0\nbuffer_store_dwordx4 v[{RP+16}:{RP+19}], v{vL}, {WSR}, s{t} offen sc1\ns_mov_b32 exec_hi, -1"]
        k1, k2, k3, k4 = [a.newlabel("L_r2") for _ in range(4)]
        dma1 = [f"s_lshl_b32 s{t+3}, s{sWAVE}, 12"]
        for j in range(4):
            dma1.append(f"s_add_u32 m0, s{t+3}, {SCR + 1024*j}\ns_nop 0\nbuffer_load_dwordx4 v{vRd}, s[{SRD_W}:{SRD_W+3}], s{sSrc1} offen lds\ns_add_u32 s{sSrc1}, s{sSrc1}, 10240")
        rp_reads2 = [l.replace("offset:", "offset:8192+") for l in rp_reads]
        dma2 = f"s_cmp_eq_u32 s{sK2}, 0\ns_cbranch_scc1 {k1}\n"
        for j in range(4):
            dma2 += f"s_add_u32 m0, s{t+3}, {SCR + 8192 + 1024*j}\ns_nop 0\nbuffer_load_dwordx4 v{vRd}, s[{SRD_M}:{SRD_M+3}], s{sSrc2} offen lds\n"
            if j < 3: dma2 += f"s_add_u32 s{sSrc2}, s{sSrc2}, " + (f"s{sInc2}" if j == 1 else "10240") + "\n"
        dma2 += k1 + ":"
        st2 = f"s_cmp_eq_u32 s{sK2}, 0\ns_cbranch_scc1 {k2}\ns_cmp_eq_u32 s{sK2}, 2\ns_cbranch_scc1 {k3}\n"
        st2 += "".join(f"buffer_store_dwordx4 v[{RP+4*u}:{RP+4*u+3}], v{vL}, {WSR}, s{d2+u} offen sc1\n" for u in range(4))
        st2 += f"s_branch {k2}\n{k3}:\nv_lshrrev_b32 v{vT}, 1, v{vL}\n"
        for u in range(4):
            st2 += f"buffer_store_dwordx2 v[{RP+4*u}:{RP+4*u+1}], v{vT}, {WSR}, s{d2+u} offen sc1\ns_add_u32 s{d2+u}, s{d2+u}, 12800\n"
            st2 += f"buffer_store_dwordx2 v[{RP+4*u+2}:{RP+4*u+3}], v{vT}, {WSR}, s{d2+u} offen sc1\n"
        st2 += k2 + ":"
        sk, sk2 = a.newlabel("L_s1a"), a.newlabel("L_s1b")
        arr = [f"s_cmp_lg_u32 s{sWAVE}, 0", f"s_cbranch_scc1 {sk}",
               f"s_mov_b32 s{SRD_D}, s{pDBG}", f"s_mov_b32 s{SRD_D+1}, s{pDBG+1}", f"s_mov_b32 s{SRD_D+2}, 256", f"s_mov_b32 s{SRD_D+3}, 0x20000",
               f"v_mov_b32 v{vT}, 1", f"s_mov_b64 exec, 1\nbuffer_atomic_add v{vT}, v{vL}, s[{SRD_D}:{SRD_D+3}], 0 offen sc0 sc1\ns_mov_b64 exec, -1", sk + ":"]
        arr2 = [f"s_cmp_lg_u32 s{sWAVE}, 0", f"s_cbranch_scc1 {sk2}", "s_waitcnt vmcnt(0)", f"v_readfirstlane_b32 s{t}, v{vT}", f"v_mov_b32 v{vT+1}, 1",
                f"s_cmp_lg_u32 s{t}, 127", f"s_cbranch_scc1 {sk2}",
                f"s_mov_b32 s{SRD_D}, s{pDBG}", f"s_mov_b32 s{SRD_D+1}, s{pDBG+1}", f"s_mov_b32 s{SRD_D+2}, 256", f"s_mov_b32 s{SRD_D+3}, 0x20000",
                f"s_mov_b64 exec, 1\nbuffer_store_dword v{vT+1}, v{vL}, s[{SRD_D}:{SRD_D+3}], 0 offen offset:128 sc1\ns_mov_b64 exec, -1", sk2 + ":"]
        if RD < 0:
            for l in dma1 + [dma2]: a(l)
        if PF: self.prefetch(vL, 240, S=SRD_D)
        hi, lo = (["s_setprio 3"], ["s_setprio 0"]) if STPRIO else ([], [])
        extra = {0: ([], unpack, []), RS: (["s_waitcnt vmcnt(0)"], rp_reads, []), RS+1: (hi, rp_st + rp_reads2, []),
                 RS+2: ([], [st2] + z, lo), S1AT-1: ([], [], ["s_waitcnt vmcnt(0)"]), S1AT: (arr, [], []), S1AT+2: (arr2, [], [])}
        if LRP:
            a(f"s_lshl_b32 s{t}, s{sWAVE}, 6\ns_add_u32 s{t}, s{t}, {MBOX}\nv_mov_b32 v8, s{t}")
            for u in range(4): a(f"v_mov_b32 v{12+u}, s{dsts[u]}\nv_mov_b32 v{16+u}, s{d2+u}")
            a(f"v_mov_b32 v20, s{sK2}\nds_write_b128 v8, v[12:15]\nds_write_b128 v8, v[16:19] offset:16\nds_write_b32 v8, v20 offset:32\ns_waitcnt lgkmcnt(0)")
            extra = {0: extra[0], 2*LRP - 1: ([], [], ["s_waitcnt vmcnt(0)"])}
        if SPREAD:
            R2 = [216, 220, 240, 244]
            rd2 = []
            for u in range(4):
                rd2 += [f"ds_read_b64_tr_b16 v[{R2[u]}:{R2[u]+1}], v{vRr} offset:{8192 + 32*u}", f"ds_read_b64_tr_b16 v[{R2[u]+2}:{R2[u]+3}], v{vRr} offset:{8192 + 32*u + 2048}"]
            zz = [l.replace(f"v{RP+16}", "v248").replace(f"v{RP+17}", "v249").replace(f"v{RP+18}", "v250").replace(f"v{RP+19}", "v251").replace(f"v[{RP+16}:{RP+19}]", "v[248:251]") for l in z]
            pre2 = [f"v_lshrrev_b32 v{vT+1}, 1, v{vL}"]
            def st2u(u):
                k5, k6 = a.newlabel("L_r2"), a.newlabel("L_r2")
                return (f"s_cmp_eq_u32 s{sK2}, 1\ns_cbranch_scc0 {k5}\nbuffer_store_dwordx4 v[{R2[u]}:{R2[u]+3}], v{vL}, {WSR}, s{d2+u} offen sc1\n{k5}:\n"
                        f"s_cmp_eq_u32 s{sK2}, 2\ns_cbranch_scc0 {k6}\nbuffer_store_dwordx2 v[{R2[u]}:{R2[u]+1}], v{vT+1}, {WSR}, s{d2+u} offen sc1\ns_add_u32 s{d2+u}, s{d2+u}, 12800\n"
                        f"buffer_store_dwordx2 v[{R2[u]+2}:{R2[u]+3}], v{vT+1}, {WSR}, s{d2+u} offen sc1\n{k6}:")
            extra = {0: extra[0], RS: (["s_waitcnt vmcnt(0)"], rp_reads + rd2 + pre2 + zz, []), S1AT: extra[S1AT], S1AT+2: extra[S1AT+2]}
            if SPREAD == 1:
                for u in range(4): extra[RS+1+u] = ([], [rp_st[u], st2u(u)], [])
            else:
                for u in range(4):
                    extra[RS+1+2*u] = ([], [rp_st[u]], []); extra[RS+2+2*u] = ([], [st2u(u)], [])
            e_ = extra.get(S1AT-1, ([], [], []))
            extra[S1AT-1] = (e_[0], e_[1], ["s_waitcnt vmcnt(0)"])
        if RD > 0: extra[RD] = ([], dma1 + [dma2], [])
        if RD == 0: extra[0] = ([], unpack + dma1 + [dma2], [])
        self.main_loop(reads, mfmas, extra, NRE, [vH0, vH1, vQ])
        if EPRIO: a(f"s_setprio {EPRIO}")
        TM = XB
        a("s_nop 3")
        labG, labE = a.newlabel("L_epG"), a.newlabel("L_epE")
        a(f"s_cbranch_vccnz {labG}")
        self.consts("phi")
        for sp in range(2):
            e = ACC + 96 + 8*sp
            for l in self.phi_quad(e, e, TM): a(l)
            for l in self.phi_quad(e + 4, e + 2, TM + 4): a(l)
            a(f"buffer_store_dwordx4 v[{e}:{e+3}], v{vL}, {WSR}, s{sPq} offen offset:{1024*sp} sc1")
        a(f"s_branch {labE}")
        a.label(labG)
        a(f"s_cmp_eq_u32 s{sGs}, 0\ns_cbranch_scc1 {labE}")
        G = ACC + 96
        a(f"v_cmp_le_u32 vcc, 16, v{vLane}\nv_cmp_le_u32 s[{t+2}:{t+3}], 32, v{vLane}\nv_cmp_le_u32 s[{t+4}:{t+5}], 48, v{vLane}\ns_nop 0")
        a(f"v_cndmask_b32 v{G}, v{G}, v{G+4}, vcc\nv_cndmask_b32 v{G}, v{G}, v{G+8}, s[{t+2}:{t+3}]\nv_cndmask_b32 v{G}, v{G}, v{G+12}, s[{t+4}:{t+5}]")
        a(f"s_mov_b32 s{t}, 0x42700000\nv_min_f32 v{G}, s{t}, v{G}\nv_max_f32 v{G}, -s{t}, v{G}\nv_mul_f32 v{G}, s{cL2E}, v{G}\nv_exp_f32 v{G}, v{G}")
        a(f"s_lshl_b32 s{t}, s{sRb64}, 8\ns_add_u32 s{t}, s{t}, {WS_G}\nv_add_f32 v{G+2}, 1.0, v{G}\nv_rcp_f32 v{G+2}, v{G+2}\nv_lshlrev_b32 v{G+1}, 2, v{vLane}\ns_add_u32 s{t+1}, s{t}, 8192")
        a(f"buffer_store_dword v{G}, v{G+1}, {WSR}, s{t} offen sc1\nbuffer_store_dword v{G+2}, v{G+1}, {WSR}, s{t+1} offen sc1")
        a.label(labE)
        self.consts("mish")
        for L in range(3):
            for s in range(4):
                e, o = ACC + 32*L + 4*s, ACC + 32*L + 16 + 4*s
                for l in self.mish_quad(e, e, TM + 8*(s & 1)): a(l)
                for l in self.mish_quad(o, e + 2, TM + 4 + 8*(s & 1)): a(l)
                if DIAG != 1: a(f"buffer_store_dwordx4 v[{e}:{e+3}], v{vL}, {WSR}, s{sAct+L} offen offset:{1024*s} {'' if DIAG == 2 else 'sc1'}")
            if L == 0 and EARLYQ:
                a("s_waitcnt vmcnt(4)")
                self.signal(sF2, vT)
            if LFLAG and L >= 1:
                a(f"s_waitcnt vmcnt({4 if L == 1 else 5})")
                self.signal(sF1, vT, 4*(L - 1))
        a(f"v_mov_b32 v0, v{vLane}")
        self.stamp(3)
        self.finish1([sF1] if EARLYQ else [sF1, sF2], strict=bool(STRICTP), late8=True)

    def compute_KV(self):
        a = self.a
        t = T0
        ACC, XB, WB = 0, 112, 128
        vX0, vX1, vK, vQ0, vL = 240, 241, 242, 243, 247
        vLane = 253
        sPq, sF2, sRec = 72, 73, 74
        a(f"v_mov_b32 v{vLane}, v0")
        a(f"v_and_b32 v1, 15, v0\nv_lshrrev_b32 v2, 4, v0\nv_lshrrev_b32 v3, 1, v1\nv_xor_b32 v3, v3, v2\nv_lshlrev_b32 v3, 4, v3\nv_lshl_add_u32 v3, v1, 7, v3")
        a(f"s_lshl_b32 s{t}, s{sWAVE}, 12\nv_add_u32 v{vX0}, s{t}, v3\nv_xor_b32 v{vX1}, 64, v{vX0}")
        a(f"v_lshrrev_b32 v3, 2, v0\nv_and_b32 v4, 3, v0\nv_lshlrev_b32 v4, 3, v4")
        a(f"v_mul_u32_u24 v5, 160, v3\nv_add_u32 v5, v5, v4\nv_add_u32 v{vK}, {WR}, v5")
        a(f"v_lshl_add_u32 v5, v3, 7, v4\nv_bfe_u32 v6, v0, 3, 2\nv_lshl_add_u32 v5, v6, 5, v5\nv_add_u32 v{vQ0}, {WR+10240}, v5")
        for u in range(1, 4): a(f"v_xor_b32 v{vQ0+u}, {32*u}, v{vQ0}")
        a(f"v_lshlrev_b32 v{vL}, 4, v0")
        a(f"s_lshr_b32 s{t}, s{sWAVE}, 1\ns_lshl1_add_u32 s{t+1}, s{sRB}, s{t}")
        a(f"s_lshl_b32 s{sF2}, s{t+1}, 7\ns_add_u32 s{sF2}, s{sF2}, {CNT_PQ}")
        a(f"s_mul_i32 s{t+1}, s{t+1}, 40\ns_lshl2_add_u32 s{t+1}, s{sGRP}, s{t+1}\ns_and_b32 s{t}, s{sWAVE}, 1\ns_lshl1_add_u32 s{t+1}, s{t+1}, s{t}\ns_lshl_b32 s{t+1}, s{t+1}, 10\ns_add_u32 s{sPq}, s{t+1}, {WS_PQ}")
        a(f"s_lshl2_add_u32 s{t}, s{sGRP}, s{sWAVE}\ns_lshl_b32 s{sF1}, s{t}, 7\ns_add_u32 s{sF1}, s{sF1}, {CNT_KV}")
        a(f"s_mul_i32 s{t}, s{t}, 1792\ns_add_u32 s{sRec}, s{t}, {WS_KVP}")
        a(f"s_mov_b32 s{cL2E}, 0x3fb8aa3b\ns_mov_b32 s{cL2E+1}, 0x3fb8aa3b")
        self.consts("phi")
        a("s_waitcnt lgkmcnt(0)")
        self.stamp(0)
        self.srd(SRD_WS, pWS, WS_SIZE)
        if TOUCH: self.touch(vLane, 248)
        if PF: self.prefetch(vL, 248)
        def reads(i):
            b = i & 1; so = (i % 3) * WSLOT
            xs = XR + ((i >> 1) % 3) * 16384
            r = [f"ds_read_b128 v[{XB+8*b+4*s}:{XB+8*b+4*s+3}], v{vX1 if i & 1 else vX0} offset:{xs + 2048*s}" for s in range(2)]
            for u in range(14):
                d = WB + 56*b + 4*u
                if u < 10: base, off, d2 = vK, 5120*(u // 5) + 32*(u % 5), 2560
                else: base, off, d2 = vQ0 + u - 10, 0, 2048
                r.append(f"ds_read_b64_tr_b16 v[{d}:{d+1}], v{base} offset:{so + off}")
                r.append(f"ds_read_b64_tr_b16 v[{d+2}:{d+3}], v{base} offset:{so + off + d2}")
            return r
        def mfmas(i):
            b = i & 1
            r = []
            order = list(range(14)) if i < 19 else [5, 6, 7, 8, 9, 0, 1, 2, 3, 4, 10, 11, 12, 13]
            for u in order:
                for s in range(2):
                    d = ACC + 8*u + 4*s
                    c = f"v[{d}:{d+3}]" if i > 0 else "0"
                    w, x = f"v[{WB+56*b+4*u}:{WB+56*b+4*u+3}]", f"v[{XB+8*b+4*s}:{XB+8*b+4*s+3}]"
                    r.append(f"v_mfma_f32_16x16x32_bf16 v[{d}:{d+3}], {x if u < 10 else w}, {w if u < 10 else x}, {c}")
            return r
        self.main_loop(reads, mfmas, {}, 24, [vK, vQ0, vQ0+1, vQ0+2, vQ0+3])
        TM = XB
        vEx = vX0
        a(f"s_mul_i32 s{t}, s{sWAVE}, 10240\nv_add_u32 v{vEx}, s{t}, v{vL}")
        for u in range(5, 10):
            e = ACC + 8*u
            a(f"v_cvt_pk_bf16_f32 v{e}, v{e}, v{e+1}\nv_cvt_pk_bf16_f32 v{e+1}, v{e+2}, v{e+3}\nv_cvt_pk_bf16_f32 v{e+2}, v{e+4}, v{e+5}\nv_cvt_pk_bf16_f32 v{e+3}, v{e+6}, v{e+7}")
            a(f"ds_write_b128 v{vEx}, v[{e}:{e+3}] offset:{XR + 1024*u}")
        for u in range(5):
            e = ACC + 8*u
            for l in self.phi_quad(e, e, TM): a(l)
            for l in self.phi_quad(e + 4, e + 2, TM + 4): a(l)
            a(f"ds_write_b128 v{vEx}, v[{e}:{e+3}] offset:{XR + 1024*u}")
        a(f"s_lshl_b32 s{t}, s{sWAVE}, 10\nv_add_u32 v{vEx}, s{t}, v{vL}")
        ONE = WB + 64
        for k in range(4): a(f"v_mov_b32 v{ONE+k}, 0x3f803f80")
        if K1LDS:
            lp, dn = a.newlabel("L_k1"), a.newlabel("L_k1d")
            a(f"v_mov_b32 v{vK}, {K1C}\nv_mov_b32 v{vQ0}, 1\ns_mov_b32 s{t}, 0\ns_waitcnt lgkmcnt(0)\ns_mov_b64 exec, 1\nds_add_u32 v{vK}, v{vQ0}\ns_mov_b64 exec, -1")
            a.label(lp)
            a(f"ds_read_b32 v{vQ0}, v{vK}\ns_add_u32 s{t}, s{t}, 1\ns_waitcnt lgkmcnt(0)\nv_readfirstlane_b32 s{t+1}, v{vQ0}\ns_cmp_ge_u32 s{t}, {SPIN}\ns_cbranch_scc1 {dn}\ns_cmp_lt_u32 s{t+1}, 4\ns_cbranch_scc1 {lp}")
            a.label(dn)
        else:
            a("s_waitcnt lgkmcnt(0)\ns_barrier")
        FR = WB
        for g in range(4):
            for j, off in enumerate((0, 1024, 5120, 6144)):
                a(f"ds_read_b128 v[{FR+16*g+4*j}:{FR+16*g+4*j+3}], v{vEx} offset:{XR + 10240*g + off}")
        AD = WB + 72
        dc, BG, ev, R = AD, AD + 2, AD + 3, AD + 8
        ad = [f"v_lshrrev_b32 v{dc}, 4, v{vLane}", f"v_and_b32 v{ev}, 15, v{vLane}", f"v_mov_b32 v{BG}, 0x10000", f"v_cmp_eq_u32 vcc, 0, v{ev}",
              f"v_mov_b32 v{R}, 320", f"v_subrev_u32 v{dc}, s{sWAVE}, v{dc}", f"v_cndmask_b32 v{ev+2}, v{BG}, v{R}, vcc", f"v_add_u32 v{dc+1}, 4, v{dc}",
              f"s_lshl_b32 s{t}, s{sWAVE}, 2", f"v_subrev_u32 v{ev}, s{t}, v{ev}", f"v_add_u32 v{ev+1}, 16, v{ev}",
              f"s_lshl_b32 s{t+4}, s{sWAVE}, 11", f"s_add_u32 s{t+4}, s{t+4}, {STG}"]
        for k in range(2):
            ad += [f"v_cmp_gt_u32 vcc, 5, v{dc+k}", f"v_cmp_gt_u32 s[{t+2}:{t+3}], 20, v{ev+k}", f"v_mul_u32_u24 v{dc+k}, 336, v{dc+k}", f"v_lshlrev_b32 v{ev+k}, 4, v{ev+k}",
                   f"v_cndmask_b32 v{dc+k}, v{BG}, v{dc+k}, vcc", f"v_cndmask_b32 v{ev+k}, v{BG}, v{ev+k}, s[{t+2}:{t+3}]"]
        for k in range(2):
            ad += [f"v_add_u32 v{R+3*k+b}, v{dc+k}, v{ev+b}" for b in range(3)]
            ad += [f"v_min_u32 v{R+3*k+b}, 1680, v{R+3*k+b}" for b in range(3)]
            ad += [f"v_add_u32 v{R+3*k+b}, s{t+4}, v{R+3*k+b}" for b in range(3)]
        ad += [f"v_lshlrev_b32 v{dc}, 2, v{vLane}", f"v_add_u32 v{vEx}, s{t+4}, v{dc}"]
        for l in ad[:20]: a(l)
        D = ACC
        mm = []
        for g in range(4):
            for k in range(2):
                for b in range(3):
                    d = D + 12*k + 4*b
                    B = f"v[{FR+16*g+8+4*b}:{FR+16*g+8+4*b+3}]" if b < 2 else f"v[{ONE}:{ONE+3}]"
                    mm.append(f"v_mfma_f32_16x16x32_bf16 v[{d}:{d+3}], v[{FR+16*g+4*k}:{FR+16*g+4*k+3}], {B}, {'0' if g == 0 else f'v[{d}:{d+3}]'}")
        a("s_waitcnt lgkmcnt(0)")
        for l in interleave(mm, ad[20:], 0, 16): a(l)
        def qmath(u):
            e = ACC + 8*u
            return self.phi_quad(e, e, TM) + self.phi_quad(e + 4, e + 2, TM + 4)
        q10 = qmath(10)
        for l in q10[:8]: a(l)
        for j in range(6): a(f"ds_write_b128 v{R+j}, v[{D+4*j}:{D+4*j+3}]")
        for l in q10[8:20]: a(l)
        a("s_waitcnt lgkmcnt(0)")
        for j in range(7): a(f"ds_read_b32 v{j}, v{vEx} offset:{256*j}")
        for l in q10[20:]: a(l)
        a("s_waitcnt lgkmcnt(0)")
        for j in range(7):
            if j == 6: a("s_mov_b32 exec_hi, 15")
            a(f"buffer_atomic_add_f32 v{j}, v{dc}, {WSR}, s{sRec} offen offset:{256*j} sc1")
        a("s_mov_b32 exec_hi, -1")
        a(f"s_add_u32 s{t}, s{sPq}, 4096")
        def qst(u):
            e = ACC + 8*(10 + u)
            a(f"buffer_store_dwordx4 v[{e}:{e+3}], v{vL}, {WSR}, s{sPq if u < 2 else t} offen offset:{2048*(u & 1)} sc1")
        qst(0)
        for u in (1, 2, 3):
            for l in qmath(10 + u): a(l)
            qst(u)
        a(f"v_mov_b32 v0, v{vLane}")
        self.stamp(3)
        self.finish1([sF1, sF2], strict=True)

    def setup2(self):
        a = self.a
        t = T0
        if MAP2 == "x2":
            a(f"s_bfe_u32 s{t+2}, s{sWG}, 0x20001\ns_bfe_u32 s{t+3}, s{sWG}, 0x30003\ns_lshl3_add_u32 s{sR64}, s{t+2}, s{t+3}")
            a(f"s_and_b32 s{t+2}, s{sWG}, 1\ns_lshr_b32 s{t+3}, s{sWG}, 6\ns_lshl2_add_u32 s{sC}, s{t+2}, s{t+3}")
        else:
            a(f"s_and_b32 s{t+2}, s{sWG}, 7\ns_bfe_u32 s{t+3}, s{sWG}, 0x20003\ns_lshl2_add_u32 s{sR64}, s{t+2}, s{t+3}\ns_lshr_b32 s{sC}, s{sWG}, 5")
        if FAKE == 1: a(f"s_and_b32 s{sR64}, s{sWG}, 7\ns_lshl_b32 s{sR64}, s{sR64}, 2\ns_mov_b32 s{sC}, 0")
        if FAKE == 2: a(f"s_mov_b32 s{sC}, 0")
        if FAKE == 3: a(f"s_and_b32 s{sR64}, s{sWG}, 7\ns_lshl_b32 s{sR64}, s{sR64}, 2")
        a(f"v_lshlrev_b32 v{vL16}, 4, v0\nv_add_u32 v{vL16b}, 4096, v{vL16}")
        if ROT2 == "none":
            a(f"s_mov_b32 s{t}, 0")
        elif ROT2 == "xor":
            a(f"s_lshr_b32 s{t}, s{sWG}, 3\ns_lshr_b32 s{t+1}, s{sWG}, 6\ns_xor_b32 s{t}, s{t}, s{t+1}\ns_and_b32 s{t}, s{t}, 1")
        elif ROT2 == "two":
            a(f"s_lshr_b32 s{t}, s{sWG}, 3\ns_lshr_b32 s{t+1}, s{sWG}, {6 if MAP2 == 'x2' else 5}\ns_xor_b32 s{t}, s{t}, s{t+1}\ns_and_b32 s{t}, s{t}, 1\ns_mul_i32 s{t}, s{t}, 3")
        elif MAP2 == "x2":
            a(f"s_and_b32 s{t}, s{sC}, 3\ns_mul_i32 s{t}, s{t}, 3\ns_lshr_b32 s{t}, s{t}, 1")
        else:
            a(f"s_mul_i32 s{t}, s{sC}, 3\ns_lshr_b32 s{t}, s{t}, 2")
        a(f"s_mul_i32 s{t+1}, s{sWAVE}, 6")
        a(f"s_mul_i32 s{t+2}, s{sC}, {48*5120}\ns_add_u32 s{t+2}, s{t+2}, {WS_W2R}")
        a(f"s_mul_i32 s{t+3}, s{sR64}, {48*4096}\ns_add_u32 s{t+3}, s{t+3}, {WS_ACT}")
        for i in range(6):
            a(f"s_add_u32 s{t+4}, s{t+1}, s{t}\ns_mul_i32 s{sB0+i}, s{t+4}, 5120\ns_add_u32 s{sB0+i}, s{sB0+i}, s{t+2}")
            a(f"s_lshl_b32 s{sA0+i}, s{t+4}, 12\ns_add_u32 s{sA0+i}, s{sA0+i}, s{t+3}")
            if i < 5 and ROT2 == "xor": a(f"s_xor_b32 s{t}, s{t}, {i ^ (i + 1)}")
            elif i < 5: a(f"s_add_u32 s{t}, s{t}, 1\ns_cmp_eq_u32 s{t}, 6\ns_cselect_b32 s{t}, 0, s{t}")
        a(f"s_lshl3_add_u32 s{sFa}, s{sR64}, s{sWAVE}\ns_lshl_b32 s{sFa}, s{sFa}, 7\ns_lshl_b32 s{sFq}, s{sR64}, 7\ns_add_u32 s{sFq}, s{sFq}, {CNT_PQ}")
        a(f"s_mul_i32 s{sPQb}, s{sR64}, 40\ns_mul_i32 s{t}, s{sWAVE}, 5\ns_add_u32 s{sPQb}, s{sPQb}, s{t}\ns_lshl_b32 s{sPQb}, s{sPQb}, 11\ns_add_u32 s{sPQb}, s{sPQb}, {WS_PQ}")
        a(f"s_lshl3_add_u32 s{sMb}, s{sC}, s{sWAVE}\ns_mul_i32 s{sMb}, s{sMb}, 12800\ns_add_u32 s{sMb}, s{sMb}, {WS_WOR}")
        a(f"s_mul_i32 s{sKv}, s{sWAVE}, 7168\ns_add_u32 s{sKv}, s{sKv}, {WS_KVP}\ns_lshl_b32 s{sFk}, s{sWAVE}, 9\ns_add_u32 s{sFk}, s{sFk}, {CNT_KV}")

    def preload_b(self, n0, n1, th=0):
        for n in range(n0, n1):
            if th and n < NTH: self.a(f"s_waitcnt vmcnt({th - 1})")
            i, jn = divmod(n, 5)
            d = BS + 20*i + 4*jn
            self.a(f"buffer_load_dwordx4 v[{d}:{d+3}], v{vL16 if jn < 4 else vL16b}, {WSR}, s{sB0+i} offen offset:{1024*jn if jn < 4 else 0} sc1")

    def stage_b(self):
        a = self.a
        t = T0
        a(f"s_mul_i32 s{t}, s{sT}, 20480\ns_add_u32 s{t}, s{t}, {BL}")
        for i in range(2, NB):
            a(f"s_sub_u32 s{t+1}, s{sB0+i}, 122880")
            for jn in range(5):
                if jn in (0, 4):
                    a(f"s_add_u32 m0, s{t}, {5120*(i-2) + 1024*jn}")
                    a(f"s_add_u32 s{t+1}, s{t+1}, 4096" if jn else "s_nop 0")
                if TH and NB*5 + 5*(i - 2) + jn < NTH: a(f"s_waitcnt vmcnt({TH - 1})")
                a(f"buffer_load_dwordx4 v{vL16}, {WSR}, s{t+1} offen offset:{1024*(jn % 4)} sc1 lds")
        a("s_waitcnt vmcnt(0)")

    def gemm2(self):
        a = self.a
        t = T0
        seq = []
        LN = 255
        def ldl(dst, n, v, so, off, tag):
            seq.append(tag)
            return [f"buffer_load_dword{ {1: '', 2: 'x2', 4: 'x4'}[n] } {vr(dst, n)}, v{v}, {WSR}, s{so} offen offset:{off} sc1"]
        def emit(L):
            for l in L: a(l)
        def wait(tag):
            last = max(n for n, x in enumerate(seq) if x == tag)
            a(f"s_waitcnt vmcnt({len(seq) - 1 - last})")
        def act(i):
            return sum((ldl(AB + 16*(i % 3) + 4*st, 4, vL16, sA0 + i, 1024*st, f"act{i}") for st in range(4)), [])
        def check(soff, target, sleep=None):
            ok = a.newlabel("L_ok")
            a(f"v_cmp_le_u32 vcc, {target}, v{vP+1}\ns_nop 1\ns_cmp_eq_u64 vcc, -1\ns_cbranch_scc1 {ok}")
            self.poll(soff, target, vP, vP + 1, sleep=sleep)
            a.label(ok)
        def dma(so, n, lds, tag):
            r = []
            for k in range(n):
                pre = ""
                if k % 4 == 0:
                    pre = f"s_add_u32 m0, s{sLB}, {lds + 1024*k}\n" + (f"s_add_u32 s{so}, s{so}, 4096\n" if k else "s_nop 0\n")
                r.append(pre + f"buffer_load_dwordx4 v{vL16}, {WSR}, s{so} offen offset:{1024*(k % 4)} sc1 lds"); seq.append(tag)
            return r
        def pq(base, sp):
            return sum((ldl(base + 20*sp + 4*tt, 4, vL16, (sPQb, t, t + 1)[tt >> 1], 2048*(tt & 1) + 1024*sp, f"pq{sp}") for tt in range(5)), [])
        def gld(va):
            return sum((ldl(vG + st, 1, va, t + 3, 64*st, "g") for st in range(4)), [])
        def lateb(i=5):
            if i < NB: return []
            r = sum((ldl(BS + 20*i + 4*jn, 4, vL16, sB0 + i, 1024*jn, f"act{i}") for jn in range(4)), [])
            return r + [f"s_add_u32 s{sB0+i}, s{sB0+i}, 4096"] + ldl(BS + 20*i + 16, 4, vL16, sB0 + i, 0, f"act{i}")
        chunks = [(0, 0), (0, 1), (1, 0), (1, 1), (1, 2), (2, 1), (2, 2), (2, 3), (3, 2), (3, 3), (4, 3), (3, 4), (4, 4)] + [("z", tt) for tt in range(5)]
        slot = dict(zip(chunks, [0, 1, 2, 3, 4, 7, 8, 9, 10, 11, 13, 14, 15, 16, 17, 18, 19, 20]))
        X, K0 = 24, 0
        ad = [f"v_and_b32 v{X}, 15, v{LN}", f"v_lshrrev_b32 v{X+1}, 4, v{LN}", f"s_add_u32 s{t+2}, s{sLB}, 13312", f"v_mul_u32_u24 v{X+3}, 336, v{X+1}", f"v_add_u32 v{X+3}, s{t+2}, v{X+3}",
              f"v_add_u32 v{X+18}, s{sLB}, v{vL16}", f"s_add_u32 s{t+2}, s{t+2}, 7056", f"v_mov_b32 v{X+13}, s{t+2}"] + [f"v_subrev_u32 v{X+13+k}, {1344*k}, v{X+13}" for k in range(1, 5)]
        for te in (0, 1, 2, 3, 4, "z"):
            if te == "z":
                ad += [f"v_and_b32 v{X+4}, 3, v{LN}", f"v_mul_u32_u24 v{X+5}, 112, v{X+4}", f"v_add_u32 v{X+6}, 320, v{X+3}", f"v_add_u32 v{X+5}, v{X+5}, v{X+6}"]
            else:
                ad += [f"v_add_u32 v{X+6}, {16*te}, v{X}", f"v_mul_u32_u24 v{X+4}, 3277, v{X+6}", f"v_lshrrev_b32 v{X+4}, 16, v{X+4}",
                       f"v_lshl_add_u32 v{X+6}, v{X+6}, 4, v{X+3}", f"v_mad_i32_i24 v{X+5}, v{X+4}, s{sN208}, v{X+6}"]
            ad += [f"v_mad_i32_i24 v{X+4}, v{X+4}, -5, v{X+1}"]
            mine = [(j, c) for j, c in enumerate(chunks) if c[0] == te]
            ad += [f"v_add_u32 v{X+8+n}, {4*c[1]}, v{X+4}" for n, (j, c) in enumerate(mine)]
            ad += [f"v_cmp_gt_u32 s[{t+4+2*n}:{t+5+2*n}], 5, v{X+8+n}" for n, (j, c) in enumerate(mine)]
            ad += ["s_nop 0"]
            ad += [f"v_cndmask_b32 v{K0+j}, v{X+13+c[1]}, v{X+5}, s[{t+4+2*n}:{t+5+2*n}]" for n, (j, c) in enumerate(mine)]
        mq = [t + 4, t + 6, t + 8]
        consts = [f"s_mov_b32 s{cE}, 0x358637bd", f"s_mov_b32 s{mq[0]}, 0xffff", f"s_mov_b32 s{mq[0]+1}, 0", f"s_mov_b32 s{mq[1]}, -1", f"s_mov_b32 s{mq[1]+1}, 0",
                  f"s_mov_b32 s{mq[2]}, -1", f"s_mov_b32 s{mq[2]+1}, 0xffff"]
        swaps = lambda R: [f"v_swap_b32 v{R+8*p+2+k}, v{R+8*p+4+k}" for p in range(2) for k in range(2)]
        K32 = lambda d, A, B, c: f"v_mfma_f32_16x16x32_bf16 v[{d}:{d+3}], v[{A}:{A+3}], v[{B}:{B+3}], {c}"
        K16 = lambda d, A, B: f"v_mfma_f32_16x16x16_bf16 v[{d}:{d+3}], v[{A}:{A+1}], v[{B}:{B+1}], v[{d}:{d+3}]"
        acc = lambda d: f"v[{d}:{d+3}]"
        def fqf(base):
            def fq(st, tt):
                R = base + 20*(st >> 1)
                return R + 8*(tt >> 1) + 4*(st & 1) + 2*(tt & 1) if tt < 4 else R + 16 + 2*(st & 1)
            return fq
        def gather(KAr, raw, KP, PQb, first):
            for j, c in enumerate(chunks):
                a(f"ds_read_b128 v[{raw(j)}:{raw(j)+3}], v{KAr+j} offset:{1344*c[1]}")
            emit(swaps(PQb) + swaps(PQb + 20))
            for j, c in enumerate(chunks):
                if j in (0, first): a(f"s_waitcnt lgkmcnt({18 - first if j == 0 else 0})")
                d, r = KP + 2*slot[c], raw(j)
                a(f"v_cvt_pk_bf16_f32 v{d}, v{r}, v{r+1}\nv_cvt_pk_bf16_f32 v{d+1}, v{r+2}, v{r+3}")
            for z in (5, 6, 12): a(f"v_mov_b32 v{KP+2*z}, 0\nv_mov_b32 v{KP+2*z+1}, 0")
        def scales(st, DN, SC):
            r = ([] if LATEORD else [f"v_add_f32 v{DN+k}, s{cE}, v{DN+k}" for k in range(4)]) + [f"v_rcp_f32 v{DN+k}, v{DN+k}" for k in range(4)]
            r += [f"v_mul_f32 v{DN+k}, v{vG+st}, v{DN+k}" for k in range(4)]
            return r + [f"v_cndmask_b32 v{SC[k]}, v{DN+k+1}, v{DN+k}, s[{mq[k]}:{mq[k]+1}]" for k in range(3)]
        def vtile(st, tt, o, DN, SC, fq):
            sc = (DN, SC[0], SC[1], SC[2], DN + 3)[tt]
            return [f"v_mul_f32 v{o+k}, v{sc}, v{o+k}" for k in range(4)] + [f"v_cvt_pk_bf16_f32 v{fq(st,tt)}, v{o}, v{o+1}", f"v_cvt_pk_bf16_f32 v{fq(st,tt)+1}, v{o+2}, v{o+3}"]
        def mlp(i, zero, sts=None):
            order = [(jn, st) for jn in range(5) for st in range(4)] if sts is None else [(jn, st) for st in sts for jn in range(5)]
            return [K32(20*st + 4*jn, BS + 20*i + 4*jn, AB + 16*(i % 3) + 4*st, "0" if zero else acc(20*st + 4*jn)) for jn, st in order]
        TA, RA, vRW = 224, 170, vP
        rw = [f"v_and_b32 v{TA}, 15, v{LN}", f"v_mul_u32_u24 v{TA}, 160, v{TA}", f"v_bfe_u32 v{TA+1}, v{LN}, 5, 1", f"v_bfe_u32 v{vRW}, v{LN}, 2, 1", f"v_xor_b32 v{TA+1}, v{TA+1}, v{vRW}",
              f"v_lshl_add_u32 v{TA}, v{TA+1}, 4, v{TA}", f"v_bfe_u32 v{TA+1}, v{LN}, 4, 1", f"v_mul_u32_u24 v{TA+1}, 10240, v{TA+1}", f"v_add3_u32 v{vRW}, v{TA}, v{TA+1}, s{sLB}"]
        wrl = lambda st: [f"ds_write_b128 v{vRW}, v[{20*st+4*jn}:{20*st+4*jn+3}] offset:{2560*st + 32*jn}" for jn in range(5)]
        rd = [f"s_mul_i32 s{t}, s{sWAVE}, 80", f"v_add_u32 v{RA}, s{t}, v{LN}", f"v_add_u32 v{RA+1}, 64, v{RA}",
              f"s_lshl_b32 s{t+2}, s{sR64}, 8", f"s_add_u32 s{t+2}, s{t+2}, {WS_G + 8192}"]
        for k in range(2):
            rd += [f"v_mul_u32_u24 v{RA+2}, 6554, v{RA+k}", f"v_lshrrev_b32 v{RA+2}, 16, v{RA+2}", f"v_mad_i32_i24 v{RA+3}, v{RA+2}, -10, v{RA+k}", f"v_lshlrev_b32 v{TA+2+k}, 2, v{RA+2}",
                   f"buffer_load_dword v{TA+2+k}, v{TA+2+k}, {WSR}, s{t+2} offen sc1",
                   f"v_bfe_u32 v{RA+6}, v{RA+2}, 2, 1", f"v_xor_b32 v{RA+k}, v{RA+k}, v{RA+6}",
                   f"v_mul_u32_u24 v{RA+2}, 1280, v{RA+2}", f"v_lshl_add_u32 v{RA+4+k}, v{RA+3}, 4, v{RA+2}", f"v_lshlrev_b32 v{RA+k}, 4, v{RA+k}"]
        rd += [f"v_add_u32 v{RA+6}, 61440, v{RA}", f"v_add_u32 v{RA+7}, 61440, v{RA+1}", f"v_add_u32 v{RA+8}, 122880, v{RA}", f"v_add_u32 v{RA+9}, 122880, v{RA+1}"]
        rd += [f"s_mov_b32 s{SRD_M}, s{pOUT}", f"s_mov_b32 s{SRD_M+1}, s{pOUT+1}", f"s_mov_b32 s{SRD_M+2}, {2048*640*2}", f"s_mov_b32 s{SRD_M+3}, 0x20000",
               f"s_mul_i32 s{t}, s{sR64}, 81920", f"s_mul_i32 s{t+1}, s{sC}, 160", f"s_add_u32 s{t}, s{t}, s{t+1}"]
        def flagvec(vt, with_act):
            a(f"v_lshlrev_b32 v{vP}, 2, v{LN}\nv_add_u32 v{vP}, s{sFk}, v{vP}\nv_mov_b32 v{vt}, 1\nv_cmp_le_u32 vcc, 4, v{LN}\nv_mov_b32 v{vt+1}, s{sFq}\ns_add_u32 s{t+2}, s{sFa}, 8")
            a(f"v_cndmask_b32 v{vP}, v{vP}, v{vt+1}, vcc")
            if with_act:
                a(f"v_cmp_lt_u32 vcc, 4, v{LN}\nv_mov_b32 v{vt+1}, s{t+2}\ns_nop 0\nv_cndmask_b32 v{vP}, v{vP}, v{vt+1}, vcc\nv_cndmask_b32 v{vt}, v{vt}, 2, vcc")

        a(f"s_setprio 0\nv_lshrrev_b32 v{LN}, 4, v{vL16}")
        a(f"s_xor_b32 s{sLB}, s{sWAVE}, 4\ns_mul_i32 s{sLB}, s{sLB}, 20480\ns_mov_b32 s{sN208}, -208")
        a(f"s_lshl_b32 s{t+3}, s{sR64}, 8\ns_add_u32 s{t+3}, s{t+3}, {WS_G}\ns_add_u32 s{t}, s{sPQb}, 4096\ns_add_u32 s{t+1}, s{sPQb}, 8192")
        if LFLAG: a(f"v_and_b32 v{vP}, 1, v{LN}\nv_lshlrev_b32 v{vP}, 2, v{vP}")
        else: a(f"v_mov_b32 v{vP}, 0")
        if ADPRE: emit(ad)
        a("s_barrier")
        self.stamp(4)
        if WOPOS != "pre": a(f"buffer_load_dword v{vP+1}, v{vP}, {WSR}, s{sFa} offen sc1")
        self.pickup()
        if WOPOS == "pre":
            a("s_waitcnt lgkmcnt(0)")
            emit(dma(sMb, 13, 0, "wo"))
        if not ADPRE: emit(ad)
        a("s_waitcnt lgkmcnt(0)")
        for k in range(5): a(f"ds_write_b128 v{X+18}, v[{K0+4*k}:{K0+4*k+3}] offset:{13312 + 1024*k}")
        if WOPOS == "pre": self.poll(f"s{sFa}", 2, vP, vP + 1)
        else:
            a("s_waitcnt vmcnt(0)")
            if LFLAG:
                sk = a.newlabel("L_sig")
                a(f"s_cmp_ge_u32 s{sWAVE}, 4\ns_cbranch_scc1 {sk}")
                self.stamp(5)
                self.signal(sF1, 46); self.signal(32, 46)
                a.label(sk)
            check(f"s{sFa}", 2)
        self.stamp(6)
        PR = {"a": {-1: 3, 2: 2, 5: 1, 6: 0}, "b": {-1: 3, 1: 2, 3: 1, 6: 0}, "c": {-1: 1, 5: 0}, "d": {-1: 2, 5: 1, 7: 0}, "e": {-1: 3, 3: 2, 6: 1, 8: 0}}.get(PRIO, {})
        prio = lambda k: a(f"s_setprio {PR[k]}") if k in PR else None
        prio(-1)
        emit(act(0))
        a(f"v_lshlrev_b32 v{vP}, 7, v{LN}\nv_add_u32 v{vP}, s{sFk}, v{vP}\nv_cmp_le_u32 vcc, 4, v{LN}\nv_mov_b32 v{vG+1}, s{sFq}\nv_mov_b32 v{vG}, 16")
        a(f"v_cndmask_b32 v{vP}, v{vP}, v{vG+1}, vcc\nv_cndmask_b32 v{vG}, v{vG}, 25, vcc")
        if LFLAG: a(f"v_cmp_lt_u32 vcc, 4, v{LN}\ns_add_u32 s{t+2}, s{sFa}, 8\nv_mov_b32 v{vG+1}, s{t+2}\nv_cndmask_b32 v{vP}, v{vP}, v{vG+1}, vcc\nv_cndmask_b32 v{vG}, v{vG}, 2, vcc")
        fv = lambda: (a(f"buffer_load_dword v{vP+1}, v{vP}, {WSR}, 0 offen sc1"), seq.append("fv"))
        if FVAT < 0: fv()
        emit(act(1) + act(2))
        fill = (lambda: dma(sMb, 13, 0, "wo")) if WOPOS == "s0" else (lambda: lateb(3))
        for i in range(5):
            prio(i)
            wait(f"act{i}")
            if TAILDBG == 2 and i < 4: self.stamp((2, 3, 5, 7)[i], "tail")
            emit(interleave(mlp(i, i == 0), fill() if fill else []))
            fill = None
            if i == 0 and WOPOS == "s1": fill = lambda: dma(sMb, 13, 0, "wo")
            if i == 3 and WOPOS == "s4": fill = lambda: dma(sMb, 13, 0, "wo")
            if i == FVAT: fv()
            if i < 2 and not (LFLAG and i == 1): emit(act(i + 3))
            if i == PQAT:
                wait("fv")
                check("0", f"v{vG}", 8)
                if TAILDBG == 2: self.stamp(4, "tail")
                if LFLAG: emit(act(4))
                a(f"v_and_b32 v{vP+1}, 15, v{LN}\nv_lshlrev_b32 v{vP+1}, 2, v{vP+1}")
                f1 = lambda: lateb(4) + pq(PQR, 0) + pq(PQR, 1) + gld(vP + 1)
                if FILLI and i < 2: fill = f1
                else: emit(f1())
            if i == 2:
                a(f"v_add_u32 v{KA+19}, s{sLB}, v{vL16}")
                for k in range(5): a(f"ds_read_b128 v[{KA+4*k}:{KA+4*k+3}], v{KA+19} offset:{13312 + 1024*k}")
                a("s_waitcnt lgkmcnt(0)")
                f2 = lambda: dma(sKv, 7, 13312, "kv") + (act(5) + lateb() if WOPOS != "x" else []) + (dma(sMb, 13, 0, "wo") if WOPOS == "s3" else [])
                if FILLI: fill = f2
                else: emit(f2())
        self.stamp(7)
        prio(5)
        emit(consts)
        KP = 120
        wait("kv")
        self.stamp(8)
        gather(KA, lambda j: 200 + 4*j if j < 8 else 140 + 4*(j - 8), KP, PQR, 8)
        Oset = {1: ([200, 204, 208, 212, 216], 220), 0: ([162, 166, 170, 174, 224], 228)}
        SC = [178, 179, vP + 1]
        fq = fqf(PQR)
        S = lambda k: KP + 2*k
        def Xb(st):
            O, DN = Oset[st & 1]
            p0, p1, ps = fq(st, 0), fq(st, 2), fq(st, 4)
            return [K32(DN, S(16), p0, acc(196) if LATEORD else "0"), K32(O[3], S(10), p1, "0"), K32(O[4], S(12), p1, "0"), K32(DN, S(18), p1, acc(DN)),
                    K32(O[0], S(0), p0, "0"), K32(O[1], S(2), p0, "0"), K32(O[2], S(6), p0, "0"), K32(O[1], S(4), p1, acc(O[1])), K32(O[2], S(8), p1, acc(O[2])),
                    "s_nop 0", K16(DN, S(20), ps), K16(O[3], S(14), ps), K16(O[4], S(15), ps)]
        def Vb(st):
            O, DN = Oset[st & 1]
            return scales(st, DN, SC) + sum((vtile(st, tt, O[tt], DN, SC, fq) for tt in range(5)), [])
        def Yb(st):
            r = []
            for p in range(2):
                r += [K32(20*st + 4*jn, MR + 4*(2*jn + p), fq(st, 2*p), acc(20*st + 4*jn)) for jn in range(5)]
            return r + ["s_nop 1"] + [K16(20*st + 4*jn, MR + 40 + 2*jn, fq(st, 4)) for jn in range(5)]
        a("s_nop 1")
        late = (act(5) + lateb() + dma(sMb, 13, 0, "wo")) if WOPOS == "x" else []
        if LATEORD:
            assert NB == 5 and WOPOS == "x"
            lastb = late[8:10]; late = late[:8] + late[10:]
            i5 = seq.index("act5") + 8; seq.pop(i5); seq.append("act5")
            for k in range(4): a(f"v_mov_b32 v{196+k}, 0x358637bd")
            a("s_nop 1")
        cuts = [0] + [len(late)*c//100 for c in XSPLIT] + [len(late)]
        emit(interleave(Xb(0), late[cuts[0]:cuts[1]]))
        for st in range(1, 4):
            x = Xb(st)
            emit(interleave(x[:6], late[cuts[st]:cuts[st+1]]) + (lastb if LATEORD and st == 3 else []) + interleave(x[6:], Vb(st - 1)))
        a(f"v_add_u32 v{TA}, s{sLB}, v{vL16}\nv_lshlrev_b32 v{TA+1}, 3, v{LN}\nv_add_u32 v{TA+1}, s{sLB}, v{TA+1}")
        wor = [f"ds_read_b128 v[{MR+4*f}:{MR+4*f+3}], v{TA} offset:{1024*f}" for f in range(10)]
        wor += [f"ds_read_b64 v[{MR+40+2*jn}:{MR+41+2*jn}], v{TA+1} offset:{10240 + 512*jn}" for jn in range(5)]
        prio(6)
        if WOPOS in ("s3", "s4", "x"):
            wait("act5")
            emit(interleave(mlp(5, False), Vb(3)))
            a("s_waitcnt vmcnt(0)")
            emit(wor + rw)
        else:
            emit(wor)
            wait("act5")
            emit(interleave(mlp(5, False), Vb(3) + rw))
        a("s_waitcnt lgkmcnt(0)")
        emit(interleave(Yb(0), rd[:25]))
        prio(7)
        emit(interleave(Yb(1), rd[25:] + wrl(0), 2))
        prio(8)
        emit(interleave(Yb(2), wrl(1), 6))
        emit(interleave(Yb(3), wrl(2), 6))
        a("s_nop 4")
        emit(wrl(3))
        a("s_waitcnt lgkmcnt(0)\ns_barrier")
        self.stamp(9)
        if RED == 0:
            for k in range(2):
                if k == 1: a("s_mov_b64 exec, 0xffff")
                R = 64*k
                for w in range(8):
                    for par in range(2):
                        base = [RA + k, RA + 6 + k, RA + 8 + k][w // 3]
                        a(f"ds_read_b128 v[{R+8*w+4*par}:{R+8*w+4*par+3}], v{base} offset:{20480*(w % 3) + 10240*par}")
            a("s_mov_b64 exec, -1")
            for k in range(2):
                R = 64*k
                a(f"s_waitcnt lgkmcnt({15 if k == 0 else 0})")
                for pairs in (((0, 4), (1, 5), (2, 6), (3, 7)), ((0, 2), (1, 3)), ((0, 1),)):
                    for x, y in pairs:
                        for j in range(4):
                            a(f"v_pk_add_f32 v[{R+8*x+2*j}:{R+8*x+2*j+1}], v[{R+8*x+2*j}:{R+8*x+2*j+1}], v[{R+8*y+2*j}:{R+8*y+2*j+1}]")
                if k == 0: a("s_waitcnt vmcnt(0)")
                for j in range(8): a(f"v_mul_f32 v{R+j}, v{TA+2+k}, v{R+j}")
                for j in range(4): a(f"v_cvt_pk_bf16_f32 v{R+j}, v{R+2*j}, v{R+2*j+1}")
                if k == 1: a("s_mov_b64 exec, 0xffff")
                a(f"buffer_store_dwordx4 v[{R}:{R+3}], v{RA+4+k}, s[{SRD_M}:{SRD_M+3}], s{t} offen {OUTFL}")
            a("s_mov_b64 exec, -1")


        else:
            items = [(k, w) for k in range(2) for w in range(8)]
            def rdp(n):
                k, w = items[n]
                base = [RA + k, RA + 6 + k, RA + 8 + k][w // 3]
                r = [f"ds_read_b128 v[{8*n+4*par}:{8*n+4*par+3}], v{base} offset:{20480*(w % 3) + 10240*par}" for par in range(2)]
                return r if k == 0 else ["s_mov_b64 exec, 0xffff"] + r + ["s_mov_b64 exec, -1"]
            AH = 6
            for n in range(AH): emit(rdp(n))
            for n, (k, w) in enumerate(items):
                if n + AH < 16: emit(rdp(n + AH))
                if w == 0: continue
                a(f"s_waitcnt lgkmcnt({2*min(AH, 15 - n)})")
                R = 64*k
                for j in range(4):
                    a(f"v_pk_add_f32 v[{R+2*j}:{R+2*j+1}], v[{R+2*j}:{R+2*j+1}], v[{8*n+2*j}:{8*n+2*j+1}]")
                if w == 7:
                    if k == 0: a("s_waitcnt vmcnt(0)")
                    for j in range(8): a(f"v_mul_f32 v{R+j}, v{TA+2+k}, v{R+j}")
                    for j in range(4): a(f"v_cvt_pk_bf16_f32 v{R+j}, v{R+2*j}, v{R+2*j+1}")
                    if k == 1: a("s_mov_b64 exec, 0xffff")
                    a(f"buffer_store_dwordx4 v[{R}:{R+3}], v{RA+4+k}, s[{SRD_M}:{SRD_M+3}], s{t} offen {OUTFL}")
            a("s_mov_b64 exec, -1")


def descriptor(name):
    return f""".p2align 6
.amdhsa_kernel {name}
  .amdhsa_next_free_vgpr 256
  .amdhsa_next_free_sgpr 102
  .amdhsa_accum_offset 256
  .amdhsa_group_segment_fixed_size 0
  .amdhsa_kernarg_size 88
  .amdhsa_user_sgpr_count 2
  .amdhsa_user_sgpr_kernarg_segment_ptr 1
  .amdhsa_system_sgpr_workgroup_id_x 1
.end_amdhsa_kernel
"""

def build(stamps):
    assert not LFLAG or (ROT2 == "none" and PQAT == 1 and not EARLYQ and WOPOS != "pre")
    g = Gen(stamps=stamps)
    a = g.a
    K = NAME + "_kernel"
    hdr = open(os.path.join(os.path.dirname(os.path.abspath(__file__)), "header.txt")).read()
    for l in hdr.strip().split("\n"): a.lines.append(l)
    a(f"; @launch grid=(256,1,1) block=(512,1,1) lds={LDS_TOTAL}")
    a('.amdgcn_target "amdgcn-amd-amdhsa--gfx950"\n.text')
    a(f".globl {K}\n.p2align 8\n.type {K},@function")
    a.label(K)
    g.common_prologue("L_end")
    a(f"s_cmp_lt_u32 s{sWAVE}, 4\ns_cbranch_scc1 L_comp")
    g.loader1()
    a(f"s_setprio {LPRIO}")
    if not NE16:
        g.setup2()
        g.srd(SRD_WS, pWS, WS_SIZE)
    g.preload_b(NE16, NL0)
    if K1LDS: a(f"v_mov_b32 v6, {K1C}\nv_mov_b32 v7, 0\nds_write_b32 v6, v7\ns_waitcnt lgkmcnt(0)")
    a("s_barrier")
    if SKEW: a(f"v_mov_b32 v6, {HINT}\nv_mov_b32 v8, 0\nv_mov_b32 v9, 0\nv_mov_b32 v10, 0\nv_mov_b32 v11, 0\nds_write_b128 v6, v[8:11]\ns_waitcnt lgkmcnt(0)")
    g.preload_b(NL0, NL1, TH)
    if not K1LDS: a(f"s_cmp_lg_u32 s{sTYPE}, 0\ns_cbranch_scc1 L_l2\ns_barrier")
    a.label("L_l2")
    if DIAG != 3: g.preload_b(NL1, 5*NB, TH)
    if BLDS and DIAG != 3: g.stage_b()
    g.stamp(3)
    a.label("L_g2")
    g.gemm2()
    g.dump_stamps()
    a.label("L_end")
    a("s_endpgm")
    a.label("L_comp")
    a(f"s_cmp_eq_u32 s{sTYPE}, 0\ns_cbranch_scc1 L_kv")
    g.compute_P(); a("s_branch L_g2")
    a.label("L_kv")
    g.compute_KV(); a("s_branch L_g2")
    a.label("L_code_end")
    errs = lint(a.lines)
    for e in errs: print("HAZARD:", e, file=sys.stderr)
    return a.text() + '.section .rodata,"a"\n' + descriptor(K)

if __name__ == "__main__":
    open(sys.argv[1], "w").write(build(sys.argv[2] if len(sys.argv) > 2 else False))
```

```python
import sys, os, re
sys.path.insert(0, os.path.dirname(os.path.abspath(__file__)))
from asmlib import *

NAME = "gated_mix__linear_attn_block__dense_activation_mish__prompt"
ENV = os.environ.get

CNT_ACT, CNT_PQ, CNT_KV = 0, 256*128, 288*128
DONE_KV, DONE_PQ = 320*128, 328*128
WS_G = 0x10000
WS_KVP = 0x100000
WS_WOR = 0x200000
WS_W2R = 0x300000
WS_PQ = 0x500000
WS_ACT = 0x800000
WS_SIZE = 0x1000000
WS_STAMP = 0x8000000
BIG = 0x20000000
DBGW = int(ENV("DBGW", "0"))
ROTMODE = ENV("ROT", "two")
ROT2 = ENV("ROT2", "none")
NPRE = int(ENV("NPRE", "10"))
SPIN = int(ENV("SPIN", str(0x100000)))
WOAT = 3
ADPRE = int(ENV("ADPRE", "1"))
KVAT = int(ENV("KVAT", "-1"))
GSYNC = int(ENV("GSYNC", "0"))
PF = int(ENV("PF", "0"))
RS = int(ENV("RS", "3"))
S1AT = int(ENV("S1AT", "8"))
S1SLEEP = int(ENV("S1SLEEP", "2"))
LOOPDBG = int(ENV("LOOPDBG", "0"))
CPF = int(ENV("CPF", "1"))
RD = int(ENV("RD", "-1"))
SKEW = int(ENV("SKEW", "0"))
HINT = 3*20480 + 12800
TAILDBG = int(ENV("TAILDBG", "0"))
OUTFL = ENV("OUTFL", "").replace("_", " ")
LFLAG = int(ENV("LFLAG", "0"))
FAKE = int(ENV("FAKE", "0"))
SPLIT = int(ENV("SPLIT", "1"))
YSLEEP = int(ENV("YSLEEP", "8"))
PQAT = int(ENV("PQAT", "1"))
FILLI = int(ENV("FILLI", "1"))
FIRST0 = int(ENV("FIRST0", "0"))
PRIO = ENV("PRIO", "c")
LOOK = ENV("LOOK", "xw")
GBR = int(ENV("GBR", "0"))
STPRIO = int(ENV("STPRIO", "1"))
NRE = int(ENV("NRE", "20"))
SPREAD = int(ENV("SPREAD", "0"))
NE16 = int(ENV("NE16", "0"))
NL1 = int(ENV("NL1", "16"))
K1LDS = int(ENV("K1LDS", "1"))
K1C = 40960 + 2032
FVAT = int(ENV("FVAT", "0"))
WOPOS = ENV("WOPOS", "x")
RED = int(ENV("RED", "1"))
DIAG = int(ENV("DIAG", "0"))
LPRIO = int(ENV("LPRIO", "0"))
EPRIO = int(ENV("EPRIO", "0"))
TH = int(ENV("TH", "4"))
EARLYQ = int(ENV("EARLYQ", "0"))
NB = int(ENV("NB", "5"))
NTH = int(ENV("NTH", "36"))
XSPLIT = [int(v) for v in ENV("XSPLIT", "30,55,80").split(",")]
LRP = int(ENV("LRP", "0"))
MBOX = 161792
STRICTP = int(ENV("STRICTP", "1"))
LATEORD = int(ENV("LATEORD", "0"))
B20AT = int(ENV("B20AT", "14"))
MAP1 = ENV("MAP1", "q")
ROTQ = int(ENV("ROTQ", "1"))
RG = int(ENV("RG", "5"))
RX = int(ENV("RX", "2"))
RTAB = [int(c) for c in ENV("RTAB", "05050505")]
XTAB = [int(c) for c in ENV("XTAB", "01012323")]
RCM = int(ENV("RCM", "1"))
PICK = int(ENV("PICK", "0"))
SLEEP = int(ENV("SLEEP", "8"))
BLDS = int(ENV("BLDS", "1"))
NL0 = int(ENV("NL0", "13"))
MAP2 = ENV("MAP2", "x2")
TOUCH = int(ENV("TOUCH", "0"))
MSDBG = int(ENV("MSDBG", "0"))
MSPRIO = int(ENV("MSPRIO", "1"))
MSPRIO2 = int(ENV("MSPRIO2", "1"))

XR = 0
STG = 40960
WR = 49152
WSLOT = 14336
NS = 6
GATE = WR + NS * WSLOT
SCR = GATE + 2048
MS = WR
BL = WR + 32768
BLF = STG + 2040
LDS_TOTAL = 163840

sWG = 2
pX, pWQKV, pWO, pW1, pB1, pW2, pGATE, pOUT, pDBG, pWS = 4, 6, 8, 12, 14, 16, 18, 20, 22, 24
sWAVE, sRB, sHALF, sCBL, sGRP, sF1, sROT, sPIDX, sTYPE, sT = 26, 27, 28, 29, 30, 31, 32, 33, 34, 35
SRD_WS, SRD_X, SRD_W, SRD_M, SRD_D = 36, 40, 44, 52, 56
T0 = 60
sST = 76
cL2E, cC, cE = 96, 98, 100
sR64, sC = 27, 28
sB0, sA0 = 40, 46
sPQb, sMb, sKv, sFk = 0, 1, 3, 29
sFa, sFq = 10, 11
BS, AB = 80, 200
PQR, MR, KA, KD = 80, 120, 120, 176
sLB, sN208 = 30, 33
vG, vP, vL16, vL16b = 248, 252, 254, 255
WSR = f"s[{SRD_WS}:{SRD_WS+3}]"


class Gen:
    def __init__(self, stamps=False):
        self.a = Asm()
        self.stamps = stamps

    def stamp(self, k, loop=False):
        if loop == "tail":
            if not TAILDBG: return
        elif TAILDBG and 1 <= k <= 7 and not (TAILDBG == 2 and k == 6): return
        elif LOOPDBG and k >= 3 and not loop: return
        elif loop and not LOOPDBG: return
        if self.stamps and not (self.stamps == "dbg" and k == 9):
            if k < 2 and self.stamps != "dbg" and loop != "tail":
                self.a(f"s_memtime s[58:59]\ns_waitcnt lgkmcnt(0)\ns_mov_b32 s{sST+2*k}, s58")
            else:
                self.a(f"s_memtime s[{sST+2*k}:{sST+2*k+1}]")

    def srd(self, d, ptr, size, add=None):
        a = self.a
        if add is None:
            a(f"s_mov_b32 s{d}, s{ptr}\ns_mov_b32 s{d+1}, s{ptr+1}")
        else:
            a(f"s_add_u32 s{d}, s{ptr}, {add}\ns_addc_u32 s{d+1}, s{ptr+1}, 0")
        a(f"s_mov_b32 s{d+2}, {size}\ns_mov_b32 s{d+3}, 0x20000")

    def signal(self, soff, v, off=0):
        self.a(f"v_mov_b32 v{v}, 1\nv_mov_b32 v{v+1}, 0\ns_mov_b64 exec, 1\nbuffer_atomic_add v{v}, v{v+1}, {WSR}, s{soff} offen offset:{off} sc1\ns_mov_b64 exec, -1")

    def arrive(self, soff, v):
        self.a(f"v_mov_b32 v{v}, 1\nv_mov_b32 v{v+1}, 0\ns_mov_b64 exec, 1\nbuffer_atomic_add v{v}, v{v+1}, {WSR}, s{soff} offen sc0 sc1\ns_mov_b64 exec, -1")

    def raise_if_last(self, v, last, soff):
        a = self.a
        sk = a.newlabel("L_last")
        a(f"v_readfirstlane_b32 s{T0+14}, v{v}\nv_mov_b32 v{v}, 1\nv_mov_b32 v{v+1}, 0\ns_cmp_lg_u32 s{T0+14}, {last}\ns_cbranch_scc1 {sk}")
        a(f"s_mov_b64 exec, 1\nbuffer_store_dword v{v}, v{v+1}, {WSR}, s{soff} offen sc1\ns_mov_b64 exec, -1")
        a.label(sk)

    def poll(self, soff, target, va, vd, srd=SRD_WS, sleep=None):
        a = self.a
        t = T0 + 15
        loop, done = a.newlabel("L_poll"), a.newlabel("L_polld")
        a(f"s_mov_b32 s{t}, 0")
        a.label(loop)
        a(f"buffer_load_dword v{vd}, v{va}, s[{srd}:{srd+3}], {soff} offen sc1\ns_waitcnt vmcnt(0)")
        a(f"v_cmp_le_u32 vcc, {target}, v{vd}\ns_add_u32 s{t}, s{t}, 1\ns_nop 0")
        a(f"s_cmp_eq_u64 vcc, -1\ns_cbranch_scc1 {done}")
        a(f"s_sleep {SLEEP if sleep is None else sleep}\ns_cmp_lt_u32 s{t}, {SPIN}\ns_cbranch_scc1 {loop}")
        a.label(done)

    def dump_stamps(self):
        if not self.stamps:
            return
        a = self.a
        a("s_waitcnt vmcnt(0) lgkmcnt(0)")
        a(f"s_memrealtime s[{T0}:{T0+1}]\ns_memtime s[{T0+2}:{T0+3}]")
        if self.stamps == "dbg":
            self.srd(SRD_M, pDBG, 256)
            a("s_waitcnt lgkmcnt(0)\nv_mov_b32 v2, 0\ns_mov_b64 exec, 1")
            sk = a.newlabel("L_dbg")
            a(f"s_lshl_b32 s{T0+5}, s{sWG}, 3\ns_add_u32 s{T0+5}, s{T0+5}, s{sWAVE}\ns_cmp_lg_u32 s{T0+5}, {DBGW}\ns_cbranch_scc1 {sk}")
            for k in range(1, 10):
                a(f"s_sub_u32 s{T0+5}, s{sST+2*k}, s{sST}\nv_mov_b32 v{3+k}, s{T0+5}")
            a(f"s_sub_u32 s{T0+5}, s{T0+2}, s{sST}\nv_mov_b32 v13, s{T0+5}\ns_sub_u32 s{T0+5}, s{T0}, s94\nv_mov_b32 v14, s{T0+5}\nv_mov_b32 v15, s94")
            for k in range(3):
                a(f"buffer_store_dwordx4 v[{4+4*k}:{7+4*k}], v2, s[{SRD_M}:{SRD_M+3}], 0 offen offset:{16+16*k}")
            a.label(sk)
            a("s_waitcnt vmcnt(0)")
            return
        a(f"s_getreg_b32 s{T0+4}, hwreg(HW_REG_XCC_ID)")
        self.srd(SRD_M, pWS, 0x10000000)
        a("s_waitcnt lgkmcnt(0)")
        for k in range(10):
            a(f"v_mov_b32 v{k}, s{sST+2*k}")
        a(f"v_mov_b32 v10, s{T0}\nv_mov_b32 v11, s{T0+2}\nv_mov_b32 v12, s{T0+4}\nv_mov_b32 v13, s{sTYPE}\nv_mov_b32 v14, s77\nv_mov_b32 v15, s79")
        a(f"s_lshl_b32 s{T0+5}, s{sWG}, 3\ns_add_u32 s{T0+5}, s{T0+5}, s{sWAVE}\ns_lshl_b32 s{T0+5}, s{T0+5}, 6\ns_add_u32 s{T0+5}, s{T0+5}, {WS_STAMP}")
        a("v_mov_b32 v16, 0\ns_mov_b64 exec, 1")
        for k in range(4):
            a(f"buffer_store_dwordx4 v[{4*k}:{4*k+3}], v16, s[{SRD_M}:{SRD_M+3}], s{T0+5} offen offset:{16*k}")
        a("s_waitcnt vmcnt(0)")

    def common_prologue(self, endlabel):
        a = self.a
        t = T0
        a(f"s_cmp_ge_u32 s{sWG}, 256\ns_cbranch_scc1 {endlabel}")
        a("s_load_dwordx16 s[4:19], s[0:1], 0\ns_load_dwordx4 s[20:23], s[0:1], 64\ns_load_dwordx2 s[24:25], s[0:1], 80")
        if self.stamps:
            for k in range(10): a(f"s_mov_b32 s{sST+2*k}, 0")
            if self.stamps == "dbg": a("s_memrealtime s[94:95]")
            else: a("s_memrealtime s[56:57]\ns_memtime s[58:59]\ns_waitcnt lgkmcnt(0)\ns_mov_b32 s77, s56\ns_mov_b32 s79, s58")
        if CPF:
            sk = a.newlabel("L_cpf")
            a(f"s_getpc_b64 s[{t}:{t+1}]\nL_pc0:\ns_lshr_b32 s{t+2}, s{sWG}, 3\ns_lshl_b32 s{t+2}, s{t+2}, 11\nv_lshlrev_b32 v2, 4, v0\nv_add_u32 v2, s{t+2}, v2")
            a(f"v_cmp_gt_u32 vcc, 128, v0\nv_min_u32 v2, L_code_end-L_pc0-16, v2\ns_and_saveexec_b64 s[{t+4}:{t+5}], vcc\ns_cbranch_execz {sk}")
            a(f"global_load_dwordx4 v[248:251], v2, s[{t}:{t+1}]")
            a.label(sk)
            a(f"s_mov_b64 exec, s[{t+4}:{t+5}]")
        a("v_lshrrev_b32 v1, 6, v0\nv_and_b32 v0, 63, v0")
        a(f"v_readfirstlane_b32 s{sWAVE}, v1")
        if MAP1 == "h":
            a(f"s_bfe_u32 s{t+2}, s{sWG}, 0x20001\ns_bfe_u32 s{t+3}, s{sWG}, 0x20003")
            a(f"s_lshl2_add_u32 s{sRB}, s{t+2}, s{t+3}\ns_and_b32 s{sHALF}, s{sWG}, 1\ns_lshr_b32 s{sCBL}, s{sWG}, 5")
            a(f"s_and_b32 s{t}, s{sCBL}, 3\ns_lshl2_add_u32 s{sGRP}, s{sHALF}, s{t}\ns_lshr_b32 s{sTYPE}, s{sCBL}, 2")
        else:
            a(f"s_bfe_u32 s{t+2}, s{sWG}, 0x10002\ns_bfe_u32 s{t+3}, s{sWG}, 0x30003\ns_lshl3_add_u32 s{sRB}, s{t+2}, s{t+3}")
            a(f"s_bfe_u32 s{sHALF}, s{sWG}, 0x10001\ns_lshr_b32 s{sTYPE}, s{sWG}, 7\ns_bfe_u32 s{t}, s{sWG}, 0x10006\ns_and_b32 s{t+1}, s{sWG}, 1")
            a(f"s_lshl1_add_u32 s{t+4}, s{t+1}, s{t}\ns_lshl1_add_u32 s{t+5}, s{t}, s{t+1}\ns_cmp_eq_u32 s{sTYPE}, 0\ns_cselect_b32 s{t}, s{t+4}, s{t+5}")
            a(f"s_lshl2_add_u32 s{sCBL}, s{sTYPE}, s{t}\ns_lshl2_add_u32 s{sGRP}, s{sHALF}, s{t}")
            tab = sum(v << (4*n) for n, v in enumerate(RTAB))
            xtab = sum(v << (4*n) for n, v in enumerate(XTAB))
            a(f"s_lshr_b32 s{t+4}, s{sWG}, 6\ns_mul_i32 s{t+4}, s{t+4}, {RCM}\ns_add_u32 s{t+4}, s{t+4}, s{t+3}\ns_and_b32 s{t+4}, s{t+4}, 7\ns_lshl_b32 s{t+4}, s{t+4}, 2\ns_lshr_b32 s{t+4}, {tab:#x}, s{t+4}\ns_and_b32 s{t+4}, s{t+4}, 15")
            a(f"s_and_b32 s{t+5}, s{sWG}, 7\ns_lshl_b32 s{t+5}, s{t+5}, 2\ns_lshr_b32 s{t+5}, {xtab:#x}, s{t+5}\ns_and_b32 s{t+5}, s{t+5}, 15\ns_add_u32 s{sROT}, s{t+4}, s{t+5}")
            if max(RTAB) + max(XTAB) >= 10: a(f"s_sub_u32 s{t+4}, s{sROT}, 10\ns_cmp_ge_u32 s{sROT}, 10\ns_cselect_b32 s{sROT}, s{t+4}, s{sROT}")
        if MAP1 != "h": pass
        elif ROTMODE == "full":
            a(f"s_mul_i32 s{t+4}, s{t+3}, 5\ns_add_u32 s{t+4}, s{t+4}, 1\ns_lshr_b32 s{t+4}, s{t+4}, 1")
            a(f"s_add_u32 s{t+4}, s{t+4}, s{sCBL}\ns_add_u32 s{t+4}, s{t+4}, s{t+2}")
            a(f"s_mul_i32 s{t+5}, s{sHALF}, 5\ns_add_u32 s{sROT}, s{t+4}, s{t+5}")
            for _ in range(2):
                a(f"s_sub_u32 s{t+4}, s{sROT}, 10\ns_cmp_ge_u32 s{sROT}, 10\ns_cselect_b32 s{sROT}, s{t+4}, s{sROT}")
        elif ROTMODE == "none":
            a(f"s_mov_b32 s{sROT}, 0")
        elif ROTMODE == "xcd":
            a(f"s_mul_i32 s{t+4}, s{t+2}, 5\ns_add_u32 s{t+4}, s{t+4}, 1\ns_lshr_b32 s{t+4}, s{t+4}, 1\ns_add_u32 s{sROT}, s{t+4}, s{sHALF}")
        elif ROTMODE == "two0":
            a(f"s_add_u32 s{t+4}, s{t+3}, s{sCBL}\ns_and_b32 s{t+4}, s{t+4}, 1\ns_mul_i32 s{sROT}, s{t+4}, 5")
        elif ROTMODE == "two1":
            a(f"s_add_u32 s{t+4}, s{t+3}, s{sCBL}\ns_and_b32 s{t+4}, s{t+4}, 1\ns_mul_i32 s{t+4}, s{t+4}, 5\ns_and_b32 s{t+5}, s{t+2}, 1\ns_lshl1_add_u32 s{sROT}, s{t+5}, s{t+4}")
        elif ROTMODE == "two":
            a(f"s_add_u32 s{t+4}, s{t+3}, s{sCBL}\ns_and_b32 s{t+4}, s{t+4}, 1\ns_mul_i32 s{t+4}, s{t+4}, 5")
            a(f"s_add_u32 s{t+4}, s{t+4}, s{t+2}\ns_add_u32 s{sROT}, s{t+4}, s{sHALF}")

    def loader1(self):
        a = self.a
        t = T0
        sLW = sT
        vXE, vXO, vW, vGt = 2, 3, 4, 8
        sStr, sCol, sA32, sA64, sOff, sXo, sWB, sWB2, sXB, sXP, sSel = 48, 49, 50, 51, t+4, t+5, t+6, t+7, t+8, t+9, t+10
        sKind = 72
        a(f"s_setprio 2\ns_sub_u32 s{sLW}, s{sWAVE}, 4")
        a("v_lshrrev_b32 v10, 3, v0\nv_and_b32 v11, 7, v0\nv_lshrrev_b32 v12, 4, v0\nv_mul_u32_u24 v13, 1280, v10\nv_xor_b32 v14, v11, v12")
        a(f"s_and_b32 s{t}, s{sLW}, 1\ns_lshl_b32 s{t}, s{t}, 6")
        a(f"v_lshl_add_u32 v13, v14, 4, v13\nv_xor_b32 v{vXE}, s{t}, v13\nv_xor_b32 v{vXO}, 64, v{vXE}")
        if FIRST0: a(f"s_mov_b32 s{sA32}, 0\ns_mov_b32 s{sA64}, 0\ns_min_u32 s{sROT}, s{sROT}, 8")
        else: a(f"s_lshl_b32 s{sA32}, s{sROT}, 1\ns_mov_b32 s{sA64}, s{sROT}")
        a(f"s_mul_i32 s{sXB}, s{sLW}, 3072\ns_mul_i32 s{sXP}, s{sLW}, 30720")
        for k in range(6, 10): a(f"v_mov_b32 v{k}, {BIG}")
        lKV, lQH, lLN, lJ = a.newlabel("L_wkv"), a.newlabel("L_wqh"), a.newlabel("L_wln"), a.newlabel("L_wj")
        a(f"s_cmp_eq_u32 s{sTYPE}, 0\ns_cbranch_scc1 {lKV}")
        a(f"s_cmp_eq_u32 s{sLW}, 3\ns_cbranch_scc1 {lQH}")
        a(f"s_mov_b32 s{sSel}, 1\ns_mov_b32 s{sStr}, 3072\ns_mul_i32 s{sCol}, s{sGRP}, 3\ns_add_u32 s{sCol}, s{sCol}, s{sLW}\ns_lshl_b32 s{sCol}, s{sCol}, 7\ns_lshl_b32 s{sWB}, s{sLW}, 12")
        a.label(lLN)
        a(f"v_and_b32 v13, 4, v10\nv_add_u32 v13, v13, v10\nv_mul_u32_u24 v13, s{sStr}, v13\nv_lshlrev_b32 v12, 1, v12\nv_xor_b32 v12, v11, v12\nv_lshl_add_u32 v{vW}, v12, 4, v13")
        a(f"s_lshl_b32 s{t}, s{sStr}, 4\ns_lshl_b32 s{t+1}, s{sStr}, 2\nv_add_u32 v{vW+1}, s{t}, v{vW}\nv_add_u32 v{vW+2}, s{t+1}, v{vW}\nv_add_u32 v{vW+3}, s{t}, v{vW+2}")
        a(f"s_branch {lJ}")
        a.label(lQH)
        a(f"s_mov_b32 s{sSel}, 0\ns_mov_b32 s{sStr}, 3840\ns_lshl_b32 s{sCol}, s{sHALF}, 1\ns_add_u32 s{sCol}, s{sCol}, s{sCBL}\ns_add_u32 s{sCol}, s{sCol}, 12\ns_lshl_b32 s{sCol}, s{sCol}, 6")
        a(f"s_cmp_lt_u32 s{sCBL}, 6\ns_cselect_b32 s{sCol}, s{sCol}, {BIG}\ns_mov_b32 s{sWB}, 12288\ns_mov_b32 s{sWB2}, 13312")
        a(f"v_lshrrev_b32 v10, 2, v0\nv_and_b32 v13, 12, v10\nv_add_u32 v13, v13, v10\nv_mul_u32_u24 v13, 3840, v13\nv_and_b32 v11, 3, v0\nv_and_b32 v12, 1, v12\nv_lshlrev_b32 v12, 1, v12\nv_xor_b32 v12, v11, v12")
        a(f"v_lshl_add_u32 v{vW}, v12, 4, v13\nv_add_u32 v{vW+1}, 15360, v{vW}")
        a(f"s_lshl_b32 s{t}, s{sROT}, 3\nv_mov_b32 v14, {BIG}")
        for j in range(2):
            if FIRST0:
                a(f"v_add_u32 v10, {64*j}, v0\nv_add_u32 v11, s{t}, v10\nv_subrev_u32 v12, 72, v11\nv_cmp_gt_u32 vcc, 80, v11\ns_nop 1\nv_cndmask_b32 v11, v12, v11, vcc\nv_cmp_gt_u32 vcc, 8, v10\ns_nop 1\nv_cndmask_b32 v11, v11, v10, vcc")
                a(f"v_cmp_gt_u32 vcc, 80, v10\nv_lshlrev_b32 v11, 4, v11\ns_nop 0\nv_cndmask_b32 v{vGt+j}, v14, v11, vcc")
            else:
                a(f"v_add_u32 v10, {64*j}, v0\nv_add_u32 v11, s{t}, v10\nv_cmp_gt_u32 vcc, 80, v10\nv_subrev_u32 v12, 80, v11\nv_min_u32 v11, v11, v12\nv_lshlrev_b32 v11, 4, v11\nv_cndmask_b32 v{vGt+j}, v14, v11, vcc")
        a(f"s_branch {lJ}")
        a.label(lKV)
        a(f"s_mov_b32 s{sSel}, 0\ns_mov_b32 s{sStr}, 3840\ns_mul_i32 s{sWB}, s{sLW}, 5120\ns_lshl_b32 s{sCol}, s{sGRP}, 7")
        a(f"s_cmp_eq_u32 s{sLW}, 2\ns_cbranch_scc1 {lLN}")
        a(f"s_mul_i32 s{sCol}, s{sGRP}, 160\ns_cmp_eq_u32 s{sLW}, 1\ns_cselect_b32 s{t}, 2560, 1280\ns_add_u32 s{sCol}, s{sCol}, s{t}")
        a(f"s_cmp_eq_u32 s{sLW}, 3\ns_cselect_b32 s{t}, 256, 0\ns_cselect_b32 s{sWB}, 4096, s{sWB}\ns_mov_b32 s{sWB2}, 9216")
        a(f"v_add_u32 v14, s{t}, v0")
        for j in range(4):
            a(f"v_add_u32 v10, {64*j}, v14\nv_mul_u32_u24 v11, 6554, v10\nv_lshrrev_b32 v11, 16, v11\nv_mad_i32_i24 v10, v11, -10, v10")
            a("v_and_b32 v12, 12, v11\nv_and_b32 v13, 3, v11\nv_lshl_or_b32 v12, v12, 1, v13\nv_bfe_u32 v13, v11, 4, 1\nv_lshl_or_b32 v12, v13, 2, v12")
            a(f"v_mul_u32_u24 v12, 3840, v12\nv_lshl_add_u32 v{vW+j}, v10, 4, v12")
            if j == 0:
                a(f"v_add_u32 v{vW+1}, 1280, v{vW}\ns_cmp_eq_u32 s{sLW}, 3\ns_cbranch_scc1 {lJ}")
        a.label(lJ)
        a(f"s_lshl_b32 s{sStr}, s{sStr}, 5\ns_mul_i32 s{t}, s{sRB}, 163840")
        a("s_waitcnt lgkmcnt(0)")
        self.stamp(0)
        self.srd(SRD_X, pX, 163840, add=f"s{t}")
        a(f"s_cmp_eq_u32 s{sSel}, 0\ns_cselect_b32 s{SRD_W}, s{pWQKV}, s{pW1}\ns_cselect_b32 s{SRD_W+1}, s{pWQKV+1}, s{pW1+1}\ns_cselect_b32 s{SRD_W+2}, {640*1920*2}, {640*1536*2}\ns_mov_b32 s{SRD_W+3}, 0x20000")
        lab3, lab4, labj = a.newlabel("L_ld3"), a.newlabel("L_ld4"), a.newlabel("L_ldj")
        lab0k, lab3k = a.newlabel("L_ld0k"), a.newlabel("L_ld3k")
        a(f"s_cmp_eq_u32 s{sLW}, 3\ns_cbranch_scc1 {lab3}")
        for variant, rp in (((0, 1), (0, 0), (3, 1), (3, 0), (4, 1)) if LRP else ((0, 0), (3, 0), (4, 0))):
            if LRP and (variant, rp) == (0, 1): a(f"s_cmp_eq_u32 s{sTYPE}, 0\ns_cbranch_scc1 {lab0k}")
            if LRP and (variant, rp) == (0, 0): a.label(lab0k)
            if LRP and (variant, rp) == (3, 0): a.label(lab3k)
            if variant == 3 and (rp or not LRP):
                a.label(lab3)
                a(f"s_cmp_ge_u32 s{sCBL}, 6\ns_cbranch_scc1 {lab4}")
                if LRP: a(f"s_cmp_eq_u32 s{sTYPE}, 0\ns_cbranch_scc1 {lab3k}")
            if variant == 4:
                a.label(lab4)
            nW = {0: 4, 3: 2, 4: 0}[variant]
            nX = 3 if variant == 0 else 7
            seq = []
            def issue_W(i):
                if nW == 0: return
                a(f"s_mul_i32 s{sOff}, s{sA32}, s{sStr}")
                for j in range(nW):
                    base, off = (sWB, 1024*j) if variant == 0 else ((sWB, sWB2)[j], 0)
                    a(f"s_add_u32 m0, s{base}, {WR + (i % NS)*WSLOT + off}")
                    a(f"s_add_u32 s{sOff}, s{sOff}, s{sCol}" if j == 0 else "s_nop 0")
                    a(f"buffer_load_dwordx4 v{vW+j}, s[{SRD_W}:{SRD_W+3}], s{sOff} offen lds")
                    seq.append(("W", i))
                if FIRST0 and i == 1: a(f"s_lshl1_add_u32 s{sA32}, s{sROT}, 2")
                else: a(f"s_add_u32 s{sA32}, s{sA32}, 1\ns_cmp_eq_u32 s{sA32}, 20\ns_cselect_b32 s{sA32}, {2 if FIRST0 else 0}, s{sA32}")
            def issue_X(jx):
                a(f"s_lshl_b32 s{sXo}, s{sA64}, 7")
                for j in range(nX):
                    a(f"s_add_u32 m0, s{sXB}, {XR + (jx % 3)*16384 + 1024*j}")
                    a(f"s_add_u32 s{sXo}, s{sXo}, " + (f"s{sXP}" if j == 0 else "10240"))
                    a(f"buffer_load_dwordx4 v{vXE + (j & 1)}, s[{SRD_X}:{SRD_X+3}], s{sXo} offen lds")
                    seq.append(("X", jx))
                if FIRST0 and jx == 0: a(f"s_add_u32 s{sA64}, s{sROT}, 1")
                else: a(f"s_add_u32 s{sA64}, s{sA64}, 1\ns_cmp_eq_u32 s{sA64}, 10\ns_cselect_b32 s{sA64}, {1 if FIRST0 else 0}, s{sA64}")
            def wait_for(items):
                last = max([n for n, it in enumerate(seq) if it in items] + [-1])
                if last >= 0: a(f"s_waitcnt vmcnt({len(seq) - 1 - last})")
            issue_X(0); issue_W(0)
            if variant == 4:
                self.srd(SRD_M, pGATE, 1280)
                for j in range(2):
                    a(f"s_mov_b32 m0, {GATE + 1024*j}\ns_nop 0\nbuffer_load_dwordx4 v{vGt+j}, s[{SRD_M}:{SRD_M+3}], 0 offen lds")
                    seq.append(("W", 0))
            issue_W(1)
            wait_for([("W", 0), ("X", 0)]); self.stamp(1); a("s_barrier")
            issue_X(1)
            wait_for([("W", 1)]); a("s_barrier")
            issue_W(2); issue_W(3); issue_X(2); issue_W(4)
            if LOOK == "full": issue_W(5)
            for j in range(1, 10):
                if j == (8 if NE16 else 9) and variant == 0:
                    sk = a.newlabel("L_s1skip")
                    a(f"s_cmp_lg_u32 s{sWAVE}, 4\ns_cbranch_scc1 {sk}")
                    self.srd(SRD_D, pDBG, 256)
                    a("v_mov_b32 v10, 128")
                    self.poll("0", 1, 10, 11, SRD_D, S1SLEEP)
                    a.label(sk)
                if rp and j == LRP + 2:
                    last = max(n for n, it in enumerate(seq) if it in (("W", 2*j), ("W", 2*j + 1), ("X", j)))
                    N = len(seq) - 1 - last
                    w1, w2, w3 = a.newlabel("L_wv"), a.newlabel("L_wv"), a.newlabel("L_wv")
                    a(f"s_cmp_eq_u32 s{sKind}, 1\ns_cbranch_scc1 {w1}\ns_cmp_eq_u32 s{sKind}, 2\ns_cbranch_scc1 {w2}\ns_waitcnt vmcnt({N})\ns_branch {w3}\n{w1}:\ns_waitcnt vmcnt({N+4})\ns_branch {w3}\n{w2}:\ns_waitcnt vmcnt({N+8})\n{w3}:")
                else:
                    wait_for([("W", 2*j), ("W", 2*j + 1), ("X", j)])
                if rp and variant == 0 and j == LRP + 4:
                    sk = a.newlabel("L_s1b")
                    a(f"s_cmp_lg_u32 s{sWAVE}, 4\ns_cbranch_scc1 {sk}\nv_readfirstlane_b32 s{t}, v70\nv_mov_b32 v71, 1\ns_cmp_lg_u32 s{t}, 127\ns_cbranch_scc1 {sk}")
                    self.srd(SRD_D, pDBG, 256)
                    a(f"s_mov_b64 exec, 1\nbuffer_store_dword v71, v69, s[{SRD_D}:{SRD_D+3}], 0 offen offset:128 sc1\ns_mov_b64 exec, -1")
                    a.label(sk)
                a("s_barrier")
                if rp and j == LRP:
                    self.srd(SRD_WS, pWS, WS_SIZE)
                    sk = a.newlabel("L_z")
                    a(f"v_lshlrev_b32 v69, 4, v0\ns_cmp_ge_u32 s{sLW}, 2\ns_cbranch_scc1 {sk}\ns_lshl3_add_u32 s{t}, s{sRB}, s{sGRP}\ns_lshl_b32 s{t}, s{t}, 9\ns_mul_i32 s{t+1}, s{sLW}, {WS_KVP}\ns_add_u32 s{t}, s{t}, s{t+1}")
                    a("v_mov_b32 v64, 0\nv_mov_b32 v65, 0\nv_mov_b32 v66, 0\nv_mov_b32 v67, 0\ns_mov_b32 exec_hi, 0")
                    a(f"buffer_store_dwordx4 v[64:67], v69, {WSR}, s{t} offen sc1\ns_mov_b32 exec_hi, -1")
                    a.label(sk)
                if rp and variant == 0 and j == LRP + 3:
                    sk = a.newlabel("L_s1a")
                    a(f"s_cmp_lg_u32 s{sWAVE}, 4\ns_cbranch_scc1 {sk}")
                    self.srd(SRD_D, pDBG, 256)
                    a(f"v_mov_b32 v70, 1\ns_mov_b64 exec, 1\nbuffer_atomic_add v70, v69, s[{SRD_D}:{SRD_D+3}], 0 offen sc0 sc1\ns_mov_b64 exec, -1")
                    a.label(sk)
                if LOOK == "ramp" and j == 1: issue_W(5)
                if j + 1 < 10 and LOOK == "xw": issue_W(2*j + 3)
                if j + 2 < 10: issue_X(j + 2); issue_W(2*j + 4)
                if j + 2 < 10 and LOOK != "xw": issue_W(2*j + 5)
                if rp and j == LRP:
                    a(f"s_lshl_b32 s{t}, s{sLW}, 6\ns_add_u32 s{t}, s{t}, {MBOX}\nv_mov_b32 v68, s{t}\nds_read_b128 v[16:19], v68\nds_read_b128 v[20:23], v68 offset:16\nds_read_b32 v24, v68 offset:32")
                    a(f"v_lshrrev_b32 v10, 2, v0\nv_and_b32 v11, 3, v0\nv_lshlrev_b32 v11, 3, v11\nv_lshl_add_u32 v10, v10, 7, v11\ns_lshl_b32 s{t}, s{sLW}, 12\ns_add_u32 s{t}, s{t}, {SCR}\nv_add_u32 v10, s{t}, v10")
                    for r in range(2):
                        for u in range(4):
                            a(f"ds_read_b64_tr_b16 v[{32+16*r+4*u}:{33+16*r+4*u}], v10 offset:{8192*r + 32*u}\nds_read_b64_tr_b16 v[{34+16*r+4*u}:{35+16*r+4*u}], v10 offset:{8192*r + 32*u + 2048}")
                    a(f"s_waitcnt lgkmcnt(0)\nv_readfirstlane_b32 s{sKind}, v24\nv_lshrrev_b32 v25, 1, v69")
                    for u in range(4): a(f"v_add_u32 v{16+u}, v{16+u}, v69")
                    for u in range(4):
                        a(f"buffer_store_dwordx4 v[{32+4*u}:{35+4*u}], v{16+u}, {WSR}, 0 offen sc1"); seq.append(("S", u))
                if rp and j == LRP + 1:
                    k2, k3 = a.newlabel("L_r2"), a.newlabel("L_r2")
                    a(f"s_cmp_eq_u32 s{sKind}, 0\ns_cbranch_scc1 {k2}\ns_cmp_eq_u32 s{sKind}, 2\ns_cbranch_scc1 {k3}")
                    for u in range(4): a(f"v_add_u32 v{20+u}, v{20+u}, v69\nbuffer_store_dwordx4 v[{48+4*u}:{51+4*u}], v{20+u}, {WSR}, 0 offen sc1")
                    a(f"s_branch {k2}\n{k3}:\ns_mov_b32 s{t}, 12800")
                    for u in range(4): a(f"v_add_u32 v{20+u}, v{20+u}, v25\nbuffer_store_dwordx2 v[{48+4*u}:{49+4*u}], v{20+u}, {WSR}, 0 offen sc1\nbuffer_store_dwordx2 v[{50+4*u}:{51+4*u}], v{20+u}, {WSR}, s{t} offen sc1")
                    a.label(k2)
                if j == 8 and NE16:
                    self.setup2()
                    self.srd(SRD_WS, pWS, WS_SIZE)
                    self.preload_b(0, NE16)
                    seq.extend(["B"] * NE16)
            if variant != 4:
                a(f"s_branch {labj}")
        a.label(labj)
        self.stamp(2)

    def mish_quad(self, h, dst, tmp):
        P = lambda r: f"v[{r}:{r+1}]"
        return [
            f"v_pk_fma_f32 {P(tmp)}, {P(h)}, s[{cL2E}:{cL2E+1}], -0.5 op_sel_hi:[1,1,0]",
            f"v_pk_fma_f32 {P(tmp+2)}, {P(h+2)}, s[{cL2E}:{cL2E+1}], -0.5 op_sel_hi:[1,1,0]",
            f"v_exp_f32 v{tmp}, v{tmp}", f"v_exp_f32 v{tmp+1}, v{tmp+1}", f"v_exp_f32 v{tmp+2}, v{tmp+2}", f"v_exp_f32 v{tmp+3}, v{tmp+3}",
            f"v_pk_add_f32 {P(tmp)}, {P(tmp)}, s[{cC}:{cC+1}]", f"v_pk_add_f32 {P(tmp+2)}, {P(tmp+2)}, s[{cC}:{cC+1}]",
            f"v_pk_fma_f32 {P(tmp)}, {P(tmp)}, {P(tmp)}, 0.5 op_sel_hi:[1,1,0]",
            f"v_pk_fma_f32 {P(tmp+2)}, {P(tmp+2)}, {P(tmp+2)}, 0.5 op_sel_hi:[1,1,0]",
            f"v_rcp_f32 v{tmp}, v{tmp}", f"v_rcp_f32 v{tmp+1}, v{tmp+1}", f"v_rcp_f32 v{tmp+2}, v{tmp+2}", f"v_rcp_f32 v{tmp+3}, v{tmp+3}",
            f"v_pk_fma_f32 {P(tmp)}, {P(h)}, {P(tmp)}, {P(h)} neg_lo:[1,0,0] neg_hi:[1,0,0]",
            f"v_pk_fma_f32 {P(tmp+2)}, {P(h+2)}, {P(tmp+2)}, {P(h+2)} neg_lo:[1,0,0] neg_hi:[1,0,0]",
            f"v_cvt_pk_bf16_f32 v{dst}, v{tmp}, v{tmp+1}", f"v_cvt_pk_bf16_f32 v{dst+1}, v{tmp+2}, v{tmp+3}",
        ]

    def phi_quad(self, h, dst, tmp):
        P = lambda r: f"v[{r}:{r+1}]"
        return [
            f"v_pk_mul_f32 {P(tmp)}, {P(h)}, s[{cL2E}:{cL2E+1}]", f"v_pk_mul_f32 {P(tmp+2)}, {P(h+2)}, s[{cL2E}:{cL2E+1}]",
            f"v_exp_f32 v{tmp}, v{tmp} clamp", f"v_exp_f32 v{tmp+1}, v{tmp+1} clamp", f"v_exp_f32 v{tmp+2}, v{tmp+2} clamp", f"v_exp_f32 v{tmp+3}, v{tmp+3} clamp",
            f"v_pk_add_f32 {P(h)}, {P(h)}, s[{cC}:{cC+1}]", f"v_pk_add_f32 {P(h+2)}, {P(h+2)}, s[{cC}:{cC+1}]",
            f"v_pk_add_f32 {P(tmp)}, {P(tmp)}, s[{cE}:{cE+1}]", f"v_pk_add_f32 {P(tmp+2)}, {P(tmp+2)}, s[{cE}:{cE+1}]",
            f"v_max_f32 v{tmp}, v{tmp}, v{h}", f"v_max_f32 v{tmp+1}, v{tmp+1}, v{h+1}", f"v_max_f32 v{tmp+2}, v{tmp+2}, v{h+2}", f"v_max_f32 v{tmp+3}, v{tmp+3}, v{h+3}",
            f"v_cvt_pk_bf16_f32 v{dst}, v{tmp}, v{tmp+1}", f"v_cvt_pk_bf16_f32 v{dst+1}, v{tmp+2}, v{tmp+3}",
        ]

    def consts(self, kind):
        if kind == "mish":
            self.a(f"s_mov_b32 s{cC}, 0x3f3504f3\ns_mov_b32 s{cC+1}, 0x3f3504f3")
        else:
            self.a(f"s_mov_b32 s{cC}, 0x3f800008\ns_mov_b32 s{cC+1}, 0x3f800008\ns_mov_b32 s{cE}, 0x358637bd\ns_mov_b32 s{cE+1}, 0x358637bd")

    def main_loop(self, reads, mfmas, extra, nread_end, bases):
        a = self.a
        a("s_barrier")
        self.stamp(1)
        for l in reads(0): a(l)
        for l in extra.get(0, ([], [], []))[1]: a(l)
        a("s_waitcnt lgkmcnt(0)")
        for i in range(1, 21):
            if (i == 1 or i % 2 == 0) and i < 20: a("s_barrier")
            if i in (2, 4, 6, 8, 10, 14, 18): self.stamp(3 + (2, 4, 6, 8, 10, 14, 18).index(i), True)
            pre, fill, preb = extra.get(i, ([], [], []))
            for l in pre: a(l)
            if i < 20:
                tail = []
                if (i + 1) % 3 == 0 and i + 1 < 20:
                    op = "v_add_u32" if ((i + 1) % NS) == 3 else "v_subrev_u32"
                    tail = [f"{op} v{b}, {3*WSLOT}, v{b}" for b in bases]
                body = interleave(mfmas(i - 1), reads(i) + fill + tail, 0, nread_end)
                for l in body: a(l)
                for l in preb: a(l)
                a("s_waitcnt lgkmcnt(0)")
            else:
                m19 = mfmas(19)
                for l in m19[:B20AT] + ["s_barrier"] + m19[B20AT:]: a(l)
        self.stamp(2)

    def finish1(self, flags, strict=False, late8=False):
        a = self.a
        self.setup2()
        if LFLAG:
            if late8: a(f"s_add_u32 s{flags[0]}, s{flags[0]}, 8")
            a(f"s_mov_b32 s32, s{flags[1]}")
            self.preload_b(0, NPRE)
            return
        if strict:
            a("s_waitcnt vmcnt(0)")
            self.stamp(5)
            for f in flags: self.signal(f, 1)
            self.preload_b(0, NPRE)
            return
        self.preload_b(0, NPRE)
        a(f"s_waitcnt vmcnt({NPRE})")
        self.stamp(5)
        for f in flags: self.signal(f, 1)
        if not BLDS:
            self.preload_b(NPRE, 30)
            return

    def pickup(self):
        a = self.a
        t = T0
        sk = a.newlabel("L_pk")
        a(f"s_cmp_ge_u32 s{sWAVE}, 4\ns_cbranch_scc1 {sk}")
        a(f"s_mul_i32 s{t+14}, s{sWAVE}, 20480\ns_add_u32 s{t+14}, s{t+14}, {BL}\nv_add_u32 v{BS+117}, s{t+14}, v{vL16}")
        for n in range(5*NB - 10):
            a(f"ds_read_b128 v[{BS+40+4*n}:{BS+43+4*n}], v{BS+117} offset:{1024*n}")
        a.label(sk)

    def prefetch(self, vL, v, S=SRD_X):
        a = self.a
        t = T0
        for ptr, size, share, n in ((pX, 2048*1280, 10240, 3), (pWQKV, 640*3840, 9600, 3), (pW1, 640*3072, 7680, 2))[:(1 if PF == 2 else 3)]:
            self.srd(S, ptr, size)
            per = -(-share // 4 // 128) * 128
            a(f"s_mul_i32 s{t}, s{sWG}, {share}\ns_and_b32 s{t}, s{t}, 0xffffff80\ns_mul_i32 s{t+1}, s{sWAVE}, {per}\ns_add_u32 s{t}, s{t}, s{t+1}\ns_min_u32 s{t}, s{t}, {size - n*1024}")
            for k in range(n):
                a(f"buffer_load_dwordx4 v[{v}:{v+3}], v{vL}, s[{S}:{S+3}], s{t} offen offset:{1024*k}")

    def touch(self, vLane, v):
        a = self.a
        t = T0
        a(f"v_lshlrev_b32 v{v}, 21, v{vLane}\nv_add_u32 v{v}, 0xff000, v{v}\ns_mov_b64 exec, 0xff")
        a(f"buffer_load_dword v{v+1}, v{v}, {WSR}, 0 offen")
        self.srd(SRD_M, pOUT, 2048*640*2)
        a(f"v_lshlrev_b32 v{v}, 20, v{vLane}\ns_mov_b64 exec, 7\nbuffer_load_dword v{v+2}, v{v}, s[{SRD_M}:{SRD_M+3}], 0 offen")
        self.srd(SRD_M, pWO, 640*640*2)
        a(f"v_lshlrev_b32 v{v}, 19, v{vLane}\ns_mov_b64 exec, 3\nbuffer_load_dword v{v+3}, v{v}, s[{SRD_M}:{SRD_M+3}], 0 offen\ns_mov_b64 exec, -1")

    def compute_P(self):
        a = self.a
        t = T0
        ACC, XB, WB, BI = 0, 112, 144, 200
        vX0, vX1, vH0, vH1, vQ, vGt, vL, vRd, vRr, vBo, vT = 228, 229, 230, 231, 232, 233, 234, 235, 236, 237, 238
        vLane = 253
        sSH, sNH = sT, 48
        sAct, sPq, sF2, sGs = 49, 72, 73, 74
        a(f"v_mov_b32 v{vLane}, v0\ns_lshr_b32 s{sSH}, s{sWAVE}, 1\ns_and_b32 s{sNH}, s{sWAVE}, 1")
        a(f"v_and_b32 v1, 15, v0\nv_lshrrev_b32 v2, 4, v0\nv_lshrrev_b32 v3, 1, v1\nv_xor_b32 v3, v3, v2\nv_lshlrev_b32 v3, 4, v3\nv_lshl_add_u32 v3, v1, 7, v3")
        a(f"s_lshl_b32 s{t}, s{sSH}, 13\nv_add_u32 v{vX0}, s{t}, v3\nv_xor_b32 v{vX1}, 64, v{vX0}")
        a(f"v_lshrrev_b32 v3, 2, v0\nv_and_b32 v4, 3, v0\nv_lshlrev_b32 v4, 3, v4")
        a(f"v_lshl_add_u32 v5, v3, 7, v4\nv_bfe_u32 v6, v0, 3, 2\ns_lshl_b32 s{t}, s{sNH}, 1\nv_xor_b32 v6, s{t}, v6\nv_lshl_add_u32 v6, v6, 5, v5")
        a(f"v_add_u32 v{vH0}, {WR}, v6\nv_xor_b32 v{vH1}, 32, v{vH0}")
        a(f"v_lshl_add_u32 v6, v3, 6, v4\nv_and_b32 v7, 1, v2\nv_xor_b32 v7, s{sNH}, v7\nv_lshl_add_u32 v6, v7, 5, v6\nv_add_u32 v{vQ}, {WR+12288}, v6")
        a(f"v_lshlrev_b32 v6, 4, v2\nv_add_u32 v{vGt}, {GATE}, v6\nv_lshlrev_b32 v{vL}, 4, v0\nv_lshlrev_b32 v{vBo}, 3, v2")
        a(f"v_lshrrev_b32 v6, 3, v0\nv_mul_u32_u24 v6, 1280, v6\nv_and_b32 v7, 7, v0\nv_lshl_add_u32 v{vRd}, v7, 4, v6")
        a(f"s_lshl_b32 s{t}, s{sWAVE}, 12\ns_add_u32 s{t}, s{t}, {SCR}\nv_add_u32 v{vRr}, s{t}, v5")
        a(f"s_lshl3_add_u32 s{sPIDX}, s{sRB}, s{sGRP}")
        a(f"s_mov_b32 s{cL2E}, 0x3fb8aa3b\ns_mov_b32 s{cL2E+1}, 0x3fb8aa3b")
        a(f"s_lshl2_add_u32 s{t}, s{sPIDX}, s{sWAVE}\ns_min_u32 s{t}, s{t}, 479")
        a(f"s_mul_i32 s{t+1}, s{t}, 6554\ns_lshr_b32 s{t+1}, s{t+1}, 16\ns_mul_i32 s{t+2}, s{t+1}, 10\ns_sub_u32 s{t+2}, s{t}, s{t+2}")
        a(f"s_mul_i32 s{t+6}, s{t+1}, 40960\ns_lshl_b32 s{t+3}, s{t+2}, 7\ns_add_u32 s{t+6}, s{t+6}, s{t+3}")
        a(f"s_mul_i32 s{t+7}, s{sGRP}, 384\ns_lshl_b32 s{t+3}, s{sNH}, 6\ns_add_u32 s{t+7}, s{t+7}, s{t+3}")
        a("s_waitcnt lgkmcnt(0)")
        self.stamp(0)
        self.srd(SRD_M, pB1, 3072)
        self.srd(SRD_W, pW2, 1536*640*2)
        for u in range(6):
            a(f"buffer_load_dwordx2 v[{BI+4*u+2}:{BI+4*u+3}], v{vBo}, s[{SRD_M}:{SRD_M+3}], s{t+7} offen offset:{128*(u >> 1) + 32*(u & 1)}")
        sSrc1 = 69
        a(f"s_mov_b32 s{sSrc1}, s{t+6}")
        self.srd(SRD_WS, pWS, WS_SIZE)
        if TOUCH == 2: self.touch(vLane, 240)
        dsts = [10, 11, 1, 3]
        for u in range(4):
            a(f"s_lshl2_add_u32 s{t+3}, s{t+2}, {u}\ns_mul_i32 s{t+4}, s{t+3}, 205\ns_lshr_b32 s{t+4}, s{t+4}, 10")
            a(f"s_mul_i32 s{t+5}, s{t+4}, 235\ns_add_u32 s{t+5}, s{t+5}, s{t+3}\ns_mul_i32 s{t+4}, s{t+1}, 5\ns_add_u32 s{t+5}, s{t+5}, s{t+4}")
            a(f"s_lshl_b32 s{t+5}, s{t+5}, 10\ns_add_u32 s{t+5}, s{t+5}, {WS_W2R}")
            if LRP: a(f"s_mov_b32 s{dsts[u]}, s{t+5}")
            else: a(f"s_cmp_lt_u32 s{sPIDX}, 120\ns_cselect_b32 s{dsts[u]}, s{t+5}, {BIG}")
        d2, sSrc2, sK2, sInc2 = 40, 0, 75, 70
        self.srd(SRD_M, pWO, 640*640*2)
        a(f"s_lshl1_add_u32 s{t}, s{sPIDX}, s{sWAVE}\ns_sub_u32 s{t}, s{t}, 2")
        a(f"s_cmp_lt_u32 s{t}, 160\ns_cselect_b32 s{sK2}, 1, 2\ns_cmp_lt_u32 s{t}, 200\ns_cselect_b32 s{sK2}, s{sK2}, 0\ns_cmp_lt_u32 s{sWAVE}, 2\ns_cselect_b32 s{sK2}, 0, s{sK2}")
        a(f"s_mul_i32 s{t+1}, s{t}, 6554\ns_lshr_b32 s{t+1}, s{t+1}, 16\ns_mul_i32 s{t+2}, s{t+1}, 10\ns_sub_u32 s{t+2}, s{t}, s{t+2}")
        a(f"s_lshr_b32 s{t+3}, s{t+1}, 1\ns_and_b32 s{t+4}, s{t+1}, 1\ns_sub_u32 s{t+5}, s{t+1}, 16\ns_lshl_b32 s{t+5}, s{t+5}, 1")
        a(f"s_cmp_eq_u32 s{sK2}, 2\ns_cselect_b32 s{t+3}, s{t+5}, s{t+3}\ns_cselect_b32 s{t+4}, 2, s{t+4}\ns_cselect_b32 s{sInc2}, {10240 + 64*1280}, 10240")
        a(f"s_mul_i32 s{sSrc2}, s{t+3}, {80*1280}\ns_mul_i32 s{t+5}, s{t+4}, {32*1280}\ns_add_u32 s{sSrc2}, s{sSrc2}, s{t+5}\ns_lshl_b32 s{t+5}, s{t+2}, 7\ns_add_u32 s{sSrc2}, s{sSrc2}, s{t+5}")
        a(f"s_mul_i32 s{t+3}, s{t+3}, 12800\ns_lshl_b32 s{t+5}, s{t+4}, 10\ns_cmp_eq_u32 s{sK2}, 2\ns_cselect_b32 s{t+5}, 10240, s{t+5}\ns_cselect_b32 s{t+6}, 512, 2048\ns_add_u32 s{t+3}, s{t+3}, s{t+5}\ns_add_u32 s{t+3}, s{t+3}, {WS_WOR}")
        for u in range(4):
            a(f"s_lshl2_add_u32 s{t+4}, s{t+2}, {u}\ns_mul_i32 s{t+5}, s{t+4}, 205\ns_lshr_b32 s{t+5}, s{t+5}, 10\ns_mul_i32 s{t+7}, s{t+5}, 5\ns_sub_u32 s{t+4}, s{t+4}, s{t+7}")
            a(f"s_mul_i32 s{t+5}, s{t+5}, 102400\ns_mul_i32 s{t+4}, s{t+4}, s{t+6}\ns_add_u32 s{t+5}, s{t+5}, s{t+4}\ns_add_u32 s{d2+u}, s{t+5}, s{t+3}")
        sRb64 = t + 11
        a(f"s_lshl1_add_u32 s{sRb64}, s{sRB}, s{sSH}")
        a(f"s_mul_i32 s{t}, s{sRb64}, 48\ns_mul_i32 s{t+1}, s{sGRP}, 6\ns_add_u32 s{t}, s{t}, s{t+1}\ns_add_u32 s{t}, s{t}, s{sNH}\ns_lshl_b32 s{t}, s{t}, 12")
        a(f"s_add_u32 s{sAct}, s{t}, {WS_ACT}\ns_add_u32 s{sAct+1}, s{t}, {WS_ACT + 8192}\ns_add_u32 s{sAct+2}, s{t}, {WS_ACT + 16384}")
        a(f"s_mul_i32 s{t}, s{sRb64}, 40\ns_lshl2_add_u32 s{t}, s{sHALF}, s{t}\ns_lshl1_add_u32 s{t}, s{sCBL}, s{t}\ns_add_u32 s{t}, s{t}, s{sNH}\ns_add_u32 s{t}, s{t}, 24\ns_lshl_b32 s{t}, s{t}, 11\ns_add_u32 s{sPq}, s{t}, {WS_PQ}")
        a(f"s_lshl3_add_u32 s{sF1}, s{sRb64}, s{sGRP}\ns_lshl_b32 s{sF1}, s{sF1}, 7")
        a(f"s_lshl1_add_u32 s{t}, s{sGRP}, s{sNH}\ns_cmp_eq_u32 s{t}, 5\ns_cselect_b32 s{sGs}, 1, 0")
        a(f"s_lshl_b32 s{sF2}, s{sRb64}, 7\ns_add_u32 s{sF2}, s{sF2}, {CNT_PQ}\ns_cmp_lt_u32 s{sCBL}, 6\ns_cselect_b32 s{t}, 1, s{sGs}\ns_cmp_eq_u32 s{t}, 1\ns_cselect_b32 s{sF2}, s{sF2}, {BIG}")
        a(f"s_cmp_ge_u32 s{sCBL}, 6\ns_cselect_b64 vcc, -1, 0")
        def reads(i):
            b = i & 1; so = (i % 3) * WSLOT
            xs = XR + ((i >> 1) % 3) * 16384
            r = [f"ds_read_b128 v[{XB+16*b+4*s}:{XB+16*b+4*s+3}], v{vX1 if i & 1 else vX0} offset:{xs + 2048*s}" for s in range(4)]
            for u in range(6):
                d = WB + 28*b + 4*u
                r.append(f"ds_read_b64_tr_b16 v[{d}:{d+1}], v{vH0 + (u & 1)} offset:{so + 4096*(u >> 1)}")
                r.append(f"ds_read_b64_tr_b16 v[{d+2}:{d+3}], v{vH0 + (u & 1)} offset:{so + 4096*(u >> 1) + 2048}")
            d = WB + 28*b + 24
            if GBR:
                l1, l2 = a.newlabel("L_g"), a.newlabel("L_gj")
                r.append(f"s_cbranch_vccnz {l1}\nds_read_b64_tr_b16 v[{d}:{d+1}], v{vQ} offset:{so}\nds_read_b64_tr_b16 v[{d+2}:{d+3}], v{vQ} offset:{so + 1024}\ns_branch {l2}\n"
                         f"{l1}:\nds_read_b128 v[{d}:{d+3}], v{vGt} offset:{64*i}\n{l2}:")
            else:
                r += [f"ds_read_b64_tr_b16 v[{d}:{d+1}], v{vQ} offset:{so}", f"ds_read_b64_tr_b16 v[{d+2}:{d+3}], v{vQ} offset:{so + 1024}",
                      f"s_mov_b64 exec, vcc\nds_read_b128 v[{d}:{d+3}], v{vGt} offset:{64*i}\ns_mov_b64 exec, -1"]
            return r
        def mfmas(i):
            b = i & 1
            r = []
            for u in (range(7) if i < 19 else (6, 0, 1, 2, 3, 4, 5)):
                for s in range(4):
                    d = ACC + 16*u + 4*s
                    c = f"v[{d}:{d+3}]" if i > 0 else ("0" if u == 6 else f"v[{BI+4*u}:{BI+4*u+3}]")
                    r.append(f"v_mfma_f32_16x16x32_bf16 v[{d}:{d+3}], v[{WB+28*b+4*u}:{WB+28*b+4*u+3}], v[{XB+16*b+4*s}:{XB+16*b+4*s+3}], {c}")
            return r
        unpack = [f"s_waitcnt vmcnt({(3 if TOUCH == 2 else 0) + (4 if RD < 0 else 0) + {0: 0, 1: 8, 2: 3}[PF]})"]
        for u in range(6):
            p = BI + 4*u
            unpack += [f"v_lshlrev_b32 v{p}, 16, v{p+2}", f"v_and_b32 v{p+1}, 0xffff0000, v{p+2}", f"v_lshlrev_b32 v{p+2}, 16, v{p+3}", f"v_and_b32 v{p+3}, 0xffff0000, v{p+3}"]
        RP = BI
        rp_reads = []
        for u in range(4):
            rp_reads += [f"ds_read_b64_tr_b16 v[{RP+4*u}:{RP+4*u+1}], v{vRr} offset:{32*u}", f"ds_read_b64_tr_b16 v[{RP+4*u+2}:{RP+4*u+3}], v{vRr} offset:{32*u + 2048}"]
        rp_st = [f"buffer_store_dwordx4 v[{RP+4*u}:{RP+4*u+3}], v{vL}, {WSR}, s{dsts[u]} offen sc1" for u in range(4)]
        z = [f"s_lshl_b32 s{t}, s{sPIDX}, 9", f"s_mul_i32 s{t+1}, s{sWAVE}, {WS_KVP}", f"s_add_u32 s{t}, s{t}, s{t+1}", f"s_cmp_lt_u32 s{sWAVE}, 2", f"s_cselect_b32 s{t}, s{t}, {BIG}"] + \
            [f"v_mov_b32 v{RP+16+k}, 0" for k in range(4)] + \
            [f"s_mov_b32 exec_hi, 0\nbuffer_store_dwordx4 v[{RP+16}:{RP+19}], v{vL}, {WSR}, s{t} offen sc1\ns_mov_b32 exec_hi, -1"]
        k1, k2, k3, k4 = [a.newlabel("L_r2") for _ in range(4)]
        dma1 = [f"s_lshl_b32 s{t+3}, s{sWAVE}, 12"]
        for j in range(4):
            dma1.append(f"s_add_u32 m0, s{t+3}, {SCR + 1024*j}\ns_nop 0\nbuffer_load_dwordx4 v{vRd}, s[{SRD_W}:{SRD_W+3}], s{sSrc1} offen lds\ns_add_u32 s{sSrc1}, s{sSrc1}, 10240")
        rp_reads2 = [l.replace("offset:", "offset:8192+") for l in rp_reads]
        dma2 = f"s_cmp_eq_u32 s{sK2}, 0\ns_cbranch_scc1 {k1}\n"
        for j in range(4):
            dma2 += f"s_add_u32 m0, s{t+3}, {SCR + 8192 + 1024*j}\ns_nop 0\nbuffer_load_dwordx4 v{vRd}, s[{SRD_M}:{SRD_M+3}], s{sSrc2} offen lds\n"
            if j < 3: dma2 += f"s_add_u32 s{sSrc2}, s{sSrc2}, " + (f"s{sInc2}" if j == 1 else "10240") + "\n"
        dma2 += k1 + ":"
        st2 = f"s_cmp_eq_u32 s{sK2}, 0\ns_cbranch_scc1 {k2}\ns_cmp_eq_u32 s{sK2}, 2\ns_cbranch_scc1 {k3}\n"
        st2 += "".join(f"buffer_store_dwordx4 v[{RP+4*u}:{RP+4*u+3}], v{vL}, {WSR}, s{d2+u} offen sc1\n" for u in range(4))
        st2 += f"s_branch {k2}\n{k3}:\nv_lshrrev_b32 v{vT}, 1, v{vL}\n"
        for u in range(4):
            st2 += f"buffer_store_dwordx2 v[{RP+4*u}:{RP+4*u+1}], v{vT}, {WSR}, s{d2+u} offen sc1\ns_add_u32 s{d2+u}, s{d2+u}, 12800\n"
            st2 += f"buffer_store_dwordx2 v[{RP+4*u+2}:{RP+4*u+3}], v{vT}, {WSR}, s{d2+u} offen sc1\n"
        st2 += k2 + ":"
        sk, sk2 = a.newlabel("L_s1a"), a.newlabel("L_s1b")
        arr = [f"s_cmp_lg_u32 s{sWAVE}, 0", f"s_cbranch_scc1 {sk}",
               f"s_mov_b32 s{SRD_D}, s{pDBG}", f"s_mov_b32 s{SRD_D+1}, s{pDBG+1}", f"s_mov_b32 s{SRD_D+2}, 256", f"s_mov_b32 s{SRD_D+3}, 0x20000",
               f"v_mov_b32 v{vT}, 1", f"s_mov_b64 exec, 1\nbuffer_atomic_add v{vT}, v{vL}, s[{SRD_D}:{SRD_D+3}], 0 offen sc0 sc1\ns_mov_b64 exec, -1", sk + ":"]
        arr2 = [f"s_cmp_lg_u32 s{sWAVE}, 0", f"s_cbranch_scc1 {sk2}", "s_waitcnt vmcnt(0)", f"v_readfirstlane_b32 s{t}, v{vT}", f"v_mov_b32 v{vT+1}, 1",
                f"s_cmp_lg_u32 s{t}, 127", f"s_cbranch_scc1 {sk2}",
                f"s_mov_b32 s{SRD_D}, s{pDBG}", f"s_mov_b32 s{SRD_D+1}, s{pDBG+1}", f"s_mov_b32 s{SRD_D+2}, 256", f"s_mov_b32 s{SRD_D+3}, 0x20000",
                f"s_mov_b64 exec, 1\nbuffer_store_dword v{vT+1}, v{vL}, s[{SRD_D}:{SRD_D+3}], 0 offen offset:128 sc1\ns_mov_b64 exec, -1", sk2 + ":"]
        if RD < 0:
            for l in dma1 + [dma2]: a(l)
        if PF: self.prefetch(vL, 240, S=SRD_D)
        hi, lo = (["s_setprio 3"], ["s_setprio 0"]) if STPRIO else ([], [])
        extra = {0: ([], unpack, []), RS: (["s_waitcnt vmcnt(0)"], rp_reads, []), RS+1: (hi, rp_st + rp_reads2, []),
                 RS+2: ([], [st2] + z, lo), S1AT-1: ([], [], ["s_waitcnt vmcnt(0)"]), S1AT: (arr, [], []), S1AT+2: (arr2, [], [])}
        if LRP:
            a(f"s_lshl_b32 s{t}, s{sWAVE}, 6\ns_add_u32 s{t}, s{t}, {MBOX}\nv_mov_b32 v8, s{t}")
            for u in range(4): a(f"v_mov_b32 v{12+u}, s{dsts[u]}\nv_mov_b32 v{16+u}, s{d2+u}")
            a(f"v_mov_b32 v20, s{sK2}\nds_write_b128 v8, v[12:15]\nds_write_b128 v8, v[16:19] offset:16\nds_write_b32 v8, v20 offset:32\ns_waitcnt lgkmcnt(0)")
            extra = {0: extra[0], 2*LRP - 1: ([], [], ["s_waitcnt vmcnt(0)"])}
        if SPREAD:
            R2 = [216, 220, 240, 244]
            rd2 = []
            for u in range(4):
                rd2 += [f"ds_read_b64_tr_b16 v[{R2[u]}:{R2[u]+1}], v{vRr} offset:{8192 + 32*u}", f"ds_read_b64_tr_b16 v[{R2[u]+2}:{R2[u]+3}], v{vRr} offset:{8192 + 32*u + 2048}"]
            zz = [l.replace(f"v{RP+16}", "v248").replace(f"v{RP+17}", "v249").replace(f"v{RP+18}", "v250").replace(f"v{RP+19}", "v251").replace(f"v[{RP+16}:{RP+19}]", "v[248:251]") for l in z]
            pre2 = [f"v_lshrrev_b32 v{vT+1}, 1, v{vL}"]
            def st2u(u):
                k5, k6 = a.newlabel("L_r2"), a.newlabel("L_r2")
                return (f"s_cmp_eq_u32 s{sK2}, 1\ns_cbranch_scc0 {k5}\nbuffer_store_dwordx4 v[{R2[u]}:{R2[u]+3}], v{vL}, {WSR}, s{d2+u} offen sc1\n{k5}:\n"
                        f"s_cmp_eq_u32 s{sK2}, 2\ns_cbranch_scc0 {k6}\nbuffer_store_dwordx2 v[{R2[u]}:{R2[u]+1}], v{vT+1}, {WSR}, s{d2+u} offen sc1\ns_add_u32 s{d2+u}, s{d2+u}, 12800\n"
                        f"buffer_store_dwordx2 v[{R2[u]+2}:{R2[u]+3}], v{vT+1}, {WSR}, s{d2+u} offen sc1\n{k6}:")
            extra = {0: extra[0], RS: (["s_waitcnt vmcnt(0)"], rp_reads + rd2 + pre2 + zz, []), S1AT: extra[S1AT], S1AT+2: extra[S1AT+2]}
            if SPREAD == 1:
                for u in range(4): extra[RS+1+u] = ([], [rp_st[u], st2u(u)], [])
            else:
                for u in range(4):
                    extra[RS+1+2*u] = ([], [rp_st[u]], []); extra[RS+2+2*u] = ([], [st2u(u)], [])
            e_ = extra.get(S1AT-1, ([], [], []))
            extra[S1AT-1] = (e_[0], e_[1], ["s_waitcnt vmcnt(0)"])
        if RD > 0: extra[RD] = ([], dma1 + [dma2], [])
        if RD == 0: extra[0] = ([], unpack + dma1 + [dma2], [])
        self.main_loop(reads, mfmas, extra, NRE, [vH0, vH1, vQ])
        if EPRIO: a(f"s_setprio {EPRIO}")
        TM = XB
        a("s_nop 3")
        labG, labE = a.newlabel("L_epG"), a.newlabel("L_epE")
        a(f"s_cbranch_vccnz {labG}")
        self.consts("phi")
        for sp in range(2):
            e = ACC + 96 + 8*sp
            for l in self.phi_quad(e, e, TM): a(l)
            for l in self.phi_quad(e + 4, e + 2, TM + 4): a(l)
            a(f"buffer_store_dwordx4 v[{e}:{e+3}], v{vL}, {WSR}, s{sPq} offen offset:{1024*sp} sc1")
        a(f"s_branch {labE}")
        a.label(labG)
        a(f"s_cmp_eq_u32 s{sGs}, 0\ns_cbranch_scc1 {labE}")
        G = ACC + 96
        a(f"v_cmp_le_u32 vcc, 16, v{vLane}\nv_cmp_le_u32 s[{t+2}:{t+3}], 32, v{vLane}\nv_cmp_le_u32 s[{t+4}:{t+5}], 48, v{vLane}\ns_nop 0")
        a(f"v_cndmask_b32 v{G}, v{G}, v{G+4}, vcc\nv_cndmask_b32 v{G}, v{G}, v{G+8}, s[{t+2}:{t+3}]\nv_cndmask_b32 v{G}, v{G}, v{G+12}, s[{t+4}:{t+5}]")
        a(f"s_mov_b32 s{t}, 0x42700000\nv_min_f32 v{G}, s{t}, v{G}\nv_max_f32 v{G}, -s{t}, v{G}\nv_mul_f32 v{G}, s{cL2E}, v{G}\nv_exp_f32 v{G}, v{G}")
        a(f"s_lshl_b32 s{t}, s{sRb64}, 8\ns_add_u32 s{t}, s{t}, {WS_G}\nv_add_f32 v{G+2}, 1.0, v{G}\nv_rcp_f32 v{G+2}, v{G+2}\nv_lshlrev_b32 v{G+1}, 2, v{vLane}\ns_add_u32 s{t+1}, s{t}, 8192")
        a(f"buffer_store_dword v{G}, v{G+1}, {WSR}, s{t} offen sc1\nbuffer_store_dword v{G+2}, v{G+1}, {WSR}, s{t+1} offen sc1")
        a.label(labE)
        self.consts("mish")
        for L in range(3):
            for s in range(4):
                e, o = ACC + 32*L + 4*s, ACC + 32*L + 16 + 4*s
                for l in self.mish_quad(e, e, TM + 8*(s & 1)): a(l)
                for l in self.mish_quad(o, e + 2, TM + 4 + 8*(s & 1)): a(l)
                if DIAG != 1: a(f"buffer_store_dwordx4 v[{e}:{e+3}], v{vL}, {WSR}, s{sAct+L} offen offset:{1024*s} {'' if DIAG == 2 else 'sc1'}")
            if L == 0 and EARLYQ:
                a("s_waitcnt vmcnt(4)")
                self.signal(sF2, vT)
            if LFLAG and L >= 1:
                a(f"s_waitcnt vmcnt({4 if L == 1 else 5})")
                self.signal(sF1, vT, 4*(L - 1))
        a(f"v_mov_b32 v0, v{vLane}")
        self.stamp(3)
        self.finish1([sF1] if EARLYQ else [sF1, sF2], strict=bool(STRICTP), late8=True)

    def compute_KV(self):
        a = self.a
        t = T0
        ACC, XB, WB = 0, 112, 128
        vX0, vX1, vK, vQ0, vL = 240, 241, 242, 243, 247
        vLane = 253
        sPq, sF2, sRec = 72, 73, 74
        a(f"v_mov_b32 v{vLane}, v0")
        a(f"v_and_b32 v1, 15, v0\nv_lshrrev_b32 v2, 4, v0\nv_lshrrev_b32 v3, 1, v1\nv_xor_b32 v3, v3, v2\nv_lshlrev_b32 v3, 4, v3\nv_lshl_add_u32 v3, v1, 7, v3")
        a(f"s_lshl_b32 s{t}, s{sWAVE}, 12\nv_add_u32 v{vX0}, s{t}, v3\nv_xor_b32 v{vX1}, 64, v{vX0}")
        a(f"v_lshrrev_b32 v3, 2, v0\nv_and_b32 v4, 3, v0\nv_lshlrev_b32 v4, 3, v4")
        a(f"v_mul_u32_u24 v5, 160, v3\nv_add_u32 v5, v5, v4\nv_add_u32 v{vK}, {WR}, v5")
        a(f"v_lshl_add_u32 v5, v3, 7, v4\nv_bfe_u32 v6, v0, 3, 2\nv_lshl_add_u32 v5, v6, 5, v5\nv_add_u32 v{vQ0}, {WR+10240}, v5")
        for u in range(1, 4): a(f"v_xor_b32 v{vQ0+u}, {32*u}, v{vQ0}")
        a(f"v_lshlrev_b32 v{vL}, 4, v0")
        a(f"s_lshr_b32 s{t}, s{sWAVE}, 1\ns_lshl1_add_u32 s{t+1}, s{sRB}, s{t}")
        a(f"s_lshl_b32 s{sF2}, s{t+1}, 7\ns_add_u32 s{sF2}, s{sF2}, {CNT_PQ}")
        a(f"s_mul_i32 s{t+1}, s{t+1}, 40\ns_lshl2_add_u32 s{t+1}, s{sGRP}, s{t+1}\ns_and_b32 s{t}, s{sWAVE}, 1\ns_lshl1_add_u32 s{t+1}, s{t+1}, s{t}\ns_lshl_b32 s{t+1}, s{t+1}, 10\ns_add_u32 s{sPq}, s{t+1}, {WS_PQ}")
        a(f"s_lshl2_add_u32 s{t}, s{sGRP}, s{sWAVE}\ns_lshl_b32 s{sF1}, s{t}, 7\ns_add_u32 s{sF1}, s{sF1}, {CNT_KV}")
        a(f"s_mul_i32 s{t}, s{t}, 1792\ns_add_u32 s{sRec}, s{t}, {WS_KVP}")
        a(f"s_mov_b32 s{cL2E}, 0x3fb8aa3b\ns_mov_b32 s{cL2E+1}, 0x3fb8aa3b")
        self.consts("phi")
        a("s_waitcnt lgkmcnt(0)")
        self.stamp(0)
        self.srd(SRD_WS, pWS, WS_SIZE)
        if TOUCH: self.touch(vLane, 248)
        if PF: self.prefetch(vL, 248)
        def reads(i):
            b = i & 1; so = (i % 3) * WSLOT
            xs = XR + ((i >> 1) % 3) * 16384
            r = [f"ds_read_b128 v[{XB+8*b+4*s}:{XB+8*b+4*s+3}], v{vX1 if i & 1 else vX0} offset:{xs + 2048*s}" for s in range(2)]
            for u in range(14):
                d = WB + 56*b + 4*u
                if u < 10: base, off, d2 = vK, 5120*(u // 5) + 32*(u % 5), 2560
                else: base, off, d2 = vQ0 + u - 10, 0, 2048
                r.append(f"ds_read_b64_tr_b16 v[{d}:{d+1}], v{base} offset:{so + off}")
                r.append(f"ds_read_b64_tr_b16 v[{d+2}:{d+3}], v{base} offset:{so + off + d2}")
            return r
        def mfmas(i):
            b = i & 1
            r = []
            order = list(range(14)) if i < 19 else [5, 6, 7, 8, 9, 0, 1, 2, 3, 4, 10, 11, 12, 13]
            for u in order:
                for s in range(2):
                    d = ACC + 8*u + 4*s
                    c = f"v[{d}:{d+3}]" if i > 0 else "0"
                    w, x = f"v[{WB+56*b+4*u}:{WB+56*b+4*u+3}]", f"v[{XB+8*b+4*s}:{XB+8*b+4*s+3}]"
                    r.append(f"v_mfma_f32_16x16x32_bf16 v[{d}:{d+3}], {x if u < 10 else w}, {w if u < 10 else x}, {c}")
            return r
        self.main_loop(reads, mfmas, {}, 24, [vK, vQ0, vQ0+1, vQ0+2, vQ0+3])
        TM = XB
        vEx = vX0
        a(f"s_mul_i32 s{t}, s{sWAVE}, 10240\nv_add_u32 v{vEx}, s{t}, v{vL}")
        for u in range(5, 10):
            e = ACC + 8*u
            a(f"v_cvt_pk_bf16_f32 v{e}, v{e}, v{e+1}\nv_cvt_pk_bf16_f32 v{e+1}, v{e+2}, v{e+3}\nv_cvt_pk_bf16_f32 v{e+2}, v{e+4}, v{e+5}\nv_cvt_pk_bf16_f32 v{e+3}, v{e+6}, v{e+7}")
            a(f"ds_write_b128 v{vEx}, v[{e}:{e+3}] offset:{XR + 1024*u}")
        for u in range(5):
            e = ACC + 8*u
            for l in self.phi_quad(e, e, TM): a(l)
            for l in self.phi_quad(e + 4, e + 2, TM + 4): a(l)
            a(f"ds_write_b128 v{vEx}, v[{e}:{e+3}] offset:{XR + 1024*u}")
        a(f"s_lshl_b32 s{t}, s{sWAVE}, 10\nv_add_u32 v{vEx}, s{t}, v{vL}")
        ONE = WB + 64
        for k in range(4): a(f"v_mov_b32 v{ONE+k}, 0x3f803f80")
        if K1LDS:
            lp, dn = a.newlabel("L_k1"), a.newlabel("L_k1d")
            a(f"v_mov_b32 v{vK}, {K1C}\nv_mov_b32 v{vQ0}, 1\ns_mov_b32 s{t}, 0\ns_waitcnt lgkmcnt(0)\ns_mov_b64 exec, 1\nds_add_u32 v{vK}, v{vQ0}\ns_mov_b64 exec, -1")
            a.label(lp)
            a(f"ds_read_b32 v{vQ0}, v{vK}\ns_add_u32 s{t}, s{t}, 1\ns_waitcnt lgkmcnt(0)\nv_readfirstlane_b32 s{t+1}, v{vQ0}\ns_cmp_ge_u32 s{t}, {SPIN}\ns_cbranch_scc1 {dn}\ns_cmp_lt_u32 s{t+1}, 4\ns_cbranch_scc1 {lp}")
            a.label(dn)
        else:
            a("s_waitcnt lgkmcnt(0)\ns_barrier")
        FR = WB
        for g in range(4):
            for j, off in enumerate((0, 1024, 5120, 6144)):
                a(f"ds_read_b128 v[{FR+16*g+4*j}:{FR+16*g+4*j+3}], v{vEx} offset:{XR + 10240*g + off}")
        AD = WB + 72
        dc, BG, ev, R = AD, AD + 2, AD + 3, AD + 8
        ad = [f"v_lshrrev_b32 v{dc}, 4, v{vLane}", f"v_and_b32 v{ev}, 15, v{vLane}", f"v_mov_b32 v{BG}, 0x10000", f"v_cmp_eq_u32 vcc, 0, v{ev}",
              f"v_mov_b32 v{R}, 320", f"v_subrev_u32 v{dc}, s{sWAVE}, v{dc}", f"v_cndmask_b32 v{ev+2}, v{BG}, v{R}, vcc", f"v_add_u32 v{dc+1}, 4, v{dc}",
              f"s_lshl_b32 s{t}, s{sWAVE}, 2", f"v_subrev_u32 v{ev}, s{t}, v{ev}", f"v_add_u32 v{ev+1}, 16, v{ev}",
              f"s_lshl_b32 s{t+4}, s{sWAVE}, 11", f"s_add_u32 s{t+4}, s{t+4}, {STG}"]
        for k in range(2):
            ad += [f"v_cmp_gt_u32 vcc, 5, v{dc+k}", f"v_cmp_gt_u32 s[{t+2}:{t+3}], 20, v{ev+k}", f"v_mul_u32_u24 v{dc+k}, 336, v{dc+k}", f"v_lshlrev_b32 v{ev+k}, 4, v{ev+k}",
                   f"v_cndmask_b32 v{dc+k}, v{BG}, v{dc+k}, vcc", f"v_cndmask_b32 v{ev+k}, v{BG}, v{ev+k}, s[{t+2}:{t+3}]"]
        for k in range(2):
            ad += [f"v_add_u32 v{R+3*k+b}, v{dc+k}, v{ev+b}" for b in range(3)]
            ad += [f"v_min_u32 v{R+3*k+b}, 1680, v{R+3*k+b}" for b in range(3)]
            ad += [f"v_add_u32 v{R+3*k+b}, s{t+4}, v{R+3*k+b}" for b in range(3)]
        ad += [f"v_lshlrev_b32 v{dc}, 2, v{vLane}", f"v_add_u32 v{vEx}, s{t+4}, v{dc}"]
        for l in ad[:20]: a(l)
        D = ACC
        mm = []
        for g in range(4):
            for k in range(2):
                for b in range(3):
                    d = D + 12*k + 4*b
                    B = f"v[{FR+16*g+8+4*b}:{FR+16*g+8+4*b+3}]" if b < 2 else f"v[{ONE}:{ONE+3}]"
                    mm.append(f"v_mfma_f32_16x16x32_bf16 v[{d}:{d+3}], v[{FR+16*g+4*k}:{FR+16*g+4*k+3}], {B}, {'0' if g == 0 else f'v[{d}:{d+3}]'}")
        a("s_waitcnt lgkmcnt(0)")
        for l in interleave(mm, ad[20:], 0, 16): a(l)
        def qmath(u):
            e = ACC + 8*u
            return self.phi_quad(e, e, TM) + self.phi_quad(e + 4, e + 2, TM + 4)
        q10 = qmath(10)
        for l in q10[:8]: a(l)
        for j in range(6): a(f"ds_write_b128 v{R+j}, v[{D+4*j}:{D+4*j+3}]")
        for l in q10[8:20]: a(l)
        a("s_waitcnt lgkmcnt(0)")
        for j in range(7): a(f"ds_read_b32 v{j}, v{vEx} offset:{256*j}")
        for l in q10[20:]: a(l)
        a("s_waitcnt lgkmcnt(0)")
        for j in range(7):
            if j == 6: a("s_mov_b32 exec_hi, 15")
            a(f"buffer_atomic_add_f32 v{j}, v{dc}, {WSR}, s{sRec} offen offset:{256*j} sc1")
        a("s_mov_b32 exec_hi, -1")
        a(f"s_add_u32 s{t}, s{sPq}, 4096")
        def qst(u):
            e = ACC + 8*(10 + u)
            a(f"buffer_store_dwordx4 v[{e}:{e+3}], v{vL}, {WSR}, s{sPq if u < 2 else t} offen offset:{2048*(u & 1)} sc1")
        qst(0)
        for u in (1, 2, 3):
            for l in qmath(10 + u): a(l)
            qst(u)
        a(f"v_mov_b32 v0, v{vLane}")
        self.stamp(3)
        self.finish1([sF1, sF2], strict=True)

    def setup2(self):
        a = self.a
        t = T0
        if MAP2 == "x2":
            a(f"s_bfe_u32 s{t+2}, s{sWG}, 0x20001\ns_bfe_u32 s{t+3}, s{sWG}, 0x30003\ns_lshl3_add_u32 s{sR64}, s{t+2}, s{t+3}")
            a(f"s_and_b32 s{t+2}, s{sWG}, 1\ns_lshr_b32 s{t+3}, s{sWG}, 6\ns_lshl2_add_u32 s{sC}, s{t+2}, s{t+3}")
        else:
            a(f"s_and_b32 s{t+2}, s{sWG}, 7\ns_bfe_u32 s{t+3}, s{sWG}, 0x20003\ns_lshl2_add_u32 s{sR64}, s{t+2}, s{t+3}\ns_lshr_b32 s{sC}, s{sWG}, 5")
        if FAKE == 1: a(f"s_and_b32 s{sR64}, s{sWG}, 7\ns_lshl_b32 s{sR64}, s{sR64}, 2\ns_mov_b32 s{sC}, 0")
        if FAKE == 2: a(f"s_mov_b32 s{sC}, 0")
        if FAKE == 3: a(f"s_and_b32 s{sR64}, s{sWG}, 7\ns_lshl_b32 s{sR64}, s{sR64}, 2")
        a(f"v_lshlrev_b32 v{vL16}, 4, v0\nv_add_u32 v{vL16b}, 4096, v{vL16}")
        if ROT2 == "none":
            a(f"s_mov_b32 s{t}, 0")
        elif ROT2 == "xor":
            a(f"s_lshr_b32 s{t}, s{sWG}, 3\ns_lshr_b32 s{t+1}, s{sWG}, 6\ns_xor_b32 s{t}, s{t}, s{t+1}\ns_and_b32 s{t}, s{t}, 1")
        elif ROT2 == "two":
            a(f"s_lshr_b32 s{t}, s{sWG}, 3\ns_lshr_b32 s{t+1}, s{sWG}, {6 if MAP2 == 'x2' else 5}\ns_xor_b32 s{t}, s{t}, s{t+1}\ns_and_b32 s{t}, s{t}, 1\ns_mul_i32 s{t}, s{t}, 3")
        elif MAP2 == "x2":
            a(f"s_and_b32 s{t}, s{sC}, 3\ns_mul_i32 s{t}, s{t}, 3\ns_lshr_b32 s{t}, s{t}, 1")
        else:
            a(f"s_mul_i32 s{t}, s{sC}, 3\ns_lshr_b32 s{t}, s{t}, 2")
        a(f"s_mul_i32 s{t+1}, s{sWAVE}, 6")
        a(f"s_mul_i32 s{t+2}, s{sC}, {48*5120}\ns_add_u32 s{t+2}, s{t+2}, {WS_W2R}")
        a(f"s_mul_i32 s{t+3}, s{sR64}, {48*4096}\ns_add_u32 s{t+3}, s{t+3}, {WS_ACT}")
        for i in range(6):
            a(f"s_add_u32 s{t+4}, s{t+1}, s{t}\ns_mul_i32 s{sB0+i}, s{t+4}, 5120\ns_add_u32 s{sB0+i}, s{sB0+i}, s{t+2}")
            a(f"s_lshl_b32 s{sA0+i}, s{t+4}, 12\ns_add_u32 s{sA0+i}, s{sA0+i}, s{t+3}")
            if i < 5 and ROT2 == "xor": a(f"s_xor_b32 s{t}, s{t}, {i ^ (i + 1)}")
            elif i < 5: a(f"s_add_u32 s{t}, s{t}, 1\ns_cmp_eq_u32 s{t}, 6\ns_cselect_b32 s{t}, 0, s{t}")
        a(f"s_lshl3_add_u32 s{sFa}, s{sR64}, s{sWAVE}\ns_lshl_b32 s{sFa}, s{sFa}, 7\ns_lshl_b32 s{sFq}, s{sR64}, 7\ns_add_u32 s{sFq}, s{sFq}, {CNT_PQ}")
        a(f"s_mul_i32 s{sPQb}, s{sR64}, 40\ns_mul_i32 s{t}, s{sWAVE}, 5\ns_add_u32 s{sPQb}, s{sPQb}, s{t}\ns_lshl_b32 s{sPQb}, s{sPQb}, 11\ns_add_u32 s{sPQb}, s{sPQb}, {WS_PQ}")
        a(f"s_lshl3_add_u32 s{sMb}, s{sC}, s{sWAVE}\ns_mul_i32 s{sMb}, s{sMb}, 12800\ns_add_u32 s{sMb}, s{sMb}, {WS_WOR}")
        a(f"s_mul_i32 s{sKv}, s{sWAVE}, 7168\ns_add_u32 s{sKv}, s{sKv}, {WS_KVP}\ns_lshl_b32 s{sFk}, s{sWAVE}, 9\ns_add_u32 s{sFk}, s{sFk}, {CNT_KV}")

    def preload_b(self, n0, n1, th=0):
        for n in range(n0, n1):
            if th and n < NTH: self.a(f"s_waitcnt vmcnt({th - 1})")
            i, jn = divmod(n, 5)
            d = BS + 20*i + 4*jn
            self.a(f"buffer_load_dwordx4 v[{d}:{d+3}], v{vL16 if jn < 4 else vL16b}, {WSR}, s{sB0+i} offen offset:{1024*jn if jn < 4 else 0} sc1")

    def stage_b(self):
        a = self.a
        t = T0
        a(f"s_mul_i32 s{t}, s{sT}, 20480\ns_add_u32 s{t}, s{t}, {BL}")
        for i in range(2, NB):
            a(f"s_sub_u32 s{t+1}, s{sB0+i}, 122880")
            for jn in range(5):
                if jn in (0, 4):
                    a(f"s_add_u32 m0, s{t}, {5120*(i-2) + 1024*jn}")
                    a(f"s_add_u32 s{t+1}, s{t+1}, 4096" if jn else "s_nop 0")
                if TH and NB*5 + 5*(i - 2) + jn < NTH: a(f"s_waitcnt vmcnt({TH - 1})")
                a(f"buffer_load_dwordx4 v{vL16}, {WSR}, s{t+1} offen offset:{1024*(jn % 4)} sc1 lds")
        a("s_waitcnt vmcnt(0)")

    def gemm2(self):
        a = self.a
        t = T0
        seq = []
        LN = 255
        def ldl(dst, n, v, so, off, tag):
            seq.append(tag)
            return [f"buffer_load_dword{ {1: '', 2: 'x2', 4: 'x4'}[n] } {vr(dst, n)}, v{v}, {WSR}, s{so} offen offset:{off} sc1"]
        def emit(L):
            for l in L: a(l)
        def wait(tag):
            last = max(n for n, x in enumerate(seq) if x == tag)
            a(f"s_waitcnt vmcnt({len(seq) - 1 - last})")
        def act(i):
            return sum((ldl(AB + 16*(i % 3) + 4*st, 4, vL16, sA0 + i, 1024*st, f"act{i}") for st in range(4)), [])
        def check(soff, target, sleep=None):
            ok = a.newlabel("L_ok")
            a(f"v_cmp_le_u32 vcc, {target}, v{vP+1}\ns_nop 1\ns_cmp_eq_u64 vcc, -1\ns_cbranch_scc1 {ok}")
            self.poll(soff, target, vP, vP + 1, sleep=sleep)
            a.label(ok)
        def dma(so, n, lds, tag):
            r = []
            for k in range(n):
                pre = ""
                if k % 4 == 0:
                    pre = f"s_add_u32 m0, s{sLB}, {lds + 1024*k}\n" + (f"s_add_u32 s{so}, s{so}, 4096\n" if k else "s_nop 0\n")
                r.append(pre + f"buffer_load_dwordx4 v{vL16}, {WSR}, s{so} offen offset:{1024*(k % 4)} sc1 lds"); seq.append(tag)
            return r
        def pq(base, sp):
            return sum((ldl(base + 20*sp + 4*tt, 4, vL16, (sPQb, t, t + 1)[tt >> 1], 2048*(tt & 1) + 1024*sp, f"pq{sp}") for tt in range(5)), [])
        def gld(va):
            return sum((ldl(vG + st, 1, va, t + 3, 64*st, "g") for st in range(4)), [])
        def lateb(i=5):
            if i < NB: return []
            r = sum((ldl(BS + 20*i + 4*jn, 4, vL16, sB0 + i, 1024*jn, f"act{i}") for jn in range(4)), [])
            return r + [f"s_add_u32 s{sB0+i}, s{sB0+i}, 4096"] + ldl(BS + 20*i + 16, 4, vL16, sB0 + i, 0, f"act{i}")
        chunks = [(0, 0), (0, 1), (1, 0), (1, 1), (1, 2), (2, 1), (2, 2), (2, 3), (3, 2), (3, 3), (4, 3), (3, 4), (4, 4)] + [("z", tt) for tt in range(5)]
        slot = dict(zip(chunks, [0, 1, 2, 3, 4, 7, 8, 9, 10, 11, 13, 14, 15, 16, 17, 18, 19, 20]))
        X, K0 = 24, 0
        ad = [f"v_and_b32 v{X}, 15, v{LN}", f"v_lshrrev_b32 v{X+1}, 4, v{LN}", f"s_add_u32 s{t+2}, s{sLB}, 13312", f"v_mul_u32_u24 v{X+3}, 336, v{X+1}", f"v_add_u32 v{X+3}, s{t+2}, v{X+3}",
              f"v_add_u32 v{X+18}, s{sLB}, v{vL16}", f"s_add_u32 s{t+2}, s{t+2}, 7056", f"v_mov_b32 v{X+13}, s{t+2}"] + [f"v_subrev_u32 v{X+13+k}, {1344*k}, v{X+13}" for k in range(1, 5)]
        for te in (0, 1, 2, 3, 4, "z"):
            if te == "z":
                ad += [f"v_and_b32 v{X+4}, 3, v{LN}", f"v_mul_u32_u24 v{X+5}, 112, v{X+4}", f"v_add_u32 v{X+6}, 320, v{X+3}", f"v_add_u32 v{X+5}, v{X+5}, v{X+6}"]
            else:
                ad += [f"v_add_u32 v{X+6}, {16*te}, v{X}", f"v_mul_u32_u24 v{X+4}, 3277, v{X+6}", f"v_lshrrev_b32 v{X+4}, 16, v{X+4}",
                       f"v_lshl_add_u32 v{X+6}, v{X+6}, 4, v{X+3}", f"v_mad_i32_i24 v{X+5}, v{X+4}, s{sN208}, v{X+6}"]
            ad += [f"v_mad_i32_i24 v{X+4}, v{X+4}, -5, v{X+1}"]
            mine = [(j, c) for j, c in enumerate(chunks) if c[0] == te]
            ad += [f"v_add_u32 v{X+8+n}, {4*c[1]}, v{X+4}" for n, (j, c) in enumerate(mine)]
            ad += [f"v_cmp_gt_u32 s[{t+4+2*n}:{t+5+2*n}], 5, v{X+8+n}" for n, (j, c) in enumerate(mine)]
            ad += ["s_nop 0"]
            ad += [f"v_cndmask_b32 v{K0+j}, v{X+13+c[1]}, v{X+5}, s[{t+4+2*n}:{t+5+2*n}]" for n, (j, c) in enumerate(mine)]
        mq = [t + 4, t + 6, t + 8]
        consts = [f"s_mov_b32 s{cE}, 0x358637bd", f"s_mov_b32 s{mq[0]}, 0xffff", f"s_mov_b32 s{mq[0]+1}, 0", f"s_mov_b32 s{mq[1]}, -1", f"s_mov_b32 s{mq[1]+1}, 0",
                  f"s_mov_b32 s{mq[2]}, -1", f"s_mov_b32 s{mq[2]+1}, 0xffff"]
        swaps = lambda R: [f"v_swap_b32 v{R+8*p+2+k}, v{R+8*p+4+k}" for p in range(2) for k in range(2)]
        K32 = lambda d, A, B, c: f"v_mfma_f32_16x16x32_bf16 v[{d}:{d+3}], v[{A}:{A+3}], v[{B}:{B+3}], {c}"
        K16 = lambda d, A, B: f"v_mfma_f32_16x16x16_bf16 v[{d}:{d+3}], v[{A}:{A+1}], v[{B}:{B+1}], v[{d}:{d+3}]"
        acc = lambda d: f"v[{d}:{d+3}]"
        def fqf(base):
            def fq(st, tt):
                R = base + 20*(st >> 1)
                return R + 8*(tt >> 1) + 4*(st & 1) + 2*(tt & 1) if tt < 4 else R + 16 + 2*(st & 1)
            return fq
        def gather(KAr, raw, KP, PQb, first):
            for j, c in enumerate(chunks):
                a(f"ds_read_b128 v[{raw(j)}:{raw(j)+3}], v{KAr+j} offset:{1344*c[1]}")
            emit(swaps(PQb) + swaps(PQb + 20))
            for j, c in enumerate(chunks):
                if j in (0, first): a(f"s_waitcnt lgkmcnt({18 - first if j == 0 else 0})")
                d, r = KP + 2*slot[c], raw(j)
                a(f"v_cvt_pk_bf16_f32 v{d}, v{r}, v{r+1}\nv_cvt_pk_bf16_f32 v{d+1}, v{r+2}, v{r+3}")
            for z in (5, 6, 12): a(f"v_mov_b32 v{KP+2*z}, 0\nv_mov_b32 v{KP+2*z+1}, 0")
        def scales(st, DN, SC):
            r = ([] if LATEORD else [f"v_add_f32 v{DN+k}, s{cE}, v{DN+k}" for k in range(4)]) + [f"v_rcp_f32 v{DN+k}, v{DN+k}" for k in range(4)]
            r += [f"v_mul_f32 v{DN+k}, v{vG+st}, v{DN+k}" for k in range(4)]
            return r + [f"v_cndmask_b32 v{SC[k]}, v{DN+k+1}, v{DN+k}, s[{mq[k]}:{mq[k]+1}]" for k in range(3)]
        def vtile(st, tt, o, DN, SC, fq):
            sc = (DN, SC[0], SC[1], SC[2], DN + 3)[tt]
            return [f"v_mul_f32 v{o+k}, v{sc}, v{o+k}" for k in range(4)] + [f"v_cvt_pk_bf16_f32 v{fq(st,tt)}, v{o}, v{o+1}", f"v_cvt_pk_bf16_f32 v{fq(st,tt)+1}, v{o+2}, v{o+3}"]
        def mlp(i, zero, sts=None):
            order = [(jn, st) for jn in range(5) for st in range(4)] if sts is None else [(jn, st) for st in sts for jn in range(5)]
            return [K32(20*st + 4*jn, BS + 20*i + 4*jn, AB + 16*(i % 3) + 4*st, "0" if zero else acc(20*st + 4*jn)) for jn, st in order]
        TA, RA, vRW = 224, 170, vP
        rw = [f"v_and_b32 v{TA}, 15, v{LN}", f"v_mul_u32_u24 v{TA}, 160, v{TA}", f"v_bfe_u32 v{TA+1}, v{LN}, 5, 1", f"v_bfe_u32 v{vRW}, v{LN}, 2, 1", f"v_xor_b32 v{TA+1}, v{TA+1}, v{vRW}",
              f"v_lshl_add_u32 v{TA}, v{TA+1}, 4, v{TA}", f"v_bfe_u32 v{TA+1}, v{LN}, 4, 1", f"v_mul_u32_u24 v{TA+1}, 10240, v{TA+1}", f"v_add3_u32 v{vRW}, v{TA}, v{TA+1}, s{sLB}"]
        wrl = lambda st: [f"ds_write_b128 v{vRW}, v[{20*st+4*jn}:{20*st+4*jn+3}] offset:{2560*st + 32*jn}" for jn in range(5)]
        rd = [f"s_mul_i32 s{t}, s{sWAVE}, 80", f"v_add_u32 v{RA}, s{t}, v{LN}", f"v_add_u32 v{RA+1}, 64, v{RA}",
              f"s_lshl_b32 s{t+2}, s{sR64}, 8", f"s_add_u32 s{t+2}, s{t+2}, {WS_G + 8192}"]
        for k in range(2):
            rd += [f"v_mul_u32_u24 v{RA+2}, 6554, v{RA+k}", f"v_lshrrev_b32 v{RA+2}, 16, v{RA+2}", f"v_mad_i32_i24 v{RA+3}, v{RA+2}, -10, v{RA+k}", f"v_lshlrev_b32 v{TA+2+k}, 2, v{RA+2}",
                   f"buffer_load_dword v{TA+2+k}, v{TA+2+k}, {WSR}, s{t+2} offen sc1",
                   f"v_bfe_u32 v{RA+6}, v{RA+2}, 2, 1", f"v_xor_b32 v{RA+k}, v{RA+k}, v{RA+6}",
                   f"v_mul_u32_u24 v{RA+2}, 1280, v{RA+2}", f"v_lshl_add_u32 v{RA+4+k}, v{RA+3}, 4, v{RA+2}", f"v_lshlrev_b32 v{RA+k}, 4, v{RA+k}"]
        rd += [f"v_add_u32 v{RA+6}, 61440, v{RA}", f"v_add_u32 v{RA+7}, 61440, v{RA+1}", f"v_add_u32 v{RA+8}, 122880, v{RA}", f"v_add_u32 v{RA+9}, 122880, v{RA+1}"]
        rd += [f"s_mov_b32 s{SRD_M}, s{pOUT}", f"s_mov_b32 s{SRD_M+1}, s{pOUT+1}", f"s_mov_b32 s{SRD_M+2}, {2048*640*2}", f"s_mov_b32 s{SRD_M+3}, 0x20000",
               f"s_mul_i32 s{t}, s{sR64}, 81920", f"s_mul_i32 s{t+1}, s{sC}, 160", f"s_add_u32 s{t}, s{t}, s{t+1}"]
        def flagvec(vt, with_act):
            a(f"v_lshlrev_b32 v{vP}, 2, v{LN}\nv_add_u32 v{vP}, s{sFk}, v{vP}\nv_mov_b32 v{vt}, 1\nv_cmp_le_u32 vcc, 4, v{LN}\nv_mov_b32 v{vt+1}, s{sFq}\ns_add_u32 s{t+2}, s{sFa}, 8")
            a(f"v_cndmask_b32 v{vP}, v{vP}, v{vt+1}, vcc")
            if with_act:
                a(f"v_cmp_lt_u32 vcc, 4, v{LN}\nv_mov_b32 v{vt+1}, s{t+2}\ns_nop 0\nv_cndmask_b32 v{vP}, v{vP}, v{vt+1}, vcc\nv_cndmask_b32 v{vt}, v{vt}, 2, vcc")

        a(f"s_setprio 0\nv_lshrrev_b32 v{LN}, 4, v{vL16}")
        a(f"s_xor_b32 s{sLB}, s{sWAVE}, 4\ns_mul_i32 s{sLB}, s{sLB}, 20480\ns_mov_b32 s{sN208}, -208")
        a(f"s_lshl_b32 s{t+3}, s{sR64}, 8\ns_add_u32 s{t+3}, s{t+3}, {WS_G}\ns_add_u32 s{t}, s{sPQb}, 4096\ns_add_u32 s{t+1}, s{sPQb}, 8192")
        if LFLAG: a(f"v_and_b32 v{vP}, 1, v{LN}\nv_lshlrev_b32 v{vP}, 2, v{vP}")
        else: a(f"v_mov_b32 v{vP}, 0")
        if ADPRE: emit(ad)
        a("s_barrier")
        self.stamp(4)
        if WOPOS != "pre": a(f"buffer_load_dword v{vP+1}, v{vP}, {WSR}, s{sFa} offen sc1")
        self.pickup()
        if WOPOS == "pre":
            a("s_waitcnt lgkmcnt(0)")
            emit(dma(sMb, 13, 0, "wo"))
        if not ADPRE: emit(ad)
        a("s_waitcnt lgkmcnt(0)")
        for k in range(5): a(f"ds_write_b128 v{X+18}, v[{K0+4*k}:{K0+4*k+3}] offset:{13312 + 1024*k}")
        if WOPOS == "pre": self.poll(f"s{sFa}", 2, vP, vP + 1)
        else:
            a("s_waitcnt vmcnt(0)")
            if LFLAG:
                sk = a.newlabel("L_sig")
                a(f"s_cmp_ge_u32 s{sWAVE}, 4\ns_cbranch_scc1 {sk}")
                self.stamp(5)
                self.signal(sF1, 46); self.signal(32, 46)
                a.label(sk)
            check(f"s{sFa}", 2)
        self.stamp(6)
        PR = {"a": {-1: 3, 2: 2, 5: 1, 6: 0}, "b": {-1: 3, 1: 2, 3: 1, 6: 0}, "c": {-1: 1, 5: 0}, "d": {-1: 2, 5: 1, 7: 0}, "e": {-1: 3, 3: 2, 6: 1, 8: 0}}.get(PRIO, {})
        prio = lambda k: a(f"s_setprio {PR[k]}") if k in PR else None
        prio(-1)
        emit(act(0))
        a(f"v_lshlrev_b32 v{vP}, 7, v{LN}\nv_add_u32 v{vP}, s{sFk}, v{vP}\nv_cmp_le_u32 vcc, 4, v{LN}\nv_mov_b32 v{vG+1}, s{sFq}\nv_mov_b32 v{vG}, 16")
        a(f"v_cndmask_b32 v{vP}, v{vP}, v{vG+1}, vcc\nv_cndmask_b32 v{vG}, v{vG}, 25, vcc")
        if LFLAG: a(f"v_cmp_lt_u32 vcc, 4, v{LN}\ns_add_u32 s{t+2}, s{sFa}, 8\nv_mov_b32 v{vG+1}, s{t+2}\nv_cndmask_b32 v{vP}, v{vP}, v{vG+1}, vcc\nv_cndmask_b32 v{vG}, v{vG}, 2, vcc")
        fv = lambda: (a(f"buffer_load_dword v{vP+1}, v{vP}, {WSR}, 0 offen sc1"), seq.append("fv"))
        if FVAT < 0: fv()
        emit(act(1) + act(2))
        fill = (lambda: dma(sMb, 13, 0, "wo")) if WOPOS == "s0" else (lambda: lateb(3))
        for i in range(5):
            prio(i)
            wait(f"act{i}")
            if TAILDBG == 2 and i < 4: self.stamp((2, 3, 5, 7)[i], "tail")
            emit(interleave(mlp(i, i == 0), fill() if fill else []))
            fill = None
            if i == 0 and WOPOS == "s1": fill = lambda: dma(sMb, 13, 0, "wo")
            if i == 3 and WOPOS == "s4": fill = lambda: dma(sMb, 13, 0, "wo")
            if i == FVAT: fv()
            if i < 2 and not (LFLAG and i == 1): emit(act(i + 3))
            if i == PQAT:
                wait("fv")
                check("0", f"v{vG}", 8)
                if TAILDBG == 2: self.stamp(4, "tail")
                if LFLAG: emit(act(4))
                a(f"v_and_b32 v{vP+1}, 15, v{LN}\nv_lshlrev_b32 v{vP+1}, 2, v{vP+1}")
                f1 = lambda: lateb(4) + pq(PQR, 0) + pq(PQR, 1) + gld(vP + 1)
                if FILLI and i < 2: fill = f1
                else: emit(f1())
            if i == 2:
                a(f"v_add_u32 v{KA+19}, s{sLB}, v{vL16}")
                for k in range(5): a(f"ds_read_b128 v[{KA+4*k}:{KA+4*k+3}], v{KA+19} offset:{13312 + 1024*k}")
                a("s_waitcnt lgkmcnt(0)")
                f2 = lambda: dma(sKv, 7, 13312, "kv") + (act(5) + lateb() if WOPOS != "x" else []) + (dma(sMb, 13, 0, "wo") if WOPOS == "s3" else [])
                if FILLI: fill = f2
                else: emit(f2())
        self.stamp(7)
        prio(5)
        emit(consts)
        KP = 120
        wait("kv")
        self.stamp(8)
        gather(KA, lambda j: 200 + 4*j if j < 8 else 140 + 4*(j - 8), KP, PQR, 8)
        Oset = {1: ([200, 204, 208, 212, 216], 220), 0: ([162, 166, 170, 174, 224], 228)}
        SC = [178, 179, vP + 1]
        fq = fqf(PQR)
        S = lambda k: KP + 2*k
        def Xb(st):
            O, DN = Oset[st & 1]
            p0, p1, ps = fq(st, 0), fq(st, 2), fq(st, 4)
            return [K32(DN, S(16), p0, acc(196) if LATEORD else "0"), K32(O[3], S(10), p1, "0"), K32(O[4], S(12), p1, "0"), K32(DN, S(18), p1, acc(DN)),
                    K32(O[0], S(0), p0, "0"), K32(O[1], S(2), p0, "0"), K32(O[2], S(6), p0, "0"), K32(O[1], S(4), p1, acc(O[1])), K32(O[2], S(8), p1, acc(O[2])),
                    "s_nop 0", K16(DN, S(20), ps), K16(O[3], S(14), ps), K16(O[4], S(15), ps)]
        def Vb(st):
            O, DN = Oset[st & 1]
            return scales(st, DN, SC) + sum((vtile(st, tt, O[tt], DN, SC, fq) for tt in range(5)), [])
        def Yb(st):
            r = []
            for p in range(2):
                r += [K32(20*st + 4*jn, MR + 4*(2*jn + p), fq(st, 2*p), acc(20*st + 4*jn)) for jn in range(5)]
            return r + ["s_nop 1"] + [K16(20*st + 4*jn, MR + 40 + 2*jn, fq(st, 4)) for jn in range(5)]
        a("s_nop 1")
        late = (act(5) + lateb() + dma(sMb, 13, 0, "wo")) if WOPOS == "x" else []
        if LATEORD:
            assert NB == 5 and WOPOS == "x"
            lastb = late[8:10]; late = late[:8] + late[10:]
            i5 = seq.index("act5") + 8; seq.pop(i5); seq.append("act5")
            for k in range(4): a(f"v_mov_b32 v{196+k}, 0x358637bd")
            a("s_nop 1")
        cuts = [0] + [len(late)*c//100 for c in XSPLIT] + [len(late)]
        emit(interleave(Xb(0), late[cuts[0]:cuts[1]]))
        for st in range(1, 4):
            x = Xb(st)
            emit(interleave(x[:6], late[cuts[st]:cuts[st+1]]) + (lastb if LATEORD and st == 3 else []) + interleave(x[6:], Vb(st - 1)))
        a(f"v_add_u32 v{TA}, s{sLB}, v{vL16}\nv_lshlrev_b32 v{TA+1}, 3, v{LN}\nv_add_u32 v{TA+1}, s{sLB}, v{TA+1}")
        wor = [f"ds_read_b128 v[{MR+4*f}:{MR+4*f+3}], v{TA} offset:{1024*f}" for f in range(10)]
        wor += [f"ds_read_b64 v[{MR+40+2*jn}:{MR+41+2*jn}], v{TA+1} offset:{10240 + 512*jn}" for jn in range(5)]
        prio(6)
        if WOPOS in ("s3", "s4", "x"):
            wait("act5")
            emit(interleave(mlp(5, False), Vb(3)))
            a("s_waitcnt vmcnt(0)")
            emit(wor + rw)
        else:
            emit(wor)
            wait("act5")
            emit(interleave(mlp(5, False), Vb(3) + rw))
        a("s_waitcnt lgkmcnt(0)")
        emit(interleave(Yb(0), rd[:25]))
        prio(7)
        emit(interleave(Yb(1), rd[25:] + wrl(0), 2))
        prio(8)
        emit(interleave(Yb(2), wrl(1), 6))
        emit(interleave(Yb(3), wrl(2), 6))
        a("s_nop 4")
        emit(wrl(3))
        a("s_waitcnt lgkmcnt(0)\ns_barrier")
        self.stamp(9)
        if RED == 0:
            for k in range(2):
                if k == 1: a("s_mov_b64 exec, 0xffff")
                R = 64*k
                for w in range(8):
                    for par in range(2):
                        base = [RA + k, RA + 6 + k, RA + 8 + k][w // 3]
                        a(f"ds_read_b128 v[{R+8*w+4*par}:{R+8*w+4*par+3}], v{base} offset:{20480*(w % 3) + 10240*par}")
            a("s_mov_b64 exec, -1")
            for k in range(2):
                R = 64*k
                a(f"s_waitcnt lgkmcnt({15 if k == 0 else 0})")
                for pairs in (((0, 4), (1, 5), (2, 6), (3, 7)), ((0, 2), (1, 3)), ((0, 1),)):
                    for x, y in pairs:
                        for j in range(4):
                            a(f"v_pk_add_f32 v[{R+8*x+2*j}:{R+8*x+2*j+1}], v[{R+8*x+2*j}:{R+8*x+2*j+1}], v[{R+8*y+2*j}:{R+8*y+2*j+1}]")
                if k == 0: a("s_waitcnt vmcnt(0)")
                for j in range(8): a(f"v_mul_f32 v{R+j}, v{TA+2+k}, v{R+j}")
                for j in range(4): a(f"v_cvt_pk_bf16_f32 v{R+j}, v{R+2*j}, v{R+2*j+1}")
                if k == 1: a("s_mov_b64 exec, 0xffff")
                a(f"buffer_store_dwordx4 v[{R}:{R+3}], v{RA+4+k}, s[{SRD_M}:{SRD_M+3}], s{t} offen {OUTFL}")
            a("s_mov_b64 exec, -1")


        else:
            items = [(k, w) for k in range(2) for w in range(8)]
            def rdp(n):
                k, w = items[n]
                base = [RA + k, RA + 6 + k, RA + 8 + k][w // 3]
                r = [f"ds_read_b128 v[{8*n+4*par}:{8*n+4*par+3}], v{base} offset:{20480*(w % 3) + 10240*par}" for par in range(2)]
                return r if k == 0 else ["s_mov_b64 exec, 0xffff"] + r + ["s_mov_b64 exec, -1"]
            AH = 6
            for n in range(AH): emit(rdp(n))
            for n, (k, w) in enumerate(items):
                if n + AH < 16: emit(rdp(n + AH))
                if w == 0: continue
                a(f"s_waitcnt lgkmcnt({2*min(AH, 15 - n)})")
                R = 64*k
                for j in range(4):
                    a(f"v_pk_add_f32 v[{R+2*j}:{R+2*j+1}], v[{R+2*j}:{R+2*j+1}], v[{8*n+2*j}:{8*n+2*j+1}]")
                if w == 7:
                    if k == 0: a("s_waitcnt vmcnt(0)")
                    for j in range(8): a(f"v_mul_f32 v{R+j}, v{TA+2+k}, v{R+j}")
                    for j in range(4): a(f"v_cvt_pk_bf16_f32 v{R+j}, v{R+2*j}, v{R+2*j+1}")
                    if k == 1: a("s_mov_b64 exec, 0xffff")
                    a(f"buffer_store_dwordx4 v[{R}:{R+3}], v{RA+4+k}, s[{SRD_M}:{SRD_M+3}], s{t} offen {OUTFL}")
            a("s_mov_b64 exec, -1")


def descriptor(name):
    return f""".p2align 6
.amdhsa_kernel {name}
  .amdhsa_next_free_vgpr 256
  .amdhsa_next_free_sgpr 102
  .amdhsa_accum_offset 256
  .amdhsa_group_segment_fixed_size 0
  .amdhsa_kernarg_size 88
  .amdhsa_user_sgpr_count 2
  .amdhsa_user_sgpr_kernarg_segment_ptr 1
  .amdhsa_system_sgpr_workgroup_id_x 1
.end_amdhsa_kernel
"""

def build(stamps):
    assert not LFLAG or (ROT2 == "none" and PQAT == 1 and not EARLYQ and WOPOS != "pre")
    g = Gen(stamps=stamps)
    a = g.a
    K = NAME + "_kernel"
    hdr = open(os.path.join(os.path.dirname(os.path.abspath(__file__)), "header.txt")).read()
    for l in hdr.strip().split("\n"): a.lines.append(l)
    a(f"; @launch grid=(256,1,1) block=(512,1,1) lds={LDS_TOTAL}")
    a('.amdgcn_target "amdgcn-amd-amdhsa--gfx950"\n.text')
    a(f".globl {K}\n.p2align 8\n.type {K},@function")
    a.label(K)
    g.common_prologue("L_end")
    a(f"s_cmp_lt_u32 s{sWAVE}, 4\ns_cbranch_scc1 L_comp")
    g.loader1()
    a(f"s_setprio {LPRIO}")
    if not NE16:
        g.setup2()
        g.srd(SRD_WS, pWS, WS_SIZE)
    g.preload_b(NE16, NL0)
    if K1LDS: a(f"v_mov_b32 v6, {K1C}\nv_mov_b32 v7, 0\nds_write_b32 v6, v7\ns_waitcnt lgkmcnt(0)")
    a("s_barrier")
    if SKEW: a(f"v_mov_b32 v6, {HINT}\nv_mov_b32 v8, 0\nv_mov_b32 v9, 0\nv_mov_b32 v10, 0\nv_mov_b32 v11, 0\nds_write_b128 v6, v[8:11]\ns_waitcnt lgkmcnt(0)")
    g.preload_b(NL0, NL1, TH)
    if not K1LDS: a(f"s_cmp_lg_u32 s{sTYPE}, 0\ns_cbranch_scc1 L_l2\ns_barrier")
    a.label("L_l2")
    if DIAG != 3: g.preload_b(NL1, 5*NB, TH)
    if BLDS and DIAG != 3: g.stage_b()
    g.stamp(3)
    a.label("L_g2")
    g.gemm2()
    g.dump_stamps()
    a.label("L_end")
    a("s_endpgm")
    a.label("L_comp")
    a(f"s_cmp_eq_u32 s{sTYPE}, 0\ns_cbranch_scc1 L_kv")
    g.compute_P(); a("s_branch L_g2")
    a.label("L_kv")
    g.compute_KV(); a("s_branch L_g2")
    a.label("L_code_end")
    errs = lint(a.lines)
    for e in errs: print("HAZARD:", e, file=sys.stderr)
    return a.text() + '.section .rodata,"a"\n' + descriptor(K)

if __name__ == "__main__":
    open(sys.argv[1], "w").write(build(sys.argv[2] if len(sys.argv) > 2 else False))
```

```python
import sys, os, re
sys.path.insert(0, os.path.dirname(os.path.abspath(__file__)))
from asmlib import *

NAME = "gated_mix__linear_attn_block__dense_activation_mish__prompt"
ENV = os.environ.get

CNT_ACT, CNT_PQ, CNT_KV = 0, 256*128, 288*128
DONE_KV, DONE_PQ = 320*128, 328*128
WS_G = 0x10000
WS_KVP = 0x100000
WS_WOR = 0x200000
WS_W2R = 0x300000
WS_PQ = 0x500000
WS_ACT = 0x800000
WS_SIZE = 0x1000000
WS_STAMP = 0x8000000
BIG = 0x20000000
DBGW = int(ENV("DBGW", "0"))
ROTMODE = ENV("ROT", "two")
ROT2 = ENV("ROT2", "none")
NPRE = int(ENV("NPRE", "10"))
SPIN = int(ENV("SPIN", str(0x100000)))
WOAT = 3
ADPRE = int(ENV("ADPRE", "1"))
KVAT = int(ENV("KVAT", "-1"))
GSYNC = int(ENV("GSYNC", "0"))
PF = int(ENV("PF", "0"))
RS = int(ENV("RS", "3"))
S1AT = int(ENV("S1AT", "8"))
S1SLEEP = int(ENV("S1SLEEP", "2"))
LOOPDBG = int(ENV("LOOPDBG", "0"))
CPF = int(ENV("CPF", "1"))
RD = int(ENV("RD", "-1"))
SKEW = int(ENV("SKEW", "0"))
HINT = 3*20480 + 12800
TAILDBG = int(ENV("TAILDBG", "0"))
OUTFL = ENV("OUTFL", "").replace("_", " ")
LFLAG = int(ENV("LFLAG", "0"))
FAKE = int(ENV("FAKE", "0"))
SPLIT = int(ENV("SPLIT", "1"))
YSLEEP = int(ENV("YSLEEP", "8"))
PQAT = int(ENV("PQAT", "1"))
FILLI = int(ENV("FILLI", "1"))
FIRST0 = int(ENV("FIRST0", "0"))
PRIO = ENV("PRIO", "c")
LOOK = ENV("LOOK", "xw")
GBR = int(ENV("GBR", "0"))
STPRIO = int(ENV("STPRIO", "1"))
NRE = int(ENV("NRE", "20"))
SPREAD = int(ENV("SPREAD", "0"))
NE16 = int(ENV("NE16", "0"))
NL1 = int(ENV("NL1", "16"))
K1LDS = int(ENV("K1LDS", "1"))
K1C = 40960 + 2032
FVAT = int(ENV("FVAT", "0"))
WOPOS = ENV("WOPOS", "x")
RED = int(ENV("RED", "1"))
DIAG = int(ENV("DIAG", "0"))
LPRIO = int(ENV("LPRIO", "0"))
EPRIO = int(ENV("EPRIO", "0"))
TH = int(ENV("TH", "4"))
EARLYQ = int(ENV("EARLYQ", "0"))
NB = int(ENV("NB", "5"))
NTH = int(ENV("NTH", "36"))
XSPLIT = [int(v) for v in ENV("XSPLIT", "30,55,80").split(",")]
LRP = int(ENV("LRP", "0"))
MBOX = 161792
STRICTP = int(ENV("STRICTP", "1"))
LATEORD = int(ENV("LATEORD", "0"))
B20AT = int(ENV("B20AT", "14"))
MAP1 = ENV("MAP1", "q")
ROTQ = int(ENV("ROTQ", "1"))
RG = int(ENV("RG", "5"))
RX = int(ENV("RX", "2"))
RTAB = [int(c) for c in ENV("RTAB", "05050505")]
XTAB = [int(c) for c in ENV("XTAB", "01012323")]
RCM = int(ENV("RCM", "1"))
NOE1 = int(ENV("NOE1", "0"))
ATP = int(ENV("ATP", "0"))
PICK = int(ENV("PICK", "0"))
SLEEP = int(ENV("SLEEP", "8"))
BLDS = int(ENV("BLDS", "1"))
NL0 = int(ENV("NL0", "13"))
MAP2 = ENV("MAP2", "x2")
TOUCH = int(ENV("TOUCH", "0"))
MSDBG = int(ENV("MSDBG", "0"))
MSPRIO = int(ENV("MSPRIO", "1"))
MSPRIO2 = int(ENV("MSPRIO2", "1"))

XR = 0
STG = 40960
WR = 49152
WSLOT = 14336
NS = 6
GATE = WR + NS * WSLOT
SCR = GATE + 2048
MS = WR
BL = WR + 32768
BLF = STG + 2040
LDS_TOTAL = 163840

sWG = 2
pX, pWQKV, pWO, pW1, pB1, pW2, pGATE, pOUT, pDBG, pWS = 4, 6, 8, 12, 14, 16, 18, 20, 22, 24
sWAVE, sRB, sHALF, sCBL, sGRP, sF1, sROT, sPIDX, sTYPE, sT = 26, 27, 28, 29, 30, 31, 32, 33, 34, 35
SRD_WS, SRD_X, SRD_W, SRD_M, SRD_D = 36, 40, 44, 52, 56
T0 = 60
sST = 76
cL2E, cC, cE = 96, 98, 100
sR64, sC = 27, 28
sB0, sA0 = 40, 46
sPQb, sMb, sKv, sFk = 0, 1, 3, 29
sFa, sFq = 10, 11
BS, AB = 80, 200
PQR, MR, KA, KD = 80, 120, 120, 176
sLB, sN208 = 30, 33
vG, vP, vL16, vL16b = 248, 252, 254, 255
WSR = f"s[{SRD_WS}:{SRD_WS+3}]"


class Gen:
    def __init__(self, stamps=False):
        self.a = Asm()
        self.stamps = stamps

    def stamp(self, k, loop=False):
        if loop == "tail":
            if not TAILDBG: return
        elif TAILDBG and 1 <= k <= 7 and not (TAILDBG == 2 and k == 6): return
        elif LOOPDBG and k >= 3 and not loop: return
        elif loop and not LOOPDBG: return
        if self.stamps and not (self.stamps == "dbg" and k == 9):
            if k < 2 and self.stamps != "dbg" and loop != "tail":
                self.a(f"s_memtime s[58:59]\ns_waitcnt lgkmcnt(0)\ns_mov_b32 s{sST+2*k}, s58")
            else:
                self.a(f"s_memtime s[{sST+2*k}:{sST+2*k+1}]")

    def srd(self, d, ptr, size, add=None):
        a = self.a
        if add is None:
            a(f"s_mov_b32 s{d}, s{ptr}\ns_mov_b32 s{d+1}, s{ptr+1}")
        else:
            a(f"s_add_u32 s{d}, s{ptr}, {add}\ns_addc_u32 s{d+1}, s{ptr+1}, 0")
        a(f"s_mov_b32 s{d+2}, {size}\ns_mov_b32 s{d+3}, 0x20000")

    def signal(self, soff, v, off=0):
        self.a(f"v_mov_b32 v{v}, 1\nv_mov_b32 v{v+1}, 0\ns_mov_b64 exec, 1\nbuffer_atomic_add v{v}, v{v+1}, {WSR}, s{soff} offen offset:{off} sc1\ns_mov_b64 exec, -1")

    def arrive(self, soff, v):
        self.a(f"v_mov_b32 v{v}, 1\nv_mov_b32 v{v+1}, 0\ns_mov_b64 exec, 1\nbuffer_atomic_add v{v}, v{v+1}, {WSR}, s{soff} offen sc0 sc1\ns_mov_b64 exec, -1")

    def raise_if_last(self, v, last, soff):
        a = self.a
        sk = a.newlabel("L_last")
        a(f"v_readfirstlane_b32 s{T0+14}, v{v}\nv_mov_b32 v{v}, 1\nv_mov_b32 v{v+1}, 0\ns_cmp_lg_u32 s{T0+14}, {last}\ns_cbranch_scc1 {sk}")
        a(f"s_mov_b64 exec, 1\nbuffer_store_dword v{v}, v{v+1}, {WSR}, s{soff} offen sc1\ns_mov_b64 exec, -1")
        a.label(sk)

    def poll(self, soff, target, va, vd, srd=SRD_WS, sleep=None):
        a = self.a
        t = T0 + 15
        loop, done = a.newlabel("L_poll"), a.newlabel("L_polld")
        a(f"s_mov_b32 s{t}, 0")
        a.label(loop)
        a(f"buffer_load_dword v{vd}, v{va}, s[{srd}:{srd+3}], {soff} offen sc1\ns_waitcnt vmcnt(0)")
        a(f"v_cmp_le_u32 vcc, {target}, v{vd}\ns_add_u32 s{t}, s{t}, 1\ns_nop 0")
        a(f"s_cmp_eq_u64 vcc, -1\ns_cbranch_scc1 {done}")
        a(f"s_sleep {SLEEP if sleep is None else sleep}\ns_cmp_lt_u32 s{t}, {SPIN}\ns_cbranch_scc1 {loop}")
        a.label(done)

    def dump_stamps(self):
        if not self.stamps:
            return
        a = self.a
        a("s_waitcnt vmcnt(0) lgkmcnt(0)")
        a(f"s_memrealtime s[{T0}:{T0+1}]\ns_memtime s[{T0+2}:{T0+3}]")
        if self.stamps == "dbg":
            self.srd(SRD_M, pDBG, 256)
            a("s_waitcnt lgkmcnt(0)\nv_mov_b32 v2, 0\ns_mov_b64 exec, 1")
            sk = a.newlabel("L_dbg")
            a(f"s_lshl_b32 s{T0+5}, s{sWG}, 3\ns_add_u32 s{T0+5}, s{T0+5}, s{sWAVE}\ns_cmp_lg_u32 s{T0+5}, {DBGW}\ns_cbranch_scc1 {sk}")
            for k in range(1, 10):
                a(f"s_sub_u32 s{T0+5}, s{sST+2*k}, s{sST}\nv_mov_b32 v{3+k}, s{T0+5}")
            a(f"s_sub_u32 s{T0+5}, s{T0+2}, s{sST}\nv_mov_b32 v13, s{T0+5}\ns_sub_u32 s{T0+5}, s{T0}, s94\nv_mov_b32 v14, s{T0+5}\nv_mov_b32 v15, s94")
            for k in range(3):
                a(f"buffer_store_dwordx4 v[{4+4*k}:{7+4*k}], v2, s[{SRD_M}:{SRD_M+3}], 0 offen offset:{16+16*k}")
            a.label(sk)
            a("s_waitcnt vmcnt(0)")
            return
        a(f"s_getreg_b32 s{T0+4}, hwreg(HW_REG_XCC_ID)")
        self.srd(SRD_M, pWS, 0x10000000)
        a("s_waitcnt lgkmcnt(0)")
        for k in range(10):
            a(f"v_mov_b32 v{k}, s{sST+2*k}")
        a(f"v_mov_b32 v10, s{T0}\nv_mov_b32 v11, s{T0+2}\nv_mov_b32 v12, s{T0+4}\nv_mov_b32 v13, s{sTYPE}\nv_mov_b32 v14, s77\nv_mov_b32 v15, s79")
        a(f"s_lshl_b32 s{T0+5}, s{sWG}, 3\ns_add_u32 s{T0+5}, s{T0+5}, s{sWAVE}\ns_lshl_b32 s{T0+5}, s{T0+5}, 6\ns_add_u32 s{T0+5}, s{T0+5}, {WS_STAMP}")
        a("v_mov_b32 v16, 0\ns_mov_b64 exec, 1")
        for k in range(4):
            a(f"buffer_store_dwordx4 v[{4*k}:{4*k+3}], v16, s[{SRD_M}:{SRD_M+3}], s{T0+5} offen offset:{16*k}")
        a("s_waitcnt vmcnt(0)")

    def common_prologue(self, endlabel):
        a = self.a
        t = T0
        a(f"s_cmp_ge_u32 s{sWG}, 256\ns_cbranch_scc1 {endlabel}")
        a("s_load_dwordx16 s[4:19], s[0:1], 0\ns_load_dwordx4 s[20:23], s[0:1], 64\ns_load_dwordx2 s[24:25], s[0:1], 80")
        if self.stamps:
            for k in range(10): a(f"s_mov_b32 s{sST+2*k}, 0")
            if self.stamps == "dbg": a("s_memrealtime s[94:95]")
            else: a("s_memrealtime s[56:57]\ns_memtime s[58:59]\ns_waitcnt lgkmcnt(0)\ns_mov_b32 s77, s56\ns_mov_b32 s79, s58")
        if CPF:
            sk = a.newlabel("L_cpf")
            a(f"s_getpc_b64 s[{t}:{t+1}]\nL_pc0:\ns_lshr_b32 s{t+2}, s{sWG}, 3\ns_lshl_b32 s{t+2}, s{t+2}, 11\nv_lshlrev_b32 v2, 4, v0\nv_add_u32 v2, s{t+2}, v2")
            a(f"v_cmp_gt_u32 vcc, 128, v0\nv_min_u32 v2, L_code_end-L_pc0-16, v2\ns_and_saveexec_b64 s[{t+4}:{t+5}], vcc\ns_cbranch_execz {sk}")
            a(f"global_load_dwordx4 v[248:251], v2, s[{t}:{t+1}]")
            a.label(sk)
            a(f"s_mov_b64 exec, s[{t+4}:{t+5}]")
        a("v_lshrrev_b32 v1, 6, v0\nv_and_b32 v0, 63, v0")
        a(f"v_readfirstlane_b32 s{sWAVE}, v1")
        if MAP1 == "h":
            a(f"s_bfe_u32 s{t+2}, s{sWG}, 0x20001\ns_bfe_u32 s{t+3}, s{sWG}, 0x20003")
            a(f"s_lshl2_add_u32 s{sRB}, s{t+2}, s{t+3}\ns_and_b32 s{sHALF}, s{sWG}, 1\ns_lshr_b32 s{sCBL}, s{sWG}, 5")
            a(f"s_and_b32 s{t}, s{sCBL}, 3\ns_lshl2_add_u32 s{sGRP}, s{sHALF}, s{t}\ns_lshr_b32 s{sTYPE}, s{sCBL}, 2")
        else:
            a(f"s_bfe_u32 s{t+2}, s{sWG}, 0x10002\ns_bfe_u32 s{t+3}, s{sWG}, 0x30003\ns_lshl3_add_u32 s{sRB}, s{t+2}, s{t+3}")
            a(f"s_bfe_u32 s{sHALF}, s{sWG}, 0x10001\ns_lshr_b32 s{sTYPE}, s{sWG}, 7\ns_bfe_u32 s{t}, s{sWG}, 0x10006\ns_and_b32 s{t+1}, s{sWG}, 1")
            a(f"s_lshl1_add_u32 s{t+4}, s{t+1}, s{t}\ns_lshl1_add_u32 s{t+5}, s{t}, s{t+1}\ns_cmp_eq_u32 s{sTYPE}, 0\ns_cselect_b32 s{t}, s{t+4}, s{t+5}")
            a(f"s_lshl2_add_u32 s{sCBL}, s{sTYPE}, s{t}\ns_lshl2_add_u32 s{sGRP}, s{sHALF}, s{t}")
            tab = sum(v << (4*n) for n, v in enumerate(RTAB))
            xtab = sum(v << (4*n) for n, v in enumerate(XTAB))
            a(f"s_lshr_b32 s{t+4}, s{sWG}, 6\ns_mul_i32 s{t+4}, s{t+4}, {RCM}\ns_add_u32 s{t+4}, s{t+4}, s{t+3}\ns_and_b32 s{t+4}, s{t+4}, 7\ns_lshl_b32 s{t+4}, s{t+4}, 2\ns_lshr_b32 s{t+4}, {tab:#x}, s{t+4}\ns_and_b32 s{t+4}, s{t+4}, 15")
            a(f"s_and_b32 s{t+5}, s{sWG}, 7\ns_lshl_b32 s{t+5}, s{t+5}, 2\ns_lshr_b32 s{t+5}, {xtab:#x}, s{t+5}\ns_and_b32 s{t+5}, s{t+5}, 15\ns_add_u32 s{sROT}, s{t+4}, s{t+5}")
            if max(RTAB) + max(XTAB) >= 10: a(f"s_sub_u32 s{t+4}, s{sROT}, 10\ns_cmp_ge_u32 s{sROT}, 10\ns_cselect_b32 s{sROT}, s{t+4}, s{sROT}")
        if MAP1 != "h": pass
        elif ROTMODE == "full":
            a(f"s_mul_i32 s{t+4}, s{t+3}, 5\ns_add_u32 s{t+4}, s{t+4}, 1\ns_lshr_b32 s{t+4}, s{t+4}, 1")
            a(f"s_add_u32 s{t+4}, s{t+4}, s{sCBL}\ns_add_u32 s{t+4}, s{t+4}, s{t+2}")
            a(f"s_mul_i32 s{t+5}, s{sHALF}, 5\ns_add_u32 s{sROT}, s{t+4}, s{t+5}")
            for _ in range(2):
                a(f"s_sub_u32 s{t+4}, s{sROT}, 10\ns_cmp_ge_u32 s{sROT}, 10\ns_cselect_b32 s{sROT}, s{t+4}, s{sROT}")
        elif ROTMODE == "none":
            a(f"s_mov_b32 s{sROT}, 0")
        elif ROTMODE == "xcd":
            a(f"s_mul_i32 s{t+4}, s{t+2}, 5\ns_add_u32 s{t+4}, s{t+4}, 1\ns_lshr_b32 s{t+4}, s{t+4}, 1\ns_add_u32 s{sROT}, s{t+4}, s{sHALF}")
        elif ROTMODE == "two0":
            a(f"s_add_u32 s{t+4}, s{t+3}, s{sCBL}\ns_and_b32 s{t+4}, s{t+4}, 1\ns_mul_i32 s{sROT}, s{t+4}, 5")
        elif ROTMODE == "two1":
            a(f"s_add_u32 s{t+4}, s{t+3}, s{sCBL}\ns_and_b32 s{t+4}, s{t+4}, 1\ns_mul_i32 s{t+4}, s{t+4}, 5\ns_and_b32 s{t+5}, s{t+2}, 1\ns_lshl1_add_u32 s{sROT}, s{t+5}, s{t+4}")
        elif ROTMODE == "two":
            a(f"s_add_u32 s{t+4}, s{t+3}, s{sCBL}\ns_and_b32 s{t+4}, s{t+4}, 1\ns_mul_i32 s{t+4}, s{t+4}, 5")
            a(f"s_add_u32 s{t+4}, s{t+4}, s{t+2}\ns_add_u32 s{sROT}, s{t+4}, s{sHALF}")

    def loader1(self):
        a = self.a
        t = T0
        sLW = sT
        vXE, vXO, vW, vGt = 2, 3, 4, 8
        sStr, sCol, sA32, sA64, sOff, sXo, sWB, sWB2, sXB, sXP, sSel = 48, 49, 50, 51, t+4, t+5, t+6, t+7, t+8, t+9, t+10
        sKind = 72
        a(f"s_setprio 2\ns_sub_u32 s{sLW}, s{sWAVE}, 4")
        a("v_lshrrev_b32 v10, 3, v0\nv_and_b32 v11, 7, v0\nv_lshrrev_b32 v12, 4, v0\nv_mul_u32_u24 v13, 1280, v10\nv_xor_b32 v14, v11, v12")
        a(f"s_and_b32 s{t}, s{sLW}, 1\ns_lshl_b32 s{t}, s{t}, 6")
        a(f"v_lshl_add_u32 v13, v14, 4, v13\nv_xor_b32 v{vXE}, s{t}, v13\nv_xor_b32 v{vXO}, 64, v{vXE}")
        if FIRST0: a(f"s_mov_b32 s{sA32}, 0\ns_mov_b32 s{sA64}, 0\ns_min_u32 s{sROT}, s{sROT}, 8")
        else: a(f"s_lshl_b32 s{sA32}, s{sROT}, 1\ns_mov_b32 s{sA64}, s{sROT}")
        a(f"s_mul_i32 s{sXB}, s{sLW}, 3072\ns_mul_i32 s{sXP}, s{sLW}, 30720")
        for k in range(6, 10): a(f"v_mov_b32 v{k}, {BIG}")
        lKV, lQH, lLN, lJ = a.newlabel("L_wkv"), a.newlabel("L_wqh"), a.newlabel("L_wln"), a.newlabel("L_wj")
        a(f"s_cmp_eq_u32 s{sTYPE}, 0\ns_cbranch_scc1 {lKV}")
        a(f"s_cmp_eq_u32 s{sLW}, 3\ns_cbranch_scc1 {lQH}")
        a(f"s_mov_b32 s{sSel}, 1\ns_mov_b32 s{sStr}, 3072\ns_mul_i32 s{sCol}, s{sGRP}, 3\ns_add_u32 s{sCol}, s{sCol}, s{sLW}\ns_lshl_b32 s{sCol}, s{sCol}, 7\ns_lshl_b32 s{sWB}, s{sLW}, 12")
        a.label(lLN)
        a(f"v_and_b32 v13, 4, v10\nv_add_u32 v13, v13, v10\nv_mul_u32_u24 v13, s{sStr}, v13\nv_lshlrev_b32 v12, 1, v12\nv_xor_b32 v12, v11, v12\nv_lshl_add_u32 v{vW}, v12, 4, v13")
        a(f"s_lshl_b32 s{t}, s{sStr}, 4\ns_lshl_b32 s{t+1}, s{sStr}, 2\nv_add_u32 v{vW+1}, s{t}, v{vW}\nv_add_u32 v{vW+2}, s{t+1}, v{vW}\nv_add_u32 v{vW+3}, s{t}, v{vW+2}")
        a(f"s_branch {lJ}")
        a.label(lQH)
        a(f"s_mov_b32 s{sSel}, 0\ns_mov_b32 s{sStr}, 3840\ns_lshl_b32 s{sCol}, s{sHALF}, 1\ns_add_u32 s{sCol}, s{sCol}, s{sCBL}\ns_add_u32 s{sCol}, s{sCol}, 12\ns_lshl_b32 s{sCol}, s{sCol}, 6")
        a(f"s_cmp_lt_u32 s{sCBL}, 6\ns_cselect_b32 s{sCol}, s{sCol}, {BIG}\ns_mov_b32 s{sWB}, 12288\ns_mov_b32 s{sWB2}, 13312")
        a(f"v_lshrrev_b32 v10, 2, v0\nv_and_b32 v13, 12, v10\nv_add_u32 v13, v13, v10\nv_mul_u32_u24 v13, 3840, v13\nv_and_b32 v11, 3, v0\nv_and_b32 v12, 1, v12\nv_lshlrev_b32 v12, 1, v12\nv_xor_b32 v12, v11, v12")
        a(f"v_lshl_add_u32 v{vW}, v12, 4, v13\nv_add_u32 v{vW+1}, 15360, v{vW}")
        a(f"s_lshl_b32 s{t}, s{sROT}, 3\nv_mov_b32 v14, {BIG}")
        for j in range(2):
            if FIRST0:
                a(f"v_add_u32 v10, {64*j}, v0\nv_add_u32 v11, s{t}, v10\nv_subrev_u32 v12, 72, v11\nv_cmp_gt_u32 vcc, 80, v11\ns_nop 1\nv_cndmask_b32 v11, v12, v11, vcc\nv_cmp_gt_u32 vcc, 8, v10\ns_nop 1\nv_cndmask_b32 v11, v11, v10, vcc")
                a(f"v_cmp_gt_u32 vcc, 80, v10\nv_lshlrev_b32 v11, 4, v11\ns_nop 0\nv_cndmask_b32 v{vGt+j}, v14, v11, vcc")
            else:
                a(f"v_add_u32 v10, {64*j}, v0\nv_add_u32 v11, s{t}, v10\nv_cmp_gt_u32 vcc, 80, v10\nv_subrev_u32 v12, 80, v11\nv_min_u32 v11, v11, v12\nv_lshlrev_b32 v11, 4, v11\nv_cndmask_b32 v{vGt+j}, v14, v11, vcc")
        a(f"s_branch {lJ}")
        a.label(lKV)
        a(f"s_mov_b32 s{sSel}, 0\ns_mov_b32 s{sStr}, 3840\ns_mul_i32 s{sWB}, s{sLW}, 5120\ns_lshl_b32 s{sCol}, s{sGRP}, 7")
        a(f"s_cmp_eq_u32 s{sLW}, 2\ns_cbranch_scc1 {lLN}")
        a(f"s_mul_i32 s{sCol}, s{sGRP}, 160\ns_cmp_eq_u32 s{sLW}, 1\ns_cselect_b32 s{t}, 2560, 1280\ns_add_u32 s{sCol}, s{sCol}, s{t}")
        a(f"s_cmp_eq_u32 s{sLW}, 3\ns_cselect_b32 s{t}, 256, 0\ns_cselect_b32 s{sWB}, 4096, s{sWB}\ns_mov_b32 s{sWB2}, 9216")
        a(f"v_add_u32 v14, s{t}, v0")
        for j in range(4):
            a(f"v_add_u32 v10, {64*j}, v14\nv_mul_u32_u24 v11, 6554, v10\nv_lshrrev_b32 v11, 16, v11\nv_mad_i32_i24 v10, v11, -10, v10")
            a("v_and_b32 v12, 12, v11\nv_and_b32 v13, 3, v11\nv_lshl_or_b32 v12, v12, 1, v13\nv_bfe_u32 v13, v11, 4, 1\nv_lshl_or_b32 v12, v13, 2, v12")
            a(f"v_mul_u32_u24 v12, 3840, v12\nv_lshl_add_u32 v{vW+j}, v10, 4, v12")
            if j == 0:
                a(f"v_add_u32 v{vW+1}, 1280, v{vW}\ns_cmp_eq_u32 s{sLW}, 3\ns_cbranch_scc1 {lJ}")
        a.label(lJ)
        a(f"s_lshl_b32 s{sStr}, s{sStr}, 5\ns_mul_i32 s{t}, s{sRB}, 163840")
        a("s_waitcnt lgkmcnt(0)")
        self.stamp(0)
        self.srd(SRD_X, pX, 163840, add=f"s{t}")
        a(f"s_cmp_eq_u32 s{sSel}, 0\ns_cselect_b32 s{SRD_W}, s{pWQKV}, s{pW1}\ns_cselect_b32 s{SRD_W+1}, s{pWQKV+1}, s{pW1+1}\ns_cselect_b32 s{SRD_W+2}, {640*1920*2}, {640*1536*2}\ns_mov_b32 s{SRD_W+3}, 0x20000")
        lab3, lab4, labj = a.newlabel("L_ld3"), a.newlabel("L_ld4"), a.newlabel("L_ldj")
        lab0k, lab3k = a.newlabel("L_ld0k"), a.newlabel("L_ld3k")
        a(f"s_cmp_eq_u32 s{sLW}, 3\ns_cbranch_scc1 {lab3}")
        for variant, rp in (((0, 1), (0, 0), (3, 1), (3, 0), (4, 1)) if LRP else ((0, 0), (3, 0), (4, 0))):
            if LRP and (variant, rp) == (0, 1): a(f"s_cmp_eq_u32 s{sTYPE}, 0\ns_cbranch_scc1 {lab0k}")
            if LRP and (variant, rp) == (0, 0): a.label(lab0k)
            if LRP and (variant, rp) == (3, 0): a.label(lab3k)
            if variant == 3 and (rp or not LRP):
                a.label(lab3)
                a(f"s_cmp_ge_u32 s{sCBL}, 6\ns_cbranch_scc1 {lab4}")
                if LRP: a(f"s_cmp_eq_u32 s{sTYPE}, 0\ns_cbranch_scc1 {lab3k}")
            if variant == 4:
                a.label(lab4)
            nW = {0: 4, 3: 2, 4: 0}[variant]
            nX = 3 if variant == 0 else 7
            seq = []
            def issue_W(i):
                if nW == 0: return
                a(f"s_mul_i32 s{sOff}, s{sA32}, s{sStr}")
                for j in range(nW):
                    base, off = (sWB, 1024*j) if variant == 0 else ((sWB, sWB2)[j], 0)
                    a(f"s_add_u32 m0, s{base}, {WR + (i % NS)*WSLOT + off}")
                    a(f"s_add_u32 s{sOff}, s{sOff}, s{sCol}" if j == 0 else "s_nop 0")
                    a(f"buffer_load_dwordx4 v{vW+j}, s[{SRD_W}:{SRD_W+3}], s{sOff} offen lds")
                    seq.append(("W", i))
                if FIRST0 and i == 1: a(f"s_lshl1_add_u32 s{sA32}, s{sROT}, 2")
                else: a(f"s_add_u32 s{sA32}, s{sA32}, 1\ns_cmp_eq_u32 s{sA32}, 20\ns_cselect_b32 s{sA32}, {2 if FIRST0 else 0}, s{sA32}")
            def issue_X(jx):
                a(f"s_lshl_b32 s{sXo}, s{sA64}, 7")
                for j in range(nX):
                    a(f"s_add_u32 m0, s{sXB}, {XR + (jx % 3)*16384 + 1024*j}")
                    a(f"s_add_u32 s{sXo}, s{sXo}, " + (f"s{sXP}" if j == 0 else "10240"))
                    a(f"buffer_load_dwordx4 v{vXE + (j & 1)}, s[{SRD_X}:{SRD_X+3}], s{sXo} offen lds")
                    seq.append(("X", jx))
                if FIRST0 and jx == 0: a(f"s_add_u32 s{sA64}, s{sROT}, 1")
                else: a(f"s_add_u32 s{sA64}, s{sA64}, 1\ns_cmp_eq_u32 s{sA64}, 10\ns_cselect_b32 s{sA64}, {1 if FIRST0 else 0}, s{sA64}")
            def wait_for(items):
                last = max([n for n, it in enumerate(seq) if it in items] + [-1])
                if last >= 0: a(f"s_waitcnt vmcnt({len(seq) - 1 - last})")
            issue_X(0); issue_W(0)
            if variant == 4:
                self.srd(SRD_M, pGATE, 1280)
                for j in range(2):
                    a(f"s_mov_b32 m0, {GATE + 1024*j}\ns_nop 0\nbuffer_load_dwordx4 v{vGt+j}, s[{SRD_M}:{SRD_M+3}], 0 offen lds")
                    seq.append(("W", 0))
            issue_W(1)
            wait_for([("W", 0), ("X", 0)]); self.stamp(1); a("s_barrier")
            issue_X(1)
            wait_for([("W", 1)]); a("s_barrier")
            issue_W(2); issue_W(3); issue_X(2); issue_W(4)
            if LOOK == "full": issue_W(5)
            for j in range(1, 10):
                if j == (8 if NE16 else 9) and variant == 0:
                    sk = a.newlabel("L_s1skip")
                    a(f"s_cmp_lg_u32 s{sWAVE}, 4\ns_cbranch_scc1 {sk}")
                    self.srd(SRD_D, pDBG, 256)
                    a("v_mov_b32 v10, 128")
                    self.poll("0", 1, 10, 11, SRD_D, S1SLEEP)
                    a.label(sk)
                if rp and j == LRP + 2:
                    last = max(n for n, it in enumerate(seq) if it in (("W", 2*j), ("W", 2*j + 1), ("X", j)))
                    N = len(seq) - 1 - last
                    w1, w2, w3 = a.newlabel("L_wv"), a.newlabel("L_wv"), a.newlabel("L_wv")
                    a(f"s_cmp_eq_u32 s{sKind}, 1\ns_cbranch_scc1 {w1}\ns_cmp_eq_u32 s{sKind}, 2\ns_cbranch_scc1 {w2}\ns_waitcnt vmcnt({N})\ns_branch {w3}\n{w1}:\ns_waitcnt vmcnt({N+4})\ns_branch {w3}\n{w2}:\ns_waitcnt vmcnt({N+8})\n{w3}:")
                else:
                    wait_for([("W", 2*j), ("W", 2*j + 1), ("X", j)])
                if rp and variant == 0 and j == LRP + 4:
                    sk = a.newlabel("L_s1b")
                    a(f"s_cmp_lg_u32 s{sWAVE}, 4\ns_cbranch_scc1 {sk}\nv_readfirstlane_b32 s{t}, v70\nv_mov_b32 v71, 1\ns_cmp_lg_u32 s{t}, 127\ns_cbranch_scc1 {sk}")
                    self.srd(SRD_D, pDBG, 256)
                    a(f"s_mov_b64 exec, 1\nbuffer_store_dword v71, v69, s[{SRD_D}:{SRD_D+3}], 0 offen offset:128 sc1\ns_mov_b64 exec, -1")
                    a.label(sk)
                a("s_barrier")
                if rp and j == LRP:
                    self.srd(SRD_WS, pWS, WS_SIZE)
                    sk = a.newlabel("L_z")
                    a(f"v_lshlrev_b32 v69, 4, v0\ns_cmp_ge_u32 s{sLW}, 2\ns_cbranch_scc1 {sk}\ns_lshl3_add_u32 s{t}, s{sRB}, s{sGRP}\ns_lshl_b32 s{t}, s{t}, 9\ns_mul_i32 s{t+1}, s{sLW}, {WS_KVP}\ns_add_u32 s{t}, s{t}, s{t+1}")
                    a("v_mov_b32 v64, 0\nv_mov_b32 v65, 0\nv_mov_b32 v66, 0\nv_mov_b32 v67, 0\ns_mov_b32 exec_hi, 0")
                    a(f"buffer_store_dwordx4 v[64:67], v69, {WSR}, s{t} offen sc1\ns_mov_b32 exec_hi, -1")
                    a.label(sk)
                if rp and variant == 0 and j == LRP + 3:
                    sk = a.newlabel("L_s1a")
                    a(f"s_cmp_lg_u32 s{sWAVE}, 4\ns_cbranch_scc1 {sk}")
                    self.srd(SRD_D, pDBG, 256)
                    a(f"v_mov_b32 v70, 1\ns_mov_b64 exec, 1\nbuffer_atomic_add v70, v69, s[{SRD_D}:{SRD_D+3}], 0 offen sc0 sc1\ns_mov_b64 exec, -1")
                    a.label(sk)
                if LOOK == "ramp" and j == 1: issue_W(5)
                if j + 1 < 10 and LOOK == "xw": issue_W(2*j + 3)
                if j + 2 < 10: issue_X(j + 2); issue_W(2*j + 4)
                if j + 2 < 10 and LOOK != "xw": issue_W(2*j + 5)
                if rp and j == LRP:
                    a(f"s_lshl_b32 s{t}, s{sLW}, 6\ns_add_u32 s{t}, s{t}, {MBOX}\nv_mov_b32 v68, s{t}\nds_read_b128 v[16:19], v68\nds_read_b128 v[20:23], v68 offset:16\nds_read_b32 v24, v68 offset:32")
                    a(f"v_lshrrev_b32 v10, 2, v0\nv_and_b32 v11, 3, v0\nv_lshlrev_b32 v11, 3, v11\nv_lshl_add_u32 v10, v10, 7, v11\ns_lshl_b32 s{t}, s{sLW}, 12\ns_add_u32 s{t}, s{t}, {SCR}\nv_add_u32 v10, s{t}, v10")
                    for r in range(2):
                        for u in range(4):
                            a(f"ds_read_b64_tr_b16 v[{32+16*r+4*u}:{33+16*r+4*u}], v10 offset:{8192*r + 32*u}\nds_read_b64_tr_b16 v[{34+16*r+4*u}:{35+16*r+4*u}], v10 offset:{8192*r + 32*u + 2048}")
                    a(f"s_waitcnt lgkmcnt(0)\nv_readfirstlane_b32 s{sKind}, v24\nv_lshrrev_b32 v25, 1, v69")
                    for u in range(4): a(f"v_add_u32 v{16+u}, v{16+u}, v69")
                    for u in range(4):
                        a(f"buffer_store_dwordx4 v[{32+4*u}:{35+4*u}], v{16+u}, {WSR}, 0 offen sc1"); seq.append(("S", u))
                if rp and j == LRP + 1:
                    k2, k3 = a.newlabel("L_r2"), a.newlabel("L_r2")
                    a(f"s_cmp_eq_u32 s{sKind}, 0\ns_cbranch_scc1 {k2}\ns_cmp_eq_u32 s{sKind}, 2\ns_cbranch_scc1 {k3}")
                    for u in range(4): a(f"v_add_u32 v{20+u}, v{20+u}, v69\nbuffer_store_dwordx4 v[{48+4*u}:{51+4*u}], v{20+u}, {WSR}, 0 offen sc1")
                    a(f"s_branch {k2}\n{k3}:\ns_mov_b32 s{t}, 12800")
                    for u in range(4): a(f"v_add_u32 v{20+u}, v{20+u}, v25\nbuffer_store_dwordx2 v[{48+4*u}:{49+4*u}], v{20+u}, {WSR}, 0 offen sc1\nbuffer_store_dwordx2 v[{50+4*u}:{51+4*u}], v{20+u}, {WSR}, s{t} offen sc1")
                    a.label(k2)
                if j == 8 and NE16:
                    self.setup2()
                    self.srd(SRD_WS, pWS, WS_SIZE)
                    self.preload_b(0, NE16)
                    seq.extend(["B"] * NE16)
            if variant != 4:
                a(f"s_branch {labj}")
        a.label(labj)
        self.stamp(2)

    def mish_quad(self, h, dst, tmp):
        P = lambda r: f"v[{r}:{r+1}]"
        return [
            f"v_pk_fma_f32 {P(tmp)}, {P(h)}, s[{cL2E}:{cL2E+1}], -0.5 op_sel_hi:[1,1,0]",
            f"v_pk_fma_f32 {P(tmp+2)}, {P(h+2)}, s[{cL2E}:{cL2E+1}], -0.5 op_sel_hi:[1,1,0]",
            f"v_exp_f32 v{tmp}, v{tmp}", f"v_exp_f32 v{tmp+1}, v{tmp+1}", f"v_exp_f32 v{tmp+2}, v{tmp+2}", f"v_exp_f32 v{tmp+3}, v{tmp+3}",
            f"v_pk_add_f32 {P(tmp)}, {P(tmp)}, s[{cC}:{cC+1}]", f"v_pk_add_f32 {P(tmp+2)}, {P(tmp+2)}, s[{cC}:{cC+1}]",
            f"v_pk_fma_f32 {P(tmp)}, {P(tmp)}, {P(tmp)}, 0.5 op_sel_hi:[1,1,0]",
            f"v_pk_fma_f32 {P(tmp+2)}, {P(tmp+2)}, {P(tmp+2)}, 0.5 op_sel_hi:[1,1,0]",
            f"v_rcp_f32 v{tmp}, v{tmp}", f"v_rcp_f32 v{tmp+1}, v{tmp+1}", f"v_rcp_f32 v{tmp+2}, v{tmp+2}", f"v_rcp_f32 v{tmp+3}, v{tmp+3}",
            f"v_pk_fma_f32 {P(tmp)}, {P(h)}, {P(tmp)}, {P(h)} neg_lo:[1,0,0] neg_hi:[1,0,0]",
            f"v_pk_fma_f32 {P(tmp+2)}, {P(h+2)}, {P(tmp+2)}, {P(h+2)} neg_lo:[1,0,0] neg_hi:[1,0,0]",
            f"v_cvt_pk_bf16_f32 v{dst}, v{tmp}, v{tmp+1}", f"v_cvt_pk_bf16_f32 v{dst+1}, v{tmp+2}, v{tmp+3}",
        ]

    def phi_quad(self, h, dst, tmp):
        P = lambda r: f"v[{r}:{r+1}]"
        return [
            f"v_pk_mul_f32 {P(tmp)}, {P(h)}, s[{cL2E}:{cL2E+1}]", f"v_pk_mul_f32 {P(tmp+2)}, {P(h+2)}, s[{cL2E}:{cL2E+1}]",
            f"v_exp_f32 v{tmp}, v{tmp} clamp", f"v_exp_f32 v{tmp+1}, v{tmp+1} clamp", f"v_exp_f32 v{tmp+2}, v{tmp+2} clamp", f"v_exp_f32 v{tmp+3}, v{tmp+3} clamp",
            f"v_pk_add_f32 {P(h)}, {P(h)}, s[{cC}:{cC+1}]", f"v_pk_add_f32 {P(h+2)}, {P(h+2)}, s[{cC}:{cC+1}]",
            f"v_pk_add_f32 {P(tmp)}, {P(tmp)}, s[{cE}:{cE+1}]", f"v_pk_add_f32 {P(tmp+2)}, {P(tmp+2)}, s[{cE}:{cE+1}]",
            f"v_max_f32 v{tmp}, v{tmp}, v{h}", f"v_max_f32 v{tmp+1}, v{tmp+1}, v{h+1}", f"v_max_f32 v{tmp+2}, v{tmp+2}, v{h+2}", f"v_max_f32 v{tmp+3}, v{tmp+3}, v{h+3}",
            f"v_cvt_pk_bf16_f32 v{dst}, v{tmp}, v{tmp+1}", f"v_cvt_pk_bf16_f32 v{dst+1}, v{tmp+2}, v{tmp+3}",
        ]

    def consts(self, kind):
        if kind == "mish":
            self.a(f"s_mov_b32 s{cC}, 0x3f3504f3\ns_mov_b32 s{cC+1}, 0x3f3504f3")
        else:
            self.a(f"s_mov_b32 s{cC}, 0x3f800008\ns_mov_b32 s{cC+1}, 0x3f800008\ns_mov_b32 s{cE}, 0x358637bd\ns_mov_b32 s{cE+1}, 0x358637bd")

    def main_loop(self, reads, mfmas, extra, nread_end, bases):
        a = self.a
        a("s_barrier")
        self.stamp(1)
        for l in reads(0): a(l)
        for l in extra.get(0, ([], [], []))[1]: a(l)
        a("s_waitcnt lgkmcnt(0)")
        for i in range(1, 21):
            if (i == 1 or i % 2 == 0) and i < 20: a("s_barrier")
            if i in (2, 4, 6, 8, 10, 14, 18): self.stamp(3 + (2, 4, 6, 8, 10, 14, 18).index(i), True)
            pre, fill, preb = extra.get(i, ([], [], []))
            for l in pre: a(l)
            if i < 20:
                tail = []
                if (i + 1) % 3 == 0 and i + 1 < 20:
                    op = "v_add_u32" if ((i + 1) % NS) == 3 else "v_subrev_u32"
                    tail = [f"{op} v{b}, {3*WSLOT}, v{b}" for b in bases]
                body = interleave(mfmas(i - 1), reads(i) + fill + tail, 0, nread_end)
                for l in body: a(l)
                for l in preb: a(l)
                a("s_waitcnt lgkmcnt(0)")
            else:
                m19 = mfmas(19)
                for l in m19[:B20AT] + ["s_barrier"] + m19[B20AT:]: a(l)
        self.stamp(2)

    def finish1(self, flags, strict=False, late8=False):
        a = self.a
        self.setup2()
        if LFLAG == 2 and late8: a(f"s_add_u32 s{flags[0]}, s{flags[0]}, 8")
        if LFLAG == 1:
            if late8: a(f"s_add_u32 s{flags[0]}, s{flags[0]}, 8")
            a(f"s_mov_b32 s32, s{flags[1]}")
            self.preload_b(0, NPRE)
            return
        if strict:
            a("s_waitcnt vmcnt(0)")
            self.stamp(5)
            for f in flags: self.signal(f, 1)
            self.preload_b(0, NPRE)
            return
        self.preload_b(0, NPRE)
        a(f"s_waitcnt vmcnt({NPRE})")
        self.stamp(5)
        for f in flags: self.signal(f, 1)
        if not BLDS:
            self.preload_b(NPRE, 30)
            return

    def pickup(self):
        a = self.a
        t = T0
        sk = a.newlabel("L_pk")
        a(f"s_cmp_ge_u32 s{sWAVE}, 4\ns_cbranch_scc1 {sk}")
        a(f"s_mul_i32 s{t+14}, s{sWAVE}, 20480\ns_add_u32 s{t+14}, s{t+14}, {BL}\nv_add_u32 v{BS+117}, s{t+14}, v{vL16}")
        for n in range(5*NB - 10):
            a(f"ds_read_b128 v[{BS+40+4*n}:{BS+43+4*n}], v{BS+117} offset:{1024*n}")
        a.label(sk)

    def prefetch(self, vL, v, S=SRD_X):
        a = self.a
        t = T0
        for ptr, size, share, n in ((pX, 2048*1280, 10240, 3), (pWQKV, 640*3840, 9600, 3), (pW1, 640*3072, 7680, 2))[:(1 if PF == 2 else 3)]:
            self.srd(S, ptr, size)
            per = -(-share // 4 // 128) * 128
            a(f"s_mul_i32 s{t}, s{sWG}, {share}\ns_and_b32 s{t}, s{t}, 0xffffff80\ns_mul_i32 s{t+1}, s{sWAVE}, {per}\ns_add_u32 s{t}, s{t}, s{t+1}\ns_min_u32 s{t}, s{t}, {size - n*1024}")
            for k in range(n):
                a(f"buffer_load_dwordx4 v[{v}:{v+3}], v{vL}, s[{S}:{S+3}], s{t} offen offset:{1024*k}")

    def touch(self, vLane, v):
        a = self.a
        t = T0
        a(f"v_lshlrev_b32 v{v}, 21, v{vLane}\nv_add_u32 v{v}, 0xff000, v{v}\ns_mov_b64 exec, 0xff")
        a(f"buffer_load_dword v{v+1}, v{v}, {WSR}, 0 offen")
        self.srd(SRD_M, pOUT, 2048*640*2)
        a(f"v_lshlrev_b32 v{v}, 20, v{vLane}\ns_mov_b64 exec, 7\nbuffer_load_dword v{v+2}, v{v}, s[{SRD_M}:{SRD_M+3}], 0 offen")
        self.srd(SRD_M, pWO, 640*640*2)
        a(f"v_lshlrev_b32 v{v}, 19, v{vLane}\ns_mov_b64 exec, 3\nbuffer_load_dword v{v+3}, v{v}, s[{SRD_M}:{SRD_M+3}], 0 offen\ns_mov_b64 exec, -1")

    def compute_P(self):
        a = self.a
        t = T0
        ACC, XB, WB, BI = 0, 112, 144, 200
        vX0, vX1, vH0, vH1, vQ, vGt, vL, vRd, vRr, vBo, vT = 228, 229, 230, 231, 232, 233, 234, 235, 236, 237, 238
        vLane = 253
        sSH, sNH = sT, 48
        sAct, sPq, sF2, sGs = 49, 72, 73, 74
        a(f"v_mov_b32 v{vLane}, v0\ns_lshr_b32 s{sSH}, s{sWAVE}, 1\ns_and_b32 s{sNH}, s{sWAVE}, 1")
        a(f"v_and_b32 v1, 15, v0\nv_lshrrev_b32 v2, 4, v0\nv_lshrrev_b32 v3, 1, v1\nv_xor_b32 v3, v3, v2\nv_lshlrev_b32 v3, 4, v3\nv_lshl_add_u32 v3, v1, 7, v3")
        a(f"s_lshl_b32 s{t}, s{sSH}, 13\nv_add_u32 v{vX0}, s{t}, v3\nv_xor_b32 v{vX1}, 64, v{vX0}")
        a(f"v_lshrrev_b32 v3, 2, v0\nv_and_b32 v4, 3, v0\nv_lshlrev_b32 v4, 3, v4")
        a(f"v_lshl_add_u32 v5, v3, 7, v4\nv_bfe_u32 v6, v0, 3, 2\ns_lshl_b32 s{t}, s{sNH}, 1\nv_xor_b32 v6, s{t}, v6\nv_lshl_add_u32 v6, v6, 5, v5")
        a(f"v_add_u32 v{vH0}, {WR}, v6\nv_xor_b32 v{vH1}, 32, v{vH0}")
        a(f"v_lshl_add_u32 v6, v3, 6, v4\nv_and_b32 v7, 1, v2\nv_xor_b32 v7, s{sNH}, v7\nv_lshl_add_u32 v6, v7, 5, v6\nv_add_u32 v{vQ}, {WR+12288}, v6")
        a(f"v_lshlrev_b32 v6, 4, v2\nv_add_u32 v{vGt}, {GATE}, v6\nv_lshlrev_b32 v{vL}, 4, v0\nv_lshlrev_b32 v{vBo}, 3, v2")
        a(f"v_lshrrev_b32 v6, 3, v0\nv_mul_u32_u24 v6, 1280, v6\nv_and_b32 v7, 7, v0\nv_lshl_add_u32 v{vRd}, v7, 4, v6")
        a(f"s_lshl_b32 s{t}, s{sWAVE}, 12\ns_add_u32 s{t}, s{t}, {SCR}\nv_add_u32 v{vRr}, s{t}, v5")
        a(f"s_lshl3_add_u32 s{sPIDX}, s{sRB}, s{sGRP}")
        a(f"s_mov_b32 s{cL2E}, 0x3fb8aa3b\ns_mov_b32 s{cL2E+1}, 0x3fb8aa3b")
        a(f"s_lshl2_add_u32 s{t}, s{sPIDX}, s{sWAVE}\ns_min_u32 s{t}, s{t}, 479")
        a(f"s_mul_i32 s{t+1}, s{t}, 6554\ns_lshr_b32 s{t+1}, s{t+1}, 16\ns_mul_i32 s{t+2}, s{t+1}, 10\ns_sub_u32 s{t+2}, s{t}, s{t+2}")
        a(f"s_mul_i32 s{t+6}, s{t+1}, 40960\ns_lshl_b32 s{t+3}, s{t+2}, 7\ns_add_u32 s{t+6}, s{t+6}, s{t+3}")
        a(f"s_mul_i32 s{t+7}, s{sGRP}, 384\ns_lshl_b32 s{t+3}, s{sNH}, 6\ns_add_u32 s{t+7}, s{t+7}, s{t+3}")
        a("s_waitcnt lgkmcnt(0)")
        self.stamp(0)
        self.srd(SRD_M, pB1, 3072)
        self.srd(SRD_W, pW2, 1536*640*2)
        for u in range(6):
            a(f"buffer_load_dwordx2 v[{BI+4*u+2}:{BI+4*u+3}], v{vBo}, s[{SRD_M}:{SRD_M+3}], s{t+7} offen offset:{128*(u >> 1) + 32*(u & 1)}")
        sSrc1 = 69
        a(f"s_mov_b32 s{sSrc1}, s{t+6}")
        self.srd(SRD_WS, pWS, WS_SIZE)
        if TOUCH == 2: self.touch(vLane, 240)
        dsts = [10, 11, 1, 3]
        for u in range(4):
            a(f"s_lshl2_add_u32 s{t+3}, s{t+2}, {u}\ns_mul_i32 s{t+4}, s{t+3}, 205\ns_lshr_b32 s{t+4}, s{t+4}, 10")
            a(f"s_mul_i32 s{t+5}, s{t+4}, 235\ns_add_u32 s{t+5}, s{t+5}, s{t+3}\ns_mul_i32 s{t+4}, s{t+1}, 5\ns_add_u32 s{t+5}, s{t+5}, s{t+4}")
            a(f"s_lshl_b32 s{t+5}, s{t+5}, 10\ns_add_u32 s{t+5}, s{t+5}, {WS_W2R}")
            if LRP: a(f"s_mov_b32 s{dsts[u]}, s{t+5}")
            else: a(f"s_cmp_lt_u32 s{sPIDX}, 120\ns_cselect_b32 s{dsts[u]}, s{t+5}, {BIG}")
        d2, sSrc2, sK2, sInc2 = 40, 0, 75, 70
        self.srd(SRD_M, pWO, 640*640*2)
        a(f"s_lshl1_add_u32 s{t}, s{sPIDX}, s{sWAVE}\ns_sub_u32 s{t}, s{t}, 2")
        a(f"s_cmp_lt_u32 s{t}, 160\ns_cselect_b32 s{sK2}, 1, 2\ns_cmp_lt_u32 s{t}, 200\ns_cselect_b32 s{sK2}, s{sK2}, 0\ns_cmp_lt_u32 s{sWAVE}, 2\ns_cselect_b32 s{sK2}, 0, s{sK2}")
        a(f"s_mul_i32 s{t+1}, s{t}, 6554\ns_lshr_b32 s{t+1}, s{t+1}, 16\ns_mul_i32 s{t+2}, s{t+1}, 10\ns_sub_u32 s{t+2}, s{t}, s{t+2}")
        a(f"s_lshr_b32 s{t+3}, s{t+1}, 1\ns_and_b32 s{t+4}, s{t+1}, 1\ns_sub_u32 s{t+5}, s{t+1}, 16\ns_lshl_b32 s{t+5}, s{t+5}, 1")
        a(f"s_cmp_eq_u32 s{sK2}, 2\ns_cselect_b32 s{t+3}, s{t+5}, s{t+3}\ns_cselect_b32 s{t+4}, 2, s{t+4}\ns_cselect_b32 s{sInc2}, {10240 + 64*1280}, 10240")
        a(f"s_mul_i32 s{sSrc2}, s{t+3}, {80*1280}\ns_mul_i32 s{t+5}, s{t+4}, {32*1280}\ns_add_u32 s{sSrc2}, s{sSrc2}, s{t+5}\ns_lshl_b32 s{t+5}, s{t+2}, 7\ns_add_u32 s{sSrc2}, s{sSrc2}, s{t+5}")
        a(f"s_mul_i32 s{t+3}, s{t+3}, 12800\ns_lshl_b32 s{t+5}, s{t+4}, 10\ns_cmp_eq_u32 s{sK2}, 2\ns_cselect_b32 s{t+5}, 10240, s{t+5}\ns_cselect_b32 s{t+6}, 512, 2048\ns_add_u32 s{t+3}, s{t+3}, s{t+5}\ns_add_u32 s{t+3}, s{t+3}, {WS_WOR}")
        for u in range(4):
            a(f"s_lshl2_add_u32 s{t+4}, s{t+2}, {u}\ns_mul_i32 s{t+5}, s{t+4}, 205\ns_lshr_b32 s{t+5}, s{t+5}, 10\ns_mul_i32 s{t+7}, s{t+5}, 5\ns_sub_u32 s{t+4}, s{t+4}, s{t+7}")
            a(f"s_mul_i32 s{t+5}, s{t+5}, 102400\ns_mul_i32 s{t+4}, s{t+4}, s{t+6}\ns_add_u32 s{t+5}, s{t+5}, s{t+4}\ns_add_u32 s{d2+u}, s{t+5}, s{t+3}")
        sRb64 = t + 11
        a(f"s_lshl1_add_u32 s{sRb64}, s{sRB}, s{sSH}")
        a(f"s_mul_i32 s{t}, s{sRb64}, 48\ns_mul_i32 s{t+1}, s{sGRP}, 6\ns_add_u32 s{t}, s{t}, s{t+1}\ns_add_u32 s{t}, s{t}, s{sNH}\ns_lshl_b32 s{t}, s{t}, 12")
        a(f"s_add_u32 s{sAct}, s{t}, {WS_ACT}\ns_add_u32 s{sAct+1}, s{t}, {WS_ACT + 8192}\ns_add_u32 s{sAct+2}, s{t}, {WS_ACT + 16384}")
        a(f"s_mul_i32 s{t}, s{sRb64}, 40\ns_lshl2_add_u32 s{t}, s{sHALF}, s{t}\ns_lshl1_add_u32 s{t}, s{sCBL}, s{t}\ns_add_u32 s{t}, s{t}, s{sNH}\ns_add_u32 s{t}, s{t}, 24\ns_lshl_b32 s{t}, s{t}, 11\ns_add_u32 s{sPq}, s{t}, {WS_PQ}")
        a(f"s_lshl3_add_u32 s{sF1}, s{sRb64}, s{sGRP}\ns_lshl_b32 s{sF1}, s{sF1}, 7")
        a(f"s_lshl1_add_u32 s{t}, s{sGRP}, s{sNH}\ns_cmp_eq_u32 s{t}, 5\ns_cselect_b32 s{sGs}, 1, 0")
        a(f"s_lshl_b32 s{sF2}, s{sRb64}, 7\ns_add_u32 s{sF2}, s{sF2}, {CNT_PQ}\ns_cmp_lt_u32 s{sCBL}, 6\ns_cselect_b32 s{t}, 1, s{sGs}\ns_cmp_eq_u32 s{t}, 1\ns_cselect_b32 s{sF2}, s{sF2}, {BIG}")
        a(f"s_cmp_ge_u32 s{sCBL}, 6\ns_cselect_b64 vcc, -1, 0")
        def reads(i):
            b = i & 1; so = (i % 3) * WSLOT
            xs = XR + ((i >> 1) % 3) * 16384
            r = [f"ds_read_b128 v[{XB+16*b+4*s}:{XB+16*b+4*s+3}], v{vX1 if i & 1 else vX0} offset:{xs + 2048*s}" for s in range(4)]
            for u in range(6):
                d = WB + 28*b + 4*u
                r.append(f"ds_read_b64_tr_b16 v[{d}:{d+1}], v{vH0 + (u & 1)} offset:{so + 4096*(u >> 1)}")
                r.append(f"ds_read_b64_tr_b16 v[{d+2}:{d+3}], v{vH0 + (u & 1)} offset:{so + 4096*(u >> 1) + 2048}")
            d = WB + 28*b + 24
            if GBR:
                l1, l2 = a.newlabel("L_g"), a.newlabel("L_gj")
                r.append(f"s_cbranch_vccnz {l1}\nds_read_b64_tr_b16 v[{d}:{d+1}], v{vQ} offset:{so}\nds_read_b64_tr_b16 v[{d+2}:{d+3}], v{vQ} offset:{so + 1024}\ns_branch {l2}\n"
                         f"{l1}:\nds_read_b128 v[{d}:{d+3}], v{vGt} offset:{64*i}\n{l2}:")
            else:
                r += [f"ds_read_b64_tr_b16 v[{d}:{d+1}], v{vQ} offset:{so}", f"ds_read_b64_tr_b16 v[{d+2}:{d+3}], v{vQ} offset:{so + 1024}",
                      f"s_mov_b64 exec, vcc\nds_read_b128 v[{d}:{d+3}], v{vGt} offset:{64*i}\ns_mov_b64 exec, -1"]
            return r
        def mfmas(i):
            b = i & 1
            r = []
            for u in (range(7) if i < 19 else (6, 0, 1, 2, 3, 4, 5)):
                for s in range(4):
                    d = ACC + 16*u + 4*s
                    c = f"v[{d}:{d+3}]" if i > 0 else ("0" if u == 6 else f"v[{BI+4*u}:{BI+4*u+3}]")
                    r.append(f"v_mfma_f32_16x16x32_bf16 v[{d}:{d+3}], v[{WB+28*b+4*u}:{WB+28*b+4*u+3}], v[{XB+16*b+4*s}:{XB+16*b+4*s+3}], {c}")
            return r
        unpack = [f"s_waitcnt vmcnt({(3 if TOUCH == 2 else 0) + (4 if RD < 0 else 0) + {0: 0, 1: 8, 2: 3}[PF]})"]
        for u in range(6):
            p = BI + 4*u
            unpack += [f"v_lshlrev_b32 v{p}, 16, v{p+2}", f"v_and_b32 v{p+1}, 0xffff0000, v{p+2}", f"v_lshlrev_b32 v{p+2}, 16, v{p+3}", f"v_and_b32 v{p+3}, 0xffff0000, v{p+3}"]
        RP = BI
        rp_reads = []
        for u in range(4):
            rp_reads += [f"ds_read_b64_tr_b16 v[{RP+4*u}:{RP+4*u+1}], v{vRr} offset:{32*u}", f"ds_read_b64_tr_b16 v[{RP+4*u+2}:{RP+4*u+3}], v{vRr} offset:{32*u + 2048}"]
        rp_st = [f"buffer_store_dwordx4 v[{RP+4*u}:{RP+4*u+3}], v{vL}, {WSR}, s{dsts[u]} offen sc1" for u in range(4)]
        z = [f"s_lshl_b32 s{t}, s{sPIDX}, 9", f"s_mul_i32 s{t+1}, s{sWAVE}, {WS_KVP}", f"s_add_u32 s{t}, s{t}, s{t+1}", f"s_cmp_lt_u32 s{sWAVE}, 2", f"s_cselect_b32 s{t}, s{t}, {BIG}"] + \
            [f"v_mov_b32 v{RP+16+k}, 0" for k in range(4)] + \
            [f"s_mov_b32 exec_hi, 0\nbuffer_store_dwordx4 v[{RP+16}:{RP+19}], v{vL}, {WSR}, s{t} offen sc1\ns_mov_b32 exec_hi, -1"]
        k1, k2, k3, k4 = [a.newlabel("L_r2") for _ in range(4)]
        dma1 = [f"s_lshl_b32 s{t+3}, s{sWAVE}, 12"]
        for j in range(4):
            dma1.append(f"s_add_u32 m0, s{t+3}, {SCR + 1024*j}\ns_nop 0\nbuffer_load_dwordx4 v{vRd}, s[{SRD_W}:{SRD_W+3}], s{sSrc1} offen lds\ns_add_u32 s{sSrc1}, s{sSrc1}, 10240")
        rp_reads2 = [l.replace("offset:", "offset:8192+") for l in rp_reads]
        dma2 = f"s_cmp_eq_u32 s{sK2}, 0\ns_cbranch_scc1 {k1}\n"
        for j in range(4):
            dma2 += f"s_add_u32 m0, s{t+3}, {SCR + 8192 + 1024*j}\ns_nop 0\nbuffer_load_dwordx4 v{vRd}, s[{SRD_M}:{SRD_M+3}], s{sSrc2} offen lds\n"
            if j < 3: dma2 += f"s_add_u32 s{sSrc2}, s{sSrc2}, " + (f"s{sInc2}" if j == 1 else "10240") + "\n"
        dma2 += k1 + ":"
        st2 = f"s_cmp_eq_u32 s{sK2}, 0\ns_cbranch_scc1 {k2}\ns_cmp_eq_u32 s{sK2}, 2\ns_cbranch_scc1 {k3}\n"
        st2 += "".join(f"buffer_store_dwordx4 v[{RP+4*u}:{RP+4*u+3}], v{vL}, {WSR}, s{d2+u} offen sc1\n" for u in range(4))
        st2 += f"s_branch {k2}\n{k3}:\nv_lshrrev_b32 v{vT}, 1, v{vL}\n"
        for u in range(4):
            st2 += f"buffer_store_dwordx2 v[{RP+4*u}:{RP+4*u+1}], v{vT}, {WSR}, s{d2+u} offen sc1\ns_add_u32 s{d2+u}, s{d2+u}, 12800\n"
            st2 += f"buffer_store_dwordx2 v[{RP+4*u+2}:{RP+4*u+3}], v{vT}, {WSR}, s{d2+u} offen sc1\n"
        st2 += k2 + ":"
        sk, sk2 = a.newlabel("L_s1a"), a.newlabel("L_s1b")
        arr = [f"s_cmp_lg_u32 s{sWAVE}, 0", f"s_cbranch_scc1 {sk}",
               f"s_mov_b32 s{SRD_D}, s{pDBG}", f"s_mov_b32 s{SRD_D+1}, s{pDBG+1}", f"s_mov_b32 s{SRD_D+2}, 256", f"s_mov_b32 s{SRD_D+3}, 0x20000",
               f"v_mov_b32 v{vT}, 1", f"s_mov_b64 exec, 1\nbuffer_atomic_add v{vT}, v{vL}, s[{SRD_D}:{SRD_D+3}], 0 offen sc0 sc1\ns_mov_b64 exec, -1", sk + ":"]
        arr2 = [f"s_cmp_lg_u32 s{sWAVE}, 0", f"s_cbranch_scc1 {sk2}", "s_waitcnt vmcnt(0)", f"v_readfirstlane_b32 s{t}, v{vT}", f"v_mov_b32 v{vT+1}, 1",
                f"s_cmp_lg_u32 s{t}, 127", f"s_cbranch_scc1 {sk2}",
                f"s_mov_b32 s{SRD_D}, s{pDBG}", f"s_mov_b32 s{SRD_D+1}, s{pDBG+1}", f"s_mov_b32 s{SRD_D+2}, 256", f"s_mov_b32 s{SRD_D+3}, 0x20000",
                f"s_mov_b64 exec, 1\nbuffer_store_dword v{vT+1}, v{vL}, s[{SRD_D}:{SRD_D+3}], 0 offen offset:128 sc1\ns_mov_b64 exec, -1", sk2 + ":"]
        if RD < 0:
            for l in dma1 + [dma2]: a(l)
        if PF: self.prefetch(vL, 240, S=SRD_D)
        hi, lo = (["s_setprio 3"], ["s_setprio 0"]) if STPRIO else ([], [])
        extra = {0: ([], unpack, []), RS: (["s_waitcnt vmcnt(0)"], rp_reads, []), RS+1: (hi, rp_st + rp_reads2, []),
                 RS+2: ([], [st2] + z, lo), S1AT-1: ([], [], ["s_waitcnt vmcnt(0)"]), S1AT: (arr, [], []), S1AT+2: (arr2, [], [])}
        if LRP:
            a(f"s_lshl_b32 s{t}, s{sWAVE}, 6\ns_add_u32 s{t}, s{t}, {MBOX}\nv_mov_b32 v8, s{t}")
            for u in range(4): a(f"v_mov_b32 v{12+u}, s{dsts[u]}\nv_mov_b32 v{16+u}, s{d2+u}")
            a(f"v_mov_b32 v20, s{sK2}\nds_write_b128 v8, v[12:15]\nds_write_b128 v8, v[16:19] offset:16\nds_write_b32 v8, v20 offset:32\ns_waitcnt lgkmcnt(0)")
            extra = {0: extra[0], 2*LRP - 1: ([], [], ["s_waitcnt vmcnt(0)"])}
        if SPREAD:
            R2 = [216, 220, 240, 244]
            rd2 = []
            for u in range(4):
                rd2 += [f"ds_read_b64_tr_b16 v[{R2[u]}:{R2[u]+1}], v{vRr} offset:{8192 + 32*u}", f"ds_read_b64_tr_b16 v[{R2[u]+2}:{R2[u]+3}], v{vRr} offset:{8192 + 32*u + 2048}"]
            zz = [l.replace(f"v{RP+16}", "v248").replace(f"v{RP+17}", "v249").replace(f"v{RP+18}", "v250").replace(f"v{RP+19}", "v251").replace(f"v[{RP+16}:{RP+19}]", "v[248:251]") for l in z]
            pre2 = [f"v_lshrrev_b32 v{vT+1}, 1, v{vL}"]
            def st2u(u):
                k5, k6 = a.newlabel("L_r2"), a.newlabel("L_r2")
                return (f"s_cmp_eq_u32 s{sK2}, 1\ns_cbranch_scc0 {k5}\nbuffer_store_dwordx4 v[{R2[u]}:{R2[u]+3}], v{vL}, {WSR}, s{d2+u} offen sc1\n{k5}:\n"
                        f"s_cmp_eq_u32 s{sK2}, 2\ns_cbranch_scc0 {k6}\nbuffer_store_dwordx2 v[{R2[u]}:{R2[u]+1}], v{vT+1}, {WSR}, s{d2+u} offen sc1\ns_add_u32 s{d2+u}, s{d2+u}, 12800\n"
                        f"buffer_store_dwordx2 v[{R2[u]+2}:{R2[u]+3}], v{vT+1}, {WSR}, s{d2+u} offen sc1\n{k6}:")
            extra = {0: extra[0], RS: (["s_waitcnt vmcnt(0)"], rp_reads + rd2 + pre2 + zz, []), S1AT: extra[S1AT], S1AT+2: extra[S1AT+2]}
            if SPREAD == 1:
                for u in range(4): extra[RS+1+u] = ([], [rp_st[u], st2u(u)], [])
            else:
                for u in range(4):
                    extra[RS+1+2*u] = ([], [rp_st[u]], []); extra[RS+2+2*u] = ([], [st2u(u)], [])
            e_ = extra.get(S1AT-1, ([], [], []))
            extra[S1AT-1] = (e_[0], e_[1], ["s_waitcnt vmcnt(0)"])
        if RD > 0: extra[RD] = ([], dma1 + [dma2], [])
        if RD == 0: extra[0] = ([], unpack + dma1 + [dma2], [])
        self.main_loop(reads, mfmas, extra, NRE, [vH0, vH1, vQ])
        if EPRIO: a(f"s_setprio {EPRIO}")
        TM = XB
        a("s_nop 3")
        labG, labE = a.newlabel("L_epG"), a.newlabel("L_epE")
        a(f"s_cbranch_vccnz {labG}")
        self.consts("phi")
        for sp in range(2):
            e = ACC + 96 + 8*sp
            for l in self.phi_quad(e, e, TM): a(l)
            for l in self.phi_quad(e + 4, e + 2, TM + 4): a(l)
            a(f"buffer_store_dwordx4 v[{e}:{e+3}], v{vL}, {WSR}, s{sPq} offen offset:{1024*sp} sc1")
        a(f"s_branch {labE}")
        a.label(labG)
        a(f"s_cmp_eq_u32 s{sGs}, 0\ns_cbranch_scc1 {labE}")
        G = ACC + 96
        a(f"v_cmp_le_u32 vcc, 16, v{vLane}\nv_cmp_le_u32 s[{t+2}:{t+3}], 32, v{vLane}\nv_cmp_le_u32 s[{t+4}:{t+5}], 48, v{vLane}\ns_nop 0")
        a(f"v_cndmask_b32 v{G}, v{G}, v{G+4}, vcc\nv_cndmask_b32 v{G}, v{G}, v{G+8}, s[{t+2}:{t+3}]\nv_cndmask_b32 v{G}, v{G}, v{G+12}, s[{t+4}:{t+5}]")
        a(f"s_mov_b32 s{t}, 0x42700000\nv_min_f32 v{G}, s{t}, v{G}\nv_max_f32 v{G}, -s{t}, v{G}\nv_mul_f32 v{G}, s{cL2E}, v{G}\nv_exp_f32 v{G}, v{G}")
        a(f"s_lshl_b32 s{t}, s{sRb64}, 8\ns_add_u32 s{t}, s{t}, {WS_G}\nv_add_f32 v{G+2}, 1.0, v{G}\nv_rcp_f32 v{G+2}, v{G+2}\nv_lshlrev_b32 v{G+1}, 2, v{vLane}\ns_add_u32 s{t+1}, s{t}, 8192")
        a(f"buffer_store_dword v{G}, v{G+1}, {WSR}, s{t} offen sc1\nbuffer_store_dword v{G+2}, v{G+1}, {WSR}, s{t+1} offen sc1")
        a.label(labE)
        self.consts("mish")
        for L in range(3):
            for s in range(4):
                e, o = ACC + 32*L + 4*s, ACC + 32*L + 16 + 4*s
                for l in self.mish_quad(e, e, TM + 8*(s & 1)): a(l)
                for l in self.mish_quad(o, e + 2, TM + 4 + 8*(s & 1)): a(l)
                if DIAG != 1: a(f"buffer_store_dwordx4 v[{e}:{e+3}], v{vL}, {WSR}, s{sAct+L} offen offset:{1024*s} {'' if DIAG == 2 else 'sc1'}")
            if L == 0 and EARLYQ:
                a("s_waitcnt vmcnt(4)")
                self.signal(sF2, vT)
            if LFLAG and L >= 1:
                a(f"s_waitcnt vmcnt({4 if L == 1 else 5})")
                self.signal(sF1, vT, 4*(L - 1))
        a(f"v_mov_b32 v0, v{vLane}")
        self.stamp(3)
        self.finish1([sF1] if EARLYQ else [sF1, sF2], strict=bool(STRICTP), late8=True)

    def compute_KV(self):
        a = self.a
        t = T0
        ACC, XB, WB = 0, 112, 128
        vX0, vX1, vK, vQ0, vL = 240, 241, 242, 243, 247
        vLane = 253
        sPq, sF2, sRec = 72, 73, 74
        a(f"v_mov_b32 v{vLane}, v0")
        a(f"v_and_b32 v1, 15, v0\nv_lshrrev_b32 v2, 4, v0\nv_lshrrev_b32 v3, 1, v1\nv_xor_b32 v3, v3, v2\nv_lshlrev_b32 v3, 4, v3\nv_lshl_add_u32 v3, v1, 7, v3")
        a(f"s_lshl_b32 s{t}, s{sWAVE}, 12\nv_add_u32 v{vX0}, s{t}, v3\nv_xor_b32 v{vX1}, 64, v{vX0}")
        a(f"v_lshrrev_b32 v3, 2, v0\nv_and_b32 v4, 3, v0\nv_lshlrev_b32 v4, 3, v4")
        a(f"v_mul_u32_u24 v5, 160, v3\nv_add_u32 v5, v5, v4\nv_add_u32 v{vK}, {WR}, v5")
        a(f"v_lshl_add_u32 v5, v3, 7, v4\nv_bfe_u32 v6, v0, 3, 2\nv_lshl_add_u32 v5, v6, 5, v5\nv_add_u32 v{vQ0}, {WR+10240}, v5")
        for u in range(1, 4): a(f"v_xor_b32 v{vQ0+u}, {32*u}, v{vQ0}")
        a(f"v_lshlrev_b32 v{vL}, 4, v0")
        a(f"s_lshr_b32 s{t}, s{sWAVE}, 1\ns_lshl1_add_u32 s{t+1}, s{sRB}, s{t}")
        a(f"s_lshl_b32 s{sF2}, s{t+1}, 7\ns_add_u32 s{sF2}, s{sF2}, {CNT_PQ}")
        a(f"s_mul_i32 s{t+1}, s{t+1}, 40\ns_lshl2_add_u32 s{t+1}, s{sGRP}, s{t+1}\ns_and_b32 s{t}, s{sWAVE}, 1\ns_lshl1_add_u32 s{t+1}, s{t+1}, s{t}\ns_lshl_b32 s{t+1}, s{t+1}, 10\ns_add_u32 s{sPq}, s{t+1}, {WS_PQ}")
        a(f"s_lshl2_add_u32 s{t}, s{sGRP}, s{sWAVE}\ns_lshl_b32 s{sF1}, s{t}, 7\ns_add_u32 s{sF1}, s{sF1}, {CNT_KV}")
        a(f"s_mul_i32 s{t}, s{t}, 1792\ns_add_u32 s{sRec}, s{t}, {WS_KVP}")
        a(f"s_mov_b32 s{cL2E}, 0x3fb8aa3b\ns_mov_b32 s{cL2E+1}, 0x3fb8aa3b")
        self.consts("phi")
        a("s_waitcnt lgkmcnt(0)")
        self.stamp(0)
        self.srd(SRD_WS, pWS, WS_SIZE)
        if TOUCH: self.touch(vLane, 248)
        if PF: self.prefetch(vL, 248)
        def reads(i):
            b = i & 1; so = (i % 3) * WSLOT
            xs = XR + ((i >> 1) % 3) * 16384
            r = [f"ds_read_b128 v[{XB+8*b+4*s}:{XB+8*b+4*s+3}], v{vX1 if i & 1 else vX0} offset:{xs + 2048*s}" for s in range(2)]
            for u in range(14):
                d = WB + 56*b + 4*u
                if u < 10: base, off, d2 = vK, 5120*(u // 5) + 32*(u % 5), 2560
                else: base, off, d2 = vQ0 + u - 10, 0, 2048
                r.append(f"ds_read_b64_tr_b16 v[{d}:{d+1}], v{base} offset:{so + off}")
                r.append(f"ds_read_b64_tr_b16 v[{d+2}:{d+3}], v{base} offset:{so + off + d2}")
            return r
        def mfmas(i):
            b = i & 1
            r = []
            order = list(range(14)) if i < 19 else [5, 6, 7, 8, 9, 0, 1, 2, 3, 4, 10, 11, 12, 13]
            for u in order:
                for s in range(2):
                    d = ACC + 8*u + 4*s
                    c = f"v[{d}:{d+3}]" if i > 0 else "0"
                    w, x = f"v[{WB+56*b+4*u}:{WB+56*b+4*u+3}]", f"v[{XB+8*b+4*s}:{XB+8*b+4*s+3}]"
                    r.append(f"v_mfma_f32_16x16x32_bf16 v[{d}:{d+3}], {x if u < 10 else w}, {w if u < 10 else x}, {c}")
            return r
        self.main_loop(reads, mfmas, {}, 24, [vK, vQ0, vQ0+1, vQ0+2, vQ0+3])
        TM = XB
        vEx = vX0
        a(f"s_mul_i32 s{t}, s{sWAVE}, 10240\nv_add_u32 v{vEx}, s{t}, v{vL}")
        for u in range(5, 10):
            e = ACC + 8*u
            a(f"v_cvt_pk_bf16_f32 v{e}, v{e}, v{e+1}\nv_cvt_pk_bf16_f32 v{e+1}, v{e+2}, v{e+3}\nv_cvt_pk_bf16_f32 v{e+2}, v{e+4}, v{e+5}\nv_cvt_pk_bf16_f32 v{e+3}, v{e+6}, v{e+7}")
            a(f"ds_write_b128 v{vEx}, v[{e}:{e+3}] offset:{XR + 1024*u}")
        for u in range(5):
            e = ACC + 8*u
            for l in self.phi_quad(e, e, TM): a(l)
            for l in self.phi_quad(e + 4, e + 2, TM + 4): a(l)
            a(f"ds_write_b128 v{vEx}, v[{e}:{e+3}] offset:{XR + 1024*u}")
        a(f"s_lshl_b32 s{t}, s{sWAVE}, 10\nv_add_u32 v{vEx}, s{t}, v{vL}")
        ONE = WB + 64
        for k in range(4): a(f"v_mov_b32 v{ONE+k}, 0x3f803f80")
        if K1LDS:
            lp, dn = a.newlabel("L_k1"), a.newlabel("L_k1d")
            a(f"v_mov_b32 v{vK}, {K1C}\nv_mov_b32 v{vQ0}, 1\ns_mov_b32 s{t}, 0\ns_waitcnt lgkmcnt(0)\ns_mov_b64 exec, 1\nds_add_u32 v{vK}, v{vQ0}\ns_mov_b64 exec, -1")
            a.label(lp)
            a(f"ds_read_b32 v{vQ0}, v{vK}\ns_add_u32 s{t}, s{t}, 1\ns_waitcnt lgkmcnt(0)\nv_readfirstlane_b32 s{t+1}, v{vQ0}\ns_cmp_ge_u32 s{t}, {SPIN}\ns_cbranch_scc1 {dn}\ns_cmp_lt_u32 s{t+1}, 4\ns_cbranch_scc1 {lp}")
            a.label(dn)
        else:
            a("s_waitcnt lgkmcnt(0)\ns_barrier")
        FR = WB
        for g in range(4):
            for j, off in enumerate((0, 1024, 5120, 6144)):
                a(f"ds_read_b128 v[{FR+16*g+4*j}:{FR+16*g+4*j+3}], v{vEx} offset:{XR + 10240*g + off}")
        AD = WB + 72
        dc, BG, ev, R = AD, AD + 2, AD + 3, AD + 8
        ad = [f"v_lshrrev_b32 v{dc}, 4, v{vLane}", f"v_and_b32 v{ev}, 15, v{vLane}", f"v_mov_b32 v{BG}, 0x10000", f"v_cmp_eq_u32 vcc, 0, v{ev}",
              f"v_mov_b32 v{R}, 320", f"v_subrev_u32 v{dc}, s{sWAVE}, v{dc}", f"v_cndmask_b32 v{ev+2}, v{BG}, v{R}, vcc", f"v_add_u32 v{dc+1}, 4, v{dc}",
              f"s_lshl_b32 s{t}, s{sWAVE}, 2", f"v_subrev_u32 v{ev}, s{t}, v{ev}", f"v_add_u32 v{ev+1}, 16, v{ev}",
              f"s_lshl_b32 s{t+4}, s{sWAVE}, 11", f"s_add_u32 s{t+4}, s{t+4}, {STG}"]
        for k in range(2):
            ad += [f"v_cmp_gt_u32 vcc, 5, v{dc+k}", f"v_cmp_gt_u32 s[{t+2}:{t+3}], 20, v{ev+k}", f"v_mul_u32_u24 v{dc+k}, 336, v{dc+k}", f"v_lshlrev_b32 v{ev+k}, 4, v{ev+k}",
                   f"v_cndmask_b32 v{dc+k}, v{BG}, v{dc+k}, vcc", f"v_cndmask_b32 v{ev+k}, v{BG}, v{ev+k}, s[{t+2}:{t+3}]"]
        for k in range(2):
            ad += [f"v_add_u32 v{R+3*k+b}, v{dc+k}, v{ev+b}" for b in range(3)]
            ad += [f"v_min_u32 v{R+3*k+b}, 1680, v{R+3*k+b}" for b in range(3)]
            ad += [f"v_add_u32 v{R+3*k+b}, s{t+4}, v{R+3*k+b}" for b in range(3)]
        ad += [f"v_lshlrev_b32 v{dc}, 2, v{vLane}", f"v_add_u32 v{vEx}, s{t+4}, v{dc}"]
        for l in ad[:20]: a(l)
        D = ACC
        mm = []
        for g in range(4):
            for k in range(2):
                for b in range(3):
                    d = D + 12*k + 4*b
                    B = f"v[{FR+16*g+8+4*b}:{FR+16*g+8+4*b+3}]" if b < 2 else f"v[{ONE}:{ONE+3}]"
                    mm.append(f"v_mfma_f32_16x16x32_bf16 v[{d}:{d+3}], v[{FR+16*g+4*k}:{FR+16*g+4*k+3}], {B}, {'0' if g == 0 else f'v[{d}:{d+3}]'}")
        a("s_waitcnt lgkmcnt(0)")
        for l in interleave(mm, ad[20:], 0, 16): a(l)
        def qmath(u):
            e = ACC + 8*u
            return self.phi_quad(e, e, TM) + self.phi_quad(e + 4, e + 2, TM + 4)
        q10 = qmath(10)
        for l in q10[:8]: a(l)
        for j in range(6): a(f"ds_write_b128 v{R+j}, v[{D+4*j}:{D+4*j+3}]")
        for l in q10[8:20]: a(l)
        a("s_waitcnt lgkmcnt(0)")
        for j in range(7): a(f"ds_read_b32 v{j}, v{vEx} offset:{256*j}")
        for l in q10[20:]: a(l)
        a("s_waitcnt lgkmcnt(0)")
        for j in range(7):
            if j == 6: a("s_mov_b32 exec_hi, 15")
            a(f"buffer_atomic_add_f32 v{j}, v{dc}, {WSR}, s{sRec} offen offset:{256*j} sc1")
        a("s_mov_b32 exec_hi, -1")
        a(f"s_add_u32 s{t}, s{sPq}, 4096")
        def qst(u):
            e = ACC + 8*(10 + u)
            a(f"buffer_store_dwordx4 v[{e}:{e+3}], v{vL}, {WSR}, s{sPq if u < 2 else t} offen offset:{2048*(u & 1)} sc1")
        qst(0)
        for u in (1, 2, 3):
            for l in qmath(10 + u): a(l)
            qst(u)
        a(f"v_mov_b32 v0, v{vLane}")
        self.stamp(3)
        self.finish1([sF1, sF2], strict=True)

    def setup2(self):
        a = self.a
        t = T0
        if MAP2 == "x2":
            a(f"s_bfe_u32 s{t+2}, s{sWG}, 0x20001\ns_bfe_u32 s{t+3}, s{sWG}, 0x30003\ns_lshl3_add_u32 s{sR64}, s{t+2}, s{t+3}")
            a(f"s_and_b32 s{t+2}, s{sWG}, 1\ns_lshr_b32 s{t+3}, s{sWG}, 6\ns_lshl2_add_u32 s{sC}, s{t+2}, s{t+3}")
        else:
            a(f"s_and_b32 s{t+2}, s{sWG}, 7\ns_bfe_u32 s{t+3}, s{sWG}, 0x20003\ns_lshl2_add_u32 s{sR64}, s{t+2}, s{t+3}\ns_lshr_b32 s{sC}, s{sWG}, 5")
        if FAKE == 1: a(f"s_and_b32 s{sR64}, s{sWG}, 7\ns_lshl_b32 s{sR64}, s{sR64}, 2\ns_mov_b32 s{sC}, 0")
        if FAKE == 2: a(f"s_mov_b32 s{sC}, 0")
        if FAKE == 3: a(f"s_and_b32 s{sR64}, s{sWG}, 7\ns_lshl_b32 s{sR64}, s{sR64}, 2")
        a(f"v_lshlrev_b32 v{vL16}, 4, v0\nv_add_u32 v{vL16b}, 4096, v{vL16}")
        if ROT2 == "none":
            a(f"s_mov_b32 s{t}, 0")
        elif ROT2 == "xor":
            a(f"s_lshr_b32 s{t}, s{sWG}, 3\ns_lshr_b32 s{t+1}, s{sWG}, 6\ns_xor_b32 s{t}, s{t}, s{t+1}\ns_and_b32 s{t}, s{t}, 1")
        elif ROT2 == "two":
            a(f"s_lshr_b32 s{t}, s{sWG}, 3\ns_lshr_b32 s{t+1}, s{sWG}, {6 if MAP2 == 'x2' else 5}\ns_xor_b32 s{t}, s{t}, s{t+1}\ns_and_b32 s{t}, s{t}, 1\ns_mul_i32 s{t}, s{t}, 3")
        elif MAP2 == "x2":
            a(f"s_and_b32 s{t}, s{sC}, 3\ns_mul_i32 s{t}, s{t}, 3\ns_lshr_b32 s{t}, s{t}, 1")
        else:
            a(f"s_mul_i32 s{t}, s{sC}, 3\ns_lshr_b32 s{t}, s{t}, 2")
        a(f"s_mul_i32 s{t+1}, s{sWAVE}, 6")
        a(f"s_mul_i32 s{t+2}, s{sC}, {48*5120}\ns_add_u32 s{t+2}, s{t+2}, {WS_W2R}")
        a(f"s_mul_i32 s{t+3}, s{sR64}, {48*4096}\ns_add_u32 s{t+3}, s{t+3}, {WS_ACT}")
        for i in range(6):
            a(f"s_add_u32 s{t+4}, s{t+1}, s{t}\ns_mul_i32 s{sB0+i}, s{t+4}, 5120\ns_add_u32 s{sB0+i}, s{sB0+i}, s{t+2}")
            a(f"s_lshl_b32 s{sA0+i}, s{t+4}, 12\ns_add_u32 s{sA0+i}, s{sA0+i}, s{t+3}")
            if i < 5 and ROT2 == "xor": a(f"s_xor_b32 s{t}, s{t}, {i ^ (i + 1)}")
            elif i < 5: a(f"s_add_u32 s{t}, s{t}, 1\ns_cmp_eq_u32 s{t}, 6\ns_cselect_b32 s{t}, 0, s{t}")
        a(f"s_lshl3_add_u32 s{sFa}, s{sR64}, s{sWAVE}\ns_lshl_b32 s{sFa}, s{sFa}, 7\ns_lshl_b32 s{sFq}, s{sR64}, 7\ns_add_u32 s{sFq}, s{sFq}, {CNT_PQ}")
        a(f"s_mul_i32 s{sPQb}, s{sR64}, 40\ns_mul_i32 s{t}, s{sWAVE}, 5\ns_add_u32 s{sPQb}, s{sPQb}, s{t}\ns_lshl_b32 s{sPQb}, s{sPQb}, 11\ns_add_u32 s{sPQb}, s{sPQb}, {WS_PQ}")
        a(f"s_lshl3_add_u32 s{sMb}, s{sC}, s{sWAVE}\ns_mul_i32 s{sMb}, s{sMb}, 12800\ns_add_u32 s{sMb}, s{sMb}, {WS_WOR}")
        a(f"s_mul_i32 s{sKv}, s{sWAVE}, 7168\ns_add_u32 s{sKv}, s{sKv}, {WS_KVP}\ns_lshl_b32 s{sFk}, s{sWAVE}, 9\ns_add_u32 s{sFk}, s{sFk}, {CNT_KV}")

    def preload_b(self, n0, n1, th=0):
        for n in range(n0, n1):
            if th and n < NTH: self.a(f"s_waitcnt vmcnt({th - 1})")
            i, jn = divmod(n, 5)
            d = BS + 20*i + 4*jn
            self.a(f"buffer_load_dwordx4 v[{d}:{d+3}], v{vL16 if jn < 4 else vL16b}, {WSR}, s{sB0+i} offen offset:{1024*jn if jn < 4 else 0} sc1")

    def stage_b(self):
        a = self.a
        t = T0
        a(f"s_mul_i32 s{t}, s{sT}, 20480\ns_add_u32 s{t}, s{t}, {BL}")
        for i in range(2, NB):
            a(f"s_sub_u32 s{t+1}, s{sB0+i}, 122880")
            for jn in range(5):
                if jn in (0, 4):
                    a(f"s_add_u32 m0, s{t}, {5120*(i-2) + 1024*jn}")
                    a(f"s_add_u32 s{t+1}, s{t+1}, 4096" if jn else "s_nop 0")
                if TH and NB*5 + 5*(i - 2) + jn < NTH: a(f"s_waitcnt vmcnt({TH - 1})")
                a(f"buffer_load_dwordx4 v{vL16}, {WSR}, s{t+1} offen offset:{1024*(jn % 4)} sc1 lds")
        a("s_waitcnt vmcnt(0)")

    def gemm2(self):
        a = self.a
        t = T0
        seq = []
        LN = 255
        def ldl(dst, n, v, so, off, tag):
            seq.append(tag)
            return [f"buffer_load_dword{ {1: '', 2: 'x2', 4: 'x4'}[n] } {vr(dst, n)}, v{v}, {WSR}, s{so} offen offset:{off} sc1"]
        def emit(L):
            for l in L: a(l)
        def wait(tag):
            last = max(n for n, x in enumerate(seq) if x == tag)
            a(f"s_waitcnt vmcnt({len(seq) - 1 - last})")
        def act(i):
            return sum((ldl(AB + 16*(i % 3) + 4*st, 4, vL16, sA0 + i, 1024*st, f"act{i}") for st in range(4)), [])
        def check(soff, target, sleep=None):
            ok = a.newlabel("L_ok")
            a(f"v_cmp_le_u32 vcc, {target}, v{vP+1}\ns_nop 1\ns_cmp_eq_u64 vcc, -1\ns_cbranch_scc1 {ok}")
            self.poll(soff, target, vP, vP + 1, sleep=sleep)
            a.label(ok)
        def dma(so, n, lds, tag):
            r = []
            for k in range(n):
                pre = ""
                if k % 4 == 0:
                    pre = f"s_add_u32 m0, s{sLB}, {lds + 1024*k}\n" + (f"s_add_u32 s{so}, s{so}, 4096\n" if k else "s_nop 0\n")
                r.append(pre + f"buffer_load_dwordx4 v{vL16}, {WSR}, s{so} offen offset:{1024*(k % 4)} sc1 lds"); seq.append(tag)
            return r
        def pq(base, sp):
            return sum((ldl(base + 20*sp + 4*tt, 4, vL16, (sPQb, t, t + 1)[tt >> 1], 2048*(tt & 1) + 1024*sp, f"pq{sp}") for tt in range(5)), [])
        def gld(va):
            return sum((ldl(vG + st, 1, va, t + 3, 64*st, "g") for st in range(4)), [])
        def lateb(i=5):
            if i < NB: return []
            r = sum((ldl(BS + 20*i + 4*jn, 4, vL16, sB0 + i, 1024*jn, f"act{i}") for jn in range(4)), [])
            return r + [f"s_add_u32 s{sB0+i}, s{sB0+i}, 4096"] + ldl(BS + 20*i + 16, 4, vL16, sB0 + i, 0, f"act{i}")
        chunks = [(0, 0), (0, 1), (1, 0), (1, 1), (1, 2), (2, 1), (2, 2), (2, 3), (3, 2), (3, 3), (4, 3), (3, 4), (4, 4)] + [("z", tt) for tt in range(5)]
        slot = dict(zip(chunks, [0, 1, 2, 3, 4, 7, 8, 9, 10, 11, 13, 14, 15, 16, 17, 18, 19, 20]))
        X, K0 = 24, 0
        ad = [f"v_and_b32 v{X}, 15, v{LN}", f"v_lshrrev_b32 v{X+1}, 4, v{LN}", f"s_add_u32 s{t+2}, s{sLB}, 13312", f"v_mul_u32_u24 v{X+3}, 336, v{X+1}", f"v_add_u32 v{X+3}, s{t+2}, v{X+3}",
              f"v_add_u32 v{X+18}, s{sLB}, v{vL16}", f"s_add_u32 s{t+2}, s{t+2}, 7056", f"v_mov_b32 v{X+13}, s{t+2}"] + [f"v_subrev_u32 v{X+13+k}, {1344*k}, v{X+13}" for k in range(1, 5)]
        for te in (0, 1, 2, 3, 4, "z"):
            if te == "z":
                ad += [f"v_and_b32 v{X+4}, 3, v{LN}", f"v_mul_u32_u24 v{X+5}, 112, v{X+4}", f"v_add_u32 v{X+6}, 320, v{X+3}", f"v_add_u32 v{X+5}, v{X+5}, v{X+6}"]
            else:
                ad += [f"v_add_u32 v{X+6}, {16*te}, v{X}", f"v_mul_u32_u24 v{X+4}, 3277, v{X+6}", f"v_lshrrev_b32 v{X+4}, 16, v{X+4}",
                       f"v_lshl_add_u32 v{X+6}, v{X+6}, 4, v{X+3}", f"v_mad_i32_i24 v{X+5}, v{X+4}, s{sN208}, v{X+6}"]
            ad += [f"v_mad_i32_i24 v{X+4}, v{X+4}, -5, v{X+1}"]
            mine = [(j, c) for j, c in enumerate(chunks) if c[0] == te]
            ad += [f"v_add_u32 v{X+8+n}, {4*c[1]}, v{X+4}" for n, (j, c) in enumerate(mine)]
            ad += [f"v_cmp_gt_u32 s[{t+4+2*n}:{t+5+2*n}], 5, v{X+8+n}" for n, (j, c) in enumerate(mine)]
            ad += ["s_nop 0"]
            ad += [f"v_cndmask_b32 v{K0+j}, v{X+13+c[1]}, v{X+5}, s[{t+4+2*n}:{t+5+2*n}]" for n, (j, c) in enumerate(mine)]
        mq = [t + 4, t + 6, t + 8]
        consts = [f"s_mov_b32 s{cE}, 0x358637bd", f"s_mov_b32 s{mq[0]}, 0xffff", f"s_mov_b32 s{mq[0]+1}, 0", f"s_mov_b32 s{mq[1]}, -1", f"s_mov_b32 s{mq[1]+1}, 0",
                  f"s_mov_b32 s{mq[2]}, -1", f"s_mov_b32 s{mq[2]+1}, 0xffff"]
        swaps = lambda R: [f"v_swap_b32 v{R+8*p+2+k}, v{R+8*p+4+k}" for p in range(2) for k in range(2)]
        K32 = lambda d, A, B, c: f"v_mfma_f32_16x16x32_bf16 v[{d}:{d+3}], v[{A}:{A+3}], v[{B}:{B+3}], {c}"
        K16 = lambda d, A, B: f"v_mfma_f32_16x16x16_bf16 v[{d}:{d+3}], v[{A}:{A+1}], v[{B}:{B+1}], v[{d}:{d+3}]"
        acc = lambda d: f"v[{d}:{d+3}]"
        def fqf(base):
            def fq(st, tt):
                R = base + 20*(st >> 1)
                return R + 8*(tt >> 1) + 4*(st & 1) + 2*(tt & 1) if tt < 4 else R + 16 + 2*(st & 1)
            return fq
        def gather(KAr, raw, KP, PQb, first):
            for j, c in enumerate(chunks):
                a(f"ds_read_b128 v[{raw(j)}:{raw(j)+3}], v{KAr+j} offset:{1344*c[1]}")
            emit(swaps(PQb) + swaps(PQb + 20))
            for j, c in enumerate(chunks):
                if j in (0, first): a(f"s_waitcnt lgkmcnt({18 - first if j == 0 else 0})")
                d, r = KP + 2*slot[c], raw(j)
                a(f"v_cvt_pk_bf16_f32 v{d}, v{r}, v{r+1}\nv_cvt_pk_bf16_f32 v{d+1}, v{r+2}, v{r+3}")
            for z in (5, 6, 12): a(f"v_mov_b32 v{KP+2*z}, 0\nv_mov_b32 v{KP+2*z+1}, 0")
        def scales(st, DN, SC):
            r = ([] if LATEORD else [f"v_add_f32 v{DN+k}, s{cE}, v{DN+k}" for k in range(4)]) + [f"v_rcp_f32 v{DN+k}, v{DN+k}" for k in range(4)]
            r += [f"v_mul_f32 v{DN+k}, v{vG+st}, v{DN+k}" for k in range(4)]
            return r + [f"v_cndmask_b32 v{SC[k]}, v{DN+k+1}, v{DN+k}, s[{mq[k]}:{mq[k]+1}]" for k in range(3)]
        def vtile(st, tt, o, DN, SC, fq):
            sc = (DN, SC[0], SC[1], SC[2], DN + 3)[tt]
            return [f"v_mul_f32 v{o+k}, v{sc}, v{o+k}" for k in range(4)] + [f"v_cvt_pk_bf16_f32 v{fq(st,tt)}, v{o}, v{o+1}", f"v_cvt_pk_bf16_f32 v{fq(st,tt)+1}, v{o+2}, v{o+3}"]
        def mlp(i, zero, sts=None):
            order = [(jn, st) for jn in range(5) for st in range(4)] if sts is None else [(jn, st) for st in sts for jn in range(5)]
            return [K32(20*st + 4*jn, BS + 20*i + 4*jn, AB + 16*(i % 3) + 4*st, "0" if zero else acc(20*st + 4*jn)) for jn, st in order]
        TA, RA, vRW = 224, 170, vP
        rw = [f"v_and_b32 v{TA}, 15, v{LN}", f"v_mul_u32_u24 v{TA}, 160, v{TA}", f"v_bfe_u32 v{TA+1}, v{LN}, 5, 1", f"v_bfe_u32 v{vRW}, v{LN}, 2, 1", f"v_xor_b32 v{TA+1}, v{TA+1}, v{vRW}",
              f"v_lshl_add_u32 v{TA}, v{TA+1}, 4, v{TA}", f"v_bfe_u32 v{TA+1}, v{LN}, 4, 1", f"v_mul_u32_u24 v{TA+1}, 10240, v{TA+1}", f"v_add3_u32 v{vRW}, v{TA}, v{TA+1}, s{sLB}"]
        wrl = lambda st: [f"ds_write_b128 v{vRW}, v[{20*st+4*jn}:{20*st+4*jn+3}] offset:{2560*st + 32*jn}" for jn in range(5)]
        rd = [f"s_mul_i32 s{t}, s{sWAVE}, 80", f"v_add_u32 v{RA}, s{t}, v{LN}", f"v_add_u32 v{RA+1}, 64, v{RA}",
              f"s_lshl_b32 s{t+2}, s{sR64}, 8", f"s_add_u32 s{t+2}, s{t+2}, {WS_G + 8192}"]
        for k in range(2):
            rd += [f"v_mul_u32_u24 v{RA+2}, 6554, v{RA+k}", f"v_lshrrev_b32 v{RA+2}, 16, v{RA+2}", f"v_mad_i32_i24 v{RA+3}, v{RA+2}, -10, v{RA+k}", f"v_lshlrev_b32 v{TA+2+k}, 2, v{RA+2}",
                   f"buffer_load_dword v{TA+2+k}, v{TA+2+k}, {WSR}, s{t+2} offen sc1",
                   f"v_bfe_u32 v{RA+6}, v{RA+2}, 2, 1", f"v_xor_b32 v{RA+k}, v{RA+k}, v{RA+6}",
                   f"v_mul_u32_u24 v{RA+2}, 1280, v{RA+2}", f"v_lshl_add_u32 v{RA+4+k}, v{RA+3}, 4, v{RA+2}", f"v_lshlrev_b32 v{RA+k}, 4, v{RA+k}"]
        rd += [f"v_add_u32 v{RA+6}, 61440, v{RA}", f"v_add_u32 v{RA+7}, 61440, v{RA+1}", f"v_add_u32 v{RA+8}, 122880, v{RA}", f"v_add_u32 v{RA+9}, 122880, v{RA+1}"]
        rd += [f"s_mov_b32 s{SRD_M}, s{pOUT}", f"s_mov_b32 s{SRD_M+1}, s{pOUT+1}", f"s_mov_b32 s{SRD_M+2}, {2048*640*2}", f"s_mov_b32 s{SRD_M+3}, 0x20000",
               f"s_mul_i32 s{t}, s{sR64}, 81920", f"s_mul_i32 s{t+1}, s{sC}, 160", f"s_add_u32 s{t}, s{t}, s{t+1}"]
        def flagvec(vt, with_act):
            a(f"v_lshlrev_b32 v{vP}, 2, v{LN}\nv_add_u32 v{vP}, s{sFk}, v{vP}\nv_mov_b32 v{vt}, 1\nv_cmp_le_u32 vcc, 4, v{LN}\nv_mov_b32 v{vt+1}, s{sFq}\ns_add_u32 s{t+2}, s{sFa}, 8")
            a(f"v_cndmask_b32 v{vP}, v{vP}, v{vt+1}, vcc")
            if with_act:
                a(f"v_cmp_lt_u32 vcc, 4, v{LN}\nv_mov_b32 v{vt+1}, s{t+2}\ns_nop 0\nv_cndmask_b32 v{vP}, v{vP}, v{vt+1}, vcc\nv_cndmask_b32 v{vt}, v{vt}, 2, vcc")

        a(f"s_setprio 0\nv_lshrrev_b32 v{LN}, 4, v{vL16}")
        a(f"s_xor_b32 s{sLB}, s{sWAVE}, 4\ns_mul_i32 s{sLB}, s{sLB}, 20480\ns_mov_b32 s{sN208}, -208")
        a(f"s_lshl_b32 s{t+3}, s{sR64}, 8\ns_add_u32 s{t+3}, s{t+3}, {WS_G}\ns_add_u32 s{t}, s{sPQb}, 4096\ns_add_u32 s{t+1}, s{sPQb}, 8192")
        if LFLAG: a(f"v_and_b32 v{vP}, 1, v{LN}\nv_lshlrev_b32 v{vP}, 2, v{vP}")
        else: a(f"v_mov_b32 v{vP}, 0")
        if ADPRE: emit(ad)
        if not NOE1: a("s_barrier")
        self.stamp(4)
        apoll = f"v_mov_b32 v{vP+1}, 0\ns_mov_b64 exec, 1\nbuffer_atomic_add v{vP+1}, v{vP}, {WSR}, s{sFa} offen sc0 sc1\ns_mov_b64 exec, -1"
        if ATP: a(apoll)
        elif WOPOS != "pre": a(f"buffer_load_dword v{vP+1}, v{vP}, {WSR}, s{sFa} offen sc1")
        self.pickup()
        if WOPOS == "pre":
            a("s_waitcnt lgkmcnt(0)")
            emit(dma(sMb, 13, 0, "wo"))
        if not ADPRE: emit(ad)
        a("s_waitcnt lgkmcnt(0)")
        for k in range(5): a(f"ds_write_b128 v{X+18}, v[{K0+4*k}:{K0+4*k+3}] offset:{13312 + 1024*k}")
        if ATP:
            lp, dn = a.newlabel("L_ap"), a.newlabel("L_apd")
            a(f"s_mov_b32 s{t+15}, 0")
            a.label(lp)
            a(f"s_waitcnt vmcnt(0)\nv_readfirstlane_b32 s{t+14}, v{vP+1}\ns_add_u32 s{t+15}, s{t+15}, 1\ns_cmp_ge_u32 s{t+14}, 2\ns_cbranch_scc1 {dn}")
            a(f"s_cmp_ge_u32 s{t+15}, {SPIN}\ns_cbranch_scc1 {dn}\ns_sleep {ATP}\n{apoll}\ns_branch {lp}")
            a.label(dn)
        elif WOPOS == "pre": self.poll(f"s{sFa}", 2, vP, vP + 1)
        else:
            a("s_waitcnt vmcnt(0)")
            if LFLAG == 1:
                sk = a.newlabel("L_sig")
                a(f"s_cmp_ge_u32 s{sWAVE}, 4\ns_cbranch_scc1 {sk}")
                self.stamp(5)
                self.signal(sF1, 46); self.signal(32, 46)
                a.label(sk)
            check(f"s{sFa}", 2)
        self.stamp(6)
        PR = {"a": {-1: 3, 2: 2, 5: 1, 6: 0}, "b": {-1: 3, 1: 2, 3: 1, 6: 0}, "c": {-1: 1, 5: 0}, "d": {-1: 2, 5: 1, 7: 0}, "e": {-1: 3, 3: 2, 6: 1, 8: 0}}.get(PRIO, {})
        prio = lambda k: a(f"s_setprio {PR[k]}") if k in PR else None
        prio(-1)
        emit(act(0))
        a(f"v_lshlrev_b32 v{vP}, 7, v{LN}\nv_add_u32 v{vP}, s{sFk}, v{vP}\nv_cmp_le_u32 vcc, 4, v{LN}\nv_mov_b32 v{vG+1}, s{sFq}\nv_mov_b32 v{vG}, 16")
        a(f"v_cndmask_b32 v{vP}, v{vP}, v{vG+1}, vcc\nv_cndmask_b32 v{vG}, v{vG}, 25, vcc")
        if LFLAG: a(f"v_cmp_lt_u32 vcc, 4, v{LN}\ns_add_u32 s{t+2}, s{sFa}, 8\nv_mov_b32 v{vG+1}, s{t+2}\nv_cndmask_b32 v{vP}, v{vP}, v{vG+1}, vcc\nv_cndmask_b32 v{vG}, v{vG}, 2, vcc")
        fv = lambda: (a(f"buffer_load_dword v{vP+1}, v{vP}, {WSR}, 0 offen sc1"), seq.append("fv"))
        if FVAT < 0: fv()
        emit(act(1) + act(2))
        fill = (lambda: dma(sMb, 13, 0, "wo")) if WOPOS == "s0" else (lambda: lateb(3))
        for i in range(5):
            prio(i)
            wait(f"act{i}")
            if TAILDBG == 2 and i < 4: self.stamp((2, 3, 5, 7)[i], "tail")
            emit(interleave(mlp(i, i == 0), fill() if fill else []))
            fill = None
            if i == 0 and WOPOS == "s1": fill = lambda: dma(sMb, 13, 0, "wo")
            if i == 3 and WOPOS == "s4": fill = lambda: dma(sMb, 13, 0, "wo")
            if i == FVAT: fv()
            if i < 2 and not (LFLAG and i == 1): emit(act(i + 3))
            if i == PQAT:
                wait("fv")
                check("0", f"v{vG}", 8)
                if TAILDBG == 2: self.stamp(4, "tail")
                if LFLAG: emit(act(4))
                a(f"v_and_b32 v{vP+1}, 15, v{LN}\nv_lshlrev_b32 v{vP+1}, 2, v{vP+1}")
                f1 = lambda: lateb(4) + pq(PQR, 0) + pq(PQR, 1) + gld(vP + 1)
                if FILLI and i < 2: fill = f1
                else: emit(f1())
            if i == 2:
                a(f"v_add_u32 v{KA+19}, s{sLB}, v{vL16}")
                for k in range(5): a(f"ds_read_b128 v[{KA+4*k}:{KA+4*k+3}], v{KA+19} offset:{13312 + 1024*k}")
                a("s_waitcnt lgkmcnt(0)")
                f2 = lambda: dma(sKv, 7, 13312, "kv") + (act(5) + lateb() if WOPOS != "x" else []) + (dma(sMb, 13, 0, "wo") if WOPOS == "s3" else [])
                if FILLI: fill = f2
                else: emit(f2())
        self.stamp(7)
        prio(5)
        emit(consts)
        KP = 120
        wait("kv")
        self.stamp(8)
        gather(KA, lambda j: 200 + 4*j if j < 8 else 140 + 4*(j - 8), KP, PQR, 8)
        Oset = {1: ([200, 204, 208, 212, 216], 220), 0: ([162, 166, 170, 174, 224], 228)}
        SC = [178, 179, vP + 1]
        fq = fqf(PQR)
        S = lambda k: KP + 2*k
        def Xb(st):
            O, DN = Oset[st & 1]
            p0, p1, ps = fq(st, 0), fq(st, 2), fq(st, 4)
            return [K32(DN, S(16), p0, acc(196) if LATEORD else "0"), K32(O[3], S(10), p1, "0"), K32(O[4], S(12), p1, "0"), K32(DN, S(18), p1, acc(DN)),
                    K32(O[0], S(0), p0, "0"), K32(O[1], S(2), p0, "0"), K32(O[2], S(6), p0, "0"), K32(O[1], S(4), p1, acc(O[1])), K32(O[2], S(8), p1, acc(O[2])),
                    "s_nop 0", K16(DN, S(20), ps), K16(O[3], S(14), ps), K16(O[4], S(15), ps)]
        def Vb(st):
            O, DN = Oset[st & 1]
            return scales(st, DN, SC) + sum((vtile(st, tt, O[tt], DN, SC, fq) for tt in range(5)), [])
        def Yb(st):
            r = []
            for p in range(2):
                r += [K32(20*st + 4*jn, MR + 4*(2*jn + p), fq(st, 2*p), acc(20*st + 4*jn)) for jn in range(5)]
            return r + ["s_nop 1"] + [K16(20*st + 4*jn, MR + 40 + 2*jn, fq(st, 4)) for jn in range(5)]
        a("s_nop 1")
        late = (act(5) + lateb() + dma(sMb, 13, 0, "wo")) if WOPOS == "x" else []
        if LATEORD:
            assert NB == 5 and WOPOS == "x"
            lastb = late[8:10]; late = late[:8] + late[10:]
            i5 = seq.index("act5") + 8; seq.pop(i5); seq.append("act5")
            for k in range(4): a(f"v_mov_b32 v{196+k}, 0x358637bd")
            a("s_nop 1")
        cuts = [0] + [len(late)*c//100 for c in XSPLIT] + [len(late)]
        emit(interleave(Xb(0), late[cuts[0]:cuts[1]]))
        for st in range(1, 4):
            x = Xb(st)
            emit(interleave(x[:6], late[cuts[st]:cuts[st+1]]) + (lastb if LATEORD and st == 3 else []) + interleave(x[6:], Vb(st - 1)))
        a(f"v_add_u32 v{TA}, s{sLB}, v{vL16}\nv_lshlrev_b32 v{TA+1}, 3, v{LN}\nv_add_u32 v{TA+1}, s{sLB}, v{TA+1}")
        wor = [f"ds_read_b128 v[{MR+4*f}:{MR+4*f+3}], v{TA} offset:{1024*f}" for f in range(10)]
        wor += [f"ds_read_b64 v[{MR+40+2*jn}:{MR+41+2*jn}], v{TA+1} offset:{10240 + 512*jn}" for jn in range(5)]
        prio(6)
        if WOPOS in ("s3", "s4", "x"):
            wait("act5")
            emit(interleave(mlp(5, False), Vb(3)))
            a("s_waitcnt vmcnt(0)")
            emit(wor + rw)
        else:
            emit(wor)
            wait("act5")
            emit(interleave(mlp(5, False), Vb(3) + rw))
        a("s_waitcnt lgkmcnt(0)")
        emit(interleave(Yb(0), rd[:25]))
        prio(7)
        emit(interleave(Yb(1), rd[25:] + wrl(0), 2))
        prio(8)
        emit(interleave(Yb(2), wrl(1), 6))
        emit(interleave(Yb(3), wrl(2), 6))
        a("s_nop 4")
        emit(wrl(3))
        a("s_waitcnt lgkmcnt(0)\ns_barrier")
        self.stamp(9)
        if RED == 0:
            for k in range(2):
                if k == 1: a("s_mov_b64 exec, 0xffff")
                R = 64*k
                for w in range(8):
                    for par in range(2):
                        base = [RA + k, RA + 6 + k, RA + 8 + k][w // 3]
                        a(f"ds_read_b128 v[{R+8*w+4*par}:{R+8*w+4*par+3}], v{base} offset:{20480*(w % 3) + 10240*par}")
            a("s_mov_b64 exec, -1")
            for k in range(2):
                R = 64*k
                a(f"s_waitcnt lgkmcnt({15 if k == 0 else 0})")
                for pairs in (((0, 4), (1, 5), (2, 6), (3, 7)), ((0, 2), (1, 3)), ((0, 1),)):
                    for x, y in pairs:
                        for j in range(4):
                            a(f"v_pk_add_f32 v[{R+8*x+2*j}:{R+8*x+2*j+1}], v[{R+8*x+2*j}:{R+8*x+2*j+1}], v[{R+8*y+2*j}:{R+8*y+2*j+1}]")
                if k == 0: a("s_waitcnt vmcnt(0)")
                for j in range(8): a(f"v_mul_f32 v{R+j}, v{TA+2+k}, v{R+j}")
                for j in range(4): a(f"v_cvt_pk_bf16_f32 v{R+j}, v{R+2*j}, v{R+2*j+1}")
                if k == 1: a("s_mov_b64 exec, 0xffff")
                a(f"buffer_store_dwordx4 v[{R}:{R+3}], v{RA+4+k}, s[{SRD_M}:{SRD_M+3}], s{t} offen {OUTFL}")
            a("s_mov_b64 exec, -1")


        else:
            items = [(k, w) for k in range(2) for w in range(8)]
            def rdp(n):
                k, w = items[n]
                base = [RA + k, RA + 6 + k, RA + 8 + k][w // 3]
                r = [f"ds_read_b128 v[{8*n+4*par}:{8*n+4*par+3}], v{base} offset:{20480*(w % 3) + 10240*par}" for par in range(2)]
                return r if k == 0 else ["s_mov_b64 exec, 0xffff"] + r + ["s_mov_b64 exec, -1"]
            AH = 6
            for n in range(AH): emit(rdp(n))
            for n, (k, w) in enumerate(items):
                if n + AH < 16: emit(rdp(n + AH))
                if w == 0: continue
                a(f"s_waitcnt lgkmcnt({2*min(AH, 15 - n)})")
                R = 64*k
                for j in range(4):
                    a(f"v_pk_add_f32 v[{R+2*j}:{R+2*j+1}], v[{R+2*j}:{R+2*j+1}], v[{8*n+2*j}:{8*n+2*j+1}]")
                if w == 7:
                    if k == 0: a("s_waitcnt vmcnt(0)")
                    for j in range(8): a(f"v_mul_f32 v{R+j}, v{TA+2+k}, v{R+j}")
                    for j in range(4): a(f"v_cvt_pk_bf16_f32 v{R+j}, v{R+2*j}, v{R+2*j+1}")
                    if k == 1: a("s_mov_b64 exec, 0xffff")
                    a(f"buffer_store_dwordx4 v[{R}:{R+3}], v{RA+4+k}, s[{SRD_M}:{SRD_M+3}], s{t} offen {OUTFL}")
            a("s_mov_b64 exec, -1")


def descriptor(name):
    return f""".p2align 6
.amdhsa_kernel {name}
  .amdhsa_next_free_vgpr 256
  .amdhsa_next_free_sgpr 102
  .amdhsa_accum_offset 256
  .amdhsa_group_segment_fixed_size 0
  .amdhsa_kernarg_size 88
  .amdhsa_user_sgpr_count 2
  .amdhsa_user_sgpr_kernarg_segment_ptr 1
  .amdhsa_system_sgpr_workgroup_id_x 1
.end_amdhsa_kernel
"""

def build(stamps):
    assert not LFLAG or (ROT2 == "none" and PQAT == 1 and not EARLYQ and WOPOS != "pre")
    g = Gen(stamps=stamps)
    a = g.a
    K = NAME + "_kernel"
    hdr = open(os.path.join(os.path.dirname(os.path.abspath(__file__)), "header.txt")).read()
    for l in hdr.strip().split("\n"): a.lines.append(l)
    a(f"; @launch grid=(256,1,1) block=(512,1,1) lds={LDS_TOTAL}")
    a('.amdgcn_target "amdgcn-amd-amdhsa--gfx950"\n.text')
    a(f".globl {K}\n.p2align 8\n.type {K},@function")
    a.label(K)
    g.common_prologue("L_end")
    a(f"s_cmp_lt_u32 s{sWAVE}, 4\ns_cbranch_scc1 L_comp")
    g.loader1()
    a(f"s_setprio {LPRIO}")
    if not NE16:
        g.setup2()
        g.srd(SRD_WS, pWS, WS_SIZE)
    g.preload_b(NE16, NL0)
    if K1LDS: a(f"v_mov_b32 v6, {K1C}\nv_mov_b32 v7, 0\nds_write_b32 v6, v7\ns_waitcnt lgkmcnt(0)")
    a("s_barrier")
    if SKEW: a(f"v_mov_b32 v6, {HINT}\nv_mov_b32 v8, 0\nv_mov_b32 v9, 0\nv_mov_b32 v10, 0\nv_mov_b32 v11, 0\nds_write_b128 v6, v[8:11]\ns_waitcnt lgkmcnt(0)")
    g.preload_b(NL0, NL1, TH)
    if not K1LDS: a(f"s_cmp_lg_u32 s{sTYPE}, 0\ns_cbranch_scc1 L_l2\ns_barrier")
    a.label("L_l2")
    if DIAG != 3: g.preload_b(NL1, 5*NB, TH)
    if BLDS and DIAG != 3: g.stage_b()
    g.stamp(3)
    a.label("L_g2")
    g.gemm2()
    g.dump_stamps()
    a.label("L_end")
    a("s_endpgm")
    a.label("L_comp")
    a(f"s_cmp_eq_u32 s{sTYPE}, 0\ns_cbranch_scc1 L_kv")
    g.compute_P(); a("s_branch L_g2")
    a.label("L_kv")
    g.compute_KV(); a("s_branch L_g2")
    a.label("L_code_end")
    errs = lint(a.lines)
    for e in errs: print("HAZARD:", e, file=sys.stderr)
    return a.text() + '.section .rodata,"a"\n' + descriptor(K)

if __name__ == "__main__":
    open(sys.argv[1], "w").write(build(sys.argv[2] if len(sys.argv) > 2 else False))
```

```python
import sys, os, re
sys.path.insert(0, os.path.dirname(os.path.abspath(__file__)))
from asmlib import *

NAME = "gated_mix__linear_attn_block__dense_activation_mish__prompt"
ENV = os.environ.get

CNT_ACT, CNT_PQ, CNT_KV = 0, 256*128, 288*128
DONE_KV, DONE_PQ = 320*128, 328*128
WS_G = 0x10000
WS_KVP = 0x100000
WS_WOR = 0x200000
WS_W2R = 0x300000
WS_PQ = 0x500000
WS_ACT = 0x800000
WS_SIZE = 0x1000000
WS_STAMP = 0x8000000
BIG = 0x20000000
DBGW = int(ENV("DBGW", "0"))
ROTMODE = ENV("ROT", "two")
ROT2 = ENV("ROT2", "none")
NPRE = int(ENV("NPRE", "10"))
SPIN = int(ENV("SPIN", str(0x100000)))
WOAT = 3
ADPRE = int(ENV("ADPRE", "1"))
KVAT = int(ENV("KVAT", "-1"))
GSYNC = int(ENV("GSYNC", "0"))
PF = int(ENV("PF", "0"))
RS = int(ENV("RS", "3"))
S1AT = int(ENV("S1AT", "8"))
S1SLEEP = int(ENV("S1SLEEP", "2"))
LOOPDBG = int(ENV("LOOPDBG", "0"))
CPF = int(ENV("CPF", "1"))
RD = int(ENV("RD", "-1"))
SKEW = int(ENV("SKEW", "0"))
HINT = 3*20480 + 12800
TAILDBG = int(ENV("TAILDBG", "0"))
OUTFL = ENV("OUTFL", "").replace("_", " ")
LFLAG = int(ENV("LFLAG", "0"))
FAKE = int(ENV("FAKE", "0"))
SPLIT = int(ENV("SPLIT", "1"))
YSLEEP = int(ENV("YSLEEP", "8"))
PQAT = int(ENV("PQAT", "1"))
FILLI = int(ENV("FILLI", "1"))
FIRST0 = int(ENV("FIRST0", "0"))
PRIO = ENV("PRIO", "c")
LOOK = ENV("LOOK", "xw")
GBR = int(ENV("GBR", "0"))
STPRIO = int(ENV("STPRIO", "1"))
NRE = int(ENV("NRE", "20"))
SPREAD = int(ENV("SPREAD", "0"))
NE16 = int(ENV("NE16", "0"))
NL1 = int(ENV("NL1", "16"))
K1LDS = int(ENV("K1LDS", "1"))
K1C = 40960 + 2032
FVAT = int(ENV("FVAT", "0"))
WOPOS = ENV("WOPOS", "x")
RED = int(ENV("RED", "1"))
DIAG = int(ENV("DIAG", "0"))
LPRIO = int(ENV("LPRIO", "0"))
EPRIO = int(ENV("EPRIO", "0"))
TH = int(ENV("TH", "4"))
EARLYQ = int(ENV("EARLYQ", "0"))
NB = int(ENV("NB", "5"))
NTH = int(ENV("NTH", "36"))
XSPLIT = [int(v) for v in ENV("XSPLIT", "30,55,80").split(",")]
LRP = int(ENV("LRP", "0"))
MBOX = 161792
STRICTP = int(ENV("STRICTP", "1"))
LATEORD = int(ENV("LATEORD", "0"))
B20AT = int(ENV("B20AT", "14"))
MAP1 = ENV("MAP1", "q")
ROTQ = int(ENV("ROTQ", "1"))
RG = int(ENV("RG", "5"))
RX = int(ENV("RX", "2"))
RTAB = [int(c) for c in ENV("RTAB", "05050505")]
XTAB = [int(c) for c in ENV("XTAB", "01012323")]
RCM = int(ENV("RCM", "1"))
NOE1 = int(ENV("NOE1", "0"))
ATP = int(ENV("ATP", "2"))
PICK = int(ENV("PICK", "0"))
SLEEP = int(ENV("SLEEP", "8"))
BLDS = int(ENV("BLDS", "1"))
NL0 = int(ENV("NL0", "13"))
MAP2 = ENV("MAP2", "x2")
TOUCH = int(ENV("TOUCH", "0"))
MSDBG = int(ENV("MSDBG", "0"))
MSPRIO = int(ENV("MSPRIO", "1"))
MSPRIO2 = int(ENV("MSPRIO2", "1"))

XR = 0
STG = 40960
WR = 49152
WSLOT = 14336
NS = 6
GATE = WR + NS * WSLOT
SCR = GATE + 2048
MS = WR
BL = WR + 32768
BLF = STG + 2040
LDS_TOTAL = 163840

sWG = 2
pX, pWQKV, pWO, pW1, pB1, pW2, pGATE, pOUT, pDBG, pWS = 4, 6, 8, 12, 14, 16, 18, 20, 22, 24
sWAVE, sRB, sHALF, sCBL, sGRP, sF1, sROT, sPIDX, sTYPE, sT = 26, 27, 28, 29, 30, 31, 32, 33, 34, 35
SRD_WS, SRD_X, SRD_W, SRD_M, SRD_D = 36, 40, 44, 52, 56
T0 = 60
sST = 76
cL2E, cC, cE = 96, 98, 100
sR64, sC = 27, 28
sB0, sA0 = 40, 46
sPQb, sMb, sKv, sFk = 0, 1, 3, 29
sFa, sFq = 10, 11
BS, AB = 80, 200
PQR, MR, KA, KD = 80, 120, 120, 176
sLB, sN208 = 30, 33
vG, vP, vL16, vL16b = 248, 252, 254, 255
WSR = f"s[{SRD_WS}:{SRD_WS+3}]"


class Gen:
    def __init__(self, stamps=False):
        self.a = Asm()
        self.stamps = stamps

    def stamp(self, k, loop=False):
        if loop == "tail":
            if not TAILDBG: return
        elif TAILDBG and 1 <= k <= 7 and not (TAILDBG == 2 and k == 6): return
        elif LOOPDBG and k >= 3 and not loop: return
        elif loop and not LOOPDBG: return
        if self.stamps and not (self.stamps == "dbg" and k == 9):
            if k < 2 and self.stamps != "dbg" and loop != "tail":
                self.a(f"s_memtime s[58:59]\ns_waitcnt lgkmcnt(0)\ns_mov_b32 s{sST+2*k}, s58")
            else:
                self.a(f"s_memtime s[{sST+2*k}:{sST+2*k+1}]")

    def srd(self, d, ptr, size, add=None):
        a = self.a
        if add is None:
            a(f"s_mov_b32 s{d}, s{ptr}\ns_mov_b32 s{d+1}, s{ptr+1}")
        else:
            a(f"s_add_u32 s{d}, s{ptr}, {add}\ns_addc_u32 s{d+1}, s{ptr+1}, 0")
        a(f"s_mov_b32 s{d+2}, {size}\ns_mov_b32 s{d+3}, 0x20000")

    def signal(self, soff, v, off=0):
        self.a(f"v_mov_b32 v{v}, 1\nv_mov_b32 v{v+1}, 0\ns_mov_b64 exec, 1\nbuffer_atomic_add v{v}, v{v+1}, {WSR}, s{soff} offen offset:{off} sc1\ns_mov_b64 exec, -1")

    def arrive(self, soff, v):
        self.a(f"v_mov_b32 v{v}, 1\nv_mov_b32 v{v+1}, 0\ns_mov_b64 exec, 1\nbuffer_atomic_add v{v}, v{v+1}, {WSR}, s{soff} offen sc0 sc1\ns_mov_b64 exec, -1")

    def raise_if_last(self, v, last, soff):
        a = self.a
        sk = a.newlabel("L_last")
        a(f"v_readfirstlane_b32 s{T0+14}, v{v}\nv_mov_b32 v{v}, 1\nv_mov_b32 v{v+1}, 0\ns_cmp_lg_u32 s{T0+14}, {last}\ns_cbranch_scc1 {sk}")
        a(f"s_mov_b64 exec, 1\nbuffer_store_dword v{v}, v{v+1}, {WSR}, s{soff} offen sc1\ns_mov_b64 exec, -1")
        a.label(sk)

    def poll(self, soff, target, va, vd, srd=SRD_WS, sleep=None):
        a = self.a
        t = T0 + 15
        loop, done = a.newlabel("L_poll"), a.newlabel("L_polld")
        a(f"s_mov_b32 s{t}, 0")
        a.label(loop)
        a(f"buffer_load_dword v{vd}, v{va}, s[{srd}:{srd+3}], {soff} offen sc1\ns_waitcnt vmcnt(0)")
        a(f"v_cmp_le_u32 vcc, {target}, v{vd}\ns_add_u32 s{t}, s{t}, 1\ns_nop 0")
        a(f"s_cmp_eq_u64 vcc, -1\ns_cbranch_scc1 {done}")
        a(f"s_sleep {SLEEP if sleep is None else sleep}\ns_cmp_lt_u32 s{t}, {SPIN}\ns_cbranch_scc1 {loop}")
        a.label(done)

    def dump_stamps(self):
        if not self.stamps:
            return
        a = self.a
        a("s_waitcnt vmcnt(0) lgkmcnt(0)")
        a(f"s_memrealtime s[{T0}:{T0+1}]\ns_memtime s[{T0+2}:{T0+3}]")
        if self.stamps == "dbg":
            self.srd(SRD_M, pDBG, 256)
            a("s_waitcnt lgkmcnt(0)\nv_mov_b32 v2, 0\ns_mov_b64 exec, 1")
            sk = a.newlabel("L_dbg")
            a(f"s_lshl_b32 s{T0+5}, s{sWG}, 3\ns_add_u32 s{T0+5}, s{T0+5}, s{sWAVE}\ns_cmp_lg_u32 s{T0+5}, {DBGW}\ns_cbranch_scc1 {sk}")
            for k in range(1, 10):
                a(f"s_sub_u32 s{T0+5}, s{sST+2*k}, s{sST}\nv_mov_b32 v{3+k}, s{T0+5}")
            a(f"s_sub_u32 s{T0+5}, s{T0+2}, s{sST}\nv_mov_b32 v13, s{T0+5}\ns_sub_u32 s{T0+5}, s{T0}, s94\nv_mov_b32 v14, s{T0+5}\nv_mov_b32 v15, s94")
            for k in range(3):
                a(f"buffer_store_dwordx4 v[{4+4*k}:{7+4*k}], v2, s[{SRD_M}:{SRD_M+3}], 0 offen offset:{16+16*k}")
            a.label(sk)
            a("s_waitcnt vmcnt(0)")
            return
        a(f"s_getreg_b32 s{T0+4}, hwreg(HW_REG_XCC_ID)")
        self.srd(SRD_M, pWS, 0x10000000)
        a("s_waitcnt lgkmcnt(0)")
        for k in range(10):
            a(f"v_mov_b32 v{k}, s{sST+2*k}")
        a(f"v_mov_b32 v10, s{T0}\nv_mov_b32 v11, s{T0+2}\nv_mov_b32 v12, s{T0+4}\nv_mov_b32 v13, s{sTYPE}\nv_mov_b32 v14, s77\nv_mov_b32 v15, s79")
        a(f"s_lshl_b32 s{T0+5}, s{sWG}, 3\ns_add_u32 s{T0+5}, s{T0+5}, s{sWAVE}\ns_lshl_b32 s{T0+5}, s{T0+5}, 6\ns_add_u32 s{T0+5}, s{T0+5}, {WS_STAMP}")
        a("v_mov_b32 v16, 0\ns_mov_b64 exec, 1")
        for k in range(4):
            a(f"buffer_store_dwordx4 v[{4*k}:{4*k+3}], v16, s[{SRD_M}:{SRD_M+3}], s{T0+5} offen offset:{16*k}")
        a("s_waitcnt vmcnt(0)")

    def common_prologue(self, endlabel):
        a = self.a
        t = T0
        a(f"s_cmp_ge_u32 s{sWG}, 256\ns_cbranch_scc1 {endlabel}")
        a("s_load_dwordx16 s[4:19], s[0:1], 0\ns_load_dwordx4 s[20:23], s[0:1], 64\ns_load_dwordx2 s[24:25], s[0:1], 80")
        if self.stamps:
            for k in range(10): a(f"s_mov_b32 s{sST+2*k}, 0")
            if self.stamps == "dbg": a("s_memrealtime s[94:95]")
            else: a("s_memrealtime s[56:57]\ns_memtime s[58:59]\ns_waitcnt lgkmcnt(0)\ns_mov_b32 s77, s56\ns_mov_b32 s79, s58")
        if CPF:
            sk = a.newlabel("L_cpf")
            a(f"s_getpc_b64 s[{t}:{t+1}]\nL_pc0:\ns_lshr_b32 s{t+2}, s{sWG}, 3\ns_lshl_b32 s{t+2}, s{t+2}, 11\nv_lshlrev_b32 v2, 4, v0\nv_add_u32 v2, s{t+2}, v2")
            a(f"v_cmp_gt_u32 vcc, 128, v0\nv_min_u32 v2, L_code_end-L_pc0-16, v2\ns_and_saveexec_b64 s[{t+4}:{t+5}], vcc\ns_cbranch_execz {sk}")
            a(f"global_load_dwordx4 v[248:251], v2, s[{t}:{t+1}]")
            a.label(sk)
            a(f"s_mov_b64 exec, s[{t+4}:{t+5}]")
        a("v_lshrrev_b32 v1, 6, v0\nv_and_b32 v0, 63, v0")
        a(f"v_readfirstlane_b32 s{sWAVE}, v1")
        if MAP1 == "h":
            a(f"s_bfe_u32 s{t+2}, s{sWG}, 0x20001\ns_bfe_u32 s{t+3}, s{sWG}, 0x20003")
            a(f"s_lshl2_add_u32 s{sRB}, s{t+2}, s{t+3}\ns_and_b32 s{sHALF}, s{sWG}, 1\ns_lshr_b32 s{sCBL}, s{sWG}, 5")
            a(f"s_and_b32 s{t}, s{sCBL}, 3\ns_lshl2_add_u32 s{sGRP}, s{sHALF}, s{t}\ns_lshr_b32 s{sTYPE}, s{sCBL}, 2")
        else:
            a(f"s_bfe_u32 s{t+2}, s{sWG}, 0x10002\ns_bfe_u32 s{t+3}, s{sWG}, 0x30003\ns_lshl3_add_u32 s{sRB}, s{t+2}, s{t+3}")
            a(f"s_bfe_u32 s{sHALF}, s{sWG}, 0x10001\ns_lshr_b32 s{sTYPE}, s{sWG}, 7\ns_bfe_u32 s{t}, s{sWG}, 0x10006\ns_and_b32 s{t+1}, s{sWG}, 1")
            a(f"s_lshl1_add_u32 s{t+4}, s{t+1}, s{t}\ns_lshl1_add_u32 s{t+5}, s{t}, s{t+1}\ns_cmp_eq_u32 s{sTYPE}, 0\ns_cselect_b32 s{t}, s{t+4}, s{t+5}")
            a(f"s_lshl2_add_u32 s{sCBL}, s{sTYPE}, s{t}\ns_lshl2_add_u32 s{sGRP}, s{sHALF}, s{t}")
            tab = sum(v << (4*n) for n, v in enumerate(RTAB))
            xtab = sum(v << (4*n) for n, v in enumerate(XTAB))
            a(f"s_lshr_b32 s{t+4}, s{sWG}, 6\ns_mul_i32 s{t+4}, s{t+4}, {RCM}\ns_add_u32 s{t+4}, s{t+4}, s{t+3}\ns_and_b32 s{t+4}, s{t+4}, 7\ns_lshl_b32 s{t+4}, s{t+4}, 2\ns_lshr_b32 s{t+4}, {tab:#x}, s{t+4}\ns_and_b32 s{t+4}, s{t+4}, 15")
            a(f"s_and_b32 s{t+5}, s{sWG}, 7\ns_lshl_b32 s{t+5}, s{t+5}, 2\ns_lshr_b32 s{t+5}, {xtab:#x}, s{t+5}\ns_and_b32 s{t+5}, s{t+5}, 15\ns_add_u32 s{sROT}, s{t+4}, s{t+5}")
            if max(RTAB) + max(XTAB) >= 10: a(f"s_sub_u32 s{t+4}, s{sROT}, 10\ns_cmp_ge_u32 s{sROT}, 10\ns_cselect_b32 s{sROT}, s{t+4}, s{sROT}")
        if MAP1 != "h": pass
        elif ROTMODE == "full":
            a(f"s_mul_i32 s{t+4}, s{t+3}, 5\ns_add_u32 s{t+4}, s{t+4}, 1\ns_lshr_b32 s{t+4}, s{t+4}, 1")
            a(f"s_add_u32 s{t+4}, s{t+4}, s{sCBL}\ns_add_u32 s{t+4}, s{t+4}, s{t+2}")
            a(f"s_mul_i32 s{t+5}, s{sHALF}, 5\ns_add_u32 s{sROT}, s{t+4}, s{t+5}")
            for _ in range(2):
                a(f"s_sub_u32 s{t+4}, s{sROT}, 10\ns_cmp_ge_u32 s{sROT}, 10\ns_cselect_b32 s{sROT}, s{t+4}, s{sROT}")
        elif ROTMODE == "none":
            a(f"s_mov_b32 s{sROT}, 0")
        elif ROTMODE == "xcd":
            a(f"s_mul_i32 s{t+4}, s{t+2}, 5\ns_add_u32 s{t+4}, s{t+4}, 1\ns_lshr_b32 s{t+4}, s{t+4}, 1\ns_add_u32 s{sROT}, s{t+4}, s{sHALF}")
        elif ROTMODE == "two0":
            a(f"s_add_u32 s{t+4}, s{t+3}, s{sCBL}\ns_and_b32 s{t+4}, s{t+4}, 1\ns_mul_i32 s{sROT}, s{t+4}, 5")
        elif ROTMODE == "two1":
            a(f"s_add_u32 s{t+4}, s{t+3}, s{sCBL}\ns_and_b32 s{t+4}, s{t+4}, 1\ns_mul_i32 s{t+4}, s{t+4}, 5\ns_and_b32 s{t+5}, s{t+2}, 1\ns_lshl1_add_u32 s{sROT}, s{t+5}, s{t+4}")
        elif ROTMODE == "two":
            a(f"s_add_u32 s{t+4}, s{t+3}, s{sCBL}\ns_and_b32 s{t+4}, s{t+4}, 1\ns_mul_i32 s{t+4}, s{t+4}, 5")
            a(f"s_add_u32 s{t+4}, s{t+4}, s{t+2}\ns_add_u32 s{sROT}, s{t+4}, s{sHALF}")

    def loader1(self):
        a = self.a
        t = T0
        sLW = sT
        vXE, vXO, vW, vGt = 2, 3, 4, 8
        sStr, sCol, sA32, sA64, sOff, sXo, sWB, sWB2, sXB, sXP, sSel = 48, 49, 50, 51, t+4, t+5, t+6, t+7, t+8, t+9, t+10
        sKind = 72
        a(f"s_setprio 2\ns_sub_u32 s{sLW}, s{sWAVE}, 4")
        a("v_lshrrev_b32 v10, 3, v0\nv_and_b32 v11, 7, v0\nv_lshrrev_b32 v12, 4, v0\nv_mul_u32_u24 v13, 1280, v10\nv_xor_b32 v14, v11, v12")
        a(f"s_and_b32 s{t}, s{sLW}, 1\ns_lshl_b32 s{t}, s{t}, 6")
        a(f"v_lshl_add_u32 v13, v14, 4, v13\nv_xor_b32 v{vXE}, s{t}, v13\nv_xor_b32 v{vXO}, 64, v{vXE}")
        if FIRST0: a(f"s_mov_b32 s{sA32}, 0\ns_mov_b32 s{sA64}, 0\ns_min_u32 s{sROT}, s{sROT}, 8")
        else: a(f"s_lshl_b32 s{sA32}, s{sROT}, 1\ns_mov_b32 s{sA64}, s{sROT}")
        a(f"s_mul_i32 s{sXB}, s{sLW}, 3072\ns_mul_i32 s{sXP}, s{sLW}, 30720")
        for k in range(6, 10): a(f"v_mov_b32 v{k}, {BIG}")
        lKV, lQH, lLN, lJ = a.newlabel("L_wkv"), a.newlabel("L_wqh"), a.newlabel("L_wln"), a.newlabel("L_wj")
        a(f"s_cmp_eq_u32 s{sTYPE}, 0\ns_cbranch_scc1 {lKV}")
        a(f"s_cmp_eq_u32 s{sLW}, 3\ns_cbranch_scc1 {lQH}")
        a(f"s_mov_b32 s{sSel}, 1\ns_mov_b32 s{sStr}, 3072\ns_mul_i32 s{sCol}, s{sGRP}, 3\ns_add_u32 s{sCol}, s{sCol}, s{sLW}\ns_lshl_b32 s{sCol}, s{sCol}, 7\ns_lshl_b32 s{sWB}, s{sLW}, 12")
        a.label(lLN)
        a(f"v_and_b32 v13, 4, v10\nv_add_u32 v13, v13, v10\nv_mul_u32_u24 v13, s{sStr}, v13\nv_lshlrev_b32 v12, 1, v12\nv_xor_b32 v12, v11, v12\nv_lshl_add_u32 v{vW}, v12, 4, v13")
        a(f"s_lshl_b32 s{t}, s{sStr}, 4\ns_lshl_b32 s{t+1}, s{sStr}, 2\nv_add_u32 v{vW+1}, s{t}, v{vW}\nv_add_u32 v{vW+2}, s{t+1}, v{vW}\nv_add_u32 v{vW+3}, s{t}, v{vW+2}")
        a(f"s_branch {lJ}")
        a.label(lQH)
        a(f"s_mov_b32 s{sSel}, 0\ns_mov_b32 s{sStr}, 3840\ns_lshl_b32 s{sCol}, s{sHALF}, 1\ns_add_u32 s{sCol}, s{sCol}, s{sCBL}\ns_add_u32 s{sCol}, s{sCol}, 12\ns_lshl_b32 s{sCol}, s{sCol}, 6")
        a(f"s_cmp_lt_u32 s{sCBL}, 6\ns_cselect_b32 s{sCol}, s{sCol}, {BIG}\ns_mov_b32 s{sWB}, 12288\ns_mov_b32 s{sWB2}, 13312")
        a(f"v_lshrrev_b32 v10, 2, v0\nv_and_b32 v13, 12, v10\nv_add_u32 v13, v13, v10\nv_mul_u32_u24 v13, 3840, v13\nv_and_b32 v11, 3, v0\nv_and_b32 v12, 1, v12\nv_lshlrev_b32 v12, 1, v12\nv_xor_b32 v12, v11, v12")
        a(f"v_lshl_add_u32 v{vW}, v12, 4, v13\nv_add_u32 v{vW+1}, 15360, v{vW}")
        a(f"s_lshl_b32 s{t}, s{sROT}, 3\nv_mov_b32 v14, {BIG}")
        for j in range(2):
            if FIRST0:
                a(f"v_add_u32 v10, {64*j}, v0\nv_add_u32 v11, s{t}, v10\nv_subrev_u32 v12, 72, v11\nv_cmp_gt_u32 vcc, 80, v11\ns_nop 1\nv_cndmask_b32 v11, v12, v11, vcc\nv_cmp_gt_u32 vcc, 8, v10\ns_nop 1\nv_cndmask_b32 v11, v11, v10, vcc")
                a(f"v_cmp_gt_u32 vcc, 80, v10\nv_lshlrev_b32 v11, 4, v11\ns_nop 0\nv_cndmask_b32 v{vGt+j}, v14, v11, vcc")
            else:
                a(f"v_add_u32 v10, {64*j}, v0\nv_add_u32 v11, s{t}, v10\nv_cmp_gt_u32 vcc, 80, v10\nv_subrev_u32 v12, 80, v11\nv_min_u32 v11, v11, v12\nv_lshlrev_b32 v11, 4, v11\nv_cndmask_b32 v{vGt+j}, v14, v11, vcc")
        a(f"s_branch {lJ}")
        a.label(lKV)
        a(f"s_mov_b32 s{sSel}, 0\ns_mov_b32 s{sStr}, 3840\ns_mul_i32 s{sWB}, s{sLW}, 5120\ns_lshl_b32 s{sCol}, s{sGRP}, 7")
        a(f"s_cmp_eq_u32 s{sLW}, 2\ns_cbranch_scc1 {lLN}")
        a(f"s_mul_i32 s{sCol}, s{sGRP}, 160\ns_cmp_eq_u32 s{sLW}, 1\ns_cselect_b32 s{t}, 2560, 1280\ns_add_u32 s{sCol}, s{sCol}, s{t}")
        a(f"s_cmp_eq_u32 s{sLW}, 3\ns_cselect_b32 s{t}, 256, 0\ns_cselect_b32 s{sWB}, 4096, s{sWB}\ns_mov_b32 s{sWB2}, 9216")
        a(f"v_add_u32 v14, s{t}, v0")
        for j in range(4):
            a(f"v_add_u32 v10, {64*j}, v14\nv_mul_u32_u24 v11, 6554, v10\nv_lshrrev_b32 v11, 16, v11\nv_mad_i32_i24 v10, v11, -10, v10")
            a("v_and_b32 v12, 12, v11\nv_and_b32 v13, 3, v11\nv_lshl_or_b32 v12, v12, 1, v13\nv_bfe_u32 v13, v11, 4, 1\nv_lshl_or_b32 v12, v13, 2, v12")
            a(f"v_mul_u32_u24 v12, 3840, v12\nv_lshl_add_u32 v{vW+j}, v10, 4, v12")
            if j == 0:
                a(f"v_add_u32 v{vW+1}, 1280, v{vW}\ns_cmp_eq_u32 s{sLW}, 3\ns_cbranch_scc1 {lJ}")
        a.label(lJ)
        a(f"s_lshl_b32 s{sStr}, s{sStr}, 5\ns_mul_i32 s{t}, s{sRB}, 163840")
        a("s_waitcnt lgkmcnt(0)")
        self.stamp(0)
        self.srd(SRD_X, pX, 163840, add=f"s{t}")
        a(f"s_cmp_eq_u32 s{sSel}, 0\ns_cselect_b32 s{SRD_W}, s{pWQKV}, s{pW1}\ns_cselect_b32 s{SRD_W+1}, s{pWQKV+1}, s{pW1+1}\ns_cselect_b32 s{SRD_W+2}, {640*1920*2}, {640*1536*2}\ns_mov_b32 s{SRD_W+3}, 0x20000")
        lab3, lab4, labj = a.newlabel("L_ld3"), a.newlabel("L_ld4"), a.newlabel("L_ldj")
        lab0k, lab3k = a.newlabel("L_ld0k"), a.newlabel("L_ld3k")
        a(f"s_cmp_eq_u32 s{sLW}, 3\ns_cbranch_scc1 {lab3}")
        for variant, rp in (((0, 1), (0, 0), (3, 1), (3, 0), (4, 1)) if LRP else ((0, 0), (3, 0), (4, 0))):
            if LRP and (variant, rp) == (0, 1): a(f"s_cmp_eq_u32 s{sTYPE}, 0\ns_cbranch_scc1 {lab0k}")
            if LRP and (variant, rp) == (0, 0): a.label(lab0k)
            if LRP and (variant, rp) == (3, 0): a.label(lab3k)
            if variant == 3 and (rp or not LRP):
                a.label(lab3)
                a(f"s_cmp_ge_u32 s{sCBL}, 6\ns_cbranch_scc1 {lab4}")
                if LRP: a(f"s_cmp_eq_u32 s{sTYPE}, 0\ns_cbranch_scc1 {lab3k}")
            if variant == 4:
                a.label(lab4)
            nW = {0: 4, 3: 2, 4: 0}[variant]
            nX = 3 if variant == 0 else 7
            seq = []
            def issue_W(i):
                if nW == 0: return
                a(f"s_mul_i32 s{sOff}, s{sA32}, s{sStr}")
                for j in range(nW):
                    base, off = (sWB, 1024*j) if variant == 0 else ((sWB, sWB2)[j], 0)
                    a(f"s_add_u32 m0, s{base}, {WR + (i % NS)*WSLOT + off}")
                    a(f"s_add_u32 s{sOff}, s{sOff}, s{sCol}" if j == 0 else "s_nop 0")
                    a(f"buffer_load_dwordx4 v{vW+j}, s[{SRD_W}:{SRD_W+3}], s{sOff} offen lds")
                    seq.append(("W", i))
                if FIRST0 and i == 1: a(f"s_lshl1_add_u32 s{sA32}, s{sROT}, 2")
                else: a(f"s_add_u32 s{sA32}, s{sA32}, 1\ns_cmp_eq_u32 s{sA32}, 20\ns_cselect_b32 s{sA32}, {2 if FIRST0 else 0}, s{sA32}")
            def issue_X(jx):
                a(f"s_lshl_b32 s{sXo}, s{sA64}, 7")
                for j in range(nX):
                    a(f"s_add_u32 m0, s{sXB}, {XR + (jx % 3)*16384 + 1024*j}")
                    a(f"s_add_u32 s{sXo}, s{sXo}, " + (f"s{sXP}" if j == 0 else "10240"))
                    a(f"buffer_load_dwordx4 v{vXE + (j & 1)}, s[{SRD_X}:{SRD_X+3}], s{sXo} offen lds")
                    seq.append(("X", jx))
                if FIRST0 and jx == 0: a(f"s_add_u32 s{sA64}, s{sROT}, 1")
                else: a(f"s_add_u32 s{sA64}, s{sA64}, 1\ns_cmp_eq_u32 s{sA64}, 10\ns_cselect_b32 s{sA64}, {1 if FIRST0 else 0}, s{sA64}")
            def wait_for(items):
                last = max([n for n, it in enumerate(seq) if it in items] + [-1])
                if last >= 0: a(f"s_waitcnt vmcnt({len(seq) - 1 - last})")
            issue_X(0); issue_W(0)
            if variant == 4:
                self.srd(SRD_M, pGATE, 1280)
                for j in range(2):
                    a(f"s_mov_b32 m0, {GATE + 1024*j}\ns_nop 0\nbuffer_load_dwordx4 v{vGt+j}, s[{SRD_M}:{SRD_M+3}], 0 offen lds")
                    seq.append(("W", 0))
            issue_W(1)
            wait_for([("W", 0), ("X", 0)]); self.stamp(1); a("s_barrier")
            issue_X(1)
            wait_for([("W", 1)]); a("s_barrier")
            issue_W(2); issue_W(3); issue_X(2); issue_W(4)
            if LOOK == "full": issue_W(5)
            for j in range(1, 10):
                if j == (8 if NE16 else 9) and variant == 0:
                    sk = a.newlabel("L_s1skip")
                    a(f"s_cmp_lg_u32 s{sWAVE}, 4\ns_cbranch_scc1 {sk}")
                    self.srd(SRD_D, pDBG, 256)
                    a("v_mov_b32 v10, 128")
                    self.poll("0", 1, 10, 11, SRD_D, S1SLEEP)
                    a.label(sk)
                if rp and j == LRP + 2:
                    last = max(n for n, it in enumerate(seq) if it in (("W", 2*j), ("W", 2*j + 1), ("X", j)))
                    N = len(seq) - 1 - last
                    w1, w2, w3 = a.newlabel("L_wv"), a.newlabel("L_wv"), a.newlabel("L_wv")
                    a(f"s_cmp_eq_u32 s{sKind}, 1\ns_cbranch_scc1 {w1}\ns_cmp_eq_u32 s{sKind}, 2\ns_cbranch_scc1 {w2}\ns_waitcnt vmcnt({N})\ns_branch {w3}\n{w1}:\ns_waitcnt vmcnt({N+4})\ns_branch {w3}\n{w2}:\ns_waitcnt vmcnt({N+8})\n{w3}:")
                else:
                    wait_for([("W", 2*j), ("W", 2*j + 1), ("X", j)])
                if rp and variant == 0 and j == LRP + 4:
                    sk = a.newlabel("L_s1b")
                    a(f"s_cmp_lg_u32 s{sWAVE}, 4\ns_cbranch_scc1 {sk}\nv_readfirstlane_b32 s{t}, v70\nv_mov_b32 v71, 1\ns_cmp_lg_u32 s{t}, 127\ns_cbranch_scc1 {sk}")
                    self.srd(SRD_D, pDBG, 256)
                    a(f"s_mov_b64 exec, 1\nbuffer_store_dword v71, v69, s[{SRD_D}:{SRD_D+3}], 0 offen offset:128 sc1\ns_mov_b64 exec, -1")
                    a.label(sk)
                a("s_barrier")
                if rp and j == LRP:
                    self.srd(SRD_WS, pWS, WS_SIZE)
                    sk = a.newlabel("L_z")
                    a(f"v_lshlrev_b32 v69, 4, v0\ns_cmp_ge_u32 s{sLW}, 2\ns_cbranch_scc1 {sk}\ns_lshl3_add_u32 s{t}, s{sRB}, s{sGRP}\ns_lshl_b32 s{t}, s{t}, 9\ns_mul_i32 s{t+1}, s{sLW}, {WS_KVP}\ns_add_u32 s{t}, s{t}, s{t+1}")
                    a("v_mov_b32 v64, 0\nv_mov_b32 v65, 0\nv_mov_b32 v66, 0\nv_mov_b32 v67, 0\ns_mov_b32 exec_hi, 0")
                    a(f"buffer_store_dwordx4 v[64:67], v69, {WSR}, s{t} offen sc1\ns_mov_b32 exec_hi, -1")
                    a.label(sk)
                if rp and variant == 0 and j == LRP + 3:
                    sk = a.newlabel("L_s1a")
                    a(f"s_cmp_lg_u32 s{sWAVE}, 4\ns_cbranch_scc1 {sk}")
                    self.srd(SRD_D, pDBG, 256)
                    a(f"v_mov_b32 v70, 1\ns_mov_b64 exec, 1\nbuffer_atomic_add v70, v69, s[{SRD_D}:{SRD_D+3}], 0 offen sc0 sc1\ns_mov_b64 exec, -1")
                    a.label(sk)
                if LOOK == "ramp" and j == 1: issue_W(5)
                if j + 1 < 10 and LOOK == "xw": issue_W(2*j + 3)
                if j + 2 < 10: issue_X(j + 2); issue_W(2*j + 4)
                if j + 2 < 10 and LOOK != "xw": issue_W(2*j + 5)
                if rp and j == LRP:
                    a(f"s_lshl_b32 s{t}, s{sLW}, 6\ns_add_u32 s{t}, s{t}, {MBOX}\nv_mov_b32 v68, s{t}\nds_read_b128 v[16:19], v68\nds_read_b128 v[20:23], v68 offset:16\nds_read_b32 v24, v68 offset:32")
                    a(f"v_lshrrev_b32 v10, 2, v0\nv_and_b32 v11, 3, v0\nv_lshlrev_b32 v11, 3, v11\nv_lshl_add_u32 v10, v10, 7, v11\ns_lshl_b32 s{t}, s{sLW}, 12\ns_add_u32 s{t}, s{t}, {SCR}\nv_add_u32 v10, s{t}, v10")
                    for r in range(2):
                        for u in range(4):
                            a(f"ds_read_b64_tr_b16 v[{32+16*r+4*u}:{33+16*r+4*u}], v10 offset:{8192*r + 32*u}\nds_read_b64_tr_b16 v[{34+16*r+4*u}:{35+16*r+4*u}], v10 offset:{8192*r + 32*u + 2048}")
                    a(f"s_waitcnt lgkmcnt(0)\nv_readfirstlane_b32 s{sKind}, v24\nv_lshrrev_b32 v25, 1, v69")
                    for u in range(4): a(f"v_add_u32 v{16+u}, v{16+u}, v69")
                    for u in range(4):
                        a(f"buffer_store_dwordx4 v[{32+4*u}:{35+4*u}], v{16+u}, {WSR}, 0 offen sc1"); seq.append(("S", u))
                if rp and j == LRP + 1:
                    k2, k3 = a.newlabel("L_r2"), a.newlabel("L_r2")
                    a(f"s_cmp_eq_u32 s{sKind}, 0\ns_cbranch_scc1 {k2}\ns_cmp_eq_u32 s{sKind}, 2\ns_cbranch_scc1 {k3}")
                    for u in range(4): a(f"v_add_u32 v{20+u}, v{20+u}, v69\nbuffer_store_dwordx4 v[{48+4*u}:{51+4*u}], v{20+u}, {WSR}, 0 offen sc1")
                    a(f"s_branch {k2}\n{k3}:\ns_mov_b32 s{t}, 12800")
                    for u in range(4): a(f"v_add_u32 v{20+u}, v{20+u}, v25\nbuffer_store_dwordx2 v[{48+4*u}:{49+4*u}], v{20+u}, {WSR}, 0 offen sc1\nbuffer_store_dwordx2 v[{50+4*u}:{51+4*u}], v{20+u}, {WSR}, s{t} offen sc1")
                    a.label(k2)
                if j == 8 and NE16:
                    self.setup2()
                    self.srd(SRD_WS, pWS, WS_SIZE)
                    self.preload_b(0, NE16)
                    seq.extend(["B"] * NE16)
            if variant != 4:
                a(f"s_branch {labj}")
        a.label(labj)
        self.stamp(2)

    def mish_quad(self, h, dst, tmp):
        P = lambda r: f"v[{r}:{r+1}]"
        return [
            f"v_pk_fma_f32 {P(tmp)}, {P(h)}, s[{cL2E}:{cL2E+1}], -0.5 op_sel_hi:[1,1,0]",
            f"v_pk_fma_f32 {P(tmp+2)}, {P(h+2)}, s[{cL2E}:{cL2E+1}], -0.5 op_sel_hi:[1,1,0]",
            f"v_exp_f32 v{tmp}, v{tmp}", f"v_exp_f32 v{tmp+1}, v{tmp+1}", f"v_exp_f32 v{tmp+2}, v{tmp+2}", f"v_exp_f32 v{tmp+3}, v{tmp+3}",
            f"v_pk_add_f32 {P(tmp)}, {P(tmp)}, s[{cC}:{cC+1}]", f"v_pk_add_f32 {P(tmp+2)}, {P(tmp+2)}, s[{cC}:{cC+1}]",
            f"v_pk_fma_f32 {P(tmp)}, {P(tmp)}, {P(tmp)}, 0.5 op_sel_hi:[1,1,0]",
            f"v_pk_fma_f32 {P(tmp+2)}, {P(tmp+2)}, {P(tmp+2)}, 0.5 op_sel_hi:[1,1,0]",
            f"v_rcp_f32 v{tmp}, v{tmp}", f"v_rcp_f32 v{tmp+1}, v{tmp+1}", f"v_rcp_f32 v{tmp+2}, v{tmp+2}", f"v_rcp_f32 v{tmp+3}, v{tmp+3}",
            f"v_pk_fma_f32 {P(tmp)}, {P(h)}, {P(tmp)}, {P(h)} neg_lo:[1,0,0] neg_hi:[1,0,0]",
            f"v_pk_fma_f32 {P(tmp+2)}, {P(h+2)}, {P(tmp+2)}, {P(h+2)} neg_lo:[1,0,0] neg_hi:[1,0,0]",
            f"v_cvt_pk_bf16_f32 v{dst}, v{tmp}, v{tmp+1}", f"v_cvt_pk_bf16_f32 v{dst+1}, v{tmp+2}, v{tmp+3}",
        ]

    def phi_quad(self, h, dst, tmp):
        P = lambda r: f"v[{r}:{r+1}]"
        return [
            f"v_pk_mul_f32 {P(tmp)}, {P(h)}, s[{cL2E}:{cL2E+1}]", f"v_pk_mul_f32 {P(tmp+2)}, {P(h+2)}, s[{cL2E}:{cL2E+1}]",
            f"v_exp_f32 v{tmp}, v{tmp} clamp", f"v_exp_f32 v{tmp+1}, v{tmp+1} clamp", f"v_exp_f32 v{tmp+2}, v{tmp+2} clamp", f"v_exp_f32 v{tmp+3}, v{tmp+3} clamp",
            f"v_pk_add_f32 {P(h)}, {P(h)}, s[{cC}:{cC+1}]", f"v_pk_add_f32 {P(h+2)}, {P(h+2)}, s[{cC}:{cC+1}]",
            f"v_pk_add_f32 {P(tmp)}, {P(tmp)}, s[{cE}:{cE+1}]", f"v_pk_add_f32 {P(tmp+2)}, {P(tmp+2)}, s[{cE}:{cE+1}]",
            f"v_max_f32 v{tmp}, v{tmp}, v{h}", f"v_max_f32 v{tmp+1}, v{tmp+1}, v{h+1}", f"v_max_f32 v{tmp+2}, v{tmp+2}, v{h+2}", f"v_max_f32 v{tmp+3}, v{tmp+3}, v{h+3}",
            f"v_cvt_pk_bf16_f32 v{dst}, v{tmp}, v{tmp+1}", f"v_cvt_pk_bf16_f32 v{dst+1}, v{tmp+2}, v{tmp+3}",
        ]

    def consts(self, kind):
        if kind == "mish":
            self.a(f"s_mov_b32 s{cC}, 0x3f3504f3\ns_mov_b32 s{cC+1}, 0x3f3504f3")
        else:
            self.a(f"s_mov_b32 s{cC}, 0x3f800008\ns_mov_b32 s{cC+1}, 0x3f800008\ns_mov_b32 s{cE}, 0x358637bd\ns_mov_b32 s{cE+1}, 0x358637bd")

    def main_loop(self, reads, mfmas, extra, nread_end, bases):
        a = self.a
        a("s_barrier")
        self.stamp(1)
        for l in reads(0): a(l)
        for l in extra.get(0, ([], [], []))[1]: a(l)
        a("s_waitcnt lgkmcnt(0)")
        for i in range(1, 21):
            if (i == 1 or i % 2 == 0) and i < 20: a("s_barrier")
            if i in (2, 4, 6, 8, 10, 14, 18): self.stamp(3 + (2, 4, 6, 8, 10, 14, 18).index(i), True)
            pre, fill, preb = extra.get(i, ([], [], []))
            for l in pre: a(l)
            if i < 20:
                tail = []
                if (i + 1) % 3 == 0 and i + 1 < 20:
                    op = "v_add_u32" if ((i + 1) % NS) == 3 else "v_subrev_u32"
                    tail = [f"{op} v{b}, {3*WSLOT}, v{b}" for b in bases]
                body = interleave(mfmas(i - 1), reads(i) + fill + tail, 0, nread_end)
                for l in body: a(l)
                for l in preb: a(l)
                a("s_waitcnt lgkmcnt(0)")
            else:
                m19 = mfmas(19)
                for l in m19[:B20AT] + ["s_barrier"] + m19[B20AT:]: a(l)
        self.stamp(2)

    def finish1(self, flags, strict=False, late8=False):
        a = self.a
        self.setup2()
        if LFLAG == 2 and late8: a(f"s_add_u32 s{flags[0]}, s{flags[0]}, 8")
        if LFLAG == 1:
            if late8: a(f"s_add_u32 s{flags[0]}, s{flags[0]}, 8")
            a(f"s_mov_b32 s32, s{flags[1]}")
            self.preload_b(0, NPRE)
            return
        if strict:
            a("s_waitcnt vmcnt(0)")
            self.stamp(5)
            for f in flags: self.signal(f, 1)
            self.preload_b(0, NPRE)
            return
        self.preload_b(0, NPRE)
        a(f"s_waitcnt vmcnt({NPRE})")
        self.stamp(5)
        for f in flags: self.signal(f, 1)
        if not BLDS:
            self.preload_b(NPRE, 30)
            return

    def pickup(self):
        a = self.a
        t = T0
        sk = a.newlabel("L_pk")
        a(f"s_cmp_ge_u32 s{sWAVE}, 4\ns_cbranch_scc1 {sk}")
        a(f"s_mul_i32 s{t+14}, s{sWAVE}, 20480\ns_add_u32 s{t+14}, s{t+14}, {BL}\nv_add_u32 v{BS+117}, s{t+14}, v{vL16}")
        for n in range(5*NB - 10):
            a(f"ds_read_b128 v[{BS+40+4*n}:{BS+43+4*n}], v{BS+117} offset:{1024*n}")
        a.label(sk)

    def prefetch(self, vL, v, S=SRD_X):
        a = self.a
        t = T0
        for ptr, size, share, n in ((pX, 2048*1280, 10240, 3), (pWQKV, 640*3840, 9600, 3), (pW1, 640*3072, 7680, 2))[:(1 if PF == 2 else 3)]:
            self.srd(S, ptr, size)
            per = -(-share // 4 // 128) * 128
            a(f"s_mul_i32 s{t}, s{sWG}, {share}\ns_and_b32 s{t}, s{t}, 0xffffff80\ns_mul_i32 s{t+1}, s{sWAVE}, {per}\ns_add_u32 s{t}, s{t}, s{t+1}\ns_min_u32 s{t}, s{t}, {size - n*1024}")
            for k in range(n):
                a(f"buffer_load_dwordx4 v[{v}:{v+3}], v{vL}, s[{S}:{S+3}], s{t} offen offset:{1024*k}")

    def touch(self, vLane, v):
        a = self.a
        t = T0
        a(f"v_lshlrev_b32 v{v}, 21, v{vLane}\nv_add_u32 v{v}, 0xff000, v{v}\ns_mov_b64 exec, 0xff")
        a(f"buffer_load_dword v{v+1}, v{v}, {WSR}, 0 offen")
        self.srd(SRD_M, pOUT, 2048*640*2)
        a(f"v_lshlrev_b32 v{v}, 20, v{vLane}\ns_mov_b64 exec, 7\nbuffer_load_dword v{v+2}, v{v}, s[{SRD_M}:{SRD_M+3}], 0 offen")
        self.srd(SRD_M, pWO, 640*640*2)
        a(f"v_lshlrev_b32 v{v}, 19, v{vLane}\ns_mov_b64 exec, 3\nbuffer_load_dword v{v+3}, v{v}, s[{SRD_M}:{SRD_M+3}], 0 offen\ns_mov_b64 exec, -1")

    def compute_P(self):
        a = self.a
        t = T0
        ACC, XB, WB, BI = 0, 112, 144, 200
        vX0, vX1, vH0, vH1, vQ, vGt, vL, vRd, vRr, vBo, vT = 228, 229, 230, 231, 232, 233, 234, 235, 236, 237, 238
        vLane = 253
        sSH, sNH = sT, 48
        sAct, sPq, sF2, sGs = 49, 72, 73, 74
        a(f"v_mov_b32 v{vLane}, v0\ns_lshr_b32 s{sSH}, s{sWAVE}, 1\ns_and_b32 s{sNH}, s{sWAVE}, 1")
        a(f"v_and_b32 v1, 15, v0\nv_lshrrev_b32 v2, 4, v0\nv_lshrrev_b32 v3, 1, v1\nv_xor_b32 v3, v3, v2\nv_lshlrev_b32 v3, 4, v3\nv_lshl_add_u32 v3, v1, 7, v3")
        a(f"s_lshl_b32 s{t}, s{sSH}, 13\nv_add_u32 v{vX0}, s{t}, v3\nv_xor_b32 v{vX1}, 64, v{vX0}")
        a(f"v_lshrrev_b32 v3, 2, v0\nv_and_b32 v4, 3, v0\nv_lshlrev_b32 v4, 3, v4")
        a(f"v_lshl_add_u32 v5, v3, 7, v4\nv_bfe_u32 v6, v0, 3, 2\ns_lshl_b32 s{t}, s{sNH}, 1\nv_xor_b32 v6, s{t}, v6\nv_lshl_add_u32 v6, v6, 5, v5")
        a(f"v_add_u32 v{vH0}, {WR}, v6\nv_xor_b32 v{vH1}, 32, v{vH0}")
        a(f"v_lshl_add_u32 v6, v3, 6, v4\nv_and_b32 v7, 1, v2\nv_xor_b32 v7, s{sNH}, v7\nv_lshl_add_u32 v6, v7, 5, v6\nv_add_u32 v{vQ}, {WR+12288}, v6")
        a(f"v_lshlrev_b32 v6, 4, v2\nv_add_u32 v{vGt}, {GATE}, v6\nv_lshlrev_b32 v{vL}, 4, v0\nv_lshlrev_b32 v{vBo}, 3, v2")
        a(f"v_lshrrev_b32 v6, 3, v0\nv_mul_u32_u24 v6, 1280, v6\nv_and_b32 v7, 7, v0\nv_lshl_add_u32 v{vRd}, v7, 4, v6")
        a(f"s_lshl_b32 s{t}, s{sWAVE}, 12\ns_add_u32 s{t}, s{t}, {SCR}\nv_add_u32 v{vRr}, s{t}, v5")
        a(f"s_lshl3_add_u32 s{sPIDX}, s{sRB}, s{sGRP}")
        a(f"s_mov_b32 s{cL2E}, 0x3fb8aa3b\ns_mov_b32 s{cL2E+1}, 0x3fb8aa3b")
        a(f"s_lshl2_add_u32 s{t}, s{sPIDX}, s{sWAVE}\ns_min_u32 s{t}, s{t}, 479")
        a(f"s_mul_i32 s{t+1}, s{t}, 6554\ns_lshr_b32 s{t+1}, s{t+1}, 16\ns_mul_i32 s{t+2}, s{t+1}, 10\ns_sub_u32 s{t+2}, s{t}, s{t+2}")
        a(f"s_mul_i32 s{t+6}, s{t+1}, 40960\ns_lshl_b32 s{t+3}, s{t+2}, 7\ns_add_u32 s{t+6}, s{t+6}, s{t+3}")
        a(f"s_mul_i32 s{t+7}, s{sGRP}, 384\ns_lshl_b32 s{t+3}, s{sNH}, 6\ns_add_u32 s{t+7}, s{t+7}, s{t+3}")
        a("s_waitcnt lgkmcnt(0)")
        self.stamp(0)
        self.srd(SRD_M, pB1, 3072)
        self.srd(SRD_W, pW2, 1536*640*2)
        for u in range(6):
            a(f"buffer_load_dwordx2 v[{BI+4*u+2}:{BI+4*u+3}], v{vBo}, s[{SRD_M}:{SRD_M+3}], s{t+7} offen offset:{128*(u >> 1) + 32*(u & 1)}")
        sSrc1 = 69
        a(f"s_mov_b32 s{sSrc1}, s{t+6}")
        self.srd(SRD_WS, pWS, WS_SIZE)
        if TOUCH == 2: self.touch(vLane, 240)
        dsts = [10, 11, 1, 3]
        for u in range(4):
            a(f"s_lshl2_add_u32 s{t+3}, s{t+2}, {u}\ns_mul_i32 s{t+4}, s{t+3}, 205\ns_lshr_b32 s{t+4}, s{t+4}, 10")
            a(f"s_mul_i32 s{t+5}, s{t+4}, 235\ns_add_u32 s{t+5}, s{t+5}, s{t+3}\ns_mul_i32 s{t+4}, s{t+1}, 5\ns_add_u32 s{t+5}, s{t+5}, s{t+4}")
            a(f"s_lshl_b32 s{t+5}, s{t+5}, 10\ns_add_u32 s{t+5}, s{t+5}, {WS_W2R}")
            if LRP: a(f"s_mov_b32 s{dsts[u]}, s{t+5}")
            else: a(f"s_cmp_lt_u32 s{sPIDX}, 120\ns_cselect_b32 s{dsts[u]}, s{t+5}, {BIG}")
        d2, sSrc2, sK2, sInc2 = 40, 0, 75, 70
        self.srd(SRD_M, pWO, 640*640*2)
        a(f"s_lshl1_add_u32 s{t}, s{sPIDX}, s{sWAVE}\ns_sub_u32 s{t}, s{t}, 2")
        a(f"s_cmp_lt_u32 s{t}, 160\ns_cselect_b32 s{sK2}, 1, 2\ns_cmp_lt_u32 s{t}, 200\ns_cselect_b32 s{sK2}, s{sK2}, 0\ns_cmp_lt_u32 s{sWAVE}, 2\ns_cselect_b32 s{sK2}, 0, s{sK2}")
        a(f"s_mul_i32 s{t+1}, s{t}, 6554\ns_lshr_b32 s{t+1}, s{t+1}, 16\ns_mul_i32 s{t+2}, s{t+1}, 10\ns_sub_u32 s{t+2}, s{t}, s{t+2}")
        a(f"s_lshr_b32 s{t+3}, s{t+1}, 1\ns_and_b32 s{t+4}, s{t+1}, 1\ns_sub_u32 s{t+5}, s{t+1}, 16\ns_lshl_b32 s{t+5}, s{t+5}, 1")
        a(f"s_cmp_eq_u32 s{sK2}, 2\ns_cselect_b32 s{t+3}, s{t+5}, s{t+3}\ns_cselect_b32 s{t+4}, 2, s{t+4}\ns_cselect_b32 s{sInc2}, {10240 + 64*1280}, 10240")
        a(f"s_mul_i32 s{sSrc2}, s{t+3}, {80*1280}\ns_mul_i32 s{t+5}, s{t+4}, {32*1280}\ns_add_u32 s{sSrc2}, s{sSrc2}, s{t+5}\ns_lshl_b32 s{t+5}, s{t+2}, 7\ns_add_u32 s{sSrc2}, s{sSrc2}, s{t+5}")
        a(f"s_mul_i32 s{t+3}, s{t+3}, 12800\ns_lshl_b32 s{t+5}, s{t+4}, 10\ns_cmp_eq_u32 s{sK2}, 2\ns_cselect_b32 s{t+5}, 10240, s{t+5}\ns_cselect_b32 s{t+6}, 512, 2048\ns_add_u32 s{t+3}, s{t+3}, s{t+5}\ns_add_u32 s{t+3}, s{t+3}, {WS_WOR}")
        for u in range(4):
            a(f"s_lshl2_add_u32 s{t+4}, s{t+2}, {u}\ns_mul_i32 s{t+5}, s{t+4}, 205\ns_lshr_b32 s{t+5}, s{t+5}, 10\ns_mul_i32 s{t+7}, s{t+5}, 5\ns_sub_u32 s{t+4}, s{t+4}, s{t+7}")
            a(f"s_mul_i32 s{t+5}, s{t+5}, 102400\ns_mul_i32 s{t+4}, s{t+4}, s{t+6}\ns_add_u32 s{t+5}, s{t+5}, s{t+4}\ns_add_u32 s{d2+u}, s{t+5}, s{t+3}")
        sRb64 = t + 11
        a(f"s_lshl1_add_u32 s{sRb64}, s{sRB}, s{sSH}")
        a(f"s_mul_i32 s{t}, s{sRb64}, 48\ns_mul_i32 s{t+1}, s{sGRP}, 6\ns_add_u32 s{t}, s{t}, s{t+1}\ns_add_u32 s{t}, s{t}, s{sNH}\ns_lshl_b32 s{t}, s{t}, 12")
        a(f"s_add_u32 s{sAct}, s{t}, {WS_ACT}\ns_add_u32 s{sAct+1}, s{t}, {WS_ACT + 8192}\ns_add_u32 s{sAct+2}, s{t}, {WS_ACT + 16384}")
        a(f"s_mul_i32 s{t}, s{sRb64}, 40\ns_lshl2_add_u32 s{t}, s{sHALF}, s{t}\ns_lshl1_add_u32 s{t}, s{sCBL}, s{t}\ns_add_u32 s{t}, s{t}, s{sNH}\ns_add_u32 s{t}, s{t}, 24\ns_lshl_b32 s{t}, s{t}, 11\ns_add_u32 s{sPq}, s{t}, {WS_PQ}")
        a(f"s_lshl3_add_u32 s{sF1}, s{sRb64}, s{sGRP}\ns_lshl_b32 s{sF1}, s{sF1}, 7")
        a(f"s_lshl1_add_u32 s{t}, s{sGRP}, s{sNH}\ns_cmp_eq_u32 s{t}, 5\ns_cselect_b32 s{sGs}, 1, 0")
        a(f"s_lshl_b32 s{sF2}, s{sRb64}, 7\ns_add_u32 s{sF2}, s{sF2}, {CNT_PQ}\ns_cmp_lt_u32 s{sCBL}, 6\ns_cselect_b32 s{t}, 1, s{sGs}\ns_cmp_eq_u32 s{t}, 1\ns_cselect_b32 s{sF2}, s{sF2}, {BIG}")
        a(f"s_cmp_ge_u32 s{sCBL}, 6\ns_cselect_b64 vcc, -1, 0")
        def reads(i):
            b = i & 1; so = (i % 3) * WSLOT
            xs = XR + ((i >> 1) % 3) * 16384
            r = [f"ds_read_b128 v[{XB+16*b+4*s}:{XB+16*b+4*s+3}], v{vX1 if i & 1 else vX0} offset:{xs + 2048*s}" for s in range(4)]
            for u in range(6):
                d = WB + 28*b + 4*u
                r.append(f"ds_read_b64_tr_b16 v[{d}:{d+1}], v{vH0 + (u & 1)} offset:{so + 4096*(u >> 1)}")
                r.append(f"ds_read_b64_tr_b16 v[{d+2}:{d+3}], v{vH0 + (u & 1)} offset:{so + 4096*(u >> 1) + 2048}")
            d = WB + 28*b + 24
            if GBR:
                l1, l2 = a.newlabel("L_g"), a.newlabel("L_gj")
                r.append(f"s_cbranch_vccnz {l1}\nds_read_b64_tr_b16 v[{d}:{d+1}], v{vQ} offset:{so}\nds_read_b64_tr_b16 v[{d+2}:{d+3}], v{vQ} offset:{so + 1024}\ns_branch {l2}\n"
                         f"{l1}:\nds_read_b128 v[{d}:{d+3}], v{vGt} offset:{64*i}\n{l2}:")
            else:
                r += [f"ds_read_b64_tr_b16 v[{d}:{d+1}], v{vQ} offset:{so}", f"ds_read_b64_tr_b16 v[{d+2}:{d+3}], v{vQ} offset:{so + 1024}",
                      f"s_mov_b64 exec, vcc\nds_read_b128 v[{d}:{d+3}], v{vGt} offset:{64*i}\ns_mov_b64 exec, -1"]
            return r
        def mfmas(i):
            b = i & 1
            r = []
            for u in (range(7) if i < 19 else (6, 0, 1, 2, 3, 4, 5)):
                for s in range(4):
                    d = ACC + 16*u + 4*s
                    c = f"v[{d}:{d+3}]" if i > 0 else ("0" if u == 6 else f"v[{BI+4*u}:{BI+4*u+3}]")
                    r.append(f"v_mfma_f32_16x16x32_bf16 v[{d}:{d+3}], v[{WB+28*b+4*u}:{WB+28*b+4*u+3}], v[{XB+16*b+4*s}:{XB+16*b+4*s+3}], {c}")
            return r
        unpack = [f"s_waitcnt vmcnt({(3 if TOUCH == 2 else 0) + (4 if RD < 0 else 0) + {0: 0, 1: 8, 2: 3}[PF]})"]
        for u in range(6):
            p = BI + 4*u
            unpack += [f"v_lshlrev_b32 v{p}, 16, v{p+2}", f"v_and_b32 v{p+1}, 0xffff0000, v{p+2}", f"v_lshlrev_b32 v{p+2}, 16, v{p+3}", f"v_and_b32 v{p+3}, 0xffff0000, v{p+3}"]
        RP = BI
        rp_reads = []
        for u in range(4):
            rp_reads += [f"ds_read_b64_tr_b16 v[{RP+4*u}:{RP+4*u+1}], v{vRr} offset:{32*u}", f"ds_read_b64_tr_b16 v[{RP+4*u+2}:{RP+4*u+3}], v{vRr} offset:{32*u + 2048}"]
        rp_st = [f"buffer_store_dwordx4 v[{RP+4*u}:{RP+4*u+3}], v{vL}, {WSR}, s{dsts[u]} offen sc1" for u in range(4)]
        z = [f"s_lshl_b32 s{t}, s{sPIDX}, 9", f"s_mul_i32 s{t+1}, s{sWAVE}, {WS_KVP}", f"s_add_u32 s{t}, s{t}, s{t+1}", f"s_cmp_lt_u32 s{sWAVE}, 2", f"s_cselect_b32 s{t}, s{t}, {BIG}"] + \
            [f"v_mov_b32 v{RP+16+k}, 0" for k in range(4)] + \
            [f"s_mov_b32 exec_hi, 0\nbuffer_store_dwordx4 v[{RP+16}:{RP+19}], v{vL}, {WSR}, s{t} offen sc1\ns_mov_b32 exec_hi, -1"]
        k1, k2, k3, k4 = [a.newlabel("L_r2") for _ in range(4)]
        dma1 = [f"s_lshl_b32 s{t+3}, s{sWAVE}, 12"]
        for j in range(4):
            dma1.append(f"s_add_u32 m0, s{t+3}, {SCR + 1024*j}\ns_nop 0\nbuffer_load_dwordx4 v{vRd}, s[{SRD_W}:{SRD_W+3}], s{sSrc1} offen lds\ns_add_u32 s{sSrc1}, s{sSrc1}, 10240")
        rp_reads2 = [l.replace("offset:", "offset:8192+") for l in rp_reads]
        dma2 = f"s_cmp_eq_u32 s{sK2}, 0\ns_cbranch_scc1 {k1}\n"
        for j in range(4):
            dma2 += f"s_add_u32 m0, s{t+3}, {SCR + 8192 + 1024*j}\ns_nop 0\nbuffer_load_dwordx4 v{vRd}, s[{SRD_M}:{SRD_M+3}], s{sSrc2} offen lds\n"
            if j < 3: dma2 += f"s_add_u32 s{sSrc2}, s{sSrc2}, " + (f"s{sInc2}" if j == 1 else "10240") + "\n"
        dma2 += k1 + ":"
        st2 = f"s_cmp_eq_u32 s{sK2}, 0\ns_cbranch_scc1 {k2}\ns_cmp_eq_u32 s{sK2}, 2\ns_cbranch_scc1 {k3}\n"
        st2 += "".join(f"buffer_store_dwordx4 v[{RP+4*u}:{RP+4*u+3}], v{vL}, {WSR}, s{d2+u} offen sc1\n" for u in range(4))
        st2 += f"s_branch {k2}\n{k3}:\nv_lshrrev_b32 v{vT}, 1, v{vL}\n"
        for u in range(4):
            st2 += f"buffer_store_dwordx2 v[{RP+4*u}:{RP+4*u+1}], v{vT}, {WSR}, s{d2+u} offen sc1\ns_add_u32 s{d2+u}, s{d2+u}, 12800\n"
            st2 += f"buffer_store_dwordx2 v[{RP+4*u+2}:{RP+4*u+3}], v{vT}, {WSR}, s{d2+u} offen sc1\n"
        st2 += k2 + ":"
        sk, sk2 = a.newlabel("L_s1a"), a.newlabel("L_s1b")
        arr = [f"s_cmp_lg_u32 s{sWAVE}, 0", f"s_cbranch_scc1 {sk}",
               f"s_mov_b32 s{SRD_D}, s{pDBG}", f"s_mov_b32 s{SRD_D+1}, s{pDBG+1}", f"s_mov_b32 s{SRD_D+2}, 256", f"s_mov_b32 s{SRD_D+3}, 0x20000",
               f"v_mov_b32 v{vT}, 1", f"s_mov_b64 exec, 1\nbuffer_atomic_add v{vT}, v{vL}, s[{SRD_D}:{SRD_D+3}], 0 offen sc0 sc1\ns_mov_b64 exec, -1", sk + ":"]
        arr2 = [f"s_cmp_lg_u32 s{sWAVE}, 0", f"s_cbranch_scc1 {sk2}", "s_waitcnt vmcnt(0)", f"v_readfirstlane_b32 s{t}, v{vT}", f"v_mov_b32 v{vT+1}, 1",
                f"s_cmp_lg_u32 s{t}, 127", f"s_cbranch_scc1 {sk2}",
                f"s_mov_b32 s{SRD_D}, s{pDBG}", f"s_mov_b32 s{SRD_D+1}, s{pDBG+1}", f"s_mov_b32 s{SRD_D+2}, 256", f"s_mov_b32 s{SRD_D+3}, 0x20000",
                f"s_mov_b64 exec, 1\nbuffer_store_dword v{vT+1}, v{vL}, s[{SRD_D}:{SRD_D+3}], 0 offen offset:128 sc1\ns_mov_b64 exec, -1", sk2 + ":"]
        if RD < 0:
            for l in dma1 + [dma2]: a(l)
        if PF: self.prefetch(vL, 240, S=SRD_D)
        hi, lo = (["s_setprio 3"], ["s_setprio 0"]) if STPRIO else ([], [])
        extra = {0: ([], unpack, []), RS: (["s_waitcnt vmcnt(0)"], rp_reads, []), RS+1: (hi, rp_st + rp_reads2, []),
                 RS+2: ([], [st2] + z, lo), S1AT-1: ([], [], ["s_waitcnt vmcnt(0)"]), S1AT: (arr, [], []), S1AT+2: (arr2, [], [])}
        if LRP:
            a(f"s_lshl_b32 s{t}, s{sWAVE}, 6\ns_add_u32 s{t}, s{t}, {MBOX}\nv_mov_b32 v8, s{t}")
            for u in range(4): a(f"v_mov_b32 v{12+u}, s{dsts[u]}\nv_mov_b32 v{16+u}, s{d2+u}")
            a(f"v_mov_b32 v20, s{sK2}\nds_write_b128 v8, v[12:15]\nds_write_b128 v8, v[16:19] offset:16\nds_write_b32 v8, v20 offset:32\ns_waitcnt lgkmcnt(0)")
            extra = {0: extra[0], 2*LRP - 1: ([], [], ["s_waitcnt vmcnt(0)"])}
        if SPREAD:
            R2 = [216, 220, 240, 244]
            rd2 = []
            for u in range(4):
                rd2 += [f"ds_read_b64_tr_b16 v[{R2[u]}:{R2[u]+1}], v{vRr} offset:{8192 + 32*u}", f"ds_read_b64_tr_b16 v[{R2[u]+2}:{R2[u]+3}], v{vRr} offset:{8192 + 32*u + 2048}"]
            zz = [l.replace(f"v{RP+16}", "v248").replace(f"v{RP+17}", "v249").replace(f"v{RP+18}", "v250").replace(f"v{RP+19}", "v251").replace(f"v[{RP+16}:{RP+19}]", "v[248:251]") for l in z]
            pre2 = [f"v_lshrrev_b32 v{vT+1}, 1, v{vL}"]
            def st2u(u):
                k5, k6 = a.newlabel("L_r2"), a.newlabel("L_r2")
                return (f"s_cmp_eq_u32 s{sK2}, 1\ns_cbranch_scc0 {k5}\nbuffer_store_dwordx4 v[{R2[u]}:{R2[u]+3}], v{vL}, {WSR}, s{d2+u} offen sc1\n{k5}:\n"
                        f"s_cmp_eq_u32 s{sK2}, 2\ns_cbranch_scc0 {k6}\nbuffer_store_dwordx2 v[{R2[u]}:{R2[u]+1}], v{vT+1}, {WSR}, s{d2+u} offen sc1\ns_add_u32 s{d2+u}, s{d2+u}, 12800\n"
                        f"buffer_store_dwordx2 v[{R2[u]+2}:{R2[u]+3}], v{vT+1}, {WSR}, s{d2+u} offen sc1\n{k6}:")
            extra = {0: extra[0], RS: (["s_waitcnt vmcnt(0)"], rp_reads + rd2 + pre2 + zz, []), S1AT: extra[S1AT], S1AT+2: extra[S1AT+2]}
            if SPREAD == 1:
                for u in range(4): extra[RS+1+u] = ([], [rp_st[u], st2u(u)], [])
            else:
                for u in range(4):
                    extra[RS+1+2*u] = ([], [rp_st[u]], []); extra[RS+2+2*u] = ([], [st2u(u)], [])
            e_ = extra.get(S1AT-1, ([], [], []))
            extra[S1AT-1] = (e_[0], e_[1], ["s_waitcnt vmcnt(0)"])
        if RD > 0: extra[RD] = ([], dma1 + [dma2], [])
        if RD == 0: extra[0] = ([], unpack + dma1 + [dma2], [])
        self.main_loop(reads, mfmas, extra, NRE, [vH0, vH1, vQ])
        if EPRIO: a(f"s_setprio {EPRIO}")
        TM = XB
        a("s_nop 3")
        labG, labE = a.newlabel("L_epG"), a.newlabel("L_epE")
        a(f"s_cbranch_vccnz {labG}")
        self.consts("phi")
        for sp in range(2):
            e = ACC + 96 + 8*sp
            for l in self.phi_quad(e, e, TM): a(l)
            for l in self.phi_quad(e + 4, e + 2, TM + 4): a(l)
            a(f"buffer_store_dwordx4 v[{e}:{e+3}], v{vL}, {WSR}, s{sPq} offen offset:{1024*sp} sc1")
        a(f"s_branch {labE}")
        a.label(labG)
        a(f"s_cmp_eq_u32 s{sGs}, 0\ns_cbranch_scc1 {labE}")
        G = ACC + 96
        a(f"v_cmp_le_u32 vcc, 16, v{vLane}\nv_cmp_le_u32 s[{t+2}:{t+3}], 32, v{vLane}\nv_cmp_le_u32 s[{t+4}:{t+5}], 48, v{vLane}\ns_nop 0")
        a(f"v_cndmask_b32 v{G}, v{G}, v{G+4}, vcc\nv_cndmask_b32 v{G}, v{G}, v{G+8}, s[{t+2}:{t+3}]\nv_cndmask_b32 v{G}, v{G}, v{G+12}, s[{t+4}:{t+5}]")
        a(f"s_mov_b32 s{t}, 0x42700000\nv_min_f32 v{G}, s{t}, v{G}\nv_max_f32 v{G}, -s{t}, v{G}\nv_mul_f32 v{G}, s{cL2E}, v{G}\nv_exp_f32 v{G}, v{G}")
        a(f"s_lshl_b32 s{t}, s{sRb64}, 8\ns_add_u32 s{t}, s{t}, {WS_G}\nv_add_f32 v{G+2}, 1.0, v{G}\nv_rcp_f32 v{G+2}, v{G+2}\nv_lshlrev_b32 v{G+1}, 2, v{vLane}\ns_add_u32 s{t+1}, s{t}, 8192")
        a(f"buffer_store_dword v{G}, v{G+1}, {WSR}, s{t} offen sc1\nbuffer_store_dword v{G+2}, v{G+1}, {WSR}, s{t+1} offen sc1")
        a.label(labE)
        self.consts("mish")
        for L in range(3):
            for s in range(4):
                e, o = ACC + 32*L + 4*s, ACC + 32*L + 16 + 4*s
                for l in self.mish_quad(e, e, TM + 8*(s & 1)): a(l)
                for l in self.mish_quad(o, e + 2, TM + 4 + 8*(s & 1)): a(l)
                if DIAG != 1: a(f"buffer_store_dwordx4 v[{e}:{e+3}], v{vL}, {WSR}, s{sAct+L} offen offset:{1024*s} {'' if DIAG == 2 else 'sc1'}")
            if L == 0 and EARLYQ:
                a("s_waitcnt vmcnt(4)")
                self.signal(sF2, vT)
            if LFLAG and L >= 1:
                a(f"s_waitcnt vmcnt({4 if L == 1 else 5})")
                self.signal(sF1, vT, 4*(L - 1))
        a(f"v_mov_b32 v0, v{vLane}")
        self.stamp(3)
        self.finish1([sF1] if EARLYQ else [sF1, sF2], strict=bool(STRICTP), late8=True)

    def compute_KV(self):
        a = self.a
        t = T0
        ACC, XB, WB = 0, 112, 128
        vX0, vX1, vK, vQ0, vL = 240, 241, 242, 243, 247
        vLane = 253
        sPq, sF2, sRec = 72, 73, 74
        a(f"v_mov_b32 v{vLane}, v0")
        a(f"v_and_b32 v1, 15, v0\nv_lshrrev_b32 v2, 4, v0\nv_lshrrev_b32 v3, 1, v1\nv_xor_b32 v3, v3, v2\nv_lshlrev_b32 v3, 4, v3\nv_lshl_add_u32 v3, v1, 7, v3")
        a(f"s_lshl_b32 s{t}, s{sWAVE}, 12\nv_add_u32 v{vX0}, s{t}, v3\nv_xor_b32 v{vX1}, 64, v{vX0}")
        a(f"v_lshrrev_b32 v3, 2, v0\nv_and_b32 v4, 3, v0\nv_lshlrev_b32 v4, 3, v4")
        a(f"v_mul_u32_u24 v5, 160, v3\nv_add_u32 v5, v5, v4\nv_add_u32 v{vK}, {WR}, v5")
        a(f"v_lshl_add_u32 v5, v3, 7, v4\nv_bfe_u32 v6, v0, 3, 2\nv_lshl_add_u32 v5, v6, 5, v5\nv_add_u32 v{vQ0}, {WR+10240}, v5")
        for u in range(1, 4): a(f"v_xor_b32 v{vQ0+u}, {32*u}, v{vQ0}")
        a(f"v_lshlrev_b32 v{vL}, 4, v0")
        a(f"s_lshr_b32 s{t}, s{sWAVE}, 1\ns_lshl1_add_u32 s{t+1}, s{sRB}, s{t}")
        a(f"s_lshl_b32 s{sF2}, s{t+1}, 7\ns_add_u32 s{sF2}, s{sF2}, {CNT_PQ}")
        a(f"s_mul_i32 s{t+1}, s{t+1}, 40\ns_lshl2_add_u32 s{t+1}, s{sGRP}, s{t+1}\ns_and_b32 s{t}, s{sWAVE}, 1\ns_lshl1_add_u32 s{t+1}, s{t+1}, s{t}\ns_lshl_b32 s{t+1}, s{t+1}, 10\ns_add_u32 s{sPq}, s{t+1}, {WS_PQ}")
        a(f"s_lshl2_add_u32 s{t}, s{sGRP}, s{sWAVE}\ns_lshl_b32 s{sF1}, s{t}, 7\ns_add_u32 s{sF1}, s{sF1}, {CNT_KV}")
        a(f"s_mul_i32 s{t}, s{t}, 1792\ns_add_u32 s{sRec}, s{t}, {WS_KVP}")
        a(f"s_mov_b32 s{cL2E}, 0x3fb8aa3b\ns_mov_b32 s{cL2E+1}, 0x3fb8aa3b")
        self.consts("phi")
        a("s_waitcnt lgkmcnt(0)")
        self.stamp(0)
        self.srd(SRD_WS, pWS, WS_SIZE)
        if TOUCH: self.touch(vLane, 248)
        if PF: self.prefetch(vL, 248)
        def reads(i):
            b = i & 1; so = (i % 3) * WSLOT
            xs = XR + ((i >> 1) % 3) * 16384
            r = [f"ds_read_b128 v[{XB+8*b+4*s}:{XB+8*b+4*s+3}], v{vX1 if i & 1 else vX0} offset:{xs + 2048*s}" for s in range(2)]
            for u in range(14):
                d = WB + 56*b + 4*u
                if u < 10: base, off, d2 = vK, 5120*(u // 5) + 32*(u % 5), 2560
                else: base, off, d2 = vQ0 + u - 10, 0, 2048
                r.append(f"ds_read_b64_tr_b16 v[{d}:{d+1}], v{base} offset:{so + off}")
                r.append(f"ds_read_b64_tr_b16 v[{d+2}:{d+3}], v{base} offset:{so + off + d2}")
            return r
        def mfmas(i):
            b = i & 1
            r = []
            order = list(range(14)) if i < 19 else [5, 6, 7, 8, 9, 0, 1, 2, 3, 4, 10, 11, 12, 13]
            for u in order:
                for s in range(2):
                    d = ACC + 8*u + 4*s
                    c = f"v[{d}:{d+3}]" if i > 0 else "0"
                    w, x = f"v[{WB+56*b+4*u}:{WB+56*b+4*u+3}]", f"v[{XB+8*b+4*s}:{XB+8*b+4*s+3}]"
                    r.append(f"v_mfma_f32_16x16x32_bf16 v[{d}:{d+3}], {x if u < 10 else w}, {w if u < 10 else x}, {c}")
            return r
        self.main_loop(reads, mfmas, {}, 24, [vK, vQ0, vQ0+1, vQ0+2, vQ0+3])
        TM = XB
        vEx = vX0
        a(f"s_mul_i32 s{t}, s{sWAVE}, 10240\nv_add_u32 v{vEx}, s{t}, v{vL}")
        for u in range(5, 10):
            e = ACC + 8*u
            a(f"v_cvt_pk_bf16_f32 v{e}, v{e}, v{e+1}\nv_cvt_pk_bf16_f32 v{e+1}, v{e+2}, v{e+3}\nv_cvt_pk_bf16_f32 v{e+2}, v{e+4}, v{e+5}\nv_cvt_pk_bf16_f32 v{e+3}, v{e+6}, v{e+7}")
            a(f"ds_write_b128 v{vEx}, v[{e}:{e+3}] offset:{XR + 1024*u}")
        for u in range(5):
            e = ACC + 8*u
            for l in self.phi_quad(e, e, TM): a(l)
            for l in self.phi_quad(e + 4, e + 2, TM + 4): a(l)
            a(f"ds_write_b128 v{vEx}, v[{e}:{e+3}] offset:{XR + 1024*u}")
        a(f"s_lshl_b32 s{t}, s{sWAVE}, 10\nv_add_u32 v{vEx}, s{t}, v{vL}")
        ONE = WB + 64
        for k in range(4): a(f"v_mov_b32 v{ONE+k}, 0x3f803f80")
        if K1LDS:
            lp, dn = a.newlabel("L_k1"), a.newlabel("L_k1d")
            a(f"v_mov_b32 v{vK}, {K1C}\nv_mov_b32 v{vQ0}, 1\ns_mov_b32 s{t}, 0\ns_waitcnt lgkmcnt(0)\ns_mov_b64 exec, 1\nds_add_u32 v{vK}, v{vQ0}\ns_mov_b64 exec, -1")
            a.label(lp)
            a(f"ds_read_b32 v{vQ0}, v{vK}\ns_add_u32 s{t}, s{t}, 1\ns_waitcnt lgkmcnt(0)\nv_readfirstlane_b32 s{t+1}, v{vQ0}\ns_cmp_ge_u32 s{t}, {SPIN}\ns_cbranch_scc1 {dn}\ns_cmp_lt_u32 s{t+1}, 4\ns_cbranch_scc1 {lp}")
            a.label(dn)
        else:
            a("s_waitcnt lgkmcnt(0)\ns_barrier")
        FR = WB
        for g in range(4):
            for j, off in enumerate((0, 1024, 5120, 6144)):
                a(f"ds_read_b128 v[{FR+16*g+4*j}:{FR+16*g+4*j+3}], v{vEx} offset:{XR + 10240*g + off}")
        AD = WB + 72
        dc, BG, ev, R = AD, AD + 2, AD + 3, AD + 8
        ad = [f"v_lshrrev_b32 v{dc}, 4, v{vLane}", f"v_and_b32 v{ev}, 15, v{vLane}", f"v_mov_b32 v{BG}, 0x10000", f"v_cmp_eq_u32 vcc, 0, v{ev}",
              f"v_mov_b32 v{R}, 320", f"v_subrev_u32 v{dc}, s{sWAVE}, v{dc}", f"v_cndmask_b32 v{ev+2}, v{BG}, v{R}, vcc", f"v_add_u32 v{dc+1}, 4, v{dc}",
              f"s_lshl_b32 s{t}, s{sWAVE}, 2", f"v_subrev_u32 v{ev}, s{t}, v{ev}", f"v_add_u32 v{ev+1}, 16, v{ev}",
              f"s_lshl_b32 s{t+4}, s{sWAVE}, 11", f"s_add_u32 s{t+4}, s{t+4}, {STG}"]
        for k in range(2):
            ad += [f"v_cmp_gt_u32 vcc, 5, v{dc+k}", f"v_cmp_gt_u32 s[{t+2}:{t+3}], 20, v{ev+k}", f"v_mul_u32_u24 v{dc+k}, 336, v{dc+k}", f"v_lshlrev_b32 v{ev+k}, 4, v{ev+k}",
                   f"v_cndmask_b32 v{dc+k}, v{BG}, v{dc+k}, vcc", f"v_cndmask_b32 v{ev+k}, v{BG}, v{ev+k}, s[{t+2}:{t+3}]"]
        for k in range(2):
            ad += [f"v_add_u32 v{R+3*k+b}, v{dc+k}, v{ev+b}" for b in range(3)]
            ad += [f"v_min_u32 v{R+3*k+b}, 1680, v{R+3*k+b}" for b in range(3)]
            ad += [f"v_add_u32 v{R+3*k+b}, s{t+4}, v{R+3*k+b}" for b in range(3)]
        ad += [f"v_lshlrev_b32 v{dc}, 2, v{vLane}", f"v_add_u32 v{vEx}, s{t+4}, v{dc}"]
        for l in ad[:20]: a(l)
        D = ACC
        mm = []
        for g in range(4):
            for k in range(2):
                for b in range(3):
                    d = D + 12*k + 4*b
                    B = f"v[{FR+16*g+8+4*b}:{FR+16*g+8+4*b+3}]" if b < 2 else f"v[{ONE}:{ONE+3}]"
                    mm.append(f"v_mfma_f32_16x16x32_bf16 v[{d}:{d+3}], v[{FR+16*g+4*k}:{FR+16*g+4*k+3}], {B}, {'0' if g == 0 else f'v[{d}:{d+3}]'}")
        a("s_waitcnt lgkmcnt(0)")
        for l in interleave(mm, ad[20:], 0, 16): a(l)
        def qmath(u):
            e = ACC + 8*u
            return self.phi_quad(e, e, TM) + self.phi_quad(e + 4, e + 2, TM + 4)
        q10 = qmath(10)
        for l in q10[:8]: a(l)
        for j in range(6): a(f"ds_write_b128 v{R+j}, v[{D+4*j}:{D+4*j+3}]")
        for l in q10[8:20]: a(l)
        a("s_waitcnt lgkmcnt(0)")
        for j in range(7): a(f"ds_read_b32 v{j}, v{vEx} offset:{256*j}")
        for l in q10[20:]: a(l)
        a("s_waitcnt lgkmcnt(0)")
        for j in range(7):
            if j == 6: a("s_mov_b32 exec_hi, 15")
            a(f"buffer_atomic_add_f32 v{j}, v{dc}, {WSR}, s{sRec} offen offset:{256*j} sc1")
        a("s_mov_b32 exec_hi, -1")
        a(f"s_add_u32 s{t}, s{sPq}, 4096")
        def qst(u):
            e = ACC + 8*(10 + u)
            a(f"buffer_store_dwordx4 v[{e}:{e+3}], v{vL}, {WSR}, s{sPq if u < 2 else t} offen offset:{2048*(u & 1)} sc1")
        qst(0)
        for u in (1, 2, 3):
            for l in qmath(10 + u): a(l)
            qst(u)
        a(f"v_mov_b32 v0, v{vLane}")
        self.stamp(3)
        self.finish1([sF1, sF2], strict=True)

    def setup2(self):
        a = self.a
        t = T0
        if MAP2 == "x2":
            a(f"s_bfe_u32 s{t+2}, s{sWG}, 0x20001\ns_bfe_u32 s{t+3}, s{sWG}, 0x30003\ns_lshl3_add_u32 s{sR64}, s{t+2}, s{t+3}")
            a(f"s_and_b32 s{t+2}, s{sWG}, 1\ns_lshr_b32 s{t+3}, s{sWG}, 6\ns_lshl2_add_u32 s{sC}, s{t+2}, s{t+3}")
        else:
            a(f"s_and_b32 s{t+2}, s{sWG}, 7\ns_bfe_u32 s{t+3}, s{sWG}, 0x20003\ns_lshl2_add_u32 s{sR64}, s{t+2}, s{t+3}\ns_lshr_b32 s{sC}, s{sWG}, 5")
        if FAKE == 1: a(f"s_and_b32 s{sR64}, s{sWG}, 7\ns_lshl_b32 s{sR64}, s{sR64}, 2\ns_mov_b32 s{sC}, 0")
        if FAKE == 2: a(f"s_mov_b32 s{sC}, 0")
        if FAKE == 3: a(f"s_and_b32 s{sR64}, s{sWG}, 7\ns_lshl_b32 s{sR64}, s{sR64}, 2")
        a(f"v_lshlrev_b32 v{vL16}, 4, v0\nv_add_u32 v{vL16b}, 4096, v{vL16}")
        if ROT2 == "none":
            a(f"s_mov_b32 s{t}, 0")
        elif ROT2 == "xor":
            a(f"s_lshr_b32 s{t}, s{sWG}, 3\ns_lshr_b32 s{t+1}, s{sWG}, 6\ns_xor_b32 s{t}, s{t}, s{t+1}\ns_and_b32 s{t}, s{t}, 1")
        elif ROT2 == "two":
            a(f"s_lshr_b32 s{t}, s{sWG}, 3\ns_lshr_b32 s{t+1}, s{sWG}, {6 if MAP2 == 'x2' else 5}\ns_xor_b32 s{t}, s{t}, s{t+1}\ns_and_b32 s{t}, s{t}, 1\ns_mul_i32 s{t}, s{t}, 3")
        elif MAP2 == "x2":
            a(f"s_and_b32 s{t}, s{sC}, 3\ns_mul_i32 s{t}, s{t}, 3\ns_lshr_b32 s{t}, s{t}, 1")
        else:
            a(f"s_mul_i32 s{t}, s{sC}, 3\ns_lshr_b32 s{t}, s{t}, 2")
        a(f"s_mul_i32 s{t+1}, s{sWAVE}, 6")
        a(f"s_mul_i32 s{t+2}, s{sC}, {48*5120}\ns_add_u32 s{t+2}, s{t+2}, {WS_W2R}")
        a(f"s_mul_i32 s{t+3}, s{sR64}, {48*4096}\ns_add_u32 s{t+3}, s{t+3}, {WS_ACT}")
        for i in range(6):
            a(f"s_add_u32 s{t+4}, s{t+1}, s{t}\ns_mul_i32 s{sB0+i}, s{t+4}, 5120\ns_add_u32 s{sB0+i}, s{sB0+i}, s{t+2}")
            a(f"s_lshl_b32 s{sA0+i}, s{t+4}, 12\ns_add_u32 s{sA0+i}, s{sA0+i}, s{t+3}")
            if i < 5 and ROT2 == "xor": a(f"s_xor_b32 s{t}, s{t}, {i ^ (i + 1)}")
            elif i < 5: a(f"s_add_u32 s{t}, s{t}, 1\ns_cmp_eq_u32 s{t}, 6\ns_cselect_b32 s{t}, 0, s{t}")
        a(f"s_lshl3_add_u32 s{sFa}, s{sR64}, s{sWAVE}\ns_lshl_b32 s{sFa}, s{sFa}, 7\ns_lshl_b32 s{sFq}, s{sR64}, 7\ns_add_u32 s{sFq}, s{sFq}, {CNT_PQ}")
        a(f"s_mul_i32 s{sPQb}, s{sR64}, 40\ns_mul_i32 s{t}, s{sWAVE}, 5\ns_add_u32 s{sPQb}, s{sPQb}, s{t}\ns_lshl_b32 s{sPQb}, s{sPQb}, 11\ns_add_u32 s{sPQb}, s{sPQb}, {WS_PQ}")
        a(f"s_lshl3_add_u32 s{sMb}, s{sC}, s{sWAVE}\ns_mul_i32 s{sMb}, s{sMb}, 12800\ns_add_u32 s{sMb}, s{sMb}, {WS_WOR}")
        a(f"s_mul_i32 s{sKv}, s{sWAVE}, 7168\ns_add_u32 s{sKv}, s{sKv}, {WS_KVP}\ns_lshl_b32 s{sFk}, s{sWAVE}, 9\ns_add_u32 s{sFk}, s{sFk}, {CNT_KV}")

    def preload_b(self, n0, n1, th=0):
        for n in range(n0, n1):
            if th and n < NTH: self.a(f"s_waitcnt vmcnt({th - 1})")
            i, jn = divmod(n, 5)
            d = BS + 20*i + 4*jn
            self.a(f"buffer_load_dwordx4 v[{d}:{d+3}], v{vL16 if jn < 4 else vL16b}, {WSR}, s{sB0+i} offen offset:{1024*jn if jn < 4 else 0} sc1")

    def stage_b(self):
        a = self.a
        t = T0
        a(f"s_mul_i32 s{t}, s{sT}, 20480\ns_add_u32 s{t}, s{t}, {BL}")
        for i in range(2, NB):
            a(f"s_sub_u32 s{t+1}, s{sB0+i}, 122880")
            for jn in range(5):
                if jn in (0, 4):
                    a(f"s_add_u32 m0, s{t}, {5120*(i-2) + 1024*jn}")
                    a(f"s_add_u32 s{t+1}, s{t+1}, 4096" if jn else "s_nop 0")
                if TH and NB*5 + 5*(i - 2) + jn < NTH: a(f"s_waitcnt vmcnt({TH - 1})")
                a(f"buffer_load_dwordx4 v{vL16}, {WSR}, s{t+1} offen offset:{1024*(jn % 4)} sc1 lds")
        a("s_waitcnt vmcnt(0)")

    def gemm2(self):
        a = self.a
        t = T0
        seq = []
        LN = 255
        def ldl(dst, n, v, so, off, tag):
            seq.append(tag)
            return [f"buffer_load_dword{ {1: '', 2: 'x2', 4: 'x4'}[n] } {vr(dst, n)}, v{v}, {WSR}, s{so} offen offset:{off} sc1"]
        def emit(L):
            for l in L: a(l)
        def wait(tag):
            last = max(n for n, x in enumerate(seq) if x == tag)
            a(f"s_waitcnt vmcnt({len(seq) - 1 - last})")
        def act(i):
            return sum((ldl(AB + 16*(i % 3) + 4*st, 4, vL16, sA0 + i, 1024*st, f"act{i}") for st in range(4)), [])
        def check(soff, target, sleep=None):
            ok = a.newlabel("L_ok")
            a(f"v_cmp_le_u32 vcc, {target}, v{vP+1}\ns_nop 1\ns_cmp_eq_u64 vcc, -1\ns_cbranch_scc1 {ok}")
            self.poll(soff, target, vP, vP + 1, sleep=sleep)
            a.label(ok)
        def dma(so, n, lds, tag):
            r = []
            for k in range(n):
                pre = ""
                if k % 4 == 0:
                    pre = f"s_add_u32 m0, s{sLB}, {lds + 1024*k}\n" + (f"s_add_u32 s{so}, s{so}, 4096\n" if k else "s_nop 0\n")
                r.append(pre + f"buffer_load_dwordx4 v{vL16}, {WSR}, s{so} offen offset:{1024*(k % 4)} sc1 lds"); seq.append(tag)
            return r
        def pq(base, sp):
            return sum((ldl(base + 20*sp + 4*tt, 4, vL16, (sPQb, t, t + 1)[tt >> 1], 2048*(tt & 1) + 1024*sp, f"pq{sp}") for tt in range(5)), [])
        def gld(va):
            return sum((ldl(vG + st, 1, va, t + 3, 64*st, "g") for st in range(4)), [])
        def lateb(i=5):
            if i < NB: return []
            r = sum((ldl(BS + 20*i + 4*jn, 4, vL16, sB0 + i, 1024*jn, f"act{i}") for jn in range(4)), [])
            return r + [f"s_add_u32 s{sB0+i}, s{sB0+i}, 4096"] + ldl(BS + 20*i + 16, 4, vL16, sB0 + i, 0, f"act{i}")
        chunks = [(0, 0), (0, 1), (1, 0), (1, 1), (1, 2), (2, 1), (2, 2), (2, 3), (3, 2), (3, 3), (4, 3), (3, 4), (4, 4)] + [("z", tt) for tt in range(5)]
        slot = dict(zip(chunks, [0, 1, 2, 3, 4, 7, 8, 9, 10, 11, 13, 14, 15, 16, 17, 18, 19, 20]))
        X, K0 = 24, 0
        ad = [f"v_and_b32 v{X}, 15, v{LN}", f"v_lshrrev_b32 v{X+1}, 4, v{LN}", f"s_add_u32 s{t+2}, s{sLB}, 13312", f"v_mul_u32_u24 v{X+3}, 336, v{X+1}", f"v_add_u32 v{X+3}, s{t+2}, v{X+3}",
              f"v_add_u32 v{X+18}, s{sLB}, v{vL16}", f"s_add_u32 s{t+2}, s{t+2}, 7056", f"v_mov_b32 v{X+13}, s{t+2}"] + [f"v_subrev_u32 v{X+13+k}, {1344*k}, v{X+13}" for k in range(1, 5)]
        for te in (0, 1, 2, 3, 4, "z"):
            if te == "z":
                ad += [f"v_and_b32 v{X+4}, 3, v{LN}", f"v_mul_u32_u24 v{X+5}, 112, v{X+4}", f"v_add_u32 v{X+6}, 320, v{X+3}", f"v_add_u32 v{X+5}, v{X+5}, v{X+6}"]
            else:
                ad += [f"v_add_u32 v{X+6}, {16*te}, v{X}", f"v_mul_u32_u24 v{X+4}, 3277, v{X+6}", f"v_lshrrev_b32 v{X+4}, 16, v{X+4}",
                       f"v_lshl_add_u32 v{X+6}, v{X+6}, 4, v{X+3}", f"v_mad_i32_i24 v{X+5}, v{X+4}, s{sN208}, v{X+6}"]
            ad += [f"v_mad_i32_i24 v{X+4}, v{X+4}, -5, v{X+1}"]
            mine = [(j, c) for j, c in enumerate(chunks) if c[0] == te]
            ad += [f"v_add_u32 v{X+8+n}, {4*c[1]}, v{X+4}" for n, (j, c) in enumerate(mine)]
            ad += [f"v_cmp_gt_u32 s[{t+4+2*n}:{t+5+2*n}], 5, v{X+8+n}" for n, (j, c) in enumerate(mine)]
            ad += ["s_nop 0"]
            ad += [f"v_cndmask_b32 v{K0+j}, v{X+13+c[1]}, v{X+5}, s[{t+4+2*n}:{t+5+2*n}]" for n, (j, c) in enumerate(mine)]
        mq = [t + 4, t + 6, t + 8]
        consts = [f"s_mov_b32 s{cE}, 0x358637bd", f"s_mov_b32 s{mq[0]}, 0xffff", f"s_mov_b32 s{mq[0]+1}, 0", f"s_mov_b32 s{mq[1]}, -1", f"s_mov_b32 s{mq[1]+1}, 0",
                  f"s_mov_b32 s{mq[2]}, -1", f"s_mov_b32 s{mq[2]+1}, 0xffff"]
        swaps = lambda R: [f"v_swap_b32 v{R+8*p+2+k}, v{R+8*p+4+k}" for p in range(2) for k in range(2)]
        K32 = lambda d, A, B, c: f"v_mfma_f32_16x16x32_bf16 v[{d}:{d+3}], v[{A}:{A+3}], v[{B}:{B+3}], {c}"
        K16 = lambda d, A, B: f"v_mfma_f32_16x16x16_bf16 v[{d}:{d+3}], v[{A}:{A+1}], v[{B}:{B+1}], v[{d}:{d+3}]"
        acc = lambda d: f"v[{d}:{d+3}]"
        def fqf(base):
            def fq(st, tt):
                R = base + 20*(st >> 1)
                return R + 8*(tt >> 1) + 4*(st & 1) + 2*(tt & 1) if tt < 4 else R + 16 + 2*(st & 1)
            return fq
        def gather(KAr, raw, KP, PQb, first):
            for j, c in enumerate(chunks):
                a(f"ds_read_b128 v[{raw(j)}:{raw(j)+3}], v{KAr+j} offset:{1344*c[1]}")
            emit(swaps(PQb) + swaps(PQb + 20))
            for j, c in enumerate(chunks):
                if j in (0, first): a(f"s_waitcnt lgkmcnt({18 - first if j == 0 else 0})")
                d, r = KP + 2*slot[c], raw(j)
                a(f"v_cvt_pk_bf16_f32 v{d}, v{r}, v{r+1}\nv_cvt_pk_bf16_f32 v{d+1}, v{r+2}, v{r+3}")
            for z in (5, 6, 12): a(f"v_mov_b32 v{KP+2*z}, 0\nv_mov_b32 v{KP+2*z+1}, 0")
        def scales(st, DN, SC):
            r = ([] if LATEORD else [f"v_add_f32 v{DN+k}, s{cE}, v{DN+k}" for k in range(4)]) + [f"v_rcp_f32 v{DN+k}, v{DN+k}" for k in range(4)]
            r += [f"v_mul_f32 v{DN+k}, v{vG+st}, v{DN+k}" for k in range(4)]
            return r + [f"v_cndmask_b32 v{SC[k]}, v{DN+k+1}, v{DN+k}, s[{mq[k]}:{mq[k]+1}]" for k in range(3)]
        def vtile(st, tt, o, DN, SC, fq):
            sc = (DN, SC[0], SC[1], SC[2], DN + 3)[tt]
            return [f"v_mul_f32 v{o+k}, v{sc}, v{o+k}" for k in range(4)] + [f"v_cvt_pk_bf16_f32 v{fq(st,tt)}, v{o}, v{o+1}", f"v_cvt_pk_bf16_f32 v{fq(st,tt)+1}, v{o+2}, v{o+3}"]
        def mlp(i, zero, sts=None):
            order = [(jn, st) for jn in range(5) for st in range(4)] if sts is None else [(jn, st) for st in sts for jn in range(5)]
            return [K32(20*st + 4*jn, BS + 20*i + 4*jn, AB + 16*(i % 3) + 4*st, "0" if zero else acc(20*st + 4*jn)) for jn, st in order]
        TA, RA, vRW = 224, 170, vP
        rw = [f"v_and_b32 v{TA}, 15, v{LN}", f"v_mul_u32_u24 v{TA}, 160, v{TA}", f"v_bfe_u32 v{TA+1}, v{LN}, 5, 1", f"v_bfe_u32 v{vRW}, v{LN}, 2, 1", f"v_xor_b32 v{TA+1}, v{TA+1}, v{vRW}",
              f"v_lshl_add_u32 v{TA}, v{TA+1}, 4, v{TA}", f"v_bfe_u32 v{TA+1}, v{LN}, 4, 1", f"v_mul_u32_u24 v{TA+1}, 10240, v{TA+1}", f"v_add3_u32 v{vRW}, v{TA}, v{TA+1}, s{sLB}"]
        wrl = lambda st: [f"ds_write_b128 v{vRW}, v[{20*st+4*jn}:{20*st+4*jn+3}] offset:{2560*st + 32*jn}" for jn in range(5)]
        rd = [f"s_mul_i32 s{t}, s{sWAVE}, 80", f"v_add_u32 v{RA}, s{t}, v{LN}", f"v_add_u32 v{RA+1}, 64, v{RA}",
              f"s_lshl_b32 s{t+2}, s{sR64}, 8", f"s_add_u32 s{t+2}, s{t+2}, {WS_G + 8192}"]
        for k in range(2):
            rd += [f"v_mul_u32_u24 v{RA+2}, 6554, v{RA+k}", f"v_lshrrev_b32 v{RA+2}, 16, v{RA+2}", f"v_mad_i32_i24 v{RA+3}, v{RA+2}, -10, v{RA+k}", f"v_lshlrev_b32 v{TA+2+k}, 2, v{RA+2}",
                   f"buffer_load_dword v{TA+2+k}, v{TA+2+k}, {WSR}, s{t+2} offen sc1",
                   f"v_bfe_u32 v{RA+6}, v{RA+2}, 2, 1", f"v_xor_b32 v{RA+k}, v{RA+k}, v{RA+6}",
                   f"v_mul_u32_u24 v{RA+2}, 1280, v{RA+2}", f"v_lshl_add_u32 v{RA+4+k}, v{RA+3}, 4, v{RA+2}", f"v_lshlrev_b32 v{RA+k}, 4, v{RA+k}"]
        rd += [f"v_add_u32 v{RA+6}, 61440, v{RA}", f"v_add_u32 v{RA+7}, 61440, v{RA+1}", f"v_add_u32 v{RA+8}, 122880, v{RA}", f"v_add_u32 v{RA+9}, 122880, v{RA+1}"]
        rd += [f"s_mov_b32 s{SRD_M}, s{pOUT}", f"s_mov_b32 s{SRD_M+1}, s{pOUT+1}", f"s_mov_b32 s{SRD_M+2}, {2048*640*2}", f"s_mov_b32 s{SRD_M+3}, 0x20000",
               f"s_mul_i32 s{t}, s{sR64}, 81920", f"s_mul_i32 s{t+1}, s{sC}, 160", f"s_add_u32 s{t}, s{t}, s{t+1}"]
        def flagvec(vt, with_act):
            a(f"v_lshlrev_b32 v{vP}, 2, v{LN}\nv_add_u32 v{vP}, s{sFk}, v{vP}\nv_mov_b32 v{vt}, 1\nv_cmp_le_u32 vcc, 4, v{LN}\nv_mov_b32 v{vt+1}, s{sFq}\ns_add_u32 s{t+2}, s{sFa}, 8")
            a(f"v_cndmask_b32 v{vP}, v{vP}, v{vt+1}, vcc")
            if with_act:
                a(f"v_cmp_lt_u32 vcc, 4, v{LN}\nv_mov_b32 v{vt+1}, s{t+2}\ns_nop 0\nv_cndmask_b32 v{vP}, v{vP}, v{vt+1}, vcc\nv_cndmask_b32 v{vt}, v{vt}, 2, vcc")

        a(f"s_setprio 0\nv_lshrrev_b32 v{LN}, 4, v{vL16}")
        a(f"s_xor_b32 s{sLB}, s{sWAVE}, 4\ns_mul_i32 s{sLB}, s{sLB}, 20480\ns_mov_b32 s{sN208}, -208")
        a(f"s_lshl_b32 s{t+3}, s{sR64}, 8\ns_add_u32 s{t+3}, s{t+3}, {WS_G}\ns_add_u32 s{t}, s{sPQb}, 4096\ns_add_u32 s{t+1}, s{sPQb}, 8192")
        if LFLAG: a(f"v_and_b32 v{vP}, 1, v{LN}\nv_lshlrev_b32 v{vP}, 2, v{vP}")
        else: a(f"v_mov_b32 v{vP}, 0")
        if ADPRE: emit(ad)
        if not NOE1: a("s_barrier")
        self.stamp(4)
        apoll = f"v_mov_b32 v{vP+1}, 0\ns_mov_b64 exec, 1\nbuffer_atomic_add v{vP+1}, v{vP}, {WSR}, s{sFa} offen sc0 sc1\ns_mov_b64 exec, -1"
        if ATP: a(apoll)
        elif WOPOS != "pre": a(f"buffer_load_dword v{vP+1}, v{vP}, {WSR}, s{sFa} offen sc1")
        self.pickup()
        if WOPOS == "pre":
            a("s_waitcnt lgkmcnt(0)")
            emit(dma(sMb, 13, 0, "wo"))
        if not ADPRE: emit(ad)
        a("s_waitcnt lgkmcnt(0)")
        for k in range(5): a(f"ds_write_b128 v{X+18}, v[{K0+4*k}:{K0+4*k+3}] offset:{13312 + 1024*k}")
        if ATP:
            lp, dn = a.newlabel("L_ap"), a.newlabel("L_apd")
            a(f"s_mov_b32 s{t+15}, 0")
            a.label(lp)
            a(f"s_waitcnt vmcnt(0)\nv_readfirstlane_b32 s{t+14}, v{vP+1}\ns_add_u32 s{t+15}, s{t+15}, 1\ns_cmp_ge_u32 s{t+14}, 2\ns_cbranch_scc1 {dn}")
            a(f"s_cmp_ge_u32 s{t+15}, {SPIN}\ns_cbranch_scc1 {dn}\ns_sleep {ATP}\n{apoll}\ns_branch {lp}")
            a.label(dn)
        elif WOPOS == "pre": self.poll(f"s{sFa}", 2, vP, vP + 1)
        else:
            a("s_waitcnt vmcnt(0)")
            if LFLAG == 1:
                sk = a.newlabel("L_sig")
                a(f"s_cmp_ge_u32 s{sWAVE}, 4\ns_cbranch_scc1 {sk}")
                self.stamp(5)
                self.signal(sF1, 46); self.signal(32, 46)
                a.label(sk)
            check(f"s{sFa}", 2)
        self.stamp(6)
        PR = {"a": {-1: 3, 2: 2, 5: 1, 6: 0}, "b": {-1: 3, 1: 2, 3: 1, 6: 0}, "c": {-1: 1, 5: 0}, "d": {-1: 2, 5: 1, 7: 0}, "e": {-1: 3, 3: 2, 6: 1, 8: 0}}.get(PRIO, {})
        prio = lambda k: a(f"s_setprio {PR[k]}") if k in PR else None
        prio(-1)
        emit(act(0))
        a(f"v_lshlrev_b32 v{vP}, 7, v{LN}\nv_add_u32 v{vP}, s{sFk}, v{vP}\nv_cmp_le_u32 vcc, 4, v{LN}\nv_mov_b32 v{vG+1}, s{sFq}\nv_mov_b32 v{vG}, 16")
        a(f"v_cndmask_b32 v{vP}, v{vP}, v{vG+1}, vcc\nv_cndmask_b32 v{vG}, v{vG}, 25, vcc")
        if LFLAG: a(f"v_cmp_lt_u32 vcc, 4, v{LN}\ns_add_u32 s{t+2}, s{sFa}, 8\nv_mov_b32 v{vG+1}, s{t+2}\nv_cndmask_b32 v{vP}, v{vP}, v{vG+1}, vcc\nv_cndmask_b32 v{vG}, v{vG}, 2, vcc")
        fv = lambda: (a(f"buffer_load_dword v{vP+1}, v{vP}, {WSR}, 0 offen sc1"), seq.append("fv"))
        if FVAT < 0: fv()
        emit(act(1) + act(2))
        fill = (lambda: dma(sMb, 13, 0, "wo")) if WOPOS == "s0" else (lambda: lateb(3))
        for i in range(5):
            prio(i)
            wait(f"act{i}")
            if TAILDBG == 2 and i < 4: self.stamp((2, 3, 5, 7)[i], "tail")
            emit(interleave(mlp(i, i == 0), fill() if fill else []))
            fill = None
            if i == 0 and WOPOS == "s1": fill = lambda: dma(sMb, 13, 0, "wo")
            if i == 3 and WOPOS == "s4": fill = lambda: dma(sMb, 13, 0, "wo")
            if i == FVAT: fv()
            if i < 2 and not (LFLAG and i == 1): emit(act(i + 3))
            if i == PQAT:
                wait("fv")
                check("0", f"v{vG}", 8)
                if TAILDBG == 2: self.stamp(4, "tail")
                if LFLAG: emit(act(4))
                a(f"v_and_b32 v{vP+1}, 15, v{LN}\nv_lshlrev_b32 v{vP+1}, 2, v{vP+1}")
                f1 = lambda: lateb(4) + pq(PQR, 0) + pq(PQR, 1) + gld(vP + 1)
                if FILLI and i < 2: fill = f1
                else: emit(f1())
            if i == 2:
                a(f"v_add_u32 v{KA+19}, s{sLB}, v{vL16}")
                for k in range(5): a(f"ds_read_b128 v[{KA+4*k}:{KA+4*k+3}], v{KA+19} offset:{13312 + 1024*k}")
                a("s_waitcnt lgkmcnt(0)")
                f2 = lambda: dma(sKv, 7, 13312, "kv") + (act(5) + lateb() if WOPOS != "x" else []) + (dma(sMb, 13, 0, "wo") if WOPOS == "s3" else [])
                if FILLI: fill = f2
                else: emit(f2())
        self.stamp(7)
        prio(5)
        emit(consts)
        KP = 120
        wait("kv")
        self.stamp(8)
        gather(KA, lambda j: 200 + 4*j if j < 8 else 140 + 4*(j - 8), KP, PQR, 8)
        Oset = {1: ([200, 204, 208, 212, 216], 220), 0: ([162, 166, 170, 174, 224], 228)}
        SC = [178, 179, vP + 1]
        fq = fqf(PQR)
        S = lambda k: KP + 2*k
        def Xb(st):
            O, DN = Oset[st & 1]
            p0, p1, ps = fq(st, 0), fq(st, 2), fq(st, 4)
            return [K32(DN, S(16), p0, acc(196) if LATEORD else "0"), K32(O[3], S(10), p1, "0"), K32(O[4], S(12), p1, "0"), K32(DN, S(18), p1, acc(DN)),
                    K32(O[0], S(0), p0, "0"), K32(O[1], S(2), p0, "0"), K32(O[2], S(6), p0, "0"), K32(O[1], S(4), p1, acc(O[1])), K32(O[2], S(8), p1, acc(O[2])),
                    "s_nop 0", K16(DN, S(20), ps), K16(O[3], S(14), ps), K16(O[4], S(15), ps)]
        def Vb(st):
            O, DN = Oset[st & 1]
            return scales(st, DN, SC) + sum((vtile(st, tt, O[tt], DN, SC, fq) for tt in range(5)), [])
        def Yb(st):
            r = []
            for p in range(2):
                r += [K32(20*st + 4*jn, MR + 4*(2*jn + p), fq(st, 2*p), acc(20*st + 4*jn)) for jn in range(5)]
            return r + ["s_nop 1"] + [K16(20*st + 4*jn, MR + 40 + 2*jn, fq(st, 4)) for jn in range(5)]
        a("s_nop 1")
        late = (act(5) + lateb() + dma(sMb, 13, 0, "wo")) if WOPOS == "x" else []
        if LATEORD:
            assert NB == 5 and WOPOS == "x"
            lastb = late[8:10]; late = late[:8] + late[10:]
            i5 = seq.index("act5") + 8; seq.pop(i5); seq.append("act5")
            for k in range(4): a(f"v_mov_b32 v{196+k}, 0x358637bd")
            a("s_nop 1")
        cuts = [0] + [len(late)*c//100 for c in XSPLIT] + [len(late)]
        emit(interleave(Xb(0), late[cuts[0]:cuts[1]]))
        for st in range(1, 4):
            x = Xb(st)
            emit(interleave(x[:6], late[cuts[st]:cuts[st+1]]) + (lastb if LATEORD and st == 3 else []) + interleave(x[6:], Vb(st - 1)))
        a(f"v_add_u32 v{TA}, s{sLB}, v{vL16}\nv_lshlrev_b32 v{TA+1}, 3, v{LN}\nv_add_u32 v{TA+1}, s{sLB}, v{TA+1}")
        wor = [f"ds_read_b128 v[{MR+4*f}:{MR+4*f+3}], v{TA} offset:{1024*f}" for f in range(10)]
        wor += [f"ds_read_b64 v[{MR+40+2*jn}:{MR+41+2*jn}], v{TA+1} offset:{10240 + 512*jn}" for jn in range(5)]
        prio(6)
        if WOPOS in ("s3", "s4", "x"):
            wait("act5")
            emit(interleave(mlp(5, False), Vb(3)))
            a("s_waitcnt vmcnt(0)")
            emit(wor + rw)
        else:
            emit(wor)
            wait("act5")
            emit(interleave(mlp(5, False), Vb(3) + rw))
        a("s_waitcnt lgkmcnt(0)")
        if RED == 2:
            def aset(B, T, sbase):
                return [f"v_add_u32 v{B}, {sbase}, v{LN}", f"v_mul_u32_u24 v{T}, 6554, v{B}", f"v_lshrrev_b32 v{T}, 16, v{T}", f"v_mad_i32_i24 v{T+1}, v{T}, -10, v{B}",
                        f"v_lshlrev_b32 v{B+4}, 2, v{T}", f"buffer_load_dword v{B+4}, v{B+4}, {WSR}, s{t+2} offen sc1",
                        f"v_bfe_u32 v{B+1}, v{T}, 2, 1", f"v_xor_b32 v{B}, v{B}, v{B+1}", f"v_mul_u32_u24 v{T}, 1280, v{T}", f"v_lshl_add_u32 v{B+3}, v{T+1}, 4, v{T}",
                        f"v_lshlrev_b32 v{B}, 4, v{B}", f"v_add_u32 v{B+1}, 61440, v{B}", f"v_add_u32 v{B+2}, 122880, v{B}"]
            def rsum(sets):
                items = [(B, m, D, w) for B, m, D in sets for w in range(8)]
                def rdp(n):
                    B, m, D, w = items[n]
                    r = [f"ds_read_b128 v[{D+8*w+4*par}:{D+8*w+4*par+3}], v{B + w // 3} offset:{20480*(w % 3) + 10240*par}" for par in range(2)]
                    return r if m is None else [m] + r + ["s_mov_b64 exec, -1"]
                AH = 6
                for n in range(AH): emit(rdp(n))
                for n, (B, m, D, w) in enumerate(items):
                    if n + AH < len(items): emit(rdp(n + AH))
                    if w == 0: continue
                    a(f"s_waitcnt lgkmcnt({2*min(AH, len(items) - 1 - n)})")
                    for j in range(4): a(f"v_pk_add_f32 v[{D+2*j}:{D+2*j+1}], v[{D+2*j}:{D+2*j+1}], v[{D+8*w+2*j}:{D+8*w+2*j+1}]")
                    if w == 7:
                        if n == 7 and len(sets) == 2: a("s_waitcnt vmcnt(0)")
                        for j in range(8): a(f"v_mul_f32 v{D+j}, v{B+4}, v{D+j}")
                        for j in range(4): a(f"v_cvt_pk_bf16_f32 v{D+j}, v{D+2*j}, v{D+2*j+1}")
                        if m: a(m)
                        a(f"buffer_store_dwordx4 v[{D}:{D+3}], v{B+3}, s[{SRD_M}:{SRD_M+3}], s{t} offen {OUTFL}")
                        if m: a("s_mov_b64 exec, -1")
            r2 = [f"s_mul_i32 s{t+3}, s{sWAVE}, 40", f"s_add_u32 s{t+3}, s{t+3}, 320"] + rd[3:5] + aset(170, 175, f"s{t+3}") + rd[-7:]
            emit(interleave(Yb(0), r2))
            prio(7)
            emit(interleave(Yb(1), wrl(0), 6))
            prio(8)
            emit(interleave(Yb(2), wrl(1), 6))
            lo, lj = a.newlabel("L_ro"), a.newlabel("L_rj")
            a(f"s_cmp_lt_u32 s{sWAVE}, 4\ns_cbranch_scc1 {lo}")
            y3 = Yb(3)
            emit(y3[:4]); a("s_waitcnt lgkmcnt(0)\ns_barrier"); emit(interleave(y3[4:], wrl(2), 2))
            a("s_nop 4")
            emit(wrl(3))
            a(f"s_waitcnt vmcnt(0)\ns_branch {lj}")
            a.label(lo)
            emit(interleave(Yb(3), [f"s_mul_i32 s{t+3}, s{sWAVE}, 80"] + aset(200, 210, f"s{t+3}")[:5] + wrl(2) + aset(200, 210, "0")[5:]))
            a(f"s_add_u32 s{t+3}, s{t+3}, 64")
            emit(aset(205, 210, f"s{t+3}")[:8] + wrl(3) + aset(205, 210, "0")[8:])
            a("s_waitcnt lgkmcnt(0)\ns_barrier")
            rsum([(200, None, 0), (205, "s_mov_b64 exec, 0xffff", 64)])
            a.label(lj)
            a("s_waitcnt lgkmcnt(0)\ns_barrier")
            self.stamp(9)
            rsum([(170, "s_mov_b32 exec_hi, 0xff", 128 - 48)])
            return
        emit(interleave(Yb(0), rd[:25]))
        prio(7)
        emit(interleave(Yb(1), rd[25:] + wrl(0), 2))
        prio(8)
        emit(interleave(Yb(2), wrl(1), 6))
        emit(interleave(Yb(3), wrl(2), 6))
        a("s_nop 4")
        emit(wrl(3))
        a("s_waitcnt lgkmcnt(0)\ns_barrier")
        self.stamp(9)
        if RED == 0:
            for k in range(2):
                if k == 1: a("s_mov_b64 exec, 0xffff")
                R = 64*k
                for w in range(8):
                    for par in range(2):
                        base = [RA + k, RA + 6 + k, RA + 8 + k][w // 3]
                        a(f"ds_read_b128 v[{R+8*w+4*par}:{R+8*w+4*par+3}], v{base} offset:{20480*(w % 3) + 10240*par}")
            a("s_mov_b64 exec, -1")
            for k in range(2):
                R = 64*k
                a(f"s_waitcnt lgkmcnt({15 if k == 0 else 0})")
                for pairs in (((0, 4), (1, 5), (2, 6), (3, 7)), ((0, 2), (1, 3)), ((0, 1),)):
                    for x, y in pairs:
                        for j in range(4):
                            a(f"v_pk_add_f32 v[{R+8*x+2*j}:{R+8*x+2*j+1}], v[{R+8*x+2*j}:{R+8*x+2*j+1}], v[{R+8*y+2*j}:{R+8*y+2*j+1}]")
                if k == 0: a("s_waitcnt vmcnt(0)")
                for j in range(8): a(f"v_mul_f32 v{R+j}, v{TA+2+k}, v{R+j}")
                for j in range(4): a(f"v_cvt_pk_bf16_f32 v{R+j}, v{R+2*j}, v{R+2*j+1}")
                if k == 1: a("s_mov_b64 exec, 0xffff")
                a(f"buffer_store_dwordx4 v[{R}:{R+3}], v{RA+4+k}, s[{SRD_M}:{SRD_M+3}], s{t} offen {OUTFL}")
            a("s_mov_b64 exec, -1")


        else:
            items = [(k, w) for k in range(2) for w in range(8)]
            def rdp(n):
                k, w = items[n]
                base = [RA + k, RA + 6 + k, RA + 8 + k][w // 3]
                r = [f"ds_read_b128 v[{8*n+4*par}:{8*n+4*par+3}], v{base} offset:{20480*(w % 3) + 10240*par}" for par in range(2)]
                return r if k == 0 else ["s_mov_b64 exec, 0xffff"] + r + ["s_mov_b64 exec, -1"]
            AH = 6
            for n in range(AH): emit(rdp(n))
            for n, (k, w) in enumerate(items):
                if n + AH < 16: emit(rdp(n + AH))
                if w == 0: continue
                a(f"s_waitcnt lgkmcnt({2*min(AH, 15 - n)})")
                R = 64*k
                for j in range(4):
                    a(f"v_pk_add_f32 v[{R+2*j}:{R+2*j+1}], v[{R+2*j}:{R+2*j+1}], v[{8*n+2*j}:{8*n+2*j+1}]")
                if w == 7:
                    if k == 0: a("s_waitcnt vmcnt(0)")
                    for j in range(8): a(f"v_mul_f32 v{R+j}, v{TA+2+k}, v{R+j}")
                    for j in range(4): a(f"v_cvt_pk_bf16_f32 v{R+j}, v{R+2*j}, v{R+2*j+1}")
                    if k == 1: a("s_mov_b64 exec, 0xffff")
                    a(f"buffer_store_dwordx4 v[{R}:{R+3}], v{RA+4+k}, s[{SRD_M}:{SRD_M+3}], s{t} offen {OUTFL}")
            a("s_mov_b64 exec, -1")


def descriptor(name):
    return f""".p2align 6
.amdhsa_kernel {name}
  .amdhsa_next_free_vgpr 256
  .amdhsa_next_free_sgpr 102
  .amdhsa_accum_offset 256
  .amdhsa_group_segment_fixed_size 0
  .amdhsa_kernarg_size 88
  .amdhsa_user_sgpr_count 2
  .amdhsa_user_sgpr_kernarg_segment_ptr 1
  .amdhsa_system_sgpr_workgroup_id_x 1
.end_amdhsa_kernel
"""

def build(stamps):
    assert not LFLAG or (ROT2 == "none" and PQAT == 1 and not EARLYQ and WOPOS != "pre")
    g = Gen(stamps=stamps)
    a = g.a
    K = NAME + "_kernel"
    hdr = open(os.path.join(os.path.dirname(os.path.abspath(__file__)), "header.txt")).read()
    for l in hdr.strip().split("\n"): a.lines.append(l)
    a(f"; @launch grid=(256,1,1) block=(512,1,1) lds={LDS_TOTAL}")
    a('.amdgcn_target "amdgcn-amd-amdhsa--gfx950"\n.text')
    a(f".globl {K}\n.p2align 8\n.type {K},@function")
    a.label(K)
    g.common_prologue("L_end")
    a(f"s_cmp_lt_u32 s{sWAVE}, 4\ns_cbranch_scc1 L_comp")
    g.loader1()
    a(f"s_setprio {LPRIO}")
    if not NE16:
        g.setup2()
        g.srd(SRD_WS, pWS, WS_SIZE)
    g.preload_b(NE16, NL0)
    if K1LDS: a(f"v_mov_b32 v6, {K1C}\nv_mov_b32 v7, 0\nds_write_b32 v6, v7\ns_waitcnt lgkmcnt(0)")
    a("s_barrier")
    if SKEW: a(f"v_mov_b32 v6, {HINT}\nv_mov_b32 v8, 0\nv_mov_b32 v9, 0\nv_mov_b32 v10, 0\nv_mov_b32 v11, 0\nds_write_b128 v6, v[8:11]\ns_waitcnt lgkmcnt(0)")
    g.preload_b(NL0, NL1, TH)
    if not K1LDS: a(f"s_cmp_lg_u32 s{sTYPE}, 0\ns_cbranch_scc1 L_l2\ns_barrier")
    a.label("L_l2")
    if DIAG != 3: g.preload_b(NL1, 5*NB, TH)
    if BLDS and DIAG != 3: g.stage_b()
    g.stamp(3)
    a.label("L_g2")
    g.gemm2()
    g.dump_stamps()
    a.label("L_end")
    a("s_endpgm")
    a.label("L_comp")
    a(f"s_cmp_eq_u32 s{sTYPE}, 0\ns_cbranch_scc1 L_kv")
    g.compute_P(); a("s_branch L_g2")
    a.label("L_kv")
    g.compute_KV(); a("s_branch L_g2")
    a.label("L_code_end")
    errs = lint(a.lines)
    for e in errs: print("HAZARD:", e, file=sys.stderr)
    return a.text() + '.section .rodata,"a"\n' + descriptor(K)

if __name__ == "__main__":
    open(sys.argv[1], "w").write(build(sys.argv[2] if len(sys.argv) > 2 else False))
```

```python
import sys, os, re
sys.path.insert(0, os.path.dirname(os.path.abspath(__file__)))
from asmlib import *

NAME = "gated_mix__linear_attn_block__dense_activation_mish__prompt"
ENV = os.environ.get

CNT_ACT, CNT_PQ, CNT_KV = 0, 256*128, 288*128
DONE_KV, DONE_PQ = 320*128, 328*128
WS_G = 0x10000
WS_KVP = 0x100000
WS_WOR = 0x200000
WS_W2R = 0x300000
WS_PQ = 0x500000
WS_ACT = 0x800000
WS_SIZE = 0x1000000
WS_STAMP = 0x8000000
BIG = 0x20000000
DBGW = int(ENV("DBGW", "0"))
ROTMODE = ENV("ROT", "two")
ROT2 = ENV("ROT2", "none")
NPRE = int(ENV("NPRE", "10"))
SPIN = int(ENV("SPIN", str(0x100000)))
WOAT = 3
ADPRE = int(ENV("ADPRE", "1"))
KVAT = int(ENV("KVAT", "-1"))
GSYNC = int(ENV("GSYNC", "0"))
PF = int(ENV("PF", "0"))
RS = int(ENV("RS", "3"))
S1AT = int(ENV("S1AT", "8"))
S1SLEEP = int(ENV("S1SLEEP", "2"))
LOOPDBG = int(ENV("LOOPDBG", "0"))
CPF = int(ENV("CPF", "1"))
RD = int(ENV("RD", "-1"))
SKEW = int(ENV("SKEW", "0"))
HINT = 3*20480 + 12800
TAILDBG = int(ENV("TAILDBG", "0"))
OUTFL = ENV("OUTFL", "").replace("_", " ")
LFLAG = int(ENV("LFLAG", "0"))
FAKE = int(ENV("FAKE", "0"))
SPLIT = int(ENV("SPLIT", "1"))
YSLEEP = int(ENV("YSLEEP", "8"))
PQAT = int(ENV("PQAT", "1"))
FILLI = int(ENV("FILLI", "1"))
FIRST0 = int(ENV("FIRST0", "0"))
PRIO = ENV("PRIO", "c")
LOOK = ENV("LOOK", "xw")
GBR = int(ENV("GBR", "0"))
STPRIO = int(ENV("STPRIO", "1"))
NRE = int(ENV("NRE", "20"))
SPREAD = int(ENV("SPREAD", "0"))
NE16 = int(ENV("NE16", "0"))
NL1 = int(ENV("NL1", "16"))
K1LDS = int(ENV("K1LDS", "1"))
K1C = 40960 + 2032
FVAT = int(ENV("FVAT", "0"))
WOPOS = ENV("WOPOS", "x")
RED = int(ENV("RED", "1"))
DIAG = int(ENV("DIAG", "0"))
LPRIO = int(ENV("LPRIO", "0"))
EPRIO = int(ENV("EPRIO", "0"))
TH = int(ENV("TH", "4"))
EARLYQ = int(ENV("EARLYQ", "0"))
NB = int(ENV("NB", "5"))
NTH = int(ENV("NTH", "36"))
XSPLIT = [int(v) for v in ENV("XSPLIT", "30,55,80").split(",")]
LRP = int(ENV("LRP", "0"))
MBOX = 161792
STRICTP = int(ENV("STRICTP", "1"))
LATEORD = int(ENV("LATEORD", "0"))
B20AT = int(ENV("B20AT", "14"))
MAP1 = ENV("MAP1", "q")
ROTQ = int(ENV("ROTQ", "1"))
RG = int(ENV("RG", "5"))
RX = int(ENV("RX", "2"))
RTAB = [int(c) for c in ENV("RTAB", "05050505")]
XTAB = [int(c) for c in ENV("XTAB", "01012323")]
RCM = int(ENV("RCM", "1"))
NOE1 = int(ENV("NOE1", "0"))
ATP = int(ENV("ATP", "2"))
FAST0 = int(ENV("FAST0", "0"))
PICK = int(ENV("PICK", "0"))
SLEEP = int(ENV("SLEEP", "8"))
BLDS = int(ENV("BLDS", "1"))
NL0 = int(ENV("NL0", "13"))
MAP2 = ENV("MAP2", "x2")
TOUCH = int(ENV("TOUCH", "0"))
MSDBG = int(ENV("MSDBG", "0"))
MSPRIO = int(ENV("MSPRIO", "1"))
MSPRIO2 = int(ENV("MSPRIO2", "1"))

XR = 0
STG = 40960
WR = 49152
WSLOT = 14336
NS = 6
GATE = WR + NS * WSLOT
SCR = GATE + 2048
MS = WR
BL = WR + 32768
BLF = STG + 2040
LDS_TOTAL = 163840

sWG = 2
pX, pWQKV, pWO, pW1, pB1, pW2, pGATE, pOUT, pDBG, pWS = 4, 6, 8, 12, 14, 16, 18, 20, 22, 24
sWAVE, sRB, sHALF, sCBL, sGRP, sF1, sROT, sPIDX, sTYPE, sT = 26, 27, 28, 29, 30, 31, 32, 33, 34, 35
SRD_WS, SRD_X, SRD_W, SRD_M, SRD_D = 36, 40, 44, 52, 56
T0 = 60
sST = 76
cL2E, cC, cE = 96, 98, 100
sR64, sC = 27, 28
sB0, sA0 = 40, 46
sPQb, sMb, sKv, sFk = 0, 1, 3, 29
sFa, sFq = 10, 11
BS, AB = 80, 200
PQR, MR, KA, KD = 80, 120, 120, 176
sLB, sN208 = 30, 33
vG, vP, vL16, vL16b = 248, 252, 254, 255
WSR = f"s[{SRD_WS}:{SRD_WS+3}]"


class Gen:
    def __init__(self, stamps=False):
        self.a = Asm()
        self.stamps = stamps

    def stamp(self, k, loop=False):
        if loop == "tail":
            if not TAILDBG: return
        elif TAILDBG and 1 <= k <= 7 and not (TAILDBG == 2 and k == 6): return
        elif LOOPDBG and k >= 3 and not loop: return
        elif loop and not LOOPDBG: return
        if self.stamps and not (self.stamps == "dbg" and k == 9):
            if k < 2 and self.stamps != "dbg" and loop != "tail":
                self.a(f"s_memtime s[58:59]\ns_waitcnt lgkmcnt(0)\ns_mov_b32 s{sST+2*k}, s58")
            else:
                self.a(f"s_memtime s[{sST+2*k}:{sST+2*k+1}]")

    def srd(self, d, ptr, size, add=None):
        a = self.a
        if add is None:
            a(f"s_mov_b32 s{d}, s{ptr}\ns_mov_b32 s{d+1}, s{ptr+1}")
        else:
            a(f"s_add_u32 s{d}, s{ptr}, {add}\ns_addc_u32 s{d+1}, s{ptr+1}, 0")
        a(f"s_mov_b32 s{d+2}, {size}\ns_mov_b32 s{d+3}, 0x20000")

    def signal(self, soff, v, off=0):
        self.a(f"v_mov_b32 v{v}, 1\nv_mov_b32 v{v+1}, 0\ns_mov_b64 exec, 1\nbuffer_atomic_add v{v}, v{v+1}, {WSR}, s{soff} offen offset:{off} sc1\ns_mov_b64 exec, -1")

    def arrive(self, soff, v):
        self.a(f"v_mov_b32 v{v}, 1\nv_mov_b32 v{v+1}, 0\ns_mov_b64 exec, 1\nbuffer_atomic_add v{v}, v{v+1}, {WSR}, s{soff} offen sc0 sc1\ns_mov_b64 exec, -1")

    def raise_if_last(self, v, last, soff):
        a = self.a
        sk = a.newlabel("L_last")
        a(f"v_readfirstlane_b32 s{T0+14}, v{v}\nv_mov_b32 v{v}, 1\nv_mov_b32 v{v+1}, 0\ns_cmp_lg_u32 s{T0+14}, {last}\ns_cbranch_scc1 {sk}")
        a(f"s_mov_b64 exec, 1\nbuffer_store_dword v{v}, v{v+1}, {WSR}, s{soff} offen sc1\ns_mov_b64 exec, -1")
        a.label(sk)

    def poll(self, soff, target, va, vd, srd=SRD_WS, sleep=None):
        a = self.a
        t = T0 + 15
        loop, done = a.newlabel("L_poll"), a.newlabel("L_polld")
        a(f"s_mov_b32 s{t}, 0")
        a.label(loop)
        a(f"buffer_load_dword v{vd}, v{va}, s[{srd}:{srd+3}], {soff} offen sc1\ns_waitcnt vmcnt(0)")
        a(f"v_cmp_le_u32 vcc, {target}, v{vd}\ns_add_u32 s{t}, s{t}, 1\ns_nop 0")
        a(f"s_cmp_eq_u64 vcc, -1\ns_cbranch_scc1 {done}")
        a(f"s_sleep {SLEEP if sleep is None else sleep}\ns_cmp_lt_u32 s{t}, {SPIN}\ns_cbranch_scc1 {loop}")
        a.label(done)

    def dump_stamps(self):
        if not self.stamps:
            return
        a = self.a
        a("s_waitcnt vmcnt(0) lgkmcnt(0)")
        a(f"s_memrealtime s[{T0}:{T0+1}]\ns_memtime s[{T0+2}:{T0+3}]")
        if self.stamps == "dbg":
            self.srd(SRD_M, pDBG, 256)
            a("s_waitcnt lgkmcnt(0)\nv_mov_b32 v2, 0\ns_mov_b64 exec, 1")
            sk = a.newlabel("L_dbg")
            a(f"s_lshl_b32 s{T0+5}, s{sWG}, 3\ns_add_u32 s{T0+5}, s{T0+5}, s{sWAVE}\ns_cmp_lg_u32 s{T0+5}, {DBGW}\ns_cbranch_scc1 {sk}")
            for k in range(1, 10):
                a(f"s_sub_u32 s{T0+5}, s{sST+2*k}, s{sST}\nv_mov_b32 v{3+k}, s{T0+5}")
            a(f"s_sub_u32 s{T0+5}, s{T0+2}, s{sST}\nv_mov_b32 v13, s{T0+5}\ns_sub_u32 s{T0+5}, s{T0}, s94\nv_mov_b32 v14, s{T0+5}\nv_mov_b32 v15, s94")
            for k in range(3):
                a(f"buffer_store_dwordx4 v[{4+4*k}:{7+4*k}], v2, s[{SRD_M}:{SRD_M+3}], 0 offen offset:{16+16*k}")
            a.label(sk)
            a("s_waitcnt vmcnt(0)")
            return
        a(f"s_getreg_b32 s{T0+4}, hwreg(HW_REG_XCC_ID)")
        self.srd(SRD_M, pWS, 0x10000000)
        a("s_waitcnt lgkmcnt(0)")
        for k in range(10):
            a(f"v_mov_b32 v{k}, s{sST+2*k}")
        a(f"v_mov_b32 v10, s{T0}\nv_mov_b32 v11, s{T0+2}\nv_mov_b32 v12, s{T0+4}\nv_mov_b32 v13, s{sTYPE}\nv_mov_b32 v14, s77\nv_mov_b32 v15, s79")
        a(f"s_lshl_b32 s{T0+5}, s{sWG}, 3\ns_add_u32 s{T0+5}, s{T0+5}, s{sWAVE}\ns_lshl_b32 s{T0+5}, s{T0+5}, 6\ns_add_u32 s{T0+5}, s{T0+5}, {WS_STAMP}")
        a("v_mov_b32 v16, 0\ns_mov_b64 exec, 1")
        for k in range(4):
            a(f"buffer_store_dwordx4 v[{4*k}:{4*k+3}], v16, s[{SRD_M}:{SRD_M+3}], s{T0+5} offen offset:{16*k}")
        a("s_waitcnt vmcnt(0)")

    def common_prologue(self, endlabel):
        a = self.a
        t = T0
        a(f"s_cmp_ge_u32 s{sWG}, 256\ns_cbranch_scc1 {endlabel}")
        a("s_load_dwordx16 s[4:19], s[0:1], 0\ns_load_dwordx4 s[20:23], s[0:1], 64\ns_load_dwordx2 s[24:25], s[0:1], 80")
        if self.stamps:
            for k in range(10): a(f"s_mov_b32 s{sST+2*k}, 0")
            if self.stamps == "dbg": a("s_memrealtime s[94:95]")
            else: a("s_memrealtime s[56:57]\ns_memtime s[58:59]\ns_waitcnt lgkmcnt(0)\ns_mov_b32 s77, s56\ns_mov_b32 s79, s58")
        if CPF:
            sk = a.newlabel("L_cpf")
            a(f"s_getpc_b64 s[{t}:{t+1}]\nL_pc0:\ns_lshr_b32 s{t+2}, s{sWG}, 3\ns_lshl_b32 s{t+2}, s{t+2}, 11\nv_lshlrev_b32 v2, 4, v0\nv_add_u32 v2, s{t+2}, v2")
            a(f"v_cmp_gt_u32 vcc, 128, v0\nv_min_u32 v2, L_code_end-L_pc0-16, v2\ns_and_saveexec_b64 s[{t+4}:{t+5}], vcc\ns_cbranch_execz {sk}")
            a(f"global_load_dwordx4 v[248:251], v2, s[{t}:{t+1}]")
            a.label(sk)
            a(f"s_mov_b64 exec, s[{t+4}:{t+5}]")
        a("v_lshrrev_b32 v1, 6, v0\nv_and_b32 v0, 63, v0")
        a(f"v_readfirstlane_b32 s{sWAVE}, v1")
        if MAP1 == "h":
            a(f"s_bfe_u32 s{t+2}, s{sWG}, 0x20001\ns_bfe_u32 s{t+3}, s{sWG}, 0x20003")
            a(f"s_lshl2_add_u32 s{sRB}, s{t+2}, s{t+3}\ns_and_b32 s{sHALF}, s{sWG}, 1\ns_lshr_b32 s{sCBL}, s{sWG}, 5")
            a(f"s_and_b32 s{t}, s{sCBL}, 3\ns_lshl2_add_u32 s{sGRP}, s{sHALF}, s{t}\ns_lshr_b32 s{sTYPE}, s{sCBL}, 2")
        else:
            a(f"s_bfe_u32 s{t+2}, s{sWG}, 0x10002\ns_bfe_u32 s{t+3}, s{sWG}, 0x30003\ns_lshl3_add_u32 s{sRB}, s{t+2}, s{t+3}")
            a(f"s_bfe_u32 s{sHALF}, s{sWG}, 0x10001\ns_lshr_b32 s{sTYPE}, s{sWG}, 7\ns_bfe_u32 s{t}, s{sWG}, 0x10006\ns_and_b32 s{t+1}, s{sWG}, 1")
            a(f"s_lshl1_add_u32 s{t+4}, s{t+1}, s{t}\ns_lshl1_add_u32 s{t+5}, s{t}, s{t+1}\ns_cmp_eq_u32 s{sTYPE}, 0\ns_cselect_b32 s{t}, s{t+4}, s{t+5}")
            a(f"s_lshl2_add_u32 s{sCBL}, s{sTYPE}, s{t}\ns_lshl2_add_u32 s{sGRP}, s{sHALF}, s{t}")
            tab = sum(v << (4*n) for n, v in enumerate(RTAB))
            xtab = sum(v << (4*n) for n, v in enumerate(XTAB))
            a(f"s_lshr_b32 s{t+4}, s{sWG}, 6\ns_mul_i32 s{t+4}, s{t+4}, {RCM}\ns_add_u32 s{t+4}, s{t+4}, s{t+3}\ns_and_b32 s{t+4}, s{t+4}, 7\ns_lshl_b32 s{t+4}, s{t+4}, 2\ns_lshr_b32 s{t+4}, {tab:#x}, s{t+4}\ns_and_b32 s{t+4}, s{t+4}, 15")
            a(f"s_and_b32 s{t+5}, s{sWG}, 7\ns_lshl_b32 s{t+5}, s{t+5}, 2\ns_lshr_b32 s{t+5}, {xtab:#x}, s{t+5}\ns_and_b32 s{t+5}, s{t+5}, 15\ns_add_u32 s{sROT}, s{t+4}, s{t+5}")
            if max(RTAB) + max(XTAB) >= 10: a(f"s_sub_u32 s{t+4}, s{sROT}, 10\ns_cmp_ge_u32 s{sROT}, 10\ns_cselect_b32 s{sROT}, s{t+4}, s{sROT}")
        if MAP1 != "h": pass
        elif ROTMODE == "full":
            a(f"s_mul_i32 s{t+4}, s{t+3}, 5\ns_add_u32 s{t+4}, s{t+4}, 1\ns_lshr_b32 s{t+4}, s{t+4}, 1")
            a(f"s_add_u32 s{t+4}, s{t+4}, s{sCBL}\ns_add_u32 s{t+4}, s{t+4}, s{t+2}")
            a(f"s_mul_i32 s{t+5}, s{sHALF}, 5\ns_add_u32 s{sROT}, s{t+4}, s{t+5}")
            for _ in range(2):
                a(f"s_sub_u32 s{t+4}, s{sROT}, 10\ns_cmp_ge_u32 s{sROT}, 10\ns_cselect_b32 s{sROT}, s{t+4}, s{sROT}")
        elif ROTMODE == "none":
            a(f"s_mov_b32 s{sROT}, 0")
        elif ROTMODE == "xcd":
            a(f"s_mul_i32 s{t+4}, s{t+2}, 5\ns_add_u32 s{t+4}, s{t+4}, 1\ns_lshr_b32 s{t+4}, s{t+4}, 1\ns_add_u32 s{sROT}, s{t+4}, s{sHALF}")
        elif ROTMODE == "two0":
            a(f"s_add_u32 s{t+4}, s{t+3}, s{sCBL}\ns_and_b32 s{t+4}, s{t+4}, 1\ns_mul_i32 s{sROT}, s{t+4}, 5")
        elif ROTMODE == "two1":
            a(f"s_add_u32 s{t+4}, s{t+3}, s{sCBL}\ns_and_b32 s{t+4}, s{t+4}, 1\ns_mul_i32 s{t+4}, s{t+4}, 5\ns_and_b32 s{t+5}, s{t+2}, 1\ns_lshl1_add_u32 s{sROT}, s{t+5}, s{t+4}")
        elif ROTMODE == "two":
            a(f"s_add_u32 s{t+4}, s{t+3}, s{sCBL}\ns_and_b32 s{t+4}, s{t+4}, 1\ns_mul_i32 s{t+4}, s{t+4}, 5")
            a(f"s_add_u32 s{t+4}, s{t+4}, s{t+2}\ns_add_u32 s{sROT}, s{t+4}, s{sHALF}")

    def loader1(self):
        a = self.a
        t = T0
        sLW = sT
        vXE, vXO, vW, vGt = 2, 3, 4, 8
        sStr, sCol, sA32, sA64, sOff, sXo, sWB, sWB2, sXB, sXP, sSel = 48, 49, 50, 51, t+4, t+5, t+6, t+7, t+8, t+9, t+10
        sKind = 72
        a(f"s_setprio 2\ns_sub_u32 s{sLW}, s{sWAVE}, 4")
        a("v_lshrrev_b32 v10, 3, v0\nv_and_b32 v11, 7, v0\nv_lshrrev_b32 v12, 4, v0\nv_mul_u32_u24 v13, 1280, v10\nv_xor_b32 v14, v11, v12")
        a(f"s_and_b32 s{t}, s{sLW}, 1\ns_lshl_b32 s{t}, s{t}, 6")
        a(f"v_lshl_add_u32 v13, v14, 4, v13\nv_xor_b32 v{vXE}, s{t}, v13\nv_xor_b32 v{vXO}, 64, v{vXE}")
        if FAST0: a("v_mov_b32 v16, v13\nv_xor_b32 v17, 64, v13")
        if FIRST0: a(f"s_mov_b32 s{sA32}, 0\ns_mov_b32 s{sA64}, 0\ns_min_u32 s{sROT}, s{sROT}, 8")
        else: a(f"s_lshl_b32 s{sA32}, s{sROT}, 1\ns_mov_b32 s{sA64}, s{sROT}")
        a(f"s_mul_i32 s{sXB}, s{sLW}, 3072\ns_mul_i32 s{sXP}, s{sLW}, 30720")
        for k in range(6, 10): a(f"v_mov_b32 v{k}, {BIG}")
        if FAST0: a(f"s_mov_b32 s{sWB2}, 0")
        lKV, lQH, lLN, lJ = a.newlabel("L_wkv"), a.newlabel("L_wqh"), a.newlabel("L_wln"), a.newlabel("L_wj")
        a(f"s_cmp_eq_u32 s{sTYPE}, 0\ns_cbranch_scc1 {lKV}")
        a(f"s_cmp_eq_u32 s{sLW}, 3\ns_cbranch_scc1 {lQH}")
        a(f"s_mov_b32 s{sSel}, 1\ns_mov_b32 s{sStr}, 3072\ns_mul_i32 s{sCol}, s{sGRP}, 3\ns_add_u32 s{sCol}, s{sCol}, s{sLW}\ns_lshl_b32 s{sCol}, s{sCol}, 7\ns_lshl_b32 s{sWB}, s{sLW}, 12")
        a.label(lLN)
        a(f"v_and_b32 v13, 4, v10\nv_add_u32 v13, v13, v10\nv_mul_u32_u24 v13, s{sStr}, v13\nv_lshlrev_b32 v12, 1, v12\nv_xor_b32 v12, v11, v12\nv_lshl_add_u32 v{vW}, v12, 4, v13")
        a(f"s_lshl_b32 s{t}, s{sStr}, 4\ns_lshl_b32 s{t+1}, s{sStr}, 2\nv_add_u32 v{vW+1}, s{t}, v{vW}\nv_add_u32 v{vW+2}, s{t+1}, v{vW}\nv_add_u32 v{vW+3}, s{t}, v{vW+2}")
        a(f"s_branch {lJ}")
        a.label(lQH)
        a(f"s_mov_b32 s{sSel}, 0\ns_mov_b32 s{sStr}, 3840\ns_lshl_b32 s{sCol}, s{sHALF}, 1\ns_add_u32 s{sCol}, s{sCol}, s{sCBL}\ns_add_u32 s{sCol}, s{sCol}, 12\ns_lshl_b32 s{sCol}, s{sCol}, 6")
        a(f"s_cmp_lt_u32 s{sCBL}, 6\ns_cselect_b32 s{sCol}, s{sCol}, {BIG}\ns_mov_b32 s{sWB}, 12288\ns_mov_b32 s{sWB2}, 13312")
        a(f"v_lshrrev_b32 v10, 2, v0\nv_and_b32 v13, 12, v10\nv_add_u32 v13, v13, v10\nv_mul_u32_u24 v13, 3840, v13\nv_and_b32 v11, 3, v0\nv_and_b32 v12, 1, v12\nv_lshlrev_b32 v12, 1, v12\nv_xor_b32 v12, v11, v12")
        a(f"v_lshl_add_u32 v{vW}, v12, 4, v13\nv_add_u32 v{vW+1}, 15360, v{vW}")
        a(f"s_lshl_b32 s{t}, s{sROT}, 3\nv_mov_b32 v14, {BIG}")
        for j in range(2):
            if FIRST0:
                a(f"v_add_u32 v10, {64*j}, v0\nv_add_u32 v11, s{t}, v10\nv_subrev_u32 v12, 72, v11\nv_cmp_gt_u32 vcc, 80, v11\ns_nop 1\nv_cndmask_b32 v11, v12, v11, vcc\nv_cmp_gt_u32 vcc, 8, v10\ns_nop 1\nv_cndmask_b32 v11, v11, v10, vcc")
                a(f"v_cmp_gt_u32 vcc, 80, v10\nv_lshlrev_b32 v11, 4, v11\ns_nop 0\nv_cndmask_b32 v{vGt+j}, v14, v11, vcc")
            else:
                a(f"v_add_u32 v10, {64*j}, v0\nv_add_u32 v11, s{t}, v10\nv_cmp_gt_u32 vcc, 80, v10\nv_subrev_u32 v12, 80, v11\nv_min_u32 v11, v11, v12\nv_lshlrev_b32 v11, 4, v11\nv_cndmask_b32 v{vGt+j}, v14, v11, vcc")
        a(f"s_branch {lJ}")
        a.label(lKV)
        a(f"s_mov_b32 s{sSel}, 0\ns_mov_b32 s{sStr}, 3840\ns_mul_i32 s{sWB}, s{sLW}, 5120\ns_lshl_b32 s{sCol}, s{sGRP}, 7")
        a(f"s_cmp_eq_u32 s{sLW}, 2\ns_cbranch_scc1 {lLN}")
        a(f"s_mul_i32 s{sCol}, s{sGRP}, 160\ns_cmp_eq_u32 s{sLW}, 1\ns_cselect_b32 s{t}, 2560, 1280\ns_add_u32 s{sCol}, s{sCol}, s{t}")
        a(f"s_cmp_eq_u32 s{sLW}, 3\ns_cselect_b32 s{t}, 256, 0\ns_cselect_b32 s{sWB}, 4096, s{sWB}\ns_mov_b32 s{sWB2}, 9216")
        a(f"v_add_u32 v14, s{t}, v0")
        for j in range(4):
            a(f"v_add_u32 v10, {64*j}, v14\nv_mul_u32_u24 v11, 6554, v10\nv_lshrrev_b32 v11, 16, v11\nv_mad_i32_i24 v10, v11, -10, v10")
            a("v_and_b32 v12, 12, v11\nv_and_b32 v13, 3, v11\nv_lshl_or_b32 v12, v12, 1, v13\nv_bfe_u32 v13, v11, 4, 1\nv_lshl_or_b32 v12, v13, 2, v12")
            a(f"v_mul_u32_u24 v12, 3840, v12\nv_lshl_add_u32 v{vW+j}, v10, 4, v12")
            if j == 0:
                a(f"v_add_u32 v{vW+1}, 1280, v{vW}\ns_cmp_eq_u32 s{sLW}, 3\ns_cbranch_scc1 {lJ}")
        a.label(lJ)
        a(f"s_lshl_b32 s{sStr}, s{sStr}, 5\ns_mul_i32 s{t}, s{sRB}, 163840")
        a("s_waitcnt lgkmcnt(0)")
        self.stamp(0)
        self.srd(SRD_X, pX, 163840, add=f"s{t}")
        if FAST0:
            a(f"s_mul_i32 s{sXo}, s{sLW}, 40960\ns_lshl_b32 s{t}, s{sA64}, 7\ns_add_u32 s{sXo}, s{sXo}, s{t}\ns_lshl_b32 s{t}, s{sLW}, 12")
            for j in range(4):
                a(f"s_add_u32 m0, s{t}, {XR + 1024*j}\n" + ("s_nop 0" if j == 0 else f"s_add_u32 s{sXo}, s{sXo}, 10240") + f"\nbuffer_load_dwordx4 v{16 + (j & 1)}, s[{SRD_X}:{SRD_X+3}], s{sXo} offen lds")
        a(f"s_cmp_eq_u32 s{sSel}, 0\ns_cselect_b32 s{SRD_W}, s{pWQKV}, s{pW1}\ns_cselect_b32 s{SRD_W+1}, s{pWQKV+1}, s{pW1+1}\ns_cselect_b32 s{SRD_W+2}, {640*1920*2}, {640*1536*2}\ns_mov_b32 s{SRD_W+3}, 0x20000")
        if FAST0:
            if FIRST0: a(f"s_add_u32 s{sA64}, s{sROT}, 1")
            else: a(f"s_add_u32 s{sA64}, s{sA64}, 1\ns_cmp_eq_u32 s{sA64}, 10\ns_cselect_b32 s{sA64}, 0, s{sA64}")
            g4, gj = a.newlabel("L_f4"), a.newlabel("L_fj")
            a(f"s_add_u32 s{t+1}, s{sWB}, 1024\ns_cmp_eq_u32 s{sLW}, 3\ns_cselect_b32 s{t+1}, s{sWB2}, s{t+1}\ns_cselect_b32 s{t+2}, s{sCBL}, 0\ns_cmp_ge_u32 s{t+2}, 6\ns_cbranch_scc1 {g4}")
            for i in range(2):
                sk = a.newlabel("L_f2")
                a(f"s_mul_i32 s{sOff}, s{sA32}, s{sStr}\ns_add_u32 m0, s{sWB}, {WR + i*WSLOT}\ns_add_u32 s{sOff}, s{sOff}, s{sCol}\nbuffer_load_dwordx4 v{vW}, s[{SRD_W}:{SRD_W+3}], s{sOff} offen lds")
                a(f"s_add_u32 m0, s{t+1}, {WR + i*WSLOT}\ns_cmp_eq_u32 s{sLW}, 3\nbuffer_load_dwordx4 v{vW+1}, s[{SRD_W}:{SRD_W+3}], s{sOff} offen lds\ns_cbranch_scc1 {sk}")
                for j in (2, 3):
                    a(f"s_add_u32 m0, s{sWB}, {WR + i*WSLOT + 1024*j}\ns_nop 0\nbuffer_load_dwordx4 v{vW+j}, s[{SRD_W}:{SRD_W+3}], s{sOff} offen lds")
                a.label(sk)
                if FIRST0 and i == 1: a(f"s_lshl1_add_u32 s{sA32}, s{sROT}, 2")
                else: a(f"s_add_u32 s{sA32}, s{sA32}, 1\ns_cmp_eq_u32 s{sA32}, 20\ns_cselect_b32 s{sA32}, 0, s{sA32}")
            a(f"s_branch {gj}")
            a.label(g4)
            self.srd(SRD_M, pGATE, 1280)
            for j in range(2):
                a(f"s_mov_b32 m0, {GATE + 1024*j}\ns_nop 0\nbuffer_load_dwordx4 v{vGt+j}, s[{SRD_M}:{SRD_M+3}], 0 offen lds")
            a.label(gj)
        lab3, lab4, labj = a.newlabel("L_ld3"), a.newlabel("L_ld4"), a.newlabel("L_ldj")
        lab0k, lab3k = a.newlabel("L_ld0k"), a.newlabel("L_ld3k")
        a(f"s_cmp_eq_u32 s{sLW}, 3\ns_cbranch_scc1 {lab3}")
        for variant, rp in (((0, 1), (0, 0), (3, 1), (3, 0), (4, 1)) if LRP else ((0, 0), (3, 0), (4, 0))):
            if LRP and (variant, rp) == (0, 1): a(f"s_cmp_eq_u32 s{sTYPE}, 0\ns_cbranch_scc1 {lab0k}")
            if LRP and (variant, rp) == (0, 0): a.label(lab0k)
            if LRP and (variant, rp) == (3, 0): a.label(lab3k)
            if variant == 3 and (rp or not LRP):
                a.label(lab3)
                a(f"s_cmp_ge_u32 s{sCBL}, 6\ns_cbranch_scc1 {lab4}")
                if LRP: a(f"s_cmp_eq_u32 s{sTYPE}, 0\ns_cbranch_scc1 {lab3k}")
            if variant == 4:
                a.label(lab4)
            nW = {0: 4, 3: 2, 4: 0}[variant]
            nX = 3 if variant == 0 else 7
            seq = []
            def issue_W(i):
                if nW == 0: return
                a(f"s_mul_i32 s{sOff}, s{sA32}, s{sStr}")
                for j in range(nW):
                    base, off = (sWB, 1024*j) if variant == 0 else ((sWB, sWB2)[j], 0)
                    a(f"s_add_u32 m0, s{base}, {WR + (i % NS)*WSLOT + off}")
                    a(f"s_add_u32 s{sOff}, s{sOff}, s{sCol}" if j == 0 else "s_nop 0")
                    a(f"buffer_load_dwordx4 v{vW+j}, s[{SRD_W}:{SRD_W+3}], s{sOff} offen lds")
                    seq.append(("W", i))
                if FIRST0 and i == 1: a(f"s_lshl1_add_u32 s{sA32}, s{sROT}, 2")
                else: a(f"s_add_u32 s{sA32}, s{sA32}, 1\ns_cmp_eq_u32 s{sA32}, 20\ns_cselect_b32 s{sA32}, {2 if FIRST0 else 0}, s{sA32}")
            def issue_X(jx):
                a(f"s_lshl_b32 s{sXo}, s{sA64}, 7")
                for j in range(nX):
                    a(f"s_add_u32 m0, s{sXB}, {XR + (jx % 3)*16384 + 1024*j}")
                    a(f"s_add_u32 s{sXo}, s{sXo}, " + (f"s{sXP}" if j == 0 else "10240"))
                    a(f"buffer_load_dwordx4 v{vXE + (j & 1)}, s[{SRD_X}:{SRD_X+3}], s{sXo} offen lds")
                    seq.append(("X", jx))
                if FIRST0 and jx == 0: a(f"s_add_u32 s{sA64}, s{sROT}, 1")
                else: a(f"s_add_u32 s{sA64}, s{sA64}, 1\ns_cmp_eq_u32 s{sA64}, 10\ns_cselect_b32 s{sA64}, {1 if FIRST0 else 0}, s{sA64}")
            def wait_for(items):
                last = max([n for n, it in enumerate(seq) if it in items] + [-1])
                if last >= 0: a(f"s_waitcnt vmcnt({len(seq) - 1 - last})")
            if FAST0:
                seq += [("X", 0)]*4 + [("W", 0)]*(nW if variant != 4 else 2) + [("W", 1)]*nW
            else:
                issue_X(0); issue_W(0)
                if variant == 4:
                    self.srd(SRD_M, pGATE, 1280)
                    for j in range(2):
                        a(f"s_mov_b32 m0, {GATE + 1024*j}\ns_nop 0\nbuffer_load_dwordx4 v{vGt+j}, s[{SRD_M}:{SRD_M+3}], 0 offen lds")
                        seq.append(("W", 0))
                issue_W(1)
            wait_for([("W", 0), ("X", 0)]); self.stamp(1); a("s_barrier")
            issue_X(1)
            wait_for([("W", 1)]); a("s_barrier")
            issue_W(2); issue_W(3); issue_X(2); issue_W(4)
            if LOOK == "full": issue_W(5)
            for j in range(1, 10):
                if j == (8 if NE16 else 9) and variant == 0:
                    sk = a.newlabel("L_s1skip")
                    a(f"s_cmp_lg_u32 s{sWAVE}, 4\ns_cbranch_scc1 {sk}")
                    self.srd(SRD_D, pDBG, 256)
                    a("v_mov_b32 v10, 128")
                    self.poll("0", 1, 10, 11, SRD_D, S1SLEEP)
                    a.label(sk)
                if rp and j == LRP + 2:
                    last = max(n for n, it in enumerate(seq) if it in (("W", 2*j), ("W", 2*j + 1), ("X", j)))
                    N = len(seq) - 1 - last
                    w1, w2, w3 = a.newlabel("L_wv"), a.newlabel("L_wv"), a.newlabel("L_wv")
                    a(f"s_cmp_eq_u32 s{sKind}, 1\ns_cbranch_scc1 {w1}\ns_cmp_eq_u32 s{sKind}, 2\ns_cbranch_scc1 {w2}\ns_waitcnt vmcnt({N})\ns_branch {w3}\n{w1}:\ns_waitcnt vmcnt({N+4})\ns_branch {w3}\n{w2}:\ns_waitcnt vmcnt({N+8})\n{w3}:")
                else:
                    wait_for([("W", 2*j), ("W", 2*j + 1), ("X", j)])
                if rp and variant == 0 and j == LRP + 4:
                    sk = a.newlabel("L_s1b")
                    a(f"s_cmp_lg_u32 s{sWAVE}, 4\ns_cbranch_scc1 {sk}\nv_readfirstlane_b32 s{t}, v70\nv_mov_b32 v71, 1\ns_cmp_lg_u32 s{t}, 127\ns_cbranch_scc1 {sk}")
                    self.srd(SRD_D, pDBG, 256)
                    a(f"s_mov_b64 exec, 1\nbuffer_store_dword v71, v69, s[{SRD_D}:{SRD_D+3}], 0 offen offset:128 sc1\ns_mov_b64 exec, -1")
                    a.label(sk)
                a("s_barrier")
                if rp and j == LRP:
                    self.srd(SRD_WS, pWS, WS_SIZE)
                    sk = a.newlabel("L_z")
                    a(f"v_lshlrev_b32 v69, 4, v0\ns_cmp_ge_u32 s{sLW}, 2\ns_cbranch_scc1 {sk}\ns_lshl3_add_u32 s{t}, s{sRB}, s{sGRP}\ns_lshl_b32 s{t}, s{t}, 9\ns_mul_i32 s{t+1}, s{sLW}, {WS_KVP}\ns_add_u32 s{t}, s{t}, s{t+1}")
                    a("v_mov_b32 v64, 0\nv_mov_b32 v65, 0\nv_mov_b32 v66, 0\nv_mov_b32 v67, 0\ns_mov_b32 exec_hi, 0")
                    a(f"buffer_store_dwordx4 v[64:67], v69, {WSR}, s{t} offen sc1\ns_mov_b32 exec_hi, -1")
                    a.label(sk)
                if rp and variant == 0 and j == LRP + 3:
                    sk = a.newlabel("L_s1a")
                    a(f"s_cmp_lg_u32 s{sWAVE}, 4\ns_cbranch_scc1 {sk}")
                    self.srd(SRD_D, pDBG, 256)
                    a(f"v_mov_b32 v70, 1\ns_mov_b64 exec, 1\nbuffer_atomic_add v70, v69, s[{SRD_D}:{SRD_D+3}], 0 offen sc0 sc1\ns_mov_b64 exec, -1")
                    a.label(sk)
                if LOOK == "ramp" and j == 1: issue_W(5)
                if j + 1 < 10 and LOOK == "xw": issue_W(2*j + 3)
                if j + 2 < 10: issue_X(j + 2); issue_W(2*j + 4)
                if j + 2 < 10 and LOOK != "xw": issue_W(2*j + 5)
                if rp and j == LRP:
                    a(f"s_lshl_b32 s{t}, s{sLW}, 6\ns_add_u32 s{t}, s{t}, {MBOX}\nv_mov_b32 v68, s{t}\nds_read_b128 v[16:19], v68\nds_read_b128 v[20:23], v68 offset:16\nds_read_b32 v24, v68 offset:32")
                    a(f"v_lshrrev_b32 v10, 2, v0\nv_and_b32 v11, 3, v0\nv_lshlrev_b32 v11, 3, v11\nv_lshl_add_u32 v10, v10, 7, v11\ns_lshl_b32 s{t}, s{sLW}, 12\ns_add_u32 s{t}, s{t}, {SCR}\nv_add_u32 v10, s{t}, v10")
                    for r in range(2):
                        for u in range(4):
                            a(f"ds_read_b64_tr_b16 v[{32+16*r+4*u}:{33+16*r+4*u}], v10 offset:{8192*r + 32*u}\nds_read_b64_tr_b16 v[{34+16*r+4*u}:{35+16*r+4*u}], v10 offset:{8192*r + 32*u + 2048}")
                    a(f"s_waitcnt lgkmcnt(0)\nv_readfirstlane_b32 s{sKind}, v24\nv_lshrrev_b32 v25, 1, v69")
                    for u in range(4): a(f"v_add_u32 v{16+u}, v{16+u}, v69")
                    for u in range(4):
                        a(f"buffer_store_dwordx4 v[{32+4*u}:{35+4*u}], v{16+u}, {WSR}, 0 offen sc1"); seq.append(("S", u))
                if rp and j == LRP + 1:
                    k2, k3 = a.newlabel("L_r2"), a.newlabel("L_r2")
                    a(f"s_cmp_eq_u32 s{sKind}, 0\ns_cbranch_scc1 {k2}\ns_cmp_eq_u32 s{sKind}, 2\ns_cbranch_scc1 {k3}")
                    for u in range(4): a(f"v_add_u32 v{20+u}, v{20+u}, v69\nbuffer_store_dwordx4 v[{48+4*u}:{51+4*u}], v{20+u}, {WSR}, 0 offen sc1")
                    a(f"s_branch {k2}\n{k3}:\ns_mov_b32 s{t}, 12800")
                    for u in range(4): a(f"v_add_u32 v{20+u}, v{20+u}, v25\nbuffer_store_dwordx2 v[{48+4*u}:{49+4*u}], v{20+u}, {WSR}, 0 offen sc1\nbuffer_store_dwordx2 v[{50+4*u}:{51+4*u}], v{20+u}, {WSR}, s{t} offen sc1")
                    a.label(k2)
                if j == 8 and NE16:
                    self.setup2()
                    self.srd(SRD_WS, pWS, WS_SIZE)
                    self.preload_b(0, NE16)
                    seq.extend(["B"] * NE16)
            if variant != 4:
                a(f"s_branch {labj}")
        a.label(labj)
        self.stamp(2)

    def mish_quad(self, h, dst, tmp):
        P = lambda r: f"v[{r}:{r+1}]"
        return [
            f"v_pk_fma_f32 {P(tmp)}, {P(h)}, s[{cL2E}:{cL2E+1}], -0.5 op_sel_hi:[1,1,0]",
            f"v_pk_fma_f32 {P(tmp+2)}, {P(h+2)}, s[{cL2E}:{cL2E+1}], -0.5 op_sel_hi:[1,1,0]",
            f"v_exp_f32 v{tmp}, v{tmp}", f"v_exp_f32 v{tmp+1}, v{tmp+1}", f"v_exp_f32 v{tmp+2}, v{tmp+2}", f"v_exp_f32 v{tmp+3}, v{tmp+3}",
            f"v_pk_add_f32 {P(tmp)}, {P(tmp)}, s[{cC}:{cC+1}]", f"v_pk_add_f32 {P(tmp+2)}, {P(tmp+2)}, s[{cC}:{cC+1}]",
            f"v_pk_fma_f32 {P(tmp)}, {P(tmp)}, {P(tmp)}, 0.5 op_sel_hi:[1,1,0]",
            f"v_pk_fma_f32 {P(tmp+2)}, {P(tmp+2)}, {P(tmp+2)}, 0.5 op_sel_hi:[1,1,0]",
            f"v_rcp_f32 v{tmp}, v{tmp}", f"v_rcp_f32 v{tmp+1}, v{tmp+1}", f"v_rcp_f32 v{tmp+2}, v{tmp+2}", f"v_rcp_f32 v{tmp+3}, v{tmp+3}",
            f"v_pk_fma_f32 {P(tmp)}, {P(h)}, {P(tmp)}, {P(h)} neg_lo:[1,0,0] neg_hi:[1,0,0]",
            f"v_pk_fma_f32 {P(tmp+2)}, {P(h+2)}, {P(tmp+2)}, {P(h+2)} neg_lo:[1,0,0] neg_hi:[1,0,0]",
            f"v_cvt_pk_bf16_f32 v{dst}, v{tmp}, v{tmp+1}", f"v_cvt_pk_bf16_f32 v{dst+1}, v{tmp+2}, v{tmp+3}",
        ]

    def phi_quad(self, h, dst, tmp):
        P = lambda r: f"v[{r}:{r+1}]"
        return [
            f"v_pk_mul_f32 {P(tmp)}, {P(h)}, s[{cL2E}:{cL2E+1}]", f"v_pk_mul_f32 {P(tmp+2)}, {P(h+2)}, s[{cL2E}:{cL2E+1}]",
            f"v_exp_f32 v{tmp}, v{tmp} clamp", f"v_exp_f32 v{tmp+1}, v{tmp+1} clamp", f"v_exp_f32 v{tmp+2}, v{tmp+2} clamp", f"v_exp_f32 v{tmp+3}, v{tmp+3} clamp",
            f"v_pk_add_f32 {P(h)}, {P(h)}, s[{cC}:{cC+1}]", f"v_pk_add_f32 {P(h+2)}, {P(h+2)}, s[{cC}:{cC+1}]",
            f"v_pk_add_f32 {P(tmp)}, {P(tmp)}, s[{cE}:{cE+1}]", f"v_pk_add_f32 {P(tmp+2)}, {P(tmp+2)}, s[{cE}:{cE+1}]",
            f"v_max_f32 v{tmp}, v{tmp}, v{h}", f"v_max_f32 v{tmp+1}, v{tmp+1}, v{h+1}", f"v_max_f32 v{tmp+2}, v{tmp+2}, v{h+2}", f"v_max_f32 v{tmp+3}, v{tmp+3}, v{h+3}",
            f"v_cvt_pk_bf16_f32 v{dst}, v{tmp}, v{tmp+1}", f"v_cvt_pk_bf16_f32 v{dst+1}, v{tmp+2}, v{tmp+3}",
        ]

    def consts(self, kind):
        if kind == "mish":
            self.a(f"s_mov_b32 s{cC}, 0x3f3504f3\ns_mov_b32 s{cC+1}, 0x3f3504f3")
        else:
            self.a(f"s_mov_b32 s{cC}, 0x3f800008\ns_mov_b32 s{cC+1}, 0x3f800008\ns_mov_b32 s{cE}, 0x358637bd\ns_mov_b32 s{cE+1}, 0x358637bd")

    def main_loop(self, reads, mfmas, extra, nread_end, bases):
        a = self.a
        a("s_barrier")
        self.stamp(1)
        for l in reads(0): a(l)
        for l in extra.get(0, ([], [], []))[1]: a(l)
        a("s_waitcnt lgkmcnt(0)")
        for i in range(1, 21):
            if (i == 1 or i % 2 == 0) and i < 20: a("s_barrier")
            if i in (2, 4, 6, 8, 10, 14, 18): self.stamp(3 + (2, 4, 6, 8, 10, 14, 18).index(i), True)
            pre, fill, preb = extra.get(i, ([], [], []))
            for l in pre: a(l)
            if i < 20:
                tail = []
                if (i + 1) % 3 == 0 and i + 1 < 20:
                    op = "v_add_u32" if ((i + 1) % NS) == 3 else "v_subrev_u32"
                    tail = [f"{op} v{b}, {3*WSLOT}, v{b}" for b in bases]
                body = interleave(mfmas(i - 1), reads(i) + fill + tail, 0, nread_end)
                for l in body: a(l)
                for l in preb: a(l)
                a("s_waitcnt lgkmcnt(0)")
            else:
                m19 = mfmas(19)
                for l in m19[:B20AT] + ["s_barrier"] + m19[B20AT:]: a(l)
        self.stamp(2)

    def finish1(self, flags, strict=False, late8=False):
        a = self.a
        self.setup2()
        if LFLAG == 2 and late8: a(f"s_add_u32 s{flags[0]}, s{flags[0]}, 8")
        if LFLAG == 1:
            if late8: a(f"s_add_u32 s{flags[0]}, s{flags[0]}, 8")
            a(f"s_mov_b32 s32, s{flags[1]}")
            self.preload_b(0, NPRE)
            return
        if strict:
            a("s_waitcnt vmcnt(0)")
            self.stamp(5)
            for f in flags: self.signal(f, 1)
            self.preload_b(0, NPRE)
            return
        self.preload_b(0, NPRE)
        a(f"s_waitcnt vmcnt({NPRE})")
        self.stamp(5)
        for f in flags: self.signal(f, 1)
        if not BLDS:
            self.preload_b(NPRE, 30)
            return

    def pickup(self):
        a = self.a
        t = T0
        sk = a.newlabel("L_pk")
        a(f"s_cmp_ge_u32 s{sWAVE}, 4\ns_cbranch_scc1 {sk}")
        a(f"s_mul_i32 s{t+14}, s{sWAVE}, 20480\ns_add_u32 s{t+14}, s{t+14}, {BL}\nv_add_u32 v{BS+117}, s{t+14}, v{vL16}")
        for n in range(5*NB - 10):
            a(f"ds_read_b128 v[{BS+40+4*n}:{BS+43+4*n}], v{BS+117} offset:{1024*n}")
        a.label(sk)

    def prefetch(self, vL, v, S=SRD_X):
        a = self.a
        t = T0
        for ptr, size, share, n in ((pX, 2048*1280, 10240, 3), (pWQKV, 640*3840, 9600, 3), (pW1, 640*3072, 7680, 2))[:(1 if PF == 2 else 3)]:
            self.srd(S, ptr, size)
            per = -(-share // 4 // 128) * 128
            a(f"s_mul_i32 s{t}, s{sWG}, {share}\ns_and_b32 s{t}, s{t}, 0xffffff80\ns_mul_i32 s{t+1}, s{sWAVE}, {per}\ns_add_u32 s{t}, s{t}, s{t+1}\ns_min_u32 s{t}, s{t}, {size - n*1024}")
            for k in range(n):
                a(f"buffer_load_dwordx4 v[{v}:{v+3}], v{vL}, s[{S}:{S+3}], s{t} offen offset:{1024*k}")

    def touch(self, vLane, v):
        a = self.a
        t = T0
        a(f"v_lshlrev_b32 v{v}, 21, v{vLane}\nv_add_u32 v{v}, 0xff000, v{v}\ns_mov_b64 exec, 0xff")
        a(f"buffer_load_dword v{v+1}, v{v}, {WSR}, 0 offen")
        self.srd(SRD_M, pOUT, 2048*640*2)
        a(f"v_lshlrev_b32 v{v}, 20, v{vLane}\ns_mov_b64 exec, 7\nbuffer_load_dword v{v+2}, v{v}, s[{SRD_M}:{SRD_M+3}], 0 offen")
        self.srd(SRD_M, pWO, 640*640*2)
        a(f"v_lshlrev_b32 v{v}, 19, v{vLane}\ns_mov_b64 exec, 3\nbuffer_load_dword v{v+3}, v{v}, s[{SRD_M}:{SRD_M+3}], 0 offen\ns_mov_b64 exec, -1")

    def compute_P(self):
        a = self.a
        t = T0
        ACC, XB, WB, BI = 0, 112, 144, 200
        vX0, vX1, vH0, vH1, vQ, vGt, vL, vRd, vRr, vBo, vT = 228, 229, 230, 231, 232, 233, 234, 235, 236, 237, 238
        vLane = 253
        sSH, sNH = sT, 48
        sAct, sPq, sF2, sGs = 49, 72, 73, 74
        a(f"v_mov_b32 v{vLane}, v0\ns_lshr_b32 s{sSH}, s{sWAVE}, 1\ns_and_b32 s{sNH}, s{sWAVE}, 1")
        a(f"v_and_b32 v1, 15, v0\nv_lshrrev_b32 v2, 4, v0\nv_lshrrev_b32 v3, 1, v1\nv_xor_b32 v3, v3, v2\nv_lshlrev_b32 v3, 4, v3\nv_lshl_add_u32 v3, v1, 7, v3")
        a(f"s_lshl_b32 s{t}, s{sSH}, 13\nv_add_u32 v{vX0}, s{t}, v3\nv_xor_b32 v{vX1}, 64, v{vX0}")
        a(f"v_lshrrev_b32 v3, 2, v0\nv_and_b32 v4, 3, v0\nv_lshlrev_b32 v4, 3, v4")
        a(f"v_lshl_add_u32 v5, v3, 7, v4\nv_bfe_u32 v6, v0, 3, 2\ns_lshl_b32 s{t}, s{sNH}, 1\nv_xor_b32 v6, s{t}, v6\nv_lshl_add_u32 v6, v6, 5, v5")
        a(f"v_add_u32 v{vH0}, {WR}, v6\nv_xor_b32 v{vH1}, 32, v{vH0}")
        a(f"v_lshl_add_u32 v6, v3, 6, v4\nv_and_b32 v7, 1, v2\nv_xor_b32 v7, s{sNH}, v7\nv_lshl_add_u32 v6, v7, 5, v6\nv_add_u32 v{vQ}, {WR+12288}, v6")
        a(f"v_lshlrev_b32 v6, 4, v2\nv_add_u32 v{vGt}, {GATE}, v6\nv_lshlrev_b32 v{vL}, 4, v0\nv_lshlrev_b32 v{vBo}, 3, v2")
        a(f"v_lshrrev_b32 v6, 3, v0\nv_mul_u32_u24 v6, 1280, v6\nv_and_b32 v7, 7, v0\nv_lshl_add_u32 v{vRd}, v7, 4, v6")
        a(f"s_lshl_b32 s{t}, s{sWAVE}, 12\ns_add_u32 s{t}, s{t}, {SCR}\nv_add_u32 v{vRr}, s{t}, v5")
        a(f"s_lshl3_add_u32 s{sPIDX}, s{sRB}, s{sGRP}")
        a(f"s_mov_b32 s{cL2E}, 0x3fb8aa3b\ns_mov_b32 s{cL2E+1}, 0x3fb8aa3b")
        a(f"s_lshl2_add_u32 s{t}, s{sPIDX}, s{sWAVE}\ns_min_u32 s{t}, s{t}, 479")
        a(f"s_mul_i32 s{t+1}, s{t}, 6554\ns_lshr_b32 s{t+1}, s{t+1}, 16\ns_mul_i32 s{t+2}, s{t+1}, 10\ns_sub_u32 s{t+2}, s{t}, s{t+2}")
        a(f"s_mul_i32 s{t+6}, s{t+1}, 40960\ns_lshl_b32 s{t+3}, s{t+2}, 7\ns_add_u32 s{t+6}, s{t+6}, s{t+3}")
        a(f"s_mul_i32 s{t+7}, s{sGRP}, 384\ns_lshl_b32 s{t+3}, s{sNH}, 6\ns_add_u32 s{t+7}, s{t+7}, s{t+3}")
        a("s_waitcnt lgkmcnt(0)")
        self.stamp(0)
        self.srd(SRD_M, pB1, 3072)
        self.srd(SRD_W, pW2, 1536*640*2)
        for u in range(6):
            a(f"buffer_load_dwordx2 v[{BI+4*u+2}:{BI+4*u+3}], v{vBo}, s[{SRD_M}:{SRD_M+3}], s{t+7} offen offset:{128*(u >> 1) + 32*(u & 1)}")
        sSrc1 = 69
        a(f"s_mov_b32 s{sSrc1}, s{t+6}")
        self.srd(SRD_WS, pWS, WS_SIZE)
        if TOUCH == 2: self.touch(vLane, 240)
        dsts = [10, 11, 1, 3]
        for u in range(4):
            a(f"s_lshl2_add_u32 s{t+3}, s{t+2}, {u}\ns_mul_i32 s{t+4}, s{t+3}, 205\ns_lshr_b32 s{t+4}, s{t+4}, 10")
            a(f"s_mul_i32 s{t+5}, s{t+4}, 235\ns_add_u32 s{t+5}, s{t+5}, s{t+3}\ns_mul_i32 s{t+4}, s{t+1}, 5\ns_add_u32 s{t+5}, s{t+5}, s{t+4}")
            a(f"s_lshl_b32 s{t+5}, s{t+5}, 10\ns_add_u32 s{t+5}, s{t+5}, {WS_W2R}")
            if LRP: a(f"s_mov_b32 s{dsts[u]}, s{t+5}")
            else: a(f"s_cmp_lt_u32 s{sPIDX}, 120\ns_cselect_b32 s{dsts[u]}, s{t+5}, {BIG}")
        d2, sSrc2, sK2, sInc2 = 40, 0, 75, 70
        self.srd(SRD_M, pWO, 640*640*2)
        a(f"s_lshl1_add_u32 s{t}, s{sPIDX}, s{sWAVE}\ns_sub_u32 s{t}, s{t}, 2")
        a(f"s_cmp_lt_u32 s{t}, 160\ns_cselect_b32 s{sK2}, 1, 2\ns_cmp_lt_u32 s{t}, 200\ns_cselect_b32 s{sK2}, s{sK2}, 0\ns_cmp_lt_u32 s{sWAVE}, 2\ns_cselect_b32 s{sK2}, 0, s{sK2}")
        a(f"s_mul_i32 s{t+1}, s{t}, 6554\ns_lshr_b32 s{t+1}, s{t+1}, 16\ns_mul_i32 s{t+2}, s{t+1}, 10\ns_sub_u32 s{t+2}, s{t}, s{t+2}")
        a(f"s_lshr_b32 s{t+3}, s{t+1}, 1\ns_and_b32 s{t+4}, s{t+1}, 1\ns_sub_u32 s{t+5}, s{t+1}, 16\ns_lshl_b32 s{t+5}, s{t+5}, 1")
        a(f"s_cmp_eq_u32 s{sK2}, 2\ns_cselect_b32 s{t+3}, s{t+5}, s{t+3}\ns_cselect_b32 s{t+4}, 2, s{t+4}\ns_cselect_b32 s{sInc2}, {10240 + 64*1280}, 10240")
        a(f"s_mul_i32 s{sSrc2}, s{t+3}, {80*1280}\ns_mul_i32 s{t+5}, s{t+4}, {32*1280}\ns_add_u32 s{sSrc2}, s{sSrc2}, s{t+5}\ns_lshl_b32 s{t+5}, s{t+2}, 7\ns_add_u32 s{sSrc2}, s{sSrc2}, s{t+5}")
        a(f"s_mul_i32 s{t+3}, s{t+3}, 12800\ns_lshl_b32 s{t+5}, s{t+4}, 10\ns_cmp_eq_u32 s{sK2}, 2\ns_cselect_b32 s{t+5}, 10240, s{t+5}\ns_cselect_b32 s{t+6}, 512, 2048\ns_add_u32 s{t+3}, s{t+3}, s{t+5}\ns_add_u32 s{t+3}, s{t+3}, {WS_WOR}")
        for u in range(4):
            a(f"s_lshl2_add_u32 s{t+4}, s{t+2}, {u}\ns_mul_i32 s{t+5}, s{t+4}, 205\ns_lshr_b32 s{t+5}, s{t+5}, 10\ns_mul_i32 s{t+7}, s{t+5}, 5\ns_sub_u32 s{t+4}, s{t+4}, s{t+7}")
            a(f"s_mul_i32 s{t+5}, s{t+5}, 102400\ns_mul_i32 s{t+4}, s{t+4}, s{t+6}\ns_add_u32 s{t+5}, s{t+5}, s{t+4}\ns_add_u32 s{d2+u}, s{t+5}, s{t+3}")
        sRb64 = t + 11
        a(f"s_lshl1_add_u32 s{sRb64}, s{sRB}, s{sSH}")
        a(f"s_mul_i32 s{t}, s{sRb64}, 48\ns_mul_i32 s{t+1}, s{sGRP}, 6\ns_add_u32 s{t}, s{t}, s{t+1}\ns_add_u32 s{t}, s{t}, s{sNH}\ns_lshl_b32 s{t}, s{t}, 12")
        a(f"s_add_u32 s{sAct}, s{t}, {WS_ACT}\ns_add_u32 s{sAct+1}, s{t}, {WS_ACT + 8192}\ns_add_u32 s{sAct+2}, s{t}, {WS_ACT + 16384}")
        a(f"s_mul_i32 s{t}, s{sRb64}, 40\ns_lshl2_add_u32 s{t}, s{sHALF}, s{t}\ns_lshl1_add_u32 s{t}, s{sCBL}, s{t}\ns_add_u32 s{t}, s{t}, s{sNH}\ns_add_u32 s{t}, s{t}, 24\ns_lshl_b32 s{t}, s{t}, 11\ns_add_u32 s{sPq}, s{t}, {WS_PQ}")
        a(f"s_lshl3_add_u32 s{sF1}, s{sRb64}, s{sGRP}\ns_lshl_b32 s{sF1}, s{sF1}, 7")
        a(f"s_lshl1_add_u32 s{t}, s{sGRP}, s{sNH}\ns_cmp_eq_u32 s{t}, 5\ns_cselect_b32 s{sGs}, 1, 0")
        a(f"s_lshl_b32 s{sF2}, s{sRb64}, 7\ns_add_u32 s{sF2}, s{sF2}, {CNT_PQ}\ns_cmp_lt_u32 s{sCBL}, 6\ns_cselect_b32 s{t}, 1, s{sGs}\ns_cmp_eq_u32 s{t}, 1\ns_cselect_b32 s{sF2}, s{sF2}, {BIG}")
        a(f"s_cmp_ge_u32 s{sCBL}, 6\ns_cselect_b64 vcc, -1, 0")
        def reads(i):
            b = i & 1; so = (i % 3) * WSLOT
            xs = XR + ((i >> 1) % 3) * 16384
            r = [f"ds_read_b128 v[{XB+16*b+4*s}:{XB+16*b+4*s+3}], v{vX1 if i & 1 else vX0} offset:{xs + 2048*s}" for s in range(4)]
            for u in range(6):
                d = WB + 28*b + 4*u
                r.append(f"ds_read_b64_tr_b16 v[{d}:{d+1}], v{vH0 + (u & 1)} offset:{so + 4096*(u >> 1)}")
                r.append(f"ds_read_b64_tr_b16 v[{d+2}:{d+3}], v{vH0 + (u & 1)} offset:{so + 4096*(u >> 1) + 2048}")
            d = WB + 28*b + 24
            if GBR:
                l1, l2 = a.newlabel("L_g"), a.newlabel("L_gj")
                r.append(f"s_cbranch_vccnz {l1}\nds_read_b64_tr_b16 v[{d}:{d+1}], v{vQ} offset:{so}\nds_read_b64_tr_b16 v[{d+2}:{d+3}], v{vQ} offset:{so + 1024}\ns_branch {l2}\n"
                         f"{l1}:\nds_read_b128 v[{d}:{d+3}], v{vGt} offset:{64*i}\n{l2}:")
            else:
                r += [f"ds_read_b64_tr_b16 v[{d}:{d+1}], v{vQ} offset:{so}", f"ds_read_b64_tr_b16 v[{d+2}:{d+3}], v{vQ} offset:{so + 1024}",
                      f"s_mov_b64 exec, vcc\nds_read_b128 v[{d}:{d+3}], v{vGt} offset:{64*i}\ns_mov_b64 exec, -1"]
            return r
        def mfmas(i):
            b = i & 1
            r = []
            for u in (range(7) if i < 19 else (6, 0, 1, 2, 3, 4, 5)):
                for s in range(4):
                    d = ACC + 16*u + 4*s
                    c = f"v[{d}:{d+3}]" if i > 0 else ("0" if u == 6 else f"v[{BI+4*u}:{BI+4*u+3}]")
                    r.append(f"v_mfma_f32_16x16x32_bf16 v[{d}:{d+3}], v[{WB+28*b+4*u}:{WB+28*b+4*u+3}], v[{XB+16*b+4*s}:{XB+16*b+4*s+3}], {c}")
            return r
        unpack = [f"s_waitcnt vmcnt({(3 if TOUCH == 2 else 0) + (4 if RD < 0 else 0) + {0: 0, 1: 8, 2: 3}[PF]})"]
        for u in range(6):
            p = BI + 4*u
            unpack += [f"v_lshlrev_b32 v{p}, 16, v{p+2}", f"v_and_b32 v{p+1}, 0xffff0000, v{p+2}", f"v_lshlrev_b32 v{p+2}, 16, v{p+3}", f"v_and_b32 v{p+3}, 0xffff0000, v{p+3}"]
        RP = BI
        rp_reads = []
        for u in range(4):
            rp_reads += [f"ds_read_b64_tr_b16 v[{RP+4*u}:{RP+4*u+1}], v{vRr} offset:{32*u}", f"ds_read_b64_tr_b16 v[{RP+4*u+2}:{RP+4*u+3}], v{vRr} offset:{32*u + 2048}"]
        rp_st = [f"buffer_store_dwordx4 v[{RP+4*u}:{RP+4*u+3}], v{vL}, {WSR}, s{dsts[u]} offen sc1" for u in range(4)]
        z = [f"s_lshl_b32 s{t}, s{sPIDX}, 9", f"s_mul_i32 s{t+1}, s{sWAVE}, {WS_KVP}", f"s_add_u32 s{t}, s{t}, s{t+1}", f"s_cmp_lt_u32 s{sWAVE}, 2", f"s_cselect_b32 s{t}, s{t}, {BIG}"] + \
            [f"v_mov_b32 v{RP+16+k}, 0" for k in range(4)] + \
            [f"s_mov_b32 exec_hi, 0\nbuffer_store_dwordx4 v[{RP+16}:{RP+19}], v{vL}, {WSR}, s{t} offen sc1\ns_mov_b32 exec_hi, -1"]
        k1, k2, k3, k4 = [a.newlabel("L_r2") for _ in range(4)]
        dma1 = [f"s_lshl_b32 s{t+3}, s{sWAVE}, 12"]
        for j in range(4):
            dma1.append(f"s_add_u32 m0, s{t+3}, {SCR + 1024*j}\ns_nop 0\nbuffer_load_dwordx4 v{vRd}, s[{SRD_W}:{SRD_W+3}], s{sSrc1} offen lds\ns_add_u32 s{sSrc1}, s{sSrc1}, 10240")
        rp_reads2 = [l.replace("offset:", "offset:8192+") for l in rp_reads]
        dma2 = f"s_cmp_eq_u32 s{sK2}, 0\ns_cbranch_scc1 {k1}\n"
        for j in range(4):
            dma2 += f"s_add_u32 m0, s{t+3}, {SCR + 8192 + 1024*j}\ns_nop 0\nbuffer_load_dwordx4 v{vRd}, s[{SRD_M}:{SRD_M+3}], s{sSrc2} offen lds\n"
            if j < 3: dma2 += f"s_add_u32 s{sSrc2}, s{sSrc2}, " + (f"s{sInc2}" if j == 1 else "10240") + "\n"
        dma2 += k1 + ":"
        st2 = f"s_cmp_eq_u32 s{sK2}, 0\ns_cbranch_scc1 {k2}\ns_cmp_eq_u32 s{sK2}, 2\ns_cbranch_scc1 {k3}\n"
        st2 += "".join(f"buffer_store_dwordx4 v[{RP+4*u}:{RP+4*u+3}], v{vL}, {WSR}, s{d2+u} offen sc1\n" for u in range(4))
        st2 += f"s_branch {k2}\n{k3}:\nv_lshrrev_b32 v{vT}, 1, v{vL}\n"
        for u in range(4):
            st2 += f"buffer_store_dwordx2 v[{RP+4*u}:{RP+4*u+1}], v{vT}, {WSR}, s{d2+u} offen sc1\ns_add_u32 s{d2+u}, s{d2+u}, 12800\n"
            st2 += f"buffer_store_dwordx2 v[{RP+4*u+2}:{RP+4*u+3}], v{vT}, {WSR}, s{d2+u} offen sc1\n"
        st2 += k2 + ":"
        sk, sk2 = a.newlabel("L_s1a"), a.newlabel("L_s1b")
        arr = [f"s_cmp_lg_u32 s{sWAVE}, 0", f"s_cbranch_scc1 {sk}",
               f"s_mov_b32 s{SRD_D}, s{pDBG}", f"s_mov_b32 s{SRD_D+1}, s{pDBG+1}", f"s_mov_b32 s{SRD_D+2}, 256", f"s_mov_b32 s{SRD_D+3}, 0x20000",
               f"v_mov_b32 v{vT}, 1", f"s_mov_b64 exec, 1\nbuffer_atomic_add v{vT}, v{vL}, s[{SRD_D}:{SRD_D+3}], 0 offen sc0 sc1\ns_mov_b64 exec, -1", sk + ":"]
        arr2 = [f"s_cmp_lg_u32 s{sWAVE}, 0", f"s_cbranch_scc1 {sk2}", "s_waitcnt vmcnt(0)", f"v_readfirstlane_b32 s{t}, v{vT}", f"v_mov_b32 v{vT+1}, 1",
                f"s_cmp_lg_u32 s{t}, 127", f"s_cbranch_scc1 {sk2}",
                f"s_mov_b32 s{SRD_D}, s{pDBG}", f"s_mov_b32 s{SRD_D+1}, s{pDBG+1}", f"s_mov_b32 s{SRD_D+2}, 256", f"s_mov_b32 s{SRD_D+3}, 0x20000",
                f"s_mov_b64 exec, 1\nbuffer_store_dword v{vT+1}, v{vL}, s[{SRD_D}:{SRD_D+3}], 0 offen offset:128 sc1\ns_mov_b64 exec, -1", sk2 + ":"]
        if RD < 0:
            for l in dma1 + [dma2]: a(l)
        if PF: self.prefetch(vL, 240, S=SRD_D)
        hi, lo = (["s_setprio 3"], ["s_setprio 0"]) if STPRIO else ([], [])
        extra = {0: ([], unpack, []), RS: (["s_waitcnt vmcnt(0)"], rp_reads, []), RS+1: (hi, rp_st + rp_reads2, []),
                 RS+2: ([], [st2] + z, lo), S1AT-1: ([], [], ["s_waitcnt vmcnt(0)"]), S1AT: (arr, [], []), S1AT+2: (arr2, [], [])}
        if LRP:
            a(f"s_lshl_b32 s{t}, s{sWAVE}, 6\ns_add_u32 s{t}, s{t}, {MBOX}\nv_mov_b32 v8, s{t}")
            for u in range(4): a(f"v_mov_b32 v{12+u}, s{dsts[u]}\nv_mov_b32 v{16+u}, s{d2+u}")
            a(f"v_mov_b32 v20, s{sK2}\nds_write_b128 v8, v[12:15]\nds_write_b128 v8, v[16:19] offset:16\nds_write_b32 v8, v20 offset:32\ns_waitcnt lgkmcnt(0)")
            extra = {0: extra[0], 2*LRP - 1: ([], [], ["s_waitcnt vmcnt(0)"])}
        if SPREAD:
            R2 = [216, 220, 240, 244]
            rd2 = []
            for u in range(4):
                rd2 += [f"ds_read_b64_tr_b16 v[{R2[u]}:{R2[u]+1}], v{vRr} offset:{8192 + 32*u}", f"ds_read_b64_tr_b16 v[{R2[u]+2}:{R2[u]+3}], v{vRr} offset:{8192 + 32*u + 2048}"]
            zz = [l.replace(f"v{RP+16}", "v248").replace(f"v{RP+17}", "v249").replace(f"v{RP+18}", "v250").replace(f"v{RP+19}", "v251").replace(f"v[{RP+16}:{RP+19}]", "v[248:251]") for l in z]
            pre2 = [f"v_lshrrev_b32 v{vT+1}, 1, v{vL}"]
            def st2u(u):
                k5, k6 = a.newlabel("L_r2"), a.newlabel("L_r2")
                return (f"s_cmp_eq_u32 s{sK2}, 1\ns_cbranch_scc0 {k5}\nbuffer_store_dwordx4 v[{R2[u]}:{R2[u]+3}], v{vL}, {WSR}, s{d2+u} offen sc1\n{k5}:\n"
                        f"s_cmp_eq_u32 s{sK2}, 2\ns_cbranch_scc0 {k6}\nbuffer_store_dwordx2 v[{R2[u]}:{R2[u]+1}], v{vT+1}, {WSR}, s{d2+u} offen sc1\ns_add_u32 s{d2+u}, s{d2+u}, 12800\n"
                        f"buffer_store_dwordx2 v[{R2[u]+2}:{R2[u]+3}], v{vT+1}, {WSR}, s{d2+u} offen sc1\n{k6}:")
            extra = {0: extra[0], RS: (["s_waitcnt vmcnt(0)"], rp_reads + rd2 + pre2 + zz, []), S1AT: extra[S1AT], S1AT+2: extra[S1AT+2]}
            if SPREAD == 1:
                for u in range(4): extra[RS+1+u] = ([], [rp_st[u], st2u(u)], [])
            else:
                for u in range(4):
                    extra[RS+1+2*u] = ([], [rp_st[u]], []); extra[RS+2+2*u] = ([], [st2u(u)], [])
            e_ = extra.get(S1AT-1, ([], [], []))
            extra[S1AT-1] = (e_[0], e_[1], ["s_waitcnt vmcnt(0)"])
        if RD > 0: extra[RD] = ([], dma1 + [dma2], [])
        if RD == 0: extra[0] = ([], unpack + dma1 + [dma2], [])
        self.main_loop(reads, mfmas, extra, NRE, [vH0, vH1, vQ])
        if EPRIO: a(f"s_setprio {EPRIO}")
        TM = XB
        a("s_nop 3")
        labG, labE = a.newlabel("L_epG"), a.newlabel("L_epE")
        a(f"s_cbranch_vccnz {labG}")
        self.consts("phi")
        for sp in range(2):
            e = ACC + 96 + 8*sp
            for l in self.phi_quad(e, e, TM): a(l)
            for l in self.phi_quad(e + 4, e + 2, TM + 4): a(l)
            a(f"buffer_store_dwordx4 v[{e}:{e+3}], v{vL}, {WSR}, s{sPq} offen offset:{1024*sp} sc1")
        a(f"s_branch {labE}")
        a.label(labG)
        a(f"s_cmp_eq_u32 s{sGs}, 0\ns_cbranch_scc1 {labE}")
        G = ACC + 96
        a(f"v_cmp_le_u32 vcc, 16, v{vLane}\nv_cmp_le_u32 s[{t+2}:{t+3}], 32, v{vLane}\nv_cmp_le_u32 s[{t+4}:{t+5}], 48, v{vLane}\ns_nop 0")
        a(f"v_cndmask_b32 v{G}, v{G}, v{G+4}, vcc\nv_cndmask_b32 v{G}, v{G}, v{G+8}, s[{t+2}:{t+3}]\nv_cndmask_b32 v{G}, v{G}, v{G+12}, s[{t+4}:{t+5}]")
        a(f"s_mov_b32 s{t}, 0x42700000\nv_min_f32 v{G}, s{t}, v{G}\nv_max_f32 v{G}, -s{t}, v{G}\nv_mul_f32 v{G}, s{cL2E}, v{G}\nv_exp_f32 v{G}, v{G}")
        a(f"s_lshl_b32 s{t}, s{sRb64}, 8\ns_add_u32 s{t}, s{t}, {WS_G}\nv_add_f32 v{G+2}, 1.0, v{G}\nv_rcp_f32 v{G+2}, v{G+2}\nv_lshlrev_b32 v{G+1}, 2, v{vLane}\ns_add_u32 s{t+1}, s{t}, 8192")
        a(f"buffer_store_dword v{G}, v{G+1}, {WSR}, s{t} offen sc1\nbuffer_store_dword v{G+2}, v{G+1}, {WSR}, s{t+1} offen sc1")
        a.label(labE)
        self.consts("mish")
        for L in range(3):
            for s in range(4):
                e, o = ACC + 32*L + 4*s, ACC + 32*L + 16 + 4*s
                for l in self.mish_quad(e, e, TM + 8*(s & 1)): a(l)
                for l in self.mish_quad(o, e + 2, TM + 4 + 8*(s & 1)): a(l)
                if DIAG != 1: a(f"buffer_store_dwordx4 v[{e}:{e+3}], v{vL}, {WSR}, s{sAct+L} offen offset:{1024*s} {'' if DIAG == 2 else 'sc1'}")
            if L == 0 and EARLYQ:
                a("s_waitcnt vmcnt(4)")
                self.signal(sF2, vT)
            if LFLAG and L >= 1:
                a(f"s_waitcnt vmcnt({4 if L == 1 else 5})")
                self.signal(sF1, vT, 4*(L - 1))
        a(f"v_mov_b32 v0, v{vLane}")
        self.stamp(3)
        self.finish1([sF1] if EARLYQ else [sF1, sF2], strict=bool(STRICTP), late8=True)

    def compute_KV(self):
        a = self.a
        t = T0
        ACC, XB, WB = 0, 112, 128
        vX0, vX1, vK, vQ0, vL = 240, 241, 242, 243, 247
        vLane = 253
        sPq, sF2, sRec = 72, 73, 74
        a(f"v_mov_b32 v{vLane}, v0")
        a(f"v_and_b32 v1, 15, v0\nv_lshrrev_b32 v2, 4, v0\nv_lshrrev_b32 v3, 1, v1\nv_xor_b32 v3, v3, v2\nv_lshlrev_b32 v3, 4, v3\nv_lshl_add_u32 v3, v1, 7, v3")
        a(f"s_lshl_b32 s{t}, s{sWAVE}, 12\nv_add_u32 v{vX0}, s{t}, v3\nv_xor_b32 v{vX1}, 64, v{vX0}")
        a(f"v_lshrrev_b32 v3, 2, v0\nv_and_b32 v4, 3, v0\nv_lshlrev_b32 v4, 3, v4")
        a(f"v_mul_u32_u24 v5, 160, v3\nv_add_u32 v5, v5, v4\nv_add_u32 v{vK}, {WR}, v5")
        a(f"v_lshl_add_u32 v5, v3, 7, v4\nv_bfe_u32 v6, v0, 3, 2\nv_lshl_add_u32 v5, v6, 5, v5\nv_add_u32 v{vQ0}, {WR+10240}, v5")
        for u in range(1, 4): a(f"v_xor_b32 v{vQ0+u}, {32*u}, v{vQ0}")
        a(f"v_lshlrev_b32 v{vL}, 4, v0")
        a(f"s_lshr_b32 s{t}, s{sWAVE}, 1\ns_lshl1_add_u32 s{t+1}, s{sRB}, s{t}")
        a(f"s_lshl_b32 s{sF2}, s{t+1}, 7\ns_add_u32 s{sF2}, s{sF2}, {CNT_PQ}")
        a(f"s_mul_i32 s{t+1}, s{t+1}, 40\ns_lshl2_add_u32 s{t+1}, s{sGRP}, s{t+1}\ns_and_b32 s{t}, s{sWAVE}, 1\ns_lshl1_add_u32 s{t+1}, s{t+1}, s{t}\ns_lshl_b32 s{t+1}, s{t+1}, 10\ns_add_u32 s{sPq}, s{t+1}, {WS_PQ}")
        a(f"s_lshl2_add_u32 s{t}, s{sGRP}, s{sWAVE}\ns_lshl_b32 s{sF1}, s{t}, 7\ns_add_u32 s{sF1}, s{sF1}, {CNT_KV}")
        a(f"s_mul_i32 s{t}, s{t}, 1792\ns_add_u32 s{sRec}, s{t}, {WS_KVP}")
        a(f"s_mov_b32 s{cL2E}, 0x3fb8aa3b\ns_mov_b32 s{cL2E+1}, 0x3fb8aa3b")
        self.consts("phi")
        a("s_waitcnt lgkmcnt(0)")
        self.stamp(0)
        self.srd(SRD_WS, pWS, WS_SIZE)
        if TOUCH: self.touch(vLane, 248)
        if PF: self.prefetch(vL, 248)
        def reads(i):
            b = i & 1; so = (i % 3) * WSLOT
            xs = XR + ((i >> 1) % 3) * 16384
            r = [f"ds_read_b128 v[{XB+8*b+4*s}:{XB+8*b+4*s+3}], v{vX1 if i & 1 else vX0} offset:{xs + 2048*s}" for s in range(2)]
            for u in range(14):
                d = WB + 56*b + 4*u
                if u < 10: base, off, d2 = vK, 5120*(u // 5) + 32*(u % 5), 2560
                else: base, off, d2 = vQ0 + u - 10, 0, 2048
                r.append(f"ds_read_b64_tr_b16 v[{d}:{d+1}], v{base} offset:{so + off}")
                r.append(f"ds_read_b64_tr_b16 v[{d+2}:{d+3}], v{base} offset:{so + off + d2}")
            return r
        def mfmas(i):
            b = i & 1
            r = []
            order = list(range(14)) if i < 19 else [5, 6, 7, 8, 9, 0, 1, 2, 3, 4, 10, 11, 12, 13]
            for u in order:
                for s in range(2):
                    d = ACC + 8*u + 4*s
                    c = f"v[{d}:{d+3}]" if i > 0 else "0"
                    w, x = f"v[{WB+56*b+4*u}:{WB+56*b+4*u+3}]", f"v[{XB+8*b+4*s}:{XB+8*b+4*s+3}]"
                    r.append(f"v_mfma_f32_16x16x32_bf16 v[{d}:{d+3}], {x if u < 10 else w}, {w if u < 10 else x}, {c}")
            return r
        self.main_loop(reads, mfmas, {}, 24, [vK, vQ0, vQ0+1, vQ0+2, vQ0+3])
        TM = XB
        vEx = vX0
        a(f"s_mul_i32 s{t}, s{sWAVE}, 10240\nv_add_u32 v{vEx}, s{t}, v{vL}")
        for u in range(5, 10):
            e = ACC + 8*u
            a(f"v_cvt_pk_bf16_f32 v{e}, v{e}, v{e+1}\nv_cvt_pk_bf16_f32 v{e+1}, v{e+2}, v{e+3}\nv_cvt_pk_bf16_f32 v{e+2}, v{e+4}, v{e+5}\nv_cvt_pk_bf16_f32 v{e+3}, v{e+6}, v{e+7}")
            a(f"ds_write_b128 v{vEx}, v[{e}:{e+3}] offset:{XR + 1024*u}")
        for u in range(5):
            e = ACC + 8*u
            for l in self.phi_quad(e, e, TM): a(l)
            for l in self.phi_quad(e + 4, e + 2, TM + 4): a(l)
            a(f"ds_write_b128 v{vEx}, v[{e}:{e+3}] offset:{XR + 1024*u}")
        a(f"s_lshl_b32 s{t}, s{sWAVE}, 10\nv_add_u32 v{vEx}, s{t}, v{vL}")
        ONE = WB + 64
        for k in range(4): a(f"v_mov_b32 v{ONE+k}, 0x3f803f80")
        if K1LDS:
            lp, dn = a.newlabel("L_k1"), a.newlabel("L_k1d")
            a(f"v_mov_b32 v{vK}, {K1C}\nv_mov_b32 v{vQ0}, 1\ns_mov_b32 s{t}, 0\ns_waitcnt lgkmcnt(0)\ns_mov_b64 exec, 1\nds_add_u32 v{vK}, v{vQ0}\ns_mov_b64 exec, -1")
            a.label(lp)
            a(f"ds_read_b32 v{vQ0}, v{vK}\ns_add_u32 s{t}, s{t}, 1\ns_waitcnt lgkmcnt(0)\nv_readfirstlane_b32 s{t+1}, v{vQ0}\ns_cmp_ge_u32 s{t}, {SPIN}\ns_cbranch_scc1 {dn}\ns_cmp_lt_u32 s{t+1}, 4\ns_cbranch_scc1 {lp}")
            a.label(dn)
        else:
            a("s_waitcnt lgkmcnt(0)\ns_barrier")
        FR = WB
        for g in range(4):
            for j, off in enumerate((0, 1024, 5120, 6144)):
                a(f"ds_read_b128 v[{FR+16*g+4*j}:{FR+16*g+4*j+3}], v{vEx} offset:{XR + 10240*g + off}")
        AD = WB + 72
        dc, BG, ev, R = AD, AD + 2, AD + 3, AD + 8
        ad = [f"v_lshrrev_b32 v{dc}, 4, v{vLane}", f"v_and_b32 v{ev}, 15, v{vLane}", f"v_mov_b32 v{BG}, 0x10000", f"v_cmp_eq_u32 vcc, 0, v{ev}",
              f"v_mov_b32 v{R}, 320", f"v_subrev_u32 v{dc}, s{sWAVE}, v{dc}", f"v_cndmask_b32 v{ev+2}, v{BG}, v{R}, vcc", f"v_add_u32 v{dc+1}, 4, v{dc}",
              f"s_lshl_b32 s{t}, s{sWAVE}, 2", f"v_subrev_u32 v{ev}, s{t}, v{ev}", f"v_add_u32 v{ev+1}, 16, v{ev}",
              f"s_lshl_b32 s{t+4}, s{sWAVE}, 11", f"s_add_u32 s{t+4}, s{t+4}, {STG}"]
        for k in range(2):
            ad += [f"v_cmp_gt_u32 vcc, 5, v{dc+k}", f"v_cmp_gt_u32 s[{t+2}:{t+3}], 20, v{ev+k}", f"v_mul_u32_u24 v{dc+k}, 336, v{dc+k}", f"v_lshlrev_b32 v{ev+k}, 4, v{ev+k}",
                   f"v_cndmask_b32 v{dc+k}, v{BG}, v{dc+k}, vcc", f"v_cndmask_b32 v{ev+k}, v{BG}, v{ev+k}, s[{t+2}:{t+3}]"]
        for k in range(2):
            ad += [f"v_add_u32 v{R+3*k+b}, v{dc+k}, v{ev+b}" for b in range(3)]
            ad += [f"v_min_u32 v{R+3*k+b}, 1680, v{R+3*k+b}" for b in range(3)]
            ad += [f"v_add_u32 v{R+3*k+b}, s{t+4}, v{R+3*k+b}" for b in range(3)]
        ad += [f"v_lshlrev_b32 v{dc}, 2, v{vLane}", f"v_add_u32 v{vEx}, s{t+4}, v{dc}"]
        for l in ad[:20]: a(l)
        D = ACC
        mm = []
        for g in range(4):
            for k in range(2):
                for b in range(3):
                    d = D + 12*k + 4*b
                    B = f"v[{FR+16*g+8+4*b}:{FR+16*g+8+4*b+3}]" if b < 2 else f"v[{ONE}:{ONE+3}]"
                    mm.append(f"v_mfma_f32_16x16x32_bf16 v[{d}:{d+3}], v[{FR+16*g+4*k}:{FR+16*g+4*k+3}], {B}, {'0' if g == 0 else f'v[{d}:{d+3}]'}")
        a("s_waitcnt lgkmcnt(0)")
        for l in interleave(mm, ad[20:], 0, 16): a(l)
        def qmath(u):
            e = ACC + 8*u
            return self.phi_quad(e, e, TM) + self.phi_quad(e + 4, e + 2, TM + 4)
        q10 = qmath(10)
        for l in q10[:8]: a(l)
        for j in range(6): a(f"ds_write_b128 v{R+j}, v[{D+4*j}:{D+4*j+3}]")
        for l in q10[8:20]: a(l)
        a("s_waitcnt lgkmcnt(0)")
        for j in range(7): a(f"ds_read_b32 v{j}, v{vEx} offset:{256*j}")
        for l in q10[20:]: a(l)
        a("s_waitcnt lgkmcnt(0)")
        for j in range(7):
            if j == 6: a("s_mov_b32 exec_hi, 15")
            a(f"buffer_atomic_add_f32 v{j}, v{dc}, {WSR}, s{sRec} offen offset:{256*j} sc1")
        a("s_mov_b32 exec_hi, -1")
        a(f"s_add_u32 s{t}, s{sPq}, 4096")
        def qst(u):
            e = ACC + 8*(10 + u)
            a(f"buffer_store_dwordx4 v[{e}:{e+3}], v{vL}, {WSR}, s{sPq if u < 2 else t} offen offset:{2048*(u & 1)} sc1")
        qst(0)
        for u in (1, 2, 3):
            for l in qmath(10 + u): a(l)
            qst(u)
        a(f"v_mov_b32 v0, v{vLane}")
        self.stamp(3)
        self.finish1([sF1, sF2], strict=True)

    def setup2(self):
        a = self.a
        t = T0
        if MAP2 == "x2":
            a(f"s_bfe_u32 s{t+2}, s{sWG}, 0x20001\ns_bfe_u32 s{t+3}, s{sWG}, 0x30003\ns_lshl3_add_u32 s{sR64}, s{t+2}, s{t+3}")
            a(f"s_and_b32 s{t+2}, s{sWG}, 1\ns_lshr_b32 s{t+3}, s{sWG}, 6\ns_lshl2_add_u32 s{sC}, s{t+2}, s{t+3}")
        else:
            a(f"s_and_b32 s{t+2}, s{sWG}, 7\ns_bfe_u32 s{t+3}, s{sWG}, 0x20003\ns_lshl2_add_u32 s{sR64}, s{t+2}, s{t+3}\ns_lshr_b32 s{sC}, s{sWG}, 5")
        if FAKE == 1: a(f"s_and_b32 s{sR64}, s{sWG}, 7\ns_lshl_b32 s{sR64}, s{sR64}, 2\ns_mov_b32 s{sC}, 0")
        if FAKE == 2: a(f"s_mov_b32 s{sC}, 0")
        if FAKE == 3: a(f"s_and_b32 s{sR64}, s{sWG}, 7\ns_lshl_b32 s{sR64}, s{sR64}, 2")
        a(f"v_lshlrev_b32 v{vL16}, 4, v0\nv_add_u32 v{vL16b}, 4096, v{vL16}")
        if ROT2 == "none":
            a(f"s_mov_b32 s{t}, 0")
        elif ROT2 == "xor":
            a(f"s_lshr_b32 s{t}, s{sWG}, 3\ns_lshr_b32 s{t+1}, s{sWG}, 6\ns_xor_b32 s{t}, s{t}, s{t+1}\ns_and_b32 s{t}, s{t}, 1")
        elif ROT2 == "two":
            a(f"s_lshr_b32 s{t}, s{sWG}, 3\ns_lshr_b32 s{t+1}, s{sWG}, {6 if MAP2 == 'x2' else 5}\ns_xor_b32 s{t}, s{t}, s{t+1}\ns_and_b32 s{t}, s{t}, 1\ns_mul_i32 s{t}, s{t}, 3")
        elif MAP2 == "x2":
            a(f"s_and_b32 s{t}, s{sC}, 3\ns_mul_i32 s{t}, s{t}, 3\ns_lshr_b32 s{t}, s{t}, 1")
        else:
            a(f"s_mul_i32 s{t}, s{sC}, 3\ns_lshr_b32 s{t}, s{t}, 2")
        a(f"s_mul_i32 s{t+1}, s{sWAVE}, 6")
        a(f"s_mul_i32 s{t+2}, s{sC}, {48*5120}\ns_add_u32 s{t+2}, s{t+2}, {WS_W2R}")
        a(f"s_mul_i32 s{t+3}, s{sR64}, {48*4096}\ns_add_u32 s{t+3}, s{t+3}, {WS_ACT}")
        for i in range(6):
            a(f"s_add_u32 s{t+4}, s{t+1}, s{t}\ns_mul_i32 s{sB0+i}, s{t+4}, 5120\ns_add_u32 s{sB0+i}, s{sB0+i}, s{t+2}")
            a(f"s_lshl_b32 s{sA0+i}, s{t+4}, 12\ns_add_u32 s{sA0+i}, s{sA0+i}, s{t+3}")
            if i < 5 and ROT2 == "xor": a(f"s_xor_b32 s{t}, s{t}, {i ^ (i + 1)}")
            elif i < 5: a(f"s_add_u32 s{t}, s{t}, 1\ns_cmp_eq_u32 s{t}, 6\ns_cselect_b32 s{t}, 0, s{t}")
        a(f"s_lshl3_add_u32 s{sFa}, s{sR64}, s{sWAVE}\ns_lshl_b32 s{sFa}, s{sFa}, 7\ns_lshl_b32 s{sFq}, s{sR64}, 7\ns_add_u32 s{sFq}, s{sFq}, {CNT_PQ}")
        a(f"s_mul_i32 s{sPQb}, s{sR64}, 40\ns_mul_i32 s{t}, s{sWAVE}, 5\ns_add_u32 s{sPQb}, s{sPQb}, s{t}\ns_lshl_b32 s{sPQb}, s{sPQb}, 11\ns_add_u32 s{sPQb}, s{sPQb}, {WS_PQ}")
        a(f"s_lshl3_add_u32 s{sMb}, s{sC}, s{sWAVE}\ns_mul_i32 s{sMb}, s{sMb}, 12800\ns_add_u32 s{sMb}, s{sMb}, {WS_WOR}")
        a(f"s_mul_i32 s{sKv}, s{sWAVE}, 7168\ns_add_u32 s{sKv}, s{sKv}, {WS_KVP}\ns_lshl_b32 s{sFk}, s{sWAVE}, 9\ns_add_u32 s{sFk}, s{sFk}, {CNT_KV}")

    def preload_b(self, n0, n1, th=0):
        for n in range(n0, n1):
            if th and n < NTH: self.a(f"s_waitcnt vmcnt({th - 1})")
            i, jn = divmod(n, 5)
            d = BS + 20*i + 4*jn
            self.a(f"buffer_load_dwordx4 v[{d}:{d+3}], v{vL16 if jn < 4 else vL16b}, {WSR}, s{sB0+i} offen offset:{1024*jn if jn < 4 else 0} sc1")

    def stage_b(self):
        a = self.a
        t = T0
        a(f"s_mul_i32 s{t}, s{sT}, 20480\ns_add_u32 s{t}, s{t}, {BL}")
        for i in range(2, NB):
            a(f"s_sub_u32 s{t+1}, s{sB0+i}, 122880")
            for jn in range(5):
                if jn in (0, 4):
                    a(f"s_add_u32 m0, s{t}, {5120*(i-2) + 1024*jn}")
                    a(f"s_add_u32 s{t+1}, s{t+1}, 4096" if jn else "s_nop 0")
                if TH and NB*5 + 5*(i - 2) + jn < NTH: a(f"s_waitcnt vmcnt({TH - 1})")
                a(f"buffer_load_dwordx4 v{vL16}, {WSR}, s{t+1} offen offset:{1024*(jn % 4)} sc1 lds")
        a("s_waitcnt vmcnt(0)")

    def gemm2(self):
        a = self.a
        t = T0
        seq = []
        LN = 255
        def ldl(dst, n, v, so, off, tag):
            seq.append(tag)
            return [f"buffer_load_dword{ {1: '', 2: 'x2', 4: 'x4'}[n] } {vr(dst, n)}, v{v}, {WSR}, s{so} offen offset:{off} sc1"]
        def emit(L):
            for l in L: a(l)
        def wait(tag):
            last = max(n for n, x in enumerate(seq) if x == tag)
            a(f"s_waitcnt vmcnt({len(seq) - 1 - last})")
        def act(i):
            return sum((ldl(AB + 16*(i % 3) + 4*st, 4, vL16, sA0 + i, 1024*st, f"act{i}") for st in range(4)), [])
        def check(soff, target, sleep=None):
            ok = a.newlabel("L_ok")
            a(f"v_cmp_le_u32 vcc, {target}, v{vP+1}\ns_nop 1\ns_cmp_eq_u64 vcc, -1\ns_cbranch_scc1 {ok}")
            self.poll(soff, target, vP, vP + 1, sleep=sleep)
            a.label(ok)
        def dma(so, n, lds, tag):
            r = []
            for k in range(n):
                pre = ""
                if k % 4 == 0:
                    pre = f"s_add_u32 m0, s{sLB}, {lds + 1024*k}\n" + (f"s_add_u32 s{so}, s{so}, 4096\n" if k else "s_nop 0\n")
                r.append(pre + f"buffer_load_dwordx4 v{vL16}, {WSR}, s{so} offen offset:{1024*(k % 4)} sc1 lds"); seq.append(tag)
            return r
        def pq(base, sp):
            return sum((ldl(base + 20*sp + 4*tt, 4, vL16, (sPQb, t, t + 1)[tt >> 1], 2048*(tt & 1) + 1024*sp, f"pq{sp}") for tt in range(5)), [])
        def gld(va):
            return sum((ldl(vG + st, 1, va, t + 3, 64*st, "g") for st in range(4)), [])
        def lateb(i=5):
            if i < NB: return []
            r = sum((ldl(BS + 20*i + 4*jn, 4, vL16, sB0 + i, 1024*jn, f"act{i}") for jn in range(4)), [])
            return r + [f"s_add_u32 s{sB0+i}, s{sB0+i}, 4096"] + ldl(BS + 20*i + 16, 4, vL16, sB0 + i, 0, f"act{i}")
        chunks = [(0, 0), (0, 1), (1, 0), (1, 1), (1, 2), (2, 1), (2, 2), (2, 3), (3, 2), (3, 3), (4, 3), (3, 4), (4, 4)] + [("z", tt) for tt in range(5)]
        slot = dict(zip(chunks, [0, 1, 2, 3, 4, 7, 8, 9, 10, 11, 13, 14, 15, 16, 17, 18, 19, 20]))
        X, K0 = 24, 0
        ad = [f"v_and_b32 v{X}, 15, v{LN}", f"v_lshrrev_b32 v{X+1}, 4, v{LN}", f"s_add_u32 s{t+2}, s{sLB}, 13312", f"v_mul_u32_u24 v{X+3}, 336, v{X+1}", f"v_add_u32 v{X+3}, s{t+2}, v{X+3}",
              f"v_add_u32 v{X+18}, s{sLB}, v{vL16}", f"s_add_u32 s{t+2}, s{t+2}, 7056", f"v_mov_b32 v{X+13}, s{t+2}"] + [f"v_subrev_u32 v{X+13+k}, {1344*k}, v{X+13}" for k in range(1, 5)]
        for te in (0, 1, 2, 3, 4, "z"):
            if te == "z":
                ad += [f"v_and_b32 v{X+4}, 3, v{LN}", f"v_mul_u32_u24 v{X+5}, 112, v{X+4}", f"v_add_u32 v{X+6}, 320, v{X+3}", f"v_add_u32 v{X+5}, v{X+5}, v{X+6}"]
            else:
                ad += [f"v_add_u32 v{X+6}, {16*te}, v{X}", f"v_mul_u32_u24 v{X+4}, 3277, v{X+6}", f"v_lshrrev_b32 v{X+4}, 16, v{X+4}",
                       f"v_lshl_add_u32 v{X+6}, v{X+6}, 4, v{X+3}", f"v_mad_i32_i24 v{X+5}, v{X+4}, s{sN208}, v{X+6}"]
            ad += [f"v_mad_i32_i24 v{X+4}, v{X+4}, -5, v{X+1}"]
            mine = [(j, c) for j, c in enumerate(chunks) if c[0] == te]
            ad += [f"v_add_u32 v{X+8+n}, {4*c[1]}, v{X+4}" for n, (j, c) in enumerate(mine)]
            ad += [f"v_cmp_gt_u32 s[{t+4+2*n}:{t+5+2*n}], 5, v{X+8+n}" for n, (j, c) in enumerate(mine)]
            ad += ["s_nop 0"]
            ad += [f"v_cndmask_b32 v{K0+j}, v{X+13+c[1]}, v{X+5}, s[{t+4+2*n}:{t+5+2*n}]" for n, (j, c) in enumerate(mine)]
        mq = [t + 4, t + 6, t + 8]
        consts = [f"s_mov_b32 s{cE}, 0x358637bd", f"s_mov_b32 s{mq[0]}, 0xffff", f"s_mov_b32 s{mq[0]+1}, 0", f"s_mov_b32 s{mq[1]}, -1", f"s_mov_b32 s{mq[1]+1}, 0",
                  f"s_mov_b32 s{mq[2]}, -1", f"s_mov_b32 s{mq[2]+1}, 0xffff"]
        swaps = lambda R: [f"v_swap_b32 v{R+8*p+2+k}, v{R+8*p+4+k}" for p in range(2) for k in range(2)]
        K32 = lambda d, A, B, c: f"v_mfma_f32_16x16x32_bf16 v[{d}:{d+3}], v[{A}:{A+3}], v[{B}:{B+3}], {c}"
        K16 = lambda d, A, B: f"v_mfma_f32_16x16x16_bf16 v[{d}:{d+3}], v[{A}:{A+1}], v[{B}:{B+1}], v[{d}:{d+3}]"
        acc = lambda d: f"v[{d}:{d+3}]"
        def fqf(base):
            def fq(st, tt):
                R = base + 20*(st >> 1)
                return R + 8*(tt >> 1) + 4*(st & 1) + 2*(tt & 1) if tt < 4 else R + 16 + 2*(st & 1)
            return fq
        def gather(KAr, raw, KP, PQb, first):
            for j, c in enumerate(chunks):
                a(f"ds_read_b128 v[{raw(j)}:{raw(j)+3}], v{KAr+j} offset:{1344*c[1]}")
            emit(swaps(PQb) + swaps(PQb + 20))
            for j, c in enumerate(chunks):
                if j in (0, first): a(f"s_waitcnt lgkmcnt({18 - first if j == 0 else 0})")
                d, r = KP + 2*slot[c], raw(j)
                a(f"v_cvt_pk_bf16_f32 v{d}, v{r}, v{r+1}\nv_cvt_pk_bf16_f32 v{d+1}, v{r+2}, v{r+3}")
            for z in (5, 6, 12): a(f"v_mov_b32 v{KP+2*z}, 0\nv_mov_b32 v{KP+2*z+1}, 0")
        def scales(st, DN, SC):
            r = ([] if LATEORD else [f"v_add_f32 v{DN+k}, s{cE}, v{DN+k}" for k in range(4)]) + [f"v_rcp_f32 v{DN+k}, v{DN+k}" for k in range(4)]
            r += [f"v_mul_f32 v{DN+k}, v{vG+st}, v{DN+k}" for k in range(4)]
            return r + [f"v_cndmask_b32 v{SC[k]}, v{DN+k+1}, v{DN+k}, s[{mq[k]}:{mq[k]+1}]" for k in range(3)]
        def vtile(st, tt, o, DN, SC, fq):
            sc = (DN, SC[0], SC[1], SC[2], DN + 3)[tt]
            return [f"v_mul_f32 v{o+k}, v{sc}, v{o+k}" for k in range(4)] + [f"v_cvt_pk_bf16_f32 v{fq(st,tt)}, v{o}, v{o+1}", f"v_cvt_pk_bf16_f32 v{fq(st,tt)+1}, v{o+2}, v{o+3}"]
        def mlp(i, zero, sts=None):
            order = [(jn, st) for jn in range(5) for st in range(4)] if sts is None else [(jn, st) for st in sts for jn in range(5)]
            return [K32(20*st + 4*jn, BS + 20*i + 4*jn, AB + 16*(i % 3) + 4*st, "0" if zero else acc(20*st + 4*jn)) for jn, st in order]
        TA, RA, vRW = 224, 170, vP
        rw = [f"v_and_b32 v{TA}, 15, v{LN}", f"v_mul_u32_u24 v{TA}, 160, v{TA}", f"v_bfe_u32 v{TA+1}, v{LN}, 5, 1", f"v_bfe_u32 v{vRW}, v{LN}, 2, 1", f"v_xor_b32 v{TA+1}, v{TA+1}, v{vRW}",
              f"v_lshl_add_u32 v{TA}, v{TA+1}, 4, v{TA}", f"v_bfe_u32 v{TA+1}, v{LN}, 4, 1", f"v_mul_u32_u24 v{TA+1}, 10240, v{TA+1}", f"v_add3_u32 v{vRW}, v{TA}, v{TA+1}, s{sLB}"]
        wrl = lambda st: [f"ds_write_b128 v{vRW}, v[{20*st+4*jn}:{20*st+4*jn+3}] offset:{2560*st + 32*jn}" for jn in range(5)]
        rd = [f"s_mul_i32 s{t}, s{sWAVE}, 80", f"v_add_u32 v{RA}, s{t}, v{LN}", f"v_add_u32 v{RA+1}, 64, v{RA}",
              f"s_lshl_b32 s{t+2}, s{sR64}, 8", f"s_add_u32 s{t+2}, s{t+2}, {WS_G + 8192}"]
        for k in range(2):
            rd += [f"v_mul_u32_u24 v{RA+2}, 6554, v{RA+k}", f"v_lshrrev_b32 v{RA+2}, 16, v{RA+2}", f"v_mad_i32_i24 v{RA+3}, v{RA+2}, -10, v{RA+k}", f"v_lshlrev_b32 v{TA+2+k}, 2, v{RA+2}",
                   f"buffer_load_dword v{TA+2+k}, v{TA+2+k}, {WSR}, s{t+2} offen sc1",
                   f"v_bfe_u32 v{RA+6}, v{RA+2}, 2, 1", f"v_xor_b32 v{RA+k}, v{RA+k}, v{RA+6}",
                   f"v_mul_u32_u24 v{RA+2}, 1280, v{RA+2}", f"v_lshl_add_u32 v{RA+4+k}, v{RA+3}, 4, v{RA+2}", f"v_lshlrev_b32 v{RA+k}, 4, v{RA+k}"]
        rd += [f"v_add_u32 v{RA+6}, 61440, v{RA}", f"v_add_u32 v{RA+7}, 61440, v{RA+1}", f"v_add_u32 v{RA+8}, 122880, v{RA}", f"v_add_u32 v{RA+9}, 122880, v{RA+1}"]
        rd += [f"s_mov_b32 s{SRD_M}, s{pOUT}", f"s_mov_b32 s{SRD_M+1}, s{pOUT+1}", f"s_mov_b32 s{SRD_M+2}, {2048*640*2}", f"s_mov_b32 s{SRD_M+3}, 0x20000",
               f"s_mul_i32 s{t}, s{sR64}, 81920", f"s_mul_i32 s{t+1}, s{sC}, 160", f"s_add_u32 s{t}, s{t}, s{t+1}"]
        def flagvec(vt, with_act):
            a(f"v_lshlrev_b32 v{vP}, 2, v{LN}\nv_add_u32 v{vP}, s{sFk}, v{vP}\nv_mov_b32 v{vt}, 1\nv_cmp_le_u32 vcc, 4, v{LN}\nv_mov_b32 v{vt+1}, s{sFq}\ns_add_u32 s{t+2}, s{sFa}, 8")
            a(f"v_cndmask_b32 v{vP}, v{vP}, v{vt+1}, vcc")
            if with_act:
                a(f"v_cmp_lt_u32 vcc, 4, v{LN}\nv_mov_b32 v{vt+1}, s{t+2}\ns_nop 0\nv_cndmask_b32 v{vP}, v{vP}, v{vt+1}, vcc\nv_cndmask_b32 v{vt}, v{vt}, 2, vcc")

        a(f"s_setprio 0\nv_lshrrev_b32 v{LN}, 4, v{vL16}")
        a(f"s_xor_b32 s{sLB}, s{sWAVE}, 4\ns_mul_i32 s{sLB}, s{sLB}, 20480\ns_mov_b32 s{sN208}, -208")
        a(f"s_lshl_b32 s{t+3}, s{sR64}, 8\ns_add_u32 s{t+3}, s{t+3}, {WS_G}\ns_add_u32 s{t}, s{sPQb}, 4096\ns_add_u32 s{t+1}, s{sPQb}, 8192")
        if LFLAG: a(f"v_and_b32 v{vP}, 1, v{LN}\nv_lshlrev_b32 v{vP}, 2, v{vP}")
        else: a(f"v_mov_b32 v{vP}, 0")
        if ADPRE: emit(ad)
        if not NOE1: a("s_barrier")
        self.stamp(4)
        apoll = f"v_mov_b32 v{vP+1}, 0\ns_mov_b64 exec, 1\nbuffer_atomic_add v{vP+1}, v{vP}, {WSR}, s{sFa} offen sc0 sc1\ns_mov_b64 exec, -1"
        if ATP: a(apoll)
        elif WOPOS != "pre": a(f"buffer_load_dword v{vP+1}, v{vP}, {WSR}, s{sFa} offen sc1")
        self.pickup()
        if WOPOS == "pre":
            a("s_waitcnt lgkmcnt(0)")
            emit(dma(sMb, 13, 0, "wo"))
        if not ADPRE: emit(ad)
        a("s_waitcnt lgkmcnt(0)")
        for k in range(5): a(f"ds_write_b128 v{X+18}, v[{K0+4*k}:{K0+4*k+3}] offset:{13312 + 1024*k}")
        if ATP:
            lp, dn = a.newlabel("L_ap"), a.newlabel("L_apd")
            a(f"s_mov_b32 s{t+15}, 0")
            a.label(lp)
            a(f"s_waitcnt vmcnt(0)\nv_readfirstlane_b32 s{t+14}, v{vP+1}\ns_add_u32 s{t+15}, s{t+15}, 1\ns_cmp_ge_u32 s{t+14}, 2\ns_cbranch_scc1 {dn}")
            a(f"s_cmp_ge_u32 s{t+15}, {SPIN}\ns_cbranch_scc1 {dn}\ns_sleep {ATP}\n{apoll}\ns_branch {lp}")
            a.label(dn)
        elif WOPOS == "pre": self.poll(f"s{sFa}", 2, vP, vP + 1)
        else:
            a("s_waitcnt vmcnt(0)")
            if LFLAG == 1:
                sk = a.newlabel("L_sig")
                a(f"s_cmp_ge_u32 s{sWAVE}, 4\ns_cbranch_scc1 {sk}")
                self.stamp(5)
                self.signal(sF1, 46); self.signal(32, 46)
                a.label(sk)
            check(f"s{sFa}", 2)
        self.stamp(6)
        PR = {"a": {-1: 3, 2: 2, 5: 1, 6: 0}, "b": {-1: 3, 1: 2, 3: 1, 6: 0}, "c": {-1: 1, 5: 0}, "d": {-1: 2, 5: 1, 7: 0}, "e": {-1: 3, 3: 2, 6: 1, 8: 0}}.get(PRIO, {})
        prio = lambda k: a(f"s_setprio {PR[k]}") if k in PR else None
        prio(-1)
        emit(act(0))
        a(f"v_lshlrev_b32 v{vP}, 7, v{LN}\nv_add_u32 v{vP}, s{sFk}, v{vP}\nv_cmp_le_u32 vcc, 4, v{LN}\nv_mov_b32 v{vG+1}, s{sFq}\nv_mov_b32 v{vG}, 16")
        a(f"v_cndmask_b32 v{vP}, v{vP}, v{vG+1}, vcc\nv_cndmask_b32 v{vG}, v{vG}, 25, vcc")
        if LFLAG: a(f"v_cmp_lt_u32 vcc, 4, v{LN}\ns_add_u32 s{t+2}, s{sFa}, 8\nv_mov_b32 v{vG+1}, s{t+2}\nv_cndmask_b32 v{vP}, v{vP}, v{vG+1}, vcc\nv_cndmask_b32 v{vG}, v{vG}, 2, vcc")
        fv = lambda: (a(f"buffer_load_dword v{vP+1}, v{vP}, {WSR}, 0 offen sc1"), seq.append("fv"))
        if FVAT < 0: fv()
        emit(act(1) + act(2))
        fill = (lambda: dma(sMb, 13, 0, "wo")) if WOPOS == "s0" else (lambda: lateb(3))
        for i in range(5):
            prio(i)
            wait(f"act{i}")
            if TAILDBG == 2 and i < 4: self.stamp((2, 3, 5, 7)[i], "tail")
            emit(interleave(mlp(i, i == 0), fill() if fill else []))
            fill = None
            if i == 0 and WOPOS == "s1": fill = lambda: dma(sMb, 13, 0, "wo")
            if i == 3 and WOPOS == "s4": fill = lambda: dma(sMb, 13, 0, "wo")
            if i == FVAT: fv()
            if i < 2 and not (LFLAG and i == 1): emit(act(i + 3))
            if i == PQAT:
                wait("fv")
                check("0", f"v{vG}", 8)
                if TAILDBG == 2: self.stamp(4, "tail")
                if LFLAG: emit(act(4))
                a(f"v_and_b32 v{vP+1}, 15, v{LN}\nv_lshlrev_b32 v{vP+1}, 2, v{vP+1}")
                f1 = lambda: lateb(4) + pq(PQR, 0) + pq(PQR, 1) + gld(vP + 1)
                if FILLI and i < 2: fill = f1
                else: emit(f1())
            if i == 2:
                a(f"v_add_u32 v{KA+19}, s{sLB}, v{vL16}")
                for k in range(5): a(f"ds_read_b128 v[{KA+4*k}:{KA+4*k+3}], v{KA+19} offset:{13312 + 1024*k}")
                a("s_waitcnt lgkmcnt(0)")
                f2 = lambda: dma(sKv, 7, 13312, "kv") + (act(5) + lateb() if WOPOS != "x" else []) + (dma(sMb, 13, 0, "wo") if WOPOS == "s3" else [])
                if FILLI: fill = f2
                else: emit(f2())
        self.stamp(7)
        prio(5)
        emit(consts)
        KP = 120
        wait("kv")
        self.stamp(8)
        gather(KA, lambda j: 200 + 4*j if j < 8 else 140 + 4*(j - 8), KP, PQR, 8)
        Oset = {1: ([200, 204, 208, 212, 216], 220), 0: ([162, 166, 170, 174, 224], 228)}
        SC = [178, 179, vP + 1]
        fq = fqf(PQR)
        S = lambda k: KP + 2*k
        def Xb(st):
            O, DN = Oset[st & 1]
            p0, p1, ps = fq(st, 0), fq(st, 2), fq(st, 4)
            return [K32(DN, S(16), p0, acc(196) if LATEORD else "0"), K32(O[3], S(10), p1, "0"), K32(O[4], S(12), p1, "0"), K32(DN, S(18), p1, acc(DN)),
                    K32(O[0], S(0), p0, "0"), K32(O[1], S(2), p0, "0"), K32(O[2], S(6), p0, "0"), K32(O[1], S(4), p1, acc(O[1])), K32(O[2], S(8), p1, acc(O[2])),
                    "s_nop 0", K16(DN, S(20), ps), K16(O[3], S(14), ps), K16(O[4], S(15), ps)]
        def Vb(st):
            O, DN = Oset[st & 1]
            return scales(st, DN, SC) + sum((vtile(st, tt, O[tt], DN, SC, fq) for tt in range(5)), [])
        def Yb(st):
            r = []
            for p in range(2):
                r += [K32(20*st + 4*jn, MR + 4*(2*jn + p), fq(st, 2*p), acc(20*st + 4*jn)) for jn in range(5)]
            return r + ["s_nop 1"] + [K16(20*st + 4*jn, MR + 40 + 2*jn, fq(st, 4)) for jn in range(5)]
        a("s_nop 1")
        late = (act(5) + lateb() + dma(sMb, 13, 0, "wo")) if WOPOS == "x" else []
        if LATEORD:
            assert NB == 5 and WOPOS == "x"
            lastb = late[8:10]; late = late[:8] + late[10:]
            i5 = seq.index("act5") + 8; seq.pop(i5); seq.append("act5")
            for k in range(4): a(f"v_mov_b32 v{196+k}, 0x358637bd")
            a("s_nop 1")
        cuts = [0] + [len(late)*c//100 for c in XSPLIT] + [len(late)]
        emit(interleave(Xb(0), late[cuts[0]:cuts[1]]))
        for st in range(1, 4):
            x = Xb(st)
            emit(interleave(x[:6], late[cuts[st]:cuts[st+1]]) + (lastb if LATEORD and st == 3 else []) + interleave(x[6:], Vb(st - 1)))
        a(f"v_add_u32 v{TA}, s{sLB}, v{vL16}\nv_lshlrev_b32 v{TA+1}, 3, v{LN}\nv_add_u32 v{TA+1}, s{sLB}, v{TA+1}")
        wor = [f"ds_read_b128 v[{MR+4*f}:{MR+4*f+3}], v{TA} offset:{1024*f}" for f in range(10)]
        wor += [f"ds_read_b64 v[{MR+40+2*jn}:{MR+41+2*jn}], v{TA+1} offset:{10240 + 512*jn}" for jn in range(5)]
        prio(6)
        if WOPOS in ("s3", "s4", "x"):
            wait("act5")
            emit(interleave(mlp(5, False), Vb(3)))
            a("s_waitcnt vmcnt(0)")
            emit(wor + rw)
        else:
            emit(wor)
            wait("act5")
            emit(interleave(mlp(5, False), Vb(3) + rw))
        a("s_waitcnt lgkmcnt(0)")
        if RED == 2:
            def aset(B, T, sbase):
                return [f"v_add_u32 v{B}, {sbase}, v{LN}", f"v_mul_u32_u24 v{T}, 6554, v{B}", f"v_lshrrev_b32 v{T}, 16, v{T}", f"v_mad_i32_i24 v{T+1}, v{T}, -10, v{B}",
                        f"v_lshlrev_b32 v{B+4}, 2, v{T}", f"buffer_load_dword v{B+4}, v{B+4}, {WSR}, s{t+2} offen sc1",
                        f"v_bfe_u32 v{B+1}, v{T}, 2, 1", f"v_xor_b32 v{B}, v{B}, v{B+1}", f"v_mul_u32_u24 v{T}, 1280, v{T}", f"v_lshl_add_u32 v{B+3}, v{T+1}, 4, v{T}",
                        f"v_lshlrev_b32 v{B}, 4, v{B}", f"v_add_u32 v{B+1}, 61440, v{B}", f"v_add_u32 v{B+2}, 122880, v{B}"]
            def rsum(sets):
                items = [(B, m, D, w) for B, m, D in sets for w in range(8)]
                def rdp(n):
                    B, m, D, w = items[n]
                    r = [f"ds_read_b128 v[{D+8*w+4*par}:{D+8*w+4*par+3}], v{B + w // 3} offset:{20480*(w % 3) + 10240*par}" for par in range(2)]
                    return r if m is None else [m] + r + ["s_mov_b64 exec, -1"]
                AH = 6
                for n in range(AH): emit(rdp(n))
                for n, (B, m, D, w) in enumerate(items):
                    if n + AH < len(items): emit(rdp(n + AH))
                    if w == 0: continue
                    a(f"s_waitcnt lgkmcnt({2*min(AH, len(items) - 1 - n)})")
                    for j in range(4): a(f"v_pk_add_f32 v[{D+2*j}:{D+2*j+1}], v[{D+2*j}:{D+2*j+1}], v[{D+8*w+2*j}:{D+8*w+2*j+1}]")
                    if w == 7:
                        if n == 7 and len(sets) == 2: a("s_waitcnt vmcnt(0)")
                        for j in range(8): a(f"v_mul_f32 v{D+j}, v{B+4}, v{D+j}")
                        for j in range(4): a(f"v_cvt_pk_bf16_f32 v{D+j}, v{D+2*j}, v{D+2*j+1}")
                        if m: a(m)
                        a(f"buffer_store_dwordx4 v[{D}:{D+3}], v{B+3}, s[{SRD_M}:{SRD_M+3}], s{t} offen {OUTFL}")
                        if m: a("s_mov_b64 exec, -1")
            r2 = [f"s_mul_i32 s{t+3}, s{sWAVE}, 40", f"s_add_u32 s{t+3}, s{t+3}, 320"] + rd[3:5] + aset(170, 175, f"s{t+3}") + rd[-7:]
            emit(interleave(Yb(0), r2))
            prio(7)
            emit(interleave(Yb(1), wrl(0), 6))
            prio(8)
            emit(interleave(Yb(2), wrl(1), 6))
            lo, lj = a.newlabel("L_ro"), a.newlabel("L_rj")
            a(f"s_cmp_lt_u32 s{sWAVE}, 4\ns_cbranch_scc1 {lo}")
            y3 = Yb(3)
            emit(y3[:4]); a("s_waitcnt lgkmcnt(0)\ns_barrier"); emit(interleave(y3[4:], wrl(2), 2))
            a("s_nop 4")
            emit(wrl(3))
            a(f"s_waitcnt vmcnt(0)\ns_branch {lj}")
            a.label(lo)
            emit(interleave(Yb(3), [f"s_mul_i32 s{t+3}, s{sWAVE}, 80"] + aset(200, 210, f"s{t+3}")[:5] + wrl(2) + aset(200, 210, "0")[5:]))
            a(f"s_add_u32 s{t+3}, s{t+3}, 64")
            emit(aset(205, 210, f"s{t+3}")[:8] + wrl(3) + aset(205, 210, "0")[8:])
            a("s_waitcnt lgkmcnt(0)\ns_barrier")
            rsum([(200, None, 0), (205, "s_mov_b64 exec, 0xffff", 64)])
            a.label(lj)
            a("s_waitcnt lgkmcnt(0)\ns_barrier")
            self.stamp(9)
            rsum([(170, "s_mov_b32 exec_hi, 0xff", 128 - 48)])
            return
        emit(interleave(Yb(0), rd[:25]))
        prio(7)
        emit(interleave(Yb(1), rd[25:] + wrl(0), 2))
        prio(8)
        emit(interleave(Yb(2), wrl(1), 6))
        emit(interleave(Yb(3), wrl(2), 6))
        a("s_nop 4")
        emit(wrl(3))
        a("s_waitcnt lgkmcnt(0)\ns_barrier")
        self.stamp(9)
        if RED == 0:
            for k in range(2):
                if k == 1: a("s_mov_b64 exec, 0xffff")
                R = 64*k
                for w in range(8):
                    for par in range(2):
                        base = [RA + k, RA + 6 + k, RA + 8 + k][w // 3]
                        a(f"ds_read_b128 v[{R+8*w+4*par}:{R+8*w+4*par+3}], v{base} offset:{20480*(w % 3) + 10240*par}")
            a("s_mov_b64 exec, -1")
            for k in range(2):
                R = 64*k
                a(f"s_waitcnt lgkmcnt({15 if k == 0 else 0})")
                for pairs in (((0, 4), (1, 5), (2, 6), (3, 7)), ((0, 2), (1, 3)), ((0, 1),)):
                    for x, y in pairs:
                        for j in range(4):
                            a(f"v_pk_add_f32 v[{R+8*x+2*j}:{R+8*x+2*j+1}], v[{R+8*x+2*j}:{R+8*x+2*j+1}], v[{R+8*y+2*j}:{R+8*y+2*j+1}]")
                if k == 0: a("s_waitcnt vmcnt(0)")
                for j in range(8): a(f"v_mul_f32 v{R+j}, v{TA+2+k}, v{R+j}")
                for j in range(4): a(f"v_cvt_pk_bf16_f32 v{R+j}, v{R+2*j}, v{R+2*j+1}")
                if k == 1: a("s_mov_b64 exec, 0xffff")
                a(f"buffer_store_dwordx4 v[{R}:{R+3}], v{RA+4+k}, s[{SRD_M}:{SRD_M+3}], s{t} offen {OUTFL}")
            a("s_mov_b64 exec, -1")


        else:
            items = [(k, w) for k in range(2) for w in range(8)]
            def rdp(n):
                k, w = items[n]
                base = [RA + k, RA + 6 + k, RA + 8 + k][w // 3]
                r = [f"ds_read_b128 v[{8*n+4*par}:{8*n+4*par+3}], v{base} offset:{20480*(w % 3) + 10240*par}" for par in range(2)]
                return r if k == 0 else ["s_mov_b64 exec, 0xffff"] + r + ["s_mov_b64 exec, -1"]
            AH = 6
            for n in range(AH): emit(rdp(n))
            for n, (k, w) in enumerate(items):
                if n + AH < 16: emit(rdp(n + AH))
                if w == 0: continue
                a(f"s_waitcnt lgkmcnt({2*min(AH, 15 - n)})")
                R = 64*k
                for j in range(4):
                    a(f"v_pk_add_f32 v[{R+2*j}:{R+2*j+1}], v[{R+2*j}:{R+2*j+1}], v[{8*n+2*j}:{8*n+2*j+1}]")
                if w == 7:
                    if k == 0: a("s_waitcnt vmcnt(0)")
                    for j in range(8): a(f"v_mul_f32 v{R+j}, v{TA+2+k}, v{R+j}")
                    for j in range(4): a(f"v_cvt_pk_bf16_f32 v{R+j}, v{R+2*j}, v{R+2*j+1}")
                    if k == 1: a("s_mov_b64 exec, 0xffff")
                    a(f"buffer_store_dwordx4 v[{R}:{R+3}], v{RA+4+k}, s[{SRD_M}:{SRD_M+3}], s{t} offen {OUTFL}")
            a("s_mov_b64 exec, -1")


def descriptor(name):
    return f""".p2align 6
.amdhsa_kernel {name}
  .amdhsa_next_free_vgpr 256
  .amdhsa_next_free_sgpr 102
  .amdhsa_accum_offset 256
  .amdhsa_group_segment_fixed_size 0
  .amdhsa_kernarg_size 88
  .amdhsa_user_sgpr_count 2
  .amdhsa_user_sgpr_kernarg_segment_ptr 1
  .amdhsa_system_sgpr_workgroup_id_x 1
.end_amdhsa_kernel
"""

def build(stamps):
    assert not LFLAG or (ROT2 == "none" and PQAT == 1 and not EARLYQ and WOPOS != "pre")
    g = Gen(stamps=stamps)
    a = g.a
    K = NAME + "_kernel"
    hdr = open(os.path.join(os.path.dirname(os.path.abspath(__file__)), "header.txt")).read()
    for l in hdr.strip().split("\n"): a.lines.append(l)
    a(f"; @launch grid=(256,1,1) block=(512,1,1) lds={LDS_TOTAL}")
    a('.amdgcn_target "amdgcn-amd-amdhsa--gfx950"\n.text')
    a(f".globl {K}\n.p2align 8\n.type {K},@function")
    a.label(K)
    g.common_prologue("L_end")
    a(f"s_cmp_lt_u32 s{sWAVE}, 4\ns_cbranch_scc1 L_comp")
    g.loader1()
    a(f"s_setprio {LPRIO}")
    if not NE16:
        g.setup2()
        g.srd(SRD_WS, pWS, WS_SIZE)
    g.preload_b(NE16, NL0)
    if K1LDS: a(f"v_mov_b32 v6, {K1C}\nv_mov_b32 v7, 0\nds_write_b32 v6, v7\ns_waitcnt lgkmcnt(0)")
    a("s_barrier")
    if SKEW: a(f"v_mov_b32 v6, {HINT}\nv_mov_b32 v8, 0\nv_mov_b32 v9, 0\nv_mov_b32 v10, 0\nv_mov_b32 v11, 0\nds_write_b128 v6, v[8:11]\ns_waitcnt lgkmcnt(0)")
    g.preload_b(NL0, NL1, TH)
    if not K1LDS: a(f"s_cmp_lg_u32 s{sTYPE}, 0\ns_cbranch_scc1 L_l2\ns_barrier")
    a.label("L_l2")
    if DIAG != 3: g.preload_b(NL1, 5*NB, TH)
    if BLDS and DIAG != 3: g.stage_b()
    g.stamp(3)
    a.label("L_g2")
    g.gemm2()
    g.dump_stamps()
    a.label("L_end")
    a("s_endpgm")
    a.label("L_comp")
    a(f"s_cmp_eq_u32 s{sTYPE}, 0\ns_cbranch_scc1 L_kv")
    g.compute_P(); a("s_branch L_g2")
    a.label("L_kv")
    g.compute_KV(); a("s_branch L_g2")
    a.label("L_code_end")
    errs = lint(a.lines)
    for e in errs: print("HAZARD:", e, file=sys.stderr)
    return a.text() + '.section .rodata,"a"\n' + descriptor(K)

if __name__ == "__main__":
    open(sys.argv[1], "w").write(build(sys.argv[2] if len(sys.argv) > 2 else False))
```

```python
import sys, os, re
sys.path.insert(0, os.path.dirname(os.path.abspath(__file__)))
from asmlib import *

NAME = "gated_mix__linear_attn_block__dense_activation_mish__prompt"
ENV = os.environ.get

CNT_ACT, CNT_PQ, CNT_KV = 0, 256*128, 288*128
DONE_KV, DONE_PQ = 320*128, 328*128
WS_G = 0x10000
WS_KVP = 0x100000
WS_WOR = 0x200000
WS_W2R = 0x300000
WS_PQ = 0x500000
WS_ACT = 0x800000
WS_SIZE = 0x1000000
WS_STAMP = 0x8000000
BIG = 0x20000000
DBGW = int(ENV("DBGW", "0"))
ROTMODE = ENV("ROT", "two")
ROT2 = ENV("ROT2", "none")
NPRE = int(ENV("NPRE", "10"))
SPIN = int(ENV("SPIN", str(0x100000)))
WOAT = 3
ADPRE = int(ENV("ADPRE", "1"))
KVAT = int(ENV("KVAT", "-1"))
GSYNC = int(ENV("GSYNC", "0"))
PF = int(ENV("PF", "0"))
RS = int(ENV("RS", "3"))
S1AT = int(ENV("S1AT", "8"))
S1SLEEP = int(ENV("S1SLEEP", "2"))
LOOPDBG = int(ENV("LOOPDBG", "0"))
CPF = int(ENV("CPF", "1"))
RD = int(ENV("RD", "-1"))
SKEW = int(ENV("SKEW", "0"))
HINT = 3*20480 + 12800
TAILDBG = int(ENV("TAILDBG", "0"))
OUTFL = ENV("OUTFL", "").replace("_", " ")
LFLAG = int(ENV("LFLAG", "0"))
FAKE = int(ENV("FAKE", "0"))
SPLIT = int(ENV("SPLIT", "1"))
YSLEEP = int(ENV("YSLEEP", "8"))
PQAT = int(ENV("PQAT", "1"))
FILLI = int(ENV("FILLI", "1"))
FIRST0 = int(ENV("FIRST0", "0"))
PRIO = ENV("PRIO", "c")
LOOK = ENV("LOOK", "xw")
GBR = int(ENV("GBR", "0"))
STPRIO = int(ENV("STPRIO", "1"))
NRE = int(ENV("NRE", "20"))
SPREAD = int(ENV("SPREAD", "0"))
NE16 = int(ENV("NE16", "0"))
NL1 = int(ENV("NL1", "16"))
K1LDS = int(ENV("K1LDS", "1"))
K1C = 40960 + 2032
FVAT = int(ENV("FVAT", "0"))
WOPOS = ENV("WOPOS", "x")
RED = int(ENV("RED", "2"))
DIAG = int(ENV("DIAG", "0"))
LPRIO = int(ENV("LPRIO", "0"))
EPRIO = int(ENV("EPRIO", "0"))
TH = int(ENV("TH", "4"))
EARLYQ = int(ENV("EARLYQ", "0"))
NB = int(ENV("NB", "5"))
NTH = int(ENV("NTH", "36"))
XSPLIT = [int(v) for v in ENV("XSPLIT", "30,55,80").split(",")]
LRP = int(ENV("LRP", "0"))
MBOX = 161792
STRICTP = int(ENV("STRICTP", "1"))
LATEORD = int(ENV("LATEORD", "0"))
B20AT = int(ENV("B20AT", "14"))
MAP1 = ENV("MAP1", "q")
ROTQ = int(ENV("ROTQ", "1"))
RG = int(ENV("RG", "5"))
RX = int(ENV("RX", "2"))
RTAB = [int(c) for c in ENV("RTAB", "03703703")]
XTAB = [int(c) for c in ENV("XTAB", "01201212")]
RCM = int(ENV("RCM", "1"))
NOE1 = int(ENV("NOE1", "0"))
ATP = int(ENV("ATP", "2"))
FAST0 = int(ENV("FAST0", "1"))
LP2 = int(ENV("LP2", "2"))
CP = int(ENV("CP", "0"))
NRK = int(ENV("NRK", "24"))
LARR = int(ENV("LARR", "2"))
PICK = int(ENV("PICK", "0"))
SLEEP = int(ENV("SLEEP", "8"))
BLDS = int(ENV("BLDS", "1"))
NL0 = int(ENV("NL0", "13"))
MAP2 = ENV("MAP2", "x2")
TOUCH = int(ENV("TOUCH", "0"))
MSDBG = int(ENV("MSDBG", "0"))
MSPRIO = int(ENV("MSPRIO", "1"))
MSPRIO2 = int(ENV("MSPRIO2", "1"))

XR = 0
STG = 40960
WR = 49152
WSLOT = 14336
NS = 6
GATE = WR + NS * WSLOT
SCR = GATE + 2048
MS = WR
BL = WR + 32768
BLF = STG + 2040
LDS_TOTAL = 163840

sWG = 2
pX, pWQKV, pWO, pW1, pB1, pW2, pGATE, pOUT, pDBG, pWS = 4, 6, 8, 12, 14, 16, 18, 20, 22, 24
sWAVE, sRB, sHALF, sCBL, sGRP, sF1, sROT, sPIDX, sTYPE, sT = 26, 27, 28, 29, 30, 31, 32, 33, 34, 35
SRD_WS, SRD_X, SRD_W, SRD_M, SRD_D = 36, 40, 44, 52, 56
T0 = 60
sST = 76
cL2E, cC, cE = 96, 98, 100
sR64, sC = 27, 28
sB0, sA0 = 40, 46
sPQb, sMb, sKv, sFk = 0, 1, 3, 29
sFa, sFq = 10, 11
BS, AB = 80, 200
PQR, MR, KA, KD = 80, 120, 120, 176
sLB, sN208 = 30, 33
vG, vP, vL16, vL16b = 248, 252, 254, 255
WSR = f"s[{SRD_WS}:{SRD_WS+3}]"


class Gen:
    def __init__(self, stamps=False):
        self.a = Asm()
        self.stamps = stamps

    def stamp(self, k, loop=False):
        if loop == "tail":
            if not TAILDBG: return
        elif TAILDBG and 1 <= k <= 7 and not (TAILDBG == 2 and k == 6): return
        elif LOOPDBG and k >= 3 and not loop: return
        elif loop and not LOOPDBG: return
        if self.stamps and not (self.stamps == "dbg" and k == 9):
            if k < 2 and self.stamps != "dbg" and loop != "tail":
                self.a(f"s_memtime s[58:59]\ns_waitcnt lgkmcnt(0)\ns_mov_b32 s{sST+2*k}, s58")
            else:
                self.a(f"s_memtime s[{sST+2*k}:{sST+2*k+1}]")

    def srd(self, d, ptr, size, add=None):
        a = self.a
        if add is None:
            a(f"s_mov_b32 s{d}, s{ptr}\ns_mov_b32 s{d+1}, s{ptr+1}")
        else:
            a(f"s_add_u32 s{d}, s{ptr}, {add}\ns_addc_u32 s{d+1}, s{ptr+1}, 0")
        a(f"s_mov_b32 s{d+2}, {size}\ns_mov_b32 s{d+3}, 0x20000")

    def signal(self, soff, v, off=0):
        self.a(f"v_mov_b32 v{v}, 1\nv_mov_b32 v{v+1}, 0\ns_mov_b64 exec, 1\nbuffer_atomic_add v{v}, v{v+1}, {WSR}, s{soff} offen offset:{off} sc1\ns_mov_b64 exec, -1")

    def arrive(self, soff, v):
        self.a(f"v_mov_b32 v{v}, 1\nv_mov_b32 v{v+1}, 0\ns_mov_b64 exec, 1\nbuffer_atomic_add v{v}, v{v+1}, {WSR}, s{soff} offen sc0 sc1\ns_mov_b64 exec, -1")

    def raise_if_last(self, v, last, soff):
        a = self.a
        sk = a.newlabel("L_last")
        a(f"v_readfirstlane_b32 s{T0+14}, v{v}\nv_mov_b32 v{v}, 1\nv_mov_b32 v{v+1}, 0\ns_cmp_lg_u32 s{T0+14}, {last}\ns_cbranch_scc1 {sk}")
        a(f"s_mov_b64 exec, 1\nbuffer_store_dword v{v}, v{v+1}, {WSR}, s{soff} offen sc1\ns_mov_b64 exec, -1")
        a.label(sk)

    def poll(self, soff, target, va, vd, srd=SRD_WS, sleep=None):
        a = self.a
        t = T0 + 15
        loop, done = a.newlabel("L_poll"), a.newlabel("L_polld")
        a(f"s_mov_b32 s{t}, 0")
        a.label(loop)
        a(f"buffer_load_dword v{vd}, v{va}, s[{srd}:{srd+3}], {soff} offen sc1\ns_waitcnt vmcnt(0)")
        a(f"v_cmp_le_u32 vcc, {target}, v{vd}\ns_add_u32 s{t}, s{t}, 1\ns_nop 0")
        a(f"s_cmp_eq_u64 vcc, -1\ns_cbranch_scc1 {done}")
        a(f"s_sleep {SLEEP if sleep is None else sleep}\ns_cmp_lt_u32 s{t}, {SPIN}\ns_cbranch_scc1 {loop}")
        a.label(done)

    def dump_stamps(self):
        if not self.stamps:
            return
        a = self.a
        a("s_waitcnt vmcnt(0) lgkmcnt(0)")
        a(f"s_memrealtime s[{T0}:{T0+1}]\ns_memtime s[{T0+2}:{T0+3}]")
        if self.stamps == "dbg":
            self.srd(SRD_M, pDBG, 256)
            a("s_waitcnt lgkmcnt(0)\nv_mov_b32 v2, 0\ns_mov_b64 exec, 1")
            sk = a.newlabel("L_dbg")
            a(f"s_lshl_b32 s{T0+5}, s{sWG}, 3\ns_add_u32 s{T0+5}, s{T0+5}, s{sWAVE}\ns_cmp_lg_u32 s{T0+5}, {DBGW}\ns_cbranch_scc1 {sk}")
            for k in range(1, 10):
                a(f"s_sub_u32 s{T0+5}, s{sST+2*k}, s{sST}\nv_mov_b32 v{3+k}, s{T0+5}")
            a(f"s_sub_u32 s{T0+5}, s{T0+2}, s{sST}\nv_mov_b32 v13, s{T0+5}\ns_sub_u32 s{T0+5}, s{T0}, s94\nv_mov_b32 v14, s{T0+5}\nv_mov_b32 v15, s94")
            for k in range(3):
                a(f"buffer_store_dwordx4 v[{4+4*k}:{7+4*k}], v2, s[{SRD_M}:{SRD_M+3}], 0 offen offset:{16+16*k}")
            a.label(sk)
            a("s_waitcnt vmcnt(0)")
            return
        a(f"s_getreg_b32 s{T0+4}, hwreg(HW_REG_XCC_ID)")
        self.srd(SRD_M, pWS, 0x10000000)
        a("s_waitcnt lgkmcnt(0)")
        for k in range(10):
            a(f"v_mov_b32 v{k}, s{sST+2*k}")
        a(f"v_mov_b32 v10, s{T0}\nv_mov_b32 v11, s{T0+2}\nv_mov_b32 v12, s{T0+4}\nv_mov_b32 v13, s{sTYPE}\nv_mov_b32 v14, s77\nv_mov_b32 v15, s79")
        a(f"s_lshl_b32 s{T0+5}, s{sWG}, 3\ns_add_u32 s{T0+5}, s{T0+5}, s{sWAVE}\ns_lshl_b32 s{T0+5}, s{T0+5}, 6\ns_add_u32 s{T0+5}, s{T0+5}, {WS_STAMP}")
        a("v_mov_b32 v16, 0\ns_mov_b64 exec, 1")
        for k in range(4):
            a(f"buffer_store_dwordx4 v[{4*k}:{4*k+3}], v16, s[{SRD_M}:{SRD_M+3}], s{T0+5} offen offset:{16*k}")
        a("s_waitcnt vmcnt(0)")

    def common_prologue(self, endlabel):
        a = self.a
        t = T0
        a(f"s_cmp_ge_u32 s{sWG}, 256\ns_cbranch_scc1 {endlabel}")
        a("s_load_dwordx16 s[4:19], s[0:1], 0\ns_load_dwordx4 s[20:23], s[0:1], 64\ns_load_dwordx2 s[24:25], s[0:1], 80")
        if self.stamps:
            for k in range(10): a(f"s_mov_b32 s{sST+2*k}, 0")
            if self.stamps == "dbg": a("s_memrealtime s[94:95]")
            else: a("s_memrealtime s[56:57]\ns_memtime s[58:59]\ns_waitcnt lgkmcnt(0)\ns_mov_b32 s77, s56\ns_mov_b32 s79, s58")
        if CPF:
            sk = a.newlabel("L_cpf")
            a(f"s_getpc_b64 s[{t}:{t+1}]\nL_pc0:\ns_lshr_b32 s{t+2}, s{sWG}, 3\ns_lshl_b32 s{t+2}, s{t+2}, 11\nv_lshlrev_b32 v2, 4, v0\nv_add_u32 v2, s{t+2}, v2")
            a(f"v_cmp_gt_u32 vcc, 128, v0\nv_min_u32 v2, L_code_end-L_pc0-16, v2\ns_and_saveexec_b64 s[{t+4}:{t+5}], vcc\ns_cbranch_execz {sk}")
            a(f"global_load_dwordx4 v[248:251], v2, s[{t}:{t+1}]")
            a.label(sk)
            a(f"s_mov_b64 exec, s[{t+4}:{t+5}]")
        a("v_lshrrev_b32 v1, 6, v0\nv_and_b32 v0, 63, v0")
        a(f"v_readfirstlane_b32 s{sWAVE}, v1")
        if MAP1 == "h":
            a(f"s_bfe_u32 s{t+2}, s{sWG}, 0x20001\ns_bfe_u32 s{t+3}, s{sWG}, 0x20003")
            a(f"s_lshl2_add_u32 s{sRB}, s{t+2}, s{t+3}\ns_and_b32 s{sHALF}, s{sWG}, 1\ns_lshr_b32 s{sCBL}, s{sWG}, 5")
            a(f"s_and_b32 s{t}, s{sCBL}, 3\ns_lshl2_add_u32 s{sGRP}, s{sHALF}, s{t}\ns_lshr_b32 s{sTYPE}, s{sCBL}, 2")
        else:
            a(f"s_bfe_u32 s{t+2}, s{sWG}, 0x10002\ns_bfe_u32 s{t+3}, s{sWG}, 0x30003\ns_lshl3_add_u32 s{sRB}, s{t+2}, s{t+3}")
            a(f"s_bfe_u32 s{sHALF}, s{sWG}, 0x10001\ns_lshr_b32 s{sTYPE}, s{sWG}, 7\ns_bfe_u32 s{t}, s{sWG}, 0x10006\ns_and_b32 s{t+1}, s{sWG}, 1")
            a(f"s_lshl1_add_u32 s{t+4}, s{t+1}, s{t}\ns_lshl1_add_u32 s{t+5}, s{t}, s{t+1}\ns_cmp_eq_u32 s{sTYPE}, 0\ns_cselect_b32 s{t}, s{t+4}, s{t+5}")
            a(f"s_lshl2_add_u32 s{sCBL}, s{sTYPE}, s{t}\ns_lshl2_add_u32 s{sGRP}, s{sHALF}, s{t}")
            tab = sum(v << (4*n) for n, v in enumerate(RTAB))
            xtab = sum(v << (4*n) for n, v in enumerate(XTAB))
            a(f"s_lshr_b32 s{t+4}, s{sWG}, 6\ns_mul_i32 s{t+4}, s{t+4}, {RCM}\ns_add_u32 s{t+4}, s{t+4}, s{t+3}\ns_and_b32 s{t+4}, s{t+4}, 7\ns_lshl_b32 s{t+4}, s{t+4}, 2\ns_lshr_b32 s{t+4}, {tab:#x}, s{t+4}\ns_and_b32 s{t+4}, s{t+4}, 15")
            a(f"s_and_b32 s{t+5}, s{sWG}, 7\ns_lshl_b32 s{t+5}, s{t+5}, 2\ns_lshr_b32 s{t+5}, {xtab:#x}, s{t+5}\ns_and_b32 s{t+5}, s{t+5}, 15\ns_add_u32 s{sROT}, s{t+4}, s{t+5}")
            if max(RTAB) + max(XTAB) >= 10: a(f"s_sub_u32 s{t+4}, s{sROT}, 10\ns_cmp_ge_u32 s{sROT}, 10\ns_cselect_b32 s{sROT}, s{t+4}, s{sROT}")
        if MAP1 != "h": pass
        elif ROTMODE == "full":
            a(f"s_mul_i32 s{t+4}, s{t+3}, 5\ns_add_u32 s{t+4}, s{t+4}, 1\ns_lshr_b32 s{t+4}, s{t+4}, 1")
            a(f"s_add_u32 s{t+4}, s{t+4}, s{sCBL}\ns_add_u32 s{t+4}, s{t+4}, s{t+2}")
            a(f"s_mul_i32 s{t+5}, s{sHALF}, 5\ns_add_u32 s{sROT}, s{t+4}, s{t+5}")
            for _ in range(2):
                a(f"s_sub_u32 s{t+4}, s{sROT}, 10\ns_cmp_ge_u32 s{sROT}, 10\ns_cselect_b32 s{sROT}, s{t+4}, s{sROT}")
        elif ROTMODE == "none":
            a(f"s_mov_b32 s{sROT}, 0")
        elif ROTMODE == "xcd":
            a(f"s_mul_i32 s{t+4}, s{t+2}, 5\ns_add_u32 s{t+4}, s{t+4}, 1\ns_lshr_b32 s{t+4}, s{t+4}, 1\ns_add_u32 s{sROT}, s{t+4}, s{sHALF}")
        elif ROTMODE == "two0":
            a(f"s_add_u32 s{t+4}, s{t+3}, s{sCBL}\ns_and_b32 s{t+4}, s{t+4}, 1\ns_mul_i32 s{sROT}, s{t+4}, 5")
        elif ROTMODE == "two1":
            a(f"s_add_u32 s{t+4}, s{t+3}, s{sCBL}\ns_and_b32 s{t+4}, s{t+4}, 1\ns_mul_i32 s{t+4}, s{t+4}, 5\ns_and_b32 s{t+5}, s{t+2}, 1\ns_lshl1_add_u32 s{sROT}, s{t+5}, s{t+4}")
        elif ROTMODE == "two":
            a(f"s_add_u32 s{t+4}, s{t+3}, s{sCBL}\ns_and_b32 s{t+4}, s{t+4}, 1\ns_mul_i32 s{t+4}, s{t+4}, 5")
            a(f"s_add_u32 s{t+4}, s{t+4}, s{t+2}\ns_add_u32 s{sROT}, s{t+4}, s{sHALF}")

    def loader1(self):
        a = self.a
        t = T0
        sLW = sT
        vXE, vXO, vW, vGt = 2, 3, 4, 8
        sStr, sCol, sA32, sA64, sOff, sXo, sWB, sWB2, sXB, sXP, sSel = 48, 49, 50, 51, t+4, t+5, t+6, t+7, t+8, t+9, t+10
        sKind = 72
        a(f"s_setprio 2\ns_sub_u32 s{sLW}, s{sWAVE}, 4")
        a("v_lshrrev_b32 v10, 3, v0\nv_and_b32 v11, 7, v0\nv_lshrrev_b32 v12, 4, v0\nv_mul_u32_u24 v13, 1280, v10\nv_xor_b32 v14, v11, v12")
        a(f"s_and_b32 s{t}, s{sLW}, 1\ns_lshl_b32 s{t}, s{t}, 6")
        a(f"v_lshl_add_u32 v13, v14, 4, v13\nv_xor_b32 v{vXE}, s{t}, v13\nv_xor_b32 v{vXO}, 64, v{vXE}")
        if FAST0: a("v_mov_b32 v16, v13\nv_xor_b32 v17, 64, v13")
        if FIRST0: a(f"s_mov_b32 s{sA32}, 0\ns_mov_b32 s{sA64}, 0\ns_min_u32 s{sROT}, s{sROT}, 8")
        else: a(f"s_lshl_b32 s{sA32}, s{sROT}, 1\ns_mov_b32 s{sA64}, s{sROT}")
        a(f"s_mul_i32 s{sXB}, s{sLW}, 3072\ns_mul_i32 s{sXP}, s{sLW}, 30720")
        for k in range(6, 10): a(f"v_mov_b32 v{k}, {BIG}")
        if FAST0: a(f"s_mov_b32 s{sWB2}, 0")
        lKV, lQH, lLN, lJ = a.newlabel("L_wkv"), a.newlabel("L_wqh"), a.newlabel("L_wln"), a.newlabel("L_wj")
        a(f"s_cmp_eq_u32 s{sTYPE}, 0\ns_cbranch_scc1 {lKV}")
        a(f"s_cmp_eq_u32 s{sLW}, 3\ns_cbranch_scc1 {lQH}")
        a(f"s_mov_b32 s{sSel}, 1\ns_mov_b32 s{sStr}, 3072\ns_mul_i32 s{sCol}, s{sGRP}, 3\ns_add_u32 s{sCol}, s{sCol}, s{sLW}\ns_lshl_b32 s{sCol}, s{sCol}, 7\ns_lshl_b32 s{sWB}, s{sLW}, 12")
        a.label(lLN)
        a(f"v_and_b32 v13, 4, v10\nv_add_u32 v13, v13, v10\nv_mul_u32_u24 v13, s{sStr}, v13\nv_lshlrev_b32 v12, 1, v12\nv_xor_b32 v12, v11, v12\nv_lshl_add_u32 v{vW}, v12, 4, v13")
        a(f"s_lshl_b32 s{t}, s{sStr}, 4\ns_lshl_b32 s{t+1}, s{sStr}, 2\nv_add_u32 v{vW+1}, s{t}, v{vW}\nv_add_u32 v{vW+2}, s{t+1}, v{vW}\nv_add_u32 v{vW+3}, s{t}, v{vW+2}")
        a(f"s_branch {lJ}")
        a.label(lQH)
        a(f"s_mov_b32 s{sSel}, 0\ns_mov_b32 s{sStr}, 3840\ns_lshl_b32 s{sCol}, s{sHALF}, 1\ns_add_u32 s{sCol}, s{sCol}, s{sCBL}\ns_add_u32 s{sCol}, s{sCol}, 12\ns_lshl_b32 s{sCol}, s{sCol}, 6")
        a(f"s_cmp_lt_u32 s{sCBL}, 6\ns_cselect_b32 s{sCol}, s{sCol}, {BIG}\ns_mov_b32 s{sWB}, 12288\ns_mov_b32 s{sWB2}, 13312")
        a(f"v_lshrrev_b32 v10, 2, v0\nv_and_b32 v13, 12, v10\nv_add_u32 v13, v13, v10\nv_mul_u32_u24 v13, 3840, v13\nv_and_b32 v11, 3, v0\nv_and_b32 v12, 1, v12\nv_lshlrev_b32 v12, 1, v12\nv_xor_b32 v12, v11, v12")
        a(f"v_lshl_add_u32 v{vW}, v12, 4, v13\nv_add_u32 v{vW+1}, 15360, v{vW}")
        a(f"s_lshl_b32 s{t}, s{sROT}, 3\nv_mov_b32 v14, {BIG}")
        for j in range(2):
            if FIRST0:
                a(f"v_add_u32 v10, {64*j}, v0\nv_add_u32 v11, s{t}, v10\nv_subrev_u32 v12, 72, v11\nv_cmp_gt_u32 vcc, 80, v11\ns_nop 1\nv_cndmask_b32 v11, v12, v11, vcc\nv_cmp_gt_u32 vcc, 8, v10\ns_nop 1\nv_cndmask_b32 v11, v11, v10, vcc")
                a(f"v_cmp_gt_u32 vcc, 80, v10\nv_lshlrev_b32 v11, 4, v11\ns_nop 0\nv_cndmask_b32 v{vGt+j}, v14, v11, vcc")
            else:
                a(f"v_add_u32 v10, {64*j}, v0\nv_add_u32 v11, s{t}, v10\nv_cmp_gt_u32 vcc, 80, v10\nv_subrev_u32 v12, 80, v11\nv_min_u32 v11, v11, v12\nv_lshlrev_b32 v11, 4, v11\nv_cndmask_b32 v{vGt+j}, v14, v11, vcc")
        a(f"s_branch {lJ}")
        a.label(lKV)
        a(f"s_mov_b32 s{sSel}, 0\ns_mov_b32 s{sStr}, 3840\ns_mul_i32 s{sWB}, s{sLW}, 5120\ns_lshl_b32 s{sCol}, s{sGRP}, 7")
        a(f"s_cmp_eq_u32 s{sLW}, 2\ns_cbranch_scc1 {lLN}")
        a(f"s_mul_i32 s{sCol}, s{sGRP}, 160\ns_cmp_eq_u32 s{sLW}, 1\ns_cselect_b32 s{t}, 2560, 1280\ns_add_u32 s{sCol}, s{sCol}, s{t}")
        a(f"s_cmp_eq_u32 s{sLW}, 3\ns_cselect_b32 s{t}, 256, 0\ns_cselect_b32 s{sWB}, 4096, s{sWB}\ns_mov_b32 s{sWB2}, 9216")
        a(f"v_add_u32 v14, s{t}, v0")
        for j in range(4):
            a(f"v_add_u32 v10, {64*j}, v14\nv_mul_u32_u24 v11, 6554, v10\nv_lshrrev_b32 v11, 16, v11\nv_mad_i32_i24 v10, v11, -10, v10")
            a("v_and_b32 v12, 12, v11\nv_and_b32 v13, 3, v11\nv_lshl_or_b32 v12, v12, 1, v13\nv_bfe_u32 v13, v11, 4, 1\nv_lshl_or_b32 v12, v13, 2, v12")
            a(f"v_mul_u32_u24 v12, 3840, v12\nv_lshl_add_u32 v{vW+j}, v10, 4, v12")
            if j == 0:
                a(f"v_add_u32 v{vW+1}, 1280, v{vW}\ns_cmp_eq_u32 s{sLW}, 3\ns_cbranch_scc1 {lJ}")
        a.label(lJ)
        a(f"s_lshl_b32 s{sStr}, s{sStr}, 5\ns_mul_i32 s{t}, s{sRB}, 163840")
        a("s_waitcnt lgkmcnt(0)")
        self.stamp(0)
        self.srd(SRD_X, pX, 163840, add=f"s{t}")
        if FAST0:
            a(f"s_mul_i32 s{sXo}, s{sLW}, 40960\ns_lshl_b32 s{t}, s{sA64}, 7\ns_add_u32 s{sXo}, s{sXo}, s{t}\ns_lshl_b32 s{t}, s{sLW}, 12")
            for j in range(4):
                a(f"s_add_u32 m0, s{t}, {XR + 1024*j}\n" + ("s_nop 0" if j == 0 else f"s_add_u32 s{sXo}, s{sXo}, 10240") + f"\nbuffer_load_dwordx4 v{16 + (j & 1)}, s[{SRD_X}:{SRD_X+3}], s{sXo} offen lds")
        a(f"s_cmp_eq_u32 s{sSel}, 0\ns_cselect_b32 s{SRD_W}, s{pWQKV}, s{pW1}\ns_cselect_b32 s{SRD_W+1}, s{pWQKV+1}, s{pW1+1}\ns_cselect_b32 s{SRD_W+2}, {640*1920*2}, {640*1536*2}\ns_mov_b32 s{SRD_W+3}, 0x20000")
        if FAST0:
            if FIRST0: a(f"s_add_u32 s{sA64}, s{sROT}, 1")
            else: a(f"s_add_u32 s{sA64}, s{sA64}, 1\ns_cmp_eq_u32 s{sA64}, 10\ns_cselect_b32 s{sA64}, 0, s{sA64}")
            g4, gj = a.newlabel("L_f4"), a.newlabel("L_fj")
            a(f"s_add_u32 s{t+1}, s{sWB}, 1024\ns_cmp_eq_u32 s{sLW}, 3\ns_cselect_b32 s{t+1}, s{sWB2}, s{t+1}\ns_cselect_b32 s{t+2}, s{sCBL}, 0\ns_cmp_ge_u32 s{t+2}, 6\ns_cbranch_scc1 {g4}")
            for i in range(2):
                sk = a.newlabel("L_f2")
                a(f"s_mul_i32 s{sOff}, s{sA32}, s{sStr}\ns_add_u32 m0, s{sWB}, {WR + i*WSLOT}\ns_add_u32 s{sOff}, s{sOff}, s{sCol}\nbuffer_load_dwordx4 v{vW}, s[{SRD_W}:{SRD_W+3}], s{sOff} offen lds")
                a(f"s_add_u32 m0, s{t+1}, {WR + i*WSLOT}\ns_cmp_eq_u32 s{sLW}, 3\nbuffer_load_dwordx4 v{vW+1}, s[{SRD_W}:{SRD_W+3}], s{sOff} offen lds\ns_cbranch_scc1 {sk}")
                for j in (2, 3):
                    a(f"s_add_u32 m0, s{sWB}, {WR + i*WSLOT + 1024*j}\ns_nop 0\nbuffer_load_dwordx4 v{vW+j}, s[{SRD_W}:{SRD_W+3}], s{sOff} offen lds")
                a.label(sk)
                if FIRST0 and i == 1: a(f"s_lshl1_add_u32 s{sA32}, s{sROT}, 2")
                else: a(f"s_add_u32 s{sA32}, s{sA32}, 1\ns_cmp_eq_u32 s{sA32}, 20\ns_cselect_b32 s{sA32}, 0, s{sA32}")
            a(f"s_branch {gj}")
            a.label(g4)
            self.srd(SRD_M, pGATE, 1280)
            for j in range(2):
                a(f"s_mov_b32 m0, {GATE + 1024*j}\ns_nop 0\nbuffer_load_dwordx4 v{vGt+j}, s[{SRD_M}:{SRD_M+3}], 0 offen lds")
            a.label(gj)
        lab3, lab4, labj = a.newlabel("L_ld3"), a.newlabel("L_ld4"), a.newlabel("L_ldj")
        lab0k, lab3k = a.newlabel("L_ld0k"), a.newlabel("L_ld3k")
        a(f"s_cmp_eq_u32 s{sLW}, 3\ns_cbranch_scc1 {lab3}")
        for variant, rp in (((0, 1), (0, 0), (3, 1), (3, 0), (4, 1)) if LRP else ((0, 0), (3, 0), (4, 0))):
            if LRP and (variant, rp) == (0, 1): a(f"s_cmp_eq_u32 s{sTYPE}, 0\ns_cbranch_scc1 {lab0k}")
            if LRP and (variant, rp) == (0, 0): a.label(lab0k)
            if LRP and (variant, rp) == (3, 0): a.label(lab3k)
            if variant == 3 and (rp or not LRP):
                a.label(lab3)
                a(f"s_cmp_ge_u32 s{sCBL}, 6\ns_cbranch_scc1 {lab4}")
                if LRP: a(f"s_cmp_eq_u32 s{sTYPE}, 0\ns_cbranch_scc1 {lab3k}")
            if variant == 4:
                a.label(lab4)
            nW = {0: 4, 3: 2, 4: 0}[variant]
            nX = 3 if variant == 0 else 7
            seq = []
            def issue_W(i):
                if nW == 0: return
                a(f"s_mul_i32 s{sOff}, s{sA32}, s{sStr}")
                for j in range(nW):
                    base, off = (sWB, 1024*j) if variant == 0 else ((sWB, sWB2)[j], 0)
                    a(f"s_add_u32 m0, s{base}, {WR + (i % NS)*WSLOT + off}")
                    a(f"s_add_u32 s{sOff}, s{sOff}, s{sCol}" if j == 0 else "s_nop 0")
                    a(f"buffer_load_dwordx4 v{vW+j}, s[{SRD_W}:{SRD_W+3}], s{sOff} offen lds")
                    seq.append(("W", i))
                if FIRST0 and i == 1: a(f"s_lshl1_add_u32 s{sA32}, s{sROT}, 2")
                else: a(f"s_add_u32 s{sA32}, s{sA32}, 1\ns_cmp_eq_u32 s{sA32}, 20\ns_cselect_b32 s{sA32}, {2 if FIRST0 else 0}, s{sA32}")
            def issue_X(jx):
                a(f"s_lshl_b32 s{sXo}, s{sA64}, 7")
                for j in range(nX):
                    a(f"s_add_u32 m0, s{sXB}, {XR + (jx % 3)*16384 + 1024*j}")
                    a(f"s_add_u32 s{sXo}, s{sXo}, " + (f"s{sXP}" if j == 0 else "10240"))
                    a(f"buffer_load_dwordx4 v{vXE + (j & 1)}, s[{SRD_X}:{SRD_X+3}], s{sXo} offen lds")
                    seq.append(("X", jx))
                if FIRST0 and jx == 0: a(f"s_add_u32 s{sA64}, s{sROT}, 1")
                else: a(f"s_add_u32 s{sA64}, s{sA64}, 1\ns_cmp_eq_u32 s{sA64}, 10\ns_cselect_b32 s{sA64}, {1 if FIRST0 else 0}, s{sA64}")
            def wait_for(items):
                last = max([n for n, it in enumerate(seq) if it in items] + [-1])
                if last >= 0: a(f"s_waitcnt vmcnt({len(seq) - 1 - last})")
            if FAST0:
                seq += [("X", 0)]*4 + [("W", 0)]*(nW if variant != 4 else 2) + [("W", 1)]*nW
            else:
                issue_X(0); issue_W(0)
                if variant == 4:
                    self.srd(SRD_M, pGATE, 1280)
                    for j in range(2):
                        a(f"s_mov_b32 m0, {GATE + 1024*j}\ns_nop 0\nbuffer_load_dwordx4 v{vGt+j}, s[{SRD_M}:{SRD_M+3}], 0 offen lds")
                        seq.append(("W", 0))
                issue_W(1)
            wait_for([("W", 0), ("X", 0)]); self.stamp(1); a("s_barrier")
            issue_X(1)
            wait_for([("W", 1)]); a("s_barrier")
            if LP2 != 2: a(f"s_setprio {LP2}")
            issue_W(2); issue_W(3); issue_X(2); issue_W(4)
            if LOOK == "full": issue_W(5)
            for j in range(1, 10):
                if j == (8 if NE16 else 9) and variant == 0:
                    sk = a.newlabel("L_s1skip")
                    a(f"s_cmp_lg_u32 s{sWAVE}, 4\ns_cbranch_scc1 {sk}")
                    self.srd(SRD_D, pDBG, 256)
                    a("v_mov_b32 v50, 128")
                    self.poll("0", 1, 50, 51, SRD_D, S1SLEEP)
                    a.label(sk)
                if rp and j == LRP + 2:
                    last = max(n for n, it in enumerate(seq) if it in (("W", 2*j), ("W", 2*j + 1), ("X", j)))
                    N = len(seq) - 1 - last
                    w1, w2, w3 = a.newlabel("L_wv"), a.newlabel("L_wv"), a.newlabel("L_wv")
                    a(f"s_cmp_eq_u32 s{sKind}, 1\ns_cbranch_scc1 {w1}\ns_cmp_eq_u32 s{sKind}, 2\ns_cbranch_scc1 {w2}\ns_waitcnt vmcnt({N})\ns_branch {w3}\n{w1}:\ns_waitcnt vmcnt({N+4})\ns_branch {w3}\n{w2}:\ns_waitcnt vmcnt({N+8})\n{w3}:")
                else:
                    wait_for([("W", 2*j), ("W", 2*j + 1), ("X", j)])
                if LARR and variant == 0 and j == S1AT//2 + LARR:
                    sk = a.newlabel("L_s1b")
                    a(f"s_cmp_lg_u32 s{sT+0}, 0\ns_cbranch_scc1 {sk}\ns_cmp_eq_u32 s{sTYPE}, 0\ns_cbranch_scc1 {sk}\nv_readfirstlane_b32 s{t}, v70\nv_mov_b32 v71, 1\ns_cmp_lg_u32 s{t}, 127\ns_cbranch_scc1 {sk}")
                    self.srd(SRD_D, pDBG, 256)
                    a(f"v_mov_b32 v69, 0\ns_mov_b64 exec, 1\nbuffer_store_dword v71, v69, s[{SRD_D}:{SRD_D+3}], 0 offen offset:128 sc1\ns_mov_b64 exec, -1")
                    a.label(sk)
                if rp and variant == 0 and j == LRP + 4:
                    sk = a.newlabel("L_s1b")
                    a(f"s_cmp_lg_u32 s{sWAVE}, 4\ns_cbranch_scc1 {sk}\nv_readfirstlane_b32 s{t}, v70\nv_mov_b32 v71, 1\ns_cmp_lg_u32 s{t}, 127\ns_cbranch_scc1 {sk}")
                    self.srd(SRD_D, pDBG, 256)
                    a(f"s_mov_b64 exec, 1\nbuffer_store_dword v71, v69, s[{SRD_D}:{SRD_D+3}], 0 offen offset:128 sc1\ns_mov_b64 exec, -1")
                    a.label(sk)
                a("s_barrier")
                if rp and j == LRP:
                    self.srd(SRD_WS, pWS, WS_SIZE)
                    sk = a.newlabel("L_z")
                    a(f"v_lshlrev_b32 v69, 4, v0\ns_cmp_ge_u32 s{sLW}, 2\ns_cbranch_scc1 {sk}\ns_lshl3_add_u32 s{t}, s{sRB}, s{sGRP}\ns_lshl_b32 s{t}, s{t}, 9\ns_mul_i32 s{t+1}, s{sLW}, {WS_KVP}\ns_add_u32 s{t}, s{t}, s{t+1}")
                    a("v_mov_b32 v64, 0\nv_mov_b32 v65, 0\nv_mov_b32 v66, 0\nv_mov_b32 v67, 0\ns_mov_b32 exec_hi, 0")
                    a(f"buffer_store_dwordx4 v[64:67], v69, {WSR}, s{t} offen sc1\ns_mov_b32 exec_hi, -1")
                    a.label(sk)
                if rp and variant == 0 and j == LRP + 3:
                    sk = a.newlabel("L_s1a")
                    a(f"s_cmp_lg_u32 s{sWAVE}, 4\ns_cbranch_scc1 {sk}")
                    self.srd(SRD_D, pDBG, 256)
                    a(f"v_mov_b32 v70, 1\ns_mov_b64 exec, 1\nbuffer_atomic_add v70, v69, s[{SRD_D}:{SRD_D+3}], 0 offen sc0 sc1\ns_mov_b64 exec, -1")
                    a.label(sk)
                if LOOK == "ramp" and j == 1: issue_W(5)
                if j + 1 < 10 and LOOK == "xw": issue_W(2*j + 3)
                if j + 2 < 10: issue_X(j + 2); issue_W(2*j + 4)
                if j + 2 < 10 and LOOK != "xw": issue_W(2*j + 5)
                if LARR and variant == 0 and j == S1AT//2:
                    sk = a.newlabel("L_s1a")
                    a(f"s_cmp_lg_u32 s{sT+0}, 0\ns_cbranch_scc1 {sk}\ns_cmp_eq_u32 s{sTYPE}, 0\ns_cbranch_scc1 {sk}")
                    self.srd(SRD_D, pDBG, 256)
                    a(f"v_mov_b32 v70, 1\nv_mov_b32 v69, 0\ns_mov_b64 exec, 1\nbuffer_atomic_add v70, v69, s[{SRD_D}:{SRD_D+3}], 0 offen sc0 sc1\ns_mov_b64 exec, -1")
                    a.label(sk)
                if rp and j == LRP:
                    a(f"s_lshl_b32 s{t}, s{sLW}, 6\ns_add_u32 s{t}, s{t}, {MBOX}\nv_mov_b32 v68, s{t}\nds_read_b128 v[16:19], v68\nds_read_b128 v[20:23], v68 offset:16\nds_read_b32 v24, v68 offset:32")
                    a(f"v_lshrrev_b32 v10, 2, v0\nv_and_b32 v11, 3, v0\nv_lshlrev_b32 v11, 3, v11\nv_lshl_add_u32 v10, v10, 7, v11\ns_lshl_b32 s{t}, s{sLW}, 12\ns_add_u32 s{t}, s{t}, {SCR}\nv_add_u32 v10, s{t}, v10")
                    for r in range(2):
                        for u in range(4):
                            a(f"ds_read_b64_tr_b16 v[{32+16*r+4*u}:{33+16*r+4*u}], v10 offset:{8192*r + 32*u}\nds_read_b64_tr_b16 v[{34+16*r+4*u}:{35+16*r+4*u}], v10 offset:{8192*r + 32*u + 2048}")
                    a(f"s_waitcnt lgkmcnt(0)\nv_readfirstlane_b32 s{sKind}, v24\nv_lshrrev_b32 v25, 1, v69")
                    for u in range(4): a(f"v_add_u32 v{16+u}, v{16+u}, v69")
                    for u in range(4):
                        a(f"buffer_store_dwordx4 v[{32+4*u}:{35+4*u}], v{16+u}, {WSR}, 0 offen sc1"); seq.append(("S", u))
                if rp and j == LRP + 1:
                    k2, k3 = a.newlabel("L_r2"), a.newlabel("L_r2")
                    a(f"s_cmp_eq_u32 s{sKind}, 0\ns_cbranch_scc1 {k2}\ns_cmp_eq_u32 s{sKind}, 2\ns_cbranch_scc1 {k3}")
                    for u in range(4): a(f"v_add_u32 v{20+u}, v{20+u}, v69\nbuffer_store_dwordx4 v[{48+4*u}:{51+4*u}], v{20+u}, {WSR}, 0 offen sc1")
                    a(f"s_branch {k2}\n{k3}:\ns_mov_b32 s{t}, 12800")
                    for u in range(4): a(f"v_add_u32 v{20+u}, v{20+u}, v25\nbuffer_store_dwordx2 v[{48+4*u}:{49+4*u}], v{20+u}, {WSR}, 0 offen sc1\nbuffer_store_dwordx2 v[{50+4*u}:{51+4*u}], v{20+u}, {WSR}, s{t} offen sc1")
                    a.label(k2)
                if j == 8 and ADPRE == 2:
                    a(f"v_lshlrev_b32 v{vL16}, 4, v0")
                    self.adblock()
                if j == 8 and NE16:
                    self.setup2()
                    self.srd(SRD_WS, pWS, WS_SIZE)
                    self.preload_b(0, NE16)
                    seq.extend(["B"] * NE16)
            if variant != 4:
                a(f"s_branch {labj}")
        a.label(labj)
        self.stamp(2)

    def mish_quad(self, h, dst, tmp):
        P = lambda r: f"v[{r}:{r+1}]"
        return [
            f"v_pk_fma_f32 {P(tmp)}, {P(h)}, s[{cL2E}:{cL2E+1}], -0.5 op_sel_hi:[1,1,0]",
            f"v_pk_fma_f32 {P(tmp+2)}, {P(h+2)}, s[{cL2E}:{cL2E+1}], -0.5 op_sel_hi:[1,1,0]",
            f"v_exp_f32 v{tmp}, v{tmp}", f"v_exp_f32 v{tmp+1}, v{tmp+1}", f"v_exp_f32 v{tmp+2}, v{tmp+2}", f"v_exp_f32 v{tmp+3}, v{tmp+3}",
            f"v_pk_add_f32 {P(tmp)}, {P(tmp)}, s[{cC}:{cC+1}]", f"v_pk_add_f32 {P(tmp+2)}, {P(tmp+2)}, s[{cC}:{cC+1}]",
            f"v_pk_fma_f32 {P(tmp)}, {P(tmp)}, {P(tmp)}, 0.5 op_sel_hi:[1,1,0]",
            f"v_pk_fma_f32 {P(tmp+2)}, {P(tmp+2)}, {P(tmp+2)}, 0.5 op_sel_hi:[1,1,0]",
            f"v_rcp_f32 v{tmp}, v{tmp}", f"v_rcp_f32 v{tmp+1}, v{tmp+1}", f"v_rcp_f32 v{tmp+2}, v{tmp+2}", f"v_rcp_f32 v{tmp+3}, v{tmp+3}",
            f"v_pk_fma_f32 {P(tmp)}, {P(h)}, {P(tmp)}, {P(h)} neg_lo:[1,0,0] neg_hi:[1,0,0]",
            f"v_pk_fma_f32 {P(tmp+2)}, {P(h+2)}, {P(tmp+2)}, {P(h+2)} neg_lo:[1,0,0] neg_hi:[1,0,0]",
            f"v_cvt_pk_bf16_f32 v{dst}, v{tmp}, v{tmp+1}", f"v_cvt_pk_bf16_f32 v{dst+1}, v{tmp+2}, v{tmp+3}",
        ]

    def phi_quad(self, h, dst, tmp):
        P = lambda r: f"v[{r}:{r+1}]"
        return [
            f"v_pk_mul_f32 {P(tmp)}, {P(h)}, s[{cL2E}:{cL2E+1}]", f"v_pk_mul_f32 {P(tmp+2)}, {P(h+2)}, s[{cL2E}:{cL2E+1}]",
            f"v_exp_f32 v{tmp}, v{tmp} clamp", f"v_exp_f32 v{tmp+1}, v{tmp+1} clamp", f"v_exp_f32 v{tmp+2}, v{tmp+2} clamp", f"v_exp_f32 v{tmp+3}, v{tmp+3} clamp",
            f"v_pk_add_f32 {P(h)}, {P(h)}, s[{cC}:{cC+1}]", f"v_pk_add_f32 {P(h+2)}, {P(h+2)}, s[{cC}:{cC+1}]",
            f"v_pk_add_f32 {P(tmp)}, {P(tmp)}, s[{cE}:{cE+1}]", f"v_pk_add_f32 {P(tmp+2)}, {P(tmp+2)}, s[{cE}:{cE+1}]",
            f"v_max_f32 v{tmp}, v{tmp}, v{h}", f"v_max_f32 v{tmp+1}, v{tmp+1}, v{h+1}", f"v_max_f32 v{tmp+2}, v{tmp+2}, v{h+2}", f"v_max_f32 v{tmp+3}, v{tmp+3}, v{h+3}",
            f"v_cvt_pk_bf16_f32 v{dst}, v{tmp}, v{tmp+1}", f"v_cvt_pk_bf16_f32 v{dst+1}, v{tmp+2}, v{tmp+3}",
        ]

    def consts(self, kind):
        if kind == "mish":
            self.a(f"s_mov_b32 s{cC}, 0x3f3504f3\ns_mov_b32 s{cC+1}, 0x3f3504f3")
        else:
            self.a(f"s_mov_b32 s{cC}, 0x3f800008\ns_mov_b32 s{cC+1}, 0x3f800008\ns_mov_b32 s{cE}, 0x358637bd\ns_mov_b32 s{cE+1}, 0x358637bd")

    def main_loop(self, reads, mfmas, extra, nread_end, bases):
        a = self.a
        if CP: a(f"s_setprio {CP}")
        a("s_barrier")
        self.stamp(1)
        for l in reads(0): a(l)
        for l in extra.get(0, ([], [], []))[1]: a(l)
        a("s_waitcnt lgkmcnt(0)")
        for i in range(1, 21):
            if (i == 1 or i % 2 == 0) and i < 20: a("s_barrier")
            if i in (2, 4, 6, 8, 10, 14, 18): self.stamp(3 + (2, 4, 6, 8, 10, 14, 18).index(i), True)
            pre, fill, preb = extra.get(i, ([], [], []))
            for l in pre: a(l)
            if i < 20:
                tail = []
                if (i + 1) % 3 == 0 and i + 1 < 20:
                    op = "v_add_u32" if ((i + 1) % NS) == 3 else "v_subrev_u32"
                    tail = [f"{op} v{b}, {3*WSLOT}, v{b}" for b in bases]
                body = interleave(mfmas(i - 1), reads(i) + fill + tail, 0, nread_end)
                for l in body: a(l)
                for l in preb: a(l)
                a("s_waitcnt lgkmcnt(0)")
            else:
                m19 = mfmas(19)
                for l in m19[:B20AT] + ["s_barrier"] + m19[B20AT:]: a(l)
        self.stamp(2)

    def finish1(self, flags, strict=False, late8=False):
        a = self.a
        self.setup2()
        if LFLAG == 2 and late8: a(f"s_add_u32 s{flags[0]}, s{flags[0]}, 8")
        if LFLAG == 1:
            if late8: a(f"s_add_u32 s{flags[0]}, s{flags[0]}, 8")
            a(f"s_mov_b32 s32, s{flags[1]}")
            self.preload_b(0, NPRE)
            return
        if strict:
            if ADPRE == 2:
                a(f"s_mov_b32 s32, s{flags[1]}"); flags = [flags[0], 32]
                self.adblock()
            a("s_waitcnt vmcnt(0)")
            self.stamp(5)
            for f in flags: self.signal(f, 46)
            self.preload_b(0, NPRE, alt=(48 if ADPRE == 2 else None))
            return
        self.preload_b(0, NPRE)
        a(f"s_waitcnt vmcnt({NPRE})")
        self.stamp(5)
        for f in flags: self.signal(f, 1)
        if not BLDS:
            self.preload_b(NPRE, 30)
            return

    def pickup(self):
        a = self.a
        t = T0
        sk = a.newlabel("L_pk")
        a(f"s_cmp_ge_u32 s{sWAVE}, 4\ns_cbranch_scc1 {sk}")
        a(f"s_mul_i32 s{t+14}, s{sWAVE}, 20480\ns_add_u32 s{t+14}, s{t+14}, {BL}\nv_add_u32 v{BS+117}, s{t+14}, v{vL16}")
        for n in range(5*NB - 10):
            a(f"ds_read_b128 v[{BS+40+4*n}:{BS+43+4*n}], v{BS+117} offset:{1024*n}")
        a.label(sk)

    def prefetch(self, vL, v, S=SRD_X):
        a = self.a
        t = T0
        for ptr, size, share, n in ((pX, 2048*1280, 10240, 3), (pWQKV, 640*3840, 9600, 3), (pW1, 640*3072, 7680, 2))[:(1 if PF == 2 else 3)]:
            self.srd(S, ptr, size)
            per = -(-share // 4 // 128) * 128
            a(f"s_mul_i32 s{t}, s{sWG}, {share}\ns_and_b32 s{t}, s{t}, 0xffffff80\ns_mul_i32 s{t+1}, s{sWAVE}, {per}\ns_add_u32 s{t}, s{t}, s{t+1}\ns_min_u32 s{t}, s{t}, {size - n*1024}")
            for k in range(n):
                a(f"buffer_load_dwordx4 v[{v}:{v+3}], v{vL}, s[{S}:{S+3}], s{t} offen offset:{1024*k}")

    def touch(self, vLane, v):
        a = self.a
        t = T0
        a(f"v_lshlrev_b32 v{v}, 21, v{vLane}\nv_add_u32 v{v}, 0xff000, v{v}\ns_mov_b64 exec, 0xff")
        a(f"buffer_load_dword v{v+1}, v{v}, {WSR}, 0 offen")
        self.srd(SRD_M, pOUT, 2048*640*2)
        a(f"v_lshlrev_b32 v{v}, 20, v{vLane}\ns_mov_b64 exec, 7\nbuffer_load_dword v{v+2}, v{v}, s[{SRD_M}:{SRD_M+3}], 0 offen")
        self.srd(SRD_M, pWO, 640*640*2)
        a(f"v_lshlrev_b32 v{v}, 19, v{vLane}\ns_mov_b64 exec, 3\nbuffer_load_dword v{v+3}, v{v}, s[{SRD_M}:{SRD_M+3}], 0 offen\ns_mov_b64 exec, -1")

    def compute_P(self):
        a = self.a
        t = T0
        ACC, XB, WB, BI = 0, 112, 144, 200
        vX0, vX1, vH0, vH1, vQ, vGt, vL, vRd, vRr, vBo, vT = 228, 229, 230, 231, 232, 233, 234, 235, 236, 237, 238
        vLane = 253
        sSH, sNH = sT, 48
        sAct, sPq, sF2, sGs = 49, 72, 73, 74
        a(f"v_mov_b32 v{vLane}, v0\ns_lshr_b32 s{sSH}, s{sWAVE}, 1\ns_and_b32 s{sNH}, s{sWAVE}, 1")
        a(f"v_and_b32 v1, 15, v0\nv_lshrrev_b32 v2, 4, v0\nv_lshrrev_b32 v3, 1, v1\nv_xor_b32 v3, v3, v2\nv_lshlrev_b32 v3, 4, v3\nv_lshl_add_u32 v3, v1, 7, v3")
        a(f"s_lshl_b32 s{t}, s{sSH}, 13\nv_add_u32 v{vX0}, s{t}, v3\nv_xor_b32 v{vX1}, 64, v{vX0}")
        a(f"v_lshrrev_b32 v3, 2, v0\nv_and_b32 v4, 3, v0\nv_lshlrev_b32 v4, 3, v4")
        a(f"v_lshl_add_u32 v5, v3, 7, v4\nv_bfe_u32 v6, v0, 3, 2\ns_lshl_b32 s{t}, s{sNH}, 1\nv_xor_b32 v6, s{t}, v6\nv_lshl_add_u32 v6, v6, 5, v5")
        a(f"v_add_u32 v{vH0}, {WR}, v6\nv_xor_b32 v{vH1}, 32, v{vH0}")
        a(f"v_lshl_add_u32 v6, v3, 6, v4\nv_and_b32 v7, 1, v2\nv_xor_b32 v7, s{sNH}, v7\nv_lshl_add_u32 v6, v7, 5, v6\nv_add_u32 v{vQ}, {WR+12288}, v6")
        a(f"v_lshlrev_b32 v6, 4, v2\nv_add_u32 v{vGt}, {GATE}, v6\nv_lshlrev_b32 v{vL}, 4, v0\nv_lshlrev_b32 v{vBo}, 3, v2")
        a(f"v_lshrrev_b32 v6, 3, v0\nv_mul_u32_u24 v6, 1280, v6\nv_and_b32 v7, 7, v0\nv_lshl_add_u32 v{vRd}, v7, 4, v6")
        a(f"s_lshl_b32 s{t}, s{sWAVE}, 12\ns_add_u32 s{t}, s{t}, {SCR}\nv_add_u32 v{vRr}, s{t}, v5")
        a(f"s_lshl3_add_u32 s{sPIDX}, s{sRB}, s{sGRP}")
        a(f"s_mov_b32 s{cL2E}, 0x3fb8aa3b\ns_mov_b32 s{cL2E+1}, 0x3fb8aa3b")
        a(f"s_lshl2_add_u32 s{t}, s{sPIDX}, s{sWAVE}\ns_min_u32 s{t}, s{t}, 479")
        a(f"s_mul_i32 s{t+1}, s{t}, 6554\ns_lshr_b32 s{t+1}, s{t+1}, 16\ns_mul_i32 s{t+2}, s{t+1}, 10\ns_sub_u32 s{t+2}, s{t}, s{t+2}")
        a(f"s_mul_i32 s{t+6}, s{t+1}, 40960\ns_lshl_b32 s{t+3}, s{t+2}, 7\ns_add_u32 s{t+6}, s{t+6}, s{t+3}")
        a(f"s_mul_i32 s{t+7}, s{sGRP}, 384\ns_lshl_b32 s{t+3}, s{sNH}, 6\ns_add_u32 s{t+7}, s{t+7}, s{t+3}")
        a("s_waitcnt lgkmcnt(0)")
        self.stamp(0)
        self.srd(SRD_M, pB1, 3072)
        self.srd(SRD_W, pW2, 1536*640*2)
        for u in range(6):
            a(f"buffer_load_dwordx2 v[{BI+4*u+2}:{BI+4*u+3}], v{vBo}, s[{SRD_M}:{SRD_M+3}], s{t+7} offen offset:{128*(u >> 1) + 32*(u & 1)}")
        sSrc1 = 69
        a(f"s_mov_b32 s{sSrc1}, s{t+6}")
        self.srd(SRD_WS, pWS, WS_SIZE)
        if TOUCH == 2: self.touch(vLane, 240)
        dsts = [10, 11, 1, 3]
        for u in range(4):
            a(f"s_lshl2_add_u32 s{t+3}, s{t+2}, {u}\ns_mul_i32 s{t+4}, s{t+3}, 205\ns_lshr_b32 s{t+4}, s{t+4}, 10")
            a(f"s_mul_i32 s{t+5}, s{t+4}, 235\ns_add_u32 s{t+5}, s{t+5}, s{t+3}\ns_mul_i32 s{t+4}, s{t+1}, 5\ns_add_u32 s{t+5}, s{t+5}, s{t+4}")
            a(f"s_lshl_b32 s{t+5}, s{t+5}, 10\ns_add_u32 s{t+5}, s{t+5}, {WS_W2R}")
            if LRP: a(f"s_mov_b32 s{dsts[u]}, s{t+5}")
            else: a(f"s_cmp_lt_u32 s{sPIDX}, 120\ns_cselect_b32 s{dsts[u]}, s{t+5}, {BIG}")
        d2, sSrc2, sK2, sInc2 = 40, 0, 75, 70
        self.srd(SRD_M, pWO, 640*640*2)
        a(f"s_lshl1_add_u32 s{t}, s{sPIDX}, s{sWAVE}\ns_sub_u32 s{t}, s{t}, 2")
        a(f"s_cmp_lt_u32 s{t}, 160\ns_cselect_b32 s{sK2}, 1, 2\ns_cmp_lt_u32 s{t}, 200\ns_cselect_b32 s{sK2}, s{sK2}, 0\ns_cmp_lt_u32 s{sWAVE}, 2\ns_cselect_b32 s{sK2}, 0, s{sK2}")
        a(f"s_mul_i32 s{t+1}, s{t}, 6554\ns_lshr_b32 s{t+1}, s{t+1}, 16\ns_mul_i32 s{t+2}, s{t+1}, 10\ns_sub_u32 s{t+2}, s{t}, s{t+2}")
        a(f"s_lshr_b32 s{t+3}, s{t+1}, 1\ns_and_b32 s{t+4}, s{t+1}, 1\ns_sub_u32 s{t+5}, s{t+1}, 16\ns_lshl_b32 s{t+5}, s{t+5}, 1")
        a(f"s_cmp_eq_u32 s{sK2}, 2\ns_cselect_b32 s{t+3}, s{t+5}, s{t+3}\ns_cselect_b32 s{t+4}, 2, s{t+4}\ns_cselect_b32 s{sInc2}, {10240 + 64*1280}, 10240")
        a(f"s_mul_i32 s{sSrc2}, s{t+3}, {80*1280}\ns_mul_i32 s{t+5}, s{t+4}, {32*1280}\ns_add_u32 s{sSrc2}, s{sSrc2}, s{t+5}\ns_lshl_b32 s{t+5}, s{t+2}, 7\ns_add_u32 s{sSrc2}, s{sSrc2}, s{t+5}")
        a(f"s_mul_i32 s{t+3}, s{t+3}, 12800\ns_lshl_b32 s{t+5}, s{t+4}, 10\ns_cmp_eq_u32 s{sK2}, 2\ns_cselect_b32 s{t+5}, 10240, s{t+5}\ns_cselect_b32 s{t+6}, 512, 2048\ns_add_u32 s{t+3}, s{t+3}, s{t+5}\ns_add_u32 s{t+3}, s{t+3}, {WS_WOR}")
        for u in range(4):
            a(f"s_lshl2_add_u32 s{t+4}, s{t+2}, {u}\ns_mul_i32 s{t+5}, s{t+4}, 205\ns_lshr_b32 s{t+5}, s{t+5}, 10\ns_mul_i32 s{t+7}, s{t+5}, 5\ns_sub_u32 s{t+4}, s{t+4}, s{t+7}")
            a(f"s_mul_i32 s{t+5}, s{t+5}, 102400\ns_mul_i32 s{t+4}, s{t+4}, s{t+6}\ns_add_u32 s{t+5}, s{t+5}, s{t+4}\ns_add_u32 s{d2+u}, s{t+5}, s{t+3}")
        sRb64 = t + 11
        a(f"s_lshl1_add_u32 s{sRb64}, s{sRB}, s{sSH}")
        a(f"s_mul_i32 s{t}, s{sRb64}, 48\ns_mul_i32 s{t+1}, s{sGRP}, 6\ns_add_u32 s{t}, s{t}, s{t+1}\ns_add_u32 s{t}, s{t}, s{sNH}\ns_lshl_b32 s{t}, s{t}, 12")
        a(f"s_add_u32 s{sAct}, s{t}, {WS_ACT}\ns_add_u32 s{sAct+1}, s{t}, {WS_ACT + 8192}\ns_add_u32 s{sAct+2}, s{t}, {WS_ACT + 16384}")
        a(f"s_mul_i32 s{t}, s{sRb64}, 40\ns_lshl2_add_u32 s{t}, s{sHALF}, s{t}\ns_lshl1_add_u32 s{t}, s{sCBL}, s{t}\ns_add_u32 s{t}, s{t}, s{sNH}\ns_add_u32 s{t}, s{t}, 24\ns_lshl_b32 s{t}, s{t}, 11\ns_add_u32 s{sPq}, s{t}, {WS_PQ}")
        a(f"s_lshl3_add_u32 s{sF1}, s{sRb64}, s{sGRP}\ns_lshl_b32 s{sF1}, s{sF1}, 7")
        a(f"s_lshl1_add_u32 s{t}, s{sGRP}, s{sNH}\ns_cmp_eq_u32 s{t}, 5\ns_cselect_b32 s{sGs}, 1, 0")
        a(f"s_lshl_b32 s{sF2}, s{sRb64}, 7\ns_add_u32 s{sF2}, s{sF2}, {CNT_PQ}\ns_cmp_lt_u32 s{sCBL}, 6\ns_cselect_b32 s{t}, 1, s{sGs}\ns_cmp_eq_u32 s{t}, 1\ns_cselect_b32 s{sF2}, s{sF2}, {BIG}")
        a(f"s_cmp_ge_u32 s{sCBL}, 6\ns_cselect_b64 vcc, -1, 0")
        def reads(i):
            b = i & 1; so = (i % 3) * WSLOT
            xs = XR + ((i >> 1) % 3) * 16384
            r = [f"ds_read_b128 v[{XB+16*b+4*s}:{XB+16*b+4*s+3}], v{vX1 if i & 1 else vX0} offset:{xs + 2048*s}" for s in range(4)]
            for u in range(6):
                d = WB + 28*b + 4*u
                r.append(f"ds_read_b64_tr_b16 v[{d}:{d+1}], v{vH0 + (u & 1)} offset:{so + 4096*(u >> 1)}")
                r.append(f"ds_read_b64_tr_b16 v[{d+2}:{d+3}], v{vH0 + (u & 1)} offset:{so + 4096*(u >> 1) + 2048}")
            d = WB + 28*b + 24
            if GBR:
                l1, l2 = a.newlabel("L_g"), a.newlabel("L_gj")
                r.append(f"s_cbranch_vccnz {l1}\nds_read_b64_tr_b16 v[{d}:{d+1}], v{vQ} offset:{so}\nds_read_b64_tr_b16 v[{d+2}:{d+3}], v{vQ} offset:{so + 1024}\ns_branch {l2}\n"
                         f"{l1}:\nds_read_b128 v[{d}:{d+3}], v{vGt} offset:{64*i}\n{l2}:")
            else:
                r += [f"ds_read_b64_tr_b16 v[{d}:{d+1}], v{vQ} offset:{so}", f"ds_read_b64_tr_b16 v[{d+2}:{d+3}], v{vQ} offset:{so + 1024}",
                      f"s_mov_b64 exec, vcc\nds_read_b128 v[{d}:{d+3}], v{vGt} offset:{64*i}\ns_mov_b64 exec, -1"]
            return r
        def mfmas(i):
            b = i & 1
            r = []
            for u in (range(7) if i < 19 else (6, 0, 1, 2, 3, 4, 5)):
                for s in range(4):
                    d = ACC + 16*u + 4*s
                    c = f"v[{d}:{d+3}]" if i > 0 else ("0" if u == 6 else f"v[{BI+4*u}:{BI+4*u+3}]")
                    r.append(f"v_mfma_f32_16x16x32_bf16 v[{d}:{d+3}], v[{WB+28*b+4*u}:{WB+28*b+4*u+3}], v[{XB+16*b+4*s}:{XB+16*b+4*s+3}], {c}")
            return r
        unpack = [f"s_waitcnt vmcnt({(3 if TOUCH == 2 else 0) + (4 if RD < 0 else 0) + {0: 0, 1: 8, 2: 3}[PF]})"]
        for u in range(6):
            p = BI + 4*u
            unpack += [f"v_lshlrev_b32 v{p}, 16, v{p+2}", f"v_and_b32 v{p+1}, 0xffff0000, v{p+2}", f"v_lshlrev_b32 v{p+2}, 16, v{p+3}", f"v_and_b32 v{p+3}, 0xffff0000, v{p+3}"]
        RP = BI
        rp_reads = []
        for u in range(4):
            rp_reads += [f"ds_read_b64_tr_b16 v[{RP+4*u}:{RP+4*u+1}], v{vRr} offset:{32*u}", f"ds_read_b64_tr_b16 v[{RP+4*u+2}:{RP+4*u+3}], v{vRr} offset:{32*u + 2048}"]
        rp_st = [f"buffer_store_dwordx4 v[{RP+4*u}:{RP+4*u+3}], v{vL}, {WSR}, s{dsts[u]} offen sc1" for u in range(4)]
        z = [f"s_lshl_b32 s{t}, s{sPIDX}, 9", f"s_mul_i32 s{t+1}, s{sWAVE}, {WS_KVP}", f"s_add_u32 s{t}, s{t}, s{t+1}", f"s_cmp_lt_u32 s{sWAVE}, 2", f"s_cselect_b32 s{t}, s{t}, {BIG}"] + \
            [f"v_mov_b32 v{RP+16+k}, 0" for k in range(4)] + \
            [f"s_mov_b32 exec_hi, 0\nbuffer_store_dwordx4 v[{RP+16}:{RP+19}], v{vL}, {WSR}, s{t} offen sc1\ns_mov_b32 exec_hi, -1"]
        k1, k2, k3, k4 = [a.newlabel("L_r2") for _ in range(4)]
        dma1 = [f"s_lshl_b32 s{t+3}, s{sWAVE}, 12"]
        for j in range(4):
            dma1.append(f"s_add_u32 m0, s{t+3}, {SCR + 1024*j}\ns_nop 0\nbuffer_load_dwordx4 v{vRd}, s[{SRD_W}:{SRD_W+3}], s{sSrc1} offen lds\ns_add_u32 s{sSrc1}, s{sSrc1}, 10240")
        rp_reads2 = [l.replace("offset:", "offset:8192+") for l in rp_reads]
        dma2 = f"s_cmp_eq_u32 s{sK2}, 0\ns_cbranch_scc1 {k1}\n"
        for j in range(4):
            dma2 += f"s_add_u32 m0, s{t+3}, {SCR + 8192 + 1024*j}\ns_nop 0\nbuffer_load_dwordx4 v{vRd}, s[{SRD_M}:{SRD_M+3}], s{sSrc2} offen lds\n"
            if j < 3: dma2 += f"s_add_u32 s{sSrc2}, s{sSrc2}, " + (f"s{sInc2}" if j == 1 else "10240") + "\n"
        dma2 += k1 + ":"
        st2 = f"s_cmp_eq_u32 s{sK2}, 0\ns_cbranch_scc1 {k2}\ns_cmp_eq_u32 s{sK2}, 2\ns_cbranch_scc1 {k3}\n"
        st2 += "".join(f"buffer_store_dwordx4 v[{RP+4*u}:{RP+4*u+3}], v{vL}, {WSR}, s{d2+u} offen sc1\n" for u in range(4))
        st2 += f"s_branch {k2}\n{k3}:\nv_lshrrev_b32 v{vT}, 1, v{vL}\n"
        for u in range(4):
            st2 += f"buffer_store_dwordx2 v[{RP+4*u}:{RP+4*u+1}], v{vT}, {WSR}, s{d2+u} offen sc1\ns_add_u32 s{d2+u}, s{d2+u}, 12800\n"
            st2 += f"buffer_store_dwordx2 v[{RP+4*u+2}:{RP+4*u+3}], v{vT}, {WSR}, s{d2+u} offen sc1\n"
        st2 += k2 + ":"
        sk, sk2 = a.newlabel("L_s1a"), a.newlabel("L_s1b")
        arr = [f"s_cmp_lg_u32 s{sWAVE}, 0", f"s_cbranch_scc1 {sk}",
               f"s_mov_b32 s{SRD_D}, s{pDBG}", f"s_mov_b32 s{SRD_D+1}, s{pDBG+1}", f"s_mov_b32 s{SRD_D+2}, 256", f"s_mov_b32 s{SRD_D+3}, 0x20000",
               f"v_mov_b32 v{vT}, 1", f"s_mov_b64 exec, 1\nbuffer_atomic_add v{vT}, v{vL}, s[{SRD_D}:{SRD_D+3}], 0 offen sc0 sc1\ns_mov_b64 exec, -1", sk + ":"]
        arr2 = [f"s_cmp_lg_u32 s{sWAVE}, 0", f"s_cbranch_scc1 {sk2}", "s_waitcnt vmcnt(0)", f"v_readfirstlane_b32 s{t}, v{vT}", f"v_mov_b32 v{vT+1}, 1",
                f"s_cmp_lg_u32 s{t}, 127", f"s_cbranch_scc1 {sk2}",
                f"s_mov_b32 s{SRD_D}, s{pDBG}", f"s_mov_b32 s{SRD_D+1}, s{pDBG+1}", f"s_mov_b32 s{SRD_D+2}, 256", f"s_mov_b32 s{SRD_D+3}, 0x20000",
                f"s_mov_b64 exec, 1\nbuffer_store_dword v{vT+1}, v{vL}, s[{SRD_D}:{SRD_D+3}], 0 offen offset:128 sc1\ns_mov_b64 exec, -1", sk2 + ":"]
        if RD < 0:
            for l in dma1 + [dma2]: a(l)
        if PF: self.prefetch(vL, 240, S=SRD_D)
        hi, lo = (["s_setprio 3"], [f"s_setprio {CP}"]) if STPRIO else ([], [])
        extra = {0: ([], unpack, []), RS: (["s_waitcnt vmcnt(0)"], rp_reads, []), RS+1: (hi, rp_st + rp_reads2, []),
                 RS+2: ([], [st2] + z, lo), S1AT-1: ([], [], ["s_waitcnt vmcnt(0)"]), S1AT: (arr, [], []), S1AT+2: (arr2, [], [])}
        if LARR:
            del extra[S1AT], extra[S1AT+2]
        if LRP:
            a(f"s_lshl_b32 s{t}, s{sWAVE}, 6\ns_add_u32 s{t}, s{t}, {MBOX}\nv_mov_b32 v8, s{t}")
            for u in range(4): a(f"v_mov_b32 v{12+u}, s{dsts[u]}\nv_mov_b32 v{16+u}, s{d2+u}")
            a(f"v_mov_b32 v20, s{sK2}\nds_write_b128 v8, v[12:15]\nds_write_b128 v8, v[16:19] offset:16\nds_write_b32 v8, v20 offset:32\ns_waitcnt lgkmcnt(0)")
            extra = {0: extra[0], 2*LRP - 1: ([], [], ["s_waitcnt vmcnt(0)"])}
        if SPREAD:
            R2 = [216, 220, 240, 244]
            rd2 = []
            for u in range(4):
                rd2 += [f"ds_read_b64_tr_b16 v[{R2[u]}:{R2[u]+1}], v{vRr} offset:{8192 + 32*u}", f"ds_read_b64_tr_b16 v[{R2[u]+2}:{R2[u]+3}], v{vRr} offset:{8192 + 32*u + 2048}"]
            zz = [l.replace(f"v{RP+16}", "v248").replace(f"v{RP+17}", "v249").replace(f"v{RP+18}", "v250").replace(f"v{RP+19}", "v251").replace(f"v[{RP+16}:{RP+19}]", "v[248:251]") for l in z]
            pre2 = [f"v_lshrrev_b32 v{vT+1}, 1, v{vL}"]
            def st2u(u):
                k5, k6 = a.newlabel("L_r2"), a.newlabel("L_r2")
                return (f"s_cmp_eq_u32 s{sK2}, 1\ns_cbranch_scc0 {k5}\nbuffer_store_dwordx4 v[{R2[u]}:{R2[u]+3}], v{vL}, {WSR}, s{d2+u} offen sc1\n{k5}:\n"
                        f"s_cmp_eq_u32 s{sK2}, 2\ns_cbranch_scc0 {k6}\nbuffer_store_dwordx2 v[{R2[u]}:{R2[u]+1}], v{vT+1}, {WSR}, s{d2+u} offen sc1\ns_add_u32 s{d2+u}, s{d2+u}, 12800\n"
                        f"buffer_store_dwordx2 v[{R2[u]+2}:{R2[u]+3}], v{vT+1}, {WSR}, s{d2+u} offen sc1\n{k6}:")
            extra = {0: extra[0], RS: (["s_waitcnt vmcnt(0)"], rp_reads + rd2 + pre2 + zz, []), S1AT: extra[S1AT], S1AT+2: extra[S1AT+2]}
            if SPREAD == 1:
                for u in range(4): extra[RS+1+u] = ([], [rp_st[u], st2u(u)], [])
            else:
                for u in range(4):
                    extra[RS+1+2*u] = ([], [rp_st[u]], []); extra[RS+2+2*u] = ([], [st2u(u)], [])
            e_ = extra.get(S1AT-1, ([], [], []))
            extra[S1AT-1] = (e_[0], e_[1], ["s_waitcnt vmcnt(0)"])
        if RD > 0: extra[RD] = ([], dma1 + [dma2], [])
        if RD == 0: extra[0] = ([], unpack + dma1 + [dma2], [])
        self.main_loop(reads, mfmas, extra, NRE, [vH0, vH1, vQ])
        if EPRIO: a(f"s_setprio {EPRIO}")
        TM = XB
        a("s_nop 3")
        labG, labE = a.newlabel("L_epG"), a.newlabel("L_epE")
        a(f"s_cbranch_vccnz {labG}")
        self.consts("phi")
        for sp in range(2):
            e = ACC + 96 + 8*sp
            for l in self.phi_quad(e, e, TM): a(l)
            for l in self.phi_quad(e + 4, e + 2, TM + 4): a(l)
            a(f"buffer_store_dwordx4 v[{e}:{e+3}], v{vL}, {WSR}, s{sPq} offen offset:{1024*sp} sc1")
        a(f"s_branch {labE}")
        a.label(labG)
        a(f"s_cmp_eq_u32 s{sGs}, 0\ns_cbranch_scc1 {labE}")
        G = ACC + 96
        a(f"v_cmp_le_u32 vcc, 16, v{vLane}\nv_cmp_le_u32 s[{t+2}:{t+3}], 32, v{vLane}\nv_cmp_le_u32 s[{t+4}:{t+5}], 48, v{vLane}\ns_nop 0")
        a(f"v_cndmask_b32 v{G}, v{G}, v{G+4}, vcc\nv_cndmask_b32 v{G}, v{G}, v{G+8}, s[{t+2}:{t+3}]\nv_cndmask_b32 v{G}, v{G}, v{G+12}, s[{t+4}:{t+5}]")
        a(f"s_mov_b32 s{t}, 0x42700000\nv_min_f32 v{G}, s{t}, v{G}\nv_max_f32 v{G}, -s{t}, v{G}\nv_mul_f32 v{G}, s{cL2E}, v{G}\nv_exp_f32 v{G}, v{G}")
        a(f"s_lshl_b32 s{t}, s{sRb64}, 8\ns_add_u32 s{t}, s{t}, {WS_G}\nv_add_f32 v{G+2}, 1.0, v{G}\nv_rcp_f32 v{G+2}, v{G+2}\nv_lshlrev_b32 v{G+1}, 2, v{vLane}\ns_add_u32 s{t+1}, s{t}, 8192")
        a(f"buffer_store_dword v{G}, v{G+1}, {WSR}, s{t} offen sc1\nbuffer_store_dword v{G+2}, v{G+1}, {WSR}, s{t+1} offen sc1")
        a.label(labE)
        self.consts("mish")
        for L in range(3):
            for s in range(4):
                e, o = ACC + 32*L + 4*s, ACC + 32*L + 16 + 4*s
                for l in self.mish_quad(e, e, TM + 8*(s & 1)): a(l)
                for l in self.mish_quad(o, e + 2, TM + 4 + 8*(s & 1)): a(l)
                if DIAG != 1: a(f"buffer_store_dwordx4 v[{e}:{e+3}], v{vL}, {WSR}, s{sAct+L} offen offset:{1024*s} {'' if DIAG == 2 else 'sc1'}")
            if L == 0 and EARLYQ:
                a("s_waitcnt vmcnt(4)")
                self.signal(sF2, vT)
            if LFLAG and L >= 1:
                a(f"s_waitcnt vmcnt({4 if L == 1 else 5})")
                self.signal(sF1, vT, 4*(L - 1))
        a(f"v_mov_b32 v0, v{vLane}")
        self.stamp(3)
        self.finish1([sF1] if EARLYQ else [sF1, sF2], strict=bool(STRICTP), late8=True)

    def compute_KV(self):
        a = self.a
        t = T0
        ACC, XB, WB = 0, 112, 128
        vX0, vX1, vK, vQ0, vL = 240, 241, 242, 243, 247
        vLane = 253
        sPq, sF2, sRec = 72, 73, 74
        a(f"v_mov_b32 v{vLane}, v0")
        a(f"v_and_b32 v1, 15, v0\nv_lshrrev_b32 v2, 4, v0\nv_lshrrev_b32 v3, 1, v1\nv_xor_b32 v3, v3, v2\nv_lshlrev_b32 v3, 4, v3\nv_lshl_add_u32 v3, v1, 7, v3")
        a(f"s_lshl_b32 s{t}, s{sWAVE}, 12\nv_add_u32 v{vX0}, s{t}, v3\nv_xor_b32 v{vX1}, 64, v{vX0}")
        a(f"v_lshrrev_b32 v3, 2, v0\nv_and_b32 v4, 3, v0\nv_lshlrev_b32 v4, 3, v4")
        a(f"v_mul_u32_u24 v5, 160, v3\nv_add_u32 v5, v5, v4\nv_add_u32 v{vK}, {WR}, v5")
        a(f"v_lshl_add_u32 v5, v3, 7, v4\nv_bfe_u32 v6, v0, 3, 2\nv_lshl_add_u32 v5, v6, 5, v5\nv_add_u32 v{vQ0}, {WR+10240}, v5")
        for u in range(1, 4): a(f"v_xor_b32 v{vQ0+u}, {32*u}, v{vQ0}")
        a(f"v_lshlrev_b32 v{vL}, 4, v0")
        a(f"s_lshr_b32 s{t}, s{sWAVE}, 1\ns_lshl1_add_u32 s{t+1}, s{sRB}, s{t}")
        a(f"s_lshl_b32 s{sF2}, s{t+1}, 7\ns_add_u32 s{sF2}, s{sF2}, {CNT_PQ}")
        a(f"s_mul_i32 s{t+1}, s{t+1}, 40\ns_lshl2_add_u32 s{t+1}, s{sGRP}, s{t+1}\ns_and_b32 s{t}, s{sWAVE}, 1\ns_lshl1_add_u32 s{t+1}, s{t+1}, s{t}\ns_lshl_b32 s{t+1}, s{t+1}, 10\ns_add_u32 s{sPq}, s{t+1}, {WS_PQ}")
        a(f"s_lshl2_add_u32 s{t}, s{sGRP}, s{sWAVE}\ns_lshl_b32 s{sF1}, s{t}, 7\ns_add_u32 s{sF1}, s{sF1}, {CNT_KV}")
        a(f"s_mul_i32 s{t}, s{t}, 1792\ns_add_u32 s{sRec}, s{t}, {WS_KVP}")
        a(f"s_mov_b32 s{cL2E}, 0x3fb8aa3b\ns_mov_b32 s{cL2E+1}, 0x3fb8aa3b")
        self.consts("phi")
        a("s_waitcnt lgkmcnt(0)")
        self.stamp(0)
        self.srd(SRD_WS, pWS, WS_SIZE)
        if TOUCH: self.touch(vLane, 248)
        if PF: self.prefetch(vL, 248)
        def reads(i):
            b = i & 1; so = (i % 3) * WSLOT
            xs = XR + ((i >> 1) % 3) * 16384
            r = [f"ds_read_b128 v[{XB+8*b+4*s}:{XB+8*b+4*s+3}], v{vX1 if i & 1 else vX0} offset:{xs + 2048*s}" for s in range(2)]
            for u in range(14):
                d = WB + 56*b + 4*u
                if u < 10: base, off, d2 = vK, 5120*(u // 5) + 32*(u % 5), 2560
                else: base, off, d2 = vQ0 + u - 10, 0, 2048
                r.append(f"ds_read_b64_tr_b16 v[{d}:{d+1}], v{base} offset:{so + off}")
                r.append(f"ds_read_b64_tr_b16 v[{d+2}:{d+3}], v{base} offset:{so + off + d2}")
            return r
        def mfmas(i):
            b = i & 1
            r = []
            order = list(range(14)) if i < 19 else [5, 6, 7, 8, 9, 0, 1, 2, 3, 4, 10, 11, 12, 13]
            for u in order:
                for s in range(2):
                    d = ACC + 8*u + 4*s
                    c = f"v[{d}:{d+3}]" if i > 0 else "0"
                    w, x = f"v[{WB+56*b+4*u}:{WB+56*b+4*u+3}]", f"v[{XB+8*b+4*s}:{XB+8*b+4*s+3}]"
                    r.append(f"v_mfma_f32_16x16x32_bf16 v[{d}:{d+3}], {x if u < 10 else w}, {w if u < 10 else x}, {c}")
            return r
        self.main_loop(reads, mfmas, {}, NRK, [vK, vQ0, vQ0+1, vQ0+2, vQ0+3])
        TM = XB
        vEx = vX0
        a(f"s_mul_i32 s{t}, s{sWAVE}, 10240\nv_add_u32 v{vEx}, s{t}, v{vL}")
        for u in range(5, 10):
            e = ACC + 8*u
            a(f"v_cvt_pk_bf16_f32 v{e}, v{e}, v{e+1}\nv_cvt_pk_bf16_f32 v{e+1}, v{e+2}, v{e+3}\nv_cvt_pk_bf16_f32 v{e+2}, v{e+4}, v{e+5}\nv_cvt_pk_bf16_f32 v{e+3}, v{e+6}, v{e+7}")
            a(f"ds_write_b128 v{vEx}, v[{e}:{e+3}] offset:{XR + 1024*u}")
        for u in range(5):
            e = ACC + 8*u
            for l in self.phi_quad(e, e, TM): a(l)
            for l in self.phi_quad(e + 4, e + 2, TM + 4): a(l)
            a(f"ds_write_b128 v{vEx}, v[{e}:{e+3}] offset:{XR + 1024*u}")
        a(f"s_lshl_b32 s{t}, s{sWAVE}, 10\nv_add_u32 v{vEx}, s{t}, v{vL}")
        ONE = WB + 64
        for k in range(4): a(f"v_mov_b32 v{ONE+k}, 0x3f803f80")
        if K1LDS:
            lp, dn = a.newlabel("L_k1"), a.newlabel("L_k1d")
            a(f"v_mov_b32 v{vK}, {K1C}\nv_mov_b32 v{vQ0}, 1\ns_mov_b32 s{t}, 0\ns_waitcnt lgkmcnt(0)\ns_mov_b64 exec, 1\nds_add_u32 v{vK}, v{vQ0}\ns_mov_b64 exec, -1")
            a.label(lp)
            a(f"ds_read_b32 v{vQ0}, v{vK}\ns_add_u32 s{t}, s{t}, 1\ns_waitcnt lgkmcnt(0)\nv_readfirstlane_b32 s{t+1}, v{vQ0}\ns_cmp_ge_u32 s{t}, {SPIN}\ns_cbranch_scc1 {dn}\ns_cmp_lt_u32 s{t+1}, 4\ns_cbranch_scc1 {lp}")
            a.label(dn)
        else:
            a("s_waitcnt lgkmcnt(0)\ns_barrier")
        FR = WB
        for g in range(4):
            for j, off in enumerate((0, 1024, 5120, 6144)):
                a(f"ds_read_b128 v[{FR+16*g+4*j}:{FR+16*g+4*j+3}], v{vEx} offset:{XR + 10240*g + off}")
        AD = WB + 72
        dc, BG, ev, R = AD, AD + 2, AD + 3, AD + 8
        ad = [f"v_lshrrev_b32 v{dc}, 4, v{vLane}", f"v_and_b32 v{ev}, 15, v{vLane}", f"v_mov_b32 v{BG}, 0x10000", f"v_cmp_eq_u32 vcc, 0, v{ev}",
              f"v_mov_b32 v{R}, 320", f"v_subrev_u32 v{dc}, s{sWAVE}, v{dc}", f"v_cndmask_b32 v{ev+2}, v{BG}, v{R}, vcc", f"v_add_u32 v{dc+1}, 4, v{dc}",
              f"s_lshl_b32 s{t}, s{sWAVE}, 2", f"v_subrev_u32 v{ev}, s{t}, v{ev}", f"v_add_u32 v{ev+1}, 16, v{ev}",
              f"s_lshl_b32 s{t+4}, s{sWAVE}, 11", f"s_add_u32 s{t+4}, s{t+4}, {STG}"]
        for k in range(2):
            ad += [f"v_cmp_gt_u32 vcc, 5, v{dc+k}", f"v_cmp_gt_u32 s[{t+2}:{t+3}], 20, v{ev+k}", f"v_mul_u32_u24 v{dc+k}, 336, v{dc+k}", f"v_lshlrev_b32 v{ev+k}, 4, v{ev+k}",
                   f"v_cndmask_b32 v{dc+k}, v{BG}, v{dc+k}, vcc", f"v_cndmask_b32 v{ev+k}, v{BG}, v{ev+k}, s[{t+2}:{t+3}]"]
        for k in range(2):
            ad += [f"v_add_u32 v{R+3*k+b}, v{dc+k}, v{ev+b}" for b in range(3)]
            ad += [f"v_min_u32 v{R+3*k+b}, 1680, v{R+3*k+b}" for b in range(3)]
            ad += [f"v_add_u32 v{R+3*k+b}, s{t+4}, v{R+3*k+b}" for b in range(3)]
        ad += [f"v_lshlrev_b32 v{dc}, 2, v{vLane}", f"v_add_u32 v{vEx}, s{t+4}, v{dc}"]
        for l in ad[:20]: a(l)
        D = ACC
        mm = []
        for g in range(4):
            for k in range(2):
                for b in range(3):
                    d = D + 12*k + 4*b
                    B = f"v[{FR+16*g+8+4*b}:{FR+16*g+8+4*b+3}]" if b < 2 else f"v[{ONE}:{ONE+3}]"
                    mm.append(f"v_mfma_f32_16x16x32_bf16 v[{d}:{d+3}], v[{FR+16*g+4*k}:{FR+16*g+4*k+3}], {B}, {'0' if g == 0 else f'v[{d}:{d+3}]'}")
        a("s_waitcnt lgkmcnt(0)")
        for l in interleave(mm, ad[20:], 0, 16): a(l)
        def qmath(u):
            e = ACC + 8*u
            return self.phi_quad(e, e, TM) + self.phi_quad(e + 4, e + 2, TM + 4)
        q10 = qmath(10)
        for l in q10[:8]: a(l)
        for j in range(6): a(f"ds_write_b128 v{R+j}, v[{D+4*j}:{D+4*j+3}]")
        for l in q10[8:20]: a(l)
        a("s_waitcnt lgkmcnt(0)")
        for j in range(7): a(f"ds_read_b32 v{j}, v{vEx} offset:{256*j}")
        for l in q10[20:]: a(l)
        a("s_waitcnt lgkmcnt(0)")
        for j in range(7):
            if j == 6: a("s_mov_b32 exec_hi, 15")
            a(f"buffer_atomic_add_f32 v{j}, v{dc}, {WSR}, s{sRec} offen offset:{256*j} sc1")
        a("s_mov_b32 exec_hi, -1")
        a(f"s_add_u32 s{t}, s{sPq}, 4096")
        def qst(u):
            e = ACC + 8*(10 + u)
            a(f"buffer_store_dwordx4 v[{e}:{e+3}], v{vL}, {WSR}, s{sPq if u < 2 else t} offen offset:{2048*(u & 1)} sc1")
        qst(0)
        for u in (1, 2, 3):
            for l in qmath(10 + u): a(l)
            qst(u)
        a(f"v_mov_b32 v0, v{vLane}")
        self.stamp(3)
        self.finish1([sF1, sF2], strict=True)

    def setup2(self, lanes=True):
        a = self.a
        t = T0
        if MAP2 == "x2":
            a(f"s_bfe_u32 s{t+2}, s{sWG}, 0x20001\ns_bfe_u32 s{t+3}, s{sWG}, 0x30003\ns_lshl3_add_u32 s{sR64}, s{t+2}, s{t+3}")
            a(f"s_and_b32 s{t+2}, s{sWG}, 1\ns_lshr_b32 s{t+3}, s{sWG}, 6\ns_lshl2_add_u32 s{sC}, s{t+2}, s{t+3}")
        else:
            a(f"s_and_b32 s{t+2}, s{sWG}, 7\ns_bfe_u32 s{t+3}, s{sWG}, 0x20003\ns_lshl2_add_u32 s{sR64}, s{t+2}, s{t+3}\ns_lshr_b32 s{sC}, s{sWG}, 5")
        if FAKE == 1: a(f"s_and_b32 s{sR64}, s{sWG}, 7\ns_lshl_b32 s{sR64}, s{sR64}, 2\ns_mov_b32 s{sC}, 0")
        if FAKE == 2: a(f"s_mov_b32 s{sC}, 0")
        if FAKE == 3: a(f"s_and_b32 s{sR64}, s{sWG}, 7\ns_lshl_b32 s{sR64}, s{sR64}, 2")
        if lanes: a(f"v_lshlrev_b32 v{vL16}, 4, v0\nv_add_u32 v{vL16b}, 4096, v{vL16}")
        if ROT2 == "none":
            a(f"s_mov_b32 s{t}, 0")
        elif ROT2 == "xor":
            a(f"s_lshr_b32 s{t}, s{sWG}, 3\ns_lshr_b32 s{t+1}, s{sWG}, 6\ns_xor_b32 s{t}, s{t}, s{t+1}\ns_and_b32 s{t}, s{t}, 1")
        elif ROT2 == "two":
            a(f"s_lshr_b32 s{t}, s{sWG}, 3\ns_lshr_b32 s{t+1}, s{sWG}, {6 if MAP2 == 'x2' else 5}\ns_xor_b32 s{t}, s{t}, s{t+1}\ns_and_b32 s{t}, s{t}, 1\ns_mul_i32 s{t}, s{t}, 3")
        elif MAP2 == "x2":
            a(f"s_and_b32 s{t}, s{sC}, 3\ns_mul_i32 s{t}, s{t}, 3\ns_lshr_b32 s{t}, s{t}, 1")
        else:
            a(f"s_mul_i32 s{t}, s{sC}, 3\ns_lshr_b32 s{t}, s{t}, 2")
        a(f"s_mul_i32 s{t+1}, s{sWAVE}, 6")
        a(f"s_mul_i32 s{t+2}, s{sC}, {48*5120}\ns_add_u32 s{t+2}, s{t+2}, {WS_W2R}")
        a(f"s_mul_i32 s{t+3}, s{sR64}, {48*4096}\ns_add_u32 s{t+3}, s{t+3}, {WS_ACT}")
        for i in range(6):
            a(f"s_add_u32 s{t+4}, s{t+1}, s{t}\ns_mul_i32 s{sB0+i}, s{t+4}, 5120\ns_add_u32 s{sB0+i}, s{sB0+i}, s{t+2}")
            a(f"s_lshl_b32 s{sA0+i}, s{t+4}, 12\ns_add_u32 s{sA0+i}, s{sA0+i}, s{t+3}")
            if i < 5 and ROT2 == "xor": a(f"s_xor_b32 s{t}, s{t}, {i ^ (i + 1)}")
            elif i < 5: a(f"s_add_u32 s{t}, s{t}, 1\ns_cmp_eq_u32 s{t}, 6\ns_cselect_b32 s{t}, 0, s{t}")
        a(f"s_lshl3_add_u32 s{sFa}, s{sR64}, s{sWAVE}\ns_lshl_b32 s{sFa}, s{sFa}, 7\ns_lshl_b32 s{sFq}, s{sR64}, 7\ns_add_u32 s{sFq}, s{sFq}, {CNT_PQ}")
        a(f"s_mul_i32 s{sPQb}, s{sR64}, 40\ns_mul_i32 s{t}, s{sWAVE}, 5\ns_add_u32 s{sPQb}, s{sPQb}, s{t}\ns_lshl_b32 s{sPQb}, s{sPQb}, 11\ns_add_u32 s{sPQb}, s{sPQb}, {WS_PQ}")
        a(f"s_lshl3_add_u32 s{sMb}, s{sC}, s{sWAVE}\ns_mul_i32 s{sMb}, s{sMb}, 12800\ns_add_u32 s{sMb}, s{sMb}, {WS_WOR}")
        a(f"s_mul_i32 s{sKv}, s{sWAVE}, 7168\ns_add_u32 s{sKv}, s{sKv}, {WS_KVP}\ns_lshl_b32 s{sFk}, s{sWAVE}, 9\ns_add_u32 s{sFk}, s{sFk}, {CNT_KV}")

    def preload_b(self, n0, n1, th=0, alt=None):
        vb = vL16b
        if alt is not None:
            vb = alt; self.a(f"v_add_u32 v{alt}, 4096, v{vL16}")
        for n in range(n0, n1):
            if th and n < NTH: self.a(f"s_waitcnt vmcnt({th - 1})")
            i, jn = divmod(n, 5)
            d = BS + 20*i + 4*jn
            self.a(f"buffer_load_dwordx4 v[{d}:{d+3}], v{vL16 if jn < 4 else vb}, {WSR}, s{sB0+i} offen offset:{1024*jn if jn < 4 else 0} sc1")

    def stage_b(self):
        a = self.a
        t = T0
        a(f"s_mul_i32 s{t}, s{sT}, 20480\ns_add_u32 s{t}, s{t}, {BL}")
        for i in range(2, NB):
            a(f"s_sub_u32 s{t+1}, s{sB0+i}, 122880")
            for jn in range(5):
                if jn in (0, 4):
                    a(f"s_add_u32 m0, s{t}, {5120*(i-2) + 1024*jn}")
                    a(f"s_add_u32 s{t+1}, s{t+1}, 4096" if jn else "s_nop 0")
                if TH and NB*5 + 5*(i - 2) + jn < NTH: a(f"s_waitcnt vmcnt({TH - 1})")
                a(f"buffer_load_dwordx4 v{vL16}, {WSR}, s{t+1} offen offset:{1024*(jn % 4)} sc1 lds")
        a("s_waitcnt vmcnt(0)")

    def adlist(self):
        t, LN = T0, 255
        chunks = [(0, 0), (0, 1), (1, 0), (1, 1), (1, 2), (2, 1), (2, 2), (2, 3), (3, 2), (3, 3), (4, 3), (3, 4), (4, 4)] + [("z", tt) for tt in range(5)]
        slot = dict(zip(chunks, [0, 1, 2, 3, 4, 7, 8, 9, 10, 11, 13, 14, 15, 16, 17, 18, 19, 20]))
        X, K0 = 24, 0
        ad = [f"v_and_b32 v{X}, 15, v{LN}", f"v_lshrrev_b32 v{X+1}, 4, v{LN}", f"s_add_u32 s{t+2}, s{sLB}, 13312", f"v_mul_u32_u24 v{X+3}, 336, v{X+1}", f"v_add_u32 v{X+3}, s{t+2}, v{X+3}",
              f"v_add_u32 v{X+18}, s{sLB}, v{vL16}", f"s_add_u32 s{t+2}, s{t+2}, 7056", f"v_mov_b32 v{X+13}, s{t+2}"] + [f"v_subrev_u32 v{X+13+k}, {1344*k}, v{X+13}" for k in range(1, 5)]
        for te in (0, 1, 2, 3, 4, "z"):
            if te == "z":
                ad += [f"v_and_b32 v{X+4}, 3, v{LN}", f"v_mul_u32_u24 v{X+5}, 112, v{X+4}", f"v_add_u32 v{X+6}, 320, v{X+3}", f"v_add_u32 v{X+5}, v{X+5}, v{X+6}"]
            else:
                ad += [f"v_add_u32 v{X+6}, {16*te}, v{X}", f"v_mul_u32_u24 v{X+4}, 3277, v{X+6}", f"v_lshrrev_b32 v{X+4}, 16, v{X+4}",
                       f"v_lshl_add_u32 v{X+6}, v{X+6}, 4, v{X+3}", f"v_mad_i32_i24 v{X+5}, v{X+4}, s{sN208}, v{X+6}"]
            ad += [f"v_mad_i32_i24 v{X+4}, v{X+4}, -5, v{X+1}"]
            mine = [(j, c) for j, c in enumerate(chunks) if c[0] == te]
            ad += [f"v_add_u32 v{X+8+n}, {4*c[1]}, v{X+4}" for n, (j, c) in enumerate(mine)]
            ad += [f"v_cmp_gt_u32 s[{t+4+2*n}:{t+5+2*n}], 5, v{X+8+n}" for n, (j, c) in enumerate(mine)]
            ad += ["s_nop 0"]
            ad += [f"v_cndmask_b32 v{K0+j}, v{X+13+c[1]}, v{X+5}, s[{t+4+2*n}:{t+5+2*n}]" for n, (j, c) in enumerate(mine)]
        return chunks, slot, X, K0, ad

    def adblock(self):
        a = self.a
        a(f"v_lshrrev_b32 v255, 4, v{vL16}\ns_xor_b32 s{sLB}, s{sWAVE}, 4\ns_mul_i32 s{sLB}, s{sLB}, 20480\ns_mov_b32 s{sN208}, -208")
        for l in self.adlist()[4]: a(l)

    def gemm2(self):
        a = self.a
        t = T0
        seq = []
        LN = 255
        def ldl(dst, n, v, so, off, tag):
            seq.append(tag)
            return [f"buffer_load_dword{ {1: '', 2: 'x2', 4: 'x4'}[n] } {vr(dst, n)}, v{v}, {WSR}, s{so} offen offset:{off} sc1"]
        def emit(L):
            for l in L: a(l)
        def wait(tag):
            last = max(n for n, x in enumerate(seq) if x == tag)
            a(f"s_waitcnt vmcnt({len(seq) - 1 - last})")
        def act(i):
            return sum((ldl(AB + 16*(i % 3) + 4*st, 4, vL16, sA0 + i, 1024*st, f"act{i}") for st in range(4)), [])
        def check(soff, target, sleep=None):
            ok = a.newlabel("L_ok")
            a(f"v_cmp_le_u32 vcc, {target}, v{vP+1}\ns_nop 1\ns_cmp_eq_u64 vcc, -1\ns_cbranch_scc1 {ok}")
            self.poll(soff, target, vP, vP + 1, sleep=sleep)
            a.label(ok)
        def dma(so, n, lds, tag):
            r = []
            for k in range(n):
                pre = ""
                if k % 4 == 0:
                    pre = f"s_add_u32 m0, s{sLB}, {lds + 1024*k}\n" + (f"s_add_u32 s{so}, s{so}, 4096\n" if k else "s_nop 0\n")
                r.append(pre + f"buffer_load_dwordx4 v{vL16}, {WSR}, s{so} offen offset:{1024*(k % 4)} sc1 lds"); seq.append(tag)
            return r
        def pq(base, sp):
            return sum((ldl(base + 20*sp + 4*tt, 4, vL16, (sPQb, t, t + 1)[tt >> 1], 2048*(tt & 1) + 1024*sp, f"pq{sp}") for tt in range(5)), [])
        def gld(va):
            return sum((ldl(vG + st, 1, va, t + 3, 64*st, "g") for st in range(4)), [])
        def lateb(i=5):
            if i < NB: return []
            r = sum((ldl(BS + 20*i + 4*jn, 4, vL16, sB0 + i, 1024*jn, f"act{i}") for jn in range(4)), [])
            return r + [f"s_add_u32 s{sB0+i}, s{sB0+i}, 4096"] + ldl(BS + 20*i + 16, 4, vL16, sB0 + i, 0, f"act{i}")
        chunks, slot, X, K0, ad = self.adlist()
        mq = [t + 4, t + 6, t + 8]
        consts = [f"s_mov_b32 s{cE}, 0x358637bd", f"s_mov_b32 s{mq[0]}, 0xffff", f"s_mov_b32 s{mq[0]+1}, 0", f"s_mov_b32 s{mq[1]}, -1", f"s_mov_b32 s{mq[1]+1}, 0",
                  f"s_mov_b32 s{mq[2]}, -1", f"s_mov_b32 s{mq[2]+1}, 0xffff"]
        swaps = lambda R: [f"v_swap_b32 v{R+8*p+2+k}, v{R+8*p+4+k}" for p in range(2) for k in range(2)]
        K32 = lambda d, A, B, c: f"v_mfma_f32_16x16x32_bf16 v[{d}:{d+3}], v[{A}:{A+3}], v[{B}:{B+3}], {c}"
        K16 = lambda d, A, B: f"v_mfma_f32_16x16x16_bf16 v[{d}:{d+3}], v[{A}:{A+1}], v[{B}:{B+1}], v[{d}:{d+3}]"
        acc = lambda d: f"v[{d}:{d+3}]"
        def fqf(base):
            def fq(st, tt):
                R = base + 20*(st >> 1)
                return R + 8*(tt >> 1) + 4*(st & 1) + 2*(tt & 1) if tt < 4 else R + 16 + 2*(st & 1)
            return fq
        def gather(KAr, raw, KP, PQb, first):
            for j, c in enumerate(chunks):
                a(f"ds_read_b128 v[{raw(j)}:{raw(j)+3}], v{KAr+j} offset:{1344*c[1]}")
            emit(swaps(PQb) + swaps(PQb + 20))
            for j, c in enumerate(chunks):
                if j in (0, first): a(f"s_waitcnt lgkmcnt({18 - first if j == 0 else 0})")
                d, r = KP + 2*slot[c], raw(j)
                a(f"v_cvt_pk_bf16_f32 v{d}, v{r}, v{r+1}\nv_cvt_pk_bf16_f32 v{d+1}, v{r+2}, v{r+3}")
            for z in (5, 6, 12): a(f"v_mov_b32 v{KP+2*z}, 0\nv_mov_b32 v{KP+2*z+1}, 0")
        def scales(st, DN, SC):
            r = ([] if LATEORD else [f"v_add_f32 v{DN+k}, s{cE}, v{DN+k}" for k in range(4)]) + [f"v_rcp_f32 v{DN+k}, v{DN+k}" for k in range(4)]
            r += [f"v_mul_f32 v{DN+k}, v{vG+st}, v{DN+k}" for k in range(4)]
            return r + [f"v_cndmask_b32 v{SC[k]}, v{DN+k+1}, v{DN+k}, s[{mq[k]}:{mq[k]+1}]" for k in range(3)]
        def vtile(st, tt, o, DN, SC, fq):
            sc = (DN, SC[0], SC[1], SC[2], DN + 3)[tt]
            return [f"v_mul_f32 v{o+k}, v{sc}, v{o+k}" for k in range(4)] + [f"v_cvt_pk_bf16_f32 v{fq(st,tt)}, v{o}, v{o+1}", f"v_cvt_pk_bf16_f32 v{fq(st,tt)+1}, v{o+2}, v{o+3}"]
        def mlp(i, zero, sts=None):
            order = [(jn, st) for jn in range(5) for st in range(4)] if sts is None else [(jn, st) for st in sts for jn in range(5)]
            return [K32(20*st + 4*jn, BS + 20*i + 4*jn, AB + 16*(i % 3) + 4*st, "0" if zero else acc(20*st + 4*jn)) for jn, st in order]
        TA, RA, vRW = 224, 170, vP
        rw = [f"v_and_b32 v{TA}, 15, v{LN}", f"v_mul_u32_u24 v{TA}, 160, v{TA}", f"v_bfe_u32 v{TA+1}, v{LN}, 5, 1", f"v_bfe_u32 v{vRW}, v{LN}, 2, 1", f"v_xor_b32 v{TA+1}, v{TA+1}, v{vRW}",
              f"v_lshl_add_u32 v{TA}, v{TA+1}, 4, v{TA}", f"v_bfe_u32 v{TA+1}, v{LN}, 4, 1", f"v_mul_u32_u24 v{TA+1}, 10240, v{TA+1}", f"v_add3_u32 v{vRW}, v{TA}, v{TA+1}, s{sLB}"]
        wrl = lambda st: [f"ds_write_b128 v{vRW}, v[{20*st+4*jn}:{20*st+4*jn+3}] offset:{2560*st + 32*jn}" for jn in range(5)]
        rd = [f"s_mul_i32 s{t}, s{sWAVE}, 80", f"v_add_u32 v{RA}, s{t}, v{LN}", f"v_add_u32 v{RA+1}, 64, v{RA}",
              f"s_lshl_b32 s{t+2}, s{sR64}, 8", f"s_add_u32 s{t+2}, s{t+2}, {WS_G + 8192}"]
        for k in range(2):
            rd += [f"v_mul_u32_u24 v{RA+2}, 6554, v{RA+k}", f"v_lshrrev_b32 v{RA+2}, 16, v{RA+2}", f"v_mad_i32_i24 v{RA+3}, v{RA+2}, -10, v{RA+k}", f"v_lshlrev_b32 v{TA+2+k}, 2, v{RA+2}",
                   f"buffer_load_dword v{TA+2+k}, v{TA+2+k}, {WSR}, s{t+2} offen sc1",
                   f"v_bfe_u32 v{RA+6}, v{RA+2}, 2, 1", f"v_xor_b32 v{RA+k}, v{RA+k}, v{RA+6}",
                   f"v_mul_u32_u24 v{RA+2}, 1280, v{RA+2}", f"v_lshl_add_u32 v{RA+4+k}, v{RA+3}, 4, v{RA+2}", f"v_lshlrev_b32 v{RA+k}, 4, v{RA+k}"]
        rd += [f"v_add_u32 v{RA+6}, 61440, v{RA}", f"v_add_u32 v{RA+7}, 61440, v{RA+1}", f"v_add_u32 v{RA+8}, 122880, v{RA}", f"v_add_u32 v{RA+9}, 122880, v{RA+1}"]
        rd += [f"s_mov_b32 s{SRD_M}, s{pOUT}", f"s_mov_b32 s{SRD_M+1}, s{pOUT+1}", f"s_mov_b32 s{SRD_M+2}, {2048*640*2}", f"s_mov_b32 s{SRD_M+3}, 0x20000",
               f"s_mul_i32 s{t}, s{sR64}, 81920", f"s_mul_i32 s{t+1}, s{sC}, 160", f"s_add_u32 s{t}, s{t}, s{t+1}"]
        def flagvec(vt, with_act):
            a(f"v_lshlrev_b32 v{vP}, 2, v{LN}\nv_add_u32 v{vP}, s{sFk}, v{vP}\nv_mov_b32 v{vt}, 1\nv_cmp_le_u32 vcc, 4, v{LN}\nv_mov_b32 v{vt+1}, s{sFq}\ns_add_u32 s{t+2}, s{sFa}, 8")
            a(f"v_cndmask_b32 v{vP}, v{vP}, v{vt+1}, vcc")
            if with_act:
                a(f"v_cmp_lt_u32 vcc, 4, v{LN}\nv_mov_b32 v{vt+1}, s{t+2}\ns_nop 0\nv_cndmask_b32 v{vP}, v{vP}, v{vt+1}, vcc\nv_cndmask_b32 v{vt}, v{vt}, 2, vcc")

        a("s_setprio 0")
        if ADPRE != 2:
            a(f"v_lshrrev_b32 v{LN}, 4, v{vL16}")
            a(f"s_xor_b32 s{sLB}, s{sWAVE}, 4\ns_mul_i32 s{sLB}, s{sLB}, 20480\ns_mov_b32 s{sN208}, -208")
        a(f"s_lshl_b32 s{t+3}, s{sR64}, 8\ns_add_u32 s{t+3}, s{t+3}, {WS_G}\ns_add_u32 s{t}, s{sPQb}, 4096\ns_add_u32 s{t+1}, s{sPQb}, 8192")
        if LFLAG: a(f"v_and_b32 v{vP}, 1, v{LN}\nv_lshlrev_b32 v{vP}, 2, v{vP}")
        else: a(f"v_mov_b32 v{vP}, 0")
        if ADPRE == 1: emit(ad)
        if not NOE1: a("s_barrier")
        self.stamp(4)
        apoll = f"v_mov_b32 v{vP+1}, 0\ns_mov_b64 exec, 1\nbuffer_atomic_add v{vP+1}, v{vP}, {WSR}, s{sFa} offen sc0 sc1\ns_mov_b64 exec, -1"
        if ATP: a(apoll)
        elif WOPOS != "pre": a(f"buffer_load_dword v{vP+1}, v{vP}, {WSR}, s{sFa} offen sc1")
        self.pickup()
        if WOPOS == "pre":
            a("s_waitcnt lgkmcnt(0)")
            emit(dma(sMb, 13, 0, "wo"))
        if not ADPRE: emit(ad)
        a("s_waitcnt lgkmcnt(0)")
        for k in range(5): a(f"ds_write_b128 v{X+18}, v[{K0+4*k}:{K0+4*k+3}] offset:{13312 + 1024*k}")
        if ATP:
            lp, dn = a.newlabel("L_ap"), a.newlabel("L_apd")
            a(f"s_mov_b32 s{t+15}, 0")
            a.label(lp)
            a(f"s_waitcnt vmcnt(0)\nv_readfirstlane_b32 s{t+14}, v{vP+1}\ns_add_u32 s{t+15}, s{t+15}, 1\ns_cmp_ge_u32 s{t+14}, 2\ns_cbranch_scc1 {dn}")
            a(f"s_cmp_ge_u32 s{t+15}, {SPIN}\ns_cbranch_scc1 {dn}\ns_sleep {ATP}\n{apoll}\ns_branch {lp}")
            a.label(dn)
        elif WOPOS == "pre": self.poll(f"s{sFa}", 2, vP, vP + 1)
        else:
            a("s_waitcnt vmcnt(0)")
            if LFLAG == 1:
                sk = a.newlabel("L_sig")
                a(f"s_cmp_ge_u32 s{sWAVE}, 4\ns_cbranch_scc1 {sk}")
                self.stamp(5)
                self.signal(sF1, 46); self.signal(32, 46)
                a.label(sk)
            check(f"s{sFa}", 2)
        self.stamp(6)
        PR = {"a": {-1: 3, 2: 2, 5: 1, 6: 0}, "b": {-1: 3, 1: 2, 3: 1, 6: 0}, "c": {-1: 1, 5: 0}, "d": {-1: 2, 5: 1, 7: 0}, "e": {-1: 3, 3: 2, 6: 1, 8: 0}}.get(PRIO, {})
        prio = lambda k: a(f"s_setprio {PR[k]}") if k in PR else None
        prio(-1)
        emit(act(0))
        a(f"v_lshlrev_b32 v{vP}, 7, v{LN}\nv_add_u32 v{vP}, s{sFk}, v{vP}\nv_cmp_le_u32 vcc, 4, v{LN}\nv_mov_b32 v{vG+1}, s{sFq}\nv_mov_b32 v{vG}, 16")
        a(f"v_cndmask_b32 v{vP}, v{vP}, v{vG+1}, vcc\nv_cndmask_b32 v{vG}, v{vG}, 25, vcc")
        if LFLAG: a(f"v_cmp_lt_u32 vcc, 4, v{LN}\ns_add_u32 s{t+2}, s{sFa}, 8\nv_mov_b32 v{vG+1}, s{t+2}\nv_cndmask_b32 v{vP}, v{vP}, v{vG+1}, vcc\nv_cndmask_b32 v{vG}, v{vG}, 2, vcc")
        fv = lambda: (a(f"buffer_load_dword v{vP+1}, v{vP}, {WSR}, 0 offen sc1"), seq.append("fv"))
        if FVAT < 0: fv()
        emit(act(1) + act(2))
        fill = (lambda: dma(sMb, 13, 0, "wo")) if WOPOS == "s0" else (lambda: lateb(3))
        for i in range(5):
            prio(i)
            wait(f"act{i}")
            if TAILDBG == 2 and i < 4: self.stamp((2, 3, 5, 7)[i], "tail")
            emit(interleave(mlp(i, i == 0), fill() if fill else []))
            fill = None
            if i == 0 and WOPOS == "s1": fill = lambda: dma(sMb, 13, 0, "wo")
            if i == 3 and WOPOS == "s4": fill = lambda: dma(sMb, 13, 0, "wo")
            if i == FVAT: fv()
            if i < 2 and not (LFLAG and i == 1): emit(act(i + 3))
            if i == PQAT:
                wait("fv")
                check("0", f"v{vG}", 8)
                if TAILDBG == 2: self.stamp(4, "tail")
                if LFLAG: emit(act(4))
                a(f"v_and_b32 v{vP+1}, 15, v{LN}\nv_lshlrev_b32 v{vP+1}, 2, v{vP+1}")
                f1 = lambda: lateb(4) + pq(PQR, 0) + pq(PQR, 1) + gld(vP + 1)
                if FILLI and i < 2: fill = f1
                else: emit(f1())
            if i == 2:
                a(f"v_add_u32 v{KA+19}, s{sLB}, v{vL16}")
                for k in range(5): a(f"ds_read_b128 v[{KA+4*k}:{KA+4*k+3}], v{KA+19} offset:{13312 + 1024*k}")
                a("s_waitcnt lgkmcnt(0)")
                f2 = lambda: dma(sKv, 7, 13312, "kv") + (act(5) + lateb() if WOPOS != "x" else []) + (dma(sMb, 13, 0, "wo") if WOPOS == "s3" else [])
                if FILLI: fill = f2
                else: emit(f2())
        self.stamp(7)
        prio(5)
        emit(consts)
        KP = 120
        wait("kv")
        self.stamp(8)
        gather(KA, lambda j: 200 + 4*j if j < 8 else 140 + 4*(j - 8), KP, PQR, 8)
        Oset = {1: ([200, 204, 208, 212, 216], 220), 0: ([162, 166, 170, 174, 224], 228)}
        SC = [178, 179, vP + 1]
        fq = fqf(PQR)
        S = lambda k: KP + 2*k
        def Xb(st):
            O, DN = Oset[st & 1]
            p0, p1, ps = fq(st, 0), fq(st, 2), fq(st, 4)
            return [K32(DN, S(16), p0, acc(196) if LATEORD else "0"), K32(O[3], S(10), p1, "0"), K32(O[4], S(12), p1, "0"), K32(DN, S(18), p1, acc(DN)),
                    K32(O[0], S(0), p0, "0"), K32(O[1], S(2), p0, "0"), K32(O[2], S(6), p0, "0"), K32(O[1], S(4), p1, acc(O[1])), K32(O[2], S(8), p1, acc(O[2])),
                    "s_nop 0", K16(DN, S(20), ps), K16(O[3], S(14), ps), K16(O[4], S(15), ps)]
        def Vb(st):
            O, DN = Oset[st & 1]
            return scales(st, DN, SC) + sum((vtile(st, tt, O[tt], DN, SC, fq) for tt in range(5)), [])
        def Yb(st):
            r = []
            for p in range(2):
                r += [K32(20*st + 4*jn, MR + 4*(2*jn + p), fq(st, 2*p), acc(20*st + 4*jn)) for jn in range(5)]
            return r + ["s_nop 1"] + [K16(20*st + 4*jn, MR + 40 + 2*jn, fq(st, 4)) for jn in range(5)]
        a("s_nop 1")
        late = (act(5) + lateb() + dma(sMb, 13, 0, "wo")) if WOPOS == "x" else []
        if LATEORD:
            assert NB == 5 and WOPOS == "x"
            lastb = late[8:10]; late = late[:8] + late[10:]
            i5 = seq.index("act5") + 8; seq.pop(i5); seq.append("act5")
            for k in range(4): a(f"v_mov_b32 v{196+k}, 0x358637bd")
            a("s_nop 1")
        cuts = [0] + [len(late)*c//100 for c in XSPLIT] + [len(late)]
        emit(interleave(Xb(0), late[cuts[0]:cuts[1]]))
        for st in range(1, 4):
            x = Xb(st)
            emit(interleave(x[:6], late[cuts[st]:cuts[st+1]]) + (lastb if LATEORD and st == 3 else []) + interleave(x[6:], Vb(st - 1)))
        a(f"v_add_u32 v{TA}, s{sLB}, v{vL16}\nv_lshlrev_b32 v{TA+1}, 3, v{LN}\nv_add_u32 v{TA+1}, s{sLB}, v{TA+1}")
        wor = [f"ds_read_b128 v[{MR+4*f}:{MR+4*f+3}], v{TA} offset:{1024*f}" for f in range(10)]
        wor += [f"ds_read_b64 v[{MR+40+2*jn}:{MR+41+2*jn}], v{TA+1} offset:{10240 + 512*jn}" for jn in range(5)]
        prio(6)
        if WOPOS in ("s3", "s4", "x"):
            wait("act5")
            emit(interleave(mlp(5, False), Vb(3)))
            a("s_waitcnt vmcnt(0)")
            emit(wor + rw)
        else:
            emit(wor)
            wait("act5")
            emit(interleave(mlp(5, False), Vb(3) + rw))
        a("s_waitcnt lgkmcnt(0)")
        if RED == 2:
            def aset(B, T, sbase):
                return [f"v_add_u32 v{B}, {sbase}, v{LN}", f"v_mul_u32_u24 v{T}, 6554, v{B}", f"v_lshrrev_b32 v{T}, 16, v{T}", f"v_mad_i32_i24 v{T+1}, v{T}, -10, v{B}",
                        f"v_lshlrev_b32 v{B+4}, 2, v{T}", f"buffer_load_dword v{B+4}, v{B+4}, {WSR}, s{t+2} offen sc1",
                        f"v_bfe_u32 v{B+1}, v{T}, 2, 1", f"v_xor_b32 v{B}, v{B}, v{B+1}", f"v_mul_u32_u24 v{T}, 1280, v{T}", f"v_lshl_add_u32 v{B+3}, v{T+1}, 4, v{T}",
                        f"v_lshlrev_b32 v{B}, 4, v{B}", f"v_add_u32 v{B+1}, 61440, v{B}", f"v_add_u32 v{B+2}, 122880, v{B}"]
            def rsum(sets):
                items = [(B, m, D, w) for B, m, D in sets for w in range(8)]
                def rdp(n):
                    B, m, D, w = items[n]
                    r = [f"ds_read_b128 v[{D+8*w+4*par}:{D+8*w+4*par+3}], v{B + w // 3} offset:{20480*(w % 3) + 10240*par}" for par in range(2)]
                    return r if m is None else [m] + r + ["s_mov_b64 exec, -1"]
                AH = 6
                for n in range(AH): emit(rdp(n))
                for n, (B, m, D, w) in enumerate(items):
                    if n + AH < len(items): emit(rdp(n + AH))
                    if w == 0: continue
                    a(f"s_waitcnt lgkmcnt({2*min(AH, len(items) - 1 - n)})")
                    for j in range(4): a(f"v_pk_add_f32 v[{D+2*j}:{D+2*j+1}], v[{D+2*j}:{D+2*j+1}], v[{D+8*w+2*j}:{D+8*w+2*j+1}]")
                    if w == 7:
                        if n == 7 and len(sets) == 2: a("s_waitcnt vmcnt(0)")
                        for j in range(8): a(f"v_mul_f32 v{D+j}, v{B+4}, v{D+j}")
                        for j in range(4): a(f"v_cvt_pk_bf16_f32 v{D+j}, v{D+2*j}, v{D+2*j+1}")
                        if m: a(m)
                        a(f"buffer_store_dwordx4 v[{D}:{D+3}], v{B+3}, s[{SRD_M}:{SRD_M+3}], s{t} offen {OUTFL}")
                        if m: a("s_mov_b64 exec, -1")
            r2 = [f"s_mul_i32 s{t+3}, s{sWAVE}, 40", f"s_add_u32 s{t+3}, s{t+3}, 320"] + rd[3:5] + aset(170, 175, f"s{t+3}") + rd[-7:]
            emit(interleave(Yb(0), r2))
            prio(7)
            emit(interleave(Yb(1), wrl(0), 6))
            prio(8)
            emit(interleave(Yb(2), wrl(1), 6))
            lo, lj = a.newlabel("L_ro"), a.newlabel("L_rj")
            a(f"s_cmp_lt_u32 s{sWAVE}, 4\ns_cbranch_scc1 {lo}")
            y3 = Yb(3)
            emit(y3[:4]); a("s_waitcnt lgkmcnt(0)\ns_barrier"); emit(interleave(y3[4:], wrl(2), 2))
            a("s_nop 4")
            emit(wrl(3))
            a(f"s_waitcnt vmcnt(0)\ns_branch {lj}")
            a.label(lo)
            emit(interleave(Yb(3), [f"s_mul_i32 s{t+3}, s{sWAVE}, 80"] + aset(200, 210, f"s{t+3}")[:5] + wrl(2) + aset(200, 210, "0")[5:]))
            a(f"s_add_u32 s{t+3}, s{t+3}, 64")
            emit(aset(205, 210, f"s{t+3}")[:8] + wrl(3) + aset(205, 210, "0")[8:])
            a("s_waitcnt lgkmcnt(0)\ns_barrier")
            rsum([(200, None, 0), (205, "s_mov_b64 exec, 0xffff", 64)])
            a.label(lj)
            a("s_waitcnt lgkmcnt(0)\ns_barrier")
            self.stamp(9)
            rsum([(170, "s_mov_b32 exec_hi, 0xff", 128 - 48)])
            return
        emit(interleave(Yb(0), rd[:25]))
        prio(7)
        emit(interleave(Yb(1), rd[25:] + wrl(0), 2))
        prio(8)
        emit(interleave(Yb(2), wrl(1), 6))
        emit(interleave(Yb(3), wrl(2), 6))
        a("s_nop 4")
        emit(wrl(3))
        a("s_waitcnt lgkmcnt(0)\ns_barrier")
        self.stamp(9)
        if RED == 0:
            for k in range(2):
                if k == 1: a("s_mov_b64 exec, 0xffff")
                R = 64*k
                for w in range(8):
                    for par in range(2):
                        base = [RA + k, RA + 6 + k, RA + 8 + k][w // 3]
                        a(f"ds_read_b128 v[{R+8*w+4*par}:{R+8*w+4*par+3}], v{base} offset:{20480*(w % 3) + 10240*par}")
            a("s_mov_b64 exec, -1")
            for k in range(2):
                R = 64*k
                a(f"s_waitcnt lgkmcnt({15 if k == 0 else 0})")
                for pairs in (((0, 4), (1, 5), (2, 6), (3, 7)), ((0, 2), (1, 3)), ((0, 1),)):
                    for x, y in pairs:
                        for j in range(4):
                            a(f"v_pk_add_f32 v[{R+8*x+2*j}:{R+8*x+2*j+1}], v[{R+8*x+2*j}:{R+8*x+2*j+1}], v[{R+8*y+2*j}:{R+8*y+2*j+1}]")
                if k == 0: a("s_waitcnt vmcnt(0)")
                for j in range(8): a(f"v_mul_f32 v{R+j}, v{TA+2+k}, v{R+j}")
                for j in range(4): a(f"v_cvt_pk_bf16_f32 v{R+j}, v{R+2*j}, v{R+2*j+1}")
                if k == 1: a("s_mov_b64 exec, 0xffff")
                a(f"buffer_store_dwordx4 v[{R}:{R+3}], v{RA+4+k}, s[{SRD_M}:{SRD_M+3}], s{t} offen {OUTFL}")
            a("s_mov_b64 exec, -1")


        else:
            items = [(k, w) for k in range(2) for w in range(8)]
            def rdp(n):
                k, w = items[n]
                base = [RA + k, RA + 6 + k, RA + 8 + k][w // 3]
                r = [f"ds_read_b128 v[{8*n+4*par}:{8*n+4*par+3}], v{base} offset:{20480*(w % 3) + 10240*par}" for par in range(2)]
                return r if k == 0 else ["s_mov_b64 exec, 0xffff"] + r + ["s_mov_b64 exec, -1"]
            AH = 6
            for n in range(AH): emit(rdp(n))
            for n, (k, w) in enumerate(items):
                if n + AH < 16: emit(rdp(n + AH))
                if w == 0: continue
                a(f"s_waitcnt lgkmcnt({2*min(AH, 15 - n)})")
                R = 64*k
                for j in range(4):
                    a(f"v_pk_add_f32 v[{R+2*j}:{R+2*j+1}], v[{R+2*j}:{R+2*j+1}], v[{8*n+2*j}:{8*n+2*j+1}]")
                if w == 7:
                    if k == 0: a("s_waitcnt vmcnt(0)")
                    for j in range(8): a(f"v_mul_f32 v{R+j}, v{TA+2+k}, v{R+j}")
                    for j in range(4): a(f"v_cvt_pk_bf16_f32 v{R+j}, v{R+2*j}, v{R+2*j+1}")
                    if k == 1: a("s_mov_b64 exec, 0xffff")
                    a(f"buffer_store_dwordx4 v[{R}:{R+3}], v{RA+4+k}, s[{SRD_M}:{SRD_M+3}], s{t} offen {OUTFL}")
            a("s_mov_b64 exec, -1")


def descriptor(name):
    return f""".p2align 6
.amdhsa_kernel {name}
  .amdhsa_next_free_vgpr 256
  .amdhsa_next_free_sgpr 102
  .amdhsa_accum_offset 256
  .amdhsa_group_segment_fixed_size 0
  .amdhsa_kernarg_size 88
  .amdhsa_user_sgpr_count 2
  .amdhsa_user_sgpr_kernarg_segment_ptr 1
  .amdhsa_system_sgpr_workgroup_id_x 1
.end_amdhsa_kernel
"""

def build(stamps):
    ALT = 48 if ADPRE == 2 else None
    assert not (ADPRE == 2 and NE16)
    assert not LFLAG or (ROT2 == "none" and PQAT == 1 and not EARLYQ and WOPOS != "pre")
    g = Gen(stamps=stamps)
    a = g.a
    K = NAME + "_kernel"
    hdr = open(os.path.join(os.path.dirname(os.path.abspath(__file__)), "header.txt")).read()
    for l in hdr.strip().split("\n"): a.lines.append(l)
    a(f"; @launch grid=(256,1,1) block=(512,1,1) lds={LDS_TOTAL}")
    a('.amdgcn_target "amdgcn-amd-amdhsa--gfx950"\n.text')
    a(f".globl {K}\n.p2align 8\n.type {K},@function")
    a.label(K)
    g.common_prologue("L_end")
    a(f"s_cmp_lt_u32 s{sWAVE}, 4\ns_cbranch_scc1 L_comp")
    g.loader1()
    a(f"s_setprio {LPRIO}")
    if not NE16:
        g.setup2(ADPRE != 2)
        g.srd(SRD_WS, pWS, WS_SIZE)
    g.preload_b(NE16, NL0, alt=ALT)
    if K1LDS: a(f"v_mov_b32 v52, {K1C}\nv_mov_b32 v53, 0\nds_write_b32 v52, v53\ns_waitcnt lgkmcnt(0)")
    a("s_barrier")
    if SKEW: a(f"v_mov_b32 v6, {HINT}\nv_mov_b32 v8, 0\nv_mov_b32 v9, 0\nv_mov_b32 v10, 0\nv_mov_b32 v11, 0\nds_write_b128 v6, v[8:11]\ns_waitcnt lgkmcnt(0)")
    g.preload_b(NL0, NL1, TH, alt=ALT)
    if not K1LDS: a(f"s_cmp_lg_u32 s{sTYPE}, 0\ns_cbranch_scc1 L_l2\ns_barrier")
    a.label("L_l2")
    if DIAG != 3: g.preload_b(NL1, 5*NB, TH, alt=ALT)
    if BLDS and DIAG != 3: g.stage_b()
    g.stamp(3)
    a.label("L_g2")
    g.gemm2()
    g.dump_stamps()
    a.label("L_end")
    a("s_endpgm")
    a.label("L_comp")
    a(f"s_cmp_eq_u32 s{sTYPE}, 0\ns_cbranch_scc1 L_kv")
    g.compute_P(); a("s_branch L_g2")
    a.label("L_kv")
    g.compute_KV(); a("s_branch L_g2")
    a.label("L_code_end")
    errs = lint(a.lines)
    for e in errs: print("HAZARD:", e, file=sys.stderr)
    return a.text() + '.section .rodata,"a"\n' + descriptor(K)

if __name__ == "__main__":
    open(sys.argv[1], "w").write(build(sys.argv[2] if len(sys.argv) > 2 else False))
```

```python
import sys, os, re
sys.path.insert(0, os.path.dirname(os.path.abspath(__file__)))
from asmlib import *

NAME = "gated_mix__linear_attn_block__dense_activation_mish__prompt"
ENV = os.environ.get

CNT_ACT, CNT_PQ, CNT_KV = 0, 256*128, 288*128
DONE_KV, DONE_PQ = 320*128, 328*128
WS_G = 0x10000
WS_KVP = 0x100000
WS_WOR = 0x200000
WS_W2R = 0x300000
WS_PQ = 0x500000
WS_ACT = 0x800000
WS_SIZE = 0x1000000
WS_STAMP = 0x8000000
BIG = 0x20000000
DBGW = int(ENV("DBGW", "0"))
ROTMODE = ENV("ROT", "two")
ROT2 = ENV("ROT2", "none")
NPRE = int(ENV("NPRE", "10"))
SPIN = int(ENV("SPIN", str(0x100000)))
WOAT = 3
ADPRE = int(ENV("ADPRE", "2"))
KVAT = int(ENV("KVAT", "-1"))
GSYNC = int(ENV("GSYNC", "0"))
PF = int(ENV("PF", "0"))
RS = int(ENV("RS", "3"))
S1AT = int(ENV("S1AT", "8"))
S1SLEEP = int(ENV("S1SLEEP", "2"))
LOOPDBG = int(ENV("LOOPDBG", "0"))
CPF = int(ENV("CPF", "1"))
RD = int(ENV("RD", "-1"))
SKEW = int(ENV("SKEW", "0"))
HINT = 3*20480 + 12800
TAILDBG = int(ENV("TAILDBG", "0"))
OUTFL = ENV("OUTFL", "").replace("_", " ")
LFLAG = int(ENV("LFLAG", "0"))
FAKE = int(ENV("FAKE", "0"))
SPLIT = int(ENV("SPLIT", "1"))
YSLEEP = int(ENV("YSLEEP", "8"))
PQAT = int(ENV("PQAT", "1"))
FILLI = int(ENV("FILLI", "1"))
FIRST0 = int(ENV("FIRST0", "0"))
PRIO = ENV("PRIO", "c")
LOOK = ENV("LOOK", "xw")
GBR = int(ENV("GBR", "0"))
STPRIO = int(ENV("STPRIO", "1"))
NRE = int(ENV("NRE", "20"))
SPREAD = int(ENV("SPREAD", "0"))
NE16 = int(ENV("NE16", "0"))
NL1 = int(ENV("NL1", "18"))
K1LDS = int(ENV("K1LDS", "1"))
K1C = 40960 + 2032
FVAT = int(ENV("FVAT", "0"))
WOPOS = ENV("WOPOS", "x")
RED = int(ENV("RED", "2"))
DIAG = int(ENV("DIAG", "0"))
LPRIO = int(ENV("LPRIO", "0"))
EPRIO = int(ENV("EPRIO", "0"))
TH = int(ENV("TH", "4"))
EARLYQ = int(ENV("EARLYQ", "0"))
NB = int(ENV("NB", "5"))
NTH = int(ENV("NTH", "36"))
XSPLIT = [int(v) for v in ENV("XSPLIT", "30,55,80").split(",")]
LRP = int(ENV("LRP", "0"))
MBOX = 161792
STRICTP = int(ENV("STRICTP", "1"))
LATEORD = int(ENV("LATEORD", "0"))
B20AT = int(ENV("B20AT", "14"))
MAP1 = ENV("MAP1", "q")
ROTQ = int(ENV("ROTQ", "1"))
RG = int(ENV("RG", "5"))
RX = int(ENV("RX", "2"))
RTAB = [int(c) for c in ENV("RTAB", "03703703")]
XTAB = [int(c) for c in ENV("XTAB", "01201212")]
RTABP = [int(c) for c in ENV("RTABP", ENV("RTAB", "03703703"))]
RCM = int(ENV("RCM", "1"))
NOE1 = int(ENV("NOE1", "0"))
ATP = int(ENV("ATP", "2"))
FAST0 = int(ENV("FAST0", "1"))
LP2 = int(ENV("LP2", "2"))
CP = int(ENV("CP", "0"))
NRK = int(ENV("NRK", "24"))
LARR = int(ENV("LARR", "2"))
A2L = int(ENV("A2L", "0"))
EARLYA = int(ENV("EARLYA", "0"))
B1M = int(ENV("B1M", "0"))
APRE = int(ENV("APRE", "0"))
R1E = int(ENV("R1E", "0"))
PLA = int(ENV("PLA", "0"))
QLAST = int(ENV("QLAST", "0"))
NPL = int(ENV("NPL", "1"))
PICK = int(ENV("PICK", "0"))
SLEEP = int(ENV("SLEEP", "8"))
BLDS = int(ENV("BLDS", "1"))
NL0 = int(ENV("NL0", "15"))
MAP2 = ENV("MAP2", "x2")
TOUCH = int(ENV("TOUCH", "0"))
MSDBG = int(ENV("MSDBG", "0"))
MSPRIO = int(ENV("MSPRIO", "1"))
MSPRIO2 = int(ENV("MSPRIO2", "1"))

XR = 0
STG = 40960
WR = 49152
WSLOT = 14336
NS = 6
GATE = WR + NS * WSLOT
SCR = GATE + 2048
MS = WR
BL = WR + 32768
BLF = STG + 2040
LDS_TOTAL = 163840

sWG = 2
pX, pWQKV, pWO, pW1, pB1, pW2, pGATE, pOUT, pDBG, pWS = 4, 6, 8, 12, 14, 16, 18, 20, 22, 24
sWAVE, sRB, sHALF, sCBL, sGRP, sF1, sROT, sPIDX, sTYPE, sT = 26, 27, 28, 29, 30, 31, 32, 33, 34, 35
SRD_WS, SRD_X, SRD_W, SRD_M, SRD_D = 36, 40, 44, 52, 56
T0 = 60
sST = 76
cL2E, cC, cE = 96, 98, 100
sR64, sC = 27, 28
sB0, sA0 = 40, 46
sPQb, sMb, sKv, sFk = 0, 1, 3, 29
sFa, sFq = 10, 11
BS, AB = 80, 200
PQR, MR, KA, KD = 80, 120, 120, 176
sLB, sN208 = 30, 33
vG, vP, vL16, vL16b = 248, 252, 254, 255
WSR = f"s[{SRD_WS}:{SRD_WS+3}]"


class Gen:
    def __init__(self, stamps=False):
        self.a = Asm()
        self.stamps = stamps

    def stamp(self, k, loop=False):
        if loop == "tail":
            if not TAILDBG: return
        elif TAILDBG and 1 <= k <= 7 and not (TAILDBG == 2 and k == 6): return
        elif LOOPDBG and k >= 3 and not loop: return
        elif loop and not LOOPDBG: return
        if self.stamps and not (self.stamps == "dbg" and k == 9):
            if k < 2 and self.stamps != "dbg" and loop != "tail":
                self.a(f"s_memtime s[58:59]\ns_waitcnt lgkmcnt(0)\ns_mov_b32 s{sST+2*k}, s58")
            else:
                self.a(f"s_memtime s[{sST+2*k}:{sST+2*k+1}]")

    def srd(self, d, ptr, size, add=None):
        a = self.a
        if add is None:
            a(f"s_mov_b32 s{d}, s{ptr}\ns_mov_b32 s{d+1}, s{ptr+1}")
        else:
            a(f"s_add_u32 s{d}, s{ptr}, {add}\ns_addc_u32 s{d+1}, s{ptr+1}, 0")
        a(f"s_mov_b32 s{d+2}, {size}\ns_mov_b32 s{d+3}, 0x20000")

    def signal(self, soff, v, off=0):
        self.a(f"v_mov_b32 v{v}, 1\nv_mov_b32 v{v+1}, 0\ns_mov_b64 exec, 1\nbuffer_atomic_add v{v}, v{v+1}, {WSR}, s{soff} offen offset:{off} sc1\ns_mov_b64 exec, -1")

    def arrive(self, soff, v):
        self.a(f"v_mov_b32 v{v}, 1\nv_mov_b32 v{v+1}, 0\ns_mov_b64 exec, 1\nbuffer_atomic_add v{v}, v{v+1}, {WSR}, s{soff} offen sc0 sc1\ns_mov_b64 exec, -1")

    def raise_if_last(self, v, last, soff):
        a = self.a
        sk = a.newlabel("L_last")
        a(f"v_readfirstlane_b32 s{T0+14}, v{v}\nv_mov_b32 v{v}, 1\nv_mov_b32 v{v+1}, 0\ns_cmp_lg_u32 s{T0+14}, {last}\ns_cbranch_scc1 {sk}")
        a(f"s_mov_b64 exec, 1\nbuffer_store_dword v{v}, v{v+1}, {WSR}, s{soff} offen sc1\ns_mov_b64 exec, -1")
        a.label(sk)

    def poll(self, soff, target, va, vd, srd=SRD_WS, sleep=None):
        a = self.a
        t = T0 + 15
        loop, done = a.newlabel("L_poll"), a.newlabel("L_polld")
        a(f"s_mov_b32 s{t}, 0")
        a.label(loop)
        a(f"buffer_load_dword v{vd}, v{va}, s[{srd}:{srd+3}], {soff} offen sc1\ns_waitcnt vmcnt(0)")
        a(f"v_cmp_le_u32 vcc, {target}, v{vd}\ns_add_u32 s{t}, s{t}, 1\ns_nop 0")
        a(f"s_cmp_eq_u64 vcc, -1\ns_cbranch_scc1 {done}")
        a(f"s_sleep {SLEEP if sleep is None else sleep}\ns_cmp_lt_u32 s{t}, {SPIN}\ns_cbranch_scc1 {loop}")
        a.label(done)

    def dump_stamps(self):
        if not self.stamps:
            return
        a = self.a
        a("s_waitcnt vmcnt(0) lgkmcnt(0)")
        a(f"s_memrealtime s[{T0}:{T0+1}]\ns_memtime s[{T0+2}:{T0+3}]")
        if self.stamps == "dbg":
            self.srd(SRD_M, pDBG, 256)
            a("s_waitcnt lgkmcnt(0)\nv_mov_b32 v2, 0\ns_mov_b64 exec, 1")
            sk = a.newlabel("L_dbg")
            a(f"s_lshl_b32 s{T0+5}, s{sWG}, 3\ns_add_u32 s{T0+5}, s{T0+5}, s{sWAVE}\ns_cmp_lg_u32 s{T0+5}, {DBGW}\ns_cbranch_scc1 {sk}")
            for k in range(1, 10):
                a(f"s_sub_u32 s{T0+5}, s{sST+2*k}, s{sST}\nv_mov_b32 v{3+k}, s{T0+5}")
            a(f"s_sub_u32 s{T0+5}, s{T0+2}, s{sST}\nv_mov_b32 v13, s{T0+5}\ns_sub_u32 s{T0+5}, s{T0}, s94\nv_mov_b32 v14, s{T0+5}\nv_mov_b32 v15, s94")
            for k in range(3):
                a(f"buffer_store_dwordx4 v[{4+4*k}:{7+4*k}], v2, s[{SRD_M}:{SRD_M+3}], 0 offen offset:{16+16*k}")
            a.label(sk)
            a("s_waitcnt vmcnt(0)")
            return
        a(f"s_getreg_b32 s{T0+4}, hwreg(HW_REG_XCC_ID)")
        self.srd(SRD_M, pWS, 0x10000000)
        a("s_waitcnt lgkmcnt(0)")
        for k in range(10):
            a(f"v_mov_b32 v{k}, s{sST+2*k}")
        a(f"v_mov_b32 v10, s{T0}\nv_mov_b32 v11, s{T0+2}\nv_mov_b32 v12, s{T0+4}\nv_mov_b32 v13, s{sTYPE}\nv_mov_b32 v14, s77\nv_mov_b32 v15, s79")
        a(f"s_lshl_b32 s{T0+5}, s{sWG}, 3\ns_add_u32 s{T0+5}, s{T0+5}, s{sWAVE}\ns_lshl_b32 s{T0+5}, s{T0+5}, 6\ns_add_u32 s{T0+5}, s{T0+5}, {WS_STAMP}")
        a("v_mov_b32 v16, 0\ns_mov_b64 exec, 1")
        for k in range(4):
            a(f"buffer_store_dwordx4 v[{4*k}:{4*k+3}], v16, s[{SRD_M}:{SRD_M+3}], s{T0+5} offen offset:{16*k}")
        a("s_waitcnt vmcnt(0)")

    def common_prologue(self, endlabel):
        a = self.a
        t = T0
        a(f"s_cmp_ge_u32 s{sWG}, 256\ns_cbranch_scc1 {endlabel}")
        a("s_load_dwordx16 s[4:19], s[0:1], 0\ns_load_dwordx4 s[20:23], s[0:1], 64\ns_load_dwordx2 s[24:25], s[0:1], 80")
        if self.stamps:
            for k in range(10): a(f"s_mov_b32 s{sST+2*k}, 0")
            if self.stamps == "dbg": a("s_memrealtime s[94:95]")
            else: a("s_memrealtime s[56:57]\ns_memtime s[58:59]\ns_waitcnt lgkmcnt(0)\ns_mov_b32 s77, s56\ns_mov_b32 s79, s58")
        if CPF:
            sk = a.newlabel("L_cpf")
            a(f"s_getpc_b64 s[{t}:{t+1}]\nL_pc0:\ns_lshr_b32 s{t+2}, s{sWG}, 3\ns_lshl_b32 s{t+2}, s{t+2}, 11\nv_lshlrev_b32 v2, 4, v0\nv_add_u32 v2, s{t+2}, v2")
            a(f"v_cmp_gt_u32 vcc, 128, v0\nv_min_u32 v2, L_code_end-L_pc0-16, v2\ns_and_saveexec_b64 s[{t+4}:{t+5}], vcc\ns_cbranch_execz {sk}")
            a(f"global_load_dwordx4 v[248:251], v2, s[{t}:{t+1}]")
            a.label(sk)
            a(f"s_mov_b64 exec, s[{t+4}:{t+5}]")
        a("v_lshrrev_b32 v1, 6, v0\nv_and_b32 v0, 63, v0")
        a(f"v_readfirstlane_b32 s{sWAVE}, v1")
        if MAP1 == "h":
            a(f"s_bfe_u32 s{t+2}, s{sWG}, 0x20001\ns_bfe_u32 s{t+3}, s{sWG}, 0x20003")
            a(f"s_lshl2_add_u32 s{sRB}, s{t+2}, s{t+3}\ns_and_b32 s{sHALF}, s{sWG}, 1\ns_lshr_b32 s{sCBL}, s{sWG}, 5")
            a(f"s_and_b32 s{t}, s{sCBL}, 3\ns_lshl2_add_u32 s{sGRP}, s{sHALF}, s{t}\ns_lshr_b32 s{sTYPE}, s{sCBL}, 2")
        else:
            a(f"s_bfe_u32 s{t+2}, s{sWG}, 0x10002\ns_bfe_u32 s{t+3}, s{sWG}, 0x30003\ns_lshl3_add_u32 s{sRB}, s{t+2}, s{t+3}")
            a(f"s_bfe_u32 s{sHALF}, s{sWG}, 0x10001\ns_lshr_b32 s{sTYPE}, s{sWG}, 7\ns_bfe_u32 s{t}, s{sWG}, 0x10006\ns_and_b32 s{t+1}, s{sWG}, 1")
            a(f"s_lshl1_add_u32 s{t+4}, s{t+1}, s{t}\ns_lshl1_add_u32 s{t+5}, s{t}, s{t+1}\ns_cmp_eq_u32 s{sTYPE}, 0\ns_cselect_b32 s{t}, s{t+4}, s{t+5}")
            a(f"s_lshl2_add_u32 s{sCBL}, s{sTYPE}, s{t}\ns_lshl2_add_u32 s{sGRP}, s{sHALF}, s{t}")
            tab = sum(v << (4*n) for n, v in enumerate(RTAB))
            xtab = sum(v << (4*n) for n, v in enumerate(XTAB))
            a(f"s_lshr_b32 s{t+4}, s{sWG}, 6\ns_mul_i32 s{t+4}, s{t+4}, {RCM}\ns_add_u32 s{t+4}, s{t+4}, s{t+3}\ns_and_b32 s{t+4}, s{t+4}, 7\ns_lshl_b32 s{t+4}, s{t+4}, 2")
            tabp = sum(v << (4*n) for n, v in enumerate(RTABP))
            if tabp != tab: a(f"s_mov_b32 s{t+5}, {tabp:#x}\ns_cmp_eq_u32 s{sTYPE}, 0\ns_cselect_b32 s{t+5}, {tab:#x}, s{t+5}\ns_lshr_b32 s{t+4}, s{t+5}, s{t+4}\ns_and_b32 s{t+4}, s{t+4}, 15")
            else: a(f"s_lshr_b32 s{t+4}, {tab:#x}, s{t+4}\ns_and_b32 s{t+4}, s{t+4}, 15")
            a(f"s_and_b32 s{t+5}, s{sWG}, 7\ns_lshl_b32 s{t+5}, s{t+5}, 2\ns_lshr_b32 s{t+5}, {xtab:#x}, s{t+5}\ns_and_b32 s{t+5}, s{t+5}, 15\ns_add_u32 s{sROT}, s{t+4}, s{t+5}")
            if max(RTAB + RTABP) + max(XTAB) >= 10: a(f"s_sub_u32 s{t+4}, s{sROT}, 10\ns_cmp_ge_u32 s{sROT}, 10\ns_cselect_b32 s{sROT}, s{t+4}, s{sROT}")
        if MAP1 != "h": pass
        elif ROTMODE == "full":
            a(f"s_mul_i32 s{t+4}, s{t+3}, 5\ns_add_u32 s{t+4}, s{t+4}, 1\ns_lshr_b32 s{t+4}, s{t+4}, 1")
            a(f"s_add_u32 s{t+4}, s{t+4}, s{sCBL}\ns_add_u32 s{t+4}, s{t+4}, s{t+2}")
            a(f"s_mul_i32 s{t+5}, s{sHALF}, 5\ns_add_u32 s{sROT}, s{t+4}, s{t+5}")
            for _ in range(2):
                a(f"s_sub_u32 s{t+4}, s{sROT}, 10\ns_cmp_ge_u32 s{sROT}, 10\ns_cselect_b32 s{sROT}, s{t+4}, s{sROT}")
        elif ROTMODE == "none":
            a(f"s_mov_b32 s{sROT}, 0")
        elif ROTMODE == "xcd":
            a(f"s_mul_i32 s{t+4}, s{t+2}, 5\ns_add_u32 s{t+4}, s{t+4}, 1\ns_lshr_b32 s{t+4}, s{t+4}, 1\ns_add_u32 s{sROT}, s{t+4}, s{sHALF}")
        elif ROTMODE == "two0":
            a(f"s_add_u32 s{t+4}, s{t+3}, s{sCBL}\ns_and_b32 s{t+4}, s{t+4}, 1\ns_mul_i32 s{sROT}, s{t+4}, 5")
        elif ROTMODE == "two1":
            a(f"s_add_u32 s{t+4}, s{t+3}, s{sCBL}\ns_and_b32 s{t+4}, s{t+4}, 1\ns_mul_i32 s{t+4}, s{t+4}, 5\ns_and_b32 s{t+5}, s{t+2}, 1\ns_lshl1_add_u32 s{sROT}, s{t+5}, s{t+4}")
        elif ROTMODE == "two":
            a(f"s_add_u32 s{t+4}, s{t+3}, s{sCBL}\ns_and_b32 s{t+4}, s{t+4}, 1\ns_mul_i32 s{t+4}, s{t+4}, 5")
            a(f"s_add_u32 s{t+4}, s{t+4}, s{t+2}\ns_add_u32 s{sROT}, s{t+4}, s{sHALF}")

    def loader1(self):
        a = self.a
        t = T0
        sLW = sT
        vXE, vXO, vW, vGt = 2, 3, 4, 8
        sStr, sCol, sA32, sA64, sOff, sXo, sWB, sWB2, sXB, sXP, sSel = 48, 49, 50, 51, t+4, t+5, t+6, t+7, t+8, t+9, t+10
        sKind = 72
        a(f"s_setprio 2\ns_sub_u32 s{sLW}, s{sWAVE}, 4")
        a("v_lshrrev_b32 v10, 3, v0\nv_and_b32 v11, 7, v0\nv_lshrrev_b32 v12, 4, v0\nv_mul_u32_u24 v13, 1280, v10\nv_xor_b32 v14, v11, v12")
        a(f"s_and_b32 s{t}, s{sLW}, 1\ns_lshl_b32 s{t}, s{t}, 6")
        a(f"v_lshl_add_u32 v13, v14, 4, v13\nv_xor_b32 v{vXE}, s{t}, v13\nv_xor_b32 v{vXO}, 64, v{vXE}")
        if FAST0: a("v_mov_b32 v16, v13\nv_xor_b32 v17, 64, v13")
        if FIRST0: a(f"s_mov_b32 s{sA32}, 0\ns_mov_b32 s{sA64}, 0\ns_min_u32 s{sROT}, s{sROT}, 8")
        else: a(f"s_lshl_b32 s{sA32}, s{sROT}, 1\ns_mov_b32 s{sA64}, s{sROT}")
        a(f"s_mul_i32 s{sXB}, s{sLW}, 3072\ns_mul_i32 s{sXP}, s{sLW}, 30720")
        for k in range(6, 10): a(f"v_mov_b32 v{k}, {BIG}")
        if FAST0: a(f"s_mov_b32 s{sWB2}, 0")
        lKV, lQH, lLN, lJ = a.newlabel("L_wkv"), a.newlabel("L_wqh"), a.newlabel("L_wln"), a.newlabel("L_wj")
        a(f"s_cmp_eq_u32 s{sTYPE}, 0\ns_cbranch_scc1 {lKV}")
        a(f"s_cmp_eq_u32 s{sLW}, 3\ns_cbranch_scc1 {lQH}")
        a(f"s_mov_b32 s{sSel}, 1\ns_mov_b32 s{sStr}, 3072\ns_mul_i32 s{sCol}, s{sGRP}, 3\ns_add_u32 s{sCol}, s{sCol}, s{sLW}\ns_lshl_b32 s{sCol}, s{sCol}, 7\ns_lshl_b32 s{sWB}, s{sLW}, 12")
        a.label(lLN)
        a(f"v_and_b32 v13, 4, v10\nv_add_u32 v13, v13, v10\nv_mul_u32_u24 v13, s{sStr}, v13\nv_lshlrev_b32 v12, 1, v12\nv_xor_b32 v12, v11, v12\nv_lshl_add_u32 v{vW}, v12, 4, v13")
        a(f"s_lshl_b32 s{t}, s{sStr}, 4\ns_lshl_b32 s{t+1}, s{sStr}, 2\nv_add_u32 v{vW+1}, s{t}, v{vW}\nv_add_u32 v{vW+2}, s{t+1}, v{vW}\nv_add_u32 v{vW+3}, s{t}, v{vW+2}")
        a(f"s_branch {lJ}")
        a.label(lQH)
        a(f"s_mov_b32 s{sSel}, 0\ns_mov_b32 s{sStr}, 3840\ns_lshl_b32 s{sCol}, s{sHALF}, 1\ns_add_u32 s{sCol}, s{sCol}, s{sCBL}\ns_add_u32 s{sCol}, s{sCol}, 12\ns_lshl_b32 s{sCol}, s{sCol}, 6")
        a(f"s_cmp_lt_u32 s{sCBL}, 6\ns_cselect_b32 s{sCol}, s{sCol}, {BIG}\ns_mov_b32 s{sWB}, 12288\ns_mov_b32 s{sWB2}, 13312")
        a(f"v_lshrrev_b32 v10, 2, v0\nv_and_b32 v13, 12, v10\nv_add_u32 v13, v13, v10\nv_mul_u32_u24 v13, 3840, v13\nv_and_b32 v11, 3, v0\nv_and_b32 v12, 1, v12\nv_lshlrev_b32 v12, 1, v12\nv_xor_b32 v12, v11, v12")
        a(f"v_lshl_add_u32 v{vW}, v12, 4, v13\nv_add_u32 v{vW+1}, 15360, v{vW}")
        a(f"s_lshl_b32 s{t}, s{sROT}, 3\nv_mov_b32 v14, {BIG}")
        for j in range(2):
            if FIRST0:
                a(f"v_add_u32 v10, {64*j}, v0\nv_add_u32 v11, s{t}, v10\nv_subrev_u32 v12, 72, v11\nv_cmp_gt_u32 vcc, 80, v11\ns_nop 1\nv_cndmask_b32 v11, v12, v11, vcc\nv_cmp_gt_u32 vcc, 8, v10\ns_nop 1\nv_cndmask_b32 v11, v11, v10, vcc")
                a(f"v_cmp_gt_u32 vcc, 80, v10\nv_lshlrev_b32 v11, 4, v11\ns_nop 0\nv_cndmask_b32 v{vGt+j}, v14, v11, vcc")
            else:
                a(f"v_add_u32 v10, {64*j}, v0\nv_add_u32 v11, s{t}, v10\nv_cmp_gt_u32 vcc, 80, v10\nv_subrev_u32 v12, 80, v11\nv_min_u32 v11, v11, v12\nv_lshlrev_b32 v11, 4, v11\nv_cndmask_b32 v{vGt+j}, v14, v11, vcc")
        a(f"s_branch {lJ}")
        a.label(lKV)
        a(f"s_mov_b32 s{sSel}, 0\ns_mov_b32 s{sStr}, 3840\ns_mul_i32 s{sWB}, s{sLW}, 5120\ns_lshl_b32 s{sCol}, s{sGRP}, 7")
        a(f"s_cmp_eq_u32 s{sLW}, 2\ns_cbranch_scc1 {lLN}")
        a(f"s_mul_i32 s{sCol}, s{sGRP}, 160\ns_cmp_eq_u32 s{sLW}, 1\ns_cselect_b32 s{t}, 2560, 1280\ns_add_u32 s{sCol}, s{sCol}, s{t}")
        a(f"s_cmp_eq_u32 s{sLW}, 3\ns_cselect_b32 s{t}, 256, 0\ns_cselect_b32 s{sWB}, 4096, s{sWB}\ns_mov_b32 s{sWB2}, 9216")
        a(f"v_add_u32 v14, s{t}, v0")
        for j in range(4):
            a(f"v_add_u32 v10, {64*j}, v14\nv_mul_u32_u24 v11, 6554, v10\nv_lshrrev_b32 v11, 16, v11\nv_mad_i32_i24 v10, v11, -10, v10")
            a("v_and_b32 v12, 12, v11\nv_and_b32 v13, 3, v11\nv_lshl_or_b32 v12, v12, 1, v13\nv_bfe_u32 v13, v11, 4, 1\nv_lshl_or_b32 v12, v13, 2, v12")
            a(f"v_mul_u32_u24 v12, 3840, v12\nv_lshl_add_u32 v{vW+j}, v10, 4, v12")
            if j == 0:
                a(f"v_add_u32 v{vW+1}, 1280, v{vW}\ns_cmp_eq_u32 s{sLW}, 3\ns_cbranch_scc1 {lJ}")
        a.label(lJ)
        a(f"s_lshl_b32 s{sStr}, s{sStr}, 5\ns_mul_i32 s{t}, s{sRB}, 163840")
        a("s_waitcnt lgkmcnt(0)")
        self.stamp(0)
        self.srd(SRD_X, pX, 163840, add=f"s{t}")
        if FAST0:
            a(f"s_mul_i32 s{sXo}, s{sLW}, 40960\ns_lshl_b32 s{t}, s{sA64}, 7\ns_add_u32 s{sXo}, s{sXo}, s{t}\ns_lshl_b32 s{t}, s{sLW}, 12")
            for j in range(4):
                a(f"s_add_u32 m0, s{t}, {XR + 1024*j}\n" + ("s_nop 0" if j == 0 else f"s_add_u32 s{sXo}, s{sXo}, 10240") + f"\nbuffer_load_dwordx4 v{16 + (j & 1)}, s[{SRD_X}:{SRD_X+3}], s{sXo} offen lds")
        a(f"s_cmp_eq_u32 s{sSel}, 0\ns_cselect_b32 s{SRD_W}, s{pWQKV}, s{pW1}\ns_cselect_b32 s{SRD_W+1}, s{pWQKV+1}, s{pW1+1}\ns_cselect_b32 s{SRD_W+2}, {640*1920*2}, {640*1536*2}\ns_mov_b32 s{SRD_W+3}, 0x20000")
        if FAST0:
            if FIRST0: a(f"s_add_u32 s{sA64}, s{sROT}, 1")
            else: a(f"s_add_u32 s{sA64}, s{sA64}, 1\ns_cmp_eq_u32 s{sA64}, 10\ns_cselect_b32 s{sA64}, 0, s{sA64}")
            g4, gj = a.newlabel("L_f4"), a.newlabel("L_fj")
            a(f"s_add_u32 s{t+1}, s{sWB}, 1024\ns_cmp_eq_u32 s{sLW}, 3\ns_cselect_b32 s{t+1}, s{sWB2}, s{t+1}\ns_cselect_b32 s{t+2}, s{sCBL}, 0\ns_cmp_ge_u32 s{t+2}, 6\ns_cbranch_scc1 {g4}")
            for i in range(2):
                sk = a.newlabel("L_f2")
                a(f"s_mul_i32 s{sOff}, s{sA32}, s{sStr}\ns_add_u32 m0, s{sWB}, {WR + i*WSLOT}\ns_add_u32 s{sOff}, s{sOff}, s{sCol}\nbuffer_load_dwordx4 v{vW}, s[{SRD_W}:{SRD_W+3}], s{sOff} offen lds")
                a(f"s_add_u32 m0, s{t+1}, {WR + i*WSLOT}\ns_cmp_eq_u32 s{sLW}, 3\nbuffer_load_dwordx4 v{vW+1}, s[{SRD_W}:{SRD_W+3}], s{sOff} offen lds\ns_cbranch_scc1 {sk}")
                for j in (2, 3):
                    a(f"s_add_u32 m0, s{sWB}, {WR + i*WSLOT + 1024*j}\ns_nop 0\nbuffer_load_dwordx4 v{vW+j}, s[{SRD_W}:{SRD_W+3}], s{sOff} offen lds")
                a.label(sk)
                if FIRST0 and i == 1: a(f"s_lshl1_add_u32 s{sA32}, s{sROT}, 2")
                else: a(f"s_add_u32 s{sA32}, s{sA32}, 1\ns_cmp_eq_u32 s{sA32}, 20\ns_cselect_b32 s{sA32}, 0, s{sA32}")
            a(f"s_branch {gj}")
            a.label(g4)
            self.srd(SRD_M, pGATE, 1280)
            for j in range(2):
                a(f"s_mov_b32 m0, {GATE + 1024*j}\ns_nop 0\nbuffer_load_dwordx4 v{vGt+j}, s[{SRD_M}:{SRD_M+3}], 0 offen lds")
            a.label(gj)
        lab3, lab4, labj = a.newlabel("L_ld3"), a.newlabel("L_ld4"), a.newlabel("L_ldj")
        lab0k, lab3k = a.newlabel("L_ld0k"), a.newlabel("L_ld3k")
        a(f"s_cmp_eq_u32 s{sLW}, 3\ns_cbranch_scc1 {lab3}")
        for variant, rp in (((0, 1), (0, 0), (3, 1), (3, 0), (4, 1)) if LRP else ((0, 0), (3, 0), (4, 0))):
            if LRP and (variant, rp) == (0, 1): a(f"s_cmp_eq_u32 s{sTYPE}, 0\ns_cbranch_scc1 {lab0k}")
            if LRP and (variant, rp) == (0, 0): a.label(lab0k)
            if LRP and (variant, rp) == (3, 0): a.label(lab3k)
            if variant == 3 and (rp or not LRP):
                a.label(lab3)
                a(f"s_cmp_ge_u32 s{sCBL}, 6\ns_cbranch_scc1 {lab4}")
                if LRP: a(f"s_cmp_eq_u32 s{sTYPE}, 0\ns_cbranch_scc1 {lab3k}")
            if variant == 4:
                a.label(lab4)
            nW = {0: 4, 3: 2, 4: 0}[variant]
            nX = 3 if variant == 0 else 7
            seq = []
            def issue_W(i):
                if nW == 0: return
                a(f"s_mul_i32 s{sOff}, s{sA32}, s{sStr}")
                for j in range(nW):
                    base, off = (sWB, 1024*j) if variant == 0 else ((sWB, sWB2)[j], 0)
                    a(f"s_add_u32 m0, s{base}, {WR + (i % NS)*WSLOT + off}")
                    a(f"s_add_u32 s{sOff}, s{sOff}, s{sCol}" if j == 0 else "s_nop 0")
                    a(f"buffer_load_dwordx4 v{vW+j}, s[{SRD_W}:{SRD_W+3}], s{sOff} offen lds")
                    seq.append(("W", i))
                if FIRST0 and i == 1: a(f"s_lshl1_add_u32 s{sA32}, s{sROT}, 2")
                else: a(f"s_add_u32 s{sA32}, s{sA32}, 1\ns_cmp_eq_u32 s{sA32}, 20\ns_cselect_b32 s{sA32}, {2 if FIRST0 else 0}, s{sA32}")
            def issue_X(jx):
                a(f"s_lshl_b32 s{sXo}, s{sA64}, 7")
                for j in range(nX):
                    a(f"s_add_u32 m0, s{sXB}, {XR + (jx % 3)*16384 + 1024*j}")
                    a(f"s_add_u32 s{sXo}, s{sXo}, " + (f"s{sXP}" if j == 0 else "10240"))
                    a(f"buffer_load_dwordx4 v{vXE + (j & 1)}, s[{SRD_X}:{SRD_X+3}], s{sXo} offen lds")
                    seq.append(("X", jx))
                if FIRST0 and jx == 0: a(f"s_add_u32 s{sA64}, s{sROT}, 1")
                else: a(f"s_add_u32 s{sA64}, s{sA64}, 1\ns_cmp_eq_u32 s{sA64}, 10\ns_cselect_b32 s{sA64}, {1 if FIRST0 else 0}, s{sA64}")
            def wait_for(items):
                last = max([n for n, it in enumerate(seq) if it in items] + [-1])
                if last >= 0: a(f"s_waitcnt vmcnt({len(seq) - 1 - last})")
            if FAST0:
                seq += [("X", 0)]*4 + [("W", 0)]*(nW if variant != 4 else 2) + [("W", 1)]*nW
            else:
                issue_X(0); issue_W(0)
                if variant == 4:
                    self.srd(SRD_M, pGATE, 1280)
                    for j in range(2):
                        a(f"s_mov_b32 m0, {GATE + 1024*j}\ns_nop 0\nbuffer_load_dwordx4 v{vGt+j}, s[{SRD_M}:{SRD_M+3}], 0 offen lds")
                        seq.append(("W", 0))
                issue_W(1)
            wait_for([("W", 0), ("X", 0)] + ([("W", 1)] if B1M == 1 else [])); self.stamp(1); a("s_barrier")
            issue_X(1)
            if B1M == 2: issue_W(2)
            if B1M == 3: issue_W(2); issue_W(3)
            if B1M != 1: wait_for([("W", 1)]); a("s_barrier")
            if B1M < 2: issue_W(2)
            if B1M < 3: issue_W(3)
            issue_X(2); issue_W(4)
            if LOOK == "full": issue_W(5)
            for j in range(1, 10):
                if j == (8 if NE16 else 9) and variant == 0:
                    sk = a.newlabel("L_s1skip")
                    a(f"s_cmp_lg_u32 s{sWAVE}, 4\ns_cbranch_scc1 {sk}")
                    self.srd(SRD_D, pDBG, 256)
                    a("v_mov_b32 v74, 128")
                    self.poll("0", 1, 74, 75, SRD_D, S1SLEEP)
                    a.label(sk)
                if rp and j == LRP + 2:
                    last = max(n for n, it in enumerate(seq) if it in (("W", 2*j), ("W", 2*j + 1), ("X", j)))
                    N = len(seq) - 1 - last
                    w1, w2, w3 = a.newlabel("L_wv"), a.newlabel("L_wv"), a.newlabel("L_wv")
                    a(f"s_cmp_eq_u32 s{sKind}, 1\ns_cbranch_scc1 {w1}\ns_cmp_eq_u32 s{sKind}, 2\ns_cbranch_scc1 {w2}\ns_waitcnt vmcnt({N})\ns_branch {w3}\n{w1}:\ns_waitcnt vmcnt({N+4})\ns_branch {w3}\n{w2}:\ns_waitcnt vmcnt({N+8})\n{w3}:")
                else:
                    wait_for([("W", 2*j), ("W", 2*j + 1), ("X", j)])
                if LARR and variant == 0 and j == S1AT//2 + LARR:
                    sk = a.newlabel("L_s1b")
                    a(f"s_cmp_lg_u32 s{sT+0}, 0\ns_cbranch_scc1 {sk}\ns_cmp_eq_u32 s{sTYPE}, 0\ns_cbranch_scc1 {sk}\nv_readfirstlane_b32 s{t}, v70\nv_mov_b32 v71, 1\ns_cmp_lg_u32 s{t}, 127\ns_cbranch_scc1 {sk}")
                    self.srd(SRD_D, pDBG, 256)
                    a(f"v_mov_b32 v69, 0\ns_mov_b64 exec, 1\nbuffer_store_dword v71, v69, s[{SRD_D}:{SRD_D+3}], 0 offen offset:128 sc1\ns_mov_b64 exec, -1")
                    a.label(sk)
                if rp and variant == 0 and j == LRP + 4:
                    sk = a.newlabel("L_s1b")
                    a(f"s_cmp_lg_u32 s{sWAVE}, 4\ns_cbranch_scc1 {sk}\nv_readfirstlane_b32 s{t}, v70\nv_mov_b32 v71, 1\ns_cmp_lg_u32 s{t}, 127\ns_cbranch_scc1 {sk}")
                    self.srd(SRD_D, pDBG, 256)
                    a(f"s_mov_b64 exec, 1\nbuffer_store_dword v71, v69, s[{SRD_D}:{SRD_D+3}], 0 offen offset:128 sc1\ns_mov_b64 exec, -1")
                    a.label(sk)
                a("s_barrier")
                if rp and j == LRP:
                    self.srd(SRD_WS, pWS, WS_SIZE)
                    sk = a.newlabel("L_z")
                    a(f"v_lshlrev_b32 v69, 4, v0\ns_cmp_ge_u32 s{sLW}, 2\ns_cbranch_scc1 {sk}\ns_lshl3_add_u32 s{t}, s{sRB}, s{sGRP}\ns_lshl_b32 s{t}, s{t}, 9\ns_mul_i32 s{t+1}, s{sLW}, {WS_KVP}\ns_add_u32 s{t}, s{t}, s{t+1}")
                    a("v_mov_b32 v64, 0\nv_mov_b32 v65, 0\nv_mov_b32 v66, 0\nv_mov_b32 v67, 0\ns_mov_b32 exec_hi, 0")
                    a(f"buffer_store_dwordx4 v[64:67], v69, {WSR}, s{t} offen sc1\ns_mov_b32 exec_hi, -1")
                    a.label(sk)
                if rp and variant == 0 and j == LRP + 3:
                    sk = a.newlabel("L_s1a")
                    a(f"s_cmp_lg_u32 s{sWAVE}, 4\ns_cbranch_scc1 {sk}")
                    self.srd(SRD_D, pDBG, 256)
                    a(f"v_mov_b32 v70, 1\ns_mov_b64 exec, 1\nbuffer_atomic_add v70, v69, s[{SRD_D}:{SRD_D+3}], 0 offen sc0 sc1\ns_mov_b64 exec, -1")
                    a.label(sk)
                if LOOK == "ramp" and j == 1: issue_W(5)
                if j + 1 < 10 and LOOK == "xw": issue_W(2*j + 3)
                if j + 2 < 10: issue_X(j + 2); issue_W(2*j + 4)
                if j + 2 < 10 and LOOK != "xw": issue_W(2*j + 5)
                if LARR and variant == 0 and j == S1AT//2:
                    sk = a.newlabel("L_s1a")
                    a(f"s_cmp_lg_u32 s{sT+0}, 0\ns_cbranch_scc1 {sk}\ns_cmp_eq_u32 s{sTYPE}, 0\ns_cbranch_scc1 {sk}")
                    self.srd(SRD_D, pDBG, 256)
                    a(f"v_mov_b32 v70, 1\nv_mov_b32 v69, 0\ns_mov_b64 exec, 1\nbuffer_atomic_add v70, v69, s[{SRD_D}:{SRD_D+3}], 0 offen sc0 sc1\ns_mov_b64 exec, -1")
                    a.label(sk)
                if rp and j == LRP:
                    a(f"s_lshl_b32 s{t}, s{sLW}, 6\ns_add_u32 s{t}, s{t}, {MBOX}\nv_mov_b32 v68, s{t}\nds_read_b128 v[16:19], v68\nds_read_b128 v[20:23], v68 offset:16\nds_read_b32 v24, v68 offset:32")
                    a(f"v_lshrrev_b32 v10, 2, v0\nv_and_b32 v11, 3, v0\nv_lshlrev_b32 v11, 3, v11\nv_lshl_add_u32 v10, v10, 7, v11\ns_lshl_b32 s{t}, s{sLW}, 12\ns_add_u32 s{t}, s{t}, {SCR}\nv_add_u32 v10, s{t}, v10")
                    for r in range(2):
                        for u in range(4):
                            a(f"ds_read_b64_tr_b16 v[{32+16*r+4*u}:{33+16*r+4*u}], v10 offset:{8192*r + 32*u}\nds_read_b64_tr_b16 v[{34+16*r+4*u}:{35+16*r+4*u}], v10 offset:{8192*r + 32*u + 2048}")
                    a(f"s_waitcnt lgkmcnt(0)\nv_readfirstlane_b32 s{sKind}, v24\nv_lshrrev_b32 v25, 1, v69")
                    for u in range(4): a(f"v_add_u32 v{16+u}, v{16+u}, v69")
                    for u in range(4):
                        a(f"buffer_store_dwordx4 v[{32+4*u}:{35+4*u}], v{16+u}, {WSR}, 0 offen sc1"); seq.append(("S", u))
                if rp and j == LRP + 1:
                    k2, k3 = a.newlabel("L_r2"), a.newlabel("L_r2")
                    a(f"s_cmp_eq_u32 s{sKind}, 0\ns_cbranch_scc1 {k2}\ns_cmp_eq_u32 s{sKind}, 2\ns_cbranch_scc1 {k3}")
                    for u in range(4): a(f"v_add_u32 v{20+u}, v{20+u}, v69\nbuffer_store_dwordx4 v[{48+4*u}:{51+4*u}], v{20+u}, {WSR}, 0 offen sc1")
                    a(f"s_branch {k2}\n{k3}:\ns_mov_b32 s{t}, 12800")
                    for u in range(4): a(f"v_add_u32 v{20+u}, v{20+u}, v25\nbuffer_store_dwordx2 v[{48+4*u}:{49+4*u}], v{20+u}, {WSR}, 0 offen sc1\nbuffer_store_dwordx2 v[{50+4*u}:{51+4*u}], v{20+u}, {WSR}, s{t} offen sc1")
                    a.label(k2)
                if ADPRE == 2 and 4 <= j < 8: self.adpart(j - 4)
                if j == 8 and NE16:
                    self.setup2()
                    self.srd(SRD_WS, pWS, WS_SIZE)
                    self.preload_b(0, NE16)
                    seq.extend(["B"] * NE16)
            if variant != 4:
                a(f"s_branch {labj}")
        a.label(labj)
        self.stamp(2)

    def mish_quad(self, h, dst, tmp):
        P = lambda r: f"v[{r}:{r+1}]"
        return [
            f"v_pk_fma_f32 {P(tmp)}, {P(h)}, s[{cL2E}:{cL2E+1}], -0.5 op_sel_hi:[1,1,0]",
            f"v_pk_fma_f32 {P(tmp+2)}, {P(h+2)}, s[{cL2E}:{cL2E+1}], -0.5 op_sel_hi:[1,1,0]",
            f"v_exp_f32 v{tmp}, v{tmp}", f"v_exp_f32 v{tmp+1}, v{tmp+1}", f"v_exp_f32 v{tmp+2}, v{tmp+2}", f"v_exp_f32 v{tmp+3}, v{tmp+3}",
            f"v_pk_add_f32 {P(tmp)}, {P(tmp)}, s[{cC}:{cC+1}]", f"v_pk_add_f32 {P(tmp+2)}, {P(tmp+2)}, s[{cC}:{cC+1}]",
            f"v_pk_fma_f32 {P(tmp)}, {P(tmp)}, {P(tmp)}, 0.5 op_sel_hi:[1,1,0]",
            f"v_pk_fma_f32 {P(tmp+2)}, {P(tmp+2)}, {P(tmp+2)}, 0.5 op_sel_hi:[1,1,0]",
            f"v_rcp_f32 v{tmp}, v{tmp}", f"v_rcp_f32 v{tmp+1}, v{tmp+1}", f"v_rcp_f32 v{tmp+2}, v{tmp+2}", f"v_rcp_f32 v{tmp+3}, v{tmp+3}",
            f"v_pk_fma_f32 {P(tmp)}, {P(h)}, {P(tmp)}, {P(h)} neg_lo:[1,0,0] neg_hi:[1,0,0]",
            f"v_pk_fma_f32 {P(tmp+2)}, {P(h+2)}, {P(tmp+2)}, {P(h+2)} neg_lo:[1,0,0] neg_hi:[1,0,0]",
            f"v_cvt_pk_bf16_f32 v{dst}, v{tmp}, v{tmp+1}", f"v_cvt_pk_bf16_f32 v{dst+1}, v{tmp+2}, v{tmp+3}",
        ]

    def phi_quad(self, h, dst, tmp):
        P = lambda r: f"v[{r}:{r+1}]"
        return [
            f"v_pk_mul_f32 {P(tmp)}, {P(h)}, s[{cL2E}:{cL2E+1}]", f"v_pk_mul_f32 {P(tmp+2)}, {P(h+2)}, s[{cL2E}:{cL2E+1}]",
            f"v_exp_f32 v{tmp}, v{tmp} clamp", f"v_exp_f32 v{tmp+1}, v{tmp+1} clamp", f"v_exp_f32 v{tmp+2}, v{tmp+2} clamp", f"v_exp_f32 v{tmp+3}, v{tmp+3} clamp",
            f"v_pk_add_f32 {P(h)}, {P(h)}, s[{cC}:{cC+1}]", f"v_pk_add_f32 {P(h+2)}, {P(h+2)}, s[{cC}:{cC+1}]",
            f"v_pk_add_f32 {P(tmp)}, {P(tmp)}, s[{cE}:{cE+1}]", f"v_pk_add_f32 {P(tmp+2)}, {P(tmp+2)}, s[{cE}:{cE+1}]",
            f"v_max_f32 v{tmp}, v{tmp}, v{h}", f"v_max_f32 v{tmp+1}, v{tmp+1}, v{h+1}", f"v_max_f32 v{tmp+2}, v{tmp+2}, v{h+2}", f"v_max_f32 v{tmp+3}, v{tmp+3}, v{h+3}",
            f"v_cvt_pk_bf16_f32 v{dst}, v{tmp}, v{tmp+1}", f"v_cvt_pk_bf16_f32 v{dst+1}, v{tmp+2}, v{tmp+3}",
        ]

    def consts(self, kind):
        if kind == "mish":
            self.a(f"s_mov_b32 s{cC}, 0x3f3504f3\ns_mov_b32 s{cC+1}, 0x3f3504f3")
        else:
            self.a(f"s_mov_b32 s{cC}, 0x3f800008\ns_mov_b32 s{cC+1}, 0x3f800008\ns_mov_b32 s{cE}, 0x358637bd\ns_mov_b32 s{cE+1}, 0x358637bd")

    def main_loop(self, reads, mfmas, extra, nread_end, bases):
        a = self.a
        if CP: a(f"s_setprio {CP}")
        a("s_barrier")
        self.stamp(1)
        for l in reads(0): a(l)
        for l in extra.get(0, ([], [], []))[1]: a(l)
        a("s_waitcnt lgkmcnt(0)")
        for i in range(1, 21):
            if ((i == 1 and B1M != 1) or i % 2 == 0) and i < 20: a("s_barrier")
            if i in (2, 4, 6, 8, 10, 14, 18): self.stamp(3 + (2, 4, 6, 8, 10, 14, 18).index(i), True)
            pre, fill, preb = extra.get(i, ([], [], []))
            for l in pre: a(l)
            if i < 20:
                tail = []
                if (i + 1) % 3 == 0 and i + 1 < 20:
                    op = "v_add_u32" if ((i + 1) % NS) == 3 else "v_subrev_u32"
                    tail = [f"{op} v{b}, {3*WSLOT}, v{b}" for b in bases]
                body = interleave(mfmas(i - 1), reads(i) + fill + tail, 0, nread_end)
                for l in body: a(l)
                for l in preb: a(l)
                a("s_waitcnt lgkmcnt(0)")
            else:
                m19 = mfmas(19)
                for l in m19[:B20AT] + ["s_barrier"] + m19[B20AT:]: a(l)
        self.stamp(2)

    def finish1(self, flags, strict=False, late8=False):
        a = self.a
        self.setup2()
        if LFLAG == 2 and late8: a(f"s_add_u32 s{flags[0]}, s{flags[0]}, 8")
        if LFLAG == 1:
            if late8: a(f"s_add_u32 s{flags[0]}, s{flags[0]}, 8")
            a(f"s_mov_b32 s32, s{flags[1]}")
            self.preload_b(0, NPRE)
            return
        if strict:
            if ADPRE == 2:
                a(f"s_mov_b32 s32, s{flags[1]}"); flags = [flags[0], 32]
                self.adblock()
            if QLAST and late8:
                k1, k2 = a.newlabel("L_q"), a.newlabel("L_q")
                a(f"s_cmp_ge_u32 s{flags[1]}, {BIG}\ns_cbranch_scc1 {k1}\ns_waitcnt vmcnt(2)")
                self.signal(flags[0], 70)
                a("s_waitcnt vmcnt(1)")
                self.signal(flags[1], 70)
                a(f"s_branch {k2}\n{k1}:\ns_waitcnt vmcnt(0)")
                self.signal(flags[0], 70)
                a.label(k2)
                self.stamp(5)
                flags = []
            else:
                a("s_waitcnt vmcnt(0)")
                self.stamp(5)
            for f in flags: self.signal(f, 70)
            if not NPL: self.preload_b(0, NPRE, alt=(72 if ADPRE == 2 else None))
            return
        self.preload_b(0, NPRE)
        a(f"s_waitcnt vmcnt({NPRE})")
        self.stamp(5)
        for f in flags: self.signal(f, 1)
        if not BLDS:
            self.preload_b(NPRE, 30)
            return

    def pickup(self):
        a = self.a
        t = T0
        sk = a.newlabel("L_pk")
        a(f"s_cmp_ge_u32 s{sWAVE}, 4\ns_cbranch_scc1 {sk}")
        a(f"s_mul_i32 s{t+14}, s{sWAVE}, 20480\ns_add_u32 s{t+14}, s{t+14}, {BL}\nv_add_u32 v{BS+117}, s{t+14}, v{vL16}")
        for n in range(5*NB - 10):
            a(f"ds_read_b128 v[{BS+40+4*n}:{BS+43+4*n}], v{BS+117} offset:{1024*n}")
        a.label(sk)

    def prefetch(self, vL, v, S=SRD_X):
        a = self.a
        t = T0
        for ptr, size, share, n in ((pX, 2048*1280, 10240, 3), (pWQKV, 640*3840, 9600, 3), (pW1, 640*3072, 7680, 2))[:(1 if PF == 2 else 3)]:
            self.srd(S, ptr, size)
            per = -(-share // 4 // 128) * 128
            a(f"s_mul_i32 s{t}, s{sWG}, {share}\ns_and_b32 s{t}, s{t}, 0xffffff80\ns_mul_i32 s{t+1}, s{sWAVE}, {per}\ns_add_u32 s{t}, s{t}, s{t+1}\ns_min_u32 s{t}, s{t}, {size - n*1024}")
            for k in range(n):
                a(f"buffer_load_dwordx4 v[{v}:{v+3}], v{vL}, s[{S}:{S+3}], s{t} offen offset:{1024*k}")

    def touch(self, vLane, v):
        a = self.a
        t = T0
        a(f"v_lshlrev_b32 v{v}, 21, v{vLane}\nv_add_u32 v{v}, 0xff000, v{v}\ns_mov_b64 exec, 0xff")
        a(f"buffer_load_dword v{v+1}, v{v}, {WSR}, 0 offen")
        self.srd(SRD_M, pOUT, 2048*640*2)
        a(f"v_lshlrev_b32 v{v}, 20, v{vLane}\ns_mov_b64 exec, 7\nbuffer_load_dword v{v+2}, v{v}, s[{SRD_M}:{SRD_M+3}], 0 offen")
        self.srd(SRD_M, pWO, 640*640*2)
        a(f"v_lshlrev_b32 v{v}, 19, v{vLane}\ns_mov_b64 exec, 3\nbuffer_load_dword v{v+3}, v{v}, s[{SRD_M}:{SRD_M+3}], 0 offen\ns_mov_b64 exec, -1")

    def compute_P(self):
        a = self.a
        t = T0
        ACC, XB, WB, BI = 0, 112, 144, 200
        vX0, vX1, vH0, vH1, vQ, vGt, vL, vRd, vRr, vBo, vT = 228, 229, 230, 231, 232, 233, 234, 235, 236, 237, 238
        vLane = 253
        sSH, sNH = sT, 48
        sAct, sPq, sF2, sGs = 49, 72, 73, 74
        a(f"v_mov_b32 v{vLane}, v0\ns_lshr_b32 s{sSH}, s{sWAVE}, 1\ns_and_b32 s{sNH}, s{sWAVE}, 1")
        a(f"v_and_b32 v1, 15, v0\nv_lshrrev_b32 v2, 4, v0\nv_lshrrev_b32 v3, 1, v1\nv_xor_b32 v3, v3, v2\nv_lshlrev_b32 v3, 4, v3\nv_lshl_add_u32 v3, v1, 7, v3")
        a(f"s_lshl_b32 s{t}, s{sSH}, 13\nv_add_u32 v{vX0}, s{t}, v3\nv_xor_b32 v{vX1}, 64, v{vX0}")
        a(f"v_lshrrev_b32 v3, 2, v0\nv_and_b32 v4, 3, v0\nv_lshlrev_b32 v4, 3, v4")
        a(f"v_lshl_add_u32 v5, v3, 7, v4\nv_bfe_u32 v6, v0, 3, 2\ns_lshl_b32 s{t}, s{sNH}, 1\nv_xor_b32 v6, s{t}, v6\nv_lshl_add_u32 v6, v6, 5, v5")
        a(f"v_add_u32 v{vH0}, {WR}, v6\nv_xor_b32 v{vH1}, 32, v{vH0}")
        a(f"v_lshl_add_u32 v6, v3, 6, v4\nv_and_b32 v7, 1, v2\nv_xor_b32 v7, s{sNH}, v7\nv_lshl_add_u32 v6, v7, 5, v6\nv_add_u32 v{vQ}, {WR+12288}, v6")
        a(f"v_lshlrev_b32 v6, 4, v2\nv_add_u32 v{vGt}, {GATE}, v6\nv_lshlrev_b32 v{vL}, 4, v0\nv_lshlrev_b32 v{vBo}, 3, v2")
        a(f"v_lshrrev_b32 v6, 3, v0\nv_mul_u32_u24 v6, 1280, v6\nv_and_b32 v7, 7, v0\nv_lshl_add_u32 v{vRd}, v7, 4, v6")
        a(f"s_lshl_b32 s{t}, s{sWAVE}, 12\ns_add_u32 s{t}, s{t}, {SCR}\nv_add_u32 v{vRr}, s{t}, v5")
        a(f"s_lshl3_add_u32 s{sPIDX}, s{sRB}, s{sGRP}")
        a(f"s_mov_b32 s{cL2E}, 0x3fb8aa3b\ns_mov_b32 s{cL2E+1}, 0x3fb8aa3b")
        a(f"s_lshl2_add_u32 s{t}, s{sPIDX}, s{sWAVE}\ns_min_u32 s{t}, s{t}, 479")
        a(f"s_mul_i32 s{t+1}, s{t}, 6554\ns_lshr_b32 s{t+1}, s{t+1}, 16\ns_mul_i32 s{t+2}, s{t+1}, 10\ns_sub_u32 s{t+2}, s{t}, s{t+2}")
        a(f"s_mul_i32 s{t+6}, s{t+1}, 40960\ns_lshl_b32 s{t+3}, s{t+2}, 7\ns_add_u32 s{t+6}, s{t+6}, s{t+3}")
        a(f"s_mul_i32 s{t+7}, s{sGRP}, 384\ns_lshl_b32 s{t+3}, s{sNH}, 6\ns_add_u32 s{t+7}, s{t+7}, s{t+3}")
        a("s_waitcnt lgkmcnt(0)")
        self.stamp(0)
        self.srd(SRD_M, pB1, 3072)
        self.srd(SRD_W, pW2, 1536*640*2)
        for u in range(6):
            a(f"buffer_load_dwordx2 v[{BI+4*u+2}:{BI+4*u+3}], v{vBo}, s[{SRD_M}:{SRD_M+3}], s{t+7} offen offset:{128*(u >> 1) + 32*(u & 1)}")
        sSrc1 = 69
        a(f"s_mov_b32 s{sSrc1}, s{t+6}")
        self.srd(SRD_WS, pWS, WS_SIZE)
        if TOUCH == 2: self.touch(vLane, 240)
        dsts = [10, 11, 1, 3]
        for u in range(4):
            a(f"s_lshl2_add_u32 s{t+3}, s{t+2}, {u}\ns_mul_i32 s{t+4}, s{t+3}, 205\ns_lshr_b32 s{t+4}, s{t+4}, 10")
            a(f"s_mul_i32 s{t+5}, s{t+4}, 235\ns_add_u32 s{t+5}, s{t+5}, s{t+3}\ns_mul_i32 s{t+4}, s{t+1}, 5\ns_add_u32 s{t+5}, s{t+5}, s{t+4}")
            a(f"s_lshl_b32 s{t+5}, s{t+5}, 10\ns_add_u32 s{t+5}, s{t+5}, {WS_W2R}")
            if LRP: a(f"s_mov_b32 s{dsts[u]}, s{t+5}")
            else: a(f"s_cmp_lt_u32 s{sPIDX}, 120\ns_cselect_b32 s{dsts[u]}, s{t+5}, {BIG}")
        d2, sSrc2, sK2, sInc2 = 40, 0, 75, 70
        self.srd(SRD_M, pWO, 640*640*2)
        a(f"s_lshl1_add_u32 s{t}, s{sPIDX}, s{sWAVE}\ns_sub_u32 s{t}, s{t}, 2")
        a(f"s_cmp_lt_u32 s{t}, 160\ns_cselect_b32 s{sK2}, 1, 2\ns_cmp_lt_u32 s{t}, 200\ns_cselect_b32 s{sK2}, s{sK2}, 0\ns_cmp_lt_u32 s{sWAVE}, 2\ns_cselect_b32 s{sK2}, 0, s{sK2}")
        a(f"s_mul_i32 s{t+1}, s{t}, 6554\ns_lshr_b32 s{t+1}, s{t+1}, 16\ns_mul_i32 s{t+2}, s{t+1}, 10\ns_sub_u32 s{t+2}, s{t}, s{t+2}")
        a(f"s_lshr_b32 s{t+3}, s{t+1}, 1\ns_and_b32 s{t+4}, s{t+1}, 1\ns_sub_u32 s{t+5}, s{t+1}, 16\ns_lshl_b32 s{t+5}, s{t+5}, 1")
        a(f"s_cmp_eq_u32 s{sK2}, 2\ns_cselect_b32 s{t+3}, s{t+5}, s{t+3}\ns_cselect_b32 s{t+4}, 2, s{t+4}\ns_cselect_b32 s{sInc2}, {10240 + 64*1280}, 10240")
        a(f"s_mul_i32 s{sSrc2}, s{t+3}, {80*1280}\ns_mul_i32 s{t+5}, s{t+4}, {32*1280}\ns_add_u32 s{sSrc2}, s{sSrc2}, s{t+5}\ns_lshl_b32 s{t+5}, s{t+2}, 7\ns_add_u32 s{sSrc2}, s{sSrc2}, s{t+5}")
        a(f"s_mul_i32 s{t+3}, s{t+3}, 12800\ns_lshl_b32 s{t+5}, s{t+4}, 10\ns_cmp_eq_u32 s{sK2}, 2\ns_cselect_b32 s{t+5}, 10240, s{t+5}\ns_cselect_b32 s{t+6}, 512, 2048\ns_add_u32 s{t+3}, s{t+3}, s{t+5}\ns_add_u32 s{t+3}, s{t+3}, {WS_WOR}")
        for u in range(4):
            a(f"s_lshl2_add_u32 s{t+4}, s{t+2}, {u}\ns_mul_i32 s{t+5}, s{t+4}, 205\ns_lshr_b32 s{t+5}, s{t+5}, 10\ns_mul_i32 s{t+7}, s{t+5}, 5\ns_sub_u32 s{t+4}, s{t+4}, s{t+7}")
            a(f"s_mul_i32 s{t+5}, s{t+5}, 102400\ns_mul_i32 s{t+4}, s{t+4}, s{t+6}\ns_add_u32 s{t+5}, s{t+5}, s{t+4}\ns_add_u32 s{d2+u}, s{t+5}, s{t+3}")
        sRb64 = t + 11
        a(f"s_lshl1_add_u32 s{sRb64}, s{sRB}, s{sSH}")
        a(f"s_mul_i32 s{t}, s{sRb64}, 48\ns_mul_i32 s{t+1}, s{sGRP}, 6\ns_add_u32 s{t}, s{t}, s{t+1}\ns_add_u32 s{t}, s{t}, s{sNH}\ns_lshl_b32 s{t}, s{t}, 12")
        a(f"s_add_u32 s{sAct}, s{t}, {WS_ACT}\ns_add_u32 s{sAct+1}, s{t}, {WS_ACT + 8192}\ns_add_u32 s{sAct+2}, s{t}, {WS_ACT + 16384}")
        a(f"s_mul_i32 s{t}, s{sRb64}, 40\ns_lshl2_add_u32 s{t}, s{sHALF}, s{t}\ns_lshl1_add_u32 s{t}, s{sCBL}, s{t}\ns_add_u32 s{t}, s{t}, s{sNH}\ns_add_u32 s{t}, s{t}, 24\ns_lshl_b32 s{t}, s{t}, 11\ns_add_u32 s{sPq}, s{t}, {WS_PQ}")
        a(f"s_lshl3_add_u32 s{sF1}, s{sRb64}, s{sGRP}\ns_lshl_b32 s{sF1}, s{sF1}, 7")
        a(f"s_lshl1_add_u32 s{t}, s{sGRP}, s{sNH}\ns_cmp_eq_u32 s{t}, 5\ns_cselect_b32 s{sGs}, 1, 0")
        a(f"s_lshl_b32 s{sF2}, s{sRb64}, 7\ns_add_u32 s{sF2}, s{sF2}, {CNT_PQ}\ns_cmp_lt_u32 s{sCBL}, 6\ns_cselect_b32 s{t}, 1, s{sGs}\ns_cmp_eq_u32 s{t}, 1\ns_cselect_b32 s{sF2}, s{sF2}, {BIG}")
        a(f"s_cmp_ge_u32 s{sCBL}, 6\ns_cselect_b64 vcc, -1, 0")
        def reads(i):
            b = i & 1; so = (i % 3) * WSLOT
            xs = XR + ((i >> 1) % 3) * 16384
            r = [f"ds_read_b128 v[{XB+16*b+4*s}:{XB+16*b+4*s+3}], v{vX1 if i & 1 else vX0} offset:{xs + 2048*s}" for s in range(4)]
            for u in range(6):
                d = WB + 28*b + 4*u
                r.append(f"ds_read_b64_tr_b16 v[{d}:{d+1}], v{vH0 + (u & 1)} offset:{so + 4096*(u >> 1)}")
                r.append(f"ds_read_b64_tr_b16 v[{d+2}:{d+3}], v{vH0 + (u & 1)} offset:{so + 4096*(u >> 1) + 2048}")
            d = WB + 28*b + 24
            if GBR:
                l1, l2 = a.newlabel("L_g"), a.newlabel("L_gj")
                r.append(f"s_cbranch_vccnz {l1}\nds_read_b64_tr_b16 v[{d}:{d+1}], v{vQ} offset:{so}\nds_read_b64_tr_b16 v[{d+2}:{d+3}], v{vQ} offset:{so + 1024}\ns_branch {l2}\n"
                         f"{l1}:\nds_read_b128 v[{d}:{d+3}], v{vGt} offset:{64*i}\n{l2}:")
            else:
                r += [f"ds_read_b64_tr_b16 v[{d}:{d+1}], v{vQ} offset:{so}", f"ds_read_b64_tr_b16 v[{d+2}:{d+3}], v{vQ} offset:{so + 1024}",
                      f"s_mov_b64 exec, vcc\nds_read_b128 v[{d}:{d+3}], v{vGt} offset:{64*i}\ns_mov_b64 exec, -1"]
            return r
        def mfmas(i):
            b = i & 1
            r = []
            for u in (range(7) if i < 19 or QLAST else (6, 0, 1, 2, 3, 4, 5)):
                for s in range(4):
                    d = ACC + 16*u + 4*s
                    c = f"v[{d}:{d+3}]" if i > 0 else ("0" if u == 6 else f"v[{BI+4*u}:{BI+4*u+3}]")
                    r.append(f"v_mfma_f32_16x16x32_bf16 v[{d}:{d+3}], v[{WB+28*b+4*u}:{WB+28*b+4*u+3}], v[{XB+16*b+4*s}:{XB+16*b+4*s+3}], {c}")
            return r
        unpack = [f"s_waitcnt vmcnt({(3 if TOUCH == 2 else 0) + (4 if RD < 0 else 0) + {0: 0, 1: 8, 2: 3}[PF]})"]
        for u in range(6):
            p = BI + 4*u
            unpack += [f"v_lshlrev_b32 v{p}, 16, v{p+2}", f"v_and_b32 v{p+1}, 0xffff0000, v{p+2}", f"v_lshlrev_b32 v{p+2}, 16, v{p+3}", f"v_and_b32 v{p+3}, 0xffff0000, v{p+3}"]
        RP = BI
        rp_reads = []
        for u in range(4):
            rp_reads += [f"ds_read_b64_tr_b16 v[{RP+4*u}:{RP+4*u+1}], v{vRr} offset:{32*u}", f"ds_read_b64_tr_b16 v[{RP+4*u+2}:{RP+4*u+3}], v{vRr} offset:{32*u + 2048}"]
        rp_st = [f"buffer_store_dwordx4 v[{RP+4*u}:{RP+4*u+3}], v{vL}, {WSR}, s{dsts[u]} offen sc1" for u in range(4)]
        z = [f"s_lshl_b32 s{t}, s{sPIDX}, 9", f"s_mul_i32 s{t+1}, s{sWAVE}, {WS_KVP}", f"s_add_u32 s{t}, s{t}, s{t+1}", f"s_cmp_lt_u32 s{sWAVE}, 2", f"s_cselect_b32 s{t}, s{t}, {BIG}"] + \
            [f"v_mov_b32 v{RP+16+k}, 0" for k in range(4)] + \
            [f"s_mov_b32 exec_hi, 0\nbuffer_store_dwordx4 v[{RP+16}:{RP+19}], v{vL}, {WSR}, s{t} offen sc1\ns_mov_b32 exec_hi, -1"]
        k1, k2, k3, k4 = [a.newlabel("L_r2") for _ in range(4)]
        dma1 = [f"s_lshl_b32 s{t+3}, s{sWAVE}, 12"]
        for j in range(4):
            dma1.append(f"s_add_u32 m0, s{t+3}, {SCR + 1024*j}\ns_nop 0\nbuffer_load_dwordx4 v{vRd}, s[{SRD_W}:{SRD_W+3}], s{sSrc1} offen lds\ns_add_u32 s{sSrc1}, s{sSrc1}, 10240")
        rp_reads2 = [l.replace("offset:", "offset:8192+") for l in rp_reads]
        dma2 = f"s_cmp_eq_u32 s{sK2}, 0\ns_cbranch_scc1 {k1}\n"
        for j in range(4):
            dma2 += f"s_add_u32 m0, s{t+3}, {SCR + 8192 + 1024*j}\ns_nop 0\nbuffer_load_dwordx4 v{vRd}, s[{SRD_M}:{SRD_M+3}], s{sSrc2} offen lds\n"
            if j < 3: dma2 += f"s_add_u32 s{sSrc2}, s{sSrc2}, " + (f"s{sInc2}" if j == 1 else "10240") + "\n"
        dma2 += k1 + ":"
        st2 = f"s_cmp_eq_u32 s{sK2}, 0\ns_cbranch_scc1 {k2}\ns_cmp_eq_u32 s{sK2}, 2\ns_cbranch_scc1 {k3}\n"
        st2 += "".join(f"buffer_store_dwordx4 v[{RP+4*u}:{RP+4*u+3}], v{vL}, {WSR}, s{d2+u} offen sc1\n" for u in range(4))
        st2 += f"s_branch {k2}\n{k3}:\nv_lshrrev_b32 v{vT}, 1, v{vL}\n"
        for u in range(4):
            st2 += f"buffer_store_dwordx2 v[{RP+4*u}:{RP+4*u+1}], v{vT}, {WSR}, s{d2+u} offen sc1\ns_add_u32 s{d2+u}, s{d2+u}, 12800\n"
            st2 += f"buffer_store_dwordx2 v[{RP+4*u+2}:{RP+4*u+3}], v{vT}, {WSR}, s{d2+u} offen sc1\n"
        st2 += k2 + ":"
        sk, sk2 = a.newlabel("L_s1a"), a.newlabel("L_s1b")
        arr = [f"s_cmp_lg_u32 s{sWAVE}, 0", f"s_cbranch_scc1 {sk}",
               f"s_mov_b32 s{SRD_D}, s{pDBG}", f"s_mov_b32 s{SRD_D+1}, s{pDBG+1}", f"s_mov_b32 s{SRD_D+2}, 256", f"s_mov_b32 s{SRD_D+3}, 0x20000",
               f"v_mov_b32 v{vT}, 1", f"s_mov_b64 exec, 1\nbuffer_atomic_add v{vT}, v{vL}, s[{SRD_D}:{SRD_D+3}], 0 offen sc0 sc1\ns_mov_b64 exec, -1", sk + ":"]
        arr2 = [f"s_cmp_lg_u32 s{sWAVE}, 0", f"s_cbranch_scc1 {sk2}", "s_waitcnt vmcnt(0)", f"v_readfirstlane_b32 s{t}, v{vT}", f"v_mov_b32 v{vT+1}, 1",
                f"s_cmp_lg_u32 s{t}, 127", f"s_cbranch_scc1 {sk2}",
                f"s_mov_b32 s{SRD_D}, s{pDBG}", f"s_mov_b32 s{SRD_D+1}, s{pDBG+1}", f"s_mov_b32 s{SRD_D+2}, 256", f"s_mov_b32 s{SRD_D+3}, 0x20000",
                f"s_mov_b64 exec, 1\nbuffer_store_dword v{vT+1}, v{vL}, s[{SRD_D}:{SRD_D+3}], 0 offen offset:128 sc1\ns_mov_b64 exec, -1", sk2 + ":"]
        if RD < 0:
            for l in dma1 + [dma2]: a(l)
        if PF: self.prefetch(vL, 240, S=SRD_D)
        hi, lo = (["s_setprio 3"], [f"s_setprio {CP}"]) if STPRIO else ([], [])
        extra = {0: ([], unpack, []), RS: (["s_waitcnt vmcnt(0)"], rp_reads, []), RS+1: (hi, rp_st + rp_reads2, []),
                 RS+2: ([], [st2] + z, lo), S1AT-1: ([], [], ["s_waitcnt vmcnt(0)"]), S1AT: (arr, [], []), S1AT+2: (arr2, [], [])}
        if LARR:
            del extra[S1AT], extra[S1AT+2]
        if LRP:
            a(f"s_lshl_b32 s{t}, s{sWAVE}, 6\ns_add_u32 s{t}, s{t}, {MBOX}\nv_mov_b32 v8, s{t}")
            for u in range(4): a(f"v_mov_b32 v{12+u}, s{dsts[u]}\nv_mov_b32 v{16+u}, s{d2+u}")
            a(f"v_mov_b32 v20, s{sK2}\nds_write_b128 v8, v[12:15]\nds_write_b128 v8, v[16:19] offset:16\nds_write_b32 v8, v20 offset:32\ns_waitcnt lgkmcnt(0)")
            extra = {0: extra[0], 2*LRP - 1: ([], [], ["s_waitcnt vmcnt(0)"])}
        if SPREAD:
            R2 = [216, 220, 240, 244]
            rd2 = []
            for u in range(4):
                rd2 += [f"ds_read_b64_tr_b16 v[{R2[u]}:{R2[u]+1}], v{vRr} offset:{8192 + 32*u}", f"ds_read_b64_tr_b16 v[{R2[u]+2}:{R2[u]+3}], v{vRr} offset:{8192 + 32*u + 2048}"]
            zz = [l.replace(f"v{RP+16}", "v248").replace(f"v{RP+17}", "v249").replace(f"v{RP+18}", "v250").replace(f"v{RP+19}", "v251").replace(f"v[{RP+16}:{RP+19}]", "v[248:251]") for l in z]
            pre2 = [f"v_lshrrev_b32 v{vT+1}, 1, v{vL}"]
            def st2u(u):
                k5, k6 = a.newlabel("L_r2"), a.newlabel("L_r2")
                return (f"s_cmp_eq_u32 s{sK2}, 1\ns_cbranch_scc0 {k5}\nbuffer_store_dwordx4 v[{R2[u]}:{R2[u]+3}], v{vL}, {WSR}, s{d2+u} offen sc1\n{k5}:\n"
                        f"s_cmp_eq_u32 s{sK2}, 2\ns_cbranch_scc0 {k6}\nbuffer_store_dwordx2 v[{R2[u]}:{R2[u]+1}], v{vT+1}, {WSR}, s{d2+u} offen sc1\ns_add_u32 s{d2+u}, s{d2+u}, 12800\n"
                        f"buffer_store_dwordx2 v[{R2[u]+2}:{R2[u]+3}], v{vT+1}, {WSR}, s{d2+u} offen sc1\n{k6}:")
            extra = {0: extra[0], RS: (["s_waitcnt vmcnt(0)"], rp_reads + rd2 + pre2 + zz, []), S1AT: extra[S1AT], S1AT+2: extra[S1AT+2]}
            if SPREAD == 1:
                for u in range(4): extra[RS+1+u] = ([], [rp_st[u], st2u(u)], [])
            else:
                for u in range(4):
                    extra[RS+1+2*u] = ([], [rp_st[u]], []); extra[RS+2+2*u] = ([], [st2u(u)], [])
            e_ = extra.get(S1AT-1, ([], [], []))
            extra[S1AT-1] = (e_[0], e_[1], ["s_waitcnt vmcnt(0)"])
        if RD > 0: extra[RD] = ([], dma1 + [dma2], [])
        if RD == 0: extra[0] = ([], unpack + dma1 + [dma2], [])
        self.main_loop(reads, mfmas, extra, NRE, [vH0, vH1, vQ])
        if EPRIO: a(f"s_setprio {EPRIO}")
        TM = XB
        a("s_nop 3")
        def ep_extra():
            labG, labE = a.newlabel("L_epG"), a.newlabel("L_epE")
            a(f"s_cbranch_vccnz {labG}")
            self.consts("phi")
            for sp in range(2):
                e = ACC + 96 + 8*sp
                for l in self.phi_quad(e, e, TM): a(l)
                for l in self.phi_quad(e + 4, e + 2, TM + 4): a(l)
                a(f"buffer_store_dwordx4 v[{e}:{e+3}], v{vL}, {WSR}, s{sPq} offen offset:{1024*sp} sc1")
            a(f"s_branch {labE}")
            a.label(labG)
            a(f"s_cmp_eq_u32 s{sGs}, 0\ns_cbranch_scc1 {labE}")
            G = ACC + 96
            a(f"v_cmp_le_u32 vcc, 16, v{vLane}\nv_cmp_le_u32 s[{t+2}:{t+3}], 32, v{vLane}\nv_cmp_le_u32 s[{t+4}:{t+5}], 48, v{vLane}\ns_nop 0")
            a(f"v_cndmask_b32 v{G}, v{G}, v{G+4}, vcc\nv_cndmask_b32 v{G}, v{G}, v{G+8}, s[{t+2}:{t+3}]\nv_cndmask_b32 v{G}, v{G}, v{G+12}, s[{t+4}:{t+5}]")
            a(f"s_mov_b32 s{t}, 0x42700000\nv_min_f32 v{G}, s{t}, v{G}\nv_max_f32 v{G}, -s{t}, v{G}\nv_mul_f32 v{G}, s{cL2E}, v{G}\nv_exp_f32 v{G}, v{G}")
            a(f"s_lshl_b32 s{t}, s{sRb64}, 8\ns_add_u32 s{t}, s{t}, {WS_G}\nv_add_f32 v{G+2}, 1.0, v{G}\nv_rcp_f32 v{G+2}, v{G+2}\nv_lshlrev_b32 v{G+1}, 2, v{vLane}\ns_add_u32 s{t+1}, s{t}, 8192")
            a(f"buffer_store_dword v{G}, v{G+1}, {WSR}, s{t} offen sc1\nbuffer_store_dword v{G+2}, v{G+1}, {WSR}, s{t+1} offen sc1")
            a.label(labE)
        def ep_mish():
            self.consts("mish")
            for L in range(3):
                for s in range(4):
                    e, o = ACC + 32*L + 4*s, ACC + 32*L + 16 + 4*s
                    for l in self.mish_quad(e, e, TM + 8*(s & 1)): a(l)
                    for l in self.mish_quad(o, e + 2, TM + 4 + 8*(s & 1)): a(l)
                    if DIAG != 1: a(f"buffer_store_dwordx4 v[{e}:{e+3}], v{vL}, {WSR}, s{sAct+L} offen offset:{1024*s} {'' if DIAG == 2 else 'sc1'}")
                if L == 0 and EARLYQ:
                    a("s_waitcnt vmcnt(4)")
                    self.signal(sF2, vT)
                if LFLAG and L >= 1:
                    a(f"s_waitcnt vmcnt({4 if L == 1 else 5})")
                    self.signal(sF1, vT, 4*(L - 1))
        if QLAST: ep_mish(); ep_extra()
        else: ep_extra(); ep_mish()
        a(f"v_mov_b32 v0, v{vLane}")
        self.stamp(3)
        self.finish1([sF1] if EARLYQ else [sF1, sF2], strict=bool(STRICTP), late8=True)

    def compute_KV(self):
        a = self.a
        t = T0
        ACC, XB, WB = 0, 112, 128
        vX0, vX1, vK, vQ0, vL = 240, 241, 242, 243, 247
        vLane = 253
        sPq, sF2, sRec = 72, 73, 74
        a(f"v_mov_b32 v{vLane}, v0")
        a(f"v_and_b32 v1, 15, v0\nv_lshrrev_b32 v2, 4, v0\nv_lshrrev_b32 v3, 1, v1\nv_xor_b32 v3, v3, v2\nv_lshlrev_b32 v3, 4, v3\nv_lshl_add_u32 v3, v1, 7, v3")
        a(f"s_lshl_b32 s{t}, s{sWAVE}, 12\nv_add_u32 v{vX0}, s{t}, v3\nv_xor_b32 v{vX1}, 64, v{vX0}")
        a(f"v_lshrrev_b32 v3, 2, v0\nv_and_b32 v4, 3, v0\nv_lshlrev_b32 v4, 3, v4")
        a(f"v_mul_u32_u24 v5, 160, v3\nv_add_u32 v5, v5, v4\nv_add_u32 v{vK}, {WR}, v5")
        a(f"v_lshl_add_u32 v5, v3, 7, v4\nv_bfe_u32 v6, v0, 3, 2\nv_lshl_add_u32 v5, v6, 5, v5\nv_add_u32 v{vQ0}, {WR+10240}, v5")
        for u in range(1, 4): a(f"v_xor_b32 v{vQ0+u}, {32*u}, v{vQ0}")
        a(f"v_lshlrev_b32 v{vL}, 4, v0")
        a(f"s_lshr_b32 s{t}, s{sWAVE}, 1\ns_lshl1_add_u32 s{t+1}, s{sRB}, s{t}")
        a(f"s_lshl_b32 s{sF2}, s{t+1}, 7\ns_add_u32 s{sF2}, s{sF2}, {CNT_PQ}")
        a(f"s_mul_i32 s{t+1}, s{t+1}, 40\ns_lshl2_add_u32 s{t+1}, s{sGRP}, s{t+1}\ns_and_b32 s{t}, s{sWAVE}, 1\ns_lshl1_add_u32 s{t+1}, s{t+1}, s{t}\ns_lshl_b32 s{t+1}, s{t+1}, 10\ns_add_u32 s{sPq}, s{t+1}, {WS_PQ}")
        a(f"s_lshl2_add_u32 s{t}, s{sGRP}, s{sWAVE}\ns_lshl_b32 s{sF1}, s{t}, 7\ns_add_u32 s{sF1}, s{sF1}, {CNT_KV}")
        a(f"s_mul_i32 s{t}, s{t}, 1792\ns_add_u32 s{sRec}, s{t}, {WS_KVP}")
        a(f"s_mov_b32 s{cL2E}, 0x3fb8aa3b\ns_mov_b32 s{cL2E+1}, 0x3fb8aa3b")
        self.consts("phi")
        a("s_waitcnt lgkmcnt(0)")
        self.stamp(0)
        self.srd(SRD_WS, pWS, WS_SIZE)
        if TOUCH: self.touch(vLane, 248)
        if PF: self.prefetch(vL, 248)
        def reads(i):
            b = i & 1; so = (i % 3) * WSLOT
            xs = XR + ((i >> 1) % 3) * 16384
            r = [f"ds_read_b128 v[{XB+8*b+4*s}:{XB+8*b+4*s+3}], v{vX1 if i & 1 else vX0} offset:{xs + 2048*s}" for s in range(2)]
            for u in range(14):
                d = WB + 56*b + 4*u
                if u < 10: base, off, d2 = vK, 5120*(u // 5) + 32*(u % 5), 2560
                else: base, off, d2 = vQ0 + u - 10, 0, 2048
                r.append(f"ds_read_b64_tr_b16 v[{d}:{d+1}], v{base} offset:{so + off}")
                r.append(f"ds_read_b64_tr_b16 v[{d+2}:{d+3}], v{base} offset:{so + off + d2}")
            return r
        def mfmas(i):
            b = i & 1
            r = []
            order = list(range(14)) if i < 19 else [5, 6, 7, 8, 9, 0, 1, 2, 3, 4, 10, 11, 12, 13]
            for u in order:
                for s in range(2):
                    d = ACC + 8*u + 4*s
                    c = f"v[{d}:{d+3}]" if i > 0 else "0"
                    w, x = f"v[{WB+56*b+4*u}:{WB+56*b+4*u+3}]", f"v[{XB+8*b+4*s}:{XB+8*b+4*s+3}]"
                    r.append(f"v_mfma_f32_16x16x32_bf16 v[{d}:{d+3}], {x if u < 10 else w}, {w if u < 10 else x}, {c}")
            return r
        self.main_loop(reads, mfmas, {}, NRK, [vK, vQ0, vQ0+1, vQ0+2, vQ0+3])
        TM = XB
        vEx = vX0
        a(f"s_mul_i32 s{t}, s{sWAVE}, 10240\nv_add_u32 v{vEx}, s{t}, v{vL}")
        for u in range(5, 10):
            e = ACC + 8*u
            a(f"v_cvt_pk_bf16_f32 v{e}, v{e}, v{e+1}\nv_cvt_pk_bf16_f32 v{e+1}, v{e+2}, v{e+3}\nv_cvt_pk_bf16_f32 v{e+2}, v{e+4}, v{e+5}\nv_cvt_pk_bf16_f32 v{e+3}, v{e+6}, v{e+7}")
            a(f"ds_write_b128 v{vEx}, v[{e}:{e+3}] offset:{XR + 1024*u}")
        for u in range(5):
            e = ACC + 8*u
            for l in self.phi_quad(e, e, TM): a(l)
            for l in self.phi_quad(e + 4, e + 2, TM + 4): a(l)
            a(f"ds_write_b128 v{vEx}, v[{e}:{e+3}] offset:{XR + 1024*u}")
        a(f"s_lshl_b32 s{t}, s{sWAVE}, 10\nv_add_u32 v{vEx}, s{t}, v{vL}")
        ONE = WB + 64
        for k in range(4): a(f"v_mov_b32 v{ONE+k}, 0x3f803f80")
        if K1LDS:
            lp, dn = a.newlabel("L_k1"), a.newlabel("L_k1d")
            a(f"v_mov_b32 v{vK}, {K1C}\nv_mov_b32 v{vQ0}, 1\ns_mov_b32 s{t}, 0\ns_waitcnt lgkmcnt(0)\ns_mov_b64 exec, 1\nds_add_u32 v{vK}, v{vQ0}\ns_mov_b64 exec, -1")
            a.label(lp)
            a(f"ds_read_b32 v{vQ0}, v{vK}\ns_add_u32 s{t}, s{t}, 1\ns_waitcnt lgkmcnt(0)\nv_readfirstlane_b32 s{t+1}, v{vQ0}\ns_cmp_ge_u32 s{t}, {SPIN}\ns_cbranch_scc1 {dn}\ns_cmp_lt_u32 s{t+1}, 4\ns_cbranch_scc1 {lp}")
            a.label(dn)
        else:
            a("s_waitcnt lgkmcnt(0)\ns_barrier")
        FR = WB
        for g in range(4):
            for j, off in enumerate((0, 1024, 5120, 6144)):
                a(f"ds_read_b128 v[{FR+16*g+4*j}:{FR+16*g+4*j+3}], v{vEx} offset:{XR + 10240*g + off}")
        AD = WB + 72
        dc, BG, ev, R = AD, AD + 2, AD + 3, AD + 8
        ad = [f"v_lshrrev_b32 v{dc}, 4, v{vLane}", f"v_and_b32 v{ev}, 15, v{vLane}", f"v_mov_b32 v{BG}, 0x10000", f"v_cmp_eq_u32 vcc, 0, v{ev}",
              f"v_mov_b32 v{R}, 320", f"v_subrev_u32 v{dc}, s{sWAVE}, v{dc}", f"v_cndmask_b32 v{ev+2}, v{BG}, v{R}, vcc", f"v_add_u32 v{dc+1}, 4, v{dc}",
              f"s_lshl_b32 s{t}, s{sWAVE}, 2", f"v_subrev_u32 v{ev}, s{t}, v{ev}", f"v_add_u32 v{ev+1}, 16, v{ev}",
              f"s_lshl_b32 s{t+4}, s{sWAVE}, 11", f"s_add_u32 s{t+4}, s{t+4}, {STG}"]
        for k in range(2):
            ad += [f"v_cmp_gt_u32 vcc, 5, v{dc+k}", f"v_cmp_gt_u32 s[{t+2}:{t+3}], 20, v{ev+k}", f"v_mul_u32_u24 v{dc+k}, 336, v{dc+k}", f"v_lshlrev_b32 v{ev+k}, 4, v{ev+k}",
                   f"v_cndmask_b32 v{dc+k}, v{BG}, v{dc+k}, vcc", f"v_cndmask_b32 v{ev+k}, v{BG}, v{ev+k}, s[{t+2}:{t+3}]"]
        for k in range(2):
            ad += [f"v_add_u32 v{R+3*k+b}, v{dc+k}, v{ev+b}" for b in range(3)]
            ad += [f"v_min_u32 v{R+3*k+b}, 1680, v{R+3*k+b}" for b in range(3)]
            ad += [f"v_add_u32 v{R+3*k+b}, s{t+4}, v{R+3*k+b}" for b in range(3)]
        ad += [f"v_lshlrev_b32 v{dc}, 2, v{vLane}", f"v_add_u32 v{vEx}, s{t+4}, v{dc}"]
        for l in ad[:20]: a(l)
        D = ACC
        mm = []
        for g in range(4):
            for k in range(2):
                for b in range(3):
                    d = D + 12*k + 4*b
                    B = f"v[{FR+16*g+8+4*b}:{FR+16*g+8+4*b+3}]" if b < 2 else f"v[{ONE}:{ONE+3}]"
                    mm.append(f"v_mfma_f32_16x16x32_bf16 v[{d}:{d+3}], v[{FR+16*g+4*k}:{FR+16*g+4*k+3}], {B}, {'0' if g == 0 else f'v[{d}:{d+3}]'}")
        a("s_waitcnt lgkmcnt(0)")
        for l in interleave(mm, ad[20:], 0, 16): a(l)
        def qmath(u):
            e = ACC + 8*u
            return self.phi_quad(e, e, TM) + self.phi_quad(e + 4, e + 2, TM + 4)
        q10 = qmath(10)
        for l in q10[:8]: a(l)
        for j in range(6): a(f"ds_write_b128 v{R+j}, v[{D+4*j}:{D+4*j+3}]")
        for l in q10[8:20]: a(l)
        a("s_waitcnt lgkmcnt(0)")
        for j in range(7): a(f"ds_read_b32 v{j}, v{vEx} offset:{256*j}")
        for l in q10[20:]: a(l)
        a("s_waitcnt lgkmcnt(0)")
        for j in range(7):
            if j == 6: a("s_mov_b32 exec_hi, 15")
            a(f"buffer_atomic_add_f32 v{j}, v{dc}, {WSR}, s{sRec} offen offset:{256*j} sc1")
        a("s_mov_b32 exec_hi, -1")
        a(f"s_add_u32 s{t}, s{sPq}, 4096")
        def qst(u):
            e = ACC + 8*(10 + u)
            a(f"buffer_store_dwordx4 v[{e}:{e+3}], v{vL}, {WSR}, s{sPq if u < 2 else t} offen offset:{2048*(u & 1)} sc1")
        qst(0)
        for u in (1, 2, 3):
            for l in qmath(10 + u): a(l)
            qst(u)
        a(f"v_mov_b32 v0, v{vLane}")
        self.stamp(3)
        self.finish1([sF1, sF2], strict=True)

    def setup2(self, lanes=True):
        a = self.a
        t = T0
        if MAP2 == "x2":
            a(f"s_bfe_u32 s{t+2}, s{sWG}, 0x20001\ns_bfe_u32 s{t+3}, s{sWG}, 0x30003\ns_lshl3_add_u32 s{sR64}, s{t+2}, s{t+3}")
            a(f"s_and_b32 s{t+2}, s{sWG}, 1\ns_lshr_b32 s{t+3}, s{sWG}, 6\ns_lshl2_add_u32 s{sC}, s{t+2}, s{t+3}")
        else:
            a(f"s_and_b32 s{t+2}, s{sWG}, 7\ns_bfe_u32 s{t+3}, s{sWG}, 0x20003\ns_lshl2_add_u32 s{sR64}, s{t+2}, s{t+3}\ns_lshr_b32 s{sC}, s{sWG}, 5")
        if FAKE == 1: a(f"s_and_b32 s{sR64}, s{sWG}, 7\ns_lshl_b32 s{sR64}, s{sR64}, 2\ns_mov_b32 s{sC}, 0")
        if FAKE == 2: a(f"s_mov_b32 s{sC}, 0")
        if FAKE == 3: a(f"s_and_b32 s{sR64}, s{sWG}, 7\ns_lshl_b32 s{sR64}, s{sR64}, 2")
        if lanes: a(f"v_lshlrev_b32 v{vL16}, 4, v0\nv_add_u32 v{vL16b}, 4096, v{vL16}")
        if ROT2 == "none":
            a(f"s_mov_b32 s{t}, 0")
        elif ROT2 == "xor":
            a(f"s_lshr_b32 s{t}, s{sWG}, 3\ns_lshr_b32 s{t+1}, s{sWG}, 6\ns_xor_b32 s{t}, s{t}, s{t+1}\ns_and_b32 s{t}, s{t}, 1")
        elif ROT2 == "two":
            a(f"s_lshr_b32 s{t}, s{sWG}, 3\ns_lshr_b32 s{t+1}, s{sWG}, {6 if MAP2 == 'x2' else 5}\ns_xor_b32 s{t}, s{t}, s{t+1}\ns_and_b32 s{t}, s{t}, 1\ns_mul_i32 s{t}, s{t}, 3")
        elif MAP2 == "x2":
            a(f"s_and_b32 s{t}, s{sC}, 3\ns_mul_i32 s{t}, s{t}, 3\ns_lshr_b32 s{t}, s{t}, 1")
        else:
            a(f"s_mul_i32 s{t}, s{sC}, 3\ns_lshr_b32 s{t}, s{t}, 2")
        a(f"s_mul_i32 s{t+1}, s{sWAVE}, 6")
        a(f"s_mul_i32 s{t+2}, s{sC}, {48*5120}\ns_add_u32 s{t+2}, s{t+2}, {WS_W2R}")
        a(f"s_mul_i32 s{t+3}, s{sR64}, {48*4096}\ns_add_u32 s{t+3}, s{t+3}, {WS_ACT}")
        for i in range(6):
            a(f"s_add_u32 s{t+4}, s{t+1}, s{t}\ns_mul_i32 s{sB0+i}, s{t+4}, 5120\ns_add_u32 s{sB0+i}, s{sB0+i}, s{t+2}")
            a(f"s_lshl_b32 s{sA0+i}, s{t+4}, 12\ns_add_u32 s{sA0+i}, s{sA0+i}, s{t+3}")
            if i < 5 and ROT2 == "xor": a(f"s_xor_b32 s{t}, s{t}, {i ^ (i + 1)}")
            elif i < 5: a(f"s_add_u32 s{t}, s{t}, 1\ns_cmp_eq_u32 s{t}, 6\ns_cselect_b32 s{t}, 0, s{t}")
        a(f"s_lshl3_add_u32 s{sFa}, s{sR64}, s{sWAVE}\ns_lshl_b32 s{sFa}, s{sFa}, 7\ns_lshl_b32 s{sFq}, s{sR64}, 7\ns_add_u32 s{sFq}, s{sFq}, {CNT_PQ}")
        a(f"s_mul_i32 s{sPQb}, s{sR64}, 40\ns_mul_i32 s{t}, s{sWAVE}, 5\ns_add_u32 s{sPQb}, s{sPQb}, s{t}\ns_lshl_b32 s{sPQb}, s{sPQb}, 11\ns_add_u32 s{sPQb}, s{sPQb}, {WS_PQ}")
        a(f"s_lshl3_add_u32 s{sMb}, s{sC}, s{sWAVE}\ns_mul_i32 s{sMb}, s{sMb}, 12800\ns_add_u32 s{sMb}, s{sMb}, {WS_WOR}")
        a(f"s_mul_i32 s{sKv}, s{sWAVE}, 7168\ns_add_u32 s{sKv}, s{sKv}, {WS_KVP}\ns_lshl_b32 s{sFk}, s{sWAVE}, 9\ns_add_u32 s{sFk}, s{sFk}, {CNT_KV}")

    def preload_b(self, n0, n1, th=0, alt=None):
        vb = vL16b
        if alt is not None:
            vb = alt; self.a(f"v_add_u32 v{alt}, 4096, v{vL16}")
        for n in range(n0, n1):
            if th and n < NTH: self.a(f"s_waitcnt vmcnt({th - 1})")
            i, jn = divmod(n, 5)
            d = BS + 20*i + 4*jn
            self.a(f"buffer_load_dwordx4 v[{d}:{d+3}], v{vL16 if jn < 4 else vb}, {WSR}, s{sB0+i} offen offset:{1024*jn if jn < 4 else 0} sc1")

    def stage_b(self):
        a = self.a
        t = T0
        a(f"s_mul_i32 s{t}, s{sT}, 20480\ns_add_u32 s{t}, s{t}, {BL}")
        for i in range(2, NB):
            a(f"s_sub_u32 s{t+1}, s{sB0+i}, 122880")
            for jn in range(5):
                if jn in (0, 4):
                    a(f"s_add_u32 m0, s{t}, {5120*(i-2) + 1024*jn}")
                    a(f"s_add_u32 s{t+1}, s{t+1}, 4096" if jn else "s_nop 0")
                if TH and NB*5 + 5*(i - 2) + jn < NTH: a(f"s_waitcnt vmcnt({TH - 1})")
                a(f"buffer_load_dwordx4 v{vL16}, {WSR}, s{t+1} offen offset:{1024*(jn % 4)} sc1 lds")
        a("s_waitcnt vmcnt(0)")

    def adlist(self, alt=False):
        t, LN = T0, 255
        ts = 72 if alt else t + 2
        mk = [96, 98, 100, 52, 54] if alt else [t + 4 + 2*n for n in range(5)]
        groups = []
        chunks = [(0, 0), (0, 1), (1, 0), (1, 1), (1, 2), (2, 1), (2, 2), (2, 3), (3, 2), (3, 3), (4, 3), (3, 4), (4, 4)] + [("z", tt) for tt in range(5)]
        slot = dict(zip(chunks, [0, 1, 2, 3, 4, 7, 8, 9, 10, 11, 13, 14, 15, 16, 17, 18, 19, 20]))
        X, K0 = 44, 20
        ad = [f"v_and_b32 v{X}, 15, v{LN}", f"v_lshrrev_b32 v{X+1}, 4, v{LN}", f"s_add_u32 s{ts}, s{sLB}, 13312", f"v_mul_u32_u24 v{X+3}, 336, v{X+1}", f"v_add_u32 v{X+3}, s{ts}, v{X+3}",
              f"v_add_u32 v{X+18}, s{sLB}, v{vL16}", f"s_add_u32 s{ts}, s{ts}, 7056", f"v_mov_b32 v{X+13}, s{ts}"] + [f"v_subrev_u32 v{X+13+k}, {1344*k}, v{X+13}" for k in range(1, 5)]
        for te in (0, 1, 2, 3, 4, "z"):
            groups.append(len(ad))
            if te == "z":
                ad += [f"v_and_b32 v{X+4}, 3, v{LN}", f"v_mul_u32_u24 v{X+5}, 112, v{X+4}", f"v_add_u32 v{X+6}, 320, v{X+3}", f"v_add_u32 v{X+5}, v{X+5}, v{X+6}"]
            else:
                ad += [f"v_add_u32 v{X+6}, {16*te}, v{X}", f"v_mul_u32_u24 v{X+4}, 3277, v{X+6}", f"v_lshrrev_b32 v{X+4}, 16, v{X+4}",
                       f"v_lshl_add_u32 v{X+6}, v{X+6}, 4, v{X+3}", f"v_mad_i32_i24 v{X+5}, v{X+4}, s{sN208}, v{X+6}"]
            ad += [f"v_mad_i32_i24 v{X+4}, v{X+4}, -5, v{X+1}"]
            mine = [(j, c) for j, c in enumerate(chunks) if c[0] == te]
            ad += [f"v_add_u32 v{X+8+n}, {4*c[1]}, v{X+4}" for n, (j, c) in enumerate(mine)]
            ad += [f"v_cmp_gt_u32 s[{mk[n]}:{mk[n]+1}], 5, v{X+8+n}" for n, (j, c) in enumerate(mine)]
            ad += ["s_nop 0"]
            ad += [f"v_cndmask_b32 v{K0+j}, v{X+13+c[1]}, v{X+5}, s[{mk[n]}:{mk[n]+1}]" for n, (j, c) in enumerate(mine)]
        self.adgroups = groups + [len(ad)]
        return chunks, slot, X, K0, ad

    def adpart(self, k):
        a = self.a
        ad = self.adlist(True)[4]; g = self.adgroups
        if k == 0: a(f"v_lshlrev_b32 v{vL16}, 4, v0\nv_mov_b32 v255, v0\ns_xor_b32 s{sLB}, s{sWAVE}, 4\ns_mul_i32 s{sLB}, s{sLB}, 20480\ns_mov_b32 s{sN208}, -208")
        for l in ad[(0, g[1], g[3], g[5])[k]:(g[1], g[3], g[5], g[6])[k]]: a(l)

    def adblock(self):
        a = self.a
        a(f"v_lshrrev_b32 v255, 4, v{vL16}\ns_xor_b32 s{sLB}, s{sWAVE}, 4\ns_mul_i32 s{sLB}, s{sLB}, 20480\ns_mov_b32 s{sN208}, -208")
        for l in self.adlist()[4]: a(l)

    def gemm2(self):
        a = self.a
        t = T0
        seq = []
        LN = 255
        def ldl(dst, n, v, so, off, tag):
            seq.append(tag)
            return [f"buffer_load_dword{ {1: '', 2: 'x2', 4: 'x4'}[n] } {vr(dst, n)}, v{v}, {WSR}, s{so} offen offset:{off} sc1"]
        def emit(L):
            for l in L: a(l)
        def wait(tag):
            last = max(n for n, x in enumerate(seq) if x == tag)
            a(f"s_waitcnt vmcnt({len(seq) - 1 - last})")
        def act(i):
            return sum((ldl(AB + 16*(i % 3) + 4*st, 4, vL16, sA0 + i, 1024*st, f"act{i}") for st in range(4)), [])
        def check(soff, target, sleep=None):
            ok = a.newlabel("L_ok")
            a(f"v_cmp_le_u32 vcc, {target}, v{vP+1}\ns_nop 1\ns_cmp_eq_u64 vcc, -1\ns_cbranch_scc1 {ok}")
            self.poll(soff, target, vP, vP + 1, sleep=sleep)
            a.label(ok)
        def dma(so, n, lds, tag):
            r = []
            for k in range(n):
                pre = ""
                if k % 4 == 0:
                    pre = f"s_add_u32 m0, s{sLB}, {lds + 1024*k}\n" + (f"s_add_u32 s{so}, s{so}, 4096\n" if k else "s_nop 0\n")
                r.append(pre + f"buffer_load_dwordx4 v{vL16}, {WSR}, s{so} offen offset:{1024*(k % 4)} sc1 lds"); seq.append(tag)
            return r
        def pq(base, sp):
            return sum((ldl(base + 20*sp + 4*tt, 4, vL16, (sPQb, t, t + 1)[tt >> 1], 2048*(tt & 1) + 1024*sp, f"pq{sp}") for tt in range(5)), [])
        def gld(va):
            return sum((ldl(vG + st, 1, va, t + 3, 64*st, "g") for st in range(4)), [])
        def lateb(i=5):
            if i < NB: return []
            r = sum((ldl(BS + 20*i + 4*jn, 4, vL16, sB0 + i, 1024*jn, f"act{i}") for jn in range(4)), [])
            return r + [f"s_add_u32 s{sB0+i}, s{sB0+i}, 4096"] + ldl(BS + 20*i + 16, 4, vL16, sB0 + i, 0, f"act{i}")
        chunks, slot, X, K0, ad = self.adlist()
        mq = [t + 4, t + 6, t + 8]
        consts = [f"s_mov_b32 s{cE}, 0x358637bd", f"s_mov_b32 s{mq[0]}, 0xffff", f"s_mov_b32 s{mq[0]+1}, 0", f"s_mov_b32 s{mq[1]}, -1", f"s_mov_b32 s{mq[1]+1}, 0",
                  f"s_mov_b32 s{mq[2]}, -1", f"s_mov_b32 s{mq[2]+1}, 0xffff"]
        swaps = lambda R: [f"v_swap_b32 v{R+8*p+2+k}, v{R+8*p+4+k}" for p in range(2) for k in range(2)]
        K32 = lambda d, A, B, c: f"v_mfma_f32_16x16x32_bf16 v[{d}:{d+3}], v[{A}:{A+3}], v[{B}:{B+3}], {c}"
        K16 = lambda d, A, B: f"v_mfma_f32_16x16x16_bf16 v[{d}:{d+3}], v[{A}:{A+1}], v[{B}:{B+1}], v[{d}:{d+3}]"
        acc = lambda d: f"v[{d}:{d+3}]"
        def fqf(base):
            def fq(st, tt):
                R = base + 20*(st >> 1)
                return R + 8*(tt >> 1) + 4*(st & 1) + 2*(tt & 1) if tt < 4 else R + 16 + 2*(st & 1)
            return fq
        def gather(KAr, raw, KP, PQb, first):
            for j, c in enumerate(chunks):
                a(f"ds_read_b128 v[{raw(j)}:{raw(j)+3}], v{KAr+j} offset:{1344*c[1]}")
            emit(swaps(PQb) + swaps(PQb + 20))
            for j, c in enumerate(chunks):
                if j in (0, first): a(f"s_waitcnt lgkmcnt({18 - first if j == 0 else 0})")
                d, r = KP + 2*slot[c], raw(j)
                a(f"v_cvt_pk_bf16_f32 v{d}, v{r}, v{r+1}\nv_cvt_pk_bf16_f32 v{d+1}, v{r+2}, v{r+3}")
            for z in (5, 6, 12): a(f"v_mov_b32 v{KP+2*z}, 0\nv_mov_b32 v{KP+2*z+1}, 0")
        def scales(st, DN, SC):
            r = ([] if LATEORD else [f"v_add_f32 v{DN+k}, s{cE}, v{DN+k}" for k in range(4)]) + [f"v_rcp_f32 v{DN+k}, v{DN+k}" for k in range(4)]
            r += [f"v_mul_f32 v{DN+k}, v{vG+st}, v{DN+k}" for k in range(4)]
            return r + [f"v_cndmask_b32 v{SC[k]}, v{DN+k+1}, v{DN+k}, s[{mq[k]}:{mq[k]+1}]" for k in range(3)]
        def vtile(st, tt, o, DN, SC, fq):
            sc = (DN, SC[0], SC[1], SC[2], DN + 3)[tt]
            return [f"v_mul_f32 v{o+k}, v{sc}, v{o+k}" for k in range(4)] + [f"v_cvt_pk_bf16_f32 v{fq(st,tt)}, v{o}, v{o+1}", f"v_cvt_pk_bf16_f32 v{fq(st,tt)+1}, v{o+2}, v{o+3}"]
        def mlp(i, zero, sts=None):
            order = [(jn, st) for jn in range(5) for st in range(4)] if sts is None else [(jn, st) for st in sts for jn in range(5)]
            return [K32(20*st + 4*jn, BS + 20*i + 4*jn, AB + 16*(i % 3) + 4*st, "0" if zero else acc(20*st + 4*jn)) for jn, st in order]
        TA, RA, vRW = 224, 170, vP
        rw = [f"v_and_b32 v{TA}, 15, v{LN}", f"v_mul_u32_u24 v{TA}, 160, v{TA}", f"v_bfe_u32 v{TA+1}, v{LN}, 5, 1", f"v_bfe_u32 v{vRW}, v{LN}, 2, 1", f"v_xor_b32 v{TA+1}, v{TA+1}, v{vRW}",
              f"v_lshl_add_u32 v{TA}, v{TA+1}, 4, v{TA}", f"v_bfe_u32 v{TA+1}, v{LN}, 4, 1", f"v_mul_u32_u24 v{TA+1}, 10240, v{TA+1}", f"v_add3_u32 v{vRW}, v{TA}, v{TA+1}, s{sLB}"]
        wrl = lambda st: [] if DIAG == 6 else [f"ds_write_b128 v{vRW}, v[{20*st+4*jn}:{20*st+4*jn+3}] offset:{2560*st + 32*jn}" for jn in range(5)]
        rd = [f"s_mul_i32 s{t}, s{sWAVE}, 80", f"v_add_u32 v{RA}, s{t}, v{LN}", f"v_add_u32 v{RA+1}, 64, v{RA}",
              f"s_lshl_b32 s{t+2}, s{sR64}, 8", f"s_add_u32 s{t+2}, s{t+2}, {WS_G + 8192}"]
        for k in range(2):
            rd += [f"v_mul_u32_u24 v{RA+2}, 6554, v{RA+k}", f"v_lshrrev_b32 v{RA+2}, 16, v{RA+2}", f"v_mad_i32_i24 v{RA+3}, v{RA+2}, -10, v{RA+k}", f"v_lshlrev_b32 v{TA+2+k}, 2, v{RA+2}",
                   f"buffer_load_dword v{TA+2+k}, v{TA+2+k}, {WSR}, s{t+2} offen sc1",
                   f"v_bfe_u32 v{RA+6}, v{RA+2}, 2, 1", f"v_xor_b32 v{RA+k}, v{RA+k}, v{RA+6}",
                   f"v_mul_u32_u24 v{RA+2}, 1280, v{RA+2}", f"v_lshl_add_u32 v{RA+4+k}, v{RA+3}, 4, v{RA+2}", f"v_lshlrev_b32 v{RA+k}, 4, v{RA+k}"]
        rd += [f"v_add_u32 v{RA+6}, 61440, v{RA}", f"v_add_u32 v{RA+7}, 61440, v{RA+1}", f"v_add_u32 v{RA+8}, 122880, v{RA}", f"v_add_u32 v{RA+9}, 122880, v{RA+1}"]
        rd += [f"s_mov_b32 s{SRD_M}, s{pOUT}", f"s_mov_b32 s{SRD_M+1}, s{pOUT+1}", f"s_mov_b32 s{SRD_M+2}, {2048*640*2}", f"s_mov_b32 s{SRD_M+3}, 0x20000",
               f"s_mul_i32 s{t}, s{sR64}, 81920", f"s_mul_i32 s{t+1}, s{sC}, 160", f"s_add_u32 s{t}, s{t}, s{t+1}"]
        def flagvec(vt, with_act):
            a(f"v_lshlrev_b32 v{vP}, 2, v{LN}\nv_add_u32 v{vP}, s{sFk}, v{vP}\nv_mov_b32 v{vt}, 1\nv_cmp_le_u32 vcc, 4, v{LN}\nv_mov_b32 v{vt+1}, s{sFq}\ns_add_u32 s{t+2}, s{sFa}, 8")
            a(f"v_cndmask_b32 v{vP}, v{vP}, v{vt+1}, vcc")
            if with_act:
                a(f"v_cmp_lt_u32 vcc, 4, v{LN}\nv_mov_b32 v{vt+1}, s{t+2}\ns_nop 0\nv_cndmask_b32 v{vP}, v{vP}, v{vt+1}, vcc\nv_cndmask_b32 v{vt}, v{vt}, 2, vcc")

        a("s_setprio 0")
        if ADPRE != 2:
            a(f"v_lshrrev_b32 v{LN}, 4, v{vL16}")
            a(f"s_xor_b32 s{sLB}, s{sWAVE}, 4\ns_mul_i32 s{sLB}, s{sLB}, 20480\ns_mov_b32 s{sN208}, -208")
        a(f"s_lshl_b32 s{t+3}, s{sR64}, 8\ns_add_u32 s{t+3}, s{t+3}, {WS_G}\ns_add_u32 s{t}, s{sPQb}, 4096\ns_add_u32 s{t+1}, s{sPQb}, 8192")
        if LFLAG: a(f"v_and_b32 v{vP}, 1, v{LN}\nv_lshlrev_b32 v{vP}, 2, v{vP}")
        else: a(f"v_mov_b32 v{vP}, 0")
        atest = (f"v_cmp_le_u32 vcc, 2, v{vP+1}\ns_nop 1\ns_and_b32 s{t+14}, vcc_lo, 3\ns_cmp_eq_u32 s{t+14}, 3" if LFLAG else
                 f"v_readfirstlane_b32 s{t+14}, v{vP+1}\ns_nop 0\ns_cmp_ge_u32 s{t+14}, 2")
        apoll0 = f"v_mov_b32 v{vP+1}, 0\ns_mov_b64 exec, {3 if LFLAG else 1}\nbuffer_atomic_add v{vP+1}, v{vP}, {WSR}, s{sFa} offen sc0 sc1\ns_mov_b64 exec, -1"
        lE = a.newlabel("L_early")
        if EARLYA:
            sk = a.newlabel("L_ne")
            a(f"s_mov_b32 s32, 0\ns_cmp_lt_u32 s{sWAVE}, 4\ns_cbranch_scc1 {sk}\n{apoll0}")
            a.label(sk)
        if ADPRE == 1: emit(ad[:len(ad)*(100 - APRE)//100])
        if APRE: a(apoll0)
        if ADPRE == 1: emit(ad[len(ad)*(100 - APRE)//100:])
        if EARLYA:
            sk = a.newlabel("L_ne")
            a(f"s_cmp_lt_u32 s{sWAVE}, 4\ns_cbranch_scc1 {sk}\ns_waitcnt vmcnt(0)\n{atest}\ns_cbranch_scc0 {sk}\ns_mov_b32 s32, 1")
            sv = list(seq); emit(act(0) + act(1) + act(2)); seq[:] = sv
            a.label(sk)
        if not NOE1: a("s_barrier")
        self.stamp(4)
        apoll = f"v_mov_b32 v{vP+1}, 0\ns_mov_b64 exec, {3 if LFLAG else 1}\nbuffer_atomic_add v{vP+1}, v{vP}, {WSR}, s{sFa} offen sc0 sc1\ns_mov_b64 exec, -1"
        if EARLYA:
            sk = a.newlabel("L_ne")
            a(f"s_cmp_eq_u32 s32, 1\ns_cbranch_scc1 {sk}\n{apoll}")
            a.label(sk)
        elif ATP and not APRE: a(apoll)
        elif WOPOS != "pre" and not APRE: a(f"buffer_load_dword v{vP+1}, v{vP}, {WSR}, s{sFa} offen sc1")
        if NPL:
            sk = a.newlabel("L_np")
            a(f"s_cmp_ge_u32 s{sWAVE}, 4\ns_cbranch_scc1 {sk}")
            self.preload_b(0, NPRE, alt=72)
            a.label(sk)
        self.pickup()
        if WOPOS == "pre":
            a("s_waitcnt lgkmcnt(0)")
            emit(dma(sMb, 13, 0, "wo"))
        if not ADPRE: emit(ad)
        a("s_waitcnt lgkmcnt(0)")
        for k in range(5): a(f"ds_write_b128 v{X+18}, v[{K0+4*k}:{K0+4*k+3}] offset:{13312 + 1024*k}")
        if EARLYA: a(f"s_cmp_eq_u32 s32, 1\ns_cbranch_scc1 {lE}")
        if ATP:
            lp, dn = a.newlabel("L_ap"), a.newlabel("L_apd")
            a(f"s_mov_b32 s{t+15}, 0")
            if NPL:
                sk = a.newlabel("L_np")
                a(f"s_cmp_ge_u32 s{sWAVE}, 4\ns_cbranch_scc1 {lp}\ns_waitcnt vmcnt({NPRE})\n{atest}\ns_cbranch_scc1 {dn}\n{apoll}")
            a.label(lp)
            a(f"s_waitcnt vmcnt(0)\n{atest}\ns_cbranch_scc1 {dn}\ns_add_u32 s{t+15}, s{t+15}, 1")
            a(f"s_cmp_ge_u32 s{t+15}, {SPIN}\ns_cbranch_scc1 {dn}\ns_sleep {ATP}\n{apoll}\ns_branch {lp}")
            a.label(dn)
        elif WOPOS == "pre": self.poll(f"s{sFa}", 2, vP, vP + 1)
        else:
            a("s_waitcnt vmcnt(0)")
            if LFLAG == 1:
                sk = a.newlabel("L_sig")
                a(f"s_cmp_ge_u32 s{sWAVE}, 4\ns_cbranch_scc1 {sk}")
                self.stamp(5)
                self.signal(sF1, 70); self.signal(32, 70)
                a.label(sk)
            check(f"s{sFa}", 2)
        self.stamp(6)
        PR = {"f": {-1: 1, 4: 0}, "g": {-1: 2, 3: 1, 5: 0}, "h": {-1: 1, 5: 0, 6: 1}, "i": {-1: 1, 5: 0, 7: 1}, "a": {-1: 3, 2: 2, 5: 1, 6: 0}, "b": {-1: 3, 1: 2, 3: 1, 6: 0}, "c": {-1: 1, 5: 0}, "d": {-1: 2, 5: 1, 7: 0}, "e": {-1: 3, 3: 2, 6: 1, 8: 0}}.get(PRIO, {})
        prio = lambda k: a(f"s_setprio {PR[k]}") if k in PR else None
        if EARLYA:
            assert FVAT >= 0 and not A2L
            emit(act(0) + act(1) + act(2))
            a.label(lE)
        prio(-1)
        if not EARLYA: emit(act(0))
        a(f"v_lshlrev_b32 v{vP}, 7, v{LN}\nv_add_u32 v{vP}, s{sFk}, v{vP}\nv_cmp_le_u32 vcc, 4, v{LN}\nv_mov_b32 v{vG+1}, s{sFq}\nv_mov_b32 v{vG}, 16")
        a(f"v_cndmask_b32 v{vP}, v{vP}, v{vG+1}, vcc\nv_cndmask_b32 v{vG}, v{vG}, 25, vcc")
        if LFLAG: a(f"v_cmp_lt_u32 vcc, 4, v{LN}\ns_add_u32 s{t+2}, s{sFa}, 8\nv_mov_b32 v{vG+1}, s{t+2}\nv_cndmask_b32 v{vP}, v{vP}, v{vG+1}, vcc\nv_cndmask_b32 v{vG}, v{vG}, 2, vcc")
        fv = lambda: (a(f"buffer_load_dword v{vP+1}, v{vP}, {WSR}, 0 offen sc1"), seq.append("fv"))
        if FVAT < 0: fv()
        if not EARLYA: emit(act(1) + ([] if A2L else act(2)))
        fill = (lambda: dma(sMb, 13, 0, "wo")) if WOPOS == "s0" else (lambda: (act(2) if A2L else []) + lateb(3))
        for i in range(5):
            prio(i)
            wait(f"act{i}")
            if TAILDBG == 2 and i < 4: self.stamp((2, 3, 5, 7)[i], "tail")
            emit(interleave(mlp(i, i == 0), fill() if fill else []))
            fill = None
            if i == 0 and WOPOS == "s1": fill = lambda: dma(sMb, 13, 0, "wo")
            if i == 3 and WOPOS == "s4": fill = lambda: dma(sMb, 13, 0, "wo")
            if i == FVAT: fv()
            if i < 2 and not (LFLAG and i == 1): emit(act(i + 3))
            if i == PQAT:
                wait("fv")
                check("0", f"v{vG}", 8)
                if TAILDBG == 2: self.stamp(4, "tail")
                if LFLAG: emit(act(4))
                a(f"v_and_b32 v{vP+1}, 15, v{LN}\nv_lshlrev_b32 v{vP+1}, 2, v{vP+1}")
                f1 = lambda: lateb(4) + pq(PQR, 0) + pq(PQR, 1) + gld(vP + 1)
                if FILLI and i < 2: fill = f1
                else: emit(f1())
            if i == 2:
                a(f"v_add_u32 v{KA+19}, s{sLB}, v{vL16}")
                for k in range(5): a(f"ds_read_b128 v[{KA+4*k}:{KA+4*k+3}], v{KA+19} offset:{13312 + 1024*k}")
                a("s_waitcnt lgkmcnt(0)")
                f2 = lambda: dma(sKv, 7, 13312, "kv") + (act(5) + lateb() if WOPOS != "x" else []) + (dma(sMb, 13, 0, "wo") if WOPOS == "s3" else [])
                if FILLI: fill = f2
                else: emit(f2())
        self.stamp(7)
        prio(5)
        emit(consts)
        KP = 120
        wait("kv")
        self.stamp(8)
        gather(KA, lambda j: 200 + 4*j if j < 8 else 140 + 4*(j - 8), KP, PQR, 8)
        Oset = {1: ([200, 204, 208, 212, 216], 220), 0: ([162, 166, 170, 174, 224], 228)}
        SC = [178, 179, vP + 1]
        fq = fqf(PQR)
        S = lambda k: KP + 2*k
        def Xb(st):
            O, DN = Oset[st & 1]
            p0, p1, ps = fq(st, 0), fq(st, 2), fq(st, 4)
            return [K32(DN, S(16), p0, acc(196) if LATEORD else "0"), K32(O[3], S(10), p1, "0"), K32(O[4], S(12), p1, "0"), K32(DN, S(18), p1, acc(DN)),
                    K32(O[0], S(0), p0, "0"), K32(O[1], S(2), p0, "0"), K32(O[2], S(6), p0, "0"), K32(O[1], S(4), p1, acc(O[1])), K32(O[2], S(8), p1, acc(O[2])),
                    "s_nop 0", K16(DN, S(20), ps), K16(O[3], S(14), ps), K16(O[4], S(15), ps)]
        def Vb(st):
            O, DN = Oset[st & 1]
            if DIAG == 7: return []
            return scales(st, DN, SC) + sum((vtile(st, tt, O[tt], DN, SC, fq) for tt in range(5)), [])
        def Yb(st):
            r = []
            for p in range(2):
                r += [K32(20*st + 4*jn, MR + 4*(2*jn + p), fq(st, 2*p), acc(20*st + 4*jn)) for jn in range(5)]
            return r + ["s_nop 1"] + [K16(20*st + 4*jn, MR + 40 + 2*jn, fq(st, 4)) for jn in range(5)]
        a("s_nop 1")
        if TAILDBG == 1: self.stamp(2, "tail")
        late = (act(5) + lateb() + dma(sMb, 13, 0, "wo")) if WOPOS == "x" else []
        if DIAG == 5: late = late[:4]
        if LATEORD:
            assert NB == 5 and WOPOS == "x"
            lastb = late[8:10]; late = late[:8] + late[10:]
            i5 = seq.index("act5") + 8; seq.pop(i5); seq.append("act5")
            for k in range(4): a(f"v_mov_b32 v{196+k}, 0x358637bd")
            a("s_nop 1")
        cuts = [0] + [len(late)*c//100 for c in XSPLIT] + [len(late)]
        emit(interleave(Xb(0), late[cuts[0]:cuts[1]]))
        for st in range(1, 4):
            x = Xb(st)
            emit(interleave(x[:6], late[cuts[st]:cuts[st+1]]) + (lastb if LATEORD and st == 3 else []) + interleave(x[6:], Vb(st - 1)))
        a(f"v_add_u32 v{TA}, s{sLB}, v{vL16}\nv_lshlrev_b32 v{TA+1}, 3, v{LN}\nv_add_u32 v{TA+1}, s{sLB}, v{TA+1}")
        wor = [f"ds_read_b128 v[{MR+4*f}:{MR+4*f+3}], v{TA} offset:{1024*f}" for f in range(10)]
        wor += [f"ds_read_b64 v[{MR+40+2*jn}:{MR+41+2*jn}], v{TA+1} offset:{10240 + 512*jn}" for jn in range(5)]
        prio(6)
        if WOPOS in ("s3", "s4", "x"):
            if TAILDBG == 1: self.stamp(3, "tail")
            wait("act5")
            if TAILDBG == 1: self.stamp(4, "tail")
            emit(interleave(mlp(5, False), Vb(3)))
            if TAILDBG == 1: self.stamp(5, "tail")
            a("s_waitcnt vmcnt(0)")
            if TAILDBG == 1: self.stamp(6, "tail")
            emit(wor + rw)
        else:
            emit(wor)
            wait("act5")
            emit(interleave(mlp(5, False), Vb(3) + rw))
        a("s_waitcnt lgkmcnt(0)")
        if RED == 2:
            def aset(B, T, sbase):
                return [f"v_add_u32 v{B}, {sbase}, v{LN}", f"v_mul_u32_u24 v{T}, 6554, v{B}", f"v_lshrrev_b32 v{T}, 16, v{T}", f"v_mad_i32_i24 v{T+1}, v{T}, -10, v{B}",
                        f"v_lshlrev_b32 v{B+4}, 2, v{T}", f"buffer_load_dword v{B+4}, v{B+4}, {WSR}, s{t+2} offen sc1",
                        f"v_bfe_u32 v{B+1}, v{T}, 2, 1", f"v_xor_b32 v{B}, v{B}, v{B+1}", f"v_mul_u32_u24 v{T}, 1280, v{T}", f"v_lshl_add_u32 v{B+3}, v{T+1}, 4, v{T}",
                        f"v_lshlrev_b32 v{B}, 4, v{B}", f"v_add_u32 v{B+1}, 61440, v{B}", f"v_add_u32 v{B+2}, 122880, v{B}"]
            def rsum(sets):
                items = [(B, m, D, w) for B, m, D in sets for w in range(8)]
                def rdp(n):
                    B, m, D, w = items[n]
                    r = [f"ds_read_b128 v[{D+8*w+4*par}:{D+8*w+4*par+3}], v{B + w // 3} offset:{20480*(w % 3) + 10240*par}" for par in range(2)]
                    return r if m is None else [m] + r + ["s_mov_b64 exec, -1"]
                AH = 6
                for n in range(AH): emit(rdp(n))
                for n, (B, m, D, w) in enumerate(items):
                    if n + AH < len(items): emit(rdp(n + AH))
                    if w == 0: continue
                    a(f"s_waitcnt lgkmcnt({2*min(AH, len(items) - 1 - n)})")
                    if len(sets) == 2 and n < PLA:
                        for j in range(8): a(f"v_add_f32 v{D+j}, v{D+j}, v{D+8*w+j}")
                    else:
                        for j in range(4): a(f"v_pk_add_f32 v[{D+2*j}:{D+2*j+1}], v[{D+2*j}:{D+2*j+1}], v[{D+8*w+2*j}:{D+8*w+2*j+1}]")
                    if w == 7:
                        if n == 7 and len(sets) == 2: a("s_waitcnt vmcnt(0)")
                        for j in range(8): a(f"v_mul_f32 v{D+j}, v{B+4}, v{D+j}")
                        for j in range(4): a(f"v_cvt_pk_bf16_f32 v{D+j}, v{D+2*j}, v{D+2*j+1}")
                        if m: a(m)
                        a(f"buffer_store_dwordx4 v[{D}:{D+3}], v{B+3}, s[{SRD_M}:{SRD_M+3}], s{t} offen {OUTFL}")
                        if m: a("s_mov_b64 exec, -1")
            r2 = [f"s_mul_i32 s{t+3}, s{sWAVE}, 40", f"s_add_u32 s{t+3}, s{t+3}, 320"] + rd[3:5] + aset(170, 175, f"s{t+3}") + rd[-7:]
            emit(interleave(Yb(0), r2))
            prio(7)
            emit(interleave(Yb(1), wrl(0), 6))
            prio(8)
            if not R1E: emit(interleave(Yb(2), wrl(1), 6))
            if TAILDBG == 1: self.stamp(7, "tail")
            lo, lj = a.newlabel("L_ro"), a.newlabel("L_rj")
            a(f"s_cmp_lt_u32 s{sWAVE}, 4\ns_cbranch_scc1 {lo}")
            y3 = Yb(3)
            if R1E:
                y2 = Yb(2)
                emit(y2[:2] + interleave(y2[2:7], wrl(1)) + y2[7:R1E]); a("s_waitcnt lgkmcnt(0)\ns_barrier"); emit(y2[R1E:])
                emit(interleave(y3, wrl(2), 4, 10))
            else:
                emit(y3[:4]); a("s_waitcnt lgkmcnt(0)\ns_barrier"); emit(interleave(y3[4:], wrl(2), 2))
            a("s_nop 4")
            emit(wrl(3))
            a(f"s_waitcnt vmcnt(0)\ns_branch {lj}")
            a.label(lo)
            if R1E: emit(interleave(Yb(2), wrl(1), 6))
            emit(interleave(Yb(3), [f"s_mul_i32 s{t+3}, s{sWAVE}, 80"] + aset(200, 210, f"s{t+3}")[:5] + wrl(2) + aset(200, 210, "0")[5:]))
            a(f"s_add_u32 s{t+3}, s{t+3}, 64")
            emit(aset(205, 210, f"s{t+3}")[:8] + wrl(3) + aset(205, 210, "0")[8:])
            a("s_waitcnt lgkmcnt(0)\ns_barrier")
            rsum([(200, None, 0), (205, "s_mov_b64 exec, 0xffff", 64)])
            a.label(lj)
            a("s_waitcnt lgkmcnt(0)\ns_barrier")
            self.stamp(9)
            rsum([(170, "s_mov_b32 exec_hi, 0xff", 128 - 48)])
            return
        emit(interleave(Yb(0), rd[:25]))
        prio(7)
        emit(interleave(Yb(1), rd[25:] + wrl(0), 2))
        prio(8)
        emit(interleave(Yb(2), wrl(1), 6))
        emit(interleave(Yb(3), wrl(2), 6))
        a("s_nop 4")
        emit(wrl(3))
        a("s_waitcnt lgkmcnt(0)\ns_barrier")
        self.stamp(9)
        if RED == 0:
            for k in range(2):
                if k == 1: a("s_mov_b64 exec, 0xffff")
                R = 64*k
                for w in range(8):
                    for par in range(2):
                        base = [RA + k, RA + 6 + k, RA + 8 + k][w // 3]
                        a(f"ds_read_b128 v[{R+8*w+4*par}:{R+8*w+4*par+3}], v{base} offset:{20480*(w % 3) + 10240*par}")
            a("s_mov_b64 exec, -1")
            for k in range(2):
                R = 64*k
                a(f"s_waitcnt lgkmcnt({15 if k == 0 else 0})")
                for pairs in (((0, 4), (1, 5), (2, 6), (3, 7)), ((0, 2), (1, 3)), ((0, 1),)):
                    for x, y in pairs:
                        for j in range(4):
                            a(f"v_pk_add_f32 v[{R+8*x+2*j}:{R+8*x+2*j+1}], v[{R+8*x+2*j}:{R+8*x+2*j+1}], v[{R+8*y+2*j}:{R+8*y+2*j+1}]")
                if k == 0: a("s_waitcnt vmcnt(0)")
                for j in range(8): a(f"v_mul_f32 v{R+j}, v{TA+2+k}, v{R+j}")
                for j in range(4): a(f"v_cvt_pk_bf16_f32 v{R+j}, v{R+2*j}, v{R+2*j+1}")
                if k == 1: a("s_mov_b64 exec, 0xffff")
                a(f"buffer_store_dwordx4 v[{R}:{R+3}], v{RA+4+k}, s[{SRD_M}:{SRD_M+3}], s{t} offen {OUTFL}")
            a("s_mov_b64 exec, -1")


        else:
            items = [(k, w) for k in range(2) for w in range(8)]
            def rdp(n):
                k, w = items[n]
                base = [RA + k, RA + 6 + k, RA + 8 + k][w // 3]
                r = [f"ds_read_b128 v[{8*n+4*par}:{8*n+4*par+3}], v{base} offset:{20480*(w % 3) + 10240*par}" for par in range(2)]
                return r if k == 0 else ["s_mov_b64 exec, 0xffff"] + r + ["s_mov_b64 exec, -1"]
            AH = 6
            for n in range(AH): emit(rdp(n))
            for n, (k, w) in enumerate(items):
                if n + AH < 16: emit(rdp(n + AH))
                if w == 0: continue
                a(f"s_waitcnt lgkmcnt({2*min(AH, 15 - n)})")
                R = 64*k
                for j in range(4):
                    a(f"v_pk_add_f32 v[{R+2*j}:{R+2*j+1}], v[{R+2*j}:{R+2*j+1}], v[{8*n+2*j}:{8*n+2*j+1}]")
                if w == 7:
                    if k == 0: a("s_waitcnt vmcnt(0)")
                    for j in range(8): a(f"v_mul_f32 v{R+j}, v{TA+2+k}, v{R+j}")
                    for j in range(4): a(f"v_cvt_pk_bf16_f32 v{R+j}, v{R+2*j}, v{R+2*j+1}")
                    if k == 1: a("s_mov_b64 exec, 0xffff")
                    a(f"buffer_store_dwordx4 v[{R}:{R+3}], v{RA+4+k}, s[{SRD_M}:{SRD_M+3}], s{t} offen {OUTFL}")
            a("s_mov_b64 exec, -1")


def descriptor(name):
    return f""".p2align 6
.amdhsa_kernel {name}
  .amdhsa_next_free_vgpr 256
  .amdhsa_next_free_sgpr 102
  .amdhsa_accum_offset 256
  .amdhsa_group_segment_fixed_size 0
  .amdhsa_kernarg_size 88
  .amdhsa_user_sgpr_count 2
  .amdhsa_user_sgpr_kernarg_segment_ptr 1
  .amdhsa_system_sgpr_workgroup_id_x 1
.end_amdhsa_kernel
"""

def build(stamps):
    ALT = 72 if ADPRE == 2 else None
    assert not (ADPRE == 2 and NE16)
    assert not LFLAG or (ROT2 == "none" and PQAT == 1 and not EARLYQ and WOPOS != "pre")
    g = Gen(stamps=stamps)
    a = g.a
    K = NAME + "_kernel"
    hdr = open(os.path.join(os.path.dirname(os.path.abspath(__file__)), "header.txt")).read()
    for l in hdr.strip().split("\n"): a.lines.append(l)
    a(f"; @launch grid=(256,1,1) block=(512,1,1) lds={LDS_TOTAL}")
    a('.amdgcn_target "amdgcn-amd-amdhsa--gfx950"\n.text')
    a(f".globl {K}\n.p2align 8\n.type {K},@function")
    a.label(K)
    g.common_prologue("L_end")
    a(f"s_cmp_lt_u32 s{sWAVE}, 4\ns_cbranch_scc1 L_comp")
    g.loader1()
    a(f"s_setprio {LPRIO}")
    if not NE16:
        g.setup2(ADPRE != 2)
        g.srd(SRD_WS, pWS, WS_SIZE)
    g.preload_b(NE16, NL0, alt=ALT)
    if K1LDS: a(f"v_mov_b32 v76, {K1C}\nv_mov_b32 v77, 0\nds_write_b32 v76, v77\ns_waitcnt lgkmcnt(0)")
    a("s_barrier")
    if SKEW: a(f"v_mov_b32 v6, {HINT}\nv_mov_b32 v8, 0\nv_mov_b32 v9, 0\nv_mov_b32 v10, 0\nv_mov_b32 v11, 0\nds_write_b128 v6, v[8:11]\ns_waitcnt lgkmcnt(0)")
    g.preload_b(NL0, NL1, TH, alt=ALT)
    if not K1LDS: a(f"s_cmp_lg_u32 s{sTYPE}, 0\ns_cbranch_scc1 L_l2\ns_barrier")
    a.label("L_l2")
    if DIAG != 3: g.preload_b(NL1, 5*NB, TH, alt=ALT)
    if BLDS and DIAG != 3: g.stage_b()
    g.stamp(3)
    a.label("L_g2")
    g.gemm2()
    g.dump_stamps()
    a.label("L_end")
    a("s_endpgm")
    a.label("L_comp")
    a(f"s_cmp_eq_u32 s{sTYPE}, 0\ns_cbranch_scc1 L_kv")
    g.compute_P(); a("s_branch L_g2")
    a.label("L_kv")
    g.compute_KV(); a("s_branch L_g2")
    a.label("L_code_end")
    errs = lint(a.lines)
    for e in errs: print("HAZARD:", e, file=sys.stderr)
    return a.text() + '.section .rodata,"a"\n' + descriptor(K)

if __name__ == "__main__":
    open(sys.argv[1], "w").write(build(sys.argv[2] if len(sys.argv) > 2 else False))
```

```python
import sys, os, re
sys.path.insert(0, os.path.dirname(os.path.abspath(__file__)))
from asmlib import *

NAME = "gated_mix__linear_attn_block__dense_activation_mish__prompt"
ENV = os.environ.get

CNT_ACT, CNT_PQ, CNT_KV = 0, 256*128, 288*128
DONE_KV, DONE_PQ = 320*128, 328*128
WS_G = 0x10000
WS_KVP = 0x100000
WS_WOR = 0x200000
WS_W2R = 0x300000
WS_PQ = 0x500000
WS_ACT = 0x800000
WS_SIZE = 0x1000000
WS_STAMP = 0x8000000
BIG = 0x20000000
DBGW = int(ENV("DBGW", "0"))
ROTMODE = ENV("ROT", "two")
ROT2 = ENV("ROT2", "none")
NPRE = int(ENV("NPRE", "10"))
SPIN = int(ENV("SPIN", str(0x100000)))
WOAT = 3
ADPRE = int(ENV("ADPRE", "2"))
KVAT = int(ENV("KVAT", "-1"))
GSYNC = int(ENV("GSYNC", "0"))
PF = int(ENV("PF", "0"))
RS = int(ENV("RS", "3"))
S1AT = int(ENV("S1AT", "8"))
S1SLEEP = int(ENV("S1SLEEP", "2"))
LOOPDBG = int(ENV("LOOPDBG", "0"))
CPF = int(ENV("CPF", "1"))
RD = int(ENV("RD", "-1"))
SKEW = int(ENV("SKEW", "0"))
HINT = 3*20480 + 12800
TAILDBG = int(ENV("TAILDBG", "0"))
OUTFL = ENV("OUTFL", "").replace("_", " ")
LFLAG = int(ENV("LFLAG", "0"))
FAKE = int(ENV("FAKE", "0"))
SPLIT = int(ENV("SPLIT", "1"))
YSLEEP = int(ENV("YSLEEP", "8"))
PQAT = int(ENV("PQAT", "1"))
FILLI = int(ENV("FILLI", "1"))
FIRST0 = int(ENV("FIRST0", "0"))
PRIO = ENV("PRIO", "c")
LOOK = ENV("LOOK", "xw")
GBR = int(ENV("GBR", "0"))
STPRIO = int(ENV("STPRIO", "1"))
NRE = int(ENV("NRE", "20"))
SPREAD = int(ENV("SPREAD", "0"))
NE16 = int(ENV("NE16", "0"))
NL1 = int(ENV("NL1", "18"))
K1LDS = int(ENV("K1LDS", "1"))
K1C = 40960 + 2032
FVAT = int(ENV("FVAT", "0"))
WOPOS = ENV("WOPOS", "x")
RED = int(ENV("RED", "2"))
DIAG = int(ENV("DIAG", "0"))
LPRIO = int(ENV("LPRIO", "0"))
EPRIO = int(ENV("EPRIO", "0"))
TH = int(ENV("TH", "4"))
EARLYQ = int(ENV("EARLYQ", "0"))
NB = int(ENV("NB", "5"))
NTH = int(ENV("NTH", "36"))
XSPLIT = [int(v) for v in ENV("XSPLIT", "30,55,80").split(",")]
LRP = int(ENV("LRP", "0"))
MBOX = 161792
STRICTP = int(ENV("STRICTP", "1"))
LATEORD = int(ENV("LATEORD", "0"))
B20AT = int(ENV("B20AT", "14"))
MAP1 = ENV("MAP1", "q")
ROTQ = int(ENV("ROTQ", "1"))
RG = int(ENV("RG", "5"))
RX = int(ENV("RX", "2"))
RTAB = [int(c) for c in ENV("RTAB", "03703703")]
XTAB = [int(c) for c in ENV("XTAB", "01201212")]
RTABP = [int(c) for c in ENV("RTABP", ENV("RTAB", "03703703"))]
RCM = int(ENV("RCM", "1"))
NOE1 = int(ENV("NOE1", "0"))
ATP = int(ENV("ATP", "2"))
FAST0 = int(ENV("FAST0", "1"))
LP2 = int(ENV("LP2", "2"))
CP = int(ENV("CP", "0"))
NRK = int(ENV("NRK", "24"))
LARR = int(ENV("LARR", "2"))
A2L = int(ENV("A2L", "0"))
EARLYA = int(ENV("EARLYA", "0"))
B1M = int(ENV("B1M", "0"))
APRE = int(ENV("APRE", "0"))
R1E = int(ENV("R1E", "0"))
PLA = int(ENV("PLA", "16"))
QLAST = int(ENV("QLAST", "0"))
NPL = int(ENV("NPL", "1"))
PICK = int(ENV("PICK", "0"))
SLEEP = int(ENV("SLEEP", "8"))
BLDS = int(ENV("BLDS", "1"))
NL0 = int(ENV("NL0", "15"))
MAP2 = ENV("MAP2", "x2")
TOUCH = int(ENV("TOUCH", "0"))
MSDBG = int(ENV("MSDBG", "0"))
MSPRIO = int(ENV("MSPRIO", "1"))
MSPRIO2 = int(ENV("MSPRIO2", "1"))

XR = 0
STG = 40960
WR = 49152
WSLOT = 14336
NS = 6
GATE = WR + NS * WSLOT
SCR = GATE + 2048
MS = WR
BL = WR + 32768
BLF = STG + 2040
LDS_TOTAL = 163840

sWG = 2
pX, pWQKV, pWO, pW1, pB1, pW2, pGATE, pOUT, pDBG, pWS = 4, 6, 8, 12, 14, 16, 18, 20, 22, 24
sWAVE, sRB, sHALF, sCBL, sGRP, sF1, sROT, sPIDX, sTYPE, sT = 26, 27, 28, 29, 30, 31, 32, 33, 34, 35
SRD_WS, SRD_X, SRD_W, SRD_M, SRD_D = 36, 40, 44, 52, 56
T0 = 60
sST = 76
cL2E, cC, cE = 96, 98, 100
sR64, sC = 27, 28
sB0, sA0 = 40, 46
sPQb, sMb, sKv, sFk = 0, 1, 3, 29
sFa, sFq = 10, 11
BS, AB = 80, 200
PQR, MR, KA, KD = 80, 120, 120, 176
sLB, sN208 = 30, 33
vG, vP, vL16, vL16b = 248, 252, 254, 255
WSR = f"s[{SRD_WS}:{SRD_WS+3}]"


class Gen:
    def __init__(self, stamps=False):
        self.a = Asm()
        self.stamps = stamps

    def stamp(self, k, loop=False):
        if loop == "tail":
            if not TAILDBG: return
        elif TAILDBG and 1 <= k <= 7 and not (TAILDBG == 2 and k == 6): return
        elif LOOPDBG and k >= 3 and not loop: return
        elif loop and not LOOPDBG: return
        if self.stamps and not (self.stamps == "dbg" and k == 9):
            if k < 2 and self.stamps != "dbg" and loop != "tail":
                self.a(f"s_memtime s[58:59]\ns_waitcnt lgkmcnt(0)\ns_mov_b32 s{sST+2*k}, s58")
            else:
                self.a(f"s_memtime s[{sST+2*k}:{sST+2*k+1}]")

    def srd(self, d, ptr, size, add=None):
        a = self.a
        if add is None:
            a(f"s_mov_b32 s{d}, s{ptr}\ns_mov_b32 s{d+1}, s{ptr+1}")
        else:
            a(f"s_add_u32 s{d}, s{ptr}, {add}\ns_addc_u32 s{d+1}, s{ptr+1}, 0")
        a(f"s_mov_b32 s{d+2}, {size}\ns_mov_b32 s{d+3}, 0x20000")

    def signal(self, soff, v, off=0):
        self.a(f"v_mov_b32 v{v}, 1\nv_mov_b32 v{v+1}, 0\ns_mov_b64 exec, 1\nbuffer_atomic_add v{v}, v{v+1}, {WSR}, s{soff} offen offset:{off} sc1\ns_mov_b64 exec, -1")

    def arrive(self, soff, v):
        self.a(f"v_mov_b32 v{v}, 1\nv_mov_b32 v{v+1}, 0\ns_mov_b64 exec, 1\nbuffer_atomic_add v{v}, v{v+1}, {WSR}, s{soff} offen sc0 sc1\ns_mov_b64 exec, -1")

    def raise_if_last(self, v, last, soff):
        a = self.a
        sk = a.newlabel("L_last")
        a(f"v_readfirstlane_b32 s{T0+14}, v{v}\nv_mov_b32 v{v}, 1\nv_mov_b32 v{v+1}, 0\ns_cmp_lg_u32 s{T0+14}, {last}\ns_cbranch_scc1 {sk}")
        a(f"s_mov_b64 exec, 1\nbuffer_store_dword v{v}, v{v+1}, {WSR}, s{soff} offen sc1\ns_mov_b64 exec, -1")
        a.label(sk)

    def poll(self, soff, target, va, vd, srd=SRD_WS, sleep=None):
        a = self.a
        t = T0 + 15
        loop, done = a.newlabel("L_poll"), a.newlabel("L_polld")
        a(f"s_mov_b32 s{t}, 0")
        a.label(loop)
        a(f"buffer_load_dword v{vd}, v{va}, s[{srd}:{srd+3}], {soff} offen sc1\ns_waitcnt vmcnt(0)")
        a(f"v_cmp_le_u32 vcc, {target}, v{vd}\ns_add_u32 s{t}, s{t}, 1\ns_nop 0")
        a(f"s_cmp_eq_u64 vcc, -1\ns_cbranch_scc1 {done}")
        a(f"s_sleep {SLEEP if sleep is None else sleep}\ns_cmp_lt_u32 s{t}, {SPIN}\ns_cbranch_scc1 {loop}")
        a.label(done)

    def dump_stamps(self):
        if not self.stamps:
            return
        a = self.a
        a("s_waitcnt vmcnt(0) lgkmcnt(0)")
        a(f"s_memrealtime s[{T0}:{T0+1}]\ns_memtime s[{T0+2}:{T0+3}]")
        if self.stamps == "dbg":
            self.srd(SRD_M, pDBG, 256)
            a("s_waitcnt lgkmcnt(0)\nv_mov_b32 v2, 0\ns_mov_b64 exec, 1")
            sk = a.newlabel("L_dbg")
            a(f"s_lshl_b32 s{T0+5}, s{sWG}, 3\ns_add_u32 s{T0+5}, s{T0+5}, s{sWAVE}\ns_cmp_lg_u32 s{T0+5}, {DBGW}\ns_cbranch_scc1 {sk}")
            for k in range(1, 10):
                a(f"s_sub_u32 s{T0+5}, s{sST+2*k}, s{sST}\nv_mov_b32 v{3+k}, s{T0+5}")
            a(f"s_sub_u32 s{T0+5}, s{T0+2}, s{sST}\nv_mov_b32 v13, s{T0+5}\ns_sub_u32 s{T0+5}, s{T0}, s94\nv_mov_b32 v14, s{T0+5}\nv_mov_b32 v15, s94")
            for k in range(3):
                a(f"buffer_store_dwordx4 v[{4+4*k}:{7+4*k}], v2, s[{SRD_M}:{SRD_M+3}], 0 offen offset:{16+16*k}")
            a.label(sk)
            a("s_waitcnt vmcnt(0)")
            return
        a(f"s_getreg_b32 s{T0+4}, hwreg(HW_REG_XCC_ID)")
        self.srd(SRD_M, pWS, 0x10000000)
        a("s_waitcnt lgkmcnt(0)")
        for k in range(10):
            a(f"v_mov_b32 v{k}, s{sST+2*k}")
        a(f"v_mov_b32 v10, s{T0}\nv_mov_b32 v11, s{T0+2}\nv_mov_b32 v12, s{T0+4}\nv_mov_b32 v13, s{sTYPE}\nv_mov_b32 v14, s77\nv_mov_b32 v15, s79")
        a(f"s_lshl_b32 s{T0+5}, s{sWG}, 3\ns_add_u32 s{T0+5}, s{T0+5}, s{sWAVE}\ns_lshl_b32 s{T0+5}, s{T0+5}, 6\ns_add_u32 s{T0+5}, s{T0+5}, {WS_STAMP}")
        a("v_mov_b32 v16, 0\ns_mov_b64 exec, 1")
        for k in range(4):
            a(f"buffer_store_dwordx4 v[{4*k}:{4*k+3}], v16, s[{SRD_M}:{SRD_M+3}], s{T0+5} offen offset:{16*k}")
        a("s_waitcnt vmcnt(0)")

    def common_prologue(self, endlabel):
        a = self.a
        t = T0
        a(f"s_cmp_ge_u32 s{sWG}, 256\ns_cbranch_scc1 {endlabel}")
        a("s_load_dwordx16 s[4:19], s[0:1], 0\ns_load_dwordx4 s[20:23], s[0:1], 64\ns_load_dwordx2 s[24:25], s[0:1], 80")
        if self.stamps:
            for k in range(10): a(f"s_mov_b32 s{sST+2*k}, 0")
            if self.stamps == "dbg": a("s_memrealtime s[94:95]")
            else: a("s_memrealtime s[56:57]\ns_memtime s[58:59]\ns_waitcnt lgkmcnt(0)\ns_mov_b32 s77, s56\ns_mov_b32 s79, s58")
        if CPF:
            sk = a.newlabel("L_cpf")
            a(f"s_getpc_b64 s[{t}:{t+1}]\nL_pc0:\ns_lshr_b32 s{t+2}, s{sWG}, 3\ns_lshl_b32 s{t+2}, s{t+2}, 11\nv_lshlrev_b32 v2, 4, v0\nv_add_u32 v2, s{t+2}, v2")
            a(f"v_cmp_gt_u32 vcc, 128, v0\nv_min_u32 v2, L_code_end-L_pc0-16, v2\ns_and_saveexec_b64 s[{t+4}:{t+5}], vcc\ns_cbranch_execz {sk}")
            a(f"global_load_dwordx4 v[248:251], v2, s[{t}:{t+1}]")
            a.label(sk)
            a(f"s_mov_b64 exec, s[{t+4}:{t+5}]")
        a("v_lshrrev_b32 v1, 6, v0\nv_and_b32 v0, 63, v0")
        a(f"v_readfirstlane_b32 s{sWAVE}, v1")
        if MAP1 == "h":
            a(f"s_bfe_u32 s{t+2}, s{sWG}, 0x20001\ns_bfe_u32 s{t+3}, s{sWG}, 0x20003")
            a(f"s_lshl2_add_u32 s{sRB}, s{t+2}, s{t+3}\ns_and_b32 s{sHALF}, s{sWG}, 1\ns_lshr_b32 s{sCBL}, s{sWG}, 5")
            a(f"s_and_b32 s{t}, s{sCBL}, 3\ns_lshl2_add_u32 s{sGRP}, s{sHALF}, s{t}\ns_lshr_b32 s{sTYPE}, s{sCBL}, 2")
        else:
            bx, bh, b0 = {"q": (2, 1, 0), "q2": (0, 2, 1), "q3": (1, 2, 0)}[MAP1]
            a(f"s_bfe_u32 s{t+2}, s{sWG}, {0x10000 + bx:#x}\ns_bfe_u32 s{t+3}, s{sWG}, 0x30003\ns_lshl3_add_u32 s{sRB}, s{t+2}, s{t+3}")
            a(f"s_bfe_u32 s{sHALF}, s{sWG}, {0x10000 + bh:#x}\ns_lshr_b32 s{sTYPE}, s{sWG}, 7\ns_bfe_u32 s{t}, s{sWG}, 0x10006\ns_bfe_u32 s{t+1}, s{sWG}, {0x10000 + b0:#x}")
            a(f"s_lshl1_add_u32 s{t+4}, s{t+1}, s{t}\ns_lshl1_add_u32 s{t+5}, s{t}, s{t+1}\ns_cmp_eq_u32 s{sTYPE}, 0\ns_cselect_b32 s{t}, s{t+4}, s{t+5}")
            a(f"s_lshl2_add_u32 s{sCBL}, s{sTYPE}, s{t}\ns_lshl2_add_u32 s{sGRP}, s{sHALF}, s{t}")
            tab = sum(v << (4*n) for n, v in enumerate(RTAB))
            xtab = sum(v << (4*n) for n, v in enumerate(XTAB))
            a(f"s_lshr_b32 s{t+4}, s{sWG}, 6\ns_mul_i32 s{t+4}, s{t+4}, {RCM}\ns_add_u32 s{t+4}, s{t+4}, s{t+3}\ns_and_b32 s{t+4}, s{t+4}, 7\ns_lshl_b32 s{t+4}, s{t+4}, 2")
            tabp = sum(v << (4*n) for n, v in enumerate(RTABP))
            if tabp != tab: a(f"s_mov_b32 s{t+5}, {tabp:#x}\ns_cmp_eq_u32 s{sTYPE}, 0\ns_cselect_b32 s{t+5}, {tab:#x}, s{t+5}\ns_lshr_b32 s{t+4}, s{t+5}, s{t+4}\ns_and_b32 s{t+4}, s{t+4}, 15")
            else: a(f"s_lshr_b32 s{t+4}, {tab:#x}, s{t+4}\ns_and_b32 s{t+4}, s{t+4}, 15")
            a(f"s_and_b32 s{t+5}, s{sWG}, 7\ns_lshl_b32 s{t+5}, s{t+5}, 2\ns_lshr_b32 s{t+5}, {xtab:#x}, s{t+5}\ns_and_b32 s{t+5}, s{t+5}, 15\ns_add_u32 s{sROT}, s{t+4}, s{t+5}")
            if max(RTAB + RTABP) + max(XTAB) >= 10: a(f"s_sub_u32 s{t+4}, s{sROT}, 10\ns_cmp_ge_u32 s{sROT}, 10\ns_cselect_b32 s{sROT}, s{t+4}, s{sROT}")
        if MAP1 != "h": pass
        elif ROTMODE == "full":
            a(f"s_mul_i32 s{t+4}, s{t+3}, 5\ns_add_u32 s{t+4}, s{t+4}, 1\ns_lshr_b32 s{t+4}, s{t+4}, 1")
            a(f"s_add_u32 s{t+4}, s{t+4}, s{sCBL}\ns_add_u32 s{t+4}, s{t+4}, s{t+2}")
            a(f"s_mul_i32 s{t+5}, s{sHALF}, 5\ns_add_u32 s{sROT}, s{t+4}, s{t+5}")
            for _ in range(2):
                a(f"s_sub_u32 s{t+4}, s{sROT}, 10\ns_cmp_ge_u32 s{sROT}, 10\ns_cselect_b32 s{sROT}, s{t+4}, s{sROT}")
        elif ROTMODE == "none":
            a(f"s_mov_b32 s{sROT}, 0")
        elif ROTMODE == "xcd":
            a(f"s_mul_i32 s{t+4}, s{t+2}, 5\ns_add_u32 s{t+4}, s{t+4}, 1\ns_lshr_b32 s{t+4}, s{t+4}, 1\ns_add_u32 s{sROT}, s{t+4}, s{sHALF}")
        elif ROTMODE == "two0":
            a(f"s_add_u32 s{t+4}, s{t+3}, s{sCBL}\ns_and_b32 s{t+4}, s{t+4}, 1\ns_mul_i32 s{sROT}, s{t+4}, 5")
        elif ROTMODE == "two1":
            a(f"s_add_u32 s{t+4}, s{t+3}, s{sCBL}\ns_and_b32 s{t+4}, s{t+4}, 1\ns_mul_i32 s{t+4}, s{t+4}, 5\ns_and_b32 s{t+5}, s{t+2}, 1\ns_lshl1_add_u32 s{sROT}, s{t+5}, s{t+4}")
        elif ROTMODE == "two":
            a(f"s_add_u32 s{t+4}, s{t+3}, s{sCBL}\ns_and_b32 s{t+4}, s{t+4}, 1\ns_mul_i32 s{t+4}, s{t+4}, 5")
            a(f"s_add_u32 s{t+4}, s{t+4}, s{t+2}\ns_add_u32 s{sROT}, s{t+4}, s{sHALF}")

    def loader1(self):
        a = self.a
        t = T0
        sLW = sT
        vXE, vXO, vW, vGt = 2, 3, 4, 8
        sStr, sCol, sA32, sA64, sOff, sXo, sWB, sWB2, sXB, sXP, sSel = 48, 49, 50, 51, t+4, t+5, t+6, t+7, t+8, t+9, t+10
        sKind = 72
        a(f"s_setprio 2\ns_sub_u32 s{sLW}, s{sWAVE}, 4")
        a("v_lshrrev_b32 v10, 3, v0\nv_and_b32 v11, 7, v0\nv_lshrrev_b32 v12, 4, v0\nv_mul_u32_u24 v13, 1280, v10\nv_xor_b32 v14, v11, v12")
        a(f"s_and_b32 s{t}, s{sLW}, 1\ns_lshl_b32 s{t}, s{t}, 6")
        a(f"v_lshl_add_u32 v13, v14, 4, v13\nv_xor_b32 v{vXE}, s{t}, v13\nv_xor_b32 v{vXO}, 64, v{vXE}")
        if FAST0: a("v_mov_b32 v16, v13\nv_xor_b32 v17, 64, v13")
        if FIRST0: a(f"s_mov_b32 s{sA32}, 0\ns_mov_b32 s{sA64}, 0\ns_min_u32 s{sROT}, s{sROT}, 8")
        else: a(f"s_lshl_b32 s{sA32}, s{sROT}, 1\ns_mov_b32 s{sA64}, s{sROT}")
        a(f"s_mul_i32 s{sXB}, s{sLW}, 3072\ns_mul_i32 s{sXP}, s{sLW}, 30720")
        for k in range(6, 10): a(f"v_mov_b32 v{k}, {BIG}")
        if FAST0: a(f"s_mov_b32 s{sWB2}, 0")
        lKV, lQH, lLN, lJ = a.newlabel("L_wkv"), a.newlabel("L_wqh"), a.newlabel("L_wln"), a.newlabel("L_wj")
        a(f"s_cmp_eq_u32 s{sTYPE}, 0\ns_cbranch_scc1 {lKV}")
        a(f"s_cmp_eq_u32 s{sLW}, 3\ns_cbranch_scc1 {lQH}")
        a(f"s_mov_b32 s{sSel}, 1\ns_mov_b32 s{sStr}, 3072\ns_mul_i32 s{sCol}, s{sGRP}, 3\ns_add_u32 s{sCol}, s{sCol}, s{sLW}\ns_lshl_b32 s{sCol}, s{sCol}, 7\ns_lshl_b32 s{sWB}, s{sLW}, 12")
        a.label(lLN)
        a(f"v_and_b32 v13, 4, v10\nv_add_u32 v13, v13, v10\nv_mul_u32_u24 v13, s{sStr}, v13\nv_lshlrev_b32 v12, 1, v12\nv_xor_b32 v12, v11, v12\nv_lshl_add_u32 v{vW}, v12, 4, v13")
        a(f"s_lshl_b32 s{t}, s{sStr}, 4\ns_lshl_b32 s{t+1}, s{sStr}, 2\nv_add_u32 v{vW+1}, s{t}, v{vW}\nv_add_u32 v{vW+2}, s{t+1}, v{vW}\nv_add_u32 v{vW+3}, s{t}, v{vW+2}")
        a(f"s_branch {lJ}")
        a.label(lQH)
        a(f"s_mov_b32 s{sSel}, 0\ns_mov_b32 s{sStr}, 3840\ns_lshl_b32 s{sCol}, s{sHALF}, 1\ns_add_u32 s{sCol}, s{sCol}, s{sCBL}\ns_add_u32 s{sCol}, s{sCol}, 12\ns_lshl_b32 s{sCol}, s{sCol}, 6")
        a(f"s_cmp_lt_u32 s{sCBL}, 6\ns_cselect_b32 s{sCol}, s{sCol}, {BIG}\ns_mov_b32 s{sWB}, 12288\ns_mov_b32 s{sWB2}, 13312")
        a(f"v_lshrrev_b32 v10, 2, v0\nv_and_b32 v13, 12, v10\nv_add_u32 v13, v13, v10\nv_mul_u32_u24 v13, 3840, v13\nv_and_b32 v11, 3, v0\nv_and_b32 v12, 1, v12\nv_lshlrev_b32 v12, 1, v12\nv_xor_b32 v12, v11, v12")
        a(f"v_lshl_add_u32 v{vW}, v12, 4, v13\nv_add_u32 v{vW+1}, 15360, v{vW}")
        a(f"s_lshl_b32 s{t}, s{sROT}, 3\nv_mov_b32 v14, {BIG}")
        for j in range(2):
            if FIRST0:
                a(f"v_add_u32 v10, {64*j}, v0\nv_add_u32 v11, s{t}, v10\nv_subrev_u32 v12, 72, v11\nv_cmp_gt_u32 vcc, 80, v11\ns_nop 1\nv_cndmask_b32 v11, v12, v11, vcc\nv_cmp_gt_u32 vcc, 8, v10\ns_nop 1\nv_cndmask_b32 v11, v11, v10, vcc")
                a(f"v_cmp_gt_u32 vcc, 80, v10\nv_lshlrev_b32 v11, 4, v11\ns_nop 0\nv_cndmask_b32 v{vGt+j}, v14, v11, vcc")
            else:
                a(f"v_add_u32 v10, {64*j}, v0\nv_add_u32 v11, s{t}, v10\nv_cmp_gt_u32 vcc, 80, v10\nv_subrev_u32 v12, 80, v11\nv_min_u32 v11, v11, v12\nv_lshlrev_b32 v11, 4, v11\nv_cndmask_b32 v{vGt+j}, v14, v11, vcc")
        a(f"s_branch {lJ}")
        a.label(lKV)
        a(f"s_mov_b32 s{sSel}, 0\ns_mov_b32 s{sStr}, 3840\ns_mul_i32 s{sWB}, s{sLW}, 5120\ns_lshl_b32 s{sCol}, s{sGRP}, 7")
        a(f"s_cmp_eq_u32 s{sLW}, 2\ns_cbranch_scc1 {lLN}")
        a(f"s_mul_i32 s{sCol}, s{sGRP}, 160\ns_cmp_eq_u32 s{sLW}, 1\ns_cselect_b32 s{t}, 2560, 1280\ns_add_u32 s{sCol}, s{sCol}, s{t}")
        a(f"s_cmp_eq_u32 s{sLW}, 3\ns_cselect_b32 s{t}, 256, 0\ns_cselect_b32 s{sWB}, 4096, s{sWB}\ns_mov_b32 s{sWB2}, 9216")
        a(f"v_add_u32 v14, s{t}, v0")
        for j in range(4):
            a(f"v_add_u32 v10, {64*j}, v14\nv_mul_u32_u24 v11, 6554, v10\nv_lshrrev_b32 v11, 16, v11\nv_mad_i32_i24 v10, v11, -10, v10")
            a("v_and_b32 v12, 12, v11\nv_and_b32 v13, 3, v11\nv_lshl_or_b32 v12, v12, 1, v13\nv_bfe_u32 v13, v11, 4, 1\nv_lshl_or_b32 v12, v13, 2, v12")
            a(f"v_mul_u32_u24 v12, 3840, v12\nv_lshl_add_u32 v{vW+j}, v10, 4, v12")
            if j == 0:
                a(f"v_add_u32 v{vW+1}, 1280, v{vW}\ns_cmp_eq_u32 s{sLW}, 3\ns_cbranch_scc1 {lJ}")
        a.label(lJ)
        a(f"s_lshl_b32 s{sStr}, s{sStr}, 5\ns_mul_i32 s{t}, s{sRB}, 163840")
        a("s_waitcnt lgkmcnt(0)")
        self.stamp(0)
        self.srd(SRD_X, pX, 163840, add=f"s{t}")
        if FAST0:
            a(f"s_mul_i32 s{sXo}, s{sLW}, 40960\ns_lshl_b32 s{t}, s{sA64}, 7\ns_add_u32 s{sXo}, s{sXo}, s{t}\ns_lshl_b32 s{t}, s{sLW}, 12")
            for j in range(4):
                a(f"s_add_u32 m0, s{t}, {XR + 1024*j}\n" + ("s_nop 0" if j == 0 else f"s_add_u32 s{sXo}, s{sXo}, 10240") + f"\nbuffer_load_dwordx4 v{16 + (j & 1)}, s[{SRD_X}:{SRD_X+3}], s{sXo} offen lds")
        a(f"s_cmp_eq_u32 s{sSel}, 0\ns_cselect_b32 s{SRD_W}, s{pWQKV}, s{pW1}\ns_cselect_b32 s{SRD_W+1}, s{pWQKV+1}, s{pW1+1}\ns_cselect_b32 s{SRD_W+2}, {640*1920*2}, {640*1536*2}\ns_mov_b32 s{SRD_W+3}, 0x20000")
        if FAST0:
            if FIRST0: a(f"s_add_u32 s{sA64}, s{sROT}, 1")
            else: a(f"s_add_u32 s{sA64}, s{sA64}, 1\ns_cmp_eq_u32 s{sA64}, 10\ns_cselect_b32 s{sA64}, 0, s{sA64}")
            g4, gj = a.newlabel("L_f4"), a.newlabel("L_fj")
            a(f"s_add_u32 s{t+1}, s{sWB}, 1024\ns_cmp_eq_u32 s{sLW}, 3\ns_cselect_b32 s{t+1}, s{sWB2}, s{t+1}\ns_cselect_b32 s{t+2}, s{sCBL}, 0\ns_cmp_ge_u32 s{t+2}, 6\ns_cbranch_scc1 {g4}")
            for i in range(2):
                sk = a.newlabel("L_f2")
                a(f"s_mul_i32 s{sOff}, s{sA32}, s{sStr}\ns_add_u32 m0, s{sWB}, {WR + i*WSLOT}\ns_add_u32 s{sOff}, s{sOff}, s{sCol}\nbuffer_load_dwordx4 v{vW}, s[{SRD_W}:{SRD_W+3}], s{sOff} offen lds")
                a(f"s_add_u32 m0, s{t+1}, {WR + i*WSLOT}\ns_cmp_eq_u32 s{sLW}, 3\nbuffer_load_dwordx4 v{vW+1}, s[{SRD_W}:{SRD_W+3}], s{sOff} offen lds\ns_cbranch_scc1 {sk}")
                for j in (2, 3):
                    a(f"s_add_u32 m0, s{sWB}, {WR + i*WSLOT + 1024*j}\ns_nop 0\nbuffer_load_dwordx4 v{vW+j}, s[{SRD_W}:{SRD_W+3}], s{sOff} offen lds")
                a.label(sk)
                if FIRST0 and i == 1: a(f"s_lshl1_add_u32 s{sA32}, s{sROT}, 2")
                else: a(f"s_add_u32 s{sA32}, s{sA32}, 1\ns_cmp_eq_u32 s{sA32}, 20\ns_cselect_b32 s{sA32}, 0, s{sA32}")
            a(f"s_branch {gj}")
            a.label(g4)
            self.srd(SRD_M, pGATE, 1280)
            for j in range(2):
                a(f"s_mov_b32 m0, {GATE + 1024*j}\ns_nop 0\nbuffer_load_dwordx4 v{vGt+j}, s[{SRD_M}:{SRD_M+3}], 0 offen lds")
            a.label(gj)
        lab3, lab4, labj = a.newlabel("L_ld3"), a.newlabel("L_ld4"), a.newlabel("L_ldj")
        lab0k, lab3k = a.newlabel("L_ld0k"), a.newlabel("L_ld3k")
        a(f"s_cmp_eq_u32 s{sLW}, 3\ns_cbranch_scc1 {lab3}")
        for variant, rp in (((0, 1), (0, 0), (3, 1), (3, 0), (4, 1)) if LRP else ((0, 0), (3, 0), (4, 0))):
            if LRP and (variant, rp) == (0, 1): a(f"s_cmp_eq_u32 s{sTYPE}, 0\ns_cbranch_scc1 {lab0k}")
            if LRP and (variant, rp) == (0, 0): a.label(lab0k)
            if LRP and (variant, rp) == (3, 0): a.label(lab3k)
            if variant == 3 and (rp or not LRP):
                a.label(lab3)
                a(f"s_cmp_ge_u32 s{sCBL}, 6\ns_cbranch_scc1 {lab4}")
                if LRP: a(f"s_cmp_eq_u32 s{sTYPE}, 0\ns_cbranch_scc1 {lab3k}")
            if variant == 4:
                a.label(lab4)
            nW = {0: 4, 3: 2, 4: 0}[variant]
            nX = 3 if variant == 0 else 7
            seq = []
            def issue_W(i):
                if nW == 0: return
                a(f"s_mul_i32 s{sOff}, s{sA32}, s{sStr}")
                for j in range(nW):
                    base, off = (sWB, 1024*j) if variant == 0 else ((sWB, sWB2)[j], 0)
                    a(f"s_add_u32 m0, s{base}, {WR + (i % NS)*WSLOT + off}")
                    a(f"s_add_u32 s{sOff}, s{sOff}, s{sCol}" if j == 0 else "s_nop 0")
                    a(f"buffer_load_dwordx4 v{vW+j}, s[{SRD_W}:{SRD_W+3}], s{sOff} offen lds")
                    seq.append(("W", i))
                if FIRST0 and i == 1: a(f"s_lshl1_add_u32 s{sA32}, s{sROT}, 2")
                else: a(f"s_add_u32 s{sA32}, s{sA32}, 1\ns_cmp_eq_u32 s{sA32}, 20\ns_cselect_b32 s{sA32}, {2 if FIRST0 else 0}, s{sA32}")
            def issue_X(jx):
                a(f"s_lshl_b32 s{sXo}, s{sA64}, 7")
                for j in range(nX):
                    a(f"s_add_u32 m0, s{sXB}, {XR + (jx % 3)*16384 + 1024*j}")
                    a(f"s_add_u32 s{sXo}, s{sXo}, " + (f"s{sXP}" if j == 0 else "10240"))
                    a(f"buffer_load_dwordx4 v{vXE + (j & 1)}, s[{SRD_X}:{SRD_X+3}], s{sXo} offen lds")
                    seq.append(("X", jx))
                if FIRST0 and jx == 0: a(f"s_add_u32 s{sA64}, s{sROT}, 1")
                else: a(f"s_add_u32 s{sA64}, s{sA64}, 1\ns_cmp_eq_u32 s{sA64}, 10\ns_cselect_b32 s{sA64}, {1 if FIRST0 else 0}, s{sA64}")
            def wait_for(items):
                last = max([n for n, it in enumerate(seq) if it in items] + [-1])
                if last >= 0: a(f"s_waitcnt vmcnt({len(seq) - 1 - last})")
            if FAST0:
                seq += [("X", 0)]*4 + [("W", 0)]*(nW if variant != 4 else 2) + [("W", 1)]*nW
            else:
                issue_X(0); issue_W(0)
                if variant == 4:
                    self.srd(SRD_M, pGATE, 1280)
                    for j in range(2):
                        a(f"s_mov_b32 m0, {GATE + 1024*j}\ns_nop 0\nbuffer_load_dwordx4 v{vGt+j}, s[{SRD_M}:{SRD_M+3}], 0 offen lds")
                        seq.append(("W", 0))
                issue_W(1)
            wait_for([("W", 0), ("X", 0)] + ([("W", 1)] if B1M == 1 else [])); self.stamp(1); a("s_barrier")
            issue_X(1)
            if B1M == 2: issue_W(2)
            if B1M == 3: issue_W(2); issue_W(3)
            if B1M != 1: wait_for([("W", 1)]); a("s_barrier")
            if B1M < 2: issue_W(2)
            if B1M < 3: issue_W(3)
            issue_X(2); issue_W(4)
            if LOOK == "full": issue_W(5)
            for j in range(1, 10):
                if j == (8 if NE16 else 9) and variant == 0:
                    sk = a.newlabel("L_s1skip")
                    a(f"s_cmp_lg_u32 s{sWAVE}, 4\ns_cbranch_scc1 {sk}")
                    self.srd(SRD_D, pDBG, 256)
                    a("v_mov_b32 v74, 128")
                    self.poll("0", 1, 74, 75, SRD_D, S1SLEEP)
                    a.label(sk)
                if rp and j == LRP + 2:
                    last = max(n for n, it in enumerate(seq) if it in (("W", 2*j), ("W", 2*j + 1), ("X", j)))
                    N = len(seq) - 1 - last
                    w1, w2, w3 = a.newlabel("L_wv"), a.newlabel("L_wv"), a.newlabel("L_wv")
                    a(f"s_cmp_eq_u32 s{sKind}, 1\ns_cbranch_scc1 {w1}\ns_cmp_eq_u32 s{sKind}, 2\ns_cbranch_scc1 {w2}\ns_waitcnt vmcnt({N})\ns_branch {w3}\n{w1}:\ns_waitcnt vmcnt({N+4})\ns_branch {w3}\n{w2}:\ns_waitcnt vmcnt({N+8})\n{w3}:")
                else:
                    wait_for([("W", 2*j), ("W", 2*j + 1), ("X", j)])
                if LARR and variant == 0 and j == S1AT//2 + LARR:
                    sk = a.newlabel("L_s1b")
                    a(f"s_cmp_lg_u32 s{sT+0}, 0\ns_cbranch_scc1 {sk}\ns_cmp_eq_u32 s{sTYPE}, 0\ns_cbranch_scc1 {sk}\nv_readfirstlane_b32 s{t}, v70\nv_mov_b32 v71, 1\ns_cmp_lg_u32 s{t}, 127\ns_cbranch_scc1 {sk}")
                    self.srd(SRD_D, pDBG, 256)
                    a(f"v_mov_b32 v69, 0\ns_mov_b64 exec, 1\nbuffer_store_dword v71, v69, s[{SRD_D}:{SRD_D+3}], 0 offen offset:128 sc1\ns_mov_b64 exec, -1")
                    a.label(sk)
                if rp and variant == 0 and j == LRP + 4:
                    sk = a.newlabel("L_s1b")
                    a(f"s_cmp_lg_u32 s{sWAVE}, 4\ns_cbranch_scc1 {sk}\nv_readfirstlane_b32 s{t}, v70\nv_mov_b32 v71, 1\ns_cmp_lg_u32 s{t}, 127\ns_cbranch_scc1 {sk}")
                    self.srd(SRD_D, pDBG, 256)
                    a(f"s_mov_b64 exec, 1\nbuffer_store_dword v71, v69, s[{SRD_D}:{SRD_D+3}], 0 offen offset:128 sc1\ns_mov_b64 exec, -1")
                    a.label(sk)
                a("s_barrier")
                if rp and j == LRP:
                    self.srd(SRD_WS, pWS, WS_SIZE)
                    sk = a.newlabel("L_z")
                    a(f"v_lshlrev_b32 v69, 4, v0\ns_cmp_ge_u32 s{sLW}, 2\ns_cbranch_scc1 {sk}\ns_lshl3_add_u32 s{t}, s{sRB}, s{sGRP}\ns_lshl_b32 s{t}, s{t}, 9\ns_mul_i32 s{t+1}, s{sLW}, {WS_KVP}\ns_add_u32 s{t}, s{t}, s{t+1}")
                    a("v_mov_b32 v64, 0\nv_mov_b32 v65, 0\nv_mov_b32 v66, 0\nv_mov_b32 v67, 0\ns_mov_b32 exec_hi, 0")
                    a(f"buffer_store_dwordx4 v[64:67], v69, {WSR}, s{t} offen sc1\ns_mov_b32 exec_hi, -1")
                    a.label(sk)
                if rp and variant == 0 and j == LRP + 3:
                    sk = a.newlabel("L_s1a")
                    a(f"s_cmp_lg_u32 s{sWAVE}, 4\ns_cbranch_scc1 {sk}")
                    self.srd(SRD_D, pDBG, 256)
                    a(f"v_mov_b32 v70, 1\ns_mov_b64 exec, 1\nbuffer_atomic_add v70, v69, s[{SRD_D}:{SRD_D+3}], 0 offen sc0 sc1\ns_mov_b64 exec, -1")
                    a.label(sk)
                if LOOK == "ramp" and j == 1: issue_W(5)
                if j + 1 < 10 and LOOK == "xw": issue_W(2*j + 3)
                if j + 2 < 10: issue_X(j + 2); issue_W(2*j + 4)
                if j + 2 < 10 and LOOK != "xw": issue_W(2*j + 5)
                if LARR and variant == 0 and j == S1AT//2:
                    sk = a.newlabel("L_s1a")
                    a(f"s_cmp_lg_u32 s{sT+0}, 0\ns_cbranch_scc1 {sk}\ns_cmp_eq_u32 s{sTYPE}, 0\ns_cbranch_scc1 {sk}")
                    self.srd(SRD_D, pDBG, 256)
                    a(f"v_mov_b32 v70, 1\nv_mov_b32 v69, 0\ns_mov_b64 exec, 1\nbuffer_atomic_add v70, v69, s[{SRD_D}:{SRD_D+3}], 0 offen sc0 sc1\ns_mov_b64 exec, -1")
                    a.label(sk)
                if rp and j == LRP:
                    a(f"s_lshl_b32 s{t}, s{sLW}, 6\ns_add_u32 s{t}, s{t}, {MBOX}\nv_mov_b32 v68, s{t}\nds_read_b128 v[16:19], v68\nds_read_b128 v[20:23], v68 offset:16\nds_read_b32 v24, v68 offset:32")
                    a(f"v_lshrrev_b32 v10, 2, v0\nv_and_b32 v11, 3, v0\nv_lshlrev_b32 v11, 3, v11\nv_lshl_add_u32 v10, v10, 7, v11\ns_lshl_b32 s{t}, s{sLW}, 12\ns_add_u32 s{t}, s{t}, {SCR}\nv_add_u32 v10, s{t}, v10")
                    for r in range(2):
                        for u in range(4):
                            a(f"ds_read_b64_tr_b16 v[{32+16*r+4*u}:{33+16*r+4*u}], v10 offset:{8192*r + 32*u}\nds_read_b64_tr_b16 v[{34+16*r+4*u}:{35+16*r+4*u}], v10 offset:{8192*r + 32*u + 2048}")
                    a(f"s_waitcnt lgkmcnt(0)\nv_readfirstlane_b32 s{sKind}, v24\nv_lshrrev_b32 v25, 1, v69")
                    for u in range(4): a(f"v_add_u32 v{16+u}, v{16+u}, v69")
                    for u in range(4):
                        a(f"buffer_store_dwordx4 v[{32+4*u}:{35+4*u}], v{16+u}, {WSR}, 0 offen sc1"); seq.append(("S", u))
                if rp and j == LRP + 1:
                    k2, k3 = a.newlabel("L_r2"), a.newlabel("L_r2")
                    a(f"s_cmp_eq_u32 s{sKind}, 0\ns_cbranch_scc1 {k2}\ns_cmp_eq_u32 s{sKind}, 2\ns_cbranch_scc1 {k3}")
                    for u in range(4): a(f"v_add_u32 v{20+u}, v{20+u}, v69\nbuffer_store_dwordx4 v[{48+4*u}:{51+4*u}], v{20+u}, {WSR}, 0 offen sc1")
                    a(f"s_branch {k2}\n{k3}:\ns_mov_b32 s{t}, 12800")
                    for u in range(4): a(f"v_add_u32 v{20+u}, v{20+u}, v25\nbuffer_store_dwordx2 v[{48+4*u}:{49+4*u}], v{20+u}, {WSR}, 0 offen sc1\nbuffer_store_dwordx2 v[{50+4*u}:{51+4*u}], v{20+u}, {WSR}, s{t} offen sc1")
                    a.label(k2)
                if ADPRE == 2 and 4 <= j < 8: self.adpart(j - 4)
                if j == 8 and NE16:
                    self.setup2()
                    self.srd(SRD_WS, pWS, WS_SIZE)
                    self.preload_b(0, NE16)
                    seq.extend(["B"] * NE16)
            if variant != 4:
                a(f"s_branch {labj}")
        a.label(labj)
        self.stamp(2)

    def mish_quad(self, h, dst, tmp):
        P = lambda r: f"v[{r}:{r+1}]"
        return [
            f"v_pk_fma_f32 {P(tmp)}, {P(h)}, s[{cL2E}:{cL2E+1}], -0.5 op_sel_hi:[1,1,0]",
            f"v_pk_fma_f32 {P(tmp+2)}, {P(h+2)}, s[{cL2E}:{cL2E+1}], -0.5 op_sel_hi:[1,1,0]",
            f"v_exp_f32 v{tmp}, v{tmp}", f"v_exp_f32 v{tmp+1}, v{tmp+1}", f"v_exp_f32 v{tmp+2}, v{tmp+2}", f"v_exp_f32 v{tmp+3}, v{tmp+3}",
            f"v_pk_add_f32 {P(tmp)}, {P(tmp)}, s[{cC}:{cC+1}]", f"v_pk_add_f32 {P(tmp+2)}, {P(tmp+2)}, s[{cC}:{cC+1}]",
            f"v_pk_fma_f32 {P(tmp)}, {P(tmp)}, {P(tmp)}, 0.5 op_sel_hi:[1,1,0]",
            f"v_pk_fma_f32 {P(tmp+2)}, {P(tmp+2)}, {P(tmp+2)}, 0.5 op_sel_hi:[1,1,0]",
            f"v_rcp_f32 v{tmp}, v{tmp}", f"v_rcp_f32 v{tmp+1}, v{tmp+1}", f"v_rcp_f32 v{tmp+2}, v{tmp+2}", f"v_rcp_f32 v{tmp+3}, v{tmp+3}",
            f"v_pk_fma_f32 {P(tmp)}, {P(h)}, {P(tmp)}, {P(h)} neg_lo:[1,0,0] neg_hi:[1,0,0]",
            f"v_pk_fma_f32 {P(tmp+2)}, {P(h+2)}, {P(tmp+2)}, {P(h+2)} neg_lo:[1,0,0] neg_hi:[1,0,0]",
            f"v_cvt_pk_bf16_f32 v{dst}, v{tmp}, v{tmp+1}", f"v_cvt_pk_bf16_f32 v{dst+1}, v{tmp+2}, v{tmp+3}",
        ]

    def phi_quad(self, h, dst, tmp):
        P = lambda r: f"v[{r}:{r+1}]"
        return [
            f"v_pk_mul_f32 {P(tmp)}, {P(h)}, s[{cL2E}:{cL2E+1}]", f"v_pk_mul_f32 {P(tmp+2)}, {P(h+2)}, s[{cL2E}:{cL2E+1}]",
            f"v_exp_f32 v{tmp}, v{tmp} clamp", f"v_exp_f32 v{tmp+1}, v{tmp+1} clamp", f"v_exp_f32 v{tmp+2}, v{tmp+2} clamp", f"v_exp_f32 v{tmp+3}, v{tmp+3} clamp",
            f"v_pk_add_f32 {P(h)}, {P(h)}, s[{cC}:{cC+1}]", f"v_pk_add_f32 {P(h+2)}, {P(h+2)}, s[{cC}:{cC+1}]",
            f"v_pk_add_f32 {P(tmp)}, {P(tmp)}, s[{cE}:{cE+1}]", f"v_pk_add_f32 {P(tmp+2)}, {P(tmp+2)}, s[{cE}:{cE+1}]",
            f"v_max_f32 v{tmp}, v{tmp}, v{h}", f"v_max_f32 v{tmp+1}, v{tmp+1}, v{h+1}", f"v_max_f32 v{tmp+2}, v{tmp+2}, v{h+2}", f"v_max_f32 v{tmp+3}, v{tmp+3}, v{h+3}",
            f"v_cvt_pk_bf16_f32 v{dst}, v{tmp}, v{tmp+1}", f"v_cvt_pk_bf16_f32 v{dst+1}, v{tmp+2}, v{tmp+3}",
        ]

    def consts(self, kind):
        if kind == "mish":
            self.a(f"s_mov_b32 s{cC}, 0x3f3504f3\ns_mov_b32 s{cC+1}, 0x3f3504f3")
        else:
            self.a(f"s_mov_b32 s{cC}, 0x3f800008\ns_mov_b32 s{cC+1}, 0x3f800008\ns_mov_b32 s{cE}, 0x358637bd\ns_mov_b32 s{cE+1}, 0x358637bd")

    def main_loop(self, reads, mfmas, extra, nread_end, bases):
        a = self.a
        if CP: a(f"s_setprio {CP}")
        a("s_barrier")
        self.stamp(1)
        for l in reads(0): a(l)
        for l in extra.get(0, ([], [], []))[1]: a(l)
        a("s_waitcnt lgkmcnt(0)")
        for i in range(1, 21):
            if ((i == 1 and B1M != 1) or i % 2 == 0) and i < 20: a("s_barrier")
            if i in (2, 4, 6, 8, 10, 14, 18): self.stamp(3 + (2, 4, 6, 8, 10, 14, 18).index(i), True)
            pre, fill, preb = extra.get(i, ([], [], []))
            for l in pre: a(l)
            if i < 20:
                tail = []
                if (i + 1) % 3 == 0 and i + 1 < 20:
                    op = "v_add_u32" if ((i + 1) % NS) == 3 else "v_subrev_u32"
                    tail = [f"{op} v{b}, {3*WSLOT}, v{b}" for b in bases]
                body = interleave(mfmas(i - 1), reads(i) + fill + tail, 0, nread_end)
                for l in body: a(l)
                for l in preb: a(l)
                a("s_waitcnt lgkmcnt(0)")
            else:
                m19 = mfmas(19)
                for l in m19[:B20AT] + ["s_barrier"] + m19[B20AT:]: a(l)
        self.stamp(2)

    def finish1(self, flags, strict=False, late8=False):
        a = self.a
        self.setup2()
        if LFLAG == 2 and late8: a(f"s_add_u32 s{flags[0]}, s{flags[0]}, 8")
        if LFLAG == 1:
            if late8: a(f"s_add_u32 s{flags[0]}, s{flags[0]}, 8")
            a(f"s_mov_b32 s32, s{flags[1]}")
            self.preload_b(0, NPRE)
            return
        if strict:
            if ADPRE == 2:
                a(f"s_mov_b32 s32, s{flags[1]}"); flags = [flags[0], 32]
                self.adblock()
            if QLAST and late8:
                k1, k2 = a.newlabel("L_q"), a.newlabel("L_q")
                a(f"s_cmp_ge_u32 s{flags[1]}, {BIG}\ns_cbranch_scc1 {k1}\ns_waitcnt vmcnt(2)")
                self.signal(flags[0], 70)
                a("s_waitcnt vmcnt(1)")
                self.signal(flags[1], 70)
                a(f"s_branch {k2}\n{k1}:\ns_waitcnt vmcnt(0)")
                self.signal(flags[0], 70)
                a.label(k2)
                self.stamp(5)
                flags = []
            else:
                a("s_waitcnt vmcnt(0)")
                self.stamp(5)
            for f in flags: self.signal(f, 70)
            if not NPL: self.preload_b(0, NPRE, alt=(72 if ADPRE == 2 else None))
            return
        self.preload_b(0, NPRE)
        a(f"s_waitcnt vmcnt({NPRE})")
        self.stamp(5)
        for f in flags: self.signal(f, 1)
        if not BLDS:
            self.preload_b(NPRE, 30)
            return

    def pickup(self):
        a = self.a
        t = T0
        sk = a.newlabel("L_pk")
        a(f"s_cmp_ge_u32 s{sWAVE}, 4\ns_cbranch_scc1 {sk}")
        a(f"s_mul_i32 s{t+14}, s{sWAVE}, 20480\ns_add_u32 s{t+14}, s{t+14}, {BL}\nv_add_u32 v{BS+117}, s{t+14}, v{vL16}")
        for n in range(5*NB - 10):
            a(f"ds_read_b128 v[{BS+40+4*n}:{BS+43+4*n}], v{BS+117} offset:{1024*n}")
        a.label(sk)

    def prefetch(self, vL, v, S=SRD_X):
        a = self.a
        t = T0
        for ptr, size, share, n in ((pX, 2048*1280, 10240, 3), (pWQKV, 640*3840, 9600, 3), (pW1, 640*3072, 7680, 2))[:(1 if PF == 2 else 3)]:
            self.srd(S, ptr, size)
            per = -(-share // 4 // 128) * 128
            a(f"s_mul_i32 s{t}, s{sWG}, {share}\ns_and_b32 s{t}, s{t}, 0xffffff80\ns_mul_i32 s{t+1}, s{sWAVE}, {per}\ns_add_u32 s{t}, s{t}, s{t+1}\ns_min_u32 s{t}, s{t}, {size - n*1024}")
            for k in range(n):
                a(f"buffer_load_dwordx4 v[{v}:{v+3}], v{vL}, s[{S}:{S+3}], s{t} offen offset:{1024*k}")

    def touch(self, vLane, v):
        a = self.a
        t = T0
        a(f"v_lshlrev_b32 v{v}, 21, v{vLane}\nv_add_u32 v{v}, 0xff000, v{v}\ns_mov_b64 exec, 0xff")
        a(f"buffer_load_dword v{v+1}, v{v}, {WSR}, 0 offen")
        self.srd(SRD_M, pOUT, 2048*640*2)
        a(f"v_lshlrev_b32 v{v}, 20, v{vLane}\ns_mov_b64 exec, 7\nbuffer_load_dword v{v+2}, v{v}, s[{SRD_M}:{SRD_M+3}], 0 offen")
        self.srd(SRD_M, pWO, 640*640*2)
        a(f"v_lshlrev_b32 v{v}, 19, v{vLane}\ns_mov_b64 exec, 3\nbuffer_load_dword v{v+3}, v{v}, s[{SRD_M}:{SRD_M+3}], 0 offen\ns_mov_b64 exec, -1")

    def compute_P(self):
        a = self.a
        t = T0
        ACC, XB, WB, BI = 0, 112, 144, 200
        vX0, vX1, vH0, vH1, vQ, vGt, vL, vRd, vRr, vBo, vT = 228, 229, 230, 231, 232, 233, 234, 235, 236, 237, 238
        vLane = 253
        sSH, sNH = sT, 48
        sAct, sPq, sF2, sGs = 49, 72, 73, 74
        a(f"v_mov_b32 v{vLane}, v0\ns_lshr_b32 s{sSH}, s{sWAVE}, 1\ns_and_b32 s{sNH}, s{sWAVE}, 1")
        a(f"v_and_b32 v1, 15, v0\nv_lshrrev_b32 v2, 4, v0\nv_lshrrev_b32 v3, 1, v1\nv_xor_b32 v3, v3, v2\nv_lshlrev_b32 v3, 4, v3\nv_lshl_add_u32 v3, v1, 7, v3")
        a(f"s_lshl_b32 s{t}, s{sSH}, 13\nv_add_u32 v{vX0}, s{t}, v3\nv_xor_b32 v{vX1}, 64, v{vX0}")
        a(f"v_lshrrev_b32 v3, 2, v0\nv_and_b32 v4, 3, v0\nv_lshlrev_b32 v4, 3, v4")
        a(f"v_lshl_add_u32 v5, v3, 7, v4\nv_bfe_u32 v6, v0, 3, 2\ns_lshl_b32 s{t}, s{sNH}, 1\nv_xor_b32 v6, s{t}, v6\nv_lshl_add_u32 v6, v6, 5, v5")
        a(f"v_add_u32 v{vH0}, {WR}, v6\nv_xor_b32 v{vH1}, 32, v{vH0}")
        a(f"v_lshl_add_u32 v6, v3, 6, v4\nv_and_b32 v7, 1, v2\nv_xor_b32 v7, s{sNH}, v7\nv_lshl_add_u32 v6, v7, 5, v6\nv_add_u32 v{vQ}, {WR+12288}, v6")
        a(f"v_lshlrev_b32 v6, 4, v2\nv_add_u32 v{vGt}, {GATE}, v6\nv_lshlrev_b32 v{vL}, 4, v0\nv_lshlrev_b32 v{vBo}, 3, v2")
        a(f"v_lshrrev_b32 v6, 3, v0\nv_mul_u32_u24 v6, 1280, v6\nv_and_b32 v7, 7, v0\nv_lshl_add_u32 v{vRd}, v7, 4, v6")
        a(f"s_lshl_b32 s{t}, s{sWAVE}, 12\ns_add_u32 s{t}, s{t}, {SCR}\nv_add_u32 v{vRr}, s{t}, v5")
        a(f"s_lshl3_add_u32 s{sPIDX}, s{sRB}, s{sGRP}")
        a(f"s_mov_b32 s{cL2E}, 0x3fb8aa3b\ns_mov_b32 s{cL2E+1}, 0x3fb8aa3b")
        a(f"s_lshl2_add_u32 s{t}, s{sPIDX}, s{sWAVE}\ns_min_u32 s{t}, s{t}, 479")
        a(f"s_mul_i32 s{t+1}, s{t}, 6554\ns_lshr_b32 s{t+1}, s{t+1}, 16\ns_mul_i32 s{t+2}, s{t+1}, 10\ns_sub_u32 s{t+2}, s{t}, s{t+2}")
        a(f"s_mul_i32 s{t+6}, s{t+1}, 40960\ns_lshl_b32 s{t+3}, s{t+2}, 7\ns_add_u32 s{t+6}, s{t+6}, s{t+3}")
        a(f"s_mul_i32 s{t+7}, s{sGRP}, 384\ns_lshl_b32 s{t+3}, s{sNH}, 6\ns_add_u32 s{t+7}, s{t+7}, s{t+3}")
        a("s_waitcnt lgkmcnt(0)")
        self.stamp(0)
        self.srd(SRD_M, pB1, 3072)
        self.srd(SRD_W, pW2, 1536*640*2)
        for u in range(6):
            a(f"buffer_load_dwordx2 v[{BI+4*u+2}:{BI+4*u+3}], v{vBo}, s[{SRD_M}:{SRD_M+3}], s{t+7} offen offset:{128*(u >> 1) + 32*(u & 1)}")
        sSrc1 = 69
        a(f"s_mov_b32 s{sSrc1}, s{t+6}")
        self.srd(SRD_WS, pWS, WS_SIZE)
        if TOUCH == 2: self.touch(vLane, 240)
        dsts = [10, 11, 1, 3]
        for u in range(4):
            a(f"s_lshl2_add_u32 s{t+3}, s{t+2}, {u}\ns_mul_i32 s{t+4}, s{t+3}, 205\ns_lshr_b32 s{t+4}, s{t+4}, 10")
            a(f"s_mul_i32 s{t+5}, s{t+4}, 235\ns_add_u32 s{t+5}, s{t+5}, s{t+3}\ns_mul_i32 s{t+4}, s{t+1}, 5\ns_add_u32 s{t+5}, s{t+5}, s{t+4}")
            a(f"s_lshl_b32 s{t+5}, s{t+5}, 10\ns_add_u32 s{t+5}, s{t+5}, {WS_W2R}")
            if LRP: a(f"s_mov_b32 s{dsts[u]}, s{t+5}")
            else: a(f"s_cmp_lt_u32 s{sPIDX}, 120\ns_cselect_b32 s{dsts[u]}, s{t+5}, {BIG}")
        d2, sSrc2, sK2, sInc2 = 40, 0, 75, 70
        self.srd(SRD_M, pWO, 640*640*2)
        a(f"s_lshl1_add_u32 s{t}, s{sPIDX}, s{sWAVE}\ns_sub_u32 s{t}, s{t}, 2")
        a(f"s_cmp_lt_u32 s{t}, 160\ns_cselect_b32 s{sK2}, 1, 2\ns_cmp_lt_u32 s{t}, 200\ns_cselect_b32 s{sK2}, s{sK2}, 0\ns_cmp_lt_u32 s{sWAVE}, 2\ns_cselect_b32 s{sK2}, 0, s{sK2}")
        a(f"s_mul_i32 s{t+1}, s{t}, 6554\ns_lshr_b32 s{t+1}, s{t+1}, 16\ns_mul_i32 s{t+2}, s{t+1}, 10\ns_sub_u32 s{t+2}, s{t}, s{t+2}")
        a(f"s_lshr_b32 s{t+3}, s{t+1}, 1\ns_and_b32 s{t+4}, s{t+1}, 1\ns_sub_u32 s{t+5}, s{t+1}, 16\ns_lshl_b32 s{t+5}, s{t+5}, 1")
        a(f"s_cmp_eq_u32 s{sK2}, 2\ns_cselect_b32 s{t+3}, s{t+5}, s{t+3}\ns_cselect_b32 s{t+4}, 2, s{t+4}\ns_cselect_b32 s{sInc2}, {10240 + 64*1280}, 10240")
        a(f"s_mul_i32 s{sSrc2}, s{t+3}, {80*1280}\ns_mul_i32 s{t+5}, s{t+4}, {32*1280}\ns_add_u32 s{sSrc2}, s{sSrc2}, s{t+5}\ns_lshl_b32 s{t+5}, s{t+2}, 7\ns_add_u32 s{sSrc2}, s{sSrc2}, s{t+5}")
        a(f"s_mul_i32 s{t+3}, s{t+3}, 12800\ns_lshl_b32 s{t+5}, s{t+4}, 10\ns_cmp_eq_u32 s{sK2}, 2\ns_cselect_b32 s{t+5}, 10240, s{t+5}\ns_cselect_b32 s{t+6}, 512, 2048\ns_add_u32 s{t+3}, s{t+3}, s{t+5}\ns_add_u32 s{t+3}, s{t+3}, {WS_WOR}")
        for u in range(4):
            a(f"s_lshl2_add_u32 s{t+4}, s{t+2}, {u}\ns_mul_i32 s{t+5}, s{t+4}, 205\ns_lshr_b32 s{t+5}, s{t+5}, 10\ns_mul_i32 s{t+7}, s{t+5}, 5\ns_sub_u32 s{t+4}, s{t+4}, s{t+7}")
            a(f"s_mul_i32 s{t+5}, s{t+5}, 102400\ns_mul_i32 s{t+4}, s{t+4}, s{t+6}\ns_add_u32 s{t+5}, s{t+5}, s{t+4}\ns_add_u32 s{d2+u}, s{t+5}, s{t+3}")
        sRb64 = t + 11
        a(f"s_lshl1_add_u32 s{sRb64}, s{sRB}, s{sSH}")
        a(f"s_mul_i32 s{t}, s{sRb64}, 48\ns_mul_i32 s{t+1}, s{sGRP}, 6\ns_add_u32 s{t}, s{t}, s{t+1}\ns_add_u32 s{t}, s{t}, s{sNH}\ns_lshl_b32 s{t}, s{t}, 12")
        a(f"s_add_u32 s{sAct}, s{t}, {WS_ACT}\ns_add_u32 s{sAct+1}, s{t}, {WS_ACT + 8192}\ns_add_u32 s{sAct+2}, s{t}, {WS_ACT + 16384}")
        a(f"s_mul_i32 s{t}, s{sRb64}, 40\ns_lshl2_add_u32 s{t}, s{sHALF}, s{t}\ns_lshl1_add_u32 s{t}, s{sCBL}, s{t}\ns_add_u32 s{t}, s{t}, s{sNH}\ns_add_u32 s{t}, s{t}, 24\ns_lshl_b32 s{t}, s{t}, 11\ns_add_u32 s{sPq}, s{t}, {WS_PQ}")
        a(f"s_lshl3_add_u32 s{sF1}, s{sRb64}, s{sGRP}\ns_lshl_b32 s{sF1}, s{sF1}, 7")
        a(f"s_lshl1_add_u32 s{t}, s{sGRP}, s{sNH}\ns_cmp_eq_u32 s{t}, 5\ns_cselect_b32 s{sGs}, 1, 0")
        a(f"s_lshl_b32 s{sF2}, s{sRb64}, 7\ns_add_u32 s{sF2}, s{sF2}, {CNT_PQ}\ns_cmp_lt_u32 s{sCBL}, 6\ns_cselect_b32 s{t}, 1, s{sGs}\ns_cmp_eq_u32 s{t}, 1\ns_cselect_b32 s{sF2}, s{sF2}, {BIG}")
        a(f"s_cmp_ge_u32 s{sCBL}, 6\ns_cselect_b64 vcc, -1, 0")
        def reads(i):
            b = i & 1; so = (i % 3) * WSLOT
            xs = XR + ((i >> 1) % 3) * 16384
            r = [f"ds_read_b128 v[{XB+16*b+4*s}:{XB+16*b+4*s+3}], v{vX1 if i & 1 else vX0} offset:{xs + 2048*s}" for s in range(4)]
            for u in range(6):
                d = WB + 28*b + 4*u
                r.append(f"ds_read_b64_tr_b16 v[{d}:{d+1}], v{vH0 + (u & 1)} offset:{so + 4096*(u >> 1)}")
                r.append(f"ds_read_b64_tr_b16 v[{d+2}:{d+3}], v{vH0 + (u & 1)} offset:{so + 4096*(u >> 1) + 2048}")
            d = WB + 28*b + 24
            if GBR:
                l1, l2 = a.newlabel("L_g"), a.newlabel("L_gj")
                r.append(f"s_cbranch_vccnz {l1}\nds_read_b64_tr_b16 v[{d}:{d+1}], v{vQ} offset:{so}\nds_read_b64_tr_b16 v[{d+2}:{d+3}], v{vQ} offset:{so + 1024}\ns_branch {l2}\n"
                         f"{l1}:\nds_read_b128 v[{d}:{d+3}], v{vGt} offset:{64*i}\n{l2}:")
            else:
                r += [f"ds_read_b64_tr_b16 v[{d}:{d+1}], v{vQ} offset:{so}", f"ds_read_b64_tr_b16 v[{d+2}:{d+3}], v{vQ} offset:{so + 1024}",
                      f"s_mov_b64 exec, vcc\nds_read_b128 v[{d}:{d+3}], v{vGt} offset:{64*i}\ns_mov_b64 exec, -1"]
            return r
        def mfmas(i):
            b = i & 1
            r = []
            for u in (range(7) if i < 19 or QLAST else (6, 0, 1, 2, 3, 4, 5)):
                for s in range(4):
                    d = ACC + 16*u + 4*s
                    c = f"v[{d}:{d+3}]" if i > 0 else ("0" if u == 6 else f"v[{BI+4*u}:{BI+4*u+3}]")
                    r.append(f"v_mfma_f32_16x16x32_bf16 v[{d}:{d+3}], v[{WB+28*b+4*u}:{WB+28*b+4*u+3}], v[{XB+16*b+4*s}:{XB+16*b+4*s+3}], {c}")
            return r
        unpack = [f"s_waitcnt vmcnt({(3 if TOUCH == 2 else 0) + (4 if RD < 0 else 0) + {0: 0, 1: 8, 2: 3}[PF]})"]
        for u in range(6):
            p = BI + 4*u
            unpack += [f"v_lshlrev_b32 v{p}, 16, v{p+2}", f"v_and_b32 v{p+1}, 0xffff0000, v{p+2}", f"v_lshlrev_b32 v{p+2}, 16, v{p+3}", f"v_and_b32 v{p+3}, 0xffff0000, v{p+3}"]
        RP = BI
        rp_reads = []
        for u in range(4):
            rp_reads += [f"ds_read_b64_tr_b16 v[{RP+4*u}:{RP+4*u+1}], v{vRr} offset:{32*u}", f"ds_read_b64_tr_b16 v[{RP+4*u+2}:{RP+4*u+3}], v{vRr} offset:{32*u + 2048}"]
        rp_st = [f"buffer_store_dwordx4 v[{RP+4*u}:{RP+4*u+3}], v{vL}, {WSR}, s{dsts[u]} offen sc1" for u in range(4)]
        z = [f"s_lshl_b32 s{t}, s{sPIDX}, 9", f"s_mul_i32 s{t+1}, s{sWAVE}, {WS_KVP}", f"s_add_u32 s{t}, s{t}, s{t+1}", f"s_cmp_lt_u32 s{sWAVE}, 2", f"s_cselect_b32 s{t}, s{t}, {BIG}"] + \
            [f"v_mov_b32 v{RP+16+k}, 0" for k in range(4)] + \
            [f"s_mov_b32 exec_hi, 0\nbuffer_store_dwordx4 v[{RP+16}:{RP+19}], v{vL}, {WSR}, s{t} offen sc1\ns_mov_b32 exec_hi, -1"]
        k1, k2, k3, k4 = [a.newlabel("L_r2") for _ in range(4)]
        dma1 = [f"s_lshl_b32 s{t+3}, s{sWAVE}, 12"]
        for j in range(4):
            dma1.append(f"s_add_u32 m0, s{t+3}, {SCR + 1024*j}\ns_nop 0\nbuffer_load_dwordx4 v{vRd}, s[{SRD_W}:{SRD_W+3}], s{sSrc1} offen lds\ns_add_u32 s{sSrc1}, s{sSrc1}, 10240")
        rp_reads2 = [l.replace("offset:", "offset:8192+") for l in rp_reads]
        dma2 = f"s_cmp_eq_u32 s{sK2}, 0\ns_cbranch_scc1 {k1}\n"
        for j in range(4):
            dma2 += f"s_add_u32 m0, s{t+3}, {SCR + 8192 + 1024*j}\ns_nop 0\nbuffer_load_dwordx4 v{vRd}, s[{SRD_M}:{SRD_M+3}], s{sSrc2} offen lds\n"
            if j < 3: dma2 += f"s_add_u32 s{sSrc2}, s{sSrc2}, " + (f"s{sInc2}" if j == 1 else "10240") + "\n"
        dma2 += k1 + ":"
        st2 = f"s_cmp_eq_u32 s{sK2}, 0\ns_cbranch_scc1 {k2}\ns_cmp_eq_u32 s{sK2}, 2\ns_cbranch_scc1 {k3}\n"
        st2 += "".join(f"buffer_store_dwordx4 v[{RP+4*u}:{RP+4*u+3}], v{vL}, {WSR}, s{d2+u} offen sc1\n" for u in range(4))
        st2 += f"s_branch {k2}\n{k3}:\nv_lshrrev_b32 v{vT}, 1, v{vL}\n"
        for u in range(4):
            st2 += f"buffer_store_dwordx2 v[{RP+4*u}:{RP+4*u+1}], v{vT}, {WSR}, s{d2+u} offen sc1\ns_add_u32 s{d2+u}, s{d2+u}, 12800\n"
            st2 += f"buffer_store_dwordx2 v[{RP+4*u+2}:{RP+4*u+3}], v{vT}, {WSR}, s{d2+u} offen sc1\n"
        st2 += k2 + ":"
        sk, sk2 = a.newlabel("L_s1a"), a.newlabel("L_s1b")
        arr = [f"s_cmp_lg_u32 s{sWAVE}, 0", f"s_cbranch_scc1 {sk}",
               f"s_mov_b32 s{SRD_D}, s{pDBG}", f"s_mov_b32 s{SRD_D+1}, s{pDBG+1}", f"s_mov_b32 s{SRD_D+2}, 256", f"s_mov_b32 s{SRD_D+3}, 0x20000",
               f"v_mov_b32 v{vT}, 1", f"s_mov_b64 exec, 1\nbuffer_atomic_add v{vT}, v{vL}, s[{SRD_D}:{SRD_D+3}], 0 offen sc0 sc1\ns_mov_b64 exec, -1", sk + ":"]
        arr2 = [f"s_cmp_lg_u32 s{sWAVE}, 0", f"s_cbranch_scc1 {sk2}", "s_waitcnt vmcnt(0)", f"v_readfirstlane_b32 s{t}, v{vT}", f"v_mov_b32 v{vT+1}, 1",
                f"s_cmp_lg_u32 s{t}, 127", f"s_cbranch_scc1 {sk2}",
                f"s_mov_b32 s{SRD_D}, s{pDBG}", f"s_mov_b32 s{SRD_D+1}, s{pDBG+1}", f"s_mov_b32 s{SRD_D+2}, 256", f"s_mov_b32 s{SRD_D+3}, 0x20000",
                f"s_mov_b64 exec, 1\nbuffer_store_dword v{vT+1}, v{vL}, s[{SRD_D}:{SRD_D+3}], 0 offen offset:128 sc1\ns_mov_b64 exec, -1", sk2 + ":"]
        if RD < 0:
            for l in dma1 + [dma2]: a(l)
        if PF: self.prefetch(vL, 240, S=SRD_D)
        hi, lo = (["s_setprio 3"], [f"s_setprio {CP}"]) if STPRIO else ([], [])
        extra = {0: ([], unpack, []), RS: (["s_waitcnt vmcnt(0)"], rp_reads, []), RS+1: (hi, rp_st + rp_reads2, []),
                 RS+2: ([], [st2] + z, lo), S1AT-1: ([], [], ["s_waitcnt vmcnt(0)"]), S1AT: (arr, [], []), S1AT+2: (arr2, [], [])}
        if LARR:
            del extra[S1AT], extra[S1AT+2]
        if LRP:
            a(f"s_lshl_b32 s{t}, s{sWAVE}, 6\ns_add_u32 s{t}, s{t}, {MBOX}\nv_mov_b32 v8, s{t}")
            for u in range(4): a(f"v_mov_b32 v{12+u}, s{dsts[u]}\nv_mov_b32 v{16+u}, s{d2+u}")
            a(f"v_mov_b32 v20, s{sK2}\nds_write_b128 v8, v[12:15]\nds_write_b128 v8, v[16:19] offset:16\nds_write_b32 v8, v20 offset:32\ns_waitcnt lgkmcnt(0)")
            extra = {0: extra[0], 2*LRP - 1: ([], [], ["s_waitcnt vmcnt(0)"])}
        if SPREAD:
            R2 = [216, 220, 240, 244]
            rd2 = []
            for u in range(4):
                rd2 += [f"ds_read_b64_tr_b16 v[{R2[u]}:{R2[u]+1}], v{vRr} offset:{8192 + 32*u}", f"ds_read_b64_tr_b16 v[{R2[u]+2}:{R2[u]+3}], v{vRr} offset:{8192 + 32*u + 2048}"]
            zz = [l.replace(f"v{RP+16}", "v248").replace(f"v{RP+17}", "v249").replace(f"v{RP+18}", "v250").replace(f"v{RP+19}", "v251").replace(f"v[{RP+16}:{RP+19}]", "v[248:251]") for l in z]
            pre2 = [f"v_lshrrev_b32 v{vT+1}, 1, v{vL}"]
            def st2u(u):
                k5, k6 = a.newlabel("L_r2"), a.newlabel("L_r2")
                return (f"s_cmp_eq_u32 s{sK2}, 1\ns_cbranch_scc0 {k5}\nbuffer_store_dwordx4 v[{R2[u]}:{R2[u]+3}], v{vL}, {WSR}, s{d2+u} offen sc1\n{k5}:\n"
                        f"s_cmp_eq_u32 s{sK2}, 2\ns_cbranch_scc0 {k6}\nbuffer_store_dwordx2 v[{R2[u]}:{R2[u]+1}], v{vT+1}, {WSR}, s{d2+u} offen sc1\ns_add_u32 s{d2+u}, s{d2+u}, 12800\n"
                        f"buffer_store_dwordx2 v[{R2[u]+2}:{R2[u]+3}], v{vT+1}, {WSR}, s{d2+u} offen sc1\n{k6}:")
            extra = {0: extra[0], RS: (["s_waitcnt vmcnt(0)"], rp_reads + rd2 + pre2 + zz, []), S1AT: extra[S1AT], S1AT+2: extra[S1AT+2]}
            if SPREAD == 1:
                for u in range(4): extra[RS+1+u] = ([], [rp_st[u], st2u(u)], [])
            else:
                for u in range(4):
                    extra[RS+1+2*u] = ([], [rp_st[u]], []); extra[RS+2+2*u] = ([], [st2u(u)], [])
            e_ = extra.get(S1AT-1, ([], [], []))
            extra[S1AT-1] = (e_[0], e_[1], ["s_waitcnt vmcnt(0)"])
        if RD > 0: extra[RD] = ([], dma1 + [dma2], [])
        if RD == 0: extra[0] = ([], unpack + dma1 + [dma2], [])
        self.main_loop(reads, mfmas, extra, NRE, [vH0, vH1, vQ])
        if EPRIO: a(f"s_setprio {EPRIO}")
        TM = XB
        a("s_nop 3")
        def ep_extra():
            labG, labE = a.newlabel("L_epG"), a.newlabel("L_epE")
            a(f"s_cbranch_vccnz {labG}")
            self.consts("phi")
            for sp in range(2):
                e = ACC + 96 + 8*sp
                for l in self.phi_quad(e, e, TM): a(l)
                for l in self.phi_quad(e + 4, e + 2, TM + 4): a(l)
                a(f"buffer_store_dwordx4 v[{e}:{e+3}], v{vL}, {WSR}, s{sPq} offen offset:{1024*sp} sc1")
            a(f"s_branch {labE}")
            a.label(labG)
            a(f"s_cmp_eq_u32 s{sGs}, 0\ns_cbranch_scc1 {labE}")
            G = ACC + 96
            a(f"v_cmp_le_u32 vcc, 16, v{vLane}\nv_cmp_le_u32 s[{t+2}:{t+3}], 32, v{vLane}\nv_cmp_le_u32 s[{t+4}:{t+5}], 48, v{vLane}\ns_nop 0")
            a(f"v_cndmask_b32 v{G}, v{G}, v{G+4}, vcc\nv_cndmask_b32 v{G}, v{G}, v{G+8}, s[{t+2}:{t+3}]\nv_cndmask_b32 v{G}, v{G}, v{G+12}, s[{t+4}:{t+5}]")
            a(f"s_mov_b32 s{t}, 0x42700000\nv_min_f32 v{G}, s{t}, v{G}\nv_max_f32 v{G}, -s{t}, v{G}\nv_mul_f32 v{G}, s{cL2E}, v{G}\nv_exp_f32 v{G}, v{G}")
            a(f"s_lshl_b32 s{t}, s{sRb64}, 8\ns_add_u32 s{t}, s{t}, {WS_G}\nv_add_f32 v{G+2}, 1.0, v{G}\nv_rcp_f32 v{G+2}, v{G+2}\nv_lshlrev_b32 v{G+1}, 2, v{vLane}\ns_add_u32 s{t+1}, s{t}, 8192")
            a(f"buffer_store_dword v{G}, v{G+1}, {WSR}, s{t} offen sc1\nbuffer_store_dword v{G+2}, v{G+1}, {WSR}, s{t+1} offen sc1")
            a.label(labE)
        def ep_mish():
            self.consts("mish")
            for L in range(3):
                for s in range(4):
                    e, o = ACC + 32*L + 4*s, ACC + 32*L + 16 + 4*s
                    for l in self.mish_quad(e, e, TM + 8*(s & 1)): a(l)
                    for l in self.mish_quad(o, e + 2, TM + 4 + 8*(s & 1)): a(l)
                    if DIAG != 1: a(f"buffer_store_dwordx4 v[{e}:{e+3}], v{vL}, {WSR}, s{sAct+L} offen offset:{1024*s} {'' if DIAG == 2 else 'sc1'}")
                if L == 0 and EARLYQ:
                    a("s_waitcnt vmcnt(4)")
                    self.signal(sF2, vT)
                if LFLAG and L >= 1:
                    a(f"s_waitcnt vmcnt({4 if L == 1 else 5})")
                    self.signal(sF1, vT, 4*(L - 1))
        if QLAST: ep_mish(); ep_extra()
        else: ep_extra(); ep_mish()
        a(f"v_mov_b32 v0, v{vLane}")
        self.stamp(3)
        self.finish1([sF1] if EARLYQ else [sF1, sF2], strict=bool(STRICTP), late8=True)

    def compute_KV(self):
        a = self.a
        t = T0
        ACC, XB, WB = 0, 112, 128
        vX0, vX1, vK, vQ0, vL = 240, 241, 242, 243, 247
        vLane = 253
        sPq, sF2, sRec = 72, 73, 74
        a(f"v_mov_b32 v{vLane}, v0")
        a(f"v_and_b32 v1, 15, v0\nv_lshrrev_b32 v2, 4, v0\nv_lshrrev_b32 v3, 1, v1\nv_xor_b32 v3, v3, v2\nv_lshlrev_b32 v3, 4, v3\nv_lshl_add_u32 v3, v1, 7, v3")
        a(f"s_lshl_b32 s{t}, s{sWAVE}, 12\nv_add_u32 v{vX0}, s{t}, v3\nv_xor_b32 v{vX1}, 64, v{vX0}")
        a(f"v_lshrrev_b32 v3, 2, v0\nv_and_b32 v4, 3, v0\nv_lshlrev_b32 v4, 3, v4")
        a(f"v_mul_u32_u24 v5, 160, v3\nv_add_u32 v5, v5, v4\nv_add_u32 v{vK}, {WR}, v5")
        a(f"v_lshl_add_u32 v5, v3, 7, v4\nv_bfe_u32 v6, v0, 3, 2\nv_lshl_add_u32 v5, v6, 5, v5\nv_add_u32 v{vQ0}, {WR+10240}, v5")
        for u in range(1, 4): a(f"v_xor_b32 v{vQ0+u}, {32*u}, v{vQ0}")
        a(f"v_lshlrev_b32 v{vL}, 4, v0")
        a(f"s_lshr_b32 s{t}, s{sWAVE}, 1\ns_lshl1_add_u32 s{t+1}, s{sRB}, s{t}")
        a(f"s_lshl_b32 s{sF2}, s{t+1}, 7\ns_add_u32 s{sF2}, s{sF2}, {CNT_PQ}")
        a(f"s_mul_i32 s{t+1}, s{t+1}, 40\ns_lshl2_add_u32 s{t+1}, s{sGRP}, s{t+1}\ns_and_b32 s{t}, s{sWAVE}, 1\ns_lshl1_add_u32 s{t+1}, s{t+1}, s{t}\ns_lshl_b32 s{t+1}, s{t+1}, 10\ns_add_u32 s{sPq}, s{t+1}, {WS_PQ}")
        a(f"s_lshl2_add_u32 s{t}, s{sGRP}, s{sWAVE}\ns_lshl_b32 s{sF1}, s{t}, 7\ns_add_u32 s{sF1}, s{sF1}, {CNT_KV}")
        a(f"s_mul_i32 s{t}, s{t}, 1792\ns_add_u32 s{sRec}, s{t}, {WS_KVP}")
        a(f"s_mov_b32 s{cL2E}, 0x3fb8aa3b\ns_mov_b32 s{cL2E+1}, 0x3fb8aa3b")
        self.consts("phi")
        a("s_waitcnt lgkmcnt(0)")
        self.stamp(0)
        self.srd(SRD_WS, pWS, WS_SIZE)
        if TOUCH: self.touch(vLane, 248)
        if PF: self.prefetch(vL, 248)
        def reads(i):
            b = i & 1; so = (i % 3) * WSLOT
            xs = XR + ((i >> 1) % 3) * 16384
            r = [f"ds_read_b128 v[{XB+8*b+4*s}:{XB+8*b+4*s+3}], v{vX1 if i & 1 else vX0} offset:{xs + 2048*s}" for s in range(2)]
            for u in range(14):
                d = WB + 56*b + 4*u
                if u < 10: base, off, d2 = vK, 5120*(u // 5) + 32*(u % 5), 2560
                else: base, off, d2 = vQ0 + u - 10, 0, 2048
                r.append(f"ds_read_b64_tr_b16 v[{d}:{d+1}], v{base} offset:{so + off}")
                r.append(f"ds_read_b64_tr_b16 v[{d+2}:{d+3}], v{base} offset:{so + off + d2}")
            return r
        def mfmas(i):
            b = i & 1
            r = []
            order = list(range(14)) if i < 19 else [5, 6, 7, 8, 9, 0, 1, 2, 3, 4, 10, 11, 12, 13]
            for u in order:
                for s in range(2):
                    d = ACC + 8*u + 4*s
                    c = f"v[{d}:{d+3}]" if i > 0 else "0"
                    w, x = f"v[{WB+56*b+4*u}:{WB+56*b+4*u+3}]", f"v[{XB+8*b+4*s}:{XB+8*b+4*s+3}]"
                    r.append(f"v_mfma_f32_16x16x32_bf16 v[{d}:{d+3}], {x if u < 10 else w}, {w if u < 10 else x}, {c}")
            return r
        self.main_loop(reads, mfmas, {}, NRK, [vK, vQ0, vQ0+1, vQ0+2, vQ0+3])
        TM = XB
        vEx = vX0
        a(f"s_mul_i32 s{t}, s{sWAVE}, 10240\nv_add_u32 v{vEx}, s{t}, v{vL}")
        for u in range(5, 10):
            e = ACC + 8*u
            a(f"v_cvt_pk_bf16_f32 v{e}, v{e}, v{e+1}\nv_cvt_pk_bf16_f32 v{e+1}, v{e+2}, v{e+3}\nv_cvt_pk_bf16_f32 v{e+2}, v{e+4}, v{e+5}\nv_cvt_pk_bf16_f32 v{e+3}, v{e+6}, v{e+7}")
            a(f"ds_write_b128 v{vEx}, v[{e}:{e+3}] offset:{XR + 1024*u}")
        for u in range(5):
            e = ACC + 8*u
            for l in self.phi_quad(e, e, TM): a(l)
            for l in self.phi_quad(e + 4, e + 2, TM + 4): a(l)
            a(f"ds_write_b128 v{vEx}, v[{e}:{e+3}] offset:{XR + 1024*u}")
        a(f"s_lshl_b32 s{t}, s{sWAVE}, 10\nv_add_u32 v{vEx}, s{t}, v{vL}")
        ONE = WB + 64
        for k in range(4): a(f"v_mov_b32 v{ONE+k}, 0x3f803f80")
        if K1LDS:
            lp, dn = a.newlabel("L_k1"), a.newlabel("L_k1d")
            a(f"v_mov_b32 v{vK}, {K1C}\nv_mov_b32 v{vQ0}, 1\ns_mov_b32 s{t}, 0\ns_waitcnt lgkmcnt(0)\ns_mov_b64 exec, 1\nds_add_u32 v{vK}, v{vQ0}\ns_mov_b64 exec, -1")
            a.label(lp)
            a(f"ds_read_b32 v{vQ0}, v{vK}\ns_add_u32 s{t}, s{t}, 1\ns_waitcnt lgkmcnt(0)\nv_readfirstlane_b32 s{t+1}, v{vQ0}\ns_cmp_ge_u32 s{t}, {SPIN}\ns_cbranch_scc1 {dn}\ns_cmp_lt_u32 s{t+1}, 4\ns_cbranch_scc1 {lp}")
            a.label(dn)
        else:
            a("s_waitcnt lgkmcnt(0)\ns_barrier")
        FR = WB
        for g in range(4):
            for j, off in enumerate((0, 1024, 5120, 6144)):
                a(f"ds_read_b128 v[{FR+16*g+4*j}:{FR+16*g+4*j+3}], v{vEx} offset:{XR + 10240*g + off}")
        AD = WB + 72
        dc, BG, ev, R = AD, AD + 2, AD + 3, AD + 8
        ad = [f"v_lshrrev_b32 v{dc}, 4, v{vLane}", f"v_and_b32 v{ev}, 15, v{vLane}", f"v_mov_b32 v{BG}, 0x10000", f"v_cmp_eq_u32 vcc, 0, v{ev}",
              f"v_mov_b32 v{R}, 320", f"v_subrev_u32 v{dc}, s{sWAVE}, v{dc}", f"v_cndmask_b32 v{ev+2}, v{BG}, v{R}, vcc", f"v_add_u32 v{dc+1}, 4, v{dc}",
              f"s_lshl_b32 s{t}, s{sWAVE}, 2", f"v_subrev_u32 v{ev}, s{t}, v{ev}", f"v_add_u32 v{ev+1}, 16, v{ev}",
              f"s_lshl_b32 s{t+4}, s{sWAVE}, 11", f"s_add_u32 s{t+4}, s{t+4}, {STG}"]
        for k in range(2):
            ad += [f"v_cmp_gt_u32 vcc, 5, v{dc+k}", f"v_cmp_gt_u32 s[{t+2}:{t+3}], 20, v{ev+k}", f"v_mul_u32_u24 v{dc+k}, 336, v{dc+k}", f"v_lshlrev_b32 v{ev+k}, 4, v{ev+k}",
                   f"v_cndmask_b32 v{dc+k}, v{BG}, v{dc+k}, vcc", f"v_cndmask_b32 v{ev+k}, v{BG}, v{ev+k}, s[{t+2}:{t+3}]"]
        for k in range(2):
            ad += [f"v_add_u32 v{R+3*k+b}, v{dc+k}, v{ev+b}" for b in range(3)]
            ad += [f"v_min_u32 v{R+3*k+b}, 1680, v{R+3*k+b}" for b in range(3)]
            ad += [f"v_add_u32 v{R+3*k+b}, s{t+4}, v{R+3*k+b}" for b in range(3)]
        ad += [f"v_lshlrev_b32 v{dc}, 2, v{vLane}", f"v_add_u32 v{vEx}, s{t+4}, v{dc}"]
        for l in ad[:20]: a(l)
        D = ACC
        mm = []
        for g in range(4):
            for k in range(2):
                for b in range(3):
                    d = D + 12*k + 4*b
                    B = f"v[{FR+16*g+8+4*b}:{FR+16*g+8+4*b+3}]" if b < 2 else f"v[{ONE}:{ONE+3}]"
                    mm.append(f"v_mfma_f32_16x16x32_bf16 v[{d}:{d+3}], v[{FR+16*g+4*k}:{FR+16*g+4*k+3}], {B}, {'0' if g == 0 else f'v[{d}:{d+3}]'}")
        a("s_waitcnt lgkmcnt(0)")
        for l in interleave(mm, ad[20:], 0, 16): a(l)
        def qmath(u):
            e = ACC + 8*u
            return self.phi_quad(e, e, TM) + self.phi_quad(e + 4, e + 2, TM + 4)
        q10 = qmath(10)
        for l in q10[:8]: a(l)
        for j in range(6): a(f"ds_write_b128 v{R+j}, v[{D+4*j}:{D+4*j+3}]")
        for l in q10[8:20]: a(l)
        a("s_waitcnt lgkmcnt(0)")
        for j in range(7): a(f"ds_read_b32 v{j}, v{vEx} offset:{256*j}")
        for l in q10[20:]: a(l)
        a("s_waitcnt lgkmcnt(0)")
        for j in range(7):
            if j == 6: a("s_mov_b32 exec_hi, 15")
            a(f"buffer_atomic_add_f32 v{j}, v{dc}, {WSR}, s{sRec} offen offset:{256*j} sc1")
        a("s_mov_b32 exec_hi, -1")
        a(f"s_add_u32 s{t}, s{sPq}, 4096")
        def qst(u):
            e = ACC + 8*(10 + u)
            a(f"buffer_store_dwordx4 v[{e}:{e+3}], v{vL}, {WSR}, s{sPq if u < 2 else t} offen offset:{2048*(u & 1)} sc1")
        qst(0)
        for u in (1, 2, 3):
            for l in qmath(10 + u): a(l)
            qst(u)
        a(f"v_mov_b32 v0, v{vLane}")
        self.stamp(3)
        self.finish1([sF1, sF2], strict=True)

    def setup2(self, lanes=True):
        a = self.a
        t = T0
        if MAP2 == "x2b":
            a(f"s_and_b32 s{t+2}, s{sWG}, 3\ns_bfe_u32 s{t+3}, s{sWG}, 0x30003\ns_lshl3_add_u32 s{sR64}, s{t+2}, s{t+3}")
            a(f"s_bfe_u32 s{t+2}, s{sWG}, 0x10002\ns_lshr_b32 s{t+3}, s{sWG}, 6\ns_lshl2_add_u32 s{sC}, s{t+2}, s{t+3}")
        elif MAP2 == "x4":
            a(f"s_bfe_u32 s{t+2}, s{sWG}, 0x10002\ns_bfe_u32 s{t+3}, s{sWG}, 0x40003\ns_lshl4_add_u32 s{sR64}, s{t+2}, s{t+3}")
            a(f"s_and_b32 s{t+2}, s{sWG}, 3\ns_lshr_b32 s{t+3}, s{sWG}, 7\ns_lshl1_add_u32 s{sC}, s{t+2}, s{t+3}")
        elif MAP2 == "x2":
            a(f"s_bfe_u32 s{t+2}, s{sWG}, 0x20001\ns_bfe_u32 s{t+3}, s{sWG}, 0x30003\ns_lshl3_add_u32 s{sR64}, s{t+2}, s{t+3}")
            a(f"s_and_b32 s{t+2}, s{sWG}, 1\ns_lshr_b32 s{t+3}, s{sWG}, 6\ns_lshl2_add_u32 s{sC}, s{t+2}, s{t+3}")
        else:
            a(f"s_and_b32 s{t+2}, s{sWG}, 7\ns_bfe_u32 s{t+3}, s{sWG}, 0x20003\ns_lshl2_add_u32 s{sR64}, s{t+2}, s{t+3}\ns_lshr_b32 s{sC}, s{sWG}, 5")
        if FAKE == 1: a(f"s_and_b32 s{sR64}, s{sWG}, 7\ns_lshl_b32 s{sR64}, s{sR64}, 2\ns_mov_b32 s{sC}, 0")
        if FAKE == 2: a(f"s_mov_b32 s{sC}, 0")
        if FAKE == 3: a(f"s_and_b32 s{sR64}, s{sWG}, 7\ns_lshl_b32 s{sR64}, s{sR64}, 2")
        if lanes: a(f"v_lshlrev_b32 v{vL16}, 4, v0\nv_add_u32 v{vL16b}, 4096, v{vL16}")
        if ROT2 == "none":
            a(f"s_mov_b32 s{t}, 0")
        elif ROT2 == "xor":
            a(f"s_lshr_b32 s{t}, s{sWG}, 3\ns_lshr_b32 s{t+1}, s{sWG}, 6\ns_xor_b32 s{t}, s{t}, s{t+1}\ns_and_b32 s{t}, s{t}, 1")
        elif ROT2 == "two":
            a(f"s_lshr_b32 s{t}, s{sWG}, 3\ns_lshr_b32 s{t+1}, s{sWG}, {6 if MAP2 == 'x2' else 5}\ns_xor_b32 s{t}, s{t}, s{t+1}\ns_and_b32 s{t}, s{t}, 1\ns_mul_i32 s{t}, s{t}, 3")
        elif MAP2 == "x2":
            a(f"s_and_b32 s{t}, s{sC}, 3\ns_mul_i32 s{t}, s{t}, 3\ns_lshr_b32 s{t}, s{t}, 1")
        else:
            a(f"s_mul_i32 s{t}, s{sC}, 3\ns_lshr_b32 s{t}, s{t}, 2")
        a(f"s_mul_i32 s{t+1}, s{sWAVE}, 6")
        a(f"s_mul_i32 s{t+2}, s{sC}, {48*5120}\ns_add_u32 s{t+2}, s{t+2}, {WS_W2R}")
        a(f"s_mul_i32 s{t+3}, s{sR64}, {48*4096}\ns_add_u32 s{t+3}, s{t+3}, {WS_ACT}")
        for i in range(6):
            a(f"s_add_u32 s{t+4}, s{t+1}, s{t}\ns_mul_i32 s{sB0+i}, s{t+4}, 5120\ns_add_u32 s{sB0+i}, s{sB0+i}, s{t+2}")
            a(f"s_lshl_b32 s{sA0+i}, s{t+4}, 12\ns_add_u32 s{sA0+i}, s{sA0+i}, s{t+3}")
            if i < 5 and ROT2 == "xor": a(f"s_xor_b32 s{t}, s{t}, {i ^ (i + 1)}")
            elif i < 5: a(f"s_add_u32 s{t}, s{t}, 1\ns_cmp_eq_u32 s{t}, 6\ns_cselect_b32 s{t}, 0, s{t}")
        a(f"s_lshl3_add_u32 s{sFa}, s{sR64}, s{sWAVE}\ns_lshl_b32 s{sFa}, s{sFa}, 7\ns_lshl_b32 s{sFq}, s{sR64}, 7\ns_add_u32 s{sFq}, s{sFq}, {CNT_PQ}")
        a(f"s_mul_i32 s{sPQb}, s{sR64}, 40\ns_mul_i32 s{t}, s{sWAVE}, 5\ns_add_u32 s{sPQb}, s{sPQb}, s{t}\ns_lshl_b32 s{sPQb}, s{sPQb}, 11\ns_add_u32 s{sPQb}, s{sPQb}, {WS_PQ}")
        a(f"s_lshl3_add_u32 s{sMb}, s{sC}, s{sWAVE}\ns_mul_i32 s{sMb}, s{sMb}, 12800\ns_add_u32 s{sMb}, s{sMb}, {WS_WOR}")
        a(f"s_mul_i32 s{sKv}, s{sWAVE}, 7168\ns_add_u32 s{sKv}, s{sKv}, {WS_KVP}\ns_lshl_b32 s{sFk}, s{sWAVE}, 9\ns_add_u32 s{sFk}, s{sFk}, {CNT_KV}")

    def preload_b(self, n0, n1, th=0, alt=None):
        vb = vL16b
        if alt is not None:
            vb = alt; self.a(f"v_add_u32 v{alt}, 4096, v{vL16}")
        for n in range(n0, n1):
            if th and n < NTH: self.a(f"s_waitcnt vmcnt({th - 1})")
            i, jn = divmod(n, 5)
            d = BS + 20*i + 4*jn
            self.a(f"buffer_load_dwordx4 v[{d}:{d+3}], v{vL16 if jn < 4 else vb}, {WSR}, s{sB0+i} offen offset:{1024*jn if jn < 4 else 0} sc1")

    def stage_b(self):
        a = self.a
        t = T0
        a(f"s_mul_i32 s{t}, s{sT}, 20480\ns_add_u32 s{t}, s{t}, {BL}")
        for i in range(2, NB):
            a(f"s_sub_u32 s{t+1}, s{sB0+i}, 122880")
            for jn in range(5):
                if jn in (0, 4):
                    a(f"s_add_u32 m0, s{t}, {5120*(i-2) + 1024*jn}")
                    a(f"s_add_u32 s{t+1}, s{t+1}, 4096" if jn else "s_nop 0")
                if TH and NB*5 + 5*(i - 2) + jn < NTH: a(f"s_waitcnt vmcnt({TH - 1})")
                a(f"buffer_load_dwordx4 v{vL16}, {WSR}, s{t+1} offen offset:{1024*(jn % 4)} sc1 lds")
        a("s_waitcnt vmcnt(0)")

    def adlist(self, alt=False):
        t, LN = T0, 255
        ts = 72 if alt else t + 2
        mk = [96, 98, 100, 52, 54] if alt else [t + 4 + 2*n for n in range(5)]
        groups = []
        chunks = [(0, 0), (0, 1), (1, 0), (1, 1), (1, 2), (2, 1), (2, 2), (2, 3), (3, 2), (3, 3), (4, 3), (3, 4), (4, 4)] + [("z", tt) for tt in range(5)]
        slot = dict(zip(chunks, [0, 1, 2, 3, 4, 7, 8, 9, 10, 11, 13, 14, 15, 16, 17, 18, 19, 20]))
        X, K0 = 44, 20
        ad = [f"v_and_b32 v{X}, 15, v{LN}", f"v_lshrrev_b32 v{X+1}, 4, v{LN}", f"s_add_u32 s{ts}, s{sLB}, 13312", f"v_mul_u32_u24 v{X+3}, 336, v{X+1}", f"v_add_u32 v{X+3}, s{ts}, v{X+3}",
              f"v_add_u32 v{X+18}, s{sLB}, v{vL16}", f"s_add_u32 s{ts}, s{ts}, 7056", f"v_mov_b32 v{X+13}, s{ts}"] + [f"v_subrev_u32 v{X+13+k}, {1344*k}, v{X+13}" for k in range(1, 5)]
        for te in (0, 1, 2, 3, 4, "z"):
            groups.append(len(ad))
            if te == "z":
                ad += [f"v_and_b32 v{X+4}, 3, v{LN}", f"v_mul_u32_u24 v{X+5}, 112, v{X+4}", f"v_add_u32 v{X+6}, 320, v{X+3}", f"v_add_u32 v{X+5}, v{X+5}, v{X+6}"]
            else:
                ad += [f"v_add_u32 v{X+6}, {16*te}, v{X}", f"v_mul_u32_u24 v{X+4}, 3277, v{X+6}", f"v_lshrrev_b32 v{X+4}, 16, v{X+4}",
                       f"v_lshl_add_u32 v{X+6}, v{X+6}, 4, v{X+3}", f"v_mad_i32_i24 v{X+5}, v{X+4}, s{sN208}, v{X+6}"]
            ad += [f"v_mad_i32_i24 v{X+4}, v{X+4}, -5, v{X+1}"]
            mine = [(j, c) for j, c in enumerate(chunks) if c[0] == te]
            ad += [f"v_add_u32 v{X+8+n}, {4*c[1]}, v{X+4}" for n, (j, c) in enumerate(mine)]
            ad += [f"v_cmp_gt_u32 s[{mk[n]}:{mk[n]+1}], 5, v{X+8+n}" for n, (j, c) in enumerate(mine)]
            ad += ["s_nop 0"]
            ad += [f"v_cndmask_b32 v{K0+j}, v{X+13+c[1]}, v{X+5}, s[{mk[n]}:{mk[n]+1}]" for n, (j, c) in enumerate(mine)]
        self.adgroups = groups + [len(ad)]
        return chunks, slot, X, K0, ad

    def adpart(self, k):
        a = self.a
        ad = self.adlist(True)[4]; g = self.adgroups
        if k == 0: a(f"v_lshlrev_b32 v{vL16}, 4, v0\nv_mov_b32 v255, v0\ns_xor_b32 s{sLB}, s{sWAVE}, 4\ns_mul_i32 s{sLB}, s{sLB}, 20480\ns_mov_b32 s{sN208}, -208")
        for l in ad[(0, g[1], g[3], g[5])[k]:(g[1], g[3], g[5], g[6])[k]]: a(l)

    def adblock(self):
        a = self.a
        a(f"v_lshrrev_b32 v255, 4, v{vL16}\ns_xor_b32 s{sLB}, s{sWAVE}, 4\ns_mul_i32 s{sLB}, s{sLB}, 20480\ns_mov_b32 s{sN208}, -208")
        for l in self.adlist()[4]: a(l)

    def gemm2(self):
        a = self.a
        t = T0
        seq = []
        LN = 255
        def ldl(dst, n, v, so, off, tag):
            seq.append(tag)
            return [f"buffer_load_dword{ {1: '', 2: 'x2', 4: 'x4'}[n] } {vr(dst, n)}, v{v}, {WSR}, s{so} offen offset:{off} sc1"]
        def emit(L):
            for l in L: a(l)
        def wait(tag):
            last = max(n for n, x in enumerate(seq) if x == tag)
            a(f"s_waitcnt vmcnt({len(seq) - 1 - last})")
        def act(i):
            return sum((ldl(AB + 16*(i % 3) + 4*st, 4, vL16, sA0 + i, 1024*st, f"act{i}") for st in range(4)), [])
        def check(soff, target, sleep=None):
            ok = a.newlabel("L_ok")
            a(f"v_cmp_le_u32 vcc, {target}, v{vP+1}\ns_nop 1\ns_cmp_eq_u64 vcc, -1\ns_cbranch_scc1 {ok}")
            self.poll(soff, target, vP, vP + 1, sleep=sleep)
            a.label(ok)
        def dma(so, n, lds, tag):
            r = []
            for k in range(n):
                pre = ""
                if k % 4 == 0:
                    pre = f"s_add_u32 m0, s{sLB}, {lds + 1024*k}\n" + (f"s_add_u32 s{so}, s{so}, 4096\n" if k else "s_nop 0\n")
                r.append(pre + f"buffer_load_dwordx4 v{vL16}, {WSR}, s{so} offen offset:{1024*(k % 4)} sc1 lds"); seq.append(tag)
            return r
        def pq(base, sp):
            return sum((ldl(base + 20*sp + 4*tt, 4, vL16, (sPQb, t, t + 1)[tt >> 1], 2048*(tt & 1) + 1024*sp, f"pq{sp}") for tt in range(5)), [])
        def gld(va):
            return sum((ldl(vG + st, 1, va, t + 3, 64*st, "g") for st in range(4)), [])
        def lateb(i=5):
            if i < NB: return []
            r = sum((ldl(BS + 20*i + 4*jn, 4, vL16, sB0 + i, 1024*jn, f"act{i}") for jn in range(4)), [])
            return r + [f"s_add_u32 s{sB0+i}, s{sB0+i}, 4096"] + ldl(BS + 20*i + 16, 4, vL16, sB0 + i, 0, f"act{i}")
        chunks, slot, X, K0, ad = self.adlist()
        mq = [t + 4, t + 6, t + 8]
        consts = [f"s_mov_b32 s{cE}, 0x358637bd", f"s_mov_b32 s{mq[0]}, 0xffff", f"s_mov_b32 s{mq[0]+1}, 0", f"s_mov_b32 s{mq[1]}, -1", f"s_mov_b32 s{mq[1]+1}, 0",
                  f"s_mov_b32 s{mq[2]}, -1", f"s_mov_b32 s{mq[2]+1}, 0xffff"]
        swaps = lambda R: [f"v_swap_b32 v{R+8*p+2+k}, v{R+8*p+4+k}" for p in range(2) for k in range(2)]
        K32 = lambda d, A, B, c: f"v_mfma_f32_16x16x32_bf16 v[{d}:{d+3}], v[{A}:{A+3}], v[{B}:{B+3}], {c}"
        K16 = lambda d, A, B: f"v_mfma_f32_16x16x16_bf16 v[{d}:{d+3}], v[{A}:{A+1}], v[{B}:{B+1}], v[{d}:{d+3}]"
        acc = lambda d: f"v[{d}:{d+3}]"
        def fqf(base):
            def fq(st, tt):
                R = base + 20*(st >> 1)
                return R + 8*(tt >> 1) + 4*(st & 1) + 2*(tt & 1) if tt < 4 else R + 16 + 2*(st & 1)
            return fq
        def gather(KAr, raw, KP, PQb, first):
            for j, c in enumerate(chunks):
                a(f"ds_read_b128 v[{raw(j)}:{raw(j)+3}], v{KAr+j} offset:{1344*c[1]}")
            emit(swaps(PQb) + swaps(PQb + 20))
            for j, c in enumerate(chunks):
                if j in (0, first): a(f"s_waitcnt lgkmcnt({18 - first if j == 0 else 0})")
                d, r = KP + 2*slot[c], raw(j)
                a(f"v_cvt_pk_bf16_f32 v{d}, v{r}, v{r+1}\nv_cvt_pk_bf16_f32 v{d+1}, v{r+2}, v{r+3}")
            for z in (5, 6, 12): a(f"v_mov_b32 v{KP+2*z}, 0\nv_mov_b32 v{KP+2*z+1}, 0")
        def scales(st, DN, SC):
            r = ([] if LATEORD else [f"v_add_f32 v{DN+k}, s{cE}, v{DN+k}" for k in range(4)]) + [f"v_rcp_f32 v{DN+k}, v{DN+k}" for k in range(4)]
            r += [f"v_mul_f32 v{DN+k}, v{vG+st}, v{DN+k}" for k in range(4)]
            return r + [f"v_cndmask_b32 v{SC[k]}, v{DN+k+1}, v{DN+k}, s[{mq[k]}:{mq[k]+1}]" for k in range(3)]
        def vtile(st, tt, o, DN, SC, fq):
            sc = (DN, SC[0], SC[1], SC[2], DN + 3)[tt]
            return [f"v_mul_f32 v{o+k}, v{sc}, v{o+k}" for k in range(4)] + [f"v_cvt_pk_bf16_f32 v{fq(st,tt)}, v{o}, v{o+1}", f"v_cvt_pk_bf16_f32 v{fq(st,tt)+1}, v{o+2}, v{o+3}"]
        def mlp(i, zero, sts=None):
            order = [(jn, st) for jn in range(5) for st in range(4)] if sts is None else [(jn, st) for st in sts for jn in range(5)]
            return [K32(20*st + 4*jn, BS + 20*i + 4*jn, AB + 16*(i % 3) + 4*st, "0" if zero else acc(20*st + 4*jn)) for jn, st in order]
        TA, RA, vRW = 224, 170, vP
        rw = [f"v_and_b32 v{TA}, 15, v{LN}", f"v_mul_u32_u24 v{TA}, 160, v{TA}", f"v_bfe_u32 v{TA+1}, v{LN}, 5, 1", f"v_bfe_u32 v{vRW}, v{LN}, 2, 1", f"v_xor_b32 v{TA+1}, v{TA+1}, v{vRW}",
              f"v_lshl_add_u32 v{TA}, v{TA+1}, 4, v{TA}", f"v_bfe_u32 v{TA+1}, v{LN}, 4, 1", f"v_mul_u32_u24 v{TA+1}, 10240, v{TA+1}", f"v_add3_u32 v{vRW}, v{TA}, v{TA+1}, s{sLB}"]
        wrl = lambda st: [] if DIAG == 6 else [f"ds_write_b128 v{vRW}, v[{20*st+4*jn}:{20*st+4*jn+3}] offset:{2560*st + 32*jn}" for jn in range(5)]
        rd = [f"s_mul_i32 s{t}, s{sWAVE}, 80", f"v_add_u32 v{RA}, s{t}, v{LN}", f"v_add_u32 v{RA+1}, 64, v{RA}",
              f"s_lshl_b32 s{t+2}, s{sR64}, 8", f"s_add_u32 s{t+2}, s{t+2}, {WS_G + 8192}"]
        for k in range(2):
            rd += [f"v_mul_u32_u24 v{RA+2}, 6554, v{RA+k}", f"v_lshrrev_b32 v{RA+2}, 16, v{RA+2}", f"v_mad_i32_i24 v{RA+3}, v{RA+2}, -10, v{RA+k}", f"v_lshlrev_b32 v{TA+2+k}, 2, v{RA+2}",
                   f"buffer_load_dword v{TA+2+k}, v{TA+2+k}, {WSR}, s{t+2} offen sc1",
                   f"v_bfe_u32 v{RA+6}, v{RA+2}, 2, 1", f"v_xor_b32 v{RA+k}, v{RA+k}, v{RA+6}",
                   f"v_mul_u32_u24 v{RA+2}, 1280, v{RA+2}", f"v_lshl_add_u32 v{RA+4+k}, v{RA+3}, 4, v{RA+2}", f"v_lshlrev_b32 v{RA+k}, 4, v{RA+k}"]
        rd += [f"v_add_u32 v{RA+6}, 61440, v{RA}", f"v_add_u32 v{RA+7}, 61440, v{RA+1}", f"v_add_u32 v{RA+8}, 122880, v{RA}", f"v_add_u32 v{RA+9}, 122880, v{RA+1}"]
        rd += [f"s_mov_b32 s{SRD_M}, s{pOUT}", f"s_mov_b32 s{SRD_M+1}, s{pOUT+1}", f"s_mov_b32 s{SRD_M+2}, {2048*640*2}", f"s_mov_b32 s{SRD_M+3}, 0x20000",
               f"s_mul_i32 s{t}, s{sR64}, 81920", f"s_mul_i32 s{t+1}, s{sC}, 160", f"s_add_u32 s{t}, s{t}, s{t+1}"]
        def flagvec(vt, with_act):
            a(f"v_lshlrev_b32 v{vP}, 2, v{LN}\nv_add_u32 v{vP}, s{sFk}, v{vP}\nv_mov_b32 v{vt}, 1\nv_cmp_le_u32 vcc, 4, v{LN}\nv_mov_b32 v{vt+1}, s{sFq}\ns_add_u32 s{t+2}, s{sFa}, 8")
            a(f"v_cndmask_b32 v{vP}, v{vP}, v{vt+1}, vcc")
            if with_act:
                a(f"v_cmp_lt_u32 vcc, 4, v{LN}\nv_mov_b32 v{vt+1}, s{t+2}\ns_nop 0\nv_cndmask_b32 v{vP}, v{vP}, v{vt+1}, vcc\nv_cndmask_b32 v{vt}, v{vt}, 2, vcc")

        a("s_setprio 0")
        if ADPRE != 2:
            a(f"v_lshrrev_b32 v{LN}, 4, v{vL16}")
            a(f"s_xor_b32 s{sLB}, s{sWAVE}, 4\ns_mul_i32 s{sLB}, s{sLB}, 20480\ns_mov_b32 s{sN208}, -208")
        a(f"s_lshl_b32 s{t+3}, s{sR64}, 8\ns_add_u32 s{t+3}, s{t+3}, {WS_G}\ns_add_u32 s{t}, s{sPQb}, 4096\ns_add_u32 s{t+1}, s{sPQb}, 8192")
        if LFLAG: a(f"v_and_b32 v{vP}, 1, v{LN}\nv_lshlrev_b32 v{vP}, 2, v{vP}")
        else: a(f"v_mov_b32 v{vP}, 0")
        atest = (f"v_cmp_le_u32 vcc, 2, v{vP+1}\ns_nop 1\ns_and_b32 s{t+14}, vcc_lo, 3\ns_cmp_eq_u32 s{t+14}, 3" if LFLAG else
                 f"v_readfirstlane_b32 s{t+14}, v{vP+1}\ns_nop 0\ns_cmp_ge_u32 s{t+14}, 2")
        apoll0 = f"v_mov_b32 v{vP+1}, 0\ns_mov_b64 exec, {3 if LFLAG else 1}\nbuffer_atomic_add v{vP+1}, v{vP}, {WSR}, s{sFa} offen sc0 sc1\ns_mov_b64 exec, -1"
        lE = a.newlabel("L_early")
        if EARLYA:
            sk = a.newlabel("L_ne")
            a(f"s_mov_b32 s32, 0\ns_cmp_lt_u32 s{sWAVE}, 4\ns_cbranch_scc1 {sk}\n{apoll0}")
            a.label(sk)
        if ADPRE == 1: emit(ad[:len(ad)*(100 - APRE)//100])
        if APRE: a(apoll0)
        if ADPRE == 1: emit(ad[len(ad)*(100 - APRE)//100:])
        if EARLYA:
            sk = a.newlabel("L_ne")
            a(f"s_cmp_lt_u32 s{sWAVE}, 4\ns_cbranch_scc1 {sk}\ns_waitcnt vmcnt(0)\n{atest}\ns_cbranch_scc0 {sk}\ns_mov_b32 s32, 1")
            sv = list(seq); emit(act(0) + act(1) + act(2)); seq[:] = sv
            a.label(sk)
        if not NOE1: a("s_barrier")
        self.stamp(4)
        apoll = f"v_mov_b32 v{vP+1}, 0\ns_mov_b64 exec, {3 if LFLAG else 1}\nbuffer_atomic_add v{vP+1}, v{vP}, {WSR}, s{sFa} offen sc0 sc1\ns_mov_b64 exec, -1"
        if EARLYA:
            sk = a.newlabel("L_ne")
            a(f"s_cmp_eq_u32 s32, 1\ns_cbranch_scc1 {sk}\n{apoll}")
            a.label(sk)
        elif ATP and not APRE: a(apoll)
        elif WOPOS != "pre" and not APRE: a(f"buffer_load_dword v{vP+1}, v{vP}, {WSR}, s{sFa} offen sc1")
        if NPL:
            sk = a.newlabel("L_np")
            a(f"s_cmp_ge_u32 s{sWAVE}, 4\ns_cbranch_scc1 {sk}")
            self.preload_b(0, NPRE, alt=72)
            a.label(sk)
        self.pickup()
        if WOPOS == "pre":
            a("s_waitcnt lgkmcnt(0)")
            emit(dma(sMb, 13, 0, "wo"))
        if not ADPRE: emit(ad)
        a("s_waitcnt lgkmcnt(0)")
        for k in range(5): a(f"ds_write_b128 v{X+18}, v[{K0+4*k}:{K0+4*k+3}] offset:{13312 + 1024*k}")
        if EARLYA: a(f"s_cmp_eq_u32 s32, 1\ns_cbranch_scc1 {lE}")
        if ATP:
            lp, dn = a.newlabel("L_ap"), a.newlabel("L_apd")
            a(f"s_mov_b32 s{t+15}, 0")
            if NPL:
                sk = a.newlabel("L_np")
                a(f"s_cmp_ge_u32 s{sWAVE}, 4\ns_cbranch_scc1 {lp}\ns_waitcnt vmcnt({NPRE})\n{atest}\ns_cbranch_scc1 {dn}\n{apoll}")
            a.label(lp)
            a(f"s_waitcnt vmcnt(0)\n{atest}\ns_cbranch_scc1 {dn}\ns_add_u32 s{t+15}, s{t+15}, 1")
            a(f"s_cmp_ge_u32 s{t+15}, {SPIN}\ns_cbranch_scc1 {dn}\ns_sleep {ATP}\n{apoll}\ns_branch {lp}")
            a.label(dn)
        elif WOPOS == "pre": self.poll(f"s{sFa}", 2, vP, vP + 1)
        else:
            a("s_waitcnt vmcnt(0)")
            if LFLAG == 1:
                sk = a.newlabel("L_sig")
                a(f"s_cmp_ge_u32 s{sWAVE}, 4\ns_cbranch_scc1 {sk}")
                self.stamp(5)
                self.signal(sF1, 70); self.signal(32, 70)
                a.label(sk)
            check(f"s{sFa}", 2)
        self.stamp(6)
        PR = {"f": {-1: 1, 4: 0}, "g": {-1: 2, 3: 1, 5: 0}, "h": {-1: 1, 5: 0, 6: 1}, "i": {-1: 1, 5: 0, 7: 1}, "a": {-1: 3, 2: 2, 5: 1, 6: 0}, "b": {-1: 3, 1: 2, 3: 1, 6: 0}, "c": {-1: 1, 5: 0}, "d": {-1: 2, 5: 1, 7: 0}, "e": {-1: 3, 3: 2, 6: 1, 8: 0}}.get(PRIO, {})
        prio = lambda k: a(f"s_setprio {PR[k]}") if k in PR else None
        if EARLYA:
            assert FVAT >= 0 and not A2L
            emit(act(0) + act(1) + act(2))
            a.label(lE)
        prio(-1)
        if not EARLYA: emit(act(0))
        a(f"v_lshlrev_b32 v{vP}, 7, v{LN}\nv_add_u32 v{vP}, s{sFk}, v{vP}\nv_cmp_le_u32 vcc, 4, v{LN}\nv_mov_b32 v{vG+1}, s{sFq}\nv_mov_b32 v{vG}, 16")
        a(f"v_cndmask_b32 v{vP}, v{vP}, v{vG+1}, vcc\nv_cndmask_b32 v{vG}, v{vG}, 25, vcc")
        if LFLAG: a(f"v_cmp_lt_u32 vcc, 4, v{LN}\ns_add_u32 s{t+2}, s{sFa}, 8\nv_mov_b32 v{vG+1}, s{t+2}\nv_cndmask_b32 v{vP}, v{vP}, v{vG+1}, vcc\nv_cndmask_b32 v{vG}, v{vG}, 2, vcc")
        fv = lambda: (a(f"buffer_load_dword v{vP+1}, v{vP}, {WSR}, 0 offen sc1"), seq.append("fv"))
        if FVAT < 0: fv()
        if not EARLYA: emit(act(1) + ([] if A2L else act(2)))
        fill = (lambda: dma(sMb, 13, 0, "wo")) if WOPOS == "s0" else (lambda: (act(2) if A2L else []) + lateb(3))
        for i in range(5):
            prio(i)
            wait(f"act{i}")
            if TAILDBG == 2 and i < 4: self.stamp((2, 3, 5, 7)[i], "tail")
            emit(interleave(mlp(i, i == 0), fill() if fill else []))
            fill = None
            if i == 0 and WOPOS == "s1": fill = lambda: dma(sMb, 13, 0, "wo")
            if i == 3 and WOPOS == "s4": fill = lambda: dma(sMb, 13, 0, "wo")
            if i == FVAT: fv()
            if i < 2 and not (LFLAG and i == 1): emit(act(i + 3))
            if i == PQAT:
                wait("fv")
                check("0", f"v{vG}", 8)
                if TAILDBG == 2: self.stamp(4, "tail")
                if LFLAG: emit(act(4))
                a(f"v_and_b32 v{vP+1}, 15, v{LN}\nv_lshlrev_b32 v{vP+1}, 2, v{vP+1}")
                f1 = lambda: lateb(4) + pq(PQR, 0) + pq(PQR, 1) + gld(vP + 1)
                if FILLI and i < 2: fill = f1
                else: emit(f1())
            if i == 2:
                a(f"v_add_u32 v{KA+19}, s{sLB}, v{vL16}")
                for k in range(5): a(f"ds_read_b128 v[{KA+4*k}:{KA+4*k+3}], v{KA+19} offset:{13312 + 1024*k}")
                a("s_waitcnt lgkmcnt(0)")
                f2 = lambda: dma(sKv, 7, 13312, "kv") + (act(5) + lateb() if WOPOS != "x" else []) + (dma(sMb, 13, 0, "wo") if WOPOS == "s3" else [])
                if FILLI: fill = f2
                else: emit(f2())
        self.stamp(7)
        prio(5)
        emit(consts)
        KP = 120
        wait("kv")
        self.stamp(8)
        gather(KA, lambda j: 200 + 4*j if j < 8 else 140 + 4*(j - 8), KP, PQR, 8)
        Oset = {1: ([200, 204, 208, 212, 216], 220), 0: ([162, 166, 170, 174, 224], 228)}
        SC = [178, 179, vP + 1]
        fq = fqf(PQR)
        S = lambda k: KP + 2*k
        def Xb(st):
            O, DN = Oset[st & 1]
            p0, p1, ps = fq(st, 0), fq(st, 2), fq(st, 4)
            return [K32(DN, S(16), p0, acc(196) if LATEORD else "0"), K32(O[3], S(10), p1, "0"), K32(O[4], S(12), p1, "0"), K32(DN, S(18), p1, acc(DN)),
                    K32(O[0], S(0), p0, "0"), K32(O[1], S(2), p0, "0"), K32(O[2], S(6), p0, "0"), K32(O[1], S(4), p1, acc(O[1])), K32(O[2], S(8), p1, acc(O[2])),
                    "s_nop 0", K16(DN, S(20), ps), K16(O[3], S(14), ps), K16(O[4], S(15), ps)]
        def Vb(st):
            O, DN = Oset[st & 1]
            if DIAG == 7: return []
            return scales(st, DN, SC) + sum((vtile(st, tt, O[tt], DN, SC, fq) for tt in range(5)), [])
        def Yb(st):
            r = []
            for p in range(2):
                r += [K32(20*st + 4*jn, MR + 4*(2*jn + p), fq(st, 2*p), acc(20*st + 4*jn)) for jn in range(5)]
            return r + ["s_nop 1"] + [K16(20*st + 4*jn, MR + 40 + 2*jn, fq(st, 4)) for jn in range(5)]
        a("s_nop 1")
        if TAILDBG == 1: self.stamp(2, "tail")
        late = (act(5) + lateb() + dma(sMb, 13, 0, "wo")) if WOPOS == "x" else []
        if DIAG == 5: late = late[:4]
        if LATEORD:
            assert NB == 5 and WOPOS == "x"
            lastb = late[8:10]; late = late[:8] + late[10:]
            i5 = seq.index("act5") + 8; seq.pop(i5); seq.append("act5")
            for k in range(4): a(f"v_mov_b32 v{196+k}, 0x358637bd")
            a("s_nop 1")
        cuts = [0] + [len(late)*c//100 for c in XSPLIT] + [len(late)]
        emit(interleave(Xb(0), late[cuts[0]:cuts[1]]))
        for st in range(1, 4):
            x = Xb(st)
            emit(interleave(x[:6], late[cuts[st]:cuts[st+1]]) + (lastb if LATEORD and st == 3 else []) + interleave(x[6:], Vb(st - 1)))
        a(f"v_add_u32 v{TA}, s{sLB}, v{vL16}\nv_lshlrev_b32 v{TA+1}, 3, v{LN}\nv_add_u32 v{TA+1}, s{sLB}, v{TA+1}")
        wor = [f"ds_read_b128 v[{MR+4*f}:{MR+4*f+3}], v{TA} offset:{1024*f}" for f in range(10)]
        wor += [f"ds_read_b64 v[{MR+40+2*jn}:{MR+41+2*jn}], v{TA+1} offset:{10240 + 512*jn}" for jn in range(5)]
        prio(6)
        if WOPOS in ("s3", "s4", "x"):
            if TAILDBG == 1: self.stamp(3, "tail")
            wait("act5")
            if TAILDBG == 1: self.stamp(4, "tail")
            emit(interleave(mlp(5, False), Vb(3)))
            if TAILDBG == 1: self.stamp(5, "tail")
            a("s_waitcnt vmcnt(0)")
            if TAILDBG == 1: self.stamp(6, "tail")
            emit(wor + rw)
        else:
            emit(wor)
            wait("act5")
            emit(interleave(mlp(5, False), Vb(3) + rw))
        a("s_waitcnt lgkmcnt(0)")
        if RED == 2:
            def aset(B, T, sbase):
                return [f"v_add_u32 v{B}, {sbase}, v{LN}", f"v_mul_u32_u24 v{T}, 6554, v{B}", f"v_lshrrev_b32 v{T}, 16, v{T}", f"v_mad_i32_i24 v{T+1}, v{T}, -10, v{B}",
                        f"v_lshlrev_b32 v{B+4}, 2, v{T}", f"buffer_load_dword v{B+4}, v{B+4}, {WSR}, s{t+2} offen sc1",
                        f"v_bfe_u32 v{B+1}, v{T}, 2, 1", f"v_xor_b32 v{B}, v{B}, v{B+1}", f"v_mul_u32_u24 v{T}, 1280, v{T}", f"v_lshl_add_u32 v{B+3}, v{T+1}, 4, v{T}",
                        f"v_lshlrev_b32 v{B}, 4, v{B}", f"v_add_u32 v{B+1}, 61440, v{B}", f"v_add_u32 v{B+2}, 122880, v{B}"]
            def rsum(sets):
                items = [(B, m, D, w) for B, m, D in sets for w in range(8)]
                def rdp(n):
                    B, m, D, w = items[n]
                    r = [f"ds_read_b128 v[{D+8*w+4*par}:{D+8*w+4*par+3}], v{B + w // 3} offset:{20480*(w % 3) + 10240*par}" for par in range(2)]
                    return r if m is None else [m] + r + ["s_mov_b64 exec, -1"]
                AH = 6
                for n in range(AH): emit(rdp(n))
                for n, (B, m, D, w) in enumerate(items):
                    if n + AH < len(items): emit(rdp(n + AH))
                    if w == 0: continue
                    a(f"s_waitcnt lgkmcnt({2*min(AH, len(items) - 1 - n)})")
                    if len(sets) == 2 and n < PLA:
                        for j in range(8): a(f"v_add_f32 v{D+j}, v{D+j}, v{D+8*w+j}")
                    else:
                        for j in range(4): a(f"v_pk_add_f32 v[{D+2*j}:{D+2*j+1}], v[{D+2*j}:{D+2*j+1}], v[{D+8*w+2*j}:{D+8*w+2*j+1}]")
                    if w == 7:
                        if n == 7 and len(sets) == 2: a("s_waitcnt vmcnt(0)")
                        for j in range(8): a(f"v_mul_f32 v{D+j}, v{B+4}, v{D+j}")
                        for j in range(4): a(f"v_cvt_pk_bf16_f32 v{D+j}, v{D+2*j}, v{D+2*j+1}")
                        if m: a(m)
                        a(f"buffer_store_dwordx4 v[{D}:{D+3}], v{B+3}, s[{SRD_M}:{SRD_M+3}], s{t} offen {OUTFL}")
                        if m: a("s_mov_b64 exec, -1")
            r2 = [f"s_mul_i32 s{t+3}, s{sWAVE}, 40", f"s_add_u32 s{t+3}, s{t+3}, 320"] + rd[3:5] + aset(170, 175, f"s{t+3}") + rd[-7:]
            emit(interleave(Yb(0), r2))
            prio(7)
            emit(interleave(Yb(1), wrl(0), 6))
            prio(8)
            if not R1E: emit(interleave(Yb(2), wrl(1), 6))
            if TAILDBG == 1: self.stamp(7, "tail")
            lo, lj = a.newlabel("L_ro"), a.newlabel("L_rj")
            a(f"s_cmp_lt_u32 s{sWAVE}, 4\ns_cbranch_scc1 {lo}")
            y3 = Yb(3)
            if R1E:
                y2 = Yb(2)
                emit(y2[:2] + interleave(y2[2:7], wrl(1)) + y2[7:R1E]); a("s_waitcnt lgkmcnt(0)\ns_barrier"); emit(y2[R1E:])
                emit(interleave(y3, wrl(2), 4, 10))
            else:
                emit(y3[:4]); a("s_waitcnt lgkmcnt(0)\ns_barrier"); emit(interleave(y3[4:], wrl(2), 2))
            a("s_nop 4")
            emit(wrl(3))
            a(f"s_waitcnt vmcnt(0)\ns_branch {lj}")
            a.label(lo)
            if R1E: emit(interleave(Yb(2), wrl(1), 6))
            emit(interleave(Yb(3), [f"s_mul_i32 s{t+3}, s{sWAVE}, 80"] + aset(200, 210, f"s{t+3}")[:5] + wrl(2) + aset(200, 210, "0")[5:]))
            a(f"s_add_u32 s{t+3}, s{t+3}, 64")
            emit(aset(205, 210, f"s{t+3}")[:8] + wrl(3) + aset(205, 210, "0")[8:])
            a("s_waitcnt lgkmcnt(0)\ns_barrier")
            rsum([(200, None, 0), (205, "s_mov_b64 exec, 0xffff", 64)])
            a.label(lj)
            a("s_waitcnt lgkmcnt(0)\ns_barrier")
            self.stamp(9)
            rsum([(170, "s_mov_b32 exec_hi, 0xff", 128 - 48)])
            return
        emit(interleave(Yb(0), rd[:25]))
        prio(7)
        emit(interleave(Yb(1), rd[25:] + wrl(0), 2))
        prio(8)
        emit(interleave(Yb(2), wrl(1), 6))
        emit(interleave(Yb(3), wrl(2), 6))
        a("s_nop 4")
        emit(wrl(3))
        a("s_waitcnt lgkmcnt(0)\ns_barrier")
        self.stamp(9)
        if RED == 0:
            for k in range(2):
                if k == 1: a("s_mov_b64 exec, 0xffff")
                R = 64*k
                for w in range(8):
                    for par in range(2):
                        base = [RA + k, RA + 6 + k, RA + 8 + k][w // 3]
                        a(f"ds_read_b128 v[{R+8*w+4*par}:{R+8*w+4*par+3}], v{base} offset:{20480*(w % 3) + 10240*par}")
            a("s_mov_b64 exec, -1")
            for k in range(2):
                R = 64*k
                a(f"s_waitcnt lgkmcnt({15 if k == 0 else 0})")
                for pairs in (((0, 4), (1, 5), (2, 6), (3, 7)), ((0, 2), (1, 3)), ((0, 1),)):
                    for x, y in pairs:
                        for j in range(4):
                            a(f"v_pk_add_f32 v[{R+8*x+2*j}:{R+8*x+2*j+1}], v[{R+8*x+2*j}:{R+8*x+2*j+1}], v[{R+8*y+2*j}:{R+8*y+2*j+1}]")
                if k == 0: a("s_waitcnt vmcnt(0)")
                for j in range(8): a(f"v_mul_f32 v{R+j}, v{TA+2+k}, v{R+j}")
                for j in range(4): a(f"v_cvt_pk_bf16_f32 v{R+j}, v{R+2*j}, v{R+2*j+1}")
                if k == 1: a("s_mov_b64 exec, 0xffff")
                a(f"buffer_store_dwordx4 v[{R}:{R+3}], v{RA+4+k}, s[{SRD_M}:{SRD_M+3}], s{t} offen {OUTFL}")
            a("s_mov_b64 exec, -1")


        else:
            items = [(k, w) for k in range(2) for w in range(8)]
            def rdp(n):
                k, w = items[n]
                base = [RA + k, RA + 6 + k, RA + 8 + k][w // 3]
                r = [f"ds_read_b128 v[{8*n+4*par}:{8*n+4*par+3}], v{base} offset:{20480*(w % 3) + 10240*par}" for par in range(2)]
                return r if k == 0 else ["s_mov_b64 exec, 0xffff"] + r + ["s_mov_b64 exec, -1"]
            AH = 6
            for n in range(AH): emit(rdp(n))
            for n, (k, w) in enumerate(items):
                if n + AH < 16: emit(rdp(n + AH))
                if w == 0: continue
                a(f"s_waitcnt lgkmcnt({2*min(AH, 15 - n)})")
                R = 64*k
                for j in range(4):
                    a(f"v_pk_add_f32 v[{R+2*j}:{R+2*j+1}], v[{R+2*j}:{R+2*j+1}], v[{8*n+2*j}:{8*n+2*j+1}]")
                if w == 7:
                    if k == 0: a("s_waitcnt vmcnt(0)")
                    for j in range(8): a(f"v_mul_f32 v{R+j}, v{TA+2+k}, v{R+j}")
                    for j in range(4): a(f"v_cvt_pk_bf16_f32 v{R+j}, v{R+2*j}, v{R+2*j+1}")
                    if k == 1: a("s_mov_b64 exec, 0xffff")
                    a(f"buffer_store_dwordx4 v[{R}:{R+3}], v{RA+4+k}, s[{SRD_M}:{SRD_M+3}], s{t} offen {OUTFL}")
            a("s_mov_b64 exec, -1")


DOC = """
; ------------------------------------------------------------------------------------------------
;   P  blocks: 192 hidden columns -> mish -> d_ws (MFMA fragment order); spare tile = phi(q) or the gate.
;   mish(h) = h*tanh(softplus(h)) = h - h*2/((1+e^h)^2+1);  phi(t) = max(min(e^t,1), t+1) + 1e-6.
; ------------------------------------------------------------------------------------------------
"""

def descriptor(name):
    return f""".p2align 6
.amdhsa_kernel {name}
  .amdhsa_next_free_vgpr 256
  .amdhsa_next_free_sgpr 102
  .amdhsa_accum_offset 256
  .amdhsa_group_segment_fixed_size 0
  .amdhsa_kernarg_size 88
  .amdhsa_user_sgpr_count 2
  .amdhsa_user_sgpr_kernarg_segment_ptr 1
  .amdhsa_system_sgpr_workgroup_id_x 1
.end_amdhsa_kernel
"""

def build(stamps):
    ALT = 72 if ADPRE == 2 else None
    assert not (ADPRE == 2 and NE16)
    assert not LFLAG or (ROT2 == "none" and PQAT == 1 and not EARLYQ and WOPOS != "pre")
    g = Gen(stamps=stamps)
    a = g.a
    K = NAME + "_kernel"
    hdr = open(os.path.join(os.path.dirname(os.path.abspath(__file__)), "header.txt")).read()
    for l in hdr.strip().split("\n"): a.lines.append(l)
    a(f"; @launch grid=(256,1,1) block=(512,1,1) lds={LDS_TOTAL}")
    for l in DOC.strip().split("\n"): a.lines.append(l)
    a('.amdgcn_target "amdgcn-amd-amdhsa--gfx950"\n.text')
    a(f".globl {K}\n.p2align 8\n.type {K},@function")
    a.label(K)
    g.common_prologue("L_end")
    a(f"s_cmp_lt_u32 s{sWAVE}, 4\ns_cbranch_scc1 L_comp")
    g.loader1()
    a(f"s_setprio {LPRIO}")
    if not NE16:
        g.setup2(ADPRE != 2)
        g.srd(SRD_WS, pWS, WS_SIZE)
    g.preload_b(NE16, NL0, alt=ALT)
    if K1LDS: a(f"v_mov_b32 v76, {K1C}\nv_mov_b32 v77, 0\nds_write_b32 v76, v77\ns_waitcnt lgkmcnt(0)")
    a("s_barrier")
    if SKEW: a(f"v_mov_b32 v6, {HINT}\nv_mov_b32 v8, 0\nv_mov_b32 v9, 0\nv_mov_b32 v10, 0\nv_mov_b32 v11, 0\nds_write_b128 v6, v[8:11]\ns_waitcnt lgkmcnt(0)")
    g.preload_b(NL0, NL1, TH, alt=ALT)
    if not K1LDS: a(f"s_cmp_lg_u32 s{sTYPE}, 0\ns_cbranch_scc1 L_l2\ns_barrier")
    a.label("L_l2")
    if DIAG != 3: g.preload_b(NL1, 5*NB, TH, alt=ALT)
    if BLDS and DIAG != 3: g.stage_b()
    g.stamp(3)
    a.label("L_g2")
    g.gemm2()
    g.dump_stamps()
    a.label("L_end")
    a("s_endpgm")
    a.label("L_comp")
    a(f"s_cmp_eq_u32 s{sTYPE}, 0\ns_cbranch_scc1 L_kv")
    g.compute_P(); a("s_branch L_g2")
    a.label("L_kv")
    g.compute_KV(); a("s_branch L_g2")
    a.label("L_code_end")
    errs = lint(a.lines)
    for e in errs: print("HAZARD:", e, file=sys.stderr)
    return a.text() + '.section .rodata,"a"\n' + descriptor(K)

if __name__ == "__main__":
    open(sys.argv[1], "w").write(build(sys.argv[2] if len(sys.argv) > 2 else False))
```

```python
import sys, os, re
sys.path.insert(0, os.path.dirname(os.path.abspath(__file__)))
from asmlib import *

NAME = "gated_mix__linear_attn_block__dense_activation_mish__prompt"
ENV = os.environ.get

CNT_ACT, CNT_PQ, CNT_KV = 0, 256*128, 288*128
DONE_KV, DONE_PQ = 320*128, 328*128
WS_G = 0x10000
WS_KVP = 0x100000
WS_WOR = 0x200000
WS_W2R = 0x300000
WS_PQ = 0x500000
WS_ACT = 0x800000
WS_SIZE = 0x1000000
WS_STAMP = 0x8000000
BIG = 0x20000000
DBGW = int(ENV("DBGW", "0"))
ROTMODE = ENV("ROT", "tab")
ROT2 = ENV("ROT2", "none")
NPRE = int(ENV("NPRE", "10"))
SPIN = int(ENV("SPIN", str(0x100000)))
WOAT = 3
ADPRE = int(ENV("ADPRE", "2"))
KVAT = int(ENV("KVAT", "-1"))
GSYNC = int(ENV("GSYNC", "0"))
PF = int(ENV("PF", "0"))
RS = int(ENV("RS", "3"))
S1AT = int(ENV("S1AT", "8"))
S1SLEEP = int(ENV("S1SLEEP", "2"))
LOOPDBG = int(ENV("LOOPDBG", "0"))
CPF = int(ENV("CPF", "1"))
RD = int(ENV("RD", "-1"))
SKEW = int(ENV("SKEW", "0"))
HINT = 3*20480 + 12800
TAILDBG = int(ENV("TAILDBG", "0"))
OUTFL = ENV("OUTFL", "").replace("_", " ")
LFLAG = int(ENV("LFLAG", "0"))
FAKE = int(ENV("FAKE", "0"))
SPLIT = int(ENV("SPLIT", "1"))
YSLEEP = int(ENV("YSLEEP", "8"))
PQAT = int(ENV("PQAT", "1"))
FILLI = int(ENV("FILLI", "1"))
FIRST0 = int(ENV("FIRST0", "0"))
PRIO = ENV("PRIO", "c")
LOOK = ENV("LOOK", "xw")
GBR = int(ENV("GBR", "0"))
STPRIO = int(ENV("STPRIO", "1"))
NRE = int(ENV("NRE", "20"))
SPREAD = int(ENV("SPREAD", "0"))
NE16 = int(ENV("NE16", "0"))
NL1 = int(ENV("NL1", "18"))
K1LDS = int(ENV("K1LDS", "1"))
K1C = 40960 + 2032
FVAT = int(ENV("FVAT", "0"))
WOPOS = ENV("WOPOS", "x")
RED = int(ENV("RED", "2"))
DIAG = int(ENV("DIAG", "0"))
LPRIO = int(ENV("LPRIO", "0"))
EPRIO = int(ENV("EPRIO", "0"))
TH = int(ENV("TH", "4"))
EARLYQ = int(ENV("EARLYQ", "0"))
NB = int(ENV("NB", "5"))
NTH = int(ENV("NTH", "36"))
XSPLIT = [int(v) for v in ENV("XSPLIT", "30,55,80").split(",")]
LRP = int(ENV("LRP", "0"))
MBOX = 161792
STRICTP = int(ENV("STRICTP", "1"))
LATEORD = int(ENV("LATEORD", "0"))
B20AT = int(ENV("B20AT", "14"))
MAP1 = ENV("MAP1", "h")
ROTQ = int(ENV("ROTQ", "1"))
RG = int(ENV("RG", "5"))
RX = int(ENV("RX", "2"))
RTAB = [int(c) for c in ENV("RTAB", "05050505")]
XTAB = [int(c) for c in ENV("XTAB", "01122334")]
RTABP = [int(c) for c in ENV("RTABP", ENV("RTAB", "05050505"))]
RCM = int(ENV("RCM", "1"))
NOE1 = int(ENV("NOE1", "0"))
ATP = int(ENV("ATP", "2"))
FAST0 = int(ENV("FAST0", "1"))
LP2 = int(ENV("LP2", "2"))
CP = int(ENV("CP", "0"))
NRK = int(ENV("NRK", "24"))
LARR = int(ENV("LARR", "2"))
A2L = int(ENV("A2L", "0"))
EARLYA = int(ENV("EARLYA", "0"))
B1M = int(ENV("B1M", "0"))
APRE = int(ENV("APRE", "0"))
R1E = int(ENV("R1E", "0"))
PLA = int(ENV("PLA", "16"))
QLAST = int(ENV("QLAST", "0"))
NPL = int(ENV("NPL", "1"))
KVD = int(ENV("KVD", "0"))
KVL = int(ENV("KVL", "0"))
FSL = int(ENV("FSL", "8"))
DONE = int(ENV("DONE", "0"))
KQF = int(ENV("KQF", "0"))
PICK = int(ENV("PICK", "0"))
SLEEP = int(ENV("SLEEP", "8"))
BLDS = int(ENV("BLDS", "1"))
NL0 = int(ENV("NL0", "15"))
MAP2 = ENV("MAP2", "x2")
TOUCH = int(ENV("TOUCH", "0"))
MSDBG = int(ENV("MSDBG", "0"))
MSPRIO = int(ENV("MSPRIO", "1"))
MSPRIO2 = int(ENV("MSPRIO2", "1"))

XR = 0
STG = 40960
WR = 49152
WSLOT = 14336
NS = 6
GATE = WR + NS * WSLOT
SCR = GATE + 2048
MS = WR
BL = WR + 32768
BLF = STG + 2040
LDS_TOTAL = 163840

sWG = 2
pX, pWQKV, pWO, pW1, pB1, pW2, pGATE, pOUT, pDBG, pWS = 4, 6, 8, 12, 14, 16, 18, 20, 22, 24
sWAVE, sRB, sHALF, sCBL, sGRP, sF1, sROT, sPIDX, sTYPE, sT = 26, 27, 28, 29, 30, 31, 32, 33, 34, 35
SRD_WS, SRD_X, SRD_W, SRD_M, SRD_D = 36, 40, 44, 52, 56
T0 = 60
sST = 76
cL2E, cC, cE = 96, 98, 100
sR64, sC = 27, 28
sB0, sA0 = 40, 46
sPQb, sMb, sKv, sFk = 0, 1, 3, 29
sFa, sFq = 10, 11
BS, AB = 80, 200
PQR, MR, KA, KD = 80, 120, 120, 176
sLB, sN208 = 30, 33
vG, vP, vL16, vL16b = 248, 252, 254, 255
WSR = f"s[{SRD_WS}:{SRD_WS+3}]"


class Gen:
    def __init__(self, stamps=False):
        self.a = Asm()
        self.stamps = stamps

    def stamp(self, k, loop=False):
        if loop == "tail":
            if not TAILDBG: return
        elif TAILDBG and 1 <= k <= 7 and not (TAILDBG == 2 and k == 6): return
        elif LOOPDBG and k >= 3 and not loop: return
        elif loop and not LOOPDBG: return
        if self.stamps and not (self.stamps == "dbg" and k == 9):
            if k < 2 and self.stamps != "dbg" and loop != "tail":
                self.a(f"s_memtime s[58:59]\ns_waitcnt lgkmcnt(0)\ns_mov_b32 s{sST+2*k}, s58")
            else:
                self.a(f"s_memtime s[{sST+2*k}:{sST+2*k+1}]")

    def srd(self, d, ptr, size, add=None):
        a = self.a
        if add is None:
            a(f"s_mov_b32 s{d}, s{ptr}\ns_mov_b32 s{d+1}, s{ptr+1}")
        else:
            a(f"s_add_u32 s{d}, s{ptr}, {add}\ns_addc_u32 s{d+1}, s{ptr+1}, 0")
        a(f"s_mov_b32 s{d+2}, {size}\ns_mov_b32 s{d+3}, 0x20000")

    def signal(self, soff, v, off=0):
        self.a(f"v_mov_b32 v{v}, 1\nv_mov_b32 v{v+1}, 0\ns_mov_b64 exec, 1\nbuffer_atomic_add v{v}, v{v+1}, {WSR}, s{soff} offen offset:{off} sc1\ns_mov_b64 exec, -1")

    def arrive(self, soff, v):
        self.a(f"v_mov_b32 v{v}, 1\nv_mov_b32 v{v+1}, 0\ns_mov_b64 exec, 1\nbuffer_atomic_add v{v}, v{v+1}, {WSR}, s{soff} offen sc0 sc1\ns_mov_b64 exec, -1")

    def raise_if_last(self, v, last, soff):
        a = self.a
        sk = a.newlabel("L_last")
        a(f"v_readfirstlane_b32 s{T0+14}, v{v}\nv_mov_b32 v{v}, 1\nv_mov_b32 v{v+1}, 0\ns_cmp_lg_u32 s{T0+14}, {last}\ns_cbranch_scc1 {sk}")
        a(f"s_mov_b64 exec, 1\nbuffer_store_dword v{v}, v{v+1}, {WSR}, s{soff} offen sc1\ns_mov_b64 exec, -1")
        a.label(sk)

    def poll(self, soff, target, va, vd, srd=SRD_WS, sleep=None):
        a = self.a
        t = T0 + 15
        loop, done = a.newlabel("L_poll"), a.newlabel("L_polld")
        a(f"s_mov_b32 s{t}, 0")
        a.label(loop)
        a(f"buffer_load_dword v{vd}, v{va}, s[{srd}:{srd+3}], {soff} offen sc1\ns_waitcnt vmcnt(0)")
        a(f"v_cmp_le_u32 vcc, {target}, v{vd}\ns_add_u32 s{t}, s{t}, 1\ns_nop 0")
        a(f"s_cmp_eq_u64 vcc, -1\ns_cbranch_scc1 {done}")
        a(f"s_sleep {SLEEP if sleep is None else sleep}\ns_cmp_lt_u32 s{t}, {SPIN}\ns_cbranch_scc1 {loop}")
        a.label(done)

    def dump_stamps(self):
        if not self.stamps:
            return
        a = self.a
        a("s_waitcnt vmcnt(0) lgkmcnt(0)")
        a(f"s_memrealtime s[{T0}:{T0+1}]\ns_memtime s[{T0+2}:{T0+3}]")
        if self.stamps == "dbg":
            self.srd(SRD_M, pDBG, 256)
            a("s_waitcnt lgkmcnt(0)\nv_mov_b32 v2, 0\ns_mov_b64 exec, 1")
            sk = a.newlabel("L_dbg")
            a(f"s_lshl_b32 s{T0+5}, s{sWG}, 3\ns_add_u32 s{T0+5}, s{T0+5}, s{sWAVE}\ns_cmp_lg_u32 s{T0+5}, {DBGW}\ns_cbranch_scc1 {sk}")
            for k in range(1, 10):
                a(f"s_sub_u32 s{T0+5}, s{sST+2*k}, s{sST}\nv_mov_b32 v{3+k}, s{T0+5}")
            a(f"s_sub_u32 s{T0+5}, s{T0+2}, s{sST}\nv_mov_b32 v13, s{T0+5}\ns_sub_u32 s{T0+5}, s{T0}, s94\nv_mov_b32 v14, s{T0+5}\nv_mov_b32 v15, s94")
            for k in range(3):
                a(f"buffer_store_dwordx4 v[{4+4*k}:{7+4*k}], v2, s[{SRD_M}:{SRD_M+3}], 0 offen offset:{16+16*k}")
            a.label(sk)
            a("s_waitcnt vmcnt(0)")
            return
        a(f"s_getreg_b32 s{T0+4}, hwreg(HW_REG_XCC_ID)")
        self.srd(SRD_M, pWS, 0x10000000)
        a("s_waitcnt lgkmcnt(0)")
        for k in range(10):
            a(f"v_mov_b32 v{k}, s{sST+2*k}")
        a(f"v_mov_b32 v10, s{T0}\nv_mov_b32 v11, s{T0+2}\nv_mov_b32 v12, s{T0+4}\nv_mov_b32 v13, s{sTYPE}\nv_mov_b32 v14, s77\nv_mov_b32 v15, s79")
        a(f"s_lshl_b32 s{T0+5}, s{sWG}, 3\ns_add_u32 s{T0+5}, s{T0+5}, s{sWAVE}\ns_lshl_b32 s{T0+5}, s{T0+5}, 6\ns_add_u32 s{T0+5}, s{T0+5}, {WS_STAMP}")
        a("v_mov_b32 v16, 0\ns_mov_b64 exec, 1")
        for k in range(4):
            a(f"buffer_store_dwordx4 v[{4*k}:{4*k+3}], v16, s[{SRD_M}:{SRD_M+3}], s{T0+5} offen offset:{16*k}")
        a("s_waitcnt vmcnt(0)")

    def common_prologue(self, endlabel):
        a = self.a
        t = T0
        a(f"s_cmp_ge_u32 s{sWG}, 256\ns_cbranch_scc1 {endlabel}")
        a("s_load_dwordx16 s[4:19], s[0:1], 0\ns_load_dwordx4 s[20:23], s[0:1], 64\ns_load_dwordx2 s[24:25], s[0:1], 80")
        if self.stamps:
            for k in range(10): a(f"s_mov_b32 s{sST+2*k}, 0")
            if self.stamps == "dbg": a("s_memrealtime s[94:95]")
            else: a("s_memrealtime s[56:57]\ns_memtime s[58:59]\ns_waitcnt lgkmcnt(0)\ns_mov_b32 s77, s56\ns_mov_b32 s79, s58")
        if CPF:
            sk = a.newlabel("L_cpf")
            a(f"s_getpc_b64 s[{t}:{t+1}]\nL_pc0:\ns_lshr_b32 s{t+2}, s{sWG}, 3\ns_lshl_b32 s{t+2}, s{t+2}, 11\nv_lshlrev_b32 v2, 4, v0\nv_add_u32 v2, s{t+2}, v2")
            a(f"v_cmp_gt_u32 vcc, 128, v0\nv_min_u32 v2, L_code_end-L_pc0-16, v2\ns_and_saveexec_b64 s[{t+4}:{t+5}], vcc\ns_cbranch_execz {sk}")
            a(f"global_load_dwordx4 v[248:251], v2, s[{t}:{t+1}]")
            a.label(sk)
            a(f"s_mov_b64 exec, s[{t+4}:{t+5}]")
        a("v_lshrrev_b32 v1, 6, v0\nv_and_b32 v0, 63, v0")
        a(f"v_readfirstlane_b32 s{sWAVE}, v1")
        if MAP1 == "h":
            a(f"s_bfe_u32 s{t+2}, s{sWG}, 0x20001\ns_bfe_u32 s{t+3}, s{sWG}, 0x20003")
            a(f"s_lshl2_add_u32 s{sRB}, s{t+2}, s{t+3}\ns_and_b32 s{sHALF}, s{sWG}, 1\ns_lshr_b32 s{sCBL}, s{sWG}, 5")
            a(f"s_and_b32 s{t}, s{sCBL}, 3\ns_lshl2_add_u32 s{sGRP}, s{sHALF}, s{t}\ns_lshr_b32 s{sTYPE}, s{sCBL}, 2")
        else:
            bx, bh, b0 = {"q": (2, 1, 0), "q2": (0, 2, 1), "q3": (1, 2, 0)}[MAP1]
            a(f"s_bfe_u32 s{t+2}, s{sWG}, {0x10000 + bx:#x}\ns_bfe_u32 s{t+3}, s{sWG}, 0x30003\ns_lshl3_add_u32 s{sRB}, s{t+2}, s{t+3}")
            a(f"s_bfe_u32 s{sHALF}, s{sWG}, {0x10000 + bh:#x}\ns_lshr_b32 s{sTYPE}, s{sWG}, 7\ns_bfe_u32 s{t}, s{sWG}, 0x10006\ns_bfe_u32 s{t+1}, s{sWG}, {0x10000 + b0:#x}")
            a(f"s_lshl1_add_u32 s{t+4}, s{t+1}, s{t}\ns_lshl1_add_u32 s{t+5}, s{t}, s{t+1}\ns_cmp_eq_u32 s{sTYPE}, 0\ns_cselect_b32 s{t}, s{t+4}, s{t+5}")
            a(f"s_lshl2_add_u32 s{sCBL}, s{sTYPE}, s{t}\ns_lshl2_add_u32 s{sGRP}, s{sHALF}, s{t}")
        if ROTMODE == "tab":
            tab = sum(v << (4*n) for n, v in enumerate(RTAB))
            xtab = sum(v << (4*n) for n, v in enumerate(XTAB))
            a(f"s_lshr_b32 s{t+4}, s{sWG}, {6 if MAP1 != 'h' else 5}\ns_mul_i32 s{t+4}, s{t+4}, {RCM}\ns_add_u32 s{t+4}, s{t+4}, s{t+3}\ns_and_b32 s{t+4}, s{t+4}, 7\ns_lshl_b32 s{t+4}, s{t+4}, 2")
            tabp = sum(v << (4*n) for n, v in enumerate(RTABP))
            if tabp != tab: a(f"s_mov_b32 s{t+5}, {tabp:#x}\ns_cmp_eq_u32 s{sTYPE}, 0\ns_cselect_b32 s{t+5}, {tab:#x}, s{t+5}\ns_lshr_b32 s{t+4}, s{t+5}, s{t+4}\ns_and_b32 s{t+4}, s{t+4}, 15")
            else: a(f"s_lshr_b32 s{t+4}, {tab:#x}, s{t+4}\ns_and_b32 s{t+4}, s{t+4}, 15")
            a(f"s_and_b32 s{t+5}, s{sWG}, 7\ns_lshl_b32 s{t+5}, s{t+5}, 2\ns_lshr_b32 s{t+5}, {xtab:#x}, s{t+5}\ns_and_b32 s{t+5}, s{t+5}, 15\ns_add_u32 s{sROT}, s{t+4}, s{t+5}")
            if max(RTAB + RTABP) + max(XTAB) >= 10: a(f"s_sub_u32 s{t+4}, s{sROT}, 10\ns_cmp_ge_u32 s{sROT}, 10\ns_cselect_b32 s{sROT}, s{t+4}, s{sROT}")
        elif ROTMODE == "full":
            a(f"s_mul_i32 s{t+4}, s{t+3}, 5\ns_add_u32 s{t+4}, s{t+4}, 1\ns_lshr_b32 s{t+4}, s{t+4}, 1")
            a(f"s_add_u32 s{t+4}, s{t+4}, s{sCBL}\ns_add_u32 s{t+4}, s{t+4}, s{t+2}")
            a(f"s_mul_i32 s{t+5}, s{sHALF}, 5\ns_add_u32 s{sROT}, s{t+4}, s{t+5}")
            for _ in range(2):
                a(f"s_sub_u32 s{t+4}, s{sROT}, 10\ns_cmp_ge_u32 s{sROT}, 10\ns_cselect_b32 s{sROT}, s{t+4}, s{sROT}")
        elif ROTMODE == "none":
            a(f"s_mov_b32 s{sROT}, 0")
        elif ROTMODE == "xcd":
            a(f"s_mul_i32 s{t+4}, s{t+2}, 5\ns_add_u32 s{t+4}, s{t+4}, 1\ns_lshr_b32 s{t+4}, s{t+4}, 1\ns_add_u32 s{sROT}, s{t+4}, s{sHALF}")
        elif ROTMODE == "two0":
            a(f"s_add_u32 s{t+4}, s{t+3}, s{sCBL}\ns_and_b32 s{t+4}, s{t+4}, 1\ns_mul_i32 s{sROT}, s{t+4}, 5")
        elif ROTMODE == "two1":
            a(f"s_add_u32 s{t+4}, s{t+3}, s{sCBL}\ns_and_b32 s{t+4}, s{t+4}, 1\ns_mul_i32 s{t+4}, s{t+4}, 5\ns_and_b32 s{t+5}, s{t+2}, 1\ns_lshl1_add_u32 s{sROT}, s{t+5}, s{t+4}")
        elif ROTMODE == "two":
            a(f"s_add_u32 s{t+4}, s{t+3}, s{sCBL}\ns_and_b32 s{t+4}, s{t+4}, 1\ns_mul_i32 s{t+4}, s{t+4}, 5")
            a(f"s_add_u32 s{t+4}, s{t+4}, s{t+2}\ns_add_u32 s{sROT}, s{t+4}, s{sHALF}")

    def loader1(self):
        a = self.a
        t = T0
        sLW = sT
        vXE, vXO, vW, vGt = 2, 3, 4, 8
        sStr, sCol, sA32, sA64, sOff, sXo, sWB, sWB2, sXB, sXP, sSel = 48, 49, 50, 51, t+4, t+5, t+6, t+7, t+8, t+9, t+10
        sKind = 72
        a(f"s_setprio 2\ns_sub_u32 s{sLW}, s{sWAVE}, 4")
        a("v_lshrrev_b32 v10, 3, v0\nv_and_b32 v11, 7, v0\nv_lshrrev_b32 v12, 4, v0\nv_mul_u32_u24 v13, 1280, v10\nv_xor_b32 v14, v11, v12")
        a(f"s_and_b32 s{t}, s{sLW}, 1\ns_lshl_b32 s{t}, s{t}, 6")
        a(f"v_lshl_add_u32 v13, v14, 4, v13\nv_xor_b32 v{vXE}, s{t}, v13\nv_xor_b32 v{vXO}, 64, v{vXE}")
        if FAST0: a("v_mov_b32 v16, v13\nv_xor_b32 v17, 64, v13")
        if FIRST0: a(f"s_mov_b32 s{sA32}, 0\ns_mov_b32 s{sA64}, 0\ns_min_u32 s{sROT}, s{sROT}, 8")
        else: a(f"s_lshl_b32 s{sA32}, s{sROT}, 1\ns_mov_b32 s{sA64}, s{sROT}")
        a(f"s_mul_i32 s{sXB}, s{sLW}, 3072\ns_mul_i32 s{sXP}, s{sLW}, 30720")
        for k in range(6, 10): a(f"v_mov_b32 v{k}, {BIG}")
        if FAST0: a(f"s_mov_b32 s{sWB2}, 0")
        lKV, lQH, lLN, lJ = a.newlabel("L_wkv"), a.newlabel("L_wqh"), a.newlabel("L_wln"), a.newlabel("L_wj")
        a(f"s_cmp_eq_u32 s{sTYPE}, 0\ns_cbranch_scc1 {lKV}")
        a(f"s_cmp_eq_u32 s{sLW}, 3\ns_cbranch_scc1 {lQH}")
        a(f"s_mov_b32 s{sSel}, 1\ns_mov_b32 s{sStr}, 3072\ns_mul_i32 s{sCol}, s{sGRP}, 3\ns_add_u32 s{sCol}, s{sCol}, s{sLW}\ns_lshl_b32 s{sCol}, s{sCol}, 7\ns_lshl_b32 s{sWB}, s{sLW}, 12")
        a.label(lLN)
        a(f"v_and_b32 v13, 4, v10\nv_add_u32 v13, v13, v10\nv_mul_u32_u24 v13, s{sStr}, v13\nv_lshlrev_b32 v12, 1, v12\nv_xor_b32 v12, v11, v12\nv_lshl_add_u32 v{vW}, v12, 4, v13")
        a(f"s_lshl_b32 s{t}, s{sStr}, 4\ns_lshl_b32 s{t+1}, s{sStr}, 2\nv_add_u32 v{vW+1}, s{t}, v{vW}\nv_add_u32 v{vW+2}, s{t+1}, v{vW}\nv_add_u32 v{vW+3}, s{t}, v{vW+2}")
        a(f"s_branch {lJ}")
        a.label(lQH)
        a(f"s_mov_b32 s{sSel}, 0\ns_mov_b32 s{sStr}, 3840\ns_lshl_b32 s{sCol}, s{sHALF}, 1\ns_add_u32 s{sCol}, s{sCol}, s{sCBL}\ns_add_u32 s{sCol}, s{sCol}, 12\ns_lshl_b32 s{sCol}, s{sCol}, 6")
        a(f"s_cmp_lt_u32 s{sCBL}, 6\ns_cselect_b32 s{sCol}, s{sCol}, {BIG}\ns_mov_b32 s{sWB}, 12288\ns_mov_b32 s{sWB2}, 13312")
        a(f"v_lshrrev_b32 v10, 2, v0\nv_and_b32 v13, 12, v10\nv_add_u32 v13, v13, v10\nv_mul_u32_u24 v13, 3840, v13\nv_and_b32 v11, 3, v0\nv_and_b32 v12, 1, v12\nv_lshlrev_b32 v12, 1, v12\nv_xor_b32 v12, v11, v12")
        a(f"v_lshl_add_u32 v{vW}, v12, 4, v13\nv_add_u32 v{vW+1}, 15360, v{vW}")
        a(f"s_lshl_b32 s{t}, s{sROT}, 3\nv_mov_b32 v14, {BIG}")
        for j in range(2):
            if FIRST0:
                a(f"v_add_u32 v10, {64*j}, v0\nv_add_u32 v11, s{t}, v10\nv_subrev_u32 v12, 72, v11\nv_cmp_gt_u32 vcc, 80, v11\ns_nop 1\nv_cndmask_b32 v11, v12, v11, vcc\nv_cmp_gt_u32 vcc, 8, v10\ns_nop 1\nv_cndmask_b32 v11, v11, v10, vcc")
                a(f"v_cmp_gt_u32 vcc, 80, v10\nv_lshlrev_b32 v11, 4, v11\ns_nop 0\nv_cndmask_b32 v{vGt+j}, v14, v11, vcc")
            else:
                a(f"v_add_u32 v10, {64*j}, v0\nv_add_u32 v11, s{t}, v10\nv_cmp_gt_u32 vcc, 80, v10\nv_subrev_u32 v12, 80, v11\nv_min_u32 v11, v11, v12\nv_lshlrev_b32 v11, 4, v11\nv_cndmask_b32 v{vGt+j}, v14, v11, vcc")
        a(f"s_branch {lJ}")
        a.label(lKV)
        a(f"s_mov_b32 s{sSel}, 0\ns_mov_b32 s{sStr}, 3840\ns_mul_i32 s{sWB}, s{sLW}, 5120\ns_lshl_b32 s{sCol}, s{sGRP}, 7")
        a(f"s_cmp_eq_u32 s{sLW}, 2\ns_cbranch_scc1 {lLN}")
        a(f"s_mul_i32 s{sCol}, s{sGRP}, 160\ns_cmp_eq_u32 s{sLW}, 1\ns_cselect_b32 s{t}, 2560, 1280\ns_add_u32 s{sCol}, s{sCol}, s{t}")
        a(f"s_cmp_eq_u32 s{sLW}, 3\ns_cselect_b32 s{t}, 256, 0\ns_cselect_b32 s{sWB}, 4096, s{sWB}\ns_mov_b32 s{sWB2}, 9216")
        a(f"v_add_u32 v14, s{t}, v0")
        for j in range(4):
            a(f"v_add_u32 v10, {64*j}, v14\nv_mul_u32_u24 v11, 6554, v10\nv_lshrrev_b32 v11, 16, v11\nv_mad_i32_i24 v10, v11, -10, v10")
            a("v_and_b32 v12, 12, v11\nv_and_b32 v13, 3, v11\nv_lshl_or_b32 v12, v12, 1, v13\nv_bfe_u32 v13, v11, 4, 1\nv_lshl_or_b32 v12, v13, 2, v12")
            a(f"v_mul_u32_u24 v12, 3840, v12\nv_lshl_add_u32 v{vW+j}, v10, 4, v12")
            if j == 0:
                a(f"v_add_u32 v{vW+1}, 1280, v{vW}\ns_cmp_eq_u32 s{sLW}, 3\ns_cbranch_scc1 {lJ}")
        a.label(lJ)
        a(f"s_lshl_b32 s{sStr}, s{sStr}, 5\ns_mul_i32 s{t}, s{sRB}, 163840")
        a("s_waitcnt lgkmcnt(0)")
        self.stamp(0)
        self.srd(SRD_X, pX, 163840, add=f"s{t}")
        if FAST0:
            a(f"s_mul_i32 s{sXo}, s{sLW}, 40960\ns_lshl_b32 s{t}, s{sA64}, 7\ns_add_u32 s{sXo}, s{sXo}, s{t}\ns_lshl_b32 s{t}, s{sLW}, 12")
            for j in range(4):
                a(f"s_add_u32 m0, s{t}, {XR + 1024*j}\n" + ("s_nop 0" if j == 0 else f"s_add_u32 s{sXo}, s{sXo}, 10240") + f"\nbuffer_load_dwordx4 v{16 + (j & 1)}, s[{SRD_X}:{SRD_X+3}], s{sXo} offen lds")
        a(f"s_cmp_eq_u32 s{sSel}, 0\ns_cselect_b32 s{SRD_W}, s{pWQKV}, s{pW1}\ns_cselect_b32 s{SRD_W+1}, s{pWQKV+1}, s{pW1+1}\ns_cselect_b32 s{SRD_W+2}, {640*1920*2}, {640*1536*2}\ns_mov_b32 s{SRD_W+3}, 0x20000")
        if FAST0:
            if FIRST0: a(f"s_add_u32 s{sA64}, s{sROT}, 1")
            else: a(f"s_add_u32 s{sA64}, s{sA64}, 1\ns_cmp_eq_u32 s{sA64}, 10\ns_cselect_b32 s{sA64}, 0, s{sA64}")
            g4, gj = a.newlabel("L_f4"), a.newlabel("L_fj")
            a(f"s_add_u32 s{t+1}, s{sWB}, 1024\ns_cmp_eq_u32 s{sLW}, 3\ns_cselect_b32 s{t+1}, s{sWB2}, s{t+1}\ns_cselect_b32 s{t+2}, s{sCBL}, 0\ns_cmp_ge_u32 s{t+2}, 6\ns_cbranch_scc1 {g4}")
            for i in range(2):
                sk = a.newlabel("L_f2")
                a(f"s_mul_i32 s{sOff}, s{sA32}, s{sStr}\ns_add_u32 m0, s{sWB}, {WR + i*WSLOT}\ns_add_u32 s{sOff}, s{sOff}, s{sCol}\nbuffer_load_dwordx4 v{vW}, s[{SRD_W}:{SRD_W+3}], s{sOff} offen lds")
                a(f"s_add_u32 m0, s{t+1}, {WR + i*WSLOT}\ns_cmp_eq_u32 s{sLW}, 3\nbuffer_load_dwordx4 v{vW+1}, s[{SRD_W}:{SRD_W+3}], s{sOff} offen lds\ns_cbranch_scc1 {sk}")
                for j in (2, 3):
                    a(f"s_add_u32 m0, s{sWB}, {WR + i*WSLOT + 1024*j}\ns_nop 0\nbuffer_load_dwordx4 v{vW+j}, s[{SRD_W}:{SRD_W+3}], s{sOff} offen lds")
                a.label(sk)
                if FIRST0 and i == 1: a(f"s_lshl1_add_u32 s{sA32}, s{sROT}, 2")
                else: a(f"s_add_u32 s{sA32}, s{sA32}, 1\ns_cmp_eq_u32 s{sA32}, 20\ns_cselect_b32 s{sA32}, 0, s{sA32}")
            a(f"s_branch {gj}")
            a.label(g4)
            self.srd(SRD_M, pGATE, 1280)
            for j in range(2):
                a(f"s_mov_b32 m0, {GATE + 1024*j}\ns_nop 0\nbuffer_load_dwordx4 v{vGt+j}, s[{SRD_M}:{SRD_M+3}], 0 offen lds")
            a.label(gj)
        lab3, lab4, labj = a.newlabel("L_ld3"), a.newlabel("L_ld4"), a.newlabel("L_ldj")
        lab0k, lab3k = a.newlabel("L_ld0k"), a.newlabel("L_ld3k")
        a(f"s_cmp_eq_u32 s{sLW}, 3\ns_cbranch_scc1 {lab3}")
        for variant, rp in (((0, 1), (0, 0), (3, 1), (3, 0), (4, 1)) if LRP else ((0, 0), (3, 0), (4, 0))):
            if LRP and (variant, rp) == (0, 1): a(f"s_cmp_eq_u32 s{sTYPE}, 0\ns_cbranch_scc1 {lab0k}")
            if LRP and (variant, rp) == (0, 0): a.label(lab0k)
            if LRP and (variant, rp) == (3, 0): a.label(lab3k)
            if variant == 3 and (rp or not LRP):
                a.label(lab3)
                a(f"s_cmp_ge_u32 s{sCBL}, 6\ns_cbranch_scc1 {lab4}")
                if LRP: a(f"s_cmp_eq_u32 s{sTYPE}, 0\ns_cbranch_scc1 {lab3k}")
            if variant == 4:
                a.label(lab4)
            nW = {0: 4, 3: 2, 4: 0}[variant]
            nX = 3 if variant == 0 else 7
            seq = []
            def issue_W(i):
                if nW == 0: return
                a(f"s_mul_i32 s{sOff}, s{sA32}, s{sStr}")
                for j in range(nW):
                    base, off = (sWB, 1024*j) if variant == 0 else ((sWB, sWB2)[j], 0)
                    a(f"s_add_u32 m0, s{base}, {WR + (i % NS)*WSLOT + off}")
                    a(f"s_add_u32 s{sOff}, s{sOff}, s{sCol}" if j == 0 else "s_nop 0")
                    a(f"buffer_load_dwordx4 v{vW+j}, s[{SRD_W}:{SRD_W+3}], s{sOff} offen lds")
                    seq.append(("W", i))
                if FIRST0 and i == 1: a(f"s_lshl1_add_u32 s{sA32}, s{sROT}, 2")
                else: a(f"s_add_u32 s{sA32}, s{sA32}, 1\ns_cmp_eq_u32 s{sA32}, 20\ns_cselect_b32 s{sA32}, {2 if FIRST0 else 0}, s{sA32}")
            def issue_X(jx):
                a(f"s_lshl_b32 s{sXo}, s{sA64}, 7")
                for j in range(nX):
                    a(f"s_add_u32 m0, s{sXB}, {XR + (jx % 3)*16384 + 1024*j}")
                    a(f"s_add_u32 s{sXo}, s{sXo}, " + (f"s{sXP}" if j == 0 else "10240"))
                    a(f"buffer_load_dwordx4 v{vXE + (j & 1)}, s[{SRD_X}:{SRD_X+3}], s{sXo} offen lds")
                    seq.append(("X", jx))
                if FIRST0 and jx == 0: a(f"s_add_u32 s{sA64}, s{sROT}, 1")
                else: a(f"s_add_u32 s{sA64}, s{sA64}, 1\ns_cmp_eq_u32 s{sA64}, 10\ns_cselect_b32 s{sA64}, {1 if FIRST0 else 0}, s{sA64}")
            def wait_for(items):
                last = max([n for n, it in enumerate(seq) if it in items] + [-1])
                if last >= 0: a(f"s_waitcnt vmcnt({len(seq) - 1 - last})")
            if FAST0:
                seq += [("X", 0)]*4 + [("W", 0)]*(nW if variant != 4 else 2) + [("W", 1)]*nW
            else:
                issue_X(0); issue_W(0)
                if variant == 4:
                    self.srd(SRD_M, pGATE, 1280)
                    for j in range(2):
                        a(f"s_mov_b32 m0, {GATE + 1024*j}\ns_nop 0\nbuffer_load_dwordx4 v{vGt+j}, s[{SRD_M}:{SRD_M+3}], 0 offen lds")
                        seq.append(("W", 0))
                issue_W(1)
            wait_for([("W", 0), ("X", 0)] + ([("W", 1)] if B1M == 1 else [])); self.stamp(1); a("s_barrier")
            issue_X(1)
            if B1M == 2: issue_W(2)
            if B1M == 3: issue_W(2); issue_W(3)
            if B1M != 1: wait_for([("W", 1)]); a("s_barrier")
            if B1M < 2: issue_W(2)
            if B1M < 3: issue_W(3)
            issue_X(2); issue_W(4)
            if LOOK == "full": issue_W(5)
            for j in range(1, 10):
                if j == (8 if NE16 else 9) and variant == 0:
                    sk = a.newlabel("L_s1skip")
                    a(f"s_cmp_lg_u32 s{sWAVE}, 4\ns_cbranch_scc1 {sk}")
                    self.srd(SRD_D, pDBG, 256)
                    a("v_mov_b32 v74, 128")
                    self.poll("0", 1, 74, 75, SRD_D, S1SLEEP)
                    a.label(sk)
                if rp and j == LRP + 2:
                    last = max(n for n, it in enumerate(seq) if it in (("W", 2*j), ("W", 2*j + 1), ("X", j)))
                    N = len(seq) - 1 - last
                    w1, w2, w3 = a.newlabel("L_wv"), a.newlabel("L_wv"), a.newlabel("L_wv")
                    a(f"s_cmp_eq_u32 s{sKind}, 1\ns_cbranch_scc1 {w1}\ns_cmp_eq_u32 s{sKind}, 2\ns_cbranch_scc1 {w2}\ns_waitcnt vmcnt({N})\ns_branch {w3}\n{w1}:\ns_waitcnt vmcnt({N+4})\ns_branch {w3}\n{w2}:\ns_waitcnt vmcnt({N+8})\n{w3}:")
                else:
                    wait_for([("W", 2*j), ("W", 2*j + 1), ("X", j)])
                if LARR and variant == 0 and j == S1AT//2 + LARR:
                    sk = a.newlabel("L_s1b")
                    a(f"s_cmp_lg_u32 s{sT+0}, 0\ns_cbranch_scc1 {sk}\ns_cmp_eq_u32 s{sTYPE}, 0\ns_cbranch_scc1 {sk}\nv_readfirstlane_b32 s{t}, v70\nv_mov_b32 v71, 1\ns_cmp_lg_u32 s{t}, 127\ns_cbranch_scc1 {sk}")
                    self.srd(SRD_D, pDBG, 256)
                    a(f"v_mov_b32 v69, 0\ns_mov_b64 exec, 1\nbuffer_store_dword v71, v69, s[{SRD_D}:{SRD_D+3}], 0 offen offset:128 sc1\ns_mov_b64 exec, -1")
                    a.label(sk)
                if rp and variant == 0 and j == LRP + 4:
                    sk = a.newlabel("L_s1b")
                    a(f"s_cmp_lg_u32 s{sWAVE}, 4\ns_cbranch_scc1 {sk}\nv_readfirstlane_b32 s{t}, v70\nv_mov_b32 v71, 1\ns_cmp_lg_u32 s{t}, 127\ns_cbranch_scc1 {sk}")
                    self.srd(SRD_D, pDBG, 256)
                    a(f"s_mov_b64 exec, 1\nbuffer_store_dword v71, v69, s[{SRD_D}:{SRD_D+3}], 0 offen offset:128 sc1\ns_mov_b64 exec, -1")
                    a.label(sk)
                a("s_barrier")
                if rp and j == LRP:
                    self.srd(SRD_WS, pWS, WS_SIZE)
                    sk = a.newlabel("L_z")
                    a(f"v_lshlrev_b32 v69, 4, v0\ns_cmp_ge_u32 s{sLW}, 2\ns_cbranch_scc1 {sk}\ns_lshl3_add_u32 s{t}, s{sRB}, s{sGRP}\ns_lshl_b32 s{t}, s{t}, 9\ns_mul_i32 s{t+1}, s{sLW}, {WS_KVP}\ns_add_u32 s{t}, s{t}, s{t+1}")
                    a("v_mov_b32 v64, 0\nv_mov_b32 v65, 0\nv_mov_b32 v66, 0\nv_mov_b32 v67, 0\ns_mov_b32 exec_hi, 0")
                    a(f"buffer_store_dwordx4 v[64:67], v69, {WSR}, s{t} offen sc1\ns_mov_b32 exec_hi, -1")
                    a.label(sk)
                if rp and variant == 0 and j == LRP + 3:
                    sk = a.newlabel("L_s1a")
                    a(f"s_cmp_lg_u32 s{sWAVE}, 4\ns_cbranch_scc1 {sk}")
                    self.srd(SRD_D, pDBG, 256)
                    a(f"v_mov_b32 v70, 1\ns_mov_b64 exec, 1\nbuffer_atomic_add v70, v69, s[{SRD_D}:{SRD_D+3}], 0 offen sc0 sc1\ns_mov_b64 exec, -1")
                    a.label(sk)
                if LOOK == "ramp" and j == 1: issue_W(5)
                if j + 1 < 10 and LOOK == "xw": issue_W(2*j + 3)
                if j + 2 < 10: issue_X(j + 2); issue_W(2*j + 4)
                if j + 2 < 10 and LOOK != "xw": issue_W(2*j + 5)
                if LARR and variant == 0 and j == S1AT//2:
                    sk = a.newlabel("L_s1a")
                    a(f"s_cmp_lg_u32 s{sT+0}, 0\ns_cbranch_scc1 {sk}\ns_cmp_eq_u32 s{sTYPE}, 0\ns_cbranch_scc1 {sk}")
                    self.srd(SRD_D, pDBG, 256)
                    a(f"v_mov_b32 v70, 1\nv_mov_b32 v69, 0\ns_mov_b64 exec, 1\nbuffer_atomic_add v70, v69, s[{SRD_D}:{SRD_D+3}], 0 offen sc0 sc1\ns_mov_b64 exec, -1")
                    a.label(sk)
                if rp and j == LRP:
                    a(f"s_lshl_b32 s{t}, s{sLW}, 6\ns_add_u32 s{t}, s{t}, {MBOX}\nv_mov_b32 v68, s{t}\nds_read_b128 v[16:19], v68\nds_read_b128 v[20:23], v68 offset:16\nds_read_b32 v24, v68 offset:32")
                    a(f"v_lshrrev_b32 v10, 2, v0\nv_and_b32 v11, 3, v0\nv_lshlrev_b32 v11, 3, v11\nv_lshl_add_u32 v10, v10, 7, v11\ns_lshl_b32 s{t}, s{sLW}, 12\ns_add_u32 s{t}, s{t}, {SCR}\nv_add_u32 v10, s{t}, v10")
                    for r in range(2):
                        for u in range(4):
                            a(f"ds_read_b64_tr_b16 v[{32+16*r+4*u}:{33+16*r+4*u}], v10 offset:{8192*r + 32*u}\nds_read_b64_tr_b16 v[{34+16*r+4*u}:{35+16*r+4*u}], v10 offset:{8192*r + 32*u + 2048}")
                    a(f"s_waitcnt lgkmcnt(0)\nv_readfirstlane_b32 s{sKind}, v24\nv_lshrrev_b32 v25, 1, v69")
                    for u in range(4): a(f"v_add_u32 v{16+u}, v{16+u}, v69")
                    for u in range(4):
                        a(f"buffer_store_dwordx4 v[{32+4*u}:{35+4*u}], v{16+u}, {WSR}, 0 offen sc1"); seq.append(("S", u))
                if rp and j == LRP + 1:
                    k2, k3 = a.newlabel("L_r2"), a.newlabel("L_r2")
                    a(f"s_cmp_eq_u32 s{sKind}, 0\ns_cbranch_scc1 {k2}\ns_cmp_eq_u32 s{sKind}, 2\ns_cbranch_scc1 {k3}")
                    for u in range(4): a(f"v_add_u32 v{20+u}, v{20+u}, v69\nbuffer_store_dwordx4 v[{48+4*u}:{51+4*u}], v{20+u}, {WSR}, 0 offen sc1")
                    a(f"s_branch {k2}\n{k3}:\ns_mov_b32 s{t}, 12800")
                    for u in range(4): a(f"v_add_u32 v{20+u}, v{20+u}, v25\nbuffer_store_dwordx2 v[{48+4*u}:{49+4*u}], v{20+u}, {WSR}, 0 offen sc1\nbuffer_store_dwordx2 v[{50+4*u}:{51+4*u}], v{20+u}, {WSR}, s{t} offen sc1")
                    a.label(k2)
                if ADPRE == 2 and 4 <= j < 8: self.adpart(j - 4)
                if j == 8 and NE16:
                    self.setup2()
                    self.srd(SRD_WS, pWS, WS_SIZE)
                    self.preload_b(0, NE16)
                    seq.extend(["B"] * NE16)
            if variant != 4:
                a(f"s_branch {labj}")
        a.label(labj)
        self.stamp(2)

    def mish_quad(self, h, dst, tmp):
        P = lambda r: f"v[{r}:{r+1}]"
        return [
            f"v_pk_fma_f32 {P(tmp)}, {P(h)}, s[{cL2E}:{cL2E+1}], -0.5 op_sel_hi:[1,1,0]",
            f"v_pk_fma_f32 {P(tmp+2)}, {P(h+2)}, s[{cL2E}:{cL2E+1}], -0.5 op_sel_hi:[1,1,0]",
            f"v_exp_f32 v{tmp}, v{tmp}", f"v_exp_f32 v{tmp+1}, v{tmp+1}", f"v_exp_f32 v{tmp+2}, v{tmp+2}", f"v_exp_f32 v{tmp+3}, v{tmp+3}",
            f"v_pk_add_f32 {P(tmp)}, {P(tmp)}, s[{cC}:{cC+1}]", f"v_pk_add_f32 {P(tmp+2)}, {P(tmp+2)}, s[{cC}:{cC+1}]",
            f"v_pk_fma_f32 {P(tmp)}, {P(tmp)}, {P(tmp)}, 0.5 op_sel_hi:[1,1,0]",
            f"v_pk_fma_f32 {P(tmp+2)}, {P(tmp+2)}, {P(tmp+2)}, 0.5 op_sel_hi:[1,1,0]",
            f"v_rcp_f32 v{tmp}, v{tmp}", f"v_rcp_f32 v{tmp+1}, v{tmp+1}", f"v_rcp_f32 v{tmp+2}, v{tmp+2}", f"v_rcp_f32 v{tmp+3}, v{tmp+3}",
            f"v_pk_fma_f32 {P(tmp)}, {P(h)}, {P(tmp)}, {P(h)} neg_lo:[1,0,0] neg_hi:[1,0,0]",
            f"v_pk_fma_f32 {P(tmp+2)}, {P(h+2)}, {P(tmp+2)}, {P(h+2)} neg_lo:[1,0,0] neg_hi:[1,0,0]",
            f"v_cvt_pk_bf16_f32 v{dst}, v{tmp}, v{tmp+1}", f"v_cvt_pk_bf16_f32 v{dst+1}, v{tmp+2}, v{tmp+3}",
        ]

    def phi_quad(self, h, dst, tmp):
        P = lambda r: f"v[{r}:{r+1}]"
        return [
            f"v_pk_mul_f32 {P(tmp)}, {P(h)}, s[{cL2E}:{cL2E+1}]", f"v_pk_mul_f32 {P(tmp+2)}, {P(h+2)}, s[{cL2E}:{cL2E+1}]",
            f"v_exp_f32 v{tmp}, v{tmp} clamp", f"v_exp_f32 v{tmp+1}, v{tmp+1} clamp", f"v_exp_f32 v{tmp+2}, v{tmp+2} clamp", f"v_exp_f32 v{tmp+3}, v{tmp+3} clamp",
            f"v_pk_add_f32 {P(h)}, {P(h)}, s[{cC}:{cC+1}]", f"v_pk_add_f32 {P(h+2)}, {P(h+2)}, s[{cC}:{cC+1}]",
            f"v_pk_add_f32 {P(tmp)}, {P(tmp)}, s[{cE}:{cE+1}]", f"v_pk_add_f32 {P(tmp+2)}, {P(tmp+2)}, s[{cE}:{cE+1}]",
            f"v_max_f32 v{tmp}, v{tmp}, v{h}", f"v_max_f32 v{tmp+1}, v{tmp+1}, v{h+1}", f"v_max_f32 v{tmp+2}, v{tmp+2}, v{h+2}", f"v_max_f32 v{tmp+3}, v{tmp+3}, v{h+3}",
            f"v_cvt_pk_bf16_f32 v{dst}, v{tmp}, v{tmp+1}", f"v_cvt_pk_bf16_f32 v{dst+1}, v{tmp+2}, v{tmp+3}",
        ]

    def consts(self, kind):
        if kind == "mish":
            self.a(f"s_mov_b32 s{cC}, 0x3f3504f3\ns_mov_b32 s{cC+1}, 0x3f3504f3")
        else:
            self.a(f"s_mov_b32 s{cC}, 0x3f800008\ns_mov_b32 s{cC+1}, 0x3f800008\ns_mov_b32 s{cE}, 0x358637bd\ns_mov_b32 s{cE+1}, 0x358637bd")

    def main_loop(self, reads, mfmas, extra, nread_end, bases):
        a = self.a
        if CP: a(f"s_setprio {CP}")
        a("s_barrier")
        self.stamp(1)
        for l in reads(0): a(l)
        for l in extra.get(0, ([], [], []))[1]: a(l)
        a("s_waitcnt lgkmcnt(0)")
        for i in range(1, 21):
            if ((i == 1 and B1M != 1) or i % 2 == 0) and i < 20: a("s_barrier")
            if i in (2, 4, 6, 8, 10, 14, 18): self.stamp(3 + (2, 4, 6, 8, 10, 14, 18).index(i), True)
            pre, fill, preb = extra.get(i, ([], [], []))
            for l in pre: a(l)
            if i < 20:
                tail = []
                if (i + 1) % 3 == 0 and i + 1 < 20:
                    op = "v_add_u32" if ((i + 1) % NS) == 3 else "v_subrev_u32"
                    tail = [f"{op} v{b}, {3*WSLOT}, v{b}" for b in bases]
                body = interleave(mfmas(i - 1), reads(i) + fill + tail, 0, nread_end)
                for l in body: a(l)
                for l in preb: a(l)
                a("s_waitcnt lgkmcnt(0)")
            else:
                m19 = mfmas(19)
                for l in m19[:B20AT] + ["s_barrier"] + m19[B20AT:]: a(l)
        self.stamp(2)

    def finish1(self, flags, strict=False, late8=False):
        a = self.a
        self.setup2()
        if LFLAG == 2 and late8: a(f"s_add_u32 s{flags[0]}, s{flags[0]}, 8")
        if LFLAG == 1:
            if late8: a(f"s_add_u32 s{flags[0]}, s{flags[0]}, 8")
            a(f"s_mov_b32 s32, s{flags[1]}")
            self.preload_b(0, NPRE)
            return
        if strict:
            if ADPRE == 2:
                a(f"s_mov_b32 s32, s{flags[1]}"); flags = [flags[0], 32]
                self.adblock()
            if KVD and not late8: return
            if QLAST and late8:
                k1, k2 = a.newlabel("L_q"), a.newlabel("L_q")
                a(f"s_cmp_ge_u32 s{flags[1]}, {BIG}\ns_cbranch_scc1 {k1}\ns_waitcnt vmcnt(2)")
                self.signal(flags[0], 70)
                a("s_waitcnt vmcnt(1)")
                self.signal(flags[1], 70)
                a(f"s_branch {k2}\n{k1}:\ns_waitcnt vmcnt(0)")
                self.signal(flags[0], 70)
                a.label(k2)
                self.stamp(5)
                flags = []
            else:
                a("s_waitcnt vmcnt(0)")
                self.stamp(5)
            if DONE:
                if late8: self.signal(flags[0], 70); a("v_mov_b32 v64, 0")
                else: self.arrive(flags[0], 64)
                self.arrive(flags[1], 66)
            else:
                for f in flags: self.signal(f, 70)
            if not NPL: self.preload_b(0, NPRE, alt=(72 if ADPRE == 2 else None))
            return
        self.preload_b(0, NPRE)
        a(f"s_waitcnt vmcnt({NPRE})")
        self.stamp(5)
        for f in flags: self.signal(f, 1)
        if not BLDS:
            self.preload_b(NPRE, 30)
            return

    def pickup(self):
        a = self.a
        t = T0
        sk = a.newlabel("L_pk")
        a(f"s_cmp_ge_u32 s{sWAVE}, 4\ns_cbranch_scc1 {sk}")
        a(f"s_mul_i32 s{t+14}, s{sWAVE}, 20480\ns_add_u32 s{t+14}, s{t+14}, {BL}\nv_add_u32 v{BS+117}, s{t+14}, v{vL16}")
        for n in range(5*NB - 10):
            a(f"ds_read_b128 v[{BS+40+4*n}:{BS+43+4*n}], v{BS+117} offset:{1024*n}")
        a.label(sk)

    def prefetch(self, vL, v, S=SRD_X):
        a = self.a
        t = T0
        for ptr, size, share, n in ((pX, 2048*1280, 10240, 3), (pWQKV, 640*3840, 9600, 3), (pW1, 640*3072, 7680, 2))[:(1 if PF == 2 else 3)]:
            self.srd(S, ptr, size)
            per = -(-share // 4 // 128) * 128
            a(f"s_mul_i32 s{t}, s{sWG}, {share}\ns_and_b32 s{t}, s{t}, 0xffffff80\ns_mul_i32 s{t+1}, s{sWAVE}, {per}\ns_add_u32 s{t}, s{t}, s{t+1}\ns_min_u32 s{t}, s{t}, {size - n*1024}")
            for k in range(n):
                a(f"buffer_load_dwordx4 v[{v}:{v+3}], v{vL}, s[{S}:{S+3}], s{t} offen offset:{1024*k}")

    def touch(self, vLane, v):
        a = self.a
        t = T0
        a(f"v_lshlrev_b32 v{v}, 21, v{vLane}\nv_add_u32 v{v}, 0xff000, v{v}\ns_mov_b64 exec, 0xff")
        a(f"buffer_load_dword v{v+1}, v{v}, {WSR}, 0 offen")
        self.srd(SRD_M, pOUT, 2048*640*2)
        a(f"v_lshlrev_b32 v{v}, 20, v{vLane}\ns_mov_b64 exec, 7\nbuffer_load_dword v{v+2}, v{v}, s[{SRD_M}:{SRD_M+3}], 0 offen")
        self.srd(SRD_M, pWO, 640*640*2)
        a(f"v_lshlrev_b32 v{v}, 19, v{vLane}\ns_mov_b64 exec, 3\nbuffer_load_dword v{v+3}, v{v}, s[{SRD_M}:{SRD_M+3}], 0 offen\ns_mov_b64 exec, -1")

    def compute_P(self):
        a = self.a
        t = T0
        ACC, XB, WB, BI = 0, 112, 144, 200
        vX0, vX1, vH0, vH1, vQ, vGt, vL, vRd, vRr, vBo, vT = 228, 229, 230, 231, 232, 233, 234, 235, 236, 237, 238
        vLane = 253
        sSH, sNH = sT, 48
        sAct, sPq, sF2, sGs = 49, 72, 73, 74
        a(f"v_mov_b32 v{vLane}, v0\ns_lshr_b32 s{sSH}, s{sWAVE}, 1\ns_and_b32 s{sNH}, s{sWAVE}, 1")
        a(f"v_and_b32 v1, 15, v0\nv_lshrrev_b32 v2, 4, v0\nv_lshrrev_b32 v3, 1, v1\nv_xor_b32 v3, v3, v2\nv_lshlrev_b32 v3, 4, v3\nv_lshl_add_u32 v3, v1, 7, v3")
        a(f"s_lshl_b32 s{t}, s{sSH}, 13\nv_add_u32 v{vX0}, s{t}, v3\nv_xor_b32 v{vX1}, 64, v{vX0}")
        a(f"v_lshrrev_b32 v3, 2, v0\nv_and_b32 v4, 3, v0\nv_lshlrev_b32 v4, 3, v4")
        a(f"v_lshl_add_u32 v5, v3, 7, v4\nv_bfe_u32 v6, v0, 3, 2\ns_lshl_b32 s{t}, s{sNH}, 1\nv_xor_b32 v6, s{t}, v6\nv_lshl_add_u32 v6, v6, 5, v5")
        a(f"v_add_u32 v{vH0}, {WR}, v6\nv_xor_b32 v{vH1}, 32, v{vH0}")
        a(f"v_lshl_add_u32 v6, v3, 6, v4\nv_and_b32 v7, 1, v2\nv_xor_b32 v7, s{sNH}, v7\nv_lshl_add_u32 v6, v7, 5, v6\nv_add_u32 v{vQ}, {WR+12288}, v6")
        a(f"v_lshlrev_b32 v6, 4, v2\nv_add_u32 v{vGt}, {GATE}, v6\nv_lshlrev_b32 v{vL}, 4, v0\nv_lshlrev_b32 v{vBo}, 3, v2")
        a(f"v_lshrrev_b32 v6, 3, v0\nv_mul_u32_u24 v6, 1280, v6\nv_and_b32 v7, 7, v0\nv_lshl_add_u32 v{vRd}, v7, 4, v6")
        a(f"s_lshl_b32 s{t}, s{sWAVE}, 12\ns_add_u32 s{t}, s{t}, {SCR}\nv_add_u32 v{vRr}, s{t}, v5")
        a(f"s_lshl3_add_u32 s{sPIDX}, s{sRB}, s{sGRP}")
        a(f"s_mov_b32 s{cL2E}, 0x3fb8aa3b\ns_mov_b32 s{cL2E+1}, 0x3fb8aa3b")
        a(f"s_lshl2_add_u32 s{t}, s{sPIDX}, s{sWAVE}\ns_min_u32 s{t}, s{t}, 479")
        a(f"s_mul_i32 s{t+1}, s{t}, 6554\ns_lshr_b32 s{t+1}, s{t+1}, 16\ns_mul_i32 s{t+2}, s{t+1}, 10\ns_sub_u32 s{t+2}, s{t}, s{t+2}")
        a(f"s_mul_i32 s{t+6}, s{t+1}, 40960\ns_lshl_b32 s{t+3}, s{t+2}, 7\ns_add_u32 s{t+6}, s{t+6}, s{t+3}")
        a(f"s_mul_i32 s{t+7}, s{sGRP}, 384\ns_lshl_b32 s{t+3}, s{sNH}, 6\ns_add_u32 s{t+7}, s{t+7}, s{t+3}")
        a("s_waitcnt lgkmcnt(0)")
        self.stamp(0)
        self.srd(SRD_M, pB1, 3072)
        self.srd(SRD_W, pW2, 1536*640*2)
        for u in range(6):
            a(f"buffer_load_dwordx2 v[{BI+4*u+2}:{BI+4*u+3}], v{vBo}, s[{SRD_M}:{SRD_M+3}], s{t+7} offen offset:{128*(u >> 1) + 32*(u & 1)}")
        sSrc1 = 69
        a(f"s_mov_b32 s{sSrc1}, s{t+6}")
        self.srd(SRD_WS, pWS, WS_SIZE)
        if TOUCH == 2: self.touch(vLane, 240)
        dsts = [10, 11, 1, 3]
        for u in range(4):
            a(f"s_lshl2_add_u32 s{t+3}, s{t+2}, {u}\ns_mul_i32 s{t+4}, s{t+3}, 205\ns_lshr_b32 s{t+4}, s{t+4}, 10")
            a(f"s_mul_i32 s{t+5}, s{t+4}, 235\ns_add_u32 s{t+5}, s{t+5}, s{t+3}\ns_mul_i32 s{t+4}, s{t+1}, 5\ns_add_u32 s{t+5}, s{t+5}, s{t+4}")
            a(f"s_lshl_b32 s{t+5}, s{t+5}, 10\ns_add_u32 s{t+5}, s{t+5}, {WS_W2R}")
            if LRP: a(f"s_mov_b32 s{dsts[u]}, s{t+5}")
            else: a(f"s_cmp_lt_u32 s{sPIDX}, 120\ns_cselect_b32 s{dsts[u]}, s{t+5}, {BIG}")
        d2, sSrc2, sK2, sInc2 = 40, 0, 75, 70
        self.srd(SRD_M, pWO, 640*640*2)
        a(f"s_lshl1_add_u32 s{t}, s{sPIDX}, s{sWAVE}\ns_sub_u32 s{t}, s{t}, 2")
        a(f"s_cmp_lt_u32 s{t}, 160\ns_cselect_b32 s{sK2}, 1, 2\ns_cmp_lt_u32 s{t}, 200\ns_cselect_b32 s{sK2}, s{sK2}, 0\ns_cmp_lt_u32 s{sWAVE}, 2\ns_cselect_b32 s{sK2}, 0, s{sK2}")
        a(f"s_mul_i32 s{t+1}, s{t}, 6554\ns_lshr_b32 s{t+1}, s{t+1}, 16\ns_mul_i32 s{t+2}, s{t+1}, 10\ns_sub_u32 s{t+2}, s{t}, s{t+2}")
        a(f"s_lshr_b32 s{t+3}, s{t+1}, 1\ns_and_b32 s{t+4}, s{t+1}, 1\ns_sub_u32 s{t+5}, s{t+1}, 16\ns_lshl_b32 s{t+5}, s{t+5}, 1")
        a(f"s_cmp_eq_u32 s{sK2}, 2\ns_cselect_b32 s{t+3}, s{t+5}, s{t+3}\ns_cselect_b32 s{t+4}, 2, s{t+4}\ns_cselect_b32 s{sInc2}, {10240 + 64*1280}, 10240")
        a(f"s_mul_i32 s{sSrc2}, s{t+3}, {80*1280}\ns_mul_i32 s{t+5}, s{t+4}, {32*1280}\ns_add_u32 s{sSrc2}, s{sSrc2}, s{t+5}\ns_lshl_b32 s{t+5}, s{t+2}, 7\ns_add_u32 s{sSrc2}, s{sSrc2}, s{t+5}")
        a(f"s_mul_i32 s{t+3}, s{t+3}, 12800\ns_lshl_b32 s{t+5}, s{t+4}, 10\ns_cmp_eq_u32 s{sK2}, 2\ns_cselect_b32 s{t+5}, 10240, s{t+5}\ns_cselect_b32 s{t+6}, 512, 2048\ns_add_u32 s{t+3}, s{t+3}, s{t+5}\ns_add_u32 s{t+3}, s{t+3}, {WS_WOR}")
        for u in range(4):
            a(f"s_lshl2_add_u32 s{t+4}, s{t+2}, {u}\ns_mul_i32 s{t+5}, s{t+4}, 205\ns_lshr_b32 s{t+5}, s{t+5}, 10\ns_mul_i32 s{t+7}, s{t+5}, 5\ns_sub_u32 s{t+4}, s{t+4}, s{t+7}")
            a(f"s_mul_i32 s{t+5}, s{t+5}, 102400\ns_mul_i32 s{t+4}, s{t+4}, s{t+6}\ns_add_u32 s{t+5}, s{t+5}, s{t+4}\ns_add_u32 s{d2+u}, s{t+5}, s{t+3}")
        sRb64 = t + 11
        a(f"s_lshl1_add_u32 s{sRb64}, s{sRB}, s{sSH}")
        a(f"s_mul_i32 s{t}, s{sRb64}, 48\ns_mul_i32 s{t+1}, s{sGRP}, 6\ns_add_u32 s{t}, s{t}, s{t+1}\ns_add_u32 s{t}, s{t}, s{sNH}\ns_lshl_b32 s{t}, s{t}, 12")
        a(f"s_add_u32 s{sAct}, s{t}, {WS_ACT}\ns_add_u32 s{sAct+1}, s{t}, {WS_ACT + 8192}\ns_add_u32 s{sAct+2}, s{t}, {WS_ACT + 16384}")
        a(f"s_mul_i32 s{t}, s{sRb64}, 40\ns_lshl2_add_u32 s{t}, s{sHALF}, s{t}\ns_lshl1_add_u32 s{t}, s{sCBL}, s{t}\ns_add_u32 s{t}, s{t}, s{sNH}\ns_add_u32 s{t}, s{t}, 24\ns_lshl_b32 s{t}, s{t}, 11\ns_add_u32 s{sPq}, s{t}, {WS_PQ}")
        a(f"s_lshl3_add_u32 s{sF1}, s{sRb64}, s{sGRP}\ns_lshl_b32 s{sF1}, s{sF1}, 7")
        a(f"s_lshl1_add_u32 s{t}, s{sGRP}, s{sNH}\ns_cmp_eq_u32 s{t}, 5\ns_cselect_b32 s{sGs}, 1, 0")
        a(f"s_lshl_b32 s{sF2}, s{sRb64}, 7\ns_add_u32 s{sF2}, s{sF2}, {CNT_PQ}\ns_cmp_lt_u32 s{sCBL}, 6\ns_cselect_b32 s{t}, 1, s{sGs}\ns_cmp_eq_u32 s{t}, 1\ns_cselect_b32 s{sF2}, s{sF2}, {BIG}")
        a(f"s_cmp_ge_u32 s{sCBL}, 6\ns_cselect_b64 vcc, -1, 0")
        def reads(i):
            b = i & 1; so = (i % 3) * WSLOT
            xs = XR + ((i >> 1) % 3) * 16384
            r = [f"ds_read_b128 v[{XB+16*b+4*s}:{XB+16*b+4*s+3}], v{vX1 if i & 1 else vX0} offset:{xs + 2048*s}" for s in range(4)]
            for u in range(6):
                d = WB + 28*b + 4*u
                r.append(f"ds_read_b64_tr_b16 v[{d}:{d+1}], v{vH0 + (u & 1)} offset:{so + 4096*(u >> 1)}")
                r.append(f"ds_read_b64_tr_b16 v[{d+2}:{d+3}], v{vH0 + (u & 1)} offset:{so + 4096*(u >> 1) + 2048}")
            d = WB + 28*b + 24
            if GBR:
                l1, l2 = a.newlabel("L_g"), a.newlabel("L_gj")
                r.append(f"s_cbranch_vccnz {l1}\nds_read_b64_tr_b16 v[{d}:{d+1}], v{vQ} offset:{so}\nds_read_b64_tr_b16 v[{d+2}:{d+3}], v{vQ} offset:{so + 1024}\ns_branch {l2}\n"
                         f"{l1}:\nds_read_b128 v[{d}:{d+3}], v{vGt} offset:{64*i}\n{l2}:")
            else:
                r += [f"ds_read_b64_tr_b16 v[{d}:{d+1}], v{vQ} offset:{so}", f"ds_read_b64_tr_b16 v[{d+2}:{d+3}], v{vQ} offset:{so + 1024}",
                      f"s_mov_b64 exec, vcc\nds_read_b128 v[{d}:{d+3}], v{vGt} offset:{64*i}\ns_mov_b64 exec, -1"]
            return r
        def mfmas(i):
            b = i & 1
            r = []
            for u in (range(7) if i < 19 or QLAST else (6, 0, 1, 2, 3, 4, 5)):
                for s in range(4):
                    d = ACC + 16*u + 4*s
                    c = f"v[{d}:{d+3}]" if i > 0 else ("0" if u == 6 else f"v[{BI+4*u}:{BI+4*u+3}]")
                    r.append(f"v_mfma_f32_16x16x32_bf16 v[{d}:{d+3}], v[{WB+28*b+4*u}:{WB+28*b+4*u+3}], v[{XB+16*b+4*s}:{XB+16*b+4*s+3}], {c}")
            return r
        unpack = [f"s_waitcnt vmcnt({(3 if TOUCH == 2 else 0) + (4 if RD < 0 else 0) + {0: 0, 1: 8, 2: 3}[PF]})"]
        for u in range(6):
            p = BI + 4*u
            unpack += [f"v_lshlrev_b32 v{p}, 16, v{p+2}", f"v_and_b32 v{p+1}, 0xffff0000, v{p+2}", f"v_lshlrev_b32 v{p+2}, 16, v{p+3}", f"v_and_b32 v{p+3}, 0xffff0000, v{p+3}"]
        RP = BI
        rp_reads = []
        for u in range(4):
            rp_reads += [f"ds_read_b64_tr_b16 v[{RP+4*u}:{RP+4*u+1}], v{vRr} offset:{32*u}", f"ds_read_b64_tr_b16 v[{RP+4*u+2}:{RP+4*u+3}], v{vRr} offset:{32*u + 2048}"]
        rp_st = [f"buffer_store_dwordx4 v[{RP+4*u}:{RP+4*u+3}], v{vL}, {WSR}, s{dsts[u]} offen sc1" for u in range(4)]
        z = [f"s_lshl_b32 s{t}, s{sPIDX}, 9", f"s_mul_i32 s{t+1}, s{sWAVE}, {WS_KVP}", f"s_add_u32 s{t}, s{t}, s{t+1}", f"s_cmp_lt_u32 s{sWAVE}, 2", f"s_cselect_b32 s{t}, s{t}, {BIG}"] + \
            [f"v_mov_b32 v{RP+16+k}, 0" for k in range(4)] + \
            [f"s_mov_b32 exec_hi, 0\nbuffer_store_dwordx4 v[{RP+16}:{RP+19}], v{vL}, {WSR}, s{t} offen sc1\ns_mov_b32 exec_hi, -1"]
        k1, k2, k3, k4 = [a.newlabel("L_r2") for _ in range(4)]
        dma1 = [f"s_lshl_b32 s{t+3}, s{sWAVE}, 12"]
        for j in range(4):
            dma1.append(f"s_add_u32 m0, s{t+3}, {SCR + 1024*j}\ns_nop 0\nbuffer_load_dwordx4 v{vRd}, s[{SRD_W}:{SRD_W+3}], s{sSrc1} offen lds\ns_add_u32 s{sSrc1}, s{sSrc1}, 10240")
        rp_reads2 = [l.replace("offset:", "offset:8192+") for l in rp_reads]
        dma2 = f"s_cmp_eq_u32 s{sK2}, 0\ns_cbranch_scc1 {k1}\n"
        for j in range(4):
            dma2 += f"s_add_u32 m0, s{t+3}, {SCR + 8192 + 1024*j}\ns_nop 0\nbuffer_load_dwordx4 v{vRd}, s[{SRD_M}:{SRD_M+3}], s{sSrc2} offen lds\n"
            if j < 3: dma2 += f"s_add_u32 s{sSrc2}, s{sSrc2}, " + (f"s{sInc2}" if j == 1 else "10240") + "\n"
        dma2 += k1 + ":"
        st2 = f"s_cmp_eq_u32 s{sK2}, 0\ns_cbranch_scc1 {k2}\ns_cmp_eq_u32 s{sK2}, 2\ns_cbranch_scc1 {k3}\n"
        st2 += "".join(f"buffer_store_dwordx4 v[{RP+4*u}:{RP+4*u+3}], v{vL}, {WSR}, s{d2+u} offen sc1\n" for u in range(4))
        st2 += f"s_branch {k2}\n{k3}:\nv_lshrrev_b32 v{vT}, 1, v{vL}\n"
        for u in range(4):
            st2 += f"buffer_store_dwordx2 v[{RP+4*u}:{RP+4*u+1}], v{vT}, {WSR}, s{d2+u} offen sc1\ns_add_u32 s{d2+u}, s{d2+u}, 12800\n"
            st2 += f"buffer_store_dwordx2 v[{RP+4*u+2}:{RP+4*u+3}], v{vT}, {WSR}, s{d2+u} offen sc1\n"
        st2 += k2 + ":"
        sk, sk2 = a.newlabel("L_s1a"), a.newlabel("L_s1b")
        arr = [f"s_cmp_lg_u32 s{sWAVE}, 0", f"s_cbranch_scc1 {sk}",
               f"s_mov_b32 s{SRD_D}, s{pDBG}", f"s_mov_b32 s{SRD_D+1}, s{pDBG+1}", f"s_mov_b32 s{SRD_D+2}, 256", f"s_mov_b32 s{SRD_D+3}, 0x20000",
               f"v_mov_b32 v{vT}, 1", f"s_mov_b64 exec, 1\nbuffer_atomic_add v{vT}, v{vL}, s[{SRD_D}:{SRD_D+3}], 0 offen sc0 sc1\ns_mov_b64 exec, -1", sk + ":"]
        arr2 = [f"s_cmp_lg_u32 s{sWAVE}, 0", f"s_cbranch_scc1 {sk2}", "s_waitcnt vmcnt(0)", f"v_readfirstlane_b32 s{t}, v{vT}", f"v_mov_b32 v{vT+1}, 1",
                f"s_cmp_lg_u32 s{t}, 127", f"s_cbranch_scc1 {sk2}",
                f"s_mov_b32 s{SRD_D}, s{pDBG}", f"s_mov_b32 s{SRD_D+1}, s{pDBG+1}", f"s_mov_b32 s{SRD_D+2}, 256", f"s_mov_b32 s{SRD_D+3}, 0x20000",
                f"s_mov_b64 exec, 1\nbuffer_store_dword v{vT+1}, v{vL}, s[{SRD_D}:{SRD_D+3}], 0 offen offset:128 sc1\ns_mov_b64 exec, -1", sk2 + ":"]
        if RD < 0:
            for l in dma1 + [dma2]: a(l)
        if PF: self.prefetch(vL, 240, S=SRD_D)
        hi, lo = (["s_setprio 3"], [f"s_setprio {CP}"]) if STPRIO else ([], [])
        extra = {0: ([], unpack, []), RS: (["s_waitcnt vmcnt(0)"], rp_reads, []), RS+1: (hi, rp_st + rp_reads2, []),
                 RS+2: ([], [st2] + z, lo), S1AT-1: ([], [], ["s_waitcnt vmcnt(0)"]), S1AT: (arr, [], []), S1AT+2: (arr2, [], [])}
        if LARR:
            del extra[S1AT], extra[S1AT+2]
        if LRP:
            a(f"s_lshl_b32 s{t}, s{sWAVE}, 6\ns_add_u32 s{t}, s{t}, {MBOX}\nv_mov_b32 v8, s{t}")
            for u in range(4): a(f"v_mov_b32 v{12+u}, s{dsts[u]}\nv_mov_b32 v{16+u}, s{d2+u}")
            a(f"v_mov_b32 v20, s{sK2}\nds_write_b128 v8, v[12:15]\nds_write_b128 v8, v[16:19] offset:16\nds_write_b32 v8, v20 offset:32\ns_waitcnt lgkmcnt(0)")
            extra = {0: extra[0], 2*LRP - 1: ([], [], ["s_waitcnt vmcnt(0)"])}
        if SPREAD:
            R2 = [216, 220, 240, 244]
            rd2 = []
            for u in range(4):
                rd2 += [f"ds_read_b64_tr_b16 v[{R2[u]}:{R2[u]+1}], v{vRr} offset:{8192 + 32*u}", f"ds_read_b64_tr_b16 v[{R2[u]+2}:{R2[u]+3}], v{vRr} offset:{8192 + 32*u + 2048}"]
            zz = [l.replace(f"v{RP+16}", "v248").replace(f"v{RP+17}", "v249").replace(f"v{RP+18}", "v250").replace(f"v{RP+19}", "v251").replace(f"v[{RP+16}:{RP+19}]", "v[248:251]") for l in z]
            pre2 = [f"v_lshrrev_b32 v{vT+1}, 1, v{vL}"]
            def st2u(u):
                k5, k6 = a.newlabel("L_r2"), a.newlabel("L_r2")
                return (f"s_cmp_eq_u32 s{sK2}, 1\ns_cbranch_scc0 {k5}\nbuffer_store_dwordx4 v[{R2[u]}:{R2[u]+3}], v{vL}, {WSR}, s{d2+u} offen sc1\n{k5}:\n"
                        f"s_cmp_eq_u32 s{sK2}, 2\ns_cbranch_scc0 {k6}\nbuffer_store_dwordx2 v[{R2[u]}:{R2[u]+1}], v{vT+1}, {WSR}, s{d2+u} offen sc1\ns_add_u32 s{d2+u}, s{d2+u}, 12800\n"
                        f"buffer_store_dwordx2 v[{R2[u]+2}:{R2[u]+3}], v{vT+1}, {WSR}, s{d2+u} offen sc1\n{k6}:")
            extra = {0: extra[0], RS: (["s_waitcnt vmcnt(0)"], rp_reads + rd2 + pre2 + zz, []), S1AT: extra[S1AT], S1AT+2: extra[S1AT+2]}
            if SPREAD == 1:
                for u in range(4): extra[RS+1+u] = ([], [rp_st[u], st2u(u)], [])
            else:
                for u in range(4):
                    extra[RS+1+2*u] = ([], [rp_st[u]], []); extra[RS+2+2*u] = ([], [st2u(u)], [])
            e_ = extra.get(S1AT-1, ([], [], []))
            extra[S1AT-1] = (e_[0], e_[1], ["s_waitcnt vmcnt(0)"])
        if RD > 0: extra[RD] = ([], dma1 + [dma2], [])
        if RD == 0: extra[0] = ([], unpack + dma1 + [dma2], [])
        self.main_loop(reads, mfmas, extra, NRE, [vH0, vH1, vQ])
        if EPRIO: a(f"s_setprio {EPRIO}")
        TM = XB
        a("s_nop 3")
        def ep_extra():
            labG, labE = a.newlabel("L_epG"), a.newlabel("L_epE")
            a(f"s_cbranch_vccnz {labG}")
            self.consts("phi")
            for sp in range(2):
                e = ACC + 96 + 8*sp
                for l in self.phi_quad(e, e, TM): a(l)
                for l in self.phi_quad(e + 4, e + 2, TM + 4): a(l)
                a(f"buffer_store_dwordx4 v[{e}:{e+3}], v{vL}, {WSR}, s{sPq} offen offset:{1024*sp} sc1")
            a(f"s_branch {labE}")
            a.label(labG)
            a(f"s_cmp_eq_u32 s{sGs}, 0\ns_cbranch_scc1 {labE}")
            G = ACC + 96
            a(f"v_cmp_le_u32 vcc, 16, v{vLane}\nv_cmp_le_u32 s[{t+2}:{t+3}], 32, v{vLane}\nv_cmp_le_u32 s[{t+4}:{t+5}], 48, v{vLane}\ns_nop 0")
            a(f"v_cndmask_b32 v{G}, v{G}, v{G+4}, vcc\nv_cndmask_b32 v{G}, v{G}, v{G+8}, s[{t+2}:{t+3}]\nv_cndmask_b32 v{G}, v{G}, v{G+12}, s[{t+4}:{t+5}]")
            a(f"s_mov_b32 s{t}, 0x42700000\nv_min_f32 v{G}, s{t}, v{G}\nv_max_f32 v{G}, -s{t}, v{G}\nv_mul_f32 v{G}, s{cL2E}, v{G}\nv_exp_f32 v{G}, v{G}")
            a(f"s_lshl_b32 s{t}, s{sRb64}, 8\ns_add_u32 s{t}, s{t}, {WS_G}\nv_add_f32 v{G+2}, 1.0, v{G}\nv_rcp_f32 v{G+2}, v{G+2}\nv_lshlrev_b32 v{G+1}, 2, v{vLane}\ns_add_u32 s{t+1}, s{t}, 8192")
            a(f"buffer_store_dword v{G}, v{G+1}, {WSR}, s{t} offen sc1\nbuffer_store_dword v{G+2}, v{G+1}, {WSR}, s{t+1} offen sc1")
            a.label(labE)
        def ep_mish():
            self.consts("mish")
            for L in range(3):
                for s in range(4):
                    e, o = ACC + 32*L + 4*s, ACC + 32*L + 16 + 4*s
                    for l in self.mish_quad(e, e, TM + 8*(s & 1)): a(l)
                    for l in self.mish_quad(o, e + 2, TM + 4 + 8*(s & 1)): a(l)
                    if DIAG != 1: a(f"buffer_store_dwordx4 v[{e}:{e+3}], v{vL}, {WSR}, s{sAct+L} offen offset:{1024*s} {'' if DIAG == 2 else 'sc1'}")
                if L == 0 and EARLYQ:
                    a("s_waitcnt vmcnt(4)")
                    self.signal(sF2, vT)
                if LFLAG and L >= 1:
                    a(f"s_waitcnt vmcnt({4 if L == 1 else 5})")
                    self.signal(sF1, vT, 4*(L - 1))
        if QLAST: ep_mish(); ep_extra()
        else: ep_extra(); ep_mish()
        a(f"v_mov_b32 v0, v{vLane}")
        self.stamp(3)
        if EARLYQ: a(f"s_mov_b32 s{sF2}, {BIG}")
        self.finish1([sF1, sF2], strict=bool(STRICTP), late8=True)

    def compute_KV(self):
        a = self.a
        t = T0
        ACC, XB, WB = 0, 112, 128
        vX0, vX1, vK, vQ0, vL = 240, 241, 242, 243, 247
        vLane = 253
        sPq, sF2, sRec = 72, 73, 74
        a(f"v_mov_b32 v{vLane}, v0")
        a(f"v_and_b32 v1, 15, v0\nv_lshrrev_b32 v2, 4, v0\nv_lshrrev_b32 v3, 1, v1\nv_xor_b32 v3, v3, v2\nv_lshlrev_b32 v3, 4, v3\nv_lshl_add_u32 v3, v1, 7, v3")
        a(f"s_lshl_b32 s{t}, s{sWAVE}, 12\nv_add_u32 v{vX0}, s{t}, v3\nv_xor_b32 v{vX1}, 64, v{vX0}")
        a(f"v_lshrrev_b32 v3, 2, v0\nv_and_b32 v4, 3, v0\nv_lshlrev_b32 v4, 3, v4")
        a(f"v_mul_u32_u24 v5, 160, v3\nv_add_u32 v5, v5, v4\nv_add_u32 v{vK}, {WR}, v5")
        a(f"v_lshl_add_u32 v5, v3, 7, v4\nv_bfe_u32 v6, v0, 3, 2\nv_lshl_add_u32 v5, v6, 5, v5\nv_add_u32 v{vQ0}, {WR+10240}, v5")
        for u in range(1, 4): a(f"v_xor_b32 v{vQ0+u}, {32*u}, v{vQ0}")
        a(f"v_lshlrev_b32 v{vL}, 4, v0")
        a(f"s_lshr_b32 s{t}, s{sWAVE}, 1\ns_lshl1_add_u32 s{t+1}, s{sRB}, s{t}")
        a(f"s_lshl_b32 s{sF2}, s{t+1}, 7\ns_add_u32 s{sF2}, s{sF2}, {CNT_PQ}")
        a(f"s_mul_i32 s{t+1}, s{t+1}, 40\ns_lshl2_add_u32 s{t+1}, s{sGRP}, s{t+1}\ns_and_b32 s{t}, s{sWAVE}, 1\ns_lshl1_add_u32 s{t+1}, s{t+1}, s{t}\ns_lshl_b32 s{t+1}, s{t+1}, 10\ns_add_u32 s{sPq}, s{t+1}, {WS_PQ}")
        a(f"s_lshl2_add_u32 s{t}, s{sGRP}, s{sWAVE}\ns_lshl_b32 s{sF1}, s{t}, 7\ns_add_u32 s{sF1}, s{sF1}, {CNT_KV}")
        a(f"s_mul_i32 s{t}, s{t}, 1792\ns_add_u32 s{sRec}, s{t}, {WS_KVP}")
        a(f"s_mov_b32 s{cL2E}, 0x3fb8aa3b\ns_mov_b32 s{cL2E+1}, 0x3fb8aa3b")
        self.consts("phi")
        a("s_waitcnt lgkmcnt(0)")
        self.stamp(0)
        self.srd(SRD_WS, pWS, WS_SIZE)
        if TOUCH: self.touch(vLane, 248)
        if PF: self.prefetch(vL, 248)
        def reads(i):
            b = i & 1; so = (i % 3) * WSLOT
            xs = XR + ((i >> 1) % 3) * 16384
            r = [f"ds_read_b128 v[{XB+8*b+4*s}:{XB+8*b+4*s+3}], v{vX1 if i & 1 else vX0} offset:{xs + 2048*s}" for s in range(2)]
            for u in range(14):
                d = WB + 56*b + 4*u
                if u < 10: base, off, d2 = vK, 5120*(u // 5) + 32*(u % 5), 2560
                else: base, off, d2 = vQ0 + u - 10, 0, 2048
                r.append(f"ds_read_b64_tr_b16 v[{d}:{d+1}], v{base} offset:{so + off}")
                r.append(f"ds_read_b64_tr_b16 v[{d+2}:{d+3}], v{base} offset:{so + off + d2}")
            return r
        def mfmas(i):
            b = i & 1
            r = []
            order = list(range(14)) if i < 19 else ([10, 11, 12, 13, 5, 6, 7, 8, 9, 0, 1, 2, 3, 4] if KQF == 1 else [5, 6, 7, 8, 9, 0, 1, 2, 3, 4, 10, 11, 12, 13])
            for u in order:
                for s in range(2):
                    d = ACC + 8*u + 4*s
                    c = f"v[{d}:{d+3}]" if i > 0 else "0"
                    w, x = f"v[{WB+56*b+4*u}:{WB+56*b+4*u+3}]", f"v[{XB+8*b+4*s}:{XB+8*b+4*s+3}]"
                    r.append(f"v_mfma_f32_16x16x32_bf16 v[{d}:{d+3}], {x if u < 10 else w}, {w if u < 10 else x}, {c}")
            return r
        self.main_loop(reads, mfmas, {}, NRK, [vK, vQ0, vQ0+1, vQ0+2, vQ0+3])
        TM = XB
        vEx = vX0
        def qmath(u):
            e = ACC + 8*u
            return self.phi_quad(e, e, TM) + self.phi_quad(e + 4, e + 2, TM + 4)
        def qst(u):
            e = ACC + 8*(10 + u)
            a(f"buffer_store_dwordx4 v[{e}:{e+3}], v{vL}, {WSR}, s{sPq if u < 2 else t} offen offset:{2048*(u & 1)} sc1")
        if KQF == 1:
            a(f"s_add_u32 s{t}, s{sPq}, 4096")
            for u in range(4):
                for l in qmath(10 + u): a(l)
                qst(u)
        a(f"s_mul_i32 s{t}, s{sWAVE}, 10240\nv_add_u32 v{vEx}, s{t}, v{vL}")
        for u in range(5, 10):
            e = ACC + 8*u
            a(f"v_cvt_pk_bf16_f32 v{e}, v{e}, v{e+1}\nv_cvt_pk_bf16_f32 v{e+1}, v{e+2}, v{e+3}\nv_cvt_pk_bf16_f32 v{e+2}, v{e+4}, v{e+5}\nv_cvt_pk_bf16_f32 v{e+3}, v{e+6}, v{e+7}")
            a(f"ds_write_b128 v{vEx}, v[{e}:{e+3}] offset:{XR + 1024*u}")
        for u in range(5):
            e = ACC + 8*u
            for l in self.phi_quad(e, e, TM): a(l)
            for l in self.phi_quad(e + 4, e + 2, TM + 4): a(l)
            a(f"ds_write_b128 v{vEx}, v[{e}:{e+3}] offset:{XR + 1024*u}")
        a(f"s_lshl_b32 s{t}, s{sWAVE}, 10\nv_add_u32 v{vEx}, s{t}, v{vL}")
        ONE = WB + 64
        for k in range(4): a(f"v_mov_b32 v{ONE+k}, 0x3f803f80")
        if K1LDS:
            lp, dn = a.newlabel("L_k1"), a.newlabel("L_k1d")
            a(f"v_mov_b32 v{vK}, {K1C}\nv_mov_b32 v{vQ0}, 1\ns_mov_b32 s{t}, 0\ns_waitcnt lgkmcnt(0)\ns_mov_b64 exec, 1\nds_add_u32 v{vK}, v{vQ0}\ns_mov_b64 exec, -1")
            if KQF == 2:
                a(f"s_add_u32 s{t}, s{sPq}, 4096")
                for u in range(4):
                    for l in qmath(10 + u): a(l)
                    qst(u)
                a(f"s_mov_b32 s{t}, 0")
            a.label(lp)
            a(f"ds_read_b32 v{vQ0}, v{vK}\ns_add_u32 s{t}, s{t}, 1\ns_waitcnt lgkmcnt(0)\nv_readfirstlane_b32 s{t+1}, v{vQ0}\ns_cmp_ge_u32 s{t}, {SPIN}\ns_cbranch_scc1 {dn}\ns_cmp_lt_u32 s{t+1}, 4\ns_cbranch_scc1 {lp}")
            a.label(dn)
        else:
            a("s_waitcnt lgkmcnt(0)\ns_barrier")
        FR = WB
        for g in range(4):
            for j, off in enumerate((0, 1024, 5120, 6144)):
                a(f"ds_read_b128 v[{FR+16*g+4*j}:{FR+16*g+4*j+3}], v{vEx} offset:{XR + 10240*g + off}")
        AD = WB + 72
        dc, BG, ev, R = AD, AD + 2, AD + 3, AD + 8
        ad = [f"v_lshrrev_b32 v{dc}, 4, v{vLane}", f"v_and_b32 v{ev}, 15, v{vLane}", f"v_mov_b32 v{BG}, 0x10000", f"v_cmp_eq_u32 vcc, 0, v{ev}",
              f"v_mov_b32 v{R}, 320", f"v_subrev_u32 v{dc}, s{sWAVE}, v{dc}", f"v_cndmask_b32 v{ev+2}, v{BG}, v{R}, vcc", f"v_add_u32 v{dc+1}, 4, v{dc}",
              f"s_lshl_b32 s{t}, s{sWAVE}, 2", f"v_subrev_u32 v{ev}, s{t}, v{ev}", f"v_add_u32 v{ev+1}, 16, v{ev}",
              f"s_lshl_b32 s{t+4}, s{sWAVE}, 11", f"s_add_u32 s{t+4}, s{t+4}, {STG}"]
        for k in range(2):
            ad += [f"v_cmp_gt_u32 vcc, 5, v{dc+k}", f"v_cmp_gt_u32 s[{t+2}:{t+3}], 20, v{ev+k}", f"v_mul_u32_u24 v{dc+k}, 336, v{dc+k}", f"v_lshlrev_b32 v{ev+k}, 4, v{ev+k}",
                   f"v_cndmask_b32 v{dc+k}, v{BG}, v{dc+k}, vcc", f"v_cndmask_b32 v{ev+k}, v{BG}, v{ev+k}, s[{t+2}:{t+3}]"]
        for k in range(2):
            ad += [f"v_add_u32 v{R+3*k+b}, v{dc+k}, v{ev+b}" for b in range(3)]
            ad += [f"v_min_u32 v{R+3*k+b}, 1680, v{R+3*k+b}" for b in range(3)]
            ad += [f"v_add_u32 v{R+3*k+b}, s{t+4}, v{R+3*k+b}" for b in range(3)]
        ad += [f"v_lshlrev_b32 v{dc}, 2, v{vLane}", f"v_add_u32 v{vEx}, s{t+4}, v{dc}"]
        for l in ad[:20]: a(l)
        D = ACC
        mm = []
        for g in range(4):
            for k in range(2):
                for b in range(3):
                    d = D + 12*k + 4*b
                    B = f"v[{FR+16*g+8+4*b}:{FR+16*g+8+4*b+3}]" if b < 2 else f"v[{ONE}:{ONE+3}]"
                    mm.append(f"v_mfma_f32_16x16x32_bf16 v[{d}:{d+3}], v[{FR+16*g+4*k}:{FR+16*g+4*k+3}], {B}, {'0' if g == 0 else f'v[{d}:{d+3}]'}")
        a("s_waitcnt lgkmcnt(0)")
        for l in interleave(mm, ad[20:], 0, 16): a(l)
        q10 = qmath(10) if not KQF else ["s_nop 7"]
        for l in q10[:8]: a(l)
        for j in range(6): a(f"ds_write_b128 v{R+j}, v[{D+4*j}:{D+4*j+3}]")
        for l in q10[8:20]: a(l)
        a("s_waitcnt lgkmcnt(0)")
        for j in range(7): a(f"ds_read_b32 v{j}, v{vEx} offset:{256*j}")
        for l in q10[20:]: a(l)
        if KQF:
            a("s_waitcnt vmcnt(0)")
            self.signal(sF2, 8)
            a(f"s_mov_b32 s{sF2}, {BIG}")
        a("s_waitcnt lgkmcnt(0)")
        for j in range(7):
            if j == 6: a("s_mov_b32 exec_hi, 15")
            a(f"buffer_atomic_add_f32 v{j}, v{dc}, {WSR}, s{sRec} offen offset:{256*j} sc1")
        a("s_mov_b32 exec_hi, -1")
        if not KQF:
            a(f"s_add_u32 s{t}, s{sPq}, 4096")
            qst(0)
            for u in (1, 2, 3):
                for l in qmath(10 + u): a(l)
                qst(u)
        a(f"v_mov_b32 v0, v{vLane}")
        self.stamp(3)
        self.finish1([sF1, sF2], strict=True)

    def setup2(self, lanes=True):
        a = self.a
        t = T0
        if MAP2 == "x2b":
            a(f"s_and_b32 s{t+2}, s{sWG}, 3\ns_bfe_u32 s{t+3}, s{sWG}, 0x30003\ns_lshl3_add_u32 s{sR64}, s{t+2}, s{t+3}")
            a(f"s_bfe_u32 s{t+2}, s{sWG}, 0x10002\ns_lshr_b32 s{t+3}, s{sWG}, 6\ns_lshl2_add_u32 s{sC}, s{t+2}, s{t+3}")
        elif MAP2 == "x4":
            a(f"s_bfe_u32 s{t+2}, s{sWG}, 0x10002\ns_bfe_u32 s{t+3}, s{sWG}, 0x40003\ns_lshl4_add_u32 s{sR64}, s{t+2}, s{t+3}")
            a(f"s_and_b32 s{t+2}, s{sWG}, 3\ns_lshr_b32 s{t+3}, s{sWG}, 7\ns_lshl1_add_u32 s{sC}, s{t+2}, s{t+3}")
        elif MAP2 == "x2":
            a(f"s_bfe_u32 s{t+2}, s{sWG}, 0x20001\ns_bfe_u32 s{t+3}, s{sWG}, 0x30003\ns_lshl3_add_u32 s{sR64}, s{t+2}, s{t+3}")
            a(f"s_and_b32 s{t+2}, s{sWG}, 1\ns_lshr_b32 s{t+3}, s{sWG}, 6\ns_lshl2_add_u32 s{sC}, s{t+2}, s{t+3}")
        else:
            a(f"s_and_b32 s{t+2}, s{sWG}, 7\ns_bfe_u32 s{t+3}, s{sWG}, 0x20003\ns_lshl2_add_u32 s{sR64}, s{t+2}, s{t+3}\ns_lshr_b32 s{sC}, s{sWG}, 5")
        if FAKE == 1: a(f"s_and_b32 s{sR64}, s{sWG}, 7\ns_lshl_b32 s{sR64}, s{sR64}, 2\ns_mov_b32 s{sC}, 0")
        if FAKE == 2: a(f"s_mov_b32 s{sC}, 0")
        if FAKE == 3: a(f"s_and_b32 s{sR64}, s{sWG}, 7\ns_lshl_b32 s{sR64}, s{sR64}, 2")
        if lanes: a(f"v_lshlrev_b32 v{vL16}, 4, v0\nv_add_u32 v{vL16b}, 4096, v{vL16}")
        if ROT2 == "none":
            a(f"s_mov_b32 s{t}, 0")
        elif ROT2 == "xor":
            a(f"s_lshr_b32 s{t}, s{sWG}, 3\ns_lshr_b32 s{t+1}, s{sWG}, 6\ns_xor_b32 s{t}, s{t}, s{t+1}\ns_and_b32 s{t}, s{t}, 1")
        elif ROT2 == "two":
            a(f"s_lshr_b32 s{t}, s{sWG}, 3\ns_lshr_b32 s{t+1}, s{sWG}, {6 if MAP2 == 'x2' else 5}\ns_xor_b32 s{t}, s{t}, s{t+1}\ns_and_b32 s{t}, s{t}, 1\ns_mul_i32 s{t}, s{t}, 3")
        elif MAP2 == "x2":
            a(f"s_and_b32 s{t}, s{sC}, 3\ns_mul_i32 s{t}, s{t}, 3\ns_lshr_b32 s{t}, s{t}, 1")
        else:
            a(f"s_mul_i32 s{t}, s{sC}, 3\ns_lshr_b32 s{t}, s{t}, 2")
        a(f"s_mul_i32 s{t+1}, s{sWAVE}, 6")
        a(f"s_mul_i32 s{t+2}, s{sC}, {48*5120}\ns_add_u32 s{t+2}, s{t+2}, {WS_W2R}")
        a(f"s_mul_i32 s{t+3}, s{sR64}, {48*4096}\ns_add_u32 s{t+3}, s{t+3}, {WS_ACT}")
        for i in range(6):
            a(f"s_add_u32 s{t+4}, s{t+1}, s{t}\ns_mul_i32 s{sB0+i}, s{t+4}, 5120\ns_add_u32 s{sB0+i}, s{sB0+i}, s{t+2}")
            a(f"s_lshl_b32 s{sA0+i}, s{t+4}, 12\ns_add_u32 s{sA0+i}, s{sA0+i}, s{t+3}")
            if i < 5 and ROT2 == "xor": a(f"s_xor_b32 s{t}, s{t}, {i ^ (i + 1)}")
            elif i < 5: a(f"s_add_u32 s{t}, s{t}, 1\ns_cmp_eq_u32 s{t}, 6\ns_cselect_b32 s{t}, 0, s{t}")
        a(f"s_lshl3_add_u32 s{sFa}, s{sR64}, s{sWAVE}\ns_lshl_b32 s{sFa}, s{sFa}, 7\ns_lshl_b32 s{sFq}, s{sR64}, 7\ns_add_u32 s{sFq}, s{sFq}, {DONE_PQ if DONE else CNT_PQ}")
        a(f"s_mul_i32 s{sPQb}, s{sR64}, 40\ns_mul_i32 s{t}, s{sWAVE}, 5\ns_add_u32 s{sPQb}, s{sPQb}, s{t}\ns_lshl_b32 s{sPQb}, s{sPQb}, 11\ns_add_u32 s{sPQb}, s{sPQb}, {WS_PQ}")
        a(f"s_lshl3_add_u32 s{sMb}, s{sC}, s{sWAVE}\ns_mul_i32 s{sMb}, s{sMb}, 12800\ns_add_u32 s{sMb}, s{sMb}, {WS_WOR}")
        a(f"s_mul_i32 s{sKv}, s{sWAVE}, 7168\ns_add_u32 s{sKv}, s{sKv}, {WS_KVP}\ns_lshl_b32 s{sFk}, s{sWAVE}, {7 if DONE else 9}\ns_add_u32 s{sFk}, s{sFk}, {DONE_KV if DONE else CNT_KV}")

    def preload_b(self, n0, n1, th=0, alt=None):
        vb = vL16b
        if alt is not None:
            vb = alt; self.a(f"v_add_u32 v{alt}, 4096, v{vL16}")
        for n in range(n0, n1):
            if th and n < NTH: self.a(f"s_waitcnt vmcnt({th - 1})")
            i, jn = divmod(n, 5)
            d = BS + 20*i + 4*jn
            self.a(f"buffer_load_dwordx4 v[{d}:{d+3}], v{vL16 if jn < 4 else vb}, {WSR}, s{sB0+i} offen offset:{1024*jn if jn < 4 else 0} sc1")

    def stage_b(self):
        a = self.a
        t = T0
        a(f"s_mul_i32 s{t}, s{sT}, 20480\ns_add_u32 s{t}, s{t}, {BL}")
        for i in range(2, NB):
            a(f"s_sub_u32 s{t+1}, s{sB0+i}, 122880")
            for jn in range(5):
                if jn in (0, 4):
                    a(f"s_add_u32 m0, s{t}, {5120*(i-2) + 1024*jn}")
                    a(f"s_add_u32 s{t+1}, s{t+1}, 4096" if jn else "s_nop 0")
                if TH and NB*5 + 5*(i - 2) + jn < NTH: a(f"s_waitcnt vmcnt({TH - 1})")
                a(f"buffer_load_dwordx4 v{vL16}, {WSR}, s{t+1} offen offset:{1024*(jn % 4)} sc1 lds")
        a("s_waitcnt vmcnt(0)")

    def adlist(self, alt=False):
        t, LN = T0, 255
        ts = 72 if alt else t + 2
        mk = [96, 98, 100, 52, 54] if alt else [t + 4 + 2*n for n in range(5)]
        groups = []
        chunks = [(0, 0), (0, 1), (1, 0), (1, 1), (1, 2), (2, 1), (2, 2), (2, 3), (3, 2), (3, 3), (4, 3), (3, 4), (4, 4)] + [("z", tt) for tt in range(5)]
        slot = dict(zip(chunks, [0, 1, 2, 3, 4, 7, 8, 9, 10, 11, 13, 14, 15, 16, 17, 18, 19, 20]))
        X, K0 = 44, 20
        ad = [f"v_and_b32 v{X}, 15, v{LN}", f"v_lshrrev_b32 v{X+1}, 4, v{LN}", f"s_add_u32 s{ts}, s{sLB}, 13312", f"v_mul_u32_u24 v{X+3}, 336, v{X+1}", f"v_add_u32 v{X+3}, s{ts}, v{X+3}",
              f"v_add_u32 v{X+18}, s{sLB}, v{vL16}", f"s_add_u32 s{ts}, s{ts}, 7056", f"v_mov_b32 v{X+13}, s{ts}"] + [f"v_subrev_u32 v{X+13+k}, {1344*k}, v{X+13}" for k in range(1, 5)]
        for te in (0, 1, 2, 3, 4, "z"):
            groups.append(len(ad))
            if te == "z":
                ad += [f"v_and_b32 v{X+4}, 3, v{LN}", f"v_mul_u32_u24 v{X+5}, 112, v{X+4}", f"v_add_u32 v{X+6}, 320, v{X+3}", f"v_add_u32 v{X+5}, v{X+5}, v{X+6}"]
            else:
                ad += [f"v_add_u32 v{X+6}, {16*te}, v{X}", f"v_mul_u32_u24 v{X+4}, 3277, v{X+6}", f"v_lshrrev_b32 v{X+4}, 16, v{X+4}",
                       f"v_lshl_add_u32 v{X+6}, v{X+6}, 4, v{X+3}", f"v_mad_i32_i24 v{X+5}, v{X+4}, s{sN208}, v{X+6}"]
            ad += [f"v_mad_i32_i24 v{X+4}, v{X+4}, -5, v{X+1}"]
            mine = [(j, c) for j, c in enumerate(chunks) if c[0] == te]
            ad += [f"v_add_u32 v{X+8+n}, {4*c[1]}, v{X+4}" for n, (j, c) in enumerate(mine)]
            ad += [f"v_cmp_gt_u32 s[{mk[n]}:{mk[n]+1}], 5, v{X+8+n}" for n, (j, c) in enumerate(mine)]
            ad += ["s_nop 0"]
            ad += [f"v_cndmask_b32 v{K0+j}, v{X+13+c[1]}, v{X+5}, s[{mk[n]}:{mk[n]+1}]" for n, (j, c) in enumerate(mine)]
        self.adgroups = groups + [len(ad)]
        return chunks, slot, X, K0, ad

    def adpart(self, k):
        a = self.a
        ad = self.adlist(True)[4]; g = self.adgroups
        if k == 0: a(f"v_lshlrev_b32 v{vL16}, 4, v0\nv_mov_b32 v255, v0\ns_xor_b32 s{sLB}, s{sWAVE}, 4\ns_mul_i32 s{sLB}, s{sLB}, 20480\ns_mov_b32 s{sN208}, -208")
        for l in ad[(0, g[1], g[3], g[5])[k]:(g[1], g[3], g[5], g[6])[k]]: a(l)

    def adblock(self):
        a = self.a
        a(f"v_lshrrev_b32 v255, 4, v{vL16}\ns_xor_b32 s{sLB}, s{sWAVE}, 4\ns_mul_i32 s{sLB}, s{sLB}, 20480\ns_mov_b32 s{sN208}, -208")
        for l in self.adlist()[4]: a(l)

    def gemm2(self):
        a = self.a
        t = T0
        seq = []
        LN = 255
        def ldl(dst, n, v, so, off, tag):
            seq.append(tag)
            return [f"buffer_load_dword{ {1: '', 2: 'x2', 4: 'x4'}[n] } {vr(dst, n)}, v{v}, {WSR}, s{so} offen offset:{off} sc1"]
        def emit(L):
            for l in L: a(l)
        def wait(tag):
            last = max(n for n, x in enumerate(seq) if x == tag)
            a(f"s_waitcnt vmcnt({len(seq) - 1 - last})")
        def act(i):
            return sum((ldl(AB + 16*(i % 3) + 4*st, 4, vL16, sA0 + i, 1024*st, f"act{i}") for st in range(4)), [])
        def check(soff, target, sleep=None):
            ok = a.newlabel("L_ok")
            a(f"v_cmp_le_u32 vcc, {target}, v{vP+1}\ns_nop 1\ns_cmp_eq_u64 vcc, -1\ns_cbranch_scc1 {ok}")
            self.poll(soff, target, vP, vP + 1, sleep=sleep)
            a.label(ok)
        def dma(so, n, lds, tag):
            r = []
            for k in range(n):
                pre = ""
                if k % 4 == 0:
                    pre = f"s_add_u32 m0, s{sLB}, {lds + 1024*k}\n" + (f"s_add_u32 s{so}, s{so}, 4096\n" if k else "s_nop 0\n")
                r.append(pre + f"buffer_load_dwordx4 v{vL16}, {WSR}, s{so} offen offset:{1024*(k % 4)} sc1 lds"); seq.append(tag)
            return r
        def pq(base, sp):
            return sum((ldl(base + 20*sp + 4*tt, 4, vL16, (sPQb, t, t + 1)[tt >> 1], 2048*(tt & 1) + 1024*sp, f"pq{sp}") for tt in range(5)), [])
        def gld(va):
            return sum((ldl(vG + st, 1, va, t + 3, 64*st, "g") for st in range(4)), [])
        def lateb(i=5):
            if i < NB: return []
            r = sum((ldl(BS + 20*i + 4*jn, 4, vL16, sB0 + i, 1024*jn, f"act{i}") for jn in range(4)), [])
            return r + [f"s_add_u32 s{sB0+i}, s{sB0+i}, 4096"] + ldl(BS + 20*i + 16, 4, vL16, sB0 + i, 0, f"act{i}")
        chunks, slot, X, K0, ad = self.adlist()
        mq = [t + 4, t + 6, t + 8]
        consts = [f"s_mov_b32 s{cE}, 0x358637bd", f"s_mov_b32 s{mq[0]}, 0xffff", f"s_mov_b32 s{mq[0]+1}, 0", f"s_mov_b32 s{mq[1]}, -1", f"s_mov_b32 s{mq[1]+1}, 0",
                  f"s_mov_b32 s{mq[2]}, -1", f"s_mov_b32 s{mq[2]+1}, 0xffff"]
        swaps = lambda R: [f"v_swap_b32 v{R+8*p+2+k}, v{R+8*p+4+k}" for p in range(2) for k in range(2)]
        K32 = lambda d, A, B, c: f"v_mfma_f32_16x16x32_bf16 v[{d}:{d+3}], v[{A}:{A+3}], v[{B}:{B+3}], {c}"
        K16 = lambda d, A, B: f"v_mfma_f32_16x16x16_bf16 v[{d}:{d+3}], v[{A}:{A+1}], v[{B}:{B+1}], v[{d}:{d+3}]"
        acc = lambda d: f"v[{d}:{d+3}]"
        def fqf(base):
            def fq(st, tt):
                R = base + 20*(st >> 1)
                return R + 8*(tt >> 1) + 4*(st & 1) + 2*(tt & 1) if tt < 4 else R + 16 + 2*(st & 1)
            return fq
        def gather(KAr, raw, KP, PQb, first):
            for j, c in enumerate(chunks):
                a(f"ds_read_b128 v[{raw(j)}:{raw(j)+3}], v{KAr+j} offset:{1344*c[1]}")
            emit(swaps(PQb) + swaps(PQb + 20))
            for j, c in enumerate(chunks):
                if j in (0, first): a(f"s_waitcnt lgkmcnt({18 - first if j == 0 else 0})")
                d, r = KP + 2*slot[c], raw(j)
                a(f"v_cvt_pk_bf16_f32 v{d}, v{r}, v{r+1}\nv_cvt_pk_bf16_f32 v{d+1}, v{r+2}, v{r+3}")
            for z in (5, 6, 12): a(f"v_mov_b32 v{KP+2*z}, 0\nv_mov_b32 v{KP+2*z+1}, 0")
        def scales(st, DN, SC):
            r = ([] if LATEORD else [f"v_add_f32 v{DN+k}, s{cE}, v{DN+k}" for k in range(4)]) + [f"v_rcp_f32 v{DN+k}, v{DN+k}" for k in range(4)]
            r += [f"v_mul_f32 v{DN+k}, v{vG+st}, v{DN+k}" for k in range(4)]
            return r + [f"v_cndmask_b32 v{SC[k]}, v{DN+k+1}, v{DN+k}, s[{mq[k]}:{mq[k]+1}]" for k in range(3)]
        def vtile(st, tt, o, DN, SC, fq):
            sc = (DN, SC[0], SC[1], SC[2], DN + 3)[tt]
            return [f"v_mul_f32 v{o+k}, v{sc}, v{o+k}" for k in range(4)] + [f"v_cvt_pk_bf16_f32 v{fq(st,tt)}, v{o}, v{o+1}", f"v_cvt_pk_bf16_f32 v{fq(st,tt)+1}, v{o+2}, v{o+3}"]
        def mlp(i, zero, sts=None):
            order = [(jn, st) for jn in range(5) for st in range(4)] if sts is None else [(jn, st) for st in sts for jn in range(5)]
            return [K32(20*st + 4*jn, BS + 20*i + 4*jn, AB + 16*(i % 3) + 4*st, "0" if zero else acc(20*st + 4*jn)) for jn, st in order]
        TA, RA, vRW = 224, 170, vP
        rw = [f"v_and_b32 v{TA}, 15, v{LN}", f"v_mul_u32_u24 v{TA}, 160, v{TA}", f"v_bfe_u32 v{TA+1}, v{LN}, 5, 1", f"v_bfe_u32 v{vRW}, v{LN}, 2, 1", f"v_xor_b32 v{TA+1}, v{TA+1}, v{vRW}",
              f"v_lshl_add_u32 v{TA}, v{TA+1}, 4, v{TA}", f"v_bfe_u32 v{TA+1}, v{LN}, 4, 1", f"v_mul_u32_u24 v{TA+1}, 10240, v{TA+1}", f"v_add3_u32 v{vRW}, v{TA}, v{TA+1}, s{sLB}"]
        wrl = lambda st: [] if DIAG == 6 else [f"ds_write_b128 v{vRW}, v[{20*st+4*jn}:{20*st+4*jn+3}] offset:{2560*st + 32*jn}" for jn in range(5)]
        rd = [f"s_mul_i32 s{t}, s{sWAVE}, 80", f"v_add_u32 v{RA}, s{t}, v{LN}", f"v_add_u32 v{RA+1}, 64, v{RA}",
              f"s_lshl_b32 s{t+2}, s{sR64}, 8", f"s_add_u32 s{t+2}, s{t+2}, {WS_G + 8192}"]
        for k in range(2):
            rd += [f"v_mul_u32_u24 v{RA+2}, 6554, v{RA+k}", f"v_lshrrev_b32 v{RA+2}, 16, v{RA+2}", f"v_mad_i32_i24 v{RA+3}, v{RA+2}, -10, v{RA+k}", f"v_lshlrev_b32 v{TA+2+k}, 2, v{RA+2}",
                   f"buffer_load_dword v{TA+2+k}, v{TA+2+k}, {WSR}, s{t+2} offen sc1",
                   f"v_bfe_u32 v{RA+6}, v{RA+2}, 2, 1", f"v_xor_b32 v{RA+k}, v{RA+k}, v{RA+6}",
                   f"v_mul_u32_u24 v{RA+2}, 1280, v{RA+2}", f"v_lshl_add_u32 v{RA+4+k}, v{RA+3}, 4, v{RA+2}", f"v_lshlrev_b32 v{RA+k}, 4, v{RA+k}"]
        rd += [f"v_add_u32 v{RA+6}, 61440, v{RA}", f"v_add_u32 v{RA+7}, 61440, v{RA+1}", f"v_add_u32 v{RA+8}, 122880, v{RA}", f"v_add_u32 v{RA+9}, 122880, v{RA+1}"]
        rd += [f"s_mov_b32 s{SRD_M}, s{pOUT}", f"s_mov_b32 s{SRD_M+1}, s{pOUT+1}", f"s_mov_b32 s{SRD_M+2}, {2048*640*2}", f"s_mov_b32 s{SRD_M+3}, 0x20000",
               f"s_mul_i32 s{t}, s{sR64}, 81920", f"s_mul_i32 s{t+1}, s{sC}, 160", f"s_add_u32 s{t}, s{t}, s{t+1}"]
        def flagvec(vt, with_act):
            a(f"v_lshlrev_b32 v{vP}, 2, v{LN}\nv_add_u32 v{vP}, s{sFk}, v{vP}\nv_mov_b32 v{vt}, 1\nv_cmp_le_u32 vcc, 4, v{LN}\nv_mov_b32 v{vt+1}, s{sFq}\ns_add_u32 s{t+2}, s{sFa}, 8")
            a(f"v_cndmask_b32 v{vP}, v{vP}, v{vt+1}, vcc")
            if with_act:
                a(f"v_cmp_lt_u32 vcc, 4, v{LN}\nv_mov_b32 v{vt+1}, s{t+2}\ns_nop 0\nv_cndmask_b32 v{vP}, v{vP}, v{vt+1}, vcc\nv_cndmask_b32 v{vt}, v{vt}, 2, vcc")

        a("s_setprio 0")
        if ADPRE != 2:
            a(f"v_lshrrev_b32 v{LN}, 4, v{vL16}")
            a(f"s_xor_b32 s{sLB}, s{sWAVE}, 4\ns_mul_i32 s{sLB}, s{sLB}, 20480\ns_mov_b32 s{sN208}, -208")
        a(f"s_lshl_b32 s{t+3}, s{sR64}, 8\ns_add_u32 s{t+3}, s{t+3}, {WS_G}\ns_add_u32 s{t}, s{sPQb}, 4096\ns_add_u32 s{t+1}, s{sPQb}, 8192")
        if LFLAG: a(f"v_and_b32 v{vP}, 1, v{LN}\nv_lshlrev_b32 v{vP}, 2, v{vP}")
        else: a(f"v_mov_b32 v{vP}, 0")
        atest = (f"v_cmp_le_u32 vcc, 2, v{vP+1}\ns_nop 1\ns_and_b32 s{t+14}, vcc_lo, 3\ns_cmp_eq_u32 s{t+14}, 3" if LFLAG else
                 f"v_readfirstlane_b32 s{t+14}, v{vP+1}\ns_nop 0\ns_cmp_ge_u32 s{t+14}, 2")
        apoll0 = f"v_mov_b32 v{vP+1}, 0\ns_mov_b64 exec, {3 if LFLAG else 1}\nbuffer_atomic_add v{vP+1}, v{vP}, {WSR}, s{sFa} offen sc0 sc1\ns_mov_b64 exec, -1"
        lE = a.newlabel("L_early")
        if EARLYA:
            sk = a.newlabel("L_ne")
            a(f"s_mov_b32 s32, 0\ns_cmp_lt_u32 s{sWAVE}, 4\ns_cbranch_scc1 {sk}\n{apoll0}")
            a.label(sk)
        if ADPRE == 1: emit(ad[:len(ad)*(100 - APRE)//100])
        if APRE: a(apoll0)
        if ADPRE == 1: emit(ad[len(ad)*(100 - APRE)//100:])
        if EARLYA:
            sk = a.newlabel("L_ne")
            a(f"s_cmp_lt_u32 s{sWAVE}, 4\ns_cbranch_scc1 {sk}\ns_waitcnt vmcnt(0)\n{atest}\ns_cbranch_scc0 {sk}\ns_mov_b32 s32, 1")
            sv = list(seq); emit(act(0) + act(1) + act(2)); seq[:] = sv
            a.label(sk)
        if not NOE1: a("s_barrier")
        self.stamp(4)
        apoll = f"v_mov_b32 v{vP+1}, 0\ns_mov_b64 exec, {3 if LFLAG else 1}\nbuffer_atomic_add v{vP+1}, v{vP}, {WSR}, s{sFa} offen sc0 sc1\ns_mov_b64 exec, -1"
        if EARLYA:
            sk = a.newlabel("L_ne")
            a(f"s_cmp_eq_u32 s32, 1\ns_cbranch_scc1 {sk}\n{apoll}")
            a.label(sk)
        elif ATP and not APRE: a(apoll)
        elif WOPOS != "pre" and not APRE: a(f"buffer_load_dword v{vP+1}, v{vP}, {WSR}, s{sFa} offen sc1")
        if NPL:
            sk = a.newlabel("L_np")
            a(f"s_cmp_ge_u32 s{sWAVE}, 4\ns_cbranch_scc1 {sk}")
            if KVD: a(f"s_cmp_eq_u32 s{sTYPE}, 0\ns_cbranch_scc1 {sk}")
            self.preload_b(0, NPRE, alt=72)
            a.label(sk)
        self.pickup()
        if WOPOS == "pre":
            a("s_waitcnt lgkmcnt(0)")
            emit(dma(sMb, 13, 0, "wo"))
        if not ADPRE: emit(ad)
        a("s_waitcnt lgkmcnt(0)")
        for k in range(5): a(f"ds_write_b128 v{X+18}, v[{K0+4*k}:{K0+4*k+3}] offset:{13312 + 1024*k}")
        if EARLYA: a(f"s_cmp_eq_u32 s32, 1\ns_cbranch_scc1 {lE}")
        if ATP:
            lp, dn = a.newlabel("L_ap"), a.newlabel("L_apd")
            a(f"s_mov_b32 s{t+15}, 0")
            if NPL:
                sk = a.newlabel("L_np")
                a(f"s_cmp_ge_u32 s{sWAVE}, 4\ns_cbranch_scc1 {lp}")
                if KVD:
                    a(f"s_cmp_lg_u32 s{sTYPE}, 0\ns_cbranch_scc1 {sk}\ns_waitcnt vmcnt(0)")
                    self.stamp(5)
                    if DONE: self.arrive(sF1, 64); self.arrive(32, 66)
                    else: self.signal(sF1, 70); self.signal(32, 70)
                    self.preload_b(0, NPRE, alt=72)
                    a(f"{atest}\ns_cbranch_scc1 {dn}\n{apoll}\ns_branch {lp}")
                    a.label(sk)
                a(f"s_waitcnt vmcnt({NPRE})\n{atest}\ns_cbranch_scc1 {dn}\n{apoll}")
            a.label(lp)
            a(f"s_waitcnt vmcnt(0)\n{atest}\ns_cbranch_scc1 {dn}\ns_add_u32 s{t+15}, s{t+15}, 1")
            a(f"s_cmp_ge_u32 s{t+15}, {SPIN}\ns_cbranch_scc1 {dn}\ns_sleep {ATP}\n{apoll}\ns_branch {lp}")
            a.label(dn)
        elif WOPOS == "pre": self.poll(f"s{sFa}", 2, vP, vP + 1)
        else:
            a("s_waitcnt vmcnt(0)")
            if LFLAG == 1:
                sk = a.newlabel("L_sig")
                a(f"s_cmp_ge_u32 s{sWAVE}, 4\ns_cbranch_scc1 {sk}")
                self.stamp(5)
                self.signal(sF1, 70); self.signal(32, 70)
                a.label(sk)
            check(f"s{sFa}", 2)
        self.stamp(6)
        def raise_done():
            sk = a.newlabel("L_dn")
            a(f"s_cmp_ge_u32 s{sWAVE}, 4\ns_cbranch_scc1 {sk}\ns_add_u32 s32, s32, {DONE_PQ - CNT_PQ}")
            a(f"s_sub_u32 s{sF1}, s{sF1}, {CNT_KV}\ns_lshr_b32 s{t+2}, s{sF1}, 9\ns_lshl_b32 s{t+2}, s{t+2}, 7\ns_bfe_u32 s{sF1}, s{sF1}, 0x20007\ns_lshl2_add_u32 s{sF1}, s{sF1}, s{t+2}\ns_add_u32 s{sF1}, s{sF1}, {DONE_KV}")
            self.raise_if_last(64, 15, sF1); self.raise_if_last(66, 24, 32)
            a.label(sk)
        if DONE and not KVD: raise_done()
        PR = {"f": {-1: 1, 4: 0}, "g": {-1: 2, 3: 1, 5: 0}, "h": {-1: 1, 5: 0, 6: 1}, "i": {-1: 1, 5: 0, 7: 1}, "a": {-1: 3, 2: 2, 5: 1, 6: 0}, "b": {-1: 3, 1: 2, 3: 1, 6: 0}, "c": {-1: 1, 5: 0}, "d": {-1: 2, 5: 1, 7: 0}, "e": {-1: 3, 3: 2, 6: 1, 8: 0}}.get(PRIO, {})
        prio = lambda k: a(f"s_setprio {PR[k]}") if k in PR else None
        if EARLYA:
            assert FVAT >= 0 and not A2L
            emit(act(0) + act(1) + act(2))
            a.label(lE)
        prio(-1)
        if not EARLYA: emit(act(0))
        a(f"v_lshlrev_b32 v{vP}, 7, v{LN}\nv_add_u32 v{vP}, s{sFk}, v{vP}\nv_cmp_le_u32 vcc, 4, v{LN}\nv_mov_b32 v{vG+1}, s{sFq}\nv_mov_b32 v{vG}, 16")
        a(f"v_cndmask_b32 v{vP}, v{vP}, v{vG+1}, vcc\nv_cndmask_b32 v{vG}, v{vG}, 25, vcc")
        if LFLAG: a(f"v_cmp_lt_u32 vcc, 4, v{LN}\ns_add_u32 s{t+2}, s{sFa}, 8\nv_mov_b32 v{vG+1}, s{t+2}\nv_cndmask_b32 v{vP}, v{vP}, v{vG+1}, vcc\nv_cndmask_b32 v{vG}, v{vG}, 2, vcc")
        if KVL: a(f"v_mov_b32 v{vP}, s{sFq}\nv_mov_b32 v{vG}, {1 if DONE else 25}")
        fv = lambda: (a(f"buffer_load_dword v{vP+1}, v{vP}, {WSR}, 0 offen sc1"), seq.append("fv"))
        if FVAT < 0: fv()
        if not EARLYA: emit(act(1) + ([] if A2L else act(2)))
        fill = (lambda: dma(sMb, 13, 0, "wo")) if WOPOS == "s0" else (lambda: (act(2) if A2L else []) + lateb(3))
        for i in range(5):
            prio(i)
            wait(f"act{i}")
            if DONE and KVD and i == 0: raise_done()
            if TAILDBG == 2 and i < 4: self.stamp((2, 3, 5, 7)[i], "tail")
            emit(interleave(mlp(i, i == 0), fill() if fill else []))
            fill = None
            if i == 0 and WOPOS == "s1": fill = lambda: dma(sMb, 13, 0, "wo")
            if i == 3 and WOPOS == "s4": fill = lambda: dma(sMb, 13, 0, "wo")
            if i == FVAT: fv()
            if i < 2 and not (LFLAG and i == 1): emit(act(i + 3))
            if i == PQAT:
                wait("fv")
                check("0", f"v{vG}", FSL)
                if KVL:
                    a(f"v_and_b32 v{vP}, 3, v{LN}\nv_lshlrev_b32 v{vP}, 7, v{vP}\nbuffer_load_dword v{KA+18}, v{vP}, {WSR}, s{sFk} offen sc1") if False else None
                if TAILDBG == 2: self.stamp(4, "tail")
                if LFLAG: emit(act(4))
                a(f"v_and_b32 v{vP+1}, 15, v{LN}\nv_lshlrev_b32 v{vP+1}, 2, v{vP+1}")
                kvf = [f"v_and_b32 v{vP}, 3, v{LN}", f"v_lshlrev_b32 v{vP}, {2 if DONE else 7}, v{vP}"]
                gaf = [f"v_and_b32 v{vP}, 15, v{LN}", f"v_lshlrev_b32 v{vP}, 2, v{vP}"]
                f1 = lambda: ((kvf + ldl(vP + 1, 1, vP, sFk, 0, "fk") + gaf) if KVL == 1 else []) + lateb(4) + pq(PQR, 0) + pq(PQR, 1) + gld(vP if KVL == 1 else vP + 1)
                if FILLI and i < 2: fill = f1
                else: emit(f1())
            if i == 2:
                a(f"v_add_u32 v{KA+19}, s{sLB}, v{vL16}")
                for k in range(5): a(f"ds_read_b128 v[{KA+4*k}:{KA+4*k+3}], v{KA+19} offset:{13312 + 1024*k}")
                a("s_waitcnt lgkmcnt(0)")
                if KVL == 2:
                    emit(kvf + ldl(vP + 1, 1, vP, sFk, 0, "fk"))
                    continue
            if i == (3 if KVL == 2 else 2):
                if KVL:
                    emit(kvf)
                    wait("fk")
                    check(f"s{sFk}", 1 if DONE else 16, FSL)
                f2 = lambda: dma(sKv, 7, 13312, "kv") + (act(5) + lateb() if WOPOS != "x" else []) + (dma(sMb, 13, 0, "wo") if WOPOS == "s3" else [])
                if FILLI: fill = f2
                else: emit(f2())
        self.stamp(7)
        prio(5)
        emit(consts)
        KP = 120
        wait("kv")
        self.stamp(8)
        gather(KA, lambda j: 200 + 4*j if j < 8 else 140 + 4*(j - 8), KP, PQR, 8)
        Oset = {1: ([200, 204, 208, 212, 216], 220), 0: ([162, 166, 170, 174, 224], 228)}
        SC = [178, 179, vP + 1]
        fq = fqf(PQR)
        S = lambda k: KP + 2*k
        def Xb(st):
            O, DN = Oset[st & 1]
            p0, p1, ps = fq(st, 0), fq(st, 2), fq(st, 4)
            return [K32(DN, S(16), p0, acc(196) if LATEORD else "0"), K32(O[3], S(10), p1, "0"), K32(O[4], S(12), p1, "0"), K32(DN, S(18), p1, acc(DN)),
                    K32(O[0], S(0), p0, "0"), K32(O[1], S(2), p0, "0"), K32(O[2], S(6), p0, "0"), K32(O[1], S(4), p1, acc(O[1])), K32(O[2], S(8), p1, acc(O[2])),
                    "s_nop 0", K16(DN, S(20), ps), K16(O[3], S(14), ps), K16(O[4], S(15), ps)]
        def Vb(st):
            O, DN = Oset[st & 1]
            if DIAG == 7: return []
            return scales(st, DN, SC) + sum((vtile(st, tt, O[tt], DN, SC, fq) for tt in range(5)), [])
        def Yb(st):
            r = []
            for p in range(2):
                r += [K32(20*st + 4*jn, MR + 4*(2*jn + p), fq(st, 2*p), acc(20*st + 4*jn)) for jn in range(5)]
            return r + ["s_nop 1"] + [K16(20*st + 4*jn, MR + 40 + 2*jn, fq(st, 4)) for jn in range(5)]
        a("s_nop 1")
        if TAILDBG == 1: self.stamp(2, "tail")
        late = (act(5) + lateb() + dma(sMb, 13, 0, "wo")) if WOPOS == "x" else []
        if DIAG == 5: late = late[:4]
        if LATEORD:
            assert NB == 5 and WOPOS == "x"
            lastb = late[8:10]; late = late[:8] + late[10:]
            i5 = seq.index("act5") + 8; seq.pop(i5); seq.append("act5")
            for k in range(4): a(f"v_mov_b32 v{196+k}, 0x358637bd")
            a("s_nop 1")
        cuts = [0] + [len(late)*c//100 for c in XSPLIT] + [len(late)]
        emit(interleave(Xb(0), late[cuts[0]:cuts[1]]))
        for st in range(1, 4):
            x = Xb(st)
            emit(interleave(x[:6], late[cuts[st]:cuts[st+1]]) + (lastb if LATEORD and st == 3 else []) + interleave(x[6:], Vb(st - 1)))
        a(f"v_add_u32 v{TA}, s{sLB}, v{vL16}\nv_lshlrev_b32 v{TA+1}, 3, v{LN}\nv_add_u32 v{TA+1}, s{sLB}, v{TA+1}")
        wor = [f"ds_read_b128 v[{MR+4*f}:{MR+4*f+3}], v{TA} offset:{1024*f}" for f in range(10)]
        wor += [f"ds_read_b64 v[{MR+40+2*jn}:{MR+41+2*jn}], v{TA+1} offset:{10240 + 512*jn}" for jn in range(5)]
        prio(6)
        if WOPOS in ("s3", "s4", "x"):
            if TAILDBG == 1: self.stamp(3, "tail")
            wait("act5")
            if TAILDBG == 1: self.stamp(4, "tail")
            emit(interleave(mlp(5, False), Vb(3)))
            if TAILDBG == 1: self.stamp(5, "tail")
            a("s_waitcnt vmcnt(0)")
            if TAILDBG == 1: self.stamp(6, "tail")
            emit(wor + rw)
        else:
            emit(wor)
            wait("act5")
            emit(interleave(mlp(5, False), Vb(3) + rw))
        a("s_waitcnt lgkmcnt(0)")
        if RED == 2:
            def aset(B, T, sbase):
                return [f"v_add_u32 v{B}, {sbase}, v{LN}", f"v_mul_u32_u24 v{T}, 6554, v{B}", f"v_lshrrev_b32 v{T}, 16, v{T}", f"v_mad_i32_i24 v{T+1}, v{T}, -10, v{B}",
                        f"v_lshlrev_b32 v{B+4}, 2, v{T}", f"buffer_load_dword v{B+4}, v{B+4}, {WSR}, s{t+2} offen sc1",
                        f"v_bfe_u32 v{B+1}, v{T}, 2, 1", f"v_xor_b32 v{B}, v{B}, v{B+1}", f"v_mul_u32_u24 v{T}, 1280, v{T}", f"v_lshl_add_u32 v{B+3}, v{T+1}, 4, v{T}",
                        f"v_lshlrev_b32 v{B}, 4, v{B}", f"v_add_u32 v{B+1}, 61440, v{B}", f"v_add_u32 v{B+2}, 122880, v{B}"]
            def rsum(sets):
                items = [(B, m, D, w) for B, m, D in sets for w in range(8)]
                def rdp(n):
                    B, m, D, w = items[n]
                    r = [f"ds_read_b128 v[{D+8*w+4*par}:{D+8*w+4*par+3}], v{B + w // 3} offset:{20480*(w % 3) + 10240*par}" for par in range(2)]
                    return r if m is None else [m] + r + ["s_mov_b64 exec, -1"]
                AH = 6
                for n in range(AH): emit(rdp(n))
                for n, (B, m, D, w) in enumerate(items):
                    if n + AH < len(items): emit(rdp(n + AH))
                    if w == 0: continue
                    a(f"s_waitcnt lgkmcnt({2*min(AH, len(items) - 1 - n)})")
                    if len(sets) == 2 and n < PLA:
                        for j in range(8): a(f"v_add_f32 v{D+j}, v{D+j}, v{D+8*w+j}")
                    else:
                        for j in range(4): a(f"v_pk_add_f32 v[{D+2*j}:{D+2*j+1}], v[{D+2*j}:{D+2*j+1}], v[{D+8*w+2*j}:{D+8*w+2*j+1}]")
                    if w == 7:
                        if n == 7 and len(sets) == 2: a("s_waitcnt vmcnt(0)")
                        for j in range(8): a(f"v_mul_f32 v{D+j}, v{B+4}, v{D+j}")
                        for j in range(4): a(f"v_cvt_pk_bf16_f32 v{D+j}, v{D+2*j}, v{D+2*j+1}")
                        if m: a(m)
                        a(f"buffer_store_dwordx4 v[{D}:{D+3}], v{B+3}, s[{SRD_M}:{SRD_M+3}], s{t} offen {OUTFL}")
                        if m: a("s_mov_b64 exec, -1")
            r2 = [f"s_mul_i32 s{t+3}, s{sWAVE}, 40", f"s_add_u32 s{t+3}, s{t+3}, 320"] + rd[3:5] + aset(170, 175, f"s{t+3}") + rd[-7:]
            emit(interleave(Yb(0), r2))
            prio(7)
            emit(interleave(Yb(1), wrl(0), 6))
            prio(8)
            if not R1E: emit(interleave(Yb(2), wrl(1), 6))
            if TAILDBG == 1: self.stamp(7, "tail")
            lo, lj = a.newlabel("L_ro"), a.newlabel("L_rj")
            a(f"s_cmp_lt_u32 s{sWAVE}, 4\ns_cbranch_scc1 {lo}")
            y3 = Yb(3)
            if R1E:
                y2 = Yb(2)
                emit(y2[:2] + interleave(y2[2:7], wrl(1)) + y2[7:R1E]); a("s_waitcnt lgkmcnt(0)\ns_barrier"); emit(y2[R1E:])
                emit(interleave(y3, wrl(2), 4, 10))
            else:
                emit(y3[:4]); a("s_waitcnt lgkmcnt(0)\ns_barrier"); emit(interleave(y3[4:], wrl(2), 2))
            a("s_nop 4")
            emit(wrl(3))
            a(f"s_waitcnt vmcnt(0)\ns_branch {lj}")
            a.label(lo)
            if R1E: emit(interleave(Yb(2), wrl(1), 6))
            emit(interleave(Yb(3), [f"s_mul_i32 s{t+3}, s{sWAVE}, 80"] + aset(200, 210, f"s{t+3}")[:5] + wrl(2) + aset(200, 210, "0")[5:]))
            a(f"s_add_u32 s{t+3}, s{t+3}, 64")
            emit(aset(205, 210, f"s{t+3}")[:8] + wrl(3) + aset(205, 210, "0")[8:])
            a("s_waitcnt lgkmcnt(0)\ns_barrier")
            rsum([(200, None, 0), (205, "s_mov_b64 exec, 0xffff", 64)])
            a.label(lj)
            a("s_waitcnt lgkmcnt(0)\ns_barrier")
            self.stamp(9)
            rsum([(170, "s_mov_b32 exec_hi, 0xff", 128 - 48)])
            return
        emit(interleave(Yb(0), rd[:25]))
        prio(7)
        emit(interleave(Yb(1), rd[25:] + wrl(0), 2))
        prio(8)
        emit(interleave(Yb(2), wrl(1), 6))
        emit(interleave(Yb(3), wrl(2), 6))
        a("s_nop 4")
        emit(wrl(3))
        a("s_waitcnt lgkmcnt(0)\ns_barrier")
        self.stamp(9)
        if RED == 0:
            for k in range(2):
                if k == 1: a("s_mov_b64 exec, 0xffff")
                R = 64*k
                for w in range(8):
                    for par in range(2):
                        base = [RA + k, RA + 6 + k, RA + 8 + k][w // 3]
                        a(f"ds_read_b128 v[{R+8*w+4*par}:{R+8*w+4*par+3}], v{base} offset:{20480*(w % 3) + 10240*par}")
            a("s_mov_b64 exec, -1")
            for k in range(2):
                R = 64*k
                a(f"s_waitcnt lgkmcnt({15 if k == 0 else 0})")
                for pairs in (((0, 4), (1, 5), (2, 6), (3, 7)), ((0, 2), (1, 3)), ((0, 1),)):
                    for x, y in pairs:
                        for j in range(4):
                            a(f"v_pk_add_f32 v[{R+8*x+2*j}:{R+8*x+2*j+1}], v[{R+8*x+2*j}:{R+8*x+2*j+1}], v[{R+8*y+2*j}:{R+8*y+2*j+1}]")
                if k == 0: a("s_waitcnt vmcnt(0)")
                for j in range(8): a(f"v_mul_f32 v{R+j}, v{TA+2+k}, v{R+j}")
                for j in range(4): a(f"v_cvt_pk_bf16_f32 v{R+j}, v{R+2*j}, v{R+2*j+1}")
                if k == 1: a("s_mov_b64 exec, 0xffff")
                a(f"buffer_store_dwordx4 v[{R}:{R+3}], v{RA+4+k}, s[{SRD_M}:{SRD_M+3}], s{t} offen {OUTFL}")
            a("s_mov_b64 exec, -1")


        else:
            items = [(k, w) for k in range(2) for w in range(8)]
            def rdp(n):
                k, w = items[n]
                base = [RA + k, RA + 6 + k, RA + 8 + k][w // 3]
                r = [f"ds_read_b128 v[{8*n+4*par}:{8*n+4*par+3}], v{base} offset:{20480*(w % 3) + 10240*par}" for par in range(2)]
                return r if k == 0 else ["s_mov_b64 exec, 0xffff"] + r + ["s_mov_b64 exec, -1"]
            AH = 6
            for n in range(AH): emit(rdp(n))
            for n, (k, w) in enumerate(items):
                if n + AH < 16: emit(rdp(n + AH))
                if w == 0: continue
                a(f"s_waitcnt lgkmcnt({2*min(AH, 15 - n)})")
                R = 64*k
                for j in range(4):
                    a(f"v_pk_add_f32 v[{R+2*j}:{R+2*j+1}], v[{R+2*j}:{R+2*j+1}], v[{8*n+2*j}:{8*n+2*j+1}]")
                if w == 7:
                    if k == 0: a("s_waitcnt vmcnt(0)")
                    for j in range(8): a(f"v_mul_f32 v{R+j}, v{TA+2+k}, v{R+j}")
                    for j in range(4): a(f"v_cvt_pk_bf16_f32 v{R+j}, v{R+2*j}, v{R+2*j+1}")
                    if k == 1: a("s_mov_b64 exec, 0xffff")
                    a(f"buffer_store_dwordx4 v[{R}:{R+3}], v{RA+4+k}, s[{SRD_M}:{SRD_M+3}], s{t} offen {OUTFL}")
            a("s_mov_b64 exec, -1")


DOC = """
; ------------------------------------------------------------------------------------------------
;   P  blocks: 192 hidden columns -> mish -> d_ws (MFMA fragment order); spare tile = phi(q) or the gate.
;   mish(h) = h*tanh(softplus(h)) = h - h*2/((1+e^h)^2+1);  phi(t) = max(min(e^t,1), t+1) + 1e-6.
; ------------------------------------------------------------------------------------------------
"""

def descriptor(name):
    return f""".p2align 6
.amdhsa_kernel {name}
  .amdhsa_next_free_vgpr 256
  .amdhsa_next_free_sgpr 102
  .amdhsa_accum_offset 256
  .amdhsa_group_segment_fixed_size 0
  .amdhsa_kernarg_size 88
  .amdhsa_user_sgpr_count 2
  .amdhsa_user_sgpr_kernarg_segment_ptr 1
  .amdhsa_system_sgpr_workgroup_id_x 1
.end_amdhsa_kernel
"""

def build(stamps):
    assert not DONE or (KVL and NPL and ADPRE == 2 and not QLAST and not LFLAG)
    ALT = 72 if ADPRE == 2 else None
    assert not (ADPRE == 2 and NE16)
    assert not LFLAG or (ROT2 == "none" and PQAT == 1 and not EARLYQ and WOPOS != "pre")
    g = Gen(stamps=stamps)
    a = g.a
    K = NAME + "_kernel"
    hdr = open(os.path.join(os.path.dirname(os.path.abspath(__file__)), "header.txt")).read()
    for l in hdr.strip().split("\n"): a.lines.append(l)
    a(f"; @launch grid=(256,1,1) block=(512,1,1) lds={LDS_TOTAL}")
    for l in DOC.strip().split("\n"): a.lines.append(l)
    a('.amdgcn_target "amdgcn-amd-amdhsa--gfx950"\n.text')
    a(f".globl {K}\n.p2align 8\n.type {K},@function")
    a.label(K)
    g.common_prologue("L_end")
    a(f"s_cmp_lt_u32 s{sWAVE}, 4\ns_cbranch_scc1 L_comp")
    g.loader1()
    a(f"s_setprio {LPRIO}")
    if not NE16:
        g.setup2(ADPRE != 2)
        g.srd(SRD_WS, pWS, WS_SIZE)
    g.preload_b(NE16, NL0, alt=ALT)
    if K1LDS: a(f"v_mov_b32 v76, {K1C}\nv_mov_b32 v77, 0\nds_write_b32 v76, v77\ns_waitcnt lgkmcnt(0)")
    a("s_barrier")
    if SKEW: a(f"v_mov_b32 v6, {HINT}\nv_mov_b32 v8, 0\nv_mov_b32 v9, 0\nv_mov_b32 v10, 0\nv_mov_b32 v11, 0\nds_write_b128 v6, v[8:11]\ns_waitcnt lgkmcnt(0)")
    g.preload_b(NL0, NL1, TH, alt=ALT)
    if not K1LDS: a(f"s_cmp_lg_u32 s{sTYPE}, 0\ns_cbranch_scc1 L_l2\ns_barrier")
    a.label("L_l2")
    if DIAG != 3: g.preload_b(NL1, 5*NB, TH, alt=ALT)
    if BLDS and DIAG != 3: g.stage_b()
    g.stamp(3)
    a.label("L_g2")
    g.gemm2()
    g.dump_stamps()
    a.label("L_end")
    a("s_endpgm")
    a.label("L_comp")
    a(f"s_cmp_eq_u32 s{sTYPE}, 0\ns_cbranch_scc1 L_kv")
    g.compute_P(); a("s_branch L_g2")
    a.label("L_kv")
    g.compute_KV(); a("s_branch L_g2")
    a.label("L_code_end")
    errs = lint(a.lines)
    for e in errs: print("HAZARD:", e, file=sys.stderr)
    return a.text() + '.section .rodata,"a"\n' + descriptor(K)

if __name__ == "__main__":
    open(sys.argv[1], "w").write(build(sys.argv[2] if len(sys.argv) > 2 else False))
```

```python
import sys, os, re
sys.path.insert(0, os.path.dirname(os.path.abspath(__file__)))
from asmlib import *

NAME = "gated_mix__linear_attn_block__dense_activation_mish__prompt"
ENV = os.environ.get

CNT_ACT, CNT_PQ, CNT_KV = 0, 256*128, 288*128
DONE_KV, DONE_PQ = 320*128, 328*128
WS_G = 0x10000
WS_KVP = 0x100000
WS_WOR = 0x200000
WS_W2R = 0x300000
WS_PQ = 0x500000
WS_ACT = 0x800000
WS_SIZE = 0x1000000
WS_STAMP = 0x8000000
BIG = 0x20000000
DBGW = int(ENV("DBGW", "0"))
ROTMODE = ENV("ROT", "two")
ROT2 = ENV("ROT2", "none")
NPRE = int(ENV("NPRE", "10"))
SPIN = int(ENV("SPIN", str(0x100000)))
WOAT = 3
ADPRE = int(ENV("ADPRE", "2"))
KVAT = int(ENV("KVAT", "-1"))
GSYNC = int(ENV("GSYNC", "0"))
PF = int(ENV("PF", "0"))
RS = int(ENV("RS", "3"))
S1AT = int(ENV("S1AT", "8"))
S1SLEEP = int(ENV("S1SLEEP", "2"))
LOOPDBG = int(ENV("LOOPDBG", "0"))
CPF = int(ENV("CPF", "1"))
RD = int(ENV("RD", "-1"))
SKEW = int(ENV("SKEW", "0"))
HINT = 3*20480 + 12800
TAILDBG = int(ENV("TAILDBG", "0"))
OUTFL = ENV("OUTFL", "").replace("_", " ")
LFLAG = int(ENV("LFLAG", "0"))
FAKE = int(ENV("FAKE", "0"))
SPLIT = int(ENV("SPLIT", "1"))
YSLEEP = int(ENV("YSLEEP", "8"))
PQAT = int(ENV("PQAT", "1"))
FILLI = int(ENV("FILLI", "1"))
FIRST0 = int(ENV("FIRST0", "0"))
PRIO = ENV("PRIO", "c")
LOOK = ENV("LOOK", "xw")
GBR = int(ENV("GBR", "0"))
STPRIO = int(ENV("STPRIO", "1"))
NRE = int(ENV("NRE", "20"))
SPREAD = int(ENV("SPREAD", "0"))
NE16 = int(ENV("NE16", "0"))
NL1 = int(ENV("NL1", "18"))
K1LDS = int(ENV("K1LDS", "1"))
K1C = 40960 + 2032
FVAT = int(ENV("FVAT", "0"))
WOPOS = ENV("WOPOS", "x")
RED = int(ENV("RED", "2"))
DIAG = int(ENV("DIAG", "0"))
LPRIO = int(ENV("LPRIO", "0"))
EPRIO = int(ENV("EPRIO", "0"))
TH = int(ENV("TH", "4"))
EARLYQ = int(ENV("EARLYQ", "0"))
NB = int(ENV("NB", "5"))
NTH = int(ENV("NTH", "36"))
XSPLIT = [int(v) for v in ENV("XSPLIT", "30,55,80").split(",")]
LRP = int(ENV("LRP", "0"))
MBOX = 161792
STRICTP = int(ENV("STRICTP", "1"))
LATEORD = int(ENV("LATEORD", "0"))
B20AT = int(ENV("B20AT", "14"))
MAP1 = ENV("MAP1", "q")
ROTQ = int(ENV("ROTQ", "1"))
RG = int(ENV("RG", "5"))
RX = int(ENV("RX", "2"))
RTAB = [int(c) for c in ENV("RTAB", "03703703")]
XTAB = [int(c) for c in ENV("XTAB", "01201212")]
RTABP = [int(c) for c in ENV("RTABP", ENV("RTAB", "03703703"))]
RCM = int(ENV("RCM", "1"))
NOE1 = int(ENV("NOE1", "0"))
ATP = int(ENV("ATP", "2"))
FAST0 = int(ENV("FAST0", "1"))
LP2 = int(ENV("LP2", "2"))
CP = int(ENV("CP", "0"))
NRK = int(ENV("NRK", "24"))
LARR = int(ENV("LARR", "2"))
A2L = int(ENV("A2L", "0"))
EARLYA = int(ENV("EARLYA", "0"))
B1M = int(ENV("B1M", "0"))
APRE = int(ENV("APRE", "0"))
R1E = int(ENV("R1E", "0"))
PLA = int(ENV("PLA", "0"))
QLAST = int(ENV("QLAST", "0"))
NPL = int(ENV("NPL", "1"))
PICK = int(ENV("PICK", "0"))
SLEEP = int(ENV("SLEEP", "8"))
BLDS = int(ENV("BLDS", "1"))
NL0 = int(ENV("NL0", "15"))
MAP2 = ENV("MAP2", "x2")
TOUCH = int(ENV("TOUCH", "0"))
MSDBG = int(ENV("MSDBG", "0"))
MSPRIO = int(ENV("MSPRIO", "1"))
MSPRIO2 = int(ENV("MSPRIO2", "1"))

XR = 0
STG = 40960
WR = 49152
WSLOT = 14336
NS = 6
GATE = WR + NS * WSLOT
SCR = GATE + 2048
MS = WR
BL = WR + 32768
BLF = STG + 2040
LDS_TOTAL = 163840

sWG = 2
pX, pWQKV, pWO, pW1, pB1, pW2, pGATE, pOUT, pDBG, pWS = 4, 6, 8, 12, 14, 16, 18, 20, 22, 24
sWAVE, sRB, sHALF, sCBL, sGRP, sF1, sROT, sPIDX, sTYPE, sT = 26, 27, 28, 29, 30, 31, 32, 33, 34, 35
SRD_WS, SRD_X, SRD_W, SRD_M, SRD_D = 36, 40, 44, 52, 56
T0 = 60
sST = 76
cL2E, cC, cE = 96, 98, 100
sR64, sC = 27, 28
sB0, sA0 = 40, 46
sPQb, sMb, sKv, sFk = 0, 1, 3, 29
sFa, sFq = 10, 11
BS, AB = 80, 200
PQR, MR, KA, KD = 80, 120, 120, 176
sLB, sN208 = 30, 33
vG, vP, vL16, vL16b = 248, 252, 254, 255
WSR = f"s[{SRD_WS}:{SRD_WS+3}]"


class Gen:
    def __init__(self, stamps=False):
        self.a = Asm()
        self.stamps = stamps

    def stamp(self, k, loop=False):
        if loop == "tail":
            if not TAILDBG: return
        elif TAILDBG and 1 <= k <= 7 and not (TAILDBG == 2 and k == 6): return
        elif LOOPDBG and k >= 3 and not loop: return
        elif loop and not LOOPDBG: return
        if self.stamps and not (self.stamps == "dbg" and k == 9):
            if k < 2 and self.stamps != "dbg" and loop != "tail":
                self.a(f"s_memtime s[58:59]\ns_waitcnt lgkmcnt(0)\ns_mov_b32 s{sST+2*k}, s58")
            else:
                self.a(f"s_memtime s[{sST+2*k}:{sST+2*k+1}]")

    def srd(self, d, ptr, size, add=None):
        a = self.a
        if add is None:
            a(f"s_mov_b32 s{d}, s{ptr}\ns_mov_b32 s{d+1}, s{ptr+1}")
        else:
            a(f"s_add_u32 s{d}, s{ptr}, {add}\ns_addc_u32 s{d+1}, s{ptr+1}, 0")
        a(f"s_mov_b32 s{d+2}, {size}\ns_mov_b32 s{d+3}, 0x20000")

    def signal(self, soff, v, off=0):
        self.a(f"v_mov_b32 v{v}, 1\nv_mov_b32 v{v+1}, 0\ns_mov_b64 exec, 1\nbuffer_atomic_add v{v}, v{v+1}, {WSR}, s{soff} offen offset:{off} sc1\ns_mov_b64 exec, -1")

    def arrive(self, soff, v):
        self.a(f"v_mov_b32 v{v}, 1\nv_mov_b32 v{v+1}, 0\ns_mov_b64 exec, 1\nbuffer_atomic_add v{v}, v{v+1}, {WSR}, s{soff} offen sc0 sc1\ns_mov_b64 exec, -1")

    def raise_if_last(self, v, last, soff):
        a = self.a
        sk = a.newlabel("L_last")
        a(f"v_readfirstlane_b32 s{T0+14}, v{v}\nv_mov_b32 v{v}, 1\nv_mov_b32 v{v+1}, 0\ns_cmp_lg_u32 s{T0+14}, {last}\ns_cbranch_scc1 {sk}")
        a(f"s_mov_b64 exec, 1\nbuffer_store_dword v{v}, v{v+1}, {WSR}, s{soff} offen sc1\ns_mov_b64 exec, -1")
        a.label(sk)

    def poll(self, soff, target, va, vd, srd=SRD_WS, sleep=None):
        a = self.a
        t = T0 + 15
        loop, done = a.newlabel("L_poll"), a.newlabel("L_polld")
        a(f"s_mov_b32 s{t}, 0")
        a.label(loop)
        a(f"buffer_load_dword v{vd}, v{va}, s[{srd}:{srd+3}], {soff} offen sc1\ns_waitcnt vmcnt(0)")
        a(f"v_cmp_le_u32 vcc, {target}, v{vd}\ns_add_u32 s{t}, s{t}, 1\ns_nop 0")
        a(f"s_cmp_eq_u64 vcc, -1\ns_cbranch_scc1 {done}")
        a(f"s_sleep {SLEEP if sleep is None else sleep}\ns_cmp_lt_u32 s{t}, {SPIN}\ns_cbranch_scc1 {loop}")
        a.label(done)

    def dump_stamps(self):
        if not self.stamps:
            return
        a = self.a
        a("s_waitcnt vmcnt(0) lgkmcnt(0)")
        a(f"s_memrealtime s[{T0}:{T0+1}]\ns_memtime s[{T0+2}:{T0+3}]")
        if self.stamps == "dbg":
            self.srd(SRD_M, pDBG, 256)
            a("s_waitcnt lgkmcnt(0)\nv_mov_b32 v2, 0\ns_mov_b64 exec, 1")
            sk = a.newlabel("L_dbg")
            a(f"s_lshl_b32 s{T0+5}, s{sWG}, 3\ns_add_u32 s{T0+5}, s{T0+5}, s{sWAVE}\ns_cmp_lg_u32 s{T0+5}, {DBGW}\ns_cbranch_scc1 {sk}")
            for k in range(1, 10):
                a(f"s_sub_u32 s{T0+5}, s{sST+2*k}, s{sST}\nv_mov_b32 v{3+k}, s{T0+5}")
            a(f"s_sub_u32 s{T0+5}, s{T0+2}, s{sST}\nv_mov_b32 v13, s{T0+5}\ns_sub_u32 s{T0+5}, s{T0}, s94\nv_mov_b32 v14, s{T0+5}\nv_mov_b32 v15, s94")
            for k in range(3):
                a(f"buffer_store_dwordx4 v[{4+4*k}:{7+4*k}], v2, s[{SRD_M}:{SRD_M+3}], 0 offen offset:{16+16*k}")
            a.label(sk)
            a("s_waitcnt vmcnt(0)")
            return
        a(f"s_getreg_b32 s{T0+4}, hwreg(HW_REG_XCC_ID)")
        self.srd(SRD_M, pWS, 0x10000000)
        a("s_waitcnt lgkmcnt(0)")
        for k in range(10):
            a(f"v_mov_b32 v{k}, s{sST+2*k}")
        a(f"v_mov_b32 v10, s{T0}\nv_mov_b32 v11, s{T0+2}\nv_mov_b32 v12, s{T0+4}\nv_mov_b32 v13, s{sTYPE}\nv_mov_b32 v14, s77\nv_mov_b32 v15, s79")
        a(f"s_lshl_b32 s{T0+5}, s{sWG}, 3\ns_add_u32 s{T0+5}, s{T0+5}, s{sWAVE}\ns_lshl_b32 s{T0+5}, s{T0+5}, 6\ns_add_u32 s{T0+5}, s{T0+5}, {WS_STAMP}")
        a("v_mov_b32 v16, 0\ns_mov_b64 exec, 1")
        for k in range(4):
            a(f"buffer_store_dwordx4 v[{4*k}:{4*k+3}], v16, s[{SRD_M}:{SRD_M+3}], s{T0+5} offen offset:{16*k}")
        a("s_waitcnt vmcnt(0)")

    def common_prologue(self, endlabel):
        a = self.a
        t = T0
        a(f"s_cmp_ge_u32 s{sWG}, 256\ns_cbranch_scc1 {endlabel}")
        a("s_load_dwordx16 s[4:19], s[0:1], 0\ns_load_dwordx4 s[20:23], s[0:1], 64\ns_load_dwordx2 s[24:25], s[0:1], 80")
        if self.stamps:
            for k in range(10): a(f"s_mov_b32 s{sST+2*k}, 0")
            if self.stamps == "dbg": a("s_memrealtime s[94:95]")
            else: a("s_memrealtime s[56:57]\ns_memtime s[58:59]\ns_waitcnt lgkmcnt(0)\ns_mov_b32 s77, s56\ns_mov_b32 s79, s58")
        if CPF:
            sk = a.newlabel("L_cpf")
            a(f"s_getpc_b64 s[{t}:{t+1}]\nL_pc0:\ns_lshr_b32 s{t+2}, s{sWG}, 3\ns_lshl_b32 s{t+2}, s{t+2}, 11\nv_lshlrev_b32 v2, 4, v0\nv_add_u32 v2, s{t+2}, v2")
            a(f"v_cmp_gt_u32 vcc, 128, v0\nv_min_u32 v2, L_code_end-L_pc0-16, v2\ns_and_saveexec_b64 s[{t+4}:{t+5}], vcc\ns_cbranch_execz {sk}")
            a(f"global_load_dwordx4 v[248:251], v2, s[{t}:{t+1}]")
            a.label(sk)
            a(f"s_mov_b64 exec, s[{t+4}:{t+5}]")
        a("v_lshrrev_b32 v1, 6, v0\nv_and_b32 v0, 63, v0")
        a(f"v_readfirstlane_b32 s{sWAVE}, v1")
        if MAP1 == "h":
            a(f"s_bfe_u32 s{t+2}, s{sWG}, 0x20001\ns_bfe_u32 s{t+3}, s{sWG}, 0x20003")
            a(f"s_lshl2_add_u32 s{sRB}, s{t+2}, s{t+3}\ns_and_b32 s{sHALF}, s{sWG}, 1\ns_lshr_b32 s{sCBL}, s{sWG}, 5")
            a(f"s_and_b32 s{t}, s{sCBL}, 3\ns_lshl2_add_u32 s{sGRP}, s{sHALF}, s{t}\ns_lshr_b32 s{sTYPE}, s{sCBL}, 2")
        else:
            a(f"s_bfe_u32 s{t+2}, s{sWG}, 0x10002\ns_bfe_u32 s{t+3}, s{sWG}, 0x30003\ns_lshl3_add_u32 s{sRB}, s{t+2}, s{t+3}")
            a(f"s_bfe_u32 s{sHALF}, s{sWG}, 0x10001\ns_lshr_b32 s{sTYPE}, s{sWG}, 7\ns_bfe_u32 s{t}, s{sWG}, 0x10006\ns_and_b32 s{t+1}, s{sWG}, 1")
            a(f"s_lshl1_add_u32 s{t+4}, s{t+1}, s{t}\ns_lshl1_add_u32 s{t+5}, s{t}, s{t+1}\ns_cmp_eq_u32 s{sTYPE}, 0\ns_cselect_b32 s{t}, s{t+4}, s{t+5}")
            a(f"s_lshl2_add_u32 s{sCBL}, s{sTYPE}, s{t}\ns_lshl2_add_u32 s{sGRP}, s{sHALF}, s{t}")
            tab = sum(v << (4*n) for n, v in enumerate(RTAB))
            xtab = sum(v << (4*n) for n, v in enumerate(XTAB))
            a(f"s_lshr_b32 s{t+4}, s{sWG}, 6\ns_mul_i32 s{t+4}, s{t+4}, {RCM}\ns_add_u32 s{t+4}, s{t+4}, s{t+3}\ns_and_b32 s{t+4}, s{t+4}, 7\ns_lshl_b32 s{t+4}, s{t+4}, 2")
            tabp = sum(v << (4*n) for n, v in enumerate(RTABP))
            if tabp != tab: a(f"s_mov_b32 s{t+5}, {tabp:#x}\ns_cmp_eq_u32 s{sTYPE}, 0\ns_cselect_b32 s{t+5}, {tab:#x}, s{t+5}\ns_lshr_b32 s{t+4}, s{t+5}, s{t+4}\ns_and_b32 s{t+4}, s{t+4}, 15")
            else: a(f"s_lshr_b32 s{t+4}, {tab:#x}, s{t+4}\ns_and_b32 s{t+4}, s{t+4}, 15")
            a(f"s_and_b32 s{t+5}, s{sWG}, 7\ns_lshl_b32 s{t+5}, s{t+5}, 2\ns_lshr_b32 s{t+5}, {xtab:#x}, s{t+5}\ns_and_b32 s{t+5}, s{t+5}, 15\ns_add_u32 s{sROT}, s{t+4}, s{t+5}")
            if max(RTAB + RTABP) + max(XTAB) >= 10: a(f"s_sub_u32 s{t+4}, s{sROT}, 10\ns_cmp_ge_u32 s{sROT}, 10\ns_cselect_b32 s{sROT}, s{t+4}, s{sROT}")
        if MAP1 != "h": pass
        elif ROTMODE == "full":
            a(f"s_mul_i32 s{t+4}, s{t+3}, 5\ns_add_u32 s{t+4}, s{t+4}, 1\ns_lshr_b32 s{t+4}, s{t+4}, 1")
            a(f"s_add_u32 s{t+4}, s{t+4}, s{sCBL}\ns_add_u32 s{t+4}, s{t+4}, s{t+2}")
            a(f"s_mul_i32 s{t+5}, s{sHALF}, 5\ns_add_u32 s{sROT}, s{t+4}, s{t+5}")
            for _ in range(2):
                a(f"s_sub_u32 s{t+4}, s{sROT}, 10\ns_cmp_ge_u32 s{sROT}, 10\ns_cselect_b32 s{sROT}, s{t+4}, s{sROT}")
        elif ROTMODE == "none":
            a(f"s_mov_b32 s{sROT}, 0")
        elif ROTMODE == "xcd":
            a(f"s_mul_i32 s{t+4}, s{t+2}, 5\ns_add_u32 s{t+4}, s{t+4}, 1\ns_lshr_b32 s{t+4}, s{t+4}, 1\ns_add_u32 s{sROT}, s{t+4}, s{sHALF}")
        elif ROTMODE == "two0":
            a(f"s_add_u32 s{t+4}, s{t+3}, s{sCBL}\ns_and_b32 s{t+4}, s{t+4}, 1\ns_mul_i32 s{sROT}, s{t+4}, 5")
        elif ROTMODE == "two1":
            a(f"s_add_u32 s{t+4}, s{t+3}, s{sCBL}\ns_and_b32 s{t+4}, s{t+4}, 1\ns_mul_i32 s{t+4}, s{t+4}, 5\ns_and_b32 s{t+5}, s{t+2}, 1\ns_lshl1_add_u32 s{sROT}, s{t+5}, s{t+4}")
        elif ROTMODE == "two":
            a(f"s_add_u32 s{t+4}, s{t+3}, s{sCBL}\ns_and_b32 s{t+4}, s{t+4}, 1\ns_mul_i32 s{t+4}, s{t+4}, 5")
            a(f"s_add_u32 s{t+4}, s{t+4}, s{t+2}\ns_add_u32 s{sROT}, s{t+4}, s{sHALF}")

    def loader1(self):
        a = self.a
        t = T0
        sLW = sT
        vXE, vXO, vW, vGt = 2, 3, 4, 8
        sStr, sCol, sA32, sA64, sOff, sXo, sWB, sWB2, sXB, sXP, sSel = 48, 49, 50, 51, t+4, t+5, t+6, t+7, t+8, t+9, t+10
        sKind = 72
        a(f"s_setprio 2\ns_sub_u32 s{sLW}, s{sWAVE}, 4")
        a("v_lshrrev_b32 v10, 3, v0\nv_and_b32 v11, 7, v0\nv_lshrrev_b32 v12, 4, v0\nv_mul_u32_u24 v13, 1280, v10\nv_xor_b32 v14, v11, v12")
        a(f"s_and_b32 s{t}, s{sLW}, 1\ns_lshl_b32 s{t}, s{t}, 6")
        a(f"v_lshl_add_u32 v13, v14, 4, v13\nv_xor_b32 v{vXE}, s{t}, v13\nv_xor_b32 v{vXO}, 64, v{vXE}")
        if FAST0: a("v_mov_b32 v16, v13\nv_xor_b32 v17, 64, v13")
        if FIRST0: a(f"s_mov_b32 s{sA32}, 0\ns_mov_b32 s{sA64}, 0\ns_min_u32 s{sROT}, s{sROT}, 8")
        else: a(f"s_lshl_b32 s{sA32}, s{sROT}, 1\ns_mov_b32 s{sA64}, s{sROT}")
        a(f"s_mul_i32 s{sXB}, s{sLW}, 3072\ns_mul_i32 s{sXP}, s{sLW}, 30720")
        for k in range(6, 10): a(f"v_mov_b32 v{k}, {BIG}")
        if FAST0: a(f"s_mov_b32 s{sWB2}, 0")
        lKV, lQH, lLN, lJ = a.newlabel("L_wkv"), a.newlabel("L_wqh"), a.newlabel("L_wln"), a.newlabel("L_wj")
        a(f"s_cmp_eq_u32 s{sTYPE}, 0\ns_cbranch_scc1 {lKV}")
        a(f"s_cmp_eq_u32 s{sLW}, 3\ns_cbranch_scc1 {lQH}")
        a(f"s_mov_b32 s{sSel}, 1\ns_mov_b32 s{sStr}, 3072\ns_mul_i32 s{sCol}, s{sGRP}, 3\ns_add_u32 s{sCol}, s{sCol}, s{sLW}\ns_lshl_b32 s{sCol}, s{sCol}, 7\ns_lshl_b32 s{sWB}, s{sLW}, 12")
        a.label(lLN)
        a(f"v_and_b32 v13, 4, v10\nv_add_u32 v13, v13, v10\nv_mul_u32_u24 v13, s{sStr}, v13\nv_lshlrev_b32 v12, 1, v12\nv_xor_b32 v12, v11, v12\nv_lshl_add_u32 v{vW}, v12, 4, v13")
        a(f"s_lshl_b32 s{t}, s{sStr}, 4\ns_lshl_b32 s{t+1}, s{sStr}, 2\nv_add_u32 v{vW+1}, s{t}, v{vW}\nv_add_u32 v{vW+2}, s{t+1}, v{vW}\nv_add_u32 v{vW+3}, s{t}, v{vW+2}")
        a(f"s_branch {lJ}")
        a.label(lQH)
        a(f"s_mov_b32 s{sSel}, 0\ns_mov_b32 s{sStr}, 3840\ns_lshl_b32 s{sCol}, s{sHALF}, 1\ns_add_u32 s{sCol}, s{sCol}, s{sCBL}\ns_add_u32 s{sCol}, s{sCol}, 12\ns_lshl_b32 s{sCol}, s{sCol}, 6")
        a(f"s_cmp_lt_u32 s{sCBL}, 6\ns_cselect_b32 s{sCol}, s{sCol}, {BIG}\ns_mov_b32 s{sWB}, 12288\ns_mov_b32 s{sWB2}, 13312")
        a(f"v_lshrrev_b32 v10, 2, v0\nv_and_b32 v13, 12, v10\nv_add_u32 v13, v13, v10\nv_mul_u32_u24 v13, 3840, v13\nv_and_b32 v11, 3, v0\nv_and_b32 v12, 1, v12\nv_lshlrev_b32 v12, 1, v12\nv_xor_b32 v12, v11, v12")
        a(f"v_lshl_add_u32 v{vW}, v12, 4, v13\nv_add_u32 v{vW+1}, 15360, v{vW}")
        a(f"s_lshl_b32 s{t}, s{sROT}, 3\nv_mov_b32 v14, {BIG}")
        for j in range(2):
            if FIRST0:
                a(f"v_add_u32 v10, {64*j}, v0\nv_add_u32 v11, s{t}, v10\nv_subrev_u32 v12, 72, v11\nv_cmp_gt_u32 vcc, 80, v11\ns_nop 1\nv_cndmask_b32 v11, v12, v11, vcc\nv_cmp_gt_u32 vcc, 8, v10\ns_nop 1\nv_cndmask_b32 v11, v11, v10, vcc")
                a(f"v_cmp_gt_u32 vcc, 80, v10\nv_lshlrev_b32 v11, 4, v11\ns_nop 0\nv_cndmask_b32 v{vGt+j}, v14, v11, vcc")
            else:
                a(f"v_add_u32 v10, {64*j}, v0\nv_add_u32 v11, s{t}, v10\nv_cmp_gt_u32 vcc, 80, v10\nv_subrev_u32 v12, 80, v11\nv_min_u32 v11, v11, v12\nv_lshlrev_b32 v11, 4, v11\nv_cndmask_b32 v{vGt+j}, v14, v11, vcc")
        a(f"s_branch {lJ}")
        a.label(lKV)
        a(f"s_mov_b32 s{sSel}, 0\ns_mov_b32 s{sStr}, 3840\ns_mul_i32 s{sWB}, s{sLW}, 5120\ns_lshl_b32 s{sCol}, s{sGRP}, 7")
        a(f"s_cmp_eq_u32 s{sLW}, 2\ns_cbranch_scc1 {lLN}")
        a(f"s_mul_i32 s{sCol}, s{sGRP}, 160\ns_cmp_eq_u32 s{sLW}, 1\ns_cselect_b32 s{t}, 2560, 1280\ns_add_u32 s{sCol}, s{sCol}, s{t}")
        a(f"s_cmp_eq_u32 s{sLW}, 3\ns_cselect_b32 s{t}, 256, 0\ns_cselect_b32 s{sWB}, 4096, s{sWB}\ns_mov_b32 s{sWB2}, 9216")
        a(f"v_add_u32 v14, s{t}, v0")
        for j in range(4):
            a(f"v_add_u32 v10, {64*j}, v14\nv_mul_u32_u24 v11, 6554, v10\nv_lshrrev_b32 v11, 16, v11\nv_mad_i32_i24 v10, v11, -10, v10")
            a("v_and_b32 v12, 12, v11\nv_and_b32 v13, 3, v11\nv_lshl_or_b32 v12, v12, 1, v13\nv_bfe_u32 v13, v11, 4, 1\nv_lshl_or_b32 v12, v13, 2, v12")
            a(f"v_mul_u32_u24 v12, 3840, v12\nv_lshl_add_u32 v{vW+j}, v10, 4, v12")
            if j == 0:
                a(f"v_add_u32 v{vW+1}, 1280, v{vW}\ns_cmp_eq_u32 s{sLW}, 3\ns_cbranch_scc1 {lJ}")
        a.label(lJ)
        a(f"s_lshl_b32 s{sStr}, s{sStr}, 5\ns_mul_i32 s{t}, s{sRB}, 163840")
        a("s_waitcnt lgkmcnt(0)")
        self.stamp(0)
        self.srd(SRD_X, pX, 163840, add=f"s{t}")
        if FAST0:
            a(f"s_mul_i32 s{sXo}, s{sLW}, 40960\ns_lshl_b32 s{t}, s{sA64}, 7\ns_add_u32 s{sXo}, s{sXo}, s{t}\ns_lshl_b32 s{t}, s{sLW}, 12")
            for j in range(4):
                a(f"s_add_u32 m0, s{t}, {XR + 1024*j}\n" + ("s_nop 0" if j == 0 else f"s_add_u32 s{sXo}, s{sXo}, 10240") + f"\nbuffer_load_dwordx4 v{16 + (j & 1)}, s[{SRD_X}:{SRD_X+3}], s{sXo} offen lds")
        a(f"s_cmp_eq_u32 s{sSel}, 0\ns_cselect_b32 s{SRD_W}, s{pWQKV}, s{pW1}\ns_cselect_b32 s{SRD_W+1}, s{pWQKV+1}, s{pW1+1}\ns_cselect_b32 s{SRD_W+2}, {640*1920*2}, {640*1536*2}\ns_mov_b32 s{SRD_W+3}, 0x20000")
        if FAST0:
            if FIRST0: a(f"s_add_u32 s{sA64}, s{sROT}, 1")
            else: a(f"s_add_u32 s{sA64}, s{sA64}, 1\ns_cmp_eq_u32 s{sA64}, 10\ns_cselect_b32 s{sA64}, 0, s{sA64}")
            g4, gj = a.newlabel("L_f4"), a.newlabel("L_fj")
            a(f"s_add_u32 s{t+1}, s{sWB}, 1024\ns_cmp_eq_u32 s{sLW}, 3\ns_cselect_b32 s{t+1}, s{sWB2}, s{t+1}\ns_cselect_b32 s{t+2}, s{sCBL}, 0\ns_cmp_ge_u32 s{t+2}, 6\ns_cbranch_scc1 {g4}")
            for i in range(2):
                sk = a.newlabel("L_f2")
                a(f"s_mul_i32 s{sOff}, s{sA32}, s{sStr}\ns_add_u32 m0, s{sWB}, {WR + i*WSLOT}\ns_add_u32 s{sOff}, s{sOff}, s{sCol}\nbuffer_load_dwordx4 v{vW}, s[{SRD_W}:{SRD_W+3}], s{sOff} offen lds")
                a(f"s_add_u32 m0, s{t+1}, {WR + i*WSLOT}\ns_cmp_eq_u32 s{sLW}, 3\nbuffer_load_dwordx4 v{vW+1}, s[{SRD_W}:{SRD_W+3}], s{sOff} offen lds\ns_cbranch_scc1 {sk}")
                for j in (2, 3):
                    a(f"s_add_u32 m0, s{sWB}, {WR + i*WSLOT + 1024*j}\ns_nop 0\nbuffer_load_dwordx4 v{vW+j}, s[{SRD_W}:{SRD_W+3}], s{sOff} offen lds")
                a.label(sk)
                if FIRST0 and i == 1: a(f"s_lshl1_add_u32 s{sA32}, s{sROT}, 2")
                else: a(f"s_add_u32 s{sA32}, s{sA32}, 1\ns_cmp_eq_u32 s{sA32}, 20\ns_cselect_b32 s{sA32}, 0, s{sA32}")
            a(f"s_branch {gj}")
            a.label(g4)
            self.srd(SRD_M, pGATE, 1280)
            for j in range(2):
                a(f"s_mov_b32 m0, {GATE + 1024*j}\ns_nop 0\nbuffer_load_dwordx4 v{vGt+j}, s[{SRD_M}:{SRD_M+3}], 0 offen lds")
            a.label(gj)
        lab3, lab4, labj = a.newlabel("L_ld3"), a.newlabel("L_ld4"), a.newlabel("L_ldj")
        lab0k, lab3k = a.newlabel("L_ld0k"), a.newlabel("L_ld3k")
        a(f"s_cmp_eq_u32 s{sLW}, 3\ns_cbranch_scc1 {lab3}")
        for variant, rp in (((0, 1), (0, 0), (3, 1), (3, 0), (4, 1)) if LRP else ((0, 0), (3, 0), (4, 0))):
            if LRP and (variant, rp) == (0, 1): a(f"s_cmp_eq_u32 s{sTYPE}, 0\ns_cbranch_scc1 {lab0k}")
            if LRP and (variant, rp) == (0, 0): a.label(lab0k)
            if LRP and (variant, rp) == (3, 0): a.label(lab3k)
            if variant == 3 and (rp or not LRP):
                a.label(lab3)
                a(f"s_cmp_ge_u32 s{sCBL}, 6\ns_cbranch_scc1 {lab4}")
                if LRP: a(f"s_cmp_eq_u32 s{sTYPE}, 0\ns_cbranch_scc1 {lab3k}")
            if variant == 4:
                a.label(lab4)
            nW = {0: 4, 3: 2, 4: 0}[variant]
            nX = 3 if variant == 0 else 7
            seq = []
            def issue_W(i):
                if nW == 0: return
                a(f"s_mul_i32 s{sOff}, s{sA32}, s{sStr}")
                for j in range(nW):
                    base, off = (sWB, 1024*j) if variant == 0 else ((sWB, sWB2)[j], 0)
                    a(f"s_add_u32 m0, s{base}, {WR + (i % NS)*WSLOT + off}")
                    a(f"s_add_u32 s{sOff}, s{sOff}, s{sCol}" if j == 0 else "s_nop 0")
                    a(f"buffer_load_dwordx4 v{vW+j}, s[{SRD_W}:{SRD_W+3}], s{sOff} offen lds")
                    seq.append(("W", i))
                if FIRST0 and i == 1: a(f"s_lshl1_add_u32 s{sA32}, s{sROT}, 2")
                else: a(f"s_add_u32 s{sA32}, s{sA32}, 1\ns_cmp_eq_u32 s{sA32}, 20\ns_cselect_b32 s{sA32}, {2 if FIRST0 else 0}, s{sA32}")
            def issue_X(jx):
                a(f"s_lshl_b32 s{sXo}, s{sA64}, 7")
                for j in range(nX):
                    a(f"s_add_u32 m0, s{sXB}, {XR + (jx % 3)*16384 + 1024*j}")
                    a(f"s_add_u32 s{sXo}, s{sXo}, " + (f"s{sXP}" if j == 0 else "10240"))
                    a(f"buffer_load_dwordx4 v{vXE + (j & 1)}, s[{SRD_X}:{SRD_X+3}], s{sXo} offen lds")
                    seq.append(("X", jx))
                if FIRST0 and jx == 0: a(f"s_add_u32 s{sA64}, s{sROT}, 1")
                else: a(f"s_add_u32 s{sA64}, s{sA64}, 1\ns_cmp_eq_u32 s{sA64}, 10\ns_cselect_b32 s{sA64}, {1 if FIRST0 else 0}, s{sA64}")
            def wait_for(items):
                last = max([n for n, it in enumerate(seq) if it in items] + [-1])
                if last >= 0: a(f"s_waitcnt vmcnt({len(seq) - 1 - last})")
            if FAST0:
                seq += [("X", 0)]*4 + [("W", 0)]*(nW if variant != 4 else 2) + [("W", 1)]*nW
            else:
                issue_X(0); issue_W(0)
                if variant == 4:
                    self.srd(SRD_M, pGATE, 1280)
                    for j in range(2):
                        a(f"s_mov_b32 m0, {GATE + 1024*j}\ns_nop 0\nbuffer_load_dwordx4 v{vGt+j}, s[{SRD_M}:{SRD_M+3}], 0 offen lds")
                        seq.append(("W", 0))
                issue_W(1)
            wait_for([("W", 0), ("X", 0)] + ([("W", 1)] if B1M == 1 else [])); self.stamp(1); a("s_barrier")
            issue_X(1)
            if B1M == 2: issue_W(2)
            if B1M == 3: issue_W(2); issue_W(3)
            if B1M != 1: wait_for([("W", 1)]); a("s_barrier")
            if B1M < 2: issue_W(2)
            if B1M < 3: issue_W(3)
            issue_X(2); issue_W(4)
            if LOOK == "full": issue_W(5)
            for j in range(1, 10):
                if j == (8 if NE16 else 9) and variant == 0:
                    sk = a.newlabel("L_s1skip")
                    a(f"s_cmp_lg_u32 s{sWAVE}, 4\ns_cbranch_scc1 {sk}")
                    self.srd(SRD_D, pDBG, 256)
                    a("v_mov_b32 v74, 128")
                    self.poll("0", 1, 74, 75, SRD_D, S1SLEEP)
                    a.label(sk)
                if rp and j == LRP + 2:
                    last = max(n for n, it in enumerate(seq) if it in (("W", 2*j), ("W", 2*j + 1), ("X", j)))
                    N = len(seq) - 1 - last
                    w1, w2, w3 = a.newlabel("L_wv"), a.newlabel("L_wv"), a.newlabel("L_wv")
                    a(f"s_cmp_eq_u32 s{sKind}, 1\ns_cbranch_scc1 {w1}\ns_cmp_eq_u32 s{sKind}, 2\ns_cbranch_scc1 {w2}\ns_waitcnt vmcnt({N})\ns_branch {w3}\n{w1}:\ns_waitcnt vmcnt({N+4})\ns_branch {w3}\n{w2}:\ns_waitcnt vmcnt({N+8})\n{w3}:")
                else:
                    wait_for([("W", 2*j), ("W", 2*j + 1), ("X", j)])
                if LARR and variant == 0 and j == S1AT//2 + LARR:
                    sk = a.newlabel("L_s1b")
                    a(f"s_cmp_lg_u32 s{sT+0}, 0\ns_cbranch_scc1 {sk}\ns_cmp_eq_u32 s{sTYPE}, 0\ns_cbranch_scc1 {sk}\nv_readfirstlane_b32 s{t}, v70\nv_mov_b32 v71, 1\ns_cmp_lg_u32 s{t}, 127\ns_cbranch_scc1 {sk}")
                    self.srd(SRD_D, pDBG, 256)
                    a(f"v_mov_b32 v69, 0\ns_mov_b64 exec, 1\nbuffer_store_dword v71, v69, s[{SRD_D}:{SRD_D+3}], 0 offen offset:128 sc1\ns_mov_b64 exec, -1")
                    a.label(sk)
                if rp and variant == 0 and j == LRP + 4:
                    sk = a.newlabel("L_s1b")
                    a(f"s_cmp_lg_u32 s{sWAVE}, 4\ns_cbranch_scc1 {sk}\nv_readfirstlane_b32 s{t}, v70\nv_mov_b32 v71, 1\ns_cmp_lg_u32 s{t}, 127\ns_cbranch_scc1 {sk}")
                    self.srd(SRD_D, pDBG, 256)
                    a(f"s_mov_b64 exec, 1\nbuffer_store_dword v71, v69, s[{SRD_D}:{SRD_D+3}], 0 offen offset:128 sc1\ns_mov_b64 exec, -1")
                    a.label(sk)
                a("s_barrier")
                if rp and j == LRP:
                    self.srd(SRD_WS, pWS, WS_SIZE)
                    sk = a.newlabel("L_z")
                    a(f"v_lshlrev_b32 v69, 4, v0\ns_cmp_ge_u32 s{sLW}, 2\ns_cbranch_scc1 {sk}\ns_lshl3_add_u32 s{t}, s{sRB}, s{sGRP}\ns_lshl_b32 s{t}, s{t}, 9\ns_mul_i32 s{t+1}, s{sLW}, {WS_KVP}\ns_add_u32 s{t}, s{t}, s{t+1}")
                    a("v_mov_b32 v64, 0\nv_mov_b32 v65, 0\nv_mov_b32 v66, 0\nv_mov_b32 v67, 0\ns_mov_b32 exec_hi, 0")
                    a(f"buffer_store_dwordx4 v[64:67], v69, {WSR}, s{t} offen sc1\ns_mov_b32 exec_hi, -1")
                    a.label(sk)
                if rp and variant == 0 and j == LRP + 3:
                    sk = a.newlabel("L_s1a")
                    a(f"s_cmp_lg_u32 s{sWAVE}, 4\ns_cbranch_scc1 {sk}")
                    self.srd(SRD_D, pDBG, 256)
                    a(f"v_mov_b32 v70, 1\ns_mov_b64 exec, 1\nbuffer_atomic_add v70, v69, s[{SRD_D}:{SRD_D+3}], 0 offen sc0 sc1\ns_mov_b64 exec, -1")
                    a.label(sk)
                if LOOK == "ramp" and j == 1: issue_W(5)
                if j + 1 < 10 and LOOK == "xw": issue_W(2*j + 3)
                if j + 2 < 10: issue_X(j + 2); issue_W(2*j + 4)
                if j + 2 < 10 and LOOK != "xw": issue_W(2*j + 5)
                if LARR and variant == 0 and j == S1AT//2:
                    sk = a.newlabel("L_s1a")
                    a(f"s_cmp_lg_u32 s{sT+0}, 0\ns_cbranch_scc1 {sk}\ns_cmp_eq_u32 s{sTYPE}, 0\ns_cbranch_scc1 {sk}")
                    self.srd(SRD_D, pDBG, 256)
                    a(f"v_mov_b32 v70, 1\nv_mov_b32 v69, 0\ns_mov_b64 exec, 1\nbuffer_atomic_add v70, v69, s[{SRD_D}:{SRD_D+3}], 0 offen sc0 sc1\ns_mov_b64 exec, -1")
                    a.label(sk)
                if rp and j == LRP:
                    a(f"s_lshl_b32 s{t}, s{sLW}, 6\ns_add_u32 s{t}, s{t}, {MBOX}\nv_mov_b32 v68, s{t}\nds_read_b128 v[16:19], v68\nds_read_b128 v[20:23], v68 offset:16\nds_read_b32 v24, v68 offset:32")
                    a(f"v_lshrrev_b32 v10, 2, v0\nv_and_b32 v11, 3, v0\nv_lshlrev_b32 v11, 3, v11\nv_lshl_add_u32 v10, v10, 7, v11\ns_lshl_b32 s{t}, s{sLW}, 12\ns_add_u32 s{t}, s{t}, {SCR}\nv_add_u32 v10, s{t}, v10")
                    for r in range(2):
                        for u in range(4):
                            a(f"ds_read_b64_tr_b16 v[{32+16*r+4*u}:{33+16*r+4*u}], v10 offset:{8192*r + 32*u}\nds_read_b64_tr_b16 v[{34+16*r+4*u}:{35+16*r+4*u}], v10 offset:{8192*r + 32*u + 2048}")
                    a(f"s_waitcnt lgkmcnt(0)\nv_readfirstlane_b32 s{sKind}, v24\nv_lshrrev_b32 v25, 1, v69")
                    for u in range(4): a(f"v_add_u32 v{16+u}, v{16+u}, v69")
                    for u in range(4):
                        a(f"buffer_store_dwordx4 v[{32+4*u}:{35+4*u}], v{16+u}, {WSR}, 0 offen sc1"); seq.append(("S", u))
                if rp and j == LRP + 1:
                    k2, k3 = a.newlabel("L_r2"), a.newlabel("L_r2")
                    a(f"s_cmp_eq_u32 s{sKind}, 0\ns_cbranch_scc1 {k2}\ns_cmp_eq_u32 s{sKind}, 2\ns_cbranch_scc1 {k3}")
                    for u in range(4): a(f"v_add_u32 v{20+u}, v{20+u}, v69\nbuffer_store_dwordx4 v[{48+4*u}:{51+4*u}], v{20+u}, {WSR}, 0 offen sc1")
                    a(f"s_branch {k2}\n{k3}:\ns_mov_b32 s{t}, 12800")
                    for u in range(4): a(f"v_add_u32 v{20+u}, v{20+u}, v25\nbuffer_store_dwordx2 v[{48+4*u}:{49+4*u}], v{20+u}, {WSR}, 0 offen sc1\nbuffer_store_dwordx2 v[{50+4*u}:{51+4*u}], v{20+u}, {WSR}, s{t} offen sc1")
                    a.label(k2)
                if ADPRE == 2 and 4 <= j < 8: self.adpart(j - 4)
                if j == 8 and NE16:
                    self.setup2()
                    self.srd(SRD_WS, pWS, WS_SIZE)
                    self.preload_b(0, NE16)
                    seq.extend(["B"] * NE16)
            if variant != 4:
                a(f"s_branch {labj}")
        a.label(labj)
        self.stamp(2)

    def mish_quad(self, h, dst, tmp):
        P = lambda r: f"v[{r}:{r+1}]"
        return [
            f"v_pk_fma_f32 {P(tmp)}, {P(h)}, s[{cL2E}:{cL2E+1}], -0.5 op_sel_hi:[1,1,0]",
            f"v_pk_fma_f32 {P(tmp+2)}, {P(h+2)}, s[{cL2E}:{cL2E+1}], -0.5 op_sel_hi:[1,1,0]",
            f"v_exp_f32 v{tmp}, v{tmp}", f"v_exp_f32 v{tmp+1}, v{tmp+1}", f"v_exp_f32 v{tmp+2}, v{tmp+2}", f"v_exp_f32 v{tmp+3}, v{tmp+3}",
            f"v_pk_add_f32 {P(tmp)}, {P(tmp)}, s[{cC}:{cC+1}]", f"v_pk_add_f32 {P(tmp+2)}, {P(tmp+2)}, s[{cC}:{cC+1}]",
            f"v_pk_fma_f32 {P(tmp)}, {P(tmp)}, {P(tmp)}, 0.5 op_sel_hi:[1,1,0]",
            f"v_pk_fma_f32 {P(tmp+2)}, {P(tmp+2)}, {P(tmp+2)}, 0.5 op_sel_hi:[1,1,0]",
            f"v_rcp_f32 v{tmp}, v{tmp}", f"v_rcp_f32 v{tmp+1}, v{tmp+1}", f"v_rcp_f32 v{tmp+2}, v{tmp+2}", f"v_rcp_f32 v{tmp+3}, v{tmp+3}",
            f"v_pk_fma_f32 {P(tmp)}, {P(h)}, {P(tmp)}, {P(h)} neg_lo:[1,0,0] neg_hi:[1,0,0]",
            f"v_pk_fma_f32 {P(tmp+2)}, {P(h+2)}, {P(tmp+2)}, {P(h+2)} neg_lo:[1,0,0] neg_hi:[1,0,0]",
            f"v_cvt_pk_bf16_f32 v{dst}, v{tmp}, v{tmp+1}", f"v_cvt_pk_bf16_f32 v{dst+1}, v{tmp+2}, v{tmp+3}",
        ]

    def phi_quad(self, h, dst, tmp):
        P = lambda r: f"v[{r}:{r+1}]"
        return [
            f"v_pk_mul_f32 {P(tmp)}, {P(h)}, s[{cL2E}:{cL2E+1}]", f"v_pk_mul_f32 {P(tmp+2)}, {P(h+2)}, s[{cL2E}:{cL2E+1}]",
            f"v_exp_f32 v{tmp}, v{tmp} clamp", f"v_exp_f32 v{tmp+1}, v{tmp+1} clamp", f"v_exp_f32 v{tmp+2}, v{tmp+2} clamp", f"v_exp_f32 v{tmp+3}, v{tmp+3} clamp",
            f"v_pk_add_f32 {P(h)}, {P(h)}, s[{cC}:{cC+1}]", f"v_pk_add_f32 {P(h+2)}, {P(h+2)}, s[{cC}:{cC+1}]",
            f"v_pk_add_f32 {P(tmp)}, {P(tmp)}, s[{cE}:{cE+1}]", f"v_pk_add_f32 {P(tmp+2)}, {P(tmp+2)}, s[{cE}:{cE+1}]",
            f"v_max_f32 v{tmp}, v{tmp}, v{h}", f"v_max_f32 v{tmp+1}, v{tmp+1}, v{h+1}", f"v_max_f32 v{tmp+2}, v{tmp+2}, v{h+2}", f"v_max_f32 v{tmp+3}, v{tmp+3}, v{h+3}",
            f"v_cvt_pk_bf16_f32 v{dst}, v{tmp}, v{tmp+1}", f"v_cvt_pk_bf16_f32 v{dst+1}, v{tmp+2}, v{tmp+3}",
        ]

    def consts(self, kind):
        if kind == "mish":
            self.a(f"s_mov_b32 s{cC}, 0x3f3504f3\ns_mov_b32 s{cC+1}, 0x3f3504f3")
        else:
            self.a(f"s_mov_b32 s{cC}, 0x3f800008\ns_mov_b32 s{cC+1}, 0x3f800008\ns_mov_b32 s{cE}, 0x358637bd\ns_mov_b32 s{cE+1}, 0x358637bd")

    def main_loop(self, reads, mfmas, extra, nread_end, bases):
        a = self.a
        if CP: a(f"s_setprio {CP}")
        a("s_barrier")
        self.stamp(1)
        for l in reads(0): a(l)
        for l in extra.get(0, ([], [], []))[1]: a(l)
        a("s_waitcnt lgkmcnt(0)")
        for i in range(1, 21):
            if ((i == 1 and B1M != 1) or i % 2 == 0) and i < 20: a("s_barrier")
            if i in (2, 4, 6, 8, 10, 14, 18): self.stamp(3 + (2, 4, 6, 8, 10, 14, 18).index(i), True)
            pre, fill, preb = extra.get(i, ([], [], []))
            for l in pre: a(l)
            if i < 20:
                tail = []
                if (i + 1) % 3 == 0 and i + 1 < 20:
                    op = "v_add_u32" if ((i + 1) % NS) == 3 else "v_subrev_u32"
                    tail = [f"{op} v{b}, {3*WSLOT}, v{b}" for b in bases]
                body = interleave(mfmas(i - 1), reads(i) + fill + tail, 0, nread_end)
                for l in body: a(l)
                for l in preb: a(l)
                a("s_waitcnt lgkmcnt(0)")
            else:
                m19 = mfmas(19)
                for l in m19[:B20AT] + ["s_barrier"] + m19[B20AT:]: a(l)
        self.stamp(2)

    def finish1(self, flags, strict=False, late8=False):
        a = self.a
        self.setup2()
        if LFLAG == 2 and late8: a(f"s_add_u32 s{flags[0]}, s{flags[0]}, 8")
        if LFLAG == 1:
            if late8: a(f"s_add_u32 s{flags[0]}, s{flags[0]}, 8")
            a(f"s_mov_b32 s32, s{flags[1]}")
            self.preload_b(0, NPRE)
            return
        if strict:
            if ADPRE == 2:
                a(f"s_mov_b32 s32, s{flags[1]}"); flags = [flags[0], 32]
                self.adblock()
            if QLAST and late8:
                k1, k2 = a.newlabel("L_q"), a.newlabel("L_q")
                a(f"s_cmp_ge_u32 s{flags[1]}, {BIG}\ns_cbranch_scc1 {k1}\ns_waitcnt vmcnt(2)")
                self.signal(flags[0], 70)
                a("s_waitcnt vmcnt(1)")
                self.signal(flags[1], 70)
                a(f"s_branch {k2}\n{k1}:\ns_waitcnt vmcnt(0)")
                self.signal(flags[0], 70)
                a.label(k2)
                self.stamp(5)
                flags = []
            else:
                a("s_waitcnt vmcnt(0)")
                self.stamp(5)
            for f in flags: self.signal(f, 70)
            if not NPL: self.preload_b(0, NPRE, alt=(72 if ADPRE == 2 else None))
            return
        self.preload_b(0, NPRE)
        a(f"s_waitcnt vmcnt({NPRE})")
        self.stamp(5)
        for f in flags: self.signal(f, 1)
        if not BLDS:
            self.preload_b(NPRE, 30)
            return

    def pickup(self):
        a = self.a
        t = T0
        sk = a.newlabel("L_pk")
        a(f"s_cmp_ge_u32 s{sWAVE}, 4\ns_cbranch_scc1 {sk}")
        a(f"s_mul_i32 s{t+14}, s{sWAVE}, 20480\ns_add_u32 s{t+14}, s{t+14}, {BL}\nv_add_u32 v{BS+117}, s{t+14}, v{vL16}")
        for n in range(5*NB - 10):
            a(f"ds_read_b128 v[{BS+40+4*n}:{BS+43+4*n}], v{BS+117} offset:{1024*n}")
        a.label(sk)

    def prefetch(self, vL, v, S=SRD_X):
        a = self.a
        t = T0
        for ptr, size, share, n in ((pX, 2048*1280, 10240, 3), (pWQKV, 640*3840, 9600, 3), (pW1, 640*3072, 7680, 2))[:(1 if PF == 2 else 3)]:
            self.srd(S, ptr, size)
            per = -(-share // 4 // 128) * 128
            a(f"s_mul_i32 s{t}, s{sWG}, {share}\ns_and_b32 s{t}, s{t}, 0xffffff80\ns_mul_i32 s{t+1}, s{sWAVE}, {per}\ns_add_u32 s{t}, s{t}, s{t+1}\ns_min_u32 s{t}, s{t}, {size - n*1024}")
            for k in range(n):
                a(f"buffer_load_dwordx4 v[{v}:{v+3}], v{vL}, s[{S}:{S+3}], s{t} offen offset:{1024*k}")

    def touch(self, vLane, v):
        a = self.a
        t = T0
        a(f"v_lshlrev_b32 v{v}, 21, v{vLane}\nv_add_u32 v{v}, 0xff000, v{v}\ns_mov_b64 exec, 0xff")
        a(f"buffer_load_dword v{v+1}, v{v}, {WSR}, 0 offen")
        self.srd(SRD_M, pOUT, 2048*640*2)
        a(f"v_lshlrev_b32 v{v}, 20, v{vLane}\ns_mov_b64 exec, 7\nbuffer_load_dword v{v+2}, v{v}, s[{SRD_M}:{SRD_M+3}], 0 offen")
        self.srd(SRD_M, pWO, 640*640*2)
        a(f"v_lshlrev_b32 v{v}, 19, v{vLane}\ns_mov_b64 exec, 3\nbuffer_load_dword v{v+3}, v{v}, s[{SRD_M}:{SRD_M+3}], 0 offen\ns_mov_b64 exec, -1")

    def compute_P(self):
        a = self.a
        t = T0
        ACC, XB, WB, BI = 0, 112, 144, 200
        vX0, vX1, vH0, vH1, vQ, vGt, vL, vRd, vRr, vBo, vT = 228, 229, 230, 231, 232, 233, 234, 235, 236, 237, 238
        vLane = 253
        sSH, sNH = sT, 48
        sAct, sPq, sF2, sGs = 49, 72, 73, 74
        a(f"v_mov_b32 v{vLane}, v0\ns_lshr_b32 s{sSH}, s{sWAVE}, 1\ns_and_b32 s{sNH}, s{sWAVE}, 1")
        a(f"v_and_b32 v1, 15, v0\nv_lshrrev_b32 v2, 4, v0\nv_lshrrev_b32 v3, 1, v1\nv_xor_b32 v3, v3, v2\nv_lshlrev_b32 v3, 4, v3\nv_lshl_add_u32 v3, v1, 7, v3")
        a(f"s_lshl_b32 s{t}, s{sSH}, 13\nv_add_u32 v{vX0}, s{t}, v3\nv_xor_b32 v{vX1}, 64, v{vX0}")
        a(f"v_lshrrev_b32 v3, 2, v0\nv_and_b32 v4, 3, v0\nv_lshlrev_b32 v4, 3, v4")
        a(f"v_lshl_add_u32 v5, v3, 7, v4\nv_bfe_u32 v6, v0, 3, 2\ns_lshl_b32 s{t}, s{sNH}, 1\nv_xor_b32 v6, s{t}, v6\nv_lshl_add_u32 v6, v6, 5, v5")
        a(f"v_add_u32 v{vH0}, {WR}, v6\nv_xor_b32 v{vH1}, 32, v{vH0}")
        a(f"v_lshl_add_u32 v6, v3, 6, v4\nv_and_b32 v7, 1, v2\nv_xor_b32 v7, s{sNH}, v7\nv_lshl_add_u32 v6, v7, 5, v6\nv_add_u32 v{vQ}, {WR+12288}, v6")
        a(f"v_lshlrev_b32 v6, 4, v2\nv_add_u32 v{vGt}, {GATE}, v6\nv_lshlrev_b32 v{vL}, 4, v0\nv_lshlrev_b32 v{vBo}, 3, v2")
        a(f"v_lshrrev_b32 v6, 3, v0\nv_mul_u32_u24 v6, 1280, v6\nv_and_b32 v7, 7, v0\nv_lshl_add_u32 v{vRd}, v7, 4, v6")
        a(f"s_lshl_b32 s{t}, s{sWAVE}, 12\ns_add_u32 s{t}, s{t}, {SCR}\nv_add_u32 v{vRr}, s{t}, v5")
        a(f"s_lshl3_add_u32 s{sPIDX}, s{sRB}, s{sGRP}")
        a(f"s_mov_b32 s{cL2E}, 0x3fb8aa3b\ns_mov_b32 s{cL2E+1}, 0x3fb8aa3b")
        a(f"s_lshl2_add_u32 s{t}, s{sPIDX}, s{sWAVE}\ns_min_u32 s{t}, s{t}, 479")
        a(f"s_mul_i32 s{t+1}, s{t}, 6554\ns_lshr_b32 s{t+1}, s{t+1}, 16\ns_mul_i32 s{t+2}, s{t+1}, 10\ns_sub_u32 s{t+2}, s{t}, s{t+2}")
        a(f"s_mul_i32 s{t+6}, s{t+1}, 40960\ns_lshl_b32 s{t+3}, s{t+2}, 7\ns_add_u32 s{t+6}, s{t+6}, s{t+3}")
        a(f"s_mul_i32 s{t+7}, s{sGRP}, 384\ns_lshl_b32 s{t+3}, s{sNH}, 6\ns_add_u32 s{t+7}, s{t+7}, s{t+3}")
        a("s_waitcnt lgkmcnt(0)")
        self.stamp(0)
        self.srd(SRD_M, pB1, 3072)
        self.srd(SRD_W, pW2, 1536*640*2)
        for u in range(6):
            a(f"buffer_load_dwordx2 v[{BI+4*u+2}:{BI+4*u+3}], v{vBo}, s[{SRD_M}:{SRD_M+3}], s{t+7} offen offset:{128*(u >> 1) + 32*(u & 1)}")
        sSrc1 = 69
        a(f"s_mov_b32 s{sSrc1}, s{t+6}")
        self.srd(SRD_WS, pWS, WS_SIZE)
        if TOUCH == 2: self.touch(vLane, 240)
        dsts = [10, 11, 1, 3]
        for u in range(4):
            a(f"s_lshl2_add_u32 s{t+3}, s{t+2}, {u}\ns_mul_i32 s{t+4}, s{t+3}, 205\ns_lshr_b32 s{t+4}, s{t+4}, 10")
            a(f"s_mul_i32 s{t+5}, s{t+4}, 235\ns_add_u32 s{t+5}, s{t+5}, s{t+3}\ns_mul_i32 s{t+4}, s{t+1}, 5\ns_add_u32 s{t+5}, s{t+5}, s{t+4}")
            a(f"s_lshl_b32 s{t+5}, s{t+5}, 10\ns_add_u32 s{t+5}, s{t+5}, {WS_W2R}")
            if LRP: a(f"s_mov_b32 s{dsts[u]}, s{t+5}")
            else: a(f"s_cmp_lt_u32 s{sPIDX}, 120\ns_cselect_b32 s{dsts[u]}, s{t+5}, {BIG}")
        d2, sSrc2, sK2, sInc2 = 40, 0, 75, 70
        self.srd(SRD_M, pWO, 640*640*2)
        a(f"s_lshl1_add_u32 s{t}, s{sPIDX}, s{sWAVE}\ns_sub_u32 s{t}, s{t}, 2")
        a(f"s_cmp_lt_u32 s{t}, 160\ns_cselect_b32 s{sK2}, 1, 2\ns_cmp_lt_u32 s{t}, 200\ns_cselect_b32 s{sK2}, s{sK2}, 0\ns_cmp_lt_u32 s{sWAVE}, 2\ns_cselect_b32 s{sK2}, 0, s{sK2}")
        a(f"s_mul_i32 s{t+1}, s{t}, 6554\ns_lshr_b32 s{t+1}, s{t+1}, 16\ns_mul_i32 s{t+2}, s{t+1}, 10\ns_sub_u32 s{t+2}, s{t}, s{t+2}")
        a(f"s_lshr_b32 s{t+3}, s{t+1}, 1\ns_and_b32 s{t+4}, s{t+1}, 1\ns_sub_u32 s{t+5}, s{t+1}, 16\ns_lshl_b32 s{t+5}, s{t+5}, 1")
        a(f"s_cmp_eq_u32 s{sK2}, 2\ns_cselect_b32 s{t+3}, s{t+5}, s{t+3}\ns_cselect_b32 s{t+4}, 2, s{t+4}\ns_cselect_b32 s{sInc2}, {10240 + 64*1280}, 10240")
        a(f"s_mul_i32 s{sSrc2}, s{t+3}, {80*1280}\ns_mul_i32 s{t+5}, s{t+4}, {32*1280}\ns_add_u32 s{sSrc2}, s{sSrc2}, s{t+5}\ns_lshl_b32 s{t+5}, s{t+2}, 7\ns_add_u32 s{sSrc2}, s{sSrc2}, s{t+5}")
        a(f"s_mul_i32 s{t+3}, s{t+3}, 12800\ns_lshl_b32 s{t+5}, s{t+4}, 10\ns_cmp_eq_u32 s{sK2}, 2\ns_cselect_b32 s{t+5}, 10240, s{t+5}\ns_cselect_b32 s{t+6}, 512, 2048\ns_add_u32 s{t+3}, s{t+3}, s{t+5}\ns_add_u32 s{t+3}, s{t+3}, {WS_WOR}")
        for u in range(4):
            a(f"s_lshl2_add_u32 s{t+4}, s{t+2}, {u}\ns_mul_i32 s{t+5}, s{t+4}, 205\ns_lshr_b32 s{t+5}, s{t+5}, 10\ns_mul_i32 s{t+7}, s{t+5}, 5\ns_sub_u32 s{t+4}, s{t+4}, s{t+7}")
            a(f"s_mul_i32 s{t+5}, s{t+5}, 102400\ns_mul_i32 s{t+4}, s{t+4}, s{t+6}\ns_add_u32 s{t+5}, s{t+5}, s{t+4}\ns_add_u32 s{d2+u}, s{t+5}, s{t+3}")
        sRb64 = t + 11
        a(f"s_lshl1_add_u32 s{sRb64}, s{sRB}, s{sSH}")
        a(f"s_mul_i32 s{t}, s{sRb64}, 48\ns_mul_i32 s{t+1}, s{sGRP}, 6\ns_add_u32 s{t}, s{t}, s{t+1}\ns_add_u32 s{t}, s{t}, s{sNH}\ns_lshl_b32 s{t}, s{t}, 12")
        a(f"s_add_u32 s{sAct}, s{t}, {WS_ACT}\ns_add_u32 s{sAct+1}, s{t}, {WS_ACT + 8192}\ns_add_u32 s{sAct+2}, s{t}, {WS_ACT + 16384}")
        a(f"s_mul_i32 s{t}, s{sRb64}, 40\ns_lshl2_add_u32 s{t}, s{sHALF}, s{t}\ns_lshl1_add_u32 s{t}, s{sCBL}, s{t}\ns_add_u32 s{t}, s{t}, s{sNH}\ns_add_u32 s{t}, s{t}, 24\ns_lshl_b32 s{t}, s{t}, 11\ns_add_u32 s{sPq}, s{t}, {WS_PQ}")
        a(f"s_lshl3_add_u32 s{sF1}, s{sRb64}, s{sGRP}\ns_lshl_b32 s{sF1}, s{sF1}, 7")
        a(f"s_lshl1_add_u32 s{t}, s{sGRP}, s{sNH}\ns_cmp_eq_u32 s{t}, 5\ns_cselect_b32 s{sGs}, 1, 0")
        a(f"s_lshl_b32 s{sF2}, s{sRb64}, 7\ns_add_u32 s{sF2}, s{sF2}, {CNT_PQ}\ns_cmp_lt_u32 s{sCBL}, 6\ns_cselect_b32 s{t}, 1, s{sGs}\ns_cmp_eq_u32 s{t}, 1\ns_cselect_b32 s{sF2}, s{sF2}, {BIG}")
        a(f"s_cmp_ge_u32 s{sCBL}, 6\ns_cselect_b64 vcc, -1, 0")
        def reads(i):
            b = i & 1; so = (i % 3) * WSLOT
            xs = XR + ((i >> 1) % 3) * 16384
            r = [f"ds_read_b128 v[{XB+16*b+4*s}:{XB+16*b+4*s+3}], v{vX1 if i & 1 else vX0} offset:{xs + 2048*s}" for s in range(4)]
            for u in range(6):
                d = WB + 28*b + 4*u
                r.append(f"ds_read_b64_tr_b16 v[{d}:{d+1}], v{vH0 + (u & 1)} offset:{so + 4096*(u >> 1)}")
                r.append(f"ds_read_b64_tr_b16 v[{d+2}:{d+3}], v{vH0 + (u & 1)} offset:{so + 4096*(u >> 1) + 2048}")
            d = WB + 28*b + 24
            if GBR:
                l1, l2 = a.newlabel("L_g"), a.newlabel("L_gj")
                r.append(f"s_cbranch_vccnz {l1}\nds_read_b64_tr_b16 v[{d}:{d+1}], v{vQ} offset:{so}\nds_read_b64_tr_b16 v[{d+2}:{d+3}], v{vQ} offset:{so + 1024}\ns_branch {l2}\n"
                         f"{l1}:\nds_read_b128 v[{d}:{d+3}], v{vGt} offset:{64*i}\n{l2}:")
            else:
                r += [f"ds_read_b64_tr_b16 v[{d}:{d+1}], v{vQ} offset:{so}", f"ds_read_b64_tr_b16 v[{d+2}:{d+3}], v{vQ} offset:{so + 1024}",
                      f"s_mov_b64 exec, vcc\nds_read_b128 v[{d}:{d+3}], v{vGt} offset:{64*i}\ns_mov_b64 exec, -1"]
            return r
        def mfmas(i):
            b = i & 1
            r = []
            for u in (range(7) if i < 19 or QLAST else (6, 0, 1, 2, 3, 4, 5)):
                for s in range(4):
                    d = ACC + 16*u + 4*s
                    c = f"v[{d}:{d+3}]" if i > 0 else ("0" if u == 6 else f"v[{BI+4*u}:{BI+4*u+3}]")
                    r.append(f"v_mfma_f32_16x16x32_bf16 v[{d}:{d+3}], v[{WB+28*b+4*u}:{WB+28*b+4*u+3}], v[{XB+16*b+4*s}:{XB+16*b+4*s+3}], {c}")
            return r
        unpack = [f"s_waitcnt vmcnt({(3 if TOUCH == 2 else 0) + (4 if RD < 0 else 0) + {0: 0, 1: 8, 2: 3}[PF]})"]
        for u in range(6):
            p = BI + 4*u
            unpack += [f"v_lshlrev_b32 v{p}, 16, v{p+2}", f"v_and_b32 v{p+1}, 0xffff0000, v{p+2}", f"v_lshlrev_b32 v{p+2}, 16, v{p+3}", f"v_and_b32 v{p+3}, 0xffff0000, v{p+3}"]
        RP = BI
        rp_reads = []
        for u in range(4):
            rp_reads += [f"ds_read_b64_tr_b16 v[{RP+4*u}:{RP+4*u+1}], v{vRr} offset:{32*u}", f"ds_read_b64_tr_b16 v[{RP+4*u+2}:{RP+4*u+3}], v{vRr} offset:{32*u + 2048}"]
        rp_st = [f"buffer_store_dwordx4 v[{RP+4*u}:{RP+4*u+3}], v{vL}, {WSR}, s{dsts[u]} offen sc1" for u in range(4)]
        z = [f"s_lshl_b32 s{t}, s{sPIDX}, 9", f"s_mul_i32 s{t+1}, s{sWAVE}, {WS_KVP}", f"s_add_u32 s{t}, s{t}, s{t+1}", f"s_cmp_lt_u32 s{sWAVE}, 2", f"s_cselect_b32 s{t}, s{t}, {BIG}"] + \
            [f"v_mov_b32 v{RP+16+k}, 0" for k in range(4)] + \
            [f"s_mov_b32 exec_hi, 0\nbuffer_store_dwordx4 v[{RP+16}:{RP+19}], v{vL}, {WSR}, s{t} offen sc1\ns_mov_b32 exec_hi, -1"]
        k1, k2, k3, k4 = [a.newlabel("L_r2") for _ in range(4)]
        dma1 = [f"s_lshl_b32 s{t+3}, s{sWAVE}, 12"]
        for j in range(4):
            dma1.append(f"s_add_u32 m0, s{t+3}, {SCR + 1024*j}\ns_nop 0\nbuffer_load_dwordx4 v{vRd}, s[{SRD_W}:{SRD_W+3}], s{sSrc1} offen lds\ns_add_u32 s{sSrc1}, s{sSrc1}, 10240")
        rp_reads2 = [l.replace("offset:", "offset:8192+") for l in rp_reads]
        dma2 = f"s_cmp_eq_u32 s{sK2}, 0\ns_cbranch_scc1 {k1}\n"
        for j in range(4):
            dma2 += f"s_add_u32 m0, s{t+3}, {SCR + 8192 + 1024*j}\ns_nop 0\nbuffer_load_dwordx4 v{vRd}, s[{SRD_M}:{SRD_M+3}], s{sSrc2} offen lds\n"
            if j < 3: dma2 += f"s_add_u32 s{sSrc2}, s{sSrc2}, " + (f"s{sInc2}" if j == 1 else "10240") + "\n"
        dma2 += k1 + ":"
        st2 = f"s_cmp_eq_u32 s{sK2}, 0\ns_cbranch_scc1 {k2}\ns_cmp_eq_u32 s{sK2}, 2\ns_cbranch_scc1 {k3}\n"
        st2 += "".join(f"buffer_store_dwordx4 v[{RP+4*u}:{RP+4*u+3}], v{vL}, {WSR}, s{d2+u} offen sc1\n" for u in range(4))
        st2 += f"s_branch {k2}\n{k3}:\nv_lshrrev_b32 v{vT}, 1, v{vL}\n"
        for u in range(4):
            st2 += f"buffer_store_dwordx2 v[{RP+4*u}:{RP+4*u+1}], v{vT}, {WSR}, s{d2+u} offen sc1\ns_add_u32 s{d2+u}, s{d2+u}, 12800\n"
            st2 += f"buffer_store_dwordx2 v[{RP+4*u+2}:{RP+4*u+3}], v{vT}, {WSR}, s{d2+u} offen sc1\n"
        st2 += k2 + ":"
        sk, sk2 = a.newlabel("L_s1a"), a.newlabel("L_s1b")
        arr = [f"s_cmp_lg_u32 s{sWAVE}, 0", f"s_cbranch_scc1 {sk}",
               f"s_mov_b32 s{SRD_D}, s{pDBG}", f"s_mov_b32 s{SRD_D+1}, s{pDBG+1}", f"s_mov_b32 s{SRD_D+2}, 256", f"s_mov_b32 s{SRD_D+3}, 0x20000",
               f"v_mov_b32 v{vT}, 1", f"s_mov_b64 exec, 1\nbuffer_atomic_add v{vT}, v{vL}, s[{SRD_D}:{SRD_D+3}], 0 offen sc0 sc1\ns_mov_b64 exec, -1", sk + ":"]
        arr2 = [f"s_cmp_lg_u32 s{sWAVE}, 0", f"s_cbranch_scc1 {sk2}", "s_waitcnt vmcnt(0)", f"v_readfirstlane_b32 s{t}, v{vT}", f"v_mov_b32 v{vT+1}, 1",
                f"s_cmp_lg_u32 s{t}, 127", f"s_cbranch_scc1 {sk2}",
                f"s_mov_b32 s{SRD_D}, s{pDBG}", f"s_mov_b32 s{SRD_D+1}, s{pDBG+1}", f"s_mov_b32 s{SRD_D+2}, 256", f"s_mov_b32 s{SRD_D+3}, 0x20000",
                f"s_mov_b64 exec, 1\nbuffer_store_dword v{vT+1}, v{vL}, s[{SRD_D}:{SRD_D+3}], 0 offen offset:128 sc1\ns_mov_b64 exec, -1", sk2 + ":"]
        if RD < 0:
            for l in dma1 + [dma2]: a(l)
        if PF: self.prefetch(vL, 240, S=SRD_D)
        hi, lo = (["s_setprio 3"], [f"s_setprio {CP}"]) if STPRIO else ([], [])
        extra = {0: ([], unpack, []), RS: (["s_waitcnt vmcnt(0)"], rp_reads, []), RS+1: (hi, rp_st + rp_reads2, []),
                 RS+2: ([], [st2] + z, lo), S1AT-1: ([], [], ["s_waitcnt vmcnt(0)"]), S1AT: (arr, [], []), S1AT+2: (arr2, [], [])}
        if LARR:
            del extra[S1AT], extra[S1AT+2]
        if LRP:
            a(f"s_lshl_b32 s{t}, s{sWAVE}, 6\ns_add_u32 s{t}, s{t}, {MBOX}\nv_mov_b32 v8, s{t}")
            for u in range(4): a(f"v_mov_b32 v{12+u}, s{dsts[u]}\nv_mov_b32 v{16+u}, s{d2+u}")
            a(f"v_mov_b32 v20, s{sK2}\nds_write_b128 v8, v[12:15]\nds_write_b128 v8, v[16:19] offset:16\nds_write_b32 v8, v20 offset:32\ns_waitcnt lgkmcnt(0)")
            extra = {0: extra[0], 2*LRP - 1: ([], [], ["s_waitcnt vmcnt(0)"])}
        if SPREAD:
            R2 = [216, 220, 240, 244]
            rd2 = []
            for u in range(4):
                rd2 += [f"ds_read_b64_tr_b16 v[{R2[u]}:{R2[u]+1}], v{vRr} offset:{8192 + 32*u}", f"ds_read_b64_tr_b16 v[{R2[u]+2}:{R2[u]+3}], v{vRr} offset:{8192 + 32*u + 2048}"]
            zz = [l.replace(f"v{RP+16}", "v248").replace(f"v{RP+17}", "v249").replace(f"v{RP+18}", "v250").replace(f"v{RP+19}", "v251").replace(f"v[{RP+16}:{RP+19}]", "v[248:251]") for l in z]
            pre2 = [f"v_lshrrev_b32 v{vT+1}, 1, v{vL}"]
            def st2u(u):
                k5, k6 = a.newlabel("L_r2"), a.newlabel("L_r2")
                return (f"s_cmp_eq_u32 s{sK2}, 1\ns_cbranch_scc0 {k5}\nbuffer_store_dwordx4 v[{R2[u]}:{R2[u]+3}], v{vL}, {WSR}, s{d2+u} offen sc1\n{k5}:\n"
                        f"s_cmp_eq_u32 s{sK2}, 2\ns_cbranch_scc0 {k6}\nbuffer_store_dwordx2 v[{R2[u]}:{R2[u]+1}], v{vT+1}, {WSR}, s{d2+u} offen sc1\ns_add_u32 s{d2+u}, s{d2+u}, 12800\n"
                        f"buffer_store_dwordx2 v[{R2[u]+2}:{R2[u]+3}], v{vT+1}, {WSR}, s{d2+u} offen sc1\n{k6}:")
            extra = {0: extra[0], RS: (["s_waitcnt vmcnt(0)"], rp_reads + rd2 + pre2 + zz, []), S1AT: extra[S1AT], S1AT+2: extra[S1AT+2]}
            if SPREAD == 1:
                for u in range(4): extra[RS+1+u] = ([], [rp_st[u], st2u(u)], [])
            else:
                for u in range(4):
                    extra[RS+1+2*u] = ([], [rp_st[u]], []); extra[RS+2+2*u] = ([], [st2u(u)], [])
            e_ = extra.get(S1AT-1, ([], [], []))
            extra[S1AT-1] = (e_[0], e_[1], ["s_waitcnt vmcnt(0)"])
        if RD > 0: extra[RD] = ([], dma1 + [dma2], [])
        if RD == 0: extra[0] = ([], unpack + dma1 + [dma2], [])
        self.main_loop(reads, mfmas, extra, NRE, [vH0, vH1, vQ])
        if EPRIO: a(f"s_setprio {EPRIO}")
        TM = XB
        a("s_nop 3")
        def ep_extra():
            labG, labE = a.newlabel("L_epG"), a.newlabel("L_epE")
            a(f"s_cbranch_vccnz {labG}")
            self.consts("phi")
            for sp in range(2):
                e = ACC + 96 + 8*sp
                for l in self.phi_quad(e, e, TM): a(l)
                for l in self.phi_quad(e + 4, e + 2, TM + 4): a(l)
                a(f"buffer_store_dwordx4 v[{e}:{e+3}], v{vL}, {WSR}, s{sPq} offen offset:{1024*sp} sc1")
            a(f"s_branch {labE}")
            a.label(labG)
            a(f"s_cmp_eq_u32 s{sGs}, 0\ns_cbranch_scc1 {labE}")
            G = ACC + 96
            a(f"v_cmp_le_u32 vcc, 16, v{vLane}\nv_cmp_le_u32 s[{t+2}:{t+3}], 32, v{vLane}\nv_cmp_le_u32 s[{t+4}:{t+5}], 48, v{vLane}\ns_nop 0")
            a(f"v_cndmask_b32 v{G}, v{G}, v{G+4}, vcc\nv_cndmask_b32 v{G}, v{G}, v{G+8}, s[{t+2}:{t+3}]\nv_cndmask_b32 v{G}, v{G}, v{G+12}, s[{t+4}:{t+5}]")
            a(f"s_mov_b32 s{t}, 0x42700000\nv_min_f32 v{G}, s{t}, v{G}\nv_max_f32 v{G}, -s{t}, v{G}\nv_mul_f32 v{G}, s{cL2E}, v{G}\nv_exp_f32 v{G}, v{G}")
            a(f"s_lshl_b32 s{t}, s{sRb64}, 8\ns_add_u32 s{t}, s{t}, {WS_G}\nv_add_f32 v{G+2}, 1.0, v{G}\nv_rcp_f32 v{G+2}, v{G+2}\nv_lshlrev_b32 v{G+1}, 2, v{vLane}\ns_add_u32 s{t+1}, s{t}, 8192")
            a(f"buffer_store_dword v{G}, v{G+1}, {WSR}, s{t} offen sc1\nbuffer_store_dword v{G+2}, v{G+1}, {WSR}, s{t+1} offen sc1")
            a.label(labE)
        def ep_mish():
            self.consts("mish")
            for L in range(3):
                for s in range(4):
                    e, o = ACC + 32*L + 4*s, ACC + 32*L + 16 + 4*s
                    for l in self.mish_quad(e, e, TM + 8*(s & 1)): a(l)
                    for l in self.mish_quad(o, e + 2, TM + 4 + 8*(s & 1)): a(l)
                    if DIAG != 1: a(f"buffer_store_dwordx4 v[{e}:{e+3}], v{vL}, {WSR}, s{sAct+L} offen offset:{1024*s} {'' if DIAG == 2 else 'sc1'}")
                if L == 0 and EARLYQ:
                    a("s_waitcnt vmcnt(4)")
                    self.signal(sF2, vT)
                if LFLAG and L >= 1:
                    a(f"s_waitcnt vmcnt({4 if L == 1 else 5})")
                    self.signal(sF1, vT, 4*(L - 1))
        if QLAST: ep_mish(); ep_extra()
        else: ep_extra(); ep_mish()
        a(f"v_mov_b32 v0, v{vLane}")
        self.stamp(3)
        self.finish1([sF1] if EARLYQ else [sF1, sF2], strict=bool(STRICTP), late8=True)

    def compute_KV(self):
        a = self.a
        t = T0
        ACC, XB, WB = 0, 112, 128
        vX0, vX1, vK, vQ0, vL = 240, 241, 242, 243, 247
        vLane = 253
        sPq, sF2, sRec = 72, 73, 74
        a(f"v_mov_b32 v{vLane}, v0")
        a(f"v_and_b32 v1, 15, v0\nv_lshrrev_b32 v2, 4, v0\nv_lshrrev_b32 v3, 1, v1\nv_xor_b32 v3, v3, v2\nv_lshlrev_b32 v3, 4, v3\nv_lshl_add_u32 v3, v1, 7, v3")
        a(f"s_lshl_b32 s{t}, s{sWAVE}, 12\nv_add_u32 v{vX0}, s{t}, v3\nv_xor_b32 v{vX1}, 64, v{vX0}")
        a(f"v_lshrrev_b32 v3, 2, v0\nv_and_b32 v4, 3, v0\nv_lshlrev_b32 v4, 3, v4")
        a(f"v_mul_u32_u24 v5, 160, v3\nv_add_u32 v5, v5, v4\nv_add_u32 v{vK}, {WR}, v5")
        a(f"v_lshl_add_u32 v5, v3, 7, v4\nv_bfe_u32 v6, v0, 3, 2\nv_lshl_add_u32 v5, v6, 5, v5\nv_add_u32 v{vQ0}, {WR+10240}, v5")
        for u in range(1, 4): a(f"v_xor_b32 v{vQ0+u}, {32*u}, v{vQ0}")
        a(f"v_lshlrev_b32 v{vL}, 4, v0")
        a(f"s_lshr_b32 s{t}, s{sWAVE}, 1\ns_lshl1_add_u32 s{t+1}, s{sRB}, s{t}")
        a(f"s_lshl_b32 s{sF2}, s{t+1}, 7\ns_add_u32 s{sF2}, s{sF2}, {CNT_PQ}")
        a(f"s_mul_i32 s{t+1}, s{t+1}, 40\ns_lshl2_add_u32 s{t+1}, s{sGRP}, s{t+1}\ns_and_b32 s{t}, s{sWAVE}, 1\ns_lshl1_add_u32 s{t+1}, s{t+1}, s{t}\ns_lshl_b32 s{t+1}, s{t+1}, 10\ns_add_u32 s{sPq}, s{t+1}, {WS_PQ}")
        a(f"s_lshl2_add_u32 s{t}, s{sGRP}, s{sWAVE}\ns_lshl_b32 s{sF1}, s{t}, 7\ns_add_u32 s{sF1}, s{sF1}, {CNT_KV}")
        a(f"s_mul_i32 s{t}, s{t}, 1792\ns_add_u32 s{sRec}, s{t}, {WS_KVP}")
        a(f"s_mov_b32 s{cL2E}, 0x3fb8aa3b\ns_mov_b32 s{cL2E+1}, 0x3fb8aa3b")
        self.consts("phi")
        a("s_waitcnt lgkmcnt(0)")
        self.stamp(0)
        self.srd(SRD_WS, pWS, WS_SIZE)
        if TOUCH: self.touch(vLane, 248)
        if PF: self.prefetch(vL, 248)
        def reads(i):
            b = i & 1; so = (i % 3) * WSLOT
            xs = XR + ((i >> 1) % 3) * 16384
            r = [f"ds_read_b128 v[{XB+8*b+4*s}:{XB+8*b+4*s+3}], v{vX1 if i & 1 else vX0} offset:{xs + 2048*s}" for s in range(2)]
            for u in range(14):
                d = WB + 56*b + 4*u
                if u < 10: base, off, d2 = vK, 5120*(u // 5) + 32*(u % 5), 2560
                else: base, off, d2 = vQ0 + u - 10, 0, 2048
                r.append(f"ds_read_b64_tr_b16 v[{d}:{d+1}], v{base} offset:{so + off}")
                r.append(f"ds_read_b64_tr_b16 v[{d+2}:{d+3}], v{base} offset:{so + off + d2}")
            return r
        def mfmas(i):
            b = i & 1
            r = []
            order = list(range(14)) if i < 19 else [5, 6, 7, 8, 9, 0, 1, 2, 3, 4, 10, 11, 12, 13]
            for u in order:
                for s in range(2):
                    d = ACC + 8*u + 4*s
                    c = f"v[{d}:{d+3}]" if i > 0 else "0"
                    w, x = f"v[{WB+56*b+4*u}:{WB+56*b+4*u+3}]", f"v[{XB+8*b+4*s}:{XB+8*b+4*s+3}]"
                    r.append(f"v_mfma_f32_16x16x32_bf16 v[{d}:{d+3}], {x if u < 10 else w}, {w if u < 10 else x}, {c}")
            return r
        self.main_loop(reads, mfmas, {}, NRK, [vK, vQ0, vQ0+1, vQ0+2, vQ0+3])
        TM = XB
        vEx = vX0
        a(f"s_mul_i32 s{t}, s{sWAVE}, 10240\nv_add_u32 v{vEx}, s{t}, v{vL}")
        for u in range(5, 10):
            e = ACC + 8*u
            a(f"v_cvt_pk_bf16_f32 v{e}, v{e}, v{e+1}\nv_cvt_pk_bf16_f32 v{e+1}, v{e+2}, v{e+3}\nv_cvt_pk_bf16_f32 v{e+2}, v{e+4}, v{e+5}\nv_cvt_pk_bf16_f32 v{e+3}, v{e+6}, v{e+7}")
            a(f"ds_write_b128 v{vEx}, v[{e}:{e+3}] offset:{XR + 1024*u}")
        for u in range(5):
            e = ACC + 8*u
            for l in self.phi_quad(e, e, TM): a(l)
            for l in self.phi_quad(e + 4, e + 2, TM + 4): a(l)
            a(f"ds_write_b128 v{vEx}, v[{e}:{e+3}] offset:{XR + 1024*u}")
        a(f"s_lshl_b32 s{t}, s{sWAVE}, 10\nv_add_u32 v{vEx}, s{t}, v{vL}")
        ONE = WB + 64
        for k in range(4): a(f"v_mov_b32 v{ONE+k}, 0x3f803f80")
        if K1LDS:
            lp, dn = a.newlabel("L_k1"), a.newlabel("L_k1d")
            a(f"v_mov_b32 v{vK}, {K1C}\nv_mov_b32 v{vQ0}, 1\ns_mov_b32 s{t}, 0\ns_waitcnt lgkmcnt(0)\ns_mov_b64 exec, 1\nds_add_u32 v{vK}, v{vQ0}\ns_mov_b64 exec, -1")
            a.label(lp)
            a(f"ds_read_b32 v{vQ0}, v{vK}\ns_add_u32 s{t}, s{t}, 1\ns_waitcnt lgkmcnt(0)\nv_readfirstlane_b32 s{t+1}, v{vQ0}\ns_cmp_ge_u32 s{t}, {SPIN}\ns_cbranch_scc1 {dn}\ns_cmp_lt_u32 s{t+1}, 4\ns_cbranch_scc1 {lp}")
            a.label(dn)
        else:
            a("s_waitcnt lgkmcnt(0)\ns_barrier")
        FR = WB
        for g in range(4):
            for j, off in enumerate((0, 1024, 5120, 6144)):
                a(f"ds_read_b128 v[{FR+16*g+4*j}:{FR+16*g+4*j+3}], v{vEx} offset:{XR + 10240*g + off}")
        AD = WB + 72
        dc, BG, ev, R = AD, AD + 2, AD + 3, AD + 8
        ad = [f"v_lshrrev_b32 v{dc}, 4, v{vLane}", f"v_and_b32 v{ev}, 15, v{vLane}", f"v_mov_b32 v{BG}, 0x10000", f"v_cmp_eq_u32 vcc, 0, v{ev}",
              f"v_mov_b32 v{R}, 320", f"v_subrev_u32 v{dc}, s{sWAVE}, v{dc}", f"v_cndmask_b32 v{ev+2}, v{BG}, v{R}, vcc", f"v_add_u32 v{dc+1}, 4, v{dc}",
              f"s_lshl_b32 s{t}, s{sWAVE}, 2", f"v_subrev_u32 v{ev}, s{t}, v{ev}", f"v_add_u32 v{ev+1}, 16, v{ev}",
              f"s_lshl_b32 s{t+4}, s{sWAVE}, 11", f"s_add_u32 s{t+4}, s{t+4}, {STG}"]
        for k in range(2):
            ad += [f"v_cmp_gt_u32 vcc, 5, v{dc+k}", f"v_cmp_gt_u32 s[{t+2}:{t+3}], 20, v{ev+k}", f"v_mul_u32_u24 v{dc+k}, 336, v{dc+k}", f"v_lshlrev_b32 v{ev+k}, 4, v{ev+k}",
                   f"v_cndmask_b32 v{dc+k}, v{BG}, v{dc+k}, vcc", f"v_cndmask_b32 v{ev+k}, v{BG}, v{ev+k}, s[{t+2}:{t+3}]"]
        for k in range(2):
            ad += [f"v_add_u32 v{R+3*k+b}, v{dc+k}, v{ev+b}" for b in range(3)]
            ad += [f"v_min_u32 v{R+3*k+b}, 1680, v{R+3*k+b}" for b in range(3)]
            ad += [f"v_add_u32 v{R+3*k+b}, s{t+4}, v{R+3*k+b}" for b in range(3)]
        ad += [f"v_lshlrev_b32 v{dc}, 2, v{vLane}", f"v_add_u32 v{vEx}, s{t+4}, v{dc}"]
        for l in ad[:20]: a(l)
        D = ACC
        mm = []
        for g in range(4):
            for k in range(2):
                for b in range(3):
                    d = D + 12*k + 4*b
                    B = f"v[{FR+16*g+8+4*b}:{FR+16*g+8+4*b+3}]" if b < 2 else f"v[{ONE}:{ONE+3}]"
                    mm.append(f"v_mfma_f32_16x16x32_bf16 v[{d}:{d+3}], v[{FR+16*g+4*k}:{FR+16*g+4*k+3}], {B}, {'0' if g == 0 else f'v[{d}:{d+3}]'}")
        a("s_waitcnt lgkmcnt(0)")
        for l in interleave(mm, ad[20:], 0, 16): a(l)
        def qmath(u):
            e = ACC + 8*u
            return self.phi_quad(e, e, TM) + self.phi_quad(e + 4, e + 2, TM + 4)
        q10 = qmath(10)
        for l in q10[:8]: a(l)
        for j in range(6): a(f"ds_write_b128 v{R+j}, v[{D+4*j}:{D+4*j+3}]")
        for l in q10[8:20]: a(l)
        a("s_waitcnt lgkmcnt(0)")
        for j in range(7): a(f"ds_read_b32 v{j}, v{vEx} offset:{256*j}")
        for l in q10[20:]: a(l)
        a("s_waitcnt lgkmcnt(0)")
        for j in range(7):
            if j == 6: a("s_mov_b32 exec_hi, 15")
            a(f"buffer_atomic_add_f32 v{j}, v{dc}, {WSR}, s{sRec} offen offset:{256*j} sc1")
        a("s_mov_b32 exec_hi, -1")
        a(f"s_add_u32 s{t}, s{sPq}, 4096")
        def qst(u):
            e = ACC + 8*(10 + u)
            a(f"buffer_store_dwordx4 v[{e}:{e+3}], v{vL}, {WSR}, s{sPq if u < 2 else t} offen offset:{2048*(u & 1)} sc1")
        qst(0)
        for u in (1, 2, 3):
            for l in qmath(10 + u): a(l)
            qst(u)
        a(f"v_mov_b32 v0, v{vLane}")
        self.stamp(3)
        self.finish1([sF1, sF2], strict=True)

    def setup2(self, lanes=True):
        a = self.a
        t = T0
        if MAP2 == "x2":
            a(f"s_bfe_u32 s{t+2}, s{sWG}, 0x20001\ns_bfe_u32 s{t+3}, s{sWG}, 0x30003\ns_lshl3_add_u32 s{sR64}, s{t+2}, s{t+3}")
            a(f"s_and_b32 s{t+2}, s{sWG}, 1\ns_lshr_b32 s{t+3}, s{sWG}, 6\ns_lshl2_add_u32 s{sC}, s{t+2}, s{t+3}")
        else:
            a(f"s_and_b32 s{t+2}, s{sWG}, 7\ns_bfe_u32 s{t+3}, s{sWG}, 0x20003\ns_lshl2_add_u32 s{sR64}, s{t+2}, s{t+3}\ns_lshr_b32 s{sC}, s{sWG}, 5")
        if FAKE == 1: a(f"s_and_b32 s{sR64}, s{sWG}, 7\ns_lshl_b32 s{sR64}, s{sR64}, 2\ns_mov_b32 s{sC}, 0")
        if FAKE == 2: a(f"s_mov_b32 s{sC}, 0")
        if FAKE == 3: a(f"s_and_b32 s{sR64}, s{sWG}, 7\ns_lshl_b32 s{sR64}, s{sR64}, 2")
        if lanes: a(f"v_lshlrev_b32 v{vL16}, 4, v0\nv_add_u32 v{vL16b}, 4096, v{vL16}")
        if ROT2 == "none":
            a(f"s_mov_b32 s{t}, 0")
        elif ROT2 == "xor":
            a(f"s_lshr_b32 s{t}, s{sWG}, 3\ns_lshr_b32 s{t+1}, s{sWG}, 6\ns_xor_b32 s{t}, s{t}, s{t+1}\ns_and_b32 s{t}, s{t}, 1")
        elif ROT2 == "two":
            a(f"s_lshr_b32 s{t}, s{sWG}, 3\ns_lshr_b32 s{t+1}, s{sWG}, {6 if MAP2 == 'x2' else 5}\ns_xor_b32 s{t}, s{t}, s{t+1}\ns_and_b32 s{t}, s{t}, 1\ns_mul_i32 s{t}, s{t}, 3")
        elif MAP2 == "x2":
            a(f"s_and_b32 s{t}, s{sC}, 3\ns_mul_i32 s{t}, s{t}, 3\ns_lshr_b32 s{t}, s{t}, 1")
        else:
            a(f"s_mul_i32 s{t}, s{sC}, 3\ns_lshr_b32 s{t}, s{t}, 2")
        a(f"s_mul_i32 s{t+1}, s{sWAVE}, 6")
        a(f"s_mul_i32 s{t+2}, s{sC}, {48*5120}\ns_add_u32 s{t+2}, s{t+2}, {WS_W2R}")
        a(f"s_mul_i32 s{t+3}, s{sR64}, {48*4096}\ns_add_u32 s{t+3}, s{t+3}, {WS_ACT}")
        for i in range(6):
            a(f"s_add_u32 s{t+4}, s{t+1}, s{t}\ns_mul_i32 s{sB0+i}, s{t+4}, 5120\ns_add_u32 s{sB0+i}, s{sB0+i}, s{t+2}")
            a(f"s_lshl_b32 s{sA0+i}, s{t+4}, 12\ns_add_u32 s{sA0+i}, s{sA0+i}, s{t+3}")
            if i < 5 and ROT2 == "xor": a(f"s_xor_b32 s{t}, s{t}, {i ^ (i + 1)}")
            elif i < 5: a(f"s_add_u32 s{t}, s{t}, 1\ns_cmp_eq_u32 s{t}, 6\ns_cselect_b32 s{t}, 0, s{t}")
        a(f"s_lshl3_add_u32 s{sFa}, s{sR64}, s{sWAVE}\ns_lshl_b32 s{sFa}, s{sFa}, 7\ns_lshl_b32 s{sFq}, s{sR64}, 7\ns_add_u32 s{sFq}, s{sFq}, {CNT_PQ}")
        a(f"s_mul_i32 s{sPQb}, s{sR64}, 40\ns_mul_i32 s{t}, s{sWAVE}, 5\ns_add_u32 s{sPQb}, s{sPQb}, s{t}\ns_lshl_b32 s{sPQb}, s{sPQb}, 11\ns_add_u32 s{sPQb}, s{sPQb}, {WS_PQ}")
        a(f"s_lshl3_add_u32 s{sMb}, s{sC}, s{sWAVE}\ns_mul_i32 s{sMb}, s{sMb}, 12800\ns_add_u32 s{sMb}, s{sMb}, {WS_WOR}")
        a(f"s_mul_i32 s{sKv}, s{sWAVE}, 7168\ns_add_u32 s{sKv}, s{sKv}, {WS_KVP}\ns_lshl_b32 s{sFk}, s{sWAVE}, 9\ns_add_u32 s{sFk}, s{sFk}, {CNT_KV}")

    def preload_b(self, n0, n1, th=0, alt=None):
        vb = vL16b
        if alt is not None:
            vb = alt; self.a(f"v_add_u32 v{alt}, 4096, v{vL16}")
        for n in range(n0, n1):
            if th and n < NTH: self.a(f"s_waitcnt vmcnt({th - 1})")
            i, jn = divmod(n, 5)
            d = BS + 20*i + 4*jn
            self.a(f"buffer_load_dwordx4 v[{d}:{d+3}], v{vL16 if jn < 4 else vb}, {WSR}, s{sB0+i} offen offset:{1024*jn if jn < 4 else 0} sc1")

    def stage_b(self):
        a = self.a
        t = T0
        a(f"s_mul_i32 s{t}, s{sT}, 20480\ns_add_u32 s{t}, s{t}, {BL}")
        for i in range(2, NB):
            a(f"s_sub_u32 s{t+1}, s{sB0+i}, 122880")
            for jn in range(5):
                if jn in (0, 4):
                    a(f"s_add_u32 m0, s{t}, {5120*(i-2) + 1024*jn}")
                    a(f"s_add_u32 s{t+1}, s{t+1}, 4096" if jn else "s_nop 0")
                if TH and NB*5 + 5*(i - 2) + jn < NTH: a(f"s_waitcnt vmcnt({TH - 1})")
                a(f"buffer_load_dwordx4 v{vL16}, {WSR}, s{t+1} offen offset:{1024*(jn % 4)} sc1 lds")
        a("s_waitcnt vmcnt(0)")

    def adlist(self, alt=False):
        t, LN = T0, 255
        ts = 72 if alt else t + 2
        mk = [96, 98, 100, 52, 54] if alt else [t + 4 + 2*n for n in range(5)]
        groups = []
        chunks = [(0, 0), (0, 1), (1, 0), (1, 1), (1, 2), (2, 1), (2, 2), (2, 3), (3, 2), (3, 3), (4, 3), (3, 4), (4, 4)] + [("z", tt) for tt in range(5)]
        slot = dict(zip(chunks, [0, 1, 2, 3, 4, 7, 8, 9, 10, 11, 13, 14, 15, 16, 17, 18, 19, 20]))
        X, K0 = 44, 20
        ad = [f"v_and_b32 v{X}, 15, v{LN}", f"v_lshrrev_b32 v{X+1}, 4, v{LN}", f"s_add_u32 s{ts}, s{sLB}, 13312", f"v_mul_u32_u24 v{X+3}, 336, v{X+1}", f"v_add_u32 v{X+3}, s{ts}, v{X+3}",
              f"v_add_u32 v{X+18}, s{sLB}, v{vL16}", f"s_add_u32 s{ts}, s{ts}, 7056", f"v_mov_b32 v{X+13}, s{ts}"] + [f"v_subrev_u32 v{X+13+k}, {1344*k}, v{X+13}" for k in range(1, 5)]
        for te in (0, 1, 2, 3, 4, "z"):
            groups.append(len(ad))
            if te == "z":
                ad += [f"v_and_b32 v{X+4}, 3, v{LN}", f"v_mul_u32_u24 v{X+5}, 112, v{X+4}", f"v_add_u32 v{X+6}, 320, v{X+3}", f"v_add_u32 v{X+5}, v{X+5}, v{X+6}"]
            else:
                ad += [f"v_add_u32 v{X+6}, {16*te}, v{X}", f"v_mul_u32_u24 v{X+4}, 3277, v{X+6}", f"v_lshrrev_b32 v{X+4}, 16, v{X+4}",
                       f"v_lshl_add_u32 v{X+6}, v{X+6}, 4, v{X+3}", f"v_mad_i32_i24 v{X+5}, v{X+4}, s{sN208}, v{X+6}"]
            ad += [f"v_mad_i32_i24 v{X+4}, v{X+4}, -5, v{X+1}"]
            mine = [(j, c) for j, c in enumerate(chunks) if c[0] == te]
            ad += [f"v_add_u32 v{X+8+n}, {4*c[1]}, v{X+4}" for n, (j, c) in enumerate(mine)]
            ad += [f"v_cmp_gt_u32 s[{mk[n]}:{mk[n]+1}], 5, v{X+8+n}" for n, (j, c) in enumerate(mine)]
            ad += ["s_nop 0"]
            ad += [f"v_cndmask_b32 v{K0+j}, v{X+13+c[1]}, v{X+5}, s[{mk[n]}:{mk[n]+1}]" for n, (j, c) in enumerate(mine)]
        self.adgroups = groups + [len(ad)]
        return chunks, slot, X, K0, ad

    def adpart(self, k):
        a = self.a
        ad = self.adlist(True)[4]; g = self.adgroups
        if k == 0: a(f"v_lshlrev_b32 v{vL16}, 4, v0\nv_mov_b32 v255, v0\ns_xor_b32 s{sLB}, s{sWAVE}, 4\ns_mul_i32 s{sLB}, s{sLB}, 20480\ns_mov_b32 s{sN208}, -208")
        for l in ad[(0, g[1], g[3], g[5])[k]:(g[1], g[3], g[5], g[6])[k]]: a(l)

    def adblock(self):
        a = self.a
        a(f"v_lshrrev_b32 v255, 4, v{vL16}\ns_xor_b32 s{sLB}, s{sWAVE}, 4\ns_mul_i32 s{sLB}, s{sLB}, 20480\ns_mov_b32 s{sN208}, -208")
        for l in self.adlist()[4]: a(l)

    def gemm2(self):
        a = self.a
        t = T0
        seq = []
        LN = 255
        def ldl(dst, n, v, so, off, tag):
            seq.append(tag)
            return [f"buffer_load_dword{ {1: '', 2: 'x2', 4: 'x4'}[n] } {vr(dst, n)}, v{v}, {WSR}, s{so} offen offset:{off} sc1"]
        def emit(L):
            for l in L: a(l)
        def wait(tag):
            last = max(n for n, x in enumerate(seq) if x == tag)
            a(f"s_waitcnt vmcnt({len(seq) - 1 - last})")
        def act(i):
            return sum((ldl(AB + 16*(i % 3) + 4*st, 4, vL16, sA0 + i, 1024*st, f"act{i}") for st in range(4)), [])
        def check(soff, target, sleep=None):
            ok = a.newlabel("L_ok")
            a(f"v_cmp_le_u32 vcc, {target}, v{vP+1}\ns_nop 1\ns_cmp_eq_u64 vcc, -1\ns_cbranch_scc1 {ok}")
            self.poll(soff, target, vP, vP + 1, sleep=sleep)
            a.label(ok)
        def dma(so, n, lds, tag):
            r = []
            for k in range(n):
                pre = ""
                if k % 4 == 0:
                    pre = f"s_add_u32 m0, s{sLB}, {lds + 1024*k}\n" + (f"s_add_u32 s{so}, s{so}, 4096\n" if k else "s_nop 0\n")
                r.append(pre + f"buffer_load_dwordx4 v{vL16}, {WSR}, s{so} offen offset:{1024*(k % 4)} sc1 lds"); seq.append(tag)
            return r
        def pq(base, sp):
            return sum((ldl(base + 20*sp + 4*tt, 4, vL16, (sPQb, t, t + 1)[tt >> 1], 2048*(tt & 1) + 1024*sp, f"pq{sp}") for tt in range(5)), [])
        def gld(va):
            return sum((ldl(vG + st, 1, va, t + 3, 64*st, "g") for st in range(4)), [])
        def lateb(i=5):
            if i < NB: return []
            r = sum((ldl(BS + 20*i + 4*jn, 4, vL16, sB0 + i, 1024*jn, f"act{i}") for jn in range(4)), [])
            return r + [f"s_add_u32 s{sB0+i}, s{sB0+i}, 4096"] + ldl(BS + 20*i + 16, 4, vL16, sB0 + i, 0, f"act{i}")
        chunks, slot, X, K0, ad = self.adlist()
        mq = [t + 4, t + 6, t + 8]
        consts = [f"s_mov_b32 s{cE}, 0x358637bd", f"s_mov_b32 s{mq[0]}, 0xffff", f"s_mov_b32 s{mq[0]+1}, 0", f"s_mov_b32 s{mq[1]}, -1", f"s_mov_b32 s{mq[1]+1}, 0",
                  f"s_mov_b32 s{mq[2]}, -1", f"s_mov_b32 s{mq[2]+1}, 0xffff"]
        swaps = lambda R: [f"v_swap_b32 v{R+8*p+2+k}, v{R+8*p+4+k}" for p in range(2) for k in range(2)]
        K32 = lambda d, A, B, c: f"v_mfma_f32_16x16x32_bf16 v[{d}:{d+3}], v[{A}:{A+3}], v[{B}:{B+3}], {c}"
        K16 = lambda d, A, B: f"v_mfma_f32_16x16x16_bf16 v[{d}:{d+3}], v[{A}:{A+1}], v[{B}:{B+1}], v[{d}:{d+3}]"
        acc = lambda d: f"v[{d}:{d+3}]"
        def fqf(base):
            def fq(st, tt):
                R = base + 20*(st >> 1)
                return R + 8*(tt >> 1) + 4*(st & 1) + 2*(tt & 1) if tt < 4 else R + 16 + 2*(st & 1)
            return fq
        def gather(KAr, raw, KP, PQb, first):
            for j, c in enumerate(chunks):
                a(f"ds_read_b128 v[{raw(j)}:{raw(j)+3}], v{KAr+j} offset:{1344*c[1]}")
            emit(swaps(PQb) + swaps(PQb + 20))
            for j, c in enumerate(chunks):
                if j in (0, first): a(f"s_waitcnt lgkmcnt({18 - first if j == 0 else 0})")
                d, r = KP + 2*slot[c], raw(j)
                a(f"v_cvt_pk_bf16_f32 v{d}, v{r}, v{r+1}\nv_cvt_pk_bf16_f32 v{d+1}, v{r+2}, v{r+3}")
            for z in (5, 6, 12): a(f"v_mov_b32 v{KP+2*z}, 0\nv_mov_b32 v{KP+2*z+1}, 0")
        def scales(st, DN, SC):
            r = ([] if LATEORD else [f"v_add_f32 v{DN+k}, s{cE}, v{DN+k}" for k in range(4)]) + [f"v_rcp_f32 v{DN+k}, v{DN+k}" for k in range(4)]
            r += [f"v_mul_f32 v{DN+k}, v{vG+st}, v{DN+k}" for k in range(4)]
            return r + [f"v_cndmask_b32 v{SC[k]}, v{DN+k+1}, v{DN+k}, s[{mq[k]}:{mq[k]+1}]" for k in range(3)]
        def vtile(st, tt, o, DN, SC, fq):
            sc = (DN, SC[0], SC[1], SC[2], DN + 3)[tt]
            return [f"v_mul_f32 v{o+k}, v{sc}, v{o+k}" for k in range(4)] + [f"v_cvt_pk_bf16_f32 v{fq(st,tt)}, v{o}, v{o+1}", f"v_cvt_pk_bf16_f32 v{fq(st,tt)+1}, v{o+2}, v{o+3}"]
        def mlp(i, zero, sts=None):
            order = [(jn, st) for jn in range(5) for st in range(4)] if sts is None else [(jn, st) for st in sts for jn in range(5)]
            return [K32(20*st + 4*jn, BS + 20*i + 4*jn, AB + 16*(i % 3) + 4*st, "0" if zero else acc(20*st + 4*jn)) for jn, st in order]
        TA, RA, vRW = 224, 170, vP
        rw = [f"v_and_b32 v{TA}, 15, v{LN}", f"v_mul_u32_u24 v{TA}, 160, v{TA}", f"v_bfe_u32 v{TA+1}, v{LN}, 5, 1", f"v_bfe_u32 v{vRW}, v{LN}, 2, 1", f"v_xor_b32 v{TA+1}, v{TA+1}, v{vRW}",
              f"v_lshl_add_u32 v{TA}, v{TA+1}, 4, v{TA}", f"v_bfe_u32 v{TA+1}, v{LN}, 4, 1", f"v_mul_u32_u24 v{TA+1}, 10240, v{TA+1}", f"v_add3_u32 v{vRW}, v{TA}, v{TA+1}, s{sLB}"]
        wrl = lambda st: [] if DIAG == 6 else [f"ds_write_b128 v{vRW}, v[{20*st+4*jn}:{20*st+4*jn+3}] offset:{2560*st + 32*jn}" for jn in range(5)]
        rd = [f"s_mul_i32 s{t}, s{sWAVE}, 80", f"v_add_u32 v{RA}, s{t}, v{LN}", f"v_add_u32 v{RA+1}, 64, v{RA}",
              f"s_lshl_b32 s{t+2}, s{sR64}, 8", f"s_add_u32 s{t+2}, s{t+2}, {WS_G + 8192}"]
        for k in range(2):
            rd += [f"v_mul_u32_u24 v{RA+2}, 6554, v{RA+k}", f"v_lshrrev_b32 v{RA+2}, 16, v{RA+2}", f"v_mad_i32_i24 v{RA+3}, v{RA+2}, -10, v{RA+k}", f"v_lshlrev_b32 v{TA+2+k}, 2, v{RA+2}",
                   f"buffer_load_dword v{TA+2+k}, v{TA+2+k}, {WSR}, s{t+2} offen sc1",
                   f"v_bfe_u32 v{RA+6}, v{RA+2}, 2, 1", f"v_xor_b32 v{RA+k}, v{RA+k}, v{RA+6}",
                   f"v_mul_u32_u24 v{RA+2}, 1280, v{RA+2}", f"v_lshl_add_u32 v{RA+4+k}, v{RA+3}, 4, v{RA+2}", f"v_lshlrev_b32 v{RA+k}, 4, v{RA+k}"]
        rd += [f"v_add_u32 v{RA+6}, 61440, v{RA}", f"v_add_u32 v{RA+7}, 61440, v{RA+1}", f"v_add_u32 v{RA+8}, 122880, v{RA}", f"v_add_u32 v{RA+9}, 122880, v{RA+1}"]
        rd += [f"s_mov_b32 s{SRD_M}, s{pOUT}", f"s_mov_b32 s{SRD_M+1}, s{pOUT+1}", f"s_mov_b32 s{SRD_M+2}, {2048*640*2}", f"s_mov_b32 s{SRD_M+3}, 0x20000",
               f"s_mul_i32 s{t}, s{sR64}, 81920", f"s_mul_i32 s{t+1}, s{sC}, 160", f"s_add_u32 s{t}, s{t}, s{t+1}"]
        def flagvec(vt, with_act):
            a(f"v_lshlrev_b32 v{vP}, 2, v{LN}\nv_add_u32 v{vP}, s{sFk}, v{vP}\nv_mov_b32 v{vt}, 1\nv_cmp_le_u32 vcc, 4, v{LN}\nv_mov_b32 v{vt+1}, s{sFq}\ns_add_u32 s{t+2}, s{sFa}, 8")
            a(f"v_cndmask_b32 v{vP}, v{vP}, v{vt+1}, vcc")
            if with_act:
                a(f"v_cmp_lt_u32 vcc, 4, v{LN}\nv_mov_b32 v{vt+1}, s{t+2}\ns_nop 0\nv_cndmask_b32 v{vP}, v{vP}, v{vt+1}, vcc\nv_cndmask_b32 v{vt}, v{vt}, 2, vcc")

        a("s_setprio 0")
        if ADPRE != 2:
            a(f"v_lshrrev_b32 v{LN}, 4, v{vL16}")
            a(f"s_xor_b32 s{sLB}, s{sWAVE}, 4\ns_mul_i32 s{sLB}, s{sLB}, 20480\ns_mov_b32 s{sN208}, -208")
        a(f"s_lshl_b32 s{t+3}, s{sR64}, 8\ns_add_u32 s{t+3}, s{t+3}, {WS_G}\ns_add_u32 s{t}, s{sPQb}, 4096\ns_add_u32 s{t+1}, s{sPQb}, 8192")
        if LFLAG: a(f"v_and_b32 v{vP}, 1, v{LN}\nv_lshlrev_b32 v{vP}, 2, v{vP}")
        else: a(f"v_mov_b32 v{vP}, 0")
        atest = (f"v_cmp_le_u32 vcc, 2, v{vP+1}\ns_nop 1\ns_and_b32 s{t+14}, vcc_lo, 3\ns_cmp_eq_u32 s{t+14}, 3" if LFLAG else
                 f"v_readfirstlane_b32 s{t+14}, v{vP+1}\ns_nop 0\ns_cmp_ge_u32 s{t+14}, 2")
        apoll0 = f"v_mov_b32 v{vP+1}, 0\ns_mov_b64 exec, {3 if LFLAG else 1}\nbuffer_atomic_add v{vP+1}, v{vP}, {WSR}, s{sFa} offen sc0 sc1\ns_mov_b64 exec, -1"
        lE = a.newlabel("L_early")
        if EARLYA:
            sk = a.newlabel("L_ne")
            a(f"s_mov_b32 s32, 0\ns_cmp_lt_u32 s{sWAVE}, 4\ns_cbranch_scc1 {sk}\n{apoll0}")
            a.label(sk)
        if ADPRE == 1: emit(ad[:len(ad)*(100 - APRE)//100])
        if APRE: a(apoll0)
        if ADPRE == 1: emit(ad[len(ad)*(100 - APRE)//100:])
        if EARLYA:
            sk = a.newlabel("L_ne")
            a(f"s_cmp_lt_u32 s{sWAVE}, 4\ns_cbranch_scc1 {sk}\ns_waitcnt vmcnt(0)\n{atest}\ns_cbranch_scc0 {sk}\ns_mov_b32 s32, 1")
            sv = list(seq); emit(act(0) + act(1) + act(2)); seq[:] = sv
            a.label(sk)
        if not NOE1: a("s_barrier")
        self.stamp(4)
        apoll = f"v_mov_b32 v{vP+1}, 0\ns_mov_b64 exec, {3 if LFLAG else 1}\nbuffer_atomic_add v{vP+1}, v{vP}, {WSR}, s{sFa} offen sc0 sc1\ns_mov_b64 exec, -1"
        if EARLYA:
            sk = a.newlabel("L_ne")
            a(f"s_cmp_eq_u32 s32, 1\ns_cbranch_scc1 {sk}\n{apoll}")
            a.label(sk)
        elif ATP and not APRE: a(apoll)
        elif WOPOS != "pre" and not APRE: a(f"buffer_load_dword v{vP+1}, v{vP}, {WSR}, s{sFa} offen sc1")
        if NPL:
            sk = a.newlabel("L_np")
            a(f"s_cmp_ge_u32 s{sWAVE}, 4\ns_cbranch_scc1 {sk}")
            self.preload_b(0, NPRE, alt=72)
            a.label(sk)
        self.pickup()
        if WOPOS == "pre":
            a("s_waitcnt lgkmcnt(0)")
            emit(dma(sMb, 13, 0, "wo"))
        if not ADPRE: emit(ad)
        a("s_waitcnt lgkmcnt(0)")
        for k in range(5): a(f"ds_write_b128 v{X+18}, v[{K0+4*k}:{K0+4*k+3}] offset:{13312 + 1024*k}")
        if EARLYA: a(f"s_cmp_eq_u32 s32, 1\ns_cbranch_scc1 {lE}")
        if ATP:
            lp, dn = a.newlabel("L_ap"), a.newlabel("L_apd")
            a(f"s_mov_b32 s{t+15}, 0")
            if NPL:
                sk = a.newlabel("L_np")
                a(f"s_cmp_ge_u32 s{sWAVE}, 4\ns_cbranch_scc1 {lp}\ns_waitcnt vmcnt({NPRE})\n{atest}\ns_cbranch_scc1 {dn}\n{apoll}")
            a.label(lp)
            a(f"s_waitcnt vmcnt(0)\n{atest}\ns_cbranch_scc1 {dn}\ns_add_u32 s{t+15}, s{t+15}, 1")
            a(f"s_cmp_ge_u32 s{t+15}, {SPIN}\ns_cbranch_scc1 {dn}\ns_sleep {ATP}\n{apoll}\ns_branch {lp}")
            a.label(dn)
        elif WOPOS == "pre": self.poll(f"s{sFa}", 2, vP, vP + 1)
        else:
            a("s_waitcnt vmcnt(0)")
            if LFLAG == 1:
                sk = a.newlabel("L_sig")
                a(f"s_cmp_ge_u32 s{sWAVE}, 4\ns_cbranch_scc1 {sk}")
                self.stamp(5)
                self.signal(sF1, 70); self.signal(32, 70)
                a.label(sk)
            check(f"s{sFa}", 2)
        self.stamp(6)
        PR = {"f": {-1: 1, 4: 0}, "g": {-1: 2, 3: 1, 5: 0}, "h": {-1: 1, 5: 0, 6: 1}, "i": {-1: 1, 5: 0, 7: 1}, "a": {-1: 3, 2: 2, 5: 1, 6: 0}, "b": {-1: 3, 1: 2, 3: 1, 6: 0}, "c": {-1: 1, 5: 0}, "d": {-1: 2, 5: 1, 7: 0}, "e": {-1: 3, 3: 2, 6: 1, 8: 0}}.get(PRIO, {})
        prio = lambda k: a(f"s_setprio {PR[k]}") if k in PR else None
        if EARLYA:
            assert FVAT >= 0 and not A2L
            emit(act(0) + act(1) + act(2))
            a.label(lE)
        prio(-1)
        if not EARLYA: emit(act(0))
        a(f"v_lshlrev_b32 v{vP}, 7, v{LN}\nv_add_u32 v{vP}, s{sFk}, v{vP}\nv_cmp_le_u32 vcc, 4, v{LN}\nv_mov_b32 v{vG+1}, s{sFq}\nv_mov_b32 v{vG}, 16")
        a(f"v_cndmask_b32 v{vP}, v{vP}, v{vG+1}, vcc\nv_cndmask_b32 v{vG}, v{vG}, 25, vcc")
        if LFLAG: a(f"v_cmp_lt_u32 vcc, 4, v{LN}\ns_add_u32 s{t+2}, s{sFa}, 8\nv_mov_b32 v{vG+1}, s{t+2}\nv_cndmask_b32 v{vP}, v{vP}, v{vG+1}, vcc\nv_cndmask_b32 v{vG}, v{vG}, 2, vcc")
        fv = lambda: (a(f"buffer_load_dword v{vP+1}, v{vP}, {WSR}, 0 offen sc1"), seq.append("fv"))
        if FVAT < 0: fv()
        if not EARLYA: emit(act(1) + ([] if A2L else act(2)))
        fill = (lambda: dma(sMb, 13, 0, "wo")) if WOPOS == "s0" else (lambda: (act(2) if A2L else []) + lateb(3))
        for i in range(5):
            prio(i)
            wait(f"act{i}")
            if TAILDBG == 2 and i < 4: self.stamp((2, 3, 5, 7)[i], "tail")
            emit(interleave(mlp(i, i == 0), fill() if fill else []))
            fill = None
            if i == 0 and WOPOS == "s1": fill = lambda: dma(sMb, 13, 0, "wo")
            if i == 3 and WOPOS == "s4": fill = lambda: dma(sMb, 13, 0, "wo")
            if i == FVAT: fv()
            if i < 2 and not (LFLAG and i == 1): emit(act(i + 3))
            if i == PQAT:
                wait("fv")
                check("0", f"v{vG}", 8)
                if TAILDBG == 2: self.stamp(4, "tail")
                if LFLAG: emit(act(4))
                a(f"v_and_b32 v{vP+1}, 15, v{LN}\nv_lshlrev_b32 v{vP+1}, 2, v{vP+1}")
                f1 = lambda: lateb(4) + pq(PQR, 0) + pq(PQR, 1) + gld(vP + 1)
                if FILLI and i < 2: fill = f1
                else: emit(f1())
            if i == 2:
                a(f"v_add_u32 v{KA+19}, s{sLB}, v{vL16}")
                for k in range(5): a(f"ds_read_b128 v[{KA+4*k}:{KA+4*k+3}], v{KA+19} offset:{13312 + 1024*k}")
                a("s_waitcnt lgkmcnt(0)")
                f2 = lambda: dma(sKv, 7, 13312, "kv") + (act(5) + lateb() if WOPOS != "x" else []) + (dma(sMb, 13, 0, "wo") if WOPOS == "s3" else [])
                if FILLI: fill = f2
                else: emit(f2())
        self.stamp(7)
        prio(5)
        emit(consts)
        KP = 120
        wait("kv")
        self.stamp(8)
        gather(KA, lambda j: 200 + 4*j if j < 8 else 140 + 4*(j - 8), KP, PQR, 8)
        Oset = {1: ([200, 204, 208, 212, 216], 220), 0: ([162, 166, 170, 174, 224], 228)}
        SC = [178, 179, vP + 1]
        fq = fqf(PQR)
        S = lambda k: KP + 2*k
        def Xb(st):
            O, DN = Oset[st & 1]
            p0, p1, ps = fq(st, 0), fq(st, 2), fq(st, 4)
            return [K32(DN, S(16), p0, acc(196) if LATEORD else "0"), K32(O[3], S(10), p1, "0"), K32(O[4], S(12), p1, "0"), K32(DN, S(18), p1, acc(DN)),
                    K32(O[0], S(0), p0, "0"), K32(O[1], S(2), p0, "0"), K32(O[2], S(6), p0, "0"), K32(O[1], S(4), p1, acc(O[1])), K32(O[2], S(8), p1, acc(O[2])),
                    "s_nop 0", K16(DN, S(20), ps), K16(O[3], S(14), ps), K16(O[4], S(15), ps)]
        def Vb(st):
            O, DN = Oset[st & 1]
            if DIAG == 7: return []
            return scales(st, DN, SC) + sum((vtile(st, tt, O[tt], DN, SC, fq) for tt in range(5)), [])
        def Yb(st):
            r = []
            for p in range(2):
                r += [K32(20*st + 4*jn, MR + 4*(2*jn + p), fq(st, 2*p), acc(20*st + 4*jn)) for jn in range(5)]
            return r + ["s_nop 1"] + [K16(20*st + 4*jn, MR + 40 + 2*jn, fq(st, 4)) for jn in range(5)]
        a("s_nop 1")
        if TAILDBG == 1: self.stamp(2, "tail")
        late = (act(5) + lateb() + dma(sMb, 13, 0, "wo")) if WOPOS == "x" else []
        if DIAG == 5: late = late[:4]
        if LATEORD:
            assert NB == 5 and WOPOS == "x"
            lastb = late[8:10]; late = late[:8] + late[10:]
            i5 = seq.index("act5") + 8; seq.pop(i5); seq.append("act5")
            for k in range(4): a(f"v_mov_b32 v{196+k}, 0x358637bd")
            a("s_nop 1")
        cuts = [0] + [len(late)*c//100 for c in XSPLIT] + [len(late)]
        emit(interleave(Xb(0), late[cuts[0]:cuts[1]]))
        for st in range(1, 4):
            x = Xb(st)
            emit(interleave(x[:6], late[cuts[st]:cuts[st+1]]) + (lastb if LATEORD and st == 3 else []) + interleave(x[6:], Vb(st - 1)))
        a(f"v_add_u32 v{TA}, s{sLB}, v{vL16}\nv_lshlrev_b32 v{TA+1}, 3, v{LN}\nv_add_u32 v{TA+1}, s{sLB}, v{TA+1}")
        wor = [f"ds_read_b128 v[{MR+4*f}:{MR+4*f+3}], v{TA} offset:{1024*f}" for f in range(10)]
        wor += [f"ds_read_b64 v[{MR+40+2*jn}:{MR+41+2*jn}], v{TA+1} offset:{10240 + 512*jn}" for jn in range(5)]
        prio(6)
        if WOPOS in ("s3", "s4", "x"):
            if TAILDBG == 1: self.stamp(3, "tail")
            wait("act5")
            if TAILDBG == 1: self.stamp(4, "tail")
            emit(interleave(mlp(5, False), Vb(3)))
            if TAILDBG == 1: self.stamp(5, "tail")
            a("s_waitcnt vmcnt(0)")
            if TAILDBG == 1: self.stamp(6, "tail")
            emit(wor + rw)
        else:
            emit(wor)
            wait("act5")
            emit(interleave(mlp(5, False), Vb(3) + rw))
        a("s_waitcnt lgkmcnt(0)")
        if RED == 2:
            def aset(B, T, sbase):
                return [f"v_add_u32 v{B}, {sbase}, v{LN}", f"v_mul_u32_u24 v{T}, 6554, v{B}", f"v_lshrrev_b32 v{T}, 16, v{T}", f"v_mad_i32_i24 v{T+1}, v{T}, -10, v{B}",
                        f"v_lshlrev_b32 v{B+4}, 2, v{T}", f"buffer_load_dword v{B+4}, v{B+4}, {WSR}, s{t+2} offen sc1",
                        f"v_bfe_u32 v{B+1}, v{T}, 2, 1", f"v_xor_b32 v{B}, v{B}, v{B+1}", f"v_mul_u32_u24 v{T}, 1280, v{T}", f"v_lshl_add_u32 v{B+3}, v{T+1}, 4, v{T}",
                        f"v_lshlrev_b32 v{B}, 4, v{B}", f"v_add_u32 v{B+1}, 61440, v{B}", f"v_add_u32 v{B+2}, 122880, v{B}"]
            def rsum(sets):
                items = [(B, m, D, w) for B, m, D in sets for w in range(8)]
                def rdp(n):
                    B, m, D, w = items[n]
                    r = [f"ds_read_b128 v[{D+8*w+4*par}:{D+8*w+4*par+3}], v{B + w // 3} offset:{20480*(w % 3) + 10240*par}" for par in range(2)]
                    return r if m is None else [m] + r + ["s_mov_b64 exec, -1"]
                AH = 6
                for n in range(AH): emit(rdp(n))
                for n, (B, m, D, w) in enumerate(items):
                    if n + AH < len(items): emit(rdp(n + AH))
                    if w == 0: continue
                    a(f"s_waitcnt lgkmcnt({2*min(AH, len(items) - 1 - n)})")
                    if len(sets) == 2 and n < PLA:
                        for j in range(8): a(f"v_add_f32 v{D+j}, v{D+j}, v{D+8*w+j}")
                    else:
                        for j in range(4): a(f"v_pk_add_f32 v[{D+2*j}:{D+2*j+1}], v[{D+2*j}:{D+2*j+1}], v[{D+8*w+2*j}:{D+8*w+2*j+1}]")
                    if w == 7:
                        if n == 7 and len(sets) == 2: a("s_waitcnt vmcnt(0)")
                        for j in range(8): a(f"v_mul_f32 v{D+j}, v{B+4}, v{D+j}")
                        for j in range(4): a(f"v_cvt_pk_bf16_f32 v{D+j}, v{D+2*j}, v{D+2*j+1}")
                        if m: a(m)
                        a(f"buffer_store_dwordx4 v[{D}:{D+3}], v{B+3}, s[{SRD_M}:{SRD_M+3}], s{t} offen {OUTFL}")
                        if m: a("s_mov_b64 exec, -1")
            r2 = [f"s_mul_i32 s{t+3}, s{sWAVE}, 40", f"s_add_u32 s{t+3}, s{t+3}, 320"] + rd[3:5] + aset(170, 175, f"s{t+3}") + rd[-7:]
            emit(interleave(Yb(0), r2))
            prio(7)
            emit(interleave(Yb(1), wrl(0), 6))
            prio(8)
            if not R1E: emit(interleave(Yb(2), wrl(1), 6))
            if TAILDBG == 1: self.stamp(7, "tail")
            lo, lj = a.newlabel("L_ro"), a.newlabel("L_rj")
            a(f"s_cmp_lt_u32 s{sWAVE}, 4\ns_cbranch_scc1 {lo}")
            y3 = Yb(3)
            if R1E:
                y2 = Yb(2)
                emit(y2[:2] + interleave(y2[2:7], wrl(1)) + y2[7:R1E]); a("s_waitcnt lgkmcnt(0)\ns_barrier"); emit(y2[R1E:])
                emit(interleave(y3, wrl(2), 4, 10))
            else:
                emit(y3[:4]); a("s_waitcnt lgkmcnt(0)\ns_barrier"); emit(interleave(y3[4:], wrl(2), 2))
            a("s_nop 4")
            emit(wrl(3))
            a(f"s_waitcnt vmcnt(0)\ns_branch {lj}")
            a.label(lo)
            if R1E: emit(interleave(Yb(2), wrl(1), 6))
            emit(interleave(Yb(3), [f"s_mul_i32 s{t+3}, s{sWAVE}, 80"] + aset(200, 210, f"s{t+3}")[:5] + wrl(2) + aset(200, 210, "0")[5:]))
            a(f"s_add_u32 s{t+3}, s{t+3}, 64")
            emit(aset(205, 210, f"s{t+3}")[:8] + wrl(3) + aset(205, 210, "0")[8:])
            a("s_waitcnt lgkmcnt(0)\ns_barrier")
            rsum([(200, None, 0), (205, "s_mov_b64 exec, 0xffff", 64)])
            a.label(lj)
            a("s_waitcnt lgkmcnt(0)\ns_barrier")
            self.stamp(9)
            rsum([(170, "s_mov_b32 exec_hi, 0xff", 128 - 48)])
            return
        emit(interleave(Yb(0), rd[:25]))
        prio(7)
        emit(interleave(Yb(1), rd[25:] + wrl(0), 2))
        prio(8)
        emit(interleave(Yb(2), wrl(1), 6))
        emit(interleave(Yb(3), wrl(2), 6))
        a("s_nop 4")
        emit(wrl(3))
        a("s_waitcnt lgkmcnt(0)\ns_barrier")
        self.stamp(9)
        if RED == 0:
            for k in range(2):
                if k == 1: a("s_mov_b64 exec, 0xffff")
                R = 64*k
                for w in range(8):
                    for par in range(2):
                        base = [RA + k, RA + 6 + k, RA + 8 + k][w // 3]
                        a(f"ds_read_b128 v[{R+8*w+4*par}:{R+8*w+4*par+3}], v{base} offset:{20480*(w % 3) + 10240*par}")
            a("s_mov_b64 exec, -1")
            for k in range(2):
                R = 64*k
                a(f"s_waitcnt lgkmcnt({15 if k == 0 else 0})")
                for pairs in (((0, 4), (1, 5), (2, 6), (3, 7)), ((0, 2), (1, 3)), ((0, 1),)):
                    for x, y in pairs:
                        for j in range(4):
                            a(f"v_pk_add_f32 v[{R+8*x+2*j}:{R+8*x+2*j+1}], v[{R+8*x+2*j}:{R+8*x+2*j+1}], v[{R+8*y+2*j}:{R+8*y+2*j+1}]")
                if k == 0: a("s_waitcnt vmcnt(0)")
                for j in range(8): a(f"v_mul_f32 v{R+j}, v{TA+2+k}, v{R+j}")
                for j in range(4): a(f"v_cvt_pk_bf16_f32 v{R+j}, v{R+2*j}, v{R+2*j+1}")
                if k == 1: a("s_mov_b64 exec, 0xffff")
                a(f"buffer_store_dwordx4 v[{R}:{R+3}], v{RA+4+k}, s[{SRD_M}:{SRD_M+3}], s{t} offen {OUTFL}")
            a("s_mov_b64 exec, -1")


        else:
            items = [(k, w) for k in range(2) for w in range(8)]
            def rdp(n):
                k, w = items[n]
                base = [RA + k, RA + 6 + k, RA + 8 + k][w // 3]
                r = [f"ds_read_b128 v[{8*n+4*par}:{8*n+4*par+3}], v{base} offset:{20480*(w % 3) + 10240*par}" for par in range(2)]
                return r if k == 0 else ["s_mov_b64 exec, 0xffff"] + r + ["s_mov_b64 exec, -1"]
            AH = 6
            for n in range(AH): emit(rdp(n))
            for n, (k, w) in enumerate(items):
                if n + AH < 16: emit(rdp(n + AH))
                if w == 0: continue
                a(f"s_waitcnt lgkmcnt({2*min(AH, 15 - n)})")
                R = 64*k
                for j in range(4):
                    a(f"v_pk_add_f32 v[{R+2*j}:{R+2*j+1}], v[{R+2*j}:{R+2*j+1}], v[{8*n+2*j}:{8*n+2*j+1}]")
                if w == 7:
                    if k == 0: a("s_waitcnt vmcnt(0)")
                    for j in range(8): a(f"v_mul_f32 v{R+j}, v{TA+2+k}, v{R+j}")
                    for j in range(4): a(f"v_cvt_pk_bf16_f32 v{R+j}, v{R+2*j}, v{R+2*j+1}")
                    if k == 1: a("s_mov_b64 exec, 0xffff")
                    a(f"buffer_store_dwordx4 v[{R}:{R+3}], v{RA+4+k}, s[{SRD_M}:{SRD_M+3}], s{t} offen {OUTFL}")
            a("s_mov_b64 exec, -1")


DOC = """
; ------------------------------------------------------------------------------------------------
;   P  blocks: 192 hidden columns -> mish -> d_ws (MFMA fragment order); spare tile = phi(q) or the gate.
;   mish(h) = h*tanh(softplus(h)) = h - h*2/((1+e^h)^2+1);  phi(t) = max(min(e^t,1), t+1) + 1e-6.
; ------------------------------------------------------------------------------------------------
"""

def descriptor(name):
    return f""".p2align 6
.amdhsa_kernel {name}
  .amdhsa_next_free_vgpr 256
  .amdhsa_next_free_sgpr 102
  .amdhsa_accum_offset 256
  .amdhsa_group_segment_fixed_size 0
  .amdhsa_kernarg_size 88
  .amdhsa_user_sgpr_count 2
  .amdhsa_user_sgpr_kernarg_segment_ptr 1
  .amdhsa_system_sgpr_workgroup_id_x 1
.end_amdhsa_kernel
"""

def build(stamps):
    ALT = 72 if ADPRE == 2 else None
    assert not (ADPRE == 2 and NE16)
    assert not LFLAG or (ROT2 == "none" and PQAT == 1 and not EARLYQ and WOPOS != "pre")
    g = Gen(stamps=stamps)
    a = g.a
    K = NAME + "_kernel"
    hdr = open(os.path.join(os.path.dirname(os.path.abspath(__file__)), "header.txt")).read()
    for l in hdr.strip().split("\n"): a.lines.append(l)
    a(f"; @launch grid=(256,1,1) block=(512,1,1) lds={LDS_TOTAL}")
    for l in DOC.strip().split("\n"): a.lines.append(l)
    a('.amdgcn_target "amdgcn-amd-amdhsa--gfx950"\n.text')
    a(f".globl {K}\n.p2align 8\n.type {K},@function")
    a.label(K)
    g.common_prologue("L_end")
    a(f"s_cmp_lt_u32 s{sWAVE}, 4\ns_cbranch_scc1 L_comp")
    g.loader1()
    a(f"s_setprio {LPRIO}")
    if not NE16:
        g.setup2(ADPRE != 2)
        g.srd(SRD_WS, pWS, WS_SIZE)
    g.preload_b(NE16, NL0, alt=ALT)
    if K1LDS: a(f"v_mov_b32 v76, {K1C}\nv_mov_b32 v77, 0\nds_write_b32 v76, v77\ns_waitcnt lgkmcnt(0)")
    a("s_barrier")
    if SKEW: a(f"v_mov_b32 v6, {HINT}\nv_mov_b32 v8, 0\nv_mov_b32 v9, 0\nv_mov_b32 v10, 0\nv_mov_b32 v11, 0\nds_write_b128 v6, v[8:11]\ns_waitcnt lgkmcnt(0)")
    g.preload_b(NL0, NL1, TH, alt=ALT)
    if not K1LDS: a(f"s_cmp_lg_u32 s{sTYPE}, 0\ns_cbranch_scc1 L_l2\ns_barrier")
    a.label("L_l2")
    if DIAG != 3: g.preload_b(NL1, 5*NB, TH, alt=ALT)
    if BLDS and DIAG != 3: g.stage_b()
    g.stamp(3)
    a.label("L_g2")
    g.gemm2()
    g.dump_stamps()
    a.label("L_end")
    a("s_endpgm")
    a.label("L_comp")
    a(f"s_cmp_eq_u32 s{sTYPE}, 0\ns_cbranch_scc1 L_kv")
    g.compute_P(); a("s_branch L_g2")
    a.label("L_kv")
    g.compute_KV(); a("s_branch L_g2")
    a.label("L_code_end")
    errs = lint(a.lines)
    for e in errs: print("HAZARD:", e, file=sys.stderr)
    return a.text() + '.section .rodata,"a"\n' + descriptor(K)

if __name__ == "__main__":
    open(sys.argv[1], "w").write(build(sys.argv[2] if len(sys.argv) > 2 else False))
```
